```python
import torch

def _softmax(x, axis=-1):
    return torch.softmax(x, dim=axis)
def _gelu(x):
    return torch.nn.functional.gelu(x, approximate="tanh")
def _silu(x):
    return torch.nn.functional.silu(x)
def _sigmoid(x):
    return torch.sigmoid(x)
def _layernorm(x, axis=-1, eps=1e-5):
    m = x.mean(dim=axis, keepdim=True)
    v = x.var(dim=axis, keepdim=True, unbiased=False)
    return (x - m) / torch.sqrt(v + eps)
def _scatter_add(tgt, idx, src, axis=0):
    return tgt.clone().index_add_(axis, idx, src)
def _segment_sum(src, seg, n):
    out = torch.zeros((n,) + src.shape[1:], dtype=src.dtype)
    return out.index_add_(0, seg, src)
def _pad(x, pw):
    flat = tuple(v for pair in reversed(pw) for v in pair)
    return torch.nn.functional.pad(x, flat)

kernel_name = 'interleave_layers__gqa_block_cached__mixer_channel_mlp__decode'

def setup_inputs():

    _w = (lambda a: (lambda t: t.to(torch.bfloat16) if t.is_floating_point() else t)(torch.as_tensor(a)))
    def _A_setup():
        B, Sq, D = 1, 1, 640
        Hq, Hkv, Sk, Dh = 32, 32, 4096, 128
        assert Hq % Hkv == 0, (Hq, Hkv)
        return {
            "x": _w((lambda *s: torch.randn(*s, dtype=torch.bfloat16) * 0.05)(B, Sq, D)),
            "k_cache": _w((lambda *s: torch.randn(*s, dtype=torch.bfloat16) * 3.2)(B, Hkv, Sk, Dh)),
            "v_cache": _w((lambda *s: torch.randn(*s, dtype=torch.bfloat16) * 0.4)(B, Hkv, Sk, Dh)),
            "wq": _w((lambda *s: torch.randn(*s, dtype=torch.bfloat16) * 3.2)(D, Hq * Dh) * (D ** -0.5)),
            "wo": _w((lambda *s: torch.randn(*s, dtype=torch.bfloat16) * 0.4)(Hq * Dh, D) * ((Hq * Dh) ** -0.5)),
        }
    _A_in = _A_setup()

    def _B_setup():
        B, S, D, F = 1, 1, 640, 1728
        return {
            "x": _w((lambda *s: torch.randn(*s, dtype=torch.bfloat16) * 0.05)(B, S, D)),
            "w1": _w((lambda *s: torch.randn(*s, dtype=torch.bfloat16) * 0.4)(D, F) * (D ** -0.5)),
            "b1": _w((lambda *s: torch.randn(*s, dtype=torch.bfloat16) * 0.4)(F)),
            "w2": _w((lambda *s: torch.randn(*s, dtype=torch.bfloat16) * 0.4)(F, D) * (F ** -0.5)),
            "b2": _w((lambda *s: torch.randn(*s, dtype=torch.bfloat16) * 0.2)(D)),
        }
    _B_in = _B_setup()

    return {
        "A_x": _A_in["x"],
        "A_k_cache": _A_in["k_cache"],
        "A_v_cache": _A_in["v_cache"],
        "A_wq": _A_in["wq"],
        "A_wo": _A_in["wo"],
        "B_x": _B_in["x"],
        "B_w1": _B_in["w1"],
        "B_b1": _B_in["b1"],
        "B_w2": _B_in["w2"],
        "B_b2": _B_in["b2"],
    }

def reference(A_x, A_k_cache, A_v_cache, A_wq, A_wo, B_x, B_w1, B_b1, B_w2, B_b2):
    def _A_ref(x, k_cache, v_cache, wq, wo):
        B, Sq, D = x.shape
        Hq, Dh = 32, 128
        Hkv = k_cache.shape[1]
        rep = Hq // Hkv
        q = (lambda x, *d: x.permute(*d))((x @ wq).reshape(B, Sq, Hq, Dh), 0, 2, 1, 3)
        k = (lambda x, n, axis: torch.repeat_interleave(x, n, dim=axis))(k_cache, rep, axis=1)
        v = (lambda x, n, axis: torch.repeat_interleave(x, n, dim=axis))(v_cache, rep, axis=1)
        scores = torch.einsum("bhqd,bhkd->bhqk", q, k) * (Dh ** -0.5)
        p = _softmax(scores, axis=-1)
        o = torch.einsum("bhqk,bhkd->bhqd", p, v)
        return (lambda x, *d: x.permute(*d))(o, 0, 2, 1, 3).reshape(B, Sq, Hq * Dh) @ wo

    def _B_ref(x, w1, b1, w2, b2):
        y = _layernorm(x, axis=-1)
        h = _gelu(torch.einsum("bsd,df->bsf", y, w1) + b1)
        return torch.einsum("bsf,fd->bsd", h, w2) + b2

    x = A_x
    x = x + _A_ref(_layernorm(x, axis=-1), A_k_cache, A_v_cache, A_wq, A_wo)
    x = x + _B_ref(_layernorm(x, axis=-1), B_w1, B_b1, B_w2, B_b2)
    x = x + _A_ref(_layernorm(x, axis=-1), A_k_cache, A_v_cache, A_wq, A_wo)
    x = x + _B_ref(_layernorm(x, axis=-1), B_w1, B_b1, B_w2, B_b2)
    return x
```

```python
import re

TRANS = ("v_exp_f32", "v_log_f32", "v_rcp_f32", "v_rsq_f32", "v_sqrt_f32", "v_sin_f32", "v_cos_f32", "v_rcp_iflag_f32")
NODST_S = ("s_cmp", "s_cbranch", "s_branch", "s_waitcnt", "s_barrier", "s_nop", "s_endpgm", "s_setprio", "s_bitcmp")

REG_RE = re.compile(r"^(-|abs\()?([vsa])(\d+|\[(\d+):(\d+)\])\)?$")


def regs_of(tok):
    tok = tok.strip()
    if tok in ("vcc",):
        return {("vcc", 0)}
    if tok in ("vcc_lo", "vcc_hi"):
        return {("vcc", 0)}
    if tok in ("exec", "exec_lo", "exec_hi"):
        return {("exec", 0)}
    if tok == "m0":
        return {("m0", 0)}
    if tok == "scc":
        return set()
    m = REG_RE.match(tok)
    if not m:
        return set()
    k = m.group(2)
    if m.group(4) is not None:
        return {(k, i) for i in range(int(m.group(4)), int(m.group(5)) + 1)}
    return {(k, int(m.group(3)))}


class Rec:
    __slots__ = ("op", "cls", "rd", "wr", "dpp", "trans", "mfma_c", "mfma_d", "wide_data", "states", "lanesel", "mfma_ab", "text")


def parse(text):
    t = text.split(";")[0].strip()
    sp = t.split(None, 1)
    op = sp[0]
    rest = sp[1] if len(sp) > 1 else ""
    ops, cur, depth = [], "", 0
    for ch in rest:
        if ch == "[":
            depth += 1
        if ch == "]":
            depth -= 1
        if ch == "," and depth == 0:
            ops.append(cur.strip()); cur = ""
        else:
            cur += ch
    if cur.strip():
        ops.append(cur.strip())
    mods = ""
    if ops:
        last = ops[-1].split(None, 1)
        ops[-1] = last[0]
        if len(last) > 1:
            mods = last[1]
    r = Rec()
    r.op = op; r.text = text
    r.rd = set(); r.wr = set(); r.dpp = False; r.trans = False
    r.mfma_c = None; r.mfma_d = None; r.wide_data = None; r.states = 1; r.lanesel = set(); r.mfma_ab = None
    R = [regs_of(o) for o in ops]
    if op == "s_nop":
        r.cls = "salu"; r.states = int(ops[0], 0) + 1
        return r
    if op.startswith("v_mfma"):
        r.cls = "mfma"
        r.wr = R[0]; r.mfma_d = R[0]
        r.mfma_ab = R[1] | R[2]
        r.mfma_c = R[3]
        r.rd = R[1] | R[2] | R[3]
        return r
    if op.startswith("v_"):
        r.cls = "valu"
        r.dpp = ("_dpp" in op) or ("quad_perm" in mods) or ("row_" in mods)
        base = op.replace("_dpp", "").replace("_e32", "").replace("_e64", "")
        r.trans = base in TRANS
        if base.startswith("v_permlane") and "swap" in base:
            r.wr = R[0] | R[1]; r.rd = R[0] | R[1]
        elif base.startswith("v_cmp"):
            r.wr = R[0]
            for x in R[1:]: r.rd |= x
        elif base in ("v_add_co_u32", "v_sub_co_u32", "v_addc_co_u32", "v_subb_co_u32"):
            r.wr = R[0] | R[1]
            for x in R[2:]: r.rd |= x
        else:
            r.wr = R[0]
            for x in R[1:]: r.rd |= x
            if base.startswith("v_fmac") or base.startswith("v_pk_fmac") or r.dpp or base == "v_writelane_b32":
                r.rd |= R[0]
            if base in ("v_readlane_b32", "v_writelane_b32"):
                r.lanesel = R[2]
        return r
    if op.startswith("ds_"):
        r.cls = "ds"
        if op.startswith("ds_read") or "permute" in op or op.startswith("ds_swizzle"):
            r.wr = R[0]
            for x in R[1:]: r.rd |= x
        else:
            for x in R: r.rd |= x
        return r
    if op.startswith("buffer_") or op.startswith("global_"):
        r.cls = "vmem"
        islds = re.search(r"\blds\b", mods) is not None
        if "load" in op and not islds:
            r.wr = R[0]
            for x in R[1:]: r.rd |= x
        else:
            for x in R: r.rd |= x
            if islds:
                r.rd |= {("m0", 0)}
                r.cls = "vmem_lds"
            if "store" in op and ("x4" in op or "x3" in op):
                r.wide_data = R[0]
            if "atomic" in op and "sc0" in mods:
                r.wr = R[0]
        return r
    if op.startswith("s_"):
        r.cls = "salu"
        if op.startswith("s_load") or op.startswith("s_mem") or op.startswith("s_buffer_load"):
            r.cls = "smem"
        if any(op.startswith(p) for p in NODST_S):
            for x in R: r.rd |= x
            if "vcc" in op: r.rd |= {("vcc", 0)}
        else:
            r.wr = R[0] if R else set()
            for x in R[1:]: r.rd |= x
            if "saveexec" in op:
                r.wr |= {("exec", 0)}
        return r
    raise ValueError("unknown instr: " + text)


def need(p, c):
    n = 0
    isv = lambda s: {x for x in s if x[0] in ("v", "a")}
    iss = lambda s: {x for x in s if x[0] in ("s", "vcc")}
    if p.cls == "valu":
        pv = isv(p.wr); ps = iss(p.wr)
        if c.cls == "valu":
            if c.dpp and pv & c.rd: n = max(n, 2)
            if c.op.startswith("v_permlane") and pv & c.rd: n = max(n, 2)
            if (c.op.startswith("v_readlane") or c.op.startswith("v_readfirstlane")) and pv & c.rd: n = max(n, 1)
            if p.trans and pv & (c.rd | c.wr): n = max(n, 1)
            if ps & c.rd: n = max(n, 2)
            if ps & c.lanesel: n = max(n, 4)
            if c.op.startswith("v_cndmask") and ("vcc", 0) in ps: n = max(n, 2)
        if c.cls == "mfma" and pv & c.rd: n = max(n, 2)
        if c.cls in ("vmem", "vmem_lds") and ps & c.rd: n = max(n, 5)
        if c.cls in ("salu", "smem") and ps & c.rd and not c.op.startswith("s_cbranch"): n = max(n, 1)
        if p.trans and c.cls in ("vmem", "ds", "vmem_lds") and pv & c.rd: n = max(n, 1)
    if p.cls == "mfma":
        D = p.mfma_d
        if c.cls == "mfma":
            if D & c.mfma_ab: n = max(n, 8)
            if D & c.mfma_c and D != c.mfma_c: n = max(n, 6)
            if D & c.wr and not (D == c.mfma_c and D == c.wr): n = max(n, 8)
        elif c.cls in ("valu", "vmem", "ds", "vmem_lds"):
            if D & (c.rd | c.wr): n = max(n, 8)
            if c.cls == "valu" and p.mfma_c & c.wr: n = max(n, 3)
    if p.wide_data is not None:
        if p.wide_data & c.wr: n = max(n, 2)
    if p.cls == "salu" and ("m0", 0) in p.wr and c.cls == "vmem_lds": n = max(n, 1)
    return n


class Asm:
    HIST = 14

    def __init__(self):
        self.lines = []
        self.hists = [[]]
        self.snap = {}
        self.defined = set()
        self.nlab = 0
        self.ninstr = 0

    def raw(self, s):
        self.lines.append(s)

    def c(self, s):
        self.lines.append("  ; " + s)

    def _push(self, r):
        for h in self.hists:
            h.append(r)
            if len(h) > self.HIST:
                del h[0]

    def _required(self, r):
        pad = 0
        for h in self.hists:
            dist = 0
            for p in reversed(h):
                n = need(p, r)
                if n > dist:
                    pad = max(pad, n - dist)
                dist += p.states
                if dist >= 12:
                    break
        return pad

    def nop(self, n):
        while n > 0:
            k = min(n, 16)
            t = f"s_nop {k-1}"
            self.lines.append("  " + t)
            self._push(parse(t))
            self.ninstr += 1
            n -= k

    def I(self, text):
        for t in text.split("\n"):
            t = t.strip()
            if not t:
                continue
            r = parse(t)
            pad = self._required(r)
            if pad:
                self.nop(pad)
            isbr = r.op.startswith("s_cbranch") or r.op == "s_branch"
            if isbr:
                lab = t.split()[1]
                if lab in self.defined:
                    self.flush(1)
            self.lines.append("  " + t)
            self._push(r)
            self.ninstr += 1
            if isbr:
                lab = t.split()[1]
                if lab not in self.defined:
                    self.snap.setdefault(lab, []).extend([list(h) for h in self.hists])
                if r.op == "s_branch":
                    self.hists = [[]]
            if r.op == "s_endpgm":
                self.hists = [[]]

    def flush(self, credit=0):
        pad = 0
        for h in self.hists:
            dist = 0
            for p in reversed(h):
                worst = 0
                if p.cls == "mfma": worst = 8
                elif p.cls == "valu":
                    worst = 5 if any(x[0] in ("s", "vcc") for x in p.wr) else 2
                elif p.wide_data is not None: worst = 2
                elif p.cls == "salu" and ("m0", 0) in p.wr: worst = 1
                if worst > dist + credit:
                    pad = max(pad, worst - dist - credit)
                dist += p.states
        if pad:
            self.nop(pad)

    def label(self, name):
        self.lines.append(name + ":")
        self.defined.add(name)
        hs = [h for h in self.hists if h] + self.snap.pop(name, [])
        uniq = []
        seen = set()
        for h in hs:
            key = tuple(id(x) for x in h[-12:])
            if key not in seen:
                seen.add(key); uniq.append(list(h))
        self.hists = uniq if uniq else [[]]

    def newlab(self, p="L"):
        self.nlab += 1
        return f"{p}_{self.nlab}"

    def text(self):
        assert not self.snap, f"undefined labels: {list(self.snap)}"
        return "\n".join(self.lines) + "\n"
```

```python
import sys, struct, math
from asmlib import Asm

KNAME = "interleave_layers__gqa_block_cached__mixer_channel_mlp__decode_kernel"

RS = 0x40000
QOFF, POFF, ZOFF, X1OFF, HOFF, YOFF = 0x0, 0x8000, 0x28000, 0x2D000, 0x30000, 0x32000
DBGOFF = 0x100000
WS_SIZE = 0x200000
BIG = 0x40000000
PP = 544
L_PB1, L_PB2, L_CS1, L_CS2, L_QB, L_ML, L_FLAG, L_DUM, L_O, L_WQ, L_ROLE = (
    0, 2816, 7168, 7808, 8448, 8704, 8768, 8832, 10240, 18432, 38912)
LDS_TOTAL = 104448

def f2u(x):
    return struct.unpack("<I", struct.pack("<f", x))[0]

L2E = f2u(1.4426950408889634)
SCALE = f2u(128 ** -0.5)
GC1 = -2.0 * 1.4426950408889634 * math.sqrt(2.0 / math.pi)
GC2 = GC1 * 0.044715

sWAVE, sX, sR, sIT, sREG = 3, 4, 5, 6, 7
K_SRD, V_SRD, WS, TA, TB, OUTS = "s[8:11]", "s[12:15]", "s[16:19]", "s[20:23]", "s[24:27]", "s[28:31]"
sROLE, sPURE, sSPIN = 58, 59, 60
sT0, sT1, sT2, sT3, sT4 = 61, 62, 63, 72, 73
sF = 64
sXCC, sTB, sNT, sTSI = 74, 75, 76, 77
sL2E, sM = 80, 81
sRB, sRSTEP, sRN = 82, 83, 84
sKV = 85
vLANE = 0
vP4, vYO, vZO, vB2A, vB2B, vX, vPW, vSW, vQR, vOW, vMLW = 1, 2, 3, 4, 5, 6, 7, 8, 9, 10, 11
vA0, vA1, vA2, vA3 = 12, 13, 14, 15
vCAN = 16
vRDMA = 17
vTSI, vTST = 18, 19
vSEL = 20
vBQ = 28
vRB = 44
T = 76
vK, vV = 128, 192
vRR, vQP, vQG, vCSQ, vCS1, vB1, vRP = 1, 2, 3, 4, 5, 6, 8
vCR, vCML, vCP = 1, 2, 3


def vr(a, n=4):
    return f"v[{a}:{a+n-1}]"


def gen(fn, instr=False, kvflags="nt", wflags="", spin_limit=400000, canary=True):
    a = Asm()
    I = a.I
    a.raw(f"; @launch grid=(256,1,1) block=(512,1,1) lds={LDS_TOTAL}")
    a.raw('.amdgcn_target "amdgcn-amd-amdhsa--gfx950"')
    a.raw(".text")
    a.raw(f".globl {KNAME}\n.p2align 8\n.type {KNAME},@function\n{KNAME}:")

    def TS(k):
        if not instr:
            return
        I("s_memrealtime s[78:79]")
        I("s_waitcnt lgkmcnt(0)")
        I(f"v_writelane_b32 v{vTSI}, {k}, s{sTSI}")
        I(f"s_mov_b32 m0, s{sTSI}")
        I(f"v_writelane_b32 v{vTST}, s78, m0")
        I(f"s_add_u32 s{sTSI}, s{sTSI}, 1")

    def srd(dst, ptr, size):
        d = int(dst[2:].split(":")[0])
        I(f"s_mov_b32 s{d}, s{ptr}")
        I(f"s_mov_b32 s{d+1}, s{ptr+1}")
        I(f"s_mov_b32 s{d+2}, {size:#x}")
        I(f"s_mov_b32 s{d+3}, 0x20000")

    def setexec(lo, hi):
        if lo == 0xFFFFFFFF and hi == 0xFFFFFFFF:
            I("s_mov_b64 exec, -1")
        else:
            I(f"s_mov_b32 exec_lo, {lo:#x}")
            I(f"s_mov_b32 exec_hi, {hi:#x}")

    def poll(loads, regs):
        lab = a.newlab("Lp"); done = a.newlab("Lpd")
        a.label(lab)
        for l in loads:
            I(l)
        I(f"s_add_u32 s{sSPIN}, s{sSPIN}, 1")
        I("s_waitcnt vmcnt(0)")
        tmp = T + 50
        rs = list(regs)
        if len(rs) == 1:
            cur = rs[0]
        else:
            cur = None
            while rs:
                if cur is None:
                    if len(rs) >= 3:
                        I(f"v_max3_u32 v{tmp}, v{rs[0]}, v{rs[1]}, v{rs[2]}"); rs = rs[3:]
                    else:
                        I(f"v_max_u32 v{tmp}, v{rs[0]}, v{rs[1]}"); rs = rs[2:]
                    cur = tmp
                elif len(rs) >= 2:
                    I(f"v_max3_u32 v{tmp}, v{tmp}, v{rs[0]}, v{rs[1]}"); rs = rs[2:]
                else:
                    I(f"v_max_u32 v{tmp}, v{tmp}, v{rs[0]}"); rs = rs[1:]
        I(f"v_cmp_eq_u32 vcc, -1, v{cur}")
        I(f"s_cbranch_vccz {done}")
        I(f"s_cmp_lt_u32 s{sSPIN}, {spin_limit}")
        I(f"s_cbranch_scc1 {lab}")
        a.label(done)

    def lstore(ins):
        l1 = a.newlab("Ls"); l2 = a.newlab("Lsd")
        I(f"s_cmp_eq_u32 s{sPURE}, 0")
        I(f"s_cbranch_scc1 {l1}")
        for x in ins: I(x)
        I(f"s_branch {l2}")
        a.label(l1)
        for x in ins: I(x + " sc1")
        a.label(l2)

    def unpack(lo, hi, src):
        I(f"v_lshlrev_b32 v{lo}, 16, v{src}")
        I(f"v_and_b32 v{hi}, 0xffff0000, v{src}")

    I("s_cmp_ge_u32 s2, 256")
    I("s_cbranch_scc1 L_end")
    I("s_load_dwordx16 s[32:47], s[0:1], 0")
    I("s_load_dwordx8 s[48:55], s[0:1], 64")
    I("s_load_dwordx2 s[56:57], s[0:1], 96")
    I("v_lshrrev_b32 v1, 6, v0")
    I(f"v_and_b32 v{vLANE}, 63, v0")
    I(f"v_readfirstlane_b32 s{sWAVE}, v1")
    I(f"s_and_b32 s{sX}, s2, 7")
    I(f"s_lshr_b32 s{sR}, s2, 3")
    I(f"s_mov_b32 s{sIT}, 0")
    I(f"s_mov_b32 s{sREG}, 0")
    I(f"s_mov_b32 s{sSPIN}, 0")
    I(f"s_mov_b32 s{sPURE}, 0")
    I(f"s_mov_b32 s{sTSI}, 0")
    I(f"s_mov_b32 s{sL2E}, {L2E:#x}")
    I(f"s_getreg_b32 s{sXCC}, hwreg(HW_REG_XCC_ID)")
    I(f"s_and_b32 s{sXCC}, s{sXCC}, 15")
    I(f"s_mul_i32 s{sTB}, s{sX}, 7")
    I(f"s_cmp_eq_u32 s{sX}, 7")
    I(f"s_cselect_b32 s{sT0}, 1, 0")
    I(f"s_sub_u32 s{sTB}, s{sTB}, s{sT0}")
    I(f"s_cmp_lt_u32 s{sX}, 6")
    I(f"s_cselect_b32 s{sNT}, 7, 6")
    I(f"s_mov_b32 s{sROLE}, 2")
    I(f"s_cmp_lt_u32 s{sR}, 27")
    I(f"s_cselect_b32 s{sROLE}, 3, s{sROLE}")
    I(f"s_add_u32 s{sT0}, s{sNT}, 20")
    I(f"s_cmp_lt_u32 s{sR}, s{sT0}")
    I(f"s_cselect_b32 s{sROLE}, 1, s{sROLE}")
    I(f"s_cmp_lt_u32 s{sR}, 20")
    I(f"s_cselect_b32 s{sROLE}, 0, s{sROLE}")
    g, n, q4, c4, t0, t1, t2, t3 = T, T+1, T+2, T+3, T+4, T+5, T+6, T+7
    I(f"v_lshrrev_b32 v{g}, 4, v{vLANE}")
    I(f"v_and_b32 v{n}, 15, v{vLANE}")
    I(f"v_bfe_u32 v{q4}, v{vLANE}, 2, 2")
    I(f"v_and_b32 v{c4}, 3, v{vLANE}")
    for i in range(1, 18):
        I(f"v_mov_b32 v{i}, {BIG:#x}")
    if instr:
        I(f"v_mov_b32 v{vTSI}, -1")
        I(f"v_mov_b32 v{vTST}, 0")
    I(f"s_lshl_b32 s{sKV}, s{sX}, 5")
    I(f"s_add_u32 s{sKV}, s{sKV}, s{sR}")
    I(f"s_mov_b32 s{sT4}, s{sKV}")
    I(f"s_lshl_b32 s{sKV}, s{sKV}, 17")
    I(f"s_lshl_b32 s{sT0}, s{sWAVE}, 14")
    I(f"s_add_u32 s{sKV}, s{sKV}, s{sT0}")
    I("s_waitcnt lgkmcnt(0)")
    srd(K_SRD, 34, 32 << 20)
    srd(V_SRD, 36, 32 << 20)
    srd(WS, 56, WS_SIZE)
    srd(OUTS, 52, 1280)
    TS(0)

    I(f"s_cmp_ge_u32 s{sWAVE}, 5")
    I("s_cbranch_scc1 L_init567")
    I(f"v_lshlrev_b32 v{t0}, 4, v{q4}")
    I(f"v_lshl_add_u32 v{t1}, v{g}, 2, v{c4}")
    I(f"v_add_u32 v{t0}, v{t0}, v{t1}")
    I(f"s_lshl_b32 s{sT0}, s{sWAVE}, 8")
    I(f"v_lshlrev_b32 v{vP4}, 2, v{t0}")
    I(f"v_add_u32 v{vP4}, s{sT0}, v{vP4}")
    srd(TA, 32, 1280)
    srd(TB, 50, 1280)
    I(f"buffer_load_dword v{vX}, v{vP4}, {TA}, 0 offen")
    I(f"buffer_load_dword v{vB2B}, v{vP4}, {TB}, 0 offen")
    srd(TA, 38, 640 * 8192)
    I(f"v_lshrrev_b32 v{t2}, 1, v{vLANE}")
    I(f"v_lshlrev_b32 v{t2}, 13, v{t2}")
    I(f"v_and_b32 v{t3}, 1, v{vLANE}")
    I(f"v_lshl_add_u32 v{t2}, v{t3}, 4, v{t2}")
    I(f"s_lshl_b32 s{sT0}, s{sWAVE}, 20")
    I(f"s_lshl_b32 s{sT1}, s{sT4}, 5")
    I(f"s_add_u32 s{sT0}, s{sT0}, s{sT1}")
    I(f"s_lshl_b32 s{sT1}, s{sWAVE}, 12")
    I(f"s_add_u32 s{sT1}, s{sT1}, {L_WQ}")
    I(f"s_mov_b32 m0, s{sT1}")
    for e in range(4):
        I(f"buffer_load_dwordx4 v{t2}, {TA}, s{sT0} offen offset:{e*1024} lds {wflags}")
        if e < 3:
            I(f"s_add_u32 s{sT0}, s{sT0}, {32*8192 - 1024}")
    I(f"s_lshl_b32 s{sT0}, s{sWAVE}, 12")
    I(f"v_lshlrev_b32 v{vYO}, 3, v{t0}")
    I(f"v_add_u32 v{vYO}, s{sT0}, v{vYO}")
    I(f"v_lshlrev_b32 v{vZO}, 10, v{q4}")
    I(f"v_lshl_add_u32 v{vZO}, v{t1}, 3, v{vZO}")
    I(f"v_add_u32 v{vZO}, s{sT0}, v{vZO}")
    I(f"s_mul_i32 s{sT0}, s{sWAVE}, {PP}")
    I(f"s_add_u32 s{sT0}, s{sT0}, {L_PB1 + 512}")
    I(f"v_lshlrev_b32 v{t2}, 2, v{g}")
    I(f"v_add_u32 v{t2}, s{sT0}, v{t2}")
    I(f"v_lshlrev_b32 v{t3}, 2, v{vLANE}")
    I(f"v_add_u32 v{t3}, {L_DUM}, v{t3}")
    I(f"v_cmp_eq_u32 vcc, v{q4}, v{g}")
    I(f"v_cndmask_b32 v{vSW}, v{t3}, v{t2}, vcc")
    I(f"s_lshl_b32 s{sT0}, s{sX}, 10")
    I(f"s_add_u32 s{sT0}, s{sT0}, {HOFF + 60}")
    I(f"v_lshlrev_b32 v{t2}, 7, v{vLANE}")
    I(f"v_add_u32 v{t2}, s{sT0}, v{t2}")
    I(f"v_mov_b32 v{t3}, {BIG:#x}")
    I(f"v_cmp_gt_u32 vcc, s{sNT}, v{vLANE}")
    I(f"v_cndmask_b32 v{vCAN}, v{t3}, v{t2}, vcc")
    I("s_branch L_initc")

    a.label("L_init567")
    I(f"s_cmp_eq_u32 s{sWAVE}, 6")
    I("s_cbranch_scc1 L_init6")
    I(f"s_cmp_eq_u32 s{sWAVE}, 7")
    I("s_cbranch_scc1 L_init7")
    I(f"v_lshlrev_b32 v{vRR}, 4, v{vLANE}")
    I(f"v_lshrrev_b32 v{t0}, 1, v{vLANE}")
    I(f"s_lshl_b32 s{sT0}, s{sT4}, 7")
    I(f"v_lshlrev_b32 v{vQP}, 2, v{t0}")
    I(f"v_add_u32 v{vQP}, s{sT0}, v{vQP}")
    I(f"s_and_b32 s{sT0}, s{sT0}, {~(7*128) & 0xffffffff:#x}")
    I(f"v_lshlrev_b32 v{vQG}, 7, v{t0}")
    I(f"v_and_b32 v{t1}, 1, v{vLANE}")
    I(f"v_lshl_add_u32 v{vQG}, v{t1}, 4, v{vQG}")
    I(f"v_add_u32 v{vQG}, s{sT0}, v{vQG}")
    I(f"s_lshl_b32 s{sT0}, s{sR}, 10")
    I(f"s_lshl_b32 s{sT1}, s{sX}, 7")
    I(f"s_add_u32 s{sT0}, s{sT0}, s{sT1}")
    I(f"s_add_u32 s{sT0}, s{sT0}, {ZOFF}")
    I(f"v_lshrrev_b32 v{t1}, 2, v{vLANE}")
    I(f"v_lshlrev_b32 v{t1}, 4, v{t1}")
    I(f"v_add_u32 v{vRP}, s{sT0}, v{t1}")
    I(f"v_mov_b32 v{vB1}, 0")
    I(f"s_cmp_eq_u32 s{sROLE}, 1")
    I("s_cbranch_scc0 L_initc")
    I(f"s_lshl_b32 s{sT0}, s{sX}, 3")
    I(f"s_add_u32 s{sT0}, s{sT0}, s{sR}")
    I(f"s_sub_u32 s{sT0}, s{sT0}, 20")
    I(f"s_lshl_b32 s{sT0}, s{sT0}, 7")
    I(f"s_add_u32 s{sT0}, s{sT0}, {HOFF}")
    I(f"v_lshlrev_b32 v{vRP}, 2, v{t0}")
    I(f"v_add_u32 v{vRP}, s{sT0}, v{vRP}")
    srd(TA, 46, 1728 * 2)
    I(f"s_add_u32 s{sT0}, s{sTB}, s{sR}")
    I(f"s_sub_u32 s{sT0}, s{sT0}, 20")
    I(f"s_lshl_b32 s{sT0}, s{sT0}, 6")
    I(f"v_and_b32 v{t1}, 31, v{vLANE}")
    I(f"v_lshlrev_b32 v{t1}, 1, v{t1}")
    I(f"buffer_load_ushort v{vB1}, v{t1}, {TA}, s{sT0} offen")
    I("s_waitcnt vmcnt(0)")
    I(f"v_lshlrev_b32 v{vB1}, 16, v{vB1}")
    I("s_branch L_initc")

    a.label("L_init6")
    I(f"s_lshl_b32 s{sT0}, s{sR}, 10")
    I(f"s_lshl_b32 s{sT1}, s{sX}, 7")
    I(f"s_add_u32 s{sT0}, s{sT0}, s{sT1}")
    I(f"s_add_u32 s{sRB}, s{sT0}, {ZOFF}")
    I(f"s_mov_b32 s{sRN}, 8")
    I(f"s_lshl_b32 s{sT0}, s{sX}, 3")
    I(f"s_add_u32 s{sT0}, s{sT0}, s{sR}")
    I(f"s_sub_u32 s{sT0}, s{sT0}, 20")
    I(f"s_lshl_b32 s{sT0}, s{sT0}, 7")
    I(f"s_add_u32 s{sT0}, s{sT0}, {HOFF}")
    I(f"s_cmp_eq_u32 s{sROLE}, 1")
    I(f"s_cselect_b32 s{sRB}, s{sT0}, s{sRB}")
    I(f"s_sub_u32 s{sT0}, s{sR}, 27")
    I(f"s_lshl_b32 s{sT0}, s{sT0}, 12")
    I(f"s_lshl_b32 s{sT1}, s{sX}, 9")
    I(f"s_add_u32 s{sT0}, s{sT0}, s{sT1}")
    I(f"s_add_u32 s{sT0}, s{sT0}, {YOFF}")
    I(f"s_cmp_eq_u32 s{sROLE}, 2")
    I(f"s_cselect_b32 s{sRB}, s{sT0}, s{sRB}")
    I(f"s_cselect_b32 s{sRN}, 32, s{sRN}")
    I(f"s_cmp_eq_u32 s{sROLE}, 3")
    I(f"s_cselect_b32 s{sRN}, 0, s{sRN}")
    I(f"v_lshlrev_b32 v{t0}, 4, v{vLANE}")
    I(f"s_sub_u32 s{sRB}, s{sRB}, 512")
    I(f"v_add_u32 v{t1}, s{sRB}, v{t0}")
    I(f"v_mov_b32 v{t2}, {BIG:#x}")
    I(f"s_add_u32 s{sRN}, s{sRN}, 32")
    I(f"v_cmp_gt_u32 vcc, s{sRN}, v{vLANE}")
    I(f"v_cndmask_b32 v{t1}, v{t2}, v{t1}, vcc")
    I(f"s_lshl_b32 s{sT0}, s{sT4}, 9")
    I(f"s_add_u32 s{sT0}, s{sT0}, {POFF - 128}")
    I(f"v_add_u32 v{t2}, s{sT0}, v{t0}")
    I(f"v_cmp_gt_u32 vcc, 32, v{vLANE}")
    I(f"v_cndmask_b32 v{t1}, v{t1}, v{t2}, vcc")
    I(f"s_lshl_b32 s{sT0}, s{sT4}, 7")
    I(f"v_add_u32 v{t2}, s{sT0}, v{t0}")
    I(f"v_cmp_gt_u32 vcc, 8, v{vLANE}")
    I(f"v_cndmask_b32 v{t1}, v{t1}, v{t2}, vcc")
    cl = T + 8
    for i in range(4):
        I(f"v_mov_b32 v{cl+i}, -1")
    I(f"s_mov_b32 s{sT1}, {RS}")
    I(f"buffer_store_dwordx4 {vr(cl)}, v{t1}, {WS}, 0 offen sc1")
    I(f"buffer_store_dwordx4 {vr(cl)}, v{t1}, {WS}, s{sT1} offen sc1")
    I(f"s_cmp_eq_u32 s{sR}, 20")
    I("s_cbranch_scc0 L_clr_done")
    I(f"s_mul_i32 s{sT0}, s{sX}, 1280")
    I(f"s_add_u32 s{sT0}, s{sT0}, {X1OFF}")
    I(f"s_add_u32 s{sT1}, s{sT0}, {RS}")
    I(f"buffer_store_dwordx4 {vr(cl)}, v{t0}, {WS}, s{sT0} offen sc1")
    I(f"buffer_store_dwordx4 {vr(cl)}, v{t0}, {WS}, s{sT1} offen sc1")
    setexec(0xFFFF, 0)
    I(f"buffer_store_dwordx4 {vr(cl)}, v{t0}, {WS}, s{sT0} offen offset:1024 sc1")
    I(f"buffer_store_dwordx4 {vr(cl)}, v{t0}, {WS}, s{sT1} offen offset:1024 sc1")
    setexec(0xFFFFFFFF, 0xFFFFFFFF)
    a.label("L_clr_done")
    I(f"s_mul_i32 s{sT0}, s{sXCC}, 6")
    I(f"s_lshl_b64 s[{sF}:{sF+1}], 1, s{sT0}")
    I(f"s_cmp_lt_u32 s{sXCC}, 8")
    I(f"s_cselect_b32 s{sF}, s{sF}, 0")
    I(f"s_cselect_b32 s{sF+1}, s{sF+1}, 0")
    I(f"s_or_b32 s{sF+1}, s{sF+1}, 0x10000")
    srd(TA, 54, 256)
    I(f"v_mov_b32 v{t2}, s{sF}")
    I(f"v_mov_b32 v{t3}, s{sF+1}")
    I(f"s_lshl_b32 s{sT0}, s{sX}, 3")
    I(f"v_mov_b32 v{t0}, s{sT0}")
    I("s_waitcnt vmcnt(0)")
    setexec(1, 0)
    I(f"buffer_atomic_add_x2 v[{t2}:{t3}], v{t0}, {TA}, 0 offen sc1")
    setexec(0xFFFFFFFF, 0xFFFFFFFF)
    I("s_waitcnt vmcnt(0)")
    I("s_branch L_initc")

    a.label("L_init7")
    I(f"v_lshlrev_b32 v{vCR}, 3, v{vLANE}")
    I(f"v_add_u32 v{vCR}, {L_O}, v{vCR}")
    I(f"v_and_b32 v{t0}, 7, v{vLANE}")
    I(f"v_lshlrev_b32 v{vCML}, 3, v{t0}")
    I(f"v_add_u32 v{vCML}, {L_ML}, v{vCML}")
    I(f"s_lshl_b32 s{sT0}, s{sT4}, 9")
    I(f"s_add_u32 s{sT0}, s{sT0}, {POFF}")
    I(f"v_lshlrev_b32 v{vCP}, 2, v{vLANE}")
    I(f"v_add_u32 v{vCP}, s{sT0}, v{vCP}")

    a.label("L_initc")
    I(f"s_mov_b32 s{sRN}, 0")
    I(f"s_mov_b32 s{sRB}, 0")
    I(f"s_mov_b32 s{sRSTEP}, 0")
    srd(TB, 40, 4096 * 1280)
    I(f"v_lshrrev_b32 v{t0}, 2, v{vLANE}")
    I(f"v_lshlrev_b32 v{t1}, 4, v{c4}")
    I(f"s_cmp_eq_u32 s{sROLE}, 0")
    I("s_cbranch_scc0 L_rp1")
    I(f"s_lshl_b32 s{sT0}, s{sX}, 3")
    I(f"s_add_u32 s{sT0}, s{sT0}, s{sWAVE}")
    I(f"s_mul_i32 s{sT0}, s{sT0}, {64*1280}")
    I(f"s_lshl_b32 s{sT1}, s{sR}, 6")
    I(f"s_add_u32 s{sRB}, s{sT0}, s{sT1}")
    I(f"s_mov_b32 s{sRSTEP}, {16*1280}")
    I(f"s_mov_b32 s{sRN}, 4")
    I(f"v_mul_u32_u24 v{vRDMA}, 1280, v{t0}")
    I(f"v_add_u32 v{vRDMA}, v{vRDMA}, v{t1}")
    I(f"s_lshr_b32 s{sT0}, s{sWAVE}, 1")
    I(f"s_lshl_b32 s{sT0}, s{sT0}, 12")
    I(f"s_lshl_b32 s{sT1}, s{sX}, 14")
    I(f"s_add_u32 s{sT0}, s{sT0}, s{sT1}")
    I(f"s_add_u32 s{sT0}, s{sT0}, {POFF}")
    I(f"s_and_b32 s{sT1}, s{sWAVE}, 1")
    I(f"s_lshl_b32 s{sT1}, s{sT1}, 7")
    I(f"s_add_u32 s{sT1}, s{sT1}, s{sT0}")
    I(f"v_and_b32 v{t2}, 7, v{vLANE}")
    I(f"v_lshlrev_b32 v{t2}, 9, v{t2}")
    I(f"v_lshl_add_u32 v{t2}, v{g}, 4, v{t2}")
    I(f"v_bfe_u32 v{t3}, v{vLANE}, 3, 1")
    I(f"v_lshl_add_u32 v{t2}, v{t3}, 6, v{t2}")
    I(f"v_add_u32 v{t2}, s{sT1}, v{t2}")
    I(f"v_mov_b32 v{t0}, {BIG:#x}")
    I(f"v_cmp_eq_u32 vcc, 0, v{t3}")
    I(f"v_cndmask_b32 v{vA0}, v{t0}, v{t2}, vcc")
    I(f"v_cndmask_b32 v{vA1}, v{t2}, v{t0}, vcc")
    I(f"v_and_b32 v{t2}, 1, v{g}")
    I(f"v_lshl_add_u32 v{t2}, v{t2}, 2, v{c4}")
    I(f"v_lshlrev_b32 v{t2}, 9, v{t2}")
    I(f"s_add_u32 s{sT0}, s{sT0}, 256")
    I(f"v_add_u32 v{vA2}, s{sT0}, v{t2}")
    I(f"v_xor_b32 v{vA3}, 0x800, v{vA2}")
    I("s_branch L_rpd")
    a.label("L_rp1")
    I(f"s_cmp_eq_u32 s{sROLE}, 1")
    I("s_cbranch_scc0 L_rp2")
    srd(TB, 44, 640 * 3456)
    I(f"s_mul_i32 s{sT0}, s{sWAVE}, {128*3456}")
    I(f"s_add_u32 s{sT1}, s{sTB}, s{sR}")
    I(f"s_sub_u32 s{sT1}, s{sT1}, 20")
    I(f"s_lshl_b32 s{sT1}, s{sT1}, 6")
    I(f"s_add_u32 s{sRB}, s{sT0}, s{sT1}")
    I(f"s_mov_b32 s{sRSTEP}, {16*3456}")
    I(f"s_cmp_lt_u32 s{sWAVE}, 5")
    I(f"s_cselect_b32 s{sRN}, 8, 0")
    I(f"v_mul_u32_u24 v{vRDMA}, 3456, v{t0}")
    I(f"v_add_u32 v{vRDMA}, v{vRDMA}, v{t1}")
    I("s_branch L_rpd")
    a.label("L_rp2")
    I(f"v_mov_b32 v{vRDMA}, 0")
    I(f"s_cmp_eq_u32 s{sROLE}, 2")
    I("s_cbranch_scc0 L_rpd")
    srd(TB, 48, 1728 * 1280)
    I(f"s_mul_i32 s{sT0}, s{sTB}, {32*1280}")
    I(f"s_sub_u32 s{sT2}, s{sR}, 27")
    I(f"s_lshl_b32 s{sT1}, s{sT2}, 8")
    I(f"s_add_u32 s{sT0}, s{sT0}, s{sT1}")
    I(f"s_lshl_b32 s{sT1}, s{sWAVE}, 5")
    I(f"s_add_u32 s{sRB}, s{sT0}, s{sT1}")
    I(f"s_mov_b32 s{sRSTEP}, {32*1280}")
    I(f"s_mov_b32 s{sRN}, 7")
    I(f"v_lshrrev_b32 v{t0}, 1, v{vLANE}")
    I(f"v_mul_u32_u24 v{vRDMA}, 1280, v{t0}")
    I(f"v_and_b32 v{t1}, 1, v{vLANE}")
    I(f"v_lshl_add_u32 v{vRDMA}, v{t1}, 4, v{vRDMA}")
    I(f"s_lshl_b32 s{sT0}, s{sX}, 10")
    I(f"s_add_u32 s{sT0}, s{sT0}, {HOFF}")
    I(f"v_lshlrev_b32 v{t0}, 4, v{g}")
    I(f"v_add_u32 v{vA0}, s{sT0}, v{t0}")
    I(f"s_mov_b32 s{sT1}, 768")
    I(f"s_cmp_eq_u32 s{sNT}, 7")
    I(f"s_cselect_b32 s{sT1}, s{sT1}, {BIG:#x}")
    I(f"v_add_u32 v{vA1}, s{sT1}, v{vA0}")
    I(f"s_lshl_b32 s{sT0}, s{sT2}, 12")
    I(f"s_lshl_b32 s{sT1}, s{sX}, 9")
    I(f"s_add_u32 s{sT0}, s{sT0}, s{sT1}")
    I(f"s_lshl_b32 s{sT1}, s{sWAVE}, 6")
    I(f"s_add_u32 s{sT0}, s{sT0}, s{sT1}")
    I(f"s_add_u32 s{sT0}, s{sT0}, {YOFF}")
    I(f"v_add_u32 v{vA2}, s{sT0}, v{t0}")
    a.label("L_rpd")

    def kv_issue():
        k0, k1, k2 = T + 40, T + 41, T + 42
        I(f"v_bfe_u32 v{k0}, v{vLANE}, 2, 2")
        I(f"v_lshlrev_b32 v{k0}, 8, v{k0}")
        I(f"v_lshrrev_b32 v{k1}, 4, v{vLANE}")
        I(f"v_lshl_add_u32 v{k0}, v{k1}, 6, v{k0}")
        I(f"v_and_b32 v{k2}, 3, v{vLANE}")
        I(f"v_lshl_add_u32 v{k0}, v{k2}, 4, v{k0}")
        I(f"s_mov_b32 s{sT0}, s{sKV}")
        for i in range(16):
            I(f"buffer_load_dwordx4 {vr(vK+4*i)}, v{k0}, {K_SRD}, s{sT0} offen offset:{(i%4)*1024} {kvflags}")
            if i % 4 == 3 and i < 15:
                I(f"s_add_u32 s{sT0}, s{sT0}, 4096")
        I(f"v_bfe_u32 v{k0}, v{vLANE}, 3, 1")
        I(f"v_lshl_add_u32 v{k0}, v{k0}, 3, v{k1}")
        I(f"v_lshlrev_b32 v{k0}, 8, v{k0}")
        I(f"v_and_b32 v{k2}, 7, v{vLANE}")
        I(f"v_lshl_add_u32 v{k0}, v{k2}, 4, v{k0}")
        I(f"s_mov_b32 s{sT0}, s{sKV}")
        for i in range(16):
            Tt, u, hf = i >> 2, (i >> 1) & 1, i & 1
            I(f"buffer_load_dwordx4 {vr(vV+4*i)}, v{k0}, {V_SRD}, s{sT0} offen offset:{u*1024+hf*128} {kvflags}")
            if i % 4 == 3 and i < 15:
                I(f"s_add_u32 s{sT0}, s{sT0}, 4096")
        I(f"s_lshl_b32 s{sT1}, s{sWAVE}, 13")
        I(f"s_add_u32 s{sT1}, s{sT1}, {L_ROLE}")
        I(f"s_mov_b32 s{sT0}, s{sRB}")
        for e in range(8):
            if e % 4 == 0:
                I(f"s_mov_b32 m0, s{sT1}")
                if e == 0:
                    I(f"s_add_u32 s{sT1}, s{sT1}, 4096")
            I(f"s_cmp_gt_u32 s{sRN}, {e}")
            I(f"s_cselect_b32 s{sT2}, s{sT0}, {BIG:#x}")
            I(f"buffer_load_dwordx4 v{vRDMA}, {TB}, s{sT2} offen offset:{(e%4)*1024} lds {wflags}")
            if e < 7:
                I(f"s_add_u32 s{sT0}, s{sT0}, s{sRSTEP}")
                if e % 4 == 3:
                    I(f"s_add_u32 s{sT0}, s{sT0}, 3072")
                else:
                    I(f"s_sub_u32 s{sT0}, s{sT0}, 1024")

    I(f"s_cmp_eq_u32 s{sWAVE}, 5")
    I("s_cbranch_scc1 L_kvskip")
    kv_issue()
    a.label("L_kvskip")
    TS(1)
    I(f"s_mul_i32 s{sT0}, s{sWAVE}, {PP}")
    I(f"v_lshlrev_b32 v{vPW}, 4, v{n}")
    I(f"v_lshl_add_u32 v{vPW}, v{g}, 2, v{vPW}")
    I(f"v_add_u32 v{vPW}, s{sT0}, v{vPW}")
    I(f"v_lshl_add_u32 v{vQR}, v{g}, 2, v{c4}")
    I(f"v_lshlrev_b32 v{vQR}, 4, v{vQR}")
    I(f"v_add_u32 v{vQR}, {L_QB}, v{vQR}")
    I(f"s_lshl_b32 s{sT0}, s{sWAVE}, 10")
    I(f"s_add_u32 s{sT0}, s{sT0}, {L_O}")
    I(f"v_bfe_u32 v{t0}, v{vLANE}, 3, 1")
    I(f"v_lshlrev_b32 v{vOW}, 9, v{t0}")
    I(f"v_and_b32 v{t0}, 7, v{vLANE}")
    I(f"v_lshl_add_u32 v{vOW}, v{t0}, 5, v{vOW}")
    I(f"v_and_b32 v{t1}, 1, v{g}")
    I(f"v_lshl_add_u32 v{vOW}, v{t1}, 4, v{vOW}")
    I(f"v_add_u32 v{vOW}, s{sT0}, v{vOW}")
    I(f"s_lshl_b32 s{sT0}, s{sWAVE}, 3")
    I(f"s_add_u32 s{sT0}, s{sT0}, {L_ML}")
    I(f"v_lshlrev_b32 v{vMLW}, 3, v{vLANE}")
    I(f"v_add_u32 v{vMLW}, {L_DUM}, v{vMLW}")
    I(f"v_writelane_b32 v{vMLW}, s{sT0}, 63")
    for u in range(2):
        for r in range(4):
            sb = 0x0100 if u == (r >> 1) else 0x0302
            d = vSEL + u * 4 + r
            I(f"v_mov_b32 v{d}, 0x0c0c0c0c")
            I(f"v_mov_b32 v{t1}, {0x0c0c0000 | sb:#x}")
            I(f"v_mov_b32 v{t2}, {(sb << 16) | 0x0c0c:#x}")
            I(f"v_cmp_eq_u32 vcc, {2*r}, v{t0}")
            I(f"v_cndmask_b32 v{d}, v{d}, v{t1}, vcc")
            I(f"v_cmp_eq_u32 vcc, {2*r+1}, v{t0}")
            I(f"v_cndmask_b32 v{d}, v{d}, v{t2}, vcc")

    ONES = T + 28
    AOP = T + 24

    def tr_addr(dst, pitch, base_s):
        x0, x1 = T + 48, T + 49
        I(f"v_lshrrev_b32 v{x0}, 4, v{vLANE}")
        I(f"v_bfe_u32 v{x1}, v{vLANE}, 2, 2")
        I(f"v_lshl_add_u32 v{x0}, v{x0}, 3, v{x1}")
        I(f"v_lshlrev_b32 v{x0}, {pitch.bit_length()-1}, v{x0}")
        I(f"v_and_b32 v{x1}, 3, v{vLANE}")
        I(f"v_lshl_add_u32 v{x0}, v{x1}, 3, v{x0}")
        I(f"v_add_u32 v{dst}, s{base_s}, v{x0}")

    def ones():
        for i in range(4):
            I(f"v_mov_b32 v{ONES+i}, 0x3f803f80")

    I(f"s_cmp_ge_u32 s{sWAVE}, 5")
    I("s_cbranch_scc1 L_loop")
    I(f"s_lshl_b32 s{sT0}, s{sWAVE}, 12")
    I(f"s_add_u32 s{sT0}, s{sT0}, {L_WQ}")
    tr_addr(t0, 32, sT0)
    ones()
    I(f"s_lshl_b32 s{sT0}, s{sWAVE}, 7")
    I(f"v_lshlrev_b32 v{t1}, 2, v{n}")
    I(f"v_add_u32 v{t1}, s{sT0}, v{t1}")
    I("s_waitcnt vmcnt(40)")
    for ks in range(4):
        I(f"ds_read_b64_tr_b16 v[{vBQ+4*ks}:{vBQ+4*ks+1}], v{t0} offset:{ks*1024}")
        I(f"ds_read_b64_tr_b16 v[{vBQ+4*ks+2}:{vBQ+4*ks+3}], v{t0} offset:{ks*1024+128}")
    unpack(vB2A, vB2B, vB2B)
    I("s_waitcnt lgkmcnt(0)")
    D0 = T + 8
    for ks in range(4):
        I(f"v_mfma_f32_16x16x32_bf16 {vr(D0)}, {vr(ONES)}, {vr(vBQ+4*ks)}, {'0' if ks == 0 else vr(D0)}")
    I(f"ds_write_b32 v{t1}, v{D0} offset:{L_CS1}")
    TS(2)

    def gemv(ntile, Bbase, bidx):
        Dt = [T, T + 32]
        S1, S2 = T + 16, T + 20
        for j in range(4):
            I(f"v_mov_b32_dpp v{AOP+j}, v{vX} quad_perm:[{j},{j},{j},{j}] row_mask:0xf bank_mask:0xf")
        I(f"v_mfma_f32_16x16x32_bf16 {vr(S1)}, {vr(AOP)}, {vr(ONES)}, 0")
        I(f"v_mfma_f32_16x16x32_bf16 {vr(S2)}, {vr(AOP)}, {vr(AOP)}, 0")
        for t in range(ntile):
            for ks in range(4):
                I(f"v_mfma_f32_16x16x32_bf16 {vr(Dt[t]+4*ks)}, {vr(AOP)}, {vr(Bbase+4*bidx(ks,t))}, 0")
        I(f"ds_write2_b32 v{vSW}, v{S1}, v{S2} offset0:0 offset1:4")
        for t in range(ntile):
            for ks in range(1, 4):
                I(f"v_mov_b32_dpp v{Dt[t]}, v{Dt[t]+4*ks} quad_perm:[0,1,2,3] row_mask:{1<<ks:#x} bank_mask:0xf")
            I(f"ds_write_b32 v{vPW}, v{Dt[t]} offset:{L_PB1 + t*256}")
        I("s_waitcnt lgkmcnt(0)")

    def sum8():
        for (d, s) in ((0, 1), (2, 3), (4, 5), (6, 7), (0, 2), (4, 6), (0, 4)):
            I(f"v_pk_add_f32 v[{T+2*d}:{T+2*d+1}], v[{T+2*d}:{T+2*d+1}], v[{T+2*s}:{T+2*s+1}]")

    def reduce_read(nw, base):
        for v in range(nw):
            I(f"ds_read_b128 {vr(T+4*v)}, v{vRR} offset:{base + v*PP}")

    def reduce_sum(nw, dst):
        np_ = 2 * nw
        idx = list(range(np_))
        while len(idx) > 1:
            nx = []
            for i in range(0, len(idx) - 1, 2):
                d, s = idx[i], idx[i + 1]
                I(f"v_pk_add_f32 v[{T+2*d}:{T+2*d+1}], v[{T+2*d}:{T+2*d+1}], v[{T+2*s}:{T+2*s+1}]")
                nx.append(d)
            if len(idx) % 2:
                nx.append(idx[-1])
            idx = nx
        I(f"v_add_f32 v{dst}, v{T}, v{T+1}")

    rTOT, rMEAN, rVAR, rMB, rSD, rR, rU, rT, rINV, rC1, rC2, rCS = [T + 32 + i for i in range(12)]

    def cs_read(area, dst):
        l = a.newlab("Lcs")
        I(f"s_cmp_eq_u32 s{sIT}, 0")
        I(f"s_cbranch_scc0 {l}")
        I(f"v_lshrrev_b32 v{rT}, 2, v{vRR}")
        for v in range(5):
            I(f"ds_read_b32 v{T+24+v}, v{rT} offset:{area + v*128}")
        I("s_waitcnt lgkmcnt(0)")
        I(f"v_add_f32 v{dst}, v{T+24}, v{T+25}")
        I(f"v_add_f32 v{rT}, v{T+26}, v{T+27}")
        I(f"v_add_f32 v{dst}, v{dst}, v{T+28}")
        I(f"v_add_f32 v{dst}, v{dst}, v{rT}")
        a.label(l)

    def stats():
        I(f"v_readlane_b32 s{sT0}, v{rTOT}, 32")
        I(f"v_readlane_b32 s{sT1}, v{rTOT}, 33")
        I(f"v_mul_f32 v{rMEAN}, s{sT0}, v{rINV}")
        I(f"v_mul_f32 v{rVAR}, s{sT1}, v{rINV}")
        I(f"v_fma_f32 v{rVAR}, -v{rMEAN}, v{rMEAN}, v{rVAR}")
        I(f"v_max_f32 v{rVAR}, 0, v{rVAR}")
        I(f"v_cvt_pk_bf16_f32 v{rT}, v{rMEAN}, v{rVAR}")
        I(f"v_and_b32 v{rU}, 0xffff0000, v{rT}")
        I(f"v_lshlrev_b32 v{rMB}, 16, v{rT}")
        I(f"v_add_f32 v{rU}, {f2u(1e-5):#x}, v{rU}")
        I(f"v_cvt_pk_bf16_f32 v{rU}, v{rU}, v{rU}")
        I(f"v_and_b32 v{rU}, 0xffff0000, v{rU}")
        I(f"v_sqrt_f32 v{rU}, v{rU}")
        I(f"v_cvt_pk_bf16_f32 v{rU}, v{rU}, v{rU}")
        I(f"v_and_b32 v{rSD}, 0xffff0000, v{rU}")
        I(f"v_rcp_f32 v{rR}, v{rSD}")

    def pack_pairs(src, dst):
        I(f"v_mov_b32_dpp v{rT}, v{src} quad_perm:[1,0,3,2] row_mask:0xf bank_mask:0xf")
        I(f"v_cvt_pk_bf16_f32 v{dst}, v{src}, v{rT}")
        I(f"v_min_u32 v{dst}, 0xfffffffe, v{dst}")

    a.label("L_loop")
    I(f"s_cmp_ge_u32 s{sWAVE}, 5")
    I("s_cbranch_scc1 L_B1")
    ones()
    I(f"s_cmp_eq_u32 s{sIT}, 0")
    I("s_cbranch_scc1 L_haveX")
    I(f"s_sub_u32 s{sT0}, s{sREG}, {RS}")
    I(f"s_add_u32 s{sT1}, s{sT0}, {YOFF}")
    I(f"s_mul_i32 s{sT2}, s{sX}, 1280")
    I(f"s_add_u32 s{sT2}, s{sT2}, s{sT0}")
    I(f"s_add_u32 s{sT2}, s{sT2}, {X1OFF}")
    XR = T + 16
    if canary:
        poll([f"buffer_load_dword v{XR+1}, v{vCAN}, {WS}, s{sT0} offen sc1"], [XR + 1])
    TS(3)
    poll([f"buffer_load_dwordx2 v[{T+2*j}:{T+2*j+1}], v{vYO}, {WS}, s{sT1} offen offset:{j*512} sc1" for j in range(8)]
         + [f"buffer_load_dword v{XR}, v{vP4}, {WS}, s{sT2} offen sc1"], list(range(T, T + 17)))
    TS(4)
    sum8()
    e0, e1, e2, e3 = T + 18, T + 19, T + 20, T + 21
    unpack(e2, e3, XR)
    I(f"v_cvt_pk_bf16_f32 v{T}, v{T}, v{T+1}")
    unpack(e0, e1, T)
    I(f"v_pk_add_f32 v[{e0}:{e1}], v[{e0}:{e1}], v[{vB2A}:{vB2B}]")
    I(f"v_cvt_pk_bf16_f32 v{T}, v{e0}, v{e1}")
    unpack(e0, e1, T)
    I(f"v_pk_add_f32 v[{e0}:{e1}], v[{e0}:{e1}], v[{e2}:{e3}]")
    I(f"v_cvt_pk_bf16_f32 v{vX}, v{e0}, v{e1}")
    I(f"s_cmp_eq_u32 s{sIT}, 2")
    I("s_cbranch_scc0 L_haveX")
    I(f"buffer_store_dword v{vX}, v{vP4}, {OUTS}, 0 offen")
    TS(29)
    I("s_branch L_fin")
    a.label("L_haveX")
    gemv(1, vBQ, lambda ks, t: ks)
    TS(5)
    a.label("L_B1")
    I(f"v_mov_b32 v{rINV}, {f2u(1.0/640):#x}")
    I("s_barrier")
    I(f"s_cmp_eq_u32 s{sWAVE}, 5")
    I("s_cbranch_scc0 L_B2")
    TS(6)
    reduce_read(5, L_PB1)
    cs_read(L_CS1, vCSQ)
    I("s_waitcnt lgkmcnt(0)")
    reduce_sum(5, rTOT)
    stats()
    I(f"v_fma_f32 v{rU}, -v{rMB}, v{vCSQ}, v{rTOT}")
    I(f"v_mul_f32 v{rU}, v{rU}, v{rR}")
    pack_pairs(rU, rU)
    I(f"s_cmp_eq_u32 s{sIT}, 0")
    I("s_cbranch_scc0 L_synced")
    srd(TA, 54, 256)
    I(f"v_lshlrev_b32 v{rT}, 3, v{vLANE}")
    setexec(0xFF, 0)
    a.label("L_sync")
    I(f"buffer_load_dwordx2 v[{T}:{T+1}], v{rT}, {TA}, 0 offen sc1")
    I(f"s_add_u32 s{sSPIN}, s{sSPIN}, 1")
    I("s_waitcnt vmcnt(0)")
    I(f"v_lshrrev_b32 v{T+2}, 16, v{T+1}")
    I(f"v_cmp_ne_u32 vcc, 32, v{T+2}")
    I("s_cbranch_vccz L_syncd")
    I(f"s_cmp_lt_u32 s{sSPIN}, {spin_limit}")
    I("s_cbranch_scc1 L_sync")
    a.label("L_syncd")
    I(f"s_mul_i32 s{sT0}, s{sXCC}, 6")
    I(f"v_lshrrev_b64 v[{T}:{T+1}], s{sT0}, v[{T}:{T+1}]")
    I(f"v_and_b32 v{T}, 63, v{T}")
    setexec(0xFFFFFFFF, 0xFFFFFFFF)
    I(f"v_readlane_b32 s{sT0}, v{T}, s{sX}")
    I(f"s_cmp_eq_u32 s{sT0}, 32")
    I(f"s_cselect_b32 s{sPURE}, 1, 0")
    I(f"s_cmp_lt_u32 s{sXCC}, 8")
    I(f"s_cselect_b32 s{sPURE}, s{sPURE}, 0")
    I(f"v_mov_b32 v{T}, s{sPURE}")
    I(f"v_mov_b32 v{T+1}, {L_FLAG}")
    I(f"ds_write_b32 v{T+1}, v{T}")
    a.label("L_synced")
    TS(7)
    setexec(0x5555, 0)
    lstore([f"buffer_store_dword v{rU}, v{vQP}, {WS}, s{sREG} offen"])
    setexec(0xFFFF, 0)
    poll([f"buffer_load_dwordx4 {vr(T)}, v{vQG}, {WS}, s{sREG} offen sc1"], list(range(T, T + 4)))
    I(f"ds_write_b128 v{vRR}, {vr(T)} offset:{L_QB}")
    setexec(0xFFFFFFFF, 0xFFFFFFFF)
    TS(8)
    I(f"s_cmp_eq_u32 s{sIT}, 0")
    I("s_cbranch_scc0 L_B2w")
    kv_issue()
    a.label("L_B2w")
    I("s_waitcnt lgkmcnt(0)")
    a.label("L_B2")
    BT = T
    ST = T + 16
    PS = T + 32
    MI = T + 36
    OA = T + 44
    for i in range(16):
        I(f"v_mov_b32 v{BT+i}, 0")
    I(f"v_mov_b32 v{MI}, {L_FLAG}")
    I("s_barrier")
    TS(9)
    for t in range(4):
        m = 0x000F000F << (4 * t)
        setexec(m, m)
        I(f"ds_read_b128 {vr(BT+4*t)}, v{vQR}")
    setexec(0xFFFFFFFF, 0xFFFFFFFF)
    I(f"ds_read_b32 v{MI}, v{MI}")
    I("s_waitcnt vmcnt(24)")
    I("s_waitcnt lgkmcnt(0)")
    TS(10)
    for Tt in range(4):
        for t in range(4):
            I(f"v_mfma_f32_16x16x32_bf16 {vr(ST+4*Tt)}, {vr(vK+4*(4*Tt+t))}, {vr(BT+4*t)}, {'0' if t == 0 else vr(ST+4*Tt)}")
    I(f"v_readfirstlane_b32 s{sPURE}, v{MI}")
    for Tt in range(4):
        I(f"v_mov_b32_dpp v{PS+Tt}, v{ST+4*Tt} quad_perm:[0,0,0,0] row_mask:0xf bank_mask:0xf")
        for c in range(1, 4):
            I(f"v_add_f32_dpp v{PS+Tt}, v{ST+4*Tt+c}, v{PS+Tt} quad_perm:[{c},{c},{c},{c}] row_mask:0xf bank_mask:0xf")
    I(f"v_mov_b32 v{MI+2}, {SCALE:#x}")
    I(f"v_mov_b32 v{MI+3}, {SCALE:#x}")
    I(f"v_cvt_pk_bf16_f32 v{MI}, v{PS}, v{PS+1}")
    I(f"v_cvt_pk_bf16_f32 v{MI+1}, v{PS+2}, v{PS+3}")
    unpack(PS, PS + 1, MI)
    unpack(PS + 2, PS + 3, MI + 1)
    I(f"v_pk_mul_f32 v[{PS}:{PS+1}], v[{PS}:{PS+1}], v[{MI+2}:{MI+3}]")
    I(f"v_pk_mul_f32 v[{PS+2}:{PS+3}], v[{PS+2}:{PS+3}], v[{MI+2}:{MI+3}]")
    I(f"v_cvt_pk_bf16_f32 v{MI}, v{PS}, v{PS+1}")
    I(f"v_cvt_pk_bf16_f32 v{MI+1}, v{PS+2}, v{PS+3}")
    unpack(PS, PS + 1, MI)
    unpack(PS + 2, PS + 3, MI + 1)
    vM = MI + 4; vL = MI + 5; vT_ = MI + 6; vPK = MI + 7
    I(f"v_max3_f32 v{vM}, v{PS}, v{PS+1}, v{PS+2}")
    I(f"v_max_f32 v{vM}, v{vM}, v{PS+3}")
    I(f"v_max_f32_dpp v{vM}, v{vM}, v{vM} row_ror:4 row_mask:0xf bank_mask:0xf")
    I(f"v_max_f32_dpp v{vM}, v{vM}, v{vM} row_ror:8 row_mask:0xf bank_mask:0xf")
    I(f"v_max_f32_dpp v{vM}, v{vM}, v{vM} row_bcast:15 row_mask:0xa bank_mask:0xf")
    I(f"v_max_f32_dpp v{vM}, v{vM}, v{vM} row_bcast:31 row_mask:0xc bank_mask:0xf")
    I(f"v_mov_b32 v{MI}, s{sL2E}")
    I(f"v_readlane_b32 s{sM}, v{vM}, 63")
    I(f"v_mul_f32 v{vT_}, s{sM}, v{MI}")
    for Tt in range(4):
        I(f"v_fma_f32 v{PS+Tt}, v{PS+Tt}, v{MI}, -v{vT_}")
    for Tt in range(4):
        I(f"v_exp_f32 v{PS+Tt}, v{PS+Tt}")
    TS(11)
    for Tt in range(4):
        AB = ST + 8 * (Tt & 1)
        I(f"v_mov_b32_dpp v{vT_}, v{PS+Tt} row_half_mirror row_mask:0xf bank_mask:0xf")
        I(f"v_cvt_pk_bf16_f32 v{vPK}, v{PS+Tt}, v{vT_}")
        for u in range(2):
            for r in range(4):
                I(f"v_perm_b32 v{AB+4*u+r}, v{vPK}, v{vPK}, v{vSEL+4*u+r}")
        if Tt == 1:
            I(f"v_add_f32 v{vL}, v{PS}, v{PS+1}")
            I(f"v_add_f32 v{MI+1}, v{PS+2}, v{PS+3}")
            I(f"v_add_f32 v{vL}, v{vL}, v{MI+1}")
            I(f"v_add_f32_dpp v{vL}, v{vL}, v{vL} row_ror:4 row_mask:0xf bank_mask:0xf")
            I(f"v_add_f32_dpp v{vL}, v{vL}, v{vL} row_ror:8 row_mask:0xf bank_mask:0xf")
            I(f"v_add_f32_dpp v{vL}, v{vL}, v{vL} row_bcast:15 row_mask:0xa bank_mask:0xf")
            I(f"v_add_f32_dpp v{vL}, v{vL}, v{vL} row_bcast:31 row_mask:0xc bank_mask:0xf")
            I(f"ds_write_b64 v{vMLW}, v[{vM}:{vL}]")
        for u in range(2):
            i1 = Tt * 4 + u * 2 + 1
            I(f"s_waitcnt vmcnt({15 - i1 + 8})")
            for hf in range(2):
                i = Tt * 4 + u * 2 + hf
                first = (Tt == 0 and u == 0)
                I(f"v_mfma_f32_16x16x32_bf16 {vr(OA+4*hf)}, {vr(AB+4*u)}, {vr(vV+4*i)}, {'0' if first else vr(OA+4*hf)}")
    TS(12)
    setexec(0x00FF00FF, 0xFF00FF00)
    I(f"ds_write_b128 v{vOW}, {vr(OA)}")
    I(f"ds_write_b128 v{vOW}, {vr(OA+4)} offset:256")
    setexec(0xFFFFFFFF, 0xFFFFFFFF)
    I("s_waitcnt lgkmcnt(0)")
    I("s_barrier")
    TS(13)
    I(f"s_cmp_eq_u32 s{sWAVE}, 7")
    I("s_cbranch_scc0 L_role")
    cM, cL, cMX, cF, cT = T + 32, T + 33, T + 34, T + 36, T + 37
    cLS = T + 35
    I(f"ds_read_b64 v[{cM}:{cL}], v{vCML}")
    for w in range(8):
        I(f"ds_read2st64_b64 {vr(T+4*w)}, v{vCR} offset0:{2*w} offset1:{2*w+1}")
    I(f"v_mov_b32 v{cT}, s{sL2E}")
    I("s_waitcnt lgkmcnt(8)")
    I(f"v_max_f32_dpp v{cMX}, v{cM}, v{cM} quad_perm:[1,0,3,2] row_mask:0xf bank_mask:0xf")
    I(f"v_max_f32_dpp v{cMX}, v{cMX}, v{cMX} quad_perm:[2,3,0,1] row_mask:0xf bank_mask:0xf")
    I(f"v_max_f32_dpp v{cMX}, v{cMX}, v{cMX} row_half_mirror row_mask:0xf bank_mask:0xf")
    I(f"v_sub_f32 v{cF}, v{cM}, v{cMX}")
    I(f"v_mul_f32 v{cF}, v{cF}, v{cT}")
    I(f"v_exp_f32 v{cF}, v{cF}")
    I("s_waitcnt lgkmcnt(0)")
    for w in range(8):
        I(f"v_readlane_b32 s{sF+w}, v{cF}, {w}")
    for w in range(8):
        I(f"v_pk_add_f32 v[{T+4*w}:{T+4*w+1}], v[{T+4*w}:{T+4*w+1}], v[{T+4*w+2}:{T+4*w+3}]")
    for w in range(8):
        sp = f"s[{sF+(w&~1)}:{sF+(w&~1)+1}]"
        o = w & 1
        acc = T + 40 + 2 * (w & 1)
        if w < 2:
            I(f"v_pk_mul_f32 v[{acc}:{acc+1}], v[{T+4*w}:{T+4*w+1}], {sp} op_sel:[0,{o}] op_sel_hi:[1,{o}]")
        else:
            I(f"v_pk_fma_f32 v[{acc}:{acc+1}], v[{T+4*w}:{T+4*w+1}], {sp}, v[{acc}:{acc+1}] op_sel:[0,{o},0] op_sel_hi:[1,{o},1]")
    I(f"v_mul_f32 v{cLS}, v{cF}, v{cL}")
    I(f"v_pk_add_f32 v[{T+40}:{T+41}], v[{T+40}:{T+41}], v[{T+42}:{T+43}]")
    I(f"v_add_f32_dpp v{cLS}, v{cLS}, v{cLS} quad_perm:[1,0,3,2] row_mask:0xf bank_mask:0xf")
    I(f"v_cvt_pk_bf16_f32 v{T+40}, v{T+40}, v{T+41}")
    I(f"v_min_u32 v{T+40}, 0xfffffffe, v{T+40}")
    I(f"v_add_f32_dpp v{cLS}, v{cLS}, v{cLS} quad_perm:[2,3,0,1] row_mask:0xf bank_mask:0xf")
    I(f"v_min_u32 v{cMX}, 0xfffffffe, v{cMX}")
    lstore([f"buffer_store_dword v{T+40}, v{vCP}, {WS}, s{sREG} offen"])
    I(f"v_add_f32_dpp v{cLS}, v{cLS}, v{cLS} row_half_mirror row_mask:0xf bank_mask:0xf")
    I(f"v_min_u32 v{cLS}, 0xfffffffe, v{cLS}")
    setexec(1, 0)
    lstore([f"buffer_store_dwordx2 v[{cMX}:{cLS}], v{vCP}, {WS}, s{sREG} offen offset:256"])
    setexec(0xFFFFFFFF, 0xFFFFFFFF)
    TS(14)

    a.label("L_role")
    I(f"s_cmp_eq_u32 s{sROLE}, 0")
    I("s_cbranch_scc1 L_WO")
    I(f"s_cmp_eq_u32 s{sROLE}, 1")
    I("s_cbranch_scc1 L_W1")
    I(f"s_cmp_eq_u32 s{sROLE}, 2")
    I("s_cbranch_scc1 L_W2")
    I("s_branch L_next")

    def role_base():
        I(f"s_lshl_b32 s{sT0}, s{sWAVE}, 13")
        I(f"s_add_u32 s{sT0}, s{sT0}, {L_ROLE}")

    a.label("L_WO")
    I(f"s_cmp_eq_u32 s{sIT}, 0")
    I("s_cbranch_scc0 L_WO1")
    role_base()
    tr_addr(T + 47, 64, sT0)
    I("s_waitcnt vmcnt(0)")
    for ks in range(2):
        for t in range(2):
            b = vRB + 4 * (ks * 2 + t)
            o = ks * 2048 + t * 32
            I(f"ds_read_b64_tr_b16 v[{b}:{b+1}], v{T+47} offset:{o}")
            I(f"ds_read_b64_tr_b16 v[{b+2}:{b+3}], v{T+47} offset:{o+256}")
    I("s_waitcnt lgkmcnt(0)")
    TS(15)
    a.label("L_WO1")
    A0, A1, Ma, La, Mb, Lb, Dw0, Dw1 = T, T + 4, T + 8, T + 9, T + 10, T + 11, T + 12, T + 16
    wMX, wE, wEB, wT, wL2E, wR0, wR1 = [T + 20 + i for i in range(7)]
    I(f"v_mov_b32 v{wL2E}, s{sL2E}")
    poll([f"buffer_load_dwordx4 {vr(A0)}, v{vA0}, {WS}, s{sREG} offen sc1",
          f"buffer_load_dwordx4 {vr(A1)}, v{vA1}, {WS}, s{sREG} offen sc1",
          f"buffer_load_dwordx2 v[{Ma}:{La}], v{vA2}, {WS}, s{sREG} offen sc1",
          f"buffer_load_dwordx2 v[{Mb}:{Lb}], v{vA3}, {WS}, s{sREG} offen sc1"], list(range(T, T + 12)))
    TS(16)
    for t in range(2):
        D = (Dw0, Dw1)[t]
        I(f"v_mfma_f32_16x16x32_bf16 {vr(D)}, {vr(A0)}, {vr(vRB+4*(0*2+t))}, 0")
        I(f"v_mfma_f32_16x16x32_bf16 {vr(D)}, {vr(A1)}, {vr(vRB+4*(1*2+t))}, {vr(D)}")
    I(f"v_max_f32 v{wMX}, v{Ma}, v{Mb}")
    I(f"v_max_f32_dpp v{wMX}, v{wMX}, v{wMX} quad_perm:[1,0,3,2] row_mask:0xf bank_mask:0xf")
    I(f"v_max_f32_dpp v{wMX}, v{wMX}, v{wMX} quad_perm:[2,3,0,1] row_mask:0xf bank_mask:0xf")
    I(f"v_sub_f32 v{wE}, v{Ma}, v{wMX}")
    I(f"v_sub_f32 v{wEB}, v{Mb}, v{wMX}")
    I(f"v_mul_f32 v{wE}, v{wE}, v{wL2E}")
    I(f"v_mul_f32 v{wEB}, v{wEB}, v{wL2E}")
    I(f"v_exp_f32 v{wE}, v{wE}")
    I(f"v_exp_f32 v{wEB}, v{wEB}")
    I(f"v_mul_f32 v{wT}, v{wE}, v{La}")
    I(f"v_fmac_f32 v{wT}, v{wEB}, v{Lb}")
    I(f"v_add_f32_dpp v{wT}, v{wT}, v{wT} quad_perm:[1,0,3,2] row_mask:0xf bank_mask:0xf")
    I(f"v_add_f32_dpp v{wT}, v{wT}, v{wT} quad_perm:[2,3,0,1] row_mask:0xf bank_mask:0xf")
    I(f"v_rcp_f32 v{wT}, v{wT}")
    I(f"v_mul_f32 v{wE}, v{wE}, v{wT}")
    for i in range(4):
        for t in range(2):
            D = (Dw0, Dw1)[t]; R = (wR0, wR1)[t]
            op = "v_mul_f32_dpp" if i == 0 else "v_fmac_f32_dpp"
            I(f"{op} v{R}, v{wE}, v{D+i} quad_perm:[{i},{i},{i},{i}] row_mask:0xf bank_mask:0xf")
    I(f"ds_write_b32 v{vPW}, v{wR0} offset:{L_PB2}")
    I(f"ds_write_b32 v{vPW}, v{wR1} offset:{L_PB2+256}")
    I("s_waitcnt lgkmcnt(0)")
    I("s_barrier")
    I(f"s_cmp_eq_u32 s{sWAVE}, 5")
    I("s_cbranch_scc0 L_next")
    TS(17)
    reduce_read(8, L_PB2)
    I("s_waitcnt lgkmcnt(0)")
    reduce_sum(8, rTOT)
    I(f"v_min_u32 v{rTOT}, 0xfffffffe, v{rTOT}")
    for i in range(4):
        I(f"v_mov_b32_dpp v{T+i}, v{rTOT} quad_perm:[{i},{i},{i},{i}] row_mask:0xf bank_mask:0xf")
    setexec(0x11111111, 0)
    I(f"buffer_store_dwordx4 {vr(T)}, v{vRP}, {WS}, s{sREG} offen sc1")
    setexec(0xFFFFFFFF, 0xFFFFFFFF)
    TS(18)
    I("s_branch L_next")

    a.label("L_W1")
    I(f"s_cmp_ge_u32 s{sWAVE}, 5")
    I("s_cbranch_scc1 L_W1b")
    ones()
    I(f"s_cmp_eq_u32 s{sIT}, 0")
    I("s_cbranch_scc0 L_W11")
    role_base()
    tr_addr(T + 47, 64, sT0)
    I(f"s_lshl_b32 s{sT0}, s{sWAVE}, 7")
    I(f"v_and_b32 v{T+46}, 15, v{vLANE}")
    I(f"v_lshlrev_b32 v{T+46}, 2, v{T+46}")
    I(f"v_add_u32 v{T+46}, s{sT0}, v{T+46}")
    I("s_waitcnt vmcnt(0)")
    for ks in range(4):
        for t in range(2):
            b = vRB + 4 * (ks * 2 + t)
            o = ks * 2048 + t * 32
            I(f"ds_read_b64_tr_b16 v[{b}:{b+1}], v{T+47} offset:{o}")
            I(f"ds_read_b64_tr_b16 v[{b+2}:{b+3}], v{T+47} offset:{o+256}")
        if ks == 1:
            I("s_waitcnt lgkmcnt(0)")
    I("s_waitcnt lgkmcnt(0)")
    for t in range(2):
        for ks in range(4):
            I(f"v_mfma_f32_16x16x32_bf16 {vr(T+4*t)}, {vr(ONES)}, {vr(vRB+4*(ks*2+t))}, {'0' if ks == 0 else vr(T+4*t)}")
    I(f"ds_write_b32 v{T+46}, v{T} offset:{L_CS2}")
    I(f"ds_write_b32 v{T+46}, v{T+4} offset:{L_CS2+64}")
    TS(15)
    a.label("L_W11")
    I(f"s_add_u32 s{sT1}, s{sREG}, {ZOFF}")
    I(f"s_mul_i32 s{sT2}, s{sX}, 1280")
    I(f"s_add_u32 s{sT2}, s{sT2}, s{sREG}")
    I(f"s_add_u32 s{sT2}, s{sT2}, {X1OFF}")
    unpack(e2, e3, vX)
    poll([f"buffer_load_dwordx2 v[{T+2*j}:{T+2*j+1}], v{vZO}, {WS}, s{sT1} offen offset:{j*128} sc1" for j in range(8)],
         list(range(T, T + 16)))
    TS(19)
    sum8()
    I(f"v_cvt_pk_bf16_f32 v{T}, v{T}, v{T+1}")
    unpack(e0, e1, T)
    I(f"v_pk_add_f32 v[{e0}:{e1}], v[{e0}:{e1}], v[{e2}:{e3}]")
    I(f"v_cvt_pk_bf16_f32 v{vX}, v{e0}, v{e1}")
    I(f"s_cmp_eq_u32 s{sR}, 20")
    I("s_cbranch_scc0 L_W12")
    I(f"v_min_u32 v{T+48}, 0xfffffffe, v{vX}")
    lstore([f"buffer_store_dword v{T+48}, v{vP4}, {WS}, s{sT2} offen"])
    a.label("L_W12")
    gemv(2, vRB, lambda ks, t: ks * 2 + t)
    TS(20)
    a.label("L_W1b")
    I(f"v_mov_b32 v{rINV}, {f2u(1.0/640):#x}")
    I(f"v_mov_b32 v{rC1}, {f2u(GC1):#x}")
    I(f"v_mov_b32 v{rC2}, {f2u(GC2):#x}")
    I("s_barrier")
    I(f"s_cmp_eq_u32 s{sWAVE}, 5")
    I("s_cbranch_scc0 L_next")
    TS(21)
    reduce_read(5, L_PB1)
    cs_read(L_CS2, vCS1)
    I("s_waitcnt lgkmcnt(0)")
    reduce_sum(5, rTOT)
    stats()
    I(f"v_sub_f32 v{rMEAN}, v{rMEAN}, v{rMB}")
    I(f"v_mul_f32 v{rVAR}, v{rVAR}, v{rR}")
    I(f"v_mul_f32 v{rMEAN}, v{rMEAN}, v{rR}")
    I(f"v_mul_f32 v{rVAR}, v{rVAR}, v{rR}")
    I(f"v_cvt_pk_bf16_f32 v{rT}, v{rMEAN}, v{rVAR}")
    I(f"v_and_b32 v{rU}, 0xffff0000, v{rT}")
    I(f"v_lshlrev_b32 v{rMEAN}, 16, v{rT}")
    I(f"v_add_f32 v{rU}, {f2u(1e-5):#x}, v{rU}")
    I(f"v_cvt_pk_bf16_f32 v{rU}, v{rU}, v{rU}")
    I(f"v_fma_f32 v{rMB}, v{rMEAN}, v{rSD}, v{rMB}")
    I(f"v_and_b32 v{rU}, 0xffff0000, v{rU}")
    I(f"v_sqrt_f32 v{rU}, v{rU}")
    I(f"v_fma_f32 v{rTOT}, -v{rMB}, v{vCS1}, v{rTOT}")
    I(f"v_cvt_pk_bf16_f32 v{rU}, v{rU}, v{rU}")
    I(f"v_mul_f32 v{rTOT}, v{rTOT}, v{rR}")
    I(f"v_and_b32 v{rU}, 0xffff0000, v{rU}")
    I(f"v_rcp_f32 v{rU}, v{rU}")
    I(f"v_mul_f32 v{rTOT}, v{rTOT}, v{rU}")
    I(f"v_cvt_pk_bf16_f32 v{rU}, v{rTOT}, v{rTOT}")
    I(f"v_and_b32 v{rU}, 0xffff0000, v{rU}")
    I(f"v_add_f32 v{rU}, v{rU}, v{vB1}")
    I(f"v_cvt_pk_bf16_f32 v{rU}, v{rU}, v{rU}")
    I(f"v_and_b32 v{rU}, 0xffff0000, v{rU}")
    I(f"v_mul_f32 v{rT}, v{rU}, v{rU}")
    I(f"v_fma_f32 v{rT}, v{rT}, v{rC2}, v{rC1}")
    I(f"v_mul_f32 v{rT}, v{rT}, v{rU}")
    I(f"v_exp_f32 v{rT}, v{rT}")
    I(f"v_add_f32 v{rT}, 1.0, v{rT}")
    I(f"v_rcp_f32 v{rT}, v{rT}")
    I(f"v_mul_f32 v{rU}, v{rU}, v{rT}")
    pack_pairs(rU, rU)
    setexec(0x55555555, 0)
    lstore([f"buffer_store_dword v{rU}, v{vRP}, {WS}, s{sREG} offen"])
    setexec(0xFFFFFFFF, 0xFFFFFFFF)
    TS(22)
    I("s_branch L_next")

    a.label("L_W2")
    I(f"s_cmp_eq_u32 s{sIT}, 0")
    I("s_cbranch_scc0 L_W21")
    role_base()
    tr_addr(T + 47, 32, sT0)
    I("s_waitcnt vmcnt(0)")
    for ks in range(7):
        b = vRB + 4 * ks
        I(f"ds_read_b64_tr_b16 v[{b}:{b+1}], v{T+47} offset:{ks*1024}")
        I(f"ds_read_b64_tr_b16 v[{b+2}:{b+3}], v{T+47} offset:{ks*1024+128}")
    I("s_waitcnt lgkmcnt(0)")
    TS(15)
    a.label("L_W21")
    setexec(0x00010001, 0x00010001)
    poll([f"buffer_load_dwordx4 {vr(T+4*ks)}, v{vA0}, {WS}, s{sREG} offen offset:{ks*128} sc1" for ks in range(6)]
         + [f"buffer_load_dwordx4 {vr(T+24)}, v{vA1}, {WS}, s{sREG} offen sc1"], list(range(T, T + 28)))
    setexec(0xFFFFFFFF, 0xFFFFFFFF)
    TS(23)
    D2 = T + 28
    for ks in range(7):
        I(f"v_mfma_f32_16x16x32_bf16 {vr(D2)}, {vr(vRB+4*ks)}, {vr(T+4*ks)}, {'0' if ks == 0 else vr(D2)}")
    setexec(0x00010001, 0x00010001)
    for i in range(4):
        I(f"v_min_u32 v{D2+i}, 0xfffffffe, v{D2+i}")
    I(f"buffer_store_dwordx4 {vr(D2)}, v{vA2}, {WS}, s{sREG} offen sc1")
    setexec(0xFFFFFFFF, 0xFFFFFFFF)
    TS(24)

    a.label("L_next")
    I(f"s_add_u32 s{sIT}, s{sIT}, 1")
    I(f"s_add_u32 s{sREG}, s{sREG}, {RS}")
    I(f"s_cmp_lt_u32 s{sIT}, 2")
    I("s_cbranch_scc1 L_loop")
    I("s_cmp_eq_u32 s2, 160")
    I("s_cbranch_scc0 L_fin")
    I(f"s_cmp_lt_u32 s{sWAVE}, 5")
    I("s_cbranch_scc1 L_loop")
    a.label("L_fin")
    if instr:
        TS(30)
        I(f"s_lshl_b32 s{sT0}, s2, 3")
        I(f"s_add_u32 s{sT0}, s{sT0}, s{sWAVE}")
        I(f"s_lshl_b32 s{sT0}, s{sT0}, 9")
        I(f"s_add_u32 s{sT0}, s{sT0}, {DBGOFF}")
        I(f"v_lshlrev_b32 v{T}, 3, v{vLANE}")
        I(f"buffer_store_dwordx2 v[{vTSI}:{vTST}], v{T}, {WS}, s{sT0} offen")
    a.label("L_end")
    I("s_endpgm")
    a.raw('.section .rodata,"a"\n.p2align 6')
    a.raw(f".amdhsa_kernel {KNAME}")
    a.raw("  .amdhsa_next_free_vgpr 256\n  .amdhsa_next_free_sgpr 102\n  .amdhsa_accum_offset 256\n"
          "  .amdhsa_group_segment_fixed_size 0\n  .amdhsa_kernarg_size 104\n  .amdhsa_user_sgpr_count 2\n"
          "  .amdhsa_user_sgpr_kernarg_segment_ptr 1\n  .amdhsa_system_sgpr_workgroup_id_x 1")
    a.raw(".end_amdhsa_kernel")
    open(fn, "w").write(a.text())
    return a.ninstr


if __name__ == "__main__":
    import argparse
    p = argparse.ArgumentParser()
    p.add_argument("-o", default="k.s")
    p.add_argument("--instr", action="store_true")
    p.add_argument("--kv", default="nt")
    args = p.parse_args()
    n = gen(args.o, instr=args.instr, kvflags=args.kv)
    print("instrs:", n)
```

```python
import sys, struct, math
from asmlib import Asm

KNAME = "interleave_layers__gqa_block_cached__mixer_channel_mlp__decode_kernel"

RS = 0x40000
QOFF, MLOFF, POFF, XOFF, ZOFF, HOFF, YOFF = 0x0, 0x4000, 0x8000, 0x18000, 0x20000, 0x28000, 0x30000
DBGOFF = 0x100000
WS_SIZE = 0x200000
BIG = 0x40000000
PP = 544
L_PB1, L_PB2, L_CS1, L_CS2, L_QB, L_ML, L_FLAG, L_DUM, L_O, L_WQ, L_ROLE = (
    0, 2816, 7168, 7808, 8448, 8704, 8768, 8832, 10240, 18432, 38912)
LDS_TOTAL = 104448
LEAD_R = 0

def f2u(x):
    return struct.unpack("<I", struct.pack("<f", x))[0]

L2E = f2u(1.4426950408889634)
SCALE = f2u(128 ** -0.5)
GC1 = -2.0 * 1.4426950408889634 * math.sqrt(2.0 / math.pi)
GC2 = GC1 * 0.044715

sWAVE, sX, sR, sIT, sREG = 3, 4, 5, 6, 7
K_SRD, V_SRD, WS, TA, TB, OUTS = "s[8:11]", "s[12:15]", "s[16:19]", "s[20:23]", "s[24:27]", "s[28:31]"
sROLE, sPURE, sSPIN = 58, 59, 60
sT0, sT1, sT2, sT3, sSLOT = 61, 62, 63, 72, 73
sF = 64
sXCC, sTB, sNT, sTSI = 74, 75, 76, 77
sL2E, sM = 80, 81
sRB, sRSTEP, sRN = 82, 83, 84
sKV = 85
vLANE = 0
vGO, vXO, vPW, vSW, vQR, vOW, vMLW = 1, 2, 7, 8, 9, 10, 11
vA0, vA1, vA2, vA3 = 12, 13, 14, 15
vRDMA = 17
vTSI, vTST = 18, 19
vSEL = 20
vBQ = 28
vRB = 44
vFD = 72
T = 76
vK, vV = 128, 192
vRR, vQP, vQG, vCSQ, vCS1, vB1, vRP = 1, 2, 3, 4, 5, 6, 8
vXF = 28
vXFA = 16
vCR, vCML, vCP, vCPM = 1, 2, 3, 4


def vr(a, n=4):
    return f"v[{a}:{a+n-1}]"


def gen(fn, instr=False, kvflags="nt", wflags="", spin_limit=400000, tsset=None,
        ZR=512, ZX=64, y16=False, W67=0, W04=0, masked=True):
    a = Asm()
    I = a.I
    a.raw(f"; @launch grid=(256,1,1) block=(512,1,1) lds={LDS_TOTAL}")
    a.raw('.amdgcn_target "amdgcn-amd-amdhsa--gfx950"')
    a.raw(".text")
    a.raw(f".globl {KNAME}\n.p2align 8\n.type {KNAME},@function\n{KNAME}:")

    def TS(k):
        if not instr or (tsset is not None and k not in tsset and k not in (0, 30)):
            return
        I("s_memrealtime s[78:79]")
        I("s_waitcnt lgkmcnt(0)")
        I(f"v_writelane_b32 v{vTSI}, {k}, s{sTSI}")
        I(f"s_mov_b32 m0, s{sTSI}")
        I(f"v_writelane_b32 v{vTST}, s78, m0")
        I(f"s_add_u32 s{sTSI}, s{sTSI}, 1")

    def srd(dst, ptr, size):
        d = int(dst[2:].split(":")[0])
        I(f"s_mov_b32 s{d}, s{ptr}")
        I(f"s_mov_b32 s{d+1}, s{ptr+1}")
        I(f"s_mov_b32 s{d+2}, {size:#x}")
        I(f"s_mov_b32 s{d+3}, 0x20000")

    def setexec(lo, hi):
        if lo == 0xFFFFFFFF and hi == 0xFFFFFFFF:
            I("s_mov_b64 exec, -1")
        else:
            I(f"s_mov_b32 exec_lo, {lo:#x}")
            I(f"s_mov_b32 exec_hi, {hi:#x}")

    def maxtree(tmp, rs):
        rs = list(rs)
        if len(rs) == 1:
            return rs[0]
        cur = None
        while rs:
            if cur is None:
                if len(rs) >= 3:
                    I(f"v_max3_u32 v{tmp}, v{rs[0]}, v{rs[1]}, v{rs[2]}"); rs = rs[3:]
                else:
                    I(f"v_max_u32 v{tmp}, v{rs[0]}, v{rs[1]}"); rs = rs[2:]
                cur = tmp
            elif len(rs) >= 2:
                I(f"v_max3_u32 v{tmp}, v{tmp}, v{rs[0]}, v{rs[1]}"); rs = rs[2:]
            else:
                I(f"v_max_u32 v{tmp}, v{tmp}, v{rs[0]}"); rs = rs[1:]
        return cur

    def poll(loads, regs, ex=(0xFFFFFFFF, 0xFFFFFFFF), groups=None):
        lab = a.newlab("Lp"); done = a.newlab("Lpd")
        tmp = T + 50
        if not masked:
            a.label(lab)
        for l in loads:
            I(l)
        if masked:
            a.label(lab)
        I(f"s_add_u32 s{sSPIN}, s{sSPIN}, 1")
        I("s_waitcnt vmcnt(0)")
        cur = maxtree(tmp, regs)
        I(f"v_cmp_eq_u32 vcc, -1, v{cur}")
        I(f"s_cbranch_vccz {done}")
        if masked:
            if groups is None or len(loads) == 1:
                I("s_mov_b64 exec, vcc")
                for l in loads:
                    I(l)
            else:
                for j, gr in enumerate(groups):
                    cur = maxtree(tmp + 1 - (j & 1), gr)
                    I(f"v_cmp_eq_u32 s[{86+2*j}:{87+2*j}], -1, v{cur}")
                for j, l in enumerate(loads):
                    I(f"s_mov_b64 exec, s[{86+2*j}:{87+2*j}]")
                    I(l)
            setexec(*ex)
        I(f"s_cmp_lt_u32 s{sSPIN}, {spin_limit}")
        I(f"s_cbranch_scc1 {lab}")
        if masked:
            I("s_waitcnt vmcnt(0)")
        a.label(done)

    def lstore(ins):
        l1 = a.newlab("Ls"); l2 = a.newlab("Lsd")
        I(f"s_cmp_eq_u32 s{sPURE}, 0")
        I(f"s_cbranch_scc1 {l1}")
        for x in ins: I(x)
        I(f"s_branch {l2}")
        a.label(l1)
        for x in ins: I(x + " sc1")
        a.label(l2)

    def unpack(lo, hi, src):
        I(f"v_lshlrev_b32 v{lo}, 16, v{src}")
        I(f"v_and_b32 v{hi}, 0xffff0000, v{src}")

    XA = T + 32
    ONES = T + 28

    I("s_cmp_ge_u32 s2, 256")
    I("s_cbranch_scc1 L_end")
    I("s_load_dwordx16 s[32:47], s[0:1], 0")
    I("s_load_dwordx8 s[48:55], s[0:1], 64")
    I("s_load_dwordx2 s[56:57], s[0:1], 96")
    I("v_lshrrev_b32 v1, 6, v0")
    I(f"v_and_b32 v{vLANE}, 63, v0")
    I(f"v_readfirstlane_b32 s{sWAVE}, v1")
    I(f"s_and_b32 s{sX}, s2, 7")
    I(f"s_lshr_b32 s{sR}, s2, 3")
    I(f"s_mov_b32 s{sIT}, 0")
    I(f"s_mov_b32 s{sREG}, 0")
    I(f"s_mov_b32 s{sSPIN}, 0")
    I(f"s_mov_b32 s{sPURE}, 0")
    I(f"s_mov_b32 s{sTSI}, 0")
    I(f"s_mov_b32 s{sL2E}, {L2E:#x}")
    I(f"s_getreg_b32 s{sXCC}, hwreg(HW_REG_XCC_ID)")
    I(f"s_and_b32 s{sXCC}, s{sXCC}, 15")
    I(f"s_mul_i32 s{sTB}, s{sX}, 7")
    I(f"s_cmp_eq_u32 s{sX}, 7")
    I(f"s_cselect_b32 s{sT0}, 1, 0")
    I(f"s_sub_u32 s{sTB}, s{sTB}, s{sT0}")
    I(f"s_cmp_lt_u32 s{sX}, 6")
    I(f"s_cselect_b32 s{sNT}, 7, 6")
    I(f"s_mov_b32 s{sROLE}, 2")
    I(f"s_cmp_lt_u32 s{sR}, 27")
    I(f"s_cselect_b32 s{sROLE}, 3, s{sROLE}")
    I(f"s_add_u32 s{sT0}, s{sNT}, 20")
    I(f"s_cmp_lt_u32 s{sR}, s{sT0}")
    I(f"s_cselect_b32 s{sROLE}, 1, s{sROLE}")
    I(f"s_cmp_lt_u32 s{sR}, 20")
    I(f"s_cselect_b32 s{sROLE}, 0, s{sROLE}")
    g, n, q4, c4, t0, t1, t2, t3 = T, T+1, T+2, T+3, T+4, T+5, T+6, T+7
    I(f"v_lshrrev_b32 v{g}, 4, v{vLANE}")
    I(f"v_and_b32 v{n}, 15, v{vLANE}")
    I(f"v_bfe_u32 v{q4}, v{vLANE}, 2, 2")
    I(f"v_and_b32 v{c4}, 3, v{vLANE}")
    for i in range(1, 18):
        I(f"v_mov_b32 v{i}, {BIG:#x}")
    if instr:
        I(f"v_mov_b32 v{vTSI}, -1")
        I(f"v_mov_b32 v{vTST}, 0")
    I(f"s_lshl_b32 s{sSLOT}, s{sX}, 5")
    I(f"s_add_u32 s{sSLOT}, s{sSLOT}, s{sR}")
    I(f"s_lshl_b32 s{sKV}, s{sSLOT}, 17")
    I(f"s_lshl_b32 s{sT0}, s{sWAVE}, 14")
    I(f"s_add_u32 s{sKV}, s{sKV}, s{sT0}")
    I("s_waitcnt lgkmcnt(0)")
    srd(K_SRD, 34, 32 << 20)
    srd(V_SRD, 36, 32 << 20)
    srd(WS, 56, WS_SIZE)
    srd(OUTS, 52, 1280)
    TS(0)

    def k_addr(k0, k1, k2):
        I(f"v_bfe_u32 v{k0}, v{vLANE}, 2, 2")
        I(f"v_lshlrev_b32 v{k0}, 8, v{k0}")
        I(f"v_lshrrev_b32 v{k1}, 4, v{vLANE}")
        I(f"v_lshl_add_u32 v{k0}, v{k1}, 6, v{k0}")
        I(f"v_and_b32 v{k2}, 3, v{vLANE}")
        I(f"v_lshl_add_u32 v{k0}, v{k2}, 4, v{k0}")

    def kv_issue(W=0):
        k0, k1, k2, k3 = T + 40, T + 41, T + 42, T + 43
        k_addr(k0, k1, k2)
        I(f"v_bfe_u32 v{k3}, v{vLANE}, 3, 1")
        I(f"v_lshl_add_u32 v{k3}, v{k3}, 3, v{k1}")
        I(f"v_lshlrev_b32 v{k3}, 8, v{k3}")
        I(f"v_and_b32 v{k2}, 7, v{vLANE}")
        I(f"v_lshl_add_u32 v{k3}, v{k2}, 4, v{k3}")
        for i in range(32):
            if i % 4 == 0:
                I(f"s_add_u32 s{sT0}, s{sKV}, {((i%16)//4)*4096}")
            if W and i >= W:
                I(f"s_waitcnt vmcnt({W-1})")
            if i < 16:
                I(f"buffer_load_dwordx4 {vr(vK+4*i)}, v{k0}, {K_SRD}, s{sT0} offen offset:{(i%4)*1024} {kvflags}")
            else:
                j = i - 16
                u, hf = (j >> 1) & 1, j & 1
                I(f"buffer_load_dwordx4 {vr(vV+4*j)}, v{k3}, {V_SRD}, s{sT0} offen offset:{u*1024+hf*128} {kvflags}")

    def role_dma():
        I(f"s_lshl_b32 s{sT1}, s{sWAVE}, 13")
        I(f"s_add_u32 s{sT1}, s{sT1}, {L_ROLE}")
        I(f"s_mov_b32 s{sT0}, s{sRB}")
        for e in range(8):
            if e % 4 == 0:
                I(f"s_mov_b32 m0, s{sT1}")
                if e == 0:
                    I(f"s_add_u32 s{sT1}, s{sT1}, 4096")
            I(f"s_cmp_gt_u32 s{sRN}, {e}")
            I(f"s_cselect_b32 s{sT2}, s{sT0}, {BIG:#x}")
            I(f"buffer_load_dwordx4 v{vRDMA}, {TB}, s{sT2} offen offset:{(e%4)*1024} lds {wflags}")
            if e < 7:
                I(f"s_add_u32 s{sT0}, s{sT0}, s{sRSTEP}")
                if e % 4 == 3:
                    I(f"s_add_u32 s{sT0}, s{sT0}, 3072")
                else:
                    I(f"s_sub_u32 s{sT0}, s{sT0}, 1024")

    I(f"s_cmp_ge_u32 s{sWAVE}, 5")
    I("s_cbranch_scc1 L_init567")
    srd(TA, 38, 640 * 8192)
    I(f"v_lshrrev_b32 v{t2}, 1, v{vLANE}")
    I(f"v_lshlrev_b32 v{t2}, 13, v{t2}")
    I(f"v_and_b32 v{t3}, 1, v{vLANE}")
    I(f"v_lshl_add_u32 v{t2}, v{t3}, 4, v{t2}")
    I(f"s_lshl_b32 s{sT0}, s{sWAVE}, 20")
    I(f"s_lshl_b32 s{sT1}, s{sSLOT}, 5")
    I(f"s_add_u32 s{sT0}, s{sT0}, s{sT1}")
    I(f"s_lshl_b32 s{sT1}, s{sWAVE}, 12")
    I(f"s_add_u32 s{sT1}, s{sT1}, {L_WQ}")
    I(f"s_mov_b32 m0, s{sT1}")
    for e in range(4):
        I(f"buffer_load_dwordx4 v{t2}, {TA}, s{sT0} offen offset:{e*1024} lds {wflags}")
        if e < 3:
            I(f"s_add_u32 s{sT0}, s{sT0}, {32*8192 - 1024}")
    srd(TB, 32, 1280)
    I(f"v_lshlrev_b32 v{vXO}, 6, v{q4}")
    I(f"v_lshl_add_u32 v{vXO}, v{g}, 4, v{vXO}")
    I(f"s_lshl_b32 s{sT0}, s{sWAVE}, 8")
    I(f"v_add_u32 v{vXO}, s{sT0}, v{vXO}")
    I(f"buffer_load_dwordx4 {vr(XA)}, v{vXO}, {TB}, 0 offen")
    I(f"v_bfe_u32 v{t0}, v{vLANE}, 3, 1")
    I(f"v_and_b32 v{t1}, 7, v{vLANE}")
    I(f"s_mul_i32 s{sT0}, s{sWAVE}, {4*ZR}")
    I(f"v_mul_u32_u24 v{vGO}, {ZR}, v{t0}")
    I(f"v_mul_u32_u24 v{t1}, {ZX}, v{t1}")
    I(f"v_add3_u32 v{vGO}, v{vGO}, v{t1}, s{sT0}")
    I(f"v_lshl_add_u32 v{vGO}, v{g}, 4, v{vGO}")
    I(f"s_mul_i32 s{sT0}, s{sWAVE}, {PP}")
    I(f"s_add_u32 s{sT0}, s{sT0}, {L_PB1 + 512}")
    I(f"v_lshlrev_b32 v{t2}, 2, v{g}")
    I(f"v_add_u32 v{t2}, s{sT0}, v{t2}")
    I(f"v_lshlrev_b32 v{t3}, 2, v{vLANE}")
    I(f"v_add_u32 v{t3}, {L_DUM}, v{t3}")
    I(f"v_cmp_eq_u32 vcc, v{q4}, v{g}")
    I(f"v_cndmask_b32 v{vSW}, v{t3}, v{t2}, vcc")
    I("s_branch L_initc")

    a.label("L_init567")
    I(f"s_cmp_eq_u32 s{sWAVE}, 6")
    I("s_cbranch_scc1 L_initc")
    I(f"s_cmp_eq_u32 s{sWAVE}, 7")
    I("s_cbranch_scc1 L_init7")
    I(f"s_mul_i32 s{sT0}, s{sR}, {ZR}")
    I(f"s_mul_i32 s{sT1}, s{sX}, {ZX}")
    I(f"s_add_u32 s{sT0}, s{sT0}, s{sT1}")
    I(f"s_add_u32 s{sRB}, s{sT0}, {ZOFF}")
    I(f"s_mov_b32 s{sRN}, 4")
    I(f"s_lshl_b32 s{sT0}, s{sX}, 3")
    I(f"s_add_u32 s{sT0}, s{sT0}, s{sR}")
    I(f"s_sub_u32 s{sT0}, s{sT0}, 20")
    I(f"s_lshl_b32 s{sT0}, s{sT0}, 7")
    I(f"s_add_u32 s{sT0}, s{sT0}, {HOFF}")
    I(f"s_cmp_eq_u32 s{sROLE}, 1")
    I(f"s_cselect_b32 s{sRB}, s{sT0}, s{sRB}")
    I(f"s_sub_u32 s{sT0}, s{sR}, 27")
    I(f"s_mul_i32 s{sT0}, s{sT0}, {4*ZR}")
    I(f"s_add_u32 s{sT0}, s{sT0}, s{sT1}")
    I(f"s_add_u32 s{sT0}, s{sT0}, {YOFF}")
    I(f"s_cmp_eq_u32 s{sROLE}, 2")
    I(f"s_cselect_b32 s{sRB}, s{sT0}, s{sRB}")
    I(f"s_cselect_b32 s{sRN}, 16, s{sRN}")
    I(f"s_cmp_eq_u32 s{sROLE}, 3")
    I(f"s_cselect_b32 s{sRN}, 0, s{sRN}")
    I(f"v_subrev_u32 v{t0}, 24, v{vLANE}")
    I(f"v_lshrrev_b32 v{t1}, 2, v{t0}")
    I(f"v_and_b32 v{t1}, 7, v{t1}")
    I(f"v_mul_u32_u24 v{t1}, {ZR}, v{t1}")
    I(f"v_lshl_add_u32 v{t1}, v{c4}, 4, v{t1}")
    I(f"v_add_u32 v{t1}, s{sRB}, v{t1}")
    I(f"v_mov_b32 v{t2}, {BIG:#x}")
    I(f"v_cmp_gt_u32 vcc, s{sRN}, v{t0}")
    I(f"v_cndmask_b32 v{t1}, v{t2}, v{t1}, vcc")
    I(f"v_lshlrev_b32 v{t0}, 4, v{vLANE}")
    I(f"s_lshl_b32 s{sT0}, s{sSLOT}, 8")
    I(f"s_add_u32 s{sT0}, s{sT0}, {POFF - 128}")
    I(f"v_add_u32 v{t3}, s{sT0}, v{t0}")
    I(f"v_cmp_gt_u32 vcc, 24, v{vLANE}")
    I(f"v_cndmask_b32 v{t1}, v{t1}, v{t3}, vcc")
    I(f"v_cmp_gt_u32 vcc, 8, v{vLANE}")
    I(f"v_cndmask_b32 v{t1}, v{t1}, v{t2}, vcc")
    I(f"s_lshl_b32 s{sT0}, s{sSLOT}, 5")
    I(f"v_add_u32 v{t3}, s{sT0}, v{t0}")
    I(f"v_cmp_gt_u32 vcc, 2, v{vLANE}")
    I(f"v_cndmask_b32 v{t1}, v{t1}, v{t3}, vcc")
    I(f"s_lshr_b32 s{sT0}, s{sSLOT}, 3")
    I(f"s_lshl_b32 s{sT0}, s{sT0}, 7")
    I(f"s_and_b32 s{sT2}, s{sSLOT}, 7")
    I(f"s_lshl_b32 s{sT2}, s{sT2}, 3")
    I(f"s_add_u32 s{sT0}, s{sT0}, s{sT2}")
    I(f"s_add_u32 s{sT0}, s{sT0}, {MLOFF}")
    I(f"v_mul_u32_u24 v{t3}, {RS}, v{vLANE}")
    I(f"v_add_u32 v{t3}, s{sT0}, v{t3}")
    I(f"v_cndmask_b32 v{t3}, v{t2}, v{t3}, vcc")
    cl = T + 8
    for i in range(4):
        I(f"v_mov_b32 v{cl+i}, -1")
    I(f"s_mov_b32 s{sT1}, {RS}")
    I(f"buffer_store_dwordx4 {vr(cl)}, v{t1}, {WS}, 0 offen sc1")
    I(f"buffer_store_dwordx4 {vr(cl)}, v{t1}, {WS}, s{sT1} offen sc1")
    I(f"buffer_store_dwordx2 v[{cl}:{cl+1}], v{t3}, {WS}, 0 offen sc1")
    I(f"s_lshl_b32 s{sT0}, s{sX}, 11")
    I(f"s_add_u32 s{sT0}, s{sT0}, {XOFF}")
    I(f"s_cmp_eq_u32 s{sR}, {LEAD_R}")
    I(f"s_cselect_b32 s{sT0}, s{sT0}, {BIG:#x}")
    I(f"buffer_store_dwordx4 {vr(cl)}, v{t0}, {WS}, s{sT0} offen sc1")
    I(f"buffer_store_dwordx4 {vr(cl)}, v{t0}, {WS}, s{sT0} offen offset:1024 sc1")
    I(f"v_lshlrev_b32 v{vRR}, 4, v{vLANE}")
    I(f"v_lshrrev_b32 v{t0}, 1, v{vLANE}")
    I(f"s_lshl_b32 s{sT0}, s{sSLOT}, 5")
    I(f"v_lshlrev_b32 v{vQP}, 2, v{t0}")
    I(f"v_add_u32 v{vQP}, s{sT0}, v{vQP}")
    I(f"s_and_b32 s{sT0}, s{sT0}, {~255 & 0xffffffff:#x}")
    I(f"v_add_u32 v{vQG}, s{sT0}, v{vRR}")
    I(f"v_lshrrev_b32 v{t1}, 3, v{vLANE}")
    I(f"v_lshlrev_b32 v{t1}, 4, v{t1}")
    I(f"v_lshlrev_b32 v{t2}, 2, v{t0}")
    I(f"s_cmp_eq_u32 s{sROLE}, 1")
    I(f"s_cselect_b64 vcc, -1, 0")
    I(f"v_cndmask_b32 v{t1}, v{t1}, v{t2}, vcc")
    I(f"v_add_u32 v{vRP}, s{sRB}, v{t1}")
    I(f"v_and_b32 v{t1}, 31, v{vLANE}")
    I(f"v_lshlrev_b32 v{t1}, 1, v{t1}")
    srd(TA, 46, 1728 * 2)
    srd(TB, 32, 1280)
    I(f"s_add_u32 s{sT0}, s{sTB}, s{sR}")
    I(f"s_sub_u32 s{sT0}, s{sT0}, 20")
    I(f"s_lshl_b32 s{sT0}, s{sT0}, 6")
    I(f"s_cmp_eq_u32 s{sROLE}, 1")
    I(f"s_cselect_b32 s{sT0}, s{sT0}, {BIG:#x}")
    I(f"s_or_b32 s{sT2}, s{sROLE}, s{sX}")
    I(f"s_lshl_b32 s{sT1}, s{sR}, 6")
    I(f"s_cmp_eq_u32 s{sT2}, 0")
    I(f"s_cselect_b32 s{sT1}, s{sT1}, {BIG:#x}")
    I(f"buffer_load_ushort v{vB1}, v{t1}, {TA}, s{sT0} offen")
    I(f"buffer_load_ushort v{vXF}, v{t1}, {TB}, s{sT1} offen")
    I(f"s_lshl_b32 s{sT1}, s{sR}, 6")
    I(f"s_add_u32 s{sT1}, s{sT1}, {XOFF}")
    I(f"s_cmp_eq_u32 s{sT2}, 0")
    I(f"s_cselect_b32 s{sT1}, s{sT1}, {BIG:#x}")
    I(f"v_add_u32 v{vXFA}, s{sT1}, v{t1}")
    I(f"s_mul_i32 s{sT0}, s{sXCC}, 6")
    I(f"s_lshl_b64 s[{sF}:{sF+1}], 1, s{sT0}")
    I(f"s_cmp_lt_u32 s{sXCC}, 8")
    I(f"s_cselect_b32 s{sF}, s{sF}, 0")
    I(f"s_cselect_b32 s{sF+1}, s{sF+1}, 0")
    I(f"s_or_b32 s{sF+1}, s{sF+1}, 0x10000")
    srd(TA, 54, 256)
    I(f"v_mov_b32 v{t2}, s{sF}")
    I(f"v_mov_b32 v{t3}, s{sF+1}")
    I(f"s_lshl_b32 s{sT1}, s{sX}, 4")
    I(f"v_mov_b32 v{t0}, s{sT1}")
    I("s_waitcnt vmcnt(0)")
    TS(31)
    setexec(1, 0)
    I(f"buffer_atomic_add_x2 v[{t2}:{t3}], v{t0}, {TA}, 0 offen sc0 sc1")
    I("s_waitcnt vmcnt(0)")
    I(f"v_readfirstlane_b32 s{sF+2}, v{t2}")
    I(f"v_readfirstlane_b32 s{sF+3}, v{t3}")
    I(f"s_lshr_b32 s{sT1}, s{sF+3}, 16")
    I(f"s_cmp_eq_u32 s{sT1}, 31")
    I("s_cbranch_scc0 L_notlast")
    I(f"s_lshr_b64 s[{sF+2}:{sF+3}], s[{sF+2}:{sF+3}], s{sT0}")
    I(f"s_and_b32 s{sF+2}, s{sF+2}, 63")
    I(f"s_cmp_eq_u32 s{sF+2}, 31")
    I(f"s_cselect_b32 s{sT1}, 1, 0")
    I(f"s_cmp_lt_u32 s{sXCC}, 8")
    I(f"s_cselect_b32 s{sT1}, s{sT1}, 0")
    I(f"s_lshl_b32 s{sT1}, s{sT1}, s{sX}")
    I(f"s_or_b32 s{sT1}, s{sT1}, 0x100")
    I(f"v_mov_b32 v{t2}, s{sT1}")
    I(f"v_mov_b32 v{t0}, 128")
    I(f"buffer_atomic_add v{t2}, v{t0}, {TA}, 0 offen sc1")
    a.label("L_notlast")
    setexec(0xFFFFFFFF, 0xFFFFFFFF)
    I(f"v_lshlrev_b32 v{vB1}, 16, v{vB1}")
    I(f"v_lshlrev_b32 v{vXF}, 16, v{vXF}")
    I("s_branch L_initc")

    a.label("L_init7")
    I(f"v_lshlrev_b32 v{vCR}, 3, v{vLANE}")
    I(f"v_add_u32 v{vCR}, {L_O}, v{vCR}")
    I(f"v_and_b32 v{t0}, 7, v{vLANE}")
    I(f"v_lshlrev_b32 v{vCML}, 3, v{t0}")
    I(f"v_add_u32 v{vCML}, {L_ML}, v{vCML}")
    I(f"s_lshl_b32 s{sT0}, s{sSLOT}, 8")
    I(f"s_add_u32 s{sT0}, s{sT0}, {POFF}")
    I(f"v_lshlrev_b32 v{vCP}, 2, v{vLANE}")
    I(f"v_add_u32 v{vCP}, s{sT0}, v{vCP}")
    I(f"s_lshr_b32 s{sT0}, s{sSLOT}, 3")
    I(f"s_lshl_b32 s{sT0}, s{sT0}, 7")
    I(f"s_and_b32 s{sT2}, s{sSLOT}, 7")
    I(f"s_lshl_b32 s{sT2}, s{sT2}, 3")
    I(f"s_add_u32 s{sT0}, s{sT0}, s{sT2}")
    I(f"s_add_u32 s{sT0}, s{sT0}, {MLOFF}")
    I(f"v_mov_b32 v{vCPM}, s{sT0}")

    a.label("L_initc")
    I(f"s_cmp_lt_u32 s{sWAVE}, 6")
    I("s_cbranch_scc1 L_kvskip")
    kv_issue(W67)
    a.label("L_kvskip")
    TS(1)
    I(f"s_mov_b32 s{sRN}, 0")
    I(f"s_mov_b32 s{sRB}, 0")
    I(f"s_mov_b32 s{sRSTEP}, 0")
    srd(TB, 40, 4096 * 1280)
    I(f"v_lshrrev_b32 v{t0}, 2, v{vLANE}")
    I(f"v_lshlrev_b32 v{t1}, 4, v{c4}")
    I(f"s_cmp_eq_u32 s{sROLE}, 0")
    I("s_cbranch_scc0 L_rp1")
    I(f"s_lshl_b32 s{sT0}, s{sX}, 3")
    I(f"s_add_u32 s{sT0}, s{sT0}, s{sWAVE}")
    I(f"s_mul_i32 s{sT0}, s{sT0}, {64*1280}")
    I(f"s_lshl_b32 s{sT1}, s{sR}, 6")
    I(f"s_add_u32 s{sRB}, s{sT0}, s{sT1}")
    I(f"s_mov_b32 s{sRSTEP}, {16*1280}")
    I(f"s_mov_b32 s{sRN}, 4")
    I(f"v_mul_u32_u24 v{vRDMA}, 1280, v{t0}")
    I(f"v_add_u32 v{vRDMA}, v{vRDMA}, v{t1}")
    I(f"s_lshr_b32 s{sT0}, s{sWAVE}, 1")
    I(f"s_lshl_b32 s{sT1}, s{sX}, 2")
    I(f"s_add_u32 s{sT0}, s{sT0}, s{sT1}")
    I(f"s_lshl_b32 s{sT1}, s{sT0}, 11")
    I(f"s_and_b32 s{sT2}, s{sWAVE}, 1")
    I(f"s_lshl_b32 s{sT2}, s{sT2}, 7")
    I(f"s_add_u32 s{sT1}, s{sT1}, s{sT2}")
    I(f"s_add_u32 s{sT1}, s{sT1}, {POFF}")
    I(f"v_and_b32 v{t2}, 7, v{vLANE}")
    I(f"v_lshlrev_b32 v{t2}, 8, v{t2}")
    I(f"v_lshl_add_u32 v{t2}, v{g}, 4, v{t2}")
    I(f"v_bfe_u32 v{t3}, v{vLANE}, 3, 1")
    I(f"v_lshl_add_u32 v{t2}, v{t3}, 6, v{t2}")
    I(f"v_add_u32 v{vA0}, s{sT1}, v{t2}")
    I(f"v_xor_b32 v{t2}, v{g}, v{q4}")
    I(f"v_and_b32 v{t2}, 1, v{t2}")
    I(f"v_lshl_add_u32 v{t2}, v{t2}, 2, v{c4}")
    I(f"v_lshlrev_b32 v{t2}, 3, v{t2}")
    I(f"s_lshl_b32 s{sT0}, s{sT0}, 7")
    I(f"s_add_u32 s{sT0}, s{sT0}, {MLOFF}")
    I(f"v_add_u32 v{vA2}, s{sT0}, v{t2}")
    I("s_branch L_rpd")
    a.label("L_rp1")
    I(f"s_cmp_eq_u32 s{sROLE}, 1")
    I("s_cbranch_scc0 L_rp2")
    srd(TB, 44, 640 * 3456)
    I(f"s_mul_i32 s{sT0}, s{sWAVE}, {128*3456}")
    I(f"s_add_u32 s{sT1}, s{sTB}, s{sR}")
    I(f"s_sub_u32 s{sT1}, s{sT1}, 20")
    I(f"s_lshl_b32 s{sT1}, s{sT1}, 6")
    I(f"s_add_u32 s{sRB}, s{sT0}, s{sT1}")
    I(f"s_mov_b32 s{sRSTEP}, {16*3456}")
    I(f"s_cmp_lt_u32 s{sWAVE}, 5")
    I(f"s_cselect_b32 s{sRN}, 8, 0")
    I(f"v_mul_u32_u24 v{vRDMA}, 3456, v{t0}")
    I(f"v_add_u32 v{vRDMA}, v{vRDMA}, v{t1}")
    I("s_branch L_rpd")
    a.label("L_rp2")
    I(f"v_mov_b32 v{vRDMA}, 0")
    I(f"s_cmp_eq_u32 s{sROLE}, 2")
    I("s_cbranch_scc0 L_rpd")
    srd(TB, 48, 1728 * 1280)
    I(f"s_mul_i32 s{sT0}, s{sTB}, {32*1280}")
    I(f"s_sub_u32 s{sT2}, s{sR}, 27")
    I(f"s_lshl_b32 s{sT1}, s{sT2}, 8")
    I(f"s_add_u32 s{sT0}, s{sT0}, s{sT1}")
    I(f"s_lshl_b32 s{sT1}, s{sWAVE}, 5")
    I(f"s_add_u32 s{sRB}, s{sT0}, s{sT1}")
    I(f"s_mov_b32 s{sRSTEP}, {32*1280}")
    I(f"s_mov_b32 s{sRN}, 7")
    I(f"v_lshrrev_b32 v{t0}, 1, v{vLANE}")
    I(f"v_mul_u32_u24 v{vRDMA}, 1280, v{t0}")
    I(f"v_and_b32 v{t1}, 1, v{vLANE}")
    I(f"v_lshl_add_u32 v{vRDMA}, v{t1}, 4, v{vRDMA}")
    I(f"s_lshl_b32 s{sT0}, s{sX}, 10")
    I(f"s_add_u32 s{sT0}, s{sT0}, {HOFF}")
    I(f"v_lshlrev_b32 v{t0}, 4, v{g}")
    I(f"v_add_u32 v{vA0}, s{sT0}, v{t0}")
    I(f"s_mov_b32 s{sT1}, 768")
    I(f"s_cmp_eq_u32 s{sNT}, 7")
    I(f"s_cselect_b32 s{sT1}, s{sT1}, {BIG:#x}")
    I(f"v_add_u32 v{vA1}, s{sT1}, v{vA0}")
    I(f"s_lshl_b32 s{sT0}, s{sT2}, 2")
    I(f"s_lshr_b32 s{sT1}, s{sWAVE}, 1")
    I(f"s_add_u32 s{sT0}, s{sT0}, s{sT1}")
    I(f"s_mul_i32 s{sT0}, s{sT0}, {ZR}")
    I(f"s_and_b32 s{sT1}, s{sWAVE}, 1")
    I(f"s_lshl_b32 s{sT1}, s{sT1}, 5")
    I(f"s_add_u32 s{sT0}, s{sT0}, s{sT1}")
    I(f"v_lshlrev_b32 v{t0}, 3, v{g}")
    I(f"v_add_u32 v{t0}, s{sT0}, v{t0}")
    I(f"s_mul_i32 s{sT1}, s{sX}, {ZX}")
    I(f"s_add_u32 s{sT1}, s{sT1}, {YOFF}")
    I(f"v_add_u32 v{vA2}, s{sT1}, v{t0}")
    I(f"v_mul_u32_u24 v{t1}, {ZX}, v{n}")
    I(f"v_add_u32 v{t1}, v{t1}, v{t0}")
    I(f"v_add_u32 v{t1}, {ZOFF}, v{t1}")
    I(f"s_cmp_eq_u32 s{sX}, 0")
    I(f"s_cselect_b32 s{sT0}, 8, 0")
    I(f"v_mov_b32 v{t2}, {BIG:#x}")
    I(f"v_cmp_gt_u32 vcc, s{sT0}, v{n}")
    I(f"v_cndmask_b32 v{vA3}, v{t2}, v{t1}, vcc")
    a.label("L_rpd")

    I(f"s_mul_i32 s{sT0}, s{sWAVE}, {PP}")
    I(f"v_lshlrev_b32 v{vPW}, 4, v{n}")
    I(f"v_lshl_add_u32 v{vPW}, v{g}, 2, v{vPW}")
    I(f"v_add_u32 v{vPW}, s{sT0}, v{vPW}")
    I(f"v_lshl_add_u32 v{vQR}, v{g}, 2, v{c4}")
    I(f"v_lshlrev_b32 v{vQR}, 4, v{vQR}")
    I(f"v_add_u32 v{vQR}, {L_QB}, v{vQR}")
    I(f"s_lshl_b32 s{sT0}, s{sWAVE}, 10")
    I(f"s_add_u32 s{sT0}, s{sT0}, {L_O}")
    I(f"v_bfe_u32 v{t0}, v{vLANE}, 3, 1")
    I(f"v_lshlrev_b32 v{vOW}, 9, v{t0}")
    I(f"v_and_b32 v{t0}, 7, v{vLANE}")
    I(f"v_lshl_add_u32 v{vOW}, v{t0}, 5, v{vOW}")
    I(f"v_and_b32 v{t1}, 1, v{g}")
    I(f"v_lshl_add_u32 v{vOW}, v{t1}, 4, v{vOW}")
    I(f"v_add_u32 v{vOW}, s{sT0}, v{vOW}")
    I(f"s_lshl_b32 s{sT0}, s{sWAVE}, 3")
    I(f"s_add_u32 s{sT0}, s{sT0}, {L_ML}")
    I(f"v_lshlrev_b32 v{vMLW}, 3, v{vLANE}")
    I(f"v_add_u32 v{vMLW}, {L_DUM}, v{vMLW}")
    I(f"v_writelane_b32 v{vMLW}, s{sT0}, 63")
    for u in range(2):
        for r in range(4):
            sb = 0x0100 if u == (r >> 1) else 0x0302
            d = vSEL + u * 4 + r
            I(f"v_mov_b32 v{d}, 0x0c0c0c0c")
            I(f"v_mov_b32 v{t1}, {0x0c0c0000 | sb:#x}")
            I(f"v_mov_b32 v{t2}, {(sb << 16) | 0x0c0c:#x}")
            I(f"v_cmp_eq_u32 vcc, {2*r}, v{t0}")
            I(f"v_cndmask_b32 v{d}, v{d}, v{t1}, vcc")
            I(f"v_cmp_eq_u32 vcc, {2*r+1}, v{t0}")
            I(f"v_cndmask_b32 v{d}, v{d}, v{t2}, vcc")

    def tr_addr(dst, pitch, base_s):
        x0, x1 = T + 48, T + 49
        I(f"v_lshrrev_b32 v{x0}, 4, v{vLANE}")
        I(f"v_bfe_u32 v{x1}, v{vLANE}, 2, 2")
        I(f"v_lshl_add_u32 v{x0}, v{x0}, 3, v{x1}")
        I(f"v_lshlrev_b32 v{x0}, {pitch.bit_length()-1}, v{x0}")
        I(f"v_and_b32 v{x1}, 3, v{vLANE}")
        I(f"v_lshl_add_u32 v{x0}, v{x1}, 3, v{x0}")
        I(f"v_add_u32 v{dst}, s{base_s}, v{x0}")

    def ones():
        for i in range(4):
            I(f"v_mov_b32 v{ONES+i}, 0x3f803f80")

    I(f"s_cmp_ge_u32 s{sWAVE}, 5")
    I("s_cbranch_scc1 L_B1")
    I(f"s_lshl_b32 s{sT0}, s{sWAVE}, 12")
    I(f"s_add_u32 s{sT0}, s{sT0}, {L_WQ}")
    tr_addr(t0, 32, sT0)
    ones()
    I(f"s_lshl_b32 s{sT0}, s{sWAVE}, 7")
    I(f"v_lshlrev_b32 v{t1}, 2, v{n}")
    I(f"v_add_u32 v{t1}, s{sT0}, v{t1}")
    I(f"s_waitcnt vmcnt(0)")
    for ks in range(4):
        I(f"ds_read_b64_tr_b16 v[{vBQ+4*ks}:{vBQ+4*ks+1}], v{t0} offset:{ks*1024}")
        I(f"ds_read_b64_tr_b16 v[{vBQ+4*ks+2}:{vBQ+4*ks+3}], v{t0} offset:{ks*1024+128}")
    I("s_waitcnt lgkmcnt(0)")
    D0 = T + 8
    for ks in range(4):
        I(f"v_mfma_f32_16x16x32_bf16 {vr(D0)}, {vr(ONES)}, {vr(vBQ+4*ks)}, {'0' if ks == 0 else vr(D0)}")
    I(f"ds_write_b32 v{t1}, v{D0} offset:{L_CS1}")
    TS(2)
    I("s_branch L_haveX")

    def gemv(ntile, Bbase, bidx):
        S1, S2 = T + 16, T + 20
        A0_, A1_ = vr(XA), vr(XA + 4)
        I(f"v_mfma_f32_16x16x32_bf16 {vr(S2)}, {A0_}, {A0_}, 0")
        I(f"v_mfma_f32_16x16x32_bf16 {vr(S2)}, {A1_}, {A1_}, {vr(S2)}")
        I(f"v_mfma_f32_16x16x32_bf16 {vr(S1)}, {A0_}, {vr(ONES)}, 0")
        I(f"v_mfma_f32_16x16x32_bf16 {vr(S1)}, {A1_}, {vr(ONES)}, {vr(S1)}")
        post = [
            f"v_pk_add_f32 v[{S2}:{S2+1}], v[{S2}:{S2+1}], v[{S2+2}:{S2+3}]",
            f"v_add_f32 v{S2}, v{S2}, v{S2+1}",
            f"v_add_f32_dpp v{S2}, v{S2}, v{S2} quad_perm:[1,0,3,2] row_mask:0xf bank_mask:0xf",
            f"v_pk_add_f32 v[{S1}:{S1+1}], v[{S1}:{S1+1}], v[{S1+2}:{S1+3}]",
            f"v_add_f32_dpp v{S2}, v{S2}, v{S2} quad_perm:[2,3,0,1] row_mask:0xf bank_mask:0xf",
            f"v_add_f32 v{S1}, v{S1}, v{S1+1}",
            f"v_add_f32_dpp v{S2}, v{S2}, v{S2} row_half_mirror row_mask:0xf bank_mask:0xf",
            f"ds_write2_b32 v{vSW}, v{S1}, v{S2} offset0:0 offset1:4",
        ]
        def dpost(t):
            D = T + 8 * t
            return [f"v_pk_add_f32 v[{D}:{D+1}], v[{D}:{D+1}], v[{D+2}:{D+3}]",
                    f"v_pk_add_f32 v[{D+4}:{D+5}], v[{D+4}:{D+5}], v[{D+6}:{D+7}]",
                    f"v_add_f32 v{D}, v{D}, v{D+1}",
                    f"v_add_f32_dpp v{D}, v{D+4}, v{D+5} quad_perm:[0,1,2,3] row_mask:0xc bank_mask:0xf",
                    f"ds_write_b32 v{vPW}, v{D} offset:{L_PB1 + t*256}"]
        for t in range(ntile):
            post += dpost(t)
        k = 0
        for t in range(ntile):
            for j in range(2):
                D = T + 8 * t + 4 * j
                for h in range(2):
                    I(f"v_mfma_f32_16x16x32_bf16 {vr(D)}, {(A0_, A1_)[h]}, {vr(Bbase+4*bidx(2*h+j,t))}, {vr(D) if h else '0'}")
                    k += 1
                    if k >= 5 and k < 4 * ntile:
                        for x in post[:2]: I(x)
                        post = post[2:]
        for x in post: I(x)
        I("s_waitcnt lgkmcnt(0)")

    def gemv_diag():
        S1, S2 = T + 16, T + 20
        for ks in range(4):
            I(f"v_mfma_f32_16x16x32_bf16 {vr(T+4*ks)}, {vr(XA)}, {vr(vBQ+4*ks)}, 0")
        I(f"v_mfma_f32_16x16x32_bf16 {vr(S1)}, {vr(XA)}, {vr(ONES)}, 0")
        I(f"v_mfma_f32_16x16x32_bf16 {vr(S2)}, {vr(XA)}, {vr(XA)}, 0")
        for ks in range(1, 4):
            I(f"v_mov_b32_dpp v{T}, v{T+4*ks} quad_perm:[0,1,2,3] row_mask:{1<<ks:#x} bank_mask:0xf")
        I(f"ds_write_b32 v{vPW}, v{T} offset:{L_PB1}")
        I(f"ds_write2_b32 v{vSW}, v{S1}, v{S2} offset0:0 offset1:4")
        I("s_waitcnt lgkmcnt(0)")

    def gather(sreg):
        poll([f"buffer_load_dwordx4 {vr(XA)}, v{vGO}, {WS}, s{sreg} offen sc1",
              f"buffer_load_dwordx4 {vr(XA+4)}, v{vGO}, {WS}, s{sreg} offen offset:{2*ZR} sc1"],
             list(range(XA, XA + 8)), groups=[range(XA, XA + 4), range(XA + 4, XA + 8)])

    def reduce_read(nw, base):
        for v in range(nw):
            I(f"ds_read_b128 {vr(T+4*v)}, v{vRR} offset:{base + v*PP}")

    def reduce_sum(nw, dst):
        np_ = 2 * nw
        idx = list(range(np_))
        while len(idx) > 1:
            nx = []
            for i in range(0, len(idx) - 1, 2):
                d, s = idx[i], idx[i + 1]
                I(f"v_pk_add_f32 v[{T+2*d}:{T+2*d+1}], v[{T+2*d}:{T+2*d+1}], v[{T+2*s}:{T+2*s+1}]")
                nx.append(d)
            if len(idx) % 2:
                nx.append(idx[-1])
            idx = nx
        I(f"v_add_f32 v{dst}, v{T}, v{T+1}")

    rTOT, rMEAN, rVAR, rMB, rSD, rR, rU, rT, rINV, rC1, rC2, rCS = [T + 32 + i for i in range(12)]

    def cs_read(area, dst):
        l = a.newlab("Lcs")
        I(f"s_cmp_eq_u32 s{sIT}, 0")
        I(f"s_cbranch_scc0 {l}")
        I(f"v_lshrrev_b32 v{rT}, 2, v{vRR}")
        for v in range(5):
            I(f"ds_read_b32 v{T+24+v}, v{rT} offset:{area + v*128}")
        I("s_waitcnt lgkmcnt(0)")
        I(f"v_add_f32 v{dst}, v{T+24}, v{T+25}")
        I(f"v_add_f32 v{rT}, v{T+26}, v{T+27}")
        I(f"v_add_f32 v{dst}, v{dst}, v{T+28}")
        I(f"v_add_f32 v{dst}, v{dst}, v{rT}")
        a.label(l)

    def stats():
        I(f"v_readlane_b32 s{sT0}, v{rTOT}, 32")
        I(f"v_readlane_b32 s{sT1}, v{rTOT}, 33")
        I(f"v_mul_f32 v{rMEAN}, s{sT0}, v{rINV}")
        I(f"v_mul_f32 v{rVAR}, s{sT1}, v{rINV}")
        I(f"v_fma_f32 v{rVAR}, -v{rMEAN}, v{rMEAN}, v{rVAR}")
        I(f"v_max_f32 v{rVAR}, 0, v{rVAR}")
        I(f"v_cvt_pk_bf16_f32 v{rT}, v{rMEAN}, v{rVAR}")
        I(f"v_and_b32 v{rU}, 0xffff0000, v{rT}")
        I(f"v_lshlrev_b32 v{rMB}, 16, v{rT}")
        I(f"v_add_f32 v{rU}, {f2u(1e-5):#x}, v{rU}")
        I(f"v_cvt_pk_bf16_f32 v{rU}, v{rU}, v{rU}")
        I(f"v_and_b32 v{rU}, 0xffff0000, v{rU}")
        I(f"v_sqrt_f32 v{rU}, v{rU}")
        I(f"v_cvt_pk_bf16_f32 v{rU}, v{rU}, v{rU}")
        I(f"v_and_b32 v{rSD}, 0xffff0000, v{rU}")
        I(f"v_rcp_f32 v{rR}, v{rSD}")

    def pack_pairs(src, dst):
        I(f"v_mov_b32_dpp v{rT}, v{src} quad_perm:[1,0,3,2] row_mask:0xf bank_mask:0xf")
        I(f"v_cvt_pk_bf16_f32 v{dst}, v{src}, v{rT}")
        I(f"v_min_u32 v{dst}, 0xfffffffe, v{dst}")

    a.label("L_loop")
    I(f"s_cmp_ge_u32 s{sWAVE}, 5")
    I("s_cbranch_scc1 L_B1")
    I(f"s_lshl_b32 s{sT2}, s{sX}, 11")
    I(f"s_add_u32 s{sT2}, s{sT2}, {XOFF}")
    I(f"s_cmp_eq_u32 s{sR}, {LEAD_R}")
    I("s_cbranch_scc0 L_nolead")
    I(f"s_mul_i32 s{sT0}, s{sWAVE}, {4*ZR}")
    I(f"s_add_u32 s{sT0}, s{sT0}, s{sREG}")
    I(f"s_add_u32 s{sT0}, s{sT0}, {YOFF - RS & 0xffffffff:#x}")
    I(f"v_lshrrev_b32 v{T+20}, 4, v{vLANE}")
    I(f"v_mul_u32_u24 v{T+20}, {ZR}, v{T+20}")
    I(f"v_and_b32 v{T+21}, 15, v{vLANE}")
    I(f"v_lshl_add_u32 v{T+20}, v{T+21}, 2, v{T+20}")
    I(f"s_lshl_b32 s{sT1}, s{sWAVE}, 8")
    I(f"v_lshlrev_b32 v{T+21}, 2, v{vLANE}")
    I(f"v_add_u32 v{T+21}, s{sT1}, v{T+21}")
    TS(26)
    poll([f"buffer_load_dword v{T+2*j+1}, v{T+20}, {WS}, s{sT0} offen offset:{j*ZX} sc1" for j in range(8)],
         [T + 2 * j + 1 for j in range(8)], groups=[[T + 2 * j + 1] for j in range(8)])
    TS(27)
    for j in range(8):
        unpack(T + 2 * j, T + 2 * j + 1, T + 2 * j + 1)
    for (d, s_) in ((0, 1), (2, 3), (4, 5), (6, 7), (0, 2), (4, 6), (0, 4)):
        I(f"v_pk_add_f32 v[{T+2*d}:{T+2*d+1}], v[{T+2*d}:{T+2*d+1}], v[{T+2*s_}:{T+2*s_+1}]")
    I(f"v_cvt_pk_bf16_f32 v{T}, v{T}, v{T+1}")
    I(f"s_cmp_eq_u32 s{sIT}, 2")
    I("s_cbranch_scc0 L_lead1")
    I(f"buffer_store_dword v{T}, v{T+21}, {OUTS}, 0 offen")
    TS(29)
    I("s_branch L_fin")
    a.label("L_lead1")
    I(f"v_min_u32 v{T}, 0xfffffffe, v{T}")
    lstore([f"buffer_store_dword v{T}, v{T+21}, {WS}, s{sT2} offen"])
    TS(28)
    a.label("L_nolead")
    ones()
    TS(3)
    poll([f"buffer_load_dwordx4 {vr(XA)}, v{vXO}, {WS}, s{sT2} offen sc1"], list(range(XA, XA + 4)))
    TS(4)
    a.label("L_haveX")
    gemv_diag()
    TS(5)
    a.label("L_B1")
    I(f"v_mov_b32 v{rINV}, {f2u(1.0/640):#x}")
    I("s_barrier")
    I(f"s_cmp_eq_u32 s{sWAVE}, 5")
    I("s_cbranch_scc1 L_w5q")
    I(f"s_cmp_gt_u32 s{sWAVE}, 5")
    I("s_cbranch_scc1 L_B2")
    I(f"s_cmp_eq_u32 s{sIT}, 0")
    I("s_cbranch_scc0 L_B2")
    kv_issue(W04)
    I("s_branch L_B2")
    a.label("L_w5q")
    TS(6)
    reduce_read(5, L_PB1)
    cs_read(L_CS1, vCSQ)
    I("s_waitcnt lgkmcnt(0)")
    reduce_sum(5, rTOT)
    stats()
    I(f"v_fma_f32 v{rU}, -v{rMB}, v{vCSQ}, v{rTOT}")
    I(f"v_mul_f32 v{rU}, v{rU}, v{rR}")
    pack_pairs(rU, rU)
    I(f"s_cmp_eq_u32 s{sIT}, 0")
    I("s_cbranch_scc0 L_synced")
    setexec(0x5555, 0)
    I(f"buffer_store_dword v{rU}, v{vQP}, {WS}, s{sREG} offen sc1")
    srd(TA, 54, 256)
    setexec(0xFFFFFFFF, 0xFFFFFFFF)
    I(f"v_mov_b32 v{rT}, 128")
    setexec(1, 0)
    a.label("L_sync")
    I(f"buffer_load_dword v{T}, v{rT}, {TA}, 0 offen sc1")
    I(f"s_add_u32 s{sSPIN}, s{sSPIN}, 1")
    I("s_waitcnt vmcnt(0)")
    I(f"v_readfirstlane_b32 s{sT0}, v{T}")
    I(f"s_cmp_ge_u32 s{sT0}, 0x800")
    I("s_cbranch_scc1 L_syncd")
    I(f"s_cmp_lt_u32 s{sSPIN}, {spin_limit}")
    I("s_cbranch_scc1 L_sync")
    a.label("L_syncd")
    setexec(0xFFFFFFFF, 0xFFFFFFFF)
    I(f"s_lshr_b32 s{sT0}, s{sT0}, s{sX}")
    I(f"s_and_b32 s{sPURE}, s{sT0}, 1")
    I(f"v_mov_b32 v{T}, s{sPURE}")
    I(f"v_mov_b32 v{T+1}, {L_FLAG}")
    I(f"ds_write_b32 v{T+1}, v{T}")
    TS(7)
    I("s_branch L_qpoll")
    a.label("L_synced")
    TS(7)
    setexec(0x5555, 0)
    lstore([f"buffer_store_dword v{rU}, v{vQP}, {WS}, s{sREG} offen"])
    a.label("L_qpoll")
    setexec(0xFFFF, 0)
    poll([f"buffer_load_dwordx4 {vr(T)}, v{vQG}, {WS}, s{sREG} offen sc1"], list(range(T, T + 4)), ex=(0xFFFF, 0))
    I(f"ds_write_b128 v{vRR}, {vr(T)} offset:{L_QB}")
    setexec(0xFFFFFFFF, 0xFFFFFFFF)
    TS(8)
    I(f"s_cmp_eq_u32 s{sIT}, 0")
    I("s_cbranch_scc0 L_B2x")
    kv_issue()
    I("s_branch L_B2w")
    a.label("L_B2x")
    I(f"buffer_load_ushort v{vXF}, v{vXFA}, {WS}, 0 offen sc1")
    a.label("L_B2w")
    I("s_waitcnt lgkmcnt(0)")
    a.label("L_B2")
    BT = T
    ST = T + 16
    PS = T + 32
    MI = T + 36
    OA = T + 44
    for i in range(16):
        I(f"v_mov_b32 v{BT+i}, 0")
    I(f"v_mov_b32 v{MI}, {L_FLAG}")
    I("s_barrier")
    TS(9)
    for t in range(4):
        m = 0x000F000F << (4 * t)
        setexec(m, m)
        I(f"ds_read_b128 {vr(BT+4*t)}, v{vQR}")
    setexec(0xFFFFFFFF, 0xFFFFFFFF)
    I(f"ds_read_b32 v{MI}, v{MI}")
    I("s_waitcnt vmcnt(16)")
    I("s_waitcnt lgkmcnt(0)")
    TS(10)
    for Tt in range(4):
        for t in range(4):
            I(f"v_mfma_f32_16x16x32_bf16 {vr(ST+4*Tt)}, {vr(vK+4*(4*Tt+t))}, {vr(BT+4*t)}, {'0' if t == 0 else vr(ST+4*Tt)}")
    I(f"v_readfirstlane_b32 s{sPURE}, v{MI}")
    for Tt in range(4):
        I(f"v_mov_b32_dpp v{PS+Tt}, v{ST+4*Tt} quad_perm:[0,0,0,0] row_mask:0xf bank_mask:0xf")
        for c in range(1, 4):
            I(f"v_add_f32_dpp v{PS+Tt}, v{ST+4*Tt+c}, v{PS+Tt} quad_perm:[{c},{c},{c},{c}] row_mask:0xf bank_mask:0xf")
    I(f"v_mov_b32 v{MI+2}, {SCALE:#x}")
    I(f"v_mov_b32 v{MI+3}, {SCALE:#x}")
    I(f"v_cvt_pk_bf16_f32 v{MI}, v{PS}, v{PS+1}")
    I(f"v_cvt_pk_bf16_f32 v{MI+1}, v{PS+2}, v{PS+3}")
    unpack(PS, PS + 1, MI)
    unpack(PS + 2, PS + 3, MI + 1)
    I(f"v_pk_mul_f32 v[{PS}:{PS+1}], v[{PS}:{PS+1}], v[{MI+2}:{MI+3}]")
    I(f"v_pk_mul_f32 v[{PS+2}:{PS+3}], v[{PS+2}:{PS+3}], v[{MI+2}:{MI+3}]")
    I(f"v_cvt_pk_bf16_f32 v{MI}, v{PS}, v{PS+1}")
    I(f"v_cvt_pk_bf16_f32 v{MI+1}, v{PS+2}, v{PS+3}")
    unpack(PS, PS + 1, MI)
    unpack(PS + 2, PS + 3, MI + 1)
    vM = MI + 4; vL = MI + 5; vT_ = MI + 6; vPK = MI + 7
    I(f"v_max3_f32 v{vM}, v{PS}, v{PS+1}, v{PS+2}")
    I(f"v_max_f32 v{vM}, v{vM}, v{PS+3}")
    I(f"v_max_f32_dpp v{vM}, v{vM}, v{vM} row_ror:4 row_mask:0xf bank_mask:0xf")
    I(f"v_max_f32_dpp v{vM}, v{vM}, v{vM} row_ror:8 row_mask:0xf bank_mask:0xf")
    I(f"v_max_f32_dpp v{vM}, v{vM}, v{vM} row_bcast:15 row_mask:0xa bank_mask:0xf")
    I(f"v_max_f32_dpp v{vM}, v{vM}, v{vM} row_bcast:31 row_mask:0xc bank_mask:0xf")
    I(f"v_mov_b32 v{MI}, s{sL2E}")
    I(f"v_readlane_b32 s{sM}, v{vM}, 63")
    I(f"v_mul_f32 v{vT_}, s{sM}, v{MI}")
    for Tt in range(4):
        I(f"v_fma_f32 v{PS+Tt}, v{PS+Tt}, v{MI}, -v{vT_}")
    for Tt in range(4):
        I(f"v_exp_f32 v{PS+Tt}, v{PS+Tt}")
    TS(11)
    I(f"s_cmp_eq_u32 s{sIT}, 0")
    I("s_cbranch_scc0 L_PV")
    role_dma()
    TS(25)
    a.label("L_PV")
    for Tt in range(4):
        AB = ST + 8 * (Tt & 1)
        I(f"v_mov_b32_dpp v{vT_}, v{PS+Tt} row_half_mirror row_mask:0xf bank_mask:0xf")
        I(f"v_cvt_pk_bf16_f32 v{vPK}, v{PS+Tt}, v{vT_}")
        for u in range(2):
            for r in range(4):
                I(f"v_perm_b32 v{AB+4*u+r}, v{vPK}, v{vPK}, v{vSEL+4*u+r}")
        if Tt == 1:
            I(f"v_add_f32 v{vL}, v{PS}, v{PS+1}")
            I(f"v_add_f32 v{MI+1}, v{PS+2}, v{PS+3}")
            I(f"v_add_f32 v{vL}, v{vL}, v{MI+1}")
            I(f"v_add_f32_dpp v{vL}, v{vL}, v{vL} row_ror:4 row_mask:0xf bank_mask:0xf")
            I(f"v_add_f32_dpp v{vL}, v{vL}, v{vL} row_ror:8 row_mask:0xf bank_mask:0xf")
            I(f"v_add_f32_dpp v{vL}, v{vL}, v{vL} row_bcast:15 row_mask:0xa bank_mask:0xf")
            I(f"v_add_f32_dpp v{vL}, v{vL}, v{vL} row_bcast:31 row_mask:0xc bank_mask:0xf")
            I(f"ds_write_b64 v{vMLW}, v[{vM}:{vL}]")
        for u in range(2):
            i1 = Tt * 4 + u * 2 + 1
            I(f"s_waitcnt vmcnt({15 - i1 + 8})")
            for hf in range(2):
                i = Tt * 4 + u * 2 + hf
                first = (Tt == 0 and u == 0)
                I(f"v_mfma_f32_16x16x32_bf16 {vr(OA+4*hf)}, {vr(AB+4*u)}, {vr(vV+4*i)}, {'0' if first else vr(OA+4*hf)}")
    TS(12)
    setexec(0x00FF00FF, 0xFF00FF00)
    I(f"ds_write_b128 v{vOW}, {vr(OA)}")
    I(f"ds_write_b128 v{vOW}, {vr(OA+4)} offset:256")
    setexec(0xFFFFFFFF, 0xFFFFFFFF)
    I("s_waitcnt lgkmcnt(0)")
    I("s_barrier")
    TS(13)
    I(f"s_cmp_eq_u32 s{sWAVE}, 7")
    I("s_cbranch_scc0 L_role")
    cM, cL, cMX, cF, cT = T + 32, T + 33, T + 34, T + 36, T + 37
    cLS = T + 35
    I(f"ds_read_b64 v[{cM}:{cL}], v{vCML}")
    for w in range(8):
        I(f"ds_read2st64_b64 {vr(T+4*w)}, v{vCR} offset0:{2*w} offset1:{2*w+1}")
    I(f"v_mov_b32 v{cT}, s{sL2E}")
    I("s_waitcnt lgkmcnt(8)")
    I(f"v_max_f32_dpp v{cMX}, v{cM}, v{cM} quad_perm:[1,0,3,2] row_mask:0xf bank_mask:0xf")
    I(f"v_max_f32_dpp v{cMX}, v{cMX}, v{cMX} quad_perm:[2,3,0,1] row_mask:0xf bank_mask:0xf")
    I(f"v_max_f32_dpp v{cMX}, v{cMX}, v{cMX} row_half_mirror row_mask:0xf bank_mask:0xf")
    I(f"v_sub_f32 v{cF}, v{cM}, v{cMX}")
    I(f"v_mul_f32 v{cF}, v{cF}, v{cT}")
    I(f"v_exp_f32 v{cF}, v{cF}")
    I("s_waitcnt lgkmcnt(0)")
    for w in range(8):
        I(f"v_readlane_b32 s{sF+w}, v{cF}, {w}")
    for w in range(8):
        I(f"v_pk_add_f32 v[{T+4*w}:{T+4*w+1}], v[{T+4*w}:{T+4*w+1}], v[{T+4*w+2}:{T+4*w+3}]")
    for w in range(8):
        sp = f"s[{sF+(w&~1)}:{sF+(w&~1)+1}]"
        o = w & 1
        acc = T + 40 + 2 * (w & 1)
        if w < 2:
            I(f"v_pk_mul_f32 v[{acc}:{acc+1}], v[{T+4*w}:{T+4*w+1}], {sp} op_sel:[0,{o}] op_sel_hi:[1,{o}]")
        else:
            I(f"v_pk_fma_f32 v[{acc}:{acc+1}], v[{T+4*w}:{T+4*w+1}], {sp}, v[{acc}:{acc+1}] op_sel:[0,{o},0] op_sel_hi:[1,{o},1]")
    I(f"v_mul_f32 v{cLS}, v{cF}, v{cL}")
    I(f"v_pk_add_f32 v[{T+40}:{T+41}], v[{T+40}:{T+41}], v[{T+42}:{T+43}]")
    I(f"v_add_f32_dpp v{cLS}, v{cLS}, v{cLS} quad_perm:[1,0,3,2] row_mask:0xf bank_mask:0xf")
    I(f"v_cvt_pk_bf16_f32 v{T+40}, v{T+40}, v{T+41}")
    I(f"v_min_u32 v{T+40}, 0xfffffffe, v{T+40}")
    I(f"v_add_f32_dpp v{cLS}, v{cLS}, v{cLS} quad_perm:[2,3,0,1] row_mask:0xf bank_mask:0xf")
    I(f"v_min_u32 v{cMX}, 0xfffffffe, v{cMX}")
    lstore([f"buffer_store_dword v{T+40}, v{vCP}, {WS}, s{sREG} offen"])
    I(f"v_add_f32_dpp v{cLS}, v{cLS}, v{cLS} row_half_mirror row_mask:0xf bank_mask:0xf")
    I(f"v_min_u32 v{cLS}, 0xfffffffe, v{cLS}")
    setexec(1, 0)
    lstore([f"buffer_store_dwordx2 v[{cMX}:{cLS}], v{vCPM}, {WS}, s{sREG} offen"])
    setexec(0xFFFFFFFF, 0xFFFFFFFF)
    TS(14)

    a.label("L_role")
    I(f"s_cmp_eq_u32 s{sROLE}, 0")
    I("s_cbranch_scc1 L_WO")
    I(f"s_cmp_eq_u32 s{sROLE}, 1")
    I("s_cbranch_scc1 L_W1")
    I(f"s_cmp_eq_u32 s{sROLE}, 2")
    I("s_cbranch_scc1 L_W2")
    I("s_branch L_next")

    def role_base():
        I(f"s_lshl_b32 s{sT0}, s{sWAVE}, 13")
        I(f"s_add_u32 s{sT0}, s{sT0}, {L_ROLE}")

    a.label("L_WO")
    I(f"s_cmp_eq_u32 s{sIT}, 0")
    I("s_cbranch_scc0 L_WO0")
    role_base()
    tr_addr(T + 47, 64, sT0)
    I("s_waitcnt vmcnt(0)")
    for ks in range(2):
        for t in range(2):
            b = vRB + 4 * (ks * 2 + t)
            o = ks * 2048 + t * 32
            I(f"ds_read_b64_tr_b16 v[{b}:{b+1}], v{T+47} offset:{o}")
            I(f"ds_read_b64_tr_b16 v[{b+2}:{b+3}], v{T+47} offset:{o+256}")
    I("s_waitcnt lgkmcnt(0)")
    TS(15)
    I("s_branch L_WO1")
    a.label("L_WO0")
    I(f"s_cmp_eq_u32 s{sWAVE}, 5")
    I("s_cbranch_scc0 L_WO1")
    I("s_waitcnt vmcnt(0)")
    I(f"v_lshlrev_b32 v{vXF}, 16, v{vXF}")
    a.label("L_WO1")
    A0, Ma, La = T, T + 4, T + 5
    Dw = [[T + 8, T + 12], [T + 16, T + 20]]
    wMX, wE, wT, wL2E, wR0, wR1 = [T + 24 + i for i in range(6)]
    I(f"v_mov_b32 v{wL2E}, s{sL2E}")
    poll([f"buffer_load_dwordx4 {vr(A0)}, v{vA0}, {WS}, s{sREG} offen sc1",
          f"buffer_load_dwordx2 v[{Ma}:{La}], v{vA2}, {WS}, s{sREG} offen sc1"], list(range(T, T + 6)),
         groups=[range(T, T + 4), range(T + 4, T + 6)])
    TS(16)
    seq = [
        f"v_max_f32_dpp v{wMX}, v{Ma}, v{Ma} quad_perm:[1,0,3,2] row_mask:0xf bank_mask:0xf",
        f"v_max_f32_dpp v{wMX}, v{wMX}, v{wMX} quad_perm:[2,3,0,1] row_mask:0xf bank_mask:0xf",
        f"v_max_f32_dpp v{wMX}, v{wMX}, v{wMX} row_half_mirror row_mask:0xf bank_mask:0xf",
        f"v_sub_f32 v{wE}, v{Ma}, v{wMX}",
    ]
    k = 0
    for t in range(2):
        for ks in range(2):
            I(f"v_mfma_f32_16x16x32_bf16 {vr(Dw[t][ks])}, {vr(A0)}, {vr(vRB+4*(ks*2+t))}, 0")
            I(seq[k]); k += 1
    I(f"v_mul_f32 v{wE}, v{wE}, v{wL2E}")
    I(f"v_exp_f32 v{wE}, v{wE}")
    I(f"v_mul_f32 v{wT}, v{wE}, v{La}")
    mrg = [f"v_mov_b32_dpp v{Dw[t][0]+i}, v{Dw[t][1]+i} quad_perm:[0,1,2,3] row_mask:0xc bank_mask:0xf"
           for t in range(2) for i in range(4)]
    I(mrg[0]); I(mrg[1])
    I(f"v_add_f32_dpp v{wT}, v{wT}, v{wT} quad_perm:[1,0,3,2] row_mask:0xf bank_mask:0xf")
    I(mrg[2]); I(mrg[3])
    I(f"v_add_f32_dpp v{wT}, v{wT}, v{wT} quad_perm:[2,3,0,1] row_mask:0xf bank_mask:0xf")
    I(f"v_mov_b32_dpp v{wE}, v{wE} row_ror:4 row_mask:0xf bank_mask:0xa")
    I(mrg[4])
    I(f"v_add_f32_dpp v{wT}, v{wT}, v{wT} row_half_mirror row_mask:0xf bank_mask:0xf")
    I(mrg[5])
    I(f"v_rcp_f32 v{wT}, v{wT}")
    I(mrg[6]); I(mrg[7])
    for i in range(4):
        for t in range(2):
            D = Dw[t][0]; R = (wR0, wR1)[t]
            op = "v_mul_f32_dpp" if i == 0 else "v_fmac_f32_dpp"
            I(f"{op} v{R}, v{wE}, v{D+i} quad_perm:[{i},{i},{i},{i}] row_mask:0xf bank_mask:0xf")
    I(f"v_mul_f32 v{wR0}, v{wR0}, v{wT}")
    I(f"v_mul_f32 v{wR1}, v{wR1}, v{wT}")
    I(f"ds_write_b32 v{vPW}, v{wR0} offset:{L_PB2}")
    I(f"ds_write_b32 v{vPW}, v{wR1} offset:{L_PB2+256}")
    I("s_waitcnt lgkmcnt(0)")
    I("s_barrier")
    I(f"s_cmp_eq_u32 s{sWAVE}, 5")
    I("s_cbranch_scc0 L_next")
    TS(17)
    reduce_read(8, L_PB2)
    I("s_waitcnt lgkmcnt(0)")
    I(f"v_add_f32 v{T+30}, v{T+30}, v{vXF}")
    reduce_sum(8, rTOT)
    pack_pairs(rTOT, rU)
    I(f"v_mov_b32 v{T}, v{rU}")
    I(f"v_mov_b32_dpp v{T+1}, v{rU} quad_perm:[2,2,2,2] row_mask:0xf bank_mask:0xf")
    I(f"v_mov_b32_dpp v{T+2}, v{rU} row_shl:4 row_mask:0xf bank_mask:0xf")
    I(f"v_mov_b32_dpp v{T+3}, v{rU} row_shl:6 row_mask:0xf bank_mask:0xf")
    setexec(0x01010101, 0)
    I(f"buffer_store_dwordx4 {vr(T)}, v{vRP}, {WS}, s{sREG} offen sc1")
    setexec(0xFFFFFFFF, 0xFFFFFFFF)
    TS(18)
    I("s_branch L_next")

    a.label("L_W1")
    I(f"s_cmp_ge_u32 s{sWAVE}, 5")
    I("s_cbranch_scc1 L_W1b")
    ones()
    I(f"s_cmp_eq_u32 s{sIT}, 0")
    I("s_cbranch_scc0 L_W11")
    role_base()
    tr_addr(T + 47, 64, sT0)
    I(f"s_lshl_b32 s{sT0}, s{sWAVE}, 7")
    I(f"v_and_b32 v{T+46}, 15, v{vLANE}")
    I(f"v_lshlrev_b32 v{T+46}, 2, v{T+46}")
    I(f"v_add_u32 v{T+46}, s{sT0}, v{T+46}")
    I("s_waitcnt vmcnt(0)")
    for ks in range(4):
        for t in range(2):
            b = vRB + 4 * (ks * 2 + t)
            o = ks * 2048 + t * 32
            I(f"ds_read_b64_tr_b16 v[{b}:{b+1}], v{T+47} offset:{o}")
            I(f"ds_read_b64_tr_b16 v[{b+2}:{b+3}], v{T+47} offset:{o+256}")
        if ks == 1:
            I("s_waitcnt lgkmcnt(0)")
    I("s_waitcnt lgkmcnt(0)")
    for t in range(2):
        for ks in range(4):
            I(f"v_mfma_f32_16x16x32_bf16 {vr(T+4*t)}, {vr(ONES)}, {vr(vRB+4*(ks*2+t))}, {'0' if ks == 0 else vr(T+4*t)}")
    I(f"ds_write_b32 v{T+46}, v{T} offset:{L_CS2}")
    I(f"ds_write_b32 v{T+46}, v{T+4} offset:{L_CS2+64}")
    TS(15)
    a.label("L_W11")
    I(f"s_add_u32 s{sT1}, s{sREG}, {ZOFF}")
    gather(sT1)
    TS(19)
    gemv(2, vRB, lambda ks, t: ks * 2 + t)
    TS(20)
    a.label("L_W1b")
    I(f"v_mov_b32 v{rINV}, {f2u(1.0/640):#x}")
    I(f"v_mov_b32 v{rC1}, {f2u(GC1):#x}")
    I(f"v_mov_b32 v{rC2}, {f2u(GC2):#x}")
    I("s_barrier")
    I(f"s_cmp_eq_u32 s{sWAVE}, 5")
    I("s_cbranch_scc0 L_next")
    TS(21)
    reduce_read(5, L_PB1)
    cs_read(L_CS2, vCS1)
    I("s_waitcnt lgkmcnt(0)")
    reduce_sum(5, rTOT)
    stats()
    I(f"v_sub_f32 v{rMEAN}, v{rMEAN}, v{rMB}")
    I(f"v_mul_f32 v{rVAR}, v{rVAR}, v{rR}")
    I(f"v_mul_f32 v{rMEAN}, v{rMEAN}, v{rR}")
    I(f"v_mul_f32 v{rVAR}, v{rVAR}, v{rR}")
    I(f"v_cvt_pk_bf16_f32 v{rT}, v{rMEAN}, v{rVAR}")
    I(f"v_and_b32 v{rU}, 0xffff0000, v{rT}")
    I(f"v_lshlrev_b32 v{rMEAN}, 16, v{rT}")
    I(f"v_add_f32 v{rU}, {f2u(1e-5):#x}, v{rU}")
    I(f"v_cvt_pk_bf16_f32 v{rU}, v{rU}, v{rU}")
    I(f"v_fma_f32 v{rMB}, v{rMEAN}, v{rSD}, v{rMB}")
    I(f"v_and_b32 v{rU}, 0xffff0000, v{rU}")
    I(f"v_sqrt_f32 v{rU}, v{rU}")
    I(f"v_fma_f32 v{rTOT}, -v{rMB}, v{vCS1}, v{rTOT}")
    I(f"v_cvt_pk_bf16_f32 v{rU}, v{rU}, v{rU}")
    I(f"v_mul_f32 v{rTOT}, v{rTOT}, v{rR}")
    I(f"v_and_b32 v{rU}, 0xffff0000, v{rU}")
    I(f"v_rcp_f32 v{rU}, v{rU}")
    I(f"v_mul_f32 v{rTOT}, v{rTOT}, v{rU}")
    I(f"v_cvt_pk_bf16_f32 v{rU}, v{rTOT}, v{rTOT}")
    I(f"v_and_b32 v{rU}, 0xffff0000, v{rU}")
    I(f"v_add_f32 v{rU}, v{rU}, v{vB1}")
    I(f"v_cvt_pk_bf16_f32 v{rU}, v{rU}, v{rU}")
    I(f"v_and_b32 v{rU}, 0xffff0000, v{rU}")
    I(f"v_mul_f32 v{rT}, v{rU}, v{rU}")
    I(f"v_fma_f32 v{rT}, v{rT}, v{rC2}, v{rC1}")
    I(f"v_mul_f32 v{rT}, v{rT}, v{rU}")
    I(f"v_exp_f32 v{rT}, v{rT}")
    I(f"v_add_f32 v{rT}, 1.0, v{rT}")
    I(f"v_rcp_f32 v{rT}, v{rT}")
    I(f"v_mul_f32 v{rU}, v{rU}, v{rT}")
    pack_pairs(rU, rU)
    setexec(0x55555555, 0)
    lstore([f"buffer_store_dword v{rU}, v{vRP}, {WS}, s{sREG} offen"])
    setexec(0xFFFFFFFF, 0xFFFFFFFF)
    TS(22)
    I("s_branch L_next")

    a.label("L_W2")
    I(f"s_cmp_eq_u32 s{sIT}, 0")
    I("s_cbranch_scc0 L_W21")
    role_base()
    tr_addr(T + 47, 32, sT0)
    I("s_waitcnt vmcnt(0)")
    for ks in range(7):
        b = vRB + 4 * ks
        I(f"ds_read_b64_tr_b16 v[{b}:{b+1}], v{T+47} offset:{ks*1024}")
        I(f"ds_read_b64_tr_b16 v[{b+2}:{b+3}], v{T+47} offset:{ks*1024+128}")
    srd(TB, 50, 1280)
    I("s_waitcnt lgkmcnt(0)")
    TS(15)
    a.label("L_W21")
    for i in range(4):
        I(f"v_mov_b32 v{vFD+i}, 0")
    I(f"s_cmp_eq_u32 s{sX}, 0")
    I("s_cbranch_scc0 L_W22")
    I(f"s_sub_u32 s{sT0}, s{sR}, 27")
    I(f"s_lshl_b32 s{sT0}, s{sT0}, 8")
    I(f"s_lshl_b32 s{sT1}, s{sWAVE}, 5")
    I(f"s_add_u32 s{sT0}, s{sT0}, s{sT1}")
    I(f"v_lshrrev_b32 v{T+4}, 4, v{vLANE}")
    I(f"v_lshlrev_b32 v{T+4}, 3, v{T+4}")
    I(f"buffer_load_dwordx2 v[{T+2}:{T+3}], v{T+4}, {TB}, s{sT0} offen")
    poll([f"buffer_load_dwordx2 v[{T}:{T+1}], v{vA3}, {WS}, s{sREG} offen sc1"], [T, T + 1])
    unpack(vFD, vFD + 1, T)
    unpack(vFD + 2, vFD + 3, T + 1)
    for m in ("quad_perm:[1,0,3,2]", "quad_perm:[2,3,0,1]", "row_half_mirror"):
        for i in range(4):
            I(f"v_add_f32_dpp v{vFD+i}, v{vFD+i}, v{vFD+i} {m} row_mask:0xf bank_mask:0xf")
    I(f"v_cvt_pk_bf16_f32 v{T}, v{vFD}, v{vFD+1}")
    I(f"v_cvt_pk_bf16_f32 v{T+1}, v{vFD+2}, v{vFD+3}")
    unpack(vFD, vFD + 1, T)
    unpack(vFD + 2, vFD + 3, T + 1)
    unpack(T + 4, T + 5, T + 2)
    unpack(T + 6, T + 7, T + 3)
    I(f"v_pk_add_f32 v[{vFD}:{vFD+1}], v[{vFD}:{vFD+1}], v[{T+4}:{T+5}]")
    I(f"v_pk_add_f32 v[{vFD+2}:{vFD+3}], v[{vFD+2}:{vFD+3}], v[{T+6}:{T+7}]")
    a.label("L_W22")
    setexec(0x00010001, 0x00010001)
    poll([f"buffer_load_dwordx4 {vr(T+4*ks)}, v{vA0}, {WS}, s{sREG} offen offset:{ks*128} sc1" for ks in range(6)]
         + [f"buffer_load_dwordx4 {vr(T+24)}, v{vA1}, {WS}, s{sREG} offen sc1"], list(range(T, T + 28)),
         ex=(0x00010001, 0x00010001), groups=[range(T + 4 * ks, T + 4 * ks + 4) for ks in range(7)])
    setexec(0xFFFFFFFF, 0xFFFFFFFF)
    TS(23)
    D2 = T + 28
    for ks in range(7):
        I(f"v_mfma_f32_16x16x32_bf16 {vr(D2)}, {vr(vRB+4*ks)}, {vr(T+4*ks)}, {vr(vFD) if ks == 0 else vr(D2)}")
    Y0 = T + 32
    if not y16:
        setexec(0x00010001, 0x00010001)
    I(f"v_cvt_pk_bf16_f32 v{Y0}, v{D2}, v{D2+1}")
    I(f"v_cvt_pk_bf16_f32 v{Y0+1}, v{D2+2}, v{D2+3}")
    I(f"v_min_u32 v{Y0}, 0xfffffffe, v{Y0}")
    I(f"v_min_u32 v{Y0+1}, 0xfffffffe, v{Y0+1}")
    if y16:
        I(f"v_permlane16_swap_b32 v{Y0}, v{Y0+2}")
        I(f"v_permlane16_swap_b32 v{Y0+1}, v{Y0+3}")
        setexec(1, 1)
        I(f"buffer_store_dwordx4 {vr(Y0)}, v{vA2}, {WS}, s{sREG} offen sc1")
    else:
        I(f"buffer_store_dwordx2 v[{Y0}:{Y0+1}], v{vA2}, {WS}, s{sREG} offen sc1")
    setexec(0xFFFFFFFF, 0xFFFFFFFF)
    TS(24)

    a.label("L_next")
    I(f"s_add_u32 s{sIT}, s{sIT}, 1")
    I(f"s_add_u32 s{sREG}, s{sREG}, {RS}")
    I(f"s_cmp_lt_u32 s{sIT}, 2")
    I("s_cbranch_scc1 L_loop")
    I(f"s_cmp_eq_u32 s2, {LEAD_R * 8}")
    I("s_cbranch_scc0 L_fin")
    I(f"s_cmp_lt_u32 s{sWAVE}, 5")
    I("s_cbranch_scc1 L_loop")
    a.label("L_fin")
    if instr:
        TS(30)
        I(f"s_lshl_b32 s{sT0}, s2, 3")
        I(f"s_add_u32 s{sT0}, s{sT0}, s{sWAVE}")
        I(f"s_lshl_b32 s{sT0}, s{sT0}, 9")
        I(f"s_add_u32 s{sT0}, s{sT0}, {DBGOFF}")
        I(f"v_lshlrev_b32 v{T}, 3, v{vLANE}")
        I(f"buffer_store_dwordx2 v[{vTSI}:{vTST}], v{T}, {WS}, s{sT0} offen")
    a.label("L_end")
    I("s_endpgm")
    a.raw('.section .rodata,"a"\n.p2align 6')
    a.raw(f".amdhsa_kernel {KNAME}")
    a.raw("  .amdhsa_next_free_vgpr 256\n  .amdhsa_next_free_sgpr 102\n  .amdhsa_accum_offset 256\n"
          "  .amdhsa_group_segment_fixed_size 0\n  .amdhsa_kernarg_size 104\n  .amdhsa_user_sgpr_count 2\n"
          "  .amdhsa_user_sgpr_kernarg_segment_ptr 1\n  .amdhsa_system_sgpr_workgroup_id_x 1")
    a.raw(".end_amdhsa_kernel")
    open(fn, "w").write(a.text())
    return a.ninstr


if __name__ == "__main__":
    import argparse
    p = argparse.ArgumentParser()
    p.add_argument("-o", default="k.s")
    p.add_argument("--instr", action="store_true")
    p.add_argument("--kv", default="nt")
    p.add_argument("--w", default="")
    p.add_argument("--zr", type=int, default=512)
    p.add_argument("--zx", type=int, default=64)
    p.add_argument("--y16", action="store_true")
    p.add_argument("--w67", type=int, default=0)
    p.add_argument("--w04", type=int, default=0)
    p.add_argument("--nomask", action="store_true")
    p.add_argument("--ts", default=None)
    args = p.parse_args()
    ts = None if args.ts is None else set(int(x) for x in args.ts.split(","))
    n = gen(args.o, instr=args.instr, kvflags=args.kv, wflags=args.w, ZR=args.zr, ZX=args.zx, y16=args.y16,
            W67=args.w67, W04=args.w04, masked=not args.nomask, tsset=ts)
    print("instrs:", n)
```

```python
import sys, struct, math
from asmlib import Asm

KNAME = "interleave_layers__gqa_block_cached__mixer_channel_mlp__decode_kernel"

RS = 0x40000
QOFF, MLOFF, POFF, XOFF, ZOFF, HOFF, YOFF = 0x0, 0x4000, 0x8000, 0x18000, 0x20000, 0x28000, 0x30000
DBGOFF = 0x100000
WS_SIZE = 0x200000
BIG = 0x40000000
PP = 544
L_PB1, L_PB2, L_CS1, L_CS2, L_QB, L_ML, L_FLAG, L_DUM, L_O, L_WQ, L_ROLE = (
    0, 2816, 7168, 7808, 8448, 8704, 8768, 8832, 10240, 18432, 38912)
LDS_TOTAL = 104448
LEAD_R = 0

def f2u(x):
    return struct.unpack("<I", struct.pack("<f", x))[0]

L2E = f2u(1.4426950408889634)
SCALE = f2u(128 ** -0.5)
GC1 = -2.0 * 1.4426950408889634 * math.sqrt(2.0 / math.pi)
GC2 = GC1 * 0.044715

sWAVE, sX, sR, sIT, sREG = 3, 4, 5, 6, 7
K_SRD, V_SRD, WS, TA, TB, OUTS = "s[8:11]", "s[12:15]", "s[16:19]", "s[20:23]", "s[24:27]", "s[28:31]"
sROLE, sPURE, sSPIN = 58, 59, 60
sT0, sT1, sT2, sT3, sSLOT = 61, 62, 63, 72, 73
sF = 64
sXCC, sTB, sNT, sTSI = 74, 75, 76, 77
sL2E, sM = 80, 81
sRB, sRSTEP, sRN = 82, 83, 84
sKV = 85
vLANE = 0
vGO, vXO, vPW, vSW, vQR, vOW, vMLW = 1, 2, 7, 8, 9, 10, 11
vA0, vA1, vA2, vA3 = 12, 13, 14, 15
vRDMA = 17
vTSI, vTST = 18, 19
vSEL = 20
vBQ = 28
vRB = 44
vFD = 72
T = 76
vK, vV = 128, 192
vRR, vQP, vQG, vCSQ, vCS1, vB1, vRP = 1, 2, 3, 4, 5, 6, 8
vXF = 28
vXFA = 16
vCR, vCML, vCP, vCPM = 1, 2, 3, 4


def vr(a, n=4):
    return f"v[{a}:{a+n-1}]"


def gen(fn, instr=False, kvflags="nt", wflags="", spin_limit=400000, tsset=None,
        ZR=512, ZX=64, y16=False, W67=0, W04=0, masked=True, dbgt=False):
    a = Asm()
    I = a.I
    a.raw(f"; @launch grid=(256,1,1) block=(512,1,1) lds={LDS_TOTAL}")
    a.raw('.amdgcn_target "amdgcn-amd-amdhsa--gfx950"')
    a.raw(".text")
    a.raw(f".globl {KNAME}\n.p2align 8\n.type {KNAME},@function\n{KNAME}:")

    def TS(k):
        if not instr or (tsset is not None and k not in tsset and k not in (0, 30)):
            return
        I("s_memrealtime s[78:79]")
        I("s_waitcnt lgkmcnt(0)")
        I(f"v_writelane_b32 v{vTSI}, {k}, s{sTSI}")
        I(f"s_mov_b32 m0, s{sTSI}")
        I(f"v_writelane_b32 v{vTST}, s78, m0")
        I(f"s_add_u32 s{sTSI}, s{sTSI}, 1")

    def srd(dst, ptr, size):
        d = int(dst[2:].split(":")[0])
        I(f"s_mov_b32 s{d}, s{ptr}")
        I(f"s_mov_b32 s{d+1}, s{ptr+1}")
        I(f"s_mov_b32 s{d+2}, {size:#x}")
        I(f"s_mov_b32 s{d+3}, 0x20000")

    def setexec(lo, hi):
        if lo == 0xFFFFFFFF and hi == 0xFFFFFFFF:
            I("s_mov_b64 exec, -1")
        else:
            I(f"s_mov_b32 exec_lo, {lo:#x}")
            I(f"s_mov_b32 exec_hi, {hi:#x}")

    def maxtree(tmp, rs):
        rs = list(rs)
        if len(rs) == 1:
            return rs[0]
        cur = None
        while rs:
            if cur is None:
                if len(rs) >= 3:
                    I(f"v_max3_u32 v{tmp}, v{rs[0]}, v{rs[1]}, v{rs[2]}"); rs = rs[3:]
                else:
                    I(f"v_max_u32 v{tmp}, v{rs[0]}, v{rs[1]}"); rs = rs[2:]
                cur = tmp
            elif len(rs) >= 2:
                I(f"v_max3_u32 v{tmp}, v{tmp}, v{rs[0]}, v{rs[1]}"); rs = rs[2:]
            else:
                I(f"v_max_u32 v{tmp}, v{tmp}, v{rs[0]}"); rs = rs[1:]
        return cur

    def poll(loads, regs, ex=(0xFFFFFFFF, 0xFFFFFFFF), groups=None):
        lab = a.newlab("Lp"); done = a.newlab("Lpd")
        tmp = T + 50
        if not masked:
            a.label(lab)
        for l in loads:
            I(l)
        if masked:
            a.label(lab)
        I(f"s_add_u32 s{sSPIN}, s{sSPIN}, 1")
        I("s_waitcnt vmcnt(0)")
        cur = maxtree(tmp, regs)
        I(f"v_cmp_eq_u32 vcc, -1, v{cur}")
        I(f"s_cbranch_vccz {done}")
        if masked:
            if groups is None or len(loads) == 1:
                I("s_mov_b64 exec, vcc")
                for l in loads:
                    I(l)
            else:
                for j, gr in enumerate(groups):
                    cur = maxtree(tmp + 1 - (j & 1), gr)
                    I(f"v_cmp_eq_u32 s[{86+2*j}:{87+2*j}], -1, v{cur}")
                for j, l in enumerate(loads):
                    I(f"s_mov_b64 exec, s[{86+2*j}:{87+2*j}]")
                    I(l)
            setexec(*ex)
        I(f"s_cmp_lt_u32 s{sSPIN}, {spin_limit}")
        I(f"s_cbranch_scc1 {lab}")
        if masked:
            I("s_waitcnt vmcnt(0)")
        a.label(done)

    def lstore(ins):
        l1 = a.newlab("Ls"); l2 = a.newlab("Lsd")
        I(f"s_cmp_eq_u32 s{sPURE}, 0")
        I(f"s_cbranch_scc1 {l1}")
        for x in ins: I(x)
        I(f"s_branch {l2}")
        a.label(l1)
        for x in ins: I(x + " sc1")
        a.label(l2)

    def unpack(lo, hi, src):
        I(f"v_lshlrev_b32 v{lo}, 16, v{src}")
        I(f"v_and_b32 v{hi}, 0xffff0000, v{src}")

    XA = T + 32
    ONES = T + 28

    I("s_cmp_ge_u32 s2, 256")
    I("s_cbranch_scc1 L_end")
    if dbgt:
        I("s_memrealtime s[78:79]")
    I("s_load_dwordx16 s[32:47], s[0:1], 0")
    I("s_load_dwordx8 s[48:55], s[0:1], 64")
    I("s_load_dwordx2 s[56:57], s[0:1], 96")
    I("v_lshrrev_b32 v1, 6, v0")
    I(f"v_and_b32 v{vLANE}, 63, v0")
    I(f"v_readfirstlane_b32 s{sWAVE}, v1")
    I(f"s_and_b32 s{sX}, s2, 7")
    I(f"s_lshr_b32 s{sR}, s2, 3")
    I(f"s_mov_b32 s{sIT}, 0")
    I(f"s_mov_b32 s{sREG}, 0")
    I(f"s_mov_b32 s{sSPIN}, 0")
    I(f"s_mov_b32 s{sPURE}, 0")
    I(f"s_mov_b32 s{sTSI}, 0")
    I(f"s_mov_b32 s{sL2E}, {L2E:#x}")
    I(f"s_getreg_b32 s{sXCC}, hwreg(HW_REG_XCC_ID)")
    I(f"s_and_b32 s{sXCC}, s{sXCC}, 15")
    I(f"s_mul_i32 s{sTB}, s{sX}, 7")
    I(f"s_cmp_eq_u32 s{sX}, 7")
    I(f"s_cselect_b32 s{sT0}, 1, 0")
    I(f"s_sub_u32 s{sTB}, s{sTB}, s{sT0}")
    I(f"s_cmp_lt_u32 s{sX}, 6")
    I(f"s_cselect_b32 s{sNT}, 7, 6")
    I(f"s_mov_b32 s{sROLE}, 2")
    I(f"s_cmp_lt_u32 s{sR}, 27")
    I(f"s_cselect_b32 s{sROLE}, 3, s{sROLE}")
    I(f"s_add_u32 s{sT0}, s{sNT}, 20")
    I(f"s_cmp_lt_u32 s{sR}, s{sT0}")
    I(f"s_cselect_b32 s{sROLE}, 1, s{sROLE}")
    I(f"s_cmp_lt_u32 s{sR}, 20")
    I(f"s_cselect_b32 s{sROLE}, 0, s{sROLE}")
    g, n, q4, c4, t0, t1, t2, t3 = T, T+1, T+2, T+3, T+4, T+5, T+6, T+7
    I(f"v_lshrrev_b32 v{g}, 4, v{vLANE}")
    I(f"v_and_b32 v{n}, 15, v{vLANE}")
    I(f"v_bfe_u32 v{q4}, v{vLANE}, 2, 2")
    I(f"v_and_b32 v{c4}, 3, v{vLANE}")
    for i in range(1, 18):
        I(f"v_mov_b32 v{i}, {BIG:#x}")
    if instr:
        I(f"v_mov_b32 v{vTSI}, -1")
        I(f"v_mov_b32 v{vTST}, 0")
    I(f"s_lshl_b32 s{sSLOT}, s{sX}, 5")
    I(f"s_add_u32 s{sSLOT}, s{sSLOT}, s{sR}")
    I(f"s_lshl_b32 s{sKV}, s{sSLOT}, 17")
    I(f"s_lshl_b32 s{sT0}, s{sWAVE}, 14")
    I(f"s_add_u32 s{sKV}, s{sKV}, s{sT0}")
    I("s_waitcnt lgkmcnt(0)")
    srd(K_SRD, 34, 32 << 20)
    srd(V_SRD, 36, 32 << 20)
    srd(WS, 56, WS_SIZE)
    srd(OUTS, 52, 1280)
    TS(0)

    def k_addr(k0, k1, k2):
        I(f"v_bfe_u32 v{k0}, v{vLANE}, 2, 2")
        I(f"v_lshlrev_b32 v{k0}, 8, v{k0}")
        I(f"v_lshrrev_b32 v{k1}, 4, v{vLANE}")
        I(f"v_lshl_add_u32 v{k0}, v{k1}, 6, v{k0}")
        I(f"v_and_b32 v{k2}, 3, v{vLANE}")
        I(f"v_lshl_add_u32 v{k0}, v{k2}, 4, v{k0}")

    def kv_issue(W=0):
        k0, k1, k2, k3 = T + 40, T + 41, T + 42, T + 43
        k_addr(k0, k1, k2)
        I(f"v_bfe_u32 v{k3}, v{vLANE}, 3, 1")
        I(f"v_lshl_add_u32 v{k3}, v{k3}, 3, v{k1}")
        I(f"v_lshlrev_b32 v{k3}, 8, v{k3}")
        I(f"v_and_b32 v{k2}, 7, v{vLANE}")
        I(f"v_lshl_add_u32 v{k3}, v{k2}, 4, v{k3}")
        for i in range(32):
            if i % 4 == 0:
                I(f"s_add_u32 s{sT0}, s{sKV}, {((i%16)//4)*4096}")
            if W and i >= W:
                I(f"s_waitcnt vmcnt({W-1})")
            if i < 16:
                I(f"buffer_load_dwordx4 {vr(vK+4*i)}, v{k0}, {K_SRD}, s{sT0} offen offset:{(i%4)*1024} {kvflags}")
            else:
                j = i - 16
                u, hf = (j >> 1) & 1, j & 1
                I(f"buffer_load_dwordx4 {vr(vV+4*j)}, v{k3}, {V_SRD}, s{sT0} offen offset:{u*1024+hf*128} {kvflags}")

    def role_dma():
        I(f"s_lshl_b32 s{sT1}, s{sWAVE}, 13")
        I(f"s_add_u32 s{sT1}, s{sT1}, {L_ROLE}")
        I(f"s_mov_b32 s{sT0}, s{sRB}")
        for e in range(8):
            if e % 4 == 0:
                I(f"s_mov_b32 m0, s{sT1}")
                if e == 0:
                    I(f"s_add_u32 s{sT1}, s{sT1}, 4096")
            I(f"s_cmp_gt_u32 s{sRN}, {e}")
            I(f"s_cselect_b32 s{sT2}, s{sT0}, {BIG:#x}")
            I(f"buffer_load_dwordx4 v{vRDMA}, {TB}, s{sT2} offen offset:{(e%4)*1024} lds {wflags}")
            if e < 7:
                I(f"s_add_u32 s{sT0}, s{sT0}, s{sRSTEP}")
                if e % 4 == 3:
                    I(f"s_add_u32 s{sT0}, s{sT0}, 3072")
                else:
                    I(f"s_sub_u32 s{sT0}, s{sT0}, 1024")

    I(f"s_cmp_ge_u32 s{sWAVE}, 5")
    I("s_cbranch_scc1 L_init567")
    srd(TA, 38, 640 * 8192)
    I(f"v_lshrrev_b32 v{t2}, 1, v{vLANE}")
    I(f"v_lshlrev_b32 v{t2}, 13, v{t2}")
    I(f"v_and_b32 v{t3}, 1, v{vLANE}")
    I(f"v_lshl_add_u32 v{t2}, v{t3}, 4, v{t2}")
    I(f"s_lshl_b32 s{sT0}, s{sWAVE}, 20")
    I(f"s_lshl_b32 s{sT1}, s{sSLOT}, 5")
    I(f"s_add_u32 s{sT0}, s{sT0}, s{sT1}")
    I(f"s_lshl_b32 s{sT1}, s{sWAVE}, 12")
    I(f"s_add_u32 s{sT1}, s{sT1}, {L_WQ}")
    I(f"s_mov_b32 m0, s{sT1}")
    for e in range(4):
        I(f"buffer_load_dwordx4 v{t2}, {TA}, s{sT0} offen offset:{e*1024} lds {wflags}")
        if e < 3:
            I(f"s_add_u32 s{sT0}, s{sT0}, {32*8192 - 1024}")
    srd(TB, 32, 1280)
    I(f"v_lshlrev_b32 v{vXO}, 6, v{q4}")
    I(f"v_lshl_add_u32 v{vXO}, v{g}, 4, v{vXO}")
    I(f"s_lshl_b32 s{sT0}, s{sWAVE}, 8")
    I(f"v_add_u32 v{vXO}, s{sT0}, v{vXO}")
    I(f"buffer_load_dwordx4 {vr(XA)}, v{vXO}, {TB}, 0 offen")
    I(f"v_bfe_u32 v{t0}, v{vLANE}, 3, 1")
    I(f"v_and_b32 v{t1}, 7, v{vLANE}")
    I(f"s_mul_i32 s{sT0}, s{sWAVE}, {4*ZR}")
    I(f"v_mul_u32_u24 v{vGO}, {ZR}, v{t0}")
    I(f"v_mul_u32_u24 v{t1}, {ZX}, v{t1}")
    I(f"v_add3_u32 v{vGO}, v{vGO}, v{t1}, s{sT0}")
    I(f"v_lshl_add_u32 v{vGO}, v{g}, 4, v{vGO}")
    I(f"s_mul_i32 s{sT0}, s{sWAVE}, {PP}")
    I(f"s_add_u32 s{sT0}, s{sT0}, {L_PB1 + 512}")
    I(f"v_lshlrev_b32 v{t2}, 2, v{g}")
    I(f"v_add_u32 v{t2}, s{sT0}, v{t2}")
    I(f"v_lshlrev_b32 v{t3}, 2, v{vLANE}")
    I(f"v_add_u32 v{t3}, {L_DUM}, v{t3}")
    I(f"v_cmp_eq_u32 vcc, v{q4}, v{g}")
    I(f"v_cndmask_b32 v{vSW}, v{t3}, v{t2}, vcc")
    I("s_branch L_initc")

    a.label("L_init567")
    I(f"s_cmp_eq_u32 s{sWAVE}, 6")
    I("s_cbranch_scc1 L_initc")
    I(f"s_cmp_eq_u32 s{sWAVE}, 7")
    I("s_cbranch_scc1 L_init7")
    I(f"s_mul_i32 s{sT0}, s{sR}, {ZR}")
    I(f"s_mul_i32 s{sT1}, s{sX}, {ZX}")
    I(f"s_add_u32 s{sT0}, s{sT0}, s{sT1}")
    I(f"s_add_u32 s{sRB}, s{sT0}, {ZOFF}")
    I(f"s_mov_b32 s{sRN}, 4")
    I(f"s_lshl_b32 s{sT0}, s{sX}, 3")
    I(f"s_add_u32 s{sT0}, s{sT0}, s{sR}")
    I(f"s_sub_u32 s{sT0}, s{sT0}, 20")
    I(f"s_lshl_b32 s{sT0}, s{sT0}, 7")
    I(f"s_add_u32 s{sT0}, s{sT0}, {HOFF}")
    I(f"s_cmp_eq_u32 s{sROLE}, 1")
    I(f"s_cselect_b32 s{sRB}, s{sT0}, s{sRB}")
    I(f"s_sub_u32 s{sT0}, s{sR}, 27")
    I(f"s_mul_i32 s{sT0}, s{sT0}, {4*ZR}")
    I(f"s_add_u32 s{sT0}, s{sT0}, s{sT1}")
    I(f"s_add_u32 s{sT0}, s{sT0}, {YOFF}")
    I(f"s_cmp_eq_u32 s{sROLE}, 2")
    I(f"s_cselect_b32 s{sRB}, s{sT0}, s{sRB}")
    I(f"s_cselect_b32 s{sRN}, 16, s{sRN}")
    I(f"s_cmp_eq_u32 s{sROLE}, 3")
    I(f"s_cselect_b32 s{sRN}, 0, s{sRN}")
    I(f"v_subrev_u32 v{t0}, 24, v{vLANE}")
    I(f"v_lshrrev_b32 v{t1}, 2, v{t0}")
    I(f"v_and_b32 v{t1}, 7, v{t1}")
    I(f"v_mul_u32_u24 v{t1}, {ZR}, v{t1}")
    I(f"v_lshl_add_u32 v{t1}, v{c4}, 4, v{t1}")
    I(f"v_add_u32 v{t1}, s{sRB}, v{t1}")
    I(f"v_mov_b32 v{t2}, {BIG:#x}")
    I(f"v_cmp_gt_u32 vcc, s{sRN}, v{t0}")
    I(f"v_cndmask_b32 v{t1}, v{t2}, v{t1}, vcc")
    I(f"v_lshlrev_b32 v{t0}, 4, v{vLANE}")
    I(f"s_lshl_b32 s{sT0}, s{sSLOT}, 8")
    I(f"s_add_u32 s{sT0}, s{sT0}, {POFF - 128}")
    I(f"v_add_u32 v{t3}, s{sT0}, v{t0}")
    I(f"v_cmp_gt_u32 vcc, 24, v{vLANE}")
    I(f"v_cndmask_b32 v{t1}, v{t1}, v{t3}, vcc")
    I(f"v_cmp_gt_u32 vcc, 8, v{vLANE}")
    I(f"v_cndmask_b32 v{t1}, v{t1}, v{t2}, vcc")
    I(f"s_lshl_b32 s{sT0}, s{sSLOT}, 5")
    I(f"v_add_u32 v{t3}, s{sT0}, v{t0}")
    I(f"v_cmp_gt_u32 vcc, 2, v{vLANE}")
    I(f"v_cndmask_b32 v{t1}, v{t1}, v{t3}, vcc")
    I(f"s_lshr_b32 s{sT0}, s{sSLOT}, 3")
    I(f"s_lshl_b32 s{sT0}, s{sT0}, 7")
    I(f"s_and_b32 s{sT2}, s{sSLOT}, 7")
    I(f"s_lshl_b32 s{sT2}, s{sT2}, 3")
    I(f"s_add_u32 s{sT0}, s{sT0}, s{sT2}")
    I(f"s_add_u32 s{sT0}, s{sT0}, {MLOFF}")
    I(f"v_mul_u32_u24 v{t3}, {RS}, v{vLANE}")
    I(f"v_add_u32 v{t3}, s{sT0}, v{t3}")
    I(f"v_cndmask_b32 v{t3}, v{t2}, v{t3}, vcc")
    cl = T + 8
    for i in range(4):
        I(f"v_mov_b32 v{cl+i}, -1")
    I(f"s_mov_b32 s{sT1}, {RS}")
    I(f"buffer_store_dwordx4 {vr(cl)}, v{t1}, {WS}, 0 offen sc1")
    I(f"buffer_store_dwordx4 {vr(cl)}, v{t1}, {WS}, s{sT1} offen sc1")
    I(f"buffer_store_dwordx2 v[{cl}:{cl+1}], v{t3}, {WS}, 0 offen sc1")
    I(f"s_lshl_b32 s{sT0}, s{sX}, 11")
    I(f"s_add_u32 s{sT0}, s{sT0}, {XOFF}")
    I(f"s_cmp_eq_u32 s{sR}, {LEAD_R}")
    I(f"s_cselect_b32 s{sT0}, s{sT0}, {BIG:#x}")
    I(f"buffer_store_dwordx4 {vr(cl)}, v{t0}, {WS}, s{sT0} offen sc1")
    I(f"buffer_store_dwordx4 {vr(cl)}, v{t0}, {WS}, s{sT0} offen offset:1024 sc1")
    I(f"v_lshlrev_b32 v{vRR}, 4, v{vLANE}")
    I(f"v_lshrrev_b32 v{t0}, 1, v{vLANE}")
    I(f"s_lshl_b32 s{sT0}, s{sSLOT}, 5")
    I(f"v_lshlrev_b32 v{vQP}, 2, v{t0}")
    I(f"v_add_u32 v{vQP}, s{sT0}, v{vQP}")
    I(f"s_and_b32 s{sT0}, s{sT0}, {~255 & 0xffffffff:#x}")
    I(f"v_add_u32 v{vQG}, s{sT0}, v{vRR}")
    I(f"v_lshrrev_b32 v{t1}, 3, v{vLANE}")
    I(f"v_lshlrev_b32 v{t1}, 4, v{t1}")
    I(f"v_lshlrev_b32 v{t2}, 2, v{t0}")
    I(f"s_cmp_eq_u32 s{sROLE}, 1")
    I(f"s_cselect_b64 vcc, -1, 0")
    I(f"v_cndmask_b32 v{t1}, v{t1}, v{t2}, vcc")
    I(f"v_add_u32 v{vRP}, s{sRB}, v{t1}")
    I(f"v_and_b32 v{t1}, 31, v{vLANE}")
    I(f"v_lshlrev_b32 v{t1}, 1, v{t1}")
    srd(TA, 46, 1728 * 2)
    srd(TB, 32, 1280)
    I(f"s_add_u32 s{sT0}, s{sTB}, s{sR}")
    I(f"s_sub_u32 s{sT0}, s{sT0}, 20")
    I(f"s_lshl_b32 s{sT0}, s{sT0}, 6")
    I(f"s_cmp_eq_u32 s{sROLE}, 1")
    I(f"s_cselect_b32 s{sT0}, s{sT0}, {BIG:#x}")
    I(f"s_or_b32 s{sT2}, s{sROLE}, s{sX}")
    I(f"s_lshl_b32 s{sT1}, s{sR}, 6")
    I(f"s_cmp_eq_u32 s{sT2}, 0")
    I(f"s_cselect_b32 s{sT1}, s{sT1}, {BIG:#x}")
    I(f"buffer_load_ushort v{vB1}, v{t1}, {TA}, s{sT0} offen")
    I(f"buffer_load_ushort v{vXF}, v{t1}, {TB}, s{sT1} offen")
    I(f"s_lshl_b32 s{sT1}, s{sR}, 6")
    I(f"s_add_u32 s{sT1}, s{sT1}, {XOFF}")
    I(f"s_cmp_eq_u32 s{sT2}, 0")
    I(f"s_cselect_b32 s{sT1}, s{sT1}, {BIG:#x}")
    I(f"v_add_u32 v{vXFA}, s{sT1}, v{t1}")
    I(f"s_mul_i32 s{sT0}, s{sXCC}, 6")
    I(f"s_lshl_b64 s[{sF}:{sF+1}], 1, s{sT0}")
    I(f"s_cmp_lt_u32 s{sXCC}, 8")
    I(f"s_cselect_b32 s{sF}, s{sF}, 0")
    I(f"s_cselect_b32 s{sF+1}, s{sF+1}, 0")
    I(f"s_or_b32 s{sF+1}, s{sF+1}, 0x10000")
    srd(TA, 54, 256)
    I(f"v_mov_b32 v{t2}, s{sF}")
    I(f"v_mov_b32 v{t3}, s{sF+1}")
    I(f"s_lshl_b32 s{sT1}, s{sX}, 4")
    I(f"v_mov_b32 v{t0}, s{sT1}")
    I("s_waitcnt vmcnt(0)")
    TS(31)
    setexec(1, 0)
    I(f"buffer_atomic_add_x2 v[{t2}:{t3}], v{t0}, {TA}, 0 offen sc0 sc1")
    I("s_waitcnt vmcnt(0)")
    I(f"v_readfirstlane_b32 s{sF+2}, v{t2}")
    I(f"v_readfirstlane_b32 s{sF+3}, v{t3}")
    I(f"s_lshr_b32 s{sT1}, s{sF+3}, 16")
    I(f"s_cmp_eq_u32 s{sT1}, 31")
    I("s_cbranch_scc0 L_notlast")
    I(f"s_lshr_b64 s[{sF+2}:{sF+3}], s[{sF+2}:{sF+3}], s{sT0}")
    I(f"s_and_b32 s{sF+2}, s{sF+2}, 63")
    I(f"s_cmp_eq_u32 s{sF+2}, 31")
    I(f"s_cselect_b32 s{sT1}, 1, 0")
    I(f"s_cmp_lt_u32 s{sXCC}, 8")
    I(f"s_cselect_b32 s{sT1}, s{sT1}, 0")
    I(f"s_lshl_b32 s{sT1}, s{sT1}, s{sX}")
    I(f"s_or_b32 s{sT1}, s{sT1}, 0x100")
    I(f"v_mov_b32 v{t2}, s{sT1}")
    I(f"v_mov_b32 v{t0}, 128")
    I(f"buffer_atomic_add v{t2}, v{t0}, {TA}, 0 offen sc1")
    a.label("L_notlast")
    setexec(0xFFFFFFFF, 0xFFFFFFFF)
    I(f"v_lshlrev_b32 v{vB1}, 16, v{vB1}")
    I(f"v_lshlrev_b32 v{vXF}, 16, v{vXF}")
    I("s_branch L_initc")

    a.label("L_init7")
    I(f"v_lshlrev_b32 v{vCR}, 3, v{vLANE}")
    I(f"v_add_u32 v{vCR}, {L_O}, v{vCR}")
    I(f"v_and_b32 v{t0}, 7, v{vLANE}")
    I(f"v_lshlrev_b32 v{vCML}, 3, v{t0}")
    I(f"v_add_u32 v{vCML}, {L_ML}, v{vCML}")
    I(f"s_lshl_b32 s{sT0}, s{sSLOT}, 8")
    I(f"s_add_u32 s{sT0}, s{sT0}, {POFF}")
    I(f"v_lshlrev_b32 v{vCP}, 2, v{vLANE}")
    I(f"v_add_u32 v{vCP}, s{sT0}, v{vCP}")
    I(f"s_lshr_b32 s{sT0}, s{sSLOT}, 3")
    I(f"s_lshl_b32 s{sT0}, s{sT0}, 7")
    I(f"s_and_b32 s{sT2}, s{sSLOT}, 7")
    I(f"s_lshl_b32 s{sT2}, s{sT2}, 3")
    I(f"s_add_u32 s{sT0}, s{sT0}, s{sT2}")
    I(f"s_add_u32 s{sT0}, s{sT0}, {MLOFF}")
    I(f"v_mov_b32 v{vCPM}, s{sT0}")

    a.label("L_initc")
    I(f"s_cmp_lt_u32 s{sWAVE}, 6")
    I("s_cbranch_scc1 L_kvskip")
    kv_issue(W67)
    a.label("L_kvskip")
    TS(1)
    I(f"s_mov_b32 s{sRN}, 0")
    I(f"s_mov_b32 s{sRB}, 0")
    I(f"s_mov_b32 s{sRSTEP}, 0")
    srd(TB, 40, 4096 * 1280)
    I(f"v_lshrrev_b32 v{t0}, 2, v{vLANE}")
    I(f"v_lshlrev_b32 v{t1}, 4, v{c4}")
    I(f"s_cmp_eq_u32 s{sROLE}, 0")
    I("s_cbranch_scc0 L_rp1")
    I(f"s_lshl_b32 s{sT0}, s{sX}, 3")
    I(f"s_add_u32 s{sT0}, s{sT0}, s{sWAVE}")
    I(f"s_mul_i32 s{sT0}, s{sT0}, {64*1280}")
    I(f"s_lshl_b32 s{sT1}, s{sR}, 6")
    I(f"s_add_u32 s{sRB}, s{sT0}, s{sT1}")
    I(f"s_mov_b32 s{sRSTEP}, {16*1280}")
    I(f"s_mov_b32 s{sRN}, 4")
    I(f"v_mul_u32_u24 v{vRDMA}, 1280, v{t0}")
    I(f"v_add_u32 v{vRDMA}, v{vRDMA}, v{t1}")
    I(f"s_lshr_b32 s{sT0}, s{sWAVE}, 1")
    I(f"s_lshl_b32 s{sT1}, s{sX}, 2")
    I(f"s_add_u32 s{sT0}, s{sT0}, s{sT1}")
    I(f"s_lshl_b32 s{sT1}, s{sT0}, 11")
    I(f"s_and_b32 s{sT2}, s{sWAVE}, 1")
    I(f"s_lshl_b32 s{sT2}, s{sT2}, 7")
    I(f"s_add_u32 s{sT1}, s{sT1}, s{sT2}")
    I(f"s_add_u32 s{sT1}, s{sT1}, {POFF}")
    I(f"v_and_b32 v{t2}, 7, v{vLANE}")
    I(f"v_lshlrev_b32 v{t2}, 8, v{t2}")
    I(f"v_lshl_add_u32 v{t2}, v{g}, 4, v{t2}")
    I(f"v_bfe_u32 v{t3}, v{vLANE}, 3, 1")
    I(f"v_lshl_add_u32 v{t2}, v{t3}, 6, v{t2}")
    I(f"v_add_u32 v{vA0}, s{sT1}, v{t2}")
    I(f"v_xor_b32 v{t2}, v{g}, v{q4}")
    I(f"v_and_b32 v{t2}, 1, v{t2}")
    I(f"v_lshl_add_u32 v{t2}, v{t2}, 2, v{c4}")
    I(f"v_lshlrev_b32 v{t2}, 3, v{t2}")
    I(f"s_lshl_b32 s{sT0}, s{sT0}, 7")
    I(f"s_add_u32 s{sT0}, s{sT0}, {MLOFF}")
    I(f"v_add_u32 v{vA2}, s{sT0}, v{t2}")
    I("s_branch L_rpd")
    a.label("L_rp1")
    I(f"s_cmp_eq_u32 s{sROLE}, 1")
    I("s_cbranch_scc0 L_rp2")
    srd(TB, 44, 640 * 3456)
    I(f"s_mul_i32 s{sT0}, s{sWAVE}, {128*3456}")
    I(f"s_add_u32 s{sT1}, s{sTB}, s{sR}")
    I(f"s_sub_u32 s{sT1}, s{sT1}, 20")
    I(f"s_lshl_b32 s{sT1}, s{sT1}, 6")
    I(f"s_add_u32 s{sRB}, s{sT0}, s{sT1}")
    I(f"s_mov_b32 s{sRSTEP}, {16*3456}")
    I(f"s_cmp_lt_u32 s{sWAVE}, 5")
    I(f"s_cselect_b32 s{sRN}, 8, 0")
    I(f"v_mul_u32_u24 v{vRDMA}, 3456, v{t0}")
    I(f"v_add_u32 v{vRDMA}, v{vRDMA}, v{t1}")
    I("s_branch L_rpd")
    a.label("L_rp2")
    I(f"v_mov_b32 v{vRDMA}, 0")
    I(f"s_cmp_eq_u32 s{sROLE}, 2")
    I("s_cbranch_scc0 L_rpd")
    srd(TB, 48, 1728 * 1280)
    I(f"s_mul_i32 s{sT0}, s{sTB}, {32*1280}")
    I(f"s_sub_u32 s{sT2}, s{sR}, 27")
    I(f"s_lshl_b32 s{sT1}, s{sT2}, 8")
    I(f"s_add_u32 s{sT0}, s{sT0}, s{sT1}")
    I(f"s_lshl_b32 s{sT1}, s{sWAVE}, 5")
    I(f"s_add_u32 s{sRB}, s{sT0}, s{sT1}")
    I(f"s_mov_b32 s{sRSTEP}, {32*1280}")
    I(f"s_mov_b32 s{sRN}, 7")
    I(f"v_lshrrev_b32 v{t0}, 1, v{vLANE}")
    I(f"v_mul_u32_u24 v{vRDMA}, 1280, v{t0}")
    I(f"v_and_b32 v{t1}, 1, v{vLANE}")
    I(f"v_lshl_add_u32 v{vRDMA}, v{t1}, 4, v{vRDMA}")
    I(f"s_lshl_b32 s{sT0}, s{sX}, 10")
    I(f"s_add_u32 s{sT0}, s{sT0}, {HOFF}")
    I(f"v_lshlrev_b32 v{t0}, 4, v{g}")
    I(f"v_add_u32 v{vA0}, s{sT0}, v{t0}")
    I(f"s_mov_b32 s{sT1}, 768")
    I(f"s_cmp_eq_u32 s{sNT}, 7")
    I(f"s_cselect_b32 s{sT1}, s{sT1}, {BIG:#x}")
    I(f"v_add_u32 v{vA1}, s{sT1}, v{vA0}")
    I(f"s_lshl_b32 s{sT0}, s{sT2}, 2")
    I(f"s_lshr_b32 s{sT1}, s{sWAVE}, 1")
    I(f"s_add_u32 s{sT0}, s{sT0}, s{sT1}")
    I(f"s_mul_i32 s{sT0}, s{sT0}, {ZR}")
    I(f"s_and_b32 s{sT1}, s{sWAVE}, 1")
    I(f"s_lshl_b32 s{sT1}, s{sT1}, 5")
    I(f"s_add_u32 s{sT0}, s{sT0}, s{sT1}")
    I(f"v_lshlrev_b32 v{t0}, 3, v{g}")
    I(f"v_add_u32 v{t0}, s{sT0}, v{t0}")
    I(f"s_mul_i32 s{sT1}, s{sX}, {ZX}")
    I(f"s_add_u32 s{sT1}, s{sT1}, {YOFF}")
    I(f"v_add_u32 v{vA2}, s{sT1}, v{t0}")
    I(f"v_mul_u32_u24 v{t1}, {ZX}, v{n}")
    I(f"v_add_u32 v{t1}, v{t1}, v{t0}")
    I(f"v_add_u32 v{t1}, {ZOFF}, v{t1}")
    I(f"s_cmp_eq_u32 s{sX}, 0")
    I(f"s_cselect_b32 s{sT0}, 8, 0")
    I(f"v_mov_b32 v{t2}, {BIG:#x}")
    I(f"v_cmp_gt_u32 vcc, s{sT0}, v{n}")
    I(f"v_cndmask_b32 v{vA3}, v{t2}, v{t1}, vcc")
    a.label("L_rpd")

    I(f"s_mul_i32 s{sT0}, s{sWAVE}, {PP}")
    I(f"v_lshlrev_b32 v{vPW}, 4, v{n}")
    I(f"v_lshl_add_u32 v{vPW}, v{g}, 2, v{vPW}")
    I(f"v_add_u32 v{vPW}, s{sT0}, v{vPW}")
    I(f"v_lshl_add_u32 v{vQR}, v{g}, 2, v{c4}")
    I(f"v_lshlrev_b32 v{vQR}, 4, v{vQR}")
    I(f"v_add_u32 v{vQR}, {L_QB}, v{vQR}")
    I(f"s_lshl_b32 s{sT0}, s{sWAVE}, 10")
    I(f"s_add_u32 s{sT0}, s{sT0}, {L_O}")
    I(f"v_bfe_u32 v{t0}, v{vLANE}, 3, 1")
    I(f"v_lshlrev_b32 v{vOW}, 9, v{t0}")
    I(f"v_and_b32 v{t0}, 7, v{vLANE}")
    I(f"v_lshl_add_u32 v{vOW}, v{t0}, 5, v{vOW}")
    I(f"v_and_b32 v{t1}, 1, v{g}")
    I(f"v_lshl_add_u32 v{vOW}, v{t1}, 4, v{vOW}")
    I(f"v_add_u32 v{vOW}, s{sT0}, v{vOW}")
    I(f"s_lshl_b32 s{sT0}, s{sWAVE}, 3")
    I(f"s_add_u32 s{sT0}, s{sT0}, {L_ML}")
    I(f"v_lshlrev_b32 v{vMLW}, 3, v{vLANE}")
    I(f"v_add_u32 v{vMLW}, {L_DUM}, v{vMLW}")
    I(f"v_writelane_b32 v{vMLW}, s{sT0}, 63")
    for u in range(2):
        for r in range(4):
            sb = 0x0100 if u == (r >> 1) else 0x0302
            d = vSEL + u * 4 + r
            I(f"v_mov_b32 v{d}, 0x0c0c0c0c")
            I(f"v_mov_b32 v{t1}, {0x0c0c0000 | sb:#x}")
            I(f"v_mov_b32 v{t2}, {(sb << 16) | 0x0c0c:#x}")
            I(f"v_cmp_eq_u32 vcc, {2*r}, v{t0}")
            I(f"v_cndmask_b32 v{d}, v{d}, v{t1}, vcc")
            I(f"v_cmp_eq_u32 vcc, {2*r+1}, v{t0}")
            I(f"v_cndmask_b32 v{d}, v{d}, v{t2}, vcc")

    def tr_addr(dst, pitch, base_s):
        x0, x1 = T + 48, T + 49
        I(f"v_lshrrev_b32 v{x0}, 4, v{vLANE}")
        I(f"v_bfe_u32 v{x1}, v{vLANE}, 2, 2")
        I(f"v_lshl_add_u32 v{x0}, v{x0}, 3, v{x1}")
        I(f"v_lshlrev_b32 v{x0}, {pitch.bit_length()-1}, v{x0}")
        I(f"v_and_b32 v{x1}, 3, v{vLANE}")
        I(f"v_lshl_add_u32 v{x0}, v{x1}, 3, v{x0}")
        I(f"v_add_u32 v{dst}, s{base_s}, v{x0}")

    def ones():
        for i in range(4):
            I(f"v_mov_b32 v{ONES+i}, 0x3f803f80")

    I(f"s_cmp_ge_u32 s{sWAVE}, 5")
    I("s_cbranch_scc1 L_B1")
    I(f"s_lshl_b32 s{sT0}, s{sWAVE}, 12")
    I(f"s_add_u32 s{sT0}, s{sT0}, {L_WQ}")
    tr_addr(t0, 32, sT0)
    ones()
    I(f"s_lshl_b32 s{sT0}, s{sWAVE}, 7")
    I(f"v_lshlrev_b32 v{t1}, 2, v{n}")
    I(f"v_add_u32 v{t1}, s{sT0}, v{t1}")
    I(f"s_waitcnt vmcnt(0)")
    for ks in range(4):
        I(f"ds_read_b64_tr_b16 v[{vBQ+4*ks}:{vBQ+4*ks+1}], v{t0} offset:{ks*1024}")
        I(f"ds_read_b64_tr_b16 v[{vBQ+4*ks+2}:{vBQ+4*ks+3}], v{t0} offset:{ks*1024+128}")
    I("s_waitcnt lgkmcnt(0)")
    D0 = T + 8
    for ks in range(4):
        I(f"v_mfma_f32_16x16x32_bf16 {vr(D0)}, {vr(ONES)}, {vr(vBQ+4*ks)}, {'0' if ks == 0 else vr(D0)}")
    I(f"ds_write_b32 v{t1}, v{D0} offset:{L_CS1}")
    TS(2)
    I("s_branch L_haveX")

    def gemv(ntile, Bbase, bidx):
        S1, S2 = T + 16, T + 20
        A0_, A1_ = vr(XA), vr(XA + 4)
        I(f"v_mfma_f32_16x16x32_bf16 {vr(S2)}, {A0_}, {A0_}, 0")
        I(f"v_mfma_f32_16x16x32_bf16 {vr(S2)}, {A1_}, {A1_}, {vr(S2)}")
        I(f"v_mfma_f32_16x16x32_bf16 {vr(S1)}, {A0_}, {vr(ONES)}, 0")
        I(f"v_mfma_f32_16x16x32_bf16 {vr(S1)}, {A1_}, {vr(ONES)}, {vr(S1)}")
        post = [
            f"v_pk_add_f32 v[{S2}:{S2+1}], v[{S2}:{S2+1}], v[{S2+2}:{S2+3}]",
            f"v_add_f32 v{S2}, v{S2}, v{S2+1}",
            f"v_add_f32_dpp v{S2}, v{S2}, v{S2} quad_perm:[1,0,3,2] row_mask:0xf bank_mask:0xf",
            f"v_pk_add_f32 v[{S1}:{S1+1}], v[{S1}:{S1+1}], v[{S1+2}:{S1+3}]",
            f"v_add_f32_dpp v{S2}, v{S2}, v{S2} quad_perm:[2,3,0,1] row_mask:0xf bank_mask:0xf",
            f"v_add_f32 v{S1}, v{S1}, v{S1+1}",
            f"v_add_f32_dpp v{S2}, v{S2}, v{S2} row_half_mirror row_mask:0xf bank_mask:0xf",
            f"ds_write2_b32 v{vSW}, v{S1}, v{S2} offset0:0 offset1:4",
        ]
        def dpost(t):
            D = T + 8 * t
            return [f"v_pk_add_f32 v[{D}:{D+1}], v[{D}:{D+1}], v[{D+2}:{D+3}]",
                    f"v_pk_add_f32 v[{D+4}:{D+5}], v[{D+4}:{D+5}], v[{D+6}:{D+7}]",
                    f"v_add_f32 v{D}, v{D}, v{D+1}",
                    f"v_add_f32_dpp v{D}, v{D+4}, v{D+5} quad_perm:[0,1,2,3] row_mask:0xc bank_mask:0xf",
                    f"ds_write_b32 v{vPW}, v{D} offset:{L_PB1 + t*256}"]
        for t in range(ntile):
            post += dpost(t)
        k = 0
        for t in range(ntile):
            for j in range(2):
                D = T + 8 * t + 4 * j
                for h in range(2):
                    I(f"v_mfma_f32_16x16x32_bf16 {vr(D)}, {(A0_, A1_)[h]}, {vr(Bbase+4*bidx(2*h+j,t))}, {vr(D) if h else '0'}")
                    k += 1
                    if k >= 5 and k < 4 * ntile:
                        for x in post[:2]: I(x)
                        post = post[2:]
        for x in post: I(x)
        I("s_waitcnt lgkmcnt(0)")

    def gemv_diag():
        S1, S2 = T + 16, T + 20
        for ks in range(4):
            I(f"v_mfma_f32_16x16x32_bf16 {vr(T+4*ks)}, {vr(XA)}, {vr(vBQ+4*ks)}, 0")
        I(f"v_mfma_f32_16x16x32_bf16 {vr(S1)}, {vr(XA)}, {vr(ONES)}, 0")
        I(f"v_mfma_f32_16x16x32_bf16 {vr(S2)}, {vr(XA)}, {vr(XA)}, 0")
        for ks in range(1, 4):
            I(f"v_mov_b32_dpp v{T}, v{T+4*ks} quad_perm:[0,1,2,3] row_mask:{1<<ks:#x} bank_mask:0xf")
        I(f"ds_write_b32 v{vPW}, v{T} offset:{L_PB1}")
        I(f"ds_write2_b32 v{vSW}, v{S1}, v{S2} offset0:0 offset1:4")
        I("s_waitcnt lgkmcnt(0)")

    def gather(sreg):
        poll([f"buffer_load_dwordx4 {vr(XA)}, v{vGO}, {WS}, s{sreg} offen sc1",
              f"buffer_load_dwordx4 {vr(XA+4)}, v{vGO}, {WS}, s{sreg} offen offset:{2*ZR} sc1"],
             list(range(XA, XA + 8)), groups=[range(XA, XA + 4), range(XA + 4, XA + 8)])

    def reduce_read(nw, base):
        for v in range(nw):
            I(f"ds_read_b128 {vr(T+4*v)}, v{vRR} offset:{base + v*PP}")

    def reduce_sum(nw, dst):
        np_ = 2 * nw
        idx = list(range(np_))
        while len(idx) > 1:
            nx = []
            for i in range(0, len(idx) - 1, 2):
                d, s = idx[i], idx[i + 1]
                I(f"v_pk_add_f32 v[{T+2*d}:{T+2*d+1}], v[{T+2*d}:{T+2*d+1}], v[{T+2*s}:{T+2*s+1}]")
                nx.append(d)
            if len(idx) % 2:
                nx.append(idx[-1])
            idx = nx
        I(f"v_add_f32 v{dst}, v{T}, v{T+1}")

    rTOT, rMEAN, rVAR, rMB, rSD, rR, rU, rT, rINV, rC1, rC2, rCS = [T + 32 + i for i in range(12)]

    def cs_read(area, dst):
        l = a.newlab("Lcs")
        I(f"s_cmp_eq_u32 s{sIT}, 0")
        I(f"s_cbranch_scc0 {l}")
        I(f"v_lshrrev_b32 v{rT}, 2, v{vRR}")
        for v in range(5):
            I(f"ds_read_b32 v{T+24+v}, v{rT} offset:{area + v*128}")
        I("s_waitcnt lgkmcnt(0)")
        I(f"v_add_f32 v{dst}, v{T+24}, v{T+25}")
        I(f"v_add_f32 v{rT}, v{T+26}, v{T+27}")
        I(f"v_add_f32 v{dst}, v{dst}, v{T+28}")
        I(f"v_add_f32 v{dst}, v{dst}, v{rT}")
        a.label(l)

    def stats():
        I(f"v_readlane_b32 s{sT0}, v{rTOT}, 32")
        I(f"v_readlane_b32 s{sT1}, v{rTOT}, 33")
        I(f"v_mul_f32 v{rMEAN}, s{sT0}, v{rINV}")
        I(f"v_mul_f32 v{rVAR}, s{sT1}, v{rINV}")
        I(f"v_fma_f32 v{rVAR}, -v{rMEAN}, v{rMEAN}, v{rVAR}")
        I(f"v_max_f32 v{rVAR}, 0, v{rVAR}")
        I(f"v_cvt_pk_bf16_f32 v{rT}, v{rMEAN}, v{rVAR}")
        I(f"v_and_b32 v{rU}, 0xffff0000, v{rT}")
        I(f"v_lshlrev_b32 v{rMB}, 16, v{rT}")
        I(f"v_add_f32 v{rU}, {f2u(1e-5):#x}, v{rU}")
        I(f"v_cvt_pk_bf16_f32 v{rU}, v{rU}, v{rU}")
        I(f"v_and_b32 v{rU}, 0xffff0000, v{rU}")
        I(f"v_sqrt_f32 v{rU}, v{rU}")
        I(f"v_cvt_pk_bf16_f32 v{rU}, v{rU}, v{rU}")
        I(f"v_and_b32 v{rSD}, 0xffff0000, v{rU}")
        I(f"v_rcp_f32 v{rR}, v{rSD}")

    def pack_pairs(src, dst):
        I(f"v_mov_b32_dpp v{rT}, v{src} quad_perm:[1,0,3,2] row_mask:0xf bank_mask:0xf")
        I(f"v_cvt_pk_bf16_f32 v{dst}, v{src}, v{rT}")
        I(f"v_min_u32 v{dst}, 0xfffffffe, v{dst}")

    a.label("L_loop")
    I(f"s_cmp_ge_u32 s{sWAVE}, 5")
    I("s_cbranch_scc1 L_B1")
    I(f"s_lshl_b32 s{sT2}, s{sX}, 11")
    I(f"s_add_u32 s{sT2}, s{sT2}, {XOFF}")
    I(f"s_cmp_eq_u32 s{sR}, {LEAD_R}")
    I("s_cbranch_scc0 L_nolead")
    I(f"s_mul_i32 s{sT0}, s{sWAVE}, {4*ZR}")
    I(f"s_add_u32 s{sT0}, s{sT0}, s{sREG}")
    I(f"s_add_u32 s{sT0}, s{sT0}, {YOFF - RS & 0xffffffff:#x}")
    I(f"v_lshrrev_b32 v{T+20}, 4, v{vLANE}")
    I(f"v_mul_u32_u24 v{T+20}, {ZR}, v{T+20}")
    I(f"v_and_b32 v{T+21}, 15, v{vLANE}")
    I(f"v_lshl_add_u32 v{T+20}, v{T+21}, 2, v{T+20}")
    I(f"s_lshl_b32 s{sT1}, s{sWAVE}, 8")
    I(f"v_lshlrev_b32 v{T+21}, 2, v{vLANE}")
    I(f"v_add_u32 v{T+21}, s{sT1}, v{T+21}")
    TS(26)
    poll([f"buffer_load_dword v{T+2*j+1}, v{T+20}, {WS}, s{sT0} offen offset:{j*ZX} sc1" for j in range(8)],
         [T + 2 * j + 1 for j in range(8)], groups=[[T + 2 * j + 1] for j in range(8)])
    TS(27)
    for j in range(8):
        unpack(T + 2 * j, T + 2 * j + 1, T + 2 * j + 1)
    for (d, s_) in ((0, 1), (2, 3), (4, 5), (6, 7), (0, 2), (4, 6), (0, 4)):
        I(f"v_pk_add_f32 v[{T+2*d}:{T+2*d+1}], v[{T+2*d}:{T+2*d+1}], v[{T+2*s_}:{T+2*s_+1}]")
    I(f"v_cvt_pk_bf16_f32 v{T}, v{T}, v{T+1}")
    I(f"s_cmp_eq_u32 s{sIT}, 2")
    I("s_cbranch_scc0 L_lead1")
    I(f"buffer_store_dword v{T}, v{T+21}, {OUTS}, 0 offen")
    TS(29)
    I("s_branch L_fin")
    a.label("L_lead1")
    I(f"v_min_u32 v{T}, 0xfffffffe, v{T}")
    lstore([f"buffer_store_dword v{T}, v{T+21}, {WS}, s{sT2} offen"])
    TS(28)
    a.label("L_nolead")
    ones()
    TS(3)
    poll([f"buffer_load_dwordx4 {vr(XA)}, v{vXO}, {WS}, s{sT2} offen sc1"], list(range(XA, XA + 4)))
    TS(4)
    a.label("L_haveX")
    gemv_diag()
    TS(5)
    a.label("L_B1")
    I(f"v_mov_b32 v{rINV}, {f2u(1.0/640):#x}")
    I("s_barrier")
    I(f"s_cmp_eq_u32 s{sWAVE}, 5")
    I("s_cbranch_scc1 L_w5q")
    I(f"s_cmp_gt_u32 s{sWAVE}, 5")
    I("s_cbranch_scc1 L_B2")
    I(f"s_cmp_eq_u32 s{sIT}, 0")
    I("s_cbranch_scc0 L_B2")
    kv_issue(W04)
    I("s_branch L_B2")
    a.label("L_w5q")
    TS(6)
    reduce_read(5, L_PB1)
    cs_read(L_CS1, vCSQ)
    I("s_waitcnt lgkmcnt(0)")
    reduce_sum(5, rTOT)
    stats()
    I(f"v_fma_f32 v{rU}, -v{rMB}, v{vCSQ}, v{rTOT}")
    I(f"v_mul_f32 v{rU}, v{rU}, v{rR}")
    pack_pairs(rU, rU)
    I(f"s_cmp_eq_u32 s{sIT}, 0")
    I("s_cbranch_scc0 L_synced")
    setexec(0x5555, 0)
    I(f"buffer_store_dword v{rU}, v{vQP}, {WS}, s{sREG} offen sc1")
    srd(TA, 54, 256)
    setexec(0xFFFFFFFF, 0xFFFFFFFF)
    I(f"v_mov_b32 v{rT}, 128")
    setexec(1, 0)
    a.label("L_sync")
    I(f"buffer_load_dword v{T}, v{rT}, {TA}, 0 offen sc1")
    I(f"s_add_u32 s{sSPIN}, s{sSPIN}, 1")
    I("s_waitcnt vmcnt(0)")
    I(f"v_readfirstlane_b32 s{sT0}, v{T}")
    I(f"s_cmp_ge_u32 s{sT0}, 0x800")
    I("s_cbranch_scc1 L_syncd")
    I(f"s_cmp_lt_u32 s{sSPIN}, {spin_limit}")
    I("s_cbranch_scc1 L_sync")
    a.label("L_syncd")
    setexec(0xFFFFFFFF, 0xFFFFFFFF)
    I(f"s_lshr_b32 s{sT0}, s{sT0}, s{sX}")
    I(f"s_and_b32 s{sPURE}, s{sT0}, 1")
    I(f"v_mov_b32 v{T}, s{sPURE}")
    I(f"v_mov_b32 v{T+1}, {L_FLAG}")
    I(f"ds_write_b32 v{T+1}, v{T}")
    TS(7)
    I("s_branch L_qpoll")
    a.label("L_synced")
    TS(7)
    setexec(0x5555, 0)
    lstore([f"buffer_store_dword v{rU}, v{vQP}, {WS}, s{sREG} offen"])
    a.label("L_qpoll")
    setexec(0xFFFF, 0)
    poll([f"buffer_load_dwordx4 {vr(T)}, v{vQG}, {WS}, s{sREG} offen sc1"], list(range(T, T + 4)), ex=(0xFFFF, 0))
    I(f"ds_write_b128 v{vRR}, {vr(T)} offset:{L_QB}")
    setexec(0xFFFFFFFF, 0xFFFFFFFF)
    TS(8)
    I(f"s_cmp_eq_u32 s{sIT}, 0")
    I("s_cbranch_scc0 L_B2x")
    kv_issue()
    I("s_branch L_B2w")
    a.label("L_B2x")
    I(f"buffer_load_ushort v{vXF}, v{vXFA}, {WS}, 0 offen sc1")
    a.label("L_B2w")
    I("s_waitcnt lgkmcnt(0)")
    a.label("L_B2")
    BT = T
    ST = T + 16
    PS = T + 32
    MI = T + 36
    OA = T + 44
    for i in range(16):
        I(f"v_mov_b32 v{BT+i}, 0")
    I(f"v_mov_b32 v{MI}, {L_FLAG}")
    I("s_barrier")
    TS(9)
    for t in range(4):
        m = 0x000F000F << (4 * t)
        setexec(m, m)
        I(f"ds_read_b128 {vr(BT+4*t)}, v{vQR}")
    setexec(0xFFFFFFFF, 0xFFFFFFFF)
    I(f"ds_read_b32 v{MI}, v{MI}")
    I("s_waitcnt vmcnt(16)")
    I("s_waitcnt lgkmcnt(0)")
    TS(10)
    for Tt in range(4):
        for t in range(4):
            I(f"v_mfma_f32_16x16x32_bf16 {vr(ST+4*Tt)}, {vr(vK+4*(4*Tt+t))}, {vr(BT+4*t)}, {'0' if t == 0 else vr(ST+4*Tt)}")
    I(f"v_readfirstlane_b32 s{sPURE}, v{MI}")
    for Tt in range(4):
        I(f"v_mov_b32_dpp v{PS+Tt}, v{ST+4*Tt} quad_perm:[0,0,0,0] row_mask:0xf bank_mask:0xf")
        for c in range(1, 4):
            I(f"v_add_f32_dpp v{PS+Tt}, v{ST+4*Tt+c}, v{PS+Tt} quad_perm:[{c},{c},{c},{c}] row_mask:0xf bank_mask:0xf")
    I(f"v_mov_b32 v{MI+2}, {SCALE:#x}")
    I(f"v_mov_b32 v{MI+3}, {SCALE:#x}")
    I(f"v_cvt_pk_bf16_f32 v{MI}, v{PS}, v{PS+1}")
    I(f"v_cvt_pk_bf16_f32 v{MI+1}, v{PS+2}, v{PS+3}")
    unpack(PS, PS + 1, MI)
    unpack(PS + 2, PS + 3, MI + 1)
    I(f"v_pk_mul_f32 v[{PS}:{PS+1}], v[{PS}:{PS+1}], v[{MI+2}:{MI+3}]")
    I(f"v_pk_mul_f32 v[{PS+2}:{PS+3}], v[{PS+2}:{PS+3}], v[{MI+2}:{MI+3}]")
    I(f"v_cvt_pk_bf16_f32 v{MI}, v{PS}, v{PS+1}")
    I(f"v_cvt_pk_bf16_f32 v{MI+1}, v{PS+2}, v{PS+3}")
    unpack(PS, PS + 1, MI)
    unpack(PS + 2, PS + 3, MI + 1)
    vM = MI + 4; vL = MI + 5; vT_ = MI + 6; vPK = MI + 7
    I(f"v_max3_f32 v{vM}, v{PS}, v{PS+1}, v{PS+2}")
    I(f"v_max_f32 v{vM}, v{vM}, v{PS+3}")
    I(f"v_max_f32_dpp v{vM}, v{vM}, v{vM} row_ror:4 row_mask:0xf bank_mask:0xf")
    I(f"v_max_f32_dpp v{vM}, v{vM}, v{vM} row_ror:8 row_mask:0xf bank_mask:0xf")
    I(f"v_max_f32_dpp v{vM}, v{vM}, v{vM} row_bcast:15 row_mask:0xa bank_mask:0xf")
    I(f"v_max_f32_dpp v{vM}, v{vM}, v{vM} row_bcast:31 row_mask:0xc bank_mask:0xf")
    I(f"v_mov_b32 v{MI}, s{sL2E}")
    I(f"v_readlane_b32 s{sM}, v{vM}, 63")
    I(f"v_mul_f32 v{vT_}, s{sM}, v{MI}")
    for Tt in range(4):
        I(f"v_fma_f32 v{PS+Tt}, v{PS+Tt}, v{MI}, -v{vT_}")
    for Tt in range(4):
        I(f"v_exp_f32 v{PS+Tt}, v{PS+Tt}")
    TS(11)
    I(f"s_cmp_eq_u32 s{sIT}, 0")
    I("s_cbranch_scc0 L_PV")
    role_dma()
    TS(25)
    a.label("L_PV")
    for Tt in range(4):
        AB = ST + 8 * (Tt & 1)
        I(f"v_mov_b32_dpp v{vT_}, v{PS+Tt} row_half_mirror row_mask:0xf bank_mask:0xf")
        I(f"v_cvt_pk_bf16_f32 v{vPK}, v{PS+Tt}, v{vT_}")
        for u in range(2):
            for r in range(4):
                I(f"v_perm_b32 v{AB+4*u+r}, v{vPK}, v{vPK}, v{vSEL+4*u+r}")
        if Tt == 1:
            I(f"v_add_f32 v{vL}, v{PS}, v{PS+1}")
            I(f"v_add_f32 v{MI+1}, v{PS+2}, v{PS+3}")
            I(f"v_add_f32 v{vL}, v{vL}, v{MI+1}")
            I(f"v_add_f32_dpp v{vL}, v{vL}, v{vL} row_ror:4 row_mask:0xf bank_mask:0xf")
            I(f"v_add_f32_dpp v{vL}, v{vL}, v{vL} row_ror:8 row_mask:0xf bank_mask:0xf")
            I(f"v_add_f32_dpp v{vL}, v{vL}, v{vL} row_bcast:15 row_mask:0xa bank_mask:0xf")
            I(f"v_add_f32_dpp v{vL}, v{vL}, v{vL} row_bcast:31 row_mask:0xc bank_mask:0xf")
            I(f"ds_write_b64 v{vMLW}, v[{vM}:{vL}]")
        for u in range(2):
            i1 = Tt * 4 + u * 2 + 1
            I(f"s_waitcnt vmcnt({15 - i1 + 8})")
            for hf in range(2):
                i = Tt * 4 + u * 2 + hf
                first = (Tt == 0 and u == 0)
                I(f"v_mfma_f32_16x16x32_bf16 {vr(OA+4*hf)}, {vr(AB+4*u)}, {vr(vV+4*i)}, {'0' if first else vr(OA+4*hf)}")
    TS(12)
    setexec(0x00FF00FF, 0xFF00FF00)
    I(f"ds_write_b128 v{vOW}, {vr(OA)}")
    I(f"ds_write_b128 v{vOW}, {vr(OA+4)} offset:256")
    setexec(0xFFFFFFFF, 0xFFFFFFFF)
    I("s_waitcnt lgkmcnt(0)")
    I("s_barrier")
    TS(13)
    I(f"s_cmp_eq_u32 s{sWAVE}, 7")
    I("s_cbranch_scc0 L_role")
    cM, cL, cMX, cF, cT = T + 32, T + 33, T + 34, T + 36, T + 37
    cLS = T + 35
    I(f"ds_read_b64 v[{cM}:{cL}], v{vCML}")
    for w in range(8):
        I(f"ds_read2st64_b64 {vr(T+4*w)}, v{vCR} offset0:{2*w} offset1:{2*w+1}")
    I(f"v_mov_b32 v{cT}, s{sL2E}")
    I("s_waitcnt lgkmcnt(8)")
    I(f"v_max_f32_dpp v{cMX}, v{cM}, v{cM} quad_perm:[1,0,3,2] row_mask:0xf bank_mask:0xf")
    I(f"v_max_f32_dpp v{cMX}, v{cMX}, v{cMX} quad_perm:[2,3,0,1] row_mask:0xf bank_mask:0xf")
    I(f"v_max_f32_dpp v{cMX}, v{cMX}, v{cMX} row_half_mirror row_mask:0xf bank_mask:0xf")
    I(f"v_sub_f32 v{cF}, v{cM}, v{cMX}")
    I(f"v_mul_f32 v{cF}, v{cF}, v{cT}")
    I(f"v_exp_f32 v{cF}, v{cF}")
    I("s_waitcnt lgkmcnt(0)")
    for w in range(8):
        I(f"v_readlane_b32 s{sF+w}, v{cF}, {w}")
    for w in range(8):
        I(f"v_pk_add_f32 v[{T+4*w}:{T+4*w+1}], v[{T+4*w}:{T+4*w+1}], v[{T+4*w+2}:{T+4*w+3}]")
    for w in range(8):
        sp = f"s[{sF+(w&~1)}:{sF+(w&~1)+1}]"
        o = w & 1
        acc = T + 40 + 2 * (w & 1)
        if w < 2:
            I(f"v_pk_mul_f32 v[{acc}:{acc+1}], v[{T+4*w}:{T+4*w+1}], {sp} op_sel:[0,{o}] op_sel_hi:[1,{o}]")
        else:
            I(f"v_pk_fma_f32 v[{acc}:{acc+1}], v[{T+4*w}:{T+4*w+1}], {sp}, v[{acc}:{acc+1}] op_sel:[0,{o},0] op_sel_hi:[1,{o},1]")
    I(f"v_mul_f32 v{cLS}, v{cF}, v{cL}")
    I(f"v_pk_add_f32 v[{T+40}:{T+41}], v[{T+40}:{T+41}], v[{T+42}:{T+43}]")
    I(f"v_add_f32_dpp v{cLS}, v{cLS}, v{cLS} quad_perm:[1,0,3,2] row_mask:0xf bank_mask:0xf")
    I(f"v_cvt_pk_bf16_f32 v{T+40}, v{T+40}, v{T+41}")
    I(f"v_min_u32 v{T+40}, 0xfffffffe, v{T+40}")
    I(f"v_add_f32_dpp v{cLS}, v{cLS}, v{cLS} quad_perm:[2,3,0,1] row_mask:0xf bank_mask:0xf")
    I(f"v_min_u32 v{cMX}, 0xfffffffe, v{cMX}")
    lstore([f"buffer_store_dword v{T+40}, v{vCP}, {WS}, s{sREG} offen"])
    I(f"v_add_f32_dpp v{cLS}, v{cLS}, v{cLS} row_half_mirror row_mask:0xf bank_mask:0xf")
    I(f"v_min_u32 v{cLS}, 0xfffffffe, v{cLS}")
    setexec(1, 0)
    lstore([f"buffer_store_dwordx2 v[{cMX}:{cLS}], v{vCPM}, {WS}, s{sREG} offen"])
    setexec(0xFFFFFFFF, 0xFFFFFFFF)
    TS(14)

    a.label("L_role")
    I(f"s_cmp_eq_u32 s{sROLE}, 0")
    I("s_cbranch_scc1 L_WO")
    I(f"s_cmp_eq_u32 s{sROLE}, 1")
    I("s_cbranch_scc1 L_W1")
    I(f"s_cmp_eq_u32 s{sROLE}, 2")
    I("s_cbranch_scc1 L_W2")
    I("s_branch L_next")

    def role_base():
        I(f"s_lshl_b32 s{sT0}, s{sWAVE}, 13")
        I(f"s_add_u32 s{sT0}, s{sT0}, {L_ROLE}")

    a.label("L_WO")
    I(f"s_cmp_eq_u32 s{sIT}, 0")
    I("s_cbranch_scc0 L_WO0")
    role_base()
    tr_addr(T + 47, 64, sT0)
    I("s_waitcnt vmcnt(0)")
    for ks in range(2):
        for t in range(2):
            b = vRB + 4 * (ks * 2 + t)
            o = ks * 2048 + t * 32
            I(f"ds_read_b64_tr_b16 v[{b}:{b+1}], v{T+47} offset:{o}")
            I(f"ds_read_b64_tr_b16 v[{b+2}:{b+3}], v{T+47} offset:{o+256}")
    I("s_waitcnt lgkmcnt(0)")
    TS(15)
    I("s_branch L_WO1")
    a.label("L_WO0")
    I(f"s_cmp_eq_u32 s{sWAVE}, 5")
    I("s_cbranch_scc0 L_WO1")
    I("s_waitcnt vmcnt(0)")
    I(f"v_lshlrev_b32 v{vXF}, 16, v{vXF}")
    a.label("L_WO1")
    A0, Ma, La = T, T + 4, T + 5
    Dw = [[T + 8, T + 12], [T + 16, T + 20]]
    wMX, wE, wT, wL2E, wR0, wR1 = [T + 24 + i for i in range(6)]
    I(f"v_mov_b32 v{wL2E}, s{sL2E}")
    poll([f"buffer_load_dwordx4 {vr(A0)}, v{vA0}, {WS}, s{sREG} offen sc1",
          f"buffer_load_dwordx2 v[{Ma}:{La}], v{vA2}, {WS}, s{sREG} offen sc1"], list(range(T, T + 6)),
         groups=[range(T, T + 4), range(T + 4, T + 6)])
    TS(16)
    seq = [
        f"v_max_f32_dpp v{wMX}, v{Ma}, v{Ma} quad_perm:[1,0,3,2] row_mask:0xf bank_mask:0xf",
        f"v_max_f32_dpp v{wMX}, v{wMX}, v{wMX} quad_perm:[2,3,0,1] row_mask:0xf bank_mask:0xf",
        f"v_max_f32_dpp v{wMX}, v{wMX}, v{wMX} row_half_mirror row_mask:0xf bank_mask:0xf",
        f"v_sub_f32 v{wE}, v{Ma}, v{wMX}",
    ]
    k = 0
    for t in range(2):
        for ks in range(2):
            I(f"v_mfma_f32_16x16x32_bf16 {vr(Dw[t][ks])}, {vr(A0)}, {vr(vRB+4*(ks*2+t))}, 0")
            I(seq[k]); k += 1
    I(f"v_mul_f32 v{wE}, v{wE}, v{wL2E}")
    I(f"v_exp_f32 v{wE}, v{wE}")
    I(f"v_mul_f32 v{wT}, v{wE}, v{La}")
    mrg = [f"v_mov_b32_dpp v{Dw[t][0]+i}, v{Dw[t][1]+i} quad_perm:[0,1,2,3] row_mask:0xc bank_mask:0xf"
           for t in range(2) for i in range(4)]
    I(mrg[0]); I(mrg[1])
    I(f"v_add_f32_dpp v{wT}, v{wT}, v{wT} quad_perm:[1,0,3,2] row_mask:0xf bank_mask:0xf")
    I(mrg[2]); I(mrg[3])
    I(f"v_add_f32_dpp v{wT}, v{wT}, v{wT} quad_perm:[2,3,0,1] row_mask:0xf bank_mask:0xf")
    I(f"v_mov_b32_dpp v{wE}, v{wE} row_ror:4 row_mask:0xf bank_mask:0xa")
    I(mrg[4])
    I(f"v_add_f32_dpp v{wT}, v{wT}, v{wT} row_half_mirror row_mask:0xf bank_mask:0xf")
    I(mrg[5])
    I(f"v_rcp_f32 v{wT}, v{wT}")
    I(mrg[6]); I(mrg[7])
    for i in range(4):
        for t in range(2):
            D = Dw[t][0]; R = (wR0, wR1)[t]
            op = "v_mul_f32_dpp" if i == 0 else "v_fmac_f32_dpp"
            I(f"{op} v{R}, v{wE}, v{D+i} quad_perm:[{i},{i},{i},{i}] row_mask:0xf bank_mask:0xf")
    I(f"v_mul_f32 v{wR0}, v{wR0}, v{wT}")
    I(f"v_mul_f32 v{wR1}, v{wR1}, v{wT}")
    I(f"ds_write_b32 v{vPW}, v{wR0} offset:{L_PB2}")
    I(f"ds_write_b32 v{vPW}, v{wR1} offset:{L_PB2+256}")
    I("s_waitcnt lgkmcnt(0)")
    I("s_barrier")
    I(f"s_cmp_eq_u32 s{sWAVE}, 5")
    I("s_cbranch_scc0 L_next")
    TS(17)
    reduce_read(8, L_PB2)
    I("s_waitcnt lgkmcnt(0)")
    I(f"v_add_f32 v{T+30}, v{T+30}, v{vXF}")
    reduce_sum(8, rTOT)
    pack_pairs(rTOT, rU)
    I(f"v_mov_b32 v{T}, v{rU}")
    I(f"v_mov_b32_dpp v{T+1}, v{rU} quad_perm:[2,2,2,2] row_mask:0xf bank_mask:0xf")
    I(f"v_mov_b32_dpp v{T+2}, v{rU} row_shl:4 row_mask:0xf bank_mask:0xf")
    I(f"v_mov_b32_dpp v{T+3}, v{rU} row_shl:6 row_mask:0xf bank_mask:0xf")
    setexec(0x01010101, 0)
    I(f"buffer_store_dwordx4 {vr(T)}, v{vRP}, {WS}, s{sREG} offen sc1")
    setexec(0xFFFFFFFF, 0xFFFFFFFF)
    TS(18)
    I("s_branch L_next")

    a.label("L_W1")
    I(f"s_cmp_ge_u32 s{sWAVE}, 5")
    I("s_cbranch_scc1 L_W1b")
    ones()
    I(f"s_cmp_eq_u32 s{sIT}, 0")
    I("s_cbranch_scc0 L_W11")
    role_base()
    tr_addr(T + 47, 64, sT0)
    I(f"s_lshl_b32 s{sT0}, s{sWAVE}, 7")
    I(f"v_and_b32 v{T+46}, 15, v{vLANE}")
    I(f"v_lshlrev_b32 v{T+46}, 2, v{T+46}")
    I(f"v_add_u32 v{T+46}, s{sT0}, v{T+46}")
    I("s_waitcnt vmcnt(0)")
    for ks in range(4):
        for t in range(2):
            b = vRB + 4 * (ks * 2 + t)
            o = ks * 2048 + t * 32
            I(f"ds_read_b64_tr_b16 v[{b}:{b+1}], v{T+47} offset:{o}")
            I(f"ds_read_b64_tr_b16 v[{b+2}:{b+3}], v{T+47} offset:{o+256}")
        if ks == 1:
            I("s_waitcnt lgkmcnt(0)")
    I("s_waitcnt lgkmcnt(0)")
    for t in range(2):
        for ks in range(4):
            I(f"v_mfma_f32_16x16x32_bf16 {vr(T+4*t)}, {vr(ONES)}, {vr(vRB+4*(ks*2+t))}, {'0' if ks == 0 else vr(T+4*t)}")
    I(f"ds_write_b32 v{T+46}, v{T} offset:{L_CS2}")
    I(f"ds_write_b32 v{T+46}, v{T+4} offset:{L_CS2+64}")
    TS(15)
    a.label("L_W11")
    I(f"s_add_u32 s{sT1}, s{sREG}, {ZOFF}")
    gather(sT1)
    TS(19)
    gemv(2, vRB, lambda ks, t: ks * 2 + t)
    TS(20)
    a.label("L_W1b")
    I(f"v_mov_b32 v{rINV}, {f2u(1.0/640):#x}")
    I(f"v_mov_b32 v{rC1}, {f2u(GC1):#x}")
    I(f"v_mov_b32 v{rC2}, {f2u(GC2):#x}")
    I("s_barrier")
    I(f"s_cmp_eq_u32 s{sWAVE}, 5")
    I("s_cbranch_scc0 L_next")
    TS(21)
    reduce_read(5, L_PB1)
    cs_read(L_CS2, vCS1)
    I("s_waitcnt lgkmcnt(0)")
    reduce_sum(5, rTOT)
    stats()
    I(f"v_sub_f32 v{rMEAN}, v{rMEAN}, v{rMB}")
    I(f"v_mul_f32 v{rVAR}, v{rVAR}, v{rR}")
    I(f"v_mul_f32 v{rMEAN}, v{rMEAN}, v{rR}")
    I(f"v_mul_f32 v{rVAR}, v{rVAR}, v{rR}")
    I(f"v_cvt_pk_bf16_f32 v{rT}, v{rMEAN}, v{rVAR}")
    I(f"v_and_b32 v{rU}, 0xffff0000, v{rT}")
    I(f"v_lshlrev_b32 v{rMEAN}, 16, v{rT}")
    I(f"v_add_f32 v{rU}, {f2u(1e-5):#x}, v{rU}")
    I(f"v_cvt_pk_bf16_f32 v{rU}, v{rU}, v{rU}")
    I(f"v_fma_f32 v{rMB}, v{rMEAN}, v{rSD}, v{rMB}")
    I(f"v_and_b32 v{rU}, 0xffff0000, v{rU}")
    I(f"v_sqrt_f32 v{rU}, v{rU}")
    I(f"v_fma_f32 v{rTOT}, -v{rMB}, v{vCS1}, v{rTOT}")
    I(f"v_cvt_pk_bf16_f32 v{rU}, v{rU}, v{rU}")
    I(f"v_mul_f32 v{rTOT}, v{rTOT}, v{rR}")
    I(f"v_and_b32 v{rU}, 0xffff0000, v{rU}")
    I(f"v_rcp_f32 v{rU}, v{rU}")
    I(f"v_mul_f32 v{rTOT}, v{rTOT}, v{rU}")
    I(f"v_cvt_pk_bf16_f32 v{rU}, v{rTOT}, v{rTOT}")
    I(f"v_and_b32 v{rU}, 0xffff0000, v{rU}")
    I(f"v_add_f32 v{rU}, v{rU}, v{vB1}")
    I(f"v_cvt_pk_bf16_f32 v{rU}, v{rU}, v{rU}")
    I(f"v_and_b32 v{rU}, 0xffff0000, v{rU}")
    I(f"v_mul_f32 v{rT}, v{rU}, v{rU}")
    I(f"v_fma_f32 v{rT}, v{rT}, v{rC2}, v{rC1}")
    I(f"v_mul_f32 v{rT}, v{rT}, v{rU}")
    I(f"v_exp_f32 v{rT}, v{rT}")
    I(f"v_add_f32 v{rT}, 1.0, v{rT}")
    I(f"v_rcp_f32 v{rT}, v{rT}")
    I(f"v_mul_f32 v{rU}, v{rU}, v{rT}")
    pack_pairs(rU, rU)
    setexec(0x55555555, 0)
    lstore([f"buffer_store_dword v{rU}, v{vRP}, {WS}, s{sREG} offen"])
    setexec(0xFFFFFFFF, 0xFFFFFFFF)
    TS(22)
    I("s_branch L_next")

    a.label("L_W2")
    I(f"s_cmp_eq_u32 s{sIT}, 0")
    I("s_cbranch_scc0 L_W21")
    role_base()
    tr_addr(T + 47, 32, sT0)
    I("s_waitcnt vmcnt(0)")
    for ks in range(7):
        b = vRB + 4 * ks
        I(f"ds_read_b64_tr_b16 v[{b}:{b+1}], v{T+47} offset:{ks*1024}")
        I(f"ds_read_b64_tr_b16 v[{b+2}:{b+3}], v{T+47} offset:{ks*1024+128}")
    srd(TB, 50, 1280)
    I("s_waitcnt lgkmcnt(0)")
    TS(15)
    a.label("L_W21")
    for i in range(4):
        I(f"v_mov_b32 v{vFD+i}, 0")
    I(f"s_cmp_eq_u32 s{sX}, 0")
    I("s_cbranch_scc0 L_W22")
    I(f"s_sub_u32 s{sT0}, s{sR}, 27")
    I(f"s_lshl_b32 s{sT0}, s{sT0}, 8")
    I(f"s_lshl_b32 s{sT1}, s{sWAVE}, 5")
    I(f"s_add_u32 s{sT0}, s{sT0}, s{sT1}")
    I(f"v_lshrrev_b32 v{T+4}, 4, v{vLANE}")
    I(f"v_lshlrev_b32 v{T+4}, 3, v{T+4}")
    I(f"buffer_load_dwordx2 v[{T+2}:{T+3}], v{T+4}, {TB}, s{sT0} offen")
    poll([f"buffer_load_dwordx2 v[{T}:{T+1}], v{vA3}, {WS}, s{sREG} offen sc1"], [T, T + 1])
    unpack(vFD, vFD + 1, T)
    unpack(vFD + 2, vFD + 3, T + 1)
    for m in ("quad_perm:[1,0,3,2]", "quad_perm:[2,3,0,1]", "row_half_mirror"):
        for i in range(4):
            I(f"v_add_f32_dpp v{vFD+i}, v{vFD+i}, v{vFD+i} {m} row_mask:0xf bank_mask:0xf")
    I(f"v_cvt_pk_bf16_f32 v{T}, v{vFD}, v{vFD+1}")
    I(f"v_cvt_pk_bf16_f32 v{T+1}, v{vFD+2}, v{vFD+3}")
    unpack(vFD, vFD + 1, T)
    unpack(vFD + 2, vFD + 3, T + 1)
    unpack(T + 4, T + 5, T + 2)
    unpack(T + 6, T + 7, T + 3)
    I(f"v_pk_add_f32 v[{vFD}:{vFD+1}], v[{vFD}:{vFD+1}], v[{T+4}:{T+5}]")
    I(f"v_pk_add_f32 v[{vFD+2}:{vFD+3}], v[{vFD+2}:{vFD+3}], v[{T+6}:{T+7}]")
    a.label("L_W22")
    setexec(0x00010001, 0x00010001)
    poll([f"buffer_load_dwordx4 {vr(T+4*ks)}, v{vA0}, {WS}, s{sREG} offen offset:{ks*128} sc1" for ks in range(6)]
         + [f"buffer_load_dwordx4 {vr(T+24)}, v{vA1}, {WS}, s{sREG} offen sc1"], list(range(T, T + 28)),
         ex=(0x00010001, 0x00010001), groups=[range(T + 4 * ks, T + 4 * ks + 4) for ks in range(7)])
    setexec(0xFFFFFFFF, 0xFFFFFFFF)
    TS(23)
    D2 = T + 28
    for ks in range(7):
        I(f"v_mfma_f32_16x16x32_bf16 {vr(D2)}, {vr(vRB+4*ks)}, {vr(T+4*ks)}, {vr(vFD) if ks == 0 else vr(D2)}")
    Y0 = T + 32
    if not y16:
        setexec(0x00010001, 0x00010001)
    I(f"v_cvt_pk_bf16_f32 v{Y0}, v{D2}, v{D2+1}")
    I(f"v_cvt_pk_bf16_f32 v{Y0+1}, v{D2+2}, v{D2+3}")
    I(f"v_min_u32 v{Y0}, 0xfffffffe, v{Y0}")
    I(f"v_min_u32 v{Y0+1}, 0xfffffffe, v{Y0+1}")
    if y16:
        I(f"v_permlane16_swap_b32 v{Y0}, v{Y0+2}")
        I(f"v_permlane16_swap_b32 v{Y0+1}, v{Y0+3}")
        setexec(1, 1)
        I(f"buffer_store_dwordx4 {vr(Y0)}, v{vA2}, {WS}, s{sREG} offen sc1")
    else:
        I(f"buffer_store_dwordx2 v[{Y0}:{Y0+1}], v{vA2}, {WS}, s{sREG} offen sc1")
    setexec(0xFFFFFFFF, 0xFFFFFFFF)
    TS(24)

    a.label("L_next")
    I(f"s_add_u32 s{sIT}, s{sIT}, 1")
    I(f"s_add_u32 s{sREG}, s{sREG}, {RS}")
    I(f"s_cmp_lt_u32 s{sIT}, 2")
    I("s_cbranch_scc1 L_loop")
    I(f"s_cmp_eq_u32 s2, {LEAD_R * 8}")
    I("s_cbranch_scc0 L_fin")
    I(f"s_cmp_lt_u32 s{sWAVE}, 5")
    I("s_cbranch_scc1 L_loop")
    a.label("L_fin")
    if dbgt:
        I("s_memrealtime s[100:101]")
        srd(TA, 54, 256)
        I("s_waitcnt lgkmcnt(0)")
        I("s_not_b32 s99, s78")
        I("v_mov_b32 v1, s99")
        I("v_mov_b32 v2, s78")
        I("v_mov_b32 v3, s100")
        I("v_mov_b32 v4, 8")
        setexec(1, 0)
        I(f"buffer_atomic_umax v1, v4, {TA}, 0 offen sc1")
        I(f"buffer_atomic_umax v2, v4, {TA}, 0 offen offset:4 sc1")
        I(f"buffer_atomic_umax v3, v4, {TA}, 0 offen offset:16 sc1")
        setexec(0xFFFFFFFF, 0xFFFFFFFF)
    if instr:
        TS(30)
        I(f"s_lshl_b32 s{sT0}, s2, 3")
        I(f"s_add_u32 s{sT0}, s{sT0}, s{sWAVE}")
        I(f"s_lshl_b32 s{sT0}, s{sT0}, 9")
        I(f"s_add_u32 s{sT0}, s{sT0}, {DBGOFF}")
        I(f"v_lshlrev_b32 v{T}, 3, v{vLANE}")
        I(f"buffer_store_dwordx2 v[{vTSI}:{vTST}], v{T}, {WS}, s{sT0} offen")
    a.label("L_end")
    I("s_endpgm")
    a.raw('.section .rodata,"a"\n.p2align 6')
    a.raw(f".amdhsa_kernel {KNAME}")
    a.raw("  .amdhsa_next_free_vgpr 256\n  .amdhsa_next_free_sgpr 102\n  .amdhsa_accum_offset 256\n"
          "  .amdhsa_group_segment_fixed_size 0\n  .amdhsa_kernarg_size 104\n  .amdhsa_user_sgpr_count 2\n"
          "  .amdhsa_user_sgpr_kernarg_segment_ptr 1\n  .amdhsa_system_sgpr_workgroup_id_x 1")
    a.raw(".end_amdhsa_kernel")
    open(fn, "w").write(a.text())
    return a.ninstr


if __name__ == "__main__":
    import argparse
    p = argparse.ArgumentParser()
    p.add_argument("-o", default="k.s")
    p.add_argument("--instr", action="store_true")
    p.add_argument("--kv", default="nt")
    p.add_argument("--w", default="")
    p.add_argument("--zr", type=int, default=512)
    p.add_argument("--zx", type=int, default=64)
    p.add_argument("--y16", action="store_true")
    p.add_argument("--w67", type=int, default=0)
    p.add_argument("--w04", type=int, default=0)
    p.add_argument("--nomask", action="store_true")
    p.add_argument("--ts", default=None)
    p.add_argument("--dbgt", action="store_true")
    args = p.parse_args()
    ts = None if args.ts is None else set(int(x) for x in args.ts.split(","))
    n = gen(args.o, instr=args.instr, kvflags=args.kv, wflags=args.w, ZR=args.zr, ZX=args.zx, y16=args.y16,
            W67=args.w67, W04=args.w04, masked=not args.nomask, tsset=ts, dbgt=args.dbgt)
    print("instrs:", n)
```

```python
import sys, struct, math
from asmlib import Asm

KNAME = "interleave_layers__gqa_block_cached__mixer_channel_mlp__decode_kernel"

RS = 0x40000
QOFF, MLOFF, POFF, XOFF, ZOFF, HOFF, YOFF = 0x0, 0x4000, 0x8000, 0x18000, 0x20000, 0x28000, 0x30000
DBGOFF = 0x100000
WS_SIZE = 0x200000
BIG = 0x40000000
PP = 544
L_PB1, L_PB2, L_CS1, L_CS2, L_QB, L_ML, L_FLAG, L_DUM, L_O, L_WQ, L_ROLE = (
    0, 2816, 7168, 7808, 8448, 8704, 8768, 8832, 10240, 18432, 38912)
LDS_TOTAL = 104448
LEAD_R = 0

def f2u(x):
    return struct.unpack("<I", struct.pack("<f", x))[0]

L2E = f2u(1.4426950408889634)
SCALE = f2u(128 ** -0.5)
GC1 = -2.0 * 1.4426950408889634 * math.sqrt(2.0 / math.pi)
GC2 = GC1 * 0.044715

sWAVE, sX, sR, sIT, sREG = 3, 4, 5, 6, 7
K_SRD, V_SRD, WS, TA, TB, OUTS = "s[8:11]", "s[12:15]", "s[16:19]", "s[20:23]", "s[24:27]", "s[28:31]"
sROLE, sPURE, sSPIN = 58, 59, 60
sT0, sT1, sT2, sT3, sSLOT = 61, 62, 63, 72, 73
sF = 64
sXCC, sTB, sNT, sTSI = 74, 75, 76, 77
sL2E, sM = 80, 81
sRB, sRSTEP, sRN = 82, 83, 84
sKV = 85
vLANE = 0
vGO, vXO, vPW, vSW, vQR, vOW, vMLW = 1, 2, 7, 8, 9, 10, 11
vA0, vA1, vA2, vA3 = 12, 13, 14, 15
vRDMA = 17
vTSI, vTST = 18, 19
vSEL = 20
vBQ = 28
vRB = 44
vFD = 72
T = 76
vK, vV = 128, 192
vRR, vQP, vQG, vCSQ, vCS1, vB1, vRP = 1, 2, 3, 4, 5, 6, 8
vXF = 28
vXFA = 16
vCR, vCML, vCP, vCPM = 1, 2, 3, 4


def vr(a, n=4):
    return f"v[{a}:{a+n-1}]"


def gen(fn, instr=False, kvflags="nt", wflags="", spin_limit=400000, tsset=None,
        ZR=512, ZX=64, y16=False, W67=0, W04=0, masked=True, dbgt=False):
    a = Asm()
    I = a.I
    a.raw(f"; @launch grid=(256,1,1) block=(512,1,1) lds={LDS_TOTAL}")
    a.raw('.amdgcn_target "amdgcn-amd-amdhsa--gfx950"')
    a.raw(".text")
    a.raw(f".globl {KNAME}\n.p2align 8\n.type {KNAME},@function\n{KNAME}:")

    def TS(k):
        if not instr or (tsset is not None and k not in tsset and k not in (0, 30)):
            return
        I("s_memrealtime s[78:79]")
        I("s_waitcnt lgkmcnt(0)")
        I(f"v_writelane_b32 v{vTSI}, {k}, s{sTSI}")
        I(f"s_mov_b32 m0, s{sTSI}")
        I(f"v_writelane_b32 v{vTST}, s78, m0")
        I(f"s_add_u32 s{sTSI}, s{sTSI}, 1")

    def srd(dst, ptr, size):
        d = int(dst[2:].split(":")[0])
        I(f"s_mov_b32 s{d}, s{ptr}")
        I(f"s_mov_b32 s{d+1}, s{ptr+1}")
        I(f"s_mov_b32 s{d+2}, {size:#x}")
        I(f"s_mov_b32 s{d+3}, 0x20000")

    def setexec(lo, hi):
        if lo == 0xFFFFFFFF and hi == 0xFFFFFFFF:
            I("s_mov_b64 exec, -1")
        else:
            I(f"s_mov_b32 exec_lo, {lo:#x}")
            I(f"s_mov_b32 exec_hi, {hi:#x}")

    def maxtree(tmp, rs):
        rs = list(rs)
        if len(rs) == 1:
            return rs[0]
        cur = None
        while rs:
            if cur is None:
                if len(rs) >= 3:
                    I(f"v_max3_u32 v{tmp}, v{rs[0]}, v{rs[1]}, v{rs[2]}"); rs = rs[3:]
                else:
                    I(f"v_max_u32 v{tmp}, v{rs[0]}, v{rs[1]}"); rs = rs[2:]
                cur = tmp
            elif len(rs) >= 2:
                I(f"v_max3_u32 v{tmp}, v{tmp}, v{rs[0]}, v{rs[1]}"); rs = rs[2:]
            else:
                I(f"v_max_u32 v{tmp}, v{tmp}, v{rs[0]}"); rs = rs[1:]
        return cur

    def poll(loads, regs, ex=(0xFFFFFFFF, 0xFFFFFFFF), groups=None):
        lab = a.newlab("Lp"); done = a.newlab("Lpd")
        tmp = T + 50
        if not masked:
            a.label(lab)
        for l in loads:
            I(l)
        if masked:
            a.label(lab)
        I(f"s_add_u32 s{sSPIN}, s{sSPIN}, 1")
        I("s_waitcnt vmcnt(0)")
        cur = maxtree(tmp, regs)
        I(f"v_cmp_eq_u32 vcc, -1, v{cur}")
        I(f"s_cbranch_vccz {done}")
        if masked:
            if groups is None or len(loads) == 1:
                I("s_mov_b64 exec, vcc")
                for l in loads:
                    I(l)
            else:
                for j, gr in enumerate(groups):
                    cur = maxtree(tmp + 1 - (j & 1), gr)
                    I(f"v_cmp_eq_u32 s[{86+2*j}:{87+2*j}], -1, v{cur}")
                for j, l in enumerate(loads):
                    I(f"s_mov_b64 exec, s[{86+2*j}:{87+2*j}]")
                    I(l)
            setexec(*ex)
        I(f"s_cmp_lt_u32 s{sSPIN}, {spin_limit}")
        I(f"s_cbranch_scc1 {lab}")
        if masked:
            I("s_waitcnt vmcnt(0)")
        a.label(done)

    def lstore(ins):
        l1 = a.newlab("Ls"); l2 = a.newlab("Lsd")
        I(f"s_cmp_eq_u32 s{sPURE}, 0")
        I(f"s_cbranch_scc1 {l1}")
        for x in ins: I(x)
        I(f"s_branch {l2}")
        a.label(l1)
        for x in ins: I(x + " sc1")
        a.label(l2)

    def unpack(lo, hi, src):
        I(f"v_lshlrev_b32 v{lo}, 16, v{src}")
        I(f"v_and_b32 v{hi}, 0xffff0000, v{src}")

    XA = T + 32
    ONES = T + 28

    I("s_cmp_ge_u32 s2, 256")
    I("s_cbranch_scc1 L_end")
    if dbgt:
        I("s_memrealtime s[78:79]")
    I("s_load_dwordx16 s[32:47], s[0:1], 0")
    I("s_load_dwordx8 s[48:55], s[0:1], 64")
    I("s_load_dwordx2 s[56:57], s[0:1], 96")
    I("v_lshrrev_b32 v1, 6, v0")
    I(f"v_and_b32 v{vLANE}, 63, v0")
    I(f"v_readfirstlane_b32 s{sWAVE}, v1")
    I(f"s_and_b32 s{sX}, s2, 7")
    I(f"s_lshr_b32 s{sR}, s2, 3")
    I(f"s_mov_b32 s{sIT}, 0")
    I(f"s_mov_b32 s{sREG}, 0")
    I(f"s_mov_b32 s{sSPIN}, 0")
    I(f"s_mov_b32 s{sPURE}, 0")
    I(f"s_mov_b32 s{sTSI}, 0")
    I(f"s_mov_b32 s{sL2E}, {L2E:#x}")
    I(f"s_getreg_b32 s{sXCC}, hwreg(HW_REG_XCC_ID)")
    I(f"s_and_b32 s{sXCC}, s{sXCC}, 15")
    I(f"s_mul_i32 s{sTB}, s{sX}, 7")
    I(f"s_cmp_eq_u32 s{sX}, 7")
    I(f"s_cselect_b32 s{sT0}, 1, 0")
    I(f"s_sub_u32 s{sTB}, s{sTB}, s{sT0}")
    I(f"s_cmp_lt_u32 s{sX}, 6")
    I(f"s_cselect_b32 s{sNT}, 7, 6")
    I(f"s_mov_b32 s{sROLE}, 2")
    I(f"s_cmp_lt_u32 s{sR}, 27")
    I(f"s_cselect_b32 s{sROLE}, 3, s{sROLE}")
    I(f"s_add_u32 s{sT0}, s{sNT}, 20")
    I(f"s_cmp_lt_u32 s{sR}, s{sT0}")
    I(f"s_cselect_b32 s{sROLE}, 1, s{sROLE}")
    I(f"s_cmp_lt_u32 s{sR}, 20")
    I(f"s_cselect_b32 s{sROLE}, 0, s{sROLE}")
    g, n, q4, c4, t0, t1, t2, t3 = T, T+1, T+2, T+3, T+4, T+5, T+6, T+7
    I(f"v_lshrrev_b32 v{g}, 4, v{vLANE}")
    I(f"v_and_b32 v{n}, 15, v{vLANE}")
    I(f"v_bfe_u32 v{q4}, v{vLANE}, 2, 2")
    I(f"v_and_b32 v{c4}, 3, v{vLANE}")
    for i in range(1, 18):
        I(f"v_mov_b32 v{i}, {BIG:#x}")
    if instr:
        I(f"v_mov_b32 v{vTSI}, -1")
        I(f"v_mov_b32 v{vTST}, 0")
    I(f"s_lshl_b32 s{sSLOT}, s{sX}, 5")
    I(f"s_add_u32 s{sSLOT}, s{sSLOT}, s{sR}")
    I(f"s_lshl_b32 s{sKV}, s{sSLOT}, 17")
    I(f"s_lshl_b32 s{sT0}, s{sWAVE}, 14")
    I(f"s_add_u32 s{sKV}, s{sKV}, s{sT0}")
    I("s_waitcnt lgkmcnt(0)")
    srd(K_SRD, 34, 32 << 20)
    srd(V_SRD, 36, 32 << 20)
    srd(WS, 56, WS_SIZE)
    srd(OUTS, 52, 1280)
    TS(0)

    def k_addr(k0, k1, k2):
        I(f"v_bfe_u32 v{k0}, v{vLANE}, 2, 2")
        I(f"v_lshlrev_b32 v{k0}, 8, v{k0}")
        I(f"v_lshrrev_b32 v{k1}, 4, v{vLANE}")
        I(f"v_lshl_add_u32 v{k0}, v{k1}, 6, v{k0}")
        I(f"v_and_b32 v{k2}, 3, v{vLANE}")
        I(f"v_lshl_add_u32 v{k0}, v{k2}, 4, v{k0}")

    def kv_issue(W=0):
        k0, k1, k2, k3 = T + 40, T + 41, T + 42, T + 43
        k_addr(k0, k1, k2)
        I(f"v_bfe_u32 v{k3}, v{vLANE}, 3, 1")
        I(f"v_lshl_add_u32 v{k3}, v{k3}, 3, v{k1}")
        I(f"v_lshlrev_b32 v{k3}, 8, v{k3}")
        I(f"v_and_b32 v{k2}, 7, v{vLANE}")
        I(f"v_lshl_add_u32 v{k3}, v{k2}, 4, v{k3}")
        for i in range(32):
            if i % 4 == 0:
                I(f"s_add_u32 s{sT0}, s{sKV}, {((i%16)//4)*4096}")
            if W and i >= W:
                I(f"s_waitcnt vmcnt({W-1})")
            if i < 16:
                I(f"buffer_load_dwordx4 {vr(vK+4*i)}, v{k0}, {K_SRD}, s{sT0} offen offset:{(i%4)*1024} {kvflags}")
            else:
                j = i - 16
                u, hf = (j >> 1) & 1, j & 1
                I(f"buffer_load_dwordx4 {vr(vV+4*j)}, v{k3}, {V_SRD}, s{sT0} offen offset:{u*1024+hf*128} {kvflags}")

    def role_dma():
        I(f"s_lshl_b32 s{sT1}, s{sWAVE}, 13")
        I(f"s_add_u32 s{sT1}, s{sT1}, {L_ROLE}")
        I(f"s_mov_b32 s{sT0}, s{sRB}")
        for e in range(8):
            if e % 4 == 0:
                I(f"s_mov_b32 m0, s{sT1}")
                if e == 0:
                    I(f"s_add_u32 s{sT1}, s{sT1}, 4096")
            I(f"s_cmp_gt_u32 s{sRN}, {e}")
            I(f"s_cselect_b32 s{sT2}, s{sT0}, {BIG:#x}")
            I(f"buffer_load_dwordx4 v{vRDMA}, {TB}, s{sT2} offen offset:{(e%4)*1024} lds {wflags}")
            if e < 7:
                I(f"s_add_u32 s{sT0}, s{sT0}, s{sRSTEP}")
                if e % 4 == 3:
                    I(f"s_add_u32 s{sT0}, s{sT0}, 3072")
                else:
                    I(f"s_sub_u32 s{sT0}, s{sT0}, 1024")

    I(f"s_cmp_ge_u32 s{sWAVE}, 5")
    I("s_cbranch_scc1 L_init567")
    srd(TA, 38, 640 * 8192)
    I(f"v_lshrrev_b32 v{t2}, 1, v{vLANE}")
    I(f"v_lshlrev_b32 v{t2}, 13, v{t2}")
    I(f"v_and_b32 v{t3}, 1, v{vLANE}")
    I(f"v_lshl_add_u32 v{t2}, v{t3}, 4, v{t2}")
    I(f"s_lshl_b32 s{sT0}, s{sWAVE}, 20")
    I(f"s_lshl_b32 s{sT1}, s{sSLOT}, 5")
    I(f"s_add_u32 s{sT0}, s{sT0}, s{sT1}")
    I(f"s_lshl_b32 s{sT1}, s{sWAVE}, 12")
    I(f"s_add_u32 s{sT1}, s{sT1}, {L_WQ}")
    I(f"s_mov_b32 m0, s{sT1}")
    for e in range(4):
        I(f"buffer_load_dwordx4 v{t2}, {TA}, s{sT0} offen offset:{e*1024} lds {wflags}")
        if e < 3:
            I(f"s_add_u32 s{sT0}, s{sT0}, {32*8192 - 1024}")
    srd(TB, 32, 1280)
    I(f"v_lshlrev_b32 v{vXO}, 6, v{q4}")
    I(f"v_lshl_add_u32 v{vXO}, v{g}, 4, v{vXO}")
    I(f"s_lshl_b32 s{sT0}, s{sWAVE}, 8")
    I(f"v_add_u32 v{vXO}, s{sT0}, v{vXO}")
    I(f"buffer_load_dwordx4 {vr(XA)}, v{vXO}, {TB}, 0 offen")
    I(f"v_bfe_u32 v{t0}, v{vLANE}, 3, 1")
    I(f"v_and_b32 v{t1}, 7, v{vLANE}")
    I(f"s_mul_i32 s{sT0}, s{sWAVE}, {4*ZR}")
    I(f"v_mul_u32_u24 v{vGO}, {ZR}, v{t0}")
    I(f"v_mul_u32_u24 v{t1}, {ZX}, v{t1}")
    I(f"v_add3_u32 v{vGO}, v{vGO}, v{t1}, s{sT0}")
    I(f"v_lshl_add_u32 v{vGO}, v{g}, 4, v{vGO}")
    I(f"s_mul_i32 s{sT0}, s{sWAVE}, {PP}")
    I(f"s_add_u32 s{sT0}, s{sT0}, {L_PB1 + 512}")
    I(f"v_lshlrev_b32 v{t2}, 2, v{g}")
    I(f"v_add_u32 v{t2}, s{sT0}, v{t2}")
    I(f"v_lshlrev_b32 v{t3}, 2, v{vLANE}")
    I(f"v_add_u32 v{t3}, {L_DUM}, v{t3}")
    I(f"v_cmp_eq_u32 vcc, v{q4}, v{g}")
    I(f"v_cndmask_b32 v{vSW}, v{t3}, v{t2}, vcc")
    I("s_branch L_initc")

    a.label("L_init567")
    I(f"s_cmp_eq_u32 s{sWAVE}, 6")
    I("s_cbranch_scc1 L_initc")
    I(f"s_cmp_eq_u32 s{sWAVE}, 7")
    I("s_cbranch_scc1 L_init7")
    I(f"s_mul_i32 s{sT0}, s{sR}, {ZR}")
    I(f"s_mul_i32 s{sT1}, s{sX}, {ZX}")
    I(f"s_add_u32 s{sT0}, s{sT0}, s{sT1}")
    I(f"s_add_u32 s{sRB}, s{sT0}, {ZOFF}")
    I(f"s_mov_b32 s{sRN}, 4")
    I(f"s_lshl_b32 s{sT0}, s{sX}, 3")
    I(f"s_add_u32 s{sT0}, s{sT0}, s{sR}")
    I(f"s_sub_u32 s{sT0}, s{sT0}, 20")
    I(f"s_lshl_b32 s{sT0}, s{sT0}, 7")
    I(f"s_add_u32 s{sT0}, s{sT0}, {HOFF}")
    I(f"s_cmp_eq_u32 s{sROLE}, 1")
    I(f"s_cselect_b32 s{sRB}, s{sT0}, s{sRB}")
    I(f"s_sub_u32 s{sT0}, s{sR}, 27")
    I(f"s_mul_i32 s{sT0}, s{sT0}, {4*ZR}")
    I(f"s_add_u32 s{sT0}, s{sT0}, s{sT1}")
    I(f"s_add_u32 s{sT0}, s{sT0}, {YOFF}")
    I(f"s_cmp_eq_u32 s{sROLE}, 2")
    I(f"s_cselect_b32 s{sRB}, s{sT0}, s{sRB}")
    I(f"s_cselect_b32 s{sRN}, 16, s{sRN}")
    I(f"s_cmp_eq_u32 s{sROLE}, 3")
    I(f"s_cselect_b32 s{sRN}, 0, s{sRN}")
    I(f"v_subrev_u32 v{t0}, 24, v{vLANE}")
    I(f"v_lshrrev_b32 v{t1}, 2, v{t0}")
    I(f"v_and_b32 v{t1}, 7, v{t1}")
    I(f"v_mul_u32_u24 v{t1}, {ZR}, v{t1}")
    I(f"v_lshl_add_u32 v{t1}, v{c4}, 4, v{t1}")
    I(f"v_add_u32 v{t1}, s{sRB}, v{t1}")
    I(f"v_mov_b32 v{t2}, {BIG:#x}")
    I(f"v_cmp_gt_u32 vcc, s{sRN}, v{t0}")
    I(f"v_cndmask_b32 v{t1}, v{t2}, v{t1}, vcc")
    I(f"v_lshlrev_b32 v{t0}, 4, v{vLANE}")
    I(f"s_lshl_b32 s{sT0}, s{sSLOT}, 8")
    I(f"s_add_u32 s{sT0}, s{sT0}, {POFF - 128}")
    I(f"v_add_u32 v{t3}, s{sT0}, v{t0}")
    I(f"v_cmp_gt_u32 vcc, 24, v{vLANE}")
    I(f"v_cndmask_b32 v{t1}, v{t1}, v{t3}, vcc")
    I(f"v_cmp_gt_u32 vcc, 8, v{vLANE}")
    I(f"v_cndmask_b32 v{t1}, v{t1}, v{t2}, vcc")
    I(f"s_lshl_b32 s{sT0}, s{sSLOT}, 5")
    I(f"v_add_u32 v{t3}, s{sT0}, v{t0}")
    I(f"v_cmp_gt_u32 vcc, 2, v{vLANE}")
    I(f"v_cndmask_b32 v{t1}, v{t1}, v{t3}, vcc")
    I(f"s_lshr_b32 s{sT0}, s{sSLOT}, 3")
    I(f"s_lshl_b32 s{sT0}, s{sT0}, 7")
    I(f"s_and_b32 s{sT2}, s{sSLOT}, 7")
    I(f"s_lshl_b32 s{sT2}, s{sT2}, 3")
    I(f"s_add_u32 s{sT0}, s{sT0}, s{sT2}")
    I(f"s_add_u32 s{sT0}, s{sT0}, {MLOFF}")
    I(f"v_mul_u32_u24 v{t3}, {RS}, v{vLANE}")
    I(f"v_add_u32 v{t3}, s{sT0}, v{t3}")
    I(f"v_cndmask_b32 v{t3}, v{t2}, v{t3}, vcc")
    cl = T + 8
    for i in range(4):
        I(f"v_mov_b32 v{cl+i}, -1")
    I(f"s_mov_b32 s{sT1}, {RS}")
    I(f"buffer_store_dwordx4 {vr(cl)}, v{t1}, {WS}, 0 offen sc1")
    I(f"buffer_store_dwordx4 {vr(cl)}, v{t1}, {WS}, s{sT1} offen sc1")
    I(f"buffer_store_dwordx2 v[{cl}:{cl+1}], v{t3}, {WS}, 0 offen sc1")
    I(f"s_lshl_b32 s{sT0}, s{sX}, 11")
    I(f"s_add_u32 s{sT0}, s{sT0}, {XOFF}")
    I(f"s_cmp_eq_u32 s{sR}, {LEAD_R}")
    I(f"s_cselect_b32 s{sT0}, s{sT0}, {BIG:#x}")
    I(f"buffer_store_dwordx4 {vr(cl)}, v{t0}, {WS}, s{sT0} offen sc1")
    I(f"buffer_store_dwordx4 {vr(cl)}, v{t0}, {WS}, s{sT0} offen offset:1024 sc1")
    I(f"v_lshlrev_b32 v{vRR}, 4, v{vLANE}")
    I(f"v_lshrrev_b32 v{t0}, 1, v{vLANE}")
    I(f"s_lshl_b32 s{sT0}, s{sSLOT}, 5")
    I(f"v_lshlrev_b32 v{vQP}, 2, v{t0}")
    I(f"v_add_u32 v{vQP}, s{sT0}, v{vQP}")
    I(f"s_and_b32 s{sT0}, s{sT0}, {~255 & 0xffffffff:#x}")
    I(f"v_add_u32 v{vQG}, s{sT0}, v{vRR}")
    I(f"v_lshrrev_b32 v{t1}, 3, v{vLANE}")
    I(f"v_lshlrev_b32 v{t1}, 4, v{t1}")
    I(f"v_lshlrev_b32 v{t2}, 2, v{t0}")
    I(f"s_cmp_eq_u32 s{sROLE}, 1")
    I(f"s_cselect_b64 vcc, -1, 0")
    I(f"v_cndmask_b32 v{t1}, v{t1}, v{t2}, vcc")
    I(f"v_add_u32 v{vRP}, s{sRB}, v{t1}")
    I(f"v_and_b32 v{t1}, 31, v{vLANE}")
    I(f"v_lshlrev_b32 v{t1}, 1, v{t1}")
    srd(TA, 46, 1728 * 2)
    srd(TB, 32, 1280)
    I(f"s_add_u32 s{sT0}, s{sTB}, s{sR}")
    I(f"s_sub_u32 s{sT0}, s{sT0}, 20")
    I(f"s_lshl_b32 s{sT0}, s{sT0}, 6")
    I(f"s_cmp_eq_u32 s{sROLE}, 1")
    I(f"s_cselect_b32 s{sT0}, s{sT0}, {BIG:#x}")
    I(f"s_or_b32 s{sT2}, s{sROLE}, s{sX}")
    I(f"s_lshl_b32 s{sT1}, s{sR}, 6")
    I(f"s_cmp_eq_u32 s{sT2}, 0")
    I(f"s_cselect_b32 s{sT1}, s{sT1}, {BIG:#x}")
    I(f"buffer_load_ushort v{vB1}, v{t1}, {TA}, s{sT0} offen")
    I(f"buffer_load_ushort v{vXF}, v{t1}, {TB}, s{sT1} offen")
    I(f"s_lshl_b32 s{sT1}, s{sR}, 6")
    I(f"s_add_u32 s{sT1}, s{sT1}, {XOFF}")
    I(f"s_cmp_eq_u32 s{sT2}, 0")
    I(f"s_cselect_b32 s{sT1}, s{sT1}, {BIG:#x}")
    I(f"v_add_u32 v{vXFA}, s{sT1}, v{t1}")
    I(f"s_mul_i32 s{sT0}, s{sXCC}, 6")
    I(f"s_lshl_b64 s[{sF}:{sF+1}], 1, s{sT0}")
    I(f"s_cmp_lt_u32 s{sXCC}, 8")
    I(f"s_cselect_b32 s{sF}, s{sF}, 0")
    I(f"s_cselect_b32 s{sF+1}, s{sF+1}, 0")
    I(f"s_or_b32 s{sF+1}, s{sF+1}, 0x10000")
    srd(TA, 54, 256)
    I(f"v_mov_b32 v{t2}, s{sF}")
    I(f"v_mov_b32 v{t3}, s{sF+1}")
    I(f"s_lshl_b32 s{sT1}, s{sX}, 4")
    I(f"v_mov_b32 v{t0}, s{sT1}")
    I("s_waitcnt vmcnt(0)")
    TS(31)
    setexec(1, 0)
    I(f"buffer_atomic_add_x2 v[{t2}:{t3}], v{t0}, {TA}, 0 offen sc0 sc1")
    I("s_waitcnt vmcnt(0)")
    I(f"v_readfirstlane_b32 s{sF+2}, v{t2}")
    I(f"v_readfirstlane_b32 s{sF+3}, v{t3}")
    I(f"s_lshr_b32 s{sT1}, s{sF+3}, 16")
    I(f"s_cmp_eq_u32 s{sT1}, 31")
    I("s_cbranch_scc0 L_notlast")
    I(f"s_lshr_b64 s[{sF+2}:{sF+3}], s[{sF+2}:{sF+3}], s{sT0}")
    I(f"s_and_b32 s{sF+2}, s{sF+2}, 63")
    I(f"s_cmp_eq_u32 s{sF+2}, 31")
    I(f"s_cselect_b32 s{sT1}, 1, 0")
    I(f"s_cmp_lt_u32 s{sXCC}, 8")
    I(f"s_cselect_b32 s{sT1}, s{sT1}, 0")
    I(f"s_lshl_b32 s{sT1}, s{sT1}, s{sX}")
    I(f"s_or_b32 s{sT1}, s{sT1}, 0x100")
    I(f"v_mov_b32 v{t2}, s{sT1}")
    I(f"v_mov_b32 v{t0}, 128")
    I(f"buffer_atomic_add v{t2}, v{t0}, {TA}, 0 offen sc1")
    a.label("L_notlast")
    setexec(0xFFFFFFFF, 0xFFFFFFFF)
    I(f"v_lshlrev_b32 v{vB1}, 16, v{vB1}")
    I(f"v_lshlrev_b32 v{vXF}, 16, v{vXF}")
    I("s_branch L_initc")

    a.label("L_init7")
    I(f"v_lshlrev_b32 v{vCR}, 3, v{vLANE}")
    I(f"v_add_u32 v{vCR}, {L_O}, v{vCR}")
    I(f"v_and_b32 v{t0}, 7, v{vLANE}")
    I(f"v_lshlrev_b32 v{vCML}, 3, v{t0}")
    I(f"v_add_u32 v{vCML}, {L_ML}, v{vCML}")
    I(f"s_lshl_b32 s{sT0}, s{sSLOT}, 8")
    I(f"s_add_u32 s{sT0}, s{sT0}, {POFF}")
    I(f"v_lshlrev_b32 v{vCP}, 2, v{vLANE}")
    I(f"v_add_u32 v{vCP}, s{sT0}, v{vCP}")
    I(f"s_lshr_b32 s{sT0}, s{sSLOT}, 3")
    I(f"s_lshl_b32 s{sT0}, s{sT0}, 7")
    I(f"s_and_b32 s{sT2}, s{sSLOT}, 7")
    I(f"s_lshl_b32 s{sT2}, s{sT2}, 3")
    I(f"s_add_u32 s{sT0}, s{sT0}, s{sT2}")
    I(f"s_add_u32 s{sT0}, s{sT0}, {MLOFF}")
    I(f"v_mov_b32 v{vCPM}, s{sT0}")

    a.label("L_initc")
    I(f"s_cmp_lt_u32 s{sWAVE}, 6")
    I("s_cbranch_scc1 L_kvskip")
    kv_issue(W67)
    a.label("L_kvskip")
    TS(1)
    I(f"s_mov_b32 s{sRN}, 0")
    I(f"s_mov_b32 s{sRB}, 0")
    I(f"s_mov_b32 s{sRSTEP}, 0")
    srd(TB, 40, 4096 * 1280)
    I(f"v_lshrrev_b32 v{t0}, 2, v{vLANE}")
    I(f"v_lshlrev_b32 v{t1}, 4, v{c4}")
    I(f"s_cmp_eq_u32 s{sROLE}, 0")
    I("s_cbranch_scc0 L_rp1")
    I(f"s_lshl_b32 s{sT0}, s{sX}, 3")
    I(f"s_add_u32 s{sT0}, s{sT0}, s{sWAVE}")
    I(f"s_mul_i32 s{sT0}, s{sT0}, {64*1280}")
    I(f"s_lshl_b32 s{sT1}, s{sR}, 6")
    I(f"s_add_u32 s{sRB}, s{sT0}, s{sT1}")
    I(f"s_mov_b32 s{sRSTEP}, {16*1280}")
    I(f"s_mov_b32 s{sRN}, 4")
    I(f"v_mul_u32_u24 v{vRDMA}, 1280, v{t0}")
    I(f"v_add_u32 v{vRDMA}, v{vRDMA}, v{t1}")
    I(f"s_lshr_b32 s{sT0}, s{sWAVE}, 1")
    I(f"s_lshl_b32 s{sT1}, s{sX}, 2")
    I(f"s_add_u32 s{sT0}, s{sT0}, s{sT1}")
    I(f"s_lshl_b32 s{sT1}, s{sT0}, 11")
    I(f"s_and_b32 s{sT2}, s{sWAVE}, 1")
    I(f"s_lshl_b32 s{sT2}, s{sT2}, 7")
    I(f"s_add_u32 s{sT1}, s{sT1}, s{sT2}")
    I(f"s_add_u32 s{sT1}, s{sT1}, {POFF}")
    I(f"v_and_b32 v{t2}, 7, v{vLANE}")
    I(f"v_lshlrev_b32 v{t2}, 8, v{t2}")
    I(f"v_lshl_add_u32 v{t2}, v{g}, 4, v{t2}")
    I(f"v_bfe_u32 v{t3}, v{vLANE}, 3, 1")
    I(f"v_lshl_add_u32 v{t2}, v{t3}, 6, v{t2}")
    I(f"v_add_u32 v{vA0}, s{sT1}, v{t2}")
    I(f"v_xor_b32 v{t2}, v{g}, v{q4}")
    I(f"v_and_b32 v{t2}, 1, v{t2}")
    I(f"v_lshl_add_u32 v{t2}, v{t2}, 2, v{c4}")
    I(f"v_lshlrev_b32 v{t2}, 3, v{t2}")
    I(f"s_lshl_b32 s{sT0}, s{sT0}, 7")
    I(f"s_add_u32 s{sT0}, s{sT0}, {MLOFF}")
    I(f"v_add_u32 v{vA2}, s{sT0}, v{t2}")
    I("s_branch L_rpd")
    a.label("L_rp1")
    I(f"s_cmp_eq_u32 s{sROLE}, 1")
    I("s_cbranch_scc0 L_rp2")
    srd(TB, 44, 640 * 3456)
    I(f"s_mul_i32 s{sT0}, s{sWAVE}, {128*3456}")
    I(f"s_add_u32 s{sT1}, s{sTB}, s{sR}")
    I(f"s_sub_u32 s{sT1}, s{sT1}, 20")
    I(f"s_lshl_b32 s{sT1}, s{sT1}, 6")
    I(f"s_add_u32 s{sRB}, s{sT0}, s{sT1}")
    I(f"s_mov_b32 s{sRSTEP}, {16*3456}")
    I(f"s_cmp_lt_u32 s{sWAVE}, 5")
    I(f"s_cselect_b32 s{sRN}, 8, 0")
    I(f"v_mul_u32_u24 v{vRDMA}, 3456, v{t0}")
    I(f"v_add_u32 v{vRDMA}, v{vRDMA}, v{t1}")
    I("s_branch L_rpd")
    a.label("L_rp2")
    I(f"v_mov_b32 v{vRDMA}, 0")
    I(f"s_cmp_eq_u32 s{sROLE}, 2")
    I("s_cbranch_scc0 L_rpd")
    srd(TB, 48, 1728 * 1280)
    I(f"s_mul_i32 s{sT0}, s{sTB}, {32*1280}")
    I(f"s_sub_u32 s{sT2}, s{sR}, 27")
    I(f"s_lshl_b32 s{sT1}, s{sT2}, 8")
    I(f"s_add_u32 s{sT0}, s{sT0}, s{sT1}")
    I(f"s_lshl_b32 s{sT1}, s{sWAVE}, 5")
    I(f"s_add_u32 s{sRB}, s{sT0}, s{sT1}")
    I(f"s_mov_b32 s{sRSTEP}, {32*1280}")
    I(f"s_mov_b32 s{sRN}, 7")
    I(f"v_lshrrev_b32 v{t0}, 1, v{vLANE}")
    I(f"v_mul_u32_u24 v{vRDMA}, 1280, v{t0}")
    I(f"v_and_b32 v{t1}, 1, v{vLANE}")
    I(f"v_lshl_add_u32 v{vRDMA}, v{t1}, 4, v{vRDMA}")
    I(f"s_lshl_b32 s{sT0}, s{sX}, 10")
    I(f"s_add_u32 s{sT0}, s{sT0}, {HOFF}")
    I(f"v_lshlrev_b32 v{t0}, 4, v{g}")
    I(f"v_add_u32 v{vA0}, s{sT0}, v{t0}")
    I(f"s_mov_b32 s{sT1}, 768")
    I(f"s_cmp_eq_u32 s{sNT}, 7")
    I(f"s_cselect_b32 s{sT1}, s{sT1}, {BIG:#x}")
    I(f"v_add_u32 v{vA1}, s{sT1}, v{vA0}")
    I(f"s_lshl_b32 s{sT0}, s{sT2}, 2")
    I(f"s_lshr_b32 s{sT1}, s{sWAVE}, 1")
    I(f"s_add_u32 s{sT0}, s{sT0}, s{sT1}")
    I(f"s_mul_i32 s{sT0}, s{sT0}, {ZR}")
    I(f"s_and_b32 s{sT1}, s{sWAVE}, 1")
    I(f"s_lshl_b32 s{sT1}, s{sT1}, 5")
    I(f"s_add_u32 s{sT0}, s{sT0}, s{sT1}")
    I(f"v_lshlrev_b32 v{t0}, 3, v{g}")
    I(f"v_add_u32 v{t0}, s{sT0}, v{t0}")
    I(f"s_mul_i32 s{sT1}, s{sX}, {ZX}")
    I(f"s_add_u32 s{sT1}, s{sT1}, {YOFF}")
    I(f"v_add_u32 v{vA2}, s{sT1}, v{t0}")
    I(f"v_mul_u32_u24 v{t1}, {ZX}, v{n}")
    I(f"v_add_u32 v{t1}, v{t1}, v{t0}")
    I(f"v_add_u32 v{t1}, {ZOFF}, v{t1}")
    I(f"s_cmp_eq_u32 s{sX}, 0")
    I(f"s_cselect_b32 s{sT0}, 8, 0")
    I(f"v_mov_b32 v{t2}, {BIG:#x}")
    I(f"v_cmp_gt_u32 vcc, s{sT0}, v{n}")
    I(f"v_cndmask_b32 v{vA3}, v{t2}, v{t1}, vcc")
    a.label("L_rpd")

    I(f"s_mul_i32 s{sT0}, s{sWAVE}, {PP}")
    I(f"v_lshlrev_b32 v{vPW}, 4, v{n}")
    I(f"v_lshl_add_u32 v{vPW}, v{g}, 2, v{vPW}")
    I(f"v_add_u32 v{vPW}, s{sT0}, v{vPW}")
    I(f"v_lshl_add_u32 v{vQR}, v{g}, 2, v{c4}")
    I(f"v_lshlrev_b32 v{vQR}, 4, v{vQR}")
    I(f"v_add_u32 v{vQR}, {L_QB}, v{vQR}")
    I(f"s_lshl_b32 s{sT0}, s{sWAVE}, 10")
    I(f"s_add_u32 s{sT0}, s{sT0}, {L_O}")
    I(f"v_bfe_u32 v{t0}, v{vLANE}, 3, 1")
    I(f"v_lshlrev_b32 v{vOW}, 9, v{t0}")
    I(f"v_and_b32 v{t0}, 7, v{vLANE}")
    I(f"v_lshl_add_u32 v{vOW}, v{t0}, 5, v{vOW}")
    I(f"v_and_b32 v{t1}, 1, v{g}")
    I(f"v_lshl_add_u32 v{vOW}, v{t1}, 4, v{vOW}")
    I(f"v_add_u32 v{vOW}, s{sT0}, v{vOW}")
    I(f"s_lshl_b32 s{sT0}, s{sWAVE}, 3")
    I(f"s_add_u32 s{sT0}, s{sT0}, {L_ML}")
    I(f"v_lshlrev_b32 v{vMLW}, 3, v{vLANE}")
    I(f"v_add_u32 v{vMLW}, {L_DUM}, v{vMLW}")
    I(f"v_writelane_b32 v{vMLW}, s{sT0}, 63")
    for u in range(2):
        for r in range(4):
            sb = 0x0100 if u == (r >> 1) else 0x0302
            d = vSEL + u * 4 + r
            I(f"v_mov_b32 v{d}, 0x0c0c0c0c")
            I(f"v_mov_b32 v{t1}, {0x0c0c0000 | sb:#x}")
            I(f"v_mov_b32 v{t2}, {(sb << 16) | 0x0c0c:#x}")
            I(f"v_cmp_eq_u32 vcc, {2*r}, v{t0}")
            I(f"v_cndmask_b32 v{d}, v{d}, v{t1}, vcc")
            I(f"v_cmp_eq_u32 vcc, {2*r+1}, v{t0}")
            I(f"v_cndmask_b32 v{d}, v{d}, v{t2}, vcc")

    def tr_addr(dst, pitch, base_s):
        x0, x1 = T + 48, T + 49
        I(f"v_lshrrev_b32 v{x0}, 4, v{vLANE}")
        I(f"v_bfe_u32 v{x1}, v{vLANE}, 2, 2")
        I(f"v_lshl_add_u32 v{x0}, v{x0}, 3, v{x1}")
        I(f"v_lshlrev_b32 v{x0}, {pitch.bit_length()-1}, v{x0}")
        I(f"v_and_b32 v{x1}, 3, v{vLANE}")
        I(f"v_lshl_add_u32 v{x0}, v{x1}, 3, v{x0}")
        I(f"v_add_u32 v{dst}, s{base_s}, v{x0}")

    def ones():
        for i in range(4):
            I(f"v_mov_b32 v{ONES+i}, 0x3f803f80")

    I(f"s_cmp_ge_u32 s{sWAVE}, 5")
    I("s_cbranch_scc1 L_B1")
    I(f"s_lshl_b32 s{sT0}, s{sWAVE}, 12")
    I(f"s_add_u32 s{sT0}, s{sT0}, {L_WQ}")
    tr_addr(t0, 32, sT0)
    ones()
    I(f"s_lshl_b32 s{sT0}, s{sWAVE}, 7")
    I(f"v_lshlrev_b32 v{t1}, 2, v{n}")
    I(f"v_add_u32 v{t1}, s{sT0}, v{t1}")
    I(f"s_waitcnt vmcnt(0)")
    for ks in range(4):
        I(f"ds_read_b64_tr_b16 v[{vBQ+4*ks}:{vBQ+4*ks+1}], v{t0} offset:{ks*1024}")
        I(f"ds_read_b64_tr_b16 v[{vBQ+4*ks+2}:{vBQ+4*ks+3}], v{t0} offset:{ks*1024+128}")
    I("s_waitcnt lgkmcnt(0)")
    D0 = T + 8
    for ks in range(4):
        I(f"v_mfma_f32_16x16x32_bf16 {vr(D0)}, {vr(ONES)}, {vr(vBQ+4*ks)}, {'0' if ks == 0 else vr(D0)}")
    I(f"ds_write_b32 v{t1}, v{D0} offset:{L_CS1}")
    TS(2)
    I("s_branch L_haveX")

    def gemv(ntile, Bbase, bidx):
        S1, S2 = T + 16, T + 20
        A0_, A1_ = vr(XA), vr(XA + 4)
        I(f"v_mfma_f32_16x16x32_bf16 {vr(S2)}, {A0_}, {A0_}, 0")
        I(f"v_mfma_f32_16x16x32_bf16 {vr(S2)}, {A1_}, {A1_}, {vr(S2)}")
        I(f"v_mfma_f32_16x16x32_bf16 {vr(S1)}, {A0_}, {vr(ONES)}, 0")
        I(f"v_mfma_f32_16x16x32_bf16 {vr(S1)}, {A1_}, {vr(ONES)}, {vr(S1)}")
        post = [
            f"v_pk_add_f32 v[{S2}:{S2+1}], v[{S2}:{S2+1}], v[{S2+2}:{S2+3}]",
            f"v_add_f32 v{S2}, v{S2}, v{S2+1}",
            f"v_add_f32_dpp v{S2}, v{S2}, v{S2} quad_perm:[1,0,3,2] row_mask:0xf bank_mask:0xf",
            f"v_pk_add_f32 v[{S1}:{S1+1}], v[{S1}:{S1+1}], v[{S1+2}:{S1+3}]",
            f"v_add_f32_dpp v{S2}, v{S2}, v{S2} quad_perm:[2,3,0,1] row_mask:0xf bank_mask:0xf",
            f"v_add_f32 v{S1}, v{S1}, v{S1+1}",
            f"v_add_f32_dpp v{S2}, v{S2}, v{S2} row_half_mirror row_mask:0xf bank_mask:0xf",
            f"ds_write2_b32 v{vSW}, v{S1}, v{S2} offset0:0 offset1:4",
        ]
        def dpost(t):
            D = T + 8 * t
            return [f"v_pk_add_f32 v[{D}:{D+1}], v[{D}:{D+1}], v[{D+2}:{D+3}]",
                    f"v_pk_add_f32 v[{D+4}:{D+5}], v[{D+4}:{D+5}], v[{D+6}:{D+7}]",
                    f"v_add_f32 v{D}, v{D}, v{D+1}",
                    f"v_add_f32_dpp v{D}, v{D+4}, v{D+5} quad_perm:[0,1,2,3] row_mask:0xc bank_mask:0xf",
                    f"ds_write_b32 v{vPW}, v{D} offset:{L_PB1 + t*256}"]
        for t in range(ntile):
            post += dpost(t)
        k = 0
        for t in range(ntile):
            for j in range(2):
                D = T + 8 * t + 4 * j
                for h in range(2):
                    I(f"v_mfma_f32_16x16x32_bf16 {vr(D)}, {(A0_, A1_)[h]}, {vr(Bbase+4*bidx(2*h+j,t))}, {vr(D) if h else '0'}")
                    k += 1
                    if k >= 5 and k < 4 * ntile:
                        for x in post[:2]: I(x)
                        post = post[2:]
        for x in post: I(x)
        I("s_waitcnt lgkmcnt(0)")

    def gemv_diag():
        S1, S2 = T + 16, T + 20
        for ks in range(4):
            I(f"v_mfma_f32_16x16x32_bf16 {vr(T+4*ks)}, {vr(XA)}, {vr(vBQ+4*ks)}, 0")
        I(f"v_mfma_f32_16x16x32_bf16 {vr(S1)}, {vr(XA)}, {vr(ONES)}, 0")
        I(f"v_mfma_f32_16x16x32_bf16 {vr(S2)}, {vr(XA)}, {vr(XA)}, 0")
        for ks in range(1, 4):
            I(f"v_mov_b32_dpp v{T}, v{T+4*ks} quad_perm:[0,1,2,3] row_mask:{1<<ks:#x} bank_mask:0xf")
        I(f"ds_write_b32 v{vPW}, v{T} offset:{L_PB1}")
        I(f"ds_write2_b32 v{vSW}, v{S1}, v{S2} offset0:0 offset1:4")
        I("s_waitcnt lgkmcnt(0)")

    def gather(sreg):
        poll([f"buffer_load_dwordx4 {vr(XA)}, v{vGO}, {WS}, s{sreg} offen sc1",
              f"buffer_load_dwordx4 {vr(XA+4)}, v{vGO}, {WS}, s{sreg} offen offset:{2*ZR} sc1"],
             list(range(XA, XA + 8)), groups=[range(XA, XA + 4), range(XA + 4, XA + 8)])

    def reduce_read(nw, base):
        for v in range(nw):
            I(f"ds_read_b128 {vr(T+4*v)}, v{vRR} offset:{base + v*PP}")

    def reduce_sum(nw, dst):
        np_ = 2 * nw
        idx = list(range(np_))
        while len(idx) > 1:
            nx = []
            for i in range(0, len(idx) - 1, 2):
                d, s = idx[i], idx[i + 1]
                I(f"v_pk_add_f32 v[{T+2*d}:{T+2*d+1}], v[{T+2*d}:{T+2*d+1}], v[{T+2*s}:{T+2*s+1}]")
                nx.append(d)
            if len(idx) % 2:
                nx.append(idx[-1])
            idx = nx
        I(f"v_add_f32 v{dst}, v{T}, v{T+1}")

    rTOT, rMEAN, rVAR, rMB, rSD, rR, rU, rT, rINV, rC1, rC2, rCS = [T + 32 + i for i in range(12)]

    def cs_read(area, dst):
        l = a.newlab("Lcs")
        I(f"s_cmp_eq_u32 s{sIT}, 0")
        I(f"s_cbranch_scc0 {l}")
        I(f"v_lshrrev_b32 v{rT}, 2, v{vRR}")
        for v in range(5):
            I(f"ds_read_b32 v{T+24+v}, v{rT} offset:{area + v*128}")
        I("s_waitcnt lgkmcnt(0)")
        I(f"v_add_f32 v{dst}, v{T+24}, v{T+25}")
        I(f"v_add_f32 v{rT}, v{T+26}, v{T+27}")
        I(f"v_add_f32 v{dst}, v{dst}, v{T+28}")
        I(f"v_add_f32 v{dst}, v{dst}, v{rT}")
        a.label(l)

    def stats():
        I(f"v_readlane_b32 s{sT0}, v{rTOT}, 32")
        I(f"v_readlane_b32 s{sT1}, v{rTOT}, 33")
        I(f"v_mul_f32 v{rMEAN}, s{sT0}, v{rINV}")
        I(f"v_mul_f32 v{rVAR}, s{sT1}, v{rINV}")
        I(f"v_fma_f32 v{rVAR}, -v{rMEAN}, v{rMEAN}, v{rVAR}")
        I(f"v_max_f32 v{rVAR}, 0, v{rVAR}")
        I(f"v_cvt_pk_bf16_f32 v{rT}, v{rMEAN}, v{rVAR}")
        I(f"v_and_b32 v{rU}, 0xffff0000, v{rT}")
        I(f"v_lshlrev_b32 v{rMB}, 16, v{rT}")
        I(f"v_add_f32 v{rU}, {f2u(1e-5):#x}, v{rU}")
        I(f"v_cvt_pk_bf16_f32 v{rU}, v{rU}, v{rU}")
        I(f"v_and_b32 v{rU}, 0xffff0000, v{rU}")
        I(f"v_sqrt_f32 v{rU}, v{rU}")
        I(f"v_cvt_pk_bf16_f32 v{rU}, v{rU}, v{rU}")
        I(f"v_and_b32 v{rSD}, 0xffff0000, v{rU}")
        I(f"v_rcp_f32 v{rR}, v{rSD}")

    def pack_pairs(src, dst):
        I(f"v_mov_b32_dpp v{rT}, v{src} quad_perm:[1,0,3,2] row_mask:0xf bank_mask:0xf")
        I(f"v_cvt_pk_bf16_f32 v{dst}, v{src}, v{rT}")
        I(f"v_min_u32 v{dst}, 0xfffffffe, v{dst}")

    a.label("L_loop")
    I(f"s_cmp_ge_u32 s{sWAVE}, 5")
    I("s_cbranch_scc1 L_B1")
    I(f"s_lshl_b32 s{sT2}, s{sX}, 11")
    I(f"s_add_u32 s{sT2}, s{sT2}, {XOFF}")
    I(f"s_cmp_eq_u32 s{sR}, {LEAD_R}")
    I("s_cbranch_scc0 L_nolead")
    I(f"s_mul_i32 s{sT0}, s{sWAVE}, {4*ZR}")
    I(f"s_add_u32 s{sT0}, s{sT0}, s{sREG}")
    I(f"s_add_u32 s{sT0}, s{sT0}, {YOFF - RS & 0xffffffff:#x}")
    I(f"v_lshrrev_b32 v{T+20}, 4, v{vLANE}")
    I(f"v_mul_u32_u24 v{T+20}, {ZR}, v{T+20}")
    I(f"v_and_b32 v{T+21}, 15, v{vLANE}")
    I(f"v_lshl_add_u32 v{T+20}, v{T+21}, 2, v{T+20}")
    I(f"s_lshl_b32 s{sT1}, s{sWAVE}, 8")
    I(f"v_lshlrev_b32 v{T+21}, 2, v{vLANE}")
    I(f"v_add_u32 v{T+21}, s{sT1}, v{T+21}")
    TS(26)
    poll([f"buffer_load_dword v{T+2*j+1}, v{T+20}, {WS}, s{sT0} offen offset:{j*ZX} sc1" for j in range(8)],
         [T + 2 * j + 1 for j in range(8)], groups=[[T + 2 * j + 1] for j in range(8)])
    TS(27)
    for j in range(8):
        unpack(T + 2 * j, T + 2 * j + 1, T + 2 * j + 1)
    for (d, s_) in ((0, 1), (2, 3), (4, 5), (6, 7), (0, 2), (4, 6), (0, 4)):
        I(f"v_pk_add_f32 v[{T+2*d}:{T+2*d+1}], v[{T+2*d}:{T+2*d+1}], v[{T+2*s_}:{T+2*s_+1}]")
    I(f"v_cvt_pk_bf16_f32 v{T}, v{T}, v{T+1}")
    I(f"s_cmp_eq_u32 s{sIT}, 2")
    I("s_cbranch_scc0 L_lead1")
    I(f"buffer_store_dword v{T}, v{T+21}, {OUTS}, 0 offen")
    TS(29)
    I("s_branch L_fin")
    a.label("L_lead1")
    I(f"v_min_u32 v{T}, 0xfffffffe, v{T}")
    lstore([f"buffer_store_dword v{T}, v{T+21}, {WS}, s{sT2} offen"])
    TS(28)
    a.label("L_nolead")
    ones()
    TS(3)
    poll([f"buffer_load_dwordx4 {vr(XA)}, v{vXO}, {WS}, s{sT2} offen sc1"], list(range(XA, XA + 4)))
    TS(4)
    a.label("L_haveX")
    gemv_diag()
    TS(5)
    a.label("L_B1")
    I(f"v_mov_b32 v{rINV}, {f2u(1.0/640):#x}")
    I("s_barrier")
    I(f"s_cmp_eq_u32 s{sWAVE}, 5")
    I("s_cbranch_scc1 L_w5q")
    I(f"s_cmp_gt_u32 s{sWAVE}, 5")
    I("s_cbranch_scc1 L_B2")
    I(f"s_cmp_eq_u32 s{sIT}, 0")
    I("s_cbranch_scc0 L_B2")
    kv_issue(W04)
    I("s_branch L_B2")
    a.label("L_w5q")
    TS(6)
    reduce_read(5, L_PB1)
    cs_read(L_CS1, vCSQ)
    I("s_waitcnt lgkmcnt(0)")
    reduce_sum(5, rTOT)
    stats()
    I(f"v_fma_f32 v{rU}, -v{rMB}, v{vCSQ}, v{rTOT}")
    I(f"v_mul_f32 v{rU}, v{rU}, v{rR}")
    pack_pairs(rU, rU)
    I(f"s_cmp_eq_u32 s{sIT}, 0")
    I("s_cbranch_scc0 L_synced")
    setexec(0x5555, 0)
    I(f"buffer_store_dword v{rU}, v{vQP}, {WS}, s{sREG} offen sc1")
    srd(TA, 54, 256)
    setexec(0xFFFFFFFF, 0xFFFFFFFF)
    I(f"v_mov_b32 v{rT}, 128")
    setexec(1, 0)
    a.label("L_sync")
    I(f"buffer_load_dword v{T}, v{rT}, {TA}, 0 offen sc1")
    I(f"s_add_u32 s{sSPIN}, s{sSPIN}, 1")
    I("s_waitcnt vmcnt(0)")
    I(f"v_readfirstlane_b32 s{sT0}, v{T}")
    I(f"s_cmp_ge_u32 s{sT0}, 0x800")
    I("s_cbranch_scc1 L_syncd")
    I(f"s_cmp_lt_u32 s{sSPIN}, {spin_limit}")
    I("s_cbranch_scc1 L_sync")
    a.label("L_syncd")
    setexec(0xFFFFFFFF, 0xFFFFFFFF)
    I(f"s_lshr_b32 s{sT0}, s{sT0}, s{sX}")
    I(f"s_and_b32 s{sPURE}, s{sT0}, 1")
    I(f"v_mov_b32 v{T}, s{sPURE}")
    I(f"v_mov_b32 v{T+1}, {L_FLAG}")
    I(f"ds_write_b32 v{T+1}, v{T}")
    TS(7)
    I("s_branch L_qpoll")
    a.label("L_synced")
    TS(7)
    setexec(0x5555, 0)
    lstore([f"buffer_store_dword v{rU}, v{vQP}, {WS}, s{sREG} offen"])
    a.label("L_qpoll")
    setexec(0xFFFF, 0)
    poll([f"buffer_load_dwordx4 {vr(T)}, v{vQG}, {WS}, s{sREG} offen sc1"], list(range(T, T + 4)), ex=(0xFFFF, 0))
    I(f"ds_write_b128 v{vRR}, {vr(T)} offset:{L_QB}")
    setexec(0xFFFFFFFF, 0xFFFFFFFF)
    TS(8)
    I(f"s_cmp_eq_u32 s{sIT}, 0")
    I("s_cbranch_scc0 L_B2x")
    kv_issue()
    I("s_branch L_B2w")
    a.label("L_B2x")
    I(f"buffer_load_ushort v{vXF}, v{vXFA}, {WS}, 0 offen sc1")
    a.label("L_B2w")
    I("s_waitcnt lgkmcnt(0)")
    a.label("L_B2")
    BT = T
    ST = T + 16
    PS = T + 32
    MI = T + 36
    OA = T + 44
    for i in range(16):
        I(f"v_mov_b32 v{BT+i}, 0")
    I(f"v_mov_b32 v{MI}, {L_FLAG}")
    I("s_barrier")
    TS(9)
    for t in range(4):
        m = 0x000F000F << (4 * t)
        setexec(m, m)
        I(f"ds_read_b128 {vr(BT+4*t)}, v{vQR}")
    setexec(0xFFFFFFFF, 0xFFFFFFFF)
    I(f"ds_read_b32 v{MI}, v{MI}")
    I("s_waitcnt vmcnt(16)")
    I("s_waitcnt lgkmcnt(0)")
    TS(10)
    for Tt in range(4):
        for t in range(4):
            I(f"v_mfma_f32_16x16x32_bf16 {vr(ST+4*Tt)}, {vr(vK+4*(4*Tt+t))}, {vr(BT+4*t)}, {'0' if t == 0 else vr(ST+4*Tt)}")
    I(f"v_readfirstlane_b32 s{sPURE}, v{MI}")
    for Tt in range(4):
        I(f"v_mov_b32_dpp v{PS+Tt}, v{ST+4*Tt} quad_perm:[0,0,0,0] row_mask:0xf bank_mask:0xf")
        for c in range(1, 4):
            I(f"v_add_f32_dpp v{PS+Tt}, v{ST+4*Tt+c}, v{PS+Tt} quad_perm:[{c},{c},{c},{c}] row_mask:0xf bank_mask:0xf")
    I(f"v_mov_b32 v{MI+2}, {SCALE:#x}")
    I(f"v_mov_b32 v{MI+3}, {SCALE:#x}")
    I(f"v_cvt_pk_bf16_f32 v{MI}, v{PS}, v{PS+1}")
    I(f"v_cvt_pk_bf16_f32 v{MI+1}, v{PS+2}, v{PS+3}")
    unpack(PS, PS + 1, MI)
    unpack(PS + 2, PS + 3, MI + 1)
    I(f"v_pk_mul_f32 v[{PS}:{PS+1}], v[{PS}:{PS+1}], v[{MI+2}:{MI+3}]")
    I(f"v_pk_mul_f32 v[{PS+2}:{PS+3}], v[{PS+2}:{PS+3}], v[{MI+2}:{MI+3}]")
    I(f"v_cvt_pk_bf16_f32 v{MI}, v{PS}, v{PS+1}")
    I(f"v_cvt_pk_bf16_f32 v{MI+1}, v{PS+2}, v{PS+3}")
    unpack(PS, PS + 1, MI)
    unpack(PS + 2, PS + 3, MI + 1)
    vM = MI + 4; vL = MI + 5; vT_ = MI + 6; vPK = MI + 7
    I(f"v_max3_f32 v{vM}, v{PS}, v{PS+1}, v{PS+2}")
    I(f"v_max_f32 v{vM}, v{vM}, v{PS+3}")
    I(f"v_max_f32_dpp v{vM}, v{vM}, v{vM} row_ror:4 row_mask:0xf bank_mask:0xf")
    I(f"v_max_f32_dpp v{vM}, v{vM}, v{vM} row_ror:8 row_mask:0xf bank_mask:0xf")
    I(f"v_max_f32_dpp v{vM}, v{vM}, v{vM} row_bcast:15 row_mask:0xa bank_mask:0xf")
    I(f"v_max_f32_dpp v{vM}, v{vM}, v{vM} row_bcast:31 row_mask:0xc bank_mask:0xf")
    I(f"v_mov_b32 v{MI}, s{sL2E}")
    I(f"v_readlane_b32 s{sM}, v{vM}, 63")
    I(f"v_mul_f32 v{vT_}, s{sM}, v{MI}")
    for Tt in range(4):
        I(f"v_fma_f32 v{PS+Tt}, v{PS+Tt}, v{MI}, -v{vT_}")
    for Tt in range(4):
        I(f"v_exp_f32 v{PS+Tt}, v{PS+Tt}")
    TS(11)
    I(f"s_cmp_eq_u32 s{sIT}, 0")
    I("s_cbranch_scc0 L_PV")
    role_dma()
    TS(25)
    a.label("L_PV")
    for Tt in range(4):
        AB = ST + 8 * (Tt & 1)
        I(f"v_mov_b32_dpp v{vT_}, v{PS+Tt} row_half_mirror row_mask:0xf bank_mask:0xf")
        I(f"v_cvt_pk_bf16_f32 v{vPK}, v{PS+Tt}, v{vT_}")
        for u in range(2):
            for r in range(4):
                I(f"v_perm_b32 v{AB+4*u+r}, v{vPK}, v{vPK}, v{vSEL+4*u+r}")
        if Tt == 1:
            I(f"v_add_f32 v{vL}, v{PS}, v{PS+1}")
            I(f"v_add_f32 v{MI+1}, v{PS+2}, v{PS+3}")
            I(f"v_add_f32 v{vL}, v{vL}, v{MI+1}")
            I(f"v_add_f32_dpp v{vL}, v{vL}, v{vL} row_ror:4 row_mask:0xf bank_mask:0xf")
            I(f"v_add_f32_dpp v{vL}, v{vL}, v{vL} row_ror:8 row_mask:0xf bank_mask:0xf")
            I(f"v_add_f32_dpp v{vL}, v{vL}, v{vL} row_bcast:15 row_mask:0xa bank_mask:0xf")
            I(f"v_add_f32_dpp v{vL}, v{vL}, v{vL} row_bcast:31 row_mask:0xc bank_mask:0xf")
            I(f"ds_write_b64 v{vMLW}, v[{vM}:{vL}]")
        for u in range(2):
            i1 = Tt * 4 + u * 2 + 1
            I(f"s_waitcnt vmcnt({15 - i1 + 8})")
            for hf in range(2):
                i = Tt * 4 + u * 2 + hf
                first = (Tt == 0 and u == 0)
                I(f"v_mfma_f32_16x16x32_bf16 {vr(OA+4*hf)}, {vr(AB+4*u)}, {vr(vV+4*i)}, {'0' if first else vr(OA+4*hf)}")
    TS(12)
    setexec(0x00FF00FF, 0xFF00FF00)
    I(f"ds_write_b128 v{vOW}, {vr(OA)}")
    I(f"ds_write_b128 v{vOW}, {vr(OA+4)} offset:256")
    setexec(0xFFFFFFFF, 0xFFFFFFFF)
    I("s_waitcnt lgkmcnt(0)")
    I("s_barrier")
    TS(13)
    I(f"s_cmp_eq_u32 s{sWAVE}, 7")
    I("s_cbranch_scc0 L_role")
    cM, cL, cMX, cF, cT = T + 32, T + 33, T + 34, T + 36, T + 37
    cLS = T + 35
    I(f"ds_read_b64 v[{cM}:{cL}], v{vCML}")
    for w in range(8):
        I(f"ds_read2st64_b64 {vr(T+4*w)}, v{vCR} offset0:{2*w} offset1:{2*w+1}")
    I(f"v_mov_b32 v{cT}, s{sL2E}")
    I("s_waitcnt lgkmcnt(8)")
    I(f"v_max_f32_dpp v{cMX}, v{cM}, v{cM} quad_perm:[1,0,3,2] row_mask:0xf bank_mask:0xf")
    I(f"v_max_f32_dpp v{cMX}, v{cMX}, v{cMX} quad_perm:[2,3,0,1] row_mask:0xf bank_mask:0xf")
    I(f"v_max_f32_dpp v{cMX}, v{cMX}, v{cMX} row_half_mirror row_mask:0xf bank_mask:0xf")
    I(f"v_sub_f32 v{cF}, v{cM}, v{cMX}")
    I(f"v_mul_f32 v{cF}, v{cF}, v{cT}")
    I(f"v_exp_f32 v{cF}, v{cF}")
    I("s_waitcnt lgkmcnt(0)")
    for w in range(8):
        I(f"v_readlane_b32 s{sF+w}, v{cF}, {w}")
    for w in range(8):
        I(f"v_pk_add_f32 v[{T+4*w}:{T+4*w+1}], v[{T+4*w}:{T+4*w+1}], v[{T+4*w+2}:{T+4*w+3}]")
    for w in range(8):
        sp = f"s[{sF+(w&~1)}:{sF+(w&~1)+1}]"
        o = w & 1
        acc = T + 40 + 2 * (w & 1)
        if w < 2:
            I(f"v_pk_mul_f32 v[{acc}:{acc+1}], v[{T+4*w}:{T+4*w+1}], {sp} op_sel:[0,{o}] op_sel_hi:[1,{o}]")
        else:
            I(f"v_pk_fma_f32 v[{acc}:{acc+1}], v[{T+4*w}:{T+4*w+1}], {sp}, v[{acc}:{acc+1}] op_sel:[0,{o},0] op_sel_hi:[1,{o},1]")
    I(f"v_mul_f32 v{cLS}, v{cF}, v{cL}")
    I(f"v_pk_add_f32 v[{T+40}:{T+41}], v[{T+40}:{T+41}], v[{T+42}:{T+43}]")
    I(f"v_add_f32_dpp v{cLS}, v{cLS}, v{cLS} quad_perm:[1,0,3,2] row_mask:0xf bank_mask:0xf")
    I(f"v_cvt_pk_bf16_f32 v{T+40}, v{T+40}, v{T+41}")
    I(f"v_min_u32 v{T+40}, 0xfffffffe, v{T+40}")
    I(f"v_add_f32_dpp v{cLS}, v{cLS}, v{cLS} quad_perm:[2,3,0,1] row_mask:0xf bank_mask:0xf")
    I(f"v_min_u32 v{cMX}, 0xfffffffe, v{cMX}")
    lstore([f"buffer_store_dword v{T+40}, v{vCP}, {WS}, s{sREG} offen"])
    I(f"v_add_f32_dpp v{cLS}, v{cLS}, v{cLS} row_half_mirror row_mask:0xf bank_mask:0xf")
    I(f"v_min_u32 v{cLS}, 0xfffffffe, v{cLS}")
    setexec(1, 0)
    lstore([f"buffer_store_dwordx2 v[{cMX}:{cLS}], v{vCPM}, {WS}, s{sREG} offen"])
    setexec(0xFFFFFFFF, 0xFFFFFFFF)
    TS(14)

    a.label("L_role")
    I(f"s_cmp_eq_u32 s{sROLE}, 0")
    I("s_cbranch_scc1 L_WO")
    I(f"s_cmp_eq_u32 s{sROLE}, 1")
    I("s_cbranch_scc1 L_W1")
    I(f"s_cmp_eq_u32 s{sROLE}, 2")
    I("s_cbranch_scc1 L_W2")
    I("s_branch L_next")

    def role_base():
        I(f"s_lshl_b32 s{sT0}, s{sWAVE}, 13")
        I(f"s_add_u32 s{sT0}, s{sT0}, {L_ROLE}")

    a.label("L_WO")
    I(f"s_cmp_eq_u32 s{sIT}, 0")
    I("s_cbranch_scc0 L_WO0")
    role_base()
    tr_addr(T + 47, 64, sT0)
    I("s_waitcnt vmcnt(0)")
    for ks in range(2):
        for t in range(2):
            b = vRB + 4 * (ks * 2 + t)
            o = ks * 2048 + t * 32
            I(f"ds_read_b64_tr_b16 v[{b}:{b+1}], v{T+47} offset:{o}")
            I(f"ds_read_b64_tr_b16 v[{b+2}:{b+3}], v{T+47} offset:{o+256}")
    I("s_waitcnt lgkmcnt(0)")
    TS(15)
    I("s_branch L_WO1")
    a.label("L_WO0")
    I(f"s_cmp_eq_u32 s{sWAVE}, 5")
    I("s_cbranch_scc0 L_WO1")
    I("s_waitcnt vmcnt(0)")
    I(f"v_lshlrev_b32 v{vXF}, 16, v{vXF}")
    a.label("L_WO1")
    A0, Ma, La = T, T + 4, T + 5
    Dw = [[T + 8, T + 12], [T + 16, T + 20]]
    wMX, wE, wT, wL2E, wR0, wR1 = [T + 24 + i for i in range(6)]
    I(f"v_mov_b32 v{wL2E}, s{sL2E}")
    poll([f"buffer_load_dwordx4 {vr(A0)}, v{vA0}, {WS}, s{sREG} offen sc1",
          f"buffer_load_dwordx2 v[{Ma}:{La}], v{vA2}, {WS}, s{sREG} offen sc1"], list(range(T, T + 6)),
         groups=[range(T, T + 4), range(T + 4, T + 6)])
    TS(16)
    seq = [
        f"v_max_f32_dpp v{wMX}, v{Ma}, v{Ma} quad_perm:[1,0,3,2] row_mask:0xf bank_mask:0xf",
        f"v_max_f32_dpp v{wMX}, v{wMX}, v{wMX} quad_perm:[2,3,0,1] row_mask:0xf bank_mask:0xf",
        f"v_max_f32_dpp v{wMX}, v{wMX}, v{wMX} row_half_mirror row_mask:0xf bank_mask:0xf",
        f"v_sub_f32 v{wE}, v{Ma}, v{wMX}",
    ]
    k = 0
    for t in range(2):
        for ks in range(2):
            I(f"v_mfma_f32_16x16x32_bf16 {vr(Dw[t][ks])}, {vr(A0)}, {vr(vRB+4*(ks*2+t))}, 0")
            I(seq[k]); k += 1
    I(f"v_mul_f32 v{wE}, v{wE}, v{wL2E}")
    I(f"v_exp_f32 v{wE}, v{wE}")
    I(f"v_mul_f32 v{wT}, v{wE}, v{La}")
    mrg = [f"v_mov_b32_dpp v{Dw[t][0]+i}, v{Dw[t][1]+i} quad_perm:[0,1,2,3] row_mask:0xc bank_mask:0xf"
           for t in range(2) for i in range(4)]
    I(mrg[0]); I(mrg[1])
    I(f"v_add_f32_dpp v{wT}, v{wT}, v{wT} quad_perm:[1,0,3,2] row_mask:0xf bank_mask:0xf")
    I(mrg[2]); I(mrg[3])
    I(f"v_add_f32_dpp v{wT}, v{wT}, v{wT} quad_perm:[2,3,0,1] row_mask:0xf bank_mask:0xf")
    I(f"v_mov_b32_dpp v{wE}, v{wE} row_ror:4 row_mask:0xf bank_mask:0xa")
    I(mrg[4])
    I(f"v_add_f32_dpp v{wT}, v{wT}, v{wT} row_half_mirror row_mask:0xf bank_mask:0xf")
    I(mrg[5])
    I(f"v_rcp_f32 v{wT}, v{wT}")
    I(mrg[6]); I(mrg[7])
    for i in range(4):
        for t in range(2):
            D = Dw[t][0]; R = (wR0, wR1)[t]
            op = "v_mul_f32_dpp" if i == 0 else "v_fmac_f32_dpp"
            I(f"{op} v{R}, v{wE}, v{D+i} quad_perm:[{i},{i},{i},{i}] row_mask:0xf bank_mask:0xf")
    I(f"v_mul_f32 v{wR0}, v{wR0}, v{wT}")
    I(f"v_mul_f32 v{wR1}, v{wR1}, v{wT}")
    I(f"ds_write_b32 v{vPW}, v{wR0} offset:{L_PB2}")
    I(f"ds_write_b32 v{vPW}, v{wR1} offset:{L_PB2+256}")
    I("s_waitcnt lgkmcnt(0)")
    I("s_barrier")
    I(f"s_cmp_eq_u32 s{sWAVE}, 5")
    I("s_cbranch_scc0 L_next")
    TS(17)
    reduce_read(8, L_PB2)
    I("s_waitcnt lgkmcnt(0)")
    I(f"v_add_f32 v{T+30}, v{T+30}, v{vXF}")
    reduce_sum(8, rTOT)
    pack_pairs(rTOT, rU)
    I(f"v_mov_b32 v{T}, v{rU}")
    I(f"v_mov_b32_dpp v{T+1}, v{rU} quad_perm:[2,2,2,2] row_mask:0xf bank_mask:0xf")
    I(f"v_mov_b32_dpp v{T+2}, v{rU} row_shl:4 row_mask:0xf bank_mask:0xf")
    I(f"v_mov_b32_dpp v{T+3}, v{rU} row_shl:6 row_mask:0xf bank_mask:0xf")
    setexec(0x01010101, 0)
    I(f"buffer_store_dwordx4 {vr(T)}, v{vRP}, {WS}, s{sREG} offen sc1")
    setexec(0xFFFFFFFF, 0xFFFFFFFF)
    TS(18)
    I("s_branch L_next")

    a.label("L_W1")
    I(f"s_cmp_ge_u32 s{sWAVE}, 5")
    I("s_cbranch_scc1 L_W1b")
    ones()
    I(f"s_cmp_eq_u32 s{sIT}, 0")
    I("s_cbranch_scc0 L_W11")
    role_base()
    tr_addr(T + 47, 64, sT0)
    I(f"s_lshl_b32 s{sT0}, s{sWAVE}, 7")
    I(f"v_and_b32 v{T+46}, 15, v{vLANE}")
    I(f"v_lshlrev_b32 v{T+46}, 2, v{T+46}")
    I(f"v_add_u32 v{T+46}, s{sT0}, v{T+46}")
    I("s_waitcnt vmcnt(0)")
    for ks in range(4):
        for t in range(2):
            b = vRB + 4 * (ks * 2 + t)
            o = ks * 2048 + t * 32
            I(f"ds_read_b64_tr_b16 v[{b}:{b+1}], v{T+47} offset:{o}")
            I(f"ds_read_b64_tr_b16 v[{b+2}:{b+3}], v{T+47} offset:{o+256}")
        if ks == 1:
            I("s_waitcnt lgkmcnt(0)")
    I("s_waitcnt lgkmcnt(0)")
    for t in range(2):
        for ks in range(4):
            I(f"v_mfma_f32_16x16x32_bf16 {vr(T+4*t)}, {vr(ONES)}, {vr(vRB+4*(ks*2+t))}, {'0' if ks == 0 else vr(T+4*t)}")
    I(f"ds_write_b32 v{T+46}, v{T} offset:{L_CS2}")
    I(f"ds_write_b32 v{T+46}, v{T+4} offset:{L_CS2+64}")
    TS(15)
    a.label("L_W11")
    I(f"s_add_u32 s{sT1}, s{sREG}, {ZOFF}")
    gather(sT1)
    TS(19)
    gemv(2, vRB, lambda ks, t: ks * 2 + t)
    TS(20)
    a.label("L_W1b")
    I(f"v_mov_b32 v{rINV}, {f2u(1.0/640):#x}")
    I(f"v_mov_b32 v{rC1}, {f2u(GC1):#x}")
    I(f"v_mov_b32 v{rC2}, {f2u(GC2):#x}")
    I("s_barrier")
    I(f"s_cmp_eq_u32 s{sWAVE}, 5")
    I("s_cbranch_scc0 L_next")
    TS(21)
    reduce_read(5, L_PB1)
    cs_read(L_CS2, vCS1)
    I("s_waitcnt lgkmcnt(0)")
    reduce_sum(5, rTOT)
    stats()
    I(f"v_sub_f32 v{rMEAN}, v{rMEAN}, v{rMB}")
    I(f"v_mul_f32 v{rVAR}, v{rVAR}, v{rR}")
    I(f"v_mul_f32 v{rMEAN}, v{rMEAN}, v{rR}")
    I(f"v_mul_f32 v{rVAR}, v{rVAR}, v{rR}")
    I(f"v_cvt_pk_bf16_f32 v{rT}, v{rMEAN}, v{rVAR}")
    I(f"v_and_b32 v{rU}, 0xffff0000, v{rT}")
    I(f"v_lshlrev_b32 v{rMEAN}, 16, v{rT}")
    I(f"v_add_f32 v{rU}, {f2u(1e-5):#x}, v{rU}")
    I(f"v_cvt_pk_bf16_f32 v{rU}, v{rU}, v{rU}")
    I(f"v_fma_f32 v{rMB}, v{rMEAN}, v{rSD}, v{rMB}")
    I(f"v_and_b32 v{rU}, 0xffff0000, v{rU}")
    I(f"v_sqrt_f32 v{rU}, v{rU}")
    I(f"v_fma_f32 v{rTOT}, -v{rMB}, v{vCS1}, v{rTOT}")
    I(f"v_cvt_pk_bf16_f32 v{rU}, v{rU}, v{rU}")
    I(f"v_mul_f32 v{rTOT}, v{rTOT}, v{rR}")
    I(f"v_and_b32 v{rU}, 0xffff0000, v{rU}")
    I(f"v_rcp_f32 v{rU}, v{rU}")
    I(f"v_mul_f32 v{rTOT}, v{rTOT}, v{rU}")
    I(f"v_cvt_pk_bf16_f32 v{rU}, v{rTOT}, v{rTOT}")
    I(f"v_and_b32 v{rU}, 0xffff0000, v{rU}")
    I(f"v_add_f32 v{rU}, v{rU}, v{vB1}")
    I(f"v_cvt_pk_bf16_f32 v{rU}, v{rU}, v{rU}")
    I(f"v_and_b32 v{rU}, 0xffff0000, v{rU}")
    I(f"v_mul_f32 v{rT}, v{rU}, v{rU}")
    I(f"v_fma_f32 v{rT}, v{rT}, v{rC2}, v{rC1}")
    I(f"v_mul_f32 v{rT}, v{rT}, v{rU}")
    I(f"v_exp_f32 v{rT}, v{rT}")
    I(f"v_add_f32 v{rT}, 1.0, v{rT}")
    I(f"v_rcp_f32 v{rT}, v{rT}")
    I(f"v_mul_f32 v{rU}, v{rU}, v{rT}")
    pack_pairs(rU, rU)
    setexec(0x55555555, 0)
    lstore([f"buffer_store_dword v{rU}, v{vRP}, {WS}, s{sREG} offen"])
    setexec(0xFFFFFFFF, 0xFFFFFFFF)
    TS(22)
    I("s_branch L_next")

    a.label("L_W2")
    I(f"s_cmp_eq_u32 s{sIT}, 0")
    I("s_cbranch_scc0 L_W21")
    role_base()
    tr_addr(T + 47, 32, sT0)
    I("s_waitcnt vmcnt(0)")
    for ks in range(7):
        b = vRB + 4 * ks
        I(f"ds_read_b64_tr_b16 v[{b}:{b+1}], v{T+47} offset:{ks*1024}")
        I(f"ds_read_b64_tr_b16 v[{b+2}:{b+3}], v{T+47} offset:{ks*1024+128}")
    srd(TB, 50, 1280)
    I("s_waitcnt lgkmcnt(0)")
    TS(15)
    a.label("L_W21")
    for i in range(4):
        I(f"v_mov_b32 v{vFD+i}, 0")
    I(f"s_cmp_eq_u32 s{sX}, 0")
    I("s_cbranch_scc0 L_W22")
    I(f"s_sub_u32 s{sT0}, s{sR}, 27")
    I(f"s_lshl_b32 s{sT0}, s{sT0}, 8")
    I(f"s_lshl_b32 s{sT1}, s{sWAVE}, 5")
    I(f"s_add_u32 s{sT0}, s{sT0}, s{sT1}")
    I(f"v_lshrrev_b32 v{T+4}, 4, v{vLANE}")
    I(f"v_lshlrev_b32 v{T+4}, 3, v{T+4}")
    I(f"buffer_load_dwordx2 v[{T+2}:{T+3}], v{T+4}, {TB}, s{sT0} offen")
    poll([f"buffer_load_dwordx2 v[{T}:{T+1}], v{vA3}, {WS}, s{sREG} offen sc1"], [T, T + 1])
    unpack(vFD, vFD + 1, T)
    unpack(vFD + 2, vFD + 3, T + 1)
    for m in ("quad_perm:[1,0,3,2]", "quad_perm:[2,3,0,1]", "row_half_mirror"):
        for i in range(4):
            I(f"v_add_f32_dpp v{vFD+i}, v{vFD+i}, v{vFD+i} {m} row_mask:0xf bank_mask:0xf")
    I(f"v_cvt_pk_bf16_f32 v{T}, v{vFD}, v{vFD+1}")
    I(f"v_cvt_pk_bf16_f32 v{T+1}, v{vFD+2}, v{vFD+3}")
    unpack(vFD, vFD + 1, T)
    unpack(vFD + 2, vFD + 3, T + 1)
    unpack(T + 4, T + 5, T + 2)
    unpack(T + 6, T + 7, T + 3)
    I(f"v_pk_add_f32 v[{vFD}:{vFD+1}], v[{vFD}:{vFD+1}], v[{T+4}:{T+5}]")
    I(f"v_pk_add_f32 v[{vFD+2}:{vFD+3}], v[{vFD+2}:{vFD+3}], v[{T+6}:{T+7}]")
    a.label("L_W22")
    setexec(0x00010001, 0x00010001)
    poll([f"buffer_load_dwordx4 {vr(T+4*ks)}, v{vA0}, {WS}, s{sREG} offen offset:{ks*128} sc1" for ks in range(6)]
         + [f"buffer_load_dwordx4 {vr(T+24)}, v{vA1}, {WS}, s{sREG} offen sc1"], list(range(T, T + 28)),
         ex=(0x00010001, 0x00010001), groups=[range(T + 4 * ks, T + 4 * ks + 4) for ks in range(7)])
    setexec(0xFFFFFFFF, 0xFFFFFFFF)
    TS(23)
    D2 = T + 28
    for ks in range(7):
        I(f"v_mfma_f32_16x16x32_bf16 {vr(D2)}, {vr(vRB+4*ks)}, {vr(T+4*ks)}, {vr(vFD) if ks == 0 else vr(D2)}")
    Y0 = T + 32
    if not y16:
        setexec(0x00010001, 0x00010001)
    I(f"v_cvt_pk_bf16_f32 v{Y0}, v{D2}, v{D2+1}")
    I(f"v_cvt_pk_bf16_f32 v{Y0+1}, v{D2+2}, v{D2+3}")
    I(f"v_min_u32 v{Y0}, 0xfffffffe, v{Y0}")
    I(f"v_min_u32 v{Y0+1}, 0xfffffffe, v{Y0+1}")
    if y16:
        I(f"v_permlane16_swap_b32 v{Y0}, v{Y0+2}")
        I(f"v_permlane16_swap_b32 v{Y0+1}, v{Y0+3}")
        setexec(1, 1)
        I(f"buffer_store_dwordx4 {vr(Y0)}, v{vA2}, {WS}, s{sREG} offen sc1")
    else:
        I(f"buffer_store_dwordx2 v[{Y0}:{Y0+1}], v{vA2}, {WS}, s{sREG} offen sc1")
    setexec(0xFFFFFFFF, 0xFFFFFFFF)
    TS(24)

    a.label("L_next")
    I(f"s_add_u32 s{sIT}, s{sIT}, 1")
    I(f"s_add_u32 s{sREG}, s{sREG}, {RS}")
    I(f"s_cmp_lt_u32 s{sIT}, 2")
    I("s_cbranch_scc1 L_loop")
    I(f"s_cmp_eq_u32 s2, {LEAD_R * 8}")
    I("s_cbranch_scc0 L_fin")
    I(f"s_cmp_lt_u32 s{sWAVE}, 5")
    I("s_cbranch_scc1 L_loop")
    a.label("L_fin")
    if dbgt:
        I("s_memrealtime s[100:101]")
        I(f"s_or_b32 s99, s2, s{sWAVE}")
        I("s_cmp_eq_u32 s99, 0")
        I("s_cbranch_scc0 L_end")
        srd(TA, 54, 256)
        I("s_waitcnt lgkmcnt(0)")
        I("v_mov_b32 v2, s78")
        I("v_mov_b32 v3, s100")
        I("v_mov_b32 v4, 8")
        setexec(1, 0)
        I(f"buffer_store_dwordx2 v[2:3], v4, {TA}, 0 offen sc1")
        setexec(0xFFFFFFFF, 0xFFFFFFFF)
    if instr:
        TS(30)
        I(f"s_lshl_b32 s{sT0}, s2, 3")
        I(f"s_add_u32 s{sT0}, s{sT0}, s{sWAVE}")
        I(f"s_lshl_b32 s{sT0}, s{sT0}, 9")
        I(f"s_add_u32 s{sT0}, s{sT0}, {DBGOFF}")
        I(f"v_lshlrev_b32 v{T}, 3, v{vLANE}")
        I(f"buffer_store_dwordx2 v[{vTSI}:{vTST}], v{T}, {WS}, s{sT0} offen")
    a.label("L_end")
    I("s_endpgm")
    a.raw('.section .rodata,"a"\n.p2align 6')
    a.raw(f".amdhsa_kernel {KNAME}")
    a.raw("  .amdhsa_next_free_vgpr 256\n  .amdhsa_next_free_sgpr 102\n  .amdhsa_accum_offset 256\n"
          "  .amdhsa_group_segment_fixed_size 0\n  .amdhsa_kernarg_size 104\n  .amdhsa_user_sgpr_count 2\n"
          "  .amdhsa_user_sgpr_kernarg_segment_ptr 1\n  .amdhsa_system_sgpr_workgroup_id_x 1")
    a.raw(".end_amdhsa_kernel")
    open(fn, "w").write(a.text())
    return a.ninstr


if __name__ == "__main__":
    import argparse
    p = argparse.ArgumentParser()
    p.add_argument("-o", default="k.s")
    p.add_argument("--instr", action="store_true")
    p.add_argument("--kv", default="nt")
    p.add_argument("--w", default="")
    p.add_argument("--zr", type=int, default=512)
    p.add_argument("--zx", type=int, default=64)
    p.add_argument("--y16", action="store_true")
    p.add_argument("--w67", type=int, default=0)
    p.add_argument("--w04", type=int, default=0)
    p.add_argument("--nomask", action="store_true")
    p.add_argument("--ts", default=None)
    p.add_argument("--dbgt", action="store_true")
    args = p.parse_args()
    ts = None if args.ts is None else set(int(x) for x in args.ts.split(","))
    n = gen(args.o, instr=args.instr, kvflags=args.kv, wflags=args.w, ZR=args.zr, ZX=args.zx, y16=args.y16,
            W67=args.w67, W04=args.w04, masked=not args.nomask, tsset=ts, dbgt=args.dbgt)
    print("instrs:", n)
```

```python
import sys, struct, math
from asmlib import Asm

KNAME = "interleave_layers__gqa_block_cached__mixer_channel_mlp__decode_kernel"

RS = 0x40000
POFF, ZOFF, YOFF, QOFF, HOFF, XOFF, MLOFF = 0x0, 0x10000, 0x18000, 0x30000, 0x22000, 0x24000, 0x28000
CALOFF = 0x80000
CP = 0x2000
ZR, ZX = 512, 64
DBGOFF = 0x100000
WS_SIZE = 0x200000
BIG = 0x40000000
PP = 544
L_PB1, L_PB2, L_CS1, L_CS2, L_QB, L_ML, L_FLAG, L_DUM, L_O, L_WQ, L_ROLE = (
    0, 2816, 7168, 7808, 8448, 8704, 8768, 8832, 10240, 18432, 38912)
LDS_TOTAL = 163840
L_RING, RSL = 38912, 30
LEAD_R = 0

def f2u(x):
    return struct.unpack("<I", struct.pack("<f", x))[0]

L2E = f2u(1.4426950408889634)
SCALE = f2u(128 ** -0.5)
GC1 = -2.0 * 1.4426950408889634 * math.sqrt(2.0 / math.pi)
GC2 = GC1 * 0.044715

sWAVE, sX, sR, sIT, sREG = 3, 4, 5, 6, 7
K_SRD, V_SRD, WS, TA, TB, OUTS = "s[8:11]", "s[12:15]", "s[16:19]", "s[20:23]", "s[24:27]", "s[28:31]"
sROLE, sPURE, sSPIN = 58, 59, 60
sT0, sT1, sT2, sT3, sSLOT = 61, 62, 63, 72, 73
sF = 64
sXCC, sTB, sNT, sTSI = 74, 75, 76, 77
sL2E, sM = 80, 81
sRB, sRSTEP, sRN = 82, 83, 84
sKV = 85
sNEAR, sREG2, sVOTE = 78, 79, 81
sLATE, sQS, sKM = 100, 101, 42
vLANE = 0
vGO, vXO, vPW, vSW, vQR, vOW, vMLW = 1, 2, 7, 8, 9, 10, 11
vPQ = 3
vA0, vA1, vA2, vA3 = 12, 13, 14, 15
vRDMA = 17
vTSI, vTST = 18, 19
vSEL = 20
vBQ = 28
vRB = 44
vFD = 72
T = 76
vK, vV = 128, 192
vRR, vQP, vQG, vCSQ, vCS1, vB1, vRP = 1, 2, 3, 4, 5, 6, 8
vXF = 72
vXFA = 16
vCR, vCML, vCP, vCPM, vQG7 = 1, 2, 3, 4, 5


def vr(a, n=4):
    return f"v[{a}:{a+n-1}]"


def gen(fn, instr=False, kvflags="nt", wflags="", rflags="", spin_limit=400000, tsset=None,
        y16=False, masked_=True, dbgt=False, n0=4, late=0x78, dual=True, prio=True, ncal=4, nw0=8, qk=16, rot=True,
        syfl='', qp=3, gate=4, sp1=1):
    assert not late & 0x80
    a = Asm()
    I = a.I
    a.raw(f"; @launch grid=(256,1,1) block=(512,1,1) lds={LDS_TOTAL}")
    a.raw('.amdgcn_target "amdgcn-amd-amdhsa--gfx950"')
    a.raw(".text")
    a.raw(f".globl {KNAME}\n.p2align 8\n.type {KNAME},@function\n{KNAME}:")

    def TS(k):
        if not instr or (tsset is not None and k not in tsset and k not in (0, 30)):
            return
        I("s_memrealtime s[0:1]")
        I("s_waitcnt lgkmcnt(0)")
        I(f"v_writelane_b32 v{vTSI}, {k}, s{sTSI}")
        I(f"s_mov_b32 m0, s{sTSI}")
        I(f"v_writelane_b32 v{vTST}, s0, m0")
        I(f"s_add_u32 s{sTSI}, s{sTSI}, 1")

    def srd(dst, ptr, size):
        d = int(dst[2:].split(":")[0])
        I(f"s_mov_b32 s{d}, s{ptr}")
        I(f"s_mov_b32 s{d+1}, s{ptr+1}")
        I(f"s_mov_b32 s{d+2}, {size:#x}")
        I(f"s_mov_b32 s{d+3}, 0x20000")

    def setexec(lo, hi):
        if lo == 0xFFFFFFFF and hi == 0xFFFFFFFF:
            I("s_mov_b64 exec, -1")
        else:
            I(f"s_mov_b32 exec_lo, {lo:#x}")
            I(f"s_mov_b32 exec_hi, {hi:#x}")

    def maxtree(tmp, rs):
        rs = list(rs)
        if len(rs) == 1:
            return rs[0]
        cur = None
        while rs:
            if cur is None:
                if len(rs) >= 3:
                    I(f"v_max3_u32 v{tmp}, v{rs[0]}, v{rs[1]}, v{rs[2]}"); rs = rs[3:]
                else:
                    I(f"v_max_u32 v{tmp}, v{rs[0]}, v{rs[1]}"); rs = rs[2:]
                cur = tmp
            elif len(rs) >= 2:
                I(f"v_max3_u32 v{tmp}, v{tmp}, v{rs[0]}, v{rs[1]}"); rs = rs[2:]
            else:
                I(f"v_max_u32 v{tmp}, v{tmp}, v{rs[0]}"); rs = rs[1:]
        return cur

    def poll(loads, regs, ex=(0xFFFFFFFF, 0xFFFFFFFF), groups=None, simple=False):
        lab = a.newlab("Lp"); done = a.newlab("Lpd")
        tmp = T + 50
        masked = masked_ and not simple
        if not masked:
            a.label(lab)
        for l in loads:
            I(l)
        if masked:
            a.label(lab)
        I(f"s_add_u32 s{sSPIN}, s{sSPIN}, 1")
        I("s_waitcnt vmcnt(0)")
        cur = maxtree(tmp, regs)
        I(f"v_cmp_eq_u32 vcc, -1, v{cur}")
        I(f"s_cbranch_vccz {done}")
        if masked:
            if groups is None or len(loads) == 1:
                I("s_mov_b64 exec, vcc")
                for l in loads:
                    I(l)
            else:
                for j, gr in enumerate(groups):
                    cur = maxtree(tmp + 1 - (j & 1), gr)
                    I(f"v_cmp_eq_u32 s[{86+2*j}:{87+2*j}], -1, v{cur}")
                for j, l in enumerate(loads):
                    I(f"s_mov_b64 exec, s[{86+2*j}:{87+2*j}]")
                    I(l)
            setexec(*ex)
        I(f"s_cmp_lt_u32 s{sSPIN}, {spin_limit}")
        I(f"s_cbranch_scc1 {lab}")
        if masked:
            I("s_waitcnt vmcnt(0)")
        a.label(done)

    def lstore(ins):
        l1 = a.newlab("Ls"); l2 = a.newlab("Lsd")
        I(f"s_cmp_eq_u32 s{sPURE}, 0")
        I(f"s_cbranch_scc1 {l1}")
        for x in ins: I(x)
        I(f"s_branch {l2}")
        a.label(l1)
        for x in ins: I(x + " sc1")
        a.label(l2)

    def unpack(lo, hi, src):
        I(f"v_lshlrev_b32 v{lo}, 16, v{src}")
        I(f"v_and_b32 v{hi}, 0xffff0000, v{src}")

    XA = T + 32
    ONES = T + 28

    I("s_cmp_ge_u32 s2, 256")
    I("s_cbranch_scc1 L_end")
    I("s_load_dwordx16 s[32:47], s[0:1], 0")
    I("s_load_dwordx8 s[48:55], s[0:1], 64")
    I("s_load_dwordx2 s[56:57], s[0:1], 96")
    I("v_lshrrev_b32 v1, 6, v0")
    I(f"v_and_b32 v{vLANE}, 63, v0")
    I(f"v_readfirstlane_b32 s{sWAVE}, v1")
    I(f"s_and_b32 s{sX}, s2, 7")
    I(f"s_lshr_b32 s{sR}, s2, 3")
    I(f"s_lshl_b32 s{sSLOT}, s{sX}, 5")
    I(f"s_add_u32 s{sSLOT}, s{sSLOT}, s{sR}")
    g, n, q4, c4, t0, t1, t2, t3 = T, T+1, T+2, T+3, T+4, T+5, T+6, T+7
    aK = T + 48
    vAT = T + 44
    I(f"v_lshrrev_b32 v{g}, 4, v{vLANE}")
    I(f"v_and_b32 v{n}, 15, v{vLANE}")
    I(f"v_bfe_u32 v{q4}, v{vLANE}, 2, 2")
    I(f"v_and_b32 v{c4}, 3, v{vLANE}")
    I(f"v_lshlrev_b32 v{aK}, 8, v{q4}")
    I(f"v_lshl_add_u32 v{aK}, v{g}, 6, v{aK}")
    I(f"v_lshl_add_u32 v{aK}, v{c4}, 4, v{aK}")
    I(f"v_lshlrev_b32 v{vXO}, 6, v{q4}")
    I(f"v_lshl_add_u32 v{vXO}, v{g}, 4, v{vXO}")
    I(f"s_lshl_b32 s{sT0}, s{sWAVE}, 8")
    I(f"v_add_u32 v{vXO}, s{sT0}, v{vXO}")
    I(f"s_lshl_b32 s{sKV}, s{sSLOT}, 17")
    I(f"s_lshl_b32 s{sT0}, s{sWAVE}, 14")
    I(f"s_add_u32 s{sKV}, s{sKV}, s{sT0}")
    I(f"s_lshr_b32 s{sQS}, s{sSLOT}, 3")
    I(f"s_lshl_b32 s{sQS}, s{sQS}, 11")
    I(f"s_and_b32 s{sT1}, s{sSLOT}, 3")
    I(f"s_lshl_b32 s{sT0}, s{sT1}, 9")
    I(f"s_add_u32 s{sQS}, s{sQS}, s{sT0}")
    I(f"s_and_b32 s{sT0}, s{sSLOT}, 4")
    I(f"s_lshl_b32 s{sT0}, s{sT0}, 6")
    I(f"s_add_u32 s{sQS}, s{sQS}, s{sT0}")
    I(f"s_add_u32 s{sQS}, s{sQS}, {QOFF}")
    vW0, vW1, ta0, ta1 = T + 44, T + 45, T + 42, T + 43
    XQ, ACC, BUF = 28, 48, 80
    sBa, sG, sRING, sSO, sMB, sRS_ = 86, 90, 91, 92, 93, 94
    I(f"s_and_b32 s{sT0}, s{sSLOT}, {7 if rot else 0}")
    I(f"s_sub_u32 s{sT1}, s{sT0}, 5")
    I(f"s_cmp_lt_u32 s{sT0}, 5")
    I(f"s_cselect_b32 s{sG}, s{sT0}, s{sT1}")
    I(f"s_cselect_b32 s{sT1}, 0, 2")
    I(f"s_lshl_b32 s{sG}, s{sG}, 20")
    I(f"s_lshr_b32 s{sT0}, s{sSLOT}, 3")
    I(f"s_lshl_b32 s{sT0}, s{sT0}, 8")
    I(f"s_lshl_b32 s{sT2}, s{sWAVE}, 6")
    I(f"s_add_u32 s{sT0}, s{sT0}, s{sT2}")
    I(f"s_lshl_b32 s{sT2}, s{sT1}, 18")
    I(f"s_add_u32 s{sBa}, s{sT0}, s{sT2}")
    I(f"s_add_u32 s{sBa+1}, s{sBa}, {1 << 18:#x}")
    I(f"s_xor_b32 s{sBa+2}, s{sBa}, {2 << 18:#x}")
    I(f"s_xor_b32 s{sBa+3}, s{sBa+1}, {2 << 18:#x}")
    I(f"s_mul_i32 s{sRING}, s{sWAVE}, {RSL * 1024}")
    I(f"s_add_u32 s{sRING}, s{sRING}, {L_RING}")
    I(f"v_xor_b32 v{t2}, s{sT1}, v{q4}")
    I(f"v_lshlrev_b32 v{t2}, 6, v{t2}")
    I(f"v_lshl_add_u32 v{t2}, v{g}, 4, v{t2}")
    I(f"v_lshrrev_b32 v{vW0}, 2, v{vLANE}")
    I(f"v_lshlrev_b32 v{vW0}, 13, v{vW0}")
    I(f"v_lshrrev_b32 v{t3}, 4, v{vLANE}")
    I(f"v_and_b32 v{t3}, 2, v{t3}")
    I(f"v_xor_b32 v{t3}, v{t3}, v{c4}")
    I(f"v_lshl_add_u32 v{vW0}, v{t3}, 4, v{vW0}")
    I(f"v_add_u32 v{vW1}, {1 << 17:#x}, v{vW0}")
    I(f"v_lshlrev_b32 v{t0}, 4, v{vLANE}")
    cl = T + 8
    for i in range(4):
        I(f"v_mov_b32 v{cl+i}, -1")
    I(f"s_mov_b32 s{sTSI}, 0")
    if instr:
        I(f"v_mov_b32 v{vTSI}, -1")
        I(f"v_mov_b32 v{vTST}, 0")
    I(f"s_getreg_b32 s{sXCC}, hwreg(HW_REG_XCC_ID)")
    I(f"s_and_b32 s{sXCC}, s{sXCC}, 15")
    I(f"s_lshl_b32 s{sT3}, s2, 11")
    I("s_waitcnt lgkmcnt(0)")
    srd(WS, 56, WS_SIZE)
    srd(K_SRD, 34, 32 << 20)
    srd(TA, 38, 640 * 8192)
    srd(TB, 32, 1280)

    def k_issue(lo, hi, hook=None):
        for ki in range(lo, hi):
            if hook: hook(ki)
            if ki % 4 == 0 or ki == lo:
                I(f"s_add_u32 s{sT0}, s{sKV}, {(ki//4)*4096}")
            I(f"buffer_load_dwordx4 {vr(vK+4*ki)}, v{aK}, {K_SRD}, s{sT0} offen offset:{(ki%4)*1024} {kvflags}")

    I(f"s_cmp_eq_u32 s{sWAVE}, 6")
    I("s_cbranch_scc0 L_nclr")
    I(f"buffer_store_dwordx4 {vr(cl)}, v{t0}, {WS}, s{sT3} offen sc1")
    I(f"buffer_store_dwordx4 {vr(cl)}, v{t0}, {WS}, s{sT3} offen offset:1024 sc1")
    TS(0)
    I("s_branch L_early")
    a.label("L_nclr")
    I(f"s_cmp_ge_u32 s{sWAVE}, 4")
    I("s_cbranch_scc1 L_nwq")
    if prio: I(f"s_setprio {qp}")
    nis = [0]
    def g_next():
        I(f"s_add_u32 s{sG}, s{sG}, {1 << 20:#x}")
        I(f"s_cmp_eq_u32 s{sG}, {5 << 20:#x}")
        I(f"s_cselect_b32 s{sG}, 0, s{sG}")
    def w_issue(lo, hi):
        for p in range(lo, hi):
            u, h = p >> 1, p & 1
            if h == 0 or p == lo:
                I(f"s_add_u32 s{sSO}, s{sBa + (u & 3)}, s{sG}")
            I(f"s_add_u32 m0, s{sRING}, {(p % RSL) * 1024}")
            I(f"buffer_load_dwordx4 v{(vW0, vW1)[h]}, {TA}, s{sSO} offen {wflags} lds")
            nis[0] += 1
            if p % 8 == 7:
                g_next()
    for j in range(5):
        I(f"s_lshr_b32 s{sSO}, s{sG}, 12")
        I(f"buffer_load_dwordx4 {vr(XQ+4*j)}, v{t2}, {TB}, s{sSO} offen")
        nis[0] += 1
        g_next()
    w_issue(0, nw0)
    TS(0)
    I("s_branch L_early")
    a.label("L_nwq")
    k_issue(0, n0)
    TS(0)
    a.label("L_early")
    srd(V_SRD, 36, 32 << 20)
    srd(OUTS, 52, 1280)
    I(f"s_mov_b32 s{sIT}, 0")
    I(f"s_mov_b32 s{sREG}, 0")
    I(f"s_mov_b32 s{sREG2}, {CP}")
    I(f"s_mov_b32 s{sSPIN}, 0")
    I(f"s_mov_b32 s{sPURE}, 0")
    I(f"s_mov_b32 s{sNEAR}, 0")
    I(f"s_mov_b32 s{sL2E}, {L2E:#x}")
    I(f"s_lshr_b32 s{sLATE}, {late:#x}, s{sWAVE}")
    I(f"s_and_b32 s{sLATE}, s{sLATE}, 1")
    I(f"s_mul_i32 s{sTB}, s{sX}, 7")
    I(f"s_cmp_eq_u32 s{sX}, 7")
    I(f"s_cselect_b32 s{sT0}, 1, 0")
    I(f"s_sub_u32 s{sTB}, s{sTB}, s{sT0}")
    I(f"s_cmp_lt_u32 s{sX}, 6")
    I(f"s_cselect_b32 s{sNT}, 7, 6")
    I(f"s_mov_b32 s{sROLE}, 2")
    I(f"s_cmp_lt_u32 s{sR}, 27")
    I(f"s_cselect_b32 s{sROLE}, 3, s{sROLE}")
    I(f"s_add_u32 s{sT0}, s{sNT}, 20")
    I(f"s_cmp_lt_u32 s{sR}, s{sT0}")
    I(f"s_cselect_b32 s{sROLE}, 1, s{sROLE}")
    I(f"s_cmp_lt_u32 s{sR}, 20")
    I(f"s_cselect_b32 s{sROLE}, 0, s{sROLE}")
    I(f"s_cselect_b32 s{sLATE}, s{sLATE}, 0")
    for i in [1] + list(range(3, 18)):
        I(f"v_mov_b32 v{i}, {BIG:#x}")

    def v_issue():
        k1, k2, k3 = T + 49, T + 50, T + 51
        I(f"v_lshrrev_b32 v{k1}, 4, v{vLANE}")
        I(f"v_bfe_u32 v{k3}, v{vLANE}, 3, 1")
        I(f"v_lshl_add_u32 v{k3}, v{k3}, 3, v{k1}")
        I(f"v_lshlrev_b32 v{k3}, 8, v{k3}")
        I(f"v_and_b32 v{k2}, 7, v{vLANE}")
        I(f"v_lshl_add_u32 v{k3}, v{k2}, 4, v{k3}")
        for j in range(16):
            if j % 4 == 0:
                I(f"s_add_u32 s{sT0}, s{sKV}, {(j//4)*4096}")
            u, hf = (j >> 1) & 1, j & 1
            I(f"buffer_load_dwordx4 {vr(vV+4*j)}, v{k3}, {V_SRD}, s{sT0} offen offset:{u*1024+hf*128} {kvflags}")

    def role_dma():
        I(f"s_lshl_b32 s{sT1}, s{sWAVE}, 13")
        I(f"s_add_u32 s{sT1}, s{sT1}, {L_ROLE}")
        I(f"s_mov_b32 s{sT0}, s{sRB}")
        for e in range(8):
            if e % 4 == 0:
                I(f"s_mov_b32 m0, s{sT1}")
                if e == 0:
                    I(f"s_add_u32 s{sT1}, s{sT1}, 4096")
            I(f"s_cmp_gt_u32 s{sRN}, {e}")
            I(f"s_cselect_b32 s{sT2}, s{sT0}, {BIG:#x}")
            I(f"buffer_load_dwordx4 v{vRDMA}, {TB}, s{sT2} offen offset:{(e%4)*1024} {rflags} lds")
            if e < 7:
                I(f"s_add_u32 s{sT0}, s{sT0}, s{sRSTEP}")
                if e % 4 == 3:
                    I(f"s_add_u32 s{sT0}, s{sT0}, 3072")
                else:
                    I(f"s_sub_u32 s{sT0}, s{sT0}, 1024")

    def rank_off(dst, rk, tmp):
        I(f"s_and_b32 s{tmp}, s{rk}, 15")
        I(f"s_mul_i32 s{tmp}, s{tmp}, {ZR}")
        I(f"s_lshr_b32 s{dst}, s{rk}, 4")
        I(f"s_lshl_b32 s{dst}, s{dst}, 14")
        I(f"s_add_u32 s{dst}, s{dst}, s{tmp}")

    I(f"s_cmp_ge_u32 s{sWAVE}, 5")
    I("s_cbranch_scc1 L_init567")
    I(f"v_bfe_u32 v{t0}, v{vLANE}, 3, 1")
    I(f"v_and_b32 v{t1}, 7, v{vLANE}")
    I(f"s_lshl_b32 s{sT1}, s{sWAVE}, 2")
    rank_off(sT0, sT1, sT2)
    I(f"v_mul_u32_u24 v{vGO}, {ZR}, v{t0}")
    I(f"v_mul_u32_u24 v{t1}, {ZX}, v{t1}")
    I(f"v_add3_u32 v{vGO}, v{vGO}, v{t1}, s{sT0}")
    I(f"v_lshl_add_u32 v{vGO}, v{g}, 4, v{vGO}")
    I(f"s_mul_i32 s{sT0}, s{sWAVE}, {PP}")
    I(f"s_add_u32 s{sT0}, s{sT0}, {L_PB1 + 512}")
    I(f"v_lshlrev_b32 v{t2}, 2, v{g}")
    I(f"v_add_u32 v{t2}, s{sT0}, v{t2}")
    I(f"v_lshlrev_b32 v{t3}, 2, v{vLANE}")
    I(f"v_add_u32 v{t3}, {L_DUM}, v{t3}")
    I(f"v_cmp_eq_u32 vcc, v{q4}, v{g}")
    I(f"v_cndmask_b32 v{vSW}, v{t3}, v{t2}, vcc")
    I(f"s_mul_i32 s{sT0}, s{sWAVE}, {PP}")
    I(f"v_lshlrev_b32 v{vPQ}, 4, v{g}")
    I(f"v_add_u32 v{vPQ}, s{sT0}, v{vPQ}")
    I(f"s_and_b32 s{sT0}, s{sSLOT}, 3")
    I(f"s_lshl_b32 s{sT0}, s{sT0}, 2")
    I(f"s_lshl_b32 s{sKM}, 0x00010001, s{sT0}")
    I(f"s_mov_b32 s{sKM+1}, s{sKM}")
    I("s_branch L_initc")

    a.label("L_init567")
    I(f"s_cmp_eq_u32 s{sWAVE}, 6")
    I("s_cbranch_scc1 L_initc")
    I(f"s_cmp_eq_u32 s{sWAVE}, 7")
    I("s_cbranch_scc1 L_init7")
    rank_off(sT0, sR, sT1)
    I(f"s_mul_i32 s{sT1}, s{sX}, {ZX}")
    I(f"s_add_u32 s{sT0}, s{sT0}, s{sT1}")
    I(f"s_add_u32 s{sRB}, s{sT0}, {ZOFF}")
    I(f"s_lshl_b32 s{sT0}, s{sX}, 3")
    I(f"s_add_u32 s{sT0}, s{sT0}, s{sR}")
    I(f"s_sub_u32 s{sT0}, s{sT0}, 20")
    I(f"s_lshl_b32 s{sT0}, s{sT0}, 7")
    I(f"s_add_u32 s{sT0}, s{sT0}, {HOFF}")
    I(f"s_cmp_eq_u32 s{sROLE}, 1")
    I(f"s_cselect_b32 s{sRB}, s{sT0}, s{sRB}")
    I(f"v_lshlrev_b32 v{vRR}, 4, v{vLANE}")
    I(f"v_lshlrev_b32 v{vQP}, 2, v{vLANE}")
    I(f"v_add_u32 v{vQP}, s{sQS}, v{vQP}")
    I(f"s_and_b32 s{sT0}, s{sQS}, {~2047 & 0xffffffff:#x}")
    I(f"v_lshlrev_b32 v{vQG}, 3, v{vLANE}")
    I(f"v_add_u32 v{vQG}, s{sT0}, v{vQG}")
    I(f"v_mov_b32 v{t0}, 0")
    I(f"v_mov_b32 v{t1}, 0")
    I(f"v_mov_b32 v{t2}, {L_FLAG}")
    I(f"ds_write_b64 v{t2}, v[{t0}:{t1}] offset:8")
    I(f"v_and_b32 v{t2}, 31, v{vLANE}")
    I(f"v_lshlrev_b32 v{t2}, 1, v{t2}")
    srd(TA, 46, 1728 * 2)
    I(f"s_add_u32 s{sT0}, s{sTB}, s{sR}")
    I(f"s_sub_u32 s{sT0}, s{sT0}, 20")
    I(f"s_lshl_b32 s{sT0}, s{sT0}, 6")
    I(f"s_cmp_eq_u32 s{sROLE}, 1")
    I(f"s_cselect_b32 s{sT0}, s{sT0}, {BIG:#x}")
    I(f"s_or_b32 s{sT2}, s{sROLE}, s{sX}")
    I(f"s_lshl_b32 s{sT1}, s{sR}, 6")
    I(f"s_cmp_eq_u32 s{sT2}, 0")
    I(f"s_cselect_b32 s{sT1}, s{sT1}, {BIG:#x}")
    I(f"buffer_load_ushort v{vB1}, v{t2}, {TA}, s{sT0} offen")
    I(f"buffer_load_ushort v{vXF}, v{t2}, {TB}, s{sT1} offen")
    I(f"v_lshrrev_b32 v{t1}, 3, v{vLANE}")
    I(f"v_lshlrev_b32 v{t1}, 4, v{t1}")
    I(f"v_add_u32 v{vRP}, s{sRB}, v{t1}")
    I(f"v_and_b32 v{t1}, 31, v{vLANE}")
    I(f"v_lshlrev_b32 v{t1}, 1, v{t1}")
    I(f"s_or_b32 s{sT2}, s{sROLE}, s{sX}")
    I(f"s_lshl_b32 s{sT1}, s{sR}, 6")
    I(f"s_add_u32 s{sT1}, s{sT1}, {XOFF}")
    I(f"s_cmp_eq_u32 s{sT2}, 0")
    I(f"s_cselect_b32 s{sT1}, s{sT1}, {BIG:#x}")
    I(f"v_add_u32 v{vXFA}, s{sT1}, v{t1}")
    I("s_branch L_initc")

    a.label("L_init7")
    I(f"v_lshlrev_b32 v{vCR}, 3, v{vLANE}")
    I(f"v_add_u32 v{vCR}, {L_O}, v{vCR}")
    I(f"v_and_b32 v{t0}, 7, v{vLANE}")
    I(f"v_lshlrev_b32 v{vCML}, 3, v{t0}")
    I(f"v_add_u32 v{vCML}, {L_ML}, v{vCML}")
    I(f"s_lshr_b32 s{sT0}, s{sSLOT}, 3")
    I(f"s_lshl_b32 s{sT1}, s{sT0}, 11")
    I(f"s_and_b32 s{sT2}, s{sSLOT}, 7")
    I(f"s_lshl_b32 s{sT3}, s{sT2}, 4")
    I(f"s_add_u32 s{sT1}, s{sT1}, s{sT3}")
    I(f"v_lshrrev_b32 v{t0}, 5, v{vLANE}")
    I(f"v_lshlrev_b32 v{vCP}, 10, v{t0}")
    I(f"v_lshl_add_u32 v{vCP}, v{q4}, 8, v{vCP}")
    I(f"v_and_b32 v{t0}, 1, v{g}")
    I(f"v_lshl_add_u32 v{vCP}, v{t0}, 7, v{vCP}")
    I(f"v_lshl_add_u32 v{vCP}, v{c4}, 2, v{vCP}")
    I(f"v_add_u32 v{vCP}, s{sT1}, v{vCP}")
    I(f"s_lshl_b32 s{sT0}, s{sT0}, 7")
    I(f"s_lshl_b32 s{sT2}, s{sT2}, 3")
    I(f"s_add_u32 s{sT0}, s{sT0}, s{sT2}")
    I(f"s_add_u32 s{sT0}, s{sT0}, {MLOFF}")
    I(f"v_mov_b32 v{vCPM}, s{sT0}")
    I(f"s_and_b32 s{sT0}, s{sQS}, {~2047 & 0xffffffff:#x}")
    I(f"v_lshlrev_b32 v{vQG7}, 3, v{vLANE}")
    I(f"v_add_u32 v{vQG7}, s{sT0}, v{vQG7}")

    a.label("L_initc")
    I(f"s_mov_b32 s{sRN}, 0")
    I(f"s_mov_b32 s{sRB}, 0")
    I(f"s_mov_b32 s{sRSTEP}, 0")
    srd(TB, 40, 4096 * 1280)
    I(f"v_lshrrev_b32 v{t0}, 2, v{vLANE}")
    I(f"v_lshlrev_b32 v{t1}, 4, v{c4}")
    I(f"s_cmp_eq_u32 s{sROLE}, 0")
    I("s_cbranch_scc0 L_rp1")
    I(f"s_lshl_b32 s{sT0}, s{sX}, 3")
    I(f"s_add_u32 s{sT0}, s{sT0}, s{sWAVE}")
    I(f"s_mul_i32 s{sT0}, s{sT0}, {64*1280}")
    I(f"s_lshl_b32 s{sT1}, s{sR}, 6")
    I(f"s_add_u32 s{sRB}, s{sT0}, s{sT1}")
    I(f"s_mov_b32 s{sRSTEP}, {16*1280}")
    I(f"s_mov_b32 s{sRN}, 4")
    I(f"v_mul_u32_u24 v{vRDMA}, 1280, v{t0}")
    I(f"v_add_u32 v{vRDMA}, v{vRDMA}, v{t1}")
    I(f"s_lshr_b32 s{sT0}, s{sWAVE}, 1")
    I(f"s_lshl_b32 s{sT1}, s{sX}, 2")
    I(f"s_add_u32 s{sT0}, s{sT0}, s{sT1}")
    I(f"s_lshl_b32 s{sT1}, s{sX}, 3")
    I(f"s_add_u32 s{sT1}, s{sT1}, s{sWAVE}")
    I(f"s_lshl_b32 s{sT1}, s{sT1}, 10")
    I(f"v_lshlrev_b32 v{t2}, 4, v{vLANE}")
    I(f"v_add_u32 v{vA0}, s{sT1}, v{t2}")
    I(f"v_xor_b32 v{t2}, v{g}, v{q4}")
    I(f"v_and_b32 v{t2}, 1, v{t2}")
    I(f"v_lshl_add_u32 v{t2}, v{t2}, 2, v{c4}")
    I(f"v_lshlrev_b32 v{t2}, 3, v{t2}")
    I(f"s_lshl_b32 s{sT0}, s{sT0}, 7")
    I(f"s_add_u32 s{sT0}, s{sT0}, {MLOFF}")
    I(f"v_add_u32 v{vA2}, s{sT0}, v{t2}")
    I("s_branch L_rpd")
    a.label("L_rp1")
    I(f"s_cmp_eq_u32 s{sROLE}, 1")
    I("s_cbranch_scc0 L_rp2")
    srd(TB, 44, 640 * 3456)
    I(f"s_mul_i32 s{sT0}, s{sWAVE}, {128*3456}")
    I(f"s_add_u32 s{sT1}, s{sTB}, s{sR}")
    I(f"s_sub_u32 s{sT1}, s{sT1}, 20")
    I(f"s_lshl_b32 s{sT1}, s{sT1}, 6")
    I(f"s_add_u32 s{sRB}, s{sT0}, s{sT1}")
    I(f"s_mov_b32 s{sRSTEP}, {16*3456}")
    I(f"s_cmp_lt_u32 s{sWAVE}, 5")
    I(f"s_cselect_b32 s{sRN}, 8, 0")
    I(f"v_mul_u32_u24 v{vRDMA}, 3456, v{t0}")
    I(f"v_add_u32 v{vRDMA}, v{vRDMA}, v{t1}")
    I("s_branch L_rpd")
    a.label("L_rp2")
    I(f"v_mov_b32 v{vRDMA}, 0")
    I(f"s_cmp_eq_u32 s{sROLE}, 2")
    I("s_cbranch_scc0 L_rpd")
    srd(TB, 48, 1728 * 1280)
    I(f"s_mul_i32 s{sT0}, s{sTB}, {32*1280}")
    I(f"s_sub_u32 s{sT2}, s{sR}, 27")
    I(f"s_lshl_b32 s{sT1}, s{sT2}, 8")
    I(f"s_add_u32 s{sT0}, s{sT0}, s{sT1}")
    I(f"s_lshl_b32 s{sT1}, s{sWAVE}, 5")
    I(f"s_add_u32 s{sRB}, s{sT0}, s{sT1}")
    I(f"s_mov_b32 s{sRSTEP}, {32*1280}")
    I(f"s_mov_b32 s{sRN}, 7")
    I(f"v_lshrrev_b32 v{t0}, 1, v{vLANE}")
    I(f"v_mul_u32_u24 v{vRDMA}, 1280, v{t0}")
    I(f"v_and_b32 v{t1}, 1, v{vLANE}")
    I(f"v_lshl_add_u32 v{vRDMA}, v{t1}, 4, v{vRDMA}")
    I(f"s_lshl_b32 s{sT0}, s{sX}, 10")
    I(f"s_add_u32 s{sT0}, s{sT0}, {HOFF}")
    I(f"v_lshlrev_b32 v{t0}, 4, v{g}")
    I(f"v_add_u32 v{vA0}, s{sT0}, v{t0}")
    I(f"s_mov_b32 s{sT1}, 768")
    I(f"s_cmp_eq_u32 s{sNT}, 7")
    I(f"s_cselect_b32 s{sT1}, s{sT1}, {BIG:#x}")
    I(f"v_add_u32 v{vA1}, s{sT1}, v{vA0}")
    I(f"s_lshl_b32 s{sT0}, s{sT2}, 2")
    I(f"s_lshr_b32 s{sT1}, s{sWAVE}, 1")
    I(f"s_add_u32 s{sT1}, s{sT0}, s{sT1}")
    rank_off(sT0, sT1, sT3)
    I(f"s_and_b32 s{sT1}, s{sWAVE}, 1")
    I(f"s_lshl_b32 s{sT1}, s{sT1}, 5")
    I(f"s_add_u32 s{sT0}, s{sT0}, s{sT1}")
    I(f"v_lshlrev_b32 v{t0}, 3, v{g}")
    I(f"v_add_u32 v{t0}, s{sT0}, v{t0}")
    I(f"s_mul_i32 s{sT1}, s{sX}, {ZX}")
    I(f"s_add_u32 s{sT1}, s{sT1}, {YOFF}")
    I(f"v_add_u32 v{vA2}, s{sT1}, v{t0}")
    I(f"v_mul_u32_u24 v{t1}, {ZX}, v{n}")
    I(f"v_add_u32 v{t1}, v{t1}, v{t0}")
    I(f"v_add_u32 v{t1}, {ZOFF}, v{t1}")
    I(f"s_cmp_eq_u32 s{sX}, 0")
    I(f"s_cselect_b32 s{sT0}, 8, 0")
    I(f"v_mov_b32 v{t2}, {BIG:#x}")
    I(f"v_cmp_gt_u32 vcc, s{sT0}, v{n}")
    I(f"v_cndmask_b32 v{vA3}, v{t2}, v{t1}, vcc")
    a.label("L_rpd")

    I(f"s_mul_i32 s{sT0}, s{sWAVE}, {PP}")
    I(f"v_lshlrev_b32 v{vPW}, 4, v{n}")
    I(f"v_lshl_add_u32 v{vPW}, v{g}, 2, v{vPW}")
    I(f"v_add_u32 v{vPW}, s{sT0}, v{vPW}")
    I(f"v_lshl_add_u32 v{vQR}, v{g}, 2, v{c4}")
    I(f"v_lshlrev_b32 v{vQR}, 4, v{vQR}")
    I(f"v_add_u32 v{vQR}, {L_QB}, v{vQR}")
    I(f"s_lshl_b32 s{sT0}, s{sWAVE}, 10")
    I(f"s_add_u32 s{sT0}, s{sT0}, {L_O}")
    I(f"v_bfe_u32 v{t0}, v{vLANE}, 3, 1")
    I(f"v_lshlrev_b32 v{vOW}, 9, v{t0}")
    I(f"v_and_b32 v{t0}, 7, v{vLANE}")
    I(f"v_lshl_add_u32 v{vOW}, v{t0}, 5, v{vOW}")
    I(f"v_and_b32 v{t1}, 1, v{g}")
    I(f"v_lshl_add_u32 v{vOW}, v{t1}, 4, v{vOW}")
    I(f"v_add_u32 v{vOW}, s{sT0}, v{vOW}")
    I(f"s_lshl_b32 s{sT0}, s{sWAVE}, 3")
    I(f"s_add_u32 s{sT0}, s{sT0}, {L_ML}")
    I(f"v_lshlrev_b32 v{vMLW}, 3, v{vLANE}")
    I(f"v_add_u32 v{vMLW}, {L_DUM}, v{vMLW}")
    I(f"v_writelane_b32 v{vMLW}, s{sT0}, 63")
    for u in range(2):
        for r in range(4):
            sb = 0x0100 if u == (r >> 1) else 0x0302
            d = vSEL + u * 4 + r
            I(f"v_mov_b32 v{d}, 0x0c0c0c0c")
            I(f"v_mov_b32 v{t1}, {0x0c0c0000 | sb:#x}")
            I(f"v_mov_b32 v{t2}, {(sb << 16) | 0x0c0c:#x}")
            I(f"v_cmp_eq_u32 vcc, {2*r}, v{t0}")
            I(f"v_cndmask_b32 v{d}, v{d}, v{t1}, vcc")
            I(f"v_cmp_eq_u32 vcc, {2*r+1}, v{t0}")
            I(f"v_cndmask_b32 v{d}, v{d}, v{t2}, vcc")

    def tr_addr(dst, pitch, base_s, x0=T + 48):
        x1 = x0 + 1
        I(f"v_lshrrev_b32 v{x0}, 4, v{vLANE}")
        I(f"v_bfe_u32 v{x1}, v{vLANE}, 2, 2")
        I(f"v_lshl_add_u32 v{x0}, v{x0}, 3, v{x1}")
        I(f"v_lshlrev_b32 v{x0}, {pitch.bit_length()-1}, v{x0}")
        I(f"v_and_b32 v{x1}, 3, v{vLANE}")
        I(f"v_lshl_add_u32 v{x0}, v{x1}, 3, v{x0}")
        I(f"v_add_u32 v{dst}, s{base_s}, v{x0}")

    def ones():
        for i in range(4):
            I(f"v_mov_b32 v{ONES+i}, 0x3f803f80")

    def gemv(ntile, Bbase, bidx):
        S1, S2 = T + 16, T + 20
        A0_, A1_ = vr(XA), vr(XA + 4)
        I(f"v_mfma_f32_16x16x32_bf16 {vr(S2)}, {A0_}, {A0_}, 0")
        I(f"v_mfma_f32_16x16x32_bf16 {vr(S2)}, {A1_}, {A1_}, {vr(S2)}")
        I(f"v_mfma_f32_16x16x32_bf16 {vr(S1)}, {A0_}, {vr(ONES)}, 0")
        I(f"v_mfma_f32_16x16x32_bf16 {vr(S1)}, {A1_}, {vr(ONES)}, {vr(S1)}")
        post = [
            f"v_pk_add_f32 v[{S2}:{S2+1}], v[{S2}:{S2+1}], v[{S2+2}:{S2+3}]",
            f"v_add_f32 v{S2}, v{S2}, v{S2+1}",
            f"v_add_f32_dpp v{S2}, v{S2}, v{S2} quad_perm:[1,0,3,2] row_mask:0xf bank_mask:0xf",
            f"v_pk_add_f32 v[{S1}:{S1+1}], v[{S1}:{S1+1}], v[{S1+2}:{S1+3}]",
            f"v_add_f32_dpp v{S2}, v{S2}, v{S2} quad_perm:[2,3,0,1] row_mask:0xf bank_mask:0xf",
            f"v_add_f32 v{S1}, v{S1}, v{S1+1}",
            f"v_add_f32_dpp v{S2}, v{S2}, v{S2} row_half_mirror row_mask:0xf bank_mask:0xf",
            f"ds_write2_b32 v{vSW}, v{S1}, v{S2} offset0:0 offset1:4",
        ]
        def dpost(t):
            D = T + 8 * t
            return [f"v_pk_add_f32 v[{D}:{D+1}], v[{D}:{D+1}], v[{D+2}:{D+3}]",
                    f"v_pk_add_f32 v[{D+4}:{D+5}], v[{D+4}:{D+5}], v[{D+6}:{D+7}]",
                    f"v_add_f32 v{D}, v{D}, v{D+1}",
                    f"v_add_f32_dpp v{D}, v{D+4}, v{D+5} quad_perm:[0,1,2,3] row_mask:0xc bank_mask:0xf",
                    f"ds_write_b32 v{vPW}, v{D} offset:{L_PB1 + t*256}"]
        for t in range(ntile):
            post += dpost(t)
        k = 0
        for t in range(ntile):
            for j in range(2):
                D = T + 8 * t + 4 * j
                for h in range(2):
                    I(f"v_mfma_f32_16x16x32_bf16 {vr(D)}, {(A0_, A1_)[h]}, {vr(Bbase+4*bidx(2*h+j,t))}, {vr(D) if h else '0'}")
                    k += 1
                    if k >= 5 and k < 4 * ntile:
                        for x in post[:2]: I(x)
                        post = post[2:]
        for x in post: I(x)
        I("s_waitcnt lgkmcnt(0)")

    def gemv_q(first=False):
        S1, S2 = T + 16, T + 20
        for t in range(4):
            I(f"v_mfma_f32_16x16x32_bf16 {vr(T+4*t)}, {vr(vBQ+4*t)}, {vr(XA)}, 0")
        I(f"v_mfma_f32_16x16x32_bf16 {vr(S1)}, {vr(XA)}, {vr(ONES)}, 0")
        I(f"v_mfma_f32_16x16x32_bf16 {vr(S2)}, {vr(XA)}, {vr(XA)}, 0")
        if first:
            for t in range(4):
                I(f"v_mfma_f32_16x16x32_bf16 {vr(vRB+4*t)}, {vr(vBQ+4*t)}, {vr(ONES)}, 0")
        I(f"s_mov_b64 exec, s[{sKM}:{sKM+1}]")
        for t in range(4):
            I(f"ds_write_b128 v{vPQ}, {vr(T+4*t)} offset:{L_PB1 + t*64}")
        if first:
            for t in range(4):
                I(f"ds_write_b128 v{vPQ}, {vr(vRB+4*t)} offset:{L_PB1 + 256 + t*64}")
        I("s_mov_b64 exec, -1")
        I(f"ds_write2_b32 v{vSW}, v{S1}, v{S2} offset0:0 offset1:4")
        I("s_waitcnt lgkmcnt(0)")

    def gather(sreg):
        poll([f"buffer_load_dwordx4 {vr(XA)}, v{vGO}, {WS}, s{sreg} offen sc1",
              f"buffer_load_dwordx4 {vr(XA+4)}, v{vGO}, {WS}, s{sreg} offen offset:{2*ZR} sc1"],
             [XA, XA + 4], groups=[[XA], [XA + 4]])

    def reduce_read(nw, base):
        for v in range(nw):
            I(f"ds_read_b128 {vr(T+4*v)}, v{vRR} offset:{base + v*PP}")

    def reduce_sum(nw, dst):
        np_ = 2 * nw
        idx = list(range(np_))
        while len(idx) > 1:
            nx = []
            for i in range(0, len(idx) - 1, 2):
                d, s = idx[i], idx[i + 1]
                I(f"v_pk_add_f32 v[{T+2*d}:{T+2*d+1}], v[{T+2*d}:{T+2*d+1}], v[{T+2*s}:{T+2*s+1}]")
                nx.append(d)
            if len(idx) % 2:
                nx.append(idx[-1])
            idx = nx
        I(f"v_add_f32 v{dst}, v{T}, v{T+1}")

    rTOT, rMEAN, rVAR, rMB, rSD, rR, rU, rT, rINV, rC1, rC2, rCS = [T + 32 + i for i in range(12)]

    def cs_read(area, dst):
        l = a.newlab("Lcs")
        I(f"s_cmp_eq_u32 s{sIT}, 0")
        I(f"s_cbranch_scc0 {l}")
        I(f"v_lshrrev_b32 v{rT}, 2, v{vRR}")
        for v in range(5):
            I(f"ds_read_b32 v{T+24+v}, v{rT} offset:{area + v*128}")
        I("s_waitcnt lgkmcnt(0)")
        I(f"v_add_f32 v{dst}, v{T+24}, v{T+25}")
        I(f"v_add_f32 v{rT}, v{T+26}, v{T+27}")
        I(f"v_add_f32 v{dst}, v{dst}, v{T+28}")
        I(f"v_add_f32 v{dst}, v{dst}, v{rT}")
        a.label(l)

    def stats(l0=32):
        if l0 is not None:
            I(f"v_readlane_b32 s{sT0}, v{rTOT}, {l0}")
            I(f"v_readlane_b32 s{sT1}, v{rTOT}, {l0+1}")
            I(f"v_mul_f32 v{rMEAN}, s{sT0}, v{rINV}")
            I(f"v_mul_f32 v{rVAR}, s{sT1}, v{rINV}")
        I(f"v_fma_f32 v{rVAR}, -v{rMEAN}, v{rMEAN}, v{rVAR}")
        I(f"v_max_f32 v{rVAR}, 0, v{rVAR}")
        I(f"v_cvt_pk_bf16_f32 v{rT}, v{rMEAN}, v{rVAR}")
        I(f"v_and_b32 v{rU}, 0xffff0000, v{rT}")
        I(f"v_lshlrev_b32 v{rMB}, 16, v{rT}")
        I(f"v_add_f32 v{rU}, {f2u(1e-5):#x}, v{rU}")
        I(f"v_cvt_pk_bf16_f32 v{rU}, v{rU}, v{rU}")
        I(f"v_and_b32 v{rU}, 0xffff0000, v{rU}")
        I(f"v_sqrt_f32 v{rU}, v{rU}")
        I(f"v_cvt_pk_bf16_f32 v{rU}, v{rU}, v{rU}")
        I(f"v_and_b32 v{rSD}, 0xffff0000, v{rU}")
        I(f"v_rcp_f32 v{rR}, v{rSD}")

    def pack_pairs(src, dst):
        I(f"v_mov_b32_dpp v{rT}, v{src} quad_perm:[1,0,3,2] row_mask:0xf bank_mask:0xf")
        I(f"v_cvt_pk_bf16_f32 v{dst}, v{src}, v{rT}")
        I(f"v_min_u32 v{dst}, 0xfffffffe, v{dst}")

    def q_reduce(first=False):
        qa, qs, QS = T + 44, T + 45, T + 20
        I(f"v_lshlrev_b32 v{qa}, 2, v{vLANE}")
        I(f"v_and_b32 v{qs}, 1, v{vLANE}")
        I(f"v_lshlrev_b32 v{qs}, 4, v{qs}")
        return qa, qs, QS

    def q_reduce2(qa, qs, QS, first=False):
        for v in range(5):
            I(f"ds_read_b128 {vr(T+4*v)}, v{qs} offset:{L_PB1 + 512 + v*PP}")
        for v in range(5):
            I(f"ds_read_b32 v{QS+v}, v{qa} offset:{L_PB1 + v*PP}")
        if first:
            for v in range(5):
                I(f"ds_read_b32 v{QS+5+v}, v{qa} offset:{L_WQ + v*4096}")
        I(f"s_waitcnt lgkmcnt({10 if first else 5})")
        reduce_sum(5, rTOT)
        stats(0)
        I("s_waitcnt lgkmcnt(0)")
        I(f"v_add_f32 v{QS}, v{QS}, v{QS+1}")
        I(f"v_add_f32 v{QS+2}, v{QS+2}, v{QS+3}")
        I(f"v_add_f32 v{QS}, v{QS}, v{QS+4}")
        I(f"v_add_f32 v{QS}, v{QS}, v{QS+2}")
        if first:
            I(f"v_add_f32 v{vCSQ}, v{QS+5}, v{QS+6}")
            I(f"v_add_f32 v{QS+7}, v{QS+7}, v{QS+8}")
            I(f"v_add_f32 v{vCSQ}, v{vCSQ}, v{QS+9}")
            I(f"v_add_f32 v{vCSQ}, v{vCSQ}, v{QS+7}")
        I(f"v_fma_f32 v{rU}, -v{rMB}, v{vCSQ}, v{QS}")
        I(f"v_mul_f32 v{rU}, v{rU}, v{rR}")
        I(f"v_min_u32 v{rU}, 0xfffffffe, v{rU}")

    def q_gather(va, qa):
        poll([f"buffer_load_dwordx2 v[{T+2*k}:{T+2*k+1}], v{va}, {WS}, s{sREG} offen offset:{k*512} sc1" for k in range(4)],
             list(range(T, T + 8)), groups=[[T + 2 * k, T + 2 * k + 1] for k in range(4)])
        I(f"v_pk_add_f32 v[{T}:{T+1}], v[{T}:{T+1}], v[{T+2}:{T+3}]")
        I(f"v_pk_add_f32 v[{T+4}:{T+5}], v[{T+4}:{T+5}], v[{T+6}:{T+7}]")
        I(f"v_pk_add_f32 v[{T}:{T+1}], v[{T}:{T+1}], v[{T+4}:{T+5}]")
        I(f"v_cvt_pk_bf16_f32 v{T}, v{T}, v{T+1}")
        I(f"ds_write_b32 v{qa}, v{T} offset:{L_QB}")

    def lds_wait(off, val, ge=False):
        lab = a.newlab("Lw"); done = a.newlab("Lwd")
        I(f"v_mov_b32 v{T+47}, {L_FLAG}")
        a.label(lab)
        I(f"ds_read_b32 v{T+46}, v{T+47} offset:{off}")
        I(f"s_add_u32 s{sSPIN}, s{sSPIN}, 1")
        I("s_waitcnt lgkmcnt(0)")
        I(f"v_readfirstlane_b32 s{sT3}, v{T+46}")
        I(f"s_cmp_{'ge' if ge else 'eq'}_u32 s{sT3}, {val}")
        I(f"s_cbranch_scc1 {done}")
        I(f"s_cmp_lt_u32 s{sSPIN}, {spin_limit}")
        I(f"s_cbranch_scc1 {lab}")
        a.label(done)

    def sp(p):
        if prio: I(f"s_setprio {p}")

    I(f"v_mov_b32 v{rINV}, {f2u(1.0/640):#x}")
    I("s_waitcnt lgkmcnt(0)")
    I("s_barrier")
    TS(1)
    I(f"s_cmp_ge_u32 s{sWAVE}, 4")
    I("s_cbranch_scc1 L_s4567")
    srd(TA, 38, 640 * 8192)
    w_issue(nw0, RSL)
    TS(37)
    tr_addr(ta0, 64, sRING, T + 25)
    I(f"v_bfe_u32 v{T+25}, v{vLANE}, 4, 1")
    I(f"v_lshl_add_u32 v{ta0}, v{T+25}, 5, v{ta0}")
    I(f"v_xor_b32 v{ta1}, 32, v{ta0}")
    I(f"s_waitcnt vmcnt({nis[0] - 5})")
    setexec(0x22222222, 0x22222222)
    for i in range(20):
        I(f"v_mov_b32 v{XQ+i}, 0x3f803f80")
    setexec(0xFFFFFFFF, 0xFFFFFFFF)
    for j in range(5):
        I(f"v_mfma_f32_16x16x32_bf16 {vr(BUF)}, {vr(XQ+4*j)}, {vr(XQ+4*j)}, {vr(BUF) if j else '0'}")
    for i in range(4):
        I(f"v_readlane_b32 s{sF+i}, v{BUF}, {20*i+1}")
        I(f"v_readlane_b32 s{sF+4+i}, v{BUF}, {20*i}")
    I(f"v_mov_b32 v{rMEAN}, s{sF}")
    I(f"v_mov_b32 v{rVAR}, s{sF+4}")
    for i in range(1, 4):
        I(f"v_add_f32 v{rMEAN}, s{sF+i}, v{rMEAN}")
        I(f"v_add_f32 v{rVAR}, s{sF+4+i}, v{rVAR}")
    I(f"v_mul_f32 v{rMEAN}, v{rMEAN}, v{rINV}")
    I(f"v_mul_f32 v{rVAR}, v{rVAR}, v{rINV}")
    stats(None)
    I(f"v_readfirstlane_b32 s{sMB}, v{rMB}")
    I(f"v_readfirstlane_b32 s{sRS_}, v{rR}")
    TS(2)
    def q_mma(u):
        for t in range(2):
            acc = ACC + 16 * t + 4 * (u & 3)
            I(f"v_mfma_f32_16x16x32_bf16 {vr(acc)}, {vr(BUF + 8*(u%4) + 4*t)}, {vr(XQ+4*(u>>2))}, {vr(acc) if u >= 4 else '0'}")
    for u in range(20):
        I(f"s_waitcnt vmcnt({nis[0] - 5 - 2*u - 2})")
        if u == 0: TS(38)
        o = (2 * u % RSL) * 1024
        for t in range(2):
            b = BUF + 8 * (u % 4) + 4 * t
            I(f"ds_read_b64_tr_b16 v[{b}:{b+1}], v{(ta0, ta1)[t]} offset:{o}")
            I(f"ds_read_b64_tr_b16 v[{b+2}:{b+3}], v{(ta0, ta1)[t]} offset:{o+256}")
        if u:
            I("s_waitcnt lgkmcnt(4)")
            q_mma(u - 1)
            p = RSL + 2 * (u - 1)
            if p < 40:
                w_issue(p, p + 2)
                if p + 2 == 40:
                    k_issue(0, qk)
                    nis[0] += qk
                    TS(39)
    I(f"v_mov_b32 v{BUF+0}, {L_FLAG}")
    I(f"v_mov_b32 v{BUF+1}, 1")
    I(f"v_lshrrev_b32 v{BUF+2}, 4, v{vLANE}")
    I(f"v_lshlrev_b32 v{BUF+2}, 3, v{BUF+2}")
    I(f"s_lshl_b32 s{sT0}, s{sWAVE}, 6")
    I(f"v_add_u32 v{BUF+2}, s{sT0}, v{BUF+2}")
    I(f"v_mov_b32 v{BUF+3}, s{sMB}")
    I(f"v_xor_b32 v{BUF+3}, 0x80000000, v{BUF+3}")
    I("s_waitcnt lgkmcnt(0)")
    q_mma(19)
    for aa in range(1, 4):
        for t in range(2):
            for i in range(4):
                d = ACC + 16 * t + i
                I(f"v_add_f32_dpp v{d}, v{d+4*aa}, v{d} row_shl:{4*aa} row_mask:0xf bank_mask:0xf")
    for t in range(2):
        for i in range(4):
            d = ACC + 16 * t + i
            I(f"v_fmac_f32_dpp v{d}, v{d}, v{BUF+3} quad_perm:[1,1,1,1] row_mask:0xf bank_mask:0xf")
    for t in range(2):
        for i in range(4):
            d = ACC + 16 * t + i
            I(f"v_mul_f32 v{d}, s{sRS_}, v{d}")
    for t in range(2):
        d = ACC + 16 * t
        I(f"v_cvt_pk_bf16_f32 v{d}, v{d}, v{d+1}")
        I(f"v_cvt_pk_bf16_f32 v{d+1}, v{d+2}, v{d+3}")
    setexec(0x00010001, 0x00010001)
    for t in range(2):
        d = ACC + 16 * t
        I(f"ds_write_b64 v{BUF+2}, v[{d}:{d+1}] offset:{L_QB + 32*t}")
    setexec(1, 0)
    I("s_waitcnt lgkmcnt(0)")
    I(f"ds_add_u32 v{BUF+0}, v{BUF+1} offset:12")
    setexec(0xFFFFFFFF, 0xFFFFFFFF)
    TS(5)
    sp(sp1)
    k_issue(qk, 16)
    I("s_branch L_own")

    a.label("L_s4567")
    I(f"s_cmp_eq_u32 s{sWAVE}, 6")
    I("s_cbranch_scc0 L_krest")
    sp(3)
    I(f"s_mov_b32 s{sVOTE}, 0")
    I(f"s_cmp_lt_u32 s{sR}, {ncal}")
    I("s_cbranch_scc0 L_ncal")
    MK = 0x13579bdf
    I(f"s_lshl_b32 s{sT0}, s2, 7")
    I(f"s_add_u32 s88, s{sT0}, {CALOFF + 0x10000}")
    I(f"s_load_dword s86, s[56:57], s88 glc")
    I(f"s_add_u32 s{sT0}, s{sT0}, {CALOFF}")
    I(f"s_lshl_b32 s{sVOTE}, s{sR}, 13")
    I(f"s_and_b32 s{sVOTE}, s{sVOTE}, {CP}")
    I(f"s_add_u32 s{sT0}, s{sT0}, s{sVOTE}")
    I(f"s_xor_b32 s{sT3}, s{sT0}, {CP}")
    I(f"s_lshr_b32 s{sVOTE}, s{sVOTE}, 13")
    I(f"s_lshr_b32 s88, s{sXCC}, 2")
    I(f"s_xor_b32 s{sVOTE}, s{sVOTE}, s88")
    I("s_waitcnt lgkmcnt(0)")
    for k, (ad, cnt) in enumerate(((sT0, 88), (sT3, 89))):
        I(f"s_mov_b32 s86, {MK:#x}")
        I(f"s_mov_b32 s{cnt}, 0")
        I(f"s_load_dword s86, s[56:57], s{ad} glc")
        a.label(f"L_cal{k}")
        I(f"s_add_u32 s{cnt}, s{cnt}, 1")
        I(f"s_cmp_eq_u32 s86, {MK:#x}")
        I(f"s_cselect_b32 s87, s{cnt}, 1000")
        I(f"s_cmp_lt_u32 s87, 200")
        I(f"s_cbranch_scc1 L_cal{k}")
        I("s_waitcnt lgkmcnt(0)")
    I(f"s_cmp_gt_u32 s88, s89")
    I(f"s_cselect_b32 s{sT0}, 1, 0")
    I(f"s_xor_b32 s{sVOTE}, s{sVOTE}, s{sT0}")
    I(f"s_and_b32 s{sVOTE}, s{sVOTE}, 1")
    I(f"s_lshl_b32 s{sVOTE}, s{sVOTE}, 24")
    a.label("L_ncal")
    I(f"s_mul_i32 s{sT0}, s{sXCC}, 6")
    I(f"s_lshl_b64 s[{sF}:{sF+1}], 1, s{sT0}")
    I(f"s_cmp_lt_u32 s{sXCC}, 8")
    I(f"s_cselect_b32 s{sF}, s{sF}, 0")
    I(f"s_cselect_b32 s{sF+1}, s{sF+1}, 0")
    I(f"s_or_b32 s{sF+1}, s{sF+1}, 0x10000")
    I(f"s_or_b32 s{sF+1}, s{sF+1}, s{sVOTE}")
    srd(TA, 54, 256)
    I(f"v_mov_b32 v{vAT}, s{sF}")
    I(f"v_mov_b32 v{vAT+1}, s{sF+1}")
    I(f"s_lshl_b32 s{sT0}, s{sX}, 5")
    I(f"v_mov_b32 v{vAT+2}, s{sT0}")
    TS(33)
    I("s_waitcnt vmcnt(0)")
    setexec(1, 0)
    I(f"buffer_atomic_add_x2 v[{vAT}:{vAT+1}], v{vAT+2}, {TA}, 0 offen sc1")
    setexec(0xFFFFFFFF, 0xFFFFFFFF)
    TS(32)
    sp(0)
    k_issue(0, n0)
    a.label("L_krest")
    k_issue(n0, 16)
    I(f"s_cmp_eq_u32 s{sWAVE}, 4")
    I("s_cbranch_scc0 L_vall")
    a.label("L_own")
    o2, o3 = T + 49, T + 50
    srd(TA, 38, 640 * 8192)
    I(f"s_and_b32 s{sT1}, s{sSLOT}, 3")
    I(f"s_lshl_b32 s{sT2}, s{sWAVE}, 2")
    I(f"s_add_u32 s{sT2}, s{sT2}, s{sT1}")
    I(f"s_lshl_b32 s{sT2}, s{sT2}, 18")
    I(f"s_lshr_b32 s{sT0}, s{sSLOT}, 2")
    I(f"s_lshl_b32 s{sT0}, s{sT0}, 7")
    I(f"s_add_u32 s{sT2}, s{sT2}, s{sT0}")
    I(f"v_lshrrev_b32 v{o2}, 3, v{vLANE}")
    I(f"v_lshlrev_b32 v{o2}, 13, v{o2}")
    I(f"v_and_b32 v{o3}, 7, v{vLANE}")
    I(f"v_lshl_add_u32 v{o2}, v{o3}, 4, v{o2}")
    I(f"v_bfe_u32 v{o3}, v{vLANE}, 4, 1")
    I(f"v_lshlrev_b32 v{o3}, 5, v{o3}")
    I(f"v_xor_b32 v{o2}, v{o2}, v{o3}")
    I(f"v_xor_b32 v{o3}, 64, v{o2}")
    I(f"s_lshl_b32 s{sT1}, s{sWAVE}, 12")
    I(f"s_add_u32 m0, s{sT1}, {L_WQ}")
    for e in range(4):
        I(f"buffer_load_dwordx4 v{(o2, o3)[e & 1]}, {TA}, s{sT2} offen offset:{e*1024} {wflags} lds")
        if e < 3:
            I(f"s_add_u32 s{sT2}, s{sT2}, {8*8192 - 1024}")
    a.label("L_vall")
    v_issue()
    TS(31)
    for i in range(16):
        I(f"v_mov_b32 v{T+i}, 0")
    if gate:
        I(f"v_mov_b32 v{T+24}, {L_FLAG}")
        I(f"v_mov_b32 v{T+25}, 1")
        setexec(1, 0)
        I(f"ds_add_u32 v{T+24}, v{T+25} offset:8")
        setexec(0xFFFFFFFF, 0xFFFFFFFF)
    lds_wait(12, 4)
    TS(8)
    I("s_branch L_att")

    a.label("L_loop")
    I(f"s_cmp_ge_u32 s{sWAVE}, 5")
    I("s_cbranch_scc1 L_B1")
    I(f"s_cmp_eq_u32 s{sIT}, 1")
    I("s_cbranch_scc0 L_nown")
    I(f"s_lshl_b32 s{sT0}, s{sWAVE}, 12")
    I(f"s_add_u32 s{sT0}, s{sT0}, {L_WQ}")
    ta = T + 24
    tr_addr(ta, 128, sT0, T + 25)
    I(f"v_bfe_u32 v{T+25}, v{vLANE}, 3, 1")
    I(f"v_bfe_u32 v{T+26}, v{vLANE}, 4, 1")
    I(f"v_lshl_add_u32 v{T+25}, v{T+26}, 1, v{T+25}")
    I(f"v_lshl_add_u32 v{ta}, v{T+25}, 5, v{ta}")
    for t in range(1, 4):
        I(f"v_xor_b32 v{ta+t}, {t*32}, v{ta}")
    for t in range(4):
        I(f"ds_read_b64_tr_b16 v[{vBQ+4*t}:{vBQ+4*t+1}], v{ta+t}")
        I(f"ds_read_b64_tr_b16 v[{vBQ+4*t+2}:{vBQ+4*t+3}], v{ta+t} offset:512")
    ones()
    I(f"v_lshrrev_b32 v{T+20}, 4, v{vLANE}")
    I(f"v_lshlrev_b32 v{T+20}, 4, v{T+20}")
    I(f"v_add_u32 v{T+20}, s{sT0}, v{T+20}")
    I("s_waitcnt lgkmcnt(0)")
    for t in range(4):
        I(f"v_mfma_f32_16x16x32_bf16 {vr(T+4*t)}, {vr(vBQ+4*t)}, {vr(ONES)}, 0")
    I(f"s_mov_b64 exec, s[{sKM}:{sKM+1}]")
    for t in range(4):
        I(f"ds_write_b128 v{T+20}, {vr(T+4*t)} offset:{t*64}")
    I("s_mov_b64 exec, -1")
    a.label("L_nown")
    I(f"s_lshl_b32 s{sT2}, s{sX}, 11")
    I(f"s_add_u32 s{sT2}, s{sT2}, {XOFF}")
    I(f"s_cmp_eq_u32 s{sR}, {LEAD_R}")
    I("s_cbranch_scc0 L_nolead")
    I(f"s_lshl_b32 s{sT1}, s{sWAVE}, 2")
    rank_off(sT0, sT1, sT3)
    I(f"s_add_u32 s{sT0}, s{sT0}, s{sREG}")
    I(f"s_add_u32 s{sT0}, s{sT0}, s{sNEAR}")
    I(f"s_add_u32 s{sT0}, s{sT0}, {YOFF - RS & 0xffffffff:#x}")
    I(f"v_lshrrev_b32 v{T+20}, 4, v{vLANE}")
    I(f"v_mul_u32_u24 v{T+20}, {ZR}, v{T+20}")
    I(f"v_and_b32 v{T+21}, 15, v{vLANE}")
    I(f"v_lshl_add_u32 v{T+20}, v{T+21}, 2, v{T+20}")
    I(f"s_lshl_b32 s{sT1}, s{sWAVE}, 8")
    I(f"v_lshlrev_b32 v{T+21}, 2, v{vLANE}")
    I(f"v_add_u32 v{T+21}, s{sT1}, v{T+21}")
    TS(26)
    poll([f"buffer_load_dword v{T+2*j+1}, v{T+20}, {WS}, s{sT0} offen offset:{j*ZX} sc1" for j in range(8)],
         [T + 2 * j + 1 for j in range(8)], groups=[[T + 2 * j + 1] for j in range(8)])
    TS(27)
    for j in range(8):
        unpack(T + 2 * j, T + 2 * j + 1, T + 2 * j + 1)
    for (d, s_) in ((0, 1), (2, 3), (4, 5), (6, 7), (0, 2), (4, 6), (0, 4)):
        I(f"v_pk_add_f32 v[{T+2*d}:{T+2*d+1}], v[{T+2*d}:{T+2*d+1}], v[{T+2*s_}:{T+2*s_+1}]")
    I(f"v_cvt_pk_bf16_f32 v{T}, v{T}, v{T+1}")
    I(f"s_cmp_eq_u32 s{sIT}, 2")
    I("s_cbranch_scc0 L_lead1")
    I(f"buffer_store_dword v{T}, v{T+21}, {OUTS}, 0 offen")
    TS(29)
    I("s_branch L_fin")
    a.label("L_lead1")
    I(f"v_min_u32 v{T}, 0xfffffffe, v{T}")
    lstore([f"buffer_store_dword v{T}, v{T+21}, {WS}, s{sT2} offen"])
    TS(28)
    a.label("L_nolead")
    ones()
    TS(3)
    poll([f"buffer_load_dwordx4 {vr(XA)}, v{vXO}, {WS}, s{sT2} offen sc1"], list(range(XA, XA + 4)))
    TS(4)
    gemv_q()
    TS(5)
    a.label("L_B1")
    I(f"v_mov_b32 v{rINV}, {f2u(1.0/640):#x}")
    qa, qs, QS = q_reduce()
    I("s_barrier")
    I(f"s_cmp_eq_u32 s{sWAVE}, 5")
    I("s_cbranch_scc0 L_B2")
    TS(6)
    q_reduce2(qa, qs, QS, first=True)
    TS(7)
    lstore([f"buffer_store_dword v{rU}, v{vQP}, {WS}, s{sREG} offen"])
    q_gather(vQG, qa)
    TS(8)
    I(f"buffer_load_ushort v{vXF}, v{vXFA}, {WS}, 0 offen sc1")
    I("s_waitcnt lgkmcnt(0)")
    a.label("L_B2")
    BT = T
    ST = T + 16
    PS = T + 32
    MI = T + 36
    OA = T + 44
    for i in range(16):
        I(f"v_mov_b32 v{BT+i}, 0")
    I("s_barrier")
    a.label("L_att")
    TS(9)
    for t in range(4):
        m = 0x000F000F << (4 * t)
        setexec(m, m)
        I(f"ds_read_b128 {vr(BT+4*t)}, v{vQR}")
    setexec(0xFFFFFFFF, 0xFFFFFFFF)
    I("s_waitcnt vmcnt(16) lgkmcnt(0)")
    TS(10)
    for Tt in range(4):
        for t in range(4):
            I(f"v_mfma_f32_16x16x32_bf16 {vr(ST+4*Tt)}, {vr(vK+4*(4*Tt+t))}, {vr(BT+4*t)}, {'0' if t == 0 else vr(ST+4*Tt)}")
    for Tt in range(4):
        I(f"v_mov_b32_dpp v{PS+Tt}, v{ST+4*Tt} quad_perm:[0,0,0,0] row_mask:0xf bank_mask:0xf")
        for c in range(1, 4):
            I(f"v_add_f32_dpp v{PS+Tt}, v{ST+4*Tt+c}, v{PS+Tt} quad_perm:[{c},{c},{c},{c}] row_mask:0xf bank_mask:0xf")
    I(f"v_mov_b32 v{MI+2}, {SCALE:#x}")
    I(f"v_mov_b32 v{MI+3}, {SCALE:#x}")
    I(f"v_cvt_pk_bf16_f32 v{MI}, v{PS}, v{PS+1}")
    I(f"v_cvt_pk_bf16_f32 v{MI+1}, v{PS+2}, v{PS+3}")
    unpack(PS, PS + 1, MI)
    unpack(PS + 2, PS + 3, MI + 1)
    I(f"v_pk_mul_f32 v[{PS}:{PS+1}], v[{PS}:{PS+1}], v[{MI+2}:{MI+3}]")
    I(f"v_pk_mul_f32 v[{PS+2}:{PS+3}], v[{PS+2}:{PS+3}], v[{MI+2}:{MI+3}]")
    I(f"v_cvt_pk_bf16_f32 v{MI}, v{PS}, v{PS+1}")
    I(f"v_cvt_pk_bf16_f32 v{MI+1}, v{PS+2}, v{PS+3}")
    unpack(PS, PS + 1, MI)
    unpack(PS + 2, PS + 3, MI + 1)
    vM = MI + 4; vL = MI + 5; vT_ = MI + 6; vPK = MI + 7
    I(f"v_max3_f32 v{vM}, v{PS}, v{PS+1}, v{PS+2}")
    I(f"v_max_f32 v{vM}, v{vM}, v{PS+3}")
    I(f"v_max_f32_dpp v{vM}, v{vM}, v{vM} row_ror:4 row_mask:0xf bank_mask:0xf")
    I(f"v_max_f32_dpp v{vM}, v{vM}, v{vM} row_ror:8 row_mask:0xf bank_mask:0xf")
    I(f"v_max_f32_dpp v{vM}, v{vM}, v{vM} row_bcast:15 row_mask:0xa bank_mask:0xf")
    I(f"v_max_f32_dpp v{vM}, v{vM}, v{vM} row_bcast:31 row_mask:0xc bank_mask:0xf")
    I(f"v_mov_b32 v{MI}, s{sL2E}")
    I(f"v_readlane_b32 s{sM}, v{vM}, 63")
    I(f"v_mul_f32 v{vT_}, s{sM}, v{MI}")
    for Tt in range(4):
        I(f"v_fma_f32 v{PS+Tt}, v{PS+Tt}, v{MI}, -v{vT_}")
    for Tt in range(4):
        I(f"v_exp_f32 v{PS+Tt}, v{PS+Tt}")
    TS(11)
    I(f"s_cmp_eq_u32 s{sIT}, 0")
    I("s_cbranch_scc0 L_PV")
    I(f"v_lshlrev_b32 v{vB1}, 16, v{vB1}")
    I(f"s_cmp_eq_u32 s{sLATE}, 0")
    I("s_cbranch_scc1 L_PVe")
    role_dma()
    TS(25)
    I("s_branch L_PV")
    a.label("L_PVe")
    I("s_waitcnt vmcnt(0)")
    a.label("L_PV")
    for Tt in range(4):
        AB = ST + 8 * (Tt & 1)
        I(f"v_mov_b32_dpp v{vT_}, v{PS+Tt} row_half_mirror row_mask:0xf bank_mask:0xf")
        I(f"v_cvt_pk_bf16_f32 v{vPK}, v{PS+Tt}, v{vT_}")
        for u in range(2):
            for r in range(4):
                I(f"v_perm_b32 v{AB+4*u+r}, v{vPK}, v{vPK}, v{vSEL+4*u+r}")
        if Tt == 1:
            I(f"v_add_f32 v{vL}, v{PS}, v{PS+1}")
            I(f"v_add_f32 v{MI+1}, v{PS+2}, v{PS+3}")
            I(f"v_add_f32 v{vL}, v{vL}, v{MI+1}")
            I(f"v_add_f32_dpp v{vL}, v{vL}, v{vL} row_ror:4 row_mask:0xf bank_mask:0xf")
            I(f"v_add_f32_dpp v{vL}, v{vL}, v{vL} row_ror:8 row_mask:0xf bank_mask:0xf")
            I(f"v_add_f32_dpp v{vL}, v{vL}, v{vL} row_bcast:15 row_mask:0xa bank_mask:0xf")
            I(f"v_add_f32_dpp v{vL}, v{vL}, v{vL} row_bcast:31 row_mask:0xc bank_mask:0xf")
            I(f"ds_write_b64 v{vMLW}, v[{vM}:{vL}]")
        for u in range(2):
            i1 = Tt * 4 + u * 2 + 1
            I(f"s_waitcnt vmcnt({15 - i1 + 8})")
            for hf in range(2):
                i = Tt * 4 + u * 2 + hf
                first = (Tt == 0 and u == 0)
                I(f"v_mfma_f32_16x16x32_bf16 {vr(OA+4*hf)}, {vr(AB+4*u)}, {vr(vV+4*i)}, {'0' if first else vr(OA+4*hf)}")
    TS(12)
    setexec(0x00FF00FF, 0xFF00FF00)
    I(f"ds_write_b128 v{vOW}, {vr(OA)}")
    I(f"ds_write_b128 v{vOW}, {vr(OA+4)} offset:256")
    setexec(0xFFFFFFFF, 0xFFFFFFFF)
    I(f"s_cmp_eq_u32 s{sIT}, 0")
    I("s_cbranch_scc0 L_B3")
    sp(0)
    I(f"s_cmp_eq_u32 s{sLATE}, 0")
    I("s_cbranch_scc0 L_B3")
    I(f"s_cmp_eq_u32 s{sWAVE}, 7")
    I("s_cbranch_scc0 L_erd")
    sp(3)
    srd(TA, 54, 256)
    I(f"v_lshlrev_b32 v{BT+2}, 5, v{vLANE}")
    setexec(0xFF, 0)
    I(f"buffer_load_dwordx2 v[{BT}:{BT+1}], v{BT+2}, {TA}, 0 offen {syfl}")
    a.label("L_sync")
    I(f"s_add_u32 s{sSPIN}, s{sSPIN}, 4")
    I("s_waitcnt vmcnt(0)")
    I(f"v_and_b32 v{BT+3}, {1 << 21:#x}, v{BT+1}")
    I(f"v_cmp_eq_u32 vcc, 0, v{BT+3}")
    I("s_cbranch_vccz L_syncd")
    I(f"buffer_load_dwordx2 v[{BT}:{BT+1}], v{BT+2}, {TA}, 0 offen sc1")
    I(f"s_cmp_lt_u32 s{sSPIN}, {spin_limit}")
    I("s_cbranch_scc1 L_sync")
    I("s_waitcnt vmcnt(0)")
    a.label("L_syncd")
    I(f"v_lshrrev_b32 v{BT+3}, 24, v{BT+1}")
    I(f"v_readlane_b32 s64, v{BT}, s{sX}")
    I(f"v_readlane_b32 s65, v{BT+1}, s{sX}")
    for m_ in ("quad_perm:[1,0,3,2]", "quad_perm:[2,3,0,1]", "row_half_mirror"):
        I(f"v_add_u32_dpp v{BT+3}, v{BT+3}, v{BT+3} {m_} row_mask:0xf bank_mask:0xf")
    I(f"s_mul_i32 s{sT0}, s{sXCC}, 6")
    I(f"s_lshr_b64 s[64:65], s[64:65], s{sT0}")
    I(f"s_and_b32 s64, s64, 63")
    I(f"s_cmp_eq_u32 s64, 32")
    I(f"s_cselect_b32 s{sT1}, 1, 0")
    I(f"s_cmp_lt_u32 s{sXCC}, 8")
    I(f"s_cselect_b32 s{sT1}, s{sT1}, 0")
    I(f"v_readfirstlane_b32 s{sT0}, v{BT+3}")
    setexec(0xFFFFFFFF, 0xFFFFFFFF)
    I(f"s_cmp_gt_u32 s{sT0}, {4 * ncal}")
    I(f"s_cselect_b32 s{sT0}, 1, 0")
    I(f"s_lshr_b32 s{sT2}, s{sXCC}, 2")
    I(f"s_xor_b32 s{sT0}, s{sT0}, s{sT2}")
    I(f"s_and_b32 s{sT0}, s{sT0}, {1 if dual else 0}")
    I(f"s_lshl_b32 s{sT0}, s{sT0}, 13")
    I(f"s_or_b32 s{sT0}, s{sT0}, s{sT1}")
    I(f"v_mov_b32 v{BT}, s{sT0}")
    I(f"v_mov_b32 v{BT+1}, {L_FLAG}")
    I(f"ds_write_b32 v{BT+1}, v{BT}")
    TS(35)
    sp(0)
    a.label("L_erd")
    I(f"s_cmp_eq_u32 s{sROLE}, 0")
    I("s_cbranch_scc0 L_B3")
    if gate:
        lds_wait(8, gate, ge=True)
    role_dma()
    TS(25)
    a.label("L_B3")
    I("s_waitcnt lgkmcnt(0)")
    I(f"v_mov_b32 v{T+38}, {L_FLAG}")
    I("s_barrier")
    TS(13)
    I(f"ds_read_b32 v{T+38}, v{T+38}")
    I(f"s_cmp_eq_u32 s{sWAVE}, 7")
    I("s_cbranch_scc1 L_comb")
    I("s_waitcnt lgkmcnt(0)")
    I(f"v_readfirstlane_b32 s{sT0}, v{T+38}")
    I(f"s_and_b32 s{sPURE}, s{sT0}, 1")
    I(f"s_and_b32 s{sNEAR}, s{sT0}, {CP}")
    I("s_branch L_role")
    a.label("L_comb")
    cM, cL, cMX, cF, cT = T + 32, T + 33, T + 34, T + 36, T + 37
    cLS = T + 35
    I(f"ds_read_b64 v[{cM}:{cL}], v{vCML}")
    for w in range(8):
        I(f"ds_read2st64_b64 {vr(T+4*w)}, v{vCR} offset0:{2*w} offset1:{2*w+1}")
    I(f"v_mov_b32 v{cT}, s{sL2E}")
    I("s_waitcnt lgkmcnt(8)")
    I(f"v_readfirstlane_b32 s{sT0}, v{T+38}")
    I(f"v_max_f32_dpp v{cMX}, v{cM}, v{cM} quad_perm:[1,0,3,2] row_mask:0xf bank_mask:0xf")
    I(f"v_max_f32_dpp v{cMX}, v{cMX}, v{cMX} quad_perm:[2,3,0,1] row_mask:0xf bank_mask:0xf")
    I(f"v_max_f32_dpp v{cMX}, v{cMX}, v{cMX} row_half_mirror row_mask:0xf bank_mask:0xf")
    I(f"v_sub_f32 v{cF}, v{cM}, v{cMX}")
    I(f"v_mul_f32 v{cF}, v{cF}, v{cT}")
    I(f"v_exp_f32 v{cF}, v{cF}")
    I(f"s_and_b32 s{sPURE}, s{sT0}, 1")
    I(f"s_and_b32 s{sNEAR}, s{sT0}, {CP}")
    I("s_waitcnt lgkmcnt(0)")
    for w in range(8):
        I(f"v_readlane_b32 s{sF+w}, v{cF}, {w}")
    for w in range(8):
        I(f"v_pk_add_f32 v[{T+4*w}:{T+4*w+1}], v[{T+4*w}:{T+4*w+1}], v[{T+4*w+2}:{T+4*w+3}]")
    for w in range(8):
        sp = f"s[{sF+(w&~1)}:{sF+(w&~1)+1}]"
        o = w & 1
        acc = T + 40 + 2 * (w & 1)
        if w < 2:
            I(f"v_pk_mul_f32 v[{acc}:{acc+1}], v[{T+4*w}:{T+4*w+1}], {sp} op_sel:[0,{o}] op_sel_hi:[1,{o}]")
        else:
            I(f"v_pk_fma_f32 v[{acc}:{acc+1}], v[{T+4*w}:{T+4*w+1}], {sp}, v[{acc}:{acc+1}] op_sel:[0,{o},0] op_sel_hi:[1,{o},1]")
    I(f"v_mul_f32 v{cLS}, v{cF}, v{cL}")
    I(f"v_pk_add_f32 v[{T+40}:{T+41}], v[{T+40}:{T+41}], v[{T+42}:{T+43}]")
    I(f"v_add_f32_dpp v{cLS}, v{cLS}, v{cLS} quad_perm:[1,0,3,2] row_mask:0xf bank_mask:0xf")
    I(f"v_cvt_pk_bf16_f32 v{T+40}, v{T+40}, v{T+41}")
    I(f"v_min_u32 v{T+40}, 0xfffffffe, v{T+40}")
    I(f"v_add_f32_dpp v{cLS}, v{cLS}, v{cLS} quad_perm:[2,3,0,1] row_mask:0xf bank_mask:0xf")
    I(f"v_min_u32 v{cMX}, 0xfffffffe, v{cMX}")
    lstore([f"buffer_store_dword v{T+40}, v{vCP}, {WS}, s{sREG} offen"])
    I(f"v_add_f32_dpp v{cLS}, v{cLS}, v{cLS} row_half_mirror row_mask:0xf bank_mask:0xf")
    I(f"v_min_u32 v{cLS}, 0xfffffffe, v{cLS}")
    setexec(1, 0)
    lstore([f"buffer_store_dwordx2 v[{cMX}:{cLS}], v{vCPM}, {WS}, s{sREG} offen"])
    setexec(0xFFFFFFFF, 0xFFFFFFFF)
    TS(14)

    a.label("L_role")
    I(f"s_cmp_eq_u32 s{sROLE}, 0")
    I("s_cbranch_scc1 L_WO")
    I(f"s_cmp_eq_u32 s{sROLE}, 3")
    I("s_cbranch_scc1 L_next")
    I(f"s_cmp_eq_u32 s{sIT}, 0")
    I("s_cbranch_scc0 L_role2")
    role_dma()
    TS(25)
    a.label("L_role2")
    I(f"s_cmp_eq_u32 s{sROLE}, 1")
    I("s_cbranch_scc1 L_W1")
    I("s_branch L_W2")

    def role_base():
        I(f"s_lshl_b32 s{sT0}, s{sWAVE}, 13")
        I(f"s_add_u32 s{sT0}, s{sT0}, {L_ROLE}")

    a.label("L_WO")
    I(f"s_cmp_eq_u32 s{sIT}, 0")
    I("s_cbranch_scc0 L_WO0")
    role_base()
    tr_addr(T + 47, 64, sT0)
    I("s_waitcnt vmcnt(0)")
    for ks in range(2):
        for t in range(2):
            b = vRB + 4 * (ks * 2 + t)
            o = ks * 2048 + t * 32
            I(f"ds_read_b64_tr_b16 v[{b}:{b+1}], v{T+47} offset:{o}")
            I(f"ds_read_b64_tr_b16 v[{b+2}:{b+3}], v{T+47} offset:{o+256}")
    I("s_waitcnt lgkmcnt(0)")
    TS(15)
    a.label("L_WO0")
    I(f"s_cmp_eq_u32 s{sWAVE}, 5")
    I("s_cbranch_scc0 L_WO1")
    I("s_waitcnt vmcnt(0)")
    I(f"v_lshlrev_b32 v{vXF}, 16, v{vXF}")
    a.label("L_WO1")
    A0, Ma, La = T, T + 4, T + 5
    Dw = [[T + 8, T + 12], [T + 16, T + 20]]
    wMX, wE, wT, wL2E, wR0, wR1 = [T + 24 + i for i in range(6)]
    I(f"v_mov_b32 v{wL2E}, s{sL2E}")
    poll([f"buffer_load_dwordx4 {vr(A0)}, v{vA0}, {WS}, s{sREG} offen sc1",
          f"buffer_load_dwordx2 v[{Ma}:{La}], v{vA2}, {WS}, s{sREG} offen sc1"], list(range(T, T + 6)),
         groups=[range(T, T + 4), range(T + 4, T + 6)])
    TS(16)
    seq = [
        f"v_max_f32_dpp v{wMX}, v{Ma}, v{Ma} quad_perm:[1,0,3,2] row_mask:0xf bank_mask:0xf",
        f"v_max_f32_dpp v{wMX}, v{wMX}, v{wMX} quad_perm:[2,3,0,1] row_mask:0xf bank_mask:0xf",
        f"v_max_f32_dpp v{wMX}, v{wMX}, v{wMX} row_half_mirror row_mask:0xf bank_mask:0xf",
        f"v_sub_f32 v{wE}, v{Ma}, v{wMX}",
    ]
    k = 0
    for t in range(2):
        for ks in range(2):
            I(f"v_mfma_f32_16x16x32_bf16 {vr(Dw[t][ks])}, {vr(A0)}, {vr(vRB+4*(ks*2+t))}, 0")
            I(seq[k]); k += 1
    I(f"v_mul_f32 v{wE}, v{wE}, v{wL2E}")
    I(f"v_exp_f32 v{wE}, v{wE}")
    I(f"v_mul_f32 v{wT}, v{wE}, v{La}")
    mrg = [f"v_mov_b32_dpp v{Dw[t][0]+i}, v{Dw[t][1]+i} quad_perm:[0,1,2,3] row_mask:0xc bank_mask:0xf"
           for t in range(2) for i in range(4)]
    I(mrg[0]); I(mrg[1])
    I(f"v_add_f32_dpp v{wT}, v{wT}, v{wT} quad_perm:[1,0,3,2] row_mask:0xf bank_mask:0xf")
    I(mrg[2]); I(mrg[3])
    I(f"v_add_f32_dpp v{wT}, v{wT}, v{wT} quad_perm:[2,3,0,1] row_mask:0xf bank_mask:0xf")
    I(f"v_mov_b32_dpp v{wE}, v{wE} row_ror:4 row_mask:0xf bank_mask:0xa")
    I(mrg[4])
    I(f"v_add_f32_dpp v{wT}, v{wT}, v{wT} row_half_mirror row_mask:0xf bank_mask:0xf")
    I(mrg[5])
    I(f"v_rcp_f32 v{wT}, v{wT}")
    I(mrg[6]); I(mrg[7])
    for i in range(4):
        for t in range(2):
            D = Dw[t][0]; R = (wR0, wR1)[t]
            op = "v_mul_f32_dpp" if i == 0 else "v_fmac_f32_dpp"
            I(f"{op} v{R}, v{wE}, v{D+i} quad_perm:[{i},{i},{i},{i}] row_mask:0xf bank_mask:0xf")
    I(f"v_mul_f32 v{wR0}, v{wR0}, v{wT}")
    I(f"v_mul_f32 v{wR1}, v{wR1}, v{wT}")
    I(f"ds_write_b32 v{vPW}, v{wR0} offset:{L_PB2}")
    I(f"ds_write_b32 v{vPW}, v{wR1} offset:{L_PB2+256}")
    I("s_waitcnt lgkmcnt(0)")
    I("s_barrier")
    I(f"s_cmp_eq_u32 s{sWAVE}, 5")
    I("s_cbranch_scc0 L_next")
    TS(17)
    reduce_read(8, L_PB2)
    I("s_waitcnt lgkmcnt(0)")
    I(f"v_add_f32 v{T+30}, v{T+30}, v{vXF}")
    reduce_sum(8, rTOT)
    pack_pairs(rTOT, rU)
    I(f"v_mov_b32 v{T}, v{rU}")
    I(f"v_mov_b32_dpp v{T+1}, v{rU} quad_perm:[2,2,2,2] row_mask:0xf bank_mask:0xf")
    I(f"v_mov_b32_dpp v{T+2}, v{rU} row_shl:4 row_mask:0xf bank_mask:0xf")
    I(f"v_mov_b32_dpp v{T+3}, v{rU} row_shl:6 row_mask:0xf bank_mask:0xf")
    setexec(0x01010101, 0)
    I(f"buffer_store_dwordx4 {vr(T)}, v{vRP}, {WS}, s{sREG} offen sc1")
    if dual:
        I(f"buffer_store_dwordx4 {vr(T)}, v{vRP}, {WS}, s{sREG2} offen sc1")
    setexec(0xFFFFFFFF, 0xFFFFFFFF)
    TS(18)
    I("s_branch L_next")

    a.label("L_W1")
    I(f"s_cmp_ge_u32 s{sWAVE}, 5")
    I("s_cbranch_scc1 L_W1b")
    ones()
    I(f"s_cmp_eq_u32 s{sIT}, 0")
    I("s_cbranch_scc0 L_W11")
    role_base()
    tr_addr(T + 47, 64, sT0)
    I(f"s_lshl_b32 s{sT0}, s{sWAVE}, 7")
    I(f"v_and_b32 v{T+46}, 15, v{vLANE}")
    I(f"v_lshlrev_b32 v{T+46}, 2, v{T+46}")
    I(f"v_add_u32 v{T+46}, s{sT0}, v{T+46}")
    I("s_waitcnt vmcnt(0)")
    for ks in range(4):
        for t in range(2):
            b = vRB + 4 * (ks * 2 + t)
            o = ks * 2048 + t * 32
            I(f"ds_read_b64_tr_b16 v[{b}:{b+1}], v{T+47} offset:{o}")
            I(f"ds_read_b64_tr_b16 v[{b+2}:{b+3}], v{T+47} offset:{o+256}")
        if ks == 1:
            I("s_waitcnt lgkmcnt(0)")
    I("s_waitcnt lgkmcnt(0)")
    for t in range(2):
        for ks in range(4):
            I(f"v_mfma_f32_16x16x32_bf16 {vr(T+4*t)}, {vr(ONES)}, {vr(vRB+4*(ks*2+t))}, {'0' if ks == 0 else vr(T+4*t)}")
    I(f"ds_write_b32 v{T+46}, v{T} offset:{L_CS2}")
    I(f"ds_write_b32 v{T+46}, v{T+4} offset:{L_CS2+64}")
    TS(15)
    a.label("L_W11")
    I(f"s_add_u32 s{sT1}, s{sREG}, {ZOFF}")
    I(f"s_add_u32 s{sT1}, s{sT1}, s{sNEAR}")
    gather(sT1)
    TS(19)
    gemv(2, vRB, lambda ks, t: ks * 2 + t)
    TS(20)
    a.label("L_W1b")
    I(f"v_mov_b32 v{rINV}, {f2u(1.0/640):#x}")
    I(f"v_mov_b32 v{rC1}, {f2u(GC1):#x}")
    I(f"v_mov_b32 v{rC2}, {f2u(GC2):#x}")
    I("s_barrier")
    I(f"s_cmp_eq_u32 s{sWAVE}, 5")
    I("s_cbranch_scc0 L_next")
    TS(21)
    reduce_read(5, L_PB1)
    cs_read(L_CS2, vCS1)
    I("s_waitcnt lgkmcnt(0)")
    reduce_sum(5, rTOT)
    stats()
    I(f"v_sub_f32 v{rMEAN}, v{rMEAN}, v{rMB}")
    I(f"v_mul_f32 v{rVAR}, v{rVAR}, v{rR}")
    I(f"v_mul_f32 v{rMEAN}, v{rMEAN}, v{rR}")
    I(f"v_mul_f32 v{rVAR}, v{rVAR}, v{rR}")
    I(f"v_cvt_pk_bf16_f32 v{rT}, v{rMEAN}, v{rVAR}")
    I(f"v_and_b32 v{rU}, 0xffff0000, v{rT}")
    I(f"v_lshlrev_b32 v{rMEAN}, 16, v{rT}")
    I(f"v_add_f32 v{rU}, {f2u(1e-5):#x}, v{rU}")
    I(f"v_cvt_pk_bf16_f32 v{rU}, v{rU}, v{rU}")
    I(f"v_fma_f32 v{rMB}, v{rMEAN}, v{rSD}, v{rMB}")
    I(f"v_and_b32 v{rU}, 0xffff0000, v{rU}")
    I(f"v_sqrt_f32 v{rU}, v{rU}")
    I(f"v_fma_f32 v{rTOT}, -v{rMB}, v{vCS1}, v{rTOT}")
    I(f"v_cvt_pk_bf16_f32 v{rU}, v{rU}, v{rU}")
    I(f"v_mul_f32 v{rTOT}, v{rTOT}, v{rR}")
    I(f"v_and_b32 v{rU}, 0xffff0000, v{rU}")
    I(f"v_rcp_f32 v{rU}, v{rU}")
    I(f"v_mul_f32 v{rTOT}, v{rTOT}, v{rU}")
    I(f"v_cvt_pk_bf16_f32 v{rU}, v{rTOT}, v{rTOT}")
    I(f"v_and_b32 v{rU}, 0xffff0000, v{rU}")
    I(f"v_add_f32 v{rU}, v{rU}, v{vB1}")
    I(f"v_cvt_pk_bf16_f32 v{rU}, v{rU}, v{rU}")
    I(f"v_and_b32 v{rU}, 0xffff0000, v{rU}")
    I(f"v_mul_f32 v{rT}, v{rU}, v{rU}")
    I(f"v_fma_f32 v{rT}, v{rT}, v{rC2}, v{rC1}")
    I(f"v_mul_f32 v{rT}, v{rT}, v{rU}")
    I(f"v_exp_f32 v{rT}, v{rT}")
    I(f"v_add_f32 v{rT}, 1.0, v{rT}")
    I(f"v_rcp_f32 v{rT}, v{rT}")
    I(f"v_mul_f32 v{rU}, v{rU}, v{rT}")
    pack_pairs(rU, T)
    I(f"v_mov_b32_dpp v{T+1}, v{T} quad_perm:[2,2,2,2] row_mask:0xf bank_mask:0xf")
    I(f"v_mov_b32_dpp v{T+2}, v{T} row_shl:4 row_mask:0xf bank_mask:0xf")
    I(f"v_mov_b32_dpp v{T+3}, v{T} row_shl:6 row_mask:0xf bank_mask:0xf")
    setexec(0x01010101, 0)
    lstore([f"buffer_store_dwordx4 {vr(T)}, v{vRP}, {WS}, s{sREG} offen"])
    setexec(0xFFFFFFFF, 0xFFFFFFFF)
    TS(22)
    I("s_branch L_next")

    a.label("L_W2")
    I(f"s_cmp_eq_u32 s{sIT}, 0")
    I("s_cbranch_scc0 L_W21")
    role_base()
    tr_addr(T + 47, 32, sT0)
    I("s_waitcnt vmcnt(0)")
    for ks in range(7):
        b = vRB + 4 * ks
        I(f"ds_read_b64_tr_b16 v[{b}:{b+1}], v{T+47} offset:{ks*1024}")
        I(f"ds_read_b64_tr_b16 v[{b+2}:{b+3}], v{T+47} offset:{ks*1024+128}")
    srd(TB, 50, 1280)
    I("s_waitcnt lgkmcnt(0)")
    TS(15)
    a.label("L_W21")
    for i in range(4):
        I(f"v_mov_b32 v{vFD+i}, 0")
    I(f"s_cmp_eq_u32 s{sX}, 0")
    I("s_cbranch_scc0 L_W22")
    I(f"s_sub_u32 s{sT0}, s{sR}, 27")
    I(f"s_lshl_b32 s{sT0}, s{sT0}, 8")
    I(f"s_lshl_b32 s{sT1}, s{sWAVE}, 5")
    I(f"s_add_u32 s{sT0}, s{sT0}, s{sT1}")
    I(f"v_lshrrev_b32 v{T+4}, 4, v{vLANE}")
    I(f"v_lshlrev_b32 v{T+4}, 3, v{T+4}")
    I(f"buffer_load_dwordx2 v[{T+2}:{T+3}], v{T+4}, {TB}, s{sT0} offen")
    I(f"s_add_u32 s{sT1}, s{sREG}, s{sNEAR}")
    poll([f"buffer_load_dwordx2 v[{T}:{T+1}], v{vA3}, {WS}, s{sT1} offen sc1"], [T, T + 1])
    unpack(vFD, vFD + 1, T)
    unpack(vFD + 2, vFD + 3, T + 1)
    for m in ("quad_perm:[1,0,3,2]", "quad_perm:[2,3,0,1]", "row_half_mirror"):
        for i in range(4):
            I(f"v_add_f32_dpp v{vFD+i}, v{vFD+i}, v{vFD+i} {m} row_mask:0xf bank_mask:0xf")
    I(f"v_cvt_pk_bf16_f32 v{T}, v{vFD}, v{vFD+1}")
    I(f"v_cvt_pk_bf16_f32 v{T+1}, v{vFD+2}, v{vFD+3}")
    unpack(vFD, vFD + 1, T)
    unpack(vFD + 2, vFD + 3, T + 1)
    unpack(T + 4, T + 5, T + 2)
    unpack(T + 6, T + 7, T + 3)
    I(f"v_pk_add_f32 v[{vFD}:{vFD+1}], v[{vFD}:{vFD+1}], v[{T+4}:{T+5}]")
    I(f"v_pk_add_f32 v[{vFD+2}:{vFD+3}], v[{vFD+2}:{vFD+3}], v[{T+6}:{T+7}]")
    a.label("L_W22")
    setexec(0x00010001, 0x00010001)
    poll([f"buffer_load_dwordx4 {vr(T+4*ks)}, v{vA0}, {WS}, s{sREG} offen offset:{ks*128} sc1" for ks in range(6)]
         + [f"buffer_load_dwordx4 {vr(T+24)}, v{vA1}, {WS}, s{sREG} offen sc1"], [T + 4 * ks for ks in range(7)],
         ex=(0x00010001, 0x00010001), simple=True)
    setexec(0xFFFFFFFF, 0xFFFFFFFF)
    TS(23)
    D2 = T + 28
    for ks in range(7):
        I(f"v_mfma_f32_16x16x32_bf16 {vr(D2)}, {vr(vRB+4*ks)}, {vr(T+4*ks)}, {vr(vFD) if ks == 0 else vr(D2)}")
    Y0 = T + 32
    if not y16:
        setexec(0x00010001, 0x00010001)
    I(f"v_cvt_pk_bf16_f32 v{Y0}, v{D2}, v{D2+1}")
    I(f"v_cvt_pk_bf16_f32 v{Y0+1}, v{D2+2}, v{D2+3}")
    I(f"v_min_u32 v{Y0}, 0xfffffffe, v{Y0}")
    I(f"v_min_u32 v{Y0+1}, 0xfffffffe, v{Y0+1}")
    if y16:
        I(f"v_permlane16_swap_b32 v{Y0}, v{Y0+2}")
        I(f"v_permlane16_swap_b32 v{Y0+1}, v{Y0+3}")
        setexec(1, 1)
        I(f"buffer_store_dwordx4 {vr(Y0)}, v{vA2}, {WS}, s{sREG} offen sc1")
    else:
        I(f"buffer_store_dwordx2 v[{Y0}:{Y0+1}], v{vA2}, {WS}, s{sREG} offen sc1")
        if dual:
            I(f"buffer_store_dwordx2 v[{Y0}:{Y0+1}], v{vA2}, {WS}, s{sREG2} offen sc1")
    setexec(0xFFFFFFFF, 0xFFFFFFFF)
    TS(24)

    a.label("L_next")
    I(f"s_add_u32 s{sIT}, s{sIT}, 1")
    I(f"s_add_u32 s{sREG}, s{sREG}, {RS}")
    I(f"s_add_u32 s{sREG2}, s{sREG2}, {RS}")
    I(f"s_cmp_lt_u32 s{sIT}, 2")
    I("s_cbranch_scc1 L_loop")
    I(f"s_cmp_eq_u32 s2, {LEAD_R * 8}")
    I("s_cbranch_scc0 L_fin")
    I(f"s_cmp_lt_u32 s{sWAVE}, 5")
    I("s_cbranch_scc1 L_loop")
    a.label("L_fin")
    if instr:
        TS(30)
        I(f"s_lshl_b32 s{sT0}, s2, 3")
        I(f"s_add_u32 s{sT0}, s{sT0}, s{sWAVE}")
        I(f"s_lshl_b32 s{sT0}, s{sT0}, 9")
        I(f"s_add_u32 s{sT0}, s{sT0}, {DBGOFF}")
        I(f"v_lshlrev_b32 v{T}, 3, v{vLANE}")
        I(f"buffer_store_dwordx2 v[{vTSI}:{vTST}], v{T}, {WS}, s{sT0} offen")
    a.label("L_end")
    I("s_endpgm")
    a.raw('.section .rodata,"a"\n.p2align 6')
    a.raw(f".amdhsa_kernel {KNAME}")
    a.raw("  .amdhsa_next_free_vgpr 256\n  .amdhsa_next_free_sgpr 102\n  .amdhsa_accum_offset 256\n"
          "  .amdhsa_group_segment_fixed_size 0\n  .amdhsa_kernarg_size 104\n  .amdhsa_user_sgpr_count 2\n"
          "  .amdhsa_user_sgpr_kernarg_segment_ptr 1\n  .amdhsa_system_sgpr_workgroup_id_x 1")
    a.raw(".end_amdhsa_kernel")
    open(fn, "w").write(a.text())
    return a.ninstr


if __name__ == "__main__":
    import argparse
    p = argparse.ArgumentParser()
    p.add_argument("-o", default="k.s")
    p.add_argument("--instr", action="store_true")
    p.add_argument("--kv", default="nt")
    p.add_argument("--w", default="")
    p.add_argument("--y16", action="store_true")
    p.add_argument("--nomask", action="store_true")
    p.add_argument("--nodual", action="store_true")
    p.add_argument("--n0", type=int, default=4)
    p.add_argument("--late", type=lambda x: int(x, 0), default=0x5f)
    p.add_argument("--r", default="")
    p.add_argument("--ncal", type=int, default=4)
    p.add_argument("--nw0", type=int, default=8)
    p.add_argument("--qk", type=int, default=16)
    p.add_argument("--qp", type=int, default=3)
    p.add_argument("--gate", type=int, default=4)
    p.add_argument("--sp1", type=int, default=1)
    p.add_argument("--norot", action="store_true")
    p.add_argument("--syfl", default="")
    p.add_argument("--ts", default=None)
    p.add_argument("--noprio", action="store_true")
    args = p.parse_args()
    ts = None if args.ts is None else set(int(x) for x in args.ts.split(","))
    n = gen(args.o, instr=args.instr, kvflags=args.kv, wflags=args.w, y16=args.y16,
            masked_=not args.nomask, tsset=ts, n0=args.n0, late=args.late, rflags=args.r, ncal=args.ncal, dual=not args.nodual, prio=not args.noprio,
            nw0=args.nw0, qk=args.qk, rot=not args.norot, syfl=args.syfl, qp=args.qp, gate=args.gate, sp1=args.sp1)
    print("instrs:", n)
```

```python
import sys, struct, math
from asmlib import Asm

KNAME = "interleave_layers__gqa_block_cached__mixer_channel_mlp__decode_kernel"

RS = 0x40000
POFF, ZOFF, YOFF, QOFF, HOFF, XOFF, MLOFF = 0x0, 0x10000, 0x18000, 0x30000, 0x22000, 0x24000, 0x28000
CALOFF = 0x80000
CP = 0x2000
ZR, ZX = 512, 64
DBGOFF = 0x100000
WS_SIZE = 0x200000
BIG = 0x40000000
PP = 544
L_PB1, L_PB2, L_CS1, L_CS2, L_QB, L_ML, L_FLAG, L_DUM, L_O, L_WQ, L_ROLE = (
    0, 2816, 7168, 7808, 8448, 8704, 8768, 8832, 10240, 18432, 38912)
LDS_TOTAL = 163840
L_RING, RSL = 38912, 30
LEAD_R = 0

def f2u(x):
    return struct.unpack("<I", struct.pack("<f", x))[0]

L2E = f2u(1.4426950408889634)
SCALE = f2u(128 ** -0.5)
GC1 = -2.0 * 1.4426950408889634 * math.sqrt(2.0 / math.pi)
GC2 = GC1 * 0.044715

sWAVE, sX, sR, sIT, sREG = 3, 4, 5, 6, 7
K_SRD, V_SRD, WS, TA, TB, OUTS = "s[8:11]", "s[12:15]", "s[16:19]", "s[20:23]", "s[24:27]", "s[28:31]"
sROLE, sPURE, sSPIN = 58, 59, 60
sT0, sT1, sT2, sT3, sSLOT = 61, 62, 63, 72, 73
sF = 64
sXCC, sTB, sNT, sTSI = 74, 75, 76, 77
sL2E, sM = 80, 81
sRB, sRSTEP, sRN = 82, 83, 84
sKV = 85
sNEAR, sREG2, sVOTE = 78, 79, 81
sLATE, sQS, sKM = 100, 101, 42
vLANE = 0
vGO, vXO, vPW, vSW, vQR, vOW, vMLW = 1, 2, 7, 8, 9, 10, 11
vPQ = 3
vA0, vA1, vA2, vA3 = 12, 13, 14, 15
vRDMA = 17
vTSI, vTST = 18, 19
vSEL = 20
vBQ = 28
vRB = 44
vFD = 72
T = 76
vK, vV = 128, 192
vRR, vQP, vQG, vCSQ, vCS1, vB1, vRP = 1, 2, 3, 4, 5, 6, 8
vXF = 72
vXFA = 16
vCR, vCML, vCP, vCPM, vQG7 = 1, 2, 3, 4, 5


def vr(a, n=4):
    return f"v[{a}:{a+n-1}]"


def gen(fn, instr=False, kvflags="nt", wflags="", rflags="", spin_limit=400000, tsset=None,
        y16=False, masked_=True, dbgt=False, n0=4, late=0x78, dual=True, prio=True, ncal=4, nw0=8, qk=16, rot=True,
        syfl='', qp=3, gate=4, sp1=1):
    assert not late & 0x80
    a = Asm()
    I = a.I
    a.raw(f"; @launch grid=(256,1,1) block=(512,1,1) lds={LDS_TOTAL}")
    a.raw('.amdgcn_target "amdgcn-amd-amdhsa--gfx950"')
    a.raw(".text")
    a.raw(f".globl {KNAME}\n.p2align 8\n.type {KNAME},@function\n{KNAME}:")

    def TS(k):
        if not instr or (tsset is not None and k not in tsset and k not in (0, 30)):
            return
        I("s_memrealtime s[0:1]")
        I("s_waitcnt lgkmcnt(0)")
        I(f"v_writelane_b32 v{vTSI}, {k}, s{sTSI}")
        I(f"s_mov_b32 m0, s{sTSI}")
        I(f"v_writelane_b32 v{vTST}, s0, m0")
        I(f"s_add_u32 s{sTSI}, s{sTSI}, 1")

    def srd(dst, ptr, size):
        d = int(dst[2:].split(":")[0])
        I(f"s_mov_b32 s{d}, s{ptr}")
        I(f"s_mov_b32 s{d+1}, s{ptr+1}")
        I(f"s_mov_b32 s{d+2}, {size:#x}")
        I(f"s_mov_b32 s{d+3}, 0x20000")

    def setexec(lo, hi):
        if lo == 0xFFFFFFFF and hi == 0xFFFFFFFF:
            I("s_mov_b64 exec, -1")
        else:
            I(f"s_mov_b32 exec_lo, {lo:#x}")
            I(f"s_mov_b32 exec_hi, {hi:#x}")

    def maxtree(tmp, rs):
        rs = list(rs)
        if len(rs) == 1:
            return rs[0]
        cur = None
        while rs:
            if cur is None:
                if len(rs) >= 3:
                    I(f"v_max3_u32 v{tmp}, v{rs[0]}, v{rs[1]}, v{rs[2]}"); rs = rs[3:]
                else:
                    I(f"v_max_u32 v{tmp}, v{rs[0]}, v{rs[1]}"); rs = rs[2:]
                cur = tmp
            elif len(rs) >= 2:
                I(f"v_max3_u32 v{tmp}, v{tmp}, v{rs[0]}, v{rs[1]}"); rs = rs[2:]
            else:
                I(f"v_max_u32 v{tmp}, v{tmp}, v{rs[0]}"); rs = rs[1:]
        return cur

    def poll(loads, regs, ex=(0xFFFFFFFF, 0xFFFFFFFF), groups=None, simple=False):
        lab = a.newlab("Lp"); done = a.newlab("Lpd")
        tmp = T + 50
        masked = masked_ and not simple
        if not masked:
            a.label(lab)
        for l in loads:
            I(l)
        if masked:
            a.label(lab)
        I(f"s_add_u32 s{sSPIN}, s{sSPIN}, 1")
        I("s_waitcnt vmcnt(0)")
        cur = maxtree(tmp, regs)
        I(f"v_cmp_eq_u32 vcc, -1, v{cur}")
        I(f"s_cbranch_vccz {done}")
        if masked:
            if groups is None or len(loads) == 1:
                I("s_mov_b64 exec, vcc")
                for l in loads:
                    I(l)
            else:
                for j, gr in enumerate(groups):
                    cur = maxtree(tmp + 1 - (j & 1), gr)
                    I(f"v_cmp_eq_u32 s[{86+2*j}:{87+2*j}], -1, v{cur}")
                for j, l in enumerate(loads):
                    I(f"s_mov_b64 exec, s[{86+2*j}:{87+2*j}]")
                    I(l)
            setexec(*ex)
        I(f"s_cmp_lt_u32 s{sSPIN}, {spin_limit}")
        I(f"s_cbranch_scc1 {lab}")
        if masked:
            I("s_waitcnt vmcnt(0)")
        a.label(done)

    def lstore(ins):
        l1 = a.newlab("Ls"); l2 = a.newlab("Lsd")
        I(f"s_cmp_eq_u32 s{sPURE}, 0")
        I(f"s_cbranch_scc1 {l1}")
        for x in ins: I(x)
        I(f"s_branch {l2}")
        a.label(l1)
        for x in ins: I(x + " sc1")
        a.label(l2)

    def unpack(lo, hi, src):
        I(f"v_lshlrev_b32 v{lo}, 16, v{src}")
        I(f"v_and_b32 v{hi}, 0xffff0000, v{src}")

    XA = T + 32
    ONES = T + 28

    I("s_cmp_ge_u32 s2, 256")
    I("s_cbranch_scc1 L_end")
    I("s_load_dwordx16 s[32:47], s[0:1], 0")
    I("s_load_dwordx8 s[48:55], s[0:1], 64")
    I("s_load_dwordx2 s[56:57], s[0:1], 96")
    if dbgt: I("s_memrealtime s[96:97]")
    I("v_lshrrev_b32 v1, 6, v0")
    I(f"v_and_b32 v{vLANE}, 63, v0")
    I(f"v_readfirstlane_b32 s{sWAVE}, v1")
    I(f"s_and_b32 s{sX}, s2, 7")
    I(f"s_lshr_b32 s{sR}, s2, 3")
    I(f"s_lshl_b32 s{sSLOT}, s{sX}, 5")
    I(f"s_add_u32 s{sSLOT}, s{sSLOT}, s{sR}")
    g, n, q4, c4, t0, t1, t2, t3 = T, T+1, T+2, T+3, T+4, T+5, T+6, T+7
    aK = T + 48
    vAT = T + 44
    I(f"v_lshrrev_b32 v{g}, 4, v{vLANE}")
    I(f"v_and_b32 v{n}, 15, v{vLANE}")
    I(f"v_bfe_u32 v{q4}, v{vLANE}, 2, 2")
    I(f"v_and_b32 v{c4}, 3, v{vLANE}")
    I(f"v_lshlrev_b32 v{aK}, 8, v{q4}")
    I(f"v_lshl_add_u32 v{aK}, v{g}, 6, v{aK}")
    I(f"v_lshl_add_u32 v{aK}, v{c4}, 4, v{aK}")
    I(f"v_lshlrev_b32 v{vXO}, 6, v{q4}")
    I(f"v_lshl_add_u32 v{vXO}, v{g}, 4, v{vXO}")
    I(f"s_lshl_b32 s{sT0}, s{sWAVE}, 8")
    I(f"v_add_u32 v{vXO}, s{sT0}, v{vXO}")
    I(f"s_lshl_b32 s{sKV}, s{sSLOT}, 17")
    I(f"s_lshl_b32 s{sT0}, s{sWAVE}, 14")
    I(f"s_add_u32 s{sKV}, s{sKV}, s{sT0}")
    I(f"s_lshr_b32 s{sQS}, s{sSLOT}, 3")
    I(f"s_lshl_b32 s{sQS}, s{sQS}, 11")
    I(f"s_and_b32 s{sT1}, s{sSLOT}, 3")
    I(f"s_lshl_b32 s{sT0}, s{sT1}, 9")
    I(f"s_add_u32 s{sQS}, s{sQS}, s{sT0}")
    I(f"s_and_b32 s{sT0}, s{sSLOT}, 4")
    I(f"s_lshl_b32 s{sT0}, s{sT0}, 6")
    I(f"s_add_u32 s{sQS}, s{sQS}, s{sT0}")
    I(f"s_add_u32 s{sQS}, s{sQS}, {QOFF}")
    vW0, vW1, ta0, ta1 = T + 44, T + 45, T + 42, T + 43
    XQ, ACC, BUF = 28, 48, 80
    sBa, sG, sRING, sSO, sMB, sRS_ = 86, 90, 91, 92, 93, 94
    I(f"s_and_b32 s{sT0}, s{sSLOT}, {7 if rot else 0}")
    I(f"s_sub_u32 s{sT1}, s{sT0}, 5")
    I(f"s_cmp_lt_u32 s{sT0}, 5")
    I(f"s_cselect_b32 s{sG}, s{sT0}, s{sT1}")
    I(f"s_cselect_b32 s{sT1}, 0, 2")
    I(f"s_lshl_b32 s{sG}, s{sG}, 20")
    I(f"s_lshr_b32 s{sT0}, s{sSLOT}, 3")
    I(f"s_lshl_b32 s{sT0}, s{sT0}, 8")
    I(f"s_lshl_b32 s{sT2}, s{sWAVE}, 6")
    I(f"s_add_u32 s{sT0}, s{sT0}, s{sT2}")
    I(f"s_lshl_b32 s{sT2}, s{sT1}, 18")
    I(f"s_add_u32 s{sBa}, s{sT0}, s{sT2}")
    I(f"s_add_u32 s{sBa+1}, s{sBa}, {1 << 18:#x}")
    I(f"s_xor_b32 s{sBa+2}, s{sBa}, {2 << 18:#x}")
    I(f"s_xor_b32 s{sBa+3}, s{sBa+1}, {2 << 18:#x}")
    I(f"s_mul_i32 s{sRING}, s{sWAVE}, {RSL * 1024}")
    I(f"s_add_u32 s{sRING}, s{sRING}, {L_RING}")
    I(f"v_xor_b32 v{t2}, s{sT1}, v{q4}")
    I(f"v_lshlrev_b32 v{t2}, 6, v{t2}")
    I(f"v_lshl_add_u32 v{t2}, v{g}, 4, v{t2}")
    I(f"v_lshrrev_b32 v{vW0}, 2, v{vLANE}")
    I(f"v_lshlrev_b32 v{vW0}, 13, v{vW0}")
    I(f"v_lshrrev_b32 v{t3}, 4, v{vLANE}")
    I(f"v_and_b32 v{t3}, 2, v{t3}")
    I(f"v_xor_b32 v{t3}, v{t3}, v{c4}")
    I(f"v_lshl_add_u32 v{vW0}, v{t3}, 4, v{vW0}")
    I(f"v_add_u32 v{vW1}, {1 << 17:#x}, v{vW0}")
    I(f"v_lshlrev_b32 v{t0}, 4, v{vLANE}")
    cl = T + 8
    for i in range(4):
        I(f"v_mov_b32 v{cl+i}, -1")
    I(f"s_mov_b32 s{sTSI}, 0")
    if instr:
        I(f"v_mov_b32 v{vTSI}, -1")
        I(f"v_mov_b32 v{vTST}, 0")
    I(f"s_getreg_b32 s{sXCC}, hwreg(HW_REG_XCC_ID)")
    I(f"s_and_b32 s{sXCC}, s{sXCC}, 15")
    I(f"s_lshl_b32 s{sT3}, s2, 11")
    I("s_waitcnt lgkmcnt(0)")
    srd(WS, 56, WS_SIZE)
    srd(K_SRD, 34, 32 << 20)
    srd(TA, 38, 640 * 8192)
    srd(TB, 32, 1280)

    def k_issue(lo, hi, hook=None):
        for ki in range(lo, hi):
            if hook: hook(ki)
            if ki % 4 == 0 or ki == lo:
                I(f"s_add_u32 s{sT0}, s{sKV}, {(ki//4)*4096}")
            I(f"buffer_load_dwordx4 {vr(vK+4*ki)}, v{aK}, {K_SRD}, s{sT0} offen offset:{(ki%4)*1024} {kvflags}")

    I(f"s_cmp_eq_u32 s{sWAVE}, 6")
    I("s_cbranch_scc0 L_nclr")
    I(f"buffer_store_dwordx4 {vr(cl)}, v{t0}, {WS}, s{sT3} offen sc1")
    I(f"buffer_store_dwordx4 {vr(cl)}, v{t0}, {WS}, s{sT3} offen offset:1024 sc1")
    TS(0)
    I("s_branch L_early")
    a.label("L_nclr")
    I(f"s_cmp_ge_u32 s{sWAVE}, 4")
    I("s_cbranch_scc1 L_nwq")
    if prio: I(f"s_setprio {qp}")
    nis = [0]
    def g_next():
        I(f"s_add_u32 s{sG}, s{sG}, {1 << 20:#x}")
        I(f"s_cmp_eq_u32 s{sG}, {5 << 20:#x}")
        I(f"s_cselect_b32 s{sG}, 0, s{sG}")
    def w_issue(lo, hi):
        for p in range(lo, hi):
            u, h = p >> 1, p & 1
            if h == 0 or p == lo:
                I(f"s_add_u32 s{sSO}, s{sBa + (u & 3)}, s{sG}")
            I(f"s_add_u32 m0, s{sRING}, {(p % RSL) * 1024}")
            I(f"buffer_load_dwordx4 v{(vW0, vW1)[h]}, {TA}, s{sSO} offen {wflags} lds")
            nis[0] += 1
            if p % 8 == 7:
                g_next()
    for j in range(5):
        I(f"s_lshr_b32 s{sSO}, s{sG}, 12")
        I(f"buffer_load_dwordx4 {vr(XQ+4*j)}, v{t2}, {TB}, s{sSO} offen")
        nis[0] += 1
        g_next()
    w_issue(0, nw0)
    TS(0)
    I("s_branch L_early")
    a.label("L_nwq")
    k_issue(0, n0)
    TS(0)
    a.label("L_early")
    srd(V_SRD, 36, 32 << 20)
    srd(OUTS, 52, 1280)
    I(f"s_mov_b32 s{sIT}, 0")
    I(f"s_mov_b32 s{sREG}, 0")
    I(f"s_mov_b32 s{sREG2}, {CP}")
    I(f"s_mov_b32 s{sSPIN}, 0")
    I(f"s_mov_b32 s{sPURE}, 0")
    I(f"s_mov_b32 s{sNEAR}, 0")
    I(f"s_mov_b32 s{sL2E}, {L2E:#x}")
    I(f"s_lshr_b32 s{sLATE}, {late:#x}, s{sWAVE}")
    I(f"s_and_b32 s{sLATE}, s{sLATE}, 1")
    I(f"s_mul_i32 s{sTB}, s{sX}, 7")
    I(f"s_cmp_eq_u32 s{sX}, 7")
    I(f"s_cselect_b32 s{sT0}, 1, 0")
    I(f"s_sub_u32 s{sTB}, s{sTB}, s{sT0}")
    I(f"s_cmp_lt_u32 s{sX}, 6")
    I(f"s_cselect_b32 s{sNT}, 7, 6")
    I(f"s_mov_b32 s{sROLE}, 2")
    I(f"s_cmp_lt_u32 s{sR}, 27")
    I(f"s_cselect_b32 s{sROLE}, 3, s{sROLE}")
    I(f"s_add_u32 s{sT0}, s{sNT}, 20")
    I(f"s_cmp_lt_u32 s{sR}, s{sT0}")
    I(f"s_cselect_b32 s{sROLE}, 1, s{sROLE}")
    I(f"s_cmp_lt_u32 s{sR}, 20")
    I(f"s_cselect_b32 s{sROLE}, 0, s{sROLE}")
    I(f"s_cselect_b32 s{sLATE}, s{sLATE}, 0")
    for i in [1] + list(range(3, 18)):
        I(f"v_mov_b32 v{i}, {BIG:#x}")

    def v_issue():
        k1, k2, k3 = T + 49, T + 50, T + 51
        I(f"v_lshrrev_b32 v{k1}, 4, v{vLANE}")
        I(f"v_bfe_u32 v{k3}, v{vLANE}, 3, 1")
        I(f"v_lshl_add_u32 v{k3}, v{k3}, 3, v{k1}")
        I(f"v_lshlrev_b32 v{k3}, 8, v{k3}")
        I(f"v_and_b32 v{k2}, 7, v{vLANE}")
        I(f"v_lshl_add_u32 v{k3}, v{k2}, 4, v{k3}")
        for j in range(16):
            if j % 4 == 0:
                I(f"s_add_u32 s{sT0}, s{sKV}, {(j//4)*4096}")
            u, hf = (j >> 1) & 1, j & 1
            I(f"buffer_load_dwordx4 {vr(vV+4*j)}, v{k3}, {V_SRD}, s{sT0} offen offset:{u*1024+hf*128} {kvflags}")

    def role_dma():
        I(f"s_lshl_b32 s{sT1}, s{sWAVE}, 13")
        I(f"s_add_u32 s{sT1}, s{sT1}, {L_ROLE}")
        I(f"s_mov_b32 s{sT0}, s{sRB}")
        for e in range(8):
            if e % 4 == 0:
                I(f"s_mov_b32 m0, s{sT1}")
                if e == 0:
                    I(f"s_add_u32 s{sT1}, s{sT1}, 4096")
            I(f"s_cmp_gt_u32 s{sRN}, {e}")
            I(f"s_cselect_b32 s{sT2}, s{sT0}, {BIG:#x}")
            I(f"buffer_load_dwordx4 v{vRDMA}, {TB}, s{sT2} offen offset:{(e%4)*1024} {rflags} lds")
            if e < 7:
                I(f"s_add_u32 s{sT0}, s{sT0}, s{sRSTEP}")
                if e % 4 == 3:
                    I(f"s_add_u32 s{sT0}, s{sT0}, 3072")
                else:
                    I(f"s_sub_u32 s{sT0}, s{sT0}, 1024")

    def rank_off(dst, rk, tmp):
        I(f"s_and_b32 s{tmp}, s{rk}, 15")
        I(f"s_mul_i32 s{tmp}, s{tmp}, {ZR}")
        I(f"s_lshr_b32 s{dst}, s{rk}, 4")
        I(f"s_lshl_b32 s{dst}, s{dst}, 14")
        I(f"s_add_u32 s{dst}, s{dst}, s{tmp}")

    I(f"s_cmp_ge_u32 s{sWAVE}, 5")
    I("s_cbranch_scc1 L_init567")
    I(f"v_bfe_u32 v{t0}, v{vLANE}, 3, 1")
    I(f"v_and_b32 v{t1}, 7, v{vLANE}")
    I(f"s_lshl_b32 s{sT1}, s{sWAVE}, 2")
    rank_off(sT0, sT1, sT2)
    I(f"v_mul_u32_u24 v{vGO}, {ZR}, v{t0}")
    I(f"v_mul_u32_u24 v{t1}, {ZX}, v{t1}")
    I(f"v_add3_u32 v{vGO}, v{vGO}, v{t1}, s{sT0}")
    I(f"v_lshl_add_u32 v{vGO}, v{g}, 4, v{vGO}")
    I(f"s_mul_i32 s{sT0}, s{sWAVE}, {PP}")
    I(f"s_add_u32 s{sT0}, s{sT0}, {L_PB1 + 512}")
    I(f"v_lshlrev_b32 v{t2}, 2, v{g}")
    I(f"v_add_u32 v{t2}, s{sT0}, v{t2}")
    I(f"v_lshlrev_b32 v{t3}, 2, v{vLANE}")
    I(f"v_add_u32 v{t3}, {L_DUM}, v{t3}")
    I(f"v_cmp_eq_u32 vcc, v{q4}, v{g}")
    I(f"v_cndmask_b32 v{vSW}, v{t3}, v{t2}, vcc")
    I(f"s_mul_i32 s{sT0}, s{sWAVE}, {PP}")
    I(f"v_lshlrev_b32 v{vPQ}, 4, v{g}")
    I(f"v_add_u32 v{vPQ}, s{sT0}, v{vPQ}")
    I(f"s_and_b32 s{sT0}, s{sSLOT}, 3")
    I(f"s_lshl_b32 s{sT0}, s{sT0}, 2")
    I(f"s_lshl_b32 s{sKM}, 0x00010001, s{sT0}")
    I(f"s_mov_b32 s{sKM+1}, s{sKM}")
    I("s_branch L_initc")

    a.label("L_init567")
    I(f"s_cmp_eq_u32 s{sWAVE}, 6")
    I("s_cbranch_scc1 L_initc")
    I(f"s_cmp_eq_u32 s{sWAVE}, 7")
    I("s_cbranch_scc1 L_init7")
    rank_off(sT0, sR, sT1)
    I(f"s_mul_i32 s{sT1}, s{sX}, {ZX}")
    I(f"s_add_u32 s{sT0}, s{sT0}, s{sT1}")
    I(f"s_add_u32 s{sRB}, s{sT0}, {ZOFF}")
    I(f"s_lshl_b32 s{sT0}, s{sX}, 3")
    I(f"s_add_u32 s{sT0}, s{sT0}, s{sR}")
    I(f"s_sub_u32 s{sT0}, s{sT0}, 20")
    I(f"s_lshl_b32 s{sT0}, s{sT0}, 7")
    I(f"s_add_u32 s{sT0}, s{sT0}, {HOFF}")
    I(f"s_cmp_eq_u32 s{sROLE}, 1")
    I(f"s_cselect_b32 s{sRB}, s{sT0}, s{sRB}")
    I(f"v_lshlrev_b32 v{vRR}, 4, v{vLANE}")
    I(f"v_lshlrev_b32 v{vQP}, 2, v{vLANE}")
    I(f"v_add_u32 v{vQP}, s{sQS}, v{vQP}")
    I(f"s_and_b32 s{sT0}, s{sQS}, {~2047 & 0xffffffff:#x}")
    I(f"v_lshlrev_b32 v{vQG}, 3, v{vLANE}")
    I(f"v_add_u32 v{vQG}, s{sT0}, v{vQG}")
    I(f"v_mov_b32 v{t0}, 0")
    I(f"v_mov_b32 v{t1}, 0")
    I(f"v_mov_b32 v{t2}, {L_FLAG}")
    I(f"ds_write_b64 v{t2}, v[{t0}:{t1}] offset:8")
    I(f"v_and_b32 v{t2}, 31, v{vLANE}")
    I(f"v_lshlrev_b32 v{t2}, 1, v{t2}")
    srd(TA, 46, 1728 * 2)
    I(f"s_add_u32 s{sT0}, s{sTB}, s{sR}")
    I(f"s_sub_u32 s{sT0}, s{sT0}, 20")
    I(f"s_lshl_b32 s{sT0}, s{sT0}, 6")
    I(f"s_cmp_eq_u32 s{sROLE}, 1")
    I(f"s_cselect_b32 s{sT0}, s{sT0}, {BIG:#x}")
    I(f"s_or_b32 s{sT2}, s{sROLE}, s{sX}")
    I(f"s_lshl_b32 s{sT1}, s{sR}, 6")
    I(f"s_cmp_eq_u32 s{sT2}, 0")
    I(f"s_cselect_b32 s{sT1}, s{sT1}, {BIG:#x}")
    I(f"buffer_load_ushort v{vB1}, v{t2}, {TA}, s{sT0} offen")
    I(f"buffer_load_ushort v{vXF}, v{t2}, {TB}, s{sT1} offen")
    I(f"v_lshrrev_b32 v{t1}, 3, v{vLANE}")
    I(f"v_lshlrev_b32 v{t1}, 4, v{t1}")
    I(f"v_add_u32 v{vRP}, s{sRB}, v{t1}")
    I(f"v_and_b32 v{t1}, 31, v{vLANE}")
    I(f"v_lshlrev_b32 v{t1}, 1, v{t1}")
    I(f"s_or_b32 s{sT2}, s{sROLE}, s{sX}")
    I(f"s_lshl_b32 s{sT1}, s{sR}, 6")
    I(f"s_add_u32 s{sT1}, s{sT1}, {XOFF}")
    I(f"s_cmp_eq_u32 s{sT2}, 0")
    I(f"s_cselect_b32 s{sT1}, s{sT1}, {BIG:#x}")
    I(f"v_add_u32 v{vXFA}, s{sT1}, v{t1}")
    I("s_branch L_initc")

    a.label("L_init7")
    I(f"v_lshlrev_b32 v{vCR}, 3, v{vLANE}")
    I(f"v_add_u32 v{vCR}, {L_O}, v{vCR}")
    I(f"v_and_b32 v{t0}, 7, v{vLANE}")
    I(f"v_lshlrev_b32 v{vCML}, 3, v{t0}")
    I(f"v_add_u32 v{vCML}, {L_ML}, v{vCML}")
    I(f"s_lshr_b32 s{sT0}, s{sSLOT}, 3")
    I(f"s_lshl_b32 s{sT1}, s{sT0}, 11")
    I(f"s_and_b32 s{sT2}, s{sSLOT}, 7")
    I(f"s_lshl_b32 s{sT3}, s{sT2}, 4")
    I(f"s_add_u32 s{sT1}, s{sT1}, s{sT3}")
    I(f"v_lshrrev_b32 v{t0}, 5, v{vLANE}")
    I(f"v_lshlrev_b32 v{vCP}, 10, v{t0}")
    I(f"v_lshl_add_u32 v{vCP}, v{q4}, 8, v{vCP}")
    I(f"v_and_b32 v{t0}, 1, v{g}")
    I(f"v_lshl_add_u32 v{vCP}, v{t0}, 7, v{vCP}")
    I(f"v_lshl_add_u32 v{vCP}, v{c4}, 2, v{vCP}")
    I(f"v_add_u32 v{vCP}, s{sT1}, v{vCP}")
    I(f"s_lshl_b32 s{sT0}, s{sT0}, 7")
    I(f"s_lshl_b32 s{sT2}, s{sT2}, 3")
    I(f"s_add_u32 s{sT0}, s{sT0}, s{sT2}")
    I(f"s_add_u32 s{sT0}, s{sT0}, {MLOFF}")
    I(f"v_mov_b32 v{vCPM}, s{sT0}")
    I(f"s_and_b32 s{sT0}, s{sQS}, {~2047 & 0xffffffff:#x}")
    I(f"v_lshlrev_b32 v{vQG7}, 3, v{vLANE}")
    I(f"v_add_u32 v{vQG7}, s{sT0}, v{vQG7}")

    a.label("L_initc")
    I(f"s_mov_b32 s{sRN}, 0")
    I(f"s_mov_b32 s{sRB}, 0")
    I(f"s_mov_b32 s{sRSTEP}, 0")
    srd(TB, 40, 4096 * 1280)
    I(f"v_lshrrev_b32 v{t0}, 2, v{vLANE}")
    I(f"v_lshlrev_b32 v{t1}, 4, v{c4}")
    I(f"s_cmp_eq_u32 s{sROLE}, 0")
    I("s_cbranch_scc0 L_rp1")
    I(f"s_lshl_b32 s{sT0}, s{sX}, 3")
    I(f"s_add_u32 s{sT0}, s{sT0}, s{sWAVE}")
    I(f"s_mul_i32 s{sT0}, s{sT0}, {64*1280}")
    I(f"s_lshl_b32 s{sT1}, s{sR}, 6")
    I(f"s_add_u32 s{sRB}, s{sT0}, s{sT1}")
    I(f"s_mov_b32 s{sRSTEP}, {16*1280}")
    I(f"s_mov_b32 s{sRN}, 4")
    I(f"v_mul_u32_u24 v{vRDMA}, 1280, v{t0}")
    I(f"v_add_u32 v{vRDMA}, v{vRDMA}, v{t1}")
    I(f"s_lshr_b32 s{sT0}, s{sWAVE}, 1")
    I(f"s_lshl_b32 s{sT1}, s{sX}, 2")
    I(f"s_add_u32 s{sT0}, s{sT0}, s{sT1}")
    I(f"s_lshl_b32 s{sT1}, s{sX}, 3")
    I(f"s_add_u32 s{sT1}, s{sT1}, s{sWAVE}")
    I(f"s_lshl_b32 s{sT1}, s{sT1}, 10")
    I(f"v_lshlrev_b32 v{t2}, 4, v{vLANE}")
    I(f"v_add_u32 v{vA0}, s{sT1}, v{t2}")
    I(f"v_xor_b32 v{t2}, v{g}, v{q4}")
    I(f"v_and_b32 v{t2}, 1, v{t2}")
    I(f"v_lshl_add_u32 v{t2}, v{t2}, 2, v{c4}")
    I(f"v_lshlrev_b32 v{t2}, 3, v{t2}")
    I(f"s_lshl_b32 s{sT0}, s{sT0}, 7")
    I(f"s_add_u32 s{sT0}, s{sT0}, {MLOFF}")
    I(f"v_add_u32 v{vA2}, s{sT0}, v{t2}")
    I("s_branch L_rpd")
    a.label("L_rp1")
    I(f"s_cmp_eq_u32 s{sROLE}, 1")
    I("s_cbranch_scc0 L_rp2")
    srd(TB, 44, 640 * 3456)
    I(f"s_mul_i32 s{sT0}, s{sWAVE}, {128*3456}")
    I(f"s_add_u32 s{sT1}, s{sTB}, s{sR}")
    I(f"s_sub_u32 s{sT1}, s{sT1}, 20")
    I(f"s_lshl_b32 s{sT1}, s{sT1}, 6")
    I(f"s_add_u32 s{sRB}, s{sT0}, s{sT1}")
    I(f"s_mov_b32 s{sRSTEP}, {16*3456}")
    I(f"s_cmp_lt_u32 s{sWAVE}, 5")
    I(f"s_cselect_b32 s{sRN}, 8, 0")
    I(f"v_mul_u32_u24 v{vRDMA}, 3456, v{t0}")
    I(f"v_add_u32 v{vRDMA}, v{vRDMA}, v{t1}")
    I("s_branch L_rpd")
    a.label("L_rp2")
    I(f"v_mov_b32 v{vRDMA}, 0")
    I(f"s_cmp_eq_u32 s{sROLE}, 2")
    I("s_cbranch_scc0 L_rpd")
    srd(TB, 48, 1728 * 1280)
    I(f"s_mul_i32 s{sT0}, s{sTB}, {32*1280}")
    I(f"s_sub_u32 s{sT2}, s{sR}, 27")
    I(f"s_lshl_b32 s{sT1}, s{sT2}, 8")
    I(f"s_add_u32 s{sT0}, s{sT0}, s{sT1}")
    I(f"s_lshl_b32 s{sT1}, s{sWAVE}, 5")
    I(f"s_add_u32 s{sRB}, s{sT0}, s{sT1}")
    I(f"s_mov_b32 s{sRSTEP}, {32*1280}")
    I(f"s_mov_b32 s{sRN}, 7")
    I(f"v_lshrrev_b32 v{t0}, 1, v{vLANE}")
    I(f"v_mul_u32_u24 v{vRDMA}, 1280, v{t0}")
    I(f"v_and_b32 v{t1}, 1, v{vLANE}")
    I(f"v_lshl_add_u32 v{vRDMA}, v{t1}, 4, v{vRDMA}")
    I(f"s_lshl_b32 s{sT0}, s{sX}, 10")
    I(f"s_add_u32 s{sT0}, s{sT0}, {HOFF}")
    I(f"v_lshlrev_b32 v{t0}, 4, v{g}")
    I(f"v_add_u32 v{vA0}, s{sT0}, v{t0}")
    I(f"s_mov_b32 s{sT1}, 768")
    I(f"s_cmp_eq_u32 s{sNT}, 7")
    I(f"s_cselect_b32 s{sT1}, s{sT1}, {BIG:#x}")
    I(f"v_add_u32 v{vA1}, s{sT1}, v{vA0}")
    I(f"s_lshl_b32 s{sT0}, s{sT2}, 2")
    I(f"s_lshr_b32 s{sT1}, s{sWAVE}, 1")
    I(f"s_add_u32 s{sT1}, s{sT0}, s{sT1}")
    rank_off(sT0, sT1, sT3)
    I(f"s_and_b32 s{sT1}, s{sWAVE}, 1")
    I(f"s_lshl_b32 s{sT1}, s{sT1}, 5")
    I(f"s_add_u32 s{sT0}, s{sT0}, s{sT1}")
    I(f"v_lshlrev_b32 v{t0}, 3, v{g}")
    I(f"v_add_u32 v{t0}, s{sT0}, v{t0}")
    I(f"s_mul_i32 s{sT1}, s{sX}, {ZX}")
    I(f"s_add_u32 s{sT1}, s{sT1}, {YOFF}")
    I(f"v_add_u32 v{vA2}, s{sT1}, v{t0}")
    I(f"v_mul_u32_u24 v{t1}, {ZX}, v{n}")
    I(f"v_add_u32 v{t1}, v{t1}, v{t0}")
    I(f"v_add_u32 v{t1}, {ZOFF}, v{t1}")
    I(f"s_cmp_eq_u32 s{sX}, 0")
    I(f"s_cselect_b32 s{sT0}, 8, 0")
    I(f"v_mov_b32 v{t2}, {BIG:#x}")
    I(f"v_cmp_gt_u32 vcc, s{sT0}, v{n}")
    I(f"v_cndmask_b32 v{vA3}, v{t2}, v{t1}, vcc")
    a.label("L_rpd")

    I(f"s_mul_i32 s{sT0}, s{sWAVE}, {PP}")
    I(f"v_lshlrev_b32 v{vPW}, 4, v{n}")
    I(f"v_lshl_add_u32 v{vPW}, v{g}, 2, v{vPW}")
    I(f"v_add_u32 v{vPW}, s{sT0}, v{vPW}")
    I(f"v_lshl_add_u32 v{vQR}, v{g}, 2, v{c4}")
    I(f"v_lshlrev_b32 v{vQR}, 4, v{vQR}")
    I(f"v_add_u32 v{vQR}, {L_QB}, v{vQR}")
    I(f"s_lshl_b32 s{sT0}, s{sWAVE}, 10")
    I(f"s_add_u32 s{sT0}, s{sT0}, {L_O}")
    I(f"v_bfe_u32 v{t0}, v{vLANE}, 3, 1")
    I(f"v_lshlrev_b32 v{vOW}, 9, v{t0}")
    I(f"v_and_b32 v{t0}, 7, v{vLANE}")
    I(f"v_lshl_add_u32 v{vOW}, v{t0}, 5, v{vOW}")
    I(f"v_and_b32 v{t1}, 1, v{g}")
    I(f"v_lshl_add_u32 v{vOW}, v{t1}, 4, v{vOW}")
    I(f"v_add_u32 v{vOW}, s{sT0}, v{vOW}")
    I(f"s_lshl_b32 s{sT0}, s{sWAVE}, 3")
    I(f"s_add_u32 s{sT0}, s{sT0}, {L_ML}")
    I(f"v_lshlrev_b32 v{vMLW}, 3, v{vLANE}")
    I(f"v_add_u32 v{vMLW}, {L_DUM}, v{vMLW}")
    I(f"v_writelane_b32 v{vMLW}, s{sT0}, 63")
    for u in range(2):
        for r in range(4):
            sb = 0x0100 if u == (r >> 1) else 0x0302
            d = vSEL + u * 4 + r
            I(f"v_mov_b32 v{d}, 0x0c0c0c0c")
            I(f"v_mov_b32 v{t1}, {0x0c0c0000 | sb:#x}")
            I(f"v_mov_b32 v{t2}, {(sb << 16) | 0x0c0c:#x}")
            I(f"v_cmp_eq_u32 vcc, {2*r}, v{t0}")
            I(f"v_cndmask_b32 v{d}, v{d}, v{t1}, vcc")
            I(f"v_cmp_eq_u32 vcc, {2*r+1}, v{t0}")
            I(f"v_cndmask_b32 v{d}, v{d}, v{t2}, vcc")

    def tr_addr(dst, pitch, base_s, x0=T + 48):
        x1 = x0 + 1
        I(f"v_lshrrev_b32 v{x0}, 4, v{vLANE}")
        I(f"v_bfe_u32 v{x1}, v{vLANE}, 2, 2")
        I(f"v_lshl_add_u32 v{x0}, v{x0}, 3, v{x1}")
        I(f"v_lshlrev_b32 v{x0}, {pitch.bit_length()-1}, v{x0}")
        I(f"v_and_b32 v{x1}, 3, v{vLANE}")
        I(f"v_lshl_add_u32 v{x0}, v{x1}, 3, v{x0}")
        I(f"v_add_u32 v{dst}, s{base_s}, v{x0}")

    def ones():
        for i in range(4):
            I(f"v_mov_b32 v{ONES+i}, 0x3f803f80")

    def gemv(ntile, Bbase, bidx):
        S1, S2 = T + 16, T + 20
        A0_, A1_ = vr(XA), vr(XA + 4)
        I(f"v_mfma_f32_16x16x32_bf16 {vr(S2)}, {A0_}, {A0_}, 0")
        I(f"v_mfma_f32_16x16x32_bf16 {vr(S2)}, {A1_}, {A1_}, {vr(S2)}")
        I(f"v_mfma_f32_16x16x32_bf16 {vr(S1)}, {A0_}, {vr(ONES)}, 0")
        I(f"v_mfma_f32_16x16x32_bf16 {vr(S1)}, {A1_}, {vr(ONES)}, {vr(S1)}")
        post = [
            f"v_pk_add_f32 v[{S2}:{S2+1}], v[{S2}:{S2+1}], v[{S2+2}:{S2+3}]",
            f"v_add_f32 v{S2}, v{S2}, v{S2+1}",
            f"v_add_f32_dpp v{S2}, v{S2}, v{S2} quad_perm:[1,0,3,2] row_mask:0xf bank_mask:0xf",
            f"v_pk_add_f32 v[{S1}:{S1+1}], v[{S1}:{S1+1}], v[{S1+2}:{S1+3}]",
            f"v_add_f32_dpp v{S2}, v{S2}, v{S2} quad_perm:[2,3,0,1] row_mask:0xf bank_mask:0xf",
            f"v_add_f32 v{S1}, v{S1}, v{S1+1}",
            f"v_add_f32_dpp v{S2}, v{S2}, v{S2} row_half_mirror row_mask:0xf bank_mask:0xf",
            f"ds_write2_b32 v{vSW}, v{S1}, v{S2} offset0:0 offset1:4",
        ]
        def dpost(t):
            D = T + 8 * t
            return [f"v_pk_add_f32 v[{D}:{D+1}], v[{D}:{D+1}], v[{D+2}:{D+3}]",
                    f"v_pk_add_f32 v[{D+4}:{D+5}], v[{D+4}:{D+5}], v[{D+6}:{D+7}]",
                    f"v_add_f32 v{D}, v{D}, v{D+1}",
                    f"v_add_f32_dpp v{D}, v{D+4}, v{D+5} quad_perm:[0,1,2,3] row_mask:0xc bank_mask:0xf",
                    f"ds_write_b32 v{vPW}, v{D} offset:{L_PB1 + t*256}"]
        for t in range(ntile):
            post += dpost(t)
        k = 0
        for t in range(ntile):
            for j in range(2):
                D = T + 8 * t + 4 * j
                for h in range(2):
                    I(f"v_mfma_f32_16x16x32_bf16 {vr(D)}, {(A0_, A1_)[h]}, {vr(Bbase+4*bidx(2*h+j,t))}, {vr(D) if h else '0'}")
                    k += 1
                    if k >= 5 and k < 4 * ntile:
                        for x in post[:2]: I(x)
                        post = post[2:]
        for x in post: I(x)
        I("s_waitcnt lgkmcnt(0)")

    def gemv_q(first=False):
        S1, S2 = T + 16, T + 20
        for t in range(4):
            I(f"v_mfma_f32_16x16x32_bf16 {vr(T+4*t)}, {vr(vBQ+4*t)}, {vr(XA)}, 0")
        I(f"v_mfma_f32_16x16x32_bf16 {vr(S1)}, {vr(XA)}, {vr(ONES)}, 0")
        I(f"v_mfma_f32_16x16x32_bf16 {vr(S2)}, {vr(XA)}, {vr(XA)}, 0")
        if first:
            for t in range(4):
                I(f"v_mfma_f32_16x16x32_bf16 {vr(vRB+4*t)}, {vr(vBQ+4*t)}, {vr(ONES)}, 0")
        I(f"s_mov_b64 exec, s[{sKM}:{sKM+1}]")
        for t in range(4):
            I(f"ds_write_b128 v{vPQ}, {vr(T+4*t)} offset:{L_PB1 + t*64}")
        if first:
            for t in range(4):
                I(f"ds_write_b128 v{vPQ}, {vr(vRB+4*t)} offset:{L_PB1 + 256 + t*64}")
        I("s_mov_b64 exec, -1")
        I(f"ds_write2_b32 v{vSW}, v{S1}, v{S2} offset0:0 offset1:4")
        I("s_waitcnt lgkmcnt(0)")

    def gather(sreg):
        poll([f"buffer_load_dwordx4 {vr(XA)}, v{vGO}, {WS}, s{sreg} offen sc1",
              f"buffer_load_dwordx4 {vr(XA+4)}, v{vGO}, {WS}, s{sreg} offen offset:{2*ZR} sc1"],
             [XA, XA + 4], groups=[[XA], [XA + 4]])

    def reduce_read(nw, base):
        for v in range(nw):
            I(f"ds_read_b128 {vr(T+4*v)}, v{vRR} offset:{base + v*PP}")

    def reduce_sum(nw, dst):
        np_ = 2 * nw
        idx = list(range(np_))
        while len(idx) > 1:
            nx = []
            for i in range(0, len(idx) - 1, 2):
                d, s = idx[i], idx[i + 1]
                I(f"v_pk_add_f32 v[{T+2*d}:{T+2*d+1}], v[{T+2*d}:{T+2*d+1}], v[{T+2*s}:{T+2*s+1}]")
                nx.append(d)
            if len(idx) % 2:
                nx.append(idx[-1])
            idx = nx
        I(f"v_add_f32 v{dst}, v{T}, v{T+1}")

    rTOT, rMEAN, rVAR, rMB, rSD, rR, rU, rT, rINV, rC1, rC2, rCS = [T + 32 + i for i in range(12)]

    def cs_read(area, dst):
        l = a.newlab("Lcs")
        I(f"s_cmp_eq_u32 s{sIT}, 0")
        I(f"s_cbranch_scc0 {l}")
        I(f"v_lshrrev_b32 v{rT}, 2, v{vRR}")
        for v in range(5):
            I(f"ds_read_b32 v{T+24+v}, v{rT} offset:{area + v*128}")
        I("s_waitcnt lgkmcnt(0)")
        I(f"v_add_f32 v{dst}, v{T+24}, v{T+25}")
        I(f"v_add_f32 v{rT}, v{T+26}, v{T+27}")
        I(f"v_add_f32 v{dst}, v{dst}, v{T+28}")
        I(f"v_add_f32 v{dst}, v{dst}, v{rT}")
        a.label(l)

    def stats(l0=32):
        if l0 is not None:
            I(f"v_readlane_b32 s{sT0}, v{rTOT}, {l0}")
            I(f"v_readlane_b32 s{sT1}, v{rTOT}, {l0+1}")
            I(f"v_mul_f32 v{rMEAN}, s{sT0}, v{rINV}")
            I(f"v_mul_f32 v{rVAR}, s{sT1}, v{rINV}")
        I(f"v_fma_f32 v{rVAR}, -v{rMEAN}, v{rMEAN}, v{rVAR}")
        I(f"v_max_f32 v{rVAR}, 0, v{rVAR}")
        I(f"v_cvt_pk_bf16_f32 v{rT}, v{rMEAN}, v{rVAR}")
        I(f"v_and_b32 v{rU}, 0xffff0000, v{rT}")
        I(f"v_lshlrev_b32 v{rMB}, 16, v{rT}")
        I(f"v_add_f32 v{rU}, {f2u(1e-5):#x}, v{rU}")
        I(f"v_cvt_pk_bf16_f32 v{rU}, v{rU}, v{rU}")
        I(f"v_and_b32 v{rU}, 0xffff0000, v{rU}")
        I(f"v_sqrt_f32 v{rU}, v{rU}")
        I(f"v_cvt_pk_bf16_f32 v{rU}, v{rU}, v{rU}")
        I(f"v_and_b32 v{rSD}, 0xffff0000, v{rU}")
        I(f"v_rcp_f32 v{rR}, v{rSD}")

    def pack_pairs(src, dst):
        I(f"v_mov_b32_dpp v{rT}, v{src} quad_perm:[1,0,3,2] row_mask:0xf bank_mask:0xf")
        I(f"v_cvt_pk_bf16_f32 v{dst}, v{src}, v{rT}")
        I(f"v_min_u32 v{dst}, 0xfffffffe, v{dst}")

    def q_reduce(first=False):
        qa, qs, QS = T + 44, T + 45, T + 20
        I(f"v_lshlrev_b32 v{qa}, 2, v{vLANE}")
        I(f"v_and_b32 v{qs}, 1, v{vLANE}")
        I(f"v_lshlrev_b32 v{qs}, 4, v{qs}")
        return qa, qs, QS

    def q_reduce2(qa, qs, QS, first=False):
        for v in range(5):
            I(f"ds_read_b128 {vr(T+4*v)}, v{qs} offset:{L_PB1 + 512 + v*PP}")
        for v in range(5):
            I(f"ds_read_b32 v{QS+v}, v{qa} offset:{L_PB1 + v*PP}")
        if first:
            for v in range(5):
                I(f"ds_read_b32 v{QS+5+v}, v{qa} offset:{L_WQ + v*4096}")
        I(f"s_waitcnt lgkmcnt({10 if first else 5})")
        reduce_sum(5, rTOT)
        stats(0)
        I("s_waitcnt lgkmcnt(0)")
        I(f"v_add_f32 v{QS}, v{QS}, v{QS+1}")
        I(f"v_add_f32 v{QS+2}, v{QS+2}, v{QS+3}")
        I(f"v_add_f32 v{QS}, v{QS}, v{QS+4}")
        I(f"v_add_f32 v{QS}, v{QS}, v{QS+2}")
        if first:
            I(f"v_add_f32 v{vCSQ}, v{QS+5}, v{QS+6}")
            I(f"v_add_f32 v{QS+7}, v{QS+7}, v{QS+8}")
            I(f"v_add_f32 v{vCSQ}, v{vCSQ}, v{QS+9}")
            I(f"v_add_f32 v{vCSQ}, v{vCSQ}, v{QS+7}")
        I(f"v_fma_f32 v{rU}, -v{rMB}, v{vCSQ}, v{QS}")
        I(f"v_mul_f32 v{rU}, v{rU}, v{rR}")
        I(f"v_min_u32 v{rU}, 0xfffffffe, v{rU}")

    def q_gather(va, qa):
        poll([f"buffer_load_dwordx2 v[{T+2*k}:{T+2*k+1}], v{va}, {WS}, s{sREG} offen offset:{k*512} sc1" for k in range(4)],
             list(range(T, T + 8)), groups=[[T + 2 * k, T + 2 * k + 1] for k in range(4)])
        I(f"v_pk_add_f32 v[{T}:{T+1}], v[{T}:{T+1}], v[{T+2}:{T+3}]")
        I(f"v_pk_add_f32 v[{T+4}:{T+5}], v[{T+4}:{T+5}], v[{T+6}:{T+7}]")
        I(f"v_pk_add_f32 v[{T}:{T+1}], v[{T}:{T+1}], v[{T+4}:{T+5}]")
        I(f"v_cvt_pk_bf16_f32 v{T}, v{T}, v{T+1}")
        I(f"ds_write_b32 v{qa}, v{T} offset:{L_QB}")

    def lds_wait(off, val, ge=False):
        lab = a.newlab("Lw"); done = a.newlab("Lwd")
        I(f"v_mov_b32 v{T+47}, {L_FLAG}")
        a.label(lab)
        I(f"ds_read_b32 v{T+46}, v{T+47} offset:{off}")
        I(f"s_add_u32 s{sSPIN}, s{sSPIN}, 1")
        I("s_waitcnt lgkmcnt(0)")
        I(f"v_readfirstlane_b32 s{sT3}, v{T+46}")
        I(f"s_cmp_{'ge' if ge else 'eq'}_u32 s{sT3}, {val}")
        I(f"s_cbranch_scc1 {done}")
        I(f"s_cmp_lt_u32 s{sSPIN}, {spin_limit}")
        I(f"s_cbranch_scc1 {lab}")
        a.label(done)

    def sp(p):
        if prio: I(f"s_setprio {p}")

    I(f"v_mov_b32 v{rINV}, {f2u(1.0/640):#x}")
    I("s_waitcnt lgkmcnt(0)")
    I("s_barrier")
    TS(1)
    I(f"s_cmp_ge_u32 s{sWAVE}, 4")
    I("s_cbranch_scc1 L_s4567")
    srd(TA, 38, 640 * 8192)
    w_issue(nw0, RSL)
    TS(37)
    tr_addr(ta0, 64, sRING, T + 25)
    I(f"v_bfe_u32 v{T+25}, v{vLANE}, 4, 1")
    I(f"v_lshl_add_u32 v{ta0}, v{T+25}, 5, v{ta0}")
    I(f"v_xor_b32 v{ta1}, 32, v{ta0}")
    I(f"s_waitcnt vmcnt({nis[0] - 5})")
    setexec(0x22222222, 0x22222222)
    for i in range(20):
        I(f"v_mov_b32 v{XQ+i}, 0x3f803f80")
    setexec(0xFFFFFFFF, 0xFFFFFFFF)
    for j in range(5):
        I(f"v_mfma_f32_16x16x32_bf16 {vr(BUF)}, {vr(XQ+4*j)}, {vr(XQ+4*j)}, {vr(BUF) if j else '0'}")
    for i in range(4):
        I(f"v_readlane_b32 s{sF+i}, v{BUF}, {20*i+1}")
        I(f"v_readlane_b32 s{sF+4+i}, v{BUF}, {20*i}")
    I(f"v_mov_b32 v{rMEAN}, s{sF}")
    I(f"v_mov_b32 v{rVAR}, s{sF+4}")
    for i in range(1, 4):
        I(f"v_add_f32 v{rMEAN}, s{sF+i}, v{rMEAN}")
        I(f"v_add_f32 v{rVAR}, s{sF+4+i}, v{rVAR}")
    I(f"v_mul_f32 v{rMEAN}, v{rMEAN}, v{rINV}")
    I(f"v_mul_f32 v{rVAR}, v{rVAR}, v{rINV}")
    stats(None)
    I(f"v_readfirstlane_b32 s{sMB}, v{rMB}")
    I(f"v_readfirstlane_b32 s{sRS_}, v{rR}")
    TS(2)
    def q_mma(u):
        for t in range(2):
            acc = ACC + 16 * t + 4 * (u & 3)
            I(f"v_mfma_f32_16x16x32_bf16 {vr(acc)}, {vr(BUF + 8*(u%4) + 4*t)}, {vr(XQ+4*(u>>2))}, {vr(acc) if u >= 4 else '0'}")
    for u in range(20):
        I(f"s_waitcnt vmcnt({nis[0] - 5 - 2*u - 2})")
        if u == 0: TS(38)
        o = (2 * u % RSL) * 1024
        for t in range(2):
            b = BUF + 8 * (u % 4) + 4 * t
            I(f"ds_read_b64_tr_b16 v[{b}:{b+1}], v{(ta0, ta1)[t]} offset:{o}")
            I(f"ds_read_b64_tr_b16 v[{b+2}:{b+3}], v{(ta0, ta1)[t]} offset:{o+256}")
        if u:
            I("s_waitcnt lgkmcnt(4)")
            q_mma(u - 1)
            p = RSL + 2 * (u - 1)
            if p < 40:
                w_issue(p, p + 2)
                if p + 2 == 40:
                    k_issue(0, qk)
                    nis[0] += qk
                    TS(39)
    I(f"v_mov_b32 v{BUF+0}, {L_FLAG}")
    I(f"v_mov_b32 v{BUF+1}, 1")
    I(f"v_lshrrev_b32 v{BUF+2}, 4, v{vLANE}")
    I(f"v_lshlrev_b32 v{BUF+2}, 3, v{BUF+2}")
    I(f"s_lshl_b32 s{sT0}, s{sWAVE}, 6")
    I(f"v_add_u32 v{BUF+2}, s{sT0}, v{BUF+2}")
    I(f"v_mov_b32 v{BUF+3}, s{sMB}")
    I(f"v_xor_b32 v{BUF+3}, 0x80000000, v{BUF+3}")
    I("s_waitcnt lgkmcnt(0)")
    q_mma(19)
    for aa in range(1, 4):
        for t in range(2):
            for i in range(4):
                d = ACC + 16 * t + i
                I(f"v_add_f32_dpp v{d}, v{d+4*aa}, v{d} row_shl:{4*aa} row_mask:0xf bank_mask:0xf")
    for t in range(2):
        for i in range(4):
            d = ACC + 16 * t + i
            I(f"v_fmac_f32_dpp v{d}, v{d}, v{BUF+3} quad_perm:[1,1,1,1] row_mask:0xf bank_mask:0xf")
    for t in range(2):
        for i in range(4):
            d = ACC + 16 * t + i
            I(f"v_mul_f32 v{d}, s{sRS_}, v{d}")
    for t in range(2):
        d = ACC + 16 * t
        I(f"v_cvt_pk_bf16_f32 v{d}, v{d}, v{d+1}")
        I(f"v_cvt_pk_bf16_f32 v{d+1}, v{d+2}, v{d+3}")
    setexec(0x00010001, 0x00010001)
    for t in range(2):
        d = ACC + 16 * t
        I(f"ds_write_b64 v{BUF+2}, v[{d}:{d+1}] offset:{L_QB + 32*t}")
    setexec(1, 0)
    I("s_waitcnt lgkmcnt(0)")
    I(f"ds_add_u32 v{BUF+0}, v{BUF+1} offset:12")
    setexec(0xFFFFFFFF, 0xFFFFFFFF)
    TS(5)
    sp(sp1)
    k_issue(qk, 16)
    I("s_branch L_own")

    a.label("L_s4567")
    I(f"s_cmp_eq_u32 s{sWAVE}, 6")
    I("s_cbranch_scc0 L_krest")
    sp(3)
    I(f"s_mov_b32 s{sVOTE}, 0")
    I(f"s_cmp_lt_u32 s{sR}, {ncal}")
    I("s_cbranch_scc0 L_ncal")
    MK = 0x13579bdf
    I(f"s_lshl_b32 s{sT0}, s2, 7")
    I(f"s_add_u32 s88, s{sT0}, {CALOFF + 0x10000}")
    I(f"s_load_dword s86, s[56:57], s88 glc")
    I(f"s_add_u32 s{sT0}, s{sT0}, {CALOFF}")
    I(f"s_lshl_b32 s{sVOTE}, s{sR}, 13")
    I(f"s_and_b32 s{sVOTE}, s{sVOTE}, {CP}")
    I(f"s_add_u32 s{sT0}, s{sT0}, s{sVOTE}")
    I(f"s_xor_b32 s{sT3}, s{sT0}, {CP}")
    I(f"s_lshr_b32 s{sVOTE}, s{sVOTE}, 13")
    I(f"s_lshr_b32 s88, s{sXCC}, 2")
    I(f"s_xor_b32 s{sVOTE}, s{sVOTE}, s88")
    I("s_waitcnt lgkmcnt(0)")
    for k, (ad, cnt) in enumerate(((sT0, 88), (sT3, 89))):
        I(f"s_mov_b32 s86, {MK:#x}")
        I(f"s_mov_b32 s{cnt}, 0")
        I(f"s_load_dword s86, s[56:57], s{ad} glc")
        a.label(f"L_cal{k}")
        I(f"s_add_u32 s{cnt}, s{cnt}, 1")
        I(f"s_cmp_eq_u32 s86, {MK:#x}")
        I(f"s_cselect_b32 s87, s{cnt}, 1000")
        I(f"s_cmp_lt_u32 s87, 200")
        I(f"s_cbranch_scc1 L_cal{k}")
        I("s_waitcnt lgkmcnt(0)")
    I(f"s_cmp_gt_u32 s88, s89")
    I(f"s_cselect_b32 s{sT0}, 1, 0")
    I(f"s_xor_b32 s{sVOTE}, s{sVOTE}, s{sT0}")
    I(f"s_and_b32 s{sVOTE}, s{sVOTE}, 1")
    I(f"s_lshl_b32 s{sVOTE}, s{sVOTE}, 24")
    a.label("L_ncal")
    I(f"s_mul_i32 s{sT0}, s{sXCC}, 6")
    I(f"s_lshl_b64 s[{sF}:{sF+1}], 1, s{sT0}")
    I(f"s_cmp_lt_u32 s{sXCC}, 8")
    I(f"s_cselect_b32 s{sF}, s{sF}, 0")
    I(f"s_cselect_b32 s{sF+1}, s{sF+1}, 0")
    I(f"s_or_b32 s{sF+1}, s{sF+1}, 0x10000")
    I(f"s_or_b32 s{sF+1}, s{sF+1}, s{sVOTE}")
    srd(TA, 54, 256)
    I(f"v_mov_b32 v{vAT}, s{sF}")
    I(f"v_mov_b32 v{vAT+1}, s{sF+1}")
    I(f"s_lshl_b32 s{sT0}, s{sX}, 5")
    I(f"v_mov_b32 v{vAT+2}, s{sT0}")
    TS(33)
    I("s_waitcnt vmcnt(0)")
    setexec(1, 0)
    I(f"buffer_atomic_add_x2 v[{vAT}:{vAT+1}], v{vAT+2}, {TA}, 0 offen sc1")
    setexec(0xFFFFFFFF, 0xFFFFFFFF)
    TS(32)
    sp(0)
    k_issue(0, n0)
    a.label("L_krest")
    k_issue(n0, 16)
    I(f"s_cmp_eq_u32 s{sWAVE}, 4")
    I("s_cbranch_scc0 L_vall")
    a.label("L_own")
    o2, o3 = T + 49, T + 50
    srd(TA, 38, 640 * 8192)
    I(f"s_and_b32 s{sT1}, s{sSLOT}, 3")
    I(f"s_lshl_b32 s{sT2}, s{sWAVE}, 2")
    I(f"s_add_u32 s{sT2}, s{sT2}, s{sT1}")
    I(f"s_lshl_b32 s{sT2}, s{sT2}, 18")
    I(f"s_lshr_b32 s{sT0}, s{sSLOT}, 2")
    I(f"s_lshl_b32 s{sT0}, s{sT0}, 7")
    I(f"s_add_u32 s{sT2}, s{sT2}, s{sT0}")
    I(f"v_lshrrev_b32 v{o2}, 3, v{vLANE}")
    I(f"v_lshlrev_b32 v{o2}, 13, v{o2}")
    I(f"v_and_b32 v{o3}, 7, v{vLANE}")
    I(f"v_lshl_add_u32 v{o2}, v{o3}, 4, v{o2}")
    I(f"v_bfe_u32 v{o3}, v{vLANE}, 4, 1")
    I(f"v_lshlrev_b32 v{o3}, 5, v{o3}")
    I(f"v_xor_b32 v{o2}, v{o2}, v{o3}")
    I(f"v_xor_b32 v{o3}, 64, v{o2}")
    I(f"s_lshl_b32 s{sT1}, s{sWAVE}, 12")
    I(f"s_add_u32 m0, s{sT1}, {L_WQ}")
    for e in range(4):
        I(f"buffer_load_dwordx4 v{(o2, o3)[e & 1]}, {TA}, s{sT2} offen offset:{e*1024} {wflags} lds")
        if e < 3:
            I(f"s_add_u32 s{sT2}, s{sT2}, {8*8192 - 1024}")
    a.label("L_vall")
    v_issue()
    TS(31)
    for i in range(16):
        I(f"v_mov_b32 v{T+i}, 0")
    if gate:
        I(f"v_mov_b32 v{T+24}, {L_FLAG}")
        I(f"v_mov_b32 v{T+25}, 1")
        setexec(1, 0)
        I(f"ds_add_u32 v{T+24}, v{T+25} offset:8")
        setexec(0xFFFFFFFF, 0xFFFFFFFF)
    lds_wait(12, 4)
    TS(8)
    I("s_branch L_att")

    a.label("L_loop")
    I(f"s_cmp_ge_u32 s{sWAVE}, 5")
    I("s_cbranch_scc1 L_B1")
    I(f"s_cmp_eq_u32 s{sIT}, 1")
    I("s_cbranch_scc0 L_nown")
    I(f"s_lshl_b32 s{sT0}, s{sWAVE}, 12")
    I(f"s_add_u32 s{sT0}, s{sT0}, {L_WQ}")
    ta = T + 24
    tr_addr(ta, 128, sT0, T + 25)
    I(f"v_bfe_u32 v{T+25}, v{vLANE}, 3, 1")
    I(f"v_bfe_u32 v{T+26}, v{vLANE}, 4, 1")
    I(f"v_lshl_add_u32 v{T+25}, v{T+26}, 1, v{T+25}")
    I(f"v_lshl_add_u32 v{ta}, v{T+25}, 5, v{ta}")
    for t in range(1, 4):
        I(f"v_xor_b32 v{ta+t}, {t*32}, v{ta}")
    for t in range(4):
        I(f"ds_read_b64_tr_b16 v[{vBQ+4*t}:{vBQ+4*t+1}], v{ta+t}")
        I(f"ds_read_b64_tr_b16 v[{vBQ+4*t+2}:{vBQ+4*t+3}], v{ta+t} offset:512")
    ones()
    I(f"v_lshrrev_b32 v{T+20}, 4, v{vLANE}")
    I(f"v_lshlrev_b32 v{T+20}, 4, v{T+20}")
    I(f"v_add_u32 v{T+20}, s{sT0}, v{T+20}")
    I("s_waitcnt lgkmcnt(0)")
    for t in range(4):
        I(f"v_mfma_f32_16x16x32_bf16 {vr(T+4*t)}, {vr(vBQ+4*t)}, {vr(ONES)}, 0")
    I(f"s_mov_b64 exec, s[{sKM}:{sKM+1}]")
    for t in range(4):
        I(f"ds_write_b128 v{T+20}, {vr(T+4*t)} offset:{t*64}")
    I("s_mov_b64 exec, -1")
    a.label("L_nown")
    I(f"s_lshl_b32 s{sT2}, s{sX}, 11")
    I(f"s_add_u32 s{sT2}, s{sT2}, {XOFF}")
    I(f"s_cmp_eq_u32 s{sR}, {LEAD_R}")
    I("s_cbranch_scc0 L_nolead")
    I(f"s_lshl_b32 s{sT1}, s{sWAVE}, 2")
    rank_off(sT0, sT1, sT3)
    I(f"s_add_u32 s{sT0}, s{sT0}, s{sREG}")
    I(f"s_add_u32 s{sT0}, s{sT0}, s{sNEAR}")
    I(f"s_add_u32 s{sT0}, s{sT0}, {YOFF - RS & 0xffffffff:#x}")
    I(f"v_lshrrev_b32 v{T+20}, 4, v{vLANE}")
    I(f"v_mul_u32_u24 v{T+20}, {ZR}, v{T+20}")
    I(f"v_and_b32 v{T+21}, 15, v{vLANE}")
    I(f"v_lshl_add_u32 v{T+20}, v{T+21}, 2, v{T+20}")
    I(f"s_lshl_b32 s{sT1}, s{sWAVE}, 8")
    I(f"v_lshlrev_b32 v{T+21}, 2, v{vLANE}")
    I(f"v_add_u32 v{T+21}, s{sT1}, v{T+21}")
    TS(26)
    poll([f"buffer_load_dword v{T+2*j+1}, v{T+20}, {WS}, s{sT0} offen offset:{j*ZX} sc1" for j in range(8)],
         [T + 2 * j + 1 for j in range(8)], groups=[[T + 2 * j + 1] for j in range(8)])
    TS(27)
    for j in range(8):
        unpack(T + 2 * j, T + 2 * j + 1, T + 2 * j + 1)
    for (d, s_) in ((0, 1), (2, 3), (4, 5), (6, 7), (0, 2), (4, 6), (0, 4)):
        I(f"v_pk_add_f32 v[{T+2*d}:{T+2*d+1}], v[{T+2*d}:{T+2*d+1}], v[{T+2*s_}:{T+2*s_+1}]")
    I(f"v_cvt_pk_bf16_f32 v{T}, v{T}, v{T+1}")
    I(f"s_cmp_eq_u32 s{sIT}, 2")
    I("s_cbranch_scc0 L_lead1")
    I(f"buffer_store_dword v{T}, v{T+21}, {OUTS}, 0 offen")
    if dbgt:
        I("s_memrealtime s[98:99]")
        I("s_waitcnt lgkmcnt(0)")
        I("s_sub_u32 s98, s98, s96")
        srd(TA, 54, 256)
        I(f"v_mov_b32 v{T}, s98")
        I(f"v_mov_b32 v{T+1}, s97")
        I(f"s_lshl_b32 s98, s{sWAVE}, 2")
        setexec(1, 0)
        I(f"buffer_store_dword v{T}, off, {TA}, s98 offset:8")
        I(f"buffer_store_dword v{T+1}, off, {TA}, s98 offset:40")
        setexec(0xFFFFFFFF, 0xFFFFFFFF)
    TS(29)
    I("s_branch L_fin")
    a.label("L_lead1")
    I(f"v_min_u32 v{T}, 0xfffffffe, v{T}")
    lstore([f"buffer_store_dword v{T}, v{T+21}, {WS}, s{sT2} offen"])
    TS(28)
    a.label("L_nolead")
    ones()
    TS(3)
    poll([f"buffer_load_dwordx4 {vr(XA)}, v{vXO}, {WS}, s{sT2} offen sc1"], list(range(XA, XA + 4)))
    TS(4)
    gemv_q()
    TS(5)
    a.label("L_B1")
    I(f"v_mov_b32 v{rINV}, {f2u(1.0/640):#x}")
    qa, qs, QS = q_reduce()
    I("s_barrier")
    I(f"s_cmp_eq_u32 s{sWAVE}, 5")
    I("s_cbranch_scc0 L_B2")
    TS(6)
    q_reduce2(qa, qs, QS, first=True)
    TS(7)
    lstore([f"buffer_store_dword v{rU}, v{vQP}, {WS}, s{sREG} offen"])
    q_gather(vQG, qa)
    TS(8)
    I(f"buffer_load_ushort v{vXF}, v{vXFA}, {WS}, 0 offen sc1")
    I("s_waitcnt lgkmcnt(0)")
    a.label("L_B2")
    BT = T
    ST = T + 16
    PS = T + 32
    MI = T + 36
    OA = T + 44
    for i in range(16):
        I(f"v_mov_b32 v{BT+i}, 0")
    I("s_barrier")
    a.label("L_att")
    TS(9)
    for t in range(4):
        m = 0x000F000F << (4 * t)
        setexec(m, m)
        I(f"ds_read_b128 {vr(BT+4*t)}, v{vQR}")
    setexec(0xFFFFFFFF, 0xFFFFFFFF)
    I("s_waitcnt vmcnt(16) lgkmcnt(0)")
    TS(10)
    for Tt in range(4):
        for t in range(4):
            I(f"v_mfma_f32_16x16x32_bf16 {vr(ST+4*Tt)}, {vr(vK+4*(4*Tt+t))}, {vr(BT+4*t)}, {'0' if t == 0 else vr(ST+4*Tt)}")
    for Tt in range(4):
        I(f"v_mov_b32_dpp v{PS+Tt}, v{ST+4*Tt} quad_perm:[0,0,0,0] row_mask:0xf bank_mask:0xf")
        for c in range(1, 4):
            I(f"v_add_f32_dpp v{PS+Tt}, v{ST+4*Tt+c}, v{PS+Tt} quad_perm:[{c},{c},{c},{c}] row_mask:0xf bank_mask:0xf")
    I(f"v_mov_b32 v{MI+2}, {SCALE:#x}")
    I(f"v_mov_b32 v{MI+3}, {SCALE:#x}")
    I(f"v_cvt_pk_bf16_f32 v{MI}, v{PS}, v{PS+1}")
    I(f"v_cvt_pk_bf16_f32 v{MI+1}, v{PS+2}, v{PS+3}")
    unpack(PS, PS + 1, MI)
    unpack(PS + 2, PS + 3, MI + 1)
    I(f"v_pk_mul_f32 v[{PS}:{PS+1}], v[{PS}:{PS+1}], v[{MI+2}:{MI+3}]")
    I(f"v_pk_mul_f32 v[{PS+2}:{PS+3}], v[{PS+2}:{PS+3}], v[{MI+2}:{MI+3}]")
    I(f"v_cvt_pk_bf16_f32 v{MI}, v{PS}, v{PS+1}")
    I(f"v_cvt_pk_bf16_f32 v{MI+1}, v{PS+2}, v{PS+3}")
    unpack(PS, PS + 1, MI)
    unpack(PS + 2, PS + 3, MI + 1)
    vM = MI + 4; vL = MI + 5; vT_ = MI + 6; vPK = MI + 7
    I(f"v_max3_f32 v{vM}, v{PS}, v{PS+1}, v{PS+2}")
    I(f"v_max_f32 v{vM}, v{vM}, v{PS+3}")
    I(f"v_max_f32_dpp v{vM}, v{vM}, v{vM} row_ror:4 row_mask:0xf bank_mask:0xf")
    I(f"v_max_f32_dpp v{vM}, v{vM}, v{vM} row_ror:8 row_mask:0xf bank_mask:0xf")
    I(f"v_max_f32_dpp v{vM}, v{vM}, v{vM} row_bcast:15 row_mask:0xa bank_mask:0xf")
    I(f"v_max_f32_dpp v{vM}, v{vM}, v{vM} row_bcast:31 row_mask:0xc bank_mask:0xf")
    I(f"v_mov_b32 v{MI}, s{sL2E}")
    I(f"v_readlane_b32 s{sM}, v{vM}, 63")
    I(f"v_mul_f32 v{vT_}, s{sM}, v{MI}")
    for Tt in range(4):
        I(f"v_fma_f32 v{PS+Tt}, v{PS+Tt}, v{MI}, -v{vT_}")
    for Tt in range(4):
        I(f"v_exp_f32 v{PS+Tt}, v{PS+Tt}")
    TS(11)
    I(f"s_cmp_eq_u32 s{sIT}, 0")
    I("s_cbranch_scc0 L_PV")
    I(f"v_lshlrev_b32 v{vB1}, 16, v{vB1}")
    I(f"s_cmp_eq_u32 s{sLATE}, 0")
    I("s_cbranch_scc1 L_PVe")
    role_dma()
    TS(25)
    I("s_branch L_PV")
    a.label("L_PVe")
    I("s_waitcnt vmcnt(0)")
    a.label("L_PV")
    for Tt in range(4):
        AB = ST + 8 * (Tt & 1)
        I(f"v_mov_b32_dpp v{vT_}, v{PS+Tt} row_half_mirror row_mask:0xf bank_mask:0xf")
        I(f"v_cvt_pk_bf16_f32 v{vPK}, v{PS+Tt}, v{vT_}")
        for u in range(2):
            for r in range(4):
                I(f"v_perm_b32 v{AB+4*u+r}, v{vPK}, v{vPK}, v{vSEL+4*u+r}")
        if Tt == 1:
            I(f"v_add_f32 v{vL}, v{PS}, v{PS+1}")
            I(f"v_add_f32 v{MI+1}, v{PS+2}, v{PS+3}")
            I(f"v_add_f32 v{vL}, v{vL}, v{MI+1}")
            I(f"v_add_f32_dpp v{vL}, v{vL}, v{vL} row_ror:4 row_mask:0xf bank_mask:0xf")
            I(f"v_add_f32_dpp v{vL}, v{vL}, v{vL} row_ror:8 row_mask:0xf bank_mask:0xf")
            I(f"v_add_f32_dpp v{vL}, v{vL}, v{vL} row_bcast:15 row_mask:0xa bank_mask:0xf")
            I(f"v_add_f32_dpp v{vL}, v{vL}, v{vL} row_bcast:31 row_mask:0xc bank_mask:0xf")
            I(f"ds_write_b64 v{vMLW}, v[{vM}:{vL}]")
        for u in range(2):
            i1 = Tt * 4 + u * 2 + 1
            I(f"s_waitcnt vmcnt({15 - i1 + 8})")
            for hf in range(2):
                i = Tt * 4 + u * 2 + hf
                first = (Tt == 0 and u == 0)
                I(f"v_mfma_f32_16x16x32_bf16 {vr(OA+4*hf)}, {vr(AB+4*u)}, {vr(vV+4*i)}, {'0' if first else vr(OA+4*hf)}")
    TS(12)
    setexec(0x00FF00FF, 0xFF00FF00)
    I(f"ds_write_b128 v{vOW}, {vr(OA)}")
    I(f"ds_write_b128 v{vOW}, {vr(OA+4)} offset:256")
    setexec(0xFFFFFFFF, 0xFFFFFFFF)
    I(f"s_cmp_eq_u32 s{sIT}, 0")
    I("s_cbranch_scc0 L_B3")
    sp(0)
    I(f"s_cmp_eq_u32 s{sLATE}, 0")
    I("s_cbranch_scc0 L_B3")
    I(f"s_cmp_eq_u32 s{sWAVE}, 7")
    I("s_cbranch_scc0 L_erd")
    sp(3)
    srd(TA, 54, 256)
    I(f"v_lshlrev_b32 v{BT+2}, 5, v{vLANE}")
    setexec(0xFF, 0)
    I(f"buffer_load_dwordx2 v[{BT}:{BT+1}], v{BT+2}, {TA}, 0 offen {syfl}")
    a.label("L_sync")
    I(f"s_add_u32 s{sSPIN}, s{sSPIN}, 4")
    I("s_waitcnt vmcnt(0)")
    I(f"v_and_b32 v{BT+3}, {1 << 21:#x}, v{BT+1}")
    I(f"v_cmp_eq_u32 vcc, 0, v{BT+3}")
    I("s_cbranch_vccz L_syncd")
    I(f"buffer_load_dwordx2 v[{BT}:{BT+1}], v{BT+2}, {TA}, 0 offen sc1")
    I(f"s_cmp_lt_u32 s{sSPIN}, {spin_limit}")
    I("s_cbranch_scc1 L_sync")
    I("s_waitcnt vmcnt(0)")
    a.label("L_syncd")
    I(f"v_lshrrev_b32 v{BT+3}, 24, v{BT+1}")
    I(f"v_readlane_b32 s64, v{BT}, s{sX}")
    I(f"v_readlane_b32 s65, v{BT+1}, s{sX}")
    for m_ in ("quad_perm:[1,0,3,2]", "quad_perm:[2,3,0,1]", "row_half_mirror"):
        I(f"v_add_u32_dpp v{BT+3}, v{BT+3}, v{BT+3} {m_} row_mask:0xf bank_mask:0xf")
    I(f"s_mul_i32 s{sT0}, s{sXCC}, 6")
    I(f"s_lshr_b64 s[64:65], s[64:65], s{sT0}")
    I(f"s_and_b32 s64, s64, 63")
    I(f"s_cmp_eq_u32 s64, 32")
    I(f"s_cselect_b32 s{sT1}, 1, 0")
    I(f"s_cmp_lt_u32 s{sXCC}, 8")
    I(f"s_cselect_b32 s{sT1}, s{sT1}, 0")
    I(f"v_readfirstlane_b32 s{sT0}, v{BT+3}")
    setexec(0xFFFFFFFF, 0xFFFFFFFF)
    I(f"s_cmp_gt_u32 s{sT0}, {4 * ncal}")
    I(f"s_cselect_b32 s{sT0}, 1, 0")
    I(f"s_lshr_b32 s{sT2}, s{sXCC}, 2")
    I(f"s_xor_b32 s{sT0}, s{sT0}, s{sT2}")
    I(f"s_and_b32 s{sT0}, s{sT0}, {1 if dual else 0}")
    I(f"s_lshl_b32 s{sT0}, s{sT0}, 13")
    I(f"s_or_b32 s{sT0}, s{sT0}, s{sT1}")
    I(f"v_mov_b32 v{BT}, s{sT0}")
    I(f"v_mov_b32 v{BT+1}, {L_FLAG}")
    I(f"ds_write_b32 v{BT+1}, v{BT}")
    TS(35)
    sp(0)
    a.label("L_erd")
    I(f"s_cmp_eq_u32 s{sROLE}, 0")
    I("s_cbranch_scc0 L_B3")
    if gate:
        lds_wait(8, gate, ge=True)
    role_dma()
    TS(25)
    a.label("L_B3")
    I("s_waitcnt lgkmcnt(0)")
    I(f"v_mov_b32 v{T+38}, {L_FLAG}")
    I("s_barrier")
    TS(13)
    if dbgt:
        I(f"s_cmp_eq_u32 s{sIT}, 0")
        I("s_cbranch_scc0 L_dbg1")
        I("s_memrealtime s[98:99]")
        I("s_waitcnt lgkmcnt(0)")
        I("s_sub_u32 s97, s98, s96")
        a.label("L_dbg1")
    I(f"ds_read_b32 v{T+38}, v{T+38}")
    I(f"s_cmp_eq_u32 s{sWAVE}, 7")
    I("s_cbranch_scc1 L_comb")
    I("s_waitcnt lgkmcnt(0)")
    I(f"v_readfirstlane_b32 s{sT0}, v{T+38}")
    I(f"s_and_b32 s{sPURE}, s{sT0}, 1")
    I(f"s_and_b32 s{sNEAR}, s{sT0}, {CP}")
    I("s_branch L_role")
    a.label("L_comb")
    cM, cL, cMX, cF, cT = T + 32, T + 33, T + 34, T + 36, T + 37
    cLS = T + 35
    I(f"ds_read_b64 v[{cM}:{cL}], v{vCML}")
    for w in range(8):
        I(f"ds_read2st64_b64 {vr(T+4*w)}, v{vCR} offset0:{2*w} offset1:{2*w+1}")
    I(f"v_mov_b32 v{cT}, s{sL2E}")
    I("s_waitcnt lgkmcnt(8)")
    I(f"v_readfirstlane_b32 s{sT0}, v{T+38}")
    I(f"v_max_f32_dpp v{cMX}, v{cM}, v{cM} quad_perm:[1,0,3,2] row_mask:0xf bank_mask:0xf")
    I(f"v_max_f32_dpp v{cMX}, v{cMX}, v{cMX} quad_perm:[2,3,0,1] row_mask:0xf bank_mask:0xf")
    I(f"v_max_f32_dpp v{cMX}, v{cMX}, v{cMX} row_half_mirror row_mask:0xf bank_mask:0xf")
    I(f"v_sub_f32 v{cF}, v{cM}, v{cMX}")
    I(f"v_mul_f32 v{cF}, v{cF}, v{cT}")
    I(f"v_exp_f32 v{cF}, v{cF}")
    I(f"s_and_b32 s{sPURE}, s{sT0}, 1")
    I(f"s_and_b32 s{sNEAR}, s{sT0}, {CP}")
    I("s_waitcnt lgkmcnt(0)")
    for w in range(8):
        I(f"v_readlane_b32 s{sF+w}, v{cF}, {w}")
    for w in range(8):
        I(f"v_pk_add_f32 v[{T+4*w}:{T+4*w+1}], v[{T+4*w}:{T+4*w+1}], v[{T+4*w+2}:{T+4*w+3}]")
    for w in range(8):
        sp = f"s[{sF+(w&~1)}:{sF+(w&~1)+1}]"
        o = w & 1
        acc = T + 40 + 2 * (w & 1)
        if w < 2:
            I(f"v_pk_mul_f32 v[{acc}:{acc+1}], v[{T+4*w}:{T+4*w+1}], {sp} op_sel:[0,{o}] op_sel_hi:[1,{o}]")
        else:
            I(f"v_pk_fma_f32 v[{acc}:{acc+1}], v[{T+4*w}:{T+4*w+1}], {sp}, v[{acc}:{acc+1}] op_sel:[0,{o},0] op_sel_hi:[1,{o},1]")
    I(f"v_mul_f32 v{cLS}, v{cF}, v{cL}")
    I(f"v_pk_add_f32 v[{T+40}:{T+41}], v[{T+40}:{T+41}], v[{T+42}:{T+43}]")
    I(f"v_add_f32_dpp v{cLS}, v{cLS}, v{cLS} quad_perm:[1,0,3,2] row_mask:0xf bank_mask:0xf")
    I(f"v_cvt_pk_bf16_f32 v{T+40}, v{T+40}, v{T+41}")
    I(f"v_min_u32 v{T+40}, 0xfffffffe, v{T+40}")
    I(f"v_add_f32_dpp v{cLS}, v{cLS}, v{cLS} quad_perm:[2,3,0,1] row_mask:0xf bank_mask:0xf")
    I(f"v_min_u32 v{cMX}, 0xfffffffe, v{cMX}")
    lstore([f"buffer_store_dword v{T+40}, v{vCP}, {WS}, s{sREG} offen"])
    I(f"v_add_f32_dpp v{cLS}, v{cLS}, v{cLS} row_half_mirror row_mask:0xf bank_mask:0xf")
    I(f"v_min_u32 v{cLS}, 0xfffffffe, v{cLS}")
    setexec(1, 0)
    lstore([f"buffer_store_dwordx2 v[{cMX}:{cLS}], v{vCPM}, {WS}, s{sREG} offen"])
    setexec(0xFFFFFFFF, 0xFFFFFFFF)
    TS(14)

    a.label("L_role")
    I(f"s_cmp_eq_u32 s{sROLE}, 0")
    I("s_cbranch_scc1 L_WO")
    I(f"s_cmp_eq_u32 s{sROLE}, 3")
    I("s_cbranch_scc1 L_next")
    I(f"s_cmp_eq_u32 s{sIT}, 0")
    I("s_cbranch_scc0 L_role2")
    role_dma()
    TS(25)
    a.label("L_role2")
    I(f"s_cmp_eq_u32 s{sROLE}, 1")
    I("s_cbranch_scc1 L_W1")
    I("s_branch L_W2")

    def role_base():
        I(f"s_lshl_b32 s{sT0}, s{sWAVE}, 13")
        I(f"s_add_u32 s{sT0}, s{sT0}, {L_ROLE}")

    a.label("L_WO")
    I(f"s_cmp_eq_u32 s{sIT}, 0")
    I("s_cbranch_scc0 L_WO0")
    role_base()
    tr_addr(T + 47, 64, sT0)
    I("s_waitcnt vmcnt(0)")
    for ks in range(2):
        for t in range(2):
            b = vRB + 4 * (ks * 2 + t)
            o = ks * 2048 + t * 32
            I(f"ds_read_b64_tr_b16 v[{b}:{b+1}], v{T+47} offset:{o}")
            I(f"ds_read_b64_tr_b16 v[{b+2}:{b+3}], v{T+47} offset:{o+256}")
    I("s_waitcnt lgkmcnt(0)")
    TS(15)
    a.label("L_WO0")
    I(f"s_cmp_eq_u32 s{sWAVE}, 5")
    I("s_cbranch_scc0 L_WO1")
    I("s_waitcnt vmcnt(0)")
    I(f"v_lshlrev_b32 v{vXF}, 16, v{vXF}")
    a.label("L_WO1")
    A0, Ma, La = T, T + 4, T + 5
    Dw = [[T + 8, T + 12], [T + 16, T + 20]]
    wMX, wE, wT, wL2E, wR0, wR1 = [T + 24 + i for i in range(6)]
    I(f"v_mov_b32 v{wL2E}, s{sL2E}")
    poll([f"buffer_load_dwordx4 {vr(A0)}, v{vA0}, {WS}, s{sREG} offen sc1",
          f"buffer_load_dwordx2 v[{Ma}:{La}], v{vA2}, {WS}, s{sREG} offen sc1"], list(range(T, T + 6)),
         groups=[range(T, T + 4), range(T + 4, T + 6)])
    TS(16)
    seq = [
        f"v_max_f32_dpp v{wMX}, v{Ma}, v{Ma} quad_perm:[1,0,3,2] row_mask:0xf bank_mask:0xf",
        f"v_max_f32_dpp v{wMX}, v{wMX}, v{wMX} quad_perm:[2,3,0,1] row_mask:0xf bank_mask:0xf",
        f"v_max_f32_dpp v{wMX}, v{wMX}, v{wMX} row_half_mirror row_mask:0xf bank_mask:0xf",
        f"v_sub_f32 v{wE}, v{Ma}, v{wMX}",
    ]
    k = 0
    for t in range(2):
        for ks in range(2):
            I(f"v_mfma_f32_16x16x32_bf16 {vr(Dw[t][ks])}, {vr(A0)}, {vr(vRB+4*(ks*2+t))}, 0")
            I(seq[k]); k += 1
    I(f"v_mul_f32 v{wE}, v{wE}, v{wL2E}")
    I(f"v_exp_f32 v{wE}, v{wE}")
    I(f"v_mul_f32 v{wT}, v{wE}, v{La}")
    mrg = [f"v_mov_b32_dpp v{Dw[t][0]+i}, v{Dw[t][1]+i} quad_perm:[0,1,2,3] row_mask:0xc bank_mask:0xf"
           for t in range(2) for i in range(4)]
    I(mrg[0]); I(mrg[1])
    I(f"v_add_f32_dpp v{wT}, v{wT}, v{wT} quad_perm:[1,0,3,2] row_mask:0xf bank_mask:0xf")
    I(mrg[2]); I(mrg[3])
    I(f"v_add_f32_dpp v{wT}, v{wT}, v{wT} quad_perm:[2,3,0,1] row_mask:0xf bank_mask:0xf")
    I(f"v_mov_b32_dpp v{wE}, v{wE} row_ror:4 row_mask:0xf bank_mask:0xa")
    I(mrg[4])
    I(f"v_add_f32_dpp v{wT}, v{wT}, v{wT} row_half_mirror row_mask:0xf bank_mask:0xf")
    I(mrg[5])
    I(f"v_rcp_f32 v{wT}, v{wT}")
    I(mrg[6]); I(mrg[7])
    for i in range(4):
        for t in range(2):
            D = Dw[t][0]; R = (wR0, wR1)[t]
            op = "v_mul_f32_dpp" if i == 0 else "v_fmac_f32_dpp"
            I(f"{op} v{R}, v{wE}, v{D+i} quad_perm:[{i},{i},{i},{i}] row_mask:0xf bank_mask:0xf")
    I(f"v_mul_f32 v{wR0}, v{wR0}, v{wT}")
    I(f"v_mul_f32 v{wR1}, v{wR1}, v{wT}")
    I(f"ds_write_b32 v{vPW}, v{wR0} offset:{L_PB2}")
    I(f"ds_write_b32 v{vPW}, v{wR1} offset:{L_PB2+256}")
    I("s_waitcnt lgkmcnt(0)")
    I("s_barrier")
    I(f"s_cmp_eq_u32 s{sWAVE}, 5")
    I("s_cbranch_scc0 L_next")
    TS(17)
    reduce_read(8, L_PB2)
    I("s_waitcnt lgkmcnt(0)")
    I(f"v_add_f32 v{T+30}, v{T+30}, v{vXF}")
    reduce_sum(8, rTOT)
    pack_pairs(rTOT, rU)
    I(f"v_mov_b32 v{T}, v{rU}")
    I(f"v_mov_b32_dpp v{T+1}, v{rU} quad_perm:[2,2,2,2] row_mask:0xf bank_mask:0xf")
    I(f"v_mov_b32_dpp v{T+2}, v{rU} row_shl:4 row_mask:0xf bank_mask:0xf")
    I(f"v_mov_b32_dpp v{T+3}, v{rU} row_shl:6 row_mask:0xf bank_mask:0xf")
    setexec(0x01010101, 0)
    I(f"buffer_store_dwordx4 {vr(T)}, v{vRP}, {WS}, s{sREG} offen sc1")
    if dual:
        I(f"buffer_store_dwordx4 {vr(T)}, v{vRP}, {WS}, s{sREG2} offen sc1")
    setexec(0xFFFFFFFF, 0xFFFFFFFF)
    TS(18)
    I("s_branch L_next")

    a.label("L_W1")
    I(f"s_cmp_ge_u32 s{sWAVE}, 5")
    I("s_cbranch_scc1 L_W1b")
    ones()
    I(f"s_cmp_eq_u32 s{sIT}, 0")
    I("s_cbranch_scc0 L_W11")
    role_base()
    tr_addr(T + 47, 64, sT0)
    I(f"s_lshl_b32 s{sT0}, s{sWAVE}, 7")
    I(f"v_and_b32 v{T+46}, 15, v{vLANE}")
    I(f"v_lshlrev_b32 v{T+46}, 2, v{T+46}")
    I(f"v_add_u32 v{T+46}, s{sT0}, v{T+46}")
    I("s_waitcnt vmcnt(0)")
    for ks in range(4):
        for t in range(2):
            b = vRB + 4 * (ks * 2 + t)
            o = ks * 2048 + t * 32
            I(f"ds_read_b64_tr_b16 v[{b}:{b+1}], v{T+47} offset:{o}")
            I(f"ds_read_b64_tr_b16 v[{b+2}:{b+3}], v{T+47} offset:{o+256}")
        if ks == 1:
            I("s_waitcnt lgkmcnt(0)")
    I("s_waitcnt lgkmcnt(0)")
    for t in range(2):
        for ks in range(4):
            I(f"v_mfma_f32_16x16x32_bf16 {vr(T+4*t)}, {vr(ONES)}, {vr(vRB+4*(ks*2+t))}, {'0' if ks == 0 else vr(T+4*t)}")
    I(f"ds_write_b32 v{T+46}, v{T} offset:{L_CS2}")
    I(f"ds_write_b32 v{T+46}, v{T+4} offset:{L_CS2+64}")
    TS(15)
    a.label("L_W11")
    I(f"s_add_u32 s{sT1}, s{sREG}, {ZOFF}")
    I(f"s_add_u32 s{sT1}, s{sT1}, s{sNEAR}")
    gather(sT1)
    TS(19)
    gemv(2, vRB, lambda ks, t: ks * 2 + t)
    TS(20)
    a.label("L_W1b")
    I(f"v_mov_b32 v{rINV}, {f2u(1.0/640):#x}")
    I(f"v_mov_b32 v{rC1}, {f2u(GC1):#x}")
    I(f"v_mov_b32 v{rC2}, {f2u(GC2):#x}")
    I("s_barrier")
    I(f"s_cmp_eq_u32 s{sWAVE}, 5")
    I("s_cbranch_scc0 L_next")
    TS(21)
    reduce_read(5, L_PB1)
    cs_read(L_CS2, vCS1)
    I("s_waitcnt lgkmcnt(0)")
    reduce_sum(5, rTOT)
    stats()
    I(f"v_sub_f32 v{rMEAN}, v{rMEAN}, v{rMB}")
    I(f"v_mul_f32 v{rVAR}, v{rVAR}, v{rR}")
    I(f"v_mul_f32 v{rMEAN}, v{rMEAN}, v{rR}")
    I(f"v_mul_f32 v{rVAR}, v{rVAR}, v{rR}")
    I(f"v_cvt_pk_bf16_f32 v{rT}, v{rMEAN}, v{rVAR}")
    I(f"v_and_b32 v{rU}, 0xffff0000, v{rT}")
    I(f"v_lshlrev_b32 v{rMEAN}, 16, v{rT}")
    I(f"v_add_f32 v{rU}, {f2u(1e-5):#x}, v{rU}")
    I(f"v_cvt_pk_bf16_f32 v{rU}, v{rU}, v{rU}")
    I(f"v_fma_f32 v{rMB}, v{rMEAN}, v{rSD}, v{rMB}")
    I(f"v_and_b32 v{rU}, 0xffff0000, v{rU}")
    I(f"v_sqrt_f32 v{rU}, v{rU}")
    I(f"v_fma_f32 v{rTOT}, -v{rMB}, v{vCS1}, v{rTOT}")
    I(f"v_cvt_pk_bf16_f32 v{rU}, v{rU}, v{rU}")
    I(f"v_mul_f32 v{rTOT}, v{rTOT}, v{rR}")
    I(f"v_and_b32 v{rU}, 0xffff0000, v{rU}")
    I(f"v_rcp_f32 v{rU}, v{rU}")
    I(f"v_mul_f32 v{rTOT}, v{rTOT}, v{rU}")
    I(f"v_cvt_pk_bf16_f32 v{rU}, v{rTOT}, v{rTOT}")
    I(f"v_and_b32 v{rU}, 0xffff0000, v{rU}")
    I(f"v_add_f32 v{rU}, v{rU}, v{vB1}")
    I(f"v_cvt_pk_bf16_f32 v{rU}, v{rU}, v{rU}")
    I(f"v_and_b32 v{rU}, 0xffff0000, v{rU}")
    I(f"v_mul_f32 v{rT}, v{rU}, v{rU}")
    I(f"v_fma_f32 v{rT}, v{rT}, v{rC2}, v{rC1}")
    I(f"v_mul_f32 v{rT}, v{rT}, v{rU}")
    I(f"v_exp_f32 v{rT}, v{rT}")
    I(f"v_add_f32 v{rT}, 1.0, v{rT}")
    I(f"v_rcp_f32 v{rT}, v{rT}")
    I(f"v_mul_f32 v{rU}, v{rU}, v{rT}")
    pack_pairs(rU, T)
    I(f"v_mov_b32_dpp v{T+1}, v{T} quad_perm:[2,2,2,2] row_mask:0xf bank_mask:0xf")
    I(f"v_mov_b32_dpp v{T+2}, v{T} row_shl:4 row_mask:0xf bank_mask:0xf")
    I(f"v_mov_b32_dpp v{T+3}, v{T} row_shl:6 row_mask:0xf bank_mask:0xf")
    setexec(0x01010101, 0)
    lstore([f"buffer_store_dwordx4 {vr(T)}, v{vRP}, {WS}, s{sREG} offen"])
    setexec(0xFFFFFFFF, 0xFFFFFFFF)
    TS(22)
    I("s_branch L_next")

    a.label("L_W2")
    I(f"s_cmp_eq_u32 s{sIT}, 0")
    I("s_cbranch_scc0 L_W21")
    role_base()
    tr_addr(T + 47, 32, sT0)
    I("s_waitcnt vmcnt(0)")
    for ks in range(7):
        b = vRB + 4 * ks
        I(f"ds_read_b64_tr_b16 v[{b}:{b+1}], v{T+47} offset:{ks*1024}")
        I(f"ds_read_b64_tr_b16 v[{b+2}:{b+3}], v{T+47} offset:{ks*1024+128}")
    srd(TB, 50, 1280)
    I("s_waitcnt lgkmcnt(0)")
    TS(15)
    a.label("L_W21")
    for i in range(4):
        I(f"v_mov_b32 v{vFD+i}, 0")
    I(f"s_cmp_eq_u32 s{sX}, 0")
    I("s_cbranch_scc0 L_W22")
    I(f"s_sub_u32 s{sT0}, s{sR}, 27")
    I(f"s_lshl_b32 s{sT0}, s{sT0}, 8")
    I(f"s_lshl_b32 s{sT1}, s{sWAVE}, 5")
    I(f"s_add_u32 s{sT0}, s{sT0}, s{sT1}")
    I(f"v_lshrrev_b32 v{T+4}, 4, v{vLANE}")
    I(f"v_lshlrev_b32 v{T+4}, 3, v{T+4}")
    I(f"buffer_load_dwordx2 v[{T+2}:{T+3}], v{T+4}, {TB}, s{sT0} offen")
    I(f"s_add_u32 s{sT1}, s{sREG}, s{sNEAR}")
    poll([f"buffer_load_dwordx2 v[{T}:{T+1}], v{vA3}, {WS}, s{sT1} offen sc1"], [T, T + 1])
    unpack(vFD, vFD + 1, T)
    unpack(vFD + 2, vFD + 3, T + 1)
    for m in ("quad_perm:[1,0,3,2]", "quad_perm:[2,3,0,1]", "row_half_mirror"):
        for i in range(4):
            I(f"v_add_f32_dpp v{vFD+i}, v{vFD+i}, v{vFD+i} {m} row_mask:0xf bank_mask:0xf")
    I(f"v_cvt_pk_bf16_f32 v{T}, v{vFD}, v{vFD+1}")
    I(f"v_cvt_pk_bf16_f32 v{T+1}, v{vFD+2}, v{vFD+3}")
    unpack(vFD, vFD + 1, T)
    unpack(vFD + 2, vFD + 3, T + 1)
    unpack(T + 4, T + 5, T + 2)
    unpack(T + 6, T + 7, T + 3)
    I(f"v_pk_add_f32 v[{vFD}:{vFD+1}], v[{vFD}:{vFD+1}], v[{T+4}:{T+5}]")
    I(f"v_pk_add_f32 v[{vFD+2}:{vFD+3}], v[{vFD+2}:{vFD+3}], v[{T+6}:{T+7}]")
    a.label("L_W22")
    setexec(0x00010001, 0x00010001)
    poll([f"buffer_load_dwordx4 {vr(T+4*ks)}, v{vA0}, {WS}, s{sREG} offen offset:{ks*128} sc1" for ks in range(6)]
         + [f"buffer_load_dwordx4 {vr(T+24)}, v{vA1}, {WS}, s{sREG} offen sc1"], [T + 4 * ks for ks in range(7)],
         ex=(0x00010001, 0x00010001), simple=True)
    setexec(0xFFFFFFFF, 0xFFFFFFFF)
    TS(23)
    D2 = T + 28
    for ks in range(7):
        I(f"v_mfma_f32_16x16x32_bf16 {vr(D2)}, {vr(vRB+4*ks)}, {vr(T+4*ks)}, {vr(vFD) if ks == 0 else vr(D2)}")
    Y0 = T + 32
    if not y16:
        setexec(0x00010001, 0x00010001)
    I(f"v_cvt_pk_bf16_f32 v{Y0}, v{D2}, v{D2+1}")
    I(f"v_cvt_pk_bf16_f32 v{Y0+1}, v{D2+2}, v{D2+3}")
    I(f"v_min_u32 v{Y0}, 0xfffffffe, v{Y0}")
    I(f"v_min_u32 v{Y0+1}, 0xfffffffe, v{Y0+1}")
    if y16:
        I(f"v_permlane16_swap_b32 v{Y0}, v{Y0+2}")
        I(f"v_permlane16_swap_b32 v{Y0+1}, v{Y0+3}")
        setexec(1, 1)
        I(f"buffer_store_dwordx4 {vr(Y0)}, v{vA2}, {WS}, s{sREG} offen sc1")
    else:
        I(f"buffer_store_dwordx2 v[{Y0}:{Y0+1}], v{vA2}, {WS}, s{sREG} offen sc1")
        if dual:
            I(f"buffer_store_dwordx2 v[{Y0}:{Y0+1}], v{vA2}, {WS}, s{sREG2} offen sc1")
    setexec(0xFFFFFFFF, 0xFFFFFFFF)
    TS(24)

    a.label("L_next")
    I(f"s_add_u32 s{sIT}, s{sIT}, 1")
    I(f"s_add_u32 s{sREG}, s{sREG}, {RS}")
    I(f"s_add_u32 s{sREG2}, s{sREG2}, {RS}")
    I(f"s_cmp_lt_u32 s{sIT}, 2")
    I("s_cbranch_scc1 L_loop")
    I(f"s_cmp_eq_u32 s2, {LEAD_R * 8}")
    I("s_cbranch_scc0 L_fin")
    I(f"s_cmp_lt_u32 s{sWAVE}, 5")
    I("s_cbranch_scc1 L_loop")
    a.label("L_fin")
    if instr:
        TS(30)
        I(f"s_lshl_b32 s{sT0}, s2, 3")
        I(f"s_add_u32 s{sT0}, s{sT0}, s{sWAVE}")
        I(f"s_lshl_b32 s{sT0}, s{sT0}, 9")
        I(f"s_add_u32 s{sT0}, s{sT0}, {DBGOFF}")
        I(f"v_lshlrev_b32 v{T}, 3, v{vLANE}")
        I(f"buffer_store_dwordx2 v[{vTSI}:{vTST}], v{T}, {WS}, s{sT0} offen")
    a.label("L_end")
    I("s_endpgm")
    a.raw('.section .rodata,"a"\n.p2align 6')
    a.raw(f".amdhsa_kernel {KNAME}")
    a.raw("  .amdhsa_next_free_vgpr 256\n  .amdhsa_next_free_sgpr 102\n  .amdhsa_accum_offset 256\n"
          "  .amdhsa_group_segment_fixed_size 0\n  .amdhsa_kernarg_size 104\n  .amdhsa_user_sgpr_count 2\n"
          "  .amdhsa_user_sgpr_kernarg_segment_ptr 1\n  .amdhsa_system_sgpr_workgroup_id_x 1")
    a.raw(".end_amdhsa_kernel")
    open(fn, "w").write(a.text())
    return a.ninstr


if __name__ == "__main__":
    import argparse
    p = argparse.ArgumentParser()
    p.add_argument("-o", default="k.s")
    p.add_argument("--instr", action="store_true")
    p.add_argument("--kv", default="nt")
    p.add_argument("--w", default="")
    p.add_argument("--y16", action="store_true")
    p.add_argument("--nomask", action="store_true")
    p.add_argument("--nodual", action="store_true")
    p.add_argument("--n0", type=int, default=4)
    p.add_argument("--late", type=lambda x: int(x, 0), default=0x5f)
    p.add_argument("--r", default="")
    p.add_argument("--ncal", type=int, default=4)
    p.add_argument("--nw0", type=int, default=8)
    p.add_argument("--qk", type=int, default=16)
    p.add_argument("--qp", type=int, default=3)
    p.add_argument("--gate", type=int, default=4)
    p.add_argument("--dbgt", action="store_true")
    p.add_argument("--sp1", type=int, default=1)
    p.add_argument("--norot", action="store_true")
    p.add_argument("--syfl", default="")
    p.add_argument("--ts", default=None)
    p.add_argument("--noprio", action="store_true")
    args = p.parse_args()
    ts = None if args.ts is None else set(int(x) for x in args.ts.split(","))
    n = gen(args.o, instr=args.instr, kvflags=args.kv, wflags=args.w, y16=args.y16,
            masked_=not args.nomask, tsset=ts, n0=args.n0, late=args.late, rflags=args.r, ncal=args.ncal, dual=not args.nodual, prio=not args.noprio,
            nw0=args.nw0, qk=args.qk, rot=not args.norot, syfl=args.syfl, qp=args.qp, gate=args.gate, dbgt=args.dbgt, sp1=args.sp1)
    print("instrs:", n)
```

```python
import sys, struct, math
from asmlib import Asm

KNAME = "interleave_layers__gqa_block_cached__mixer_channel_mlp__decode_kernel"

RS = 0x40000
POFF, ZOFF, YOFF, QOFF, HOFF, XOFF, MLOFF = 0x0, 0x10000, 0x18000, 0x30000, 0x22000, 0x24000, 0x28000
CALOFF = 0x80000
CP = 0x2000
ZR, ZX = 512, 64
DBGOFF = 0x100000
WS_SIZE = 0x200000
BIG = 0x40000000
PP = 544
L_PB1, L_PB2, L_CS1, L_CS2, L_QB, L_ML, L_FLAG, L_DUM, L_O, L_WQ, L_ROLE = (
    0, 2816, 7168, 7808, 8448, 8704, 8768, 8832, 10240, 18432, 38912)
LDS_TOTAL = 163840
L_RING, RSL = 38912, 30
LEAD_R = 0

def f2u(x):
    return struct.unpack("<I", struct.pack("<f", x))[0]

L2E = f2u(1.4426950408889634)
SCALE = f2u(128 ** -0.5)
GC1 = -2.0 * 1.4426950408889634 * math.sqrt(2.0 / math.pi)
GC2 = GC1 * 0.044715

sWAVE, sX, sR, sIT, sREG = 3, 4, 5, 6, 7
K_SRD, V_SRD, WS, TA, TB, OUTS = "s[8:11]", "s[12:15]", "s[16:19]", "s[20:23]", "s[24:27]", "s[28:31]"
sROLE, sPURE, sSPIN = 58, 59, 60
sT0, sT1, sT2, sT3, sSLOT = 61, 62, 63, 72, 73
sF = 64
sXCC, sTB, sNT, sTSI = 74, 75, 76, 77
sL2E, sM = 80, 81
sRB, sRSTEP, sRN = 82, 83, 84
sKV = 85
sNEAR, sREG2, sVOTE = 78, 79, 81
sLATE, sQS, sKM = 100, 101, 42
vLANE = 0
vGO, vXO, vPW, vSW, vQR, vOW, vMLW = 1, 2, 7, 8, 9, 10, 11
vPQ = 3
vA0, vA1, vA2, vA3 = 12, 13, 14, 15
vRDMA = 17
vTSI, vTST = 18, 19
vSEL = 20
vBQ = 28
vRB = 44
vFD = 72
T = 76
vK, vV = 128, 192
vRR, vQP, vQG, vCSQ, vCS1, vB1, vRP = 1, 2, 3, 4, 5, 6, 8
vXF = 72
vXFA = 16
vCR, vCML, vCP, vCPM, vQG7 = 1, 2, 3, 4, 5


def vr(a, n=4):
    return f"v[{a}:{a+n-1}]"


def gen(fn, instr=False, kvflags="nt", wflags="", rflags="", spin_limit=400000, tsset=None,
        y16=False, masked_=True, dbgt=False, n0=4, late=0x78, dual=True, prio=True, ncal=4, nw0=8, qk=16, rot=True,
        syfl='', qp=3, gate=4, sp1=1):
    assert not late & 0x80
    a = Asm()
    I = a.I
    a.raw(f"; @launch grid=(256,1,1) block=(512,1,1) lds={LDS_TOTAL}")
    a.raw('.amdgcn_target "amdgcn-amd-amdhsa--gfx950"')
    a.raw(".text")
    a.raw(f".globl {KNAME}\n.p2align 8\n.type {KNAME},@function\n{KNAME}:")

    def TS(k):
        if not instr or (tsset is not None and k not in tsset and k not in (0, 30)):
            return
        I("s_memrealtime s[0:1]")
        I("s_waitcnt lgkmcnt(0)")
        I(f"v_writelane_b32 v{vTSI}, {k}, s{sTSI}")
        I(f"s_mov_b32 m0, s{sTSI}")
        I(f"v_writelane_b32 v{vTST}, s0, m0")
        I(f"s_add_u32 s{sTSI}, s{sTSI}, 1")

    def srd(dst, ptr, size):
        d = int(dst[2:].split(":")[0])
        I(f"s_mov_b32 s{d}, s{ptr}")
        I(f"s_mov_b32 s{d+1}, s{ptr+1}")
        I(f"s_mov_b32 s{d+2}, {size:#x}")
        I(f"s_mov_b32 s{d+3}, 0x20000")

    def setexec(lo, hi):
        if lo == 0xFFFFFFFF and hi == 0xFFFFFFFF:
            I("s_mov_b64 exec, -1")
        else:
            I(f"s_mov_b32 exec_lo, {lo:#x}")
            I(f"s_mov_b32 exec_hi, {hi:#x}")

    def maxtree(tmp, rs):
        rs = list(rs)
        if len(rs) == 1:
            return rs[0]
        cur = None
        while rs:
            if cur is None:
                if len(rs) >= 3:
                    I(f"v_max3_u32 v{tmp}, v{rs[0]}, v{rs[1]}, v{rs[2]}"); rs = rs[3:]
                else:
                    I(f"v_max_u32 v{tmp}, v{rs[0]}, v{rs[1]}"); rs = rs[2:]
                cur = tmp
            elif len(rs) >= 2:
                I(f"v_max3_u32 v{tmp}, v{tmp}, v{rs[0]}, v{rs[1]}"); rs = rs[2:]
            else:
                I(f"v_max_u32 v{tmp}, v{tmp}, v{rs[0]}"); rs = rs[1:]
        return cur

    def poll(loads, regs, ex=(0xFFFFFFFF, 0xFFFFFFFF), groups=None, simple=False):
        lab = a.newlab("Lp"); done = a.newlab("Lpd")
        tmp = T + 50
        masked = masked_ and not simple
        if not masked:
            a.label(lab)
        for l in loads:
            I(l)
        if masked:
            a.label(lab)
        I(f"s_add_u32 s{sSPIN}, s{sSPIN}, 1")
        I("s_waitcnt vmcnt(0)")
        cur = maxtree(tmp, regs)
        I(f"v_cmp_eq_u32 vcc, -1, v{cur}")
        I(f"s_cbranch_vccz {done}")
        if masked:
            if groups is None or len(loads) == 1:
                I("s_mov_b64 exec, vcc")
                for l in loads:
                    I(l)
            else:
                for j, gr in enumerate(groups):
                    cur = maxtree(tmp + 1 - (j & 1), gr)
                    I(f"v_cmp_eq_u32 s[{86+2*j}:{87+2*j}], -1, v{cur}")
                for j, l in enumerate(loads):
                    I(f"s_mov_b64 exec, s[{86+2*j}:{87+2*j}]")
                    I(l)
            setexec(*ex)
        I(f"s_cmp_lt_u32 s{sSPIN}, {spin_limit}")
        I(f"s_cbranch_scc1 {lab}")
        if masked:
            I("s_waitcnt vmcnt(0)")
        a.label(done)

    def lstore(ins):
        l1 = a.newlab("Ls"); l2 = a.newlab("Lsd")
        I(f"s_cmp_eq_u32 s{sPURE}, 0")
        I(f"s_cbranch_scc1 {l1}")
        for x in ins: I(x)
        I(f"s_branch {l2}")
        a.label(l1)
        for x in ins: I(x + " sc1")
        a.label(l2)

    def unpack(lo, hi, src):
        I(f"v_lshlrev_b32 v{lo}, 16, v{src}")
        I(f"v_and_b32 v{hi}, 0xffff0000, v{src}")

    XA = T + 32
    ONES = T + 28

    I("s_cmp_ge_u32 s2, 256")
    I("s_cbranch_scc1 L_end")
    I("s_load_dwordx16 s[32:47], s[0:1], 0")
    I("s_load_dwordx8 s[48:55], s[0:1], 64")
    I("s_load_dwordx2 s[56:57], s[0:1], 96")
    if dbgt: I("s_memrealtime s[96:97]")
    I("v_lshrrev_b32 v1, 6, v0")
    I(f"v_and_b32 v{vLANE}, 63, v0")
    I(f"v_readfirstlane_b32 s{sWAVE}, v1")
    I(f"s_and_b32 s{sX}, s2, 7")
    I(f"s_lshr_b32 s{sR}, s2, 3")
    I(f"s_lshl_b32 s{sSLOT}, s{sX}, 5")
    I(f"s_add_u32 s{sSLOT}, s{sSLOT}, s{sR}")
    g, n, q4, c4, t0, t1, t2, t3 = T, T+1, T+2, T+3, T+4, T+5, T+6, T+7
    aK = T + 48
    vAT = T + 44
    I(f"v_lshrrev_b32 v{g}, 4, v{vLANE}")
    I(f"v_and_b32 v{n}, 15, v{vLANE}")
    I(f"v_bfe_u32 v{q4}, v{vLANE}, 2, 2")
    I(f"v_and_b32 v{c4}, 3, v{vLANE}")
    I(f"v_lshlrev_b32 v{aK}, 8, v{q4}")
    I(f"v_lshl_add_u32 v{aK}, v{g}, 6, v{aK}")
    I(f"v_lshl_add_u32 v{aK}, v{c4}, 4, v{aK}")
    I(f"v_lshlrev_b32 v{vXO}, 6, v{q4}")
    I(f"v_lshl_add_u32 v{vXO}, v{g}, 4, v{vXO}")
    I(f"s_lshl_b32 s{sT0}, s{sWAVE}, 8")
    I(f"v_add_u32 v{vXO}, s{sT0}, v{vXO}")
    I(f"s_lshl_b32 s{sKV}, s{sSLOT}, 17")
    I(f"s_lshl_b32 s{sT0}, s{sWAVE}, 14")
    I(f"s_add_u32 s{sKV}, s{sKV}, s{sT0}")
    I(f"s_lshr_b32 s{sQS}, s{sSLOT}, 3")
    I(f"s_lshl_b32 s{sQS}, s{sQS}, 11")
    I(f"s_and_b32 s{sT1}, s{sSLOT}, 3")
    I(f"s_lshl_b32 s{sT0}, s{sT1}, 9")
    I(f"s_add_u32 s{sQS}, s{sQS}, s{sT0}")
    I(f"s_and_b32 s{sT0}, s{sSLOT}, 4")
    I(f"s_lshl_b32 s{sT0}, s{sT0}, 6")
    I(f"s_add_u32 s{sQS}, s{sQS}, s{sT0}")
    I(f"s_add_u32 s{sQS}, s{sQS}, {QOFF}")
    vW0, vW1, ta0, ta1 = T + 44, T + 45, T + 42, T + 43
    XQ, ACC, BUF = 28, 48, 80
    sBa, sG, sRING, sSO, sMB, sRS_ = 86, 90, 91, 92, 93, 94
    I(f"s_and_b32 s{sT0}, s{sSLOT}, {7 if rot else 0}")
    I(f"s_sub_u32 s{sT1}, s{sT0}, 5")
    I(f"s_cmp_lt_u32 s{sT0}, 5")
    I(f"s_cselect_b32 s{sG}, s{sT0}, s{sT1}")
    I(f"s_cselect_b32 s{sT1}, 0, 2")
    I(f"s_lshl_b32 s{sG}, s{sG}, 20")
    I(f"s_lshr_b32 s{sT0}, s{sSLOT}, 3")
    I(f"s_lshl_b32 s{sT0}, s{sT0}, 8")
    I(f"s_lshl_b32 s{sT2}, s{sWAVE}, 6")
    I(f"s_add_u32 s{sT0}, s{sT0}, s{sT2}")
    I(f"s_lshl_b32 s{sT2}, s{sT1}, 18")
    I(f"s_add_u32 s{sBa}, s{sT0}, s{sT2}")
    I(f"s_add_u32 s{sBa+1}, s{sBa}, {1 << 18:#x}")
    I(f"s_xor_b32 s{sBa+2}, s{sBa}, {2 << 18:#x}")
    I(f"s_xor_b32 s{sBa+3}, s{sBa+1}, {2 << 18:#x}")
    I(f"s_mul_i32 s{sRING}, s{sWAVE}, {RSL * 1024}")
    I(f"s_add_u32 s{sRING}, s{sRING}, {L_RING}")
    I(f"v_xor_b32 v{t2}, s{sT1}, v{q4}")
    I(f"v_lshlrev_b32 v{t2}, 6, v{t2}")
    I(f"v_lshl_add_u32 v{t2}, v{g}, 4, v{t2}")
    I(f"v_lshrrev_b32 v{vW0}, 2, v{vLANE}")
    I(f"v_lshlrev_b32 v{vW0}, 13, v{vW0}")
    I(f"v_lshrrev_b32 v{t3}, 4, v{vLANE}")
    I(f"v_and_b32 v{t3}, 2, v{t3}")
    I(f"v_xor_b32 v{t3}, v{t3}, v{c4}")
    I(f"v_lshl_add_u32 v{vW0}, v{t3}, 4, v{vW0}")
    I(f"v_add_u32 v{vW1}, {1 << 17:#x}, v{vW0}")
    I(f"v_lshlrev_b32 v{t0}, 4, v{vLANE}")
    cl = T + 8
    for i in range(4):
        I(f"v_mov_b32 v{cl+i}, -1")
    I(f"s_mov_b32 s{sTSI}, 0")
    if instr:
        I(f"v_mov_b32 v{vTSI}, -1")
        I(f"v_mov_b32 v{vTST}, 0")
    I(f"s_getreg_b32 s{sXCC}, hwreg(HW_REG_XCC_ID)")
    I(f"s_and_b32 s{sXCC}, s{sXCC}, 15")
    I(f"s_lshl_b32 s{sT3}, s2, 11")
    I("s_waitcnt lgkmcnt(0)")
    srd(WS, 56, WS_SIZE)
    srd(K_SRD, 34, 32 << 20)
    if dbgt: I(f"v_writelane_b32 v{vTST}, s96, 0")
    srd(TA, 38, 640 * 8192)
    srd(TB, 32, 1280)

    def k_issue(lo, hi, hook=None):
        for ki in range(lo, hi):
            if hook: hook(ki)
            if ki % 4 == 0 or ki == lo:
                I(f"s_add_u32 s{sT0}, s{sKV}, {(ki//4)*4096}")
            I(f"buffer_load_dwordx4 {vr(vK+4*ki)}, v{aK}, {K_SRD}, s{sT0} offen offset:{(ki%4)*1024} {kvflags}")

    I(f"s_cmp_eq_u32 s{sWAVE}, 6")
    I("s_cbranch_scc0 L_nclr")
    I(f"buffer_store_dwordx4 {vr(cl)}, v{t0}, {WS}, s{sT3} offen sc1")
    I(f"buffer_store_dwordx4 {vr(cl)}, v{t0}, {WS}, s{sT3} offen offset:1024 sc1")
    TS(0)
    I("s_branch L_early")
    a.label("L_nclr")
    I(f"s_cmp_ge_u32 s{sWAVE}, 4")
    I("s_cbranch_scc1 L_nwq")
    if prio: I(f"s_setprio {qp}")
    nis = [0]
    def g_next():
        I(f"s_add_u32 s{sG}, s{sG}, {1 << 20:#x}")
        I(f"s_cmp_eq_u32 s{sG}, {5 << 20:#x}")
        I(f"s_cselect_b32 s{sG}, 0, s{sG}")
    def w_issue(lo, hi):
        for p in range(lo, hi):
            u, h = p >> 1, p & 1
            if h == 0 or p == lo:
                I(f"s_add_u32 s{sSO}, s{sBa + (u & 3)}, s{sG}")
            I(f"s_add_u32 m0, s{sRING}, {(p % RSL) * 1024}")
            I(f"buffer_load_dwordx4 v{(vW0, vW1)[h]}, {TA}, s{sSO} offen {wflags} lds")
            nis[0] += 1
            if p % 8 == 7:
                g_next()
    for j in range(5):
        I(f"s_lshr_b32 s{sSO}, s{sG}, 12")
        I(f"buffer_load_dwordx4 {vr(XQ+4*j)}, v{t2}, {TB}, s{sSO} offen")
        nis[0] += 1
        g_next()
    w_issue(0, nw0)
    TS(0)
    I("s_branch L_early")
    a.label("L_nwq")
    k_issue(0, n0)
    TS(0)
    a.label("L_early")
    srd(V_SRD, 36, 32 << 20)
    srd(OUTS, 52, 1280)
    I(f"s_mov_b32 s{sIT}, 0")
    I(f"s_mov_b32 s{sREG}, 0")
    I(f"s_mov_b32 s{sREG2}, {CP}")
    I(f"s_mov_b32 s{sSPIN}, 0")
    I(f"s_mov_b32 s{sPURE}, 0")
    I(f"s_mov_b32 s{sNEAR}, 0")
    I(f"s_mov_b32 s{sL2E}, {L2E:#x}")
    I(f"s_lshr_b32 s{sLATE}, {late:#x}, s{sWAVE}")
    I(f"s_and_b32 s{sLATE}, s{sLATE}, 1")
    I(f"s_mul_i32 s{sTB}, s{sX}, 7")
    I(f"s_cmp_eq_u32 s{sX}, 7")
    I(f"s_cselect_b32 s{sT0}, 1, 0")
    I(f"s_sub_u32 s{sTB}, s{sTB}, s{sT0}")
    I(f"s_cmp_lt_u32 s{sX}, 6")
    I(f"s_cselect_b32 s{sNT}, 7, 6")
    I(f"s_mov_b32 s{sROLE}, 2")
    I(f"s_cmp_lt_u32 s{sR}, 27")
    I(f"s_cselect_b32 s{sROLE}, 3, s{sROLE}")
    I(f"s_add_u32 s{sT0}, s{sNT}, 20")
    I(f"s_cmp_lt_u32 s{sR}, s{sT0}")
    I(f"s_cselect_b32 s{sROLE}, 1, s{sROLE}")
    I(f"s_cmp_lt_u32 s{sR}, 20")
    I(f"s_cselect_b32 s{sROLE}, 0, s{sROLE}")
    I(f"s_cselect_b32 s{sLATE}, s{sLATE}, 0")
    for i in [1] + list(range(3, 18)):
        I(f"v_mov_b32 v{i}, {BIG:#x}")

    def v_issue():
        k1, k2, k3 = T + 49, T + 50, T + 51
        I(f"v_lshrrev_b32 v{k1}, 4, v{vLANE}")
        I(f"v_bfe_u32 v{k3}, v{vLANE}, 3, 1")
        I(f"v_lshl_add_u32 v{k3}, v{k3}, 3, v{k1}")
        I(f"v_lshlrev_b32 v{k3}, 8, v{k3}")
        I(f"v_and_b32 v{k2}, 7, v{vLANE}")
        I(f"v_lshl_add_u32 v{k3}, v{k2}, 4, v{k3}")
        for j in range(16):
            if j % 4 == 0:
                I(f"s_add_u32 s{sT0}, s{sKV}, {(j//4)*4096}")
            u, hf = (j >> 1) & 1, j & 1
            I(f"buffer_load_dwordx4 {vr(vV+4*j)}, v{k3}, {V_SRD}, s{sT0} offen offset:{u*1024+hf*128} {kvflags}")

    def role_dma():
        I(f"s_lshl_b32 s{sT1}, s{sWAVE}, 13")
        I(f"s_add_u32 s{sT1}, s{sT1}, {L_ROLE}")
        I(f"s_mov_b32 s{sT0}, s{sRB}")
        for e in range(8):
            if e % 4 == 0:
                I(f"s_mov_b32 m0, s{sT1}")
                if e == 0:
                    I(f"s_add_u32 s{sT1}, s{sT1}, 4096")
            I(f"s_cmp_gt_u32 s{sRN}, {e}")
            I(f"s_cselect_b32 s{sT2}, s{sT0}, {BIG:#x}")
            I(f"buffer_load_dwordx4 v{vRDMA}, {TB}, s{sT2} offen offset:{(e%4)*1024} {rflags} lds")
            if e < 7:
                I(f"s_add_u32 s{sT0}, s{sT0}, s{sRSTEP}")
                if e % 4 == 3:
                    I(f"s_add_u32 s{sT0}, s{sT0}, 3072")
                else:
                    I(f"s_sub_u32 s{sT0}, s{sT0}, 1024")

    def rank_off(dst, rk, tmp):
        I(f"s_and_b32 s{tmp}, s{rk}, 15")
        I(f"s_mul_i32 s{tmp}, s{tmp}, {ZR}")
        I(f"s_lshr_b32 s{dst}, s{rk}, 4")
        I(f"s_lshl_b32 s{dst}, s{dst}, 14")
        I(f"s_add_u32 s{dst}, s{dst}, s{tmp}")

    I(f"s_cmp_ge_u32 s{sWAVE}, 5")
    I("s_cbranch_scc1 L_init567")
    I(f"v_bfe_u32 v{t0}, v{vLANE}, 3, 1")
    I(f"v_and_b32 v{t1}, 7, v{vLANE}")
    I(f"s_lshl_b32 s{sT1}, s{sWAVE}, 2")
    rank_off(sT0, sT1, sT2)
    I(f"v_mul_u32_u24 v{vGO}, {ZR}, v{t0}")
    I(f"v_mul_u32_u24 v{t1}, {ZX}, v{t1}")
    I(f"v_add3_u32 v{vGO}, v{vGO}, v{t1}, s{sT0}")
    I(f"v_lshl_add_u32 v{vGO}, v{g}, 4, v{vGO}")
    I(f"s_mul_i32 s{sT0}, s{sWAVE}, {PP}")
    I(f"s_add_u32 s{sT0}, s{sT0}, {L_PB1 + 512}")
    I(f"v_lshlrev_b32 v{t2}, 2, v{g}")
    I(f"v_add_u32 v{t2}, s{sT0}, v{t2}")
    I(f"v_lshlrev_b32 v{t3}, 2, v{vLANE}")
    I(f"v_add_u32 v{t3}, {L_DUM}, v{t3}")
    I(f"v_cmp_eq_u32 vcc, v{q4}, v{g}")
    I(f"v_cndmask_b32 v{vSW}, v{t3}, v{t2}, vcc")
    I(f"s_mul_i32 s{sT0}, s{sWAVE}, {PP}")
    I(f"v_lshlrev_b32 v{vPQ}, 4, v{g}")
    I(f"v_add_u32 v{vPQ}, s{sT0}, v{vPQ}")
    I(f"s_and_b32 s{sT0}, s{sSLOT}, 3")
    I(f"s_lshl_b32 s{sT0}, s{sT0}, 2")
    I(f"s_lshl_b32 s{sKM}, 0x00010001, s{sT0}")
    I(f"s_mov_b32 s{sKM+1}, s{sKM}")
    I("s_branch L_initc")

    a.label("L_init567")
    I(f"s_cmp_eq_u32 s{sWAVE}, 6")
    I("s_cbranch_scc1 L_initc")
    I(f"s_cmp_eq_u32 s{sWAVE}, 7")
    I("s_cbranch_scc1 L_init7")
    rank_off(sT0, sR, sT1)
    I(f"s_mul_i32 s{sT1}, s{sX}, {ZX}")
    I(f"s_add_u32 s{sT0}, s{sT0}, s{sT1}")
    I(f"s_add_u32 s{sRB}, s{sT0}, {ZOFF}")
    I(f"s_lshl_b32 s{sT0}, s{sX}, 3")
    I(f"s_add_u32 s{sT0}, s{sT0}, s{sR}")
    I(f"s_sub_u32 s{sT0}, s{sT0}, 20")
    I(f"s_lshl_b32 s{sT0}, s{sT0}, 7")
    I(f"s_add_u32 s{sT0}, s{sT0}, {HOFF}")
    I(f"s_cmp_eq_u32 s{sROLE}, 1")
    I(f"s_cselect_b32 s{sRB}, s{sT0}, s{sRB}")
    I(f"v_lshlrev_b32 v{vRR}, 4, v{vLANE}")
    I(f"v_lshlrev_b32 v{vQP}, 2, v{vLANE}")
    I(f"v_add_u32 v{vQP}, s{sQS}, v{vQP}")
    I(f"s_and_b32 s{sT0}, s{sQS}, {~2047 & 0xffffffff:#x}")
    I(f"v_lshlrev_b32 v{vQG}, 3, v{vLANE}")
    I(f"v_add_u32 v{vQG}, s{sT0}, v{vQG}")
    I(f"v_mov_b32 v{t0}, 0")
    I(f"v_mov_b32 v{t1}, 0")
    I(f"v_mov_b32 v{t2}, {L_FLAG}")
    I(f"ds_write_b64 v{t2}, v[{t0}:{t1}] offset:8")
    I(f"v_and_b32 v{t2}, 31, v{vLANE}")
    I(f"v_lshlrev_b32 v{t2}, 1, v{t2}")
    srd(TA, 46, 1728 * 2)
    I(f"s_add_u32 s{sT0}, s{sTB}, s{sR}")
    I(f"s_sub_u32 s{sT0}, s{sT0}, 20")
    I(f"s_lshl_b32 s{sT0}, s{sT0}, 6")
    I(f"s_cmp_eq_u32 s{sROLE}, 1")
    I(f"s_cselect_b32 s{sT0}, s{sT0}, {BIG:#x}")
    I(f"s_or_b32 s{sT2}, s{sROLE}, s{sX}")
    I(f"s_lshl_b32 s{sT1}, s{sR}, 6")
    I(f"s_cmp_eq_u32 s{sT2}, 0")
    I(f"s_cselect_b32 s{sT1}, s{sT1}, {BIG:#x}")
    I(f"buffer_load_ushort v{vB1}, v{t2}, {TA}, s{sT0} offen")
    I(f"buffer_load_ushort v{vXF}, v{t2}, {TB}, s{sT1} offen")
    I(f"v_lshrrev_b32 v{t1}, 3, v{vLANE}")
    I(f"v_lshlrev_b32 v{t1}, 4, v{t1}")
    I(f"v_add_u32 v{vRP}, s{sRB}, v{t1}")
    I(f"v_and_b32 v{t1}, 31, v{vLANE}")
    I(f"v_lshlrev_b32 v{t1}, 1, v{t1}")
    I(f"s_or_b32 s{sT2}, s{sROLE}, s{sX}")
    I(f"s_lshl_b32 s{sT1}, s{sR}, 6")
    I(f"s_add_u32 s{sT1}, s{sT1}, {XOFF}")
    I(f"s_cmp_eq_u32 s{sT2}, 0")
    I(f"s_cselect_b32 s{sT1}, s{sT1}, {BIG:#x}")
    I(f"v_add_u32 v{vXFA}, s{sT1}, v{t1}")
    I("s_branch L_initc")

    a.label("L_init7")
    I(f"v_lshlrev_b32 v{vCR}, 3, v{vLANE}")
    I(f"v_add_u32 v{vCR}, {L_O}, v{vCR}")
    I(f"v_and_b32 v{t0}, 7, v{vLANE}")
    I(f"v_lshlrev_b32 v{vCML}, 3, v{t0}")
    I(f"v_add_u32 v{vCML}, {L_ML}, v{vCML}")
    I(f"s_lshr_b32 s{sT0}, s{sSLOT}, 3")
    I(f"s_lshl_b32 s{sT1}, s{sT0}, 11")
    I(f"s_and_b32 s{sT2}, s{sSLOT}, 7")
    I(f"s_lshl_b32 s{sT3}, s{sT2}, 4")
    I(f"s_add_u32 s{sT1}, s{sT1}, s{sT3}")
    I(f"v_lshrrev_b32 v{t0}, 5, v{vLANE}")
    I(f"v_lshlrev_b32 v{vCP}, 10, v{t0}")
    I(f"v_lshl_add_u32 v{vCP}, v{q4}, 8, v{vCP}")
    I(f"v_and_b32 v{t0}, 1, v{g}")
    I(f"v_lshl_add_u32 v{vCP}, v{t0}, 7, v{vCP}")
    I(f"v_lshl_add_u32 v{vCP}, v{c4}, 2, v{vCP}")
    I(f"v_add_u32 v{vCP}, s{sT1}, v{vCP}")
    I(f"s_lshl_b32 s{sT0}, s{sT0}, 7")
    I(f"s_lshl_b32 s{sT2}, s{sT2}, 3")
    I(f"s_add_u32 s{sT0}, s{sT0}, s{sT2}")
    I(f"s_add_u32 s{sT0}, s{sT0}, {MLOFF}")
    I(f"v_mov_b32 v{vCPM}, s{sT0}")
    I(f"s_and_b32 s{sT0}, s{sQS}, {~2047 & 0xffffffff:#x}")
    I(f"v_lshlrev_b32 v{vQG7}, 3, v{vLANE}")
    I(f"v_add_u32 v{vQG7}, s{sT0}, v{vQG7}")

    a.label("L_initc")
    I(f"s_mov_b32 s{sRN}, 0")
    I(f"s_mov_b32 s{sRB}, 0")
    I(f"s_mov_b32 s{sRSTEP}, 0")
    srd(TB, 40, 4096 * 1280)
    I(f"v_lshrrev_b32 v{t0}, 2, v{vLANE}")
    I(f"v_lshlrev_b32 v{t1}, 4, v{c4}")
    I(f"s_cmp_eq_u32 s{sROLE}, 0")
    I("s_cbranch_scc0 L_rp1")
    I(f"s_lshl_b32 s{sT0}, s{sX}, 3")
    I(f"s_add_u32 s{sT0}, s{sT0}, s{sWAVE}")
    I(f"s_mul_i32 s{sT0}, s{sT0}, {64*1280}")
    I(f"s_lshl_b32 s{sT1}, s{sR}, 6")
    I(f"s_add_u32 s{sRB}, s{sT0}, s{sT1}")
    I(f"s_mov_b32 s{sRSTEP}, {16*1280}")
    I(f"s_mov_b32 s{sRN}, 4")
    I(f"v_mul_u32_u24 v{vRDMA}, 1280, v{t0}")
    I(f"v_add_u32 v{vRDMA}, v{vRDMA}, v{t1}")
    I(f"s_lshr_b32 s{sT0}, s{sWAVE}, 1")
    I(f"s_lshl_b32 s{sT1}, s{sX}, 2")
    I(f"s_add_u32 s{sT0}, s{sT0}, s{sT1}")
    I(f"s_lshl_b32 s{sT1}, s{sX}, 3")
    I(f"s_add_u32 s{sT1}, s{sT1}, s{sWAVE}")
    I(f"s_lshl_b32 s{sT1}, s{sT1}, 10")
    I(f"v_lshlrev_b32 v{t2}, 4, v{vLANE}")
    I(f"v_add_u32 v{vA0}, s{sT1}, v{t2}")
    I(f"v_xor_b32 v{t2}, v{g}, v{q4}")
    I(f"v_and_b32 v{t2}, 1, v{t2}")
    I(f"v_lshl_add_u32 v{t2}, v{t2}, 2, v{c4}")
    I(f"v_lshlrev_b32 v{t2}, 3, v{t2}")
    I(f"s_lshl_b32 s{sT0}, s{sT0}, 7")
    I(f"s_add_u32 s{sT0}, s{sT0}, {MLOFF}")
    I(f"v_add_u32 v{vA2}, s{sT0}, v{t2}")
    I("s_branch L_rpd")
    a.label("L_rp1")
    I(f"s_cmp_eq_u32 s{sROLE}, 1")
    I("s_cbranch_scc0 L_rp2")
    srd(TB, 44, 640 * 3456)
    I(f"s_mul_i32 s{sT0}, s{sWAVE}, {128*3456}")
    I(f"s_add_u32 s{sT1}, s{sTB}, s{sR}")
    I(f"s_sub_u32 s{sT1}, s{sT1}, 20")
    I(f"s_lshl_b32 s{sT1}, s{sT1}, 6")
    I(f"s_add_u32 s{sRB}, s{sT0}, s{sT1}")
    I(f"s_mov_b32 s{sRSTEP}, {16*3456}")
    I(f"s_cmp_lt_u32 s{sWAVE}, 5")
    I(f"s_cselect_b32 s{sRN}, 8, 0")
    I(f"v_mul_u32_u24 v{vRDMA}, 3456, v{t0}")
    I(f"v_add_u32 v{vRDMA}, v{vRDMA}, v{t1}")
    I("s_branch L_rpd")
    a.label("L_rp2")
    I(f"v_mov_b32 v{vRDMA}, 0")
    I(f"s_cmp_eq_u32 s{sROLE}, 2")
    I("s_cbranch_scc0 L_rpd")
    srd(TB, 48, 1728 * 1280)
    I(f"s_mul_i32 s{sT0}, s{sTB}, {32*1280}")
    I(f"s_sub_u32 s{sT2}, s{sR}, 27")
    I(f"s_lshl_b32 s{sT1}, s{sT2}, 8")
    I(f"s_add_u32 s{sT0}, s{sT0}, s{sT1}")
    I(f"s_lshl_b32 s{sT1}, s{sWAVE}, 5")
    I(f"s_add_u32 s{sRB}, s{sT0}, s{sT1}")
    I(f"s_mov_b32 s{sRSTEP}, {32*1280}")
    I(f"s_mov_b32 s{sRN}, 7")
    I(f"v_lshrrev_b32 v{t0}, 1, v{vLANE}")
    I(f"v_mul_u32_u24 v{vRDMA}, 1280, v{t0}")
    I(f"v_and_b32 v{t1}, 1, v{vLANE}")
    I(f"v_lshl_add_u32 v{vRDMA}, v{t1}, 4, v{vRDMA}")
    I(f"s_lshl_b32 s{sT0}, s{sX}, 10")
    I(f"s_add_u32 s{sT0}, s{sT0}, {HOFF}")
    I(f"v_lshlrev_b32 v{t0}, 4, v{g}")
    I(f"v_add_u32 v{vA0}, s{sT0}, v{t0}")
    I(f"s_mov_b32 s{sT1}, 768")
    I(f"s_cmp_eq_u32 s{sNT}, 7")
    I(f"s_cselect_b32 s{sT1}, s{sT1}, {BIG:#x}")
    I(f"v_add_u32 v{vA1}, s{sT1}, v{vA0}")
    I(f"s_lshl_b32 s{sT0}, s{sT2}, 2")
    I(f"s_lshr_b32 s{sT1}, s{sWAVE}, 1")
    I(f"s_add_u32 s{sT1}, s{sT0}, s{sT1}")
    rank_off(sT0, sT1, sT3)
    I(f"s_and_b32 s{sT1}, s{sWAVE}, 1")
    I(f"s_lshl_b32 s{sT1}, s{sT1}, 5")
    I(f"s_add_u32 s{sT0}, s{sT0}, s{sT1}")
    I(f"v_lshlrev_b32 v{t0}, 3, v{g}")
    I(f"v_add_u32 v{t0}, s{sT0}, v{t0}")
    I(f"s_mul_i32 s{sT1}, s{sX}, {ZX}")
    I(f"s_add_u32 s{sT1}, s{sT1}, {YOFF}")
    I(f"v_add_u32 v{vA2}, s{sT1}, v{t0}")
    I(f"v_mul_u32_u24 v{t1}, {ZX}, v{n}")
    I(f"v_add_u32 v{t1}, v{t1}, v{t0}")
    I(f"v_add_u32 v{t1}, {ZOFF}, v{t1}")
    I(f"s_cmp_eq_u32 s{sX}, 0")
    I(f"s_cselect_b32 s{sT0}, 8, 0")
    I(f"v_mov_b32 v{t2}, {BIG:#x}")
    I(f"v_cmp_gt_u32 vcc, s{sT0}, v{n}")
    I(f"v_cndmask_b32 v{vA3}, v{t2}, v{t1}, vcc")
    a.label("L_rpd")

    I(f"s_mul_i32 s{sT0}, s{sWAVE}, {PP}")
    I(f"v_lshlrev_b32 v{vPW}, 4, v{n}")
    I(f"v_lshl_add_u32 v{vPW}, v{g}, 2, v{vPW}")
    I(f"v_add_u32 v{vPW}, s{sT0}, v{vPW}")
    I(f"v_lshl_add_u32 v{vQR}, v{g}, 2, v{c4}")
    I(f"v_lshlrev_b32 v{vQR}, 4, v{vQR}")
    I(f"v_add_u32 v{vQR}, {L_QB}, v{vQR}")
    I(f"s_lshl_b32 s{sT0}, s{sWAVE}, 10")
    I(f"s_add_u32 s{sT0}, s{sT0}, {L_O}")
    I(f"v_bfe_u32 v{t0}, v{vLANE}, 3, 1")
    I(f"v_lshlrev_b32 v{vOW}, 9, v{t0}")
    I(f"v_and_b32 v{t0}, 7, v{vLANE}")
    I(f"v_lshl_add_u32 v{vOW}, v{t0}, 5, v{vOW}")
    I(f"v_and_b32 v{t1}, 1, v{g}")
    I(f"v_lshl_add_u32 v{vOW}, v{t1}, 4, v{vOW}")
    I(f"v_add_u32 v{vOW}, s{sT0}, v{vOW}")
    I(f"s_lshl_b32 s{sT0}, s{sWAVE}, 3")
    I(f"s_add_u32 s{sT0}, s{sT0}, {L_ML}")
    I(f"v_lshlrev_b32 v{vMLW}, 3, v{vLANE}")
    I(f"v_add_u32 v{vMLW}, {L_DUM}, v{vMLW}")
    I(f"v_writelane_b32 v{vMLW}, s{sT0}, 63")
    for u in range(2):
        for r in range(4):
            sb = 0x0100 if u == (r >> 1) else 0x0302
            d = vSEL + u * 4 + r
            I(f"v_mov_b32 v{d}, 0x0c0c0c0c")
            I(f"v_mov_b32 v{t1}, {0x0c0c0000 | sb:#x}")
            I(f"v_mov_b32 v{t2}, {(sb << 16) | 0x0c0c:#x}")
            I(f"v_cmp_eq_u32 vcc, {2*r}, v{t0}")
            I(f"v_cndmask_b32 v{d}, v{d}, v{t1}, vcc")
            I(f"v_cmp_eq_u32 vcc, {2*r+1}, v{t0}")
            I(f"v_cndmask_b32 v{d}, v{d}, v{t2}, vcc")

    def tr_addr(dst, pitch, base_s, x0=T + 48):
        x1 = x0 + 1
        I(f"v_lshrrev_b32 v{x0}, 4, v{vLANE}")
        I(f"v_bfe_u32 v{x1}, v{vLANE}, 2, 2")
        I(f"v_lshl_add_u32 v{x0}, v{x0}, 3, v{x1}")
        I(f"v_lshlrev_b32 v{x0}, {pitch.bit_length()-1}, v{x0}")
        I(f"v_and_b32 v{x1}, 3, v{vLANE}")
        I(f"v_lshl_add_u32 v{x0}, v{x1}, 3, v{x0}")
        I(f"v_add_u32 v{dst}, s{base_s}, v{x0}")

    def ones():
        for i in range(4):
            I(f"v_mov_b32 v{ONES+i}, 0x3f803f80")

    def gemv(ntile, Bbase, bidx):
        S1, S2 = T + 16, T + 20
        A0_, A1_ = vr(XA), vr(XA + 4)
        I(f"v_mfma_f32_16x16x32_bf16 {vr(S2)}, {A0_}, {A0_}, 0")
        I(f"v_mfma_f32_16x16x32_bf16 {vr(S2)}, {A1_}, {A1_}, {vr(S2)}")
        I(f"v_mfma_f32_16x16x32_bf16 {vr(S1)}, {A0_}, {vr(ONES)}, 0")
        I(f"v_mfma_f32_16x16x32_bf16 {vr(S1)}, {A1_}, {vr(ONES)}, {vr(S1)}")
        post = [
            f"v_pk_add_f32 v[{S2}:{S2+1}], v[{S2}:{S2+1}], v[{S2+2}:{S2+3}]",
            f"v_add_f32 v{S2}, v{S2}, v{S2+1}",
            f"v_add_f32_dpp v{S2}, v{S2}, v{S2} quad_perm:[1,0,3,2] row_mask:0xf bank_mask:0xf",
            f"v_pk_add_f32 v[{S1}:{S1+1}], v[{S1}:{S1+1}], v[{S1+2}:{S1+3}]",
            f"v_add_f32_dpp v{S2}, v{S2}, v{S2} quad_perm:[2,3,0,1] row_mask:0xf bank_mask:0xf",
            f"v_add_f32 v{S1}, v{S1}, v{S1+1}",
            f"v_add_f32_dpp v{S2}, v{S2}, v{S2} row_half_mirror row_mask:0xf bank_mask:0xf",
            f"ds_write2_b32 v{vSW}, v{S1}, v{S2} offset0:0 offset1:4",
        ]
        def dpost(t):
            D = T + 8 * t
            return [f"v_pk_add_f32 v[{D}:{D+1}], v[{D}:{D+1}], v[{D+2}:{D+3}]",
                    f"v_pk_add_f32 v[{D+4}:{D+5}], v[{D+4}:{D+5}], v[{D+6}:{D+7}]",
                    f"v_add_f32 v{D}, v{D}, v{D+1}",
                    f"v_add_f32_dpp v{D}, v{D+4}, v{D+5} quad_perm:[0,1,2,3] row_mask:0xc bank_mask:0xf",
                    f"ds_write_b32 v{vPW}, v{D} offset:{L_PB1 + t*256}"]
        for t in range(ntile):
            post += dpost(t)
        k = 0
        for t in range(ntile):
            for j in range(2):
                D = T + 8 * t + 4 * j
                for h in range(2):
                    I(f"v_mfma_f32_16x16x32_bf16 {vr(D)}, {(A0_, A1_)[h]}, {vr(Bbase+4*bidx(2*h+j,t))}, {vr(D) if h else '0'}")
                    k += 1
                    if k >= 5 and k < 4 * ntile:
                        for x in post[:2]: I(x)
                        post = post[2:]
        for x in post: I(x)
        I("s_waitcnt lgkmcnt(0)")

    def gemv_q(first=False):
        S1, S2 = T + 16, T + 20
        for t in range(4):
            I(f"v_mfma_f32_16x16x32_bf16 {vr(T+4*t)}, {vr(vBQ+4*t)}, {vr(XA)}, 0")
        I(f"v_mfma_f32_16x16x32_bf16 {vr(S1)}, {vr(XA)}, {vr(ONES)}, 0")
        I(f"v_mfma_f32_16x16x32_bf16 {vr(S2)}, {vr(XA)}, {vr(XA)}, 0")
        if first:
            for t in range(4):
                I(f"v_mfma_f32_16x16x32_bf16 {vr(vRB+4*t)}, {vr(vBQ+4*t)}, {vr(ONES)}, 0")
        I(f"s_mov_b64 exec, s[{sKM}:{sKM+1}]")
        for t in range(4):
            I(f"ds_write_b128 v{vPQ}, {vr(T+4*t)} offset:{L_PB1 + t*64}")
        if first:
            for t in range(4):
                I(f"ds_write_b128 v{vPQ}, {vr(vRB+4*t)} offset:{L_PB1 + 256 + t*64}")
        I("s_mov_b64 exec, -1")
        I(f"ds_write2_b32 v{vSW}, v{S1}, v{S2} offset0:0 offset1:4")
        I("s_waitcnt lgkmcnt(0)")

    def gather(sreg):
        poll([f"buffer_load_dwordx4 {vr(XA)}, v{vGO}, {WS}, s{sreg} offen sc1",
              f"buffer_load_dwordx4 {vr(XA+4)}, v{vGO}, {WS}, s{sreg} offen offset:{2*ZR} sc1"],
             [XA, XA + 4], groups=[[XA], [XA + 4]])

    def reduce_read(nw, base):
        for v in range(nw):
            I(f"ds_read_b128 {vr(T+4*v)}, v{vRR} offset:{base + v*PP}")

    def reduce_sum(nw, dst):
        np_ = 2 * nw
        idx = list(range(np_))
        while len(idx) > 1:
            nx = []
            for i in range(0, len(idx) - 1, 2):
                d, s = idx[i], idx[i + 1]
                I(f"v_pk_add_f32 v[{T+2*d}:{T+2*d+1}], v[{T+2*d}:{T+2*d+1}], v[{T+2*s}:{T+2*s+1}]")
                nx.append(d)
            if len(idx) % 2:
                nx.append(idx[-1])
            idx = nx
        I(f"v_add_f32 v{dst}, v{T}, v{T+1}")

    rTOT, rMEAN, rVAR, rMB, rSD, rR, rU, rT, rINV, rC1, rC2, rCS = [T + 32 + i for i in range(12)]

    def cs_read(area, dst):
        l = a.newlab("Lcs")
        I(f"s_cmp_eq_u32 s{sIT}, 0")
        I(f"s_cbranch_scc0 {l}")
        I(f"v_lshrrev_b32 v{rT}, 2, v{vRR}")
        for v in range(5):
            I(f"ds_read_b32 v{T+24+v}, v{rT} offset:{area + v*128}")
        I("s_waitcnt lgkmcnt(0)")
        I(f"v_add_f32 v{dst}, v{T+24}, v{T+25}")
        I(f"v_add_f32 v{rT}, v{T+26}, v{T+27}")
        I(f"v_add_f32 v{dst}, v{dst}, v{T+28}")
        I(f"v_add_f32 v{dst}, v{dst}, v{rT}")
        a.label(l)

    def stats(l0=32):
        if l0 is not None:
            I(f"v_readlane_b32 s{sT0}, v{rTOT}, {l0}")
            I(f"v_readlane_b32 s{sT1}, v{rTOT}, {l0+1}")
            I(f"v_mul_f32 v{rMEAN}, s{sT0}, v{rINV}")
            I(f"v_mul_f32 v{rVAR}, s{sT1}, v{rINV}")
        I(f"v_fma_f32 v{rVAR}, -v{rMEAN}, v{rMEAN}, v{rVAR}")
        I(f"v_max_f32 v{rVAR}, 0, v{rVAR}")
        I(f"v_cvt_pk_bf16_f32 v{rT}, v{rMEAN}, v{rVAR}")
        I(f"v_and_b32 v{rU}, 0xffff0000, v{rT}")
        I(f"v_lshlrev_b32 v{rMB}, 16, v{rT}")
        I(f"v_add_f32 v{rU}, {f2u(1e-5):#x}, v{rU}")
        I(f"v_cvt_pk_bf16_f32 v{rU}, v{rU}, v{rU}")
        I(f"v_and_b32 v{rU}, 0xffff0000, v{rU}")
        I(f"v_sqrt_f32 v{rU}, v{rU}")
        I(f"v_cvt_pk_bf16_f32 v{rU}, v{rU}, v{rU}")
        I(f"v_and_b32 v{rSD}, 0xffff0000, v{rU}")
        I(f"v_rcp_f32 v{rR}, v{rSD}")

    def pack_pairs(src, dst):
        I(f"v_mov_b32_dpp v{rT}, v{src} quad_perm:[1,0,3,2] row_mask:0xf bank_mask:0xf")
        I(f"v_cvt_pk_bf16_f32 v{dst}, v{src}, v{rT}")
        I(f"v_min_u32 v{dst}, 0xfffffffe, v{dst}")

    def q_reduce(first=False):
        qa, qs, QS = T + 44, T + 45, T + 20
        I(f"v_lshlrev_b32 v{qa}, 2, v{vLANE}")
        I(f"v_and_b32 v{qs}, 1, v{vLANE}")
        I(f"v_lshlrev_b32 v{qs}, 4, v{qs}")
        return qa, qs, QS

    def q_reduce2(qa, qs, QS, first=False):
        for v in range(5):
            I(f"ds_read_b128 {vr(T+4*v)}, v{qs} offset:{L_PB1 + 512 + v*PP}")
        for v in range(5):
            I(f"ds_read_b32 v{QS+v}, v{qa} offset:{L_PB1 + v*PP}")
        if first:
            for v in range(5):
                I(f"ds_read_b32 v{QS+5+v}, v{qa} offset:{L_WQ + v*4096}")
        I(f"s_waitcnt lgkmcnt({10 if first else 5})")
        reduce_sum(5, rTOT)
        stats(0)
        I("s_waitcnt lgkmcnt(0)")
        I(f"v_add_f32 v{QS}, v{QS}, v{QS+1}")
        I(f"v_add_f32 v{QS+2}, v{QS+2}, v{QS+3}")
        I(f"v_add_f32 v{QS}, v{QS}, v{QS+4}")
        I(f"v_add_f32 v{QS}, v{QS}, v{QS+2}")
        if first:
            I(f"v_add_f32 v{vCSQ}, v{QS+5}, v{QS+6}")
            I(f"v_add_f32 v{QS+7}, v{QS+7}, v{QS+8}")
            I(f"v_add_f32 v{vCSQ}, v{vCSQ}, v{QS+9}")
            I(f"v_add_f32 v{vCSQ}, v{vCSQ}, v{QS+7}")
        I(f"v_fma_f32 v{rU}, -v{rMB}, v{vCSQ}, v{QS}")
        I(f"v_mul_f32 v{rU}, v{rU}, v{rR}")
        I(f"v_min_u32 v{rU}, 0xfffffffe, v{rU}")

    def q_gather(va, qa):
        poll([f"buffer_load_dwordx2 v[{T+2*k}:{T+2*k+1}], v{va}, {WS}, s{sREG} offen offset:{k*512} sc1" for k in range(4)],
             list(range(T, T + 8)), groups=[[T + 2 * k, T + 2 * k + 1] for k in range(4)])
        I(f"v_pk_add_f32 v[{T}:{T+1}], v[{T}:{T+1}], v[{T+2}:{T+3}]")
        I(f"v_pk_add_f32 v[{T+4}:{T+5}], v[{T+4}:{T+5}], v[{T+6}:{T+7}]")
        I(f"v_pk_add_f32 v[{T}:{T+1}], v[{T}:{T+1}], v[{T+4}:{T+5}]")
        I(f"v_cvt_pk_bf16_f32 v{T}, v{T}, v{T+1}")
        I(f"ds_write_b32 v{qa}, v{T} offset:{L_QB}")

    def lds_wait(off, val, ge=False):
        lab = a.newlab("Lw"); done = a.newlab("Lwd")
        I(f"v_mov_b32 v{T+47}, {L_FLAG}")
        a.label(lab)
        I(f"ds_read_b32 v{T+46}, v{T+47} offset:{off}")
        I(f"s_add_u32 s{sSPIN}, s{sSPIN}, 1")
        I("s_waitcnt lgkmcnt(0)")
        I(f"v_readfirstlane_b32 s{sT3}, v{T+46}")
        I(f"s_cmp_{'ge' if ge else 'eq'}_u32 s{sT3}, {val}")
        I(f"s_cbranch_scc1 {done}")
        I(f"s_cmp_lt_u32 s{sSPIN}, {spin_limit}")
        I(f"s_cbranch_scc1 {lab}")
        a.label(done)

    def sp(p):
        if prio: I(f"s_setprio {p}")

    I(f"v_mov_b32 v{rINV}, {f2u(1.0/640):#x}")
    I("s_waitcnt lgkmcnt(0)")
    I("s_barrier")
    TS(1)
    I(f"s_cmp_ge_u32 s{sWAVE}, 4")
    I("s_cbranch_scc1 L_s4567")
    srd(TA, 38, 640 * 8192)
    w_issue(nw0, RSL)
    TS(37)
    tr_addr(ta0, 64, sRING, T + 25)
    I(f"v_bfe_u32 v{T+25}, v{vLANE}, 4, 1")
    I(f"v_lshl_add_u32 v{ta0}, v{T+25}, 5, v{ta0}")
    I(f"v_xor_b32 v{ta1}, 32, v{ta0}")
    I(f"s_waitcnt vmcnt({nis[0] - 5})")
    setexec(0x22222222, 0x22222222)
    for i in range(20):
        I(f"v_mov_b32 v{XQ+i}, 0x3f803f80")
    setexec(0xFFFFFFFF, 0xFFFFFFFF)
    for j in range(5):
        I(f"v_mfma_f32_16x16x32_bf16 {vr(BUF)}, {vr(XQ+4*j)}, {vr(XQ+4*j)}, {vr(BUF) if j else '0'}")
    for i in range(4):
        I(f"v_readlane_b32 s{sF+i}, v{BUF}, {20*i+1}")
        I(f"v_readlane_b32 s{sF+4+i}, v{BUF}, {20*i}")
    I(f"v_mov_b32 v{rMEAN}, s{sF}")
    I(f"v_mov_b32 v{rVAR}, s{sF+4}")
    for i in range(1, 4):
        I(f"v_add_f32 v{rMEAN}, s{sF+i}, v{rMEAN}")
        I(f"v_add_f32 v{rVAR}, s{sF+4+i}, v{rVAR}")
    I(f"v_mul_f32 v{rMEAN}, v{rMEAN}, v{rINV}")
    I(f"v_mul_f32 v{rVAR}, v{rVAR}, v{rINV}")
    stats(None)
    I(f"v_readfirstlane_b32 s{sMB}, v{rMB}")
    I(f"v_readfirstlane_b32 s{sRS_}, v{rR}")
    TS(2)
    def q_mma(u):
        for t in range(2):
            acc = ACC + 16 * t + 4 * (u & 3)
            I(f"v_mfma_f32_16x16x32_bf16 {vr(acc)}, {vr(BUF + 8*(u%4) + 4*t)}, {vr(XQ+4*(u>>2))}, {vr(acc) if u >= 4 else '0'}")
    for u in range(20):
        I(f"s_waitcnt vmcnt({nis[0] - 5 - 2*u - 2})")
        if u == 0: TS(38)
        o = (2 * u % RSL) * 1024
        for t in range(2):
            b = BUF + 8 * (u % 4) + 4 * t
            I(f"ds_read_b64_tr_b16 v[{b}:{b+1}], v{(ta0, ta1)[t]} offset:{o}")
            I(f"ds_read_b64_tr_b16 v[{b+2}:{b+3}], v{(ta0, ta1)[t]} offset:{o+256}")
        if u:
            I("s_waitcnt lgkmcnt(4)")
            q_mma(u - 1)
            p = RSL + 2 * (u - 1)
            if p < 40:
                w_issue(p, p + 2)
                if p + 2 == 40:
                    k_issue(0, qk)
                    nis[0] += qk
                    TS(39)
    I(f"v_mov_b32 v{BUF+0}, {L_FLAG}")
    I(f"v_mov_b32 v{BUF+1}, 1")
    I(f"v_lshrrev_b32 v{BUF+2}, 4, v{vLANE}")
    I(f"v_lshlrev_b32 v{BUF+2}, 3, v{BUF+2}")
    I(f"s_lshl_b32 s{sT0}, s{sWAVE}, 6")
    I(f"v_add_u32 v{BUF+2}, s{sT0}, v{BUF+2}")
    I(f"v_mov_b32 v{BUF+3}, s{sMB}")
    I(f"v_xor_b32 v{BUF+3}, 0x80000000, v{BUF+3}")
    I("s_waitcnt lgkmcnt(0)")
    q_mma(19)
    for aa in range(1, 4):
        for t in range(2):
            for i in range(4):
                d = ACC + 16 * t + i
                I(f"v_add_f32_dpp v{d}, v{d+4*aa}, v{d} row_shl:{4*aa} row_mask:0xf bank_mask:0xf")
    for t in range(2):
        for i in range(4):
            d = ACC + 16 * t + i
            I(f"v_fmac_f32_dpp v{d}, v{d}, v{BUF+3} quad_perm:[1,1,1,1] row_mask:0xf bank_mask:0xf")
    for t in range(2):
        for i in range(4):
            d = ACC + 16 * t + i
            I(f"v_mul_f32 v{d}, s{sRS_}, v{d}")
    for t in range(2):
        d = ACC + 16 * t
        I(f"v_cvt_pk_bf16_f32 v{d}, v{d}, v{d+1}")
        I(f"v_cvt_pk_bf16_f32 v{d+1}, v{d+2}, v{d+3}")
    setexec(0x00010001, 0x00010001)
    for t in range(2):
        d = ACC + 16 * t
        I(f"ds_write_b64 v{BUF+2}, v[{d}:{d+1}] offset:{L_QB + 32*t}")
    setexec(1, 0)
    I("s_waitcnt lgkmcnt(0)")
    I(f"ds_add_u32 v{BUF+0}, v{BUF+1} offset:12")
    setexec(0xFFFFFFFF, 0xFFFFFFFF)
    TS(5)
    sp(sp1)
    k_issue(qk, 16)
    I("s_branch L_own")

    a.label("L_s4567")
    I(f"s_cmp_eq_u32 s{sWAVE}, 6")
    I("s_cbranch_scc0 L_krest")
    sp(3)
    I(f"s_mov_b32 s{sVOTE}, 0")
    I(f"s_cmp_lt_u32 s{sR}, {ncal}")
    I("s_cbranch_scc0 L_ncal")
    MK = 0x13579bdf
    I(f"s_lshl_b32 s{sT0}, s2, 7")
    I(f"s_add_u32 s88, s{sT0}, {CALOFF + 0x10000}")
    I(f"s_load_dword s86, s[56:57], s88 glc")
    I(f"s_add_u32 s{sT0}, s{sT0}, {CALOFF}")
    I(f"s_lshl_b32 s{sVOTE}, s{sR}, 13")
    I(f"s_and_b32 s{sVOTE}, s{sVOTE}, {CP}")
    I(f"s_add_u32 s{sT0}, s{sT0}, s{sVOTE}")
    I(f"s_xor_b32 s{sT3}, s{sT0}, {CP}")
    I(f"s_lshr_b32 s{sVOTE}, s{sVOTE}, 13")
    I(f"s_lshr_b32 s88, s{sXCC}, 2")
    I(f"s_xor_b32 s{sVOTE}, s{sVOTE}, s88")
    I("s_waitcnt lgkmcnt(0)")
    for k, (ad, cnt) in enumerate(((sT0, 88), (sT3, 89))):
        I(f"s_mov_b32 s86, {MK:#x}")
        I(f"s_mov_b32 s{cnt}, 0")
        I(f"s_load_dword s86, s[56:57], s{ad} glc")
        a.label(f"L_cal{k}")
        I(f"s_add_u32 s{cnt}, s{cnt}, 1")
        I(f"s_cmp_eq_u32 s86, {MK:#x}")
        I(f"s_cselect_b32 s87, s{cnt}, 1000")
        I(f"s_cmp_lt_u32 s87, 200")
        I(f"s_cbranch_scc1 L_cal{k}")
        I("s_waitcnt lgkmcnt(0)")
    I(f"s_cmp_gt_u32 s88, s89")
    I(f"s_cselect_b32 s{sT0}, 1, 0")
    I(f"s_xor_b32 s{sVOTE}, s{sVOTE}, s{sT0}")
    I(f"s_and_b32 s{sVOTE}, s{sVOTE}, 1")
    I(f"s_lshl_b32 s{sVOTE}, s{sVOTE}, 24")
    a.label("L_ncal")
    I(f"s_mul_i32 s{sT0}, s{sXCC}, 6")
    I(f"s_lshl_b64 s[{sF}:{sF+1}], 1, s{sT0}")
    I(f"s_cmp_lt_u32 s{sXCC}, 8")
    I(f"s_cselect_b32 s{sF}, s{sF}, 0")
    I(f"s_cselect_b32 s{sF+1}, s{sF+1}, 0")
    I(f"s_or_b32 s{sF+1}, s{sF+1}, 0x10000")
    I(f"s_or_b32 s{sF+1}, s{sF+1}, s{sVOTE}")
    srd(TA, 54, 256)
    I(f"v_mov_b32 v{vAT}, s{sF}")
    I(f"v_mov_b32 v{vAT+1}, s{sF+1}")
    I(f"s_lshl_b32 s{sT0}, s{sX}, 5")
    I(f"v_mov_b32 v{vAT+2}, s{sT0}")
    TS(33)
    I("s_waitcnt vmcnt(0)")
    setexec(1, 0)
    I(f"buffer_atomic_add_x2 v[{vAT}:{vAT+1}], v{vAT+2}, {TA}, 0 offen sc1")
    setexec(0xFFFFFFFF, 0xFFFFFFFF)
    TS(32)
    sp(0)
    k_issue(0, n0)
    a.label("L_krest")
    k_issue(n0, 16)
    I(f"s_cmp_eq_u32 s{sWAVE}, 4")
    I("s_cbranch_scc0 L_vall")
    a.label("L_own")
    o2, o3 = T + 49, T + 50
    srd(TA, 38, 640 * 8192)
    I(f"s_and_b32 s{sT1}, s{sSLOT}, 3")
    I(f"s_lshl_b32 s{sT2}, s{sWAVE}, 2")
    I(f"s_add_u32 s{sT2}, s{sT2}, s{sT1}")
    I(f"s_lshl_b32 s{sT2}, s{sT2}, 18")
    I(f"s_lshr_b32 s{sT0}, s{sSLOT}, 2")
    I(f"s_lshl_b32 s{sT0}, s{sT0}, 7")
    I(f"s_add_u32 s{sT2}, s{sT2}, s{sT0}")
    I(f"v_lshrrev_b32 v{o2}, 3, v{vLANE}")
    I(f"v_lshlrev_b32 v{o2}, 13, v{o2}")
    I(f"v_and_b32 v{o3}, 7, v{vLANE}")
    I(f"v_lshl_add_u32 v{o2}, v{o3}, 4, v{o2}")
    I(f"v_bfe_u32 v{o3}, v{vLANE}, 4, 1")
    I(f"v_lshlrev_b32 v{o3}, 5, v{o3}")
    I(f"v_xor_b32 v{o2}, v{o2}, v{o3}")
    I(f"v_xor_b32 v{o3}, 64, v{o2}")
    I(f"s_lshl_b32 s{sT1}, s{sWAVE}, 12")
    I(f"s_add_u32 m0, s{sT1}, {L_WQ}")
    for e in range(4):
        I(f"buffer_load_dwordx4 v{(o2, o3)[e & 1]}, {TA}, s{sT2} offen offset:{e*1024} {wflags} lds")
        if e < 3:
            I(f"s_add_u32 s{sT2}, s{sT2}, {8*8192 - 1024}")
    a.label("L_vall")
    v_issue()
    TS(31)
    for i in range(16):
        I(f"v_mov_b32 v{T+i}, 0")
    if gate:
        I(f"v_mov_b32 v{T+24}, {L_FLAG}")
        I(f"v_mov_b32 v{T+25}, 1")
        setexec(1, 0)
        I(f"ds_add_u32 v{T+24}, v{T+25} offset:8")
        setexec(0xFFFFFFFF, 0xFFFFFFFF)
    lds_wait(12, 4)
    TS(8)
    I("s_branch L_att")

    a.label("L_loop")
    I(f"s_cmp_ge_u32 s{sWAVE}, 5")
    I("s_cbranch_scc1 L_B1")
    I(f"s_cmp_eq_u32 s{sIT}, 1")
    I("s_cbranch_scc0 L_nown")
    I(f"s_lshl_b32 s{sT0}, s{sWAVE}, 12")
    I(f"s_add_u32 s{sT0}, s{sT0}, {L_WQ}")
    ta = T + 24
    tr_addr(ta, 128, sT0, T + 25)
    I(f"v_bfe_u32 v{T+25}, v{vLANE}, 3, 1")
    I(f"v_bfe_u32 v{T+26}, v{vLANE}, 4, 1")
    I(f"v_lshl_add_u32 v{T+25}, v{T+26}, 1, v{T+25}")
    I(f"v_lshl_add_u32 v{ta}, v{T+25}, 5, v{ta}")
    for t in range(1, 4):
        I(f"v_xor_b32 v{ta+t}, {t*32}, v{ta}")
    for t in range(4):
        I(f"ds_read_b64_tr_b16 v[{vBQ+4*t}:{vBQ+4*t+1}], v{ta+t}")
        I(f"ds_read_b64_tr_b16 v[{vBQ+4*t+2}:{vBQ+4*t+3}], v{ta+t} offset:512")
    ones()
    I(f"v_lshrrev_b32 v{T+20}, 4, v{vLANE}")
    I(f"v_lshlrev_b32 v{T+20}, 4, v{T+20}")
    I(f"v_add_u32 v{T+20}, s{sT0}, v{T+20}")
    I("s_waitcnt lgkmcnt(0)")
    for t in range(4):
        I(f"v_mfma_f32_16x16x32_bf16 {vr(T+4*t)}, {vr(vBQ+4*t)}, {vr(ONES)}, 0")
    I(f"s_mov_b64 exec, s[{sKM}:{sKM+1}]")
    for t in range(4):
        I(f"ds_write_b128 v{T+20}, {vr(T+4*t)} offset:{t*64}")
    I("s_mov_b64 exec, -1")
    a.label("L_nown")
    I(f"s_lshl_b32 s{sT2}, s{sX}, 11")
    I(f"s_add_u32 s{sT2}, s{sT2}, {XOFF}")
    I(f"s_cmp_eq_u32 s{sR}, {LEAD_R}")
    I("s_cbranch_scc0 L_nolead")
    I(f"s_lshl_b32 s{sT1}, s{sWAVE}, 2")
    rank_off(sT0, sT1, sT3)
    I(f"s_add_u32 s{sT0}, s{sT0}, s{sREG}")
    I(f"s_add_u32 s{sT0}, s{sT0}, s{sNEAR}")
    I(f"s_add_u32 s{sT0}, s{sT0}, {YOFF - RS & 0xffffffff:#x}")
    I(f"v_lshrrev_b32 v{T+20}, 4, v{vLANE}")
    I(f"v_mul_u32_u24 v{T+20}, {ZR}, v{T+20}")
    I(f"v_and_b32 v{T+21}, 15, v{vLANE}")
    I(f"v_lshl_add_u32 v{T+20}, v{T+21}, 2, v{T+20}")
    I(f"s_lshl_b32 s{sT1}, s{sWAVE}, 8")
    I(f"v_lshlrev_b32 v{T+21}, 2, v{vLANE}")
    I(f"v_add_u32 v{T+21}, s{sT1}, v{T+21}")
    TS(26)
    poll([f"buffer_load_dword v{T+2*j+1}, v{T+20}, {WS}, s{sT0} offen offset:{j*ZX} sc1" for j in range(8)],
         [T + 2 * j + 1 for j in range(8)], groups=[[T + 2 * j + 1] for j in range(8)])
    TS(27)
    for j in range(8):
        unpack(T + 2 * j, T + 2 * j + 1, T + 2 * j + 1)
    for (d, s_) in ((0, 1), (2, 3), (4, 5), (6, 7), (0, 2), (4, 6), (0, 4)):
        I(f"v_pk_add_f32 v[{T+2*d}:{T+2*d+1}], v[{T+2*d}:{T+2*d+1}], v[{T+2*s_}:{T+2*s_+1}]")
    I(f"v_cvt_pk_bf16_f32 v{T}, v{T}, v{T+1}")
    I(f"s_cmp_eq_u32 s{sIT}, 2")
    I("s_cbranch_scc0 L_lead1")
    I(f"buffer_store_dword v{T}, v{T+21}, {OUTS}, 0 offen")
    if dbgt:
        I("s_memrealtime s[98:99]")
        I("s_waitcnt lgkmcnt(0)")
        I(f"v_readlane_b32 s96, v{vTST}, 0")
        I(f"v_readlane_b32 s97, v{vTST}, 1")
        I("s_sub_u32 s98, s98, s96")
        I("s_sub_u32 s97, s97, s96")
        srd(TA, 54, 256)
        I(f"v_mov_b32 v{T}, s98")
        I(f"v_mov_b32 v{T+1}, s97")
        I(f"s_lshl_b32 s98, s{sWAVE}, 2")
        setexec(1, 0)
        I(f"buffer_store_dword v{T}, off, {TA}, s98 offset:8")
        I(f"buffer_store_dword v{T+1}, off, {TA}, s98 offset:40")
        setexec(0xFFFFFFFF, 0xFFFFFFFF)
    TS(29)
    I("s_branch L_fin")
    a.label("L_lead1")
    I(f"v_min_u32 v{T}, 0xfffffffe, v{T}")
    lstore([f"buffer_store_dword v{T}, v{T+21}, {WS}, s{sT2} offen"])
    TS(28)
    a.label("L_nolead")
    ones()
    TS(3)
    poll([f"buffer_load_dwordx4 {vr(XA)}, v{vXO}, {WS}, s{sT2} offen sc1"], list(range(XA, XA + 4)))
    TS(4)
    gemv_q()
    TS(5)
    a.label("L_B1")
    I(f"v_mov_b32 v{rINV}, {f2u(1.0/640):#x}")
    qa, qs, QS = q_reduce()
    I("s_barrier")
    I(f"s_cmp_eq_u32 s{sWAVE}, 5")
    I("s_cbranch_scc0 L_B2")
    TS(6)
    q_reduce2(qa, qs, QS, first=True)
    TS(7)
    lstore([f"buffer_store_dword v{rU}, v{vQP}, {WS}, s{sREG} offen"])
    q_gather(vQG, qa)
    TS(8)
    I(f"buffer_load_ushort v{vXF}, v{vXFA}, {WS}, 0 offen sc1")
    I("s_waitcnt lgkmcnt(0)")
    a.label("L_B2")
    BT = T
    ST = T + 16
    PS = T + 32
    MI = T + 36
    OA = T + 44
    for i in range(16):
        I(f"v_mov_b32 v{BT+i}, 0")
    I("s_barrier")
    a.label("L_att")
    TS(9)
    for t in range(4):
        m = 0x000F000F << (4 * t)
        setexec(m, m)
        I(f"ds_read_b128 {vr(BT+4*t)}, v{vQR}")
    setexec(0xFFFFFFFF, 0xFFFFFFFF)
    I("s_waitcnt vmcnt(16) lgkmcnt(0)")
    TS(10)
    for Tt in range(4):
        for t in range(4):
            I(f"v_mfma_f32_16x16x32_bf16 {vr(ST+4*Tt)}, {vr(vK+4*(4*Tt+t))}, {vr(BT+4*t)}, {'0' if t == 0 else vr(ST+4*Tt)}")
    for Tt in range(4):
        I(f"v_mov_b32_dpp v{PS+Tt}, v{ST+4*Tt} quad_perm:[0,0,0,0] row_mask:0xf bank_mask:0xf")
        for c in range(1, 4):
            I(f"v_add_f32_dpp v{PS+Tt}, v{ST+4*Tt+c}, v{PS+Tt} quad_perm:[{c},{c},{c},{c}] row_mask:0xf bank_mask:0xf")
    I(f"v_mov_b32 v{MI+2}, {SCALE:#x}")
    I(f"v_mov_b32 v{MI+3}, {SCALE:#x}")
    I(f"v_cvt_pk_bf16_f32 v{MI}, v{PS}, v{PS+1}")
    I(f"v_cvt_pk_bf16_f32 v{MI+1}, v{PS+2}, v{PS+3}")
    unpack(PS, PS + 1, MI)
    unpack(PS + 2, PS + 3, MI + 1)
    I(f"v_pk_mul_f32 v[{PS}:{PS+1}], v[{PS}:{PS+1}], v[{MI+2}:{MI+3}]")
    I(f"v_pk_mul_f32 v[{PS+2}:{PS+3}], v[{PS+2}:{PS+3}], v[{MI+2}:{MI+3}]")
    I(f"v_cvt_pk_bf16_f32 v{MI}, v{PS}, v{PS+1}")
    I(f"v_cvt_pk_bf16_f32 v{MI+1}, v{PS+2}, v{PS+3}")
    unpack(PS, PS + 1, MI)
    unpack(PS + 2, PS + 3, MI + 1)
    vM = MI + 4; vL = MI + 5; vT_ = MI + 6; vPK = MI + 7
    I(f"v_max3_f32 v{vM}, v{PS}, v{PS+1}, v{PS+2}")
    I(f"v_max_f32 v{vM}, v{vM}, v{PS+3}")
    I(f"v_max_f32_dpp v{vM}, v{vM}, v{vM} row_ror:4 row_mask:0xf bank_mask:0xf")
    I(f"v_max_f32_dpp v{vM}, v{vM}, v{vM} row_ror:8 row_mask:0xf bank_mask:0xf")
    I(f"v_max_f32_dpp v{vM}, v{vM}, v{vM} row_bcast:15 row_mask:0xa bank_mask:0xf")
    I(f"v_max_f32_dpp v{vM}, v{vM}, v{vM} row_bcast:31 row_mask:0xc bank_mask:0xf")
    I(f"v_mov_b32 v{MI}, s{sL2E}")
    I(f"v_readlane_b32 s{sM}, v{vM}, 63")
    I(f"v_mul_f32 v{vT_}, s{sM}, v{MI}")
    for Tt in range(4):
        I(f"v_fma_f32 v{PS+Tt}, v{PS+Tt}, v{MI}, -v{vT_}")
    for Tt in range(4):
        I(f"v_exp_f32 v{PS+Tt}, v{PS+Tt}")
    TS(11)
    I(f"s_cmp_eq_u32 s{sIT}, 0")
    I("s_cbranch_scc0 L_PV")
    I(f"v_lshlrev_b32 v{vB1}, 16, v{vB1}")
    I(f"s_cmp_eq_u32 s{sLATE}, 0")
    I("s_cbranch_scc1 L_PVe")
    role_dma()
    TS(25)
    I("s_branch L_PV")
    a.label("L_PVe")
    I("s_waitcnt vmcnt(0)")
    a.label("L_PV")
    for Tt in range(4):
        AB = ST + 8 * (Tt & 1)
        I(f"v_mov_b32_dpp v{vT_}, v{PS+Tt} row_half_mirror row_mask:0xf bank_mask:0xf")
        I(f"v_cvt_pk_bf16_f32 v{vPK}, v{PS+Tt}, v{vT_}")
        for u in range(2):
            for r in range(4):
                I(f"v_perm_b32 v{AB+4*u+r}, v{vPK}, v{vPK}, v{vSEL+4*u+r}")
        if Tt == 1:
            I(f"v_add_f32 v{vL}, v{PS}, v{PS+1}")
            I(f"v_add_f32 v{MI+1}, v{PS+2}, v{PS+3}")
            I(f"v_add_f32 v{vL}, v{vL}, v{MI+1}")
            I(f"v_add_f32_dpp v{vL}, v{vL}, v{vL} row_ror:4 row_mask:0xf bank_mask:0xf")
            I(f"v_add_f32_dpp v{vL}, v{vL}, v{vL} row_ror:8 row_mask:0xf bank_mask:0xf")
            I(f"v_add_f32_dpp v{vL}, v{vL}, v{vL} row_bcast:15 row_mask:0xa bank_mask:0xf")
            I(f"v_add_f32_dpp v{vL}, v{vL}, v{vL} row_bcast:31 row_mask:0xc bank_mask:0xf")
            I(f"ds_write_b64 v{vMLW}, v[{vM}:{vL}]")
        for u in range(2):
            i1 = Tt * 4 + u * 2 + 1
            I(f"s_waitcnt vmcnt({15 - i1 + 8})")
            for hf in range(2):
                i = Tt * 4 + u * 2 + hf
                first = (Tt == 0 and u == 0)
                I(f"v_mfma_f32_16x16x32_bf16 {vr(OA+4*hf)}, {vr(AB+4*u)}, {vr(vV+4*i)}, {'0' if first else vr(OA+4*hf)}")
    TS(12)
    setexec(0x00FF00FF, 0xFF00FF00)
    I(f"ds_write_b128 v{vOW}, {vr(OA)}")
    I(f"ds_write_b128 v{vOW}, {vr(OA+4)} offset:256")
    setexec(0xFFFFFFFF, 0xFFFFFFFF)
    I(f"s_cmp_eq_u32 s{sIT}, 0")
    I("s_cbranch_scc0 L_B3")
    sp(0)
    I(f"s_cmp_eq_u32 s{sLATE}, 0")
    I("s_cbranch_scc0 L_B3")
    I(f"s_cmp_eq_u32 s{sWAVE}, 7")
    I("s_cbranch_scc0 L_erd")
    sp(3)
    srd(TA, 54, 256)
    I(f"v_lshlrev_b32 v{BT+2}, 5, v{vLANE}")
    setexec(0xFF, 0)
    I(f"buffer_load_dwordx2 v[{BT}:{BT+1}], v{BT+2}, {TA}, 0 offen {syfl}")
    a.label("L_sync")
    I(f"s_add_u32 s{sSPIN}, s{sSPIN}, 4")
    I("s_waitcnt vmcnt(0)")
    I(f"v_and_b32 v{BT+3}, {1 << 21:#x}, v{BT+1}")
    I(f"v_cmp_eq_u32 vcc, 0, v{BT+3}")
    I("s_cbranch_vccz L_syncd")
    I(f"buffer_load_dwordx2 v[{BT}:{BT+1}], v{BT+2}, {TA}, 0 offen sc1")
    I(f"s_cmp_lt_u32 s{sSPIN}, {spin_limit}")
    I("s_cbranch_scc1 L_sync")
    I("s_waitcnt vmcnt(0)")
    a.label("L_syncd")
    I(f"v_lshrrev_b32 v{BT+3}, 24, v{BT+1}")
    I(f"v_readlane_b32 s64, v{BT}, s{sX}")
    I(f"v_readlane_b32 s65, v{BT+1}, s{sX}")
    for m_ in ("quad_perm:[1,0,3,2]", "quad_perm:[2,3,0,1]", "row_half_mirror"):
        I(f"v_add_u32_dpp v{BT+3}, v{BT+3}, v{BT+3} {m_} row_mask:0xf bank_mask:0xf")
    I(f"s_mul_i32 s{sT0}, s{sXCC}, 6")
    I(f"s_lshr_b64 s[64:65], s[64:65], s{sT0}")
    I(f"s_and_b32 s64, s64, 63")
    I(f"s_cmp_eq_u32 s64, 32")
    I(f"s_cselect_b32 s{sT1}, 1, 0")
    I(f"s_cmp_lt_u32 s{sXCC}, 8")
    I(f"s_cselect_b32 s{sT1}, s{sT1}, 0")
    I(f"v_readfirstlane_b32 s{sT0}, v{BT+3}")
    setexec(0xFFFFFFFF, 0xFFFFFFFF)
    I(f"s_cmp_gt_u32 s{sT0}, {4 * ncal}")
    I(f"s_cselect_b32 s{sT0}, 1, 0")
    I(f"s_lshr_b32 s{sT2}, s{sXCC}, 2")
    I(f"s_xor_b32 s{sT0}, s{sT0}, s{sT2}")
    I(f"s_and_b32 s{sT0}, s{sT0}, {1 if dual else 0}")
    I(f"s_lshl_b32 s{sT0}, s{sT0}, 13")
    I(f"s_or_b32 s{sT0}, s{sT0}, s{sT1}")
    I(f"v_mov_b32 v{BT}, s{sT0}")
    I(f"v_mov_b32 v{BT+1}, {L_FLAG}")
    I(f"ds_write_b32 v{BT+1}, v{BT}")
    TS(35)
    sp(0)
    a.label("L_erd")
    I(f"s_cmp_eq_u32 s{sROLE}, 0")
    I("s_cbranch_scc0 L_B3")
    if gate:
        lds_wait(8, gate, ge=True)
    role_dma()
    TS(25)
    a.label("L_B3")
    I("s_waitcnt lgkmcnt(0)")
    I(f"v_mov_b32 v{T+38}, {L_FLAG}")
    I("s_barrier")
    TS(13)
    if dbgt:
        I(f"s_cmp_eq_u32 s{sIT}, 0")
        I("s_cbranch_scc0 L_dbg1")
        I("s_memrealtime s[98:99]")
        I("s_waitcnt lgkmcnt(0)")
        I(f"v_writelane_b32 v{vTST}, s98, 1")
        a.label("L_dbg1")
    I(f"ds_read_b32 v{T+38}, v{T+38}")
    I(f"s_cmp_eq_u32 s{sWAVE}, 7")
    I("s_cbranch_scc1 L_comb")
    I("s_waitcnt lgkmcnt(0)")
    I(f"v_readfirstlane_b32 s{sT0}, v{T+38}")
    I(f"s_and_b32 s{sPURE}, s{sT0}, 1")
    I(f"s_and_b32 s{sNEAR}, s{sT0}, {CP}")
    I("s_branch L_role")
    a.label("L_comb")
    cM, cL, cMX, cF, cT = T + 32, T + 33, T + 34, T + 36, T + 37
    cLS = T + 35
    I(f"ds_read_b64 v[{cM}:{cL}], v{vCML}")
    for w in range(8):
        I(f"ds_read2st64_b64 {vr(T+4*w)}, v{vCR} offset0:{2*w} offset1:{2*w+1}")
    I(f"v_mov_b32 v{cT}, s{sL2E}")
    I("s_waitcnt lgkmcnt(8)")
    I(f"v_readfirstlane_b32 s{sT0}, v{T+38}")
    I(f"v_max_f32_dpp v{cMX}, v{cM}, v{cM} quad_perm:[1,0,3,2] row_mask:0xf bank_mask:0xf")
    I(f"v_max_f32_dpp v{cMX}, v{cMX}, v{cMX} quad_perm:[2,3,0,1] row_mask:0xf bank_mask:0xf")
    I(f"v_max_f32_dpp v{cMX}, v{cMX}, v{cMX} row_half_mirror row_mask:0xf bank_mask:0xf")
    I(f"v_sub_f32 v{cF}, v{cM}, v{cMX}")
    I(f"v_mul_f32 v{cF}, v{cF}, v{cT}")
    I(f"v_exp_f32 v{cF}, v{cF}")
    I(f"s_and_b32 s{sPURE}, s{sT0}, 1")
    I(f"s_and_b32 s{sNEAR}, s{sT0}, {CP}")
    I("s_waitcnt lgkmcnt(0)")
    for w in range(8):
        I(f"v_readlane_b32 s{sF+w}, v{cF}, {w}")
    for w in range(8):
        I(f"v_pk_add_f32 v[{T+4*w}:{T+4*w+1}], v[{T+4*w}:{T+4*w+1}], v[{T+4*w+2}:{T+4*w+3}]")
    for w in range(8):
        sp = f"s[{sF+(w&~1)}:{sF+(w&~1)+1}]"
        o = w & 1
        acc = T + 40 + 2 * (w & 1)
        if w < 2:
            I(f"v_pk_mul_f32 v[{acc}:{acc+1}], v[{T+4*w}:{T+4*w+1}], {sp} op_sel:[0,{o}] op_sel_hi:[1,{o}]")
        else:
            I(f"v_pk_fma_f32 v[{acc}:{acc+1}], v[{T+4*w}:{T+4*w+1}], {sp}, v[{acc}:{acc+1}] op_sel:[0,{o},0] op_sel_hi:[1,{o},1]")
    I(f"v_mul_f32 v{cLS}, v{cF}, v{cL}")
    I(f"v_pk_add_f32 v[{T+40}:{T+41}], v[{T+40}:{T+41}], v[{T+42}:{T+43}]")
    I(f"v_add_f32_dpp v{cLS}, v{cLS}, v{cLS} quad_perm:[1,0,3,2] row_mask:0xf bank_mask:0xf")
    I(f"v_cvt_pk_bf16_f32 v{T+40}, v{T+40}, v{T+41}")
    I(f"v_min_u32 v{T+40}, 0xfffffffe, v{T+40}")
    I(f"v_add_f32_dpp v{cLS}, v{cLS}, v{cLS} quad_perm:[2,3,0,1] row_mask:0xf bank_mask:0xf")
    I(f"v_min_u32 v{cMX}, 0xfffffffe, v{cMX}")
    lstore([f"buffer_store_dword v{T+40}, v{vCP}, {WS}, s{sREG} offen"])
    I(f"v_add_f32_dpp v{cLS}, v{cLS}, v{cLS} row_half_mirror row_mask:0xf bank_mask:0xf")
    I(f"v_min_u32 v{cLS}, 0xfffffffe, v{cLS}")
    setexec(1, 0)
    lstore([f"buffer_store_dwordx2 v[{cMX}:{cLS}], v{vCPM}, {WS}, s{sREG} offen"])
    setexec(0xFFFFFFFF, 0xFFFFFFFF)
    TS(14)

    a.label("L_role")
    I(f"s_cmp_eq_u32 s{sROLE}, 0")
    I("s_cbranch_scc1 L_WO")
    I(f"s_cmp_eq_u32 s{sROLE}, 3")
    I("s_cbranch_scc1 L_next")
    I(f"s_cmp_eq_u32 s{sIT}, 0")
    I("s_cbranch_scc0 L_role2")
    role_dma()
    TS(25)
    a.label("L_role2")
    I(f"s_cmp_eq_u32 s{sROLE}, 1")
    I("s_cbranch_scc1 L_W1")
    I("s_branch L_W2")

    def role_base():
        I(f"s_lshl_b32 s{sT0}, s{sWAVE}, 13")
        I(f"s_add_u32 s{sT0}, s{sT0}, {L_ROLE}")

    a.label("L_WO")
    I(f"s_cmp_eq_u32 s{sIT}, 0")
    I("s_cbranch_scc0 L_WO0")
    role_base()
    tr_addr(T + 47, 64, sT0)
    I("s_waitcnt vmcnt(0)")
    for ks in range(2):
        for t in range(2):
            b = vRB + 4 * (ks * 2 + t)
            o = ks * 2048 + t * 32
            I(f"ds_read_b64_tr_b16 v[{b}:{b+1}], v{T+47} offset:{o}")
            I(f"ds_read_b64_tr_b16 v[{b+2}:{b+3}], v{T+47} offset:{o+256}")
    I("s_waitcnt lgkmcnt(0)")
    TS(15)
    a.label("L_WO0")
    I(f"s_cmp_eq_u32 s{sWAVE}, 5")
    I("s_cbranch_scc0 L_WO1")
    I("s_waitcnt vmcnt(0)")
    I(f"v_lshlrev_b32 v{vXF}, 16, v{vXF}")
    a.label("L_WO1")
    A0, Ma, La = T, T + 4, T + 5
    Dw = [[T + 8, T + 12], [T + 16, T + 20]]
    wMX, wE, wT, wL2E, wR0, wR1 = [T + 24 + i for i in range(6)]
    I(f"v_mov_b32 v{wL2E}, s{sL2E}")
    poll([f"buffer_load_dwordx4 {vr(A0)}, v{vA0}, {WS}, s{sREG} offen sc1",
          f"buffer_load_dwordx2 v[{Ma}:{La}], v{vA2}, {WS}, s{sREG} offen sc1"], list(range(T, T + 6)),
         groups=[range(T, T + 4), range(T + 4, T + 6)])
    TS(16)
    seq = [
        f"v_max_f32_dpp v{wMX}, v{Ma}, v{Ma} quad_perm:[1,0,3,2] row_mask:0xf bank_mask:0xf",
        f"v_max_f32_dpp v{wMX}, v{wMX}, v{wMX} quad_perm:[2,3,0,1] row_mask:0xf bank_mask:0xf",
        f"v_max_f32_dpp v{wMX}, v{wMX}, v{wMX} row_half_mirror row_mask:0xf bank_mask:0xf",
        f"v_sub_f32 v{wE}, v{Ma}, v{wMX}",
    ]
    k = 0
    for t in range(2):
        for ks in range(2):
            I(f"v_mfma_f32_16x16x32_bf16 {vr(Dw[t][ks])}, {vr(A0)}, {vr(vRB+4*(ks*2+t))}, 0")
            I(seq[k]); k += 1
    I(f"v_mul_f32 v{wE}, v{wE}, v{wL2E}")
    I(f"v_exp_f32 v{wE}, v{wE}")
    I(f"v_mul_f32 v{wT}, v{wE}, v{La}")
    mrg = [f"v_mov_b32_dpp v{Dw[t][0]+i}, v{Dw[t][1]+i} quad_perm:[0,1,2,3] row_mask:0xc bank_mask:0xf"
           for t in range(2) for i in range(4)]
    I(mrg[0]); I(mrg[1])
    I(f"v_add_f32_dpp v{wT}, v{wT}, v{wT} quad_perm:[1,0,3,2] row_mask:0xf bank_mask:0xf")
    I(mrg[2]); I(mrg[3])
    I(f"v_add_f32_dpp v{wT}, v{wT}, v{wT} quad_perm:[2,3,0,1] row_mask:0xf bank_mask:0xf")
    I(f"v_mov_b32_dpp v{wE}, v{wE} row_ror:4 row_mask:0xf bank_mask:0xa")
    I(mrg[4])
    I(f"v_add_f32_dpp v{wT}, v{wT}, v{wT} row_half_mirror row_mask:0xf bank_mask:0xf")
    I(mrg[5])
    I(f"v_rcp_f32 v{wT}, v{wT}")
    I(mrg[6]); I(mrg[7])
    for i in range(4):
        for t in range(2):
            D = Dw[t][0]; R = (wR0, wR1)[t]
            op = "v_mul_f32_dpp" if i == 0 else "v_fmac_f32_dpp"
            I(f"{op} v{R}, v{wE}, v{D+i} quad_perm:[{i},{i},{i},{i}] row_mask:0xf bank_mask:0xf")
    I(f"v_mul_f32 v{wR0}, v{wR0}, v{wT}")
    I(f"v_mul_f32 v{wR1}, v{wR1}, v{wT}")
    I(f"ds_write_b32 v{vPW}, v{wR0} offset:{L_PB2}")
    I(f"ds_write_b32 v{vPW}, v{wR1} offset:{L_PB2+256}")
    I("s_waitcnt lgkmcnt(0)")
    I("s_barrier")
    I(f"s_cmp_eq_u32 s{sWAVE}, 5")
    I("s_cbranch_scc0 L_next")
    TS(17)
    reduce_read(8, L_PB2)
    I("s_waitcnt lgkmcnt(0)")
    I(f"v_add_f32 v{T+30}, v{T+30}, v{vXF}")
    reduce_sum(8, rTOT)
    pack_pairs(rTOT, rU)
    I(f"v_mov_b32 v{T}, v{rU}")
    I(f"v_mov_b32_dpp v{T+1}, v{rU} quad_perm:[2,2,2,2] row_mask:0xf bank_mask:0xf")
    I(f"v_mov_b32_dpp v{T+2}, v{rU} row_shl:4 row_mask:0xf bank_mask:0xf")
    I(f"v_mov_b32_dpp v{T+3}, v{rU} row_shl:6 row_mask:0xf bank_mask:0xf")
    setexec(0x01010101, 0)
    I(f"buffer_store_dwordx4 {vr(T)}, v{vRP}, {WS}, s{sREG} offen sc1")
    if dual:
        I(f"buffer_store_dwordx4 {vr(T)}, v{vRP}, {WS}, s{sREG2} offen sc1")
    setexec(0xFFFFFFFF, 0xFFFFFFFF)
    TS(18)
    I("s_branch L_next")

    a.label("L_W1")
    I(f"s_cmp_ge_u32 s{sWAVE}, 5")
    I("s_cbranch_scc1 L_W1b")
    ones()
    I(f"s_cmp_eq_u32 s{sIT}, 0")
    I("s_cbranch_scc0 L_W11")
    role_base()
    tr_addr(T + 47, 64, sT0)
    I(f"s_lshl_b32 s{sT0}, s{sWAVE}, 7")
    I(f"v_and_b32 v{T+46}, 15, v{vLANE}")
    I(f"v_lshlrev_b32 v{T+46}, 2, v{T+46}")
    I(f"v_add_u32 v{T+46}, s{sT0}, v{T+46}")
    I("s_waitcnt vmcnt(0)")
    for ks in range(4):
        for t in range(2):
            b = vRB + 4 * (ks * 2 + t)
            o = ks * 2048 + t * 32
            I(f"ds_read_b64_tr_b16 v[{b}:{b+1}], v{T+47} offset:{o}")
            I(f"ds_read_b64_tr_b16 v[{b+2}:{b+3}], v{T+47} offset:{o+256}")
        if ks == 1:
            I("s_waitcnt lgkmcnt(0)")
    I("s_waitcnt lgkmcnt(0)")
    for t in range(2):
        for ks in range(4):
            I(f"v_mfma_f32_16x16x32_bf16 {vr(T+4*t)}, {vr(ONES)}, {vr(vRB+4*(ks*2+t))}, {'0' if ks == 0 else vr(T+4*t)}")
    I(f"ds_write_b32 v{T+46}, v{T} offset:{L_CS2}")
    I(f"ds_write_b32 v{T+46}, v{T+4} offset:{L_CS2+64}")
    TS(15)
    a.label("L_W11")
    I(f"s_add_u32 s{sT1}, s{sREG}, {ZOFF}")
    I(f"s_add_u32 s{sT1}, s{sT1}, s{sNEAR}")
    gather(sT1)
    TS(19)
    gemv(2, vRB, lambda ks, t: ks * 2 + t)
    TS(20)
    a.label("L_W1b")
    I(f"v_mov_b32 v{rINV}, {f2u(1.0/640):#x}")
    I(f"v_mov_b32 v{rC1}, {f2u(GC1):#x}")
    I(f"v_mov_b32 v{rC2}, {f2u(GC2):#x}")
    I("s_barrier")
    I(f"s_cmp_eq_u32 s{sWAVE}, 5")
    I("s_cbranch_scc0 L_next")
    TS(21)
    reduce_read(5, L_PB1)
    cs_read(L_CS2, vCS1)
    I("s_waitcnt lgkmcnt(0)")
    reduce_sum(5, rTOT)
    stats()
    I(f"v_sub_f32 v{rMEAN}, v{rMEAN}, v{rMB}")
    I(f"v_mul_f32 v{rVAR}, v{rVAR}, v{rR}")
    I(f"v_mul_f32 v{rMEAN}, v{rMEAN}, v{rR}")
    I(f"v_mul_f32 v{rVAR}, v{rVAR}, v{rR}")
    I(f"v_cvt_pk_bf16_f32 v{rT}, v{rMEAN}, v{rVAR}")
    I(f"v_and_b32 v{rU}, 0xffff0000, v{rT}")
    I(f"v_lshlrev_b32 v{rMEAN}, 16, v{rT}")
    I(f"v_add_f32 v{rU}, {f2u(1e-5):#x}, v{rU}")
    I(f"v_cvt_pk_bf16_f32 v{rU}, v{rU}, v{rU}")
    I(f"v_fma_f32 v{rMB}, v{rMEAN}, v{rSD}, v{rMB}")
    I(f"v_and_b32 v{rU}, 0xffff0000, v{rU}")
    I(f"v_sqrt_f32 v{rU}, v{rU}")
    I(f"v_fma_f32 v{rTOT}, -v{rMB}, v{vCS1}, v{rTOT}")
    I(f"v_cvt_pk_bf16_f32 v{rU}, v{rU}, v{rU}")
    I(f"v_mul_f32 v{rTOT}, v{rTOT}, v{rR}")
    I(f"v_and_b32 v{rU}, 0xffff0000, v{rU}")
    I(f"v_rcp_f32 v{rU}, v{rU}")
    I(f"v_mul_f32 v{rTOT}, v{rTOT}, v{rU}")
    I(f"v_cvt_pk_bf16_f32 v{rU}, v{rTOT}, v{rTOT}")
    I(f"v_and_b32 v{rU}, 0xffff0000, v{rU}")
    I(f"v_add_f32 v{rU}, v{rU}, v{vB1}")
    I(f"v_cvt_pk_bf16_f32 v{rU}, v{rU}, v{rU}")
    I(f"v_and_b32 v{rU}, 0xffff0000, v{rU}")
    I(f"v_mul_f32 v{rT}, v{rU}, v{rU}")
    I(f"v_fma_f32 v{rT}, v{rT}, v{rC2}, v{rC1}")
    I(f"v_mul_f32 v{rT}, v{rT}, v{rU}")
    I(f"v_exp_f32 v{rT}, v{rT}")
    I(f"v_add_f32 v{rT}, 1.0, v{rT}")
    I(f"v_rcp_f32 v{rT}, v{rT}")
    I(f"v_mul_f32 v{rU}, v{rU}, v{rT}")
    pack_pairs(rU, T)
    I(f"v_mov_b32_dpp v{T+1}, v{T} quad_perm:[2,2,2,2] row_mask:0xf bank_mask:0xf")
    I(f"v_mov_b32_dpp v{T+2}, v{T} row_shl:4 row_mask:0xf bank_mask:0xf")
    I(f"v_mov_b32_dpp v{T+3}, v{T} row_shl:6 row_mask:0xf bank_mask:0xf")
    setexec(0x01010101, 0)
    lstore([f"buffer_store_dwordx4 {vr(T)}, v{vRP}, {WS}, s{sREG} offen"])
    setexec(0xFFFFFFFF, 0xFFFFFFFF)
    TS(22)
    I("s_branch L_next")

    a.label("L_W2")
    I(f"s_cmp_eq_u32 s{sIT}, 0")
    I("s_cbranch_scc0 L_W21")
    role_base()
    tr_addr(T + 47, 32, sT0)
    I("s_waitcnt vmcnt(0)")
    for ks in range(7):
        b = vRB + 4 * ks
        I(f"ds_read_b64_tr_b16 v[{b}:{b+1}], v{T+47} offset:{ks*1024}")
        I(f"ds_read_b64_tr_b16 v[{b+2}:{b+3}], v{T+47} offset:{ks*1024+128}")
    srd(TB, 50, 1280)
    I("s_waitcnt lgkmcnt(0)")
    TS(15)
    a.label("L_W21")
    for i in range(4):
        I(f"v_mov_b32 v{vFD+i}, 0")
    I(f"s_cmp_eq_u32 s{sX}, 0")
    I("s_cbranch_scc0 L_W22")
    I(f"s_sub_u32 s{sT0}, s{sR}, 27")
    I(f"s_lshl_b32 s{sT0}, s{sT0}, 8")
    I(f"s_lshl_b32 s{sT1}, s{sWAVE}, 5")
    I(f"s_add_u32 s{sT0}, s{sT0}, s{sT1}")
    I(f"v_lshrrev_b32 v{T+4}, 4, v{vLANE}")
    I(f"v_lshlrev_b32 v{T+4}, 3, v{T+4}")
    I(f"buffer_load_dwordx2 v[{T+2}:{T+3}], v{T+4}, {TB}, s{sT0} offen")
    I(f"s_add_u32 s{sT1}, s{sREG}, s{sNEAR}")
    poll([f"buffer_load_dwordx2 v[{T}:{T+1}], v{vA3}, {WS}, s{sT1} offen sc1"], [T, T + 1])
    unpack(vFD, vFD + 1, T)
    unpack(vFD + 2, vFD + 3, T + 1)
    for m in ("quad_perm:[1,0,3,2]", "quad_perm:[2,3,0,1]", "row_half_mirror"):
        for i in range(4):
            I(f"v_add_f32_dpp v{vFD+i}, v{vFD+i}, v{vFD+i} {m} row_mask:0xf bank_mask:0xf")
    I(f"v_cvt_pk_bf16_f32 v{T}, v{vFD}, v{vFD+1}")
    I(f"v_cvt_pk_bf16_f32 v{T+1}, v{vFD+2}, v{vFD+3}")
    unpack(vFD, vFD + 1, T)
    unpack(vFD + 2, vFD + 3, T + 1)
    unpack(T + 4, T + 5, T + 2)
    unpack(T + 6, T + 7, T + 3)
    I(f"v_pk_add_f32 v[{vFD}:{vFD+1}], v[{vFD}:{vFD+1}], v[{T+4}:{T+5}]")
    I(f"v_pk_add_f32 v[{vFD+2}:{vFD+3}], v[{vFD+2}:{vFD+3}], v[{T+6}:{T+7}]")
    a.label("L_W22")
    setexec(0x00010001, 0x00010001)
    poll([f"buffer_load_dwordx4 {vr(T+4*ks)}, v{vA0}, {WS}, s{sREG} offen offset:{ks*128} sc1" for ks in range(6)]
         + [f"buffer_load_dwordx4 {vr(T+24)}, v{vA1}, {WS}, s{sREG} offen sc1"], [T + 4 * ks for ks in range(7)],
         ex=(0x00010001, 0x00010001), simple=True)
    setexec(0xFFFFFFFF, 0xFFFFFFFF)
    TS(23)
    D2 = T + 28
    for ks in range(7):
        I(f"v_mfma_f32_16x16x32_bf16 {vr(D2)}, {vr(vRB+4*ks)}, {vr(T+4*ks)}, {vr(vFD) if ks == 0 else vr(D2)}")
    Y0 = T + 32
    if not y16:
        setexec(0x00010001, 0x00010001)
    I(f"v_cvt_pk_bf16_f32 v{Y0}, v{D2}, v{D2+1}")
    I(f"v_cvt_pk_bf16_f32 v{Y0+1}, v{D2+2}, v{D2+3}")
    I(f"v_min_u32 v{Y0}, 0xfffffffe, v{Y0}")
    I(f"v_min_u32 v{Y0+1}, 0xfffffffe, v{Y0+1}")
    if y16:
        I(f"v_permlane16_swap_b32 v{Y0}, v{Y0+2}")
        I(f"v_permlane16_swap_b32 v{Y0+1}, v{Y0+3}")
        setexec(1, 1)
        I(f"buffer_store_dwordx4 {vr(Y0)}, v{vA2}, {WS}, s{sREG} offen sc1")
    else:
        I(f"buffer_store_dwordx2 v[{Y0}:{Y0+1}], v{vA2}, {WS}, s{sREG} offen sc1")
        if dual:
            I(f"buffer_store_dwordx2 v[{Y0}:{Y0+1}], v{vA2}, {WS}, s{sREG2} offen sc1")
    setexec(0xFFFFFFFF, 0xFFFFFFFF)
    TS(24)

    a.label("L_next")
    I(f"s_add_u32 s{sIT}, s{sIT}, 1")
    I(f"s_add_u32 s{sREG}, s{sREG}, {RS}")
    I(f"s_add_u32 s{sREG2}, s{sREG2}, {RS}")
    I(f"s_cmp_lt_u32 s{sIT}, 2")
    I("s_cbranch_scc1 L_loop")
    I(f"s_cmp_eq_u32 s2, {LEAD_R * 8}")
    I("s_cbranch_scc0 L_fin")
    I(f"s_cmp_lt_u32 s{sWAVE}, 5")
    I("s_cbranch_scc1 L_loop")
    a.label("L_fin")
    if instr:
        TS(30)
        I(f"s_lshl_b32 s{sT0}, s2, 3")
        I(f"s_add_u32 s{sT0}, s{sT0}, s{sWAVE}")
        I(f"s_lshl_b32 s{sT0}, s{sT0}, 9")
        I(f"s_add_u32 s{sT0}, s{sT0}, {DBGOFF}")
        I(f"v_lshlrev_b32 v{T}, 3, v{vLANE}")
        I(f"buffer_store_dwordx2 v[{vTSI}:{vTST}], v{T}, {WS}, s{sT0} offen")
    a.label("L_end")
    I("s_endpgm")
    a.raw('.section .rodata,"a"\n.p2align 6')
    a.raw(f".amdhsa_kernel {KNAME}")
    a.raw("  .amdhsa_next_free_vgpr 256\n  .amdhsa_next_free_sgpr 102\n  .amdhsa_accum_offset 256\n"
          "  .amdhsa_group_segment_fixed_size 0\n  .amdhsa_kernarg_size 104\n  .amdhsa_user_sgpr_count 2\n"
          "  .amdhsa_user_sgpr_kernarg_segment_ptr 1\n  .amdhsa_system_sgpr_workgroup_id_x 1")
    a.raw(".end_amdhsa_kernel")
    open(fn, "w").write(a.text())
    return a.ninstr


if __name__ == "__main__":
    import argparse
    p = argparse.ArgumentParser()
    p.add_argument("-o", default="k.s")
    p.add_argument("--instr", action="store_true")
    p.add_argument("--kv", default="nt")
    p.add_argument("--w", default="")
    p.add_argument("--y16", action="store_true")
    p.add_argument("--nomask", action="store_true")
    p.add_argument("--nodual", action="store_true")
    p.add_argument("--n0", type=int, default=4)
    p.add_argument("--late", type=lambda x: int(x, 0), default=0x5f)
    p.add_argument("--r", default="")
    p.add_argument("--ncal", type=int, default=4)
    p.add_argument("--nw0", type=int, default=8)
    p.add_argument("--qk", type=int, default=16)
    p.add_argument("--qp", type=int, default=3)
    p.add_argument("--gate", type=int, default=4)
    p.add_argument("--dbgt", action="store_true")
    p.add_argument("--sp1", type=int, default=1)
    p.add_argument("--norot", action="store_true")
    p.add_argument("--syfl", default="")
    p.add_argument("--ts", default=None)
    p.add_argument("--noprio", action="store_true")
    args = p.parse_args()
    ts = None if args.ts is None else set(int(x) for x in args.ts.split(","))
    n = gen(args.o, instr=args.instr, kvflags=args.kv, wflags=args.w, y16=args.y16,
            masked_=not args.nomask, tsset=ts, n0=args.n0, late=args.late, rflags=args.r, ncal=args.ncal, dual=not args.nodual, prio=not args.noprio,
            nw0=args.nw0, qk=args.qk, rot=not args.norot, syfl=args.syfl, qp=args.qp, gate=args.gate, dbgt=args.dbgt, sp1=args.sp1)
    print("instrs:", n)
```

```python
import sys, struct, math
from asmlib import Asm

KNAME = "interleave_layers__gqa_block_cached__mixer_channel_mlp__decode_kernel"

RS = 0x40000
POFF, ZOFF, YOFF, QOFF, HOFF, XOFF, MLOFF = 0x0, 0x10000, 0x18000, 0x30000, 0x22000, 0x24000, 0x28000
CALOFF = 0x80000
CP = 0x2000
ZR, ZX = 512, 64
DBGOFF = 0x100000
WS_SIZE = 0x200000
BIG = 0x40000000
PP = 544
L_PB1, L_PB2, L_CS1, L_CS2, L_QB, L_ML, L_FLAG, L_DUM, L_O, L_WQ, L_ROLE = (
    0, 2816, 7168, 7808, 8448, 8704, 8768, 8832, 10240, 18432, 38912)
LDS_TOTAL = 163840
L_RING, RSL = 38912, 30
LEAD_R = 0

def f2u(x):
    return struct.unpack("<I", struct.pack("<f", x))[0]

L2E = f2u(1.4426950408889634)
SCALE = f2u(128 ** -0.5)
GC1 = -2.0 * 1.4426950408889634 * math.sqrt(2.0 / math.pi)
GC2 = GC1 * 0.044715

sWAVE, sX, sR, sIT, sREG = 3, 4, 5, 6, 7
K_SRD, V_SRD, WS, TA, TB, OUTS = "s[8:11]", "s[12:15]", "s[16:19]", "s[20:23]", "s[24:27]", "s[28:31]"
sROLE, sPURE, sSPIN = 58, 59, 60
sT0, sT1, sT2, sT3, sSLOT = 61, 62, 63, 72, 73
sF = 64
sXCC, sTB, sNT, sTSI = 74, 75, 76, 77
sL2E, sM = 80, 81
sRB, sRSTEP, sRN = 82, 83, 84
sKV = 85
sNEAR, sREG2, sVOTE = 78, 79, 81
sLATE, sQS, sKM = 100, 101, 42
vLANE = 0
vGO, vXO, vPW, vSW, vQR, vOW, vMLW = 1, 2, 7, 8, 9, 10, 11
vPQ = 3
vA0, vA1, vA2, vA3 = 12, 13, 14, 15
vRDMA = 17
vTSI, vTST = 18, 19
vSEL = 20
vBQ = 28
vRB = 44
vFD = 72
T = 76
vK, vV = 128, 192
vRR, vQP, vQG, vCSQ, vCS1, vB1, vRP = 1, 2, 3, 4, 5, 6, 8
vXF = 72
vXFA = 16
vCR, vCML, vCP, vCPM, vQG7 = 1, 2, 3, 4, 5


def vr(a, n=4):
    return f"v[{a}:{a+n-1}]"


def gen(fn, instr=False, kvflags="nt", wflags="", rflags="", spin_limit=400000, tsset=None,
        y16=False, masked_=True, dbgt=False, n0=4, late=0x78, dual=True, prio=True, ncal=4, nw0=8, qk=16, rot=True,
        syfl='', qp=3, gate=4, sp1=1):
    assert not late & 0x80
    a = Asm()
    I = a.I
    a.raw(f"; @launch grid=(256,1,1) block=(512,1,1) lds={LDS_TOTAL}")
    a.raw('.amdgcn_target "amdgcn-amd-amdhsa--gfx950"')
    a.raw(".text")
    a.raw(f".globl {KNAME}\n.p2align 8\n.type {KNAME},@function\n{KNAME}:")

    def TS(k):
        if dbgt:
            for j, (kk, it) in enumerate(dbgt):
                if kk == k:
                    l = a.newlab("Ld")
                    I(f"s_cmp_eq_u32 s{sIT}, {it}")
                    I(f"s_cbranch_scc0 {l}")
                    I("s_memrealtime s[0:1]")
                    I("s_waitcnt lgkmcnt(0)")
                    I(f"v_writelane_b32 v{vTST}, s0, {j + 2}")
                    a.label(l)
            return
        if not instr or (tsset is not None and k not in tsset and k not in (0, 30)):
            return
        I("s_memrealtime s[0:1]")
        I("s_waitcnt lgkmcnt(0)")
        I(f"v_writelane_b32 v{vTSI}, {k}, s{sTSI}")
        I(f"s_mov_b32 m0, s{sTSI}")
        I(f"v_writelane_b32 v{vTST}, s0, m0")
        I(f"s_add_u32 s{sTSI}, s{sTSI}, 1")

    def srd(dst, ptr, size):
        d = int(dst[2:].split(":")[0])
        I(f"s_mov_b32 s{d}, s{ptr}")
        I(f"s_mov_b32 s{d+1}, s{ptr+1}")
        I(f"s_mov_b32 s{d+2}, {size:#x}")
        I(f"s_mov_b32 s{d+3}, 0x20000")

    def setexec(lo, hi):
        if lo == 0xFFFFFFFF and hi == 0xFFFFFFFF:
            I("s_mov_b64 exec, -1")
        else:
            I(f"s_mov_b32 exec_lo, {lo:#x}")
            I(f"s_mov_b32 exec_hi, {hi:#x}")

    def maxtree(tmp, rs):
        rs = list(rs)
        if len(rs) == 1:
            return rs[0]
        cur = None
        while rs:
            if cur is None:
                if len(rs) >= 3:
                    I(f"v_max3_u32 v{tmp}, v{rs[0]}, v{rs[1]}, v{rs[2]}"); rs = rs[3:]
                else:
                    I(f"v_max_u32 v{tmp}, v{rs[0]}, v{rs[1]}"); rs = rs[2:]
                cur = tmp
            elif len(rs) >= 2:
                I(f"v_max3_u32 v{tmp}, v{tmp}, v{rs[0]}, v{rs[1]}"); rs = rs[2:]
            else:
                I(f"v_max_u32 v{tmp}, v{tmp}, v{rs[0]}"); rs = rs[1:]
        return cur

    def poll(loads, regs, ex=(0xFFFFFFFF, 0xFFFFFFFF), groups=None, simple=False):
        lab = a.newlab("Lp"); done = a.newlab("Lpd")
        tmp = T + 50
        masked = masked_ and not simple
        if not masked:
            a.label(lab)
        for l in loads:
            I(l)
        if masked:
            a.label(lab)
        I(f"s_add_u32 s{sSPIN}, s{sSPIN}, 1")
        I("s_waitcnt vmcnt(0)")
        cur = maxtree(tmp, regs)
        I(f"v_cmp_eq_u32 vcc, -1, v{cur}")
        I(f"s_cbranch_vccz {done}")
        if masked:
            if groups is None or len(loads) == 1:
                I("s_mov_b64 exec, vcc")
                for l in loads:
                    I(l)
            else:
                for j, gr in enumerate(groups):
                    cur = maxtree(tmp + 1 - (j & 1), gr)
                    I(f"v_cmp_eq_u32 s[{86+2*j}:{87+2*j}], -1, v{cur}")
                for j, l in enumerate(loads):
                    I(f"s_mov_b64 exec, s[{86+2*j}:{87+2*j}]")
                    I(l)
            setexec(*ex)
        I(f"s_cmp_lt_u32 s{sSPIN}, {spin_limit}")
        I(f"s_cbranch_scc1 {lab}")
        if masked:
            I("s_waitcnt vmcnt(0)")
        a.label(done)

    def lstore(ins):
        l1 = a.newlab("Ls"); l2 = a.newlab("Lsd")
        I(f"s_cmp_eq_u32 s{sPURE}, 0")
        I(f"s_cbranch_scc1 {l1}")
        for x in ins: I(x)
        I(f"s_branch {l2}")
        a.label(l1)
        for x in ins: I(x + " sc1")
        a.label(l2)

    def unpack(lo, hi, src):
        I(f"v_lshlrev_b32 v{lo}, 16, v{src}")
        I(f"v_and_b32 v{hi}, 0xffff0000, v{src}")

    XA = T + 32
    ONES = T + 28

    I("s_cmp_ge_u32 s2, 256")
    I("s_cbranch_scc1 L_end")
    I("s_load_dwordx16 s[32:47], s[0:1], 0")
    I("s_load_dwordx8 s[48:55], s[0:1], 64")
    I("s_load_dwordx2 s[56:57], s[0:1], 96")
    if dbgt: I("s_memrealtime s[96:97]")
    I("v_lshrrev_b32 v1, 6, v0")
    I(f"v_and_b32 v{vLANE}, 63, v0")
    I(f"v_readfirstlane_b32 s{sWAVE}, v1")
    I(f"s_and_b32 s{sX}, s2, 7")
    I(f"s_lshr_b32 s{sR}, s2, 3")
    I(f"s_lshl_b32 s{sSLOT}, s{sX}, 5")
    I(f"s_add_u32 s{sSLOT}, s{sSLOT}, s{sR}")
    g, n, q4, c4, t0, t1, t2, t3 = T, T+1, T+2, T+3, T+4, T+5, T+6, T+7
    aK = T + 48
    vAT = T + 44
    I(f"v_lshrrev_b32 v{g}, 4, v{vLANE}")
    I(f"v_and_b32 v{n}, 15, v{vLANE}")
    I(f"v_bfe_u32 v{q4}, v{vLANE}, 2, 2")
    I(f"v_and_b32 v{c4}, 3, v{vLANE}")
    I(f"v_lshlrev_b32 v{aK}, 8, v{q4}")
    I(f"v_lshl_add_u32 v{aK}, v{g}, 6, v{aK}")
    I(f"v_lshl_add_u32 v{aK}, v{c4}, 4, v{aK}")
    I(f"v_lshlrev_b32 v{vXO}, 6, v{q4}")
    I(f"v_lshl_add_u32 v{vXO}, v{g}, 4, v{vXO}")
    I(f"s_lshl_b32 s{sT0}, s{sWAVE}, 8")
    I(f"v_add_u32 v{vXO}, s{sT0}, v{vXO}")
    I(f"s_lshl_b32 s{sKV}, s{sSLOT}, 17")
    I(f"s_lshl_b32 s{sT0}, s{sWAVE}, 14")
    I(f"s_add_u32 s{sKV}, s{sKV}, s{sT0}")
    I(f"s_lshr_b32 s{sQS}, s{sSLOT}, 3")
    I(f"s_lshl_b32 s{sQS}, s{sQS}, 11")
    I(f"s_and_b32 s{sT1}, s{sSLOT}, 3")
    I(f"s_lshl_b32 s{sT0}, s{sT1}, 9")
    I(f"s_add_u32 s{sQS}, s{sQS}, s{sT0}")
    I(f"s_and_b32 s{sT0}, s{sSLOT}, 4")
    I(f"s_lshl_b32 s{sT0}, s{sT0}, 6")
    I(f"s_add_u32 s{sQS}, s{sQS}, s{sT0}")
    I(f"s_add_u32 s{sQS}, s{sQS}, {QOFF}")
    vW0, vW1, ta0, ta1 = T + 44, T + 45, T + 42, T + 43
    XQ, ACC, BUF = 28, 48, 80
    sBa, sG, sRING, sSO, sMB, sRS_ = 86, 90, 91, 92, 93, 94
    I(f"s_and_b32 s{sT0}, s{sSLOT}, {7 if rot else 0}")
    I(f"s_sub_u32 s{sT1}, s{sT0}, 5")
    I(f"s_cmp_lt_u32 s{sT0}, 5")
    I(f"s_cselect_b32 s{sG}, s{sT0}, s{sT1}")
    I(f"s_cselect_b32 s{sT1}, 0, 2")
    I(f"s_lshl_b32 s{sG}, s{sG}, 20")
    I(f"s_lshr_b32 s{sT0}, s{sSLOT}, 3")
    I(f"s_lshl_b32 s{sT0}, s{sT0}, 8")
    I(f"s_lshl_b32 s{sT2}, s{sWAVE}, 6")
    I(f"s_add_u32 s{sT0}, s{sT0}, s{sT2}")
    I(f"s_lshl_b32 s{sT2}, s{sT1}, 18")
    I(f"s_add_u32 s{sBa}, s{sT0}, s{sT2}")
    I(f"s_add_u32 s{sBa+1}, s{sBa}, {1 << 18:#x}")
    I(f"s_xor_b32 s{sBa+2}, s{sBa}, {2 << 18:#x}")
    I(f"s_xor_b32 s{sBa+3}, s{sBa+1}, {2 << 18:#x}")
    I(f"s_mul_i32 s{sRING}, s{sWAVE}, {RSL * 1024}")
    I(f"s_add_u32 s{sRING}, s{sRING}, {L_RING}")
    I(f"v_xor_b32 v{t2}, s{sT1}, v{q4}")
    I(f"v_lshlrev_b32 v{t2}, 6, v{t2}")
    I(f"v_lshl_add_u32 v{t2}, v{g}, 4, v{t2}")
    I(f"v_lshrrev_b32 v{vW0}, 2, v{vLANE}")
    I(f"v_lshlrev_b32 v{vW0}, 13, v{vW0}")
    I(f"v_lshrrev_b32 v{t3}, 4, v{vLANE}")
    I(f"v_and_b32 v{t3}, 2, v{t3}")
    I(f"v_xor_b32 v{t3}, v{t3}, v{c4}")
    I(f"v_lshl_add_u32 v{vW0}, v{t3}, 4, v{vW0}")
    I(f"v_add_u32 v{vW1}, {1 << 17:#x}, v{vW0}")
    I(f"v_lshlrev_b32 v{t0}, 4, v{vLANE}")
    cl = T + 8
    for i in range(4):
        I(f"v_mov_b32 v{cl+i}, -1")
    I(f"s_mov_b32 s{sTSI}, 0")
    if instr:
        I(f"v_mov_b32 v{vTSI}, -1")
        I(f"v_mov_b32 v{vTST}, 0")
    I(f"s_getreg_b32 s{sXCC}, hwreg(HW_REG_XCC_ID)")
    I(f"s_and_b32 s{sXCC}, s{sXCC}, 15")
    I(f"s_lshl_b32 s{sT3}, s2, 11")
    I("s_waitcnt lgkmcnt(0)")
    srd(WS, 56, WS_SIZE)
    srd(K_SRD, 34, 32 << 20)
    if dbgt:
        I(f"v_mov_b32 v{vTST}, 0")
        I(f"v_writelane_b32 v{vTST}, s96, 1")
        I("s_not_b32 s96, s96")
        I(f"v_writelane_b32 v{vTST}, s96, 0")
    srd(TA, 38, 640 * 8192)
    srd(TB, 32, 1280)

    def k_issue(lo, hi, hook=None):
        for ki in range(lo, hi):
            if hook: hook(ki)
            if ki % 4 == 0 or ki == lo:
                I(f"s_add_u32 s{sT0}, s{sKV}, {(ki//4)*4096}")
            I(f"buffer_load_dwordx4 {vr(vK+4*ki)}, v{aK}, {K_SRD}, s{sT0} offen offset:{(ki%4)*1024} {kvflags}")

    I(f"s_cmp_eq_u32 s{sWAVE}, 6")
    I("s_cbranch_scc0 L_nclr")
    I(f"buffer_store_dwordx4 {vr(cl)}, v{t0}, {WS}, s{sT3} offen sc1")
    I(f"buffer_store_dwordx4 {vr(cl)}, v{t0}, {WS}, s{sT3} offen offset:1024 sc1")
    TS(0)
    I("s_branch L_early")
    a.label("L_nclr")
    I(f"s_cmp_ge_u32 s{sWAVE}, 4")
    I("s_cbranch_scc1 L_nwq")
    if prio: I(f"s_setprio {qp}")
    nis = [0]
    def g_next():
        I(f"s_add_u32 s{sG}, s{sG}, {1 << 20:#x}")
        I(f"s_cmp_eq_u32 s{sG}, {5 << 20:#x}")
        I(f"s_cselect_b32 s{sG}, 0, s{sG}")
    def w_issue(lo, hi):
        for p in range(lo, hi):
            u, h = p >> 1, p & 1
            if h == 0 or p == lo:
                I(f"s_add_u32 s{sSO}, s{sBa + (u & 3)}, s{sG}")
            I(f"s_add_u32 m0, s{sRING}, {(p % RSL) * 1024}")
            I(f"buffer_load_dwordx4 v{(vW0, vW1)[h]}, {TA}, s{sSO} offen {wflags} lds")
            nis[0] += 1
            if p % 8 == 7:
                g_next()
    for j in range(5):
        I(f"s_lshr_b32 s{sSO}, s{sG}, 12")
        I(f"buffer_load_dwordx4 {vr(XQ+4*j)}, v{t2}, {TB}, s{sSO} offen")
        nis[0] += 1
        g_next()
    w_issue(0, nw0)
    TS(0)
    I("s_branch L_early")
    a.label("L_nwq")
    k_issue(0, n0)
    TS(0)
    a.label("L_early")
    srd(V_SRD, 36, 32 << 20)
    srd(OUTS, 52, 1280)
    I(f"s_mov_b32 s{sIT}, 0")
    I(f"s_mov_b32 s{sREG}, 0")
    I(f"s_mov_b32 s{sREG2}, {CP}")
    I(f"s_mov_b32 s{sSPIN}, 0")
    I(f"s_mov_b32 s{sPURE}, 0")
    I(f"s_mov_b32 s{sNEAR}, 0")
    I(f"s_mov_b32 s{sL2E}, {L2E:#x}")
    I(f"s_lshr_b32 s{sLATE}, {late:#x}, s{sWAVE}")
    I(f"s_and_b32 s{sLATE}, s{sLATE}, 1")
    I(f"s_mul_i32 s{sTB}, s{sX}, 7")
    I(f"s_cmp_eq_u32 s{sX}, 7")
    I(f"s_cselect_b32 s{sT0}, 1, 0")
    I(f"s_sub_u32 s{sTB}, s{sTB}, s{sT0}")
    I(f"s_cmp_lt_u32 s{sX}, 6")
    I(f"s_cselect_b32 s{sNT}, 7, 6")
    I(f"s_mov_b32 s{sROLE}, 2")
    I(f"s_cmp_lt_u32 s{sR}, 27")
    I(f"s_cselect_b32 s{sROLE}, 3, s{sROLE}")
    I(f"s_add_u32 s{sT0}, s{sNT}, 20")
    I(f"s_cmp_lt_u32 s{sR}, s{sT0}")
    I(f"s_cselect_b32 s{sROLE}, 1, s{sROLE}")
    I(f"s_cmp_lt_u32 s{sR}, 20")
    I(f"s_cselect_b32 s{sROLE}, 0, s{sROLE}")
    I(f"s_cselect_b32 s{sLATE}, s{sLATE}, 0")
    for i in [1] + list(range(3, 18)):
        I(f"v_mov_b32 v{i}, {BIG:#x}")

    def v_issue():
        k1, k2, k3 = T + 49, T + 50, T + 51
        I(f"v_lshrrev_b32 v{k1}, 4, v{vLANE}")
        I(f"v_bfe_u32 v{k3}, v{vLANE}, 3, 1")
        I(f"v_lshl_add_u32 v{k3}, v{k3}, 3, v{k1}")
        I(f"v_lshlrev_b32 v{k3}, 8, v{k3}")
        I(f"v_and_b32 v{k2}, 7, v{vLANE}")
        I(f"v_lshl_add_u32 v{k3}, v{k2}, 4, v{k3}")
        for j in range(16):
            if j % 4 == 0:
                I(f"s_add_u32 s{sT0}, s{sKV}, {(j//4)*4096}")
            u, hf = (j >> 1) & 1, j & 1
            I(f"buffer_load_dwordx4 {vr(vV+4*j)}, v{k3}, {V_SRD}, s{sT0} offen offset:{u*1024+hf*128} {kvflags}")

    def role_dma():
        I(f"s_lshl_b32 s{sT1}, s{sWAVE}, 13")
        I(f"s_add_u32 s{sT1}, s{sT1}, {L_ROLE}")
        I(f"s_mov_b32 s{sT0}, s{sRB}")
        for e in range(8):
            if e % 4 == 0:
                I(f"s_mov_b32 m0, s{sT1}")
                if e == 0:
                    I(f"s_add_u32 s{sT1}, s{sT1}, 4096")
            I(f"s_cmp_gt_u32 s{sRN}, {e}")
            I(f"s_cselect_b32 s{sT2}, s{sT0}, {BIG:#x}")
            I(f"buffer_load_dwordx4 v{vRDMA}, {TB}, s{sT2} offen offset:{(e%4)*1024} {rflags} lds")
            if e < 7:
                I(f"s_add_u32 s{sT0}, s{sT0}, s{sRSTEP}")
                if e % 4 == 3:
                    I(f"s_add_u32 s{sT0}, s{sT0}, 3072")
                else:
                    I(f"s_sub_u32 s{sT0}, s{sT0}, 1024")

    def rank_off(dst, rk, tmp):
        I(f"s_and_b32 s{tmp}, s{rk}, 15")
        I(f"s_mul_i32 s{tmp}, s{tmp}, {ZR}")
        I(f"s_lshr_b32 s{dst}, s{rk}, 4")
        I(f"s_lshl_b32 s{dst}, s{dst}, 14")
        I(f"s_add_u32 s{dst}, s{dst}, s{tmp}")

    I(f"s_cmp_ge_u32 s{sWAVE}, 5")
    I("s_cbranch_scc1 L_init567")
    I(f"v_bfe_u32 v{t0}, v{vLANE}, 3, 1")
    I(f"v_and_b32 v{t1}, 7, v{vLANE}")
    I(f"s_lshl_b32 s{sT1}, s{sWAVE}, 2")
    rank_off(sT0, sT1, sT2)
    I(f"v_mul_u32_u24 v{vGO}, {ZR}, v{t0}")
    I(f"v_mul_u32_u24 v{t1}, {ZX}, v{t1}")
    I(f"v_add3_u32 v{vGO}, v{vGO}, v{t1}, s{sT0}")
    I(f"v_lshl_add_u32 v{vGO}, v{g}, 4, v{vGO}")
    I(f"s_mul_i32 s{sT0}, s{sWAVE}, {PP}")
    I(f"s_add_u32 s{sT0}, s{sT0}, {L_PB1 + 512}")
    I(f"v_lshlrev_b32 v{t2}, 2, v{g}")
    I(f"v_add_u32 v{t2}, s{sT0}, v{t2}")
    I(f"v_lshlrev_b32 v{t3}, 2, v{vLANE}")
    I(f"v_add_u32 v{t3}, {L_DUM}, v{t3}")
    I(f"v_cmp_eq_u32 vcc, v{q4}, v{g}")
    I(f"v_cndmask_b32 v{vSW}, v{t3}, v{t2}, vcc")
    I(f"s_mul_i32 s{sT0}, s{sWAVE}, {PP}")
    I(f"v_lshlrev_b32 v{vPQ}, 4, v{g}")
    I(f"v_add_u32 v{vPQ}, s{sT0}, v{vPQ}")
    I(f"s_and_b32 s{sT0}, s{sSLOT}, 3")
    I(f"s_lshl_b32 s{sT0}, s{sT0}, 2")
    I(f"s_lshl_b32 s{sKM}, 0x00010001, s{sT0}")
    I(f"s_mov_b32 s{sKM+1}, s{sKM}")
    I("s_branch L_initc")

    a.label("L_init567")
    I(f"s_cmp_eq_u32 s{sWAVE}, 6")
    I("s_cbranch_scc1 L_initc")
    I(f"s_cmp_eq_u32 s{sWAVE}, 7")
    I("s_cbranch_scc1 L_init7")
    rank_off(sT0, sR, sT1)
    I(f"s_mul_i32 s{sT1}, s{sX}, {ZX}")
    I(f"s_add_u32 s{sT0}, s{sT0}, s{sT1}")
    I(f"s_add_u32 s{sRB}, s{sT0}, {ZOFF}")
    I(f"s_lshl_b32 s{sT0}, s{sX}, 3")
    I(f"s_add_u32 s{sT0}, s{sT0}, s{sR}")
    I(f"s_sub_u32 s{sT0}, s{sT0}, 20")
    I(f"s_lshl_b32 s{sT0}, s{sT0}, 7")
    I(f"s_add_u32 s{sT0}, s{sT0}, {HOFF}")
    I(f"s_cmp_eq_u32 s{sROLE}, 1")
    I(f"s_cselect_b32 s{sRB}, s{sT0}, s{sRB}")
    I(f"v_lshlrev_b32 v{vRR}, 4, v{vLANE}")
    I(f"v_lshlrev_b32 v{vQP}, 2, v{vLANE}")
    I(f"v_add_u32 v{vQP}, s{sQS}, v{vQP}")
    I(f"s_and_b32 s{sT0}, s{sQS}, {~2047 & 0xffffffff:#x}")
    I(f"v_lshlrev_b32 v{vQG}, 3, v{vLANE}")
    I(f"v_add_u32 v{vQG}, s{sT0}, v{vQG}")
    I(f"v_mov_b32 v{t0}, 0")
    I(f"v_mov_b32 v{t1}, 0")
    I(f"v_mov_b32 v{t2}, {L_FLAG}")
    I(f"ds_write_b64 v{t2}, v[{t0}:{t1}] offset:8")
    I(f"v_and_b32 v{t2}, 31, v{vLANE}")
    I(f"v_lshlrev_b32 v{t2}, 1, v{t2}")
    srd(TA, 46, 1728 * 2)
    I(f"s_add_u32 s{sT0}, s{sTB}, s{sR}")
    I(f"s_sub_u32 s{sT0}, s{sT0}, 20")
    I(f"s_lshl_b32 s{sT0}, s{sT0}, 6")
    I(f"s_cmp_eq_u32 s{sROLE}, 1")
    I(f"s_cselect_b32 s{sT0}, s{sT0}, {BIG:#x}")
    I(f"s_or_b32 s{sT2}, s{sROLE}, s{sX}")
    I(f"s_lshl_b32 s{sT1}, s{sR}, 6")
    I(f"s_cmp_eq_u32 s{sT2}, 0")
    I(f"s_cselect_b32 s{sT1}, s{sT1}, {BIG:#x}")
    I(f"buffer_load_ushort v{vB1}, v{t2}, {TA}, s{sT0} offen")
    I(f"buffer_load_ushort v{vXF}, v{t2}, {TB}, s{sT1} offen")
    I(f"v_lshrrev_b32 v{t1}, 3, v{vLANE}")
    I(f"v_lshlrev_b32 v{t1}, 4, v{t1}")
    I(f"v_add_u32 v{vRP}, s{sRB}, v{t1}")
    I(f"v_and_b32 v{t1}, 31, v{vLANE}")
    I(f"v_lshlrev_b32 v{t1}, 1, v{t1}")
    I(f"s_or_b32 s{sT2}, s{sROLE}, s{sX}")
    I(f"s_lshl_b32 s{sT1}, s{sR}, 6")
    I(f"s_add_u32 s{sT1}, s{sT1}, {XOFF}")
    I(f"s_cmp_eq_u32 s{sT2}, 0")
    I(f"s_cselect_b32 s{sT1}, s{sT1}, {BIG:#x}")
    I(f"v_add_u32 v{vXFA}, s{sT1}, v{t1}")
    I("s_branch L_initc")

    a.label("L_init7")
    I(f"v_lshlrev_b32 v{vCR}, 3, v{vLANE}")
    I(f"v_add_u32 v{vCR}, {L_O}, v{vCR}")
    I(f"v_and_b32 v{t0}, 7, v{vLANE}")
    I(f"v_lshlrev_b32 v{vCML}, 3, v{t0}")
    I(f"v_add_u32 v{vCML}, {L_ML}, v{vCML}")
    I(f"s_lshr_b32 s{sT0}, s{sSLOT}, 3")
    I(f"s_lshl_b32 s{sT1}, s{sT0}, 11")
    I(f"s_and_b32 s{sT2}, s{sSLOT}, 7")
    I(f"s_lshl_b32 s{sT3}, s{sT2}, 4")
    I(f"s_add_u32 s{sT1}, s{sT1}, s{sT3}")
    I(f"v_lshrrev_b32 v{t0}, 5, v{vLANE}")
    I(f"v_lshlrev_b32 v{vCP}, 10, v{t0}")
    I(f"v_lshl_add_u32 v{vCP}, v{q4}, 8, v{vCP}")
    I(f"v_and_b32 v{t0}, 1, v{g}")
    I(f"v_lshl_add_u32 v{vCP}, v{t0}, 7, v{vCP}")
    I(f"v_lshl_add_u32 v{vCP}, v{c4}, 2, v{vCP}")
    I(f"v_add_u32 v{vCP}, s{sT1}, v{vCP}")
    I(f"s_lshl_b32 s{sT0}, s{sT0}, 7")
    I(f"s_lshl_b32 s{sT2}, s{sT2}, 3")
    I(f"s_add_u32 s{sT0}, s{sT0}, s{sT2}")
    I(f"s_add_u32 s{sT0}, s{sT0}, {MLOFF}")
    I(f"v_mov_b32 v{vCPM}, s{sT0}")
    I(f"s_and_b32 s{sT0}, s{sQS}, {~2047 & 0xffffffff:#x}")
    I(f"v_lshlrev_b32 v{vQG7}, 3, v{vLANE}")
    I(f"v_add_u32 v{vQG7}, s{sT0}, v{vQG7}")

    a.label("L_initc")
    I(f"s_mov_b32 s{sRN}, 0")
    I(f"s_mov_b32 s{sRB}, 0")
    I(f"s_mov_b32 s{sRSTEP}, 0")
    srd(TB, 40, 4096 * 1280)
    I(f"v_lshrrev_b32 v{t0}, 2, v{vLANE}")
    I(f"v_lshlrev_b32 v{t1}, 4, v{c4}")
    I(f"s_cmp_eq_u32 s{sROLE}, 0")
    I("s_cbranch_scc0 L_rp1")
    I(f"s_lshl_b32 s{sT0}, s{sX}, 3")
    I(f"s_add_u32 s{sT0}, s{sT0}, s{sWAVE}")
    I(f"s_mul_i32 s{sT0}, s{sT0}, {64*1280}")
    I(f"s_lshl_b32 s{sT1}, s{sR}, 6")
    I(f"s_add_u32 s{sRB}, s{sT0}, s{sT1}")
    I(f"s_mov_b32 s{sRSTEP}, {16*1280}")
    I(f"s_mov_b32 s{sRN}, 4")
    I(f"v_mul_u32_u24 v{vRDMA}, 1280, v{t0}")
    I(f"v_add_u32 v{vRDMA}, v{vRDMA}, v{t1}")
    I(f"s_lshr_b32 s{sT0}, s{sWAVE}, 1")
    I(f"s_lshl_b32 s{sT1}, s{sX}, 2")
    I(f"s_add_u32 s{sT0}, s{sT0}, s{sT1}")
    I(f"s_lshl_b32 s{sT1}, s{sX}, 3")
    I(f"s_add_u32 s{sT1}, s{sT1}, s{sWAVE}")
    I(f"s_lshl_b32 s{sT1}, s{sT1}, 10")
    I(f"v_lshlrev_b32 v{t2}, 4, v{vLANE}")
    I(f"v_add_u32 v{vA0}, s{sT1}, v{t2}")
    I(f"v_xor_b32 v{t2}, v{g}, v{q4}")
    I(f"v_and_b32 v{t2}, 1, v{t2}")
    I(f"v_lshl_add_u32 v{t2}, v{t2}, 2, v{c4}")
    I(f"v_lshlrev_b32 v{t2}, 3, v{t2}")
    I(f"s_lshl_b32 s{sT0}, s{sT0}, 7")
    I(f"s_add_u32 s{sT0}, s{sT0}, {MLOFF}")
    I(f"v_add_u32 v{vA2}, s{sT0}, v{t2}")
    I("s_branch L_rpd")
    a.label("L_rp1")
    I(f"s_cmp_eq_u32 s{sROLE}, 1")
    I("s_cbranch_scc0 L_rp2")
    srd(TB, 44, 640 * 3456)
    I(f"s_mul_i32 s{sT0}, s{sWAVE}, {128*3456}")
    I(f"s_add_u32 s{sT1}, s{sTB}, s{sR}")
    I(f"s_sub_u32 s{sT1}, s{sT1}, 20")
    I(f"s_lshl_b32 s{sT1}, s{sT1}, 6")
    I(f"s_add_u32 s{sRB}, s{sT0}, s{sT1}")
    I(f"s_mov_b32 s{sRSTEP}, {16*3456}")
    I(f"s_cmp_lt_u32 s{sWAVE}, 5")
    I(f"s_cselect_b32 s{sRN}, 8, 0")
    I(f"v_mul_u32_u24 v{vRDMA}, 3456, v{t0}")
    I(f"v_add_u32 v{vRDMA}, v{vRDMA}, v{t1}")
    I("s_branch L_rpd")
    a.label("L_rp2")
    I(f"v_mov_b32 v{vRDMA}, 0")
    I(f"s_cmp_eq_u32 s{sROLE}, 2")
    I("s_cbranch_scc0 L_rpd")
    srd(TB, 48, 1728 * 1280)
    I(f"s_mul_i32 s{sT0}, s{sTB}, {32*1280}")
    I(f"s_sub_u32 s{sT2}, s{sR}, 27")
    I(f"s_lshl_b32 s{sT1}, s{sT2}, 8")
    I(f"s_add_u32 s{sT0}, s{sT0}, s{sT1}")
    I(f"s_lshl_b32 s{sT1}, s{sWAVE}, 5")
    I(f"s_add_u32 s{sRB}, s{sT0}, s{sT1}")
    I(f"s_mov_b32 s{sRSTEP}, {32*1280}")
    I(f"s_mov_b32 s{sRN}, 7")
    I(f"v_lshrrev_b32 v{t0}, 1, v{vLANE}")
    I(f"v_mul_u32_u24 v{vRDMA}, 1280, v{t0}")
    I(f"v_and_b32 v{t1}, 1, v{vLANE}")
    I(f"v_lshl_add_u32 v{vRDMA}, v{t1}, 4, v{vRDMA}")
    I(f"s_lshl_b32 s{sT0}, s{sX}, 10")
    I(f"s_add_u32 s{sT0}, s{sT0}, {HOFF}")
    I(f"v_lshlrev_b32 v{t0}, 4, v{g}")
    I(f"v_add_u32 v{vA0}, s{sT0}, v{t0}")
    I(f"s_mov_b32 s{sT1}, 768")
    I(f"s_cmp_eq_u32 s{sNT}, 7")
    I(f"s_cselect_b32 s{sT1}, s{sT1}, {BIG:#x}")
    I(f"v_add_u32 v{vA1}, s{sT1}, v{vA0}")
    I(f"s_lshl_b32 s{sT0}, s{sT2}, 2")
    I(f"s_lshr_b32 s{sT1}, s{sWAVE}, 1")
    I(f"s_add_u32 s{sT1}, s{sT0}, s{sT1}")
    rank_off(sT0, sT1, sT3)
    I(f"s_and_b32 s{sT1}, s{sWAVE}, 1")
    I(f"s_lshl_b32 s{sT1}, s{sT1}, 5")
    I(f"s_add_u32 s{sT0}, s{sT0}, s{sT1}")
    I(f"v_lshlrev_b32 v{t0}, 3, v{g}")
    I(f"v_add_u32 v{t0}, s{sT0}, v{t0}")
    I(f"s_mul_i32 s{sT1}, s{sX}, {ZX}")
    I(f"s_add_u32 s{sT1}, s{sT1}, {YOFF}")
    I(f"v_add_u32 v{vA2}, s{sT1}, v{t0}")
    I(f"v_mul_u32_u24 v{t1}, {ZX}, v{n}")
    I(f"v_add_u32 v{t1}, v{t1}, v{t0}")
    I(f"v_add_u32 v{t1}, {ZOFF}, v{t1}")
    I(f"s_cmp_eq_u32 s{sX}, 0")
    I(f"s_cselect_b32 s{sT0}, 8, 0")
    I(f"v_mov_b32 v{t2}, {BIG:#x}")
    I(f"v_cmp_gt_u32 vcc, s{sT0}, v{n}")
    I(f"v_cndmask_b32 v{vA3}, v{t2}, v{t1}, vcc")
    a.label("L_rpd")

    I(f"s_mul_i32 s{sT0}, s{sWAVE}, {PP}")
    I(f"v_lshlrev_b32 v{vPW}, 4, v{n}")
    I(f"v_lshl_add_u32 v{vPW}, v{g}, 2, v{vPW}")
    I(f"v_add_u32 v{vPW}, s{sT0}, v{vPW}")
    I(f"v_lshl_add_u32 v{vQR}, v{g}, 2, v{c4}")
    I(f"v_lshlrev_b32 v{vQR}, 4, v{vQR}")
    I(f"v_add_u32 v{vQR}, {L_QB}, v{vQR}")
    I(f"s_lshl_b32 s{sT0}, s{sWAVE}, 10")
    I(f"s_add_u32 s{sT0}, s{sT0}, {L_O}")
    I(f"v_bfe_u32 v{t0}, v{vLANE}, 3, 1")
    I(f"v_lshlrev_b32 v{vOW}, 9, v{t0}")
    I(f"v_and_b32 v{t0}, 7, v{vLANE}")
    I(f"v_lshl_add_u32 v{vOW}, v{t0}, 5, v{vOW}")
    I(f"v_and_b32 v{t1}, 1, v{g}")
    I(f"v_lshl_add_u32 v{vOW}, v{t1}, 4, v{vOW}")
    I(f"v_add_u32 v{vOW}, s{sT0}, v{vOW}")
    I(f"s_lshl_b32 s{sT0}, s{sWAVE}, 3")
    I(f"s_add_u32 s{sT0}, s{sT0}, {L_ML}")
    I(f"v_lshlrev_b32 v{vMLW}, 3, v{vLANE}")
    I(f"v_add_u32 v{vMLW}, {L_DUM}, v{vMLW}")
    I(f"v_writelane_b32 v{vMLW}, s{sT0}, 63")
    for u in range(2):
        for r in range(4):
            sb = 0x0100 if u == (r >> 1) else 0x0302
            d = vSEL + u * 4 + r
            I(f"v_mov_b32 v{d}, 0x0c0c0c0c")
            I(f"v_mov_b32 v{t1}, {0x0c0c0000 | sb:#x}")
            I(f"v_mov_b32 v{t2}, {(sb << 16) | 0x0c0c:#x}")
            I(f"v_cmp_eq_u32 vcc, {2*r}, v{t0}")
            I(f"v_cndmask_b32 v{d}, v{d}, v{t1}, vcc")
            I(f"v_cmp_eq_u32 vcc, {2*r+1}, v{t0}")
            I(f"v_cndmask_b32 v{d}, v{d}, v{t2}, vcc")

    def tr_addr(dst, pitch, base_s, x0=T + 48):
        x1 = x0 + 1
        I(f"v_lshrrev_b32 v{x0}, 4, v{vLANE}")
        I(f"v_bfe_u32 v{x1}, v{vLANE}, 2, 2")
        I(f"v_lshl_add_u32 v{x0}, v{x0}, 3, v{x1}")
        I(f"v_lshlrev_b32 v{x0}, {pitch.bit_length()-1}, v{x0}")
        I(f"v_and_b32 v{x1}, 3, v{vLANE}")
        I(f"v_lshl_add_u32 v{x0}, v{x1}, 3, v{x0}")
        I(f"v_add_u32 v{dst}, s{base_s}, v{x0}")

    def ones():
        for i in range(4):
            I(f"v_mov_b32 v{ONES+i}, 0x3f803f80")

    def gemv(ntile, Bbase, bidx):
        S1, S2 = T + 16, T + 20
        A0_, A1_ = vr(XA), vr(XA + 4)
        I(f"v_mfma_f32_16x16x32_bf16 {vr(S2)}, {A0_}, {A0_}, 0")
        I(f"v_mfma_f32_16x16x32_bf16 {vr(S2)}, {A1_}, {A1_}, {vr(S2)}")
        I(f"v_mfma_f32_16x16x32_bf16 {vr(S1)}, {A0_}, {vr(ONES)}, 0")
        I(f"v_mfma_f32_16x16x32_bf16 {vr(S1)}, {A1_}, {vr(ONES)}, {vr(S1)}")
        post = [
            f"v_pk_add_f32 v[{S2}:{S2+1}], v[{S2}:{S2+1}], v[{S2+2}:{S2+3}]",
            f"v_add_f32 v{S2}, v{S2}, v{S2+1}",
            f"v_add_f32_dpp v{S2}, v{S2}, v{S2} quad_perm:[1,0,3,2] row_mask:0xf bank_mask:0xf",
            f"v_pk_add_f32 v[{S1}:{S1+1}], v[{S1}:{S1+1}], v[{S1+2}:{S1+3}]",
            f"v_add_f32_dpp v{S2}, v{S2}, v{S2} quad_perm:[2,3,0,1] row_mask:0xf bank_mask:0xf",
            f"v_add_f32 v{S1}, v{S1}, v{S1+1}",
            f"v_add_f32_dpp v{S2}, v{S2}, v{S2} row_half_mirror row_mask:0xf bank_mask:0xf",
            f"ds_write2_b32 v{vSW}, v{S1}, v{S2} offset0:0 offset1:4",
        ]
        def dpost(t):
            D = T + 8 * t
            return [f"v_pk_add_f32 v[{D}:{D+1}], v[{D}:{D+1}], v[{D+2}:{D+3}]",
                    f"v_pk_add_f32 v[{D+4}:{D+5}], v[{D+4}:{D+5}], v[{D+6}:{D+7}]",
                    f"v_add_f32 v{D}, v{D}, v{D+1}",
                    f"v_add_f32_dpp v{D}, v{D+4}, v{D+5} quad_perm:[0,1,2,3] row_mask:0xc bank_mask:0xf",
                    f"ds_write_b32 v{vPW}, v{D} offset:{L_PB1 + t*256}"]
        for t in range(ntile):
            post += dpost(t)
        k = 0
        for t in range(ntile):
            for j in range(2):
                D = T + 8 * t + 4 * j
                for h in range(2):
                    I(f"v_mfma_f32_16x16x32_bf16 {vr(D)}, {(A0_, A1_)[h]}, {vr(Bbase+4*bidx(2*h+j,t))}, {vr(D) if h else '0'}")
                    k += 1
                    if k >= 5 and k < 4 * ntile:
                        for x in post[:2]: I(x)
                        post = post[2:]
        for x in post: I(x)
        I("s_waitcnt lgkmcnt(0)")

    def gemv_q(first=False):
        S1, S2 = T + 16, T + 20
        for t in range(4):
            I(f"v_mfma_f32_16x16x32_bf16 {vr(T+4*t)}, {vr(vBQ+4*t)}, {vr(XA)}, 0")
        I(f"v_mfma_f32_16x16x32_bf16 {vr(S1)}, {vr(XA)}, {vr(ONES)}, 0")
        I(f"v_mfma_f32_16x16x32_bf16 {vr(S2)}, {vr(XA)}, {vr(XA)}, 0")
        if first:
            for t in range(4):
                I(f"v_mfma_f32_16x16x32_bf16 {vr(vRB+4*t)}, {vr(vBQ+4*t)}, {vr(ONES)}, 0")
        I(f"s_mov_b64 exec, s[{sKM}:{sKM+1}]")
        for t in range(4):
            I(f"ds_write_b128 v{vPQ}, {vr(T+4*t)} offset:{L_PB1 + t*64}")
        if first:
            for t in range(4):
                I(f"ds_write_b128 v{vPQ}, {vr(vRB+4*t)} offset:{L_PB1 + 256 + t*64}")
        I("s_mov_b64 exec, -1")
        I(f"ds_write2_b32 v{vSW}, v{S1}, v{S2} offset0:0 offset1:4")
        I("s_waitcnt lgkmcnt(0)")

    def gather(sreg):
        poll([f"buffer_load_dwordx4 {vr(XA)}, v{vGO}, {WS}, s{sreg} offen sc1",
              f"buffer_load_dwordx4 {vr(XA+4)}, v{vGO}, {WS}, s{sreg} offen offset:{2*ZR} sc1"],
             [XA, XA + 4], groups=[[XA], [XA + 4]])

    def reduce_read(nw, base):
        for v in range(nw):
            I(f"ds_read_b128 {vr(T+4*v)}, v{vRR} offset:{base + v*PP}")

    def reduce_sum(nw, dst):
        np_ = 2 * nw
        idx = list(range(np_))
        while len(idx) > 1:
            nx = []
            for i in range(0, len(idx) - 1, 2):
                d, s = idx[i], idx[i + 1]
                I(f"v_pk_add_f32 v[{T+2*d}:{T+2*d+1}], v[{T+2*d}:{T+2*d+1}], v[{T+2*s}:{T+2*s+1}]")
                nx.append(d)
            if len(idx) % 2:
                nx.append(idx[-1])
            idx = nx
        I(f"v_add_f32 v{dst}, v{T}, v{T+1}")

    rTOT, rMEAN, rVAR, rMB, rSD, rR, rU, rT, rINV, rC1, rC2, rCS = [T + 32 + i for i in range(12)]

    def cs_read(area, dst):
        l = a.newlab("Lcs")
        I(f"s_cmp_eq_u32 s{sIT}, 0")
        I(f"s_cbranch_scc0 {l}")
        I(f"v_lshrrev_b32 v{rT}, 2, v{vRR}")
        for v in range(5):
            I(f"ds_read_b32 v{T+24+v}, v{rT} offset:{area + v*128}")
        I("s_waitcnt lgkmcnt(0)")
        I(f"v_add_f32 v{dst}, v{T+24}, v{T+25}")
        I(f"v_add_f32 v{rT}, v{T+26}, v{T+27}")
        I(f"v_add_f32 v{dst}, v{dst}, v{T+28}")
        I(f"v_add_f32 v{dst}, v{dst}, v{rT}")
        a.label(l)

    def stats(l0=32):
        if l0 is not None:
            I(f"v_readlane_b32 s{sT0}, v{rTOT}, {l0}")
            I(f"v_readlane_b32 s{sT1}, v{rTOT}, {l0+1}")
            I(f"v_mul_f32 v{rMEAN}, s{sT0}, v{rINV}")
            I(f"v_mul_f32 v{rVAR}, s{sT1}, v{rINV}")
        I(f"v_fma_f32 v{rVAR}, -v{rMEAN}, v{rMEAN}, v{rVAR}")
        I(f"v_max_f32 v{rVAR}, 0, v{rVAR}")
        I(f"v_cvt_pk_bf16_f32 v{rT}, v{rMEAN}, v{rVAR}")
        I(f"v_and_b32 v{rU}, 0xffff0000, v{rT}")
        I(f"v_lshlrev_b32 v{rMB}, 16, v{rT}")
        I(f"v_add_f32 v{rU}, {f2u(1e-5):#x}, v{rU}")
        I(f"v_cvt_pk_bf16_f32 v{rU}, v{rU}, v{rU}")
        I(f"v_and_b32 v{rU}, 0xffff0000, v{rU}")
        I(f"v_sqrt_f32 v{rU}, v{rU}")
        I(f"v_cvt_pk_bf16_f32 v{rU}, v{rU}, v{rU}")
        I(f"v_and_b32 v{rSD}, 0xffff0000, v{rU}")
        I(f"v_rcp_f32 v{rR}, v{rSD}")

    def pack_pairs(src, dst):
        I(f"v_mov_b32_dpp v{rT}, v{src} quad_perm:[1,0,3,2] row_mask:0xf bank_mask:0xf")
        I(f"v_cvt_pk_bf16_f32 v{dst}, v{src}, v{rT}")
        I(f"v_min_u32 v{dst}, 0xfffffffe, v{dst}")

    def q_reduce(first=False):
        qa, qs, QS = T + 44, T + 45, T + 20
        I(f"v_lshlrev_b32 v{qa}, 2, v{vLANE}")
        I(f"v_and_b32 v{qs}, 1, v{vLANE}")
        I(f"v_lshlrev_b32 v{qs}, 4, v{qs}")
        return qa, qs, QS

    def q_reduce2(qa, qs, QS, first=False):
        for v in range(5):
            I(f"ds_read_b128 {vr(T+4*v)}, v{qs} offset:{L_PB1 + 512 + v*PP}")
        for v in range(5):
            I(f"ds_read_b32 v{QS+v}, v{qa} offset:{L_PB1 + v*PP}")
        if first:
            for v in range(5):
                I(f"ds_read_b32 v{QS+5+v}, v{qa} offset:{L_WQ + v*4096}")
        I(f"s_waitcnt lgkmcnt({10 if first else 5})")
        reduce_sum(5, rTOT)
        stats(0)
        I("s_waitcnt lgkmcnt(0)")
        I(f"v_add_f32 v{QS}, v{QS}, v{QS+1}")
        I(f"v_add_f32 v{QS+2}, v{QS+2}, v{QS+3}")
        I(f"v_add_f32 v{QS}, v{QS}, v{QS+4}")
        I(f"v_add_f32 v{QS}, v{QS}, v{QS+2}")
        if first:
            I(f"v_add_f32 v{vCSQ}, v{QS+5}, v{QS+6}")
            I(f"v_add_f32 v{QS+7}, v{QS+7}, v{QS+8}")
            I(f"v_add_f32 v{vCSQ}, v{vCSQ}, v{QS+9}")
            I(f"v_add_f32 v{vCSQ}, v{vCSQ}, v{QS+7}")
        I(f"v_fma_f32 v{rU}, -v{rMB}, v{vCSQ}, v{QS}")
        I(f"v_mul_f32 v{rU}, v{rU}, v{rR}")
        I(f"v_min_u32 v{rU}, 0xfffffffe, v{rU}")

    def q_gather(va, qa):
        poll([f"buffer_load_dwordx2 v[{T+2*k}:{T+2*k+1}], v{va}, {WS}, s{sREG} offen offset:{k*512} sc1" for k in range(4)],
             list(range(T, T + 8)), groups=[[T + 2 * k, T + 2 * k + 1] for k in range(4)])
        I(f"v_pk_add_f32 v[{T}:{T+1}], v[{T}:{T+1}], v[{T+2}:{T+3}]")
        I(f"v_pk_add_f32 v[{T+4}:{T+5}], v[{T+4}:{T+5}], v[{T+6}:{T+7}]")
        I(f"v_pk_add_f32 v[{T}:{T+1}], v[{T}:{T+1}], v[{T+4}:{T+5}]")
        I(f"v_cvt_pk_bf16_f32 v{T}, v{T}, v{T+1}")
        I(f"ds_write_b32 v{qa}, v{T} offset:{L_QB}")

    def lds_wait(off, val, ge=False):
        lab = a.newlab("Lw"); done = a.newlab("Lwd")
        I(f"v_mov_b32 v{T+47}, {L_FLAG}")
        a.label(lab)
        I(f"ds_read_b32 v{T+46}, v{T+47} offset:{off}")
        I(f"s_add_u32 s{sSPIN}, s{sSPIN}, 1")
        I("s_waitcnt lgkmcnt(0)")
        I(f"v_readfirstlane_b32 s{sT3}, v{T+46}")
        I(f"s_cmp_{'ge' if ge else 'eq'}_u32 s{sT3}, {val}")
        I(f"s_cbranch_scc1 {done}")
        I(f"s_cmp_lt_u32 s{sSPIN}, {spin_limit}")
        I(f"s_cbranch_scc1 {lab}")
        a.label(done)

    def sp(p):
        if prio: I(f"s_setprio {p}")

    I(f"v_mov_b32 v{rINV}, {f2u(1.0/640):#x}")
    I("s_waitcnt lgkmcnt(0)")
    I("s_barrier")
    TS(1)
    I(f"s_cmp_ge_u32 s{sWAVE}, 4")
    I("s_cbranch_scc1 L_s4567")
    srd(TA, 38, 640 * 8192)
    w_issue(nw0, RSL)
    TS(37)
    tr_addr(ta0, 64, sRING, T + 25)
    I(f"v_bfe_u32 v{T+25}, v{vLANE}, 4, 1")
    I(f"v_lshl_add_u32 v{ta0}, v{T+25}, 5, v{ta0}")
    I(f"v_xor_b32 v{ta1}, 32, v{ta0}")
    I(f"s_waitcnt vmcnt({nis[0] - 5})")
    setexec(0x22222222, 0x22222222)
    for i in range(20):
        I(f"v_mov_b32 v{XQ+i}, 0x3f803f80")
    setexec(0xFFFFFFFF, 0xFFFFFFFF)
    for j in range(5):
        I(f"v_mfma_f32_16x16x32_bf16 {vr(BUF)}, {vr(XQ+4*j)}, {vr(XQ+4*j)}, {vr(BUF) if j else '0'}")
    for i in range(4):
        I(f"v_readlane_b32 s{sF+i}, v{BUF}, {20*i+1}")
        I(f"v_readlane_b32 s{sF+4+i}, v{BUF}, {20*i}")
    I(f"v_mov_b32 v{rMEAN}, s{sF}")
    I(f"v_mov_b32 v{rVAR}, s{sF+4}")
    for i in range(1, 4):
        I(f"v_add_f32 v{rMEAN}, s{sF+i}, v{rMEAN}")
        I(f"v_add_f32 v{rVAR}, s{sF+4+i}, v{rVAR}")
    I(f"v_mul_f32 v{rMEAN}, v{rMEAN}, v{rINV}")
    I(f"v_mul_f32 v{rVAR}, v{rVAR}, v{rINV}")
    stats(None)
    I(f"v_readfirstlane_b32 s{sMB}, v{rMB}")
    I(f"v_readfirstlane_b32 s{sRS_}, v{rR}")
    TS(2)
    def q_mma(u):
        for t in range(2):
            acc = ACC + 16 * t + 4 * (u & 3)
            I(f"v_mfma_f32_16x16x32_bf16 {vr(acc)}, {vr(BUF + 8*(u%4) + 4*t)}, {vr(XQ+4*(u>>2))}, {vr(acc) if u >= 4 else '0'}")
    for u in range(20):
        I(f"s_waitcnt vmcnt({nis[0] - 5 - 2*u - 2})")
        if u == 0: TS(38)
        o = (2 * u % RSL) * 1024
        for t in range(2):
            b = BUF + 8 * (u % 4) + 4 * t
            I(f"ds_read_b64_tr_b16 v[{b}:{b+1}], v{(ta0, ta1)[t]} offset:{o}")
            I(f"ds_read_b64_tr_b16 v[{b+2}:{b+3}], v{(ta0, ta1)[t]} offset:{o+256}")
        if u:
            I("s_waitcnt lgkmcnt(4)")
            q_mma(u - 1)
            p = RSL + 2 * (u - 1)
            if p < 40:
                w_issue(p, p + 2)
                if p + 2 == 40:
                    k_issue(0, qk)
                    nis[0] += qk
                    TS(39)
    I(f"v_mov_b32 v{BUF+0}, {L_FLAG}")
    I(f"v_mov_b32 v{BUF+1}, 1")
    I(f"v_lshrrev_b32 v{BUF+2}, 4, v{vLANE}")
    I(f"v_lshlrev_b32 v{BUF+2}, 3, v{BUF+2}")
    I(f"s_lshl_b32 s{sT0}, s{sWAVE}, 6")
    I(f"v_add_u32 v{BUF+2}, s{sT0}, v{BUF+2}")
    I(f"v_mov_b32 v{BUF+3}, s{sMB}")
    I(f"v_xor_b32 v{BUF+3}, 0x80000000, v{BUF+3}")
    I("s_waitcnt lgkmcnt(0)")
    q_mma(19)
    for aa in range(1, 4):
        for t in range(2):
            for i in range(4):
                d = ACC + 16 * t + i
                I(f"v_add_f32_dpp v{d}, v{d+4*aa}, v{d} row_shl:{4*aa} row_mask:0xf bank_mask:0xf")
    for t in range(2):
        for i in range(4):
            d = ACC + 16 * t + i
            I(f"v_fmac_f32_dpp v{d}, v{d}, v{BUF+3} quad_perm:[1,1,1,1] row_mask:0xf bank_mask:0xf")
    for t in range(2):
        for i in range(4):
            d = ACC + 16 * t + i
            I(f"v_mul_f32 v{d}, s{sRS_}, v{d}")
    for t in range(2):
        d = ACC + 16 * t
        I(f"v_cvt_pk_bf16_f32 v{d}, v{d}, v{d+1}")
        I(f"v_cvt_pk_bf16_f32 v{d+1}, v{d+2}, v{d+3}")
    setexec(0x00010001, 0x00010001)
    for t in range(2):
        d = ACC + 16 * t
        I(f"ds_write_b64 v{BUF+2}, v[{d}:{d+1}] offset:{L_QB + 32*t}")
    setexec(1, 0)
    I("s_waitcnt lgkmcnt(0)")
    I(f"ds_add_u32 v{BUF+0}, v{BUF+1} offset:12")
    setexec(0xFFFFFFFF, 0xFFFFFFFF)
    TS(5)
    sp(sp1)
    k_issue(qk, 16)
    I("s_branch L_own")

    a.label("L_s4567")
    I(f"s_cmp_eq_u32 s{sWAVE}, 6")
    I("s_cbranch_scc0 L_krest")
    sp(3)
    I(f"s_mov_b32 s{sVOTE}, 0")
    I(f"s_cmp_lt_u32 s{sR}, {ncal}")
    I("s_cbranch_scc0 L_ncal")
    MK = 0x13579bdf
    I(f"s_lshl_b32 s{sT0}, s2, 7")
    I(f"s_add_u32 s88, s{sT0}, {CALOFF + 0x10000}")
    I(f"s_load_dword s86, s[56:57], s88 glc")
    I(f"s_add_u32 s{sT0}, s{sT0}, {CALOFF}")
    I(f"s_lshl_b32 s{sVOTE}, s{sR}, 13")
    I(f"s_and_b32 s{sVOTE}, s{sVOTE}, {CP}")
    I(f"s_add_u32 s{sT0}, s{sT0}, s{sVOTE}")
    I(f"s_xor_b32 s{sT3}, s{sT0}, {CP}")
    I(f"s_lshr_b32 s{sVOTE}, s{sVOTE}, 13")
    I(f"s_lshr_b32 s88, s{sXCC}, 2")
    I(f"s_xor_b32 s{sVOTE}, s{sVOTE}, s88")
    I("s_waitcnt lgkmcnt(0)")
    for k, (ad, cnt) in enumerate(((sT0, 88), (sT3, 89))):
        I(f"s_mov_b32 s86, {MK:#x}")
        I(f"s_mov_b32 s{cnt}, 0")
        I(f"s_load_dword s86, s[56:57], s{ad} glc")
        a.label(f"L_cal{k}")
        I(f"s_add_u32 s{cnt}, s{cnt}, 1")
        I(f"s_cmp_eq_u32 s86, {MK:#x}")
        I(f"s_cselect_b32 s87, s{cnt}, 1000")
        I(f"s_cmp_lt_u32 s87, 200")
        I(f"s_cbranch_scc1 L_cal{k}")
        I("s_waitcnt lgkmcnt(0)")
    I(f"s_cmp_gt_u32 s88, s89")
    I(f"s_cselect_b32 s{sT0}, 1, 0")
    I(f"s_xor_b32 s{sVOTE}, s{sVOTE}, s{sT0}")
    I(f"s_and_b32 s{sVOTE}, s{sVOTE}, 1")
    I(f"s_lshl_b32 s{sVOTE}, s{sVOTE}, 24")
    a.label("L_ncal")
    I(f"s_mul_i32 s{sT0}, s{sXCC}, 6")
    I(f"s_lshl_b64 s[{sF}:{sF+1}], 1, s{sT0}")
    I(f"s_cmp_lt_u32 s{sXCC}, 8")
    I(f"s_cselect_b32 s{sF}, s{sF}, 0")
    I(f"s_cselect_b32 s{sF+1}, s{sF+1}, 0")
    I(f"s_or_b32 s{sF+1}, s{sF+1}, 0x10000")
    I(f"s_or_b32 s{sF+1}, s{sF+1}, s{sVOTE}")
    srd(TA, 54, 256)
    I(f"v_mov_b32 v{vAT}, s{sF}")
    I(f"v_mov_b32 v{vAT+1}, s{sF+1}")
    I(f"s_lshl_b32 s{sT0}, s{sX}, 5")
    I(f"v_mov_b32 v{vAT+2}, s{sT0}")
    TS(33)
    I("s_waitcnt vmcnt(0)")
    setexec(1, 0)
    I(f"buffer_atomic_add_x2 v[{vAT}:{vAT+1}], v{vAT+2}, {TA}, 0 offen sc1")
    setexec(0xFFFFFFFF, 0xFFFFFFFF)
    TS(32)
    sp(0)
    k_issue(0, n0)
    a.label("L_krest")
    k_issue(n0, 16)
    I(f"s_cmp_eq_u32 s{sWAVE}, 4")
    I("s_cbranch_scc0 L_vall")
    a.label("L_own")
    o2, o3 = T + 49, T + 50
    srd(TA, 38, 640 * 8192)
    I(f"s_and_b32 s{sT1}, s{sSLOT}, 3")
    I(f"s_lshl_b32 s{sT2}, s{sWAVE}, 2")
    I(f"s_add_u32 s{sT2}, s{sT2}, s{sT1}")
    I(f"s_lshl_b32 s{sT2}, s{sT2}, 18")
    I(f"s_lshr_b32 s{sT0}, s{sSLOT}, 2")
    I(f"s_lshl_b32 s{sT0}, s{sT0}, 7")
    I(f"s_add_u32 s{sT2}, s{sT2}, s{sT0}")
    I(f"v_lshrrev_b32 v{o2}, 3, v{vLANE}")
    I(f"v_lshlrev_b32 v{o2}, 13, v{o2}")
    I(f"v_and_b32 v{o3}, 7, v{vLANE}")
    I(f"v_lshl_add_u32 v{o2}, v{o3}, 4, v{o2}")
    I(f"v_bfe_u32 v{o3}, v{vLANE}, 4, 1")
    I(f"v_lshlrev_b32 v{o3}, 5, v{o3}")
    I(f"v_xor_b32 v{o2}, v{o2}, v{o3}")
    I(f"v_xor_b32 v{o3}, 64, v{o2}")
    I(f"s_lshl_b32 s{sT1}, s{sWAVE}, 12")
    I(f"s_add_u32 m0, s{sT1}, {L_WQ}")
    for e in range(4):
        I(f"buffer_load_dwordx4 v{(o2, o3)[e & 1]}, {TA}, s{sT2} offen offset:{e*1024} {wflags} lds")
        if e < 3:
            I(f"s_add_u32 s{sT2}, s{sT2}, {8*8192 - 1024}")
    a.label("L_vall")
    v_issue()
    TS(31)
    for i in range(16):
        I(f"v_mov_b32 v{T+i}, 0")
    if gate:
        I(f"v_mov_b32 v{T+24}, {L_FLAG}")
        I(f"v_mov_b32 v{T+25}, 1")
        setexec(1, 0)
        I(f"ds_add_u32 v{T+24}, v{T+25} offset:8")
        setexec(0xFFFFFFFF, 0xFFFFFFFF)
    lds_wait(12, 4)
    TS(8)
    I("s_branch L_att")

    a.label("L_loop")
    I(f"s_cmp_ge_u32 s{sWAVE}, 5")
    I("s_cbranch_scc1 L_B1")
    I(f"s_cmp_eq_u32 s{sIT}, 1")
    I("s_cbranch_scc0 L_nown")
    I(f"s_lshl_b32 s{sT0}, s{sWAVE}, 12")
    I(f"s_add_u32 s{sT0}, s{sT0}, {L_WQ}")
    ta = T + 24
    tr_addr(ta, 128, sT0, T + 25)
    I(f"v_bfe_u32 v{T+25}, v{vLANE}, 3, 1")
    I(f"v_bfe_u32 v{T+26}, v{vLANE}, 4, 1")
    I(f"v_lshl_add_u32 v{T+25}, v{T+26}, 1, v{T+25}")
    I(f"v_lshl_add_u32 v{ta}, v{T+25}, 5, v{ta}")
    for t in range(1, 4):
        I(f"v_xor_b32 v{ta+t}, {t*32}, v{ta}")
    for t in range(4):
        I(f"ds_read_b64_tr_b16 v[{vBQ+4*t}:{vBQ+4*t+1}], v{ta+t}")
        I(f"ds_read_b64_tr_b16 v[{vBQ+4*t+2}:{vBQ+4*t+3}], v{ta+t} offset:512")
    ones()
    I(f"v_lshrrev_b32 v{T+20}, 4, v{vLANE}")
    I(f"v_lshlrev_b32 v{T+20}, 4, v{T+20}")
    I(f"v_add_u32 v{T+20}, s{sT0}, v{T+20}")
    I("s_waitcnt lgkmcnt(0)")
    for t in range(4):
        I(f"v_mfma_f32_16x16x32_bf16 {vr(T+4*t)}, {vr(vBQ+4*t)}, {vr(ONES)}, 0")
    I(f"s_mov_b64 exec, s[{sKM}:{sKM+1}]")
    for t in range(4):
        I(f"ds_write_b128 v{T+20}, {vr(T+4*t)} offset:{t*64}")
    I("s_mov_b64 exec, -1")
    a.label("L_nown")
    I(f"s_lshl_b32 s{sT2}, s{sX}, 11")
    I(f"s_add_u32 s{sT2}, s{sT2}, {XOFF}")
    I(f"s_cmp_eq_u32 s{sR}, {LEAD_R}")
    I("s_cbranch_scc0 L_nolead")
    I(f"s_lshl_b32 s{sT1}, s{sWAVE}, 2")
    rank_off(sT0, sT1, sT3)
    I(f"s_add_u32 s{sT0}, s{sT0}, s{sREG}")
    I(f"s_add_u32 s{sT0}, s{sT0}, s{sNEAR}")
    I(f"s_add_u32 s{sT0}, s{sT0}, {YOFF - RS & 0xffffffff:#x}")
    I(f"v_lshrrev_b32 v{T+20}, 4, v{vLANE}")
    I(f"v_mul_u32_u24 v{T+20}, {ZR}, v{T+20}")
    I(f"v_and_b32 v{T+21}, 15, v{vLANE}")
    I(f"v_lshl_add_u32 v{T+20}, v{T+21}, 2, v{T+20}")
    I(f"s_lshl_b32 s{sT1}, s{sWAVE}, 8")
    I(f"v_lshlrev_b32 v{T+21}, 2, v{vLANE}")
    I(f"v_add_u32 v{T+21}, s{sT1}, v{T+21}")
    TS(26)
    poll([f"buffer_load_dword v{T+2*j+1}, v{T+20}, {WS}, s{sT0} offen offset:{j*ZX} sc1" for j in range(8)],
         [T + 2 * j + 1 for j in range(8)], groups=[[T + 2 * j + 1] for j in range(8)])
    TS(27)
    for j in range(8):
        unpack(T + 2 * j, T + 2 * j + 1, T + 2 * j + 1)
    for (d, s_) in ((0, 1), (2, 3), (4, 5), (6, 7), (0, 2), (4, 6), (0, 4)):
        I(f"v_pk_add_f32 v[{T+2*d}:{T+2*d+1}], v[{T+2*d}:{T+2*d+1}], v[{T+2*s_}:{T+2*s_+1}]")
    I(f"v_cvt_pk_bf16_f32 v{T}, v{T}, v{T+1}")
    I(f"s_cmp_eq_u32 s{sIT}, 2")
    I("s_cbranch_scc0 L_lead1")
    I(f"buffer_store_dword v{T}, v{T+21}, {OUTS}, 0 offen")
    TS(29)
    I("s_branch L_fin")
    a.label("L_lead1")
    I(f"v_min_u32 v{T}, 0xfffffffe, v{T}")
    lstore([f"buffer_store_dword v{T}, v{T+21}, {WS}, s{sT2} offen"])
    TS(28)
    a.label("L_nolead")
    ones()
    TS(3)
    poll([f"buffer_load_dwordx4 {vr(XA)}, v{vXO}, {WS}, s{sT2} offen sc1"], list(range(XA, XA + 4)))
    TS(4)
    gemv_q()
    TS(5)
    a.label("L_B1")
    I(f"v_mov_b32 v{rINV}, {f2u(1.0/640):#x}")
    qa, qs, QS = q_reduce()
    I("s_barrier")
    I(f"s_cmp_eq_u32 s{sWAVE}, 5")
    I("s_cbranch_scc0 L_B2")
    TS(6)
    q_reduce2(qa, qs, QS, first=True)
    TS(7)
    lstore([f"buffer_store_dword v{rU}, v{vQP}, {WS}, s{sREG} offen"])
    q_gather(vQG, qa)
    TS(8)
    I(f"buffer_load_ushort v{vXF}, v{vXFA}, {WS}, 0 offen sc1")
    I("s_waitcnt lgkmcnt(0)")
    a.label("L_B2")
    BT = T
    ST = T + 16
    PS = T + 32
    MI = T + 36
    OA = T + 44
    for i in range(16):
        I(f"v_mov_b32 v{BT+i}, 0")
    I("s_barrier")
    a.label("L_att")
    TS(9)
    for t in range(4):
        m = 0x000F000F << (4 * t)
        setexec(m, m)
        I(f"ds_read_b128 {vr(BT+4*t)}, v{vQR}")
    setexec(0xFFFFFFFF, 0xFFFFFFFF)
    I("s_waitcnt vmcnt(16) lgkmcnt(0)")
    TS(10)
    for Tt in range(4):
        for t in range(4):
            I(f"v_mfma_f32_16x16x32_bf16 {vr(ST+4*Tt)}, {vr(vK+4*(4*Tt+t))}, {vr(BT+4*t)}, {'0' if t == 0 else vr(ST+4*Tt)}")
    for Tt in range(4):
        I(f"v_mov_b32_dpp v{PS+Tt}, v{ST+4*Tt} quad_perm:[0,0,0,0] row_mask:0xf bank_mask:0xf")
        for c in range(1, 4):
            I(f"v_add_f32_dpp v{PS+Tt}, v{ST+4*Tt+c}, v{PS+Tt} quad_perm:[{c},{c},{c},{c}] row_mask:0xf bank_mask:0xf")
    I(f"v_mov_b32 v{MI+2}, {SCALE:#x}")
    I(f"v_mov_b32 v{MI+3}, {SCALE:#x}")
    I(f"v_cvt_pk_bf16_f32 v{MI}, v{PS}, v{PS+1}")
    I(f"v_cvt_pk_bf16_f32 v{MI+1}, v{PS+2}, v{PS+3}")
    unpack(PS, PS + 1, MI)
    unpack(PS + 2, PS + 3, MI + 1)
    I(f"v_pk_mul_f32 v[{PS}:{PS+1}], v[{PS}:{PS+1}], v[{MI+2}:{MI+3}]")
    I(f"v_pk_mul_f32 v[{PS+2}:{PS+3}], v[{PS+2}:{PS+3}], v[{MI+2}:{MI+3}]")
    I(f"v_cvt_pk_bf16_f32 v{MI}, v{PS}, v{PS+1}")
    I(f"v_cvt_pk_bf16_f32 v{MI+1}, v{PS+2}, v{PS+3}")
    unpack(PS, PS + 1, MI)
    unpack(PS + 2, PS + 3, MI + 1)
    vM = MI + 4; vL = MI + 5; vT_ = MI + 6; vPK = MI + 7
    I(f"v_max3_f32 v{vM}, v{PS}, v{PS+1}, v{PS+2}")
    I(f"v_max_f32 v{vM}, v{vM}, v{PS+3}")
    I(f"v_max_f32_dpp v{vM}, v{vM}, v{vM} row_ror:4 row_mask:0xf bank_mask:0xf")
    I(f"v_max_f32_dpp v{vM}, v{vM}, v{vM} row_ror:8 row_mask:0xf bank_mask:0xf")
    I(f"v_max_f32_dpp v{vM}, v{vM}, v{vM} row_bcast:15 row_mask:0xa bank_mask:0xf")
    I(f"v_max_f32_dpp v{vM}, v{vM}, v{vM} row_bcast:31 row_mask:0xc bank_mask:0xf")
    I(f"v_mov_b32 v{MI}, s{sL2E}")
    I(f"v_readlane_b32 s{sM}, v{vM}, 63")
    I(f"v_mul_f32 v{vT_}, s{sM}, v{MI}")
    for Tt in range(4):
        I(f"v_fma_f32 v{PS+Tt}, v{PS+Tt}, v{MI}, -v{vT_}")
    for Tt in range(4):
        I(f"v_exp_f32 v{PS+Tt}, v{PS+Tt}")
    TS(11)
    I(f"s_cmp_eq_u32 s{sIT}, 0")
    I("s_cbranch_scc0 L_PV")
    I(f"v_lshlrev_b32 v{vB1}, 16, v{vB1}")
    I(f"s_cmp_eq_u32 s{sLATE}, 0")
    I("s_cbranch_scc1 L_PVe")
    role_dma()
    TS(25)
    I("s_branch L_PV")
    a.label("L_PVe")
    I("s_waitcnt vmcnt(0)")
    a.label("L_PV")
    for Tt in range(4):
        AB = ST + 8 * (Tt & 1)
        I(f"v_mov_b32_dpp v{vT_}, v{PS+Tt} row_half_mirror row_mask:0xf bank_mask:0xf")
        I(f"v_cvt_pk_bf16_f32 v{vPK}, v{PS+Tt}, v{vT_}")
        for u in range(2):
            for r in range(4):
                I(f"v_perm_b32 v{AB+4*u+r}, v{vPK}, v{vPK}, v{vSEL+4*u+r}")
        if Tt == 1:
            I(f"v_add_f32 v{vL}, v{PS}, v{PS+1}")
            I(f"v_add_f32 v{MI+1}, v{PS+2}, v{PS+3}")
            I(f"v_add_f32 v{vL}, v{vL}, v{MI+1}")
            I(f"v_add_f32_dpp v{vL}, v{vL}, v{vL} row_ror:4 row_mask:0xf bank_mask:0xf")
            I(f"v_add_f32_dpp v{vL}, v{vL}, v{vL} row_ror:8 row_mask:0xf bank_mask:0xf")
            I(f"v_add_f32_dpp v{vL}, v{vL}, v{vL} row_bcast:15 row_mask:0xa bank_mask:0xf")
            I(f"v_add_f32_dpp v{vL}, v{vL}, v{vL} row_bcast:31 row_mask:0xc bank_mask:0xf")
            I(f"ds_write_b64 v{vMLW}, v[{vM}:{vL}]")
        for u in range(2):
            i1 = Tt * 4 + u * 2 + 1
            I(f"s_waitcnt vmcnt({15 - i1 + 8})")
            for hf in range(2):
                i = Tt * 4 + u * 2 + hf
                first = (Tt == 0 and u == 0)
                I(f"v_mfma_f32_16x16x32_bf16 {vr(OA+4*hf)}, {vr(AB+4*u)}, {vr(vV+4*i)}, {'0' if first else vr(OA+4*hf)}")
    TS(12)
    setexec(0x00FF00FF, 0xFF00FF00)
    I(f"ds_write_b128 v{vOW}, {vr(OA)}")
    I(f"ds_write_b128 v{vOW}, {vr(OA+4)} offset:256")
    setexec(0xFFFFFFFF, 0xFFFFFFFF)
    I(f"s_cmp_eq_u32 s{sIT}, 0")
    I("s_cbranch_scc0 L_B3")
    sp(0)
    I(f"s_cmp_eq_u32 s{sLATE}, 0")
    I("s_cbranch_scc0 L_B3")
    I(f"s_cmp_eq_u32 s{sWAVE}, 7")
    I("s_cbranch_scc0 L_erd")
    sp(3)
    srd(TA, 54, 256)
    I(f"v_lshlrev_b32 v{BT+2}, 5, v{vLANE}")
    setexec(0xFF, 0)
    I(f"buffer_load_dwordx2 v[{BT}:{BT+1}], v{BT+2}, {TA}, 0 offen {syfl}")
    a.label("L_sync")
    I(f"s_add_u32 s{sSPIN}, s{sSPIN}, 4")
    I("s_waitcnt vmcnt(0)")
    I(f"v_and_b32 v{BT+3}, {1 << 21:#x}, v{BT+1}")
    I(f"v_cmp_eq_u32 vcc, 0, v{BT+3}")
    I("s_cbranch_vccz L_syncd")
    I(f"buffer_load_dwordx2 v[{BT}:{BT+1}], v{BT+2}, {TA}, 0 offen sc1")
    I(f"s_cmp_lt_u32 s{sSPIN}, {spin_limit}")
    I("s_cbranch_scc1 L_sync")
    I("s_waitcnt vmcnt(0)")
    a.label("L_syncd")
    I(f"v_lshrrev_b32 v{BT+3}, 24, v{BT+1}")
    I(f"v_readlane_b32 s64, v{BT}, s{sX}")
    I(f"v_readlane_b32 s65, v{BT+1}, s{sX}")
    for m_ in ("quad_perm:[1,0,3,2]", "quad_perm:[2,3,0,1]", "row_half_mirror"):
        I(f"v_add_u32_dpp v{BT+3}, v{BT+3}, v{BT+3} {m_} row_mask:0xf bank_mask:0xf")
    I(f"s_mul_i32 s{sT0}, s{sXCC}, 6")
    I(f"s_lshr_b64 s[64:65], s[64:65], s{sT0}")
    I(f"s_and_b32 s64, s64, 63")
    I(f"s_cmp_eq_u32 s64, 32")
    I(f"s_cselect_b32 s{sT1}, 1, 0")
    I(f"s_cmp_lt_u32 s{sXCC}, 8")
    I(f"s_cselect_b32 s{sT1}, s{sT1}, 0")
    I(f"v_readfirstlane_b32 s{sT0}, v{BT+3}")
    setexec(0xFFFFFFFF, 0xFFFFFFFF)
    I(f"s_cmp_gt_u32 s{sT0}, {4 * ncal}")
    I(f"s_cselect_b32 s{sT0}, 1, 0")
    I(f"s_lshr_b32 s{sT2}, s{sXCC}, 2")
    I(f"s_xor_b32 s{sT0}, s{sT0}, s{sT2}")
    I(f"s_and_b32 s{sT0}, s{sT0}, {1 if dual else 0}")
    I(f"s_lshl_b32 s{sT0}, s{sT0}, 13")
    I(f"s_or_b32 s{sT0}, s{sT0}, s{sT1}")
    I(f"v_mov_b32 v{BT}, s{sT0}")
    I(f"v_mov_b32 v{BT+1}, {L_FLAG}")
    I(f"ds_write_b32 v{BT+1}, v{BT}")
    TS(35)
    sp(0)
    a.label("L_erd")
    I(f"s_cmp_eq_u32 s{sROLE}, 0")
    I("s_cbranch_scc0 L_B3")
    if gate:
        lds_wait(8, gate, ge=True)
    role_dma()
    TS(25)
    a.label("L_B3")
    I("s_waitcnt lgkmcnt(0)")
    I(f"v_mov_b32 v{T+38}, {L_FLAG}")
    I("s_barrier")
    TS(13)
    I(f"ds_read_b32 v{T+38}, v{T+38}")
    I(f"s_cmp_eq_u32 s{sWAVE}, 7")
    I("s_cbranch_scc1 L_comb")
    I("s_waitcnt lgkmcnt(0)")
    I(f"v_readfirstlane_b32 s{sT0}, v{T+38}")
    I(f"s_and_b32 s{sPURE}, s{sT0}, 1")
    I(f"s_and_b32 s{sNEAR}, s{sT0}, {CP}")
    I("s_branch L_role")
    a.label("L_comb")
    cM, cL, cMX, cF, cT = T + 32, T + 33, T + 34, T + 36, T + 37
    cLS = T + 35
    I(f"ds_read_b64 v[{cM}:{cL}], v{vCML}")
    for w in range(8):
        I(f"ds_read2st64_b64 {vr(T+4*w)}, v{vCR} offset0:{2*w} offset1:{2*w+1}")
    I(f"v_mov_b32 v{cT}, s{sL2E}")
    I("s_waitcnt lgkmcnt(8)")
    I(f"v_readfirstlane_b32 s{sT0}, v{T+38}")
    I(f"v_max_f32_dpp v{cMX}, v{cM}, v{cM} quad_perm:[1,0,3,2] row_mask:0xf bank_mask:0xf")
    I(f"v_max_f32_dpp v{cMX}, v{cMX}, v{cMX} quad_perm:[2,3,0,1] row_mask:0xf bank_mask:0xf")
    I(f"v_max_f32_dpp v{cMX}, v{cMX}, v{cMX} row_half_mirror row_mask:0xf bank_mask:0xf")
    I(f"v_sub_f32 v{cF}, v{cM}, v{cMX}")
    I(f"v_mul_f32 v{cF}, v{cF}, v{cT}")
    I(f"v_exp_f32 v{cF}, v{cF}")
    I(f"s_and_b32 s{sPURE}, s{sT0}, 1")
    I(f"s_and_b32 s{sNEAR}, s{sT0}, {CP}")
    I("s_waitcnt lgkmcnt(0)")
    for w in range(8):
        I(f"v_readlane_b32 s{sF+w}, v{cF}, {w}")
    for w in range(8):
        I(f"v_pk_add_f32 v[{T+4*w}:{T+4*w+1}], v[{T+4*w}:{T+4*w+1}], v[{T+4*w+2}:{T+4*w+3}]")
    for w in range(8):
        sp = f"s[{sF+(w&~1)}:{sF+(w&~1)+1}]"
        o = w & 1
        acc = T + 40 + 2 * (w & 1)
        if w < 2:
            I(f"v_pk_mul_f32 v[{acc}:{acc+1}], v[{T+4*w}:{T+4*w+1}], {sp} op_sel:[0,{o}] op_sel_hi:[1,{o}]")
        else:
            I(f"v_pk_fma_f32 v[{acc}:{acc+1}], v[{T+4*w}:{T+4*w+1}], {sp}, v[{acc}:{acc+1}] op_sel:[0,{o},0] op_sel_hi:[1,{o},1]")
    I(f"v_mul_f32 v{cLS}, v{cF}, v{cL}")
    I(f"v_pk_add_f32 v[{T+40}:{T+41}], v[{T+40}:{T+41}], v[{T+42}:{T+43}]")
    I(f"v_add_f32_dpp v{cLS}, v{cLS}, v{cLS} quad_perm:[1,0,3,2] row_mask:0xf bank_mask:0xf")
    I(f"v_cvt_pk_bf16_f32 v{T+40}, v{T+40}, v{T+41}")
    I(f"v_min_u32 v{T+40}, 0xfffffffe, v{T+40}")
    I(f"v_add_f32_dpp v{cLS}, v{cLS}, v{cLS} quad_perm:[2,3,0,1] row_mask:0xf bank_mask:0xf")
    I(f"v_min_u32 v{cMX}, 0xfffffffe, v{cMX}")
    lstore([f"buffer_store_dword v{T+40}, v{vCP}, {WS}, s{sREG} offen"])
    I(f"v_add_f32_dpp v{cLS}, v{cLS}, v{cLS} row_half_mirror row_mask:0xf bank_mask:0xf")
    I(f"v_min_u32 v{cLS}, 0xfffffffe, v{cLS}")
    setexec(1, 0)
    lstore([f"buffer_store_dwordx2 v[{cMX}:{cLS}], v{vCPM}, {WS}, s{sREG} offen"])
    setexec(0xFFFFFFFF, 0xFFFFFFFF)
    TS(14)

    a.label("L_role")
    I(f"s_cmp_eq_u32 s{sROLE}, 0")
    I("s_cbranch_scc1 L_WO")
    I(f"s_cmp_eq_u32 s{sROLE}, 3")
    I("s_cbranch_scc1 L_next")
    I(f"s_cmp_eq_u32 s{sIT}, 0")
    I("s_cbranch_scc0 L_role2")
    role_dma()
    TS(25)
    a.label("L_role2")
    I(f"s_cmp_eq_u32 s{sROLE}, 1")
    I("s_cbranch_scc1 L_W1")
    I("s_branch L_W2")

    def role_base():
        I(f"s_lshl_b32 s{sT0}, s{sWAVE}, 13")
        I(f"s_add_u32 s{sT0}, s{sT0}, {L_ROLE}")

    a.label("L_WO")
    I(f"s_cmp_eq_u32 s{sIT}, 0")
    I("s_cbranch_scc0 L_WO0")
    role_base()
    tr_addr(T + 47, 64, sT0)
    I("s_waitcnt vmcnt(0)")
    for ks in range(2):
        for t in range(2):
            b = vRB + 4 * (ks * 2 + t)
            o = ks * 2048 + t * 32
            I(f"ds_read_b64_tr_b16 v[{b}:{b+1}], v{T+47} offset:{o}")
            I(f"ds_read_b64_tr_b16 v[{b+2}:{b+3}], v{T+47} offset:{o+256}")
    I("s_waitcnt lgkmcnt(0)")
    TS(15)
    a.label("L_WO0")
    I(f"s_cmp_eq_u32 s{sWAVE}, 5")
    I("s_cbranch_scc0 L_WO1")
    I("s_waitcnt vmcnt(0)")
    I(f"v_lshlrev_b32 v{vXF}, 16, v{vXF}")
    a.label("L_WO1")
    A0, Ma, La = T, T + 4, T + 5
    Dw = [[T + 8, T + 12], [T + 16, T + 20]]
    wMX, wE, wT, wL2E, wR0, wR1 = [T + 24 + i for i in range(6)]
    I(f"v_mov_b32 v{wL2E}, s{sL2E}")
    poll([f"buffer_load_dwordx4 {vr(A0)}, v{vA0}, {WS}, s{sREG} offen sc1",
          f"buffer_load_dwordx2 v[{Ma}:{La}], v{vA2}, {WS}, s{sREG} offen sc1"], list(range(T, T + 6)),
         groups=[range(T, T + 4), range(T + 4, T + 6)])
    TS(16)
    seq = [
        f"v_max_f32_dpp v{wMX}, v{Ma}, v{Ma} quad_perm:[1,0,3,2] row_mask:0xf bank_mask:0xf",
        f"v_max_f32_dpp v{wMX}, v{wMX}, v{wMX} quad_perm:[2,3,0,1] row_mask:0xf bank_mask:0xf",
        f"v_max_f32_dpp v{wMX}, v{wMX}, v{wMX} row_half_mirror row_mask:0xf bank_mask:0xf",
        f"v_sub_f32 v{wE}, v{Ma}, v{wMX}",
    ]
    k = 0
    for t in range(2):
        for ks in range(2):
            I(f"v_mfma_f32_16x16x32_bf16 {vr(Dw[t][ks])}, {vr(A0)}, {vr(vRB+4*(ks*2+t))}, 0")
            I(seq[k]); k += 1
    I(f"v_mul_f32 v{wE}, v{wE}, v{wL2E}")
    I(f"v_exp_f32 v{wE}, v{wE}")
    I(f"v_mul_f32 v{wT}, v{wE}, v{La}")
    mrg = [f"v_mov_b32_dpp v{Dw[t][0]+i}, v{Dw[t][1]+i} quad_perm:[0,1,2,3] row_mask:0xc bank_mask:0xf"
           for t in range(2) for i in range(4)]
    I(mrg[0]); I(mrg[1])
    I(f"v_add_f32_dpp v{wT}, v{wT}, v{wT} quad_perm:[1,0,3,2] row_mask:0xf bank_mask:0xf")
    I(mrg[2]); I(mrg[3])
    I(f"v_add_f32_dpp v{wT}, v{wT}, v{wT} quad_perm:[2,3,0,1] row_mask:0xf bank_mask:0xf")
    I(f"v_mov_b32_dpp v{wE}, v{wE} row_ror:4 row_mask:0xf bank_mask:0xa")
    I(mrg[4])
    I(f"v_add_f32_dpp v{wT}, v{wT}, v{wT} row_half_mirror row_mask:0xf bank_mask:0xf")
    I(mrg[5])
    I(f"v_rcp_f32 v{wT}, v{wT}")
    I(mrg[6]); I(mrg[7])
    for i in range(4):
        for t in range(2):
            D = Dw[t][0]; R = (wR0, wR1)[t]
            op = "v_mul_f32_dpp" if i == 0 else "v_fmac_f32_dpp"
            I(f"{op} v{R}, v{wE}, v{D+i} quad_perm:[{i},{i},{i},{i}] row_mask:0xf bank_mask:0xf")
    I(f"v_mul_f32 v{wR0}, v{wR0}, v{wT}")
    I(f"v_mul_f32 v{wR1}, v{wR1}, v{wT}")
    I(f"ds_write_b32 v{vPW}, v{wR0} offset:{L_PB2}")
    I(f"ds_write_b32 v{vPW}, v{wR1} offset:{L_PB2+256}")
    I("s_waitcnt lgkmcnt(0)")
    I("s_barrier")
    I(f"s_cmp_eq_u32 s{sWAVE}, 5")
    I("s_cbranch_scc0 L_next")
    TS(17)
    reduce_read(8, L_PB2)
    I("s_waitcnt lgkmcnt(0)")
    I(f"v_add_f32 v{T+30}, v{T+30}, v{vXF}")
    reduce_sum(8, rTOT)
    pack_pairs(rTOT, rU)
    I(f"v_mov_b32 v{T}, v{rU}")
    I(f"v_mov_b32_dpp v{T+1}, v{rU} quad_perm:[2,2,2,2] row_mask:0xf bank_mask:0xf")
    I(f"v_mov_b32_dpp v{T+2}, v{rU} row_shl:4 row_mask:0xf bank_mask:0xf")
    I(f"v_mov_b32_dpp v{T+3}, v{rU} row_shl:6 row_mask:0xf bank_mask:0xf")
    setexec(0x01010101, 0)
    I(f"buffer_store_dwordx4 {vr(T)}, v{vRP}, {WS}, s{sREG} offen sc1")
    if dual:
        I(f"buffer_store_dwordx4 {vr(T)}, v{vRP}, {WS}, s{sREG2} offen sc1")
    setexec(0xFFFFFFFF, 0xFFFFFFFF)
    TS(18)
    I("s_branch L_next")

    a.label("L_W1")
    I(f"s_cmp_ge_u32 s{sWAVE}, 5")
    I("s_cbranch_scc1 L_W1b")
    ones()
    I(f"s_cmp_eq_u32 s{sIT}, 0")
    I("s_cbranch_scc0 L_W11")
    role_base()
    tr_addr(T + 47, 64, sT0)
    I(f"s_lshl_b32 s{sT0}, s{sWAVE}, 7")
    I(f"v_and_b32 v{T+46}, 15, v{vLANE}")
    I(f"v_lshlrev_b32 v{T+46}, 2, v{T+46}")
    I(f"v_add_u32 v{T+46}, s{sT0}, v{T+46}")
    I("s_waitcnt vmcnt(0)")
    for ks in range(4):
        for t in range(2):
            b = vRB + 4 * (ks * 2 + t)
            o = ks * 2048 + t * 32
            I(f"ds_read_b64_tr_b16 v[{b}:{b+1}], v{T+47} offset:{o}")
            I(f"ds_read_b64_tr_b16 v[{b+2}:{b+3}], v{T+47} offset:{o+256}")
        if ks == 1:
            I("s_waitcnt lgkmcnt(0)")
    I("s_waitcnt lgkmcnt(0)")
    for t in range(2):
        for ks in range(4):
            I(f"v_mfma_f32_16x16x32_bf16 {vr(T+4*t)}, {vr(ONES)}, {vr(vRB+4*(ks*2+t))}, {'0' if ks == 0 else vr(T+4*t)}")
    I(f"ds_write_b32 v{T+46}, v{T} offset:{L_CS2}")
    I(f"ds_write_b32 v{T+46}, v{T+4} offset:{L_CS2+64}")
    TS(15)
    a.label("L_W11")
    I(f"s_add_u32 s{sT1}, s{sREG}, {ZOFF}")
    I(f"s_add_u32 s{sT1}, s{sT1}, s{sNEAR}")
    gather(sT1)
    TS(19)
    gemv(2, vRB, lambda ks, t: ks * 2 + t)
    TS(20)
    a.label("L_W1b")
    I(f"v_mov_b32 v{rINV}, {f2u(1.0/640):#x}")
    I(f"v_mov_b32 v{rC1}, {f2u(GC1):#x}")
    I(f"v_mov_b32 v{rC2}, {f2u(GC2):#x}")
    I("s_barrier")
    I(f"s_cmp_eq_u32 s{sWAVE}, 5")
    I("s_cbranch_scc0 L_next")
    TS(21)
    reduce_read(5, L_PB1)
    cs_read(L_CS2, vCS1)
    I("s_waitcnt lgkmcnt(0)")
    reduce_sum(5, rTOT)
    stats()
    I(f"v_sub_f32 v{rMEAN}, v{rMEAN}, v{rMB}")
    I(f"v_mul_f32 v{rVAR}, v{rVAR}, v{rR}")
    I(f"v_mul_f32 v{rMEAN}, v{rMEAN}, v{rR}")
    I(f"v_mul_f32 v{rVAR}, v{rVAR}, v{rR}")
    I(f"v_cvt_pk_bf16_f32 v{rT}, v{rMEAN}, v{rVAR}")
    I(f"v_and_b32 v{rU}, 0xffff0000, v{rT}")
    I(f"v_lshlrev_b32 v{rMEAN}, 16, v{rT}")
    I(f"v_add_f32 v{rU}, {f2u(1e-5):#x}, v{rU}")
    I(f"v_cvt_pk_bf16_f32 v{rU}, v{rU}, v{rU}")
    I(f"v_fma_f32 v{rMB}, v{rMEAN}, v{rSD}, v{rMB}")
    I(f"v_and_b32 v{rU}, 0xffff0000, v{rU}")
    I(f"v_sqrt_f32 v{rU}, v{rU}")
    I(f"v_fma_f32 v{rTOT}, -v{rMB}, v{vCS1}, v{rTOT}")
    I(f"v_cvt_pk_bf16_f32 v{rU}, v{rU}, v{rU}")
    I(f"v_mul_f32 v{rTOT}, v{rTOT}, v{rR}")
    I(f"v_and_b32 v{rU}, 0xffff0000, v{rU}")
    I(f"v_rcp_f32 v{rU}, v{rU}")
    I(f"v_mul_f32 v{rTOT}, v{rTOT}, v{rU}")
    I(f"v_cvt_pk_bf16_f32 v{rU}, v{rTOT}, v{rTOT}")
    I(f"v_and_b32 v{rU}, 0xffff0000, v{rU}")
    I(f"v_add_f32 v{rU}, v{rU}, v{vB1}")
    I(f"v_cvt_pk_bf16_f32 v{rU}, v{rU}, v{rU}")
    I(f"v_and_b32 v{rU}, 0xffff0000, v{rU}")
    I(f"v_mul_f32 v{rT}, v{rU}, v{rU}")
    I(f"v_fma_f32 v{rT}, v{rT}, v{rC2}, v{rC1}")
    I(f"v_mul_f32 v{rT}, v{rT}, v{rU}")
    I(f"v_exp_f32 v{rT}, v{rT}")
    I(f"v_add_f32 v{rT}, 1.0, v{rT}")
    I(f"v_rcp_f32 v{rT}, v{rT}")
    I(f"v_mul_f32 v{rU}, v{rU}, v{rT}")
    pack_pairs(rU, T)
    I(f"v_mov_b32_dpp v{T+1}, v{T} quad_perm:[2,2,2,2] row_mask:0xf bank_mask:0xf")
    I(f"v_mov_b32_dpp v{T+2}, v{T} row_shl:4 row_mask:0xf bank_mask:0xf")
    I(f"v_mov_b32_dpp v{T+3}, v{T} row_shl:6 row_mask:0xf bank_mask:0xf")
    setexec(0x01010101, 0)
    lstore([f"buffer_store_dwordx4 {vr(T)}, v{vRP}, {WS}, s{sREG} offen"])
    setexec(0xFFFFFFFF, 0xFFFFFFFF)
    TS(22)
    I("s_branch L_next")

    a.label("L_W2")
    I(f"s_cmp_eq_u32 s{sIT}, 0")
    I("s_cbranch_scc0 L_W21")
    role_base()
    tr_addr(T + 47, 32, sT0)
    I("s_waitcnt vmcnt(0)")
    for ks in range(7):
        b = vRB + 4 * ks
        I(f"ds_read_b64_tr_b16 v[{b}:{b+1}], v{T+47} offset:{ks*1024}")
        I(f"ds_read_b64_tr_b16 v[{b+2}:{b+3}], v{T+47} offset:{ks*1024+128}")
    srd(TB, 50, 1280)
    I("s_waitcnt lgkmcnt(0)")
    TS(15)
    a.label("L_W21")
    for i in range(4):
        I(f"v_mov_b32 v{vFD+i}, 0")
    I(f"s_cmp_eq_u32 s{sX}, 0")
    I("s_cbranch_scc0 L_W22")
    I(f"s_sub_u32 s{sT0}, s{sR}, 27")
    I(f"s_lshl_b32 s{sT0}, s{sT0}, 8")
    I(f"s_lshl_b32 s{sT1}, s{sWAVE}, 5")
    I(f"s_add_u32 s{sT0}, s{sT0}, s{sT1}")
    I(f"v_lshrrev_b32 v{T+4}, 4, v{vLANE}")
    I(f"v_lshlrev_b32 v{T+4}, 3, v{T+4}")
    I(f"buffer_load_dwordx2 v[{T+2}:{T+3}], v{T+4}, {TB}, s{sT0} offen")
    I(f"s_add_u32 s{sT1}, s{sREG}, s{sNEAR}")
    poll([f"buffer_load_dwordx2 v[{T}:{T+1}], v{vA3}, {WS}, s{sT1} offen sc1"], [T, T + 1])
    unpack(vFD, vFD + 1, T)
    unpack(vFD + 2, vFD + 3, T + 1)
    for m in ("quad_perm:[1,0,3,2]", "quad_perm:[2,3,0,1]", "row_half_mirror"):
        for i in range(4):
            I(f"v_add_f32_dpp v{vFD+i}, v{vFD+i}, v{vFD+i} {m} row_mask:0xf bank_mask:0xf")
    I(f"v_cvt_pk_bf16_f32 v{T}, v{vFD}, v{vFD+1}")
    I(f"v_cvt_pk_bf16_f32 v{T+1}, v{vFD+2}, v{vFD+3}")
    unpack(vFD, vFD + 1, T)
    unpack(vFD + 2, vFD + 3, T + 1)
    unpack(T + 4, T + 5, T + 2)
    unpack(T + 6, T + 7, T + 3)
    I(f"v_pk_add_f32 v[{vFD}:{vFD+1}], v[{vFD}:{vFD+1}], v[{T+4}:{T+5}]")
    I(f"v_pk_add_f32 v[{vFD+2}:{vFD+3}], v[{vFD+2}:{vFD+3}], v[{T+6}:{T+7}]")
    a.label("L_W22")
    setexec(0x00010001, 0x00010001)
    poll([f"buffer_load_dwordx4 {vr(T+4*ks)}, v{vA0}, {WS}, s{sREG} offen offset:{ks*128} sc1" for ks in range(6)]
         + [f"buffer_load_dwordx4 {vr(T+24)}, v{vA1}, {WS}, s{sREG} offen sc1"], [T + 4 * ks for ks in range(7)],
         ex=(0x00010001, 0x00010001), simple=True)
    setexec(0xFFFFFFFF, 0xFFFFFFFF)
    TS(23)
    D2 = T + 28
    for ks in range(7):
        I(f"v_mfma_f32_16x16x32_bf16 {vr(D2)}, {vr(vRB+4*ks)}, {vr(T+4*ks)}, {vr(vFD) if ks == 0 else vr(D2)}")
    Y0 = T + 32
    if not y16:
        setexec(0x00010001, 0x00010001)
    I(f"v_cvt_pk_bf16_f32 v{Y0}, v{D2}, v{D2+1}")
    I(f"v_cvt_pk_bf16_f32 v{Y0+1}, v{D2+2}, v{D2+3}")
    I(f"v_min_u32 v{Y0}, 0xfffffffe, v{Y0}")
    I(f"v_min_u32 v{Y0+1}, 0xfffffffe, v{Y0+1}")
    if y16:
        I(f"v_permlane16_swap_b32 v{Y0}, v{Y0+2}")
        I(f"v_permlane16_swap_b32 v{Y0+1}, v{Y0+3}")
        setexec(1, 1)
        I(f"buffer_store_dwordx4 {vr(Y0)}, v{vA2}, {WS}, s{sREG} offen sc1")
    else:
        I(f"buffer_store_dwordx2 v[{Y0}:{Y0+1}], v{vA2}, {WS}, s{sREG} offen sc1")
        if dual:
            I(f"buffer_store_dwordx2 v[{Y0}:{Y0+1}], v{vA2}, {WS}, s{sREG2} offen sc1")
    setexec(0xFFFFFFFF, 0xFFFFFFFF)
    TS(24)

    a.label("L_next")
    I(f"s_add_u32 s{sIT}, s{sIT}, 1")
    I(f"s_add_u32 s{sREG}, s{sREG}, {RS}")
    I(f"s_add_u32 s{sREG2}, s{sREG2}, {RS}")
    I(f"s_cmp_lt_u32 s{sIT}, 2")
    I("s_cbranch_scc1 L_loop")
    I(f"s_cmp_eq_u32 s2, {LEAD_R * 8}")
    I("s_cbranch_scc0 L_fin")
    I(f"s_cmp_lt_u32 s{sWAVE}, 5")
    I("s_cbranch_scc1 L_loop")
    a.label("L_fin")
    if dbgt:
        srd(TA, 54, 256)
        I(f"v_add_u32 v{T}, 2, v{vLANE}")
        I(f"v_add_u32 v{T+1}, 4, v{vLANE}")
        I(f"v_cmp_gt_u32 vcc, 6, v{vLANE}")
        I(f"v_cndmask_b32 v{T}, v{T+1}, v{T}, vcc")
        I(f"v_lshlrev_b32 v{T}, 2, v{T}")
        setexec(0xFFF, 0)
        I(f"buffer_atomic_umax v{vTST}, v{T}, {TA}, 0 offen sc1")
        setexec(0xFFFFFFFF, 0xFFFFFFFF)
    if instr:
        TS(30)
        I(f"s_lshl_b32 s{sT0}, s2, 3")
        I(f"s_add_u32 s{sT0}, s{sT0}, s{sWAVE}")
        I(f"s_lshl_b32 s{sT0}, s{sT0}, 9")
        I(f"s_add_u32 s{sT0}, s{sT0}, {DBGOFF}")
        I(f"v_lshlrev_b32 v{T}, 3, v{vLANE}")
        I(f"buffer_store_dwordx2 v[{vTSI}:{vTST}], v{T}, {WS}, s{sT0} offen")
    a.label("L_end")
    I("s_endpgm")
    a.raw('.section .rodata,"a"\n.p2align 6')
    a.raw(f".amdhsa_kernel {KNAME}")
    a.raw("  .amdhsa_next_free_vgpr 256\n  .amdhsa_next_free_sgpr 102\n  .amdhsa_accum_offset 256\n"
          "  .amdhsa_group_segment_fixed_size 0\n  .amdhsa_kernarg_size 104\n  .amdhsa_user_sgpr_count 2\n"
          "  .amdhsa_user_sgpr_kernarg_segment_ptr 1\n  .amdhsa_system_sgpr_workgroup_id_x 1")
    a.raw(".end_amdhsa_kernel")
    open(fn, "w").write(a.text())
    return a.ninstr


if __name__ == "__main__":
    import argparse
    p = argparse.ArgumentParser()
    p.add_argument("-o", default="k.s")
    p.add_argument("--instr", action="store_true")
    p.add_argument("--kv", default="nt")
    p.add_argument("--w", default="")
    p.add_argument("--y16", action="store_true")
    p.add_argument("--nomask", action="store_true")
    p.add_argument("--nodual", action="store_true")
    p.add_argument("--n0", type=int, default=4)
    p.add_argument("--late", type=lambda x: int(x, 0), default=0x5f)
    p.add_argument("--r", default="")
    p.add_argument("--ncal", type=int, default=4)
    p.add_argument("--nw0", type=int, default=8)
    p.add_argument("--qk", type=int, default=16)
    p.add_argument("--qp", type=int, default=3)
    p.add_argument("--gate", type=int, default=4)
    p.add_argument("--dbgt", default=None)
    p.add_argument("--sp1", type=int, default=1)
    p.add_argument("--norot", action="store_true")
    p.add_argument("--syfl", default="")
    p.add_argument("--ts", default=None)
    p.add_argument("--noprio", action="store_true")
    args = p.parse_args()
    ts = None if args.ts is None else set(int(x) for x in args.ts.split(","))
    n = gen(args.o, instr=args.instr, kvflags=args.kv, wflags=args.w, y16=args.y16,
            masked_=not args.nomask, tsset=ts, n0=args.n0, late=args.late, rflags=args.r, ncal=args.ncal, dual=not args.nodual, prio=not args.noprio,
            nw0=args.nw0, qk=args.qk, rot=not args.norot, syfl=args.syfl, qp=args.qp, gate=args.gate, dbgt=[tuple(int(y) for y in x.split('.')) for x in args.dbgt.split(',')] if args.dbgt else None, sp1=args.sp1)
    print("instrs:", n)
```

```python
import sys, struct, math
from asmlib import Asm

KNAME = "interleave_layers__gqa_block_cached__mixer_channel_mlp__decode_kernel"

RS = 0x40000
POFF, ZOFF, YOFF, QOFF, HOFF, XOFF, MLOFF = 0x0, 0x10000, 0x18000, 0x30000, 0x22000, 0x24000, 0x28000
CALOFF = 0x80000
CP = 0x2000
ZR, ZX = 512, 64
DBGOFF = 0x100000
WS_SIZE = 0x200000
BIG = 0x40000000
PP = 544
L_PB1, L_PB2, L_CS1, L_CS2, L_QB, L_ML, L_FLAG, L_DUM, L_O, L_WQ, L_ROLE = (
    0, 2816, 7168, 7808, 8448, 8704, 8768, 8832, 10240, 18432, 38912)
LDS_TOTAL = 163840
L_RING, RSL = 38912, 30
LEAD_R = 0

def f2u(x):
    return struct.unpack("<I", struct.pack("<f", x))[0]

L2E = f2u(1.4426950408889634)
SCALE = f2u(128 ** -0.5)
GC1 = -2.0 * 1.4426950408889634 * math.sqrt(2.0 / math.pi)
GC2 = GC1 * 0.044715

sWAVE, sX, sR, sIT, sREG = 3, 4, 5, 6, 7
K_SRD, V_SRD, WS, TA, TB, OUTS = "s[8:11]", "s[12:15]", "s[16:19]", "s[20:23]", "s[24:27]", "s[28:31]"
sROLE, sPURE, sSPIN = 58, 59, 60
sT0, sT1, sT2, sT3, sSLOT = 61, 62, 63, 72, 73
sF = 64
sXCC, sTB, sNT, sTSI = 74, 75, 76, 77
sL2E, sM = 80, 81
sRB, sRSTEP, sRN = 82, 83, 84
sKV = 85
sNEAR, sREG2, sVOTE = 78, 79, 81
sLATE, sQS, sKM = 100, 101, 42
vLANE = 0
vGO, vXO, vPW, vSW, vQR, vOW, vMLW = 1, 2, 7, 8, 9, 10, 11
vPQ = 3
vA0, vA1, vA2, vA3 = 12, 13, 14, 15
vRDMA = 17
vTSI, vTST = 18, 19
vSEL = 20
vBQ = 28
vRB = 44
vFD = 72
T = 76
vK, vV = 128, 192
vRR, vQP, vQG, vCSQ, vCS1, vB1, vRP = 1, 2, 3, 4, 5, 6, 8
vXF = 72
vXFA = 16
vCR, vCML, vCP, vCPM, vQG7 = 1, 2, 3, 4, 5


def vr(a, n=4):
    return f"v[{a}:{a+n-1}]"


def gen(fn, instr=False, kvflags="nt", wflags="", rflags="", spin_limit=400000, tsset=None,
        y16=False, masked_=True, dbgt=False, n0=4, late=0x78, dual=True, prio=True, ncal=4, nw0=8, qk=16, rot=True,
        syfl='', qp=3, gate=4, sp1=1):
    assert not late & 0x80
    a = Asm()
    I = a.I
    a.raw(f"; @launch grid=(256,1,1) block=(512,1,1) lds={LDS_TOTAL}")
    a.raw('.amdgcn_target "amdgcn-amd-amdhsa--gfx950"')
    a.raw(".text")
    a.raw(f".globl {KNAME}\n.p2align 8\n.type {KNAME},@function\n{KNAME}:")

    def TS(k):
        if dbgt:
            for j, (kk, it, *mn) in enumerate(dbgt):
                if kk == k:
                    l = a.newlab("Ld")
                    I(f"s_cmp_eq_u32 s{sIT}, {it}")
                    I(f"s_cbranch_scc0 {l}")
                    I("s_memrealtime s[0:1]")
                    I("s_waitcnt lgkmcnt(0)")
                    if mn: I("s_not_b32 s0, s0")
                    I(f"v_writelane_b32 v{vTST}, s0, {j + 2}")
                    a.label(l)
            return
        if not instr or (tsset is not None and k not in tsset and k not in (0, 30)):
            return
        I("s_memrealtime s[0:1]")
        I("s_waitcnt lgkmcnt(0)")
        I(f"v_writelane_b32 v{vTSI}, {k}, s{sTSI}")
        I(f"s_mov_b32 m0, s{sTSI}")
        I(f"v_writelane_b32 v{vTST}, s0, m0")
        I(f"s_add_u32 s{sTSI}, s{sTSI}, 1")

    def srd(dst, ptr, size):
        d = int(dst[2:].split(":")[0])
        I(f"s_mov_b32 s{d}, s{ptr}")
        I(f"s_mov_b32 s{d+1}, s{ptr+1}")
        I(f"s_mov_b32 s{d+2}, {size:#x}")
        I(f"s_mov_b32 s{d+3}, 0x20000")

    def setexec(lo, hi):
        if lo == 0xFFFFFFFF and hi == 0xFFFFFFFF:
            I("s_mov_b64 exec, -1")
        else:
            I(f"s_mov_b32 exec_lo, {lo:#x}")
            I(f"s_mov_b32 exec_hi, {hi:#x}")

    def maxtree(tmp, rs):
        rs = list(rs)
        if len(rs) == 1:
            return rs[0]
        cur = None
        while rs:
            if cur is None:
                if len(rs) >= 3:
                    I(f"v_max3_u32 v{tmp}, v{rs[0]}, v{rs[1]}, v{rs[2]}"); rs = rs[3:]
                else:
                    I(f"v_max_u32 v{tmp}, v{rs[0]}, v{rs[1]}"); rs = rs[2:]
                cur = tmp
            elif len(rs) >= 2:
                I(f"v_max3_u32 v{tmp}, v{tmp}, v{rs[0]}, v{rs[1]}"); rs = rs[2:]
            else:
                I(f"v_max_u32 v{tmp}, v{tmp}, v{rs[0]}"); rs = rs[1:]
        return cur

    def poll(loads, regs, ex=(0xFFFFFFFF, 0xFFFFFFFF), groups=None, simple=False):
        lab = a.newlab("Lp"); done = a.newlab("Lpd")
        tmp = T + 50
        masked = masked_ and not simple
        if not masked:
            a.label(lab)
        for l in loads:
            I(l)
        if masked:
            a.label(lab)
        I(f"s_add_u32 s{sSPIN}, s{sSPIN}, 1")
        I("s_waitcnt vmcnt(0)")
        cur = maxtree(tmp, regs)
        I(f"v_cmp_eq_u32 vcc, -1, v{cur}")
        I(f"s_cbranch_vccz {done}")
        if masked:
            if groups is None or len(loads) == 1:
                I("s_mov_b64 exec, vcc")
                for l in loads:
                    I(l)
            else:
                for j, gr in enumerate(groups):
                    cur = maxtree(tmp + 1 - (j & 1), gr)
                    I(f"v_cmp_eq_u32 s[{86+2*j}:{87+2*j}], -1, v{cur}")
                for j, l in enumerate(loads):
                    I(f"s_mov_b64 exec, s[{86+2*j}:{87+2*j}]")
                    I(l)
            setexec(*ex)
        I(f"s_cmp_lt_u32 s{sSPIN}, {spin_limit}")
        I(f"s_cbranch_scc1 {lab}")
        if masked:
            I("s_waitcnt vmcnt(0)")
        a.label(done)

    def lstore(ins):
        l1 = a.newlab("Ls"); l2 = a.newlab("Lsd")
        I(f"s_cmp_eq_u32 s{sPURE}, 0")
        I(f"s_cbranch_scc1 {l1}")
        for x in ins: I(x)
        I(f"s_branch {l2}")
        a.label(l1)
        for x in ins: I(x + " sc1")
        a.label(l2)

    def unpack(lo, hi, src):
        I(f"v_lshlrev_b32 v{lo}, 16, v{src}")
        I(f"v_and_b32 v{hi}, 0xffff0000, v{src}")

    XA = T + 32
    ONES = T + 28

    I("s_cmp_ge_u32 s2, 256")
    I("s_cbranch_scc1 L_end")
    I("s_load_dwordx16 s[32:47], s[0:1], 0")
    I("s_load_dwordx8 s[48:55], s[0:1], 64")
    I("s_load_dwordx2 s[56:57], s[0:1], 96")
    if dbgt: I("s_memrealtime s[96:97]")
    I("v_lshrrev_b32 v1, 6, v0")
    I(f"v_and_b32 v{vLANE}, 63, v0")
    I(f"v_readfirstlane_b32 s{sWAVE}, v1")
    I(f"s_and_b32 s{sX}, s2, 7")
    I(f"s_lshr_b32 s{sR}, s2, 3")
    I(f"s_lshl_b32 s{sSLOT}, s{sX}, 5")
    I(f"s_add_u32 s{sSLOT}, s{sSLOT}, s{sR}")
    g, n, q4, c4, t0, t1, t2, t3 = T, T+1, T+2, T+3, T+4, T+5, T+6, T+7
    aK = T + 48
    vAT = T + 44
    I(f"v_lshrrev_b32 v{g}, 4, v{vLANE}")
    I(f"v_and_b32 v{n}, 15, v{vLANE}")
    I(f"v_bfe_u32 v{q4}, v{vLANE}, 2, 2")
    I(f"v_and_b32 v{c4}, 3, v{vLANE}")
    I(f"v_lshlrev_b32 v{aK}, 8, v{q4}")
    I(f"v_lshl_add_u32 v{aK}, v{g}, 6, v{aK}")
    I(f"v_lshl_add_u32 v{aK}, v{c4}, 4, v{aK}")
    I(f"v_lshlrev_b32 v{vXO}, 6, v{q4}")
    I(f"v_lshl_add_u32 v{vXO}, v{g}, 4, v{vXO}")
    I(f"s_lshl_b32 s{sT0}, s{sWAVE}, 8")
    I(f"v_add_u32 v{vXO}, s{sT0}, v{vXO}")
    I(f"s_lshl_b32 s{sKV}, s{sSLOT}, 17")
    I(f"s_lshl_b32 s{sT0}, s{sWAVE}, 14")
    I(f"s_add_u32 s{sKV}, s{sKV}, s{sT0}")
    I(f"s_lshr_b32 s{sQS}, s{sSLOT}, 3")
    I(f"s_lshl_b32 s{sQS}, s{sQS}, 11")
    I(f"s_and_b32 s{sT1}, s{sSLOT}, 3")
    I(f"s_lshl_b32 s{sT0}, s{sT1}, 9")
    I(f"s_add_u32 s{sQS}, s{sQS}, s{sT0}")
    I(f"s_and_b32 s{sT0}, s{sSLOT}, 4")
    I(f"s_lshl_b32 s{sT0}, s{sT0}, 6")
    I(f"s_add_u32 s{sQS}, s{sQS}, s{sT0}")
    I(f"s_add_u32 s{sQS}, s{sQS}, {QOFF}")
    vW0, vW1, ta0, ta1 = T + 44, T + 45, T + 42, T + 43
    XQ, ACC, BUF = 28, 48, 80
    sBa, sG, sRING, sSO, sMB, sRS_ = 86, 90, 91, 92, 93, 94
    I(f"s_and_b32 s{sT0}, s{sSLOT}, {7 if rot else 0}")
    I(f"s_sub_u32 s{sT1}, s{sT0}, 5")
    I(f"s_cmp_lt_u32 s{sT0}, 5")
    I(f"s_cselect_b32 s{sG}, s{sT0}, s{sT1}")
    I(f"s_cselect_b32 s{sT1}, 0, 2")
    I(f"s_lshl_b32 s{sG}, s{sG}, 20")
    I(f"s_lshr_b32 s{sT0}, s{sSLOT}, 3")
    I(f"s_lshl_b32 s{sT0}, s{sT0}, 8")
    I(f"s_lshl_b32 s{sT2}, s{sWAVE}, 6")
    I(f"s_add_u32 s{sT0}, s{sT0}, s{sT2}")
    I(f"s_lshl_b32 s{sT2}, s{sT1}, 18")
    I(f"s_add_u32 s{sBa}, s{sT0}, s{sT2}")
    I(f"s_add_u32 s{sBa+1}, s{sBa}, {1 << 18:#x}")
    I(f"s_xor_b32 s{sBa+2}, s{sBa}, {2 << 18:#x}")
    I(f"s_xor_b32 s{sBa+3}, s{sBa+1}, {2 << 18:#x}")
    I(f"s_mul_i32 s{sRING}, s{sWAVE}, {RSL * 1024}")
    I(f"s_add_u32 s{sRING}, s{sRING}, {L_RING}")
    I(f"v_xor_b32 v{t2}, s{sT1}, v{q4}")
    I(f"v_lshlrev_b32 v{t2}, 6, v{t2}")
    I(f"v_lshl_add_u32 v{t2}, v{g}, 4, v{t2}")
    I(f"v_lshrrev_b32 v{vW0}, 2, v{vLANE}")
    I(f"v_lshlrev_b32 v{vW0}, 13, v{vW0}")
    I(f"v_lshrrev_b32 v{t3}, 4, v{vLANE}")
    I(f"v_and_b32 v{t3}, 2, v{t3}")
    I(f"v_xor_b32 v{t3}, v{t3}, v{c4}")
    I(f"v_lshl_add_u32 v{vW0}, v{t3}, 4, v{vW0}")
    I(f"v_add_u32 v{vW1}, {1 << 17:#x}, v{vW0}")
    I(f"v_lshlrev_b32 v{t0}, 4, v{vLANE}")
    cl = T + 8
    for i in range(4):
        I(f"v_mov_b32 v{cl+i}, -1")
    I(f"s_mov_b32 s{sTSI}, 0")
    if instr:
        I(f"v_mov_b32 v{vTSI}, -1")
        I(f"v_mov_b32 v{vTST}, 0")
    I(f"s_getreg_b32 s{sXCC}, hwreg(HW_REG_XCC_ID)")
    I(f"s_and_b32 s{sXCC}, s{sXCC}, 15")
    I(f"s_lshl_b32 s{sT3}, s2, 11")
    I("s_waitcnt lgkmcnt(0)")
    srd(WS, 56, WS_SIZE)
    srd(K_SRD, 34, 32 << 20)
    if dbgt:
        I(f"v_mov_b32 v{vTST}, 0")
        I(f"v_writelane_b32 v{vTST}, s96, 1")
        I("s_not_b32 s96, s96")
        I(f"v_writelane_b32 v{vTST}, s96, 0")
        I(f"s_mov_b32 s{sIT}, 0")
        TS(40)
    srd(TA, 38, 640 * 8192)
    srd(TB, 32, 1280)

    def k_issue(lo, hi, hook=None):
        for ki in range(lo, hi):
            if hook: hook(ki)
            if ki % 4 == 0 or ki == lo:
                I(f"s_add_u32 s{sT0}, s{sKV}, {(ki//4)*4096}")
            I(f"buffer_load_dwordx4 {vr(vK+4*ki)}, v{aK}, {K_SRD}, s{sT0} offen offset:{(ki%4)*1024} {kvflags}")

    I(f"s_cmp_eq_u32 s{sWAVE}, 6")
    I("s_cbranch_scc0 L_nclr")
    I(f"buffer_store_dwordx4 {vr(cl)}, v{t0}, {WS}, s{sT3} offen sc1")
    I(f"buffer_store_dwordx4 {vr(cl)}, v{t0}, {WS}, s{sT3} offen offset:1024 sc1")
    TS(0)
    I("s_branch L_early")
    a.label("L_nclr")
    I(f"s_cmp_ge_u32 s{sWAVE}, 4")
    I("s_cbranch_scc1 L_nwq")
    if prio: I(f"s_setprio {qp}")
    nis = [0]
    def g_next():
        I(f"s_add_u32 s{sG}, s{sG}, {1 << 20:#x}")
        I(f"s_cmp_eq_u32 s{sG}, {5 << 20:#x}")
        I(f"s_cselect_b32 s{sG}, 0, s{sG}")
    def w_issue(lo, hi):
        for p in range(lo, hi):
            u, h = p >> 1, p & 1
            if h == 0 or p == lo:
                I(f"s_add_u32 s{sSO}, s{sBa + (u & 3)}, s{sG}")
            I(f"s_add_u32 m0, s{sRING}, {(p % RSL) * 1024}")
            I(f"buffer_load_dwordx4 v{(vW0, vW1)[h]}, {TA}, s{sSO} offen {wflags} lds")
            nis[0] += 1
            if p % 8 == 7:
                g_next()
    for j in range(5):
        I(f"s_lshr_b32 s{sSO}, s{sG}, 12")
        I(f"buffer_load_dwordx4 {vr(XQ+4*j)}, v{t2}, {TB}, s{sSO} offen")
        nis[0] += 1
        g_next()
    w_issue(0, nw0)
    TS(0)
    I("s_branch L_early")
    a.label("L_nwq")
    k_issue(0, n0)
    TS(0)
    a.label("L_early")
    srd(V_SRD, 36, 32 << 20)
    srd(OUTS, 52, 1280)
    I(f"s_mov_b32 s{sIT}, 0")
    I(f"s_mov_b32 s{sREG}, 0")
    I(f"s_mov_b32 s{sREG2}, {CP}")
    I(f"s_mov_b32 s{sSPIN}, 0")
    I(f"s_mov_b32 s{sPURE}, 0")
    I(f"s_mov_b32 s{sNEAR}, 0")
    I(f"s_mov_b32 s{sL2E}, {L2E:#x}")
    I(f"s_lshr_b32 s{sLATE}, {late:#x}, s{sWAVE}")
    I(f"s_and_b32 s{sLATE}, s{sLATE}, 1")
    I(f"s_mul_i32 s{sTB}, s{sX}, 7")
    I(f"s_cmp_eq_u32 s{sX}, 7")
    I(f"s_cselect_b32 s{sT0}, 1, 0")
    I(f"s_sub_u32 s{sTB}, s{sTB}, s{sT0}")
    I(f"s_cmp_lt_u32 s{sX}, 6")
    I(f"s_cselect_b32 s{sNT}, 7, 6")
    I(f"s_mov_b32 s{sROLE}, 2")
    I(f"s_cmp_lt_u32 s{sR}, 27")
    I(f"s_cselect_b32 s{sROLE}, 3, s{sROLE}")
    I(f"s_add_u32 s{sT0}, s{sNT}, 20")
    I(f"s_cmp_lt_u32 s{sR}, s{sT0}")
    I(f"s_cselect_b32 s{sROLE}, 1, s{sROLE}")
    I(f"s_cmp_lt_u32 s{sR}, 20")
    I(f"s_cselect_b32 s{sROLE}, 0, s{sROLE}")
    I(f"s_cselect_b32 s{sLATE}, s{sLATE}, 0")
    for i in [1] + list(range(3, 18)):
        I(f"v_mov_b32 v{i}, {BIG:#x}")

    def v_issue():
        k1, k2, k3 = T + 49, T + 50, T + 51
        I(f"v_lshrrev_b32 v{k1}, 4, v{vLANE}")
        I(f"v_bfe_u32 v{k3}, v{vLANE}, 3, 1")
        I(f"v_lshl_add_u32 v{k3}, v{k3}, 3, v{k1}")
        I(f"v_lshlrev_b32 v{k3}, 8, v{k3}")
        I(f"v_and_b32 v{k2}, 7, v{vLANE}")
        I(f"v_lshl_add_u32 v{k3}, v{k2}, 4, v{k3}")
        for j in range(16):
            if j % 4 == 0:
                I(f"s_add_u32 s{sT0}, s{sKV}, {(j//4)*4096}")
            u, hf = (j >> 1) & 1, j & 1
            I(f"buffer_load_dwordx4 {vr(vV+4*j)}, v{k3}, {V_SRD}, s{sT0} offen offset:{u*1024+hf*128} {kvflags}")

    def role_dma():
        I(f"s_lshl_b32 s{sT1}, s{sWAVE}, 13")
        I(f"s_add_u32 s{sT1}, s{sT1}, {L_ROLE}")
        I(f"s_mov_b32 s{sT0}, s{sRB}")
        for e in range(8):
            if e % 4 == 0:
                I(f"s_mov_b32 m0, s{sT1}")
                if e == 0:
                    I(f"s_add_u32 s{sT1}, s{sT1}, 4096")
            I(f"s_cmp_gt_u32 s{sRN}, {e}")
            I(f"s_cselect_b32 s{sT2}, s{sT0}, {BIG:#x}")
            I(f"buffer_load_dwordx4 v{vRDMA}, {TB}, s{sT2} offen offset:{(e%4)*1024} {rflags} lds")
            if e < 7:
                I(f"s_add_u32 s{sT0}, s{sT0}, s{sRSTEP}")
                if e % 4 == 3:
                    I(f"s_add_u32 s{sT0}, s{sT0}, 3072")
                else:
                    I(f"s_sub_u32 s{sT0}, s{sT0}, 1024")

    def rank_off(dst, rk, tmp):
        I(f"s_and_b32 s{tmp}, s{rk}, 15")
        I(f"s_mul_i32 s{tmp}, s{tmp}, {ZR}")
        I(f"s_lshr_b32 s{dst}, s{rk}, 4")
        I(f"s_lshl_b32 s{dst}, s{dst}, 14")
        I(f"s_add_u32 s{dst}, s{dst}, s{tmp}")

    I(f"s_cmp_ge_u32 s{sWAVE}, 5")
    I("s_cbranch_scc1 L_init567")
    I(f"v_bfe_u32 v{t0}, v{vLANE}, 3, 1")
    I(f"v_and_b32 v{t1}, 7, v{vLANE}")
    I(f"s_lshl_b32 s{sT1}, s{sWAVE}, 2")
    rank_off(sT0, sT1, sT2)
    I(f"v_mul_u32_u24 v{vGO}, {ZR}, v{t0}")
    I(f"v_mul_u32_u24 v{t1}, {ZX}, v{t1}")
    I(f"v_add3_u32 v{vGO}, v{vGO}, v{t1}, s{sT0}")
    I(f"v_lshl_add_u32 v{vGO}, v{g}, 4, v{vGO}")
    I(f"s_mul_i32 s{sT0}, s{sWAVE}, {PP}")
    I(f"s_add_u32 s{sT0}, s{sT0}, {L_PB1 + 512}")
    I(f"v_lshlrev_b32 v{t2}, 2, v{g}")
    I(f"v_add_u32 v{t2}, s{sT0}, v{t2}")
    I(f"v_lshlrev_b32 v{t3}, 2, v{vLANE}")
    I(f"v_add_u32 v{t3}, {L_DUM}, v{t3}")
    I(f"v_cmp_eq_u32 vcc, v{q4}, v{g}")
    I(f"v_cndmask_b32 v{vSW}, v{t3}, v{t2}, vcc")
    I(f"s_mul_i32 s{sT0}, s{sWAVE}, {PP}")
    I(f"v_lshlrev_b32 v{vPQ}, 4, v{g}")
    I(f"v_add_u32 v{vPQ}, s{sT0}, v{vPQ}")
    I(f"s_and_b32 s{sT0}, s{sSLOT}, 3")
    I(f"s_lshl_b32 s{sT0}, s{sT0}, 2")
    I(f"s_lshl_b32 s{sKM}, 0x00010001, s{sT0}")
    I(f"s_mov_b32 s{sKM+1}, s{sKM}")
    I("s_branch L_initc")

    a.label("L_init567")
    I(f"s_cmp_eq_u32 s{sWAVE}, 6")
    I("s_cbranch_scc1 L_initc")
    I(f"s_cmp_eq_u32 s{sWAVE}, 7")
    I("s_cbranch_scc1 L_init7")
    rank_off(sT0, sR, sT1)
    I(f"s_mul_i32 s{sT1}, s{sX}, {ZX}")
    I(f"s_add_u32 s{sT0}, s{sT0}, s{sT1}")
    I(f"s_add_u32 s{sRB}, s{sT0}, {ZOFF}")
    I(f"s_lshl_b32 s{sT0}, s{sX}, 3")
    I(f"s_add_u32 s{sT0}, s{sT0}, s{sR}")
    I(f"s_sub_u32 s{sT0}, s{sT0}, 20")
    I(f"s_lshl_b32 s{sT0}, s{sT0}, 7")
    I(f"s_add_u32 s{sT0}, s{sT0}, {HOFF}")
    I(f"s_cmp_eq_u32 s{sROLE}, 1")
    I(f"s_cselect_b32 s{sRB}, s{sT0}, s{sRB}")
    I(f"v_lshlrev_b32 v{vRR}, 4, v{vLANE}")
    I(f"v_lshlrev_b32 v{vQP}, 2, v{vLANE}")
    I(f"v_add_u32 v{vQP}, s{sQS}, v{vQP}")
    I(f"s_and_b32 s{sT0}, s{sQS}, {~2047 & 0xffffffff:#x}")
    I(f"v_lshlrev_b32 v{vQG}, 3, v{vLANE}")
    I(f"v_add_u32 v{vQG}, s{sT0}, v{vQG}")
    I(f"v_mov_b32 v{t0}, 0")
    I(f"v_mov_b32 v{t1}, 0")
    I(f"v_mov_b32 v{t2}, {L_FLAG}")
    I(f"ds_write_b64 v{t2}, v[{t0}:{t1}] offset:8")
    I(f"v_and_b32 v{t2}, 31, v{vLANE}")
    I(f"v_lshlrev_b32 v{t2}, 1, v{t2}")
    srd(TA, 46, 1728 * 2)
    I(f"s_add_u32 s{sT0}, s{sTB}, s{sR}")
    I(f"s_sub_u32 s{sT0}, s{sT0}, 20")
    I(f"s_lshl_b32 s{sT0}, s{sT0}, 6")
    I(f"s_cmp_eq_u32 s{sROLE}, 1")
    I(f"s_cselect_b32 s{sT0}, s{sT0}, {BIG:#x}")
    I(f"s_or_b32 s{sT2}, s{sROLE}, s{sX}")
    I(f"s_lshl_b32 s{sT1}, s{sR}, 6")
    I(f"s_cmp_eq_u32 s{sT2}, 0")
    I(f"s_cselect_b32 s{sT1}, s{sT1}, {BIG:#x}")
    I(f"buffer_load_ushort v{vB1}, v{t2}, {TA}, s{sT0} offen")
    I(f"buffer_load_ushort v{vXF}, v{t2}, {TB}, s{sT1} offen")
    I(f"v_lshrrev_b32 v{t1}, 3, v{vLANE}")
    I(f"v_lshlrev_b32 v{t1}, 4, v{t1}")
    I(f"v_add_u32 v{vRP}, s{sRB}, v{t1}")
    I(f"v_and_b32 v{t1}, 31, v{vLANE}")
    I(f"v_lshlrev_b32 v{t1}, 1, v{t1}")
    I(f"s_or_b32 s{sT2}, s{sROLE}, s{sX}")
    I(f"s_lshl_b32 s{sT1}, s{sR}, 6")
    I(f"s_add_u32 s{sT1}, s{sT1}, {XOFF}")
    I(f"s_cmp_eq_u32 s{sT2}, 0")
    I(f"s_cselect_b32 s{sT1}, s{sT1}, {BIG:#x}")
    I(f"v_add_u32 v{vXFA}, s{sT1}, v{t1}")
    I("s_branch L_initc")

    a.label("L_init7")
    I(f"v_lshlrev_b32 v{vCR}, 3, v{vLANE}")
    I(f"v_add_u32 v{vCR}, {L_O}, v{vCR}")
    I(f"v_and_b32 v{t0}, 7, v{vLANE}")
    I(f"v_lshlrev_b32 v{vCML}, 3, v{t0}")
    I(f"v_add_u32 v{vCML}, {L_ML}, v{vCML}")
    I(f"s_lshr_b32 s{sT0}, s{sSLOT}, 3")
    I(f"s_lshl_b32 s{sT1}, s{sT0}, 11")
    I(f"s_and_b32 s{sT2}, s{sSLOT}, 7")
    I(f"s_lshl_b32 s{sT3}, s{sT2}, 4")
    I(f"s_add_u32 s{sT1}, s{sT1}, s{sT3}")
    I(f"v_lshrrev_b32 v{t0}, 5, v{vLANE}")
    I(f"v_lshlrev_b32 v{vCP}, 10, v{t0}")
    I(f"v_lshl_add_u32 v{vCP}, v{q4}, 8, v{vCP}")
    I(f"v_and_b32 v{t0}, 1, v{g}")
    I(f"v_lshl_add_u32 v{vCP}, v{t0}, 7, v{vCP}")
    I(f"v_lshl_add_u32 v{vCP}, v{c4}, 2, v{vCP}")
    I(f"v_add_u32 v{vCP}, s{sT1}, v{vCP}")
    I(f"s_lshl_b32 s{sT0}, s{sT0}, 7")
    I(f"s_lshl_b32 s{sT2}, s{sT2}, 3")
    I(f"s_add_u32 s{sT0}, s{sT0}, s{sT2}")
    I(f"s_add_u32 s{sT0}, s{sT0}, {MLOFF}")
    I(f"v_mov_b32 v{vCPM}, s{sT0}")
    I(f"s_and_b32 s{sT0}, s{sQS}, {~2047 & 0xffffffff:#x}")
    I(f"v_lshlrev_b32 v{vQG7}, 3, v{vLANE}")
    I(f"v_add_u32 v{vQG7}, s{sT0}, v{vQG7}")

    a.label("L_initc")
    I(f"s_mov_b32 s{sRN}, 0")
    I(f"s_mov_b32 s{sRB}, 0")
    I(f"s_mov_b32 s{sRSTEP}, 0")
    srd(TB, 40, 4096 * 1280)
    I(f"v_lshrrev_b32 v{t0}, 2, v{vLANE}")
    I(f"v_lshlrev_b32 v{t1}, 4, v{c4}")
    I(f"s_cmp_eq_u32 s{sROLE}, 0")
    I("s_cbranch_scc0 L_rp1")
    I(f"s_lshl_b32 s{sT0}, s{sX}, 3")
    I(f"s_add_u32 s{sT0}, s{sT0}, s{sWAVE}")
    I(f"s_mul_i32 s{sT0}, s{sT0}, {64*1280}")
    I(f"s_lshl_b32 s{sT1}, s{sR}, 6")
    I(f"s_add_u32 s{sRB}, s{sT0}, s{sT1}")
    I(f"s_mov_b32 s{sRSTEP}, {16*1280}")
    I(f"s_mov_b32 s{sRN}, 4")
    I(f"v_mul_u32_u24 v{vRDMA}, 1280, v{t0}")
    I(f"v_add_u32 v{vRDMA}, v{vRDMA}, v{t1}")
    I(f"s_lshr_b32 s{sT0}, s{sWAVE}, 1")
    I(f"s_lshl_b32 s{sT1}, s{sX}, 2")
    I(f"s_add_u32 s{sT0}, s{sT0}, s{sT1}")
    I(f"s_lshl_b32 s{sT1}, s{sX}, 3")
    I(f"s_add_u32 s{sT1}, s{sT1}, s{sWAVE}")
    I(f"s_lshl_b32 s{sT1}, s{sT1}, 10")
    I(f"v_lshlrev_b32 v{t2}, 4, v{vLANE}")
    I(f"v_add_u32 v{vA0}, s{sT1}, v{t2}")
    I(f"v_xor_b32 v{t2}, v{g}, v{q4}")
    I(f"v_and_b32 v{t2}, 1, v{t2}")
    I(f"v_lshl_add_u32 v{t2}, v{t2}, 2, v{c4}")
    I(f"v_lshlrev_b32 v{t2}, 3, v{t2}")
    I(f"s_lshl_b32 s{sT0}, s{sT0}, 7")
    I(f"s_add_u32 s{sT0}, s{sT0}, {MLOFF}")
    I(f"v_add_u32 v{vA2}, s{sT0}, v{t2}")
    I("s_branch L_rpd")
    a.label("L_rp1")
    I(f"s_cmp_eq_u32 s{sROLE}, 1")
    I("s_cbranch_scc0 L_rp2")
    srd(TB, 44, 640 * 3456)
    I(f"s_mul_i32 s{sT0}, s{sWAVE}, {128*3456}")
    I(f"s_add_u32 s{sT1}, s{sTB}, s{sR}")
    I(f"s_sub_u32 s{sT1}, s{sT1}, 20")
    I(f"s_lshl_b32 s{sT1}, s{sT1}, 6")
    I(f"s_add_u32 s{sRB}, s{sT0}, s{sT1}")
    I(f"s_mov_b32 s{sRSTEP}, {16*3456}")
    I(f"s_cmp_lt_u32 s{sWAVE}, 5")
    I(f"s_cselect_b32 s{sRN}, 8, 0")
    I(f"v_mul_u32_u24 v{vRDMA}, 3456, v{t0}")
    I(f"v_add_u32 v{vRDMA}, v{vRDMA}, v{t1}")
    I("s_branch L_rpd")
    a.label("L_rp2")
    I(f"v_mov_b32 v{vRDMA}, 0")
    I(f"s_cmp_eq_u32 s{sROLE}, 2")
    I("s_cbranch_scc0 L_rpd")
    srd(TB, 48, 1728 * 1280)
    I(f"s_mul_i32 s{sT0}, s{sTB}, {32*1280}")
    I(f"s_sub_u32 s{sT2}, s{sR}, 27")
    I(f"s_lshl_b32 s{sT1}, s{sT2}, 8")
    I(f"s_add_u32 s{sT0}, s{sT0}, s{sT1}")
    I(f"s_lshl_b32 s{sT1}, s{sWAVE}, 5")
    I(f"s_add_u32 s{sRB}, s{sT0}, s{sT1}")
    I(f"s_mov_b32 s{sRSTEP}, {32*1280}")
    I(f"s_mov_b32 s{sRN}, 7")
    I(f"v_lshrrev_b32 v{t0}, 1, v{vLANE}")
    I(f"v_mul_u32_u24 v{vRDMA}, 1280, v{t0}")
    I(f"v_and_b32 v{t1}, 1, v{vLANE}")
    I(f"v_lshl_add_u32 v{vRDMA}, v{t1}, 4, v{vRDMA}")
    I(f"s_lshl_b32 s{sT0}, s{sX}, 10")
    I(f"s_add_u32 s{sT0}, s{sT0}, {HOFF}")
    I(f"v_lshlrev_b32 v{t0}, 4, v{g}")
    I(f"v_add_u32 v{vA0}, s{sT0}, v{t0}")
    I(f"s_mov_b32 s{sT1}, 768")
    I(f"s_cmp_eq_u32 s{sNT}, 7")
    I(f"s_cselect_b32 s{sT1}, s{sT1}, {BIG:#x}")
    I(f"v_add_u32 v{vA1}, s{sT1}, v{vA0}")
    I(f"s_lshl_b32 s{sT0}, s{sT2}, 2")
    I(f"s_lshr_b32 s{sT1}, s{sWAVE}, 1")
    I(f"s_add_u32 s{sT1}, s{sT0}, s{sT1}")
    rank_off(sT0, sT1, sT3)
    I(f"s_and_b32 s{sT1}, s{sWAVE}, 1")
    I(f"s_lshl_b32 s{sT1}, s{sT1}, 5")
    I(f"s_add_u32 s{sT0}, s{sT0}, s{sT1}")
    I(f"v_lshlrev_b32 v{t0}, 3, v{g}")
    I(f"v_add_u32 v{t0}, s{sT0}, v{t0}")
    I(f"s_mul_i32 s{sT1}, s{sX}, {ZX}")
    I(f"s_add_u32 s{sT1}, s{sT1}, {YOFF}")
    I(f"v_add_u32 v{vA2}, s{sT1}, v{t0}")
    I(f"v_mul_u32_u24 v{t1}, {ZX}, v{n}")
    I(f"v_add_u32 v{t1}, v{t1}, v{t0}")
    I(f"v_add_u32 v{t1}, {ZOFF}, v{t1}")
    I(f"s_cmp_eq_u32 s{sX}, 0")
    I(f"s_cselect_b32 s{sT0}, 8, 0")
    I(f"v_mov_b32 v{t2}, {BIG:#x}")
    I(f"v_cmp_gt_u32 vcc, s{sT0}, v{n}")
    I(f"v_cndmask_b32 v{vA3}, v{t2}, v{t1}, vcc")
    a.label("L_rpd")

    I(f"s_mul_i32 s{sT0}, s{sWAVE}, {PP}")
    I(f"v_lshlrev_b32 v{vPW}, 4, v{n}")
    I(f"v_lshl_add_u32 v{vPW}, v{g}, 2, v{vPW}")
    I(f"v_add_u32 v{vPW}, s{sT0}, v{vPW}")
    I(f"v_lshl_add_u32 v{vQR}, v{g}, 2, v{c4}")
    I(f"v_lshlrev_b32 v{vQR}, 4, v{vQR}")
    I(f"v_add_u32 v{vQR}, {L_QB}, v{vQR}")
    I(f"s_lshl_b32 s{sT0}, s{sWAVE}, 10")
    I(f"s_add_u32 s{sT0}, s{sT0}, {L_O}")
    I(f"v_bfe_u32 v{t0}, v{vLANE}, 3, 1")
    I(f"v_lshlrev_b32 v{vOW}, 9, v{t0}")
    I(f"v_and_b32 v{t0}, 7, v{vLANE}")
    I(f"v_lshl_add_u32 v{vOW}, v{t0}, 5, v{vOW}")
    I(f"v_and_b32 v{t1}, 1, v{g}")
    I(f"v_lshl_add_u32 v{vOW}, v{t1}, 4, v{vOW}")
    I(f"v_add_u32 v{vOW}, s{sT0}, v{vOW}")
    I(f"s_lshl_b32 s{sT0}, s{sWAVE}, 3")
    I(f"s_add_u32 s{sT0}, s{sT0}, {L_ML}")
    I(f"v_lshlrev_b32 v{vMLW}, 3, v{vLANE}")
    I(f"v_add_u32 v{vMLW}, {L_DUM}, v{vMLW}")
    I(f"v_writelane_b32 v{vMLW}, s{sT0}, 63")
    for u in range(2):
        for r in range(4):
            sb = 0x0100 if u == (r >> 1) else 0x0302
            d = vSEL + u * 4 + r
            I(f"v_mov_b32 v{d}, 0x0c0c0c0c")
            I(f"v_mov_b32 v{t1}, {0x0c0c0000 | sb:#x}")
            I(f"v_mov_b32 v{t2}, {(sb << 16) | 0x0c0c:#x}")
            I(f"v_cmp_eq_u32 vcc, {2*r}, v{t0}")
            I(f"v_cndmask_b32 v{d}, v{d}, v{t1}, vcc")
            I(f"v_cmp_eq_u32 vcc, {2*r+1}, v{t0}")
            I(f"v_cndmask_b32 v{d}, v{d}, v{t2}, vcc")

    def tr_addr(dst, pitch, base_s, x0=T + 48):
        x1 = x0 + 1
        I(f"v_lshrrev_b32 v{x0}, 4, v{vLANE}")
        I(f"v_bfe_u32 v{x1}, v{vLANE}, 2, 2")
        I(f"v_lshl_add_u32 v{x0}, v{x0}, 3, v{x1}")
        I(f"v_lshlrev_b32 v{x0}, {pitch.bit_length()-1}, v{x0}")
        I(f"v_and_b32 v{x1}, 3, v{vLANE}")
        I(f"v_lshl_add_u32 v{x0}, v{x1}, 3, v{x0}")
        I(f"v_add_u32 v{dst}, s{base_s}, v{x0}")

    def ones():
        for i in range(4):
            I(f"v_mov_b32 v{ONES+i}, 0x3f803f80")

    def gemv(ntile, Bbase, bidx):
        S1, S2 = T + 16, T + 20
        A0_, A1_ = vr(XA), vr(XA + 4)
        I(f"v_mfma_f32_16x16x32_bf16 {vr(S2)}, {A0_}, {A0_}, 0")
        I(f"v_mfma_f32_16x16x32_bf16 {vr(S2)}, {A1_}, {A1_}, {vr(S2)}")
        I(f"v_mfma_f32_16x16x32_bf16 {vr(S1)}, {A0_}, {vr(ONES)}, 0")
        I(f"v_mfma_f32_16x16x32_bf16 {vr(S1)}, {A1_}, {vr(ONES)}, {vr(S1)}")
        post = [
            f"v_pk_add_f32 v[{S2}:{S2+1}], v[{S2}:{S2+1}], v[{S2+2}:{S2+3}]",
            f"v_add_f32 v{S2}, v{S2}, v{S2+1}",
            f"v_add_f32_dpp v{S2}, v{S2}, v{S2} quad_perm:[1,0,3,2] row_mask:0xf bank_mask:0xf",
            f"v_pk_add_f32 v[{S1}:{S1+1}], v[{S1}:{S1+1}], v[{S1+2}:{S1+3}]",
            f"v_add_f32_dpp v{S2}, v{S2}, v{S2} quad_perm:[2,3,0,1] row_mask:0xf bank_mask:0xf",
            f"v_add_f32 v{S1}, v{S1}, v{S1+1}",
            f"v_add_f32_dpp v{S2}, v{S2}, v{S2} row_half_mirror row_mask:0xf bank_mask:0xf",
            f"ds_write2_b32 v{vSW}, v{S1}, v{S2} offset0:0 offset1:4",
        ]
        def dpost(t):
            D = T + 8 * t
            return [f"v_pk_add_f32 v[{D}:{D+1}], v[{D}:{D+1}], v[{D+2}:{D+3}]",
                    f"v_pk_add_f32 v[{D+4}:{D+5}], v[{D+4}:{D+5}], v[{D+6}:{D+7}]",
                    f"v_add_f32 v{D}, v{D}, v{D+1}",
                    f"v_add_f32_dpp v{D}, v{D+4}, v{D+5} quad_perm:[0,1,2,3] row_mask:0xc bank_mask:0xf",
                    f"ds_write_b32 v{vPW}, v{D} offset:{L_PB1 + t*256}"]
        for t in range(ntile):
            post += dpost(t)
        k = 0
        for t in range(ntile):
            for j in range(2):
                D = T + 8 * t + 4 * j
                for h in range(2):
                    I(f"v_mfma_f32_16x16x32_bf16 {vr(D)}, {(A0_, A1_)[h]}, {vr(Bbase+4*bidx(2*h+j,t))}, {vr(D) if h else '0'}")
                    k += 1
                    if k >= 5 and k < 4 * ntile:
                        for x in post[:2]: I(x)
                        post = post[2:]
        for x in post: I(x)
        I("s_waitcnt lgkmcnt(0)")

    def gemv_q(first=False):
        S1, S2 = T + 16, T + 20
        for t in range(4):
            I(f"v_mfma_f32_16x16x32_bf16 {vr(T+4*t)}, {vr(vBQ+4*t)}, {vr(XA)}, 0")
        I(f"v_mfma_f32_16x16x32_bf16 {vr(S1)}, {vr(XA)}, {vr(ONES)}, 0")
        I(f"v_mfma_f32_16x16x32_bf16 {vr(S2)}, {vr(XA)}, {vr(XA)}, 0")
        if first:
            for t in range(4):
                I(f"v_mfma_f32_16x16x32_bf16 {vr(vRB+4*t)}, {vr(vBQ+4*t)}, {vr(ONES)}, 0")
        I(f"s_mov_b64 exec, s[{sKM}:{sKM+1}]")
        for t in range(4):
            I(f"ds_write_b128 v{vPQ}, {vr(T+4*t)} offset:{L_PB1 + t*64}")
        if first:
            for t in range(4):
                I(f"ds_write_b128 v{vPQ}, {vr(vRB+4*t)} offset:{L_PB1 + 256 + t*64}")
        I("s_mov_b64 exec, -1")
        I(f"ds_write2_b32 v{vSW}, v{S1}, v{S2} offset0:0 offset1:4")
        I("s_waitcnt lgkmcnt(0)")

    def gather(sreg):
        poll([f"buffer_load_dwordx4 {vr(XA)}, v{vGO}, {WS}, s{sreg} offen sc1",
              f"buffer_load_dwordx4 {vr(XA+4)}, v{vGO}, {WS}, s{sreg} offen offset:{2*ZR} sc1"],
             [XA, XA + 4], groups=[[XA], [XA + 4]])

    def reduce_read(nw, base):
        for v in range(nw):
            I(f"ds_read_b128 {vr(T+4*v)}, v{vRR} offset:{base + v*PP}")

    def reduce_sum(nw, dst):
        np_ = 2 * nw
        idx = list(range(np_))
        while len(idx) > 1:
            nx = []
            for i in range(0, len(idx) - 1, 2):
                d, s = idx[i], idx[i + 1]
                I(f"v_pk_add_f32 v[{T+2*d}:{T+2*d+1}], v[{T+2*d}:{T+2*d+1}], v[{T+2*s}:{T+2*s+1}]")
                nx.append(d)
            if len(idx) % 2:
                nx.append(idx[-1])
            idx = nx
        I(f"v_add_f32 v{dst}, v{T}, v{T+1}")

    rTOT, rMEAN, rVAR, rMB, rSD, rR, rU, rT, rINV, rC1, rC2, rCS = [T + 32 + i for i in range(12)]

    def cs_read(area, dst):
        l = a.newlab("Lcs")
        I(f"s_cmp_eq_u32 s{sIT}, 0")
        I(f"s_cbranch_scc0 {l}")
        I(f"v_lshrrev_b32 v{rT}, 2, v{vRR}")
        for v in range(5):
            I(f"ds_read_b32 v{T+24+v}, v{rT} offset:{area + v*128}")
        I("s_waitcnt lgkmcnt(0)")
        I(f"v_add_f32 v{dst}, v{T+24}, v{T+25}")
        I(f"v_add_f32 v{rT}, v{T+26}, v{T+27}")
        I(f"v_add_f32 v{dst}, v{dst}, v{T+28}")
        I(f"v_add_f32 v{dst}, v{dst}, v{rT}")
        a.label(l)

    def stats(l0=32):
        if l0 is not None:
            I(f"v_readlane_b32 s{sT0}, v{rTOT}, {l0}")
            I(f"v_readlane_b32 s{sT1}, v{rTOT}, {l0+1}")
            I(f"v_mul_f32 v{rMEAN}, s{sT0}, v{rINV}")
            I(f"v_mul_f32 v{rVAR}, s{sT1}, v{rINV}")
        I(f"v_fma_f32 v{rVAR}, -v{rMEAN}, v{rMEAN}, v{rVAR}")
        I(f"v_max_f32 v{rVAR}, 0, v{rVAR}")
        I(f"v_cvt_pk_bf16_f32 v{rT}, v{rMEAN}, v{rVAR}")
        I(f"v_and_b32 v{rU}, 0xffff0000, v{rT}")
        I(f"v_lshlrev_b32 v{rMB}, 16, v{rT}")
        I(f"v_add_f32 v{rU}, {f2u(1e-5):#x}, v{rU}")
        I(f"v_cvt_pk_bf16_f32 v{rU}, v{rU}, v{rU}")
        I(f"v_and_b32 v{rU}, 0xffff0000, v{rU}")
        I(f"v_sqrt_f32 v{rU}, v{rU}")
        I(f"v_cvt_pk_bf16_f32 v{rU}, v{rU}, v{rU}")
        I(f"v_and_b32 v{rSD}, 0xffff0000, v{rU}")
        I(f"v_rcp_f32 v{rR}, v{rSD}")

    def pack_pairs(src, dst):
        I(f"v_mov_b32_dpp v{rT}, v{src} quad_perm:[1,0,3,2] row_mask:0xf bank_mask:0xf")
        I(f"v_cvt_pk_bf16_f32 v{dst}, v{src}, v{rT}")
        I(f"v_min_u32 v{dst}, 0xfffffffe, v{dst}")

    def q_reduce(first=False):
        qa, qs, QS = T + 44, T + 45, T + 20
        I(f"v_lshlrev_b32 v{qa}, 2, v{vLANE}")
        I(f"v_and_b32 v{qs}, 1, v{vLANE}")
        I(f"v_lshlrev_b32 v{qs}, 4, v{qs}")
        return qa, qs, QS

    def q_reduce2(qa, qs, QS, first=False):
        for v in range(5):
            I(f"ds_read_b128 {vr(T+4*v)}, v{qs} offset:{L_PB1 + 512 + v*PP}")
        for v in range(5):
            I(f"ds_read_b32 v{QS+v}, v{qa} offset:{L_PB1 + v*PP}")
        if first:
            for v in range(5):
                I(f"ds_read_b32 v{QS+5+v}, v{qa} offset:{L_WQ + v*4096}")
        I(f"s_waitcnt lgkmcnt({10 if first else 5})")
        reduce_sum(5, rTOT)
        stats(0)
        I("s_waitcnt lgkmcnt(0)")
        I(f"v_add_f32 v{QS}, v{QS}, v{QS+1}")
        I(f"v_add_f32 v{QS+2}, v{QS+2}, v{QS+3}")
        I(f"v_add_f32 v{QS}, v{QS}, v{QS+4}")
        I(f"v_add_f32 v{QS}, v{QS}, v{QS+2}")
        if first:
            I(f"v_add_f32 v{vCSQ}, v{QS+5}, v{QS+6}")
            I(f"v_add_f32 v{QS+7}, v{QS+7}, v{QS+8}")
            I(f"v_add_f32 v{vCSQ}, v{vCSQ}, v{QS+9}")
            I(f"v_add_f32 v{vCSQ}, v{vCSQ}, v{QS+7}")
        I(f"v_fma_f32 v{rU}, -v{rMB}, v{vCSQ}, v{QS}")
        I(f"v_mul_f32 v{rU}, v{rU}, v{rR}")
        I(f"v_min_u32 v{rU}, 0xfffffffe, v{rU}")

    def q_gather(va, qa):
        poll([f"buffer_load_dwordx2 v[{T+2*k}:{T+2*k+1}], v{va}, {WS}, s{sREG} offen offset:{k*512} sc1" for k in range(4)],
             list(range(T, T + 8)), groups=[[T + 2 * k, T + 2 * k + 1] for k in range(4)])
        I(f"v_pk_add_f32 v[{T}:{T+1}], v[{T}:{T+1}], v[{T+2}:{T+3}]")
        I(f"v_pk_add_f32 v[{T+4}:{T+5}], v[{T+4}:{T+5}], v[{T+6}:{T+7}]")
        I(f"v_pk_add_f32 v[{T}:{T+1}], v[{T}:{T+1}], v[{T+4}:{T+5}]")
        I(f"v_cvt_pk_bf16_f32 v{T}, v{T}, v{T+1}")
        I(f"ds_write_b32 v{qa}, v{T} offset:{L_QB}")

    def lds_wait(off, val, ge=False):
        lab = a.newlab("Lw"); done = a.newlab("Lwd")
        I(f"v_mov_b32 v{T+47}, {L_FLAG}")
        a.label(lab)
        I(f"ds_read_b32 v{T+46}, v{T+47} offset:{off}")
        I(f"s_add_u32 s{sSPIN}, s{sSPIN}, 1")
        I("s_waitcnt lgkmcnt(0)")
        I(f"v_readfirstlane_b32 s{sT3}, v{T+46}")
        I(f"s_cmp_{'ge' if ge else 'eq'}_u32 s{sT3}, {val}")
        I(f"s_cbranch_scc1 {done}")
        I(f"s_cmp_lt_u32 s{sSPIN}, {spin_limit}")
        I(f"s_cbranch_scc1 {lab}")
        a.label(done)

    def sp(p):
        if prio: I(f"s_setprio {p}")

    I(f"v_mov_b32 v{rINV}, {f2u(1.0/640):#x}")
    I("s_waitcnt lgkmcnt(0)")
    I("s_barrier")
    TS(1)
    I(f"s_cmp_ge_u32 s{sWAVE}, 4")
    I("s_cbranch_scc1 L_s4567")
    srd(TA, 38, 640 * 8192)
    w_issue(nw0, RSL)
    TS(37)
    tr_addr(ta0, 64, sRING, T + 25)
    I(f"v_bfe_u32 v{T+25}, v{vLANE}, 4, 1")
    I(f"v_lshl_add_u32 v{ta0}, v{T+25}, 5, v{ta0}")
    I(f"v_xor_b32 v{ta1}, 32, v{ta0}")
    I(f"s_waitcnt vmcnt({nis[0] - 5})")
    setexec(0x22222222, 0x22222222)
    for i in range(20):
        I(f"v_mov_b32 v{XQ+i}, 0x3f803f80")
    setexec(0xFFFFFFFF, 0xFFFFFFFF)
    for j in range(5):
        I(f"v_mfma_f32_16x16x32_bf16 {vr(BUF)}, {vr(XQ+4*j)}, {vr(XQ+4*j)}, {vr(BUF) if j else '0'}")
    for i in range(4):
        I(f"v_readlane_b32 s{sF+i}, v{BUF}, {20*i+1}")
        I(f"v_readlane_b32 s{sF+4+i}, v{BUF}, {20*i}")
    I(f"v_mov_b32 v{rMEAN}, s{sF}")
    I(f"v_mov_b32 v{rVAR}, s{sF+4}")
    for i in range(1, 4):
        I(f"v_add_f32 v{rMEAN}, s{sF+i}, v{rMEAN}")
        I(f"v_add_f32 v{rVAR}, s{sF+4+i}, v{rVAR}")
    I(f"v_mul_f32 v{rMEAN}, v{rMEAN}, v{rINV}")
    I(f"v_mul_f32 v{rVAR}, v{rVAR}, v{rINV}")
    stats(None)
    I(f"v_readfirstlane_b32 s{sMB}, v{rMB}")
    I(f"v_readfirstlane_b32 s{sRS_}, v{rR}")
    TS(2)
    def q_mma(u):
        for t in range(2):
            acc = ACC + 16 * t + 4 * (u & 3)
            I(f"v_mfma_f32_16x16x32_bf16 {vr(acc)}, {vr(BUF + 8*(u%4) + 4*t)}, {vr(XQ+4*(u>>2))}, {vr(acc) if u >= 4 else '0'}")
    for u in range(20):
        I(f"s_waitcnt vmcnt({nis[0] - 5 - 2*u - 2})")
        if u == 0: TS(38)
        o = (2 * u % RSL) * 1024
        for t in range(2):
            b = BUF + 8 * (u % 4) + 4 * t
            I(f"ds_read_b64_tr_b16 v[{b}:{b+1}], v{(ta0, ta1)[t]} offset:{o}")
            I(f"ds_read_b64_tr_b16 v[{b+2}:{b+3}], v{(ta0, ta1)[t]} offset:{o+256}")
        if u:
            I("s_waitcnt lgkmcnt(4)")
            q_mma(u - 1)
            p = RSL + 2 * (u - 1)
            if p < 40:
                w_issue(p, p + 2)
                if p + 2 == 40:
                    k_issue(0, qk)
                    nis[0] += qk
                    TS(39)
    I(f"v_mov_b32 v{BUF+0}, {L_FLAG}")
    I(f"v_mov_b32 v{BUF+1}, 1")
    I(f"v_lshrrev_b32 v{BUF+2}, 4, v{vLANE}")
    I(f"v_lshlrev_b32 v{BUF+2}, 3, v{BUF+2}")
    I(f"s_lshl_b32 s{sT0}, s{sWAVE}, 6")
    I(f"v_add_u32 v{BUF+2}, s{sT0}, v{BUF+2}")
    I(f"v_mov_b32 v{BUF+3}, s{sMB}")
    I(f"v_xor_b32 v{BUF+3}, 0x80000000, v{BUF+3}")
    I("s_waitcnt lgkmcnt(0)")
    q_mma(19)
    for aa in range(1, 4):
        for t in range(2):
            for i in range(4):
                d = ACC + 16 * t + i
                I(f"v_add_f32_dpp v{d}, v{d+4*aa}, v{d} row_shl:{4*aa} row_mask:0xf bank_mask:0xf")
    for t in range(2):
        for i in range(4):
            d = ACC + 16 * t + i
            I(f"v_fmac_f32_dpp v{d}, v{d}, v{BUF+3} quad_perm:[1,1,1,1] row_mask:0xf bank_mask:0xf")
    for t in range(2):
        for i in range(4):
            d = ACC + 16 * t + i
            I(f"v_mul_f32 v{d}, s{sRS_}, v{d}")
    for t in range(2):
        d = ACC + 16 * t
        I(f"v_cvt_pk_bf16_f32 v{d}, v{d}, v{d+1}")
        I(f"v_cvt_pk_bf16_f32 v{d+1}, v{d+2}, v{d+3}")
    setexec(0x00010001, 0x00010001)
    for t in range(2):
        d = ACC + 16 * t
        I(f"ds_write_b64 v{BUF+2}, v[{d}:{d+1}] offset:{L_QB + 32*t}")
    setexec(1, 0)
    I("s_waitcnt lgkmcnt(0)")
    I(f"ds_add_u32 v{BUF+0}, v{BUF+1} offset:12")
    setexec(0xFFFFFFFF, 0xFFFFFFFF)
    TS(5)
    sp(sp1)
    k_issue(qk, 16)
    I("s_branch L_own")

    a.label("L_s4567")
    I(f"s_cmp_eq_u32 s{sWAVE}, 6")
    I("s_cbranch_scc0 L_krest")
    sp(3)
    I(f"s_mov_b32 s{sVOTE}, 0")
    I(f"s_cmp_lt_u32 s{sR}, {ncal}")
    I("s_cbranch_scc0 L_ncal")
    MK = 0x13579bdf
    I(f"s_lshl_b32 s{sT0}, s2, 7")
    I(f"s_add_u32 s88, s{sT0}, {CALOFF + 0x10000}")
    I(f"s_load_dword s86, s[56:57], s88 glc")
    I(f"s_add_u32 s{sT0}, s{sT0}, {CALOFF}")
    I(f"s_lshl_b32 s{sVOTE}, s{sR}, 13")
    I(f"s_and_b32 s{sVOTE}, s{sVOTE}, {CP}")
    I(f"s_add_u32 s{sT0}, s{sT0}, s{sVOTE}")
    I(f"s_xor_b32 s{sT3}, s{sT0}, {CP}")
    I(f"s_lshr_b32 s{sVOTE}, s{sVOTE}, 13")
    I(f"s_lshr_b32 s88, s{sXCC}, 2")
    I(f"s_xor_b32 s{sVOTE}, s{sVOTE}, s88")
    I("s_waitcnt lgkmcnt(0)")
    for k, (ad, cnt) in enumerate(((sT0, 88), (sT3, 89))):
        I(f"s_mov_b32 s86, {MK:#x}")
        I(f"s_mov_b32 s{cnt}, 0")
        I(f"s_load_dword s86, s[56:57], s{ad} glc")
        a.label(f"L_cal{k}")
        I(f"s_add_u32 s{cnt}, s{cnt}, 1")
        I(f"s_cmp_eq_u32 s86, {MK:#x}")
        I(f"s_cselect_b32 s87, s{cnt}, 1000")
        I(f"s_cmp_lt_u32 s87, 200")
        I(f"s_cbranch_scc1 L_cal{k}")
        I("s_waitcnt lgkmcnt(0)")
    I(f"s_cmp_gt_u32 s88, s89")
    I(f"s_cselect_b32 s{sT0}, 1, 0")
    I(f"s_xor_b32 s{sVOTE}, s{sVOTE}, s{sT0}")
    I(f"s_and_b32 s{sVOTE}, s{sVOTE}, 1")
    I(f"s_lshl_b32 s{sVOTE}, s{sVOTE}, 24")
    a.label("L_ncal")
    I(f"s_mul_i32 s{sT0}, s{sXCC}, 6")
    I(f"s_lshl_b64 s[{sF}:{sF+1}], 1, s{sT0}")
    I(f"s_cmp_lt_u32 s{sXCC}, 8")
    I(f"s_cselect_b32 s{sF}, s{sF}, 0")
    I(f"s_cselect_b32 s{sF+1}, s{sF+1}, 0")
    I(f"s_or_b32 s{sF+1}, s{sF+1}, 0x10000")
    I(f"s_or_b32 s{sF+1}, s{sF+1}, s{sVOTE}")
    srd(TA, 54, 256)
    I(f"v_mov_b32 v{vAT}, s{sF}")
    I(f"v_mov_b32 v{vAT+1}, s{sF+1}")
    I(f"s_lshl_b32 s{sT0}, s{sX}, 5")
    I(f"v_mov_b32 v{vAT+2}, s{sT0}")
    TS(33)
    I("s_waitcnt vmcnt(0)")
    setexec(1, 0)
    I(f"buffer_atomic_add_x2 v[{vAT}:{vAT+1}], v{vAT+2}, {TA}, 0 offen sc1")
    setexec(0xFFFFFFFF, 0xFFFFFFFF)
    TS(32)
    sp(0)
    k_issue(0, n0)
    a.label("L_krest")
    k_issue(n0, 16)
    I(f"s_cmp_eq_u32 s{sWAVE}, 4")
    I("s_cbranch_scc0 L_vall")
    a.label("L_own")
    o2, o3 = T + 49, T + 50
    srd(TA, 38, 640 * 8192)
    I(f"s_and_b32 s{sT1}, s{sSLOT}, 3")
    I(f"s_lshl_b32 s{sT2}, s{sWAVE}, 2")
    I(f"s_add_u32 s{sT2}, s{sT2}, s{sT1}")
    I(f"s_lshl_b32 s{sT2}, s{sT2}, 18")
    I(f"s_lshr_b32 s{sT0}, s{sSLOT}, 2")
    I(f"s_lshl_b32 s{sT0}, s{sT0}, 7")
    I(f"s_add_u32 s{sT2}, s{sT2}, s{sT0}")
    I(f"v_lshrrev_b32 v{o2}, 3, v{vLANE}")
    I(f"v_lshlrev_b32 v{o2}, 13, v{o2}")
    I(f"v_and_b32 v{o3}, 7, v{vLANE}")
    I(f"v_lshl_add_u32 v{o2}, v{o3}, 4, v{o2}")
    I(f"v_bfe_u32 v{o3}, v{vLANE}, 4, 1")
    I(f"v_lshlrev_b32 v{o3}, 5, v{o3}")
    I(f"v_xor_b32 v{o2}, v{o2}, v{o3}")
    I(f"v_xor_b32 v{o3}, 64, v{o2}")
    I(f"s_lshl_b32 s{sT1}, s{sWAVE}, 12")
    I(f"s_add_u32 m0, s{sT1}, {L_WQ}")
    for e in range(4):
        I(f"buffer_load_dwordx4 v{(o2, o3)[e & 1]}, {TA}, s{sT2} offen offset:{e*1024} {wflags} lds")
        if e < 3:
            I(f"s_add_u32 s{sT2}, s{sT2}, {8*8192 - 1024}")
    a.label("L_vall")
    v_issue()
    TS(31)
    for i in range(16):
        I(f"v_mov_b32 v{T+i}, 0")
    if gate:
        I(f"v_mov_b32 v{T+24}, {L_FLAG}")
        I(f"v_mov_b32 v{T+25}, 1")
        setexec(1, 0)
        I(f"ds_add_u32 v{T+24}, v{T+25} offset:8")
        setexec(0xFFFFFFFF, 0xFFFFFFFF)
    lds_wait(12, 4)
    TS(8)
    I("s_branch L_att")

    a.label("L_loop")
    I(f"s_cmp_ge_u32 s{sWAVE}, 5")
    I("s_cbranch_scc1 L_B1")
    I(f"s_cmp_eq_u32 s{sIT}, 1")
    I("s_cbranch_scc0 L_nown")
    I(f"s_lshl_b32 s{sT0}, s{sWAVE}, 12")
    I(f"s_add_u32 s{sT0}, s{sT0}, {L_WQ}")
    ta = T + 24
    tr_addr(ta, 128, sT0, T + 25)
    I(f"v_bfe_u32 v{T+25}, v{vLANE}, 3, 1")
    I(f"v_bfe_u32 v{T+26}, v{vLANE}, 4, 1")
    I(f"v_lshl_add_u32 v{T+25}, v{T+26}, 1, v{T+25}")
    I(f"v_lshl_add_u32 v{ta}, v{T+25}, 5, v{ta}")
    for t in range(1, 4):
        I(f"v_xor_b32 v{ta+t}, {t*32}, v{ta}")
    for t in range(4):
        I(f"ds_read_b64_tr_b16 v[{vBQ+4*t}:{vBQ+4*t+1}], v{ta+t}")
        I(f"ds_read_b64_tr_b16 v[{vBQ+4*t+2}:{vBQ+4*t+3}], v{ta+t} offset:512")
    ones()
    I(f"v_lshrrev_b32 v{T+20}, 4, v{vLANE}")
    I(f"v_lshlrev_b32 v{T+20}, 4, v{T+20}")
    I(f"v_add_u32 v{T+20}, s{sT0}, v{T+20}")
    I("s_waitcnt lgkmcnt(0)")
    for t in range(4):
        I(f"v_mfma_f32_16x16x32_bf16 {vr(T+4*t)}, {vr(vBQ+4*t)}, {vr(ONES)}, 0")
    I(f"s_mov_b64 exec, s[{sKM}:{sKM+1}]")
    for t in range(4):
        I(f"ds_write_b128 v{T+20}, {vr(T+4*t)} offset:{t*64}")
    I("s_mov_b64 exec, -1")
    a.label("L_nown")
    I(f"s_lshl_b32 s{sT2}, s{sX}, 11")
    I(f"s_add_u32 s{sT2}, s{sT2}, {XOFF}")
    I(f"s_cmp_eq_u32 s{sR}, {LEAD_R}")
    I("s_cbranch_scc0 L_nolead")
    I(f"s_lshl_b32 s{sT1}, s{sWAVE}, 2")
    rank_off(sT0, sT1, sT3)
    I(f"s_add_u32 s{sT0}, s{sT0}, s{sREG}")
    I(f"s_add_u32 s{sT0}, s{sT0}, s{sNEAR}")
    I(f"s_add_u32 s{sT0}, s{sT0}, {YOFF - RS & 0xffffffff:#x}")
    I(f"v_lshrrev_b32 v{T+20}, 4, v{vLANE}")
    I(f"v_mul_u32_u24 v{T+20}, {ZR}, v{T+20}")
    I(f"v_and_b32 v{T+21}, 15, v{vLANE}")
    I(f"v_lshl_add_u32 v{T+20}, v{T+21}, 2, v{T+20}")
    I(f"s_lshl_b32 s{sT1}, s{sWAVE}, 8")
    I(f"v_lshlrev_b32 v{T+21}, 2, v{vLANE}")
    I(f"v_add_u32 v{T+21}, s{sT1}, v{T+21}")
    TS(26)
    poll([f"buffer_load_dword v{T+2*j+1}, v{T+20}, {WS}, s{sT0} offen offset:{j*ZX} sc1" for j in range(8)],
         [T + 2 * j + 1 for j in range(8)], groups=[[T + 2 * j + 1] for j in range(8)])
    TS(27)
    for j in range(8):
        unpack(T + 2 * j, T + 2 * j + 1, T + 2 * j + 1)
    for (d, s_) in ((0, 1), (2, 3), (4, 5), (6, 7), (0, 2), (4, 6), (0, 4)):
        I(f"v_pk_add_f32 v[{T+2*d}:{T+2*d+1}], v[{T+2*d}:{T+2*d+1}], v[{T+2*s_}:{T+2*s_+1}]")
    I(f"v_cvt_pk_bf16_f32 v{T}, v{T}, v{T+1}")
    I(f"s_cmp_eq_u32 s{sIT}, 2")
    I("s_cbranch_scc0 L_lead1")
    I(f"buffer_store_dword v{T}, v{T+21}, {OUTS}, 0 offen")
    TS(29)
    I("s_branch L_fin")
    a.label("L_lead1")
    I(f"v_min_u32 v{T}, 0xfffffffe, v{T}")
    lstore([f"buffer_store_dword v{T}, v{T+21}, {WS}, s{sT2} offen"])
    TS(28)
    a.label("L_nolead")
    ones()
    TS(3)
    poll([f"buffer_load_dwordx4 {vr(XA)}, v{vXO}, {WS}, s{sT2} offen sc1"], list(range(XA, XA + 4)))
    TS(4)
    gemv_q()
    TS(5)
    a.label("L_B1")
    I(f"v_mov_b32 v{rINV}, {f2u(1.0/640):#x}")
    qa, qs, QS = q_reduce()
    I("s_barrier")
    I(f"s_cmp_eq_u32 s{sWAVE}, 5")
    I("s_cbranch_scc0 L_B2")
    TS(6)
    q_reduce2(qa, qs, QS, first=True)
    TS(7)
    lstore([f"buffer_store_dword v{rU}, v{vQP}, {WS}, s{sREG} offen"])
    q_gather(vQG, qa)
    TS(8)
    I(f"buffer_load_ushort v{vXF}, v{vXFA}, {WS}, 0 offen sc1")
    I("s_waitcnt lgkmcnt(0)")
    a.label("L_B2")
    BT = T
    ST = T + 16
    PS = T + 32
    MI = T + 36
    OA = T + 44
    for i in range(16):
        I(f"v_mov_b32 v{BT+i}, 0")
    I("s_barrier")
    a.label("L_att")
    TS(9)
    for t in range(4):
        m = 0x000F000F << (4 * t)
        setexec(m, m)
        I(f"ds_read_b128 {vr(BT+4*t)}, v{vQR}")
    setexec(0xFFFFFFFF, 0xFFFFFFFF)
    I("s_waitcnt vmcnt(16) lgkmcnt(0)")
    TS(10)
    for Tt in range(4):
        for t in range(4):
            I(f"v_mfma_f32_16x16x32_bf16 {vr(ST+4*Tt)}, {vr(vK+4*(4*Tt+t))}, {vr(BT+4*t)}, {'0' if t == 0 else vr(ST+4*Tt)}")
    for Tt in range(4):
        I(f"v_mov_b32_dpp v{PS+Tt}, v{ST+4*Tt} quad_perm:[0,0,0,0] row_mask:0xf bank_mask:0xf")
        for c in range(1, 4):
            I(f"v_add_f32_dpp v{PS+Tt}, v{ST+4*Tt+c}, v{PS+Tt} quad_perm:[{c},{c},{c},{c}] row_mask:0xf bank_mask:0xf")
    I(f"v_mov_b32 v{MI+2}, {SCALE:#x}")
    I(f"v_mov_b32 v{MI+3}, {SCALE:#x}")
    I(f"v_cvt_pk_bf16_f32 v{MI}, v{PS}, v{PS+1}")
    I(f"v_cvt_pk_bf16_f32 v{MI+1}, v{PS+2}, v{PS+3}")
    unpack(PS, PS + 1, MI)
    unpack(PS + 2, PS + 3, MI + 1)
    I(f"v_pk_mul_f32 v[{PS}:{PS+1}], v[{PS}:{PS+1}], v[{MI+2}:{MI+3}]")
    I(f"v_pk_mul_f32 v[{PS+2}:{PS+3}], v[{PS+2}:{PS+3}], v[{MI+2}:{MI+3}]")
    I(f"v_cvt_pk_bf16_f32 v{MI}, v{PS}, v{PS+1}")
    I(f"v_cvt_pk_bf16_f32 v{MI+1}, v{PS+2}, v{PS+3}")
    unpack(PS, PS + 1, MI)
    unpack(PS + 2, PS + 3, MI + 1)
    vM = MI + 4; vL = MI + 5; vT_ = MI + 6; vPK = MI + 7
    I(f"v_max3_f32 v{vM}, v{PS}, v{PS+1}, v{PS+2}")
    I(f"v_max_f32 v{vM}, v{vM}, v{PS+3}")
    I(f"v_max_f32_dpp v{vM}, v{vM}, v{vM} row_ror:4 row_mask:0xf bank_mask:0xf")
    I(f"v_max_f32_dpp v{vM}, v{vM}, v{vM} row_ror:8 row_mask:0xf bank_mask:0xf")
    I(f"v_max_f32_dpp v{vM}, v{vM}, v{vM} row_bcast:15 row_mask:0xa bank_mask:0xf")
    I(f"v_max_f32_dpp v{vM}, v{vM}, v{vM} row_bcast:31 row_mask:0xc bank_mask:0xf")
    I(f"v_mov_b32 v{MI}, s{sL2E}")
    I(f"v_readlane_b32 s{sM}, v{vM}, 63")
    I(f"v_mul_f32 v{vT_}, s{sM}, v{MI}")
    for Tt in range(4):
        I(f"v_fma_f32 v{PS+Tt}, v{PS+Tt}, v{MI}, -v{vT_}")
    for Tt in range(4):
        I(f"v_exp_f32 v{PS+Tt}, v{PS+Tt}")
    TS(11)
    I(f"s_cmp_eq_u32 s{sIT}, 0")
    I("s_cbranch_scc0 L_PV")
    I(f"v_lshlrev_b32 v{vB1}, 16, v{vB1}")
    I(f"s_cmp_eq_u32 s{sLATE}, 0")
    I("s_cbranch_scc1 L_PVe")
    role_dma()
    TS(25)
    I("s_branch L_PV")
    a.label("L_PVe")
    I("s_waitcnt vmcnt(0)")
    a.label("L_PV")
    for Tt in range(4):
        AB = ST + 8 * (Tt & 1)
        I(f"v_mov_b32_dpp v{vT_}, v{PS+Tt} row_half_mirror row_mask:0xf bank_mask:0xf")
        I(f"v_cvt_pk_bf16_f32 v{vPK}, v{PS+Tt}, v{vT_}")
        for u in range(2):
            for r in range(4):
                I(f"v_perm_b32 v{AB+4*u+r}, v{vPK}, v{vPK}, v{vSEL+4*u+r}")
        if Tt == 1:
            I(f"v_add_f32 v{vL}, v{PS}, v{PS+1}")
            I(f"v_add_f32 v{MI+1}, v{PS+2}, v{PS+3}")
            I(f"v_add_f32 v{vL}, v{vL}, v{MI+1}")
            I(f"v_add_f32_dpp v{vL}, v{vL}, v{vL} row_ror:4 row_mask:0xf bank_mask:0xf")
            I(f"v_add_f32_dpp v{vL}, v{vL}, v{vL} row_ror:8 row_mask:0xf bank_mask:0xf")
            I(f"v_add_f32_dpp v{vL}, v{vL}, v{vL} row_bcast:15 row_mask:0xa bank_mask:0xf")
            I(f"v_add_f32_dpp v{vL}, v{vL}, v{vL} row_bcast:31 row_mask:0xc bank_mask:0xf")
            I(f"ds_write_b64 v{vMLW}, v[{vM}:{vL}]")
        for u in range(2):
            i1 = Tt * 4 + u * 2 + 1
            I(f"s_waitcnt vmcnt({15 - i1 + 8})")
            for hf in range(2):
                i = Tt * 4 + u * 2 + hf
                first = (Tt == 0 and u == 0)
                I(f"v_mfma_f32_16x16x32_bf16 {vr(OA+4*hf)}, {vr(AB+4*u)}, {vr(vV+4*i)}, {'0' if first else vr(OA+4*hf)}")
    TS(12)
    setexec(0x00FF00FF, 0xFF00FF00)
    I(f"ds_write_b128 v{vOW}, {vr(OA)}")
    I(f"ds_write_b128 v{vOW}, {vr(OA+4)} offset:256")
    setexec(0xFFFFFFFF, 0xFFFFFFFF)
    I(f"s_cmp_eq_u32 s{sIT}, 0")
    I("s_cbranch_scc0 L_B3")
    sp(0)
    I(f"s_cmp_eq_u32 s{sLATE}, 0")
    I("s_cbranch_scc0 L_B3")
    I(f"s_cmp_eq_u32 s{sWAVE}, 7")
    I("s_cbranch_scc0 L_erd")
    sp(3)
    srd(TA, 54, 256)
    I(f"v_lshlrev_b32 v{BT+2}, 5, v{vLANE}")
    setexec(0xFF, 0)
    I(f"buffer_load_dwordx2 v[{BT}:{BT+1}], v{BT+2}, {TA}, 0 offen {syfl}")
    a.label("L_sync")
    I(f"s_add_u32 s{sSPIN}, s{sSPIN}, 4")
    I("s_waitcnt vmcnt(0)")
    I(f"v_and_b32 v{BT+3}, {1 << 21:#x}, v{BT+1}")
    I(f"v_cmp_eq_u32 vcc, 0, v{BT+3}")
    I("s_cbranch_vccz L_syncd")
    I(f"buffer_load_dwordx2 v[{BT}:{BT+1}], v{BT+2}, {TA}, 0 offen sc1")
    I(f"s_cmp_lt_u32 s{sSPIN}, {spin_limit}")
    I("s_cbranch_scc1 L_sync")
    I("s_waitcnt vmcnt(0)")
    a.label("L_syncd")
    I(f"v_lshrrev_b32 v{BT+3}, 24, v{BT+1}")
    I(f"v_readlane_b32 s64, v{BT}, s{sX}")
    I(f"v_readlane_b32 s65, v{BT+1}, s{sX}")
    for m_ in ("quad_perm:[1,0,3,2]", "quad_perm:[2,3,0,1]", "row_half_mirror"):
        I(f"v_add_u32_dpp v{BT+3}, v{BT+3}, v{BT+3} {m_} row_mask:0xf bank_mask:0xf")
    I(f"s_mul_i32 s{sT0}, s{sXCC}, 6")
    I(f"s_lshr_b64 s[64:65], s[64:65], s{sT0}")
    I(f"s_and_b32 s64, s64, 63")
    I(f"s_cmp_eq_u32 s64, 32")
    I(f"s_cselect_b32 s{sT1}, 1, 0")
    I(f"s_cmp_lt_u32 s{sXCC}, 8")
    I(f"s_cselect_b32 s{sT1}, s{sT1}, 0")
    I(f"v_readfirstlane_b32 s{sT0}, v{BT+3}")
    setexec(0xFFFFFFFF, 0xFFFFFFFF)
    I(f"s_cmp_gt_u32 s{sT0}, {4 * ncal}")
    I(f"s_cselect_b32 s{sT0}, 1, 0")
    I(f"s_lshr_b32 s{sT2}, s{sXCC}, 2")
    I(f"s_xor_b32 s{sT0}, s{sT0}, s{sT2}")
    I(f"s_and_b32 s{sT0}, s{sT0}, {1 if dual else 0}")
    I(f"s_lshl_b32 s{sT0}, s{sT0}, 13")
    I(f"s_or_b32 s{sT0}, s{sT0}, s{sT1}")
    I(f"v_mov_b32 v{BT}, s{sT0}")
    I(f"v_mov_b32 v{BT+1}, {L_FLAG}")
    I(f"ds_write_b32 v{BT+1}, v{BT}")
    TS(35)
    sp(0)
    a.label("L_erd")
    I(f"s_cmp_eq_u32 s{sROLE}, 0")
    I("s_cbranch_scc0 L_B3")
    if gate:
        lds_wait(8, gate, ge=True)
    role_dma()
    TS(25)
    a.label("L_B3")
    I("s_waitcnt lgkmcnt(0)")
    I(f"v_mov_b32 v{T+38}, {L_FLAG}")
    I("s_barrier")
    TS(13)
    I(f"ds_read_b32 v{T+38}, v{T+38}")
    I(f"s_cmp_eq_u32 s{sWAVE}, 7")
    I("s_cbranch_scc1 L_comb")
    I("s_waitcnt lgkmcnt(0)")
    I(f"v_readfirstlane_b32 s{sT0}, v{T+38}")
    I(f"s_and_b32 s{sPURE}, s{sT0}, 1")
    I(f"s_and_b32 s{sNEAR}, s{sT0}, {CP}")
    I("s_branch L_role")
    a.label("L_comb")
    cM, cL, cMX, cF, cT = T + 32, T + 33, T + 34, T + 36, T + 37
    cLS = T + 35
    I(f"ds_read_b64 v[{cM}:{cL}], v{vCML}")
    for w in range(8):
        I(f"ds_read2st64_b64 {vr(T+4*w)}, v{vCR} offset0:{2*w} offset1:{2*w+1}")
    I(f"v_mov_b32 v{cT}, s{sL2E}")
    I("s_waitcnt lgkmcnt(8)")
    I(f"v_readfirstlane_b32 s{sT0}, v{T+38}")
    I(f"v_max_f32_dpp v{cMX}, v{cM}, v{cM} quad_perm:[1,0,3,2] row_mask:0xf bank_mask:0xf")
    I(f"v_max_f32_dpp v{cMX}, v{cMX}, v{cMX} quad_perm:[2,3,0,1] row_mask:0xf bank_mask:0xf")
    I(f"v_max_f32_dpp v{cMX}, v{cMX}, v{cMX} row_half_mirror row_mask:0xf bank_mask:0xf")
    I(f"v_sub_f32 v{cF}, v{cM}, v{cMX}")
    I(f"v_mul_f32 v{cF}, v{cF}, v{cT}")
    I(f"v_exp_f32 v{cF}, v{cF}")
    I(f"s_and_b32 s{sPURE}, s{sT0}, 1")
    I(f"s_and_b32 s{sNEAR}, s{sT0}, {CP}")
    I("s_waitcnt lgkmcnt(0)")
    for w in range(8):
        I(f"v_readlane_b32 s{sF+w}, v{cF}, {w}")
    for w in range(8):
        I(f"v_pk_add_f32 v[{T+4*w}:{T+4*w+1}], v[{T+4*w}:{T+4*w+1}], v[{T+4*w+2}:{T+4*w+3}]")
    for w in range(8):
        sp = f"s[{sF+(w&~1)}:{sF+(w&~1)+1}]"
        o = w & 1
        acc = T + 40 + 2 * (w & 1)
        if w < 2:
            I(f"v_pk_mul_f32 v[{acc}:{acc+1}], v[{T+4*w}:{T+4*w+1}], {sp} op_sel:[0,{o}] op_sel_hi:[1,{o}]")
        else:
            I(f"v_pk_fma_f32 v[{acc}:{acc+1}], v[{T+4*w}:{T+4*w+1}], {sp}, v[{acc}:{acc+1}] op_sel:[0,{o},0] op_sel_hi:[1,{o},1]")
    I(f"v_mul_f32 v{cLS}, v{cF}, v{cL}")
    I(f"v_pk_add_f32 v[{T+40}:{T+41}], v[{T+40}:{T+41}], v[{T+42}:{T+43}]")
    I(f"v_add_f32_dpp v{cLS}, v{cLS}, v{cLS} quad_perm:[1,0,3,2] row_mask:0xf bank_mask:0xf")
    I(f"v_cvt_pk_bf16_f32 v{T+40}, v{T+40}, v{T+41}")
    I(f"v_min_u32 v{T+40}, 0xfffffffe, v{T+40}")
    I(f"v_add_f32_dpp v{cLS}, v{cLS}, v{cLS} quad_perm:[2,3,0,1] row_mask:0xf bank_mask:0xf")
    I(f"v_min_u32 v{cMX}, 0xfffffffe, v{cMX}")
    lstore([f"buffer_store_dword v{T+40}, v{vCP}, {WS}, s{sREG} offen"])
    I(f"v_add_f32_dpp v{cLS}, v{cLS}, v{cLS} row_half_mirror row_mask:0xf bank_mask:0xf")
    I(f"v_min_u32 v{cLS}, 0xfffffffe, v{cLS}")
    setexec(1, 0)
    lstore([f"buffer_store_dwordx2 v[{cMX}:{cLS}], v{vCPM}, {WS}, s{sREG} offen"])
    setexec(0xFFFFFFFF, 0xFFFFFFFF)
    TS(14)

    a.label("L_role")
    I(f"s_cmp_eq_u32 s{sROLE}, 0")
    I("s_cbranch_scc1 L_WO")
    I(f"s_cmp_eq_u32 s{sROLE}, 3")
    I("s_cbranch_scc1 L_next")
    I(f"s_cmp_eq_u32 s{sIT}, 0")
    I("s_cbranch_scc0 L_role2")
    role_dma()
    TS(25)
    a.label("L_role2")
    I(f"s_cmp_eq_u32 s{sROLE}, 1")
    I("s_cbranch_scc1 L_W1")
    I("s_branch L_W2")

    def role_base():
        I(f"s_lshl_b32 s{sT0}, s{sWAVE}, 13")
        I(f"s_add_u32 s{sT0}, s{sT0}, {L_ROLE}")

    a.label("L_WO")
    I(f"s_cmp_eq_u32 s{sIT}, 0")
    I("s_cbranch_scc0 L_WO0")
    role_base()
    tr_addr(T + 47, 64, sT0)
    I("s_waitcnt vmcnt(0)")
    for ks in range(2):
        for t in range(2):
            b = vRB + 4 * (ks * 2 + t)
            o = ks * 2048 + t * 32
            I(f"ds_read_b64_tr_b16 v[{b}:{b+1}], v{T+47} offset:{o}")
            I(f"ds_read_b64_tr_b16 v[{b+2}:{b+3}], v{T+47} offset:{o+256}")
    I("s_waitcnt lgkmcnt(0)")
    TS(15)
    a.label("L_WO0")
    I(f"s_cmp_eq_u32 s{sWAVE}, 5")
    I("s_cbranch_scc0 L_WO1")
    I("s_waitcnt vmcnt(0)")
    I(f"v_lshlrev_b32 v{vXF}, 16, v{vXF}")
    a.label("L_WO1")
    A0, Ma, La = T, T + 4, T + 5
    Dw = [[T + 8, T + 12], [T + 16, T + 20]]
    wMX, wE, wT, wL2E, wR0, wR1 = [T + 24 + i for i in range(6)]
    I(f"v_mov_b32 v{wL2E}, s{sL2E}")
    poll([f"buffer_load_dwordx4 {vr(A0)}, v{vA0}, {WS}, s{sREG} offen sc1",
          f"buffer_load_dwordx2 v[{Ma}:{La}], v{vA2}, {WS}, s{sREG} offen sc1"], list(range(T, T + 6)),
         groups=[range(T, T + 4), range(T + 4, T + 6)])
    TS(16)
    seq = [
        f"v_max_f32_dpp v{wMX}, v{Ma}, v{Ma} quad_perm:[1,0,3,2] row_mask:0xf bank_mask:0xf",
        f"v_max_f32_dpp v{wMX}, v{wMX}, v{wMX} quad_perm:[2,3,0,1] row_mask:0xf bank_mask:0xf",
        f"v_max_f32_dpp v{wMX}, v{wMX}, v{wMX} row_half_mirror row_mask:0xf bank_mask:0xf",
        f"v_sub_f32 v{wE}, v{Ma}, v{wMX}",
    ]
    k = 0
    for t in range(2):
        for ks in range(2):
            I(f"v_mfma_f32_16x16x32_bf16 {vr(Dw[t][ks])}, {vr(A0)}, {vr(vRB+4*(ks*2+t))}, 0")
            I(seq[k]); k += 1
    I(f"v_mul_f32 v{wE}, v{wE}, v{wL2E}")
    I(f"v_exp_f32 v{wE}, v{wE}")
    I(f"v_mul_f32 v{wT}, v{wE}, v{La}")
    mrg = [f"v_mov_b32_dpp v{Dw[t][0]+i}, v{Dw[t][1]+i} quad_perm:[0,1,2,3] row_mask:0xc bank_mask:0xf"
           for t in range(2) for i in range(4)]
    I(mrg[0]); I(mrg[1])
    I(f"v_add_f32_dpp v{wT}, v{wT}, v{wT} quad_perm:[1,0,3,2] row_mask:0xf bank_mask:0xf")
    I(mrg[2]); I(mrg[3])
    I(f"v_add_f32_dpp v{wT}, v{wT}, v{wT} quad_perm:[2,3,0,1] row_mask:0xf bank_mask:0xf")
    I(f"v_mov_b32_dpp v{wE}, v{wE} row_ror:4 row_mask:0xf bank_mask:0xa")
    I(mrg[4])
    I(f"v_add_f32_dpp v{wT}, v{wT}, v{wT} row_half_mirror row_mask:0xf bank_mask:0xf")
    I(mrg[5])
    I(f"v_rcp_f32 v{wT}, v{wT}")
    I(mrg[6]); I(mrg[7])
    for i in range(4):
        for t in range(2):
            D = Dw[t][0]; R = (wR0, wR1)[t]
            op = "v_mul_f32_dpp" if i == 0 else "v_fmac_f32_dpp"
            I(f"{op} v{R}, v{wE}, v{D+i} quad_perm:[{i},{i},{i},{i}] row_mask:0xf bank_mask:0xf")
    I(f"v_mul_f32 v{wR0}, v{wR0}, v{wT}")
    I(f"v_mul_f32 v{wR1}, v{wR1}, v{wT}")
    I(f"ds_write_b32 v{vPW}, v{wR0} offset:{L_PB2}")
    I(f"ds_write_b32 v{vPW}, v{wR1} offset:{L_PB2+256}")
    I("s_waitcnt lgkmcnt(0)")
    I("s_barrier")
    I(f"s_cmp_eq_u32 s{sWAVE}, 5")
    I("s_cbranch_scc0 L_next")
    TS(17)
    reduce_read(8, L_PB2)
    I("s_waitcnt lgkmcnt(0)")
    I(f"v_add_f32 v{T+30}, v{T+30}, v{vXF}")
    reduce_sum(8, rTOT)
    pack_pairs(rTOT, rU)
    I(f"v_mov_b32 v{T}, v{rU}")
    I(f"v_mov_b32_dpp v{T+1}, v{rU} quad_perm:[2,2,2,2] row_mask:0xf bank_mask:0xf")
    I(f"v_mov_b32_dpp v{T+2}, v{rU} row_shl:4 row_mask:0xf bank_mask:0xf")
    I(f"v_mov_b32_dpp v{T+3}, v{rU} row_shl:6 row_mask:0xf bank_mask:0xf")
    setexec(0x01010101, 0)
    I(f"buffer_store_dwordx4 {vr(T)}, v{vRP}, {WS}, s{sREG} offen sc1")
    if dual:
        I(f"buffer_store_dwordx4 {vr(T)}, v{vRP}, {WS}, s{sREG2} offen sc1")
    setexec(0xFFFFFFFF, 0xFFFFFFFF)
    TS(18)
    I("s_branch L_next")

    a.label("L_W1")
    I(f"s_cmp_ge_u32 s{sWAVE}, 5")
    I("s_cbranch_scc1 L_W1b")
    ones()
    I(f"s_cmp_eq_u32 s{sIT}, 0")
    I("s_cbranch_scc0 L_W11")
    role_base()
    tr_addr(T + 47, 64, sT0)
    I(f"s_lshl_b32 s{sT0}, s{sWAVE}, 7")
    I(f"v_and_b32 v{T+46}, 15, v{vLANE}")
    I(f"v_lshlrev_b32 v{T+46}, 2, v{T+46}")
    I(f"v_add_u32 v{T+46}, s{sT0}, v{T+46}")
    I("s_waitcnt vmcnt(0)")
    for ks in range(4):
        for t in range(2):
            b = vRB + 4 * (ks * 2 + t)
            o = ks * 2048 + t * 32
            I(f"ds_read_b64_tr_b16 v[{b}:{b+1}], v{T+47} offset:{o}")
            I(f"ds_read_b64_tr_b16 v[{b+2}:{b+3}], v{T+47} offset:{o+256}")
        if ks == 1:
            I("s_waitcnt lgkmcnt(0)")
    I("s_waitcnt lgkmcnt(0)")
    for t in range(2):
        for ks in range(4):
            I(f"v_mfma_f32_16x16x32_bf16 {vr(T+4*t)}, {vr(ONES)}, {vr(vRB+4*(ks*2+t))}, {'0' if ks == 0 else vr(T+4*t)}")
    I(f"ds_write_b32 v{T+46}, v{T} offset:{L_CS2}")
    I(f"ds_write_b32 v{T+46}, v{T+4} offset:{L_CS2+64}")
    TS(15)
    a.label("L_W11")
    I(f"s_add_u32 s{sT1}, s{sREG}, {ZOFF}")
    I(f"s_add_u32 s{sT1}, s{sT1}, s{sNEAR}")
    gather(sT1)
    TS(19)
    gemv(2, vRB, lambda ks, t: ks * 2 + t)
    TS(20)
    a.label("L_W1b")
    I(f"v_mov_b32 v{rINV}, {f2u(1.0/640):#x}")
    I(f"v_mov_b32 v{rC1}, {f2u(GC1):#x}")
    I(f"v_mov_b32 v{rC2}, {f2u(GC2):#x}")
    I("s_barrier")
    I(f"s_cmp_eq_u32 s{sWAVE}, 5")
    I("s_cbranch_scc0 L_next")
    TS(21)
    reduce_read(5, L_PB1)
    cs_read(L_CS2, vCS1)
    I("s_waitcnt lgkmcnt(0)")
    reduce_sum(5, rTOT)
    stats()
    I(f"v_sub_f32 v{rMEAN}, v{rMEAN}, v{rMB}")
    I(f"v_mul_f32 v{rVAR}, v{rVAR}, v{rR}")
    I(f"v_mul_f32 v{rMEAN}, v{rMEAN}, v{rR}")
    I(f"v_mul_f32 v{rVAR}, v{rVAR}, v{rR}")
    I(f"v_cvt_pk_bf16_f32 v{rT}, v{rMEAN}, v{rVAR}")
    I(f"v_and_b32 v{rU}, 0xffff0000, v{rT}")
    I(f"v_lshlrev_b32 v{rMEAN}, 16, v{rT}")
    I(f"v_add_f32 v{rU}, {f2u(1e-5):#x}, v{rU}")
    I(f"v_cvt_pk_bf16_f32 v{rU}, v{rU}, v{rU}")
    I(f"v_fma_f32 v{rMB}, v{rMEAN}, v{rSD}, v{rMB}")
    I(f"v_and_b32 v{rU}, 0xffff0000, v{rU}")
    I(f"v_sqrt_f32 v{rU}, v{rU}")
    I(f"v_fma_f32 v{rTOT}, -v{rMB}, v{vCS1}, v{rTOT}")
    I(f"v_cvt_pk_bf16_f32 v{rU}, v{rU}, v{rU}")
    I(f"v_mul_f32 v{rTOT}, v{rTOT}, v{rR}")
    I(f"v_and_b32 v{rU}, 0xffff0000, v{rU}")
    I(f"v_rcp_f32 v{rU}, v{rU}")
    I(f"v_mul_f32 v{rTOT}, v{rTOT}, v{rU}")
    I(f"v_cvt_pk_bf16_f32 v{rU}, v{rTOT}, v{rTOT}")
    I(f"v_and_b32 v{rU}, 0xffff0000, v{rU}")
    I(f"v_add_f32 v{rU}, v{rU}, v{vB1}")
    I(f"v_cvt_pk_bf16_f32 v{rU}, v{rU}, v{rU}")
    I(f"v_and_b32 v{rU}, 0xffff0000, v{rU}")
    I(f"v_mul_f32 v{rT}, v{rU}, v{rU}")
    I(f"v_fma_f32 v{rT}, v{rT}, v{rC2}, v{rC1}")
    I(f"v_mul_f32 v{rT}, v{rT}, v{rU}")
    I(f"v_exp_f32 v{rT}, v{rT}")
    I(f"v_add_f32 v{rT}, 1.0, v{rT}")
    I(f"v_rcp_f32 v{rT}, v{rT}")
    I(f"v_mul_f32 v{rU}, v{rU}, v{rT}")
    pack_pairs(rU, T)
    I(f"v_mov_b32_dpp v{T+1}, v{T} quad_perm:[2,2,2,2] row_mask:0xf bank_mask:0xf")
    I(f"v_mov_b32_dpp v{T+2}, v{T} row_shl:4 row_mask:0xf bank_mask:0xf")
    I(f"v_mov_b32_dpp v{T+3}, v{T} row_shl:6 row_mask:0xf bank_mask:0xf")
    setexec(0x01010101, 0)
    lstore([f"buffer_store_dwordx4 {vr(T)}, v{vRP}, {WS}, s{sREG} offen"])
    setexec(0xFFFFFFFF, 0xFFFFFFFF)
    TS(22)
    I("s_branch L_next")

    a.label("L_W2")
    I(f"s_cmp_eq_u32 s{sIT}, 0")
    I("s_cbranch_scc0 L_W21")
    role_base()
    tr_addr(T + 47, 32, sT0)
    I("s_waitcnt vmcnt(0)")
    for ks in range(7):
        b = vRB + 4 * ks
        I(f"ds_read_b64_tr_b16 v[{b}:{b+1}], v{T+47} offset:{ks*1024}")
        I(f"ds_read_b64_tr_b16 v[{b+2}:{b+3}], v{T+47} offset:{ks*1024+128}")
    srd(TB, 50, 1280)
    I("s_waitcnt lgkmcnt(0)")
    TS(15)
    a.label("L_W21")
    for i in range(4):
        I(f"v_mov_b32 v{vFD+i}, 0")
    I(f"s_cmp_eq_u32 s{sX}, 0")
    I("s_cbranch_scc0 L_W22")
    I(f"s_sub_u32 s{sT0}, s{sR}, 27")
    I(f"s_lshl_b32 s{sT0}, s{sT0}, 8")
    I(f"s_lshl_b32 s{sT1}, s{sWAVE}, 5")
    I(f"s_add_u32 s{sT0}, s{sT0}, s{sT1}")
    I(f"v_lshrrev_b32 v{T+4}, 4, v{vLANE}")
    I(f"v_lshlrev_b32 v{T+4}, 3, v{T+4}")
    I(f"buffer_load_dwordx2 v[{T+2}:{T+3}], v{T+4}, {TB}, s{sT0} offen")
    I(f"s_add_u32 s{sT1}, s{sREG}, s{sNEAR}")
    poll([f"buffer_load_dwordx2 v[{T}:{T+1}], v{vA3}, {WS}, s{sT1} offen sc1"], [T, T + 1])
    unpack(vFD, vFD + 1, T)
    unpack(vFD + 2, vFD + 3, T + 1)
    for m in ("quad_perm:[1,0,3,2]", "quad_perm:[2,3,0,1]", "row_half_mirror"):
        for i in range(4):
            I(f"v_add_f32_dpp v{vFD+i}, v{vFD+i}, v{vFD+i} {m} row_mask:0xf bank_mask:0xf")
    I(f"v_cvt_pk_bf16_f32 v{T}, v{vFD}, v{vFD+1}")
    I(f"v_cvt_pk_bf16_f32 v{T+1}, v{vFD+2}, v{vFD+3}")
    unpack(vFD, vFD + 1, T)
    unpack(vFD + 2, vFD + 3, T + 1)
    unpack(T + 4, T + 5, T + 2)
    unpack(T + 6, T + 7, T + 3)
    I(f"v_pk_add_f32 v[{vFD}:{vFD+1}], v[{vFD}:{vFD+1}], v[{T+4}:{T+5}]")
    I(f"v_pk_add_f32 v[{vFD+2}:{vFD+3}], v[{vFD+2}:{vFD+3}], v[{T+6}:{T+7}]")
    a.label("L_W22")
    setexec(0x00010001, 0x00010001)
    poll([f"buffer_load_dwordx4 {vr(T+4*ks)}, v{vA0}, {WS}, s{sREG} offen offset:{ks*128} sc1" for ks in range(6)]
         + [f"buffer_load_dwordx4 {vr(T+24)}, v{vA1}, {WS}, s{sREG} offen sc1"], [T + 4 * ks for ks in range(7)],
         ex=(0x00010001, 0x00010001), simple=True)
    setexec(0xFFFFFFFF, 0xFFFFFFFF)
    TS(23)
    D2 = T + 28
    for ks in range(7):
        I(f"v_mfma_f32_16x16x32_bf16 {vr(D2)}, {vr(vRB+4*ks)}, {vr(T+4*ks)}, {vr(vFD) if ks == 0 else vr(D2)}")
    Y0 = T + 32
    if not y16:
        setexec(0x00010001, 0x00010001)
    I(f"v_cvt_pk_bf16_f32 v{Y0}, v{D2}, v{D2+1}")
    I(f"v_cvt_pk_bf16_f32 v{Y0+1}, v{D2+2}, v{D2+3}")
    I(f"v_min_u32 v{Y0}, 0xfffffffe, v{Y0}")
    I(f"v_min_u32 v{Y0+1}, 0xfffffffe, v{Y0+1}")
    if y16:
        I(f"v_permlane16_swap_b32 v{Y0}, v{Y0+2}")
        I(f"v_permlane16_swap_b32 v{Y0+1}, v{Y0+3}")
        setexec(1, 1)
        I(f"buffer_store_dwordx4 {vr(Y0)}, v{vA2}, {WS}, s{sREG} offen sc1")
    else:
        I(f"buffer_store_dwordx2 v[{Y0}:{Y0+1}], v{vA2}, {WS}, s{sREG} offen sc1")
        if dual:
            I(f"buffer_store_dwordx2 v[{Y0}:{Y0+1}], v{vA2}, {WS}, s{sREG2} offen sc1")
    setexec(0xFFFFFFFF, 0xFFFFFFFF)
    TS(24)

    a.label("L_next")
    I(f"s_add_u32 s{sIT}, s{sIT}, 1")
    I(f"s_add_u32 s{sREG}, s{sREG}, {RS}")
    I(f"s_add_u32 s{sREG2}, s{sREG2}, {RS}")
    I(f"s_cmp_lt_u32 s{sIT}, 2")
    I("s_cbranch_scc1 L_loop")
    I(f"s_cmp_eq_u32 s2, {LEAD_R * 8}")
    I("s_cbranch_scc0 L_fin")
    I(f"s_cmp_lt_u32 s{sWAVE}, 5")
    I("s_cbranch_scc1 L_loop")
    a.label("L_fin")
    if dbgt:
        srd(TA, 54, 256)
        I(f"v_add_u32 v{T}, 2, v{vLANE}")
        I(f"v_add_u32 v{T+1}, 4, v{vLANE}")
        I(f"v_cmp_gt_u32 vcc, 6, v{vLANE}")
        I(f"v_cndmask_b32 v{T}, v{T+1}, v{T}, vcc")
        I(f"v_lshlrev_b32 v{T}, 2, v{T}")
        setexec(0xFFF, 0)
        I(f"buffer_atomic_umax v{vTST}, v{T}, {TA}, 0 offen sc1")
        setexec(0xFFFFFFFF, 0xFFFFFFFF)
    if instr:
        TS(30)
        I(f"s_lshl_b32 s{sT0}, s2, 3")
        I(f"s_add_u32 s{sT0}, s{sT0}, s{sWAVE}")
        I(f"s_lshl_b32 s{sT0}, s{sT0}, 9")
        I(f"s_add_u32 s{sT0}, s{sT0}, {DBGOFF}")
        I(f"v_lshlrev_b32 v{T}, 3, v{vLANE}")
        I(f"buffer_store_dwordx2 v[{vTSI}:{vTST}], v{T}, {WS}, s{sT0} offen")
    a.label("L_end")
    I("s_endpgm")
    a.raw('.section .rodata,"a"\n.p2align 6')
    a.raw(f".amdhsa_kernel {KNAME}")
    a.raw("  .amdhsa_next_free_vgpr 256\n  .amdhsa_next_free_sgpr 102\n  .amdhsa_accum_offset 256\n"
          "  .amdhsa_group_segment_fixed_size 0\n  .amdhsa_kernarg_size 104\n  .amdhsa_user_sgpr_count 2\n"
          "  .amdhsa_user_sgpr_kernarg_segment_ptr 1\n  .amdhsa_system_sgpr_workgroup_id_x 1")
    a.raw(".end_amdhsa_kernel")
    open(fn, "w").write(a.text())
    return a.ninstr


if __name__ == "__main__":
    import argparse
    p = argparse.ArgumentParser()
    p.add_argument("-o", default="k.s")
    p.add_argument("--instr", action="store_true")
    p.add_argument("--kv", default="nt")
    p.add_argument("--w", default="")
    p.add_argument("--y16", action="store_true")
    p.add_argument("--nomask", action="store_true")
    p.add_argument("--nodual", action="store_true")
    p.add_argument("--n0", type=int, default=4)
    p.add_argument("--late", type=lambda x: int(x, 0), default=0x5f)
    p.add_argument("--r", default="")
    p.add_argument("--ncal", type=int, default=4)
    p.add_argument("--nw0", type=int, default=8)
    p.add_argument("--qk", type=int, default=16)
    p.add_argument("--qp", type=int, default=3)
    p.add_argument("--gate", type=int, default=4)
    p.add_argument("--dbgt", default=None)
    p.add_argument("--sp1", type=int, default=1)
    p.add_argument("--norot", action="store_true")
    p.add_argument("--syfl", default="")
    p.add_argument("--ts", default=None)
    p.add_argument("--noprio", action="store_true")
    args = p.parse_args()
    ts = None if args.ts is None else set(int(x) for x in args.ts.split(","))
    n = gen(args.o, instr=args.instr, kvflags=args.kv, wflags=args.w, y16=args.y16,
            masked_=not args.nomask, tsset=ts, n0=args.n0, late=args.late, rflags=args.r, ncal=args.ncal, dual=not args.nodual, prio=not args.noprio,
            nw0=args.nw0, qk=args.qk, rot=not args.norot, syfl=args.syfl, qp=args.qp, gate=args.gate, dbgt=[tuple(int(y) for y in x.split('.')) for x in args.dbgt.split(',')] if args.dbgt else None, sp1=args.sp1)
    print("instrs:", n)
```

```python
import sys, struct, math
from asmlib import Asm

KNAME = "interleave_layers__gqa_block_cached__mixer_channel_mlp__decode_kernel"

RS = 0x60000
POFF, ZOFF, QOFF, XOFF, MLOFF, YOFF = 0x0, 0x10000, 0x20000, 0x18000, 0x1c000, 0x30000
CALOFF = 0xC0000
CP = 0x2000
ZR, ZX = 512, 64
DBGOFF = 0x100000
WS_SIZE = 0x200000
BIG = 0x40000000
PP = 544
L_PB1, L_PB2, L_CS1, L_CS2, L_QB, L_ML, L_FLAG, L_DUM, L_PER, L_ROLE = (
    0, 2816, 7168, 7808, 8448, 8704, 8768, 8896, 10240, 51200)
LDS_TOTAL = 163840
NPER, NREST = 10, 26
L_RING, RSL = 51200, 36
L_W2, L_H, L_O = 92160, 8784, 133120
LEAD_R = 0

def f2u(x):
    return struct.unpack("<I", struct.pack("<f", x))[0]

L2E = f2u(1.4426950408889634)
SCALE = f2u(128 ** -0.5)
GC1 = -2.0 * 1.4426950408889634 * math.sqrt(2.0 / math.pi)
GC2 = GC1 * 0.044715

sWAVE, sX, sR, sIT, sREG = 3, 4, 5, 6, 7
K_SRD, V_SRD, WS, TA, TB, OUTS = "s[8:11]", "s[12:15]", "s[16:19]", "s[20:23]", "s[24:27]", "s[28:31]"
sROLE, sPURE, sSPIN = 58, 59, 60
sT0, sT1, sT2, sT3, sSLOT = 61, 62, 63, 72, 73
sF = 64
sXCC, sTB, sNT, sTSI = 74, 75, 76, 77
sL2E, sM = 80, 81
sRB, sRSTEP, sRN = 82, 83, 84
sKV = 85
sNEAR, sREG2, sVOTE = 78, 79, 81
sLATE, sQS, sKM, sYM = 100, 101, 42, 98
vLANE = 0
vGO, vXO, vPW, vSW, vQR, vOW, vMLW = 1, 2, 7, 8, 9, 10, 11
vPQ = 3
vA0, vA1, vA2, vA3 = 12, 13, 14, 15
vRDMA = 17
vTSI, vTST = 18, 19
vSEL = 20
vBQ = 28
vRB = 44
vFD = 72
T = 76
vK, vV = 128, 192
vRR, vQP, vQG, vCSQ, vCS1, vB1, vRP = 1, 2, 3, 4, 5, 6, 8
vXF = 72
vXFA = 16
HB5 = [28, 32, 36, 40, 64]
vCR, vCML, vCP, vCPM, vQG7 = 1, 2, 3, 4, 5


def vr(a, n=4):
    return f"v[{a}:{a+n-1}]"


def gen(fn, instr=False, kvflags="nt", wflags="", rflags="", spin_limit=400000, tsset=None,
        y16=False, masked_=True, dbgt=False, n0=4, late=0x78, dual=True, prio=True, ncal=4, nw0=8, qk=16, rot=True,
        syfl='', qp=3, gate=4, sp1=1, pt=0, ptr_=32, rmap=0, wk=0, calr=28, esy=1, th1=0, th2=0, rot2=2, dyn=1, tw=6, tp=16, yl=0, y64=0):
    assert not late & 0x80
    a = Asm()
    I = a.I
    a.raw(f"; @launch grid=(256,1,1) block=(512,1,1) lds={LDS_TOTAL}")
    a.raw('.amdgcn_target "amdgcn-amd-amdhsa--gfx950"')
    a.raw(".text")
    a.raw(f".globl {KNAME}\n.p2align 8\n.type {KNAME},@function\n{KNAME}:")

    def TS(k):
        if dbgt:
            for j, (kk, it, *mn) in enumerate(dbgt):
                if kk == k:
                    l = a.newlab("Ld")
                    I(f"s_cmp_eq_u32 s{sIT}, {it}")
                    I(f"s_cbranch_scc0 {l}")
                    I("s_memrealtime s[0:1]")
                    I("s_waitcnt lgkmcnt(0)")
                    if mn: I("s_not_b32 s0, s0")
                    I(f"v_writelane_b32 v{vTST}, s0, {j + 2}")
                    a.label(l)
            return
        if not instr or (tsset is not None and k not in tsset and k not in (0, 30)):
            return
        I("s_memrealtime s[0:1]")
        I("s_waitcnt lgkmcnt(0)")
        I(f"v_writelane_b32 v{vTSI}, {k}, s{sTSI}")
        I(f"s_mov_b32 m0, s{sTSI}")
        I(f"v_writelane_b32 v{vTST}, s0, m0")
        I(f"s_add_u32 s{sTSI}, s{sTSI}, 1")

    def srd(dst, ptr, size):
        d = int(dst[2:].split(":")[0])
        I(f"s_mov_b32 s{d}, s{ptr}")
        I(f"s_mov_b32 s{d+1}, s{ptr+1}")
        I(f"s_mov_b32 s{d+2}, {size:#x}")
        I(f"s_mov_b32 s{d+3}, 0x20000")

    def setexec(lo, hi):
        if lo == 0xFFFFFFFF and hi == 0xFFFFFFFF:
            I("s_mov_b64 exec, -1")
        else:
            I(f"s_mov_b32 exec_lo, {lo:#x}")
            I(f"s_mov_b32 exec_hi, {hi:#x}")

    def maxtree(tmp, rs):
        rs = list(rs)
        if len(rs) == 1:
            return rs[0]
        cur = None
        while rs:
            if cur is None:
                if len(rs) >= 3:
                    I(f"v_max3_u32 v{tmp}, v{rs[0]}, v{rs[1]}, v{rs[2]}"); rs = rs[3:]
                else:
                    I(f"v_max_u32 v{tmp}, v{rs[0]}, v{rs[1]}"); rs = rs[2:]
                cur = tmp
            elif len(rs) >= 2:
                I(f"v_max3_u32 v{tmp}, v{tmp}, v{rs[0]}, v{rs[1]}"); rs = rs[2:]
            else:
                I(f"v_max_u32 v{tmp}, v{tmp}, v{rs[0]}"); rs = rs[1:]
        return cur

    def poll(loads, regs, ex=(0xFFFFFFFF, 0xFFFFFFFF), groups=None, simple=False):
        lab = a.newlab("Lp"); done = a.newlab("Lpd")
        tmp = T + 50
        masked = masked_ and not simple
        if not masked:
            a.label(lab)
        for l in loads:
            I(l)
        if masked:
            a.label(lab)
        I(f"s_add_u32 s{sSPIN}, s{sSPIN}, 1")
        I("s_waitcnt vmcnt(0)")
        cur = maxtree(tmp, regs)
        I(f"v_cmp_eq_u32 vcc, -1, v{cur}")
        I(f"s_cbranch_vccz {done}")
        if masked:
            if groups is None or len(loads) == 1:
                I("s_mov_b64 exec, vcc")
                for l in loads:
                    I(l)
            else:
                for j, gr in enumerate(groups):
                    cur = maxtree(tmp + 1 - (j & 1), gr)
                    I(f"v_cmp_eq_u32 s[{86+2*j}:{87+2*j}], -1, v{cur}")
                for j, l in enumerate(loads):
                    I(f"s_mov_b64 exec, s[{86+2*j}:{87+2*j}]")
                    I(l)
            setexec(*ex)
        I(f"s_cmp_lt_u32 s{sSPIN}, {spin_limit}")
        I(f"s_cbranch_scc1 {lab}")
        if masked:
            I("s_waitcnt vmcnt(0)")
        a.label(done)

    def lstore(ins):
        l1 = a.newlab("Ls"); l2 = a.newlab("Lsd")
        I(f"s_cmp_eq_u32 s{sPURE}, 0")
        I(f"s_cbranch_scc1 {l1}")
        for x in ins: I(x)
        I(f"s_branch {l2}")
        a.label(l1)
        for x in ins: I(x + " sc1")
        a.label(l2)

    def unpack(lo, hi, src):
        I(f"v_lshlrev_b32 v{lo}, 16, v{src}")
        I(f"v_and_b32 v{hi}, 0xffff0000, v{src}")

    XA = T + 32
    ONES = T + 28

    I("s_cmp_ge_u32 s2, 256")
    I("s_cbranch_scc1 L_end")
    I("s_load_dwordx16 s[32:47], s[0:1], 0")
    I("s_load_dwordx8 s[48:55], s[0:1], 64")
    I("s_load_dwordx2 s[56:57], s[0:1], 96")
    if dbgt: I("s_memrealtime s[96:97]")
    I("v_lshrrev_b32 v1, 6, v0")
    I(f"v_and_b32 v{vLANE}, 63, v0")
    I(f"v_readfirstlane_b32 s{sWAVE}, v1")
    I(f"s_and_b32 s{sX}, s2, 7")
    I(f"s_lshr_b32 s{sR}, s2, 3")
    I(f"s_lshl_b32 s{sSLOT}, s{sX}, 5")
    I(f"s_add_u32 s{sSLOT}, s{sSLOT}, s{sR}")
    if rmap:
        I(f"s_mov_b32 s{sT0}, -5")
        I(f"s_cmp_lt_u32 s{sR}, 28")
        I(f"s_cselect_b32 s{sT0}, -8, s{sT0}")
        I(f"s_cmp_lt_u32 s{sR}, 16")
        I(f"s_cselect_b32 s{sT0}, 16, s{sT0}")
        I(f"s_cmp_lt_u32 s{sR}, 11")
        I(f"s_cselect_b32 s{sT0}, 12, s{sT0}")
        I(f"s_cmp_lt_u32 s{sR}, 8")
        I(f"s_cselect_b32 s{sT0}, 0, s{sT0}")
        I(f"s_add_u32 s{sR}, s{sR}, s{sT0}")
    g, n, q4, c4, t0, t1, t2, t3 = T, T+1, T+2, T+3, T+4, T+5, T+6, T+7
    aK = T + 48
    vAT = T + 44
    I(f"v_lshrrev_b32 v{g}, 4, v{vLANE}")
    I(f"v_and_b32 v{n}, 15, v{vLANE}")
    I(f"v_bfe_u32 v{q4}, v{vLANE}, 2, 2")
    I(f"v_and_b32 v{c4}, 3, v{vLANE}")
    I(f"v_lshlrev_b32 v{aK}, 8, v{q4}")
    I(f"v_lshl_add_u32 v{aK}, v{g}, 6, v{aK}")
    I(f"v_lshl_add_u32 v{aK}, v{c4}, 4, v{aK}")
    I(f"v_mul_u32_u24 v{vXO}, 320, v{q4}")
    I(f"v_lshl_add_u32 v{vXO}, v{g}, 4, v{vXO}")
    I(f"s_lshl_b32 s{sT0}, s{sWAVE}, 6")
    I(f"v_add_u32 v{vXO}, s{sT0}, v{vXO}")
    I(f"s_lshl_b32 s{sKV}, s{sSLOT}, 17")
    I(f"s_lshl_b32 s{sT0}, s{sWAVE}, 14")
    I(f"s_add_u32 s{sKV}, s{sKV}, s{sT0}")
    I(f"s_lshr_b32 s{sQS}, s{sSLOT}, 3")
    I(f"s_lshl_b32 s{sQS}, s{sQS}, 11")
    I(f"s_and_b32 s{sT1}, s{sSLOT}, 3")
    I(f"s_lshl_b32 s{sT0}, s{sT1}, 9")
    I(f"s_add_u32 s{sQS}, s{sQS}, s{sT0}")
    I(f"s_and_b32 s{sT0}, s{sSLOT}, 4")
    I(f"s_lshl_b32 s{sT0}, s{sT0}, 6")
    I(f"s_add_u32 s{sQS}, s{sQS}, s{sT0}")
    I(f"s_add_u32 s{sQS}, s{sQS}, {QOFF}")
    vW0, vW1, ta0, ta1 = T + 44, T + 45, T + 42, T + 43
    XQ, ACC, BUF = 28, 48, 80
    sBa, sEa, sPER, sRING, sSO, sMB, sRS_ = 86, 87, 90, 91, 92, 93, 94
    xq = T + 12
    I(f"s_and_b32 s{sT0}, s{sSLOT}, 3")
    I(f"s_mul_i32 s{sT0}, s{sT0}, 5")
    I(f"s_lshr_b32 s{sT1}, s{sSLOT}, 1")
    I(f"s_xor_b32 s{sT1}, s{sT1}, s{sWAVE}")
    I(f"s_bitcmp1_b32 s{sT1}, 1")
    I(f"s_cselect_b32 s{sT1}, {rot2}, 0")
    I(f"s_add_u32 s{sT1}, s{sT0}, s{sT1}")
    I(f"s_lshr_b32 s{sT0}, s{sSLOT}, 3")
    I(f"s_lshl_b32 s{sT0}, s{sT0}, 8")
    I(f"s_lshl_b32 s{sT2}, s{sWAVE}, 6")
    I(f"s_add_u32 s{sBa}, s{sT0}, s{sT2}")
    I(f"s_add_u32 s{sEa}, s{sBa}, {20 << 18:#x}")
    I(f"s_lshl_b32 s{sT2}, s{sT1}, 18")
    I(f"s_add_u32 s{sSO}, s{sBa}, s{sT2}")
    I(f"s_mul_i32 s{sPER}, s{sWAVE}, {NPER * 1024}")
    I(f"s_add_u32 s{sPER}, s{sPER}, {L_PER}")
    I(f"s_mul_i32 s{sRING}, s{sWAVE}, {NREST * 1024}")
    I(f"s_add_u32 s{sRING}, s{sRING}, {L_RING}")
    I(f"v_add_u32 v{t2}, s{sT1}, v{q4}")
    I(f"v_lshlrev_b32 v{t2}, 6, v{t2}")
    I(f"v_lshl_add_u32 v{t2}, v{g}, 4, v{t2}")
    for j in range(5):
        I(f"v_add_u32 v{xq+j}, {256*j}, v{t2}")
        I(f"v_subrev_u32 v{t3}, {1280 - 256*j}, v{t2}")
        I(f"v_min_u32 v{xq+j}, v{xq+j}, v{t3}")
    I(f"v_lshrrev_b32 v{vW0}, 2, v{vLANE}")
    I(f"v_lshlrev_b32 v{vW0}, 13, v{vW0}")
    I(f"v_lshrrev_b32 v{t3}, 4, v{vLANE}")
    I(f"v_and_b32 v{t3}, 2, v{t3}")
    I(f"v_xor_b32 v{t3}, v{t3}, v{c4}")
    I(f"v_lshl_add_u32 v{vW0}, v{t3}, 4, v{vW0}")
    I(f"v_add_u32 v{vW1}, {1 << 17:#x}, v{vW0}")
    I(f"v_lshlrev_b32 v{t0}, 4, v{vLANE}")
    cl = T + 8
    for i in range(4):
        I(f"v_mov_b32 v{cl+i}, -1")
    I(f"s_mov_b32 s{sTSI}, 0")
    if instr:
        I(f"v_mov_b32 v{vTSI}, -1")
        I(f"v_mov_b32 v{vTST}, 0")
    I(f"s_getreg_b32 s{sXCC}, hwreg(HW_REG_XCC_ID)")
    I(f"s_and_b32 s{sXCC}, s{sXCC}, 15")
    I(f"s_mul_i32 s{sT3}, s2, 3072")
    I("s_waitcnt lgkmcnt(0)")
    srd(WS, 56, WS_SIZE)
    srd(K_SRD, 34, 32 << 20)
    if dbgt:
        I(f"v_mov_b32 v{vTST}, 0")
        I(f"v_writelane_b32 v{vTST}, s96, 1")
        I("s_not_b32 s96, s96")
        I(f"v_writelane_b32 v{vTST}, s96, 0")
        I(f"s_mov_b32 s{sIT}, 0")
        TS(40)
    srd(TA, 38, 640 * 8192)
    srd(TB, 32, 1280)

    def k_issue(lo, hi, hook=None):
        for ki in range(lo, hi):
            if hook: hook(ki)
            if ki % 4 == 0 or ki == lo:
                I(f"s_add_u32 s{sT0}, s{sKV}, {(ki//4)*4096}")
            I(f"buffer_load_dwordx4 {vr(vK+4*ki)}, v{aK}, {K_SRD}, s{sT0} offen offset:{(ki%4)*1024} {kvflags}")

    I(f"s_cmp_eq_u32 s{sWAVE}, 6")
    I("s_cbranch_scc0 L_nclr")
    I(f"buffer_store_dwordx4 {vr(cl)}, v{t0}, {WS}, s{sT3} offen sc1")
    I(f"buffer_store_dwordx4 {vr(cl)}, v{t0}, {WS}, s{sT3} offen offset:1024 sc1")
    I(f"buffer_store_dwordx4 {vr(cl)}, v{t0}, {WS}, s{sT3} offen offset:2048 sc1")
    TS(0)
    I("s_branch L_early")
    a.label("L_nclr")
    I(f"s_cmp_ge_u32 s{sWAVE}, 4")
    I("s_cbranch_scc1 L_nwq")
    if prio: I(f"s_setprio {qp}")
    nis = [0]; nk = [0]; wpos = {}
    def slot(p):
        if p < NPER: return sPER, p * 1024
        return sRING, ((p - NPER) % NREST) * 1024
    def w_issue(lo, hi):
        for p in range(lo, hi):
            u, h = p >> 1, p & 1
            b_, o_ = slot(p)
            I(f"s_add_u32 m0, s{b_}, {o_}")
            I(f"buffer_load_dwordx4 v{(vW0, vW1)[h]}, {TA}, s{sSO} offen {wflags} lds")
            wpos[p] = nis[0]
            nis[0] += 1
            if h and p < 39:
                I(f"s_add_u32 s{sSO}, s{sSO}, {1 << 18:#x}")
                I(f"s_cmp_eq_u32 s{sSO}, s{sEa}")
                I(f"s_cselect_b32 s{sSO}, s{sBa}, s{sSO}")
    for j in range(5):
        I(f"buffer_load_dwordx4 {vr(XQ+4*j)}, v{xq+j}, {TB}, 0 offen")
        nis[0] += 1
    w_issue(0, nw0)
    TS(0)
    I("s_branch L_early")
    a.label("L_nwq")
    if pt:
        k_issue(0, 1)
        I(f"v_lshlrev_b32 v{t2}, 21, v{vLANE}")
        setexec(0x7, 0)
        I(f"s_cmp_eq_u32 s{sWAVE}, 4")
        I("s_cbranch_scc0 L_pt5")
        srd(TA, 36, 32 << 20)
        setexec(1, 0)
        I(f"buffer_load_dword v{vV}, v{t2}, {TA}, s{sKV} offen")
        I("s_branch L_ptd")
        a.label("L_pt5")
        I(f"s_cmp_lt_u32 s{sR}, {ptr_}")
        I("s_cbranch_scc0 L_ptd")
        I(f"s_cmp_eq_u32 s{sWAVE}, 5")
        I("s_cbranch_scc0 L_pt7")
        for ptr, size in ((40, 4096 * 1280), (44, 640 * 3456), (48, 1728 * 1280)):
            srd(TA, ptr, size)
            I(f"buffer_load_dword v{vV}, v{t2}, {TA}, 0 offen")
        I("s_branch L_ptd")
        a.label("L_pt7")
        for ptr, size in ((52, 1280), (50, 1280), (46, 3456)) + (((54, 256),) if pt > 1 else ()):
            srd(TA, ptr, size)
            I(f"buffer_load_dword v{vV}, v{t2}, {TA}, 0 offen")
        a.label("L_ptd")
        setexec(0xFFFFFFFF, 0xFFFFFFFF)
        k_issue(1, n0)
    else:
        k_issue(0, n0)
    TS(0)
    a.label("L_early")
    srd(V_SRD, 36, 32 << 20)
    srd(OUTS, 52, 1280)
    I(f"s_mov_b32 s{sIT}, 0")
    I(f"s_mov_b32 s{sREG}, 0")
    I(f"s_mov_b32 s{sREG2}, {CP}")
    I(f"s_mov_b32 s{sSPIN}, 0")
    I(f"s_mov_b32 s{sPURE}, 0")
    I(f"s_mov_b32 s{sNEAR}, 0")
    I(f"s_mov_b32 s{sL2E}, {L2E:#x}")
    I(f"s_lshr_b32 s{sLATE}, {late:#x}, s{sWAVE}")
    I(f"s_and_b32 s{sLATE}, s{sLATE}, 1")
    I(f"s_mov_b32 s{sROLE}, 3")
    if not dyn:
        I(f"s_mul_i32 s{sTB}, s{sX}, 7")
        I(f"s_cmp_eq_u32 s{sX}, 7")
        I(f"s_cselect_b32 s{sT0}, 21, 20")
        I(f"s_sub_u32 s{sTB}, s{sTB}, s{sT0}")
        I(f"s_add_u32 s{sTB}, s{sTB}, s{sR}")
        I(f"s_cmp_lt_u32 s{sX}, 6")
        I(f"s_cselect_b32 s{sT0}, 27, 26")
        I(f"s_cmp_lt_u32 s{sR}, s{sT0}")
        I(f"s_cselect_b32 s{sROLE}, 1, s{sROLE}")
    I(f"s_cmp_lt_u32 s{sR}, 20")
    I(f"s_cselect_b32 s{sROLE}, 0, s{sROLE}")
    I(f"s_cselect_b32 s{sLATE}, s{sLATE}, 0")
    for i in [1] + list(range(3, 18)):
        I(f"v_mov_b32 v{i}, {BIG:#x}")

    def v_issue():
        k1, k2, k3 = T + 49, T + 50, T + 51
        I(f"v_lshrrev_b32 v{k1}, 4, v{vLANE}")
        I(f"v_bfe_u32 v{k3}, v{vLANE}, 3, 1")
        I(f"v_lshl_add_u32 v{k3}, v{k3}, 3, v{k1}")
        I(f"v_lshlrev_b32 v{k3}, 8, v{k3}")
        I(f"v_and_b32 v{k2}, 7, v{vLANE}")
        I(f"v_lshl_add_u32 v{k3}, v{k2}, 4, v{k3}")
        def ticket():
            I(f"s_cmp_eq_u32 s{sWAVE}, {tw}")
            I("s_cbranch_scc0 L_ntk")
            I(f"s_cmp_eq_u32 s{sROLE}, 0")
            I("s_cbranch_scc1 L_ntk")
            srd(TA, 54, 256)
            I(f"v_mov_b32 v{vRDMA}, 1")
            setexec(1, 0)
            I(f"buffer_atomic_add v{vRDMA}, off, {TA}, 0 sc0 sc1")
            setexec(0xFFFFFFFF, 0xFFFFFFFF)
            a.label("L_ntk")
        for j in range(17):
            if dyn and j == tp: ticket()
            if j == 16: break
            if j % 4 == 0:
                I(f"s_add_u32 s{sT0}, s{sKV}, {(j//4)*4096}")
            u, hf = (j >> 1) & 1, j & 1
            I(f"buffer_load_dwordx4 {vr(vV+4*j)}, v{k3}, {V_SRD}, s{sT0} offen offset:{u*1024+hf*128} {kvflags}")

    def role_dma():
        I(f"s_lshl_b32 s{sT1}, s{sWAVE}, 13")
        I(f"s_add_u32 s{sT1}, s{sT1}, {L_ROLE}")
        I(f"s_mov_b32 s{sT0}, s{sRB}")
        for e in range(8):
            if e % 4 == 0:
                I(f"s_mov_b32 m0, s{sT1}")
                if e == 0:
                    I(f"s_add_u32 s{sT1}, s{sT1}, 4096")
            I(f"s_cmp_gt_u32 s{sRN}, {e}")
            I(f"s_cselect_b32 s{sT2}, s{sT0}, {BIG:#x}")
            I(f"buffer_load_dwordx4 v{vRDMA}, {TB}, s{sT2} offen offset:{(e%4)*1024} {rflags} lds")
            if e < 7:
                I(f"s_add_u32 s{sT0}, s{sT0}, s{sRSTEP}")
                if e % 4 == 3:
                    I(f"s_add_u32 s{sT0}, s{sT0}, 3072")
                else:
                    I(f"s_sub_u32 s{sT0}, s{sT0}, 1024")

    def rank_off(dst, rk, tmp):
        I(f"s_and_b32 s{tmp}, s{rk}, 15")
        I(f"s_mul_i32 s{tmp}, s{tmp}, {ZR}")
        I(f"s_lshr_b32 s{dst}, s{rk}, 4")
        I(f"s_lshl_b32 s{dst}, s{dst}, 14")
        I(f"s_add_u32 s{dst}, s{dst}, s{tmp}")

    I(f"s_cmp_ge_u32 s{sWAVE}, 5")
    I("s_cbranch_scc1 L_init567")
    I(f"v_bfe_u32 v{t0}, v{vLANE}, 3, 1")
    I(f"v_and_b32 v{t1}, 7, v{vLANE}")
    I(f"s_lshl_b32 s{sT1}, s{sWAVE}, 2")
    rank_off(sT0, sT1, sT2)
    I(f"v_mul_u32_u24 v{vGO}, {ZR}, v{t0}")
    I(f"v_mul_u32_u24 v{t1}, {ZX}, v{t1}")
    I(f"v_add3_u32 v{vGO}, v{vGO}, v{t1}, s{sT0}")
    I(f"v_lshl_add_u32 v{vGO}, v{g}, 4, v{vGO}")
    I(f"s_mul_i32 s{sT0}, s{sWAVE}, {PP}")
    I(f"s_add_u32 s{sT0}, s{sT0}, {L_PB1 + 512}")
    I(f"v_lshlrev_b32 v{t2}, 2, v{g}")
    I(f"v_add_u32 v{t2}, s{sT0}, v{t2}")
    I(f"v_lshlrev_b32 v{t3}, 2, v{vLANE}")
    I(f"v_add_u32 v{t3}, {L_DUM}, v{t3}")
    I(f"v_cmp_eq_u32 vcc, v{q4}, v{g}")
    I(f"v_cndmask_b32 v{vSW}, v{t3}, v{t2}, vcc")
    I(f"s_mul_i32 s{sT0}, s{sWAVE}, {PP}")
    I(f"v_lshlrev_b32 v{vPQ}, 4, v{g}")
    I(f"v_add_u32 v{vPQ}, s{sT0}, v{vPQ}")
    I(f"s_and_b32 s{sT0}, s{sSLOT}, 3")
    I(f"s_lshl_b32 s{sT0}, s{sT0}, 2")
    I(f"s_lshl_b32 s{sKM}, 0x00010001, s{sT0}")
    I(f"s_mov_b32 s{sKM+1}, s{sKM}")
    I("s_branch L_initc")

    a.label("L_init567")
    I(f"s_cmp_eq_u32 s{sWAVE}, 6")
    I("s_cbranch_scc1 L_initc")
    I(f"s_cmp_eq_u32 s{sWAVE}, 7")
    I("s_cbranch_scc1 L_init7")
    rank_off(sT0, sR, sT1)
    I(f"s_mul_i32 s{sT1}, s{sX}, {ZX}")
    I(f"s_add_u32 s{sT0}, s{sT0}, s{sT1}")
    I(f"s_add_u32 s{sRB}, s{sT0}, {ZOFF}")
    I(f"v_lshlrev_b32 v{vRR}, 4, v{vLANE}")
    I(f"v_lshlrev_b32 v{vQP}, 2, v{vLANE}")
    I(f"v_add_u32 v{vQP}, s{sQS}, v{vQP}")
    I(f"s_and_b32 s{sT0}, s{sQS}, {~2047 & 0xffffffff:#x}")
    I(f"v_lshlrev_b32 v{vQG}, 3, v{vLANE}")
    I(f"v_add_u32 v{vQG}, s{sT0}, v{vQG}")
    I(f"v_mov_b32 v{t0}, 0")
    I(f"v_mov_b32 v{t1}, 0")
    I(f"v_mov_b32 v{t2}, {L_FLAG}")
    I(f"ds_write_b64 v{t2}, v[{t0}:{t1}] offset:8")
    I(f"v_and_b32 v{t2}, 31, v{vLANE}")
    I(f"v_lshlrev_b32 v{t2}, 1, v{t2}")
    I(f"s_or_b32 s{sT2}, s{sROLE}, s{sX}")
    I(f"s_lshl_b32 s{sT1}, s{sR}, 6")
    I(f"s_cmp_eq_u32 s{sT2}, 0")
    I(f"s_cselect_b32 s{sT1}, s{sT1}, {BIG:#x}")
    I(f"buffer_load_ushort v{vXF}, v{t2}, {TB}, s{sT1} offen")
    I(f"v_lshrrev_b32 v{t1}, 3, v{vLANE}")
    I(f"v_lshlrev_b32 v{t1}, 4, v{t1}")
    I(f"v_add_u32 v{vRP}, s{sRB}, v{t1}")
    I(f"v_and_b32 v{t1}, 31, v{vLANE}")
    I(f"v_lshlrev_b32 v{t1}, 1, v{t1}")
    I(f"s_or_b32 s{sT2}, s{sROLE}, s{sX}")
    I(f"s_lshl_b32 s{sT1}, s{sR}, 6")
    I(f"s_add_u32 s{sT1}, s{sT1}, {XOFF}")
    I(f"s_cmp_eq_u32 s{sT2}, 0")
    I(f"s_cselect_b32 s{sT1}, s{sT1}, {BIG:#x}")
    I(f"v_add_u32 v{vXFA}, s{sT1}, v{t1}")
    I("s_branch L_initc")

    a.label("L_init7")
    I(f"v_lshlrev_b32 v{vCR}, 3, v{vLANE}")
    I(f"v_add_u32 v{vCR}, {L_O}, v{vCR}")
    I(f"v_and_b32 v{t0}, 7, v{vLANE}")
    I(f"v_lshlrev_b32 v{vCML}, 3, v{t0}")
    I(f"v_add_u32 v{vCML}, {L_ML}, v{vCML}")
    I(f"s_lshr_b32 s{sT0}, s{sSLOT}, 3")
    I(f"s_lshl_b32 s{sT1}, s{sT0}, 11")
    I(f"s_and_b32 s{sT2}, s{sSLOT}, 7")
    I(f"s_lshl_b32 s{sT3}, s{sT2}, 4")
    I(f"s_add_u32 s{sT1}, s{sT1}, s{sT3}")
    I(f"v_lshrrev_b32 v{t0}, 5, v{vLANE}")
    I(f"v_lshlrev_b32 v{vCP}, 10, v{t0}")
    I(f"v_lshl_add_u32 v{vCP}, v{q4}, 8, v{vCP}")
    I(f"v_and_b32 v{t0}, 1, v{g}")
    I(f"v_lshl_add_u32 v{vCP}, v{t0}, 7, v{vCP}")
    I(f"v_lshl_add_u32 v{vCP}, v{c4}, 2, v{vCP}")
    I(f"v_add_u32 v{vCP}, s{sT1}, v{vCP}")
    I(f"s_lshl_b32 s{sT0}, s{sT0}, 7")
    I(f"s_lshl_b32 s{sT2}, s{sT2}, 3")
    I(f"s_add_u32 s{sT0}, s{sT0}, s{sT2}")
    I(f"s_add_u32 s{sT0}, s{sT0}, {MLOFF}")
    I(f"v_mov_b32 v{vCPM}, s{sT0}")
    I(f"s_and_b32 s{sT0}, s{sQS}, {~2047 & 0xffffffff:#x}")
    I(f"v_lshlrev_b32 v{vQG7}, 3, v{vLANE}")
    I(f"v_add_u32 v{vQG7}, s{sT0}, v{vQG7}")

    a.label("L_initc")
    I(f"s_mov_b32 s{sRN}, 0")
    I(f"s_mov_b32 s{sRB}, 0")
    I(f"s_mov_b32 s{sRSTEP}, 0")
    srd(TB, 40, 4096 * 1280)
    I(f"v_lshrrev_b32 v{t0}, 2, v{vLANE}")
    I(f"v_lshlrev_b32 v{t1}, 4, v{c4}")
    I(f"s_cmp_eq_u32 s{sROLE}, 0")
    I("s_cbranch_scc0 L_rpd")
    I(f"s_lshl_b32 s{sT0}, s{sX}, 3")
    I(f"s_add_u32 s{sT0}, s{sT0}, s{sWAVE}")
    I(f"s_mul_i32 s{sT0}, s{sT0}, {64*1280}")
    I(f"s_lshl_b32 s{sT1}, s{sR}, 6")
    I(f"s_add_u32 s{sRB}, s{sT0}, s{sT1}")
    I(f"s_mov_b32 s{sRSTEP}, {16*1280}")
    I(f"s_mov_b32 s{sRN}, 4")
    I(f"v_mul_u32_u24 v{vRDMA}, 1280, v{t0}")
    I(f"v_add_u32 v{vRDMA}, v{vRDMA}, v{t1}")
    I(f"s_lshr_b32 s{sT0}, s{sWAVE}, 1")
    I(f"s_lshl_b32 s{sT1}, s{sX}, 2")
    I(f"s_add_u32 s{sT0}, s{sT0}, s{sT1}")
    I(f"s_lshl_b32 s{sT1}, s{sX}, 3")
    I(f"s_add_u32 s{sT1}, s{sT1}, s{sWAVE}")
    I(f"s_lshl_b32 s{sT1}, s{sT1}, 10")
    I(f"v_lshlrev_b32 v{t2}, 4, v{vLANE}")
    I(f"v_add_u32 v{vA0}, s{sT1}, v{t2}")
    I(f"v_xor_b32 v{t2}, v{g}, v{q4}")
    I(f"v_and_b32 v{t2}, 1, v{t2}")
    I(f"v_lshl_add_u32 v{t2}, v{t2}, 2, v{c4}")
    I(f"v_lshlrev_b32 v{t2}, 3, v{t2}")
    I(f"s_lshl_b32 s{sT0}, s{sT0}, 7")
    I(f"s_add_u32 s{sT0}, s{sT0}, {MLOFF}")
    I(f"v_add_u32 v{vA2}, s{sT0}, v{t2}")
    a.label("L_rpd")

    I(f"s_mul_i32 s{sT0}, s{sWAVE}, {PP}")
    I(f"v_lshlrev_b32 v{vPW}, 4, v{n}")
    I(f"v_lshl_add_u32 v{vPW}, v{g}, 2, v{vPW}")
    I(f"v_add_u32 v{vPW}, s{sT0}, v{vPW}")
    I(f"v_lshl_add_u32 v{vQR}, v{g}, 2, v{c4}")
    I(f"v_lshlrev_b32 v{vQR}, 4, v{vQR}")
    I(f"v_add_u32 v{vQR}, {L_QB}, v{vQR}")
    I(f"s_lshl_b32 s{sT0}, s{sWAVE}, 10")
    I(f"s_add_u32 s{sT0}, s{sT0}, {L_O}")
    I(f"v_bfe_u32 v{t0}, v{vLANE}, 3, 1")
    I(f"v_lshlrev_b32 v{vOW}, 9, v{t0}")
    I(f"v_and_b32 v{t0}, 7, v{vLANE}")
    I(f"v_lshl_add_u32 v{vOW}, v{t0}, 5, v{vOW}")
    I(f"v_and_b32 v{t1}, 1, v{g}")
    I(f"v_lshl_add_u32 v{vOW}, v{t1}, 4, v{vOW}")
    I(f"v_add_u32 v{vOW}, s{sT0}, v{vOW}")
    I(f"s_lshl_b32 s{sT0}, s{sWAVE}, 3")
    I(f"s_add_u32 s{sT0}, s{sT0}, {L_ML}")
    I(f"v_lshlrev_b32 v{vMLW}, 3, v{vLANE}")
    I(f"v_add_u32 v{vMLW}, {L_DUM}, v{vMLW}")
    I(f"v_writelane_b32 v{vMLW}, s{sT0}, 63")
    for u in range(2):
        for r in range(4):
            sb = 0x0100 if u == (r >> 1) else 0x0302
            d = vSEL + u * 4 + r
            I(f"v_mov_b32 v{d}, 0x0c0c0c0c")
            I(f"v_mov_b32 v{t1}, {0x0c0c0000 | sb:#x}")
            I(f"v_mov_b32 v{t2}, {(sb << 16) | 0x0c0c:#x}")
            I(f"v_cmp_eq_u32 vcc, {2*r}, v{t0}")
            I(f"v_cndmask_b32 v{d}, v{d}, v{t1}, vcc")
            I(f"v_cmp_eq_u32 vcc, {2*r+1}, v{t0}")
            I(f"v_cndmask_b32 v{d}, v{d}, v{t2}, vcc")

    def tr_addr(dst, pitch, base_s, x0=T + 48):
        x1 = x0 + 1
        I(f"v_lshrrev_b32 v{x0}, 4, v{vLANE}")
        I(f"v_bfe_u32 v{x1}, v{vLANE}, 2, 2")
        I(f"v_lshl_add_u32 v{x0}, v{x0}, 3, v{x1}")
        I(f"v_lshlrev_b32 v{x0}, {pitch.bit_length()-1}, v{x0}")
        I(f"v_and_b32 v{x1}, 3, v{vLANE}")
        I(f"v_lshl_add_u32 v{x0}, v{x1}, 3, v{x0}")
        I(f"v_add_u32 v{dst}, s{base_s}, v{x0}")

    def ones():
        for i in range(4):
            I(f"v_mov_b32 v{ONES+i}, 0x3f803f80")

    def gemv(ntile, Bbase, bidx):
        S1, S2 = T + 16, T + 20
        A0_, A1_ = vr(XA), vr(XA + 4)
        I(f"v_mfma_f32_16x16x32_bf16 {vr(S2)}, {A0_}, {A0_}, 0")
        I(f"v_mfma_f32_16x16x32_bf16 {vr(S2)}, {A1_}, {A1_}, {vr(S2)}")
        I(f"v_mfma_f32_16x16x32_bf16 {vr(S1)}, {A0_}, {vr(ONES)}, 0")
        I(f"v_mfma_f32_16x16x32_bf16 {vr(S1)}, {A1_}, {vr(ONES)}, {vr(S1)}")
        post = [
            f"v_pk_add_f32 v[{S2}:{S2+1}], v[{S2}:{S2+1}], v[{S2+2}:{S2+3}]",
            f"v_add_f32 v{S2}, v{S2}, v{S2+1}",
            f"v_add_f32_dpp v{S2}, v{S2}, v{S2} quad_perm:[1,0,3,2] row_mask:0xf bank_mask:0xf",
            f"v_pk_add_f32 v[{S1}:{S1+1}], v[{S1}:{S1+1}], v[{S1+2}:{S1+3}]",
            f"v_add_f32_dpp v{S2}, v{S2}, v{S2} quad_perm:[2,3,0,1] row_mask:0xf bank_mask:0xf",
            f"v_add_f32 v{S1}, v{S1}, v{S1+1}",
            f"v_add_f32_dpp v{S2}, v{S2}, v{S2} row_half_mirror row_mask:0xf bank_mask:0xf",
            f"ds_write2_b32 v{vSW}, v{S1}, v{S2} offset0:0 offset1:4",
        ]
        def dpost(t):
            D = T + 8 * t
            return [f"v_pk_add_f32 v[{D}:{D+1}], v[{D}:{D+1}], v[{D+2}:{D+3}]",
                    f"v_pk_add_f32 v[{D+4}:{D+5}], v[{D+4}:{D+5}], v[{D+6}:{D+7}]",
                    f"v_add_f32 v{D}, v{D}, v{D+1}",
                    f"v_add_f32_dpp v{D}, v{D+4}, v{D+5} quad_perm:[0,1,2,3] row_mask:0xc bank_mask:0xf",
                    f"ds_write_b32 v{vPW}, v{D} offset:{L_PB1 + t*256}"]
        for t in range(ntile):
            post += dpost(t)
        k = 0
        for t in range(ntile):
            for j in range(2):
                D = T + 8 * t + 4 * j
                for h in range(2):
                    I(f"v_mfma_f32_16x16x32_bf16 {vr(D)}, {(A0_, A1_)[h]}, {vr(Bbase+4*bidx(2*h+j,t))}, {vr(D) if h else '0'}")
                    k += 1
                    if k >= 5 and k < 4 * ntile:
                        for x in post[:2]: I(x)
                        post = post[2:]
        for x in post: I(x)
        I("s_waitcnt lgkmcnt(0)")

    def gemv_q(first=False):
        S1, S2 = T + 16, T + 20
        for t in range(4):
            I(f"v_mfma_f32_16x16x32_bf16 {vr(T+4*t)}, {vr(vBQ+4*t)}, {vr(XA)}, 0")
        I(f"v_mfma_f32_16x16x32_bf16 {vr(S1)}, {vr(XA)}, {vr(ONES)}, 0")
        I(f"v_mfma_f32_16x16x32_bf16 {vr(S2)}, {vr(XA)}, {vr(XA)}, 0")
        if first:
            for t in range(4):
                I(f"v_mfma_f32_16x16x32_bf16 {vr(vRB+4*t)}, {vr(vBQ+4*t)}, {vr(ONES)}, 0")
        I(f"s_mov_b64 exec, s[{sKM}:{sKM+1}]")
        for t in range(4):
            I(f"ds_write_b128 v{vPQ}, {vr(T+4*t)} offset:{L_PB1 + t*64}")
        if first:
            for t in range(4):
                I(f"ds_write_b128 v{vPQ}, {vr(vRB+4*t)} offset:{L_PB1 + 256 + t*64}")
        I("s_mov_b64 exec, -1")
        I(f"ds_write2_b32 v{vSW}, v{S1}, v{S2} offset0:0 offset1:4")
        I("s_waitcnt lgkmcnt(0)")

    def gather(sreg):
        poll([f"buffer_load_dwordx4 {vr(XA)}, v{vGO}, {WS}, s{sreg} offen sc1",
              f"buffer_load_dwordx4 {vr(XA+4)}, v{vGO}, {WS}, s{sreg} offen offset:{2*ZR} sc1"],
             [XA, XA + 4], groups=[[XA], [XA + 4]])

    def reduce_read(nw, base):
        for v in range(nw):
            I(f"ds_read_b128 {vr(T+4*v)}, v{vRR} offset:{base + v*PP}")

    def reduce_sum(nw, dst):
        np_ = 2 * nw
        idx = list(range(np_))
        while len(idx) > 1:
            nx = []
            for i in range(0, len(idx) - 1, 2):
                d, s = idx[i], idx[i + 1]
                I(f"v_pk_add_f32 v[{T+2*d}:{T+2*d+1}], v[{T+2*d}:{T+2*d+1}], v[{T+2*s}:{T+2*s+1}]")
                nx.append(d)
            if len(idx) % 2:
                nx.append(idx[-1])
            idx = nx
        I(f"v_add_f32 v{dst}, v{T}, v{T+1}")

    rTOT, rMEAN, rVAR, rMB, rSD, rR, rU, rT, rINV, rC1, rC2, rCS = [T + 32 + i for i in range(12)]

    def cs_read(area, dst):
        l = a.newlab("Lcs")
        I(f"s_cmp_eq_u32 s{sIT}, 0")
        I(f"s_cbranch_scc0 {l}")
        I(f"v_lshrrev_b32 v{rT}, 2, v{vRR}")
        for v in range(5):
            I(f"ds_read_b32 v{T+24+v}, v{rT} offset:{area + v*128}")
        I("s_waitcnt lgkmcnt(0)")
        I(f"v_add_f32 v{dst}, v{T+24}, v{T+25}")
        I(f"v_add_f32 v{rT}, v{T+26}, v{T+27}")
        I(f"v_add_f32 v{dst}, v{dst}, v{T+28}")
        I(f"v_add_f32 v{dst}, v{dst}, v{rT}")
        a.label(l)

    def stats(l0=32):
        if l0 is not None:
            I(f"v_readlane_b32 s{sT0}, v{rTOT}, {l0}")
            I(f"v_readlane_b32 s{sT1}, v{rTOT}, {l0+1}")
            I(f"v_mul_f32 v{rMEAN}, s{sT0}, v{rINV}")
            I(f"v_mul_f32 v{rVAR}, s{sT1}, v{rINV}")
        I(f"v_fma_f32 v{rVAR}, -v{rMEAN}, v{rMEAN}, v{rVAR}")
        I(f"v_max_f32 v{rVAR}, 0, v{rVAR}")
        I(f"v_cvt_pk_bf16_f32 v{rT}, v{rMEAN}, v{rVAR}")
        I(f"v_and_b32 v{rU}, 0xffff0000, v{rT}")
        I(f"v_lshlrev_b32 v{rMB}, 16, v{rT}")
        I(f"v_add_f32 v{rU}, {f2u(1e-5):#x}, v{rU}")
        I(f"v_cvt_pk_bf16_f32 v{rU}, v{rU}, v{rU}")
        I(f"v_and_b32 v{rU}, 0xffff0000, v{rU}")
        I(f"v_sqrt_f32 v{rU}, v{rU}")
        I(f"v_cvt_pk_bf16_f32 v{rU}, v{rU}, v{rU}")
        I(f"v_and_b32 v{rSD}, 0xffff0000, v{rU}")
        I(f"v_rcp_f32 v{rR}, v{rSD}")

    def pack_pairs(src, dst):
        I(f"v_mov_b32_dpp v{rT}, v{src} quad_perm:[1,0,3,2] row_mask:0xf bank_mask:0xf")
        I(f"v_cvt_pk_bf16_f32 v{dst}, v{src}, v{rT}")
        I(f"v_min_u32 v{dst}, 0xfffffffe, v{dst}")

    def q_reduce(first=False):
        qa, qs, QS = T + 44, T + 45, T + 20
        I(f"v_lshlrev_b32 v{qa}, 2, v{vLANE}")
        I(f"v_and_b32 v{qs}, 1, v{vLANE}")
        I(f"v_lshlrev_b32 v{qs}, 4, v{qs}")
        return qa, qs, QS

    def q_reduce2(qa, qs, QS, first=False):
        for v in range(5):
            I(f"ds_read_b128 {vr(T+4*v)}, v{qs} offset:{L_PB1 + 512 + v*PP}")
        for v in range(5):
            I(f"ds_read_b32 v{QS+v}, v{qa} offset:{L_PB1 + v*PP}")
        if first:
            for v in range(5):
                I(f"ds_read_b32 v{QS+5+v}, v{qa} offset:{L_PB1 + 256 + v*PP}")
        I(f"s_waitcnt lgkmcnt({10 if first else 5})")
        reduce_sum(5, rTOT)
        stats(0)
        I("s_waitcnt lgkmcnt(0)")
        I(f"v_add_f32 v{QS}, v{QS}, v{QS+1}")
        I(f"v_add_f32 v{QS+2}, v{QS+2}, v{QS+3}")
        I(f"v_add_f32 v{QS}, v{QS}, v{QS+4}")
        I(f"v_add_f32 v{QS}, v{QS}, v{QS+2}")
        if first:
            I(f"v_add_f32 v{vCSQ}, v{QS+5}, v{QS+6}")
            I(f"v_add_f32 v{QS+7}, v{QS+7}, v{QS+8}")
            I(f"v_add_f32 v{vCSQ}, v{vCSQ}, v{QS+9}")
            I(f"v_add_f32 v{vCSQ}, v{vCSQ}, v{QS+7}")
        I(f"v_fma_f32 v{rU}, -v{rMB}, v{vCSQ}, v{QS}")
        I(f"v_mul_f32 v{rU}, v{rU}, v{rR}")
        I(f"v_min_u32 v{rU}, 0xfffffffe, v{rU}")

    def q_gather(va, qa):
        poll([f"buffer_load_dwordx2 v[{T+2*k}:{T+2*k+1}], v{va}, {WS}, s{sREG} offen offset:{k*512} sc1" for k in range(4)],
             list(range(T, T + 8)), groups=[[T + 2 * k, T + 2 * k + 1] for k in range(4)])
        I(f"v_pk_add_f32 v[{T}:{T+1}], v[{T}:{T+1}], v[{T+2}:{T+3}]")
        I(f"v_pk_add_f32 v[{T+4}:{T+5}], v[{T+4}:{T+5}], v[{T+6}:{T+7}]")
        I(f"v_pk_add_f32 v[{T}:{T+1}], v[{T}:{T+1}], v[{T+4}:{T+5}]")
        I(f"v_cvt_pk_bf16_f32 v{T}, v{T}, v{T+1}")
        I(f"ds_write_b32 v{qa}, v{T} offset:{L_QB}")

    def lds_wait(off, val, ge=False):
        lab = a.newlab("Lw"); done = a.newlab("Lwd")
        I(f"v_mov_b32 v{T+47}, {L_FLAG}")
        a.label(lab)
        I(f"ds_read_b32 v{T+46}, v{T+47} offset:{off}")
        I(f"s_add_u32 s{sSPIN}, s{sSPIN}, 1")
        I("s_waitcnt lgkmcnt(0)")
        I(f"v_readfirstlane_b32 s{sT3}, v{T+46}")
        I(f"s_cmp_{'ge' if ge else 'eq'}_u32 s{sT3}, {val}")
        I(f"s_cbranch_scc1 {done}")
        I(f"s_cmp_lt_u32 s{sSPIN}, {spin_limit}")
        I(f"s_cbranch_scc1 {lab}")
        a.label(done)

    def sp(p):
        if prio: I(f"s_setprio {p}")

    I(f"v_mov_b32 v{rINV}, {f2u(1.0/640):#x}")
    I("s_waitcnt lgkmcnt(0)")
    I("s_barrier")
    TS(1)
    I(f"s_cmp_ge_u32 s{sWAVE}, 4")
    I("s_cbranch_scc1 L_s4567")
    srd(TA, 38, 640 * 8192)
    w_issue(nw0, RSL)
    TS(37)
    tr_addr(ta0, 64, sPER, T + 25)
    I(f"s_sub_u32 s{sPER}, s{sRING}, s{sPER}")
    I(f"v_bfe_u32 v{T+25}, v{vLANE}, 4, 1")
    I(f"v_lshl_add_u32 v{ta0}, v{T+25}, 5, v{ta0}")
    I(f"v_xor_b32 v{ta1}, 32, v{ta0}")
    I(f"s_waitcnt vmcnt({nis[0] - 5})")
    setexec(0x22222222, 0x22222222)
    for i in range(20):
        I(f"v_mov_b32 v{XQ+i}, 0x3f803f80")
    setexec(0xFFFFFFFF, 0xFFFFFFFF)
    for j in range(5):
        I(f"v_mfma_f32_16x16x32_bf16 {vr(BUF)}, {vr(XQ+4*j)}, {vr(XQ+4*j)}, {vr(BUF) if j else '0'}")
    for i in range(4):
        I(f"v_readlane_b32 s{sF+i}, v{BUF}, {20*i+1}")
        I(f"v_readlane_b32 s{sF+4+i}, v{BUF}, {20*i}")
    I(f"v_mov_b32 v{rMEAN}, s{sF}")
    I(f"v_mov_b32 v{rVAR}, s{sF+4}")
    for i in range(1, 4):
        I(f"v_add_f32 v{rMEAN}, s{sF+i}, v{rMEAN}")
        I(f"v_add_f32 v{rVAR}, s{sF+4+i}, v{rVAR}")
    I(f"v_mul_f32 v{rMEAN}, v{rMEAN}, v{rINV}")
    I(f"v_mul_f32 v{rVAR}, v{rVAR}, v{rINV}")
    stats(None)
    I(f"v_readfirstlane_b32 s{sMB}, v{rMB}")
    I(f"v_readfirstlane_b32 s{sRS_}, v{rR}")
    TS(2)
    def q_mma(u):
        for t in range(2):
            acc = ACC + 16 * t + 4 * (u & 3)
            I(f"v_mfma_f32_16x16x32_bf16 {vr(acc)}, {vr(BUF + 8*(u%4) + 4*t)}, {vr(XQ+4*(u>>2))}, {vr(acc) if u >= 4 else '0'}")
    for u in range(20):
        I(f"s_waitcnt vmcnt({nis[0] - wpos[2*u+1] - 1})")
        if u == 0: TS(38)
        o = slot(2 * u)[1]
        if 2 * u == NPER:
            I(f"v_add_u32 v{ta0}, s{sPER}, v{ta0}")
            I(f"v_add_u32 v{ta1}, s{sPER}, v{ta1}")
        for t in range(2):
            b = BUF + 8 * (u % 4) + 4 * t
            I(f"ds_read_b64_tr_b16 v[{b}:{b+1}], v{(ta0, ta1)[t]} offset:{o}")
            I(f"ds_read_b64_tr_b16 v[{b+2}:{b+3}], v{(ta0, ta1)[t]} offset:{o+256}")
        if u:
            I("s_waitcnt lgkmcnt(4)")
            q_mma(u - 1)
            p = 2 * (u - 1) + NREST
            if RSL <= p < 40:
                w_issue(p, p + 2)
                if p + 2 == 40:
                    k_issue(nk[0], qk)
                    nis[0] += qk - nk[0]
                    TS(39)
    I(f"v_mov_b32 v{BUF+0}, {L_FLAG}")
    I(f"v_mov_b32 v{BUF+1}, 1")
    I(f"v_lshrrev_b32 v{BUF+2}, 4, v{vLANE}")
    I(f"v_lshlrev_b32 v{BUF+2}, 3, v{BUF+2}")
    I(f"s_lshl_b32 s{sT0}, s{sWAVE}, 6")
    I(f"v_add_u32 v{BUF+2}, s{sT0}, v{BUF+2}")
    I(f"v_mov_b32 v{BUF+3}, s{sMB}")
    I(f"v_xor_b32 v{BUF+3}, 0x80000000, v{BUF+3}")
    I("s_waitcnt lgkmcnt(0)")
    q_mma(19)
    for aa in range(1, 4):
        for t in range(2):
            for i in range(4):
                d = ACC + 16 * t + i
                I(f"v_add_f32_dpp v{d}, v{d+4*aa}, v{d} row_shl:{4*aa} row_mask:0xf bank_mask:0xf")
    for t in range(2):
        for i in range(4):
            d = ACC + 16 * t + i
            I(f"v_fmac_f32_dpp v{d}, v{d}, v{BUF+3} quad_perm:[1,1,1,1] row_mask:0xf bank_mask:0xf")
    for t in range(2):
        for i in range(4):
            d = ACC + 16 * t + i
            I(f"v_mul_f32 v{d}, s{sRS_}, v{d}")
    for t in range(2):
        d = ACC + 16 * t
        I(f"v_cvt_pk_bf16_f32 v{d}, v{d}, v{d+1}")
        I(f"v_cvt_pk_bf16_f32 v{d+1}, v{d+2}, v{d+3}")
    setexec(0x00010001, 0x00010001)
    for t in range(2):
        d = ACC + 16 * t
        I(f"ds_write_b64 v{BUF+2}, v[{d}:{d+1}] offset:{L_QB + 32*t}")
    setexec(1, 0)
    I("s_waitcnt lgkmcnt(0)")
    I(f"ds_add_u32 v{BUF+0}, v{BUF+1} offset:12")
    setexec(0xFFFFFFFF, 0xFFFFFFFF)
    TS(5)
    sp(sp1)
    k_issue(qk, 16)
    I("s_branch L_vall")

    a.label("L_s4567")
    I(f"s_cmp_eq_u32 s{sWAVE}, 6")
    I("s_cbranch_scc0 L_krest")
    sp(3)
    I(f"s_mov_b32 s{sVOTE}, 0")
    I(f"s_sub_u32 s{sT0}, s{sR}, {calr}")
    I(f"s_cmp_lt_u32 s{sT0}, {ncal}")
    I("s_cbranch_scc0 L_ncal")
    MK = 0x13579bdf
    I(f"s_lshl_b32 s{sT0}, s{sT0}, 3")
    I(f"s_add_u32 s{sT0}, s{sT0}, s{sX}")
    I(f"s_lshl_b32 s{sT0}, s{sT0}, 7")
    I(f"s_add_u32 s88, s{sT0}, {CALOFF + 0x10000}")
    I(f"s_load_dword s86, s[56:57], s88 glc")
    I(f"s_add_u32 s{sT0}, s{sT0}, {CALOFF}")
    I(f"s_lshl_b32 s{sVOTE}, s{sR}, 13")
    I(f"s_and_b32 s{sVOTE}, s{sVOTE}, {CP}")
    I(f"s_add_u32 s{sT0}, s{sT0}, s{sVOTE}")
    I(f"s_xor_b32 s{sT3}, s{sT0}, {CP}")
    I(f"s_lshr_b32 s{sVOTE}, s{sVOTE}, 13")
    I(f"s_lshr_b32 s88, s{sXCC}, 2")
    I(f"s_xor_b32 s{sVOTE}, s{sVOTE}, s88")
    I("s_waitcnt lgkmcnt(0)")
    for k, (ad, cnt) in enumerate(((sT0, 88), (sT3, 89))):
        I(f"s_mov_b32 s86, {MK:#x}")
        I(f"s_mov_b32 s{cnt}, 0")
        I(f"s_load_dword s86, s[56:57], s{ad} glc")
        a.label(f"L_cal{k}")
        I(f"s_add_u32 s{cnt}, s{cnt}, 1")
        I(f"s_cmp_eq_u32 s86, {MK:#x}")
        I(f"s_cselect_b32 s87, s{cnt}, 1000")
        I(f"s_cmp_lt_u32 s87, 200")
        I(f"s_cbranch_scc1 L_cal{k}")
        I("s_waitcnt lgkmcnt(0)")
    I(f"s_cmp_gt_u32 s88, s89")
    I(f"s_cselect_b32 s{sT0}, 1, 0")
    I(f"s_xor_b32 s{sVOTE}, s{sVOTE}, s{sT0}")
    I(f"s_and_b32 s{sVOTE}, s{sVOTE}, 1")
    I(f"s_lshl_b32 s{sVOTE}, s{sVOTE}, 24")
    a.label("L_ncal")
    I(f"s_mul_i32 s{sT0}, s{sXCC}, 6")
    I(f"s_lshl_b64 s[{sF}:{sF+1}], 1, s{sT0}")
    I(f"s_cmp_lt_u32 s{sXCC}, 8")
    I(f"s_cselect_b32 s{sF}, s{sF}, 0")
    I(f"s_cselect_b32 s{sF+1}, s{sF+1}, 0")
    I(f"s_or_b32 s{sF+1}, s{sF+1}, 0x10000")
    I(f"s_or_b32 s{sF+1}, s{sF+1}, s{sVOTE}")
    srd(TA, 54, 256)
    I(f"v_mov_b32 v{vAT}, s{sF}")
    I(f"v_mov_b32 v{vAT+1}, s{sF+1}")
    I(f"s_lshl_b32 s{sT0}, s{sX}, 4")
    I(f"v_mov_b32 v{vAT+2}, s{sT0}")
    TS(33)
    I("s_waitcnt vmcnt(0)")
    setexec(1, 0)
    I(f"buffer_atomic_add_x2 v[{vAT}:{vAT+1}], v{vAT+2}, {TA}, 0 offen offset:128 sc1")
    setexec(0xFFFFFFFF, 0xFFFFFFFF)
    TS(32)
    sp(0)
    k_issue(0, n0)
    a.label("L_krest")
    k_issue(n0, 16)
    a.label("L_vall")
    v_issue()
    TS(31)
    for i in range(16):
        I(f"v_mov_b32 v{T+i}, 0")
    if gate:
        I(f"v_mov_b32 v{T+24}, {L_FLAG}")
        I(f"v_mov_b32 v{T+25}, 1")
        setexec(1, 0)
        I(f"ds_add_u32 v{T+24}, v{T+25} offset:8")
        setexec(0xFFFFFFFF, 0xFFFFFFFF)
    lds_wait(12, 4)
    TS(8)
    I("s_branch L_att")

    a.label("L_loop")
    I(f"s_cmp_eq_u32 s{sWAVE}, 6")
    I("s_cbranch_scc0 L_nsub")
    I(f"s_cmp_eq_u32 s{sROLE}, 0")
    I("s_cbranch_scc0 L_B1")
    SL, YD, YA, ya0, ya1, yo = T + 20, T, T + 24, T + 28, T + 29, T + 30
    srd(TA, 50, 1280)
    I(f"v_lshlrev_b32 v{ya0}, 4, v{vLANE}")
    for i in range(4):
        I(f"v_mov_b32 v{YD+i}, 0")
    I(f"s_lshl_b32 s{sT2}, s{sR}, 6")
    I(f"v_subrev_u32 v{ya1}, 512, v{ya0}")
    setexec(0, 0xF)
    I(f"buffer_load_dwordx4 {vr(YD)}, v{ya1}, {TA}, s{sT2} offen")
    setexec(0xFFFFFFFF, 0xFFFFFFFF)
    I(f"v_and_b32 v{yo}, 15, v{vLANE}")
    I(f"v_mov_b32 v{YA}, 0x3f80")
    I(f"v_mov_b32 v{YA+1}, 0x3f800000")
    for q_ in range(4):
        I(f"v_cmp_eq_u32 vcc, {2*q_}, v{yo}")
        I(f"v_cndmask_b32 v{SL+q_}, 0, v{YA}, vcc")
        I(f"v_cmp_eq_u32 vcc, {2*q_+1}, v{yo}")
        I(f"v_cndmask_b32 v{SL+q_}, v{SL+q_}, v{YA+1}, vcc")
    I(f"v_mov_b32 v{ya1}, {BIG:#x}")
    I(f"v_cmp_gt_u32 vcc, 24, v{vLANE}")
    I(f"v_cndmask_b32 v{ya1}, v{ya1}, v{ya0}, vcc")
    I(f"v_lshlrev_b32 v{yo}, 4, v{yo}")
    I(f"v_lshrrev_b32 v{YA}, 4, v{vLANE}")
    I(f"v_lshl_add_u32 v{yo}, v{YA}, 3, v{yo}")
    I(f"v_add_u32 v{yo}, s{sT2}, v{yo}")
    rank_off(sT0, sR, sT1)
    I(f"s_add_u32 s{sT3}, s{sREG}, s{sNEAR}")
    I(f"s_add_u32 s{sT0}, s{sT0}, s{sT3}")
    I(f"s_add_u32 s{sT0}, s{sT0}, {ZOFF - RS & 0xffffffff:#x}")
    setexec(0xFFFFFFFF, 0)
    poll([f"buffer_load_dwordx4 {vr(YD)}, v{ya0}, {WS}, s{sT0} offen sc1"], [YD], ex=(0xFFFFFFFF, 0))
    setexec(0xFFFFFFFF, 0xFFFFFFFF)
    I(f"v_mfma_f32_16x16x32_bf16 {vr(YA)}, {vr(SL)}, {vr(YD)}, 0")
    I(f"s_and_b32 s{sT0}, s{sR}, 1")
    I(f"s_lshl_b32 s{sT0}, s{sT0}, 12")
    I(f"s_lshr_b32 s{sT1}, s{sR}, 1")
    I(f"s_lshl_b32 s{sT1}, s{sT1}, 14")
    I(f"s_add_u32 s{sT0}, s{sT0}, s{sT1}")
    I(f"s_add_u32 s{sT0}, s{sT0}, s{sT3}")
    I(f"s_add_u32 s{sT0}, s{sT0}, {YOFF - RS & 0xffffffff:#x}")
    I(f"s_lshl_b32 s{sT2}, s{sX}, 11")
    I(f"s_add_u32 s{sT2}, s{sT2}, {XOFF}")
    I("s_nop 7")
    TS(26)
    if yl:
        setexec((1 << yl) - 1, 0)
        a.label("L_yl")
        I(f"buffer_load_dword v{YD}, v{ya0}, {WS}, s{sT0} offen sc1")
        I(f"s_add_u32 s{sSPIN}, s{sSPIN}, 1")
        I("s_waitcnt vmcnt(0)")
        I(f"v_cmp_ne_u32 vcc, -1, v{YD}")
        I("s_cbranch_vccnz L_yld")
        I(f"s_cmp_lt_u32 s{sSPIN}, {spin_limit}")
        I("s_cbranch_scc1 L_yl")
        a.label("L_yld")
        setexec(0xFFFFFFFF, 0xFFFFFFFF)
    poll([f"buffer_load_dwordx4 {vr(YD+4*e)}, v{ya1 if e == 3 else ya0}, {WS}, s{sT0} offen offset:{e*1024} sc1" for e in range(4)],
         [YD + 2 * k for k in range(8)], groups=[[YD + 4 * e, YD + 4 * e + 2] for e in range(4)])
    TS(27)
    for e in range(4):
        I(f"v_mfma_f32_16x16x32_bf16 {vr(YA)}, {vr(SL)}, {vr(YD+4*e)}, {vr(YA)}")
    for m_ in (4, 8):
        for i in range(4):
            I(f"v_add_f32_dpp v{YA+i}, v{YA+i}, v{YA+i} row_ror:{m_} row_mask:0xf bank_mask:0xf")
    I(f"v_cvt_pk_bf16_f32 v{YA}, v{YA}, v{YA+1}")
    I(f"v_cvt_pk_bf16_f32 v{YA+1}, v{YA+2}, v{YA+3}")
    setexec(0x000F000F, 0)
    I(f"s_cmp_eq_u32 s{sIT}, 2")
    I("s_cbranch_scc0 L_lead1")
    I(f"buffer_store_dwordx2 v[{YA}:{YA+1}], v{yo}, {OUTS}, 0 offen")
    setexec(0xFFFFFFFF, 0xFFFFFFFF)
    TS(29)
    I("s_branch L_fin")
    a.label("L_lead1")
    I(f"v_min_u32 v{YA}, 0xfffffffe, v{YA}")
    I(f"v_min_u32 v{YA+1}, 0xfffffffe, v{YA+1}")
    lstore([f"buffer_store_dwordx2 v[{YA}:{YA+1}], v{yo}, {WS}, s{sT2} offen"])
    setexec(0xFFFFFFFF, 0xFFFFFFFF)
    TS(28)
    I("s_branch L_B1")
    a.label("L_nsub")
    I(f"s_cmp_ge_u32 s{sWAVE}, 5")
    I("s_cbranch_scc1 L_B1")
    I(f"s_lshl_b32 s{sT0}, s{sWAVE}, 11")
    I(f"s_and_b32 s{sT1}, s{sSLOT}, 4")
    I(f"s_mul_i32 s{sT1}, s{sT1}, {NPER * 512}")
    I(f"s_add_u32 s{sT0}, s{sT0}, s{sT1}")
    I(f"s_add_u32 s{sT0}, s{sT0}, {L_PER}")
    ta = T + 24
    tr_addr(ta, 64, sT0, T + 25)
    I(f"v_bfe_u32 v{T+25}, v{vLANE}, 4, 1")
    I(f"v_lshl_add_u32 v{ta}, v{T+25}, 5, v{ta}")
    I(f"v_xor_b32 v{ta+1}, 32, v{ta}")
    for t in range(4):
        o = (t >> 1) * NPER * 1024
        I(f"ds_read_b64_tr_b16 v[{vBQ+4*t}:{vBQ+4*t+1}], v{ta+(t&1)} offset:{o}")
        I(f"ds_read_b64_tr_b16 v[{vBQ+4*t+2}:{vBQ+4*t+3}], v{ta+(t&1)} offset:{o+256}")
    ones()
    I("s_waitcnt lgkmcnt(0)")
    for t in range(4):
        I(f"v_mfma_f32_16x16x32_bf16 {vr(T+4*t)}, {vr(vBQ+4*t)}, {vr(ONES)}, 0")
    I(f"s_mov_b64 exec, s[{sKM}:{sKM+1}]")
    for t in range(4):
        I(f"ds_write_b128 v{vPQ}, {vr(T+4*t)} offset:{L_PB1 + 256 + t*64}")
    I("s_mov_b64 exec, -1")
    I(f"s_lshl_b32 s{sT2}, s{sX}, 11")
    I(f"s_add_u32 s{sT2}, s{sT2}, {XOFF}")
    TS(3)
    poll([f"buffer_load_dwordx4 {vr(XA)}, v{vXO}, {WS}, s{sT2} offen sc1"], list(range(XA, XA + 4)))
    TS(4)
    gemv_q()
    TS(5)
    a.label("L_B1")
    I(f"v_mov_b32 v{rINV}, {f2u(1.0/640):#x}")
    qa, qs, QS = q_reduce()
    I("s_barrier")
    I(f"s_cmp_eq_u32 s{sWAVE}, 5")
    I("s_cbranch_scc0 L_B2")
    TS(6)
    q_reduce2(qa, qs, QS, first=True)
    TS(7)
    lstore([f"buffer_store_dword v{rU}, v{vQP}, {WS}, s{sREG} offen"])
    q_gather(vQG, qa)
    TS(8)
    I(f"buffer_load_ushort v{vXF}, v{vXFA}, {WS}, 0 offen sc1")
    I("s_waitcnt lgkmcnt(0)")
    a.label("L_B2")
    BT = T
    ST = T + 16
    PS = T + 32
    MI = T + 36
    OA = T + 44
    for i in range(16):
        I(f"v_mov_b32 v{BT+i}, 0")
    I("s_barrier")
    a.label("L_att")
    TS(9)
    for t in range(4):
        m = 0x000F000F << (4 * t)
        setexec(m, m)
        I(f"ds_read_b128 {vr(BT+4*t)}, v{vQR}")
    setexec(0xFFFFFFFF, 0xFFFFFFFF)
    I("s_waitcnt vmcnt(16) lgkmcnt(0)")
    TS(10)
    for Tt in range(4):
        for t in range(4):
            I(f"v_mfma_f32_16x16x32_bf16 {vr(ST+4*Tt)}, {vr(vK+4*(4*Tt+t))}, {vr(BT+4*t)}, {'0' if t == 0 else vr(ST+4*Tt)}")
    for Tt in range(4):
        I(f"v_mov_b32_dpp v{PS+Tt}, v{ST+4*Tt} quad_perm:[0,0,0,0] row_mask:0xf bank_mask:0xf")
        for c in range(1, 4):
            I(f"v_add_f32_dpp v{PS+Tt}, v{ST+4*Tt+c}, v{PS+Tt} quad_perm:[{c},{c},{c},{c}] row_mask:0xf bank_mask:0xf")
    I(f"v_mov_b32 v{MI+2}, {SCALE:#x}")
    I(f"v_mov_b32 v{MI+3}, {SCALE:#x}")
    I(f"v_cvt_pk_bf16_f32 v{MI}, v{PS}, v{PS+1}")
    I(f"v_cvt_pk_bf16_f32 v{MI+1}, v{PS+2}, v{PS+3}")
    unpack(PS, PS + 1, MI)
    unpack(PS + 2, PS + 3, MI + 1)
    I(f"v_pk_mul_f32 v[{PS}:{PS+1}], v[{PS}:{PS+1}], v[{MI+2}:{MI+3}]")
    I(f"v_pk_mul_f32 v[{PS+2}:{PS+3}], v[{PS+2}:{PS+3}], v[{MI+2}:{MI+3}]")
    I(f"v_cvt_pk_bf16_f32 v{MI}, v{PS}, v{PS+1}")
    I(f"v_cvt_pk_bf16_f32 v{MI+1}, v{PS+2}, v{PS+3}")
    unpack(PS, PS + 1, MI)
    unpack(PS + 2, PS + 3, MI + 1)
    vM = MI + 4; vL = MI + 5; vT_ = MI + 6; vPK = MI + 7
    I(f"v_max3_f32 v{vM}, v{PS}, v{PS+1}, v{PS+2}")
    I(f"v_max_f32 v{vM}, v{vM}, v{PS+3}")
    I(f"v_max_f32_dpp v{vM}, v{vM}, v{vM} row_ror:4 row_mask:0xf bank_mask:0xf")
    I(f"v_max_f32_dpp v{vM}, v{vM}, v{vM} row_ror:8 row_mask:0xf bank_mask:0xf")
    I(f"v_max_f32_dpp v{vM}, v{vM}, v{vM} row_bcast:15 row_mask:0xa bank_mask:0xf")
    I(f"v_max_f32_dpp v{vM}, v{vM}, v{vM} row_bcast:31 row_mask:0xc bank_mask:0xf")
    I(f"v_mov_b32 v{MI}, s{sL2E}")
    I(f"v_readlane_b32 s{sM}, v{vM}, 63")
    I(f"v_mul_f32 v{vT_}, s{sM}, v{MI}")
    for Tt in range(4):
        I(f"v_fma_f32 v{PS+Tt}, v{PS+Tt}, v{MI}, -v{vT_}")
    for Tt in range(4):
        I(f"v_exp_f32 v{PS+Tt}, v{PS+Tt}")
    TS(11)
    I(f"s_cmp_eq_u32 s{sIT}, 0")
    I("s_cbranch_scc0 L_PV")
    I(f"s_cmp_eq_u32 s{sLATE}, 0")
    I("s_cbranch_scc1 L_PVe")
    role_dma()
    TS(25)
    I("s_branch L_PV")
    a.label("L_PVe")
    if esy:
        I(f"s_cmp_eq_u32 s{sWAVE}, 7")
        I("s_cbranch_scc0 L_PVe2")
        srd(TA, 54, 256)
        I(f"v_lshlrev_b32 v{BT+2}, 4, v{vLANE}")
        setexec(0xFF, 0)
        I(f"buffer_load_dwordx2 v[{BT}:{BT+1}], v{BT+2}, {TA}, 0 offen offset:128 {syfl}")
        setexec(0xFFFFFFFF, 0xFFFFFFFF)
        I("s_waitcnt vmcnt(1)")
        I("s_branch L_PV")
        a.label("L_PVe2")
    I("s_waitcnt vmcnt(0)")
    a.label("L_PV")
    for Tt in range(4):
        AB = ST + 8 * (Tt & 1)
        I(f"v_mov_b32_dpp v{vT_}, v{PS+Tt} row_half_mirror row_mask:0xf bank_mask:0xf")
        I(f"v_cvt_pk_bf16_f32 v{vPK}, v{PS+Tt}, v{vT_}")
        for u in range(2):
            for r in range(4):
                I(f"v_perm_b32 v{AB+4*u+r}, v{vPK}, v{vPK}, v{vSEL+4*u+r}")
        if Tt == 1:
            I(f"v_add_f32 v{vL}, v{PS}, v{PS+1}")
            I(f"v_add_f32 v{MI+1}, v{PS+2}, v{PS+3}")
            I(f"v_add_f32 v{vL}, v{vL}, v{MI+1}")
            I(f"v_add_f32_dpp v{vL}, v{vL}, v{vL} row_ror:4 row_mask:0xf bank_mask:0xf")
            I(f"v_add_f32_dpp v{vL}, v{vL}, v{vL} row_ror:8 row_mask:0xf bank_mask:0xf")
            I(f"v_add_f32_dpp v{vL}, v{vL}, v{vL} row_bcast:15 row_mask:0xa bank_mask:0xf")
            I(f"v_add_f32_dpp v{vL}, v{vL}, v{vL} row_bcast:31 row_mask:0xc bank_mask:0xf")
            I(f"ds_write_b64 v{vMLW}, v[{vM}:{vL}]")
        for u in range(2):
            i1 = Tt * 4 + u * 2 + 1
            I(f"s_waitcnt vmcnt({15 - i1 + 8})")
            for hf in range(2):
                i = Tt * 4 + u * 2 + hf
                first = (Tt == 0 and u == 0)
                I(f"v_mfma_f32_16x16x32_bf16 {vr(OA+4*hf)}, {vr(AB+4*u)}, {vr(vV+4*i)}, {'0' if first else vr(OA+4*hf)}")
    TS(12)
    setexec(0x00FF00FF, 0xFF00FF00)
    I(f"ds_write_b128 v{vOW}, {vr(OA)}")
    I(f"ds_write_b128 v{vOW}, {vr(OA+4)} offset:256")
    setexec(0xFFFFFFFF, 0xFFFFFFFF)
    I(f"s_cmp_eq_u32 s{sIT}, 0")
    I("s_cbranch_scc0 L_B3")
    sp(0)
    I(f"s_cmp_eq_u32 s{sLATE}, 0")
    I("s_cbranch_scc0 L_B3")
    I(f"s_cmp_eq_u32 s{sWAVE}, 7")
    I("s_cbranch_scc0 L_erd")
    sp(3)
    srd(TA, 54, 256)
    setexec(0xFF, 0)
    if not esy:
        I(f"v_lshlrev_b32 v{BT+2}, 4, v{vLANE}")
        I(f"buffer_load_dwordx2 v[{BT}:{BT+1}], v{BT+2}, {TA}, 0 offen offset:128 {syfl}")
    a.label("L_sync")
    I(f"s_add_u32 s{sSPIN}, s{sSPIN}, 4")
    I("s_waitcnt vmcnt(0)")
    I(f"v_and_b32 v{BT+3}, {1 << 21:#x}, v{BT+1}")
    I(f"v_cmp_eq_u32 vcc, 0, v{BT+3}")
    I("s_cbranch_vccz L_syncd")
    I(f"buffer_load_dwordx2 v[{BT}:{BT+1}], v{BT+2}, {TA}, 0 offen offset:128 sc1")
    I(f"s_cmp_lt_u32 s{sSPIN}, {spin_limit}")
    I("s_cbranch_scc1 L_sync")
    I("s_waitcnt vmcnt(0)")
    a.label("L_syncd")
    I(f"v_lshrrev_b32 v{BT+3}, 24, v{BT+1}")
    I(f"v_readlane_b32 s64, v{BT}, s{sX}")
    I(f"v_readlane_b32 s65, v{BT+1}, s{sX}")
    for m_ in ("quad_perm:[1,0,3,2]", "quad_perm:[2,3,0,1]", "row_half_mirror"):
        I(f"v_add_u32_dpp v{BT+3}, v{BT+3}, v{BT+3} {m_} row_mask:0xf bank_mask:0xf")
    I(f"s_mul_i32 s{sT0}, s{sXCC}, 6")
    I(f"s_lshr_b64 s[64:65], s[64:65], s{sT0}")
    I(f"s_and_b32 s64, s64, 63")
    I(f"s_cmp_eq_u32 s64, 32")
    I(f"s_cselect_b32 s{sT1}, 1, 0")
    I(f"s_cmp_lt_u32 s{sXCC}, 8")
    I(f"s_cselect_b32 s{sT1}, s{sT1}, 0")
    I(f"v_readfirstlane_b32 s{sT0}, v{BT+3}")
    setexec(0xFFFFFFFF, 0xFFFFFFFF)
    I(f"s_cmp_gt_u32 s{sT0}, {4 * ncal}")
    I(f"s_cselect_b32 s{sT0}, 1, 0")
    I(f"s_lshr_b32 s{sT2}, s{sXCC}, 2")
    I(f"s_xor_b32 s{sT0}, s{sT0}, s{sT2}")
    I(f"s_and_b32 s{sT0}, s{sT0}, {1 if dual else 0}")
    I(f"s_lshl_b32 s{sT0}, s{sT0}, 13")
    I(f"s_or_b32 s{sT0}, s{sT0}, s{sT1}")
    I(f"v_mov_b32 v{BT}, s{sT0}")
    I(f"v_mov_b32 v{BT+1}, {L_FLAG}")
    I(f"ds_write_b32 v{BT+1}, v{BT}")
    TS(35)
    sp(0)
    a.label("L_erd")
    I(f"s_cmp_eq_u32 s{sROLE}, 0")
    if dyn:
        I("s_cbranch_scc1 L_erd2")
        I(f"s_cmp_eq_u32 s{sWAVE}, {tw}")
        I("s_cbranch_scc0 L_B3")
        I(f"v_mov_b32 v{BT+1}, {L_FLAG}")
        setexec(1, 0)
        I(f"ds_write_b32 v{BT+1}, v{vRDMA} offset:4")
        setexec(0xFFFFFFFF, 0xFFFFFFFF)
        I("s_branch L_B3")
        a.label("L_erd2")
    else:
        I("s_cbranch_scc0 L_B3")
    if gate:
        lds_wait(8, gate, ge=True)
    role_dma()
    TS(25)
    a.label("L_B3")
    I("s_waitcnt lgkmcnt(0)")
    I(f"v_mov_b32 v{T+38}, {L_FLAG}")
    I("s_barrier")
    TS(13)
    I(f"ds_read_b64 v[{T+38}:{T+39}], v{T+38}")
    I(f"s_cmp_eq_u32 s{sWAVE}, 7")
    I("s_cbranch_scc1 L_comb")
    I("s_waitcnt lgkmcnt(0)")
    I(f"v_readfirstlane_b32 s{sT0}, v{T+38}")
    I(f"s_and_b32 s{sPURE}, s{sT0}, 1")
    I(f"s_and_b32 s{sNEAR}, s{sT0}, {CP}")
    I("s_branch L_role")
    a.label("L_comb")
    cM, cL, cMX, cF, cT = T + 32, T + 33, T + 34, T + 36, T + 37
    cLS = T + 35
    I(f"ds_read_b64 v[{cM}:{cL}], v{vCML}")
    for w in range(8):
        I(f"ds_read2st64_b64 {vr(T+4*w)}, v{vCR} offset0:{2*w} offset1:{2*w+1}")
    I(f"v_mov_b32 v{cT}, s{sL2E}")
    I("s_waitcnt lgkmcnt(8)")
    I(f"v_readfirstlane_b32 s{sT0}, v{T+38}")
    I(f"v_max_f32_dpp v{cMX}, v{cM}, v{cM} quad_perm:[1,0,3,2] row_mask:0xf bank_mask:0xf")
    I(f"v_max_f32_dpp v{cMX}, v{cMX}, v{cMX} quad_perm:[2,3,0,1] row_mask:0xf bank_mask:0xf")
    I(f"v_max_f32_dpp v{cMX}, v{cMX}, v{cMX} row_half_mirror row_mask:0xf bank_mask:0xf")
    I(f"v_sub_f32 v{cF}, v{cM}, v{cMX}")
    I(f"v_mul_f32 v{cF}, v{cF}, v{cT}")
    I(f"v_exp_f32 v{cF}, v{cF}")
    I(f"s_and_b32 s{sPURE}, s{sT0}, 1")
    I(f"s_and_b32 s{sNEAR}, s{sT0}, {CP}")
    I("s_waitcnt lgkmcnt(0)")
    for w in range(8):
        I(f"v_readlane_b32 s{sF+w}, v{cF}, {w}")
    for w in range(8):
        I(f"v_pk_add_f32 v[{T+4*w}:{T+4*w+1}], v[{T+4*w}:{T+4*w+1}], v[{T+4*w+2}:{T+4*w+3}]")
    for w in range(8):
        sp = f"s[{sF+(w&~1)}:{sF+(w&~1)+1}]"
        o = w & 1
        acc = T + 40 + 2 * (w & 1)
        if w < 2:
            I(f"v_pk_mul_f32 v[{acc}:{acc+1}], v[{T+4*w}:{T+4*w+1}], {sp} op_sel:[0,{o}] op_sel_hi:[1,{o}]")
        else:
            I(f"v_pk_fma_f32 v[{acc}:{acc+1}], v[{T+4*w}:{T+4*w+1}], {sp}, v[{acc}:{acc+1}] op_sel:[0,{o},0] op_sel_hi:[1,{o},1]")
    I(f"v_mul_f32 v{cLS}, v{cF}, v{cL}")
    I(f"v_pk_add_f32 v[{T+40}:{T+41}], v[{T+40}:{T+41}], v[{T+42}:{T+43}]")
    I(f"v_add_f32_dpp v{cLS}, v{cLS}, v{cLS} quad_perm:[1,0,3,2] row_mask:0xf bank_mask:0xf")
    I(f"v_cvt_pk_bf16_f32 v{T+40}, v{T+40}, v{T+41}")
    I(f"v_min_u32 v{T+40}, 0xfffffffe, v{T+40}")
    I(f"v_add_f32_dpp v{cLS}, v{cLS}, v{cLS} quad_perm:[2,3,0,1] row_mask:0xf bank_mask:0xf")
    I(f"v_min_u32 v{cMX}, 0xfffffffe, v{cMX}")
    lstore([f"buffer_store_dword v{T+40}, v{vCP}, {WS}, s{sREG} offen"])
    I(f"v_add_f32_dpp v{cLS}, v{cLS}, v{cLS} row_half_mirror row_mask:0xf bank_mask:0xf")
    I(f"v_min_u32 v{cLS}, 0xfffffffe, v{cLS}")
    setexec(1, 0)
    lstore([f"buffer_store_dwordx2 v[{cMX}:{cLS}], v{vCPM}, {WS}, s{sREG} offen"])
    setexec(0xFFFFFFFF, 0xFFFFFFFF)
    TS(14)

    a.label("L_role")
    I(f"s_cmp_eq_u32 s{sROLE}, 0")
    I("s_cbranch_scc1 L_WO")
    if dyn:
        I(f"v_readfirstlane_b32 s{sTB}, v{T+39}")
        I(f"s_mul_hi_u32 s{sT0}, s{sTB}, 0x2aaaaab")
        I(f"s_mul_i32 s{sT0}, s{sT0}, 96")
        I(f"s_sub_u32 s{sTB}, s{sTB}, s{sT0}")
        I(f"s_cmp_lt_u32 s{sTB}, 54")
        I("s_cbranch_scc0 L_next")
    else:
        I(f"s_cmp_eq_u32 s{sROLE}, 3")
        I("s_cbranch_scc1 L_next")
    I(f"s_cmp_eq_u32 s{sIT}, 0")
    I("s_cbranch_scc0 L_W1")
    m0_, m1_, m2_, m3_ = T, T + 1, T + 2, T + 3
    def ml_gate(thr):
        lab = a.newlab("Lg"); done = a.newlab("Lgd")
        I(f"v_lshrrev_b32 v{m0_}, 3, v{vLANE}")
        I(f"v_lshlrev_b32 v{m0_}, 7, v{m0_}")
        I(f"v_and_b32 v{m1_}, 7, v{vLANE}")
        I(f"v_lshl_add_u32 v{m0_}, v{m1_}, 3, v{m0_}")
        I(f"s_lshl_b32 s{sT1}, s{sX}, 9")
        I(f"s_add_u32 s{sT1}, s{sT1}, {MLOFF}")
        setexec(0xFFFFFFFF, 0)
        a.label(lab)
        I(f"buffer_load_dword v{m1_}, v{m0_}, {WS}, s{sT1} offen sc1")
        I(f"s_add_u32 s{sSPIN}, s{sSPIN}, 1")
        I("s_waitcnt vmcnt(0)")
        I(f"v_cmp_ne_u32 vcc, -1, v{m1_}")
        I(f"s_bcnt1_i32_b64 s{sT0}, vcc")
        I(f"s_cmp_ge_u32 s{sT0}, {thr}")
        I(f"s_cbranch_scc1 {done}")
        I(f"s_cmp_lt_u32 s{sSPIN}, {spin_limit}")
        I(f"s_cbranch_scc1 {lab}")
        a.label(done)
        setexec(0xFFFFFFFF, 0xFFFFFFFF)
    if instr: I(f"s_mov_b32 s{sNT}, s{sTB}")
    srd(TB, 44, 640 * 3456)
    I(f"s_mul_i32 s{sT1}, s{sWAVE}, {128*3456}")
    I(f"s_lshl_b32 s{sT0}, s{sTB}, 6")
    I(f"s_add_u32 s{sRB}, s{sT0}, s{sT1}")
    I(f"s_mov_b32 s{sRSTEP}, {16*3456}")
    I(f"s_mov_b32 s{sRN}, 8")
    I(f"v_lshrrev_b32 v{m0_}, 2, v{vLANE}")
    I(f"v_mul_u32_u24 v{m0_}, 3456, v{m0_}")
    I(f"v_and_b32 v{m1_}, 3, v{vLANE}")
    I(f"v_lshl_add_u32 v{vRDMA}, v{m1_}, 4, v{m0_}")
    I(f"s_add_u32 s{sT0}, s{sT0}, {YOFF}")
    if y64:
        I(f"s_and_b32 s{sT1}, s{sWAVE}, 1")
        I(f"s_lshl_b32 s{sT1}, s{sT1}, 12")
        I(f"s_add_u32 s{sT0}, s{sT0}, s{sT1}")
        I(f"s_lshr_b32 s{sT2}, s{sWAVE}, 1")
        I(f"s_lshl_b32 s{sT1}, s{sT2}, 14")
        I(f"s_add_u32 s{sT0}, s{sT0}, s{sT1}")
        I(f"v_bfe_u32 v{m0_}, v{vLANE}, 1, 3")
        I(f"v_lshlrev_b32 v{m0_}, 16, v{m0_}")
        I(f"v_and_b32 v{m1_}, 1, v{vLANE}")
        I(f"v_lshl_add_u32 v{m0_}, v{m1_}, 5, v{m0_}")
        I(f"v_lshrrev_b32 v{m1_}, 4, v{vLANE}")
        I(f"v_lshl_add_u32 v{m0_}, v{m1_}, 3, v{m0_}")
        I(f"v_add_u32 v{vA2}, s{sT0}, v{m0_}")
        I(f"s_lshl_b32 s{sT0}, s{sT2}, 12")
        I(f"s_add_u32 s{sT0}, s{sT0}, {L_W2}")
        tr_addr(vA3, 128, sT0, m0_)
        I(f"v_bfe_u32 v{m0_}, v{vLANE}, 3, 1")
        I(f"v_bfe_u32 v{m1_}, v{vLANE}, 4, 1")
        I(f"v_lshl_add_u32 v{m0_}, v{m1_}, 1, v{m0_}")
        I(f"s_and_b32 s{sT1}, s{sWAVE}, 1")
        I(f"s_lshl_b32 s{sT1}, s{sT1}, 1")
        I(f"v_xor_b32 v{m0_}, s{sT1}, v{m0_}")
        I(f"v_lshl_add_u32 v{vA3}, v{m0_}, 5, v{vA3}")
        I(f"v_xor_b32 v{vA1}, 32, v{vA3}")
        I(f"s_cmp_lt_u32 s{sWAVE}, 4")
        I(f"s_cselect_b32 s{sYM}, 63, 15")
        I(f"s_mul_i32 s{sYM}, s{sYM}, 0x10001")
        I(f"s_mov_b32 s{sYM+1}, s{sYM}")
    else:
        I(f"s_and_b32 s{sT1}, s{sWAVE}, 2")
        I(f"s_lshl_b32 s{sT1}, s{sT1}, 11")
        I(f"s_add_u32 s{sT0}, s{sT0}, s{sT1}")
        I(f"s_lshr_b32 s{sT2}, s{sWAVE}, 2")
        I(f"s_lshl_b32 s{sT1}, s{sT2}, 14")
        I(f"s_add_u32 s{sT0}, s{sT0}, s{sT1}")
        I(f"s_and_b32 s{sT1}, s{sWAVE}, 1")
        I(f"s_lshl_b32 s{sT1}, s{sT1}, 5")
        I(f"s_add_u32 s{sT0}, s{sT0}, s{sT1}")
        I(f"v_and_b32 v{m0_}, 15, v{vLANE}")
        I(f"v_lshlrev_b32 v{m0_}, 15, v{m0_}")
        I(f"v_lshrrev_b32 v{m1_}, 4, v{vLANE}")
        I(f"v_lshl_add_u32 v{m0_}, v{m1_}, 3, v{m0_}")
        I(f"v_add_u32 v{vA2}, s{sT0}, v{m0_}")
        I(f"s_lshl_b32 s{sT0}, s{sT2}, 12")
        I(f"s_add_u32 s{sT0}, s{sT0}, {L_W2}")
        tr_addr(vA3, 128, sT0, m0_)
        I(f"v_bfe_u32 v{m0_}, v{vLANE}, 3, 1")
        I(f"v_bfe_u32 v{m1_}, v{vLANE}, 4, 1")
        I(f"v_lshl_add_u32 v{m0_}, v{m1_}, 1, v{m0_}")
        I(f"s_and_b32 s{sT1}, s{sWAVE}, 3")
        I(f"v_xor_b32 v{m0_}, s{sT1}, v{m0_}")
        I(f"v_lshl_add_u32 v{vA3}, v{m0_}, 5, v{vA3}")
    if th1:
        I(f"s_cmp_eq_u32 s{sWAVE}, 6")
        I("s_cbranch_scc0 L_g1")
        ml_gate(th1)
        a.label("L_g1")
    I("s_barrier")
    I(f"s_cmp_ge_u32 s{sWAVE}, 5")
    I("s_cbranch_scc1 L_w2d")
    role_dma()
    TS(25)
    I("s_branch L_W1")
    a.label("L_w2d")
    if th2 > th1:
        ml_gate(th2)
    I(f"s_mul_i32 s{sT3}, s{sTB}, {32*1280}")
    I(f"s_sub_u32 s{sT0}, s{sWAVE}, 5")
    I(f"s_mul_i32 s{sT0}, s{sT0}, 13")
    I(f"v_lshrrev_b32 v{m0_}, 3, v{vLANE}")
    I(f"v_mul_u32_u24 v{m2_}, 1280, v{m0_}")
    I(f"v_and_b32 v{m1_}, 7, v{vLANE}")
    I(f"v_lshlrev_b32 v{m1_}, 4, v{m1_}")
    I(f"v_bfe_u32 v{m0_}, v{vLANE}, 4, 1")
    I(f"v_lshlrev_b32 v{m0_}, 5, v{m0_}")
    I(f"v_xor_b32 v{m1_}, v{m1_}, v{m0_}")
    I(f"s_and_b32 s{sT1}, s{sT0}, 1")
    I(f"s_lshl_b32 s{sT1}, s{sT1}, 6")
    I(f"v_xor_b32 v{m1_}, s{sT1}, v{m1_}")
    I(f"v_xor_b32 v{m0_}, 64, v{m1_}")
    I(f"v_add_u32 v{m3_}, v{m2_}, v{m0_}")
    I(f"v_add_u32 v{m2_}, v{m2_}, v{m1_}")
    srd(TA, 48, 1728 * 1280)
    for e in range(14):
        I(f"s_lshl_b32 s{sT1}, s{sT0}, 10")
        I(f"s_add_u32 m0, s{sT1}, {L_W2}")
        I(f"s_and_b32 s{sT1}, s{sT0}, 3")
        I(f"s_mul_i32 s{sT1}, s{sT1}, {8*1280}")
        I(f"s_lshr_b32 s{sT2}, s{sT0}, 2")
        I(f"s_lshl_b32 s{sT2}, s{sT2}, 7")
        I(f"s_add_u32 s{sT1}, s{sT1}, s{sT2}")
        I(f"s_add_u32 s{sT1}, s{sT1}, s{sT3}")
        I(f"buffer_load_dwordx4 v{(m2_, m3_)[e & 1]}, {TA}, s{sT1} offen {rflags} lds")
        if e < 13: I(f"s_add_u32 s{sT0}, s{sT0}, 1")
    srd(TA, 46, 1728 * 2)
    I(f"s_lshl_b32 s{sT0}, s{sTB}, 6")
    I(f"v_and_b32 v{m0_}, 31, v{vLANE}")
    I(f"v_lshlrev_b32 v{m0_}, 1, v{m0_}")
    I(f"v_mov_b32 v{vB1}, 0")
    I(f"buffer_load_short_d16_hi v{vB1}, v{m0_}, {TA}, s{sT0} offen")
    for b_ in HB5:
        for i in range(4):
            I(f"v_mov_b32 v{b_+i}, 0")
    TS(25)
    I("s_branch L_W1")

    def role_base():
        I(f"s_lshl_b32 s{sT0}, s{sWAVE}, 13")
        I(f"s_add_u32 s{sT0}, s{sT0}, {L_ROLE}")

    a.label("L_WO")
    I(f"s_cmp_eq_u32 s{sIT}, 0")
    I("s_cbranch_scc0 L_WO0")
    role_base()
    tr_addr(T + 47, 64, sT0)
    I("s_waitcnt vmcnt(0)")
    for ks in range(2):
        for t in range(2):
            b = vRB + 4 * (ks * 2 + t)
            o = ks * 2048 + t * 32
            I(f"ds_read_b64_tr_b16 v[{b}:{b+1}], v{T+47} offset:{o}")
            I(f"ds_read_b64_tr_b16 v[{b+2}:{b+3}], v{T+47} offset:{o+256}")
    I("s_waitcnt lgkmcnt(0)")
    TS(15)
    a.label("L_WO0")
    I(f"s_cmp_eq_u32 s{sWAVE}, 5")
    I("s_cbranch_scc0 L_WO1")
    I("s_waitcnt vmcnt(0)")
    I(f"v_lshlrev_b32 v{vXF}, 16, v{vXF}")
    a.label("L_WO1")
    A0, Ma, La = T, T + 4, T + 5
    Dw = [[T + 8, T + 12], [T + 16, T + 20]]
    wMX, wE, wT, wL2E, wR0, wR1 = [T + 24 + i for i in range(6)]
    I(f"v_mov_b32 v{wL2E}, s{sL2E}")
    poll([f"buffer_load_dwordx4 {vr(A0)}, v{vA0}, {WS}, s{sREG} offen sc1",
          f"buffer_load_dwordx2 v[{Ma}:{La}], v{vA2}, {WS}, s{sREG} offen sc1"], list(range(T, T + 6)),
         groups=[range(T, T + 4), range(T + 4, T + 6)])
    TS(16)
    seq = [
        f"v_max_f32_dpp v{wMX}, v{Ma}, v{Ma} quad_perm:[1,0,3,2] row_mask:0xf bank_mask:0xf",
        f"v_max_f32_dpp v{wMX}, v{wMX}, v{wMX} quad_perm:[2,3,0,1] row_mask:0xf bank_mask:0xf",
        f"v_max_f32_dpp v{wMX}, v{wMX}, v{wMX} row_half_mirror row_mask:0xf bank_mask:0xf",
        f"v_sub_f32 v{wE}, v{Ma}, v{wMX}",
    ]
    k = 0
    for t in range(2):
        for ks in range(2):
            I(f"v_mfma_f32_16x16x32_bf16 {vr(Dw[t][ks])}, {vr(A0)}, {vr(vRB+4*(ks*2+t))}, 0")
            I(seq[k]); k += 1
    I(f"v_mul_f32 v{wE}, v{wE}, v{wL2E}")
    I(f"v_exp_f32 v{wE}, v{wE}")
    I(f"v_mul_f32 v{wT}, v{wE}, v{La}")
    mrg = [f"v_mov_b32_dpp v{Dw[t][0]+i}, v{Dw[t][1]+i} quad_perm:[0,1,2,3] row_mask:0xc bank_mask:0xf"
           for t in range(2) for i in range(4)]
    I(mrg[0]); I(mrg[1])
    I(f"v_add_f32_dpp v{wT}, v{wT}, v{wT} quad_perm:[1,0,3,2] row_mask:0xf bank_mask:0xf")
    I(mrg[2]); I(mrg[3])
    I(f"v_add_f32_dpp v{wT}, v{wT}, v{wT} quad_perm:[2,3,0,1] row_mask:0xf bank_mask:0xf")
    I(f"v_mov_b32_dpp v{wE}, v{wE} row_ror:4 row_mask:0xf bank_mask:0xa")
    I(mrg[4])
    I(f"v_add_f32_dpp v{wT}, v{wT}, v{wT} row_half_mirror row_mask:0xf bank_mask:0xf")
    I(mrg[5])
    I(f"v_rcp_f32 v{wT}, v{wT}")
    I(mrg[6]); I(mrg[7])
    for i in range(4):
        for t in range(2):
            D = Dw[t][0]; R = (wR0, wR1)[t]
            op = "v_mul_f32_dpp" if i == 0 else "v_fmac_f32_dpp"
            I(f"{op} v{R}, v{wE}, v{D+i} quad_perm:[{i},{i},{i},{i}] row_mask:0xf bank_mask:0xf")
    I(f"v_mul_f32 v{wR0}, v{wR0}, v{wT}")
    I(f"v_mul_f32 v{wR1}, v{wR1}, v{wT}")
    I(f"ds_write_b32 v{vPW}, v{wR0} offset:{L_PB2}")
    I(f"ds_write_b32 v{vPW}, v{wR1} offset:{L_PB2+256}")
    I("s_waitcnt lgkmcnt(0)")
    I("s_barrier")
    I(f"s_cmp_eq_u32 s{sWAVE}, 5")
    I("s_cbranch_scc0 L_next")
    TS(17)
    reduce_read(8, L_PB2)
    I("s_waitcnt lgkmcnt(0)")
    I(f"v_add_f32 v{T+30}, v{T+30}, v{vXF}")
    reduce_sum(8, rTOT)
    pack_pairs(rTOT, rU)
    I(f"v_mov_b32 v{T}, v{rU}")
    I(f"v_mov_b32_dpp v{T+1}, v{rU} quad_perm:[2,2,2,2] row_mask:0xf bank_mask:0xf")
    I(f"v_mov_b32_dpp v{T+2}, v{rU} row_shl:4 row_mask:0xf bank_mask:0xf")
    I(f"v_mov_b32_dpp v{T+3}, v{rU} row_shl:6 row_mask:0xf bank_mask:0xf")
    setexec(0x01010101, 0)
    I(f"buffer_store_dwordx4 {vr(T)}, v{vRP}, {WS}, s{sREG} offen sc1")
    if dual:
        I(f"buffer_store_dwordx4 {vr(T)}, v{vRP}, {WS}, s{sREG2} offen sc1")
    setexec(0xFFFFFFFF, 0xFFFFFFFF)
    TS(18)
    I("s_branch L_next")

    ha = T + 48
    def w2_frags(FR):
        for e in range(len(FR)):
            va, o = (vA3, e * 8192) if not y64 else ((vA3, vA1)[e & 1], (e >> 1) * 16384)
            I(f"ds_read_b64_tr_b16 v[{FR[e]}:{FR[e]+1}], v{va} offset:{o}")
            I(f"ds_read_b64_tr_b16 v[{FR[e]+2}:{FR[e]+3}], v{va} offset:{o+512}")
    def w2_tail(FR, HB, D2):
        ne = len(FR)
        I("s_barrier")
        setexec(0x00010001, 0x00010001)
        for e in range(ne):
            I(f"ds_read_b128 {vr(HB[e])}, v{ha} offset:{L_H}")
            I("s_lshl_b64 exec, exec, 1" if e < ne - 1 else "s_mov_b64 exec, -1")
        TS(23)
        for e in range(ne):
            if ne == 6 and e == 4:
                I(f"s_cmp_lt_u32 s{sWAVE}, 4")
                I("s_cbranch_scc0 L_w24")
            I(f"s_waitcnt lgkmcnt({ne-1-e})")
            I(f"v_mfma_f32_16x16x32_bf16 {vr(D2)}, {vr(FR[e])}, {vr(HB[e])}, {vr(D2) if e else '0'}")
        if ne == 6: a.label("L_w24")
        if y64: I(f"s_mov_b64 exec, s[{sYM}:{sYM+1}]")
        else: setexec(0x001F001F, 0x001F001F)
        I(f"v_cvt_pk_bf16_f32 v{D2}, v{D2}, v{D2+1}")
        I(f"v_cvt_pk_bf16_f32 v{D2+1}, v{D2+2}, v{D2+3}")
        I(f"v_min_u32 v{D2}, 0xfffffffe, v{D2}")
        I(f"v_min_u32 v{D2+1}, 0xfffffffe, v{D2+1}")
        I(f"buffer_store_dwordx2 v[{D2}:{D2+1}], v{vA2}, {WS}, s{sREG} offen sc1")
        if dual:
            I(f"buffer_store_dwordx2 v[{D2}:{D2+1}], v{vA2}, {WS}, s{sREG2} offen sc1")
        setexec(0xFFFFFFFF, 0xFFFFFFFF)
        if ne == 6: I("s_waitcnt lgkmcnt(0)")
        TS(24)
        I("s_branch L_next")
    FR04 = [28, 32, 36, 40, T + 40] + ([T + 24] if y64 else [])
    FR5 = [vRB + 4 * e for e in range(4 if y64 else 5)]
    HB04 = [T + 4 * e for e in range(len(FR04))]
    def it0(fn):
        l = a.newlab("Li")
        I(f"s_cmp_eq_u32 s{sIT}, 0")
        I(f"s_cbranch_scc0 {l}")
        fn()
        a.label(l)
    a.label("L_W1")
    I(f"s_cmp_ge_u32 s{sWAVE}, 5")
    I("s_cbranch_scc1 L_W1h")
    ones()
    I(f"s_cmp_eq_u32 s{sIT}, 0")
    I("s_cbranch_scc0 L_W11")
    role_base()
    tr_addr(T + 47, 64, sT0)
    I(f"s_lshl_b32 s{sT0}, s{sWAVE}, 7")
    I(f"v_and_b32 v{T+46}, 15, v{vLANE}")
    I(f"v_lshlrev_b32 v{T+46}, 2, v{T+46}")
    I(f"v_add_u32 v{T+46}, s{sT0}, v{T+46}")
    I("s_waitcnt vmcnt(0)")
    for ks in range(4):
        for t in range(2):
            b = vRB + 4 * (ks * 2 + t)
            o = ks * 2048 + t * 32
            I(f"ds_read_b64_tr_b16 v[{b}:{b+1}], v{T+47} offset:{o}")
            I(f"ds_read_b64_tr_b16 v[{b+2}:{b+3}], v{T+47} offset:{o+256}")
        if ks == 1:
            I("s_waitcnt lgkmcnt(0)")
    I("s_waitcnt lgkmcnt(0)")
    for t in range(2):
        for ks in range(4):
            I(f"v_mfma_f32_16x16x32_bf16 {vr(T+4*t)}, {vr(ONES)}, {vr(vRB+4*(ks*2+t))}, {'0' if ks == 0 else vr(T+4*t)}")
    I(f"ds_write_b32 v{T+46}, v{T} offset:{L_CS2}")
    I(f"ds_write_b32 v{T+46}, v{T+4} offset:{L_CS2+64}")
    TS(15)
    I("s_branch L_W12")
    a.label("L_W11")
    w2_frags(FR04)
    a.label("L_W12")
    I(f"s_add_u32 s{sT1}, s{sREG}, {ZOFF}")
    I(f"s_add_u32 s{sT1}, s{sT1}, s{sNEAR}")
    gather(sT1)
    TS(19)
    gemv(2, vRB, lambda ks, t: ks * 2 + t)
    TS(20)
    I("s_barrier")
    I(f"v_lshrrev_b32 v{ha}, 4, v{vLANE}")
    I(f"v_lshlrev_b32 v{ha}, 4, v{ha}")
    for i in range(4 * len(FR04)):
        I(f"v_mov_b32 v{T+i}, 0")
    it0(lambda: w2_frags(FR04))
    w2_tail(FR04, HB04, T + 44)
    a.label("L_W1h")
    I(f"v_mov_b32 v{rINV}, {f2u(1.0/640):#x}")
    I(f"v_mov_b32 v{rC1}, {f2u(GC1):#x}")
    I(f"v_mov_b32 v{rC2}, {f2u(GC2):#x}")
    I(f"v_lshrrev_b32 v{ha}, 4, v{vLANE}")
    I(f"v_lshlrev_b32 v{ha}, 4, v{ha}")
    I(f"v_lshlrev_b32 v{ha+1}, 1, v{vLANE}")
    I(f"v_lshlrev_b32 v{ha+2}, 2, v{vLANE}")
    I("s_waitcnt vmcnt(0)")
    I("s_barrier")
    I(f"s_cmp_eq_u32 s{sWAVE}, 5")
    I("s_cbranch_scc1 L_W1r")
    for b_ in HB5:
        for i in range(4):
            I(f"v_mov_b32 v{b_+i}, 0")
    it0(lambda: w2_frags(FR5))
    I("s_branch L_W1t")
    a.label("L_W1r")
    TS(21)
    reduce_read(5, L_PB1)
    for v in range(5):
        I(f"ds_read_b32 v{T+24+v}, v{ha+2} offset:{L_CS2 + v*128}")
    I("s_waitcnt lgkmcnt(5)")
    reduce_sum(5, rTOT)
    stats()
    I("s_waitcnt lgkmcnt(0)")
    it0(lambda: w2_frags(FR5))
    I(f"v_add_f32 v{T+24}, v{T+24}, v{T+25}")
    I(f"v_add_f32 v{T+26}, v{T+26}, v{T+27}")
    I(f"v_add_f32 v{T+24}, v{T+24}, v{T+28}")
    I(f"v_add_f32 v{vCS1}, v{T+24}, v{T+26}")
    I(f"v_sub_f32 v{rMEAN}, v{rMEAN}, v{rMB}")
    I(f"v_mul_f32 v{rVAR}, v{rVAR}, v{rR}")
    I(f"v_mul_f32 v{rMEAN}, v{rMEAN}, v{rR}")
    I(f"v_mul_f32 v{rVAR}, v{rVAR}, v{rR}")
    I(f"v_cvt_pk_bf16_f32 v{rT}, v{rMEAN}, v{rVAR}")
    I(f"v_and_b32 v{rU}, 0xffff0000, v{rT}")
    I(f"v_lshlrev_b32 v{rMEAN}, 16, v{rT}")
    I(f"v_add_f32 v{rU}, {f2u(1e-5):#x}, v{rU}")
    I(f"v_cvt_pk_bf16_f32 v{rU}, v{rU}, v{rU}")
    I(f"v_fma_f32 v{rMB}, v{rMEAN}, v{rSD}, v{rMB}")
    I(f"v_and_b32 v{rU}, 0xffff0000, v{rU}")
    I(f"v_sqrt_f32 v{rU}, v{rU}")
    I(f"v_fma_f32 v{rTOT}, -v{rMB}, v{vCS1}, v{rTOT}")
    I(f"v_cvt_pk_bf16_f32 v{rU}, v{rU}, v{rU}")
    I(f"v_mul_f32 v{rTOT}, v{rTOT}, v{rR}")
    I(f"v_and_b32 v{rU}, 0xffff0000, v{rU}")
    I(f"v_rcp_f32 v{rU}, v{rU}")
    I(f"v_mul_f32 v{rTOT}, v{rTOT}, v{rU}")
    I(f"v_cvt_pk_bf16_f32 v{rU}, v{rTOT}, v{rTOT}")
    I(f"v_and_b32 v{rU}, 0xffff0000, v{rU}")
    I(f"v_add_f32 v{rU}, v{rU}, v{vB1}")
    I(f"v_cvt_pk_bf16_f32 v{rU}, v{rU}, v{rU}")
    I(f"v_and_b32 v{rU}, 0xffff0000, v{rU}")
    I(f"v_mul_f32 v{rT}, v{rU}, v{rU}")
    I(f"v_fma_f32 v{rT}, v{rT}, v{rC2}, v{rC1}")
    I(f"v_mul_f32 v{rT}, v{rT}, v{rU}")
    I(f"v_exp_f32 v{rT}, v{rT}")
    I(f"v_add_f32 v{rT}, 1.0, v{rT}")
    I(f"v_rcp_f32 v{rT}, v{rT}")
    I(f"v_mul_f32 v{rU}, v{rU}, v{rT}")
    I(f"v_cvt_pk_bf16_f32 v{rU}, v{rU}, v{rU}")
    setexec(0xFFFFFFFF, 0)
    I(f"ds_write_b16 v{ha+1}, v{rU} offset:{L_H}")
    setexec(0xFFFFFFFF, 0xFFFFFFFF)
    TS(22)
    I("s_waitcnt lgkmcnt(0)")
    a.label("L_W1t")
    w2_tail(FR5, HB5, T + 44)

    a.label("L_next")
    I(f"s_add_u32 s{sIT}, s{sIT}, 1")
    I(f"s_add_u32 s{sREG}, s{sREG}, {RS}")
    I(f"s_add_u32 s{sREG2}, s{sREG2}, {RS}")
    I(f"s_cmp_lt_u32 s{sIT}, 2")
    I("s_cbranch_scc1 L_loop")
    I(f"s_or_b32 s{sT0}, s{sROLE}, s{sX}")
    I(f"s_cmp_eq_u32 s{sT0}, 0")
    I("s_cbranch_scc0 L_fin")
    I(f"s_cmp_eq_u32 s{sWAVE}, 6")
    I("s_cbranch_scc1 L_loop")
    a.label("L_fin")
    if dbgt:
        srd(TA, 54, 256)
        I(f"v_add_u32 v{T}, 2, v{vLANE}")
        I(f"v_add_u32 v{T+1}, 4, v{vLANE}")
        I(f"v_cmp_gt_u32 vcc, 6, v{vLANE}")
        I(f"v_cndmask_b32 v{T}, v{T+1}, v{T}, vcc")
        I(f"v_lshlrev_b32 v{T}, 2, v{T}")
        setexec(0xFFF, 0)
        I(f"buffer_atomic_umax v{vTST}, v{T}, {TA}, 0 offen sc1")
        setexec(0xFFFFFFFF, 0xFFFFFFFF)
    if instr:
        TS(30)
        I(f"s_lshl_b32 s{sT0}, s2, 3")
        I(f"s_add_u32 s{sT0}, s{sT0}, s{sWAVE}")
        I(f"s_lshl_b32 s{sT0}, s{sT0}, 9")
        I(f"s_add_u32 s{sT0}, s{sT0}, {DBGOFF}")
        I(f"v_lshlrev_b32 v{T}, 3, v{vLANE}")
        I(f"buffer_store_dwordx2 v[{vTSI}:{vTST}], v{T}, {WS}, s{sT0} offen")
    a.label("L_end")
    I("s_endpgm")
    a.raw('.section .rodata,"a"\n.p2align 6')
    a.raw(f".amdhsa_kernel {KNAME}")
    a.raw("  .amdhsa_next_free_vgpr 256\n  .amdhsa_next_free_sgpr 102\n  .amdhsa_accum_offset 256\n"
          "  .amdhsa_group_segment_fixed_size 0\n  .amdhsa_kernarg_size 104\n  .amdhsa_user_sgpr_count 2\n"
          "  .amdhsa_user_sgpr_kernarg_segment_ptr 1\n  .amdhsa_system_sgpr_workgroup_id_x 1")
    a.raw(".end_amdhsa_kernel")
    open(fn, "w").write(a.text())
    return a.ninstr


if __name__ == "__main__":
    import argparse
    p = argparse.ArgumentParser()
    p.add_argument("-o", default="k.s")
    p.add_argument("--instr", action="store_true")
    p.add_argument("--kv", default="nt")
    p.add_argument("--w", default="")
    p.add_argument("--y16", action="store_true")
    p.add_argument("--nomask", action="store_true")
    p.add_argument("--nodual", action="store_true")
    p.add_argument("--n0", type=int, default=4)
    p.add_argument("--late", type=lambda x: int(x, 0), default=0x5f)
    p.add_argument("--r", default="")
    p.add_argument("--ncal", type=int, default=4)
    p.add_argument("--nw0", type=int, default=8)
    p.add_argument("--qk", type=int, default=16)
    p.add_argument("--qp", type=int, default=3)
    p.add_argument("--gate", type=int, default=4)
    p.add_argument("--calr", type=int, default=28)
    p.add_argument("--esy", type=int, default=1)
    p.add_argument("--rmap", type=int, default=0)
    p.add_argument("--wk", type=int, default=0)
    p.add_argument("--th1", type=int, default=0)
    p.add_argument("--yl", type=int, default=0)
    p.add_argument("--y64", type=int, default=0)
    p.add_argument("--dyn", type=int, default=1)
    p.add_argument("--tw", type=int, default=6)
    p.add_argument("--tp", type=int, default=16)
    p.add_argument("--th2", type=int, default=0)
    p.add_argument("--rot2", type=int, default=2)
    p.add_argument("--pt", type=int, default=0)
    p.add_argument("--ptr", type=int, default=32)
    p.add_argument("--dbgt", default=None)
    p.add_argument("--sp1", type=int, default=1)
    p.add_argument("--norot", action="store_true")
    p.add_argument("--syfl", default="")
    p.add_argument("--ts", default=None)
    p.add_argument("--noprio", action="store_true")
    args = p.parse_args()
    ts = None if args.ts is None else set(int(x) for x in args.ts.split(","))
    n = gen(args.o, instr=args.instr, kvflags=args.kv, wflags=args.w, y16=args.y16,
            masked_=not args.nomask, tsset=ts, n0=args.n0, late=args.late, rflags=args.r, ncal=args.ncal, dual=not args.nodual, prio=not args.noprio,
            nw0=args.nw0, qk=args.qk, rot=not args.norot, syfl=args.syfl, qp=args.qp, gate=args.gate, calr=args.calr, esy=args.esy, rmap=args.rmap, wk=args.wk, th1=args.th1, yl=args.yl, y64=args.y64, dyn=args.dyn, tw=args.tw, tp=args.tp, th2=args.th2, rot2=args.rot2, pt=args.pt, ptr_=args.ptr, dbgt=[tuple(int(y) for y in x.split('.')) for x in args.dbgt.split(',')] if args.dbgt else None, sp1=args.sp1)
    print("instrs:", n)
```

```python
import re

TRANS = ("v_exp_f32", "v_log_f32", "v_rcp_f32", "v_rsq_f32", "v_sqrt_f32", "v_sin_f32", "v_cos_f32", "v_rcp_iflag_f32")
NODST_S = ("s_cmp", "s_cbranch", "s_branch", "s_waitcnt", "s_barrier", "s_nop", "s_endpgm", "s_setprio", "s_bitcmp")

REG_RE = re.compile(r"^(-|abs\()?([vsa])(\d+|\[(\d+):(\d+)\])\)?$")


def regs_of(tok):
    tok = tok.strip()
    if tok in ("vcc",):
        return {("vcc", 0)}
    if tok in ("vcc_lo", "vcc_hi"):
        return {("vcc", 0)}
    if tok in ("exec", "exec_lo", "exec_hi"):
        return {("exec", 0)}
    if tok == "m0":
        return {("m0", 0)}
    if tok == "scc":
        return set()
    m = REG_RE.match(tok)
    if not m:
        return set()
    k = m.group(2)
    if m.group(4) is not None:
        return {(k, i) for i in range(int(m.group(4)), int(m.group(5)) + 1)}
    return {(k, int(m.group(3)))}


class Rec:
    __slots__ = ("op", "cls", "rd", "wr", "dpp", "trans", "mfma_c", "mfma_d", "wide_data", "states", "lanesel", "mfma_ab", "text")


def parse(text):
    t = text.split(";")[0].strip()
    sp = t.split(None, 1)
    op = sp[0]
    rest = sp[1] if len(sp) > 1 else ""
    ops, cur, depth = [], "", 0
    for ch in rest:
        if ch == "[":
            depth += 1
        if ch == "]":
            depth -= 1
        if ch == "," and depth == 0:
            ops.append(cur.strip()); cur = ""
        else:
            cur += ch
    if cur.strip():
        ops.append(cur.strip())
    mods = ""
    if ops:
        last = ops[-1].split(None, 1)
        ops[-1] = last[0]
        if len(last) > 1:
            mods = last[1]
    r = Rec()
    r.op = op; r.text = text
    r.rd = set(); r.wr = set(); r.dpp = False; r.trans = False
    r.mfma_c = None; r.mfma_d = None; r.wide_data = None; r.states = 1; r.lanesel = set(); r.mfma_ab = None
    R = [regs_of(o) for o in ops]
    if op == "s_nop":
        r.cls = "salu"; r.states = int(ops[0], 0) + 1
        return r
    if op.startswith("v_smfmac"):
        r.cls = "mfma"
        r.wr = R[0]; r.mfma_d = R[0]
        r.mfma_ab = R[1] | R[2] | R[3]
        r.mfma_c = R[0]
        r.rd = R[0] | R[1] | R[2] | R[3]
        return r
    if op.startswith("v_mfma"):
        r.cls = "mfma"
        r.wr = R[0]; r.mfma_d = R[0]
        r.mfma_ab = R[1] | R[2]
        r.mfma_c = R[3]
        r.rd = R[1] | R[2] | R[3]
        return r
    if op.startswith("v_"):
        r.cls = "valu"
        r.dpp = ("_dpp" in op) or ("quad_perm" in mods) or ("row_" in mods)
        base = op.replace("_dpp", "").replace("_e32", "").replace("_e64", "")
        r.trans = base in TRANS
        if base.startswith("v_permlane") and "swap" in base:
            r.wr = R[0] | R[1]; r.rd = R[0] | R[1]
        elif base.startswith("v_cmp"):
            r.wr = R[0]
            for x in R[1:]: r.rd |= x
        elif base in ("v_add_co_u32", "v_sub_co_u32", "v_addc_co_u32", "v_subb_co_u32"):
            r.wr = R[0] | R[1]
            for x in R[2:]: r.rd |= x
        else:
            r.wr = R[0]
            for x in R[1:]: r.rd |= x
            if base.startswith("v_fmac") or base.startswith("v_pk_fmac") or r.dpp or base == "v_writelane_b32":
                r.rd |= R[0]
            if base in ("v_readlane_b32", "v_writelane_b32"):
                r.lanesel = R[2]
        return r
    if op.startswith("ds_"):
        r.cls = "ds"
        if op.startswith("ds_read") or "permute" in op or op.startswith("ds_swizzle"):
            r.wr = R[0]
            for x in R[1:]: r.rd |= x
        else:
            for x in R: r.rd |= x
        return r
    if op.startswith("buffer_") or op.startswith("global_"):
        r.cls = "vmem"
        islds = re.search(r"\blds\b", mods) is not None
        if "load" in op and not islds:
            r.wr = R[0]
            for x in R[1:]: r.rd |= x
        else:
            for x in R: r.rd |= x
            if islds:
                r.rd |= {("m0", 0)}
                r.cls = "vmem_lds"
            if "store" in op and ("x4" in op or "x3" in op):
                r.wide_data = R[0]
            if "atomic" in op and "sc0" in mods:
                r.wr = R[0]
        return r
    if op.startswith("s_"):
        r.cls = "salu"
        if op.startswith("s_load") or op.startswith("s_mem") or op.startswith("s_buffer_load"):
            r.cls = "smem"
        if any(op.startswith(p) for p in NODST_S):
            for x in R: r.rd |= x
            if "vcc" in op: r.rd |= {("vcc", 0)}
        else:
            r.wr = R[0] if R else set()
            for x in R[1:]: r.rd |= x
            if "saveexec" in op:
                r.wr |= {("exec", 0)}
        return r
    raise ValueError("unknown instr: " + text)


def need(p, c):
    n = 0
    isv = lambda s: {x for x in s if x[0] in ("v", "a")}
    iss = lambda s: {x for x in s if x[0] in ("s", "vcc")}
    if p.cls == "valu":
        pv = isv(p.wr); ps = iss(p.wr)
        if c.cls == "valu":
            if c.dpp and pv & c.rd: n = max(n, 2)
            if c.op.startswith("v_permlane") and pv & c.rd: n = max(n, 2)
            if (c.op.startswith("v_readlane") or c.op.startswith("v_readfirstlane")) and pv & c.rd: n = max(n, 1)
            if p.trans and pv & (c.rd | c.wr): n = max(n, 1)
            if ps & c.rd: n = max(n, 2)
            if ps & c.lanesel: n = max(n, 4)
            if c.op.startswith("v_cndmask") and ("vcc", 0) in ps: n = max(n, 2)
        if c.cls == "mfma" and pv & c.rd: n = max(n, 2)
        if c.cls in ("vmem", "vmem_lds") and ps & c.rd: n = max(n, 5)
        if c.cls in ("salu", "smem") and ps & c.rd and not c.op.startswith("s_cbranch"): n = max(n, 1)
        if p.trans and c.cls in ("vmem", "ds", "vmem_lds") and pv & c.rd: n = max(n, 1)
    if p.cls == "mfma":
        D = p.mfma_d
        if c.cls == "mfma":
            if D & c.mfma_ab: n = max(n, 8)
            if D & c.mfma_c and D != c.mfma_c: n = max(n, 6)
            if D & c.wr and not (D == c.mfma_c and D == c.wr): n = max(n, 8)
        elif c.cls in ("valu", "vmem", "ds", "vmem_lds"):
            if D & (c.rd | c.wr): n = max(n, 8)
            if c.cls == "valu" and p.mfma_c & c.wr: n = max(n, 3)
    if p.wide_data is not None:
        if p.wide_data & c.wr: n = max(n, 2)
    if p.cls == "salu" and ("m0", 0) in p.wr and c.cls == "vmem_lds": n = max(n, 1)
    return n


class Asm:
    HIST = 14

    def __init__(self):
        self.lines = []
        self.hists = [[]]
        self.snap = {}
        self.defined = set()
        self.nlab = 0
        self.ninstr = 0

    def raw(self, s):
        self.lines.append(s)

    def c(self, s):
        self.lines.append("  ; " + s)

    def _push(self, r):
        for h in self.hists:
            h.append(r)
            if len(h) > self.HIST:
                del h[0]

    def _required(self, r):
        pad = 0
        for h in self.hists:
            dist = 0
            for p in reversed(h):
                n = need(p, r)
                if n > dist:
                    pad = max(pad, n - dist)
                dist += p.states
                if dist >= 12:
                    break
        return pad

    def nop(self, n):
        while n > 0:
            k = min(n, 16)
            t = f"s_nop {k-1}"
            self.lines.append("  " + t)
            self._push(parse(t))
            self.ninstr += 1
            n -= k

    def I(self, text):
        for t in text.split("\n"):
            t = t.strip()
            if not t:
                continue
            r = parse(t)
            pad = self._required(r)
            if pad:
                self.nop(pad)
            isbr = r.op.startswith("s_cbranch") or r.op == "s_branch"
            if isbr:
                lab = t.split()[1]
                if lab in self.defined:
                    self.flush(1)
            self.lines.append("  " + t)
            self._push(r)
            self.ninstr += 1
            if isbr:
                lab = t.split()[1]
                if lab not in self.defined:
                    self.snap.setdefault(lab, []).extend([list(h) for h in self.hists])
                if r.op == "s_branch":
                    self.hists = [[]]
            if r.op == "s_endpgm":
                self.hists = [[]]

    def flush(self, credit=0):
        pad = 0
        for h in self.hists:
            dist = 0
            for p in reversed(h):
                worst = 0
                if p.cls == "mfma": worst = 8
                elif p.cls == "valu":
                    worst = 5 if any(x[0] in ("s", "vcc") for x in p.wr) else 2
                elif p.wide_data is not None: worst = 2
                elif p.cls == "salu" and ("m0", 0) in p.wr: worst = 1
                if worst > dist + credit:
                    pad = max(pad, worst - dist - credit)
                dist += p.states
        if pad:
            self.nop(pad)

    def label(self, name):
        self.lines.append(name + ":")
        self.defined.add(name)
        hs = [h for h in self.hists if h] + self.snap.pop(name, [])
        uniq = []
        seen = set()
        for h in hs:
            key = tuple(id(x) for x in h[-12:])
            if key not in seen:
                seen.add(key); uniq.append(list(h))
        self.hists = uniq if uniq else [[]]

    def newlab(self, p="L"):
        self.nlab += 1
        return f"{p}_{self.nlab}"

    def text(self):
        assert not self.snap, f"undefined labels: {list(self.snap)}"
        return "\n".join(self.lines) + "\n"
```

```python
import sys, struct, math
from asmlib import Asm

KNAME = "interleave_layers__gqa_block_cached__mixer_channel_mlp__decode_kernel"

RS = 0x60000
POFF, ZOFF, QOFF, XOFF, MLOFF, YOFF = 0x0, 0x10000, 0x20000, 0x1c000, 0x58000, 0x30000
CALOFF = 0xC0000
CP = 0x2000
ZR, ZX = 512, 64
DBGOFF = 0x100000
WS_SIZE = 0x200000
BIG = 0x40000000
PP = 544
L_PB1, L_PB2, L_CS1, L_CS2, L_QB, L_ML, L_FLAG, L_DUM, L_PER, L_ROLE = (
    0, 2816, 7168, 7808, 8448, 8704, 8768, 8896, 10240, 51200)
LDS_TOTAL = 163840
NPER, NREST = 10, 26
L_RING, RSL = 51200, 36
L_W2, L_H, L_O = 92160, 8784, 133120
LEAD_R = 0

def f2u(x):
    return struct.unpack("<I", struct.pack("<f", x))[0]

L2E = f2u(1.4426950408889634)
SCALE = f2u(128 ** -0.5)
GC1 = -2.0 * 1.4426950408889634 * math.sqrt(2.0 / math.pi)
GC2 = GC1 * 0.044715

sWAVE, sX, sR, sIT, sREG = 3, 4, 5, 6, 7
K_SRD, V_SRD, WS, TA, TB, OUTS = "s[8:11]", "s[12:15]", "s[16:19]", "s[20:23]", "s[24:27]", "s[28:31]"
sROLE, sPURE, sSPIN = 58, 59, 60
sT0, sT1, sT2, sT3, sSLOT = 61, 62, 63, 72, 73
sF = 64
sXCC, sTB, sNT, sTSI = 74, 75, 76, 77
sL2E, sM = 80, 81
sRB, sRSTEP, sRN = 82, 83, 84
sKV = 85
sNEAR, sREG2, sVOTE = 78, 79, 81
sLATE, sQS, sKM, sYM = 100, 101, 42, 98
sXW = 95
vLANE = 0
vGO, vXO, vPW, vSW, vQR, vOW, vMLW = 1, 2, 7, 8, 9, 10, 11
vPQ = 3
vA0, vA1, vA2, vA3 = 12, 13, 14, 15
vRDMA = 17
vTSI, vTST = 18, 19
vSEL = 20
vBQ = 28
vRB = 44
vFD = 72
T = 76
vK, vV = 128, 192
vRR, vQP, vQG, vCSQ, vCS1, vB1, vRP = 1, 2, 3, 4, 5, 6, 8
vXF = 72
vXFA = 16
vCR, vCML, vCP, vCPM, vQG7 = 1, 2, 3, 4, 5


def vr(a, n=4):
    return f"v[{a}:{a+n-1}]"


def gen(fn, instr=False, kvflags="nt", wflags="", rflags="", spin_limit=400000, tsset=None,
        y16=False, masked_=True, dbgt=False, n0=4, late=0x78, dual=True, prio=True, ncal=4, nw0=8, qk=16, rot=True,
        syfl='', qp=3, gate=4, sp1=1, pt=0, ptr_=32, rmap=0, wk=0, calr=28, esy=1, th1=0, th2=0, rot2=2, dyn=1, tw=6, tp=16, yl=0, y64=0, zx=64, zfl='sc1', yfl='sc1', pl=0, xl=0, pdep=1, pdl=2, pmask=31, g1=0, pth=0, g2=0, g3=0, near=-1, hb=(0, 1), fakeq=0, kvp=(4096, 8192, 14, 15, 16, 17, 18, 19), vx=0, emd=0, g8=8, emw=4, cw=0, sm=0, zq=0, kl=0):
    assert not late & 0x80
    ZX = zx; ZR = 8 * zx; ZB = 4 if zx == 64 else 3
    y128 = y64 == 2
    HB5 = [28, 32, 36, 40, 64]
    a = Asm()
    I = a.I
    a.raw(f"; @launch grid=(256,1,1) block=(512,1,1) lds={LDS_TOTAL}")
    a.raw('.amdgcn_target "amdgcn-amd-amdhsa--gfx950"')
    a.raw(".text")
    a.raw(f".globl {KNAME}\n.p2align 8\n.type {KNAME},@function\n{KNAME}:")

    def TS(k):
        if dbgt:
            for j, (kk, it, *mn) in enumerate(dbgt):
                if kk == k:
                    l = a.newlab("Ld")
                    I(f"s_cmp_eq_u32 s{sIT}, {it}")
                    I(f"s_cbranch_scc0 {l}")
                    I("s_memrealtime s[0:1]")
                    I("s_waitcnt lgkmcnt(0)")
                    if mn: I("s_not_b32 s0, s0")
                    I(f"v_writelane_b32 v{vTST}, s0, {j + 2}")
                    a.label(l)
            return
        if not instr or (tsset is not None and k not in tsset and k not in (0, 30)):
            return
        I("s_memrealtime s[0:1]")
        I("s_waitcnt lgkmcnt(0)")
        I(f"v_writelane_b32 v{vTSI}, {k}, s{sTSI}")
        I(f"s_mov_b32 m0, s{sTSI}")
        I(f"v_writelane_b32 v{vTST}, s0, m0")
        I(f"s_add_u32 s{sTSI}, s{sTSI}, 1")

    def srd(dst, ptr, size):
        d = int(dst[2:].split(":")[0])
        I(f"s_mov_b32 s{d}, s{ptr}")
        I(f"s_mov_b32 s{d+1}, s{ptr+1}")
        I(f"s_mov_b32 s{d+2}, {size:#x}")
        I(f"s_mov_b32 s{d+3}, 0x20000")

    def setexec(lo, hi):
        if lo == 0xFFFFFFFF and hi == 0xFFFFFFFF:
            I("s_mov_b64 exec, -1")
        else:
            I(f"s_mov_b32 exec_lo, {lo:#x}")
            I(f"s_mov_b32 exec_hi, {hi:#x}")

    def maxtree(tmp, rs):
        rs = list(rs)
        if len(rs) == 1:
            return rs[0]
        cur = None
        while rs:
            if cur is None:
                if len(rs) >= 3:
                    I(f"v_max3_u32 v{tmp}, v{rs[0]}, v{rs[1]}, v{rs[2]}"); rs = rs[3:]
                else:
                    I(f"v_max_u32 v{tmp}, v{rs[0]}, v{rs[1]}"); rs = rs[2:]
                cur = tmp
            elif len(rs) >= 2:
                I(f"v_max3_u32 v{tmp}, v{tmp}, v{rs[0]}, v{rs[1]}"); rs = rs[2:]
            else:
                I(f"v_max_u32 v{tmp}, v{tmp}, v{rs[0]}"); rs = rs[1:]
        return cur

    def poll(loads, regs, ex=(0xFFFFFFFF, 0xFFFFFFFF), groups=None, simple=False, hop=0):
        lab = a.newlab("Lp"); done = a.newlab("Lpd")
        tmp = T + 50
        masked = masked_ and not simple
        if not masked:
            a.label(lab)
        dep = pdep if hop & pmask else 1
        for l in loads:
            I(l)
        for _ in range(dep - 1):
            for _ in range(pdl): I("s_nop 15")
            for l in loads:
                I(l)
        if masked:
            a.label(lab)
        I(f"s_add_u32 s{sSPIN}, s{sSPIN}, 1")
        I(f"s_waitcnt vmcnt({len(loads) * (dep - 1)})")
        cur = maxtree(tmp, regs)
        I(f"v_cmp_eq_u32 vcc, -1, v{cur}")
        I(f"s_cbranch_vccz {done}")
        if masked:
            if groups is None or len(loads) == 1:
                I("s_mov_b64 exec, vcc")
                for l in loads:
                    I(l)
            else:
                for j, gr in enumerate(groups):
                    cur = maxtree(tmp + 1 - (j & 1), gr)
                    I(f"v_cmp_eq_u32 s[{86+2*j}:{87+2*j}], -1, v{cur}")
                for j, l in enumerate(loads):
                    I(f"s_mov_b64 exec, s[{86+2*j}:{87+2*j}]")
                    I(l)
            setexec(*ex)
        I(f"s_cmp_lt_u32 s{sSPIN}, {spin_limit}")
        I(f"s_cbranch_scc1 {lab}")
        if masked:
            I("s_waitcnt vmcnt(0)")
        a.label(done)

    def light(load, reg, ex=None):
        lab = a.newlab("Ll"); done = a.newlab("Lld")
        if ex: setexec(*ex)
        a.label(lab)
        I(load)
        I(f"s_add_u32 s{sSPIN}, s{sSPIN}, 1")
        I("s_waitcnt vmcnt(0)")
        I(f"v_cmp_ne_u32 vcc, -1, v{reg}")
        I(f"s_cbranch_vccnz {done}")
        I(f"s_cmp_lt_u32 s{sSPIN}, {spin_limit}")
        I(f"s_cbranch_scc1 {lab}")
        a.label(done)
        if ex: setexec(0xFFFFFFFF, 0xFFFFFFFF)

    def lstore(ins, far=False):
        if far and near >= 0:
            for x in ins: I(x + " sc1")
            return
        l1 = a.newlab("Ls"); l2 = a.newlab("Lsd")
        I(f"s_cmp_eq_u32 s{sPURE}, 0")
        I(f"s_cbranch_scc1 {l1}")
        for x in ins: I(x)
        I(f"s_branch {l2}")
        a.label(l1)
        for x in ins: I(x + " sc1")
        a.label(l2)

    def unpack(lo, hi, src):
        I(f"v_lshlrev_b32 v{lo}, 16, v{src}")
        I(f"v_and_b32 v{hi}, 0xffff0000, v{src}")

    def hperm(dst, src, tmp):
        pos = list(hb) + [b for b in range(5) if b not in hb]
        if pos == [0, 1, 2, 3, 4]:
            if dst != src: I(f"s_mov_b32 s{dst}, s{src}")
            return
        I(f"s_mov_b32 s96, 0")
        for i in range(5):
            I(f"s_bfe_u32 s{tmp}, s{src}, {i | (1 << 16):#x}")
            I(f"s_lshl_b32 s{tmp}, s{tmp}, {pos[i]}")
            I(f"s_or_b32 s96, s96, s{tmp}")
        I(f"s_mov_b32 s{dst}, s96")

    XA = T + 32
    ONES = T + 28

    if instr: I("s_memrealtime s[98:99]")
    I("s_cmp_ge_u32 s2, 256")
    I("s_cbranch_scc1 L_end")
    I("s_load_dwordx16 s[32:47], s[0:1], 0")
    if cw:
        I("s_getpc_b64 s[4:5]")
        a.label("L_cs")
        I(f"v_lshlrev_b32 v1, {cw}, v0")
        I("v_min_u32 v1, L_end-L_cs, v1")
        I("global_load_dword v255, v1, s[4:5]")
    I("s_load_dwordx8 s[48:55], s[0:1], 64")
    I("s_load_dwordx2 s[56:57], s[0:1], 96")
    if dbgt: I("s_memrealtime s[96:97]")
    I("v_lshrrev_b32 v1, 6, v0")
    I(f"v_and_b32 v{vLANE}, 63, v0")
    I(f"v_readfirstlane_b32 s{sWAVE}, v1")
    I(f"s_and_b32 s{sX}, s2, 7")
    I(f"s_lshr_b32 s{sR}, s2, 3")
    I(f"s_lshl_b32 s{sSLOT}, s{sX}, 5")
    I(f"s_add_u32 s{sSLOT}, s{sSLOT}, s{sR}")
    I(f"s_mov_b32 s{sXW}, s{sX}")
    if near >= 0:
        I(f"s_and_b32 s{sSLOT}, s{sX}, 3")
        I(f"s_lshl_b32 s{sXW}, s{sSLOT}, 1")
        I(f"s_lshl_b32 s{sSLOT}, s{sSLOT}, 6")
        I(f"s_lshr_b32 s{sT0}, s{sR}, 2")
        I(f"s_lshl_b32 s{sT0}, s{sT0}, 3")
        I(f"s_add_u32 s{sSLOT}, s{sSLOT}, s{sT0}")
        I(f"s_and_b32 s{sT0}, s{sX}, 4")
        I(f"s_add_u32 s{sSLOT}, s{sSLOT}, s{sT0}")
        I(f"s_lshr_b32 s{sT0}, s{sT0}, 2")
        I(f"s_add_u32 s{sXW}, s{sXW}, s{sT0}")
        I(f"s_and_b32 s{sT0}, s{sR}, 3")
        I(f"s_add_u32 s{sSLOT}, s{sSLOT}, s{sT0}")
    if rmap:
        I(f"s_mov_b32 s{sT0}, -5")
        I(f"s_cmp_lt_u32 s{sR}, 28")
        I(f"s_cselect_b32 s{sT0}, -8, s{sT0}")
        I(f"s_cmp_lt_u32 s{sR}, 16")
        I(f"s_cselect_b32 s{sT0}, 16, s{sT0}")
        I(f"s_cmp_lt_u32 s{sR}, 11")
        I(f"s_cselect_b32 s{sT0}, 12, s{sT0}")
        I(f"s_cmp_lt_u32 s{sR}, 8")
        I(f"s_cselect_b32 s{sT0}, 0, s{sT0}")
        I(f"s_add_u32 s{sR}, s{sR}, s{sT0}")
    g, n, q4, c4, t0, t1, t2, t3 = T, T+1, T+2, T+3, T+4, T+5, T+6, T+7
    aK = T + 48
    vAT = T + 44
    I(f"v_lshrrev_b32 v{g}, 4, v{vLANE}")
    I(f"v_and_b32 v{n}, 15, v{vLANE}")
    I(f"v_bfe_u32 v{q4}, v{vLANE}, 2, 2")
    I(f"v_and_b32 v{c4}, 3, v{vLANE}")
    if sm and kl == 1:
        I(f"v_bfe_u32 v{aK}, v{vLANE}, 1, 3")
        I(f"v_lshlrev_b32 v{aK}, 8, v{aK}")
        I(f"v_lshl_add_u32 v{aK}, v{g}, 5, v{aK}")
        I(f"v_and_b32 v{t0}, 1, v{vLANE}")
        I(f"v_lshl_add_u32 v{aK}, v{t0}, 4, v{aK}")
    elif sm and kl != 2:
        I(f"v_bfe_u32 v{aK}, v{vLANE}, 1, 2")
        I(f"v_lshlrev_b32 v{aK}, 12, v{aK}")
        I(f"v_lshl_add_u32 v{aK}, v{g}, 5, v{aK}")
        I(f"v_and_b32 v{t0}, 8, v{vLANE}")
        I(f"v_lshl_add_u32 v{aK}, v{t0}, 5, v{aK}")
        I(f"v_and_b32 v{t0}, 1, v{vLANE}")
        I(f"v_lshl_add_u32 v{aK}, v{t0}, 4, v{aK}")
    else:
        I(f"v_lshlrev_b32 v{aK}, 8, v{q4}")
        I(f"v_lshl_add_u32 v{aK}, v{g}, 6, v{aK}")
        I(f"v_lshl_add_u32 v{aK}, v{c4}, 4, v{aK}")
    I(f"v_mul_u32_u24 v{vXO}, 320, v{q4}")
    I(f"v_lshl_add_u32 v{vXO}, v{g}, 4, v{vXO}")
    I(f"s_lshl_b32 s{sT0}, s{sWAVE}, 6")
    I(f"v_add_u32 v{vXO}, s{sT0}, v{vXO}")
    if near >= 0:
        I(f"s_lshr_b32 s{sKV}, s{sSLOT}, 3")
        I(f"s_lshl_b32 s{sKV}, s{sKV}, 20")
        I(f"s_and_b32 s{sT0}, s{sSLOT}, 3")
        I(f"s_lshl_b32 s{sT0}, s{sT0}, 18")
        I(f"s_add_u32 s{sKV}, s{sKV}, s{sT0}")
        I(f"s_lshl_b32 s{sT0}, s{sWAVE}, 15")
        I(f"s_add_u32 s{sKV}, s{sKV}, s{sT0}")
        I(f"s_lshr_b32 s{sT0}, s{sSLOT}, 2")
        I(f"s_lshr_b32 s{sT1}, s{sSLOT}, 4")
        I(f"s_xor_b32 s{sT0}, s{sT0}, s{sT1}")
        I(f"s_xor_b32 s{sT0}, s{sT0}, {near}")
        I(f"s_and_b32 s{sT0}, s{sT0}, 1")
        I(f"s_lshl_b32 s{sT0}, s{sT0}, 13")
        I(f"s_add_u32 s{sKV}, s{sKV}, s{sT0}")
    else:
        I(f"s_lshr_b32 s{sKV}, s{sSLOT}, 3")
        hperm(97, sKV, sT0)
        I(f"s_lshl_b32 s{sKV}, s97, 20")
        for src, ps in ((sWAVE, kvp[2:5]), (sSLOT, kvp[5:8])):
            i = 0
            while i < 3:
                n_ = 1
                while i + n_ < 3 and ps[i + n_] == ps[i] + n_: n_ += 1
                I(f"s_bfe_u32 s{sT0}, s{src}, {i | (n_ << 16):#x}")
                I(f"s_lshl_b32 s{sT0}, s{sT0}, {ps[i]}")
                I(f"s_add_u32 s{sKV}, s{sKV}, s{sT0}")
                i += n_
    KVO = [0, 4096, 16384, 20480] if near >= 0 else [(t & 1) * kvp[0] ^ (t >> 1) * kvp[1] for t in range(4)]
    I(f"s_lshr_b32 s{sQS}, s{sSLOT}, 3")
    I(f"s_lshl_b32 s{sQS}, s{sQS}, 11")
    I(f"s_and_b32 s{sT1}, s{sSLOT}, 3")
    I(f"s_lshl_b32 s{sT0}, s{sT1}, 9")
    I(f"s_add_u32 s{sQS}, s{sQS}, s{sT0}")
    I(f"s_and_b32 s{sT0}, s{sSLOT}, 4")
    I(f"s_lshl_b32 s{sT0}, s{sT0}, 6")
    I(f"s_add_u32 s{sQS}, s{sQS}, s{sT0}")
    I(f"s_add_u32 s{sQS}, s{sQS}, {QOFF}")
    vW0, vW1, ta0, ta1 = T + 44, T + 45, T + 42, T + 43
    XQ, ACC, BUF = 28, 48, 80
    sBa, sEa, sPER, sRING, sSO, sMB, sRS_ = 86, 87, 90, 91, 92, 93, 94
    xq = T + 12
    I(f"s_and_b32 s{sT0}, s{sSLOT}, 3")
    I(f"s_mul_i32 s{sT0}, s{sT0}, 5")
    I(f"s_lshr_b32 s{sT1}, s{sSLOT}, 1")
    I(f"s_xor_b32 s{sT1}, s{sT1}, s{sWAVE}")
    I(f"s_bitcmp1_b32 s{sT1}, 1")
    I(f"s_cselect_b32 s{sT1}, {rot2}, 0")
    I(f"s_add_u32 s{sT1}, s{sT0}, s{sT1}")
    I(f"s_lshr_b32 s{sT0}, s{sSLOT}, 3")
    if near < 0: I(f"s_mov_b32 s{sT0}, s97")
    I(f"s_lshl_b32 s{sT0}, s{sT0}, 8")
    I(f"s_lshl_b32 s{sT2}, s{sWAVE}, 6")
    I(f"s_add_u32 s{sBa}, s{sT0}, s{sT2}")
    I(f"s_add_u32 s{sEa}, s{sBa}, {20 << 18:#x}")
    I(f"s_lshl_b32 s{sT2}, s{sT1}, 18")
    I(f"s_add_u32 s{sSO}, s{sBa}, s{sT2}")
    I(f"s_mul_i32 s{sPER}, s{sWAVE}, {NPER * 1024}")
    I(f"s_add_u32 s{sPER}, s{sPER}, {L_PER}")
    I(f"s_mul_i32 s{sRING}, s{sWAVE}, {NREST * 1024}")
    I(f"s_add_u32 s{sRING}, s{sRING}, {L_RING}")
    I(f"v_add_u32 v{t2}, s{sT1}, v{q4}")
    I(f"v_lshlrev_b32 v{t2}, 6, v{t2}")
    I(f"v_lshl_add_u32 v{t2}, v{g}, 4, v{t2}")
    for j in range(5):
        I(f"v_add_u32 v{xq+j}, {256*j}, v{t2}")
        I(f"v_subrev_u32 v{t3}, {1280 - 256*j}, v{t2}")
        I(f"v_min_u32 v{xq+j}, v{xq+j}, v{t3}")
    I(f"v_lshrrev_b32 v{vW0}, 2, v{vLANE}")
    I(f"v_lshlrev_b32 v{vW0}, 13, v{vW0}")
    I(f"v_lshrrev_b32 v{t3}, 4, v{vLANE}")
    I(f"v_and_b32 v{t3}, 2, v{t3}")
    I(f"v_xor_b32 v{t3}, v{t3}, v{c4}")
    I(f"v_lshl_add_u32 v{vW0}, v{t3}, 4, v{vW0}")
    I(f"v_add_u32 v{vW1}, {1 << 17:#x}, v{vW0}")
    I(f"v_lshlrev_b32 v{t0}, 4, v{vLANE}")
    cl = T + 8
    for i in range(4):
        I(f"v_mov_b32 v{cl+i}, -1")
    I(f"s_mov_b32 s{sTSI}, 0")
    if instr:
        I(f"v_mov_b32 v{vTSI}, -1")
        I(f"v_mov_b32 v{vTST}, 0")
    I(f"s_getreg_b32 s{sXCC}, hwreg(HW_REG_XCC_ID)")
    I(f"s_and_b32 s{sXCC}, s{sXCC}, 15")
    I(f"s_mul_i32 s{sT3}, s2, 3072")
    if instr: I("s_memrealtime s[0:1]")
    I("s_waitcnt lgkmcnt(0)")
    if instr:
        I(f"v_writelane_b32 v{vTSI}, 41, 0")
        I(f"v_writelane_b32 v{vTST}, s98, 0")
        I(f"v_writelane_b32 v{vTSI}, 42, 1")
        I(f"v_writelane_b32 v{vTST}, s0, 1")
        I(f"s_mov_b32 s{sTSI}, 2")
        TS(43)
    srd(WS, 56, WS_SIZE)
    srd(K_SRD, 34, 32 << 20)
    if dbgt:
        I(f"v_mov_b32 v{vTST}, 0")
        I(f"v_writelane_b32 v{vTST}, s96, 1")
        I("s_not_b32 s96, s96")
        I(f"v_writelane_b32 v{vTST}, s96, 0")
        I(f"s_mov_b32 s{sIT}, 0")
        TS(40)
    srd(TA, 38, 640 * 8192)
    srd(TB, 32, 1280)

    def k_issue(lo, hi, hook=None):
        for ki in range(lo, hi):
            if hook: hook(ki)
            if sm and kl == 1:
                if ki % 4 == 0 or ki == lo:
                    I(f"s_xor_b32 s{sT0}, s{sKV}, {KVO[ki//4]}")
                I(f"buffer_load_dwordx4 {vr(vK+4*ki)}, v{aK}, {K_SRD}, s{sT0} offen offset:{((ki>>1)&1)*2048+(ki&1)*128} {kvflags}")
                continue
            if sm and kl != 2:
                I(f"buffer_load_dwordx4 {vr(vK+4*ki)}, v{aK}, {K_SRD}, s{sKV} offen offset:{(ki>>1)*512+(ki&1)*128} {kvflags}")
                continue
            if ki % 4 == 0 or ki == lo:
                I(f"s_xor_b32 s{sT0}, s{sKV}, {KVO[ki//4]}")
            I(f"buffer_load_dwordx4 {vr(vK+4*ki)}, v{aK}, {K_SRD}, s{sT0} offen offset:{(ki%4)*1024} {kvflags}")

    I(f"s_cmp_eq_u32 s{sWAVE}, 6")
    I("s_cbranch_scc0 L_nclr")
    I(f"buffer_store_dwordx4 {vr(cl)}, v{t0}, {WS}, s{sT3} offen sc1")
    I(f"buffer_store_dwordx4 {vr(cl)}, v{t0}, {WS}, s{sT3} offen offset:1024 sc1")
    I(f"buffer_store_dwordx4 {vr(cl)}, v{t0}, {WS}, s{sT3} offen offset:2048 sc1")
    TS(0)
    I("s_branch L_early")
    a.label("L_nclr")
    I(f"s_cmp_ge_u32 s{sWAVE}, 4")
    I("s_cbranch_scc1 L_nwq")
    if prio: I(f"s_setprio {qp}")
    nis = [0]; nk = [0]; wpos = {}
    def slot(p):
        if p < NPER: return sPER, p * 1024
        return sRING, ((p - NPER) % NREST) * 1024
    def w_issue(lo, hi):
        for p in range(lo, hi):
            u, h = p >> 1, p & 1
            b_, o_ = slot(p)
            I(f"s_add_u32 m0, s{b_}, {o_}")
            if fakeq and p == fakeq:
                I(f"v_mov_b32 v{vW0}, {BIG:#x}")
                I(f"v_mov_b32 v{vW1}, {BIG:#x}")
            I(f"buffer_load_dwordx4 v{(vW0, vW1)[h]}, {TA}, s{sSO} offen {wflags} lds")
            wpos[p] = nis[0]
            nis[0] += 1
            if h and p < 39:
                I(f"s_add_u32 s{sSO}, s{sSO}, {1 << 18:#x}")
                I(f"s_cmp_eq_u32 s{sSO}, s{sEa}")
                I(f"s_cselect_b32 s{sSO}, s{sBa}, s{sSO}")
    for j in range(5):
        I(f"buffer_load_dwordx4 {vr(XQ+4*j)}, v{xq+j}, {TB}, 0 offen")
        nis[0] += 1
    w_issue(0, nw0)
    TS(0)
    I("s_branch L_early")
    a.label("L_nwq")
    if pt:
        k_issue(0, 1)
        I(f"v_lshlrev_b32 v{t2}, 21, v{vLANE}")
        setexec(0x7, 0)
        I(f"s_cmp_eq_u32 s{sWAVE}, 4")
        I("s_cbranch_scc0 L_pt5")
        srd(TA, 36, 32 << 20)
        setexec(1, 0)
        I(f"buffer_load_dword v{vV}, v{t2}, {TA}, s{sKV} offen")
        I("s_branch L_ptd")
        a.label("L_pt5")
        I(f"s_cmp_lt_u32 s{sR}, {ptr_}")
        I("s_cbranch_scc0 L_ptd")
        I(f"s_cmp_eq_u32 s{sWAVE}, 5")
        I("s_cbranch_scc0 L_pt7")
        for ptr, size in ((40, 4096 * 1280), (44, 640 * 3456), (48, 1728 * 1280)):
            srd(TA, ptr, size)
            I(f"buffer_load_dword v{vV}, v{t2}, {TA}, 0 offen")
        I("s_branch L_ptd")
        a.label("L_pt7")
        for ptr, size in ((52, 1280), (50, 1280), (46, 3456)) + (((54, 256),) if pt > 1 else ()):
            srd(TA, ptr, size)
            I(f"buffer_load_dword v{vV}, v{t2}, {TA}, 0 offen")
        a.label("L_ptd")
        setexec(0xFFFFFFFF, 0xFFFFFFFF)
        k_issue(1, n0)
    else:
        k_issue(0, n0)
    TS(0)
    a.label("L_early")
    srd(V_SRD, 36, 32 << 20)
    srd(OUTS, 52, 1280)
    I(f"s_mov_b32 s{sIT}, 0")
    I(f"s_mov_b32 s{sREG}, 0")
    I(f"s_mov_b32 s{sREG2}, {CP}")
    I(f"s_mov_b32 s{sSPIN}, 0")
    I(f"s_mov_b32 s{sPURE}, 0")
    I(f"s_mov_b32 s{sNEAR}, 0")
    I(f"s_mov_b32 s{sL2E}, {L2E:#x}")
    I(f"s_lshr_b32 s{sLATE}, {late:#x}, s{sWAVE}")
    I(f"s_and_b32 s{sLATE}, s{sLATE}, 1")
    I(f"s_mov_b32 s{sROLE}, 3")
    if not dyn:
        I(f"s_mul_i32 s{sTB}, s{sX}, 7")
        I(f"s_cmp_eq_u32 s{sX}, 7")
        I(f"s_cselect_b32 s{sT0}, 21, 20")
        I(f"s_sub_u32 s{sTB}, s{sTB}, s{sT0}")
        I(f"s_add_u32 s{sTB}, s{sTB}, s{sR}")
        I(f"s_cmp_lt_u32 s{sX}, 6")
        I(f"s_cselect_b32 s{sT0}, 27, 26")
        I(f"s_cmp_lt_u32 s{sR}, s{sT0}")
        I(f"s_cselect_b32 s{sROLE}, 1, s{sROLE}")
    I(f"s_cmp_lt_u32 s{sR}, 20")
    I(f"s_cselect_b32 s{sROLE}, 0, s{sROLE}")
    I(f"s_cselect_b32 s{sLATE}, s{sLATE}, 0")
    for i in [1] + list(range(3, 18)):
        I(f"v_mov_b32 v{i}, {BIG:#x}")

    def v_issue():
        k1, k2, k3 = T + 49, T + 50, T + 51
        I(f"v_lshrrev_b32 v{k1}, 4, v{vLANE}")
        I(f"v_bfe_u32 v{k3}, v{vLANE}, 3, 1")
        if sm: I(f"v_lshl_add_u32 v{k3}, v{k1}, 1, v{k3}")
        else: I(f"v_lshl_add_u32 v{k3}, v{k3}, 3, v{k1}")
        I(f"v_lshlrev_b32 v{k3}, 8, v{k3}")
        I(f"v_and_b32 v{k2}, 7, v{vLANE}")
        I(f"v_lshl_add_u32 v{k3}, v{k2}, 4, v{k3}")
        def ticket():
            I(f"s_cmp_eq_u32 s{sWAVE}, {tw}")
            I("s_cbranch_scc0 L_ntk")
            I(f"s_cmp_eq_u32 s{sROLE}, 0")
            I("s_cbranch_scc1 L_ntk")
            srd(TA, 54, 256)
            I(f"v_mov_b32 v{vRDMA}, 1")
            setexec(1, 0)
            I(f"buffer_atomic_add v{vRDMA}, off, {TA}, 0 sc0 sc1")
            setexec(0xFFFFFFFF, 0xFFFFFFFF)
            a.label("L_ntk")
        for j in range(17):
            if dyn and j == tp: ticket()
            if j == 16: break
            if j % 4 == 0:
                I(f"s_xor_b32 s{sT0}, s{sKV}, {KVO[j//4]}")
            u, hf = (j >> 1) & 1, j & 1
            if sm: u, hf = 2 * hf, u
            I(f"buffer_load_dwordx4 {vr(vV+4*j)}, v{k3}, {V_SRD}, s{sT0} offen offset:{u*1024+hf*128} {kvflags}")

    def role_dma():
        I(f"s_lshl_b32 s{sT1}, s{sWAVE}, 13")
        I(f"s_add_u32 s{sT1}, s{sT1}, {L_ROLE}")
        I(f"s_mov_b32 s{sT0}, s{sRB}")
        for e in range(8):
            if e % 4 == 0:
                I(f"s_mov_b32 m0, s{sT1}")
                if e == 0:
                    I(f"s_add_u32 s{sT1}, s{sT1}, 4096")
            I(f"s_cmp_gt_u32 s{sRN}, {e}")
            I(f"s_cselect_b32 s{sT2}, s{sT0}, {BIG:#x}")
            I(f"buffer_load_dwordx4 v{vRDMA}, {TB}, s{sT2} offen offset:{(e%4)*1024} {rflags} lds")
            if e < 7:
                I(f"s_add_u32 s{sT0}, s{sT0}, s{sRSTEP}")
                if e % 4 == 3:
                    I(f"s_add_u32 s{sT0}, s{sT0}, 3072")
                else:
                    I(f"s_sub_u32 s{sT0}, s{sT0}, 1024")

    def rank_off(dst, rk, tmp):
        I(f"s_and_b32 s{tmp}, s{rk}, {(1 << ZB) - 1}")
        I(f"s_mul_i32 s{tmp}, s{tmp}, {ZR}")
        I(f"s_lshr_b32 s{dst}, s{rk}, {ZB}")
        I(f"s_lshl_b32 s{dst}, s{dst}, 14")
        I(f"s_add_u32 s{dst}, s{dst}, s{tmp}")

    I(f"s_cmp_ge_u32 s{sWAVE}, 5")
    I("s_cbranch_scc1 L_init567")
    I(f"v_bfe_u32 v{t0}, v{vLANE}, 3, 1")
    I(f"v_and_b32 v{t1}, 7, v{vLANE}")
    I(f"s_lshl_b32 s{sT1}, s{sWAVE}, 2")
    rank_off(sT0, sT1, sT2)
    I(f"v_mul_u32_u24 v{vGO}, {ZR}, v{t0}")
    I(f"v_mul_u32_u24 v{t1}, {ZX}, v{t1}")
    I(f"v_add3_u32 v{vGO}, v{vGO}, v{t1}, s{sT0}")
    I(f"v_lshl_add_u32 v{vGO}, v{g}, 4, v{vGO}")
    I(f"s_mul_i32 s{sT0}, s{sWAVE}, {PP}")
    I(f"s_add_u32 s{sT0}, s{sT0}, {L_PB1 + 512}")
    I(f"v_lshlrev_b32 v{t2}, 2, v{g}")
    I(f"v_add_u32 v{t2}, s{sT0}, v{t2}")
    I(f"v_lshlrev_b32 v{t3}, 2, v{vLANE}")
    I(f"v_add_u32 v{t3}, {L_DUM}, v{t3}")
    I(f"v_cmp_eq_u32 vcc, v{q4}, v{g}")
    I(f"v_cndmask_b32 v{vSW}, v{t3}, v{t2}, vcc")
    I(f"s_mul_i32 s{sT0}, s{sWAVE}, {PP}")
    I(f"v_lshlrev_b32 v{vPQ}, 4, v{g}")
    I(f"v_add_u32 v{vPQ}, s{sT0}, v{vPQ}")
    I(f"s_and_b32 s{sT0}, s{sSLOT}, 3")
    I(f"s_lshl_b32 s{sT0}, s{sT0}, 2")
    I(f"s_lshl_b32 s{sKM}, 0x00010001, s{sT0}")
    I(f"s_mov_b32 s{sKM+1}, s{sKM}")
    I("s_branch L_initc")

    a.label("L_init567")
    I(f"s_cmp_eq_u32 s{sWAVE}, 6")
    I("s_cbranch_scc1 L_initc")
    I(f"s_cmp_eq_u32 s{sWAVE}, 7")
    I("s_cbranch_scc1 L_init7")
    rank_off(sT0, sR, sT1)
    I(f"s_mul_i32 s{sT1}, s{sX}, {ZX}")
    I(f"s_add_u32 s{sT0}, s{sT0}, s{sT1}")
    I(f"s_add_u32 s{sRB}, s{sT0}, {ZOFF}")
    I(f"v_lshlrev_b32 v{vRR}, 4, v{vLANE}")
    I(f"v_lshlrev_b32 v{vQP}, 2, v{vLANE}")
    I(f"v_add_u32 v{vQP}, s{sQS}, v{vQP}")
    I(f"s_and_b32 s{sT0}, s{sQS}, {~2047 & 0xffffffff:#x}")
    I(f"v_lshlrev_b32 v{vQG}, 3, v{vLANE}")
    I(f"v_add_u32 v{vQG}, s{sT0}, v{vQG}")
    I(f"v_mov_b32 v{t0}, 0")
    I(f"v_mov_b32 v{t1}, 0")
    I(f"v_mov_b32 v{t2}, {L_FLAG}")
    I(f"ds_write_b64 v{t2}, v[{t0}:{t1}] offset:8")
    if emd: I(f"ds_write_b32 v{t2}, v{t0} offset:4")
    I(f"v_and_b32 v{t2}, 31, v{vLANE}")
    I(f"v_lshlrev_b32 v{t2}, 1, v{t2}")
    I(f"s_or_b32 s{sT2}, s{sROLE}, s{sX}")
    I(f"s_lshl_b32 s{sT1}, s{sR}, 6")
    I(f"s_cmp_eq_u32 s{sT2}, 0")
    I(f"s_cselect_b32 s{sT1}, s{sT1}, {BIG:#x}")
    I(f"buffer_load_ushort v{vXF}, v{t2}, {TB}, s{sT1} offen")
    I(f"v_lshrrev_b32 v{t1}, 3, v{vLANE}")
    I(f"v_lshlrev_b32 v{t1}, 4, v{t1}")
    I(f"v_add_u32 v{vRP}, s{sRB}, v{t1}")
    I(f"v_and_b32 v{t1}, 31, v{vLANE}")
    I(f"v_lshlrev_b32 v{t1}, 1, v{t1}")
    I(f"s_or_b32 s{sT2}, s{sROLE}, s{sX}")
    I(f"s_lshl_b32 s{sT1}, s{sR}, 6")
    I(f"s_add_u32 s{sT1}, s{sT1}, {XOFF}")
    I(f"s_cmp_eq_u32 s{sT2}, 0")
    I(f"s_cselect_b32 s{sT1}, s{sT1}, {BIG:#x}")
    I(f"v_add_u32 v{vXFA}, s{sT1}, v{t1}")
    I("s_branch L_initc")

    a.label("L_init7")
    I(f"v_lshlrev_b32 v{vCR}, 3, v{vLANE}")
    I(f"v_add_u32 v{vCR}, {L_O}, v{vCR}")
    I(f"v_and_b32 v{t0}, 7, v{vLANE}")
    I(f"v_lshlrev_b32 v{vCML}, 3, v{t0}")
    I(f"v_add_u32 v{vCML}, {L_ML}, v{vCML}")
    I(f"s_lshr_b32 s{sT0}, s{sSLOT}, 3")
    I(f"s_lshl_b32 s{sT1}, s{sT0}, 11")
    I(f"s_and_b32 s{sT2}, s{sSLOT}, 7")
    I(f"s_lshl_b32 s{sT3}, s{sT2}, 4")
    I(f"s_add_u32 s{sT1}, s{sT1}, s{sT3}")
    I(f"v_lshrrev_b32 v{t0}, 5, v{vLANE}")
    I(f"v_lshlrev_b32 v{vCP}, 10, v{t0}")
    I(f"v_lshl_add_u32 v{vCP}, v{q4}, 8, v{vCP}")
    I(f"v_and_b32 v{t0}, 1, v{g}")
    I(f"v_lshl_add_u32 v{vCP}, v{t0}, 7, v{vCP}")
    I(f"v_lshl_add_u32 v{vCP}, v{c4}, 2, v{vCP}")
    I(f"v_add_u32 v{vCP}, s{sT1}, v{vCP}")
    I(f"s_lshl_b32 s{sT0}, s{sT0}, 7")
    I(f"s_lshl_b32 s{sT2}, s{sT2}, 3")
    I(f"s_add_u32 s{sT0}, s{sT0}, s{sT2}")
    I(f"s_add_u32 s{sT0}, s{sT0}, {MLOFF}")
    I(f"v_mov_b32 v{vCPM}, s{sT0}")
    I(f"s_and_b32 s{sT0}, s{sQS}, {~2047 & 0xffffffff:#x}")
    I(f"v_lshlrev_b32 v{vQG7}, 3, v{vLANE}")
    I(f"v_add_u32 v{vQG7}, s{sT0}, v{vQG7}")

    a.label("L_initc")
    I(f"s_mov_b32 s{sRN}, 0")
    I(f"s_mov_b32 s{sRB}, 0")
    I(f"s_mov_b32 s{sRSTEP}, 0")
    srd(TB, 40, 4096 * 1280)
    I(f"v_lshrrev_b32 v{t0}, 2, v{vLANE}")
    I(f"v_lshlrev_b32 v{t1}, 4, v{c4}")
    I(f"s_cmp_eq_u32 s{sROLE}, 0")
    I("s_cbranch_scc0 L_rpd")
    I(f"s_lshl_b32 s{sT0}, s{sXW}, 3")
    I(f"s_add_u32 s{sT0}, s{sT0}, s{sWAVE}")
    I(f"s_lshr_b32 s{sT0}, s{sT0}, 1")
    hperm(sT0, sT0, sT1)
    I(f"s_lshl_b32 s{sT0}, s{sT0}, 1")
    I(f"s_and_b32 s{sT1}, s{sWAVE}, 1")
    I(f"s_add_u32 s{sT0}, s{sT0}, s{sT1}")
    I(f"s_mul_i32 s{sT0}, s{sT0}, {64*1280}")
    I(f"s_lshl_b32 s{sT1}, s{sR}, 6")
    I(f"s_add_u32 s{sRB}, s{sT0}, s{sT1}")
    I(f"s_mov_b32 s{sRSTEP}, {16*1280}")
    I(f"s_mov_b32 s{sRN}, 4")
    I(f"v_mul_u32_u24 v{vRDMA}, 1280, v{t0}")
    I(f"v_add_u32 v{vRDMA}, v{vRDMA}, v{t1}")
    I(f"s_lshr_b32 s{sT0}, s{sWAVE}, 1")
    I(f"s_lshl_b32 s{sT1}, s{sXW}, 2")
    I(f"s_add_u32 s{sT0}, s{sT0}, s{sT1}")
    I(f"s_lshl_b32 s{sT1}, s{sXW}, 3")
    I(f"s_add_u32 s{sT1}, s{sT1}, s{sWAVE}")
    I(f"s_lshl_b32 s{sT1}, s{sT1}, 10")
    I(f"v_lshlrev_b32 v{t2}, 4, v{vLANE}")
    I(f"v_add_u32 v{vA0}, s{sT1}, v{t2}")
    I(f"v_xor_b32 v{t2}, v{g}, v{q4}")
    I(f"v_and_b32 v{t2}, 1, v{t2}")
    I(f"v_lshl_add_u32 v{t2}, v{t2}, 2, v{c4}")
    I(f"v_lshlrev_b32 v{t2}, 3, v{t2}")
    I(f"s_lshl_b32 s{sT0}, s{sT0}, 7")
    I(f"s_add_u32 s{sT0}, s{sT0}, {MLOFF}")
    I(f"v_add_u32 v{vA2}, s{sT0}, v{t2}")
    a.label("L_rpd")

    I(f"s_mul_i32 s{sT0}, s{sWAVE}, {PP}")
    I(f"v_lshlrev_b32 v{vPW}, 4, v{n}")
    I(f"v_lshl_add_u32 v{vPW}, v{g}, 2, v{vPW}")
    I(f"v_add_u32 v{vPW}, s{sT0}, v{vPW}")
    I(f"v_lshl_add_u32 v{vQR}, v{g}, 2, v{c4}")
    I(f"v_lshlrev_b32 v{vQR}, 4, v{vQR}")
    I(f"v_add_u32 v{vQR}, {L_QB}, v{vQR}")
    I(f"s_lshl_b32 s{sT0}, s{sWAVE}, 10")
    I(f"s_add_u32 s{sT0}, s{sT0}, {L_O}")
    I(f"v_bfe_u32 v{t0}, v{vLANE}, 3, 1")
    I(f"v_lshlrev_b32 v{vOW}, 9, v{t0}")
    I(f"v_and_b32 v{t0}, 7, v{vLANE}")
    I(f"v_lshl_add_u32 v{vOW}, v{t0}, 5, v{vOW}")
    I(f"v_and_b32 v{t1}, 1, v{g}")
    I(f"v_lshl_add_u32 v{vOW}, v{t1}, 4, v{vOW}")
    I(f"v_add_u32 v{vOW}, s{sT0}, v{vOW}")
    I(f"s_lshl_b32 s{sT0}, s{sWAVE}, 3")
    I(f"s_add_u32 s{sT0}, s{sT0}, {L_ML}")
    I(f"v_lshlrev_b32 v{vMLW}, 3, v{vLANE}")
    I(f"v_add_u32 v{vMLW}, {L_DUM}, v{vMLW}")
    I(f"v_writelane_b32 v{vMLW}, s{sT0}, 63")
    if sm:
        I(f"v_and_b32 v{t0}, 4, v{vLANE}")
        I(f"v_cmp_eq_u32 vcc, 0, v{t0}")
        I(f"v_mov_b32 v{t1}, 0xffff")
        I(f"v_mov_b32 v{t2}, 0xffff0000")
        I(f"v_cndmask_b32 v{vSEL}, 0, v{t1}, vcc")
        I(f"v_cndmask_b32 v{vSEL+2}, 0, v{t2}, vcc")
        I(f"v_xor_b32 v{vSEL+1}, v{vSEL}, v{t1}")
        I(f"v_xor_b32 v{vSEL+3}, v{vSEL+2}, v{t2}")
        I(f"v_mul_u32_u24 v{t0}, 0x5555, v{c4}")
        I(f"v_and_b32 v{t1}, 2, v{vLANE}")
        I(f"v_mul_u32_u24 v{t1}, 0x5555, v{t1}")
        I(f"v_or_b32 v{t1}, 0x4444, v{t1}")
        I(f"v_lshl_or_b32 v{vSEL+4}, v{t0}, 16, v{t1}")
    for u in range(0 if sm else 2):
        for r in range(4):
            sb = 0x0100 if u == (r >> 1) else 0x0302
            d = vSEL + u * 4 + r
            I(f"v_mov_b32 v{d}, 0x0c0c0c0c")
            I(f"v_mov_b32 v{t1}, {0x0c0c0000 | sb:#x}")
            I(f"v_mov_b32 v{t2}, {(sb << 16) | 0x0c0c:#x}")
            I(f"v_cmp_eq_u32 vcc, {2*r}, v{t0}")
            I(f"v_cndmask_b32 v{d}, v{d}, v{t1}, vcc")
            I(f"v_cmp_eq_u32 vcc, {2*r+1}, v{t0}")
            I(f"v_cndmask_b32 v{d}, v{d}, v{t2}, vcc")

    def tr_addr(dst, pitch, base_s, x0=T + 48):
        x1 = x0 + 1
        I(f"v_lshrrev_b32 v{x0}, 4, v{vLANE}")
        I(f"v_bfe_u32 v{x1}, v{vLANE}, 2, 2")
        I(f"v_lshl_add_u32 v{x0}, v{x0}, 3, v{x1}")
        I(f"v_lshlrev_b32 v{x0}, {pitch.bit_length()-1}, v{x0}")
        I(f"v_and_b32 v{x1}, 3, v{vLANE}")
        I(f"v_lshl_add_u32 v{x0}, v{x1}, 3, v{x0}")
        I(f"v_add_u32 v{dst}, s{base_s}, v{x0}")

    def ones():
        for i in range(4):
            I(f"v_mov_b32 v{ONES+i}, 0x3f803f80")

    def gemv(ntile, Bbase, bidx):
        S1, S2 = T + 16, T + 20
        A0_, A1_ = vr(XA), vr(XA + 4)
        I(f"v_mfma_f32_16x16x32_bf16 {vr(S2)}, {A0_}, {A0_}, 0")
        I(f"v_mfma_f32_16x16x32_bf16 {vr(S2)}, {A1_}, {A1_}, {vr(S2)}")
        I(f"v_mfma_f32_16x16x32_bf16 {vr(S1)}, {A0_}, {vr(ONES)}, 0")
        I(f"v_mfma_f32_16x16x32_bf16 {vr(S1)}, {A1_}, {vr(ONES)}, {vr(S1)}")
        post = [
            f"v_pk_add_f32 v[{S2}:{S2+1}], v[{S2}:{S2+1}], v[{S2+2}:{S2+3}]",
            f"v_add_f32 v{S2}, v{S2}, v{S2+1}",
            f"v_add_f32_dpp v{S2}, v{S2}, v{S2} quad_perm:[1,0,3,2] row_mask:0xf bank_mask:0xf",
            f"v_pk_add_f32 v[{S1}:{S1+1}], v[{S1}:{S1+1}], v[{S1+2}:{S1+3}]",
            f"v_add_f32_dpp v{S2}, v{S2}, v{S2} quad_perm:[2,3,0,1] row_mask:0xf bank_mask:0xf",
            f"v_add_f32 v{S1}, v{S1}, v{S1+1}",
            f"v_add_f32_dpp v{S2}, v{S2}, v{S2} row_half_mirror row_mask:0xf bank_mask:0xf",
            f"ds_write2_b32 v{vSW}, v{S1}, v{S2} offset0:0 offset1:4",
        ]
        def dpost(t):
            D = T + 8 * t
            return [f"v_pk_add_f32 v[{D}:{D+1}], v[{D}:{D+1}], v[{D+2}:{D+3}]",
                    f"v_pk_add_f32 v[{D+4}:{D+5}], v[{D+4}:{D+5}], v[{D+6}:{D+7}]",
                    f"v_add_f32 v{D}, v{D}, v{D+1}",
                    f"v_add_f32_dpp v{D}, v{D+4}, v{D+5} quad_perm:[0,1,2,3] row_mask:0xc bank_mask:0xf",
                    f"ds_write_b32 v{vPW}, v{D} offset:{L_PB1 + t*256}"]
        for t in range(ntile):
            post += dpost(t)
        k = 0
        for t in range(ntile):
            for j in range(2):
                D = T + 8 * t + 4 * j
                for h in range(2):
                    I(f"v_mfma_f32_16x16x32_bf16 {vr(D)}, {(A0_, A1_)[h]}, {vr(Bbase+4*bidx(2*h+j,t))}, {vr(D) if h else '0'}")
                    k += 1
                    if k >= 5 and k < 4 * ntile:
                        for x in post[:2]: I(x)
                        post = post[2:]
        for x in post: I(x)
        I("s_waitcnt lgkmcnt(0)")

    def gemv_q(first=False):
        S1, S2 = T + 16, T + 20
        for t in range(4):
            I(f"v_mfma_f32_16x16x32_bf16 {vr(T+4*t)}, {vr(vBQ+4*t)}, {vr(XA)}, 0")
        I(f"v_mfma_f32_16x16x32_bf16 {vr(S1)}, {vr(XA)}, {vr(ONES)}, 0")
        I(f"v_mfma_f32_16x16x32_bf16 {vr(S2)}, {vr(XA)}, {vr(XA)}, 0")
        if first:
            for t in range(4):
                I(f"v_mfma_f32_16x16x32_bf16 {vr(vRB+4*t)}, {vr(vBQ+4*t)}, {vr(ONES)}, 0")
        I(f"s_mov_b64 exec, s[{sKM}:{sKM+1}]")
        for t in range(4):
            I(f"ds_write_b128 v{vPQ}, {vr(T+4*t)} offset:{L_PB1 + t*64}")
        if first:
            for t in range(4):
                I(f"ds_write_b128 v{vPQ}, {vr(vRB+4*t)} offset:{L_PB1 + 256 + t*64}")
        I("s_mov_b64 exec, -1")
        I(f"ds_write2_b32 v{vSW}, v{S1}, v{S2} offset0:0 offset1:4")
        I("s_waitcnt lgkmcnt(0)")

    def gather(sreg):
        poll([f"buffer_load_dwordx4 {vr(XA)}, v{vGO}, {WS}, s{sreg} offen {zfl}",
              f"buffer_load_dwordx4 {vr(XA+4)}, v{vGO}, {WS}, s{sreg} offen offset:{2*ZR} {zfl}"],
             [XA, XA + 4], groups=[[XA], [XA + 4]], hop=2)

    def reduce_read(nw, base):
        for v in range(nw):
            I(f"ds_read_b128 {vr(T+4*v)}, v{vRR} offset:{base + v*PP}")

    def reduce_sum(nw, dst):
        np_ = 2 * nw
        idx = list(range(np_))
        while len(idx) > 1:
            nx = []
            for i in range(0, len(idx) - 1, 2):
                d, s = idx[i], idx[i + 1]
                I(f"v_pk_add_f32 v[{T+2*d}:{T+2*d+1}], v[{T+2*d}:{T+2*d+1}], v[{T+2*s}:{T+2*s+1}]")
                nx.append(d)
            if len(idx) % 2:
                nx.append(idx[-1])
            idx = nx
        I(f"v_add_f32 v{dst}, v{T}, v{T+1}")

    rTOT, rMEAN, rVAR, rMB, rSD, rR, rU, rT, rINV, rC1, rC2, rCS = [T + 32 + i for i in range(12)]

    def cs_read(area, dst):
        l = a.newlab("Lcs")
        I(f"s_cmp_eq_u32 s{sIT}, 0")
        I(f"s_cbranch_scc0 {l}")
        I(f"v_lshrrev_b32 v{rT}, 2, v{vRR}")
        for v in range(5):
            I(f"ds_read_b32 v{T+24+v}, v{rT} offset:{area + v*128}")
        I("s_waitcnt lgkmcnt(0)")
        I(f"v_add_f32 v{dst}, v{T+24}, v{T+25}")
        I(f"v_add_f32 v{rT}, v{T+26}, v{T+27}")
        I(f"v_add_f32 v{dst}, v{dst}, v{T+28}")
        I(f"v_add_f32 v{dst}, v{dst}, v{rT}")
        a.label(l)

    def stats(l0=32):
        if l0 is not None:
            I(f"v_readlane_b32 s{sT0}, v{rTOT}, {l0}")
            I(f"v_readlane_b32 s{sT1}, v{rTOT}, {l0+1}")
            I(f"v_mul_f32 v{rMEAN}, s{sT0}, v{rINV}")
            I(f"v_mul_f32 v{rVAR}, s{sT1}, v{rINV}")
        I(f"v_fma_f32 v{rVAR}, -v{rMEAN}, v{rMEAN}, v{rVAR}")
        I(f"v_max_f32 v{rVAR}, 0, v{rVAR}")
        I(f"v_cvt_pk_bf16_f32 v{rT}, v{rMEAN}, v{rVAR}")
        I(f"v_and_b32 v{rU}, 0xffff0000, v{rT}")
        I(f"v_lshlrev_b32 v{rMB}, 16, v{rT}")
        I(f"v_add_f32 v{rU}, {f2u(1e-5):#x}, v{rU}")
        I(f"v_cvt_pk_bf16_f32 v{rU}, v{rU}, v{rU}")
        I(f"v_and_b32 v{rU}, 0xffff0000, v{rU}")
        I(f"v_sqrt_f32 v{rU}, v{rU}")
        I(f"v_cvt_pk_bf16_f32 v{rU}, v{rU}, v{rU}")
        I(f"v_and_b32 v{rSD}, 0xffff0000, v{rU}")
        I(f"v_rcp_f32 v{rR}, v{rSD}")

    def pack_pairs(src, dst):
        I(f"v_mov_b32_dpp v{rT}, v{src} quad_perm:[1,0,3,2] row_mask:0xf bank_mask:0xf")
        I(f"v_cvt_pk_bf16_f32 v{dst}, v{src}, v{rT}")
        I(f"v_min_u32 v{dst}, 0xfffffffe, v{dst}")

    def q_reduce(first=False):
        qa, qs, QS = T + 44, T + 45, T + 20
        I(f"v_lshlrev_b32 v{qa}, 2, v{vLANE}")
        I(f"v_and_b32 v{qs}, 1, v{vLANE}")
        if sm:
            I(f"v_and_b32 v{T+46}, 0x34, v{vLANE}")
            I(f"v_lshl_add_u32 v{T+46}, v{qs}, 3, v{T+46}")
            I(f"v_bfe_u32 v{T+47}, v{vLANE}, 3, 1")
            I(f"v_lshl_add_u32 v{T+46}, v{T+47}, 1, v{T+46}")
            I(f"v_bfe_u32 v{T+47}, v{vLANE}, 1, 1")
            I(f"v_add_lshl_u32 v{T+46}, v{T+46}, v{T+47}, 2")
        I(f"v_lshlrev_b32 v{qs}, 4, v{qs}")
        return qa, qs, QS

    def q_reduce2(qa, qs, QS, first=False):
        for v in range(5):
            I(f"ds_read_b128 {vr(T+4*v)}, v{qs} offset:{L_PB1 + 512 + v*PP}")
        for v in range(5):
            I(f"ds_read_b32 v{QS+v}, v{qa} offset:{L_PB1 + v*PP}")
        if first:
            for v in range(5):
                I(f"ds_read_b32 v{QS+5+v}, v{qa} offset:{L_PB1 + 256 + v*PP}")
        I(f"s_waitcnt lgkmcnt({10 if first else 5})")
        reduce_sum(5, rTOT)
        stats(0)
        I("s_waitcnt lgkmcnt(0)")
        I(f"v_add_f32 v{QS}, v{QS}, v{QS+1}")
        I(f"v_add_f32 v{QS+2}, v{QS+2}, v{QS+3}")
        I(f"v_add_f32 v{QS}, v{QS}, v{QS+4}")
        I(f"v_add_f32 v{QS}, v{QS}, v{QS+2}")
        if first:
            I(f"v_add_f32 v{vCSQ}, v{QS+5}, v{QS+6}")
            I(f"v_add_f32 v{QS+7}, v{QS+7}, v{QS+8}")
            I(f"v_add_f32 v{vCSQ}, v{vCSQ}, v{QS+9}")
            I(f"v_add_f32 v{vCSQ}, v{vCSQ}, v{QS+7}")
        I(f"v_fma_f32 v{rU}, -v{rMB}, v{vCSQ}, v{QS}")
        I(f"v_mul_f32 v{rU}, v{rU}, v{rR}")
        I(f"v_min_u32 v{rU}, 0xfffffffe, v{rU}")

    def q_gather(va, qa):
        G_ = 60 if y128 else T
        poll([f"buffer_load_dwordx2 v[{G_+2*k}:{G_+2*k+1}], v{va}, {WS}, s{sREG} offen offset:{k*512} sc1" for k in range(4)],
             list(range(G_, G_ + 8)), groups=[[G_ + 2 * k, G_ + 2 * k + 1] for k in range(4)], hop=16 if y128 else 0)
        Z_ = T + 40 if zq else T
        I(f"v_pk_add_f32 v[{Z_}:{Z_+1}], v[{G_}:{G_+1}], v[{G_+2}:{G_+3}]")
        I(f"v_pk_add_f32 v[{Z_+2}:{Z_+3}], v[{G_+4}:{G_+5}], v[{G_+6}:{G_+7}]")
        I(f"v_pk_add_f32 v[{Z_}:{Z_+1}], v[{Z_}:{Z_+1}], v[{Z_+2}:{Z_+3}]")
        I(f"v_cvt_pk_bf16_f32 v{Z_}, v{Z_}, v{Z_+1}")
        I(f"ds_write_b32 v{T+46 if sm else qa}, v{Z_} offset:{L_QB}")

    def lds_wait(off, val, ge=False):
        lab = a.newlab("Lw"); done = a.newlab("Lwd")
        I(f"v_mov_b32 v{T+47}, {L_FLAG}")
        a.label(lab)
        I(f"ds_read_b32 v{T+46}, v{T+47} offset:{off}")
        I(f"s_add_u32 s{sSPIN}, s{sSPIN}, 1")
        I("s_waitcnt lgkmcnt(0)")
        I(f"v_readfirstlane_b32 s{sT3}, v{T+46}")
        I(f"s_cmp_{'ge' if ge else 'eq'}_u32 s{sT3}, {val}")
        I(f"s_cbranch_scc1 {done}")
        I(f"s_cmp_lt_u32 s{sSPIN}, {spin_limit}")
        I(f"s_cbranch_scc1 {lab}")
        a.label(done)

    def sp(p):
        if prio: I(f"s_setprio {p}")

    I(f"v_mov_b32 v{rINV}, {f2u(1.0/640):#x}")
    I("s_waitcnt lgkmcnt(0)")
    I("s_barrier")
    TS(1)
    I(f"s_cmp_ge_u32 s{sWAVE}, 4")
    I("s_cbranch_scc1 L_s4567")
    srd(TA, 38, 640 * 8192)
    w_issue(nw0, RSL)
    TS(37)
    tr_addr(ta0, 64, sPER, T + 25)
    I(f"s_sub_u32 s{sPER}, s{sRING}, s{sPER}")
    I(f"v_bfe_u32 v{T+25}, v{vLANE}, 4, 1")
    I(f"v_lshl_add_u32 v{ta0}, v{T+25}, 5, v{ta0}")
    I(f"v_xor_b32 v{ta1}, 32, v{ta0}")
    I(f"s_waitcnt vmcnt({nis[0] - 5})")
    setexec(0x22222222, 0x22222222)
    for i in range(20):
        I(f"v_mov_b32 v{XQ+i}, 0x3f803f80")
    setexec(0xFFFFFFFF, 0xFFFFFFFF)
    for j in range(5):
        I(f"v_mfma_f32_16x16x32_bf16 {vr(BUF)}, {vr(XQ+4*j)}, {vr(XQ+4*j)}, {vr(BUF) if j else '0'}")
    for i in range(4):
        I(f"v_readlane_b32 s{sF+i}, v{BUF}, {20*i+1}")
        I(f"v_readlane_b32 s{sF+4+i}, v{BUF}, {20*i}")
    I(f"v_mov_b32 v{rMEAN}, s{sF}")
    I(f"v_mov_b32 v{rVAR}, s{sF+4}")
    for i in range(1, 4):
        I(f"v_add_f32 v{rMEAN}, s{sF+i}, v{rMEAN}")
        I(f"v_add_f32 v{rVAR}, s{sF+4+i}, v{rVAR}")
    I(f"v_mul_f32 v{rMEAN}, v{rMEAN}, v{rINV}")
    I(f"v_mul_f32 v{rVAR}, v{rVAR}, v{rINV}")
    stats(None)
    I(f"v_readfirstlane_b32 s{sMB}, v{rMB}")
    I(f"v_readfirstlane_b32 s{sRS_}, v{rR}")
    TS(2)
    def q_mma(u):
        for t in range(2):
            acc = ACC + 16 * t + 4 * (u & 3)
            I(f"v_mfma_f32_16x16x32_bf16 {vr(acc)}, {vr(BUF + 8*(u%4) + 4*t)}, {vr(XQ+4*(u>>2))}, {vr(acc) if u >= 4 else '0'}")
    for u in range(20):
        I(f"s_waitcnt vmcnt({nis[0] - wpos[2*u+1] - 1})")
        if u == 0: TS(38)
        o = slot(2 * u)[1]
        if 2 * u == NPER:
            I(f"v_add_u32 v{ta0}, s{sPER}, v{ta0}")
            I(f"v_add_u32 v{ta1}, s{sPER}, v{ta1}")
        for t in range(2):
            b = BUF + 8 * (u % 4) + 4 * t
            I(f"ds_read_b64_tr_b16 v[{b}:{b+1}], v{(ta0, ta1)[t]} offset:{o}")
            I(f"ds_read_b64_tr_b16 v[{b+2}:{b+3}], v{(ta0, ta1)[t]} offset:{o+256}")
        if u:
            I("s_waitcnt lgkmcnt(4)")
            q_mma(u - 1)
            p = 2 * (u - 1) + NREST
            if RSL <= p < 40:
                w_issue(p, p + 2)
                if p + 2 == 40:
                    k_issue(nk[0], qk)
                    nis[0] += qk - nk[0]
                    TS(39)
    I(f"v_mov_b32 v{BUF+0}, {L_FLAG}")
    I(f"v_mov_b32 v{BUF+1}, 1")
    I(f"v_lshrrev_b32 v{BUF+2}, 4, v{vLANE}")
    if sm:
        I(f"v_and_b32 v{BUF+3}, 2, v{BUF+2}")
        I(f"v_add_lshl_u32 v{BUF+2}, v{BUF+2}, v{BUF+3}, 2")
    else:
        I(f"v_lshlrev_b32 v{BUF+2}, 3, v{BUF+2}")
    I(f"s_lshl_b32 s{sT0}, s{sWAVE}, 6")
    if sm: I(f"s_add_u32 s{sT0}, s{sT0}, {L_QB}")
    I(f"v_add_u32 v{BUF+2}, s{sT0}, v{BUF+2}")
    I(f"v_mov_b32 v{BUF+3}, s{sMB}")
    I(f"v_xor_b32 v{BUF+3}, 0x80000000, v{BUF+3}")
    I("s_waitcnt lgkmcnt(0)")
    q_mma(19)
    for aa in range(1, 4):
        for t in range(2):
            for i in range(4):
                d = ACC + 16 * t + i
                I(f"v_add_f32_dpp v{d}, v{d+4*aa}, v{d} row_shl:{4*aa} row_mask:0xf bank_mask:0xf")
    for t in range(2):
        for i in range(4):
            d = ACC + 16 * t + i
            I(f"v_fmac_f32_dpp v{d}, v{d}, v{BUF+3} quad_perm:[1,1,1,1] row_mask:0xf bank_mask:0xf")
    for t in range(2):
        for i in range(4):
            d = ACC + 16 * t + i
            I(f"v_mul_f32 v{d}, s{sRS_}, v{d}")
    for t in range(2):
        d = ACC + 16 * t
        I(f"v_cvt_pk_bf16_f32 v{d}, v{d}, v{d+1}")
        I(f"v_cvt_pk_bf16_f32 v{d+1}, v{d+2}, v{d+3}")
    setexec(0x00010001, 0x00010001)
    for t in range(2):
        d = ACC + 16 * t
        if sm: I(f"ds_write2_b32 v{BUF+2}, v{d}, v{d+1} offset0:{2*t} offset1:{2*t+8}")
        else: I(f"ds_write_b64 v{BUF+2}, v[{d}:{d+1}] offset:{L_QB + 32*t}")
    setexec(1, 0)
    I("s_waitcnt lgkmcnt(0)")
    I(f"ds_add_u32 v{BUF+0}, v{BUF+1} offset:12")
    setexec(0xFFFFFFFF, 0xFFFFFFFF)
    TS(5)
    sp(sp1)
    k_issue(qk, 16)
    I("s_branch L_vall")

    a.label("L_s4567")
    I(f"s_cmp_eq_u32 s{sWAVE}, 6")
    I("s_cbranch_scc0 L_krest")
    sp(3)
    I(f"s_mov_b32 s{sVOTE}, 0")
    I(f"s_sub_u32 s{sT0}, s{sR}, {calr}")
    I(f"s_cmp_lt_u32 s{sT0}, {ncal}")
    I("s_cbranch_scc0 L_ncal")
    MK = 0x13579bdf
    I(f"s_lshl_b32 s{sT0}, s{sT0}, 3")
    I(f"s_add_u32 s{sT0}, s{sT0}, s{sX}")
    I(f"s_lshl_b32 s{sT0}, s{sT0}, 7")
    I(f"s_add_u32 s88, s{sT0}, {CALOFF + 0x10000}")
    I(f"s_load_dword s86, s[56:57], s88 glc")
    I(f"s_add_u32 s{sT0}, s{sT0}, {CALOFF}")
    I(f"s_lshl_b32 s{sVOTE}, s{sR}, 13")
    I(f"s_and_b32 s{sVOTE}, s{sVOTE}, {CP}")
    I(f"s_add_u32 s{sT0}, s{sT0}, s{sVOTE}")
    I(f"s_xor_b32 s{sT3}, s{sT0}, {CP}")
    I(f"s_lshr_b32 s{sVOTE}, s{sVOTE}, 13")
    I(f"s_lshr_b32 s88, s{sXCC}, 2")
    I(f"s_xor_b32 s{sVOTE}, s{sVOTE}, s88")
    I("s_waitcnt lgkmcnt(0)")
    for k, (ad, cnt) in enumerate(((sT0, 88), (sT3, 89))):
        I(f"s_mov_b32 s86, {MK:#x}")
        I(f"s_mov_b32 s{cnt}, 0")
        I(f"s_load_dword s86, s[56:57], s{ad} glc")
        a.label(f"L_cal{k}")
        I(f"s_add_u32 s{cnt}, s{cnt}, 1")
        I(f"s_cmp_eq_u32 s86, {MK:#x}")
        I(f"s_cselect_b32 s87, s{cnt}, 1000")
        I(f"s_cmp_lt_u32 s87, 200")
        I(f"s_cbranch_scc1 L_cal{k}")
        I("s_waitcnt lgkmcnt(0)")
    I(f"s_cmp_gt_u32 s88, s89")
    I(f"s_cselect_b32 s{sT0}, 1, 0")
    I(f"s_xor_b32 s{sVOTE}, s{sVOTE}, s{sT0}")
    I(f"s_and_b32 s{sVOTE}, s{sVOTE}, 1")
    I(f"s_lshl_b32 s{sVOTE}, s{sVOTE}, 24")
    a.label("L_ncal")
    I(f"s_mul_i32 s{sT0}, s{sXCC}, 6")
    I(f"s_lshl_b64 s[{sF}:{sF+1}], 1, s{sT0}")
    I(f"s_cmp_lt_u32 s{sXCC}, 8")
    I(f"s_cselect_b32 s{sF}, s{sF}, 0")
    I(f"s_cselect_b32 s{sF+1}, s{sF+1}, 0")
    I(f"s_or_b32 s{sF+1}, s{sF+1}, 0x10000")
    I(f"s_or_b32 s{sF+1}, s{sF+1}, s{sVOTE}")
    srd(TA, 54, 256)
    I(f"v_mov_b32 v{vAT}, s{sF}")
    I(f"v_mov_b32 v{vAT+1}, s{sF+1}")
    I(f"s_lshl_b32 s{sT0}, s{sX}, 4")
    I(f"v_mov_b32 v{vAT+2}, s{sT0}")
    TS(33)
    I("s_waitcnt vmcnt(0)")
    setexec(1, 0)
    I(f"buffer_atomic_add_x2 v[{vAT}:{vAT+1}], v{vAT+2}, {TA}, 0 offen offset:128 sc1")
    setexec(0xFFFFFFFF, 0xFFFFFFFF)
    TS(32)
    sp(0)
    k_issue(0, n0)
    a.label("L_krest")
    k_issue(n0, 16)
    a.label("L_vall")
    v_issue()
    TS(31)
    for i in range(24 if sm else 16):
        I(f"v_mov_b32 v{T+i}, 0")
    if gate:
        I(f"v_mov_b32 v{T+24}, {L_FLAG}")
        I(f"v_mov_b32 v{T+25}, 1")
        setexec(1, 0)
        I(f"ds_add_u32 v{T+24}, v{T+25} offset:8")
        setexec(0xFFFFFFFF, 0xFFFFFFFF)
    lds_wait(12, 4, ge=True)
    TS(8)
    I("s_branch L_att")

    a.label("L_loop")
    I(f"s_cmp_eq_u32 s{sWAVE}, 6")
    I("s_cbranch_scc0 L_nsub")
    I(f"s_cmp_eq_u32 s{sROLE}, 0")
    if g3:
        I("s_cbranch_scc1 L_sub")
        I(f"s_cmp_lt_u32 s{sTB}, 54")
        I("s_cbranch_scc1 L_G3")
        I(f"s_and_b32 s{sT0}, s{sR}, 7")
        I(f"s_lshl_b32 s{sT0}, s{sT0}, 14")
        I(f"s_add_u32 s{sT0}, s{sT0}, s{sNEAR}")
        I(f"s_add_u32 s{sT0}, s{sT0}, {YOFF}")
        I(f"v_lshlrev_b32 v{T}, 7, v{vLANE}")
        light(f"buffer_load_dword v{T+1}, v{T}, {WS}, s{sT0} offen sc1", T + 1, (3, 0))
        I("s_branch L_G3")
        a.label("L_sub")
    else:
        I("s_cbranch_scc0 L_B1")
    SL, YD, YA, ya0, ya1, yo = T + 20, T, T + 24, T + 28, T + 29, T + 30
    srd(TA, 50, 1280)
    I(f"v_lshlrev_b32 v{ya0}, 4, v{vLANE}")
    for i in range(4):
        I(f"v_mov_b32 v{YD+i}, 0")
    I(f"s_lshl_b32 s{sT2}, s{sR}, 6")
    I(f"v_subrev_u32 v{ya1}, 512, v{ya0}")
    setexec(0, 0xF)
    I(f"buffer_load_dwordx4 {vr(YD)}, v{ya1}, {TA}, s{sT2} offen")
    setexec(0xFFFFFFFF, 0xFFFFFFFF)
    I(f"v_and_b32 v{yo}, 15, v{vLANE}")
    I(f"v_mov_b32 v{YA}, 0x3f80")
    I(f"v_mov_b32 v{YA+1}, 0x3f800000")
    for q_ in range(4):
        I(f"v_cmp_eq_u32 vcc, {2*q_}, v{yo}")
        I(f"v_cndmask_b32 v{SL+q_}, 0, v{YA}, vcc")
        I(f"v_cmp_eq_u32 vcc, {2*q_+1}, v{yo}")
        I(f"v_cndmask_b32 v{SL+q_}, v{SL+q_}, v{YA+1}, vcc")
    yw = T + 31
    I(f"v_and_b32 v{yw}, 0x3c0, v{ya0}")
    I(f"v_add_u32 v{yw}, v{yw}, v{ya0}")
    yz = yw if zx == 128 else ya0
    yy = yw if y128 else ya0
    I(f"v_mov_b32 v{ya1}, {BIG:#x}")
    I(f"v_cmp_gt_u32 vcc, 24, v{vLANE}")
    I(f"v_cndmask_b32 v{ya1}, v{ya1}, v{yy}, vcc")
    I(f"v_lshlrev_b32 v{yo}, 4, v{yo}")
    I(f"v_lshrrev_b32 v{YA}, 4, v{vLANE}")
    I(f"v_lshl_add_u32 v{yo}, v{YA}, 3, v{yo}")
    I(f"v_add_u32 v{yo}, s{sT2}, v{yo}")
    rank_off(sT0, sR, sT1)
    I(f"s_add_u32 s{sT3}, s{sREG}, s{sNEAR}")
    I(f"s_add_u32 s{sT0}, s{sT0}, s{sT3}")
    I(f"s_add_u32 s{sT0}, s{sT0}, {ZOFF - RS & 0xffffffff:#x}")
    setexec(0xFFFFFFFF, 0)
    poll([f"buffer_load_dwordx4 {vr(YD)}, v{yz}, {WS}, s{sT0} offen sc1"], [YD], ex=(0xFFFFFFFF, 0))
    setexec(0xFFFFFFFF, 0xFFFFFFFF)
    I(f"v_mfma_f32_16x16x32_bf16 {vr(YA)}, {vr(SL)}, {vr(YD)}, 0")
    I(f"s_and_b32 s{sT0}, s{sR}, 1")
    I(f"s_lshl_b32 s{sT0}, s{sT0}, {6 if y128 else 12}")
    I(f"s_lshr_b32 s{sT1}, s{sR}, 1")
    I(f"s_lshl_b32 s{sT1}, s{sT1}, 14")
    I(f"s_add_u32 s{sT0}, s{sT0}, s{sT1}")
    I(f"s_add_u32 s{sT0}, s{sT0}, s{sT3}")
    I(f"s_add_u32 s{sT0}, s{sT0}, {YOFF - RS & 0xffffffff:#x}")
    I(f"s_add_u32 s{sT1}, s{sT0}, {4096 if y128 else 2048}")
    I(f"s_lshl_b32 s{sT2}, s{sX}, 11")
    I(f"s_add_u32 s{sT2}, s{sT2}, {XOFF}")
    I("s_nop 7")
    TS(26)
    if yl:
        setexec((1 << yl) - 1, 0)
        a.label("L_yl")
        I(f"buffer_load_dword v{YD}, v{yy}, {WS}, s{sT0} offen {yfl}")
        I(f"s_add_u32 s{sSPIN}, s{sSPIN}, 1")
        I("s_waitcnt vmcnt(0)")
        I(f"v_cmp_ne_u32 vcc, -1, v{YD}")
        I("s_cbranch_vccnz L_yld")
        I(f"s_cmp_lt_u32 s{sSPIN}, {spin_limit}")
        I("s_cbranch_scc1 L_yl")
        a.label("L_yld")
        setexec(0xFFFFFFFF, 0xFFFFFFFF)
    if g3:
        I(f"s_cmp_eq_u32 s{sIT}, 2")
        I("s_cbranch_scc1 L_G3s")
        I("s_barrier")
        a.label("L_G3s")
    poll([f"buffer_load_dwordx4 {vr(YD+4*e)}, v{ya1 if e == 3 else yy}, {WS}, s{(sT0, sT1)[e >> 1]} offen offset:{(e & 1)*(2048 if y128 else 1024)} {yfl}" for e in range(4)],
         [YD + 2 * k for k in range(8)], groups=[[YD + 4 * e, YD + 4 * e + 2] for e in range(4)], hop=4)
    TS(27)
    for e in range(4):
        I(f"v_mfma_f32_16x16x32_bf16 {vr(YA)}, {vr(SL)}, {vr(YD+4*e)}, {vr(YA)}")
    for m_ in (4, 8):
        for i in range(4):
            I(f"v_add_f32_dpp v{YA+i}, v{YA+i}, v{YA+i} row_ror:{m_} row_mask:0xf bank_mask:0xf")
    I(f"v_cvt_pk_bf16_f32 v{YA}, v{YA}, v{YA+1}")
    I(f"v_cvt_pk_bf16_f32 v{YA+1}, v{YA+2}, v{YA+3}")
    setexec(0x000F000F, 0)
    I(f"s_cmp_eq_u32 s{sIT}, 2")
    I("s_cbranch_scc0 L_lead1")
    I(f"buffer_store_dwordx2 v[{YA}:{YA+1}], v{yo}, {OUTS}, 0 offen")
    setexec(0xFFFFFFFF, 0xFFFFFFFF)
    TS(29)
    I("s_branch L_fin")
    a.label("L_lead1")
    I(f"v_min_u32 v{YA}, 0xfffffffe, v{YA}")
    I(f"v_min_u32 v{YA+1}, 0xfffffffe, v{YA+1}")
    lstore([f"buffer_store_dwordx2 v[{YA}:{YA+1}], v{yo}, {WS}, s{sT2} offen"])
    setexec(0xFFFFFFFF, 0xFFFFFFFF)
    TS(28)
    I("s_branch L_B1")
    if g3:
        a.label("L_G3")
        I("s_barrier")
        I("s_branch L_B1")
    a.label("L_nsub")
    I(f"s_cmp_ge_u32 s{sWAVE}, 5")
    I("s_cbranch_scc1 L_G3" if g3 else "s_cbranch_scc1 L_B1")
    I(f"s_lshl_b32 s{sT0}, s{sWAVE}, 11")
    I(f"s_and_b32 s{sT1}, s{sSLOT}, 4")
    I(f"s_mul_i32 s{sT1}, s{sT1}, {NPER * 512}")
    I(f"s_add_u32 s{sT0}, s{sT0}, s{sT1}")
    I(f"s_add_u32 s{sT0}, s{sT0}, {L_PER}")
    ta = T + 24
    tr_addr(ta, 64, sT0, T + 25)
    I(f"v_bfe_u32 v{T+25}, v{vLANE}, 4, 1")
    I(f"v_lshl_add_u32 v{ta}, v{T+25}, 5, v{ta}")
    I(f"v_xor_b32 v{ta+1}, 32, v{ta}")
    for t in range(4):
        o = (t >> 1) * NPER * 1024
        I(f"ds_read_b64_tr_b16 v[{vBQ+4*t}:{vBQ+4*t+1}], v{ta+(t&1)} offset:{o}")
        I(f"ds_read_b64_tr_b16 v[{vBQ+4*t+2}:{vBQ+4*t+3}], v{ta+(t&1)} offset:{o+256}")
    ones()
    I("s_waitcnt lgkmcnt(0)")
    for t in range(4):
        I(f"v_mfma_f32_16x16x32_bf16 {vr(T+4*t)}, {vr(vBQ+4*t)}, {vr(ONES)}, 0")
    I(f"s_mov_b64 exec, s[{sKM}:{sKM+1}]")
    for t in range(4):
        I(f"ds_write_b128 v{vPQ}, {vr(T+4*t)} offset:{L_PB1 + 256 + t*64}")
    I("s_mov_b64 exec, -1")
    I(f"s_lshl_b32 s{sT2}, s{sX}, 11")
    I(f"s_add_u32 s{sT2}, s{sT2}, {XOFF}")
    if g3: I("s_barrier")
    TS(3)
    if xl:
        light(f"buffer_load_dword v{XA}, v{vXO}, {WS}, s{sT2} offen sc1", XA, (xl, 0))
    poll([f"buffer_load_dwordx4 {vr(XA)}, v{vXO}, {WS}, s{sT2} offen sc1"], list(range(XA, XA + 4)), hop=8)
    TS(4)
    gemv_q()
    TS(5)
    a.label("L_B1")
    I(f"v_mov_b32 v{rINV}, {f2u(1.0/640):#x}")
    qa, qs, QS = q_reduce()
    I("s_barrier")
    I(f"s_cmp_eq_u32 s{sWAVE}, 5")
    I("s_cbranch_scc1 L_B15")
    I("s_waitcnt vmcnt(0)")
    I("s_branch L_B2")
    a.label("L_B15")
    TS(6)
    q_reduce2(qa, qs, QS, first=True)
    TS(7)
    lstore([f"buffer_store_dword v{rU}, v{vQP}, {WS}, s{sREG} offen"], True)
    if zq:
        assert y128
        for i in range(24 if sm else 16):
            I(f"v_mov_b32 v{T+i}, 0")
    q_gather(vQG, qa)
    TS(8)
    I(f"buffer_load_ushort v{vXF}, v{vXFA}, {WS}, 0 offen sc1")
    I("s_waitcnt lgkmcnt(0)")
    if zq: I("s_branch L_B2b")
    a.label("L_B2")
    BT = T
    ST = T + 16
    PS = T + 32
    MI = T + 36
    OA = T + 44
    for i in range(24 if sm else 16):
        I(f"v_mov_b32 v{BT+i}, 0")
    if zq: a.label("L_B2b")
    I("s_barrier")
    a.label("L_att")
    TS(9)
    for t in range(4):
        m = 0x000F000F << (4 * t)
        setexec(m, m)
        I(f"ds_read_b128 {vr(BT+4*t)}, v{vQR}")
    setexec(0xFFFFFFFF, 0xFFFFFFFF)
    I("s_waitcnt vmcnt(16) lgkmcnt(0)")
    TS(10)
    vM = MI + 4; vL = MI + 5; vT_ = MI + 6; vPK = MI + 7
    IDX = vSEL + 4
    DPF = "row_mask:0xf bank_mask:0xf"
    if sm:
        for Tq in range(2):
            for t in range(4):
                I(f"v_smfmac_f32_16x16x64_bf16 {vr(ST+4*Tq)}, {vr(BT+4*t)}, {vr(vK+8*(Tq+2*t), 8)}, v{IDX}")
                if Tq == 0:
                    I(f"v_mov_b32 v{OA+2*t}, 0")
                    I(f"v_mov_b32 v{OA+2*t+1}, 0")
        I(f"v_mov_b32 v{MI+2}, {SCALE:#x}")
        I(f"v_mov_b32 v{MI+3}, {SCALE:#x}")
        I(f"v_mov_b32 v{MI+1}, s{sL2E}")
        for Tq in range(2):
            D = ST + 4 * Tq
            I(f"v_pk_add_f32 v[{D}:{D+1}], v[{D}:{D+1}], v[{D+2}:{D+3}]")
            I(f"v_mov_b32_dpp v{PS+Tq}, v{D} quad_perm:[0,0,2,2] {DPF}")
            I(f"v_add_f32_dpp v{PS+Tq}, v{D+1}, v{PS+Tq} quad_perm:[1,1,3,3] {DPF}")
        I(f"v_cvt_pk_bf16_f32 v{MI}, v{PS}, v{PS+1}")
        unpack(PS, PS + 1, MI)
        I(f"v_pk_mul_f32 v[{PS}:{PS+1}], v[{PS}:{PS+1}], v[{MI+2}:{MI+3}]")
        I(f"v_cvt_pk_bf16_f32 v{MI}, v{PS}, v{PS+1}")
        unpack(PS, PS + 1, MI)
        I(f"v_max_f32 v{vM}, v{PS}, v{PS+1}")
        I(f"v_max_f32_dpp v{vM}, v{vM}, v{vM} quad_perm:[2,3,0,1] {DPF}")
        I(f"v_max_f32_dpp v{vM}, v{vM}, v{vM} row_ror:4 {DPF}")
        I(f"v_max_f32_dpp v{vM}, v{vM}, v{vM} row_ror:8 {DPF}")
        I(f"v_max_f32_dpp v{vM}, v{vM}, v{vM} row_bcast:15 row_mask:0xa bank_mask:0xf")
        I(f"v_max_f32_dpp v{vM}, v{vM}, v{vM} row_bcast:31 row_mask:0xc bank_mask:0xf")
        I(f"v_readlane_b32 s{sM}, v{vM}, 63")
        I(f"v_mul_f32 v{vT_}, s{sM}, v{MI+1}")
        for Tq in range(2):
            I(f"v_fma_f32 v{PS+Tq}, v{PS+Tq}, v{MI+1}, -v{vT_}")
        for Tq in range(2):
            I(f"v_exp_f32 v{PS+Tq}, v{PS+Tq}")
    else:
        for Tt in range(4):
            for t in range(4):
                I(f"v_mfma_f32_16x16x32_bf16 {vr(ST+4*Tt)}, {vr(vK+4*(4*Tt+t))}, {vr(BT+4*t)}, {'0' if t == 0 else vr(ST+4*Tt)}")
        for Tt in range(4):
            I(f"v_mov_b32_dpp v{PS+Tt}, v{ST+4*Tt} quad_perm:[0,0,0,0] row_mask:0xf bank_mask:0xf")
            for c in range(1, 4):
                I(f"v_add_f32_dpp v{PS+Tt}, v{ST+4*Tt+c}, v{PS+Tt} quad_perm:[{c},{c},{c},{c}] row_mask:0xf bank_mask:0xf")
        I(f"v_mov_b32 v{MI+2}, {SCALE:#x}")
        I(f"v_mov_b32 v{MI+3}, {SCALE:#x}")
        I(f"v_cvt_pk_bf16_f32 v{MI}, v{PS}, v{PS+1}")
        I(f"v_cvt_pk_bf16_f32 v{MI+1}, v{PS+2}, v{PS+3}")
        unpack(PS, PS + 1, MI)
        unpack(PS + 2, PS + 3, MI + 1)
        I(f"v_pk_mul_f32 v[{PS}:{PS+1}], v[{PS}:{PS+1}], v[{MI+2}:{MI+3}]")
        I(f"v_pk_mul_f32 v[{PS+2}:{PS+3}], v[{PS+2}:{PS+3}], v[{MI+2}:{MI+3}]")
        I(f"v_cvt_pk_bf16_f32 v{MI}, v{PS}, v{PS+1}")
        I(f"v_cvt_pk_bf16_f32 v{MI+1}, v{PS+2}, v{PS+3}")
        unpack(PS, PS + 1, MI)
        unpack(PS + 2, PS + 3, MI + 1)
        vM = MI + 4; vL = MI + 5; vT_ = MI + 6; vPK = MI + 7
        I(f"v_max3_f32 v{vM}, v{PS}, v{PS+1}, v{PS+2}")
        I(f"v_max_f32 v{vM}, v{vM}, v{PS+3}")
        I(f"v_max_f32_dpp v{vM}, v{vM}, v{vM} row_ror:4 row_mask:0xf bank_mask:0xf")
        I(f"v_max_f32_dpp v{vM}, v{vM}, v{vM} row_ror:8 row_mask:0xf bank_mask:0xf")
        I(f"v_max_f32_dpp v{vM}, v{vM}, v{vM} row_bcast:15 row_mask:0xa bank_mask:0xf")
        I(f"v_max_f32_dpp v{vM}, v{vM}, v{vM} row_bcast:31 row_mask:0xc bank_mask:0xf")
        I(f"v_mov_b32 v{MI}, s{sL2E}")
        I(f"v_readlane_b32 s{sM}, v{vM}, 63")
        I(f"v_mul_f32 v{vT_}, s{sM}, v{MI}")
        for Tt in range(4):
            I(f"v_fma_f32 v{PS+Tt}, v{PS+Tt}, v{MI}, -v{vT_}")
        for Tt in range(4):
            I(f"v_exp_f32 v{PS+Tt}, v{PS+Tt}")
    TS(11)
    I(f"s_cmp_eq_u32 s{sIT}, 0")
    I("s_cbranch_scc0 L_PV")
    I(f"s_cmp_eq_u32 s{sLATE}, 0")
    I("s_cbranch_scc1 L_PVe")
    role_dma()
    TS(25)
    I("s_branch L_PV")
    a.label("L_PVe")
    if esy:
        I(f"s_cmp_eq_u32 s{sWAVE}, 7")
        I("s_cbranch_scc0 L_PVe2")
        srd(TA, 54, 256)
        I(f"v_lshlrev_b32 v{BT+2}, 4, v{vLANE}")
        setexec(0xFF, 0)
        I(f"buffer_load_dwordx2 v[{BT}:{BT+1}], v{BT+2}, {TA}, 0 offen offset:128 {syfl}")
        setexec(0xFFFFFFFF, 0xFFFFFFFF)
        I("s_waitcnt vmcnt(1)")
        I("s_branch L_PV")
        a.label("L_PVe2")
    I("s_waitcnt vmcnt(0)")
    a.label("L_PV")
    if sm:
        I(f"v_cvt_pk_bf16_f32 v{vPK}, v{PS}, v{PS+1}")
        I(f"v_add_f32 v{vL}, v{PS}, v{PS+1}")
        I(f"v_mov_b32_dpp v{vT_}, v{vPK} row_half_mirror {DPF}")
        lred = [f"v_add_f32_dpp v{vL}, v{vL}, v{vL} quad_perm:[2,3,0,1] {DPF}",
                f"v_add_f32_dpp v{vL}, v{vL}, v{vL} row_ror:4 {DPF}",
                f"v_add_f32_dpp v{vL}, v{vL}, v{vL} row_ror:8 {DPF}",
                f"v_add_f32_dpp v{vL}, v{vL}, v{vL} row_bcast:15 row_mask:0xa bank_mask:0xf",
                f"v_add_f32_dpp v{vL}, v{vL}, v{vL} row_bcast:31 row_mask:0xc bank_mask:0xf",
                f"ds_write_b64 v{vMLW}, v[{vM}:{vL}]"]
        def mkA(Tt):
            x_, y_ = Tt >> 1, Tt & 1
            for w in sorted(range(4), key=lambda w: (w & 1) != x_):
                src, p_ = (vPK, 2 * y_) if (w & 1) == x_ else (vT_, 3 - 2 * y_)
                I(f"v_and_b32_dpp v{ST+4*Tt+w}, v{src}, v{vSEL+w} quad_perm:[{p_},{p_},{p_},{p_}] {DPF}")
        mkA(0)
        for Tt in range(4):
            for hf in range(2):
                j1 = Tt * 4 + hf * 2 + 1
                if hf == 0 and Tt < 3: mkA(Tt + 1) if Tt == 0 else None
                I(f"s_waitcnt vmcnt({15 - j1 + 8})")
                I(f"v_smfmac_f32_16x16x64_bf16 {vr(OA+4*hf)}, {vr(ST+4*Tt)}, {vr(vV+4*(j1-1), 8)}, v{IDX} abid:1")
                if hf == 0 and Tt < 2: mkA(Tt + 2)
                elif lred:
                    I(lred.pop(0))
                    if Tt >= 2 and lred: I("s_nop 0"); I(lred.pop(0))
        for x_ in lred: I(x_)
    else:
        for Tt in range(4):
            AB = ST + 8 * (Tt & 1)
            I(f"v_mov_b32_dpp v{vT_}, v{PS+Tt} row_half_mirror row_mask:0xf bank_mask:0xf")
            I(f"v_cvt_pk_bf16_f32 v{vPK}, v{PS+Tt}, v{vT_}")
            for u in range(2):
                for r in range(4):
                    I(f"v_perm_b32 v{AB+4*u+r}, v{vPK}, v{vPK}, v{vSEL+4*u+r}")
            if Tt == 1:
                I(f"v_add_f32 v{vL}, v{PS}, v{PS+1}")
                I(f"v_add_f32 v{MI+1}, v{PS+2}, v{PS+3}")
                I(f"v_add_f32 v{vL}, v{vL}, v{MI+1}")
                I(f"v_add_f32_dpp v{vL}, v{vL}, v{vL} row_ror:4 row_mask:0xf bank_mask:0xf")
                I(f"v_add_f32_dpp v{vL}, v{vL}, v{vL} row_ror:8 row_mask:0xf bank_mask:0xf")
                I(f"v_add_f32_dpp v{vL}, v{vL}, v{vL} row_bcast:15 row_mask:0xa bank_mask:0xf")
                I(f"v_add_f32_dpp v{vL}, v{vL}, v{vL} row_bcast:31 row_mask:0xc bank_mask:0xf")
                I(f"ds_write_b64 v{vMLW}, v[{vM}:{vL}]")
            for u in range(2):
                i1 = Tt * 4 + u * 2 + 1
                I(f"s_waitcnt vmcnt({15 - i1 + 8})")
                for hf in range(2):
                    i = Tt * 4 + u * 2 + hf
                    first = (Tt == 0 and u == 0)
                    I(f"v_mfma_f32_16x16x32_bf16 {vr(OA+4*hf)}, {vr(AB+4*u)}, {vr(vV+4*i)}, {'0' if first else vr(OA+4*hf)}")
    TS(12)
    setexec(0x00FF00FF, 0xFF00FF00)
    I(f"ds_write_b128 v{vOW}, {vr(OA)}")
    I(f"ds_write_b128 v{vOW}, {vr(OA+4)} offset:256")
    setexec(0xFFFFFFFF, 0xFFFFFFFF)
    I(f"s_cmp_eq_u32 s{sIT}, 0")
    I("s_cbranch_scc0 L_B3")
    sp(0)
    I(f"s_cmp_eq_u32 s{sLATE}, 0")
    I("s_cbranch_scc0 L_B3")
    I(f"s_cmp_eq_u32 s{sWAVE}, 7")
    I("s_cbranch_scc0 L_erd")
    sp(3)
    srd(TA, 54, 256)
    setexec(0xFF, 0)
    if not esy:
        I(f"v_lshlrev_b32 v{BT+2}, 4, v{vLANE}")
        I(f"buffer_load_dwordx2 v[{BT}:{BT+1}], v{BT+2}, {TA}, 0 offen offset:128 {syfl}")
    a.label("L_sync")
    I(f"s_add_u32 s{sSPIN}, s{sSPIN}, 4")
    I("s_waitcnt vmcnt(0)")
    I(f"v_and_b32 v{BT+3}, {1 << 21:#x}, v{BT+1}")
    I(f"v_cmp_eq_u32 vcc, 0, v{BT+3}")
    I("s_cbranch_vccz L_syncd")
    I(f"buffer_load_dwordx2 v[{BT}:{BT+1}], v{BT+2}, {TA}, 0 offen offset:128 sc1")
    I(f"s_cmp_lt_u32 s{sSPIN}, {spin_limit}")
    I("s_cbranch_scc1 L_sync")
    I("s_waitcnt vmcnt(0)")
    a.label("L_syncd")
    I(f"v_lshrrev_b32 v{BT+3}, 24, v{BT+1}")
    I(f"v_readlane_b32 s64, v{BT}, s{sX}")
    I(f"v_readlane_b32 s65, v{BT+1}, s{sX}")
    for m_ in ("quad_perm:[1,0,3,2]", "quad_perm:[2,3,0,1]", "row_half_mirror"):
        I(f"v_add_u32_dpp v{BT+3}, v{BT+3}, v{BT+3} {m_} row_mask:0xf bank_mask:0xf")
    I(f"s_mul_i32 s{sT0}, s{sXCC}, 6")
    I(f"s_lshr_b64 s[64:65], s[64:65], s{sT0}")
    I(f"s_and_b32 s64, s64, 63")
    I(f"s_cmp_eq_u32 s64, 32")
    I(f"s_cselect_b32 s{sT1}, 1, 0")
    I(f"s_cmp_lt_u32 s{sXCC}, 8")
    I(f"s_cselect_b32 s{sT1}, s{sT1}, 0")
    I(f"v_readfirstlane_b32 s{sT0}, v{BT+3}")
    setexec(0xFFFFFFFF, 0xFFFFFFFF)
    I(f"s_cmp_gt_u32 s{sT0}, {4 * ncal}")
    I(f"s_cselect_b32 s{sT0}, 1, 0")
    I(f"s_lshr_b32 s{sT2}, s{sXCC}, 2")
    I(f"s_xor_b32 s{sT0}, s{sT0}, s{sT2}")
    I(f"s_and_b32 s{sT0}, s{sT0}, {1 if dual else 0}")
    I(f"s_lshl_b32 s{sT0}, s{sT0}, 13")
    I(f"s_or_b32 s{sT0}, s{sT0}, s{sT1}")
    I(f"v_mov_b32 v{BT}, s{sT0}")
    I(f"v_mov_b32 v{BT+1}, {L_FLAG}")
    I(f"ds_write_b32 v{BT+1}, v{BT}")
    TS(35)
    sp(0)
    a.label("L_erd")
    I(f"s_cmp_eq_u32 s{sROLE}, 0")
    if dyn:
        I("s_cbranch_scc1 L_erd2")
        I(f"s_cmp_eq_u32 s{sWAVE}, {tw}")
        I("s_cbranch_scc0 L_erd1" if emd else "s_cbranch_scc0 L_B3")
        I(f"v_mov_b32 v{BT+1}, {L_FLAG}")
        if emd: I(f"v_add_u32 v{vRDMA}, 1, v{vRDMA}")
        setexec(1, 0)
        I(f"ds_write_b32 v{BT+1}, v{vRDMA} offset:4")
        setexec(0xFFFFFFFF, 0xFFFFFFFF)
        if emd:
            a.label("L_erd1")
            if emd == 2:
                I(f"v_mov_b32 v{BT+1}, {L_FLAG}")
                I(f"v_mov_b32 v{BT}, 1")
                setexec(1, 0)
                I("s_waitcnt lgkmcnt(0)")
                I(f"ds_add_u32 v{BT+1}, v{BT} offset:12")
                setexec(0xFFFFFFFF, 0xFFFFFFFF)
                I(f"s_cmp_eq_u32 s{sWAVE}, 7")
                I("s_cbranch_scc0 L_erd3")
                lds_wait(12, 12, ge=True)
                TS(13)
                I(f"ds_read_b64 v[{T+38}:{T+39}], v{T+47}")
                I("s_branch L_comb")
                a.label("L_erd3")
            I(f"s_cmp_lt_u32 s{sWAVE}, {emw}")
            I("s_cbranch_scc0 L_B3")
            e0, e1, e2, e3 = BT, BT + 1, BT + 2, BT + 3
            npc = 40 // emw
            I(f"v_lshrrev_b32 v{e0}, 2, v{vLANE}")
            I(f"v_mul_u32_u24 v{e0}, 3456, v{e0}")
            I(f"v_and_b32 v{e1}, 3, v{vLANE}")
            I(f"v_lshl_add_u32 v{BT+4}, v{e1}, 4, v{e0}")
            I(f"v_lshrrev_b32 v{e0}, 3, v{vLANE}")
            I(f"v_mul_u32_u24 v{e2}, 1280, v{e0}")
            I(f"v_and_b32 v{e1}, 7, v{vLANE}")
            I(f"v_lshlrev_b32 v{e1}, 4, v{e1}")
            I(f"v_bfe_u32 v{e0}, v{vLANE}, 4, 1")
            I(f"v_lshlrev_b32 v{e0}, 5, v{e0}")
            I(f"v_xor_b32 v{e1}, v{e1}, v{e0}")
            I(f"v_xor_b32 v{e0}, 64, v{e1}")
            I(f"v_add_u32 v{e3}, v{e2}, v{e0}")
            I(f"v_add_u32 v{e2}, v{e2}, v{e1}")
            lds_wait(4, 1, ge=True)
            I(f"s_sub_u32 s{sTB}, s{sT3}, 1")
            I(f"s_mul_hi_u32 s{sT0}, s{sTB}, 0x2aaaaab")
            I(f"s_mul_i32 s{sT0}, s{sT0}, 96")
            I(f"s_sub_u32 s{sTB}, s{sTB}, s{sT0}")
            I(f"s_cmp_lt_u32 s{sTB}, 54")
            I("s_cbranch_scc0 L_B3")
            if g8: lds_wait(8, g8, ge=True)
            srd(TB, 44, 640 * 3456)
            I(f"s_mul_i32 s{sT1}, s{sWAVE}, {npc*16*3456}")
            I(f"s_lshl_b32 s{sT0}, s{sTB}, 6")
            I(f"s_add_u32 s{sT0}, s{sT0}, s{sT1}")
            I(f"s_mul_i32 s{sT1}, s{sWAVE}, {npc*1024}")
            for e in range(npc):
                I(f"s_add_u32 m0, s{sT1}, {L_ROLE + e*1024}")
                I(f"buffer_load_dwordx4 v{BT+4}, {TB}, s{sT0} offen {rflags} lds")
                if e < npc - 1: I(f"s_add_u32 s{sT0}, s{sT0}, {16*3456}")
            srd(TA, 48, 1728 * 1280)
            I(f"s_mul_i32 s{sT3}, s{sTB}, {32*1280}")
            I(f"s_mul_i32 s{sT0}, s{sWAVE}, {npc}")
            assert npc % 2 == 0
            for e in range(npc):
                I(f"s_lshl_b32 s{sT1}, s{sT0}, 10")
                I(f"s_add_u32 m0, s{sT1}, {L_W2}")
                I(f"s_and_b32 s{sT1}, s{sT0}, 3")
                I(f"s_mul_i32 s{sT1}, s{sT1}, {8*1280}")
                I(f"s_lshr_b32 s{sT2}, s{sT0}, 2")
                I(f"s_lshl_b32 s{sT2}, s{sT2}, 7")
                I(f"s_add_u32 s{sT1}, s{sT1}, s{sT2}")
                I(f"s_add_u32 s{sT1}, s{sT1}, s{sT3}")
                I(f"buffer_load_dwordx4 v{(e2, e3)[e & 1]}, {TA}, s{sT1} offen {rflags} lds")
                if e < npc - 1: I(f"s_add_u32 s{sT0}, s{sT0}, 1")
            TS(25)
        I("s_branch L_B3")
        a.label("L_erd2")
    else:
        I("s_cbranch_scc0 L_B3")
    if gate:
        lds_wait(8, gate, ge=True)
    role_dma()
    TS(25)
    a.label("L_B3")
    I("s_waitcnt lgkmcnt(0)")
    I(f"v_mov_b32 v{T+38}, {L_FLAG}")
    I("s_barrier")
    TS(13)
    I(f"ds_read_b64 v[{T+38}:{T+39}], v{T+38}")
    I(f"s_cmp_eq_u32 s{sWAVE}, 7")
    I("s_cbranch_scc1 L_comb")
    I("s_waitcnt lgkmcnt(0)")
    I(f"v_readfirstlane_b32 s{sT0}, v{T+38}")
    I(f"s_and_b32 s{sPURE}, s{sT0}, 1")
    I(f"s_and_b32 s{sNEAR}, s{sT0}, {CP}")
    I("s_branch L_role")
    a.label("L_comb")
    cM, cL, cMX, cF, cT = T + 32, T + 33, T + 34, T + 36, T + 37
    cLS = T + 35
    I(f"ds_read_b64 v[{cM}:{cL}], v{vCML}")
    for w in range(8):
        I(f"ds_read2st64_b64 {vr(T+4*w)}, v{vCR} offset0:{2*w} offset1:{2*w+1}")
    I(f"v_mov_b32 v{cT}, s{sL2E}")
    I("s_waitcnt lgkmcnt(8)")
    I(f"v_readfirstlane_b32 s{sT0}, v{T+38}")
    I(f"v_max_f32_dpp v{cMX}, v{cM}, v{cM} quad_perm:[1,0,3,2] row_mask:0xf bank_mask:0xf")
    I(f"v_max_f32_dpp v{cMX}, v{cMX}, v{cMX} quad_perm:[2,3,0,1] row_mask:0xf bank_mask:0xf")
    I(f"v_max_f32_dpp v{cMX}, v{cMX}, v{cMX} row_half_mirror row_mask:0xf bank_mask:0xf")
    I(f"v_sub_f32 v{cF}, v{cM}, v{cMX}")
    I(f"v_mul_f32 v{cF}, v{cF}, v{cT}")
    I(f"v_exp_f32 v{cF}, v{cF}")
    I(f"s_and_b32 s{sPURE}, s{sT0}, 1")
    I(f"s_and_b32 s{sNEAR}, s{sT0}, {CP}")
    I("s_waitcnt lgkmcnt(0)")
    for w in range(8):
        I(f"v_readlane_b32 s{sF+w}, v{cF}, {w}")
    for w in range(8):
        I(f"v_pk_add_f32 v[{T+4*w}:{T+4*w+1}], v[{T+4*w}:{T+4*w+1}], v[{T+4*w+2}:{T+4*w+3}]")
    for w in range(8):
        sp = f"s[{sF+(w&~1)}:{sF+(w&~1)+1}]"
        o = w & 1
        acc = T + 40 + 2 * (w & 1)
        if w < 2:
            I(f"v_pk_mul_f32 v[{acc}:{acc+1}], v[{T+4*w}:{T+4*w+1}], {sp} op_sel:[0,{o}] op_sel_hi:[1,{o}]")
        else:
            I(f"v_pk_fma_f32 v[{acc}:{acc+1}], v[{T+4*w}:{T+4*w+1}], {sp}, v[{acc}:{acc+1}] op_sel:[0,{o},0] op_sel_hi:[1,{o},1]")
    I(f"v_mul_f32 v{cLS}, v{cF}, v{cL}")
    I(f"v_pk_add_f32 v[{T+40}:{T+41}], v[{T+40}:{T+41}], v[{T+42}:{T+43}]")
    I(f"v_add_f32_dpp v{cLS}, v{cLS}, v{cLS} quad_perm:[1,0,3,2] row_mask:0xf bank_mask:0xf")
    I(f"v_cvt_pk_bf16_f32 v{T+40}, v{T+40}, v{T+41}")
    I(f"v_min_u32 v{T+40}, 0xfffffffe, v{T+40}")
    I(f"v_add_f32_dpp v{cLS}, v{cLS}, v{cLS} quad_perm:[2,3,0,1] row_mask:0xf bank_mask:0xf")
    I(f"v_min_u32 v{cMX}, 0xfffffffe, v{cMX}")
    lstore([f"buffer_store_dword v{T+40}, v{vCP}, {WS}, s{sREG} offen"], True)
    I(f"v_add_f32_dpp v{cLS}, v{cLS}, v{cLS} row_half_mirror row_mask:0xf bank_mask:0xf")
    I(f"v_min_u32 v{cLS}, 0xfffffffe, v{cLS}")
    setexec(1, 0)
    lstore([f"buffer_store_dwordx2 v[{cMX}:{cLS}], v{vCPM}, {WS}, s{sREG} offen"], True)
    setexec(0xFFFFFFFF, 0xFFFFFFFF)
    TS(14)
    if emd == 2:
        I(f"s_cmp_eq_u32 s{sROLE}, 0")
        I("s_cbranch_scc1 L_WO")
        I(f"s_cmp_eq_u32 s{sIT}, 0")
        I("s_cbranch_scc0 L_role")
        I("s_barrier")

    a.label("L_role")
    I(f"s_cmp_eq_u32 s{sROLE}, 0")
    I("s_cbranch_scc1 L_WO")
    if dyn:
        I(f"v_readfirstlane_b32 s{sTB}, v{T+39}")
        if emd: I(f"s_sub_u32 s{sTB}, s{sTB}, 1")
        I(f"s_mul_hi_u32 s{sT0}, s{sTB}, 0x2aaaaab")
        I(f"s_mul_i32 s{sT0}, s{sT0}, 96")
        I(f"s_sub_u32 s{sTB}, s{sTB}, s{sT0}")
        I(f"s_cmp_lt_u32 s{sTB}, 54")
        I("s_cbranch_scc0 L_next")
    else:
        I(f"s_cmp_eq_u32 s{sROLE}, 3")
        I("s_cbranch_scc1 L_next")
    I(f"s_cmp_eq_u32 s{sIT}, 0")
    I("s_cbranch_scc0 L_W1")
    m0_, m1_, m2_, m3_ = T, T + 1, T + 2, T + 3
    def ml_gate(thr):
        lab = a.newlab("Lg"); done = a.newlab("Lgd")
        I(f"v_lshrrev_b32 v{m0_}, 3, v{vLANE}")
        I(f"v_lshlrev_b32 v{m0_}, 7, v{m0_}")
        I(f"v_and_b32 v{m1_}, 7, v{vLANE}")
        I(f"v_lshl_add_u32 v{m0_}, v{m1_}, 3, v{m0_}")
        I(f"s_lshl_b32 s{sT1}, s{sXW}, 9")
        I(f"s_add_u32 s{sT1}, s{sT1}, {MLOFF}")
        I(f"s_add_u32 s{sT1}, s{sT1}, s{sREG}")
        setexec(0xFFFFFFFF, 0)
        a.label(lab)
        I(f"buffer_load_dword v{m1_}, v{m0_}, {WS}, s{sT1} offen sc1")
        I(f"s_add_u32 s{sSPIN}, s{sSPIN}, 1")
        I("s_waitcnt vmcnt(0)")
        I(f"v_cmp_ne_u32 vcc, -1, v{m1_}")
        I(f"s_bcnt1_i32_b64 s{sT0}, vcc")
        I(f"s_cmp_ge_u32 s{sT0}, {thr}")
        I(f"s_cbranch_scc1 {done}")
        I(f"s_cmp_lt_u32 s{sSPIN}, {spin_limit}")
        I(f"s_cbranch_scc1 {lab}")
        a.label(done)
        setexec(0xFFFFFFFF, 0xFFFFFFFF)
    if instr: I(f"s_mov_b32 s{sNT}, s{sTB}")
    srd(TB, 44, 640 * 3456)
    I(f"s_mul_i32 s{sT1}, s{sWAVE}, {128*3456}")
    I(f"s_lshl_b32 s{sT0}, s{sTB}, 6")
    I(f"s_add_u32 s{sRB}, s{sT0}, s{sT1}")
    I(f"s_mov_b32 s{sRSTEP}, {16*3456}")
    I(f"s_mov_b32 s{sRN}, 8")
    I(f"v_lshrrev_b32 v{m0_}, 2, v{vLANE}")
    I(f"v_mul_u32_u24 v{m0_}, 3456, v{m0_}")
    I(f"v_and_b32 v{m1_}, 3, v{vLANE}")
    I(f"v_lshl_add_u32 v{vRDMA}, v{m1_}, 4, v{m0_}")
    I(f"s_add_u32 s{sT0}, s{sT0}, {YOFF}")
    if y128:
        I(f"s_lshl_b32 s{sT1}, s{sTB}, 6")
        I(f"s_add_u32 s{sT0}, s{sT0}, s{sT1}")
        I(f"s_lshl_b32 s{sT1}, s{sWAVE}, 14")
        I(f"s_add_u32 s{sT0}, s{sT0}, s{sT1}")
        I(f"v_bfe_u32 v{m0_}, v{vLANE}, 2, 2")
        I(f"v_lshlrev_b32 v{m0_}, 15, v{m0_}")
        I(f"v_and_b32 v{m1_}, 3, v{vLANE}")
        I(f"v_lshl_add_u32 v{m0_}, v{m1_}, 5, v{m0_}")
        I(f"v_lshrrev_b32 v{m1_}, 4, v{vLANE}")
        I(f"v_lshl_add_u32 v{m0_}, v{m1_}, 3, v{m0_}")
        I(f"v_add_u32 v{vA2}, s{sT0}, v{m0_}")
        I(f"s_lshl_b32 s{sT0}, s{sWAVE}, 12")
        I(f"s_add_u32 s{sT0}, s{sT0}, {L_W2}")
        tr_addr(vA3, 128, sT0, m0_)
        I(f"v_bfe_u32 v{m0_}, v{vLANE}, 3, 1")
        I(f"v_bfe_u32 v{m1_}, v{vLANE}, 4, 1")
        I(f"v_lshl_add_u32 v{m0_}, v{m1_}, 1, v{m0_}")
        I(f"v_lshl_add_u32 v{vA3}, v{m0_}, 5, v{vA3}")
        I(f"v_xor_b32 v{vA1}, 32, v{vA3}")
        I(f"v_xor_b32 v{vA0}, 64, v{vA3}")
        I(f"s_cmp_ge_u32 s{sWAVE}, 6")
        I(f"s_cselect_b32 s{sYM}, 255, 15")
        I(f"s_mul_i32 s{sYM}, s{sYM}, 0x10001")
        I(f"s_mov_b32 s{sYM+1}, s{sYM}")
    elif y64:
        I(f"s_and_b32 s{sT1}, s{sWAVE}, 1")
        I(f"s_lshl_b32 s{sT1}, s{sT1}, 12")
        I(f"s_add_u32 s{sT0}, s{sT0}, s{sT1}")
        I(f"s_lshr_b32 s{sT2}, s{sWAVE}, 1")
        I(f"s_lshl_b32 s{sT1}, s{sT2}, 14")
        I(f"s_add_u32 s{sT0}, s{sT0}, s{sT1}")
        I(f"v_bfe_u32 v{m0_}, v{vLANE}, 1, 3")
        I(f"v_lshlrev_b32 v{m0_}, 16, v{m0_}")
        I(f"v_and_b32 v{m1_}, 1, v{vLANE}")
        I(f"v_lshl_add_u32 v{m0_}, v{m1_}, 5, v{m0_}")
        I(f"v_lshrrev_b32 v{m1_}, 4, v{vLANE}")
        I(f"v_lshl_add_u32 v{m0_}, v{m1_}, 3, v{m0_}")
        I(f"v_add_u32 v{vA2}, s{sT0}, v{m0_}")
        I(f"s_lshl_b32 s{sT0}, s{sT2}, 12")
        I(f"s_add_u32 s{sT0}, s{sT0}, {L_W2}")
        tr_addr(vA3, 128, sT0, m0_)
        I(f"v_bfe_u32 v{m0_}, v{vLANE}, 3, 1")
        I(f"v_bfe_u32 v{m1_}, v{vLANE}, 4, 1")
        I(f"v_lshl_add_u32 v{m0_}, v{m1_}, 1, v{m0_}")
        I(f"s_and_b32 s{sT1}, s{sWAVE}, 1")
        I(f"s_lshl_b32 s{sT1}, s{sT1}, 1")
        I(f"v_xor_b32 v{m0_}, s{sT1}, v{m0_}")
        I(f"v_lshl_add_u32 v{vA3}, v{m0_}, 5, v{vA3}")
        I(f"v_xor_b32 v{vA1}, 32, v{vA3}")
        I(f"s_cmp_lt_u32 s{sWAVE}, 4")
        I(f"s_cselect_b32 s{sYM}, 63, 15")
        I(f"s_mul_i32 s{sYM}, s{sYM}, 0x10001")
        I(f"s_mov_b32 s{sYM+1}, s{sYM}")
    else:
        I(f"s_and_b32 s{sT1}, s{sWAVE}, 2")
        I(f"s_lshl_b32 s{sT1}, s{sT1}, 11")
        I(f"s_add_u32 s{sT0}, s{sT0}, s{sT1}")
        I(f"s_lshr_b32 s{sT2}, s{sWAVE}, 2")
        I(f"s_lshl_b32 s{sT1}, s{sT2}, 14")
        I(f"s_add_u32 s{sT0}, s{sT0}, s{sT1}")
        I(f"s_and_b32 s{sT1}, s{sWAVE}, 1")
        I(f"s_lshl_b32 s{sT1}, s{sT1}, 5")
        I(f"s_add_u32 s{sT0}, s{sT0}, s{sT1}")
        I(f"v_and_b32 v{m0_}, 15, v{vLANE}")
        I(f"v_lshlrev_b32 v{m0_}, 15, v{m0_}")
        I(f"v_lshrrev_b32 v{m1_}, 4, v{vLANE}")
        I(f"v_lshl_add_u32 v{m0_}, v{m1_}, 3, v{m0_}")
        I(f"v_add_u32 v{vA2}, s{sT0}, v{m0_}")
        I(f"s_lshl_b32 s{sT0}, s{sT2}, 12")
        I(f"s_add_u32 s{sT0}, s{sT0}, {L_W2}")
        tr_addr(vA3, 128, sT0, m0_)
        I(f"v_bfe_u32 v{m0_}, v{vLANE}, 3, 1")
        I(f"v_bfe_u32 v{m1_}, v{vLANE}, 4, 1")
        I(f"v_lshl_add_u32 v{m0_}, v{m1_}, 1, v{m0_}")
        I(f"s_and_b32 s{sT1}, s{sWAVE}, 3")
        I(f"v_xor_b32 v{m0_}, s{sT1}, v{m0_}")
        I(f"v_lshl_add_u32 v{vA3}, v{m0_}, 5, v{vA3}")
    if th1:
        I(f"s_cmp_eq_u32 s{sWAVE}, 6")
        I("s_cbranch_scc0 L_g1")
        ml_gate(th1)
        a.label("L_g1")
    if emd: I(f"s_waitcnt vmcnt({40 // emw})")
    I("s_barrier")
    I(f"s_cmp_ge_u32 s{sWAVE}, 5")
    I("s_cbranch_scc1 L_w2d")
    if not emd:
        role_dma()
        TS(25)
    I("s_branch L_W1")
    a.label("L_w2d")
    if th2 > th1:
        ml_gate(th2)
    if not emd:
        I(f"s_mul_i32 s{sT3}, s{sTB}, {32*1280}")
        I(f"s_sub_u32 s{sT0}, s{sWAVE}, 5")
        I(f"s_mul_i32 s{sT0}, s{sT0}, 13")
        I(f"v_lshrrev_b32 v{m0_}, 3, v{vLANE}")
        I(f"v_mul_u32_u24 v{m2_}, 1280, v{m0_}")
        I(f"v_and_b32 v{m1_}, 7, v{vLANE}")
        I(f"v_lshlrev_b32 v{m1_}, 4, v{m1_}")
        I(f"v_bfe_u32 v{m0_}, v{vLANE}, 4, 1")
        I(f"v_lshlrev_b32 v{m0_}, 5, v{m0_}")
        I(f"v_xor_b32 v{m1_}, v{m1_}, v{m0_}")
        I(f"s_and_b32 s{sT1}, s{sT0}, 1")
        I(f"s_lshl_b32 s{sT1}, s{sT1}, 6")
        I(f"v_xor_b32 v{m1_}, s{sT1}, v{m1_}")
        I(f"v_xor_b32 v{m0_}, 64, v{m1_}")
        I(f"v_add_u32 v{m3_}, v{m2_}, v{m0_}")
        I(f"v_add_u32 v{m2_}, v{m2_}, v{m1_}")
        srd(TA, 48, 1728 * 1280)
        for e in range(14):
            I(f"s_lshl_b32 s{sT1}, s{sT0}, 10")
            I(f"s_add_u32 m0, s{sT1}, {L_W2}")
            I(f"s_and_b32 s{sT1}, s{sT0}, 3")
            I(f"s_mul_i32 s{sT1}, s{sT1}, {8*1280}")
            I(f"s_lshr_b32 s{sT2}, s{sT0}, 2")
            I(f"s_lshl_b32 s{sT2}, s{sT2}, 7")
            I(f"s_add_u32 s{sT1}, s{sT1}, s{sT2}")
            I(f"s_add_u32 s{sT1}, s{sT1}, s{sT3}")
            I(f"buffer_load_dwordx4 v{(m2_, m3_)[e & 1]}, {TA}, s{sT1} offen {rflags} lds")
            if e < 13: I(f"s_add_u32 s{sT0}, s{sT0}, 1")
    srd(TA, 46, 1728 * 2)
    I(f"s_lshl_b32 s{sT0}, s{sTB}, 6")
    I(f"v_and_b32 v{m0_}, 31, v{vLANE}")
    I(f"v_lshlrev_b32 v{m0_}, 1, v{m0_}")
    I(f"v_mov_b32 v{vB1}, 0")
    I(f"buffer_load_short_d16_hi v{vB1}, v{m0_}, {TA}, s{sT0} offen")
    for b_ in HB5:
        for i in range(4):
            I(f"v_mov_b32 v{b_+i}, 0")
    TS(25)
    I("s_branch L_W1")

    def role_base():
        I(f"s_lshl_b32 s{sT0}, s{sWAVE}, 13")
        I(f"s_add_u32 s{sT0}, s{sT0}, {L_ROLE}")

    a.label("L_WO")
    if g1:
        if pth:
            I(f"s_cmp_eq_u32 s{sWAVE}, 6")
            I("s_cbranch_scc0 L_G1")
            I(f"s_cmp_eq_u32 s{sIT}, 0")
            I("s_cbranch_scc0 L_G1")
            ml_gate(pth)
            a.label("L_G1")
        if g1 == 2:
            I(f"s_cmp_eq_u32 s{sIT}, 0")
            I("s_cbranch_scc1 L_G1b")
            I("s_barrier")
            I("s_branch L_WO0")
            a.label("L_G1b")
        else:
            I("s_barrier")
    I(f"s_cmp_eq_u32 s{sIT}, 0")
    I("s_cbranch_scc0 L_WO0")
    role_base()
    tr_addr(T + 47, 64, sT0)
    I("s_waitcnt vmcnt(0)")
    for ks in range(2):
        for t in range(2):
            b = vRB + 4 * (ks * 2 + t)
            o = ks * 2048 + t * 32
            I(f"ds_read_b64_tr_b16 v[{b}:{b+1}], v{T+47} offset:{o}")
            I(f"ds_read_b64_tr_b16 v[{b+2}:{b+3}], v{T+47} offset:{o+256}")
    I("s_waitcnt lgkmcnt(0)")
    TS(15)
    a.label("L_WO0")
    I(f"s_cmp_eq_u32 s{sWAVE}, 5")
    I("s_cbranch_scc0 L_WO1")
    I("s_waitcnt vmcnt(0)")
    I(f"v_lshlrev_b32 v{vXF}, 16, v{vXF}")
    a.label("L_WO1")
    A0, Ma, La = T + 44, T + 48, T + 49
    Dw = [[T + 8, T + 12], [T + 16, T + 20]]
    wMX, wE, wT, wL2E, wR0, wR1 = [T + 24 + i for i in range(6)]
    I(f"v_mov_b32 v{wL2E}, s{sL2E}")
    if pl == 1:
        light(f"buffer_load_dword v{Ma}, v{vA2}, {WS}, s{sREG} offen sc1", Ma)
    if pl == 2:
        light(f"buffer_load_dword v{A0}, v{vA0}, {WS}, s{sREG} offen sc1", A0, (0xFF, 0))
    poll([f"buffer_load_dwordx4 {vr(A0)}, v{vA0}, {WS}, s{sREG} offen sc1",
          f"buffer_load_dwordx2 v[{Ma}:{La}], v{vA2}, {WS}, s{sREG} offen sc1"], list(range(A0, A0 + 6)),
         groups=[range(A0, A0 + 4), range(A0 + 4, A0 + 6)], hop=1)
    TS(16)
    seq = [
        f"v_max_f32_dpp v{wMX}, v{Ma}, v{Ma} quad_perm:[1,0,3,2] row_mask:0xf bank_mask:0xf",
        f"v_max_f32_dpp v{wMX}, v{wMX}, v{wMX} quad_perm:[2,3,0,1] row_mask:0xf bank_mask:0xf",
        f"v_max_f32_dpp v{wMX}, v{wMX}, v{wMX} row_half_mirror row_mask:0xf bank_mask:0xf",
        f"v_sub_f32 v{wE}, v{Ma}, v{wMX}",
    ]
    k = 0
    for t in range(2):
        for ks in range(2):
            I(f"v_mfma_f32_16x16x32_bf16 {vr(Dw[t][ks])}, {vr(A0)}, {vr(vRB+4*(ks*2+t))}, 0")
            I(seq[k]); k += 1
    I(f"v_mul_f32 v{wE}, v{wE}, v{wL2E}")
    I(f"v_exp_f32 v{wE}, v{wE}")
    I(f"v_mul_f32 v{wT}, v{wE}, v{La}")
    mrg = [f"v_mov_b32_dpp v{Dw[t][0]+i}, v{Dw[t][1]+i} quad_perm:[0,1,2,3] row_mask:0xc bank_mask:0xf"
           for t in range(2) for i in range(4)]
    I(mrg[0]); I(mrg[1])
    I(f"v_add_f32_dpp v{wT}, v{wT}, v{wT} quad_perm:[1,0,3,2] row_mask:0xf bank_mask:0xf")
    I(mrg[2]); I(mrg[3])
    I(f"v_add_f32_dpp v{wT}, v{wT}, v{wT} quad_perm:[2,3,0,1] row_mask:0xf bank_mask:0xf")
    I(f"v_mov_b32_dpp v{wE}, v{wE} row_ror:4 row_mask:0xf bank_mask:0xa")
    I(mrg[4])
    I(f"v_add_f32_dpp v{wT}, v{wT}, v{wT} row_half_mirror row_mask:0xf bank_mask:0xf")
    I(mrg[5])
    I(f"v_rcp_f32 v{wT}, v{wT}")
    I(mrg[6]); I(mrg[7])
    for i in range(4):
        for t in range(2):
            D = Dw[t][0]; R = (wR0, wR1)[t]
            op = "v_mul_f32_dpp" if i == 0 else "v_fmac_f32_dpp"
            I(f"{op} v{R}, v{wE}, v{D+i} quad_perm:[{i},{i},{i},{i}] row_mask:0xf bank_mask:0xf")
    I(f"v_mul_f32 v{wR0}, v{wR0}, v{wT}")
    I(f"v_mul_f32 v{wR1}, v{wR1}, v{wT}")
    I(f"ds_write_b32 v{vPW}, v{wR0} offset:{L_PB2}")
    I(f"ds_write_b32 v{vPW}, v{wR1} offset:{L_PB2+256}")
    I("s_waitcnt lgkmcnt(0)")
    I("s_barrier")
    I(f"s_cmp_eq_u32 s{sWAVE}, 5")
    I("s_cbranch_scc0 L_next")
    TS(17)
    reduce_read(8, L_PB2)
    I("s_waitcnt lgkmcnt(0)")
    I(f"v_add_f32 v{T+30}, v{T+30}, v{vXF}")
    reduce_sum(8, rTOT)
    pack_pairs(rTOT, rU)
    I(f"v_mov_b32 v{T}, v{rU}")
    I(f"v_mov_b32_dpp v{T+1}, v{rU} quad_perm:[2,2,2,2] row_mask:0xf bank_mask:0xf")
    I(f"v_mov_b32_dpp v{T+2}, v{rU} row_shl:4 row_mask:0xf bank_mask:0xf")
    I(f"v_mov_b32_dpp v{T+3}, v{rU} row_shl:6 row_mask:0xf bank_mask:0xf")
    setexec(0x01010101, 0)
    I(f"buffer_store_dwordx4 {vr(T)}, v{vRP}, {WS}, s{sREG} offen sc1")
    if dual:
        I(f"buffer_store_dwordx4 {vr(T)}, v{vRP}, {WS}, s{sREG2} offen sc1")
    setexec(0xFFFFFFFF, 0xFFFFFFFF)
    TS(18)
    I("s_branch L_next")

    ha = T + 48
    def w2_frags(FR, wait=True):
        for e in range(len(FR)):
            va, o = (vA3, e * 8192) if not y64 else ((vA3, vA1)[e & 1], (e >> 1) * 16384)
            if y128: va, o = (vA3, vA1, vA0, T + 51)[e & 3], (e >> 2) * 8192
            if y128 and e == 0: I(f"v_xor_b32 v{T+51}, 96, v{vA3}")
            if e == 4 and len(FR) == 8: I("s_waitcnt lgkmcnt(0)")
            I(f"ds_read_b64_tr_b16 v[{FR[e]}:{FR[e]+1}], v{va} offset:{o}")
            I(f"ds_read_b64_tr_b16 v[{FR[e]+2}:{FR[e]+3}], v{va} offset:{o+512}")
        if wait: I("s_waitcnt lgkmcnt(0)")
    def w2_tail(FR, HB, D2):
        ne = len(FR)
        I("s_barrier")
        setexec(0x00010001, 0x00010001)
        for e in range(ne):
            I(f"ds_read_b128 {vr(HB[e])}, v{ha} offset:{L_H}")
            I("s_lshl_b64 exec, exec, 1" if e < ne - 1 else "s_mov_b64 exec, -1")
        TS(23)
        for e in range(ne):
            if ne == 6 and e == 4:
                I(f"s_cmp_lt_u32 s{sWAVE}, 4")
                I("s_cbranch_scc0 L_w24")
            if ne == 8 and e == 4:
                I(f"s_cmp_ge_u32 s{sWAVE}, 6")
                I("s_cbranch_scc0 L_w24")
            I(f"s_waitcnt lgkmcnt({ne-1-e})")
            I(f"v_mfma_f32_16x16x32_bf16 {vr(D2)}, {vr(FR[e])}, {vr(HB[e])}, {vr(D2) if e else '0'}")
        if ne >= 6: a.label("L_w24")
        if y64: I(f"s_mov_b64 exec, s[{sYM}:{sYM+1}]")
        else: setexec(0x001F001F, 0x001F001F)
        I(f"v_cvt_pk_bf16_f32 v{D2}, v{D2}, v{D2+1}")
        I(f"v_cvt_pk_bf16_f32 v{D2+1}, v{D2+2}, v{D2+3}")
        I(f"v_min_u32 v{D2}, 0xfffffffe, v{D2}")
        I(f"v_min_u32 v{D2+1}, 0xfffffffe, v{D2+1}")
        I(f"buffer_store_dwordx2 v[{D2}:{D2+1}], v{vA2}, {WS}, s{sREG} offen sc1")
        if dual:
            I(f"buffer_store_dwordx2 v[{D2}:{D2+1}], v{vA2}, {WS}, s{sREG2} offen sc1")
        setexec(0xFFFFFFFF, 0xFFFFFFFF)
        if ne >= 6: I("s_waitcnt lgkmcnt(0)")
        TS(24)
        I("s_branch L_next")
    FR04 = [28, 32, 36, 40, T + 40] + ([T + 24] if y64 else [])
    FR5 = [vRB + 4 * e for e in range(4 if y64 else 5)]
    if y128:
        FR04 = FR04[:4]
        FR5 = [vRB + 4 * e for e in range(8)]
        HB5 = [28, 32, 36, 40, T, T + 4, T + 8, T + 12]
    HB04 = [T + 4 * e for e in range(len(FR04))]
    def it0(fn):
        l = a.newlab("Li")
        I(f"s_cmp_eq_u32 s{sIT}, 0")
        I(f"s_cbranch_scc0 {l}")
        fn()
        a.label(l)
    a.label("L_W1")
    I(f"s_cmp_ge_u32 s{sWAVE}, 5")
    I("s_cbranch_scc1 L_W1h")
    ones()
    I(f"s_cmp_eq_u32 s{sIT}, 0")
    I("s_cbranch_scc0 L_W11")
    role_base()
    tr_addr(T + 47, 64, sT0)
    I(f"s_lshl_b32 s{sT0}, s{sWAVE}, 7")
    I(f"v_and_b32 v{T+46}, 15, v{vLANE}")
    I(f"v_lshlrev_b32 v{T+46}, 2, v{T+46}")
    I(f"v_add_u32 v{T+46}, s{sT0}, v{T+46}")
    if not emd: I("s_waitcnt vmcnt(0)")
    for ks in range(4):
        for t in range(2):
            b = vRB + 4 * (ks * 2 + t)
            o = ks * 2048 + t * 32
            I(f"ds_read_b64_tr_b16 v[{b}:{b+1}], v{T+47} offset:{o}")
            I(f"ds_read_b64_tr_b16 v[{b+2}:{b+3}], v{T+47} offset:{o+256}")
        if ks == 1:
            I("s_waitcnt lgkmcnt(0)")
    I("s_waitcnt lgkmcnt(0)")
    for t in range(2):
        for ks in range(4):
            I(f"v_mfma_f32_16x16x32_bf16 {vr(T+4*t)}, {vr(ONES)}, {vr(vRB+4*(ks*2+t))}, {'0' if ks == 0 else vr(T+4*t)}")
    I(f"ds_write_b32 v{T+46}, v{T} offset:{L_CS2}")
    I(f"ds_write_b32 v{T+46}, v{T+4} offset:{L_CS2+64}")
    TS(15)
    I("s_branch L_W12")
    a.label("L_W11")
    w2_frags(FR04)
    a.label("L_W12")
    if g2: I("s_barrier")
    I(f"s_add_u32 s{sT1}, s{sREG}, {ZOFF}")
    I(f"s_add_u32 s{sT1}, s{sT1}, s{sNEAR}")
    gather(sT1)
    TS(19)
    gemv(2, vRB, lambda ks, t: ks * 2 + t)
    TS(20)
    I("s_barrier")
    I(f"v_lshrrev_b32 v{ha}, 4, v{vLANE}")
    I(f"v_lshlrev_b32 v{ha}, 4, v{ha}")
    for i in range(4 * len(FR04)):
        I(f"v_mov_b32 v{T+i}, 0")
    it0(lambda: w2_frags(FR04))
    w2_tail(FR04, HB04, T + 44)
    a.label("L_W1h")
    if g2:
        I(f"s_cmp_eq_u32 s{sWAVE}, 6")
        I("s_cbranch_scc0 L_G2")
        ml_gate(g2)
        a.label("L_G2")
        I("s_barrier")
    I(f"v_mov_b32 v{rINV}, {f2u(1.0/640):#x}")
    I(f"v_mov_b32 v{rC1}, {f2u(GC1):#x}")
    I(f"v_mov_b32 v{rC2}, {f2u(GC2):#x}")
    I(f"v_lshrrev_b32 v{ha}, 4, v{vLANE}")
    I(f"v_lshlrev_b32 v{ha}, 4, v{ha}")
    I(f"v_lshlrev_b32 v{ha+1}, 1, v{vLANE}")
    I(f"v_lshlrev_b32 v{ha+2}, 2, v{vLANE}")
    I("s_waitcnt vmcnt(0)")
    I("s_barrier")
    I(f"s_cmp_eq_u32 s{sWAVE}, 5")
    I("s_cbranch_scc1 L_W1r")
    for b_ in HB5:
        for i in range(4):
            I(f"v_mov_b32 v{b_+i}, 0")
    it0(lambda: w2_frags(FR5))
    I("s_branch L_W1t")
    a.label("L_W1r")
    TS(21)
    reduce_read(5, L_PB1)
    for v in range(5):
        I(f"ds_read_b32 v{T+24+v}, v{ha+2} offset:{L_CS2 + v*128}")
    I("s_waitcnt lgkmcnt(5)")
    reduce_sum(5, rTOT)
    stats()
    I("s_waitcnt lgkmcnt(0)")
    it0(lambda: w2_frags(FR5[:4] if y128 else FR5, False))
    I(f"v_add_f32 v{T+24}, v{T+24}, v{T+25}")
    I(f"v_add_f32 v{T+26}, v{T+26}, v{T+27}")
    I(f"v_add_f32 v{T+24}, v{T+24}, v{T+28}")
    I(f"v_add_f32 v{vCS1}, v{T+24}, v{T+26}")
    I(f"v_sub_f32 v{rMEAN}, v{rMEAN}, v{rMB}")
    I(f"v_mul_f32 v{rVAR}, v{rVAR}, v{rR}")
    I(f"v_mul_f32 v{rMEAN}, v{rMEAN}, v{rR}")
    I(f"v_mul_f32 v{rVAR}, v{rVAR}, v{rR}")
    I(f"v_cvt_pk_bf16_f32 v{rT}, v{rMEAN}, v{rVAR}")
    I(f"v_and_b32 v{rU}, 0xffff0000, v{rT}")
    I(f"v_lshlrev_b32 v{rMEAN}, 16, v{rT}")
    I(f"v_add_f32 v{rU}, {f2u(1e-5):#x}, v{rU}")
    I(f"v_cvt_pk_bf16_f32 v{rU}, v{rU}, v{rU}")
    I(f"v_fma_f32 v{rMB}, v{rMEAN}, v{rSD}, v{rMB}")
    I(f"v_and_b32 v{rU}, 0xffff0000, v{rU}")
    I(f"v_sqrt_f32 v{rU}, v{rU}")
    I(f"v_fma_f32 v{rTOT}, -v{rMB}, v{vCS1}, v{rTOT}")
    I(f"v_cvt_pk_bf16_f32 v{rU}, v{rU}, v{rU}")
    I(f"v_mul_f32 v{rTOT}, v{rTOT}, v{rR}")
    I(f"v_and_b32 v{rU}, 0xffff0000, v{rU}")
    I(f"v_rcp_f32 v{rU}, v{rU}")
    I(f"v_mul_f32 v{rTOT}, v{rTOT}, v{rU}")
    I(f"v_cvt_pk_bf16_f32 v{rU}, v{rTOT}, v{rTOT}")
    I(f"v_and_b32 v{rU}, 0xffff0000, v{rU}")
    I(f"v_add_f32 v{rU}, v{rU}, v{vB1}")
    I(f"v_cvt_pk_bf16_f32 v{rU}, v{rU}, v{rU}")
    I(f"v_and_b32 v{rU}, 0xffff0000, v{rU}")
    I(f"v_mul_f32 v{rT}, v{rU}, v{rU}")
    I(f"v_fma_f32 v{rT}, v{rT}, v{rC2}, v{rC1}")
    I(f"v_mul_f32 v{rT}, v{rT}, v{rU}")
    I(f"v_exp_f32 v{rT}, v{rT}")
    I(f"v_add_f32 v{rT}, 1.0, v{rT}")
    I(f"v_rcp_f32 v{rT}, v{rT}")
    I(f"v_mul_f32 v{rU}, v{rU}, v{rT}")
    I(f"v_cvt_pk_bf16_f32 v{rU}, v{rU}, v{rU}")
    setexec(0xFFFFFFFF, 0)
    I(f"ds_write_b16 v{ha+1}, v{rU} offset:{L_H}")
    setexec(0xFFFFFFFF, 0xFFFFFFFF)
    TS(22)
    I("s_waitcnt lgkmcnt(0)")
    a.label("L_W1t")
    w2_tail(FR5, HB5, T + 44)

    a.label("L_next")
    I("s_waitcnt vmcnt(0)")
    I(f"s_add_u32 s{sIT}, s{sIT}, 1")
    I(f"s_add_u32 s{sREG}, s{sREG}, {RS}")
    I(f"s_add_u32 s{sREG2}, s{sREG2}, {RS}")
    I(f"s_cmp_lt_u32 s{sIT}, 2")
    I("s_cbranch_scc1 L_loop")
    I(f"s_or_b32 s{sT0}, s{sROLE}, s{sX}")
    I(f"s_cmp_eq_u32 s{sT0}, 0")
    I("s_cbranch_scc0 L_fin")
    I(f"s_cmp_eq_u32 s{sWAVE}, 6")
    I("s_cbranch_scc1 L_loop")
    a.label("L_fin")
    if dbgt:
        srd(TA, 54, 256)
        I(f"v_add_u32 v{T}, 2, v{vLANE}")
        I(f"v_add_u32 v{T+1}, 4, v{vLANE}")
        I(f"v_cmp_gt_u32 vcc, 6, v{vLANE}")
        I(f"v_cndmask_b32 v{T}, v{T+1}, v{T}, vcc")
        I(f"v_lshlrev_b32 v{T}, 2, v{T}")
        setexec(0xFFF, 0)
        I(f"buffer_atomic_umax v{vTST}, v{T}, {TA}, 0 offen sc1")
        setexec(0xFFFFFFFF, 0xFFFFFFFF)
    if instr:
        TS(30)
        I(f"s_lshl_b32 s{sT0}, s2, 3")
        I(f"s_add_u32 s{sT0}, s{sT0}, s{sWAVE}")
        I(f"s_lshl_b32 s{sT0}, s{sT0}, 9")
        I(f"s_add_u32 s{sT0}, s{sT0}, {DBGOFF}")
        I(f"v_lshlrev_b32 v{T}, 3, v{vLANE}")
        I(f"buffer_store_dwordx2 v[{vTSI}:{vTST}], v{T}, {WS}, s{sT0} offen")
    a.label("L_end")
    I("s_endpgm")
    a.raw('.section .rodata,"a"\n.p2align 6')
    a.raw(f".amdhsa_kernel {KNAME}")
    a.raw("  .amdhsa_next_free_vgpr 256\n  .amdhsa_next_free_sgpr 102\n  .amdhsa_accum_offset 256\n"
          "  .amdhsa_group_segment_fixed_size 0\n  .amdhsa_kernarg_size 104\n  .amdhsa_user_sgpr_count 2\n"
          "  .amdhsa_user_sgpr_kernarg_segment_ptr 1\n  .amdhsa_system_sgpr_workgroup_id_x 1")
    a.raw(".end_amdhsa_kernel")
    open(fn, "w").write(a.text())
    return a.ninstr


if __name__ == "__main__":
    import argparse
    p = argparse.ArgumentParser()
    p.add_argument("-o", default="k.s")
    p.add_argument("--instr", action="store_true")
    p.add_argument("--kv", default="nt")
    p.add_argument("--w", default="")
    p.add_argument("--y16", action="store_true")
    p.add_argument("--nomask", action="store_true")
    p.add_argument("--nodual", action="store_true")
    p.add_argument("--n0", type=int, default=4)
    p.add_argument("--late", type=lambda x: int(x, 0), default=0x5f)
    p.add_argument("--r", default="")
    p.add_argument("--ncal", type=int, default=4)
    p.add_argument("--nw0", type=int, default=8)
    p.add_argument("--qk", type=int, default=16)
    p.add_argument("--qp", type=int, default=3)
    p.add_argument("--gate", type=int, default=4)
    p.add_argument("--calr", type=int, default=28)
    p.add_argument("--esy", type=int, default=1)
    p.add_argument("--rmap", type=int, default=0)
    p.add_argument("--wk", type=int, default=0)
    p.add_argument("--th1", type=int, default=0)
    p.add_argument("--yl", type=int, default=0)
    p.add_argument("--y64", type=int, default=0)
    p.add_argument("--zx", type=int, default=64)
    p.add_argument("--zfl", default="sc1")
    p.add_argument("--yfl", default="sc1")
    p.add_argument("--pl", type=int, default=0)
    p.add_argument("--g1", type=int, default=0)
    p.add_argument("--pth", type=int, default=0)
    p.add_argument("--g2", type=int, default=0)
    p.add_argument("--g3", type=int, default=0)
    p.add_argument("--near", type=int, default=-1)
    p.add_argument("--hb", default="0,1")
    p.add_argument("--zq", type=int, default=0)
    p.add_argument("--sm", type=int, default=0)
    p.add_argument("--kl", type=int, default=0)
    p.add_argument("--cw", type=int, default=0)
    p.add_argument("--emd", type=int, default=0)
    p.add_argument("--g8", type=int, default=8)
    p.add_argument("--emw", type=int, default=4)
    p.add_argument("--vx", type=int, default=0)
    p.add_argument("--kvp", default="12,13,14,15,16,17,18,19")
    p.add_argument("--fakeq", type=int, default=0)
    p.add_argument("--pdep", type=int, default=1)
    p.add_argument("--pdl", type=int, default=2)
    p.add_argument("--pmask", type=int, default=31)
    p.add_argument("--xl", type=lambda x: int(x, 0), default=0)
    p.add_argument("--dyn", type=int, default=1)
    p.add_argument("--tw", type=int, default=6)
    p.add_argument("--tp", type=int, default=16)
    p.add_argument("--th2", type=int, default=0)
    p.add_argument("--rot2", type=int, default=2)
    p.add_argument("--pt", type=int, default=0)
    p.add_argument("--ptr", type=int, default=32)
    p.add_argument("--dbgt", default=None)
    p.add_argument("--sp1", type=int, default=1)
    p.add_argument("--norot", action="store_true")
    p.add_argument("--syfl", default="")
    p.add_argument("--ts", default=None)
    p.add_argument("--noprio", action="store_true")
    args = p.parse_args()
    ts = None if args.ts is None else set(int(x) for x in args.ts.split(","))
    n = gen(args.o, instr=args.instr, kvflags=args.kv, wflags=args.w, y16=args.y16,
            masked_=not args.nomask, tsset=ts, n0=args.n0, late=args.late, rflags=args.r, ncal=args.ncal, dual=not args.nodual, prio=not args.noprio,
            nw0=args.nw0, qk=args.qk, rot=not args.norot, syfl=args.syfl, qp=args.qp, gate=args.gate, calr=args.calr, esy=args.esy, rmap=args.rmap, wk=args.wk, th1=args.th1, yl=args.yl, y64=args.y64, zx=args.zx, zfl=args.zfl, yfl=args.yfl, pl=args.pl, g1=args.g1, pth=args.pth, g2=args.g2, g3=args.g3, near=args.near, zq=args.zq, sm=args.sm, kl=args.kl, cw=args.cw, emd=args.emd, g8=args.g8, emw=args.emw, kvp=tuple(sum(1 << int(y) for y in x.split('+')) if i < 2 else int(x) for i, x in enumerate(args.kvp.split(','))), vx=args.vx, fakeq=args.fakeq, hb=tuple(int(x) for x in args.hb.split(',')), pdep=args.pdep, pdl=args.pdl, pmask=args.pmask, xl=args.xl, dyn=args.dyn, tw=args.tw, tp=args.tp, th2=args.th2, rot2=args.rot2, pt=args.pt, ptr_=args.ptr, dbgt=[tuple(int(y) for y in x.split('.')) for x in args.dbgt.split(',')] if args.dbgt else None, sp1=args.sp1)
    print("instrs:", n)
```

```python
import re

TRANS = ("v_exp_f32", "v_log_f32", "v_rcp_f32", "v_rsq_f32", "v_sqrt_f32", "v_sin_f32", "v_cos_f32", "v_rcp_iflag_f32")
NODST_S = ("s_cmp", "s_cbranch", "s_branch", "s_waitcnt", "s_barrier", "s_nop", "s_endpgm", "s_setprio", "s_bitcmp")

REG_RE = re.compile(r"^(-|abs\()?([vsa])(\d+|\[(\d+):(\d+)\])\)?$")


def regs_of(tok):
    tok = tok.strip()
    if tok in ("vcc",):
        return {("vcc", 0)}
    if tok in ("vcc_lo", "vcc_hi"):
        return {("vcc", 0)}
    if tok in ("exec", "exec_lo", "exec_hi"):
        return {("exec", 0)}
    if tok == "m0":
        return {("m0", 0)}
    if tok == "scc":
        return set()
    m = REG_RE.match(tok)
    if not m:
        return set()
    k = m.group(2)
    if m.group(4) is not None:
        return {(k, i) for i in range(int(m.group(4)), int(m.group(5)) + 1)}
    return {(k, int(m.group(3)))}


class Rec:
    __slots__ = ("op", "cls", "rd", "wr", "dpp", "trans", "mfma_c", "mfma_d", "wide_data", "states", "lanesel", "mfma_ab", "text")


def parse(text):
    t = text.split(";")[0].strip()
    sp = t.split(None, 1)
    op = sp[0]
    rest = sp[1] if len(sp) > 1 else ""
    ops, cur, depth = [], "", 0
    for ch in rest:
        if ch == "[":
            depth += 1
        if ch == "]":
            depth -= 1
        if ch == "," and depth == 0:
            ops.append(cur.strip()); cur = ""
        else:
            cur += ch
    if cur.strip():
        ops.append(cur.strip())
    mods = ""
    if ops:
        last = ops[-1].split(None, 1)
        ops[-1] = last[0]
        if len(last) > 1:
            mods = last[1]
    r = Rec()
    r.op = op; r.text = text
    r.rd = set(); r.wr = set(); r.dpp = False; r.trans = False
    r.mfma_c = None; r.mfma_d = None; r.wide_data = None; r.states = 1; r.lanesel = set(); r.mfma_ab = None
    R = [regs_of(o) for o in ops]
    if op == "s_nop":
        r.cls = "salu"; r.states = int(ops[0], 0) + 1
        return r
    if op.startswith("v_smfmac"):
        r.cls = "mfma"
        r.wr = R[0]; r.mfma_d = R[0]
        r.mfma_ab = R[1] | R[2] | R[3]
        r.mfma_c = R[0]
        r.rd = R[0] | R[1] | R[2] | R[3]
        return r
    if op.startswith("v_mfma"):
        r.cls = "mfma"
        r.wr = R[0]; r.mfma_d = R[0]
        r.mfma_ab = R[1] | R[2]
        r.mfma_c = R[3]
        r.rd = R[1] | R[2] | R[3]
        return r
    if op.startswith("v_"):
        r.cls = "valu"
        r.dpp = ("_dpp" in op) or ("quad_perm" in mods) or ("row_" in mods)
        base = op.replace("_dpp", "").replace("_e32", "").replace("_e64", "")
        r.trans = base in TRANS
        if base.startswith("v_permlane") and "swap" in base:
            r.wr = R[0] | R[1]; r.rd = R[0] | R[1]
        elif base.startswith("v_cmp"):
            r.wr = R[0]
            for x in R[1:]: r.rd |= x
        elif base in ("v_add_co_u32", "v_sub_co_u32", "v_addc_co_u32", "v_subb_co_u32"):
            r.wr = R[0] | R[1]
            for x in R[2:]: r.rd |= x
        else:
            r.wr = R[0]
            for x in R[1:]: r.rd |= x
            if base.startswith("v_fmac") or base.startswith("v_pk_fmac") or r.dpp or base == "v_writelane_b32":
                r.rd |= R[0]
            if base in ("v_readlane_b32", "v_writelane_b32"):
                r.lanesel = R[2]
        return r
    if op.startswith("ds_"):
        r.cls = "ds"
        if op.startswith("ds_read") or "permute" in op or op.startswith("ds_swizzle"):
            r.wr = R[0]
            for x in R[1:]: r.rd |= x
        else:
            for x in R: r.rd |= x
        return r
    if op.startswith("buffer_") or op.startswith("global_"):
        r.cls = "vmem"
        islds = re.search(r"\blds\b", mods) is not None
        if "load" in op and not islds:
            r.wr = R[0]
            for x in R[1:]: r.rd |= x
        else:
            for x in R: r.rd |= x
            if islds:
                r.rd |= {("m0", 0)}
                r.cls = "vmem_lds"
            if "store" in op and ("x4" in op or "x3" in op):
                r.wide_data = R[0]
            if "atomic" in op and "sc0" in mods:
                r.wr = R[0]
        return r
    if op.startswith("s_"):
        r.cls = "salu"
        if op.startswith("s_load") or op.startswith("s_mem") or op.startswith("s_buffer_load"):
            r.cls = "smem"
        if any(op.startswith(p) for p in NODST_S):
            for x in R: r.rd |= x
            if "vcc" in op: r.rd |= {("vcc", 0)}
        else:
            r.wr = R[0] if R else set()
            for x in R[1:]: r.rd |= x
            if "saveexec" in op:
                r.wr |= {("exec", 0)}
        return r
    raise ValueError("unknown instr: " + text)


def need(p, c):
    n = 0
    isv = lambda s: {x for x in s if x[0] in ("v", "a")}
    iss = lambda s: {x for x in s if x[0] in ("s", "vcc")}
    if p.cls == "valu":
        pv = isv(p.wr); ps = iss(p.wr)
        if c.cls == "valu":
            if c.dpp and pv & c.rd: n = max(n, 2)
            if c.op.startswith("v_permlane") and pv & c.rd: n = max(n, 2)
            if (c.op.startswith("v_readlane") or c.op.startswith("v_readfirstlane")) and pv & c.rd: n = max(n, 1)
            if p.trans and pv & (c.rd | c.wr): n = max(n, 1)
            if ps & c.rd: n = max(n, 2)
            if ps & c.lanesel: n = max(n, 4)
            if c.op.startswith("v_cndmask") and ("vcc", 0) in ps: n = max(n, 2)
        if c.cls == "mfma" and pv & c.rd: n = max(n, 2)
        if c.cls in ("vmem", "vmem_lds") and ps & c.rd: n = max(n, 5)
        if c.cls in ("salu", "smem") and ps & c.rd and not c.op.startswith("s_cbranch"): n = max(n, 1)
        if p.trans and c.cls in ("vmem", "ds", "vmem_lds") and pv & c.rd: n = max(n, 1)
    if p.cls == "mfma":
        D = p.mfma_d
        if c.cls == "mfma":
            if D & c.mfma_ab: n = max(n, 8)
            if D & c.mfma_c and D != c.mfma_c: n = max(n, 6)
            if D & c.wr and not (D == c.mfma_c and D == c.wr): n = max(n, 8)
        elif c.cls in ("valu", "vmem", "ds", "vmem_lds"):
            if D & (c.rd | c.wr): n = max(n, 8)
            if c.cls == "valu" and p.mfma_c & c.wr: n = max(n, 3)
    if p.wide_data is not None:
        if p.wide_data & c.wr: n = max(n, 2)
    if p.cls == "salu" and ("m0", 0) in p.wr and c.cls == "vmem_lds": n = max(n, 1)
    return n


class Asm:
    HIST = 14

    def __init__(self):
        self.lines = []
        self.hists = [[]]
        self.snap = {}
        self.defined = set()
        self.nlab = 0
        self.ninstr = 0
        self.pipe = False

    def raw(self, s):
        self.lines.append(s)

    def c(self, s):
        self.lines.append("  ; " + s)

    def _push(self, r):
        for h in self.hists:
            h.append(r)
            if len(h) > self.HIST:
                del h[0]

    def _required(self, r):
        pad = 0
        for h in self.hists:
            dist = 0
            for p in reversed(h):
                n = need(p, r)
                if n > dist:
                    pad = max(pad, n - dist)
                dist += p.states
                if dist >= 12:
                    break
        return pad

    def nop(self, n):
        while n > 0:
            k = min(n, 16)
            t = f"s_nop {k-1}"
            self.lines.append("  " + t)
            self._push(parse(t))
            self.ninstr += 1
            n -= k

    def I(self, text):
        for t in text.split("\n"):
            t = t.strip()
            if not t:
                continue
            r = parse(t)
            pad = self._required(r)
            if pad:
                self.nop(pad)
            if self.pipe and r.cls == "mfma":
                for h in self.hists:
                    dist = 0
                    for p in reversed(h):
                        if p.cls == "mfma":
                            if dist + 1 < 4:
                                v = parse(f"s_nop {4 - dist - 2}")
                                h.append(v)
                            break
                        dist += p.states
                        if dist >= 4: break
            isbr = r.op.startswith("s_cbranch") or r.op == "s_branch"
            if isbr:
                lab = t.split()[1]
                if lab in self.defined:
                    self.flush(1)
            self.lines.append("  " + t)
            self._push(r)
            self.ninstr += 1
            if isbr:
                lab = t.split()[1]
                if lab not in self.defined:
                    self.snap.setdefault(lab, []).extend([list(h) for h in self.hists])
                if r.op == "s_branch":
                    self.hists = [[]]
            if r.op == "s_endpgm":
                self.hists = [[]]

    def flush(self, credit=0):
        pad = 0
        for h in self.hists:
            dist = 0
            for p in reversed(h):
                worst = 0
                if p.cls == "mfma": worst = 8
                elif p.cls == "valu":
                    worst = 5 if any(x[0] in ("s", "vcc") for x in p.wr) else 2
                elif p.wide_data is not None: worst = 2
                elif p.cls == "salu" and ("m0", 0) in p.wr: worst = 1
                if worst > dist + credit:
                    pad = max(pad, worst - dist - credit)
                dist += p.states
        if pad:
            self.nop(pad)

    def label(self, name):
        self.lines.append(name + ":")
        self.defined.add(name)
        hs = [h for h in self.hists if h] + self.snap.pop(name, [])
        uniq = []
        seen = set()
        for h in hs:
            key = tuple(id(x) for x in h[-12:])
            if key not in seen:
                seen.add(key); uniq.append(list(h))
        self.hists = uniq if uniq else [[]]

    def newlab(self, p="L"):
        self.nlab += 1
        return f"{p}_{self.nlab}"

    def text(self):
        assert not self.snap, f"undefined labels: {list(self.snap)}"
        return "\n".join(self.lines) + "\n"
```

```python
import sys, struct, math
from asmlib import Asm

KNAME = "interleave_layers__gqa_block_cached__mixer_channel_mlp__decode_kernel"

RS = 0x60000
POFF, ZOFF, QOFF, XOFF, MLOFF, YOFF = 0x0, 0x10000, 0x20000, 0x1c000, 0x58000, 0x30000
CALOFF = 0xC0000
CP = 0x2000
ZR, ZX = 512, 64
DBGOFF = 0x100000
WS_SIZE = 0x200000
BIG = 0x40000000
PP = 544
L_PB1, L_PB2, L_CS1, L_CS2, L_QB, L_ML, L_FLAG, L_DUM, L_PER, L_ROLE = (
    0, 2816, 7168, 7808, 8448, 8704, 8768, 8896, 10240, 51200)
LDS_TOTAL = 163840
NPER, NREST = 10, 26
L_RING, RSL = 51200, 36
L_W2, L_H, L_O = 92160, 8784, 133120
LEAD_R = 0

def f2u(x):
    return struct.unpack("<I", struct.pack("<f", x))[0]

L2E = f2u(1.4426950408889634)
SCALE = f2u(128 ** -0.5)
GC1 = -2.0 * 1.4426950408889634 * math.sqrt(2.0 / math.pi)
GC2 = GC1 * 0.044715

sWAVE, sX, sR, sIT, sREG = 3, 4, 5, 6, 7
K_SRD, V_SRD, WS, TA, TB, OUTS = "s[8:11]", "s[12:15]", "s[16:19]", "s[20:23]", "s[24:27]", "s[28:31]"
sROLE, sPURE, sSPIN = 58, 59, 60
sT0, sT1, sT2, sT3, sSLOT = 61, 62, 63, 72, 73
sF = 64
sXCC, sTB, sNT, sTSI = 74, 75, 76, 77
sL2E, sM = 80, 81
sRB, sRSTEP, sRN = 82, 83, 84
sKV = 85
sNEAR, sREG2, sVOTE = 78, 79, 81
sLATE, sQS, sKM, sYM = 100, 101, 42, 98
sXW = 95
vLANE = 0
vGO, vXO, vPW, vSW, vQR, vOW, vMLW = 1, 2, 7, 8, 9, 10, 11
vPQ = 3
vA0, vA1, vA2, vA3 = 12, 13, 14, 15
vRDMA = 17
vTSI, vTST = 18, 19
vSEL = 20
vBQ = 28
vRB = 44
vFD = 72
T = 76
vK, vV = 128, 192
vRR, vQP, vQG, vCSQ, vCS1, vB1, vRP = 1, 2, 3, 4, 5, 6, 8
vXF = 72
vXFA = 16
vCR, vCML, vCP, vCPM, vQG7 = 1, 2, 3, 4, 5


def vr(a, n=4):
    return f"v[{a}:{a+n-1}]"


def gen(fn, instr=False, kvflags="nt", wflags="", rflags="", spin_limit=400000, tsset=None,
        y16=False, masked_=True, dbgt=False, n0=4, late=0x78, dual=True, prio=True, ncal=4, nw0=8, qk=16, rot=True,
        syfl='', qp=3, gate=4, sp1=1, pt=0, ptr_=32, rmap=0, wk=0, calr=28, esy=1, th1=0, th2=0, rot2=2, dyn=1, tw=6, tp=16, yl=0, y64=0, zx=64, zfl='sc1', yfl='sc1', pl=0, xl=0, pdep=1, pdl=2, pmask=31, g1=0, pth=0, g2=0, g3=0, near=-1, hb=(0, 1), fakeq=0, kvp=(4096, 8192, 14, 15, 16, 17, 18, 19), vx=0, emd=0, g8=8, emw=4, cw=0, sm=0, zq=0, kl=0, m2=0, q2=0, pipe=0, ap=0):
    assert not late & 0x80
    ZX = zx; ZR = 8 * zx; ZB = 4 if zx == 64 else 3
    y128 = y64 == 2
    HB5 = [28, 32, 36, 40, 64]
    a = Asm()
    a.pipe = bool(pipe)
    I = a.I
    a.raw(f"; @launch grid=(256,1,1) block=(512,1,1) lds={LDS_TOTAL}")
    a.raw('.amdgcn_target "amdgcn-amd-amdhsa--gfx950"')
    a.raw(".text")
    a.raw(f".globl {KNAME}\n.p2align 8\n.type {KNAME},@function\n{KNAME}:")

    def TS(k):
        if dbgt:
            for j, (kk, it, *mn) in enumerate(dbgt):
                if kk == k:
                    l = a.newlab("Ld")
                    I(f"s_cmp_eq_u32 s{sIT}, {it}")
                    I(f"s_cbranch_scc0 {l}")
                    I("s_memrealtime s[0:1]")
                    I("s_waitcnt lgkmcnt(0)")
                    if mn: I("s_not_b32 s0, s0")
                    I(f"v_writelane_b32 v{vTST}, s0, {j + 2}")
                    a.label(l)
            return
        if not instr or (tsset is not None and k not in tsset and k not in (0, 30)):
            return
        I("s_memrealtime s[0:1]")
        I("s_waitcnt lgkmcnt(0)")
        I(f"v_writelane_b32 v{vTSI}, {k}, s{sTSI}")
        I(f"s_mov_b32 m0, s{sTSI}")
        I(f"v_writelane_b32 v{vTST}, s0, m0")
        I(f"s_add_u32 s{sTSI}, s{sTSI}, 1")

    def srd(dst, ptr, size):
        d = int(dst[2:].split(":")[0])
        I(f"s_mov_b32 s{d}, s{ptr}")
        I(f"s_mov_b32 s{d+1}, s{ptr+1}")
        I(f"s_mov_b32 s{d+2}, {size:#x}")
        I(f"s_mov_b32 s{d+3}, 0x20000")

    def setexec(lo, hi):
        if lo == 0xFFFFFFFF and hi == 0xFFFFFFFF:
            I("s_mov_b64 exec, -1")
        else:
            I(f"s_mov_b32 exec_lo, {lo:#x}")
            I(f"s_mov_b32 exec_hi, {hi:#x}")

    def maxtree(tmp, rs):
        rs = list(rs)
        if len(rs) == 1:
            return rs[0]
        cur = None
        while rs:
            if cur is None:
                if len(rs) >= 3:
                    I(f"v_max3_u32 v{tmp}, v{rs[0]}, v{rs[1]}, v{rs[2]}"); rs = rs[3:]
                else:
                    I(f"v_max_u32 v{tmp}, v{rs[0]}, v{rs[1]}"); rs = rs[2:]
                cur = tmp
            elif len(rs) >= 2:
                I(f"v_max3_u32 v{tmp}, v{tmp}, v{rs[0]}, v{rs[1]}"); rs = rs[2:]
            else:
                I(f"v_max_u32 v{tmp}, v{tmp}, v{rs[0]}"); rs = rs[1:]
        return cur

    def poll(loads, regs, ex=(0xFFFFFFFF, 0xFFFFFFFF), groups=None, simple=False, hop=0):
        lab = a.newlab("Lp"); done = a.newlab("Lpd")
        tmp = T + 50
        masked = masked_ and not simple
        if not masked:
            a.label(lab)
        dep = pdep if hop & pmask else 1
        for l in loads:
            I(l)
        for _ in range(dep - 1):
            for _ in range(pdl): I("s_nop 15")
            for l in loads:
                I(l)
        if masked:
            a.label(lab)
        I(f"s_add_u32 s{sSPIN}, s{sSPIN}, 1")
        I(f"s_waitcnt vmcnt({len(loads) * (dep - 1)})")
        cur = maxtree(tmp, regs)
        I(f"v_cmp_eq_u32 vcc, -1, v{cur}")
        I(f"s_cbranch_vccz {done}")
        if masked:
            if groups is None or len(loads) == 1:
                I("s_mov_b64 exec, vcc")
                for l in loads:
                    I(l)
            else:
                for j, gr in enumerate(groups):
                    cur = maxtree(tmp + 1 - (j & 1), gr)
                    I(f"v_cmp_eq_u32 s[{86+2*j}:{87+2*j}], -1, v{cur}")
                for j, l in enumerate(loads):
                    I(f"s_mov_b64 exec, s[{86+2*j}:{87+2*j}]")
                    I(l)
            setexec(*ex)
        I(f"s_cmp_lt_u32 s{sSPIN}, {spin_limit}")
        I(f"s_cbranch_scc1 {lab}")
        if masked:
            I("s_waitcnt vmcnt(0)")
        a.label(done)

    def light(load, reg, ex=None):
        lab = a.newlab("Ll"); done = a.newlab("Lld")
        if ex: setexec(*ex)
        a.label(lab)
        I(load)
        I(f"s_add_u32 s{sSPIN}, s{sSPIN}, 1")
        I("s_waitcnt vmcnt(0)")
        I(f"v_cmp_ne_u32 vcc, -1, v{reg}")
        I(f"s_cbranch_vccnz {done}")
        I(f"s_cmp_lt_u32 s{sSPIN}, {spin_limit}")
        I(f"s_cbranch_scc1 {lab}")
        a.label(done)
        if ex: setexec(0xFFFFFFFF, 0xFFFFFFFF)

    def lstore(ins, far=False):
        if far and near >= 0:
            for x in ins: I(x + " sc1")
            return
        l1 = a.newlab("Ls"); l2 = a.newlab("Lsd")
        I(f"s_cmp_eq_u32 s{sPURE}, 0")
        I(f"s_cbranch_scc1 {l1}")
        for x in ins: I(x)
        I(f"s_branch {l2}")
        a.label(l1)
        for x in ins: I(x + " sc1")
        a.label(l2)

    def unpack(lo, hi, src):
        I(f"v_lshlrev_b32 v{lo}, 16, v{src}")
        I(f"v_and_b32 v{hi}, 0xffff0000, v{src}")

    def hperm(dst, src, tmp):
        pos = list(hb) + [b for b in range(5) if b not in hb]
        if pos == [0, 1, 2, 3, 4]:
            if dst != src: I(f"s_mov_b32 s{dst}, s{src}")
            return
        I(f"s_mov_b32 s96, 0")
        for i in range(5):
            I(f"s_bfe_u32 s{tmp}, s{src}, {i | (1 << 16):#x}")
            I(f"s_lshl_b32 s{tmp}, s{tmp}, {pos[i]}")
            I(f"s_or_b32 s96, s96, s{tmp}")
        I(f"s_mov_b32 s{dst}, s96")

    XA = T + 32
    ONES = T + 28

    if instr: I("s_memrealtime s[98:99]")
    I("s_cmp_ge_u32 s2, 256")
    I("s_cbranch_scc1 L_end")
    I("s_load_dwordx16 s[32:47], s[0:1], 0")
    if cw:
        I("s_getpc_b64 s[4:5]")
        a.label("L_cs")
        I(f"v_lshlrev_b32 v1, {cw}, v0")
        I("v_min_u32 v1, L_end-L_cs, v1")
        I("global_load_dword v255, v1, s[4:5]")
    I("s_load_dwordx8 s[48:55], s[0:1], 64")
    I("s_load_dwordx2 s[56:57], s[0:1], 96")
    if dbgt: I("s_memrealtime s[96:97]")
    I("v_lshrrev_b32 v1, 6, v0")
    I(f"v_and_b32 v{vLANE}, 63, v0")
    I(f"v_readfirstlane_b32 s{sWAVE}, v1")
    I(f"s_and_b32 s{sX}, s2, 7")
    I(f"s_lshr_b32 s{sR}, s2, 3")
    I(f"s_lshl_b32 s{sSLOT}, s{sX}, 5")
    I(f"s_add_u32 s{sSLOT}, s{sSLOT}, s{sR}")
    I(f"s_mov_b32 s{sXW}, s{sX}")
    if near >= 0:
        I(f"s_and_b32 s{sSLOT}, s{sX}, 3")
        I(f"s_lshl_b32 s{sXW}, s{sSLOT}, 1")
        I(f"s_lshl_b32 s{sSLOT}, s{sSLOT}, 6")
        I(f"s_lshr_b32 s{sT0}, s{sR}, 2")
        I(f"s_lshl_b32 s{sT0}, s{sT0}, 3")
        I(f"s_add_u32 s{sSLOT}, s{sSLOT}, s{sT0}")
        I(f"s_and_b32 s{sT0}, s{sX}, 4")
        I(f"s_add_u32 s{sSLOT}, s{sSLOT}, s{sT0}")
        I(f"s_lshr_b32 s{sT0}, s{sT0}, 2")
        I(f"s_add_u32 s{sXW}, s{sXW}, s{sT0}")
        I(f"s_and_b32 s{sT0}, s{sR}, 3")
        I(f"s_add_u32 s{sSLOT}, s{sSLOT}, s{sT0}")
    if rmap:
        I(f"s_mov_b32 s{sT0}, -5")
        I(f"s_cmp_lt_u32 s{sR}, 28")
        I(f"s_cselect_b32 s{sT0}, -8, s{sT0}")
        I(f"s_cmp_lt_u32 s{sR}, 16")
        I(f"s_cselect_b32 s{sT0}, 16, s{sT0}")
        I(f"s_cmp_lt_u32 s{sR}, 11")
        I(f"s_cselect_b32 s{sT0}, 12, s{sT0}")
        I(f"s_cmp_lt_u32 s{sR}, 8")
        I(f"s_cselect_b32 s{sT0}, 0, s{sT0}")
        I(f"s_add_u32 s{sR}, s{sR}, s{sT0}")
    g, n, q4, c4, t0, t1, t2, t3 = T, T+1, T+2, T+3, T+4, T+5, T+6, T+7
    aK = T + 48
    vAT = T + 44
    I(f"v_lshrrev_b32 v{g}, 4, v{vLANE}")
    I(f"v_and_b32 v{n}, 15, v{vLANE}")
    I(f"v_bfe_u32 v{q4}, v{vLANE}, 2, 2")
    I(f"v_and_b32 v{c4}, 3, v{vLANE}")
    if sm and kl == 1:
        I(f"v_bfe_u32 v{aK}, v{vLANE}, 1, 3")
        I(f"v_lshlrev_b32 v{aK}, 8, v{aK}")
        I(f"v_lshl_add_u32 v{aK}, v{g}, 5, v{aK}")
        I(f"v_and_b32 v{t0}, 1, v{vLANE}")
        I(f"v_lshl_add_u32 v{aK}, v{t0}, 4, v{aK}")
    elif sm and kl != 2:
        I(f"v_bfe_u32 v{aK}, v{vLANE}, 1, 2")
        I(f"v_lshlrev_b32 v{aK}, 12, v{aK}")
        I(f"v_lshl_add_u32 v{aK}, v{g}, 5, v{aK}")
        I(f"v_and_b32 v{t0}, 8, v{vLANE}")
        I(f"v_lshl_add_u32 v{aK}, v{t0}, 5, v{aK}")
        I(f"v_and_b32 v{t0}, 1, v{vLANE}")
        I(f"v_lshl_add_u32 v{aK}, v{t0}, 4, v{aK}")
    else:
        I(f"v_lshlrev_b32 v{aK}, 8, v{q4}")
        I(f"v_lshl_add_u32 v{aK}, v{g}, 6, v{aK}")
        I(f"v_lshl_add_u32 v{aK}, v{c4}, 4, v{aK}")
    if not q2:
        I(f"v_mul_u32_u24 v{vXO}, 320, v{q4}")
        I(f"v_lshl_add_u32 v{vXO}, v{g}, 4, v{vXO}")
        I(f"s_lshl_b32 s{sT0}, s{sWAVE}, 6")
        I(f"v_add_u32 v{vXO}, s{sT0}, v{vXO}")
    if near >= 0:
        I(f"s_lshr_b32 s{sKV}, s{sSLOT}, 3")
        I(f"s_lshl_b32 s{sKV}, s{sKV}, 20")
        I(f"s_and_b32 s{sT0}, s{sSLOT}, 3")
        I(f"s_lshl_b32 s{sT0}, s{sT0}, 18")
        I(f"s_add_u32 s{sKV}, s{sKV}, s{sT0}")
        I(f"s_lshl_b32 s{sT0}, s{sWAVE}, 15")
        I(f"s_add_u32 s{sKV}, s{sKV}, s{sT0}")
        I(f"s_lshr_b32 s{sT0}, s{sSLOT}, 2")
        I(f"s_lshr_b32 s{sT1}, s{sSLOT}, 4")
        I(f"s_xor_b32 s{sT0}, s{sT0}, s{sT1}")
        I(f"s_xor_b32 s{sT0}, s{sT0}, {near}")
        I(f"s_and_b32 s{sT0}, s{sT0}, 1")
        I(f"s_lshl_b32 s{sT0}, s{sT0}, 13")
        I(f"s_add_u32 s{sKV}, s{sKV}, s{sT0}")
    else:
        I(f"s_lshr_b32 s{sKV}, s{sSLOT}, 3")
        hperm(97, sKV, sT0)
        I(f"s_lshl_b32 s{sKV}, s97, 20")
        for src, ps in ((sWAVE, kvp[2:5]), (sSLOT, kvp[5:8])):
            i = 0
            while i < 3:
                n_ = 1
                while i + n_ < 3 and ps[i + n_] == ps[i] + n_: n_ += 1
                I(f"s_bfe_u32 s{sT0}, s{src}, {i | (n_ << 16):#x}")
                I(f"s_lshl_b32 s{sT0}, s{sT0}, {ps[i]}")
                I(f"s_add_u32 s{sKV}, s{sKV}, s{sT0}")
                i += n_
    KVO = [0, 4096, 16384, 20480] if near >= 0 else [(t & 1) * kvp[0] ^ (t >> 1) * kvp[1] for t in range(4)]
    I(f"s_lshr_b32 s{sQS}, s{sSLOT}, 3")
    I(f"s_lshl_b32 s{sQS}, s{sQS}, 11")
    if q2:
        I(f"s_lshl_b32 s{sQS}, s{sSLOT}, 8")
    else:
        I(f"s_and_b32 s{sT1}, s{sSLOT}, 3")
        I(f"s_lshl_b32 s{sT0}, s{sT1}, 9")
        I(f"s_add_u32 s{sQS}, s{sQS}, s{sT0}")
        I(f"s_and_b32 s{sT0}, s{sSLOT}, 4")
        I(f"s_lshl_b32 s{sT0}, s{sT0}, 6")
        I(f"s_add_u32 s{sQS}, s{sQS}, s{sT0}")
    I(f"s_add_u32 s{sQS}, s{sQS}, {QOFF}")
    vW0, vW1, ta0, ta1 = T + 44, T + 45, T + 42, T + 43
    XQ, ACC, BUF = 28, 48, 80
    sBa, sEa, sPER, sRING, sSO, sMB, sRS_ = 86, 87, 90, 91, 92, 93, 94
    xq = T + 12
    I(f"s_and_b32 s{sT0}, s{sSLOT}, 3")
    I(f"s_mul_i32 s{sT0}, s{sT0}, 5")
    I(f"s_lshr_b32 s{sT1}, s{sSLOT}, 1")
    I(f"s_xor_b32 s{sT1}, s{sT1}, s{sWAVE}")
    I(f"s_bitcmp1_b32 s{sT1}, 1")
    I(f"s_cselect_b32 s{sT1}, {rot2}, 0")
    I(f"s_add_u32 s{sT1}, s{sT0}, s{sT1}")
    I(f"s_lshr_b32 s{sT0}, s{sSLOT}, 3")
    if near < 0: I(f"s_mov_b32 s{sT0}, s97")
    I(f"s_lshl_b32 s{sT0}, s{sT0}, 8")
    I(f"s_lshl_b32 s{sT2}, s{sWAVE}, 6")
    I(f"s_add_u32 s{sBa}, s{sT0}, s{sT2}")
    I(f"s_add_u32 s{sEa}, s{sBa}, {20 << 18:#x}")
    I(f"s_lshl_b32 s{sT2}, s{sT1}, 18")
    I(f"s_add_u32 s{sSO}, s{sBa}, s{sT2}")
    if q2:
        I(f"s_bfe_u32 s{sT2}, s{sSLOT}, 0x20001")
        I(f"s_cmp_gt_u32 s{sWAVE}, s{sT2}")
        I(f"s_subb_u32 s{sPER}, s{sWAVE}, 0")
        I(f"s_mul_i32 s{sPER}, s{sPER}, {RSL * 1024}")
        I(f"s_add_u32 s{sPER}, s{sPER}, {L_RING}")
        I(f"s_sub_u32 s{sRING}, s{sPER}, {RSL * 1024}")
        I(f"s_cmp_eq_u32 s{sWAVE}, s{sT2}")
        I(f"s_cselect_b32 s{sPER}, {L_PER}, s{sPER}")
        I(f"s_cselect_b32 s{sRING}, {L_PER}, s{sRING}")
    else:
        I(f"s_mul_i32 s{sPER}, s{sWAVE}, {NPER * 1024}")
        I(f"s_add_u32 s{sPER}, s{sPER}, {L_PER}")
        I(f"s_mul_i32 s{sRING}, s{sWAVE}, {NREST * 1024}")
        I(f"s_add_u32 s{sRING}, s{sRING}, {L_RING}")
    I(f"v_add_u32 v{t2}, s{sT1}, v{q4}")
    I(f"v_lshlrev_b32 v{t2}, 6, v{t2}")
    I(f"v_lshl_add_u32 v{t2}, v{g}, 4, v{t2}")
    for j in range(5):
        I(f"v_add_u32 v{xq+j}, {256*j}, v{t2}")
        I(f"v_subrev_u32 v{t3}, {1280 - 256*j}, v{t2}")
        I(f"v_min_u32 v{xq+j}, v{xq+j}, v{t3}")
    I(f"v_lshrrev_b32 v{vW0}, 2, v{vLANE}")
    I(f"v_lshlrev_b32 v{vW0}, 13, v{vW0}")
    I(f"v_lshrrev_b32 v{t3}, 4, v{vLANE}")
    I(f"v_and_b32 v{t3}, 2, v{t3}")
    I(f"v_xor_b32 v{t3}, v{t3}, v{c4}")
    I(f"v_lshl_add_u32 v{vW0}, v{t3}, 4, v{vW0}")
    I(f"v_add_u32 v{vW1}, {1 << 17:#x}, v{vW0}")
    I(f"v_lshlrev_b32 v{t0}, 4, v{vLANE}")
    cl = T + 8
    for i in range(4):
        I(f"v_mov_b32 v{cl+i}, -1")
    I(f"s_mov_b32 s{sTSI}, 0")
    if instr:
        I(f"v_mov_b32 v{vTSI}, -1")
        I(f"v_mov_b32 v{vTST}, 0")
    I(f"s_getreg_b32 s{sXCC}, hwreg(HW_REG_XCC_ID)")
    I(f"s_and_b32 s{sXCC}, s{sXCC}, 15")
    I(f"s_mul_i32 s{sT3}, s2, 3072")
    if instr: I("s_memrealtime s[0:1]")
    I("s_waitcnt lgkmcnt(0)")
    if instr:
        I(f"v_writelane_b32 v{vTSI}, 41, 0")
        I(f"v_writelane_b32 v{vTST}, s98, 0")
        I(f"v_writelane_b32 v{vTSI}, 42, 1")
        I(f"v_writelane_b32 v{vTST}, s0, 1")
        I(f"s_mov_b32 s{sTSI}, 2")
        TS(43)
    srd(WS, 56, WS_SIZE)
    srd(K_SRD, 34, 32 << 20)
    if dbgt:
        I(f"v_mov_b32 v{vTST}, 0")
        I(f"v_writelane_b32 v{vTST}, s96, 1")
        I("s_not_b32 s96, s96")
        I(f"v_writelane_b32 v{vTST}, s96, 0")
        I(f"s_mov_b32 s{sIT}, 0")
        TS(40)
    srd(TA, 38, 640 * 8192)
    srd(TB, 32, 1280)

    def k_issue(lo, hi, hook=None):
        for ki in range(lo, hi):
            if hook: hook(ki)
            if sm and kl == 1:
                if ki % 4 == 0 or ki == lo:
                    I(f"s_xor_b32 s{sT0}, s{sKV}, {KVO[ki//4]}")
                I(f"buffer_load_dwordx4 {vr(vK+4*ki)}, v{aK}, {K_SRD}, s{sT0} offen offset:{((ki>>1)&1)*2048+(ki&1)*128} {kvflags}")
                continue
            if sm and kl != 2:
                I(f"buffer_load_dwordx4 {vr(vK+4*ki)}, v{aK}, {K_SRD}, s{sKV} offen offset:{(ki>>1)*512+(ki&1)*128} {kvflags}")
                continue
            if ki % 4 == 0 or ki == lo:
                I(f"s_xor_b32 s{sT0}, s{sKV}, {KVO[ki//4]}")
            I(f"buffer_load_dwordx4 {vr(vK+4*ki)}, v{aK}, {K_SRD}, s{sT0} offen offset:{(ki%4)*1024} {kvflags}")

    I(f"s_cmp_eq_u32 s{sWAVE}, 6")
    I("s_cbranch_scc0 L_nclr")
    I(f"buffer_store_dwordx4 {vr(cl)}, v{t0}, {WS}, s{sT3} offen sc1")
    I(f"buffer_store_dwordx4 {vr(cl)}, v{t0}, {WS}, s{sT3} offen offset:1024 sc1")
    I(f"buffer_store_dwordx4 {vr(cl)}, v{t0}, {WS}, s{sT3} offen offset:2048 sc1")
    TS(0)
    I("s_branch L_early")
    a.label("L_nclr")
    I(f"s_cmp_ge_u32 s{sWAVE}, 4")
    I("s_cbranch_scc1 L_nwq")
    if prio: I(f"s_setprio {qp}")
    nis = [0]; nk = [0]; wpos = {}
    def slot(p):
        if q2: return (sPER if p < RSL else sRING), p * 1024
        if p < NPER: return sPER, p * 1024
        return sRING, ((p - NPER) % NREST) * 1024
    def w_issue(lo, hi):
        for p in range(lo, hi):
            u, h = p >> 1, p & 1
            b_, o_ = slot(p)
            I(f"s_add_u32 m0, s{b_}, {o_}")
            if fakeq and p == fakeq:
                I(f"v_mov_b32 v{vW0}, {BIG:#x}")
                I(f"v_mov_b32 v{vW1}, {BIG:#x}")
            I(f"buffer_load_dwordx4 v{(vW0, vW1)[h]}, {TA}, s{sSO} offen {wflags} lds")
            wpos[p] = nis[0]
            nis[0] += 1
            if h and p < 39:
                I(f"s_add_u32 s{sSO}, s{sSO}, {1 << 18:#x}")
                I(f"s_cmp_eq_u32 s{sSO}, s{sEa}")
                I(f"s_cselect_b32 s{sSO}, s{sBa}, s{sSO}")
    for j in range(5):
        I(f"buffer_load_dwordx4 {vr(XQ+4*j)}, v{xq+j}, {TB}, 0 offen")
        nis[0] += 1
    w_issue(0, nw0)
    TS(0)
    I("s_branch L_early")
    a.label("L_nwq")
    if pt:
        k_issue(0, 1)
        I(f"v_lshlrev_b32 v{t2}, 21, v{vLANE}")
        setexec(0x7, 0)
        I(f"s_cmp_eq_u32 s{sWAVE}, 4")
        I("s_cbranch_scc0 L_pt5")
        srd(TA, 36, 32 << 20)
        setexec(1, 0)
        I(f"buffer_load_dword v{vV}, v{t2}, {TA}, s{sKV} offen")
        I("s_branch L_ptd")
        a.label("L_pt5")
        I(f"s_cmp_lt_u32 s{sR}, {ptr_}")
        I("s_cbranch_scc0 L_ptd")
        I(f"s_cmp_eq_u32 s{sWAVE}, 5")
        I("s_cbranch_scc0 L_pt7")
        for ptr, size in ((40, 4096 * 1280), (44, 640 * 3456), (48, 1728 * 1280)):
            srd(TA, ptr, size)
            I(f"buffer_load_dword v{vV}, v{t2}, {TA}, 0 offen")
        I("s_branch L_ptd")
        a.label("L_pt7")
        for ptr, size in ((52, 1280), (50, 1280), (46, 3456)) + (((54, 256),) if pt > 1 else ()):
            srd(TA, ptr, size)
            I(f"buffer_load_dword v{vV}, v{t2}, {TA}, 0 offen")
        a.label("L_ptd")
        setexec(0xFFFFFFFF, 0xFFFFFFFF)
        k_issue(1, n0)
    else:
        k_issue(0, n0)
    TS(0)
    a.label("L_early")
    srd(V_SRD, 36, 32 << 20)
    srd(OUTS, 52, 1280)
    I(f"s_mov_b32 s{sIT}, 0")
    I(f"s_mov_b32 s{sREG}, 0")
    I(f"s_mov_b32 s{sREG2}, {CP}")
    I(f"s_mov_b32 s{sSPIN}, 0")
    I(f"s_mov_b32 s{sPURE}, 0")
    I(f"s_mov_b32 s{sNEAR}, 0")
    I(f"s_mov_b32 s{sL2E}, {L2E:#x}")
    I(f"s_lshr_b32 s{sLATE}, {late:#x}, s{sWAVE}")
    I(f"s_and_b32 s{sLATE}, s{sLATE}, 1")
    I(f"s_mov_b32 s{sROLE}, 3")
    if not dyn:
        I(f"s_mul_i32 s{sTB}, s{sX}, 7")
        I(f"s_cmp_eq_u32 s{sX}, 7")
        I(f"s_cselect_b32 s{sT0}, 21, 20")
        I(f"s_sub_u32 s{sTB}, s{sTB}, s{sT0}")
        I(f"s_add_u32 s{sTB}, s{sTB}, s{sR}")
        I(f"s_cmp_lt_u32 s{sX}, 6")
        I(f"s_cselect_b32 s{sT0}, 27, 26")
        I(f"s_cmp_lt_u32 s{sR}, s{sT0}")
        I(f"s_cselect_b32 s{sROLE}, 1, s{sROLE}")
    I(f"s_cmp_lt_u32 s{sR}, 20")
    I(f"s_cselect_b32 s{sROLE}, 0, s{sROLE}")
    I(f"s_cselect_b32 s{sLATE}, s{sLATE}, 0")
    for i in [1] + list(range(2 if q2 else 3, 18)):
        I(f"v_mov_b32 v{i}, {BIG:#x}")

    def v_issue():
        k1, k2, k3 = T + 49, T + 50, T + 51
        I(f"v_lshrrev_b32 v{k1}, 4, v{vLANE}")
        I(f"v_bfe_u32 v{k3}, v{vLANE}, 3, 1")
        if sm: I(f"v_lshl_add_u32 v{k3}, v{k1}, 1, v{k3}")
        else: I(f"v_lshl_add_u32 v{k3}, v{k3}, 3, v{k1}")
        I(f"v_lshlrev_b32 v{k3}, 8, v{k3}")
        I(f"v_and_b32 v{k2}, 7, v{vLANE}")
        I(f"v_lshl_add_u32 v{k3}, v{k2}, 4, v{k3}")
        def ticket():
            I(f"s_cmp_eq_u32 s{sWAVE}, {tw}")
            I("s_cbranch_scc0 L_ntk")
            I(f"s_cmp_eq_u32 s{sROLE}, 0")
            I("s_cbranch_scc1 L_ntk")
            srd(TA, 54, 256)
            I(f"v_mov_b32 v{vRDMA}, 1")
            setexec(1, 0)
            I(f"buffer_atomic_add v{vRDMA}, off, {TA}, 0 sc0 sc1")
            setexec(0xFFFFFFFF, 0xFFFFFFFF)
            a.label("L_ntk")
        for j in range(17):
            if dyn and j == tp: ticket()
            if j == 16: break
            if j % 4 == 0:
                I(f"s_xor_b32 s{sT0}, s{sKV}, {KVO[j//4]}")
            u, hf = (j >> 1) & 1, j & 1
            if sm: u, hf = 2 * hf, u
            I(f"buffer_load_dwordx4 {vr(vV+4*j)}, v{k3}, {V_SRD}, s{sT0} offen offset:{u*1024+hf*128} {kvflags}")

    def role_dma(lb=None, ne=8):
        if lb is None:
            I(f"s_lshl_b32 s{sT1}, s{sWAVE}, 13")
            I(f"s_add_u32 s{sT1}, s{sT1}, {L_ROLE}")
        else:
            I(f"s_mov_b32 s{sT1}, s{lb}")
        I(f"s_mov_b32 s{sT0}, s{sRB}")
        for e in range(ne):
            if e % 4 == 0:
                I(f"s_mov_b32 m0, s{sT1}")
                if e == 0:
                    I(f"s_add_u32 s{sT1}, s{sT1}, 4096")
            I(f"s_cmp_gt_u32 s{sRN}, {e}")
            I(f"s_cselect_b32 s{sT2}, s{sT0}, {BIG:#x}")
            I(f"buffer_load_dwordx4 v{vRDMA}, {TB}, s{sT2} offen offset:{(e%4)*1024} {rflags} lds")
            if e < 7:
                I(f"s_add_u32 s{sT0}, s{sT0}, s{sRSTEP}")
                if e % 4 == 3:
                    I(f"s_add_u32 s{sT0}, s{sT0}, 3072")
                else:
                    I(f"s_sub_u32 s{sT0}, s{sT0}, 1024")

    def rank_off(dst, rk, tmp):
        I(f"s_and_b32 s{tmp}, s{rk}, {(1 << ZB) - 1}")
        I(f"s_mul_i32 s{tmp}, s{tmp}, {ZR}")
        I(f"s_lshr_b32 s{dst}, s{rk}, {ZB}")
        I(f"s_lshl_b32 s{dst}, s{dst}, 14")
        I(f"s_add_u32 s{dst}, s{dst}, s{tmp}")

    I(f"s_cmp_ge_u32 s{sWAVE}, 5")
    I("s_cbranch_scc1 L_init567")
    I(f"v_bfe_u32 v{t0}, v{vLANE}, 3, 1")
    I(f"v_and_b32 v{t1}, 7, v{vLANE}")
    I(f"s_lshl_b32 s{sT1}, s{sWAVE}, 2")
    rank_off(sT0, sT1, sT2)
    I(f"v_mul_u32_u24 v{vGO}, {ZR}, v{t0}")
    I(f"v_mul_u32_u24 v{t1}, {ZX}, v{t1}")
    I(f"v_add3_u32 v{vGO}, v{vGO}, v{t1}, s{sT0}")
    I(f"v_lshl_add_u32 v{vGO}, v{g}, 4, v{vGO}")
    if q2:
        I(f"s_and_b32 s{sT0}, s{sSLOT}, 3")
        I(f"s_mul_i32 s{sT0}, s{sT0}, 5")
        I(f"s_lshl_b32 s{sT1}, s{sWAVE}, 2")
        I(f"s_add_u32 s{sT0}, s{sT0}, s{sT1}")
        I(f"s_lshl_b32 s{sT0}, s{sT0}, 6")
        I(f"v_and_b32 v{t0}, 1, v{q4}")
        I(f"v_lshlrev_b32 v{t0}, 7, v{t0}")
        I(f"v_lshl_add_u32 v{t0}, v{g}, 5, v{t0}")
        I(f"v_lshrrev_b32 v{t1}, 2, v{vLANE}")
        I(f"v_or_b32 v{t1}, v{t1}, v{vLANE}")
        I(f"v_and_b32 v{t1}, 2, v{t1}")
        I(f"v_lshl_add_u32 v{t0}, v{t1}, 3, v{t0}")
        I(f"v_add_u32 v{t0}, s{sT0}, v{t0}")
        I(f"v_subrev_u32 v{t1}, 1280, v{t0}")
        I(f"v_min_u32 v{vXO}, v{t0}, v{t1}")
        I(f"s_mul_i32 s{sT0}, s{sWAVE}, {PP}")
        I(f"v_lshlrev_b32 v{t2}, 3, v{g}")
        I(f"v_add_u32 v{t2}, s{sT0}, v{t2}")
        I(f"v_lshl_add_u32 v{vPQ}, v{n}, 4, v{t2}")
        I(f"v_add_u32 v{t2}, {L_PB1 + 512}, v{t2}")
        I(f"v_lshlrev_b32 v{t3}, 3, v{vLANE}")
        I(f"v_add_u32 v{t3}, {L_DUM}, v{t3}")
        I(f"v_lshlrev_b32 v{t0}, 2, v{g}")
        I(f"v_cmp_eq_u32 vcc, v{n}, v{t0}")
        I(f"v_cndmask_b32 v{vSW}, v{t3}, v{t2}, vcc")
        I("s_branch L_initc")
    I(f"s_mul_i32 s{sT0}, s{sWAVE}, {PP}")
    I(f"s_add_u32 s{sT0}, s{sT0}, {L_PB1 + 512}")
    I(f"v_lshlrev_b32 v{t2}, 2, v{g}")
    I(f"v_add_u32 v{t2}, s{sT0}, v{t2}")
    I(f"v_lshlrev_b32 v{t3}, 2, v{vLANE}")
    I(f"v_add_u32 v{t3}, {L_DUM}, v{t3}")
    I(f"v_cmp_eq_u32 vcc, v{q4}, v{g}")
    I(f"v_cndmask_b32 v{vSW}, v{t3}, v{t2}, vcc")
    I(f"s_mul_i32 s{sT0}, s{sWAVE}, {PP}")
    I(f"v_lshlrev_b32 v{vPQ}, 4, v{g}")
    I(f"v_add_u32 v{vPQ}, s{sT0}, v{vPQ}")
    I(f"s_and_b32 s{sT0}, s{sSLOT}, 3")
    I(f"s_lshl_b32 s{sT0}, s{sT0}, 2")
    I(f"s_lshl_b32 s{sKM}, 0x00010001, s{sT0}")
    I(f"s_mov_b32 s{sKM+1}, s{sKM}")
    I("s_branch L_initc")

    a.label("L_init567")
    I(f"s_cmp_eq_u32 s{sWAVE}, 6")
    I("s_cbranch_scc1 L_initc")
    I(f"s_cmp_eq_u32 s{sWAVE}, 7")
    I("s_cbranch_scc1 L_init7")
    rank_off(sT0, sR, sT1)
    I(f"s_mul_i32 s{sT1}, s{sX}, {ZX}")
    I(f"s_add_u32 s{sT0}, s{sT0}, s{sT1}")
    I(f"s_add_u32 s{sRB}, s{sT0}, {ZOFF}")
    I(f"v_lshlrev_b32 v{vRR}, 4, v{vLANE}")
    if q2:
        I(f"s_and_b32 s{sT0}, s{sQS}, {~2047 & 0xffffffff:#x}")
        I(f"s_and_b32 s{sT1}, s{sSLOT}, 6")
        I(f"s_lshl_b32 s{sT1}, s{sT1}, 5")
        I(f"s_add_u32 s{sT0}, s{sT0}, s{sT1}")
        I(f"s_and_b32 s{sT1}, s{sSLOT}, 1")
        I(f"s_lshl_b32 s{sT1}, s{sT1}, 3")
        I(f"s_add_u32 s{sT0}, s{sT0}, s{sT1}")
        I(f"v_lshlrev_b32 v{vQP}, 9, v{g}")
        I(f"v_and_b32 v{t0}, 1, v{vLANE}")
        I(f"v_lshl_add_u32 v{vQP}, v{t0}, 8, v{vQP}")
        I(f"v_and_b32 v{t0}, 2, v{vLANE}")
        I(f"v_lshl_add_u32 v{vQP}, v{t0}, 4, v{vQP}")
        I(f"v_and_b32 v{t0}, 8, v{vLANE}")
        I(f"v_lshl_add_u32 v{vQP}, v{t0}, 1, v{vQP}")
        I(f"v_and_b32 v{t0}, 4, v{vLANE}")
        I(f"v_add3_u32 v{vQP}, v{vQP}, v{t0}, s{sT0}")
        I(f"v_lshlrev_b32 v{vQG}, 4, v{n}")
        I(f"v_lshlrev_b32 v{vCSQ}, 3, v{c4}")
    else:
        I(f"v_lshlrev_b32 v{vQP}, 2, v{vLANE}")
        I(f"v_add_u32 v{vQP}, s{sQS}, v{vQP}")
        I(f"s_and_b32 s{sT0}, s{sQS}, {~2047 & 0xffffffff:#x}")
        I(f"v_lshlrev_b32 v{vQG}, 3, v{vLANE}")
        I(f"v_add_u32 v{vQG}, s{sT0}, v{vQG}")
    I(f"v_mov_b32 v{t0}, 0")
    I(f"v_mov_b32 v{t1}, 0")
    I(f"v_mov_b32 v{t2}, {L_FLAG}")
    I(f"ds_write_b64 v{t2}, v[{t0}:{t1}] offset:8")
    if emd: I(f"ds_write_b32 v{t2}, v{t0} offset:4")
    I(f"v_and_b32 v{t2}, 31, v{vLANE}")
    I(f"v_lshlrev_b32 v{t2}, 1, v{t2}")
    I(f"s_or_b32 s{sT2}, s{sROLE}, s{sX}")
    I(f"s_lshl_b32 s{sT1}, s{sR}, 6")
    I(f"s_cmp_eq_u32 s{sT2}, 0")
    I(f"s_cselect_b32 s{sT1}, s{sT1}, {BIG:#x}")
    I(f"buffer_load_ushort v{vXF}, v{t2}, {TB}, s{sT1} offen")
    I(f"v_lshrrev_b32 v{t1}, 3, v{vLANE}")
    I(f"v_lshlrev_b32 v{t1}, 4, v{t1}")
    I(f"v_add_u32 v{vRP}, s{sRB}, v{t1}")
    I(f"v_and_b32 v{t1}, 31, v{vLANE}")
    I(f"v_lshlrev_b32 v{t1}, 1, v{t1}")
    I(f"s_or_b32 s{sT2}, s{sROLE}, s{sX}")
    I(f"s_lshl_b32 s{sT1}, s{sR}, 6")
    I(f"s_add_u32 s{sT1}, s{sT1}, {XOFF}")
    I(f"s_cmp_eq_u32 s{sT2}, 0")
    I(f"s_cselect_b32 s{sT1}, s{sT1}, {BIG:#x}")
    I(f"v_add_u32 v{vXFA}, s{sT1}, v{t1}")
    I("s_branch L_initc")

    a.label("L_init7")
    I(f"v_lshlrev_b32 v{vCR}, 3, v{vLANE}")
    I(f"v_add_u32 v{vCR}, {L_O}, v{vCR}")
    I(f"v_and_b32 v{t0}, 7, v{vLANE}")
    I(f"v_lshlrev_b32 v{vCML}, 3, v{t0}")
    I(f"v_add_u32 v{vCML}, {L_ML}, v{vCML}")
    I(f"s_lshr_b32 s{sT0}, s{sSLOT}, 3")
    I(f"s_lshl_b32 s{sT1}, s{sT0}, 11")
    I(f"s_and_b32 s{sT2}, s{sSLOT}, 7")
    I(f"s_lshl_b32 s{sT3}, s{sT2}, 4")
    I(f"s_add_u32 s{sT1}, s{sT1}, s{sT3}")
    I(f"v_lshrrev_b32 v{t0}, 5, v{vLANE}")
    I(f"v_lshlrev_b32 v{vCP}, 10, v{t0}")
    I(f"v_lshl_add_u32 v{vCP}, v{q4}, 8, v{vCP}")
    I(f"v_and_b32 v{t0}, 1, v{g}")
    I(f"v_lshl_add_u32 v{vCP}, v{t0}, 7, v{vCP}")
    I(f"v_lshl_add_u32 v{vCP}, v{c4}, 2, v{vCP}")
    I(f"v_add_u32 v{vCP}, s{sT1}, v{vCP}")
    I(f"s_lshl_b32 s{sT0}, s{sT0}, 7")
    I(f"s_lshl_b32 s{sT2}, s{sT2}, 3")
    I(f"s_add_u32 s{sT0}, s{sT0}, s{sT2}")
    I(f"s_add_u32 s{sT0}, s{sT0}, {MLOFF}")
    I(f"v_mov_b32 v{vCPM}, s{sT0}")
    I(f"s_and_b32 s{sT0}, s{sQS}, {~2047 & 0xffffffff:#x}")
    I(f"v_lshlrev_b32 v{vQG7}, 3, v{vLANE}")
    I(f"v_add_u32 v{vQG7}, s{sT0}, v{vQG7}")

    a.label("L_initc")
    I(f"s_mov_b32 s{sRN}, 0")
    I(f"s_mov_b32 s{sRB}, 0")
    I(f"s_mov_b32 s{sRSTEP}, 0")
    srd(TB, 40, 4096 * 1280)
    I(f"v_lshrrev_b32 v{t0}, 2, v{vLANE}")
    I(f"v_lshlrev_b32 v{t1}, 4, v{c4}")
    I(f"s_cmp_eq_u32 s{sROLE}, 0")
    I("s_cbranch_scc0 L_rpd")
    I(f"s_lshl_b32 s{sT0}, s{sXW}, 3")
    I(f"s_add_u32 s{sT0}, s{sT0}, s{sWAVE}")
    I(f"s_lshr_b32 s{sT0}, s{sT0}, 1")
    hperm(sT0, sT0, sT1)
    I(f"s_lshl_b32 s{sT0}, s{sT0}, 1")
    I(f"s_and_b32 s{sT1}, s{sWAVE}, 1")
    I(f"s_add_u32 s{sT0}, s{sT0}, s{sT1}")
    I(f"s_mul_i32 s{sT0}, s{sT0}, {64*1280}")
    I(f"s_lshl_b32 s{sT1}, s{sR}, 6")
    I(f"s_add_u32 s{sRB}, s{sT0}, s{sT1}")
    I(f"s_mov_b32 s{sRSTEP}, {16*1280}")
    I(f"s_mov_b32 s{sRN}, 4")
    I(f"v_mul_u32_u24 v{vRDMA}, 1280, v{t0}")
    I(f"v_add_u32 v{vRDMA}, v{vRDMA}, v{t1}")
    I(f"s_lshr_b32 s{sT0}, s{sWAVE}, 1")
    I(f"s_lshl_b32 s{sT1}, s{sXW}, 2")
    I(f"s_add_u32 s{sT0}, s{sT0}, s{sT1}")
    I(f"s_lshl_b32 s{sT1}, s{sXW}, 3")
    I(f"s_add_u32 s{sT1}, s{sT1}, s{sWAVE}")
    I(f"s_lshl_b32 s{sT1}, s{sT1}, 10")
    I(f"v_lshlrev_b32 v{t2}, 4, v{vLANE}")
    I(f"v_add_u32 v{vA0}, s{sT1}, v{t2}")
    I(f"v_xor_b32 v{t2}, v{g}, v{q4}")
    I(f"v_and_b32 v{t2}, 1, v{t2}")
    I(f"v_lshl_add_u32 v{t2}, v{t2}, 2, v{c4}")
    I(f"v_lshlrev_b32 v{t2}, 3, v{t2}")
    I(f"s_lshl_b32 s{sT0}, s{sT0}, 7")
    I(f"s_add_u32 s{sT0}, s{sT0}, {MLOFF}")
    I(f"v_add_u32 v{vA2}, s{sT0}, v{t2}")
    a.label("L_rpd")

    I(f"s_mul_i32 s{sT0}, s{sWAVE}, {PP}")
    I(f"v_lshlrev_b32 v{vPW}, 4, v{n}")
    I(f"v_lshl_add_u32 v{vPW}, v{g}, 2, v{vPW}")
    I(f"v_add_u32 v{vPW}, s{sT0}, v{vPW}")
    I(f"v_lshl_add_u32 v{vQR}, v{g}, 2, v{c4}")
    I(f"v_lshlrev_b32 v{vQR}, 4, v{vQR}")
    I(f"v_add_u32 v{vQR}, {L_QB}, v{vQR}")
    I(f"s_lshl_b32 s{sT0}, s{sWAVE}, 10")
    I(f"s_add_u32 s{sT0}, s{sT0}, {L_O}")
    I(f"v_bfe_u32 v{t0}, v{vLANE}, 3, 1")
    I(f"v_lshlrev_b32 v{vOW}, 9, v{t0}")
    I(f"v_and_b32 v{t0}, 7, v{vLANE}")
    I(f"v_lshl_add_u32 v{vOW}, v{t0}, 5, v{vOW}")
    I(f"v_and_b32 v{t1}, 1, v{g}")
    I(f"v_lshl_add_u32 v{vOW}, v{t1}, 4, v{vOW}")
    I(f"v_add_u32 v{vOW}, s{sT0}, v{vOW}")
    I(f"s_lshl_b32 s{sT0}, s{sWAVE}, 3")
    I(f"s_add_u32 s{sT0}, s{sT0}, {L_ML}")
    I(f"v_lshlrev_b32 v{vMLW}, 3, v{vLANE}")
    I(f"v_add_u32 v{vMLW}, {L_DUM}, v{vMLW}")
    I(f"v_writelane_b32 v{vMLW}, s{sT0}, 63")
    if sm:
        I(f"v_and_b32 v{t0}, 4, v{vLANE}")
        I(f"v_cmp_eq_u32 vcc, 0, v{t0}")
        I(f"v_mov_b32 v{t1}, 0xffff")
        I(f"v_mov_b32 v{t2}, 0xffff0000")
        I(f"v_cndmask_b32 v{vSEL}, 0, v{t1}, vcc")
        I(f"v_cndmask_b32 v{vSEL+2}, 0, v{t2}, vcc")
        I(f"v_xor_b32 v{vSEL+1}, v{vSEL}, v{t1}")
        I(f"v_xor_b32 v{vSEL+3}, v{vSEL+2}, v{t2}")
        I(f"v_mul_u32_u24 v{t0}, 0x5555, v{c4}")
        I(f"v_and_b32 v{t1}, 2, v{vLANE}")
        I(f"v_mul_u32_u24 v{t1}, 0x5555, v{t1}")
        I(f"v_or_b32 v{t1}, 0x4444, v{t1}")
        I(f"v_lshl_or_b32 v{vSEL+4}, v{t0}, 16, v{t1}")
    for u in range(0 if sm else 2):
        for r in range(4):
            sb = 0x0100 if u == (r >> 1) else 0x0302
            d = vSEL + u * 4 + r
            I(f"v_mov_b32 v{d}, 0x0c0c0c0c")
            I(f"v_mov_b32 v{t1}, {0x0c0c0000 | sb:#x}")
            I(f"v_mov_b32 v{t2}, {(sb << 16) | 0x0c0c:#x}")
            I(f"v_cmp_eq_u32 vcc, {2*r}, v{t0}")
            I(f"v_cndmask_b32 v{d}, v{d}, v{t1}, vcc")
            I(f"v_cmp_eq_u32 vcc, {2*r+1}, v{t0}")
            I(f"v_cndmask_b32 v{d}, v{d}, v{t2}, vcc")

    def tr_addr(dst, pitch, base_s, x0=T + 48):
        x1 = x0 + 1
        I(f"v_lshrrev_b32 v{x0}, 4, v{vLANE}")
        I(f"v_bfe_u32 v{x1}, v{vLANE}, 2, 2")
        I(f"v_lshl_add_u32 v{x0}, v{x0}, 3, v{x1}")
        I(f"v_lshlrev_b32 v{x0}, {pitch.bit_length()-1}, v{x0}")
        I(f"v_and_b32 v{x1}, 3, v{vLANE}")
        I(f"v_lshl_add_u32 v{x0}, v{x1}, 3, v{x0}")
        I(f"v_add_u32 v{dst}, s{base_s}, v{x0}")

    def ones():
        for i in range(4):
            I(f"v_mov_b32 v{ONES+i}, 0x3f803f80")

    def gemv(ntile, Bbase, bidx):
        S1, S2 = T + 16, T + 20
        A0_, A1_ = vr(XA), vr(XA + 4)
        I(f"v_mfma_f32_16x16x32_bf16 {vr(S2)}, {A0_}, {A0_}, 0")
        I(f"v_mfma_f32_16x16x32_bf16 {vr(S2)}, {A1_}, {A1_}, {vr(S2)}")
        I(f"v_mfma_f32_16x16x32_bf16 {vr(S1)}, {A0_}, {vr(ONES)}, 0")
        I(f"v_mfma_f32_16x16x32_bf16 {vr(S1)}, {A1_}, {vr(ONES)}, {vr(S1)}")
        post = [
            f"v_pk_add_f32 v[{S2}:{S2+1}], v[{S2}:{S2+1}], v[{S2+2}:{S2+3}]",
            f"v_add_f32 v{S2}, v{S2}, v{S2+1}",
            f"v_add_f32_dpp v{S2}, v{S2}, v{S2} quad_perm:[1,0,3,2] row_mask:0xf bank_mask:0xf",
            f"v_pk_add_f32 v[{S1}:{S1+1}], v[{S1}:{S1+1}], v[{S1+2}:{S1+3}]",
            f"v_add_f32_dpp v{S2}, v{S2}, v{S2} quad_perm:[2,3,0,1] row_mask:0xf bank_mask:0xf",
            f"v_add_f32 v{S1}, v{S1}, v{S1+1}",
            f"v_add_f32_dpp v{S2}, v{S2}, v{S2} row_half_mirror row_mask:0xf bank_mask:0xf",
            f"ds_write2_b32 v{vSW}, v{S1}, v{S2} offset0:0 offset1:4",
        ]
        def dpost(t):
            D = T + 8 * t
            return [f"v_pk_add_f32 v[{D}:{D+1}], v[{D}:{D+1}], v[{D+2}:{D+3}]",
                    f"v_pk_add_f32 v[{D+4}:{D+5}], v[{D+4}:{D+5}], v[{D+6}:{D+7}]",
                    f"v_add_f32 v{D}, v{D}, v{D+1}",
                    f"v_add_f32_dpp v{D}, v{D+4}, v{D+5} quad_perm:[0,1,2,3] row_mask:0xc bank_mask:0xf",
                    f"ds_write_b32 v{vPW}, v{D} offset:{L_PB1 + t*256}"]
        for t in range(ntile):
            post += dpost(t)
        k = 0
        for t in range(ntile):
            for j in range(2):
                D = T + 8 * t + 4 * j
                for h in range(2):
                    I(f"v_mfma_f32_16x16x32_bf16 {vr(D)}, {(A0_, A1_)[h]}, {vr(Bbase+4*bidx(2*h+j,t))}, {vr(D) if h else '0'}")
                    k += 1
                    if k >= 5 and k < 4 * ntile:
                        for x in post[:2]: I(x)
                        post = post[2:]
        for x in post: I(x)
        I("s_waitcnt lgkmcnt(0)")

    def gemv_q(first=False):
        S1, S2 = T + 16, T + 20
        for t in range(4):
            I(f"v_mfma_f32_16x16x32_bf16 {vr(T+4*t)}, {vr(vBQ+4*t)}, {vr(XA)}, 0")
        I(f"v_mfma_f32_16x16x32_bf16 {vr(S1)}, {vr(XA)}, {vr(ONES)}, 0")
        I(f"v_mfma_f32_16x16x32_bf16 {vr(S2)}, {vr(XA)}, {vr(XA)}, 0")
        if first:
            for t in range(4):
                I(f"v_mfma_f32_16x16x32_bf16 {vr(vRB+4*t)}, {vr(vBQ+4*t)}, {vr(ONES)}, 0")
        I(f"s_mov_b64 exec, s[{sKM}:{sKM+1}]")
        for t in range(4):
            I(f"ds_write_b128 v{vPQ}, {vr(T+4*t)} offset:{L_PB1 + t*64}")
        if first:
            for t in range(4):
                I(f"ds_write_b128 v{vPQ}, {vr(vRB+4*t)} offset:{L_PB1 + 256 + t*64}")
        I("s_mov_b64 exec, -1")
        I(f"ds_write2_b32 v{vSW}, v{S1}, v{S2} offset0:0 offset1:4")
        I("s_waitcnt lgkmcnt(0)")

    def gather(sreg):
        poll([f"buffer_load_dwordx4 {vr(XA)}, v{vGO}, {WS}, s{sreg} offen {zfl}",
              f"buffer_load_dwordx4 {vr(XA+4)}, v{vGO}, {WS}, s{sreg} offen offset:{2*ZR} {zfl}"],
             [XA, XA + 4], groups=[[XA], [XA + 4]], hop=2)

    def reduce_read(nw, base):
        for v in range(nw):
            I(f"ds_read_b128 {vr(T+4*v)}, v{vRR} offset:{base + v*PP}")

    def reduce_sum(nw, dst):
        np_ = 2 * nw
        idx = list(range(np_))
        while len(idx) > 1:
            nx = []
            for i in range(0, len(idx) - 1, 2):
                d, s = idx[i], idx[i + 1]
                I(f"v_pk_add_f32 v[{T+2*d}:{T+2*d+1}], v[{T+2*d}:{T+2*d+1}], v[{T+2*s}:{T+2*s+1}]")
                nx.append(d)
            if len(idx) % 2:
                nx.append(idx[-1])
            idx = nx
        I(f"v_add_f32 v{dst}, v{T}, v{T+1}")

    rTOT, rMEAN, rVAR, rMB, rSD, rR, rU, rT, rINV, rC1, rC2, rCS = [T + 32 + i for i in range(12)]

    def cs_read(area, dst):
        l = a.newlab("Lcs")
        I(f"s_cmp_eq_u32 s{sIT}, 0")
        I(f"s_cbranch_scc0 {l}")
        I(f"v_lshrrev_b32 v{rT}, 2, v{vRR}")
        for v in range(5):
            I(f"ds_read_b32 v{T+24+v}, v{rT} offset:{area + v*128}")
        I("s_waitcnt lgkmcnt(0)")
        I(f"v_add_f32 v{dst}, v{T+24}, v{T+25}")
        I(f"v_add_f32 v{rT}, v{T+26}, v{T+27}")
        I(f"v_add_f32 v{dst}, v{dst}, v{T+28}")
        I(f"v_add_f32 v{dst}, v{dst}, v{rT}")
        a.label(l)

    def stats(l0=32):
        if l0 is not None:
            I(f"v_readlane_b32 s{sT0}, v{rTOT}, {l0}")
            I(f"v_readlane_b32 s{sT1}, v{rTOT}, {l0+1}")
            I(f"v_mul_f32 v{rMEAN}, s{sT0}, v{rINV}")
            I(f"v_mul_f32 v{rVAR}, s{sT1}, v{rINV}")
        I(f"v_fma_f32 v{rVAR}, -v{rMEAN}, v{rMEAN}, v{rVAR}")
        I(f"v_max_f32 v{rVAR}, 0, v{rVAR}")
        I(f"v_cvt_pk_bf16_f32 v{rT}, v{rMEAN}, v{rVAR}")
        I(f"v_and_b32 v{rU}, 0xffff0000, v{rT}")
        I(f"v_lshlrev_b32 v{rMB}, 16, v{rT}")
        I(f"v_add_f32 v{rU}, {f2u(1e-5):#x}, v{rU}")
        I(f"v_cvt_pk_bf16_f32 v{rU}, v{rU}, v{rU}")
        I(f"v_and_b32 v{rU}, 0xffff0000, v{rU}")
        I(f"v_sqrt_f32 v{rU}, v{rU}")
        I(f"v_cvt_pk_bf16_f32 v{rU}, v{rU}, v{rU}")
        I(f"v_and_b32 v{rSD}, 0xffff0000, v{rU}")
        I(f"v_rcp_f32 v{rR}, v{rSD}")

    def pack_pairs(src, dst):
        I(f"v_mov_b32_dpp v{rT}, v{src} quad_perm:[1,0,3,2] row_mask:0xf bank_mask:0xf")
        I(f"v_cvt_pk_bf16_f32 v{dst}, v{src}, v{rT}")
        I(f"v_min_u32 v{dst}, 0xfffffffe, v{dst}")

    def q_reduce(first=False):
        qa, qs, QS = T + 44, T + 45, T + 20
        I(f"v_lshlrev_b32 v{qa}, 2, v{vLANE}")
        I(f"v_and_b32 v{qs}, 1, v{vLANE}")
        if sm:
            I(f"v_and_b32 v{T+46}, 0x34, v{vLANE}")
            I(f"v_lshl_add_u32 v{T+46}, v{qs}, 3, v{T+46}")
            I(f"v_bfe_u32 v{T+47}, v{vLANE}, 3, 1")
            I(f"v_lshl_add_u32 v{T+46}, v{T+47}, 1, v{T+46}")
            I(f"v_bfe_u32 v{T+47}, v{vLANE}, 1, 1")
            I(f"v_add_lshl_u32 v{T+46}, v{T+46}, v{T+47}, 2")
        I(f"v_lshlrev_b32 v{qs}, 4, v{qs}")
        return qa, qs, QS

    def q_reduce2(qa, qs, QS, first=False):
        for v in range(5):
            I(f"ds_read_b128 {vr(T+4*v)}, v{qs} offset:{L_PB1 + 512 + v*PP}")
        for v in range(5):
            I(f"ds_read_b32 v{QS+v}, v{qa} offset:{L_PB1 + v*PP}")
        if first:
            for v in range(5):
                I(f"ds_read_b32 v{QS+5+v}, v{qa} offset:{L_PB1 + 256 + v*PP}")
        I(f"s_waitcnt lgkmcnt({10 if first else 5})")
        reduce_sum(5, rTOT)
        stats(0)
        I("s_waitcnt lgkmcnt(0)")
        I(f"v_add_f32 v{QS}, v{QS}, v{QS+1}")
        I(f"v_add_f32 v{QS+2}, v{QS+2}, v{QS+3}")
        I(f"v_add_f32 v{QS}, v{QS}, v{QS+4}")
        I(f"v_add_f32 v{QS}, v{QS}, v{QS+2}")
        if first:
            I(f"v_add_f32 v{vCSQ}, v{QS+5}, v{QS+6}")
            I(f"v_add_f32 v{QS+7}, v{QS+7}, v{QS+8}")
            I(f"v_add_f32 v{vCSQ}, v{vCSQ}, v{QS+9}")
            I(f"v_add_f32 v{vCSQ}, v{vCSQ}, v{QS+7}")
        I(f"v_fma_f32 v{rU}, -v{rMB}, v{vCSQ}, v{QS}")
        I(f"v_mul_f32 v{rU}, v{rU}, v{rR}")
        I(f"v_min_u32 v{rU}, 0xfffffffe, v{rU}")

    def q_gather(va, qa):
        G_ = 60 if y128 else T
        poll([f"buffer_load_dwordx2 v[{G_+2*k}:{G_+2*k+1}], v{va}, {WS}, s{sREG} offen offset:{k*512} sc1" for k in range(4)],
             list(range(G_, G_ + 8)), groups=[[G_ + 2 * k, G_ + 2 * k + 1] for k in range(4)], hop=16 if y128 else 0)
        Z_ = T + 40 if zq else T
        I(f"v_pk_add_f32 v[{Z_}:{Z_+1}], v[{G_}:{G_+1}], v[{G_+2}:{G_+3}]")
        I(f"v_pk_add_f32 v[{Z_+2}:{Z_+3}], v[{G_+4}:{G_+5}], v[{G_+6}:{G_+7}]")
        I(f"v_pk_add_f32 v[{Z_}:{Z_+1}], v[{Z_}:{Z_+1}], v[{Z_+2}:{Z_+3}]")
        I(f"v_cvt_pk_bf16_f32 v{Z_}, v{Z_}, v{Z_+1}")
        I(f"ds_write_b32 v{T+46 if sm else qa}, v{Z_} offset:{L_QB}")

    def lds_wait(off, val, ge=False):
        lab = a.newlab("Lw"); done = a.newlab("Lwd")
        I(f"v_mov_b32 v{T+47}, {L_FLAG}")
        a.label(lab)
        I(f"ds_read_b32 v{T+46}, v{T+47} offset:{off}")
        I(f"s_add_u32 s{sSPIN}, s{sSPIN}, 1")
        I("s_waitcnt lgkmcnt(0)")
        I(f"v_readfirstlane_b32 s{sT3}, v{T+46}")
        I(f"s_cmp_{'ge' if ge else 'eq'}_u32 s{sT3}, {val}")
        I(f"s_cbranch_scc1 {done}")
        I(f"s_cmp_lt_u32 s{sSPIN}, {spin_limit}")
        I(f"s_cbranch_scc1 {lab}")
        a.label(done)

    def sp(p):
        if prio: I(f"s_setprio {p}")

    I(f"v_mov_b32 v{rINV}, {f2u(1.0/640):#x}")
    I("s_waitcnt lgkmcnt(0)")
    I("s_barrier")
    TS(1)
    I(f"s_cmp_ge_u32 s{sWAVE}, 4")
    I("s_cbranch_scc1 L_s4567")
    srd(TA, 38, 640 * 8192)
    w_issue(nw0, RSL)
    TS(37)
    tr_addr(ta0, 64, sPER, T + 25)
    I(f"s_sub_u32 s{sPER}, s{sRING}, s{sPER}")
    I(f"v_bfe_u32 v{T+25}, v{vLANE}, 4, 1")
    I(f"v_lshl_add_u32 v{ta0}, v{T+25}, 5, v{ta0}")
    I(f"v_xor_b32 v{ta1}, 32, v{ta0}")
    I(f"s_waitcnt vmcnt({nis[0] - 5})")
    setexec(0x22222222, 0x22222222)
    for i in range(20):
        I(f"v_mov_b32 v{XQ+i}, 0x3f803f80")
    setexec(0xFFFFFFFF, 0xFFFFFFFF)
    for j in range(5):
        I(f"v_mfma_f32_16x16x32_bf16 {vr(BUF)}, {vr(XQ+4*j)}, {vr(XQ+4*j)}, {vr(BUF) if j else '0'}")
    for i in range(4):
        I(f"v_readlane_b32 s{sF+i}, v{BUF}, {20*i+1}")
        I(f"v_readlane_b32 s{sF+4+i}, v{BUF}, {20*i}")
    I(f"v_mov_b32 v{rMEAN}, s{sF}")
    I(f"v_mov_b32 v{rVAR}, s{sF+4}")
    for i in range(1, 4):
        I(f"v_add_f32 v{rMEAN}, s{sF+i}, v{rMEAN}")
        I(f"v_add_f32 v{rVAR}, s{sF+4+i}, v{rVAR}")
    I(f"v_mul_f32 v{rMEAN}, v{rMEAN}, v{rINV}")
    I(f"v_mul_f32 v{rVAR}, v{rVAR}, v{rINV}")
    stats(None)
    I(f"v_readfirstlane_b32 s{sMB}, v{rMB}")
    I(f"v_readfirstlane_b32 s{sRS_}, v{rR}")
    TS(2)
    def q_mma(u):
        for t in range(2):
            acc = ACC + 16 * t + 4 * (u & 3)
            I(f"v_mfma_f32_16x16x32_bf16 {vr(acc)}, {vr(BUF + 8*(u%4) + 4*t)}, {vr(XQ+4*(u>>2))}, {vr(acc) if u >= 4 else '0'}")
    for u in range(20):
        I(f"s_waitcnt vmcnt({nis[0] - wpos[2*u+1] - 1})")
        if u == 0: TS(38)
        o = slot(2 * u)[1]
        if 2 * u == (RSL if q2 else NPER):
            I(f"v_add_u32 v{ta0}, s{sPER}, v{ta0}")
            I(f"v_add_u32 v{ta1}, s{sPER}, v{ta1}")
        for t in range(2):
            b = BUF + 8 * (u % 4) + 4 * t
            I(f"ds_read_b64_tr_b16 v[{b}:{b+1}], v{(ta0, ta1)[t]} offset:{o}")
            I(f"ds_read_b64_tr_b16 v[{b+2}:{b+3}], v{(ta0, ta1)[t]} offset:{o+256}")
        if u:
            I("s_waitcnt lgkmcnt(4)")
            q_mma(u - 1)
            p = 2 * (u - 1) + NREST
            if RSL <= p < 40:
                w_issue(p, p + 2)
                if p + 2 == 40:
                    k_issue(nk[0], qk)
                    nis[0] += qk - nk[0]
                    TS(39)
    I(f"v_mov_b32 v{BUF+0}, {L_FLAG}")
    I(f"v_mov_b32 v{BUF+1}, 1")
    I(f"v_lshrrev_b32 v{BUF+2}, 4, v{vLANE}")
    if sm:
        I(f"v_and_b32 v{BUF+3}, 2, v{BUF+2}")
        I(f"v_add_lshl_u32 v{BUF+2}, v{BUF+2}, v{BUF+3}, 2")
    else:
        I(f"v_lshlrev_b32 v{BUF+2}, 3, v{BUF+2}")
    I(f"s_lshl_b32 s{sT0}, s{sWAVE}, 6")
    if sm: I(f"s_add_u32 s{sT0}, s{sT0}, {L_QB}")
    I(f"v_add_u32 v{BUF+2}, s{sT0}, v{BUF+2}")
    I(f"v_mov_b32 v{BUF+3}, s{sMB}")
    I(f"v_xor_b32 v{BUF+3}, 0x80000000, v{BUF+3}")
    I("s_waitcnt lgkmcnt(0)")
    q_mma(19)
    for aa in range(1, 4):
        for t in range(2):
            for i in range(4):
                d = ACC + 16 * t + i
                I(f"v_add_f32_dpp v{d}, v{d+4*aa}, v{d} row_shl:{4*aa} row_mask:0xf bank_mask:0xf")
    for t in range(2):
        for i in range(4):
            d = ACC + 16 * t + i
            I(f"v_fmac_f32_dpp v{d}, v{d}, v{BUF+3} quad_perm:[1,1,1,1] row_mask:0xf bank_mask:0xf")
    for t in range(2):
        for i in range(4):
            d = ACC + 16 * t + i
            I(f"v_mul_f32 v{d}, s{sRS_}, v{d}")
    for t in range(2):
        d = ACC + 16 * t
        I(f"v_cvt_pk_bf16_f32 v{d}, v{d}, v{d+1}")
        I(f"v_cvt_pk_bf16_f32 v{d+1}, v{d+2}, v{d+3}")
    setexec(0x00010001, 0x00010001)
    for t in range(2):
        d = ACC + 16 * t
        if sm: I(f"ds_write2_b32 v{BUF+2}, v{d}, v{d+1} offset0:{2*t} offset1:{2*t+8}")
        else: I(f"ds_write_b64 v{BUF+2}, v[{d}:{d+1}] offset:{L_QB + 32*t}")
    setexec(1, 0)
    I("s_waitcnt lgkmcnt(0)")
    I(f"ds_add_u32 v{BUF+0}, v{BUF+1} offset:12")
    setexec(0xFFFFFFFF, 0xFFFFFFFF)
    TS(5)
    sp(sp1)
    k_issue(qk, 16)
    I("s_branch L_vall")

    a.label("L_s4567")
    I(f"s_cmp_eq_u32 s{sWAVE}, 6")
    I("s_cbranch_scc0 L_krest")
    sp(3)
    I(f"s_mov_b32 s{sVOTE}, 0")
    I(f"s_sub_u32 s{sT0}, s{sR}, {calr}")
    I(f"s_cmp_lt_u32 s{sT0}, {ncal}")
    I("s_cbranch_scc0 L_ncal")
    MK = 0x13579bdf
    I(f"s_lshl_b32 s{sT0}, s{sT0}, 3")
    I(f"s_add_u32 s{sT0}, s{sT0}, s{sX}")
    I(f"s_lshl_b32 s{sT0}, s{sT0}, 7")
    I(f"s_add_u32 s88, s{sT0}, {CALOFF + 0x10000}")
    I(f"s_load_dword s86, s[56:57], s88 glc")
    I(f"s_add_u32 s{sT0}, s{sT0}, {CALOFF}")
    I(f"s_lshl_b32 s{sVOTE}, s{sR}, 13")
    I(f"s_and_b32 s{sVOTE}, s{sVOTE}, {CP}")
    I(f"s_add_u32 s{sT0}, s{sT0}, s{sVOTE}")
    I(f"s_xor_b32 s{sT3}, s{sT0}, {CP}")
    I(f"s_lshr_b32 s{sVOTE}, s{sVOTE}, 13")
    I(f"s_lshr_b32 s88, s{sXCC}, 2")
    I(f"s_xor_b32 s{sVOTE}, s{sVOTE}, s88")
    I("s_waitcnt lgkmcnt(0)")
    for k, (ad, cnt) in enumerate(((sT0, 88), (sT3, 89))):
        I(f"s_mov_b32 s86, {MK:#x}")
        I(f"s_mov_b32 s{cnt}, 0")
        I(f"s_load_dword s86, s[56:57], s{ad} glc")
        a.label(f"L_cal{k}")
        I(f"s_add_u32 s{cnt}, s{cnt}, 1")
        I(f"s_cmp_eq_u32 s86, {MK:#x}")
        I(f"s_cselect_b32 s87, s{cnt}, 1000")
        I(f"s_cmp_lt_u32 s87, 200")
        I(f"s_cbranch_scc1 L_cal{k}")
        I("s_waitcnt lgkmcnt(0)")
    I(f"s_cmp_gt_u32 s88, s89")
    I(f"s_cselect_b32 s{sT0}, 1, 0")
    I(f"s_xor_b32 s{sVOTE}, s{sVOTE}, s{sT0}")
    I(f"s_and_b32 s{sVOTE}, s{sVOTE}, 1")
    I(f"s_lshl_b32 s{sVOTE}, s{sVOTE}, 24")
    a.label("L_ncal")
    I(f"s_mul_i32 s{sT0}, s{sXCC}, 6")
    I(f"s_lshl_b64 s[{sF}:{sF+1}], 1, s{sT0}")
    I(f"s_cmp_lt_u32 s{sXCC}, 8")
    I(f"s_cselect_b32 s{sF}, s{sF}, 0")
    I(f"s_cselect_b32 s{sF+1}, s{sF+1}, 0")
    I(f"s_or_b32 s{sF+1}, s{sF+1}, 0x10000")
    I(f"s_or_b32 s{sF+1}, s{sF+1}, s{sVOTE}")
    srd(TA, 54, 256)
    I(f"v_mov_b32 v{vAT}, s{sF}")
    I(f"v_mov_b32 v{vAT+1}, s{sF+1}")
    I(f"s_lshl_b32 s{sT0}, s{sX}, 4")
    I(f"v_mov_b32 v{vAT+2}, s{sT0}")
    TS(33)
    I("s_waitcnt vmcnt(0)")
    setexec(1, 0)
    I(f"buffer_atomic_add_x2 v[{vAT}:{vAT+1}], v{vAT+2}, {TA}, 0 offen offset:128 sc1")
    setexec(0xFFFFFFFF, 0xFFFFFFFF)
    TS(32)
    sp(0)
    k_issue(0, n0)
    a.label("L_krest")
    k_issue(n0, 16)
    a.label("L_vall")
    v_issue()
    TS(31)
    OA2, PS2, MI2 = T + 24, T + 32, 28
    def att_pre():
        for i in range(32):
            I(f"v_mov_b32 v{T+i}, 0")
        I(f"v_mov_b32 v{MI2+2}, {SCALE:#x}")
        I(f"v_mov_b32 v{MI2+3}, {SCALE:#x}")
        I(f"v_mov_b32 v{MI2+1}, s{sL2E}")
    def q_masked(fmt):
        setexec(0x000F000F, 0x000F000F)
        for t in range(4):
            I(fmt(T + 4 * t))
            I("s_lshl_b64 exec, exec, 4" if t < 3 else "s_mov_b64 exec, -1")
    if q2 == 2: att_pre()
    for i in (range(0) if q2 == 2 else range(4, 36) if q2 else range(24 if sm else 16)):
        I(f"v_mov_b32 v{T+i}, 0")
    if gate:
        I(f"v_mov_b32 v{T+44}, {L_FLAG}")
        I(f"v_mov_b32 v{T+45}, 1")
        setexec(1, 0)
        I(f"ds_add_u32 v{T+44}, v{T+45} offset:8")
        setexec(0xFFFFFFFF, 0xFFFFFFFF)
    lds_wait(12, 4, ge=True)
    TS(8)
    if q2 == 1: I(f"ds_read_b128 {vr(T)}, v{vQR}")
    if q2 == 2:
        q_masked(lambda r_: f"ds_read_b128 {vr(r_)}, v{vQR}")
        I(f"s_mov_b64 s[{sKM}:{sKM+1}], 0")
    I("s_branch L_att")

    a.label("L_loop")
    I(f"s_cmp_eq_u32 s{sWAVE}, 6")
    I("s_cbranch_scc0 L_nsub")
    I(f"s_cmp_eq_u32 s{sROLE}, 0")
    if g3:
        I("s_cbranch_scc1 L_sub")
        I(f"s_cmp_lt_u32 s{sTB}, 54")
        I("s_cbranch_scc1 L_G3")
        I(f"s_and_b32 s{sT0}, s{sR}, 7")
        I(f"s_lshl_b32 s{sT0}, s{sT0}, 14")
        I(f"s_add_u32 s{sT0}, s{sT0}, s{sNEAR}")
        I(f"s_add_u32 s{sT0}, s{sT0}, {YOFF}")
        I(f"v_lshlrev_b32 v{T}, 7, v{vLANE}")
        light(f"buffer_load_dword v{T+1}, v{T}, {WS}, s{sT0} offen sc1", T + 1, (3, 0))
        I("s_branch L_G3")
        a.label("L_sub")
    else:
        I("s_cbranch_scc0 L_B1")
    SL, YD, YA, ya0, ya1, yo = T + 20, T, T + 24, T + 28, T + 29, T + 30
    srd(TA, 50, 1280)
    I(f"v_lshlrev_b32 v{ya0}, 4, v{vLANE}")
    for i in range(4):
        I(f"v_mov_b32 v{YD+i}, 0")
    I(f"s_lshl_b32 s{sT2}, s{sR}, 6")
    if m2:
        yz2 = T + 32
        I(f"v_and_b32 v{yz2}, 3, v{vLANE}")
        I(f"v_lshlrev_b32 v{ya1}, 3, v{yz2}")
        I(f"v_sub_u32 v{yz2}, v{ya0}, v{ya1}")
        setexec(0, 0xF)
        I(f"buffer_load_dwordx2 v[{YD}:{YD+1}], v{ya1}, {TA}, s{sT2} offen")
        I(f"buffer_load_dwordx2 v[{YD+2}:{YD+3}], v{ya1}, {TA}, s{sT2} offen offset:32")
    else:
        I(f"v_subrev_u32 v{ya1}, 512, v{ya0}")
        setexec(0, 0xF)
        I(f"buffer_load_dwordx4 {vr(YD)}, v{ya1}, {TA}, s{sT2} offen")
    setexec(0xFFFFFFFF, 0xFFFFFFFF)
    I(f"v_and_b32 v{yo}, 15, v{vLANE}")
    I(f"v_mov_b32 v{YA}, 0x3f80")
    I(f"v_mov_b32 v{YA+1}, 0x3f800000")
    for q_ in range(4):
        I(f"v_cmp_eq_u32 vcc, {2*q_}, v{yo}")
        I(f"v_cndmask_b32 v{SL+q_}, 0, v{YA}, vcc")
        I(f"v_cmp_eq_u32 vcc, {2*q_+1}, v{yo}")
        I(f"v_cndmask_b32 v{SL+q_}, v{SL+q_}, v{YA+1}, vcc")
    yw = T + 31
    I(f"v_and_b32 v{yw}, 0x3c0, v{ya0}")
    I(f"v_add_u32 v{yw}, v{yw}, v{ya0}")
    yz = yw if zx == 128 else ya0
    yy = yw if y128 else ya0
    I(f"v_mov_b32 v{ya1}, {BIG:#x}")
    I(f"v_cmp_gt_u32 vcc, 24, v{vLANE}")
    I(f"v_cndmask_b32 v{ya1}, v{ya1}, v{yy}, vcc")
    I(f"v_lshlrev_b32 v{yo}, {3 if m2 else 4}, v{yo}")
    I(f"v_lshrrev_b32 v{YA}, 4, v{vLANE}")
    I(f"v_lshl_add_u32 v{yo}, v{YA}, {5 if m2 else 3}, v{yo}")
    I(f"v_add_u32 v{yo}, s{sT2}, v{yo}")
    rank_off(sT0, sR, sT1)
    I(f"s_add_u32 s{sT3}, s{sREG}, s{sNEAR}")
    I(f"s_add_u32 s{sT0}, s{sT0}, s{sT3}")
    I(f"s_add_u32 s{sT0}, s{sT0}, {ZOFF - RS & 0xffffffff:#x}")
    setexec(0xFFFFFFFF, 0)
    if m2:
        poll([f"buffer_load_dwordx2 v[{YD}:{YD+1}], v{yz2}, {WS}, s{sT0} offen sc1",
              f"buffer_load_dwordx2 v[{YD+2}:{YD+3}], v{yz2}, {WS}, s{sT0} offen offset:32 sc1"], [YD, YD + 2], ex=(0xFFFFFFFF, 0))
    else:
        poll([f"buffer_load_dwordx4 {vr(YD)}, v{yz}, {WS}, s{sT0} offen sc1"], [YD], ex=(0xFFFFFFFF, 0))
    setexec(0xFFFFFFFF, 0xFFFFFFFF)
    I(f"v_mfma_f32_16x16x32_bf16 {vr(YA)}, {vr(SL)}, {vr(YD)}, 0")
    if m2:
        yi, y1_ = T + 33, T + 34
        I(f"v_and_b32 v{yi}, 10, v{vLANE}")
        I(f"v_mov_b32 v{y1_}, 0x3f80")
        I(f"v_cmp_eq_u32 vcc, 0, v{yi}")
        I(f"v_cndmask_b32 v{SL}, 0, v{y1_}, vcc")
        I(f"v_cndmask_b32 v{SL+2}, 0, v{y1_}, vcc")
        I(f"v_cmp_eq_u32 vcc, 2, v{yi}")
        I(f"v_cndmask_b32 v{SL+1}, 0, v{y1_}, vcc")
        I(f"v_cndmask_b32 v{SL+3}, 0, v{y1_}, vcc")
        I(f"v_and_b32 v{yi}, 1, v{vLANE}")
        I(f"v_bfe_u32 v{y1_}, v{vLANE}, 2, 1")
        I(f"v_lshl_add_u32 v{yi}, v{yi}, 1, v{y1_}")
        I(f"v_mul_u32_u24 v{yi}, 0x5555, v{yi}")
    I(f"s_and_b32 s{sT0}, s{sR}, 1")
    I(f"s_lshl_b32 s{sT0}, s{sT0}, {6 if y128 else 12}")
    I(f"s_lshr_b32 s{sT1}, s{sR}, 1")
    I(f"s_lshl_b32 s{sT1}, s{sT1}, 14")
    I(f"s_add_u32 s{sT0}, s{sT0}, s{sT1}")
    I(f"s_add_u32 s{sT0}, s{sT0}, s{sT3}")
    I(f"s_add_u32 s{sT0}, s{sT0}, {YOFF - RS & 0xffffffff:#x}")
    I(f"s_add_u32 s{sT1}, s{sT0}, {4096 if y128 else 2048}")
    I(f"s_lshl_b32 s{sT2}, s{sX}, 11")
    I(f"s_add_u32 s{sT2}, s{sT2}, {XOFF}")
    I("s_nop 7")
    TS(26)
    if yl:
        setexec((1 << yl) - 1, 0)
        a.label("L_yl")
        I(f"buffer_load_dword v{YD}, v{yy}, {WS}, s{sT0} offen {yfl}")
        I(f"s_add_u32 s{sSPIN}, s{sSPIN}, 1")
        I("s_waitcnt vmcnt(0)")
        I(f"v_cmp_ne_u32 vcc, -1, v{YD}")
        I("s_cbranch_vccnz L_yld")
        I(f"s_cmp_lt_u32 s{sSPIN}, {spin_limit}")
        I("s_cbranch_scc1 L_yl")
        a.label("L_yld")
        setexec(0xFFFFFFFF, 0xFFFFFFFF)
    if g3:
        I(f"s_cmp_eq_u32 s{sIT}, 2")
        I("s_cbranch_scc1 L_G3s")
        I("s_barrier")
        a.label("L_G3s")
    poll([f"buffer_load_dwordx4 {vr(YD+4*e)}, v{ya1 if e == 3 else yy}, {WS}, s{(sT0, sT1)[e >> 1]} offen offset:{(e & 1)*(2048 if y128 else 1024)} {yfl}" for e in range(4)],
         [YD + k for k in range(16)] if m2 else [YD + 2 * k for k in range(8)],
         groups=[list(range(YD + 4 * e, YD + 4 * e + 4)) if m2 else [YD + 4 * e, YD + 4 * e + 2] for e in range(4)], hop=4)
    TS(27)
    for e in range(2 if m2 else 4):
        if m2: I(f"v_smfmac_f32_16x16x64_bf16 {vr(YA)}, {vr(SL)}, {vr(YD+8*e, 8)}, v{yi}")
        else: I(f"v_mfma_f32_16x16x32_bf16 {vr(YA)}, {vr(SL)}, {vr(YD+4*e)}, {vr(YA)}")
    for m_ in (4, 8):
        for i in range(4):
            I(f"v_add_f32_dpp v{YA+i}, v{YA+i}, v{YA+i} row_ror:{m_} row_mask:0xf bank_mask:0xf")
    I(f"v_cvt_pk_bf16_f32 v{YA}, v{YA}, v{YA+1}")
    I(f"v_cvt_pk_bf16_f32 v{YA+1}, v{YA+2}, v{YA+3}")
    setexec(0x000F000F, 0)
    I(f"s_cmp_eq_u32 s{sIT}, 2")
    I("s_cbranch_scc0 L_lead1")
    I(f"buffer_store_dwordx2 v[{YA}:{YA+1}], v{yo}, {OUTS}, 0 offen")
    setexec(0xFFFFFFFF, 0xFFFFFFFF)
    TS(29)
    I("s_branch L_fin")
    a.label("L_lead1")
    I(f"v_min_u32 v{YA}, 0xfffffffe, v{YA}")
    I(f"v_min_u32 v{YA+1}, 0xfffffffe, v{YA+1}")
    lstore([f"buffer_store_dwordx2 v[{YA}:{YA+1}], v{yo}, {WS}, s{sT2} offen"])
    setexec(0xFFFFFFFF, 0xFFFFFFFF)
    TS(28)
    I("s_branch L_B1")
    if g3:
        a.label("L_G3")
        I("s_barrier")
        I("s_branch L_B1")
    a.label("L_nsub")
    I(f"s_cmp_ge_u32 s{sWAVE}, 5")
    I("s_cbranch_scc1 L_G3" if g3 else "s_cbranch_scc1 L_B1")
    IDX = vSEL + 4
    DPF = "row_mask:0xf bank_mask:0xf"
    if q2:
        ta, x1 = T + 24, T + 25
        I(f"s_lshl_b32 s{sT0}, s{sWAVE}, 13")
        I(f"s_add_u32 s{sT0}, s{sT0}, {L_PER}")
        I(f"v_lshrrev_b32 v{ta}, 5, v{vLANE}")
        I(f"v_lshlrev_b32 v{ta}, 10, v{ta}")
        I(f"v_bfe_u32 v{x1}, v{vLANE}, 4, 1")
        I(f"v_lshl_add_u32 v{ta}, v{x1}, 8, v{ta}")
        I(f"v_bfe_u32 v{x1}, v{vLANE}, 2, 1")
        I(f"v_lshl_add_u32 v{ta}, v{x1}, 6, v{ta}")
        I(f"v_and_b32 v{x1}, 3, v{vLANE}")
        I(f"v_lshl_add_u32 v{ta}, v{x1}, 3, v{ta}")
        I(f"v_bfe_u32 v{x1}, v{vLANE}, 3, 1")
        I(f"v_lshl_add_u32 v{ta}, v{x1}, 9, v{ta}")
        I(f"v_xor_b32 v{x1}, s{sSLOT}, v{x1}")
        I(f"v_and_b32 v{x1}, 1, v{x1}")
        I(f"v_lshl_add_u32 v{ta}, v{x1}, 5, v{ta}")
        I(f"v_add_u32 v{ta}, s{sT0}, v{ta}")
        for k_ in range(8):
            I(f"ds_read_b64_tr_b16 v[{vBQ+2*k_}:{vBQ+2*k_+1}], v{ta} offset:{(k_>>1)*2048 + (k_&1)*128}")
        for i in range(8):
            I(f"v_mov_b32 v{T+i}, 0")
        for i in range(4):
            I(f"v_mov_b32 v{XA+i}, 0x3f803f80")
        I(f"s_lshl_b32 s{sT2}, s{sX}, 11")
        I(f"s_add_u32 s{sT2}, s{sT2}, {XOFF}")
        I("s_waitcnt lgkmcnt(0)")
        TS(3)
        setexec(0x55555555, 0x55555555)
        poll([f"buffer_load_dwordx4 {vr(XA)}, v{vXO}, {WS}, s{sT2} offen sc1"], [XA, XA + 2], ex=(0x55555555, 0x55555555))
        setexec(0xFFFFFFFF, 0xFFFFFFFF)
        TS(4)
        I(f"v_mfma_f32_16x16x32_bf16 {vr(T+8)}, {vr(XA)}, {vr(XA)}, 0")
        for k_ in range(2):
            I(f"v_smfmac_f32_16x16x64_bf16 {vr(T+4*k_)}, {vr(XA)}, {vr(vBQ+8*k_, 8)}, v{IDX}")
        I(f"ds_write_b64 v{vSW}, v[{T+8}:{T+9}]")
        I(f"v_pk_add_f32 v[{T}:{T+1}], v[{T}:{T+1}], v[{T+2}:{T+3}]")
        I("s_mov_b32 exec_lo, 0xffff0000")
        I("s_mov_b32 exec_hi, 0")
        I(f"v_pk_add_f32 v[{T}:{T+1}], v[{T+4}:{T+5}], v[{T+6}:{T+7}]")
        I("s_mov_b32 exec_lo, -1")
        I(f"ds_write_b64 v{vPQ}, v[{T}:{T+1}] offset:{L_PB1}")
        I("s_mov_b32 exec_hi, -1")
        I("s_waitcnt lgkmcnt(0)")
        TS(5)
        a.label("L_B1")
        I(f"v_mov_b32 v{rINV}, {f2u(1.0/640):#x}")
        I(f"s_add_u32 s{sT2}, s{sQS}, s{sREG}")
        I(f"s_sub_u32 s{sT2}, s{sT2}, {L_QB}")
        I(f"s_cmp_eq_u32 s{sWAVE}, 5")
        I("s_cbranch_scc1 L_B15")
        I("s_barrier")
        if q2 == 2: att_pre()
        I("s_branch L_B2")
        a.label("L_B15")
        if q2 == 2: att_pre()
        I("s_barrier")
        TS(6)
        SQ = 60 if q2 == 2 else 28
        PR = [32, 36, 40, T + 44, T + 48] if q2 == 2 else [T + 4 * v for v in range(5)]
        for v in range(5):
            I(f"ds_read_b64 v[{SQ+2*v}:{SQ+2*v+1}], v{vCSQ} offset:{L_PB1 + 512 + v*PP}")
        for v in range(5):
            I(f"ds_read_b128 {vr(PR[v])}, v{vQG} offset:{L_PB1 + v*PP}")
        I("s_waitcnt lgkmcnt(5)")
        for d_, s_ in ((0, 1), (2, 3), (0, 4), (0, 2)):
            I(f"v_pk_add_f32 v[{SQ+2*d_}:{SQ+2*d_+1}], v[{SQ+2*d_}:{SQ+2*d_+1}], v[{SQ+2*s_}:{SQ+2*s_+1}]")
        for m_ in ("quad_perm:[1,0,3,2]", "quad_perm:[2,3,0,1]"):
            I(f"v_add_f32_dpp v{SQ+1}, v{SQ+1}, v{SQ+1} {m_} {DPF}")
            I(f"v_add_f32_dpp v{SQ}, v{SQ}, v{SQ} {m_} {DPF}")
        I(f"v_mul_f32 v{rMEAN}, v{SQ+1}, v{rINV}")
        I(f"v_mul_f32 v{rVAR}, v{SQ}, v{rINV}")
        stats(None)
        I("s_waitcnt lgkmcnt(0)")
        for d_, s_ in ((0, 1), (2, 3), (4, 5), (6, 7), (8, 9), (0, 2), (4, 6), (0, 8), (0, 4)):
            d_, s_ = PR[d_ >> 1] + 2 * (d_ & 1), PR[s_ >> 1] + 2 * (s_ & 1)
            I(f"v_pk_add_f32 v[{d_}:{d_+1}], v[{d_}:{d_+1}], v[{s_}:{s_+1}]")
        I(f"v_fma_f32 v{rU}, -v{rMB}, v{PR[0]+1}, v{PR[0]}")
        I(f"v_mul_f32_dpp v{rT}, v{rU}, v{rR} quad_perm:[0,0,2,2] {DPF}")
        I(f"v_mul_f32_dpp v{rU}, v{rU}, v{rR} quad_perm:[1,1,3,3] {DPF}")
        I(f"v_cvt_pk_bf16_f32 v{rU}, v{rT}, v{rU}")
        I(f"v_min_u32 v{rU}, 0xfffffffe, v{rU}")
        TS(7)
        lstore([f"buffer_store_dword v{rU}, v{vQP}, {WS}, s{sREG} offen"], True)
        if q2 == 1: I(f"buffer_load_ushort v{vXF}, v{vXFA}, {WS}, 0 offen sc1")
        a.label("L_B2")
        if q2 == 1:
            for i in range(4, 36):
                I(f"v_mov_b32 v{T+i}, 0")
            poll([f"buffer_load_dwordx4 {vr(T)}, v{vQR}, {WS}, s{sT2} offen sc1"], list(range(T, T + 4)))
        else:
            if ap:
                I(f"s_cmp_lt_u32 s{sWAVE}, 4")
                I("s_cbranch_scc0 L_ap")
                I(f"s_setprio {ap}")
                a.label("L_ap")
            I(f"s_mov_b64 s[{sKM}:{sKM+1}], -1")
            a.label("L_qp")
            q_masked(lambda r_: f"buffer_load_dwordx4 {vr(r_)}, v{vQR}, {WS}, s{sT2} offen sc1")
            I(f"s_add_u32 s{sSPIN}, s{sSPIN}, 1")
            I(f"s_cmp_ge_u32 s{sSPIN}, {spin_limit}")
            I("s_cbranch_scc1 L_qd")
            I("s_waitcnt vmcnt(3)")
            cur = maxtree(T + 50, range(T, T + 4))
            I(f"v_cmp_eq_u32 vcc, -1, v{cur}")
            I("s_cbranch_vccnz L_qp")
            a.label("L_qd")
            I("s_waitcnt vmcnt(0)")
        TS(8)

    if not q2:
        I(f"s_lshl_b32 s{sT0}, s{sWAVE}, 11")
        I(f"s_and_b32 s{sT1}, s{sSLOT}, 4")
        I(f"s_mul_i32 s{sT1}, s{sT1}, {NPER * 512}")
        I(f"s_add_u32 s{sT0}, s{sT0}, s{sT1}")
        I(f"s_add_u32 s{sT0}, s{sT0}, {L_PER}")
        ta = T + 24
        tr_addr(ta, 64, sT0, T + 25)
        I(f"v_bfe_u32 v{T+25}, v{vLANE}, 4, 1")
        I(f"v_lshl_add_u32 v{ta}, v{T+25}, 5, v{ta}")
        I(f"v_xor_b32 v{ta+1}, 32, v{ta}")
        for t in range(4):
            o = (t >> 1) * NPER * 1024
            I(f"ds_read_b64_tr_b16 v[{vBQ+4*t}:{vBQ+4*t+1}], v{ta+(t&1)} offset:{o}")
            I(f"ds_read_b64_tr_b16 v[{vBQ+4*t+2}:{vBQ+4*t+3}], v{ta+(t&1)} offset:{o+256}")
        ones()
        I("s_waitcnt lgkmcnt(0)")
        for t in range(4):
            I(f"v_mfma_f32_16x16x32_bf16 {vr(T+4*t)}, {vr(vBQ+4*t)}, {vr(ONES)}, 0")
        I(f"s_mov_b64 exec, s[{sKM}:{sKM+1}]")
        for t in range(4):
            I(f"ds_write_b128 v{vPQ}, {vr(T+4*t)} offset:{L_PB1 + 256 + t*64}")
        I("s_mov_b64 exec, -1")
        I(f"s_lshl_b32 s{sT2}, s{sX}, 11")
        I(f"s_add_u32 s{sT2}, s{sT2}, {XOFF}")
        if g3: I("s_barrier")
        TS(3)
        if xl:
            light(f"buffer_load_dword v{XA}, v{vXO}, {WS}, s{sT2} offen sc1", XA, (xl, 0))
        poll([f"buffer_load_dwordx4 {vr(XA)}, v{vXO}, {WS}, s{sT2} offen sc1"], list(range(XA, XA + 4)), hop=8)
        TS(4)
        gemv_q()
        TS(5)
        a.label("L_B1")
        I(f"v_mov_b32 v{rINV}, {f2u(1.0/640):#x}")
        qa, qs, QS = q_reduce()
        I("s_barrier")
        I(f"s_cmp_eq_u32 s{sWAVE}, 5")
        I("s_cbranch_scc1 L_B15")
        I("s_waitcnt vmcnt(0)")
        I("s_branch L_B2")
        a.label("L_B15")
        TS(6)
        q_reduce2(qa, qs, QS, first=True)
        TS(7)
        lstore([f"buffer_store_dword v{rU}, v{vQP}, {WS}, s{sREG} offen"], True)
        if zq:
            assert y128
            for i in range(24 if sm else 16):
                I(f"v_mov_b32 v{T+i}, 0")
        q_gather(vQG, qa)
        TS(8)
        I(f"buffer_load_ushort v{vXF}, v{vXFA}, {WS}, 0 offen sc1")
        I("s_waitcnt lgkmcnt(0)")
        if zq: I("s_branch L_B2b")
        a.label("L_B2")
    BT = T
    ST = T + 16
    PS = T + 32
    MI = T + 36
    OA = T + 44
    if q2 == 2:
        PS, MI, OA = PS2, MI2, OA2
        a.label("L_att")
    elif q2:
        PS = 28
        a.label("L_att")
    else:
        for i in range(24 if sm else 16):
            I(f"v_mov_b32 v{BT+i}, 0")
        if zq: a.label("L_B2b")
        I("s_barrier")
        a.label("L_att")
        TS(9)
        for t in range(4):
            m = 0x000F000F << (4 * t)
            setexec(m, m)
            I(f"ds_read_b128 {vr(BT+4*t)}, v{vQR}")
        setexec(0xFFFFFFFF, 0xFFFFFFFF)
    I("s_waitcnt vmcnt(16) lgkmcnt(0)")
    TS(10)
    vM = MI + 4; vL = MI + 5; vT_ = MI + 6; vPK = MI + 7
    IDX = vSEL + 4
    DPF = "row_mask:0xf bank_mask:0xf"
    if sm:
        if q2 == 2:
            for Tq in range(2):
                for t in range(4):
                    I(f"v_smfmac_f32_16x16x64_bf16 {vr(ST+4*Tq)}, {vr(BT+4*t)}, {vr(vK+8*(Tq+2*t), 8)}, v{IDX}")
                    D = ST
                    if Tq == 1 and t == 1: I(f"v_pk_add_f32 v[{D}:{D+1}], v[{D}:{D+1}], v[{D+2}:{D+3}]")
                    if Tq == 1 and t == 2: I(f"v_mov_b32_dpp v{PS}, v{D} quad_perm:[0,0,2,2] {DPF}")
                    if Tq == 1 and t == 3: I(f"v_add_f32_dpp v{PS}, v{D+1}, v{PS} quad_perm:[1,1,3,3] {DPF}")
            D = ST + 4
            I(f"v_pk_add_f32 v[{D}:{D+1}], v[{D}:{D+1}], v[{D+2}:{D+3}]")
            I(f"v_mov_b32_dpp v{PS+1}, v{D} quad_perm:[0,0,2,2] {DPF}")
            I(f"v_add_f32_dpp v{PS+1}, v{D+1}, v{PS+1} quad_perm:[1,1,3,3] {DPF}")
            ST = T
        elif q2:
            fill = [f"v_mov_b32 v{OA+i}, 0" for i in range(8)] + [f"v_mov_b32 v{MI+2}, {SCALE:#x}", f"v_mov_b32 v{MI+3}, {SCALE:#x}", f"v_mov_b32 v{MI+1}, s{sL2E}"]
            def po(k_, i):
                if not 0 <= i < 8:
                    return fill.pop() if fill and i < 0 else None
                D = T + 4 + 4 * i; rm = f"row_mask:{1 << (i >> 1):#x} bank_mask:0xf"
                return [f"v_pk_add_f32 v[{D}:{D+1}], v[{D}:{D+1}], v[{D+2}:{D+3}]",
                        f"v_mov_b32_dpp v{PS+(i&1)}, v{D} quad_perm:[0,0,2,2] {rm}",
                        f"v_add_f32_dpp v{PS+(i&1)}, v{D+1}, v{PS+(i&1)} quad_perm:[1,1,3,3] {rm}"][k_]
            for i in range(12):
                if i < 8: I(f"v_smfmac_f32_16x16x64_bf16 {vr(T+4+4*i)}, {vr(T)}, {vr(vK+8*i, 8)}, v{IDX}")
                if i == 8:
                    while fill: I(fill.pop())
                for k_, d_ in ((2, 4), (1, 3), (0, 2)):
                    x_ = po(k_, i - d_)
                    if x_: I(x_)
        else:
            for Tq in range(2):
                for t in range(4):
                    I(f"v_smfmac_f32_16x16x64_bf16 {vr(ST+4*Tq)}, {vr(BT+4*t)}, {vr(vK+8*(Tq+2*t), 8)}, v{IDX}")
                    if Tq == 0:
                        I(f"v_mov_b32 v{OA+2*t}, 0")
                        I(f"v_mov_b32 v{OA+2*t+1}, 0")
            I(f"v_mov_b32 v{MI+2}, {SCALE:#x}")
            I(f"v_mov_b32 v{MI+3}, {SCALE:#x}")
            I(f"v_mov_b32 v{MI+1}, s{sL2E}")
            for Tq in range(2):
                D = ST + 4 * Tq
                I(f"v_pk_add_f32 v[{D}:{D+1}], v[{D}:{D+1}], v[{D+2}:{D+3}]")
                I(f"v_mov_b32_dpp v{PS+Tq}, v{D} quad_perm:[0,0,2,2] {DPF}")
                I(f"v_add_f32_dpp v{PS+Tq}, v{D+1}, v{PS+Tq} quad_perm:[1,1,3,3] {DPF}")
        I(f"v_cvt_pk_bf16_f32 v{MI}, v{PS}, v{PS+1}")
        unpack(PS, PS + 1, MI)
        I(f"v_pk_mul_f32 v[{PS}:{PS+1}], v[{PS}:{PS+1}], v[{MI+2}:{MI+3}]")
        I(f"v_cvt_pk_bf16_f32 v{MI}, v{PS}, v{PS+1}")
        unpack(PS, PS + 1, MI)
        I(f"v_max_f32 v{vM}, v{PS}, v{PS+1}")
        if q2 == 2:
            I(f"v_cmp_u_f32 vcc, v{PS}, v{PS+1}")
            I(f"s_and_b64 vcc, vcc, s[{sKM}:{sKM+1}]")
            I("s_cbranch_scc1 L_qslow")
        I(f"v_max_f32_dpp v{vM}, v{vM}, v{vM} quad_perm:[2,3,0,1] {DPF}")
        I(f"v_max_f32_dpp v{vM}, v{vM}, v{vM} row_ror:4 {DPF}")
        I(f"v_max_f32_dpp v{vM}, v{vM}, v{vM} row_ror:8 {DPF}")
        I(f"v_max_f32_dpp v{vM}, v{vM}, v{vM} row_bcast:15 row_mask:0xa bank_mask:0xf")
        I(f"v_max_f32_dpp v{vM}, v{vM}, v{vM} row_bcast:31 row_mask:0xc bank_mask:0xf")
        I(f"v_readlane_b32 s{sM}, v{vM}, 63")
        I(f"v_mul_f32 v{vT_}, s{sM}, v{MI+1}")
        for Tq in range(2):
            I(f"v_fma_f32 v{PS+Tq}, v{PS+Tq}, v{MI+1}, -v{vT_}")
        for Tq in range(2):
            I(f"v_exp_f32 v{PS+Tq}, v{PS+Tq}")
    else:
        for Tt in range(4):
            for t in range(4):
                I(f"v_mfma_f32_16x16x32_bf16 {vr(ST+4*Tt)}, {vr(vK+4*(4*Tt+t))}, {vr(BT+4*t)}, {'0' if t == 0 else vr(ST+4*Tt)}")
        for Tt in range(4):
            I(f"v_mov_b32_dpp v{PS+Tt}, v{ST+4*Tt} quad_perm:[0,0,0,0] row_mask:0xf bank_mask:0xf")
            for c in range(1, 4):
                I(f"v_add_f32_dpp v{PS+Tt}, v{ST+4*Tt+c}, v{PS+Tt} quad_perm:[{c},{c},{c},{c}] row_mask:0xf bank_mask:0xf")
        I(f"v_mov_b32 v{MI+2}, {SCALE:#x}")
        I(f"v_mov_b32 v{MI+3}, {SCALE:#x}")
        I(f"v_cvt_pk_bf16_f32 v{MI}, v{PS}, v{PS+1}")
        I(f"v_cvt_pk_bf16_f32 v{MI+1}, v{PS+2}, v{PS+3}")
        unpack(PS, PS + 1, MI)
        unpack(PS + 2, PS + 3, MI + 1)
        I(f"v_pk_mul_f32 v[{PS}:{PS+1}], v[{PS}:{PS+1}], v[{MI+2}:{MI+3}]")
        I(f"v_pk_mul_f32 v[{PS+2}:{PS+3}], v[{PS+2}:{PS+3}], v[{MI+2}:{MI+3}]")
        I(f"v_cvt_pk_bf16_f32 v{MI}, v{PS}, v{PS+1}")
        I(f"v_cvt_pk_bf16_f32 v{MI+1}, v{PS+2}, v{PS+3}")
        unpack(PS, PS + 1, MI)
        unpack(PS + 2, PS + 3, MI + 1)
        vM = MI + 4; vL = MI + 5; vT_ = MI + 6; vPK = MI + 7
        I(f"v_max3_f32 v{vM}, v{PS}, v{PS+1}, v{PS+2}")
        I(f"v_max_f32 v{vM}, v{vM}, v{PS+3}")
        I(f"v_max_f32_dpp v{vM}, v{vM}, v{vM} row_ror:4 row_mask:0xf bank_mask:0xf")
        I(f"v_max_f32_dpp v{vM}, v{vM}, v{vM} row_ror:8 row_mask:0xf bank_mask:0xf")
        I(f"v_max_f32_dpp v{vM}, v{vM}, v{vM} row_bcast:15 row_mask:0xa bank_mask:0xf")
        I(f"v_max_f32_dpp v{vM}, v{vM}, v{vM} row_bcast:31 row_mask:0xc bank_mask:0xf")
        I(f"v_mov_b32 v{MI}, s{sL2E}")
        I(f"v_readlane_b32 s{sM}, v{vM}, 63")
        I(f"v_mul_f32 v{vT_}, s{sM}, v{MI}")
        for Tt in range(4):
            I(f"v_fma_f32 v{PS+Tt}, v{PS+Tt}, v{MI}, -v{vT_}")
        for Tt in range(4):
            I(f"v_exp_f32 v{PS+Tt}, v{PS+Tt}")
    TS(11)
    I(f"s_cmp_eq_u32 s{sIT}, 0")
    I("s_cbranch_scc0 L_PV")
    I(f"s_cmp_eq_u32 s{sLATE}, 0")
    I("s_cbranch_scc1 L_PVe")
    role_dma()
    TS(25)
    I("s_branch L_PV")
    a.label("L_PVe")
    if esy:
        I(f"s_cmp_eq_u32 s{sWAVE}, 7")
        I("s_cbranch_scc0 L_PVe2")
        srd(TA, 54, 256)
        I(f"v_lshlrev_b32 v{BT+2}, 4, v{vLANE}")
        setexec(0xFF, 0)
        I(f"buffer_load_dwordx2 v[{BT}:{BT+1}], v{BT+2}, {TA}, 0 offen offset:128 {syfl}")
        setexec(0xFFFFFFFF, 0xFFFFFFFF)
        I("s_waitcnt vmcnt(1)")
        I("s_branch L_PV")
        a.label("L_PVe2")
    I("s_waitcnt vmcnt(0)")
    a.label("L_PV")
    if sm:
        I(f"v_cvt_pk_bf16_f32 v{vPK}, v{PS}, v{PS+1}")
        I(f"v_add_f32 v{vL}, v{PS}, v{PS+1}")
        I(f"v_mov_b32_dpp v{vT_}, v{vPK} row_half_mirror {DPF}")
        lred = [f"v_add_f32_dpp v{vL}, v{vL}, v{vL} quad_perm:[2,3,0,1] {DPF}",
                f"v_add_f32_dpp v{vL}, v{vL}, v{vL} row_ror:4 {DPF}",
                f"v_add_f32_dpp v{vL}, v{vL}, v{vL} row_ror:8 {DPF}",
                f"v_add_f32_dpp v{vL}, v{vL}, v{vL} row_bcast:15 row_mask:0xa bank_mask:0xf",
                f"v_add_f32_dpp v{vL}, v{vL}, v{vL} row_bcast:31 row_mask:0xc bank_mask:0xf",
                f"ds_write_b64 v{vMLW}, v[{vM}:{vL}]"]
        def mkA(Tt):
            x_, y_ = Tt >> 1, Tt & 1
            for w in sorted(range(4), key=lambda w: (w & 1) != x_):
                src, p_ = (vPK, 2 * y_) if (w & 1) == x_ else (vT_, 3 - 2 * y_)
                I(f"v_and_b32_dpp v{ST+4*Tt+w}, v{src}, v{vSEL+w} quad_perm:[{p_},{p_},{p_},{p_}] {DPF}")
        mkA(0)
        for Tt in range(4):
            for hf in range(2):
                j1 = Tt * 4 + hf * 2 + 1
                if hf == 0 and Tt < 3: mkA(Tt + 1) if Tt == 0 else None
                I(f"s_waitcnt vmcnt({15 - j1 + 8})")
                I(f"v_smfmac_f32_16x16x64_bf16 {vr(OA+4*hf)}, {vr(ST+4*Tt)}, {vr(vV+4*(j1-1), 8)}, v{IDX} abid:1")
                if hf == 0 and Tt < 2: mkA(Tt + 2)
                elif lred:
                    I(lred.pop(0))
                    if Tt >= 2 and lred: I("s_nop 0"); I(lred.pop(0))
        for x_ in lred: I(x_)
    else:
        for Tt in range(4):
            AB = ST + 8 * (Tt & 1)
            I(f"v_mov_b32_dpp v{vT_}, v{PS+Tt} row_half_mirror row_mask:0xf bank_mask:0xf")
            I(f"v_cvt_pk_bf16_f32 v{vPK}, v{PS+Tt}, v{vT_}")
            for u in range(2):
                for r in range(4):
                    I(f"v_perm_b32 v{AB+4*u+r}, v{vPK}, v{vPK}, v{vSEL+4*u+r}")
            if Tt == 1:
                I(f"v_add_f32 v{vL}, v{PS}, v{PS+1}")
                I(f"v_add_f32 v{MI+1}, v{PS+2}, v{PS+3}")
                I(f"v_add_f32 v{vL}, v{vL}, v{MI+1}")
                I(f"v_add_f32_dpp v{vL}, v{vL}, v{vL} row_ror:4 row_mask:0xf bank_mask:0xf")
                I(f"v_add_f32_dpp v{vL}, v{vL}, v{vL} row_ror:8 row_mask:0xf bank_mask:0xf")
                I(f"v_add_f32_dpp v{vL}, v{vL}, v{vL} row_bcast:15 row_mask:0xa bank_mask:0xf")
                I(f"v_add_f32_dpp v{vL}, v{vL}, v{vL} row_bcast:31 row_mask:0xc bank_mask:0xf")
                I(f"ds_write_b64 v{vMLW}, v[{vM}:{vL}]")
            for u in range(2):
                i1 = Tt * 4 + u * 2 + 1
                I(f"s_waitcnt vmcnt({15 - i1 + 8})")
                for hf in range(2):
                    i = Tt * 4 + u * 2 + hf
                    first = (Tt == 0 and u == 0)
                    I(f"v_mfma_f32_16x16x32_bf16 {vr(OA+4*hf)}, {vr(AB+4*u)}, {vr(vV+4*i)}, {'0' if first else vr(OA+4*hf)}")
    TS(12)
    setexec(0x00FF00FF, 0xFF00FF00)
    I(f"ds_write_b128 v{vOW}, {vr(OA)}")
    I(f"ds_write_b128 v{vOW}, {vr(OA+4)} offset:256")
    setexec(0xFFFFFFFF, 0xFFFFFFFF)
    I(f"s_cmp_eq_u32 s{sIT}, 0")
    I("s_cbranch_scc0 L_B3")
    sp(0)
    I(f"s_cmp_eq_u32 s{sLATE}, 0")
    I("s_cbranch_scc0 L_B3")
    I(f"s_cmp_eq_u32 s{sWAVE}, 7")
    I("s_cbranch_scc0 L_erd")
    sp(3)
    srd(TA, 54, 256)
    setexec(0xFF, 0)
    if not esy:
        I(f"v_lshlrev_b32 v{BT+2}, 4, v{vLANE}")
        I(f"buffer_load_dwordx2 v[{BT}:{BT+1}], v{BT+2}, {TA}, 0 offen offset:128 {syfl}")
    a.label("L_sync")
    I(f"s_add_u32 s{sSPIN}, s{sSPIN}, 4")
    I("s_waitcnt vmcnt(0)")
    I(f"v_and_b32 v{BT+3}, {1 << 21:#x}, v{BT+1}")
    I(f"v_cmp_eq_u32 vcc, 0, v{BT+3}")
    I("s_cbranch_vccz L_syncd")
    I(f"buffer_load_dwordx2 v[{BT}:{BT+1}], v{BT+2}, {TA}, 0 offen offset:128 sc1")
    I(f"s_cmp_lt_u32 s{sSPIN}, {spin_limit}")
    I("s_cbranch_scc1 L_sync")
    I("s_waitcnt vmcnt(0)")
    a.label("L_syncd")
    I(f"v_lshrrev_b32 v{BT+3}, 24, v{BT+1}")
    I(f"v_readlane_b32 s64, v{BT}, s{sX}")
    I(f"v_readlane_b32 s65, v{BT+1}, s{sX}")
    for m_ in ("quad_perm:[1,0,3,2]", "quad_perm:[2,3,0,1]", "row_half_mirror"):
        I(f"v_add_u32_dpp v{BT+3}, v{BT+3}, v{BT+3} {m_} row_mask:0xf bank_mask:0xf")
    I(f"s_mul_i32 s{sT0}, s{sXCC}, 6")
    I(f"s_lshr_b64 s[64:65], s[64:65], s{sT0}")
    I(f"s_and_b32 s64, s64, 63")
    I(f"s_cmp_eq_u32 s64, 32")
    I(f"s_cselect_b32 s{sT1}, 1, 0")
    I(f"s_cmp_lt_u32 s{sXCC}, 8")
    I(f"s_cselect_b32 s{sT1}, s{sT1}, 0")
    I(f"v_readfirstlane_b32 s{sT0}, v{BT+3}")
    setexec(0xFFFFFFFF, 0xFFFFFFFF)
    I(f"s_cmp_gt_u32 s{sT0}, {4 * ncal}")
    I(f"s_cselect_b32 s{sT0}, 1, 0")
    I(f"s_lshr_b32 s{sT2}, s{sXCC}, 2")
    I(f"s_xor_b32 s{sT0}, s{sT0}, s{sT2}")
    I(f"s_and_b32 s{sT0}, s{sT0}, {1 if dual else 0}")
    I(f"s_lshl_b32 s{sT0}, s{sT0}, 13")
    I(f"s_or_b32 s{sT0}, s{sT0}, s{sT1}")
    I(f"v_mov_b32 v{BT}, s{sT0}")
    I(f"v_mov_b32 v{BT+1}, {L_FLAG}")
    I(f"ds_write_b32 v{BT+1}, v{BT}")
    TS(35)
    sp(0)
    a.label("L_erd")
    I(f"s_cmp_eq_u32 s{sROLE}, 0")
    if dyn:
        I("s_cbranch_scc1 L_erd2")
        I(f"s_cmp_eq_u32 s{sWAVE}, {tw}")
        I("s_cbranch_scc0 L_erd1" if emd else "s_cbranch_scc0 L_B3")
        I(f"v_mov_b32 v{BT+1}, {L_FLAG}")
        if emd: I(f"v_add_u32 v{vRDMA}, 1, v{vRDMA}")
        setexec(1, 0)
        I(f"ds_write_b32 v{BT+1}, v{vRDMA} offset:4")
        setexec(0xFFFFFFFF, 0xFFFFFFFF)
        if emd:
            a.label("L_erd1")
            if emd == 2:
                I(f"v_mov_b32 v{BT+1}, {L_FLAG}")
                I(f"v_mov_b32 v{BT}, 1")
                setexec(1, 0)
                I("s_waitcnt lgkmcnt(0)")
                I(f"ds_add_u32 v{BT+1}, v{BT} offset:12")
                setexec(0xFFFFFFFF, 0xFFFFFFFF)
                I(f"s_cmp_eq_u32 s{sWAVE}, 7")
                I("s_cbranch_scc0 L_erd3")
                lds_wait(12, 12, ge=True)
                TS(13)
                I(f"ds_read_b64 v[{T+38}:{T+39}], v{T+47}")
                I("s_branch L_comb")
                a.label("L_erd3")
            I(f"s_cmp_lt_u32 s{sWAVE}, {emw}")
            I("s_cbranch_scc0 L_B3")
            e0, e1, e2, e3 = BT, BT + 1, BT + 2, BT + 3
            npc = 40 // emw
            I(f"v_lshrrev_b32 v{e0}, 2, v{vLANE}")
            I(f"v_mul_u32_u24 v{e0}, 3456, v{e0}")
            I(f"v_and_b32 v{e1}, 3, v{vLANE}")
            I(f"v_lshl_add_u32 v{BT+4}, v{e1}, 4, v{e0}")
            I(f"v_lshrrev_b32 v{e0}, 3, v{vLANE}")
            I(f"v_mul_u32_u24 v{e2}, 1280, v{e0}")
            I(f"v_and_b32 v{e1}, 7, v{vLANE}")
            I(f"v_lshlrev_b32 v{e1}, 4, v{e1}")
            I(f"v_bfe_u32 v{e0}, v{vLANE}, 4, 1")
            I(f"v_lshlrev_b32 v{e0}, 5, v{e0}")
            I(f"v_xor_b32 v{e1}, v{e1}, v{e0}")
            I(f"v_xor_b32 v{e0}, 64, v{e1}")
            I(f"v_add_u32 v{e3}, v{e2}, v{e0}")
            I(f"v_add_u32 v{e2}, v{e2}, v{e1}")
            lds_wait(4, 1, ge=True)
            I(f"s_sub_u32 s{sTB}, s{sT3}, 1")
            I(f"s_mul_hi_u32 s{sT0}, s{sTB}, 0x2aaaaab")
            I(f"s_mul_i32 s{sT0}, s{sT0}, 96")
            I(f"s_sub_u32 s{sTB}, s{sTB}, s{sT0}")
            I(f"s_cmp_lt_u32 s{sTB}, 54")
            I("s_cbranch_scc0 L_B3")
            if g8: lds_wait(8, g8, ge=True)
            srd(TB, 44, 640 * 3456)
            I(f"s_mul_i32 s{sT1}, s{sWAVE}, {npc*16*3456}")
            I(f"s_lshl_b32 s{sT0}, s{sTB}, 6")
            I(f"s_add_u32 s{sT0}, s{sT0}, s{sT1}")
            I(f"s_mul_i32 s{sT1}, s{sWAVE}, {npc*1024}")
            for e in range(npc):
                I(f"s_add_u32 m0, s{sT1}, {L_ROLE + e*1024}")
                I(f"buffer_load_dwordx4 v{BT+4}, {TB}, s{sT0} offen {rflags} lds")
                if e < npc - 1: I(f"s_add_u32 s{sT0}, s{sT0}, {16*3456}")
            srd(TA, 48, 1728 * 1280)
            I(f"s_mul_i32 s{sT3}, s{sTB}, {32*1280}")
            I(f"s_mul_i32 s{sT0}, s{sWAVE}, {npc}")
            assert npc % 2 == 0
            for e in range(npc):
                I(f"s_lshl_b32 s{sT1}, s{sT0}, 10")
                I(f"s_add_u32 m0, s{sT1}, {L_W2}")
                I(f"s_and_b32 s{sT1}, s{sT0}, 3")
                I(f"s_mul_i32 s{sT1}, s{sT1}, {8*1280}")
                I(f"s_lshr_b32 s{sT2}, s{sT0}, 2")
                I(f"s_lshl_b32 s{sT2}, s{sT2}, 7")
                I(f"s_add_u32 s{sT1}, s{sT1}, s{sT2}")
                I(f"s_add_u32 s{sT1}, s{sT1}, s{sT3}")
                I(f"buffer_load_dwordx4 v{(e2, e3)[e & 1]}, {TA}, s{sT1} offen {rflags} lds")
                if e < npc - 1: I(f"s_add_u32 s{sT0}, s{sT0}, 1")
            TS(25)
        I("s_branch L_B3")
        a.label("L_erd2")
    else:
        I("s_cbranch_scc0 L_B3")
    if gate:
        lds_wait(8, gate, ge=True)
    role_dma()
    TS(25)
    a.label("L_B3")
    I("s_waitcnt lgkmcnt(0)")
    I(f"v_mov_b32 v{T+38}, {L_FLAG}")
    I("s_barrier")
    TS(13)
    I(f"ds_read_b64 v[{T+38}:{T+39}], v{T+38}")
    I(f"s_cmp_eq_u32 s{sWAVE}, 7")
    I("s_cbranch_scc1 L_comb")
    I("s_waitcnt lgkmcnt(0)")
    I(f"v_readfirstlane_b32 s{sT0}, v{T+38}")
    I(f"s_and_b32 s{sPURE}, s{sT0}, 1")
    I(f"s_and_b32 s{sNEAR}, s{sT0}, {CP}")
    I("s_branch L_role")
    a.label("L_comb")
    cM, cL, cMX, cF, cT = T + 32, T + 33, T + 34, T + 36, T + 37
    cLS = T + 35
    I(f"ds_read_b64 v[{cM}:{cL}], v{vCML}")
    for w in range(8):
        I(f"ds_read2st64_b64 {vr(T+4*w)}, v{vCR} offset0:{2*w} offset1:{2*w+1}")
    I(f"v_mov_b32 v{cT}, s{sL2E}")
    I("s_waitcnt lgkmcnt(8)")
    I(f"v_readfirstlane_b32 s{sT0}, v{T+38}")
    I(f"v_max_f32_dpp v{cMX}, v{cM}, v{cM} quad_perm:[1,0,3,2] row_mask:0xf bank_mask:0xf")
    I(f"v_max_f32_dpp v{cMX}, v{cMX}, v{cMX} quad_perm:[2,3,0,1] row_mask:0xf bank_mask:0xf")
    I(f"v_max_f32_dpp v{cMX}, v{cMX}, v{cMX} row_half_mirror row_mask:0xf bank_mask:0xf")
    I(f"v_sub_f32 v{cF}, v{cM}, v{cMX}")
    I(f"v_mul_f32 v{cF}, v{cF}, v{cT}")
    I(f"v_exp_f32 v{cF}, v{cF}")
    I(f"s_and_b32 s{sPURE}, s{sT0}, 1")
    I(f"s_and_b32 s{sNEAR}, s{sT0}, {CP}")
    I("s_waitcnt lgkmcnt(0)")
    for w in range(8):
        I(f"v_readlane_b32 s{sF+w}, v{cF}, {w}")
    for w in range(8):
        I(f"v_pk_add_f32 v[{T+4*w}:{T+4*w+1}], v[{T+4*w}:{T+4*w+1}], v[{T+4*w+2}:{T+4*w+3}]")
    for w in range(8):
        sp = f"s[{sF+(w&~1)}:{sF+(w&~1)+1}]"
        o = w & 1
        acc = T + 40 + 2 * (w & 1)
        if w < 2:
            I(f"v_pk_mul_f32 v[{acc}:{acc+1}], v[{T+4*w}:{T+4*w+1}], {sp} op_sel:[0,{o}] op_sel_hi:[1,{o}]")
        else:
            I(f"v_pk_fma_f32 v[{acc}:{acc+1}], v[{T+4*w}:{T+4*w+1}], {sp}, v[{acc}:{acc+1}] op_sel:[0,{o},0] op_sel_hi:[1,{o},1]")
    I(f"v_mul_f32 v{cLS}, v{cF}, v{cL}")
    I(f"v_pk_add_f32 v[{T+40}:{T+41}], v[{T+40}:{T+41}], v[{T+42}:{T+43}]")
    I(f"v_add_f32_dpp v{cLS}, v{cLS}, v{cLS} quad_perm:[1,0,3,2] row_mask:0xf bank_mask:0xf")
    I(f"v_cvt_pk_bf16_f32 v{T+40}, v{T+40}, v{T+41}")
    I(f"v_min_u32 v{T+40}, 0xfffffffe, v{T+40}")
    I(f"v_add_f32_dpp v{cLS}, v{cLS}, v{cLS} quad_perm:[2,3,0,1] row_mask:0xf bank_mask:0xf")
    I(f"v_min_u32 v{cMX}, 0xfffffffe, v{cMX}")
    lstore([f"buffer_store_dword v{T+40}, v{vCP}, {WS}, s{sREG} offen"], True)
    I(f"v_add_f32_dpp v{cLS}, v{cLS}, v{cLS} row_half_mirror row_mask:0xf bank_mask:0xf")
    I(f"v_min_u32 v{cLS}, 0xfffffffe, v{cLS}")
    setexec(1, 0)
    lstore([f"buffer_store_dwordx2 v[{cMX}:{cLS}], v{vCPM}, {WS}, s{sREG} offen"], True)
    setexec(0xFFFFFFFF, 0xFFFFFFFF)
    TS(14)
    if emd == 2:
        I(f"s_cmp_eq_u32 s{sROLE}, 0")
        I("s_cbranch_scc1 L_WO")
        I(f"s_cmp_eq_u32 s{sIT}, 0")
        I("s_cbranch_scc0 L_role")
        I("s_barrier")

    a.label("L_role")
    I(f"s_cmp_eq_u32 s{sROLE}, 0")
    I("s_cbranch_scc1 L_WO")
    if dyn:
        I(f"v_readfirstlane_b32 s{sTB}, v{T+39}")
        if emd: I(f"s_sub_u32 s{sTB}, s{sTB}, 1")
        I(f"s_mul_hi_u32 s{sT0}, s{sTB}, 0x2aaaaab")
        I(f"s_mul_i32 s{sT0}, s{sT0}, 96")
        I(f"s_sub_u32 s{sTB}, s{sTB}, s{sT0}")
        I(f"s_cmp_lt_u32 s{sTB}, 54")
        I("s_cbranch_scc0 L_next")
    else:
        I(f"s_cmp_eq_u32 s{sROLE}, 3")
        I("s_cbranch_scc1 L_next")
    I(f"s_cmp_eq_u32 s{sIT}, 0")
    I("s_cbranch_scc0 L_W1")
    m0_, m1_, m2_, m3_ = T, T + 1, T + 2, T + 3
    def ml_gate(thr):
        lab = a.newlab("Lg"); done = a.newlab("Lgd")
        I(f"v_lshrrev_b32 v{m0_}, 3, v{vLANE}")
        I(f"v_lshlrev_b32 v{m0_}, 7, v{m0_}")
        I(f"v_and_b32 v{m1_}, 7, v{vLANE}")
        I(f"v_lshl_add_u32 v{m0_}, v{m1_}, 3, v{m0_}")
        I(f"s_lshl_b32 s{sT1}, s{sXW}, 9")
        I(f"s_add_u32 s{sT1}, s{sT1}, {MLOFF}")
        I(f"s_add_u32 s{sT1}, s{sT1}, s{sREG}")
        setexec(0xFFFFFFFF, 0)
        a.label(lab)
        I(f"buffer_load_dword v{m1_}, v{m0_}, {WS}, s{sT1} offen sc1")
        I(f"s_add_u32 s{sSPIN}, s{sSPIN}, 1")
        I("s_waitcnt vmcnt(0)")
        I(f"v_cmp_ne_u32 vcc, -1, v{m1_}")
        I(f"s_bcnt1_i32_b64 s{sT0}, vcc")
        I(f"s_cmp_ge_u32 s{sT0}, {thr}")
        I(f"s_cbranch_scc1 {done}")
        I(f"s_cmp_lt_u32 s{sSPIN}, {spin_limit}")
        I(f"s_cbranch_scc1 {lab}")
        a.label(done)
        setexec(0xFFFFFFFF, 0xFFFFFFFF)
    if m2:
        assert y128 and sm and not emd and not th1 and not th2
        vGZ = vRDMA
        F0, F1, F2 = 28, 36, 68
        L_CS = L_CS1
        sLB, sF2o, sF2x = sRN, sRSTEP, sYM
        I("s_barrier")
        srd(TB, 44, 640 * 3456)
        I(f"s_lshl_b32 s{sT1}, s{sWAVE}, 1")
        I(f"s_add_u32 s{sT0}, s{sWAVE}, 2")
        I(f"s_cmp_lt_u32 s{sWAVE}, 4")
        I(f"s_cselect_b32 s{sT3}, s{sT1}, s{sT0}")
        I(f"s_cselect_b32 s{sRN}, 8, 4")
        I(f"s_mul_i32 s{sT1}, s{sT3}, {64*3456}")
        I(f"s_lshl_b32 s{sT0}, s{sTB}, 6")
        I(f"s_add_u32 s{sRB}, s{sT0}, s{sT1}")
        I(f"s_mov_b32 s{sRSTEP}, {16*3456}")
        I(f"s_lshl_b32 s{sYM}, s{sT3}, 12")
        I(f"s_add_u32 s{sYM}, s{sYM}, {L_ROLE}")
        I(f"v_lshrrev_b32 v{m0_}, 2, v{vLANE}")
        I(f"v_mul_u32_u24 v{m0_}, 3456, v{m0_}")
        I(f"v_and_b32 v{m1_}, 3, v{vLANE}")
        I(f"v_lshl_add_u32 v{vRDMA}, v{m1_}, 4, v{m0_}")
        I(f"s_cmp_lt_u32 s{sWAVE}, 4")
        I("s_cbranch_scc0 L_m47")
        role_dma(sYM)
        I("s_branch L_mdd")
        a.label("L_m47")
        I(f"s_cmp_lt_u32 s{sWAVE}, 6")
        I("s_cbranch_scc1 L_m45")
        role_dma(sYM, 4)
        a.label("L_m45")
        I(f"s_mul_i32 s{sT0}, s{sWAVE}, 14")
        I(f"s_sub_u32 s{sT0}, s{sT0}, 56")
        I(f"s_min_u32 s{sT0}, s{sT0}, 34")
        I(f"s_mul_i32 s{sYM+1}, s{sTB}, {32*1280}")
        I(f"v_lshrrev_b32 v{m0_}, 3, v{vLANE}")
        I(f"v_mul_u32_u24 v{m2_}, 1280, v{m0_}")
        I(f"v_and_b32 v{m1_}, 7, v{vLANE}")
        I(f"v_lshlrev_b32 v{m1_}, 4, v{m1_}")
        I(f"v_bfe_u32 v{m0_}, v{vLANE}, 4, 1")
        I(f"v_lshlrev_b32 v{m0_}, 5, v{m0_}")
        I(f"v_xor_b32 v{m1_}, v{m1_}, v{m0_}")
        I(f"v_xor_b32 v{m0_}, 64, v{m1_}")
        I(f"v_add_u32 v{m3_}, v{m2_}, v{m0_}")
        I(f"v_add_u32 v{m2_}, v{m2_}, v{m1_}")
        srd(TA, 48, 1728 * 1280)
        for e in range(14):
            if e == 6:
                I(f"s_cmp_lt_u32 s{sWAVE}, 6")
                I("s_cbranch_scc0 L_mdd")
            I(f"s_lshl_b32 s{sT1}, s{sT0}, 10")
            I(f"s_add_u32 m0, s{sT1}, {L_W2}")
            I(f"s_and_b32 s{sT1}, s{sT0}, 3")
            I(f"s_mul_i32 s{sT1}, s{sT1}, {8*1280}")
            I(f"s_lshr_b32 s{sT2}, s{sT0}, 2")
            I(f"s_lshl_b32 s{sT2}, s{sT2}, 7")
            I(f"s_add_u32 s{sT1}, s{sT1}, s{sT2}")
            I(f"s_add_u32 s{sT1}, s{sT1}, s{sYM+1}")
            I(f"buffer_load_dwordx4 v{(m2_, m3_)[e & 1]}, {TA}, s{sT1} offen {rflags} lds")
            if e < 13: I(f"s_add_u32 s{sT0}, s{sT0}, 1")
        I(f"s_cmp_eq_u32 s{sWAVE}, 5")
        I("s_cbranch_scc0 L_mdd")
        srd(TA, 46, 1728 * 2)
        I(f"s_lshl_b32 s{sT0}, s{sTB}, 6")
        I(f"v_and_b32 v{T+4}, 31, v{vLANE}")
        I(f"v_lshlrev_b32 v{T+4}, 1, v{T+4}")
        I(f"v_mov_b32 v{vB1}, 0")
        I(f"buffer_load_short_d16_hi v{vB1}, v{T+4}, {TA}, s{sT0} offen")
        a.label("L_mdd")
        TS(25)
        u0, u1, u2 = T + 5, T + 6, T + 7
        I(f"s_mov_b32 s{sLB}, s{sYM}")
        I(f"s_lshl_b32 s{sT1}, s{sT3}, 1")
        rank_off(sT0, sT1, sT2)
        I(f"v_and_b32 v{u0}, 15, v{vLANE}")
        I(f"v_lshlrev_b32 v{u1}, 6, v{u0}")
        I(f"v_lshrrev_b32 v{u2}, 4, v{vLANE}")
        I(f"v_lshl_add_u32 v{u1}, v{u2}, 4, v{u1}")
        I(f"v_add_u32 v{vGZ}, s{sT0}, v{u1}")
        I(f"s_lshl_b32 s{sT0}, s{sTB}, 7")
        I(f"s_add_u32 s{sT0}, s{sT0}, {YOFF}")
        I(f"s_lshl_b32 s{sT1}, s{sWAVE}, 14")
        I(f"s_add_u32 s{sT1}, s{sT1}, s{sT0}")
        I(f"v_lshlrev_b32 v{vA2}, 2, v{vLANE}")
        I(f"v_add_u32 v{vA2}, s{sT1}, v{vA2}")
        I(f"s_lshr_b32 s{sT1}, s{sWAVE}, 1")
        I(f"s_add_u32 s{sT1}, s{sT1}, 6")
        I(f"s_sub_u32 s{sF2o}, s{sT1}, s{sWAVE}")
        I(f"s_lshl_b32 s{sF2o}, s{sF2o}, 12")
        I(f"s_lshl_b32 s{sT1}, s{sT1}, 14")
        I(f"s_add_u32 s{sT0}, s{sT0}, s{sT1}")
        I(f"s_and_b32 s{sF2x}, s{sWAVE}, 1")
        I(f"s_lshl_b32 s{sF2x}, s{sF2x}, 6")
        I(f"s_add_u32 s{sT0}, s{sT0}, s{sF2x}")
        I(f"s_cmp_lt_u32 s{sWAVE}, 4")
        I(f"s_cselect_b32 s{sT0}, {BIG:#x}, s{sT0}")
        setexec(0, 0xFFFF)
        I(f"v_lshl_add_u32 v{vA2}, v{u0}, 2, s{sT0}")
        setexec(0, 0xFFFF0000)
        I(f"v_mov_b32 v{vA2}, {BIG:#x}")
        setexec(0xFFFFFFFF, 0xFFFFFFFF)
        I(f"s_lshl_b32 s{sT0}, s{sWAVE}, 12")
        I(f"s_add_u32 s{sT0}, s{sT0}, {L_W2}")
        tr_addr(vA3, 128, sT0, u1)
        I(f"v_bfe_u32 v{u1}, v{vLANE}, 3, 1")
        I(f"v_bfe_u32 v{u2}, v{vLANE}, 4, 1")
        I(f"v_lshl_add_u32 v{u2}, v{u2}, 1, v{u1}")
        I(f"v_lshl_add_u32 v{vA3}, v{u2}, 5, v{vA3}")
        I(f"v_mul_u32_u24 v{u1}, 0xaaaa, v{u1}")
        I(f"v_or_b32 v{vSEL+5}, 0x4444, v{u1}")
        I(f"v_bfe_u32 v{u1}, v{vLANE}, 4, 1")
        I(f"v_and_b32 v{u2}, 2, v{vLANE}")
        I(f"v_lshlrev_b32 v{u2}, 3, v{u2}")
        I(f"v_lshl_add_u32 v{vA1}, v{u1}, 5, v{u2}")
        I(f"s_mul_i32 s{sT0}, s{sWAVE}, {PP}")
        I(f"v_lshrrev_b32 v{u2}, 5, v{vLANE}")
        I(f"v_lshlrev_b32 v{u2}, 7, v{u2}")
        I(f"v_lshl_add_u32 v{u2}, v{u0}, 3, v{u2}")
        I(f"v_lshl_add_u32 v{u2}, v{u1}, 2, v{u2}")
        I(f"v_add_u32 v{vPW}, s{sT0}, v{u2}")
        I("s_branch L_W1")

    if not m2:
        if instr: I(f"s_mov_b32 s{sNT}, s{sTB}")
        srd(TB, 44, 640 * 3456)
        I(f"s_mul_i32 s{sT1}, s{sWAVE}, {128*3456}")
        I(f"s_lshl_b32 s{sT0}, s{sTB}, 6")
        I(f"s_add_u32 s{sRB}, s{sT0}, s{sT1}")
        I(f"s_mov_b32 s{sRSTEP}, {16*3456}")
        I(f"s_mov_b32 s{sRN}, 8")
        I(f"v_lshrrev_b32 v{m0_}, 2, v{vLANE}")
        I(f"v_mul_u32_u24 v{m0_}, 3456, v{m0_}")
        I(f"v_and_b32 v{m1_}, 3, v{vLANE}")
        I(f"v_lshl_add_u32 v{vRDMA}, v{m1_}, 4, v{m0_}")
        I(f"s_add_u32 s{sT0}, s{sT0}, {YOFF}")
        if y128:
            I(f"s_lshl_b32 s{sT1}, s{sTB}, 6")
            I(f"s_add_u32 s{sT0}, s{sT0}, s{sT1}")
            I(f"s_lshl_b32 s{sT1}, s{sWAVE}, 14")
            I(f"s_add_u32 s{sT0}, s{sT0}, s{sT1}")
            I(f"v_bfe_u32 v{m0_}, v{vLANE}, 2, 2")
            I(f"v_lshlrev_b32 v{m0_}, 15, v{m0_}")
            I(f"v_and_b32 v{m1_}, 3, v{vLANE}")
            I(f"v_lshl_add_u32 v{m0_}, v{m1_}, 5, v{m0_}")
            I(f"v_lshrrev_b32 v{m1_}, 4, v{vLANE}")
            I(f"v_lshl_add_u32 v{m0_}, v{m1_}, 3, v{m0_}")
            I(f"v_add_u32 v{vA2}, s{sT0}, v{m0_}")
            I(f"s_lshl_b32 s{sT0}, s{sWAVE}, 12")
            I(f"s_add_u32 s{sT0}, s{sT0}, {L_W2}")
            tr_addr(vA3, 128, sT0, m0_)
            I(f"v_bfe_u32 v{m0_}, v{vLANE}, 3, 1")
            I(f"v_bfe_u32 v{m1_}, v{vLANE}, 4, 1")
            I(f"v_lshl_add_u32 v{m0_}, v{m1_}, 1, v{m0_}")
            I(f"v_lshl_add_u32 v{vA3}, v{m0_}, 5, v{vA3}")
            I(f"v_xor_b32 v{vA1}, 32, v{vA3}")
            I(f"v_xor_b32 v{vA0}, 64, v{vA3}")
            I(f"s_cmp_ge_u32 s{sWAVE}, 6")
            I(f"s_cselect_b32 s{sYM}, 255, 15")
            I(f"s_mul_i32 s{sYM}, s{sYM}, 0x10001")
            I(f"s_mov_b32 s{sYM+1}, s{sYM}")
        elif y64:
            I(f"s_and_b32 s{sT1}, s{sWAVE}, 1")
            I(f"s_lshl_b32 s{sT1}, s{sT1}, 12")
            I(f"s_add_u32 s{sT0}, s{sT0}, s{sT1}")
            I(f"s_lshr_b32 s{sT2}, s{sWAVE}, 1")
            I(f"s_lshl_b32 s{sT1}, s{sT2}, 14")
            I(f"s_add_u32 s{sT0}, s{sT0}, s{sT1}")
            I(f"v_bfe_u32 v{m0_}, v{vLANE}, 1, 3")
            I(f"v_lshlrev_b32 v{m0_}, 16, v{m0_}")
            I(f"v_and_b32 v{m1_}, 1, v{vLANE}")
            I(f"v_lshl_add_u32 v{m0_}, v{m1_}, 5, v{m0_}")
            I(f"v_lshrrev_b32 v{m1_}, 4, v{vLANE}")
            I(f"v_lshl_add_u32 v{m0_}, v{m1_}, 3, v{m0_}")
            I(f"v_add_u32 v{vA2}, s{sT0}, v{m0_}")
            I(f"s_lshl_b32 s{sT0}, s{sT2}, 12")
            I(f"s_add_u32 s{sT0}, s{sT0}, {L_W2}")
            tr_addr(vA3, 128, sT0, m0_)
            I(f"v_bfe_u32 v{m0_}, v{vLANE}, 3, 1")
            I(f"v_bfe_u32 v{m1_}, v{vLANE}, 4, 1")
            I(f"v_lshl_add_u32 v{m0_}, v{m1_}, 1, v{m0_}")
            I(f"s_and_b32 s{sT1}, s{sWAVE}, 1")
            I(f"s_lshl_b32 s{sT1}, s{sT1}, 1")
            I(f"v_xor_b32 v{m0_}, s{sT1}, v{m0_}")
            I(f"v_lshl_add_u32 v{vA3}, v{m0_}, 5, v{vA3}")
            I(f"v_xor_b32 v{vA1}, 32, v{vA3}")
            I(f"s_cmp_lt_u32 s{sWAVE}, 4")
            I(f"s_cselect_b32 s{sYM}, 63, 15")
            I(f"s_mul_i32 s{sYM}, s{sYM}, 0x10001")
            I(f"s_mov_b32 s{sYM+1}, s{sYM}")
        else:
            I(f"s_and_b32 s{sT1}, s{sWAVE}, 2")
            I(f"s_lshl_b32 s{sT1}, s{sT1}, 11")
            I(f"s_add_u32 s{sT0}, s{sT0}, s{sT1}")
            I(f"s_lshr_b32 s{sT2}, s{sWAVE}, 2")
            I(f"s_lshl_b32 s{sT1}, s{sT2}, 14")
            I(f"s_add_u32 s{sT0}, s{sT0}, s{sT1}")
            I(f"s_and_b32 s{sT1}, s{sWAVE}, 1")
            I(f"s_lshl_b32 s{sT1}, s{sT1}, 5")
            I(f"s_add_u32 s{sT0}, s{sT0}, s{sT1}")
            I(f"v_and_b32 v{m0_}, 15, v{vLANE}")
            I(f"v_lshlrev_b32 v{m0_}, 15, v{m0_}")
            I(f"v_lshrrev_b32 v{m1_}, 4, v{vLANE}")
            I(f"v_lshl_add_u32 v{m0_}, v{m1_}, 3, v{m0_}")
            I(f"v_add_u32 v{vA2}, s{sT0}, v{m0_}")
            I(f"s_lshl_b32 s{sT0}, s{sT2}, 12")
            I(f"s_add_u32 s{sT0}, s{sT0}, {L_W2}")
            tr_addr(vA3, 128, sT0, m0_)
            I(f"v_bfe_u32 v{m0_}, v{vLANE}, 3, 1")
            I(f"v_bfe_u32 v{m1_}, v{vLANE}, 4, 1")
            I(f"v_lshl_add_u32 v{m0_}, v{m1_}, 1, v{m0_}")
            I(f"s_and_b32 s{sT1}, s{sWAVE}, 3")
            I(f"v_xor_b32 v{m0_}, s{sT1}, v{m0_}")
            I(f"v_lshl_add_u32 v{vA3}, v{m0_}, 5, v{vA3}")
        if th1:
            I(f"s_cmp_eq_u32 s{sWAVE}, 6")
            I("s_cbranch_scc0 L_g1")
            ml_gate(th1)
            a.label("L_g1")
        if emd: I(f"s_waitcnt vmcnt({40 // emw})")
        I("s_barrier")
        I(f"s_cmp_ge_u32 s{sWAVE}, 5")
        I("s_cbranch_scc1 L_w2d")
        if not emd:
            role_dma()
            TS(25)
        I("s_branch L_W1")
        a.label("L_w2d")
        if th2 > th1:
            ml_gate(th2)
        if not emd:
            I(f"s_mul_i32 s{sT3}, s{sTB}, {32*1280}")
            I(f"s_sub_u32 s{sT0}, s{sWAVE}, 5")
            I(f"s_mul_i32 s{sT0}, s{sT0}, 13")
            I(f"v_lshrrev_b32 v{m0_}, 3, v{vLANE}")
            I(f"v_mul_u32_u24 v{m2_}, 1280, v{m0_}")
            I(f"v_and_b32 v{m1_}, 7, v{vLANE}")
            I(f"v_lshlrev_b32 v{m1_}, 4, v{m1_}")
            I(f"v_bfe_u32 v{m0_}, v{vLANE}, 4, 1")
            I(f"v_lshlrev_b32 v{m0_}, 5, v{m0_}")
            I(f"v_xor_b32 v{m1_}, v{m1_}, v{m0_}")
            I(f"s_and_b32 s{sT1}, s{sT0}, 1")
            I(f"s_lshl_b32 s{sT1}, s{sT1}, 6")
            I(f"v_xor_b32 v{m1_}, s{sT1}, v{m1_}")
            I(f"v_xor_b32 v{m0_}, 64, v{m1_}")
            I(f"v_add_u32 v{m3_}, v{m2_}, v{m0_}")
            I(f"v_add_u32 v{m2_}, v{m2_}, v{m1_}")
            srd(TA, 48, 1728 * 1280)
            for e in range(14):
                I(f"s_lshl_b32 s{sT1}, s{sT0}, 10")
                I(f"s_add_u32 m0, s{sT1}, {L_W2}")
                I(f"s_and_b32 s{sT1}, s{sT0}, 3")
                I(f"s_mul_i32 s{sT1}, s{sT1}, {8*1280}")
                I(f"s_lshr_b32 s{sT2}, s{sT0}, 2")
                I(f"s_lshl_b32 s{sT2}, s{sT2}, 7")
                I(f"s_add_u32 s{sT1}, s{sT1}, s{sT2}")
                I(f"s_add_u32 s{sT1}, s{sT1}, s{sT3}")
                I(f"buffer_load_dwordx4 v{(m2_, m3_)[e & 1]}, {TA}, s{sT1} offen {rflags} lds")
                if e < 13: I(f"s_add_u32 s{sT0}, s{sT0}, 1")
        srd(TA, 46, 1728 * 2)
        I(f"s_lshl_b32 s{sT0}, s{sTB}, 6")
        I(f"v_and_b32 v{m0_}, 31, v{vLANE}")
        I(f"v_lshlrev_b32 v{m0_}, 1, v{m0_}")
        I(f"v_mov_b32 v{vB1}, 0")
        I(f"buffer_load_short_d16_hi v{vB1}, v{m0_}, {TA}, s{sT0} offen")
        for b_ in HB5:
            for i in range(4):
                I(f"v_mov_b32 v{b_+i}, 0")
        TS(25)
        I("s_branch L_W1")

    def role_base():
        I(f"s_lshl_b32 s{sT0}, s{sWAVE}, 13")
        I(f"s_add_u32 s{sT0}, s{sT0}, {L_ROLE}")

    a.label("L_WO")
    if g1:
        if pth:
            I(f"s_cmp_eq_u32 s{sWAVE}, 6")
            I("s_cbranch_scc0 L_G1")
            I(f"s_cmp_eq_u32 s{sIT}, 0")
            I("s_cbranch_scc0 L_G1")
            ml_gate(pth)
            a.label("L_G1")
        if g1 == 2:
            I(f"s_cmp_eq_u32 s{sIT}, 0")
            I("s_cbranch_scc1 L_G1b")
            I("s_barrier")
            I("s_branch L_WO0")
            a.label("L_G1b")
        else:
            I("s_barrier")
    I(f"s_cmp_eq_u32 s{sIT}, 0")
    I("s_cbranch_scc0 L_WO0")
    role_base()
    tr_addr(T + 47, 64, sT0)
    I("s_waitcnt vmcnt(0)")
    for ks in range(2):
        for t in range(2):
            b = vRB + 4 * (ks * 2 + t)
            o = ks * 2048 + t * 32
            I(f"ds_read_b64_tr_b16 v[{b}:{b+1}], v{T+47} offset:{o}")
            I(f"ds_read_b64_tr_b16 v[{b+2}:{b+3}], v{T+47} offset:{o+256}")
    I("s_waitcnt lgkmcnt(0)")
    TS(15)
    a.label("L_WO0")
    I(f"s_cmp_eq_u32 s{sWAVE}, 5")
    I("s_cbranch_scc0 L_WO1")
    if q2 == 2:
        I(f"s_cmp_eq_u32 s{sIT}, 0")
        I("s_cbranch_scc1 L_WO2")
        I(f"buffer_load_ushort v{vXF}, v{vXFA}, {WS}, 0 offen sc1")
        a.label("L_WO2")
    I("s_waitcnt vmcnt(0)")
    I(f"v_lshlrev_b32 v{vXF}, 16, v{vXF}")
    a.label("L_WO1")
    A0, Ma, La = T + 44, T + 48, T + 49
    Dw = [[T + 8, T + 12], [T + 16, T + 20]]
    wMX, wE, wT, wL2E, wR0, wR1 = [T + 24 + i for i in range(6)]
    I(f"v_mov_b32 v{wL2E}, s{sL2E}")
    if pl == 1:
        light(f"buffer_load_dword v{Ma}, v{vA2}, {WS}, s{sREG} offen sc1", Ma)
    if pl == 2:
        light(f"buffer_load_dword v{A0}, v{vA0}, {WS}, s{sREG} offen sc1", A0, (0xFF, 0))
    poll([f"buffer_load_dwordx4 {vr(A0)}, v{vA0}, {WS}, s{sREG} offen sc1",
          f"buffer_load_dwordx2 v[{Ma}:{La}], v{vA2}, {WS}, s{sREG} offen sc1"], list(range(A0, A0 + 6)),
         groups=[range(A0, A0 + 4), range(A0 + 4, A0 + 6)], hop=1)
    TS(16)
    seq = [
        f"v_max_f32_dpp v{wMX}, v{Ma}, v{Ma} quad_perm:[1,0,3,2] row_mask:0xf bank_mask:0xf",
        f"v_max_f32_dpp v{wMX}, v{wMX}, v{wMX} quad_perm:[2,3,0,1] row_mask:0xf bank_mask:0xf",
        f"v_max_f32_dpp v{wMX}, v{wMX}, v{wMX} row_half_mirror row_mask:0xf bank_mask:0xf",
        f"v_sub_f32 v{wE}, v{Ma}, v{wMX}",
    ]
    k = 0
    for t in range(2):
        for ks in range(2):
            I(f"v_mfma_f32_16x16x32_bf16 {vr(Dw[t][ks])}, {vr(A0)}, {vr(vRB+4*(ks*2+t))}, 0")
            I(seq[k]); k += 1
    I(f"v_mul_f32 v{wE}, v{wE}, v{wL2E}")
    I(f"v_exp_f32 v{wE}, v{wE}")
    I(f"v_mul_f32 v{wT}, v{wE}, v{La}")
    mrg = [f"v_mov_b32_dpp v{Dw[t][0]+i}, v{Dw[t][1]+i} quad_perm:[0,1,2,3] row_mask:0xc bank_mask:0xf"
           for t in range(2) for i in range(4)]
    I(mrg[0]); I(mrg[1])
    I(f"v_add_f32_dpp v{wT}, v{wT}, v{wT} quad_perm:[1,0,3,2] row_mask:0xf bank_mask:0xf")
    I(mrg[2]); I(mrg[3])
    I(f"v_add_f32_dpp v{wT}, v{wT}, v{wT} quad_perm:[2,3,0,1] row_mask:0xf bank_mask:0xf")
    I(f"v_mov_b32_dpp v{wE}, v{wE} row_ror:4 row_mask:0xf bank_mask:0xa")
    I(mrg[4])
    I(f"v_add_f32_dpp v{wT}, v{wT}, v{wT} row_half_mirror row_mask:0xf bank_mask:0xf")
    I(mrg[5])
    I(f"v_rcp_f32 v{wT}, v{wT}")
    I(mrg[6]); I(mrg[7])
    for i in range(4):
        for t in range(2):
            D = Dw[t][0]; R = (wR0, wR1)[t]
            op = "v_mul_f32_dpp" if i == 0 else "v_fmac_f32_dpp"
            I(f"{op} v{R}, v{wE}, v{D+i} quad_perm:[{i},{i},{i},{i}] row_mask:0xf bank_mask:0xf")
    I(f"v_mul_f32 v{wR0}, v{wR0}, v{wT}")
    I(f"v_mul_f32 v{wR1}, v{wR1}, v{wT}")
    I(f"ds_write_b32 v{vPW}, v{wR0} offset:{L_PB2}")
    I(f"ds_write_b32 v{vPW}, v{wR1} offset:{L_PB2+256}")
    I("s_waitcnt lgkmcnt(0)")
    I("s_barrier")
    I(f"s_cmp_eq_u32 s{sWAVE}, 5")
    I("s_cbranch_scc0 L_next")
    TS(17)
    reduce_read(8, L_PB2)
    I("s_waitcnt lgkmcnt(0)")
    I(f"v_add_f32 v{T+30}, v{T+30}, v{vXF}")
    reduce_sum(8, rTOT)
    pack_pairs(rTOT, rU)
    I(f"v_mov_b32 v{T}, v{rU}")
    I(f"v_mov_b32_dpp v{T+1}, v{rU} quad_perm:[2,2,2,2] row_mask:0xf bank_mask:0xf")
    I(f"v_mov_b32_dpp v{T+2}, v{rU} row_shl:4 row_mask:0xf bank_mask:0xf")
    I(f"v_mov_b32_dpp v{T+3}, v{rU} row_shl:6 row_mask:0xf bank_mask:0xf")
    setexec(0x01010101, 0)
    I(f"buffer_store_dwordx4 {vr(T)}, v{vRP}, {WS}, s{sREG} offen sc1")
    if dual:
        I(f"buffer_store_dwordx4 {vr(T)}, v{vRP}, {WS}, s{sREG2} offen sc1")
    setexec(0xFFFFFFFF, 0xFFFFFFFF)
    TS(18)
    I("s_branch L_next")

    if m2:
        D0, D1, S1, S2, HB, D2 = T, T + 4, T + 8, T + 12, T + 16, T + 44
        IDW = vSEL + 5
        def it0(fn):
            l = a.newlab("Li")
            I(f"s_cmp_eq_u32 s{sIT}, 0")
            I(f"s_cbranch_scc0 {l}")
            fn()
            a.label(l)
        def w2_frags(nb, x0):
            for e in range(2 * nb):
                b = (F0, F0 + 4, F1, F1 + 4, F2, F2 + 4)[e]
                va = vA3
                if e:
                    va = x0 + (e & 1)
                    if e < 4: I(f"v_xor_b32 v{va}, {32*e}, v{vA3}")
                    elif e == 4:
                        I(f"v_xor_b32 v{va}, s{sF2x}, v{vA3}")
                        I(f"v_add_u32 v{va}, s{sF2o}, v{va}")
                    else: I(f"v_xor_b32 v{va}, 32, v{x0}")
                I(f"ds_read_b64_tr_b16 v[{b}:{b+1}], v{va}")
                I(f"ds_read_b64_tr_b16 v[{b+2}:{b+3}], v{va} offset:512")
        def w2_tail(nb):
            I("s_barrier")
            setexec(0x00050005, 0x000A000A)
            for e in range(nb):
                I(f"ds_read_b128 {vr(HB+4*e)}, v{vA1} offset:{L_H}")
                I("s_lshl_b64 exec, exec, 4" if e < nb - 1 else "s_mov_b64 exec, -1")
            TS(23)
            for e in range(nb):
                I(f"s_waitcnt lgkmcnt({nb-1-e})")
                I(f"v_smfmac_f32_16x16x64_bf16 {vr(D2)}, {vr(HB+4*e)}, {vr((F0, F1, F2)[e], 8)}, v{IDX}")
            I(f"v_pk_add_f32 v[{D2}:{D2+1}], v[{D2}:{D2+1}], v[{D2+2}:{D2+3}]")
            I(f"v_cvt_pk_bf16_f32 v{D2}, v{D2}, v{D2+1}")
            I(f"v_min_u32 v{D2}, 0xfffffffe, v{D2}")
            I(f"buffer_store_dword v{D2}, v{vA2}, {WS}, s{sREG} offen sc1")
            I(f"buffer_store_dword v{D2}, v{vA2}, {WS}, s{sREG2} offen sc1")
            TS(24)
            I("s_branch L_next")
        def zero(rs):
            for r_ in rs: I(f"v_mov_b32 v{r_}, 0")
        def gwave(ns, nb):
            lab = a.newlab("Lgw")
            ones()
            I(f"s_cmp_eq_u32 s{sIT}, 0")
            I(f"s_cbranch_scc0 {lab}a")
            x0, x1 = T + 46, T + 47
            I(f"v_bfe_u32 v{x0}, v{vLANE}, 3, 1")
            I(f"v_lshlrev_b32 v{x0}, 5, v{x0}")
            I(f"v_bfe_u32 v{x1}, v{vLANE}, 2, 1")
            I(f"v_add_u32 v{x0}, v{x0}, v{x1}")
            I(f"v_lshrrev_b32 v{x1}, 4, v{vLANE}")
            I(f"v_lshl_add_u32 v{x0}, v{x1}, 2, v{x0}")
            I(f"v_lshlrev_b32 v{x0}, 6, v{x0}")
            I(f"v_and_b32 v{x1}, 3, v{vLANE}")
            I(f"v_lshl_add_u32 v{x0}, v{x1}, 3, v{x0}")
            I(f"v_add_u32 v{x0}, s{sLB}, v{x0}")
            I(f"s_lshl_b32 s{sT0}, s{sWAVE}, 7")
            I(f"v_and_b32 v{x1}, 15, v{vLANE}")
            I(f"v_lshlrev_b32 v{x1}, 2, v{x1}")
            I(f"v_add_u32 v{x1}, s{sT0}, v{x1}")
            I(f"s_waitcnt vmcnt({0 if ns == 2 else 6})")
            for sg in range(ns):
                for t in range(2):
                    for qd in range(2):
                        for jj in range(2):
                            b = vRB + 16 * sg + 8 * t + 4 * qd + 2 * jj
                            I(f"ds_read_b64_tr_b16 v[{b}:{b+1}], v{x0} offset:{sg*4096 + qd*1024 + jj*128 + t*32}")
                I("s_waitcnt lgkmcnt(0)")
            for t in range(2):
                for k_ in range(2 * ns):
                    b = vRB + 16 * (k_ >> 1) + 8 * t + 4 * (k_ & 1)
                    I(f"v_mfma_f32_16x16x32_bf16 {vr(T+4*t)}, {vr(ONES)}, {vr(b)}, {'0' if k_ == 0 else vr(T+4*t)}")
            I(f"ds_write_b32 v{x1}, v{T} offset:{L_CS}")
            I(f"ds_write_b32 v{x1}, v{T+4} offset:{L_CS+64}")
            TS(15)
            I(f"s_branch {lab}b")
            a.label(lab + "a")
            w2_frags(nb, T + 50)
            a.label(lab + "b")
            zero(list(range(D0, D0 + 12)) + list(range(HB, HB + 4 * nb)) + list(range(D2, D2 + 4)) + (list(range(XA + 4, XA + 8)) if ns == 1 else []))
            I(f"s_add_u32 s{sT1}, s{sREG}, {ZOFF}")
            I(f"s_add_u32 s{sT1}, s{sT1}, s{sNEAR}")
            I(f"s_mov_b32 s{sF}, 0x00ff00ff")
            I(f"s_mov_b32 s{sF+1}, 0xff00ff00")
            poll([f"buffer_load_dwordx4 {vr(XA+4*k_)}, v{vGZ}, {WS}, s{sT1} offen offset:{2*ZR*k_} sc1" for k_ in range(ns)],
                 [XA + 4 * k_ for k_ in range(ns)], groups=[[XA + 4 * k_] for k_ in range(ns)])
            TS(19)
            for k_ in range(ns):
                I(f"v_mfma_f32_16x16x32_bf16 {vr(S2)}, {vr(XA+4*k_)}, {vr(XA+4*k_)}, {vr(S2) if k_ else '0'}")
            I(f"v_smfmac_f32_16x16x64_bf16 {vr(S1)}, {vr(ONES)}, {vr(XA, 8)}, v{IDW}")
            st = [f"v_pk_add_f32 v[{S2}:{S2+1}], v[{S2}:{S2+1}], v[{S2+2}:{S2+3}]",
                  f"v_add_f32 v{S2}, v{S2}, v{S2+1}",
                  f"v_cndmask_b32 v{S1+1}, 0, v{S2}, s[{sF}:{sF+1}]"]
            for m_ in ("quad_perm:[1,0,3,2]", "quad_perm:[2,3,0,1]", "row_half_mirror", "row_mirror"):
                st += [f"v_add_f32_dpp v{S1}, v{S1}, v{S1} {m_} {DPF}", f"v_add_f32_dpp v{S1+1}, v{S1+1}, v{S1+1} {m_} {DPF}"]
            st += [f"v_add_f32_dpp v{S1+1}, v{S1+1}, v{S1+1} row_bcast:15 row_mask:0xa bank_mask:0xf",
                   f"v_add_f32_dpp v{S1}, v{S1}, v{S1} row_bcast:31 row_mask:0xc bank_mask:0xf",
                   f"v_add_f32_dpp v{S1+1}, v{S1+1}, v{S1+1} row_bcast:31 row_mask:0xc bank_mask:0xf"]
            for k_ in range(ns):
                for t in range(2):
                    I(f"v_smfmac_f32_16x16x64_bf16 {vr(D0+4*t)}, {vr(XA+4*k_)}, {vr(vRB+16*k_+8*t, 8)}, v{IDW}")
                    if ns == 2 and k_ == 1 and t == 0:
                        I(st.pop(0)); I(st.pop(0))
            dp = [f"v_pk_add_f32 v[{D0}:{D0+1}], v[{D0}:{D0+1}], v[{D0+2}:{D0+3}]",
                  f"v_pk_add_f32 v[{D1}:{D1+1}], v[{D1}:{D1+1}], v[{D1+2}:{D1+3}]",
                  f"v_add_f32 v{D0}, v{D0}, v{D0+1}",
                  f"v_add_f32 v{D1}, v{D1}, v{D1+1}",
                  f"v_permlane32_swap_b32 v{D0}, v{D1}",
                  f"v_add_f32 v{D0}, v{D0}, v{D1}",
                  f"ds_write_b32 v{vPW}, v{D0} offset:{L_PB1}"]
            n1 = 5 if ns == 2 else 7
            for x_ in st[:n1]: I(x_)
            st = st[n1:]
            while st or dp:
                if dp: I(dp.pop(0))
                if st: I(st.pop(0))
            setexec(0, 0x80000000)
            I(f"ds_write_b64 v{vPW}, v[{S1}:{S1+1}] offset:{L_PB1 + 260}")
            setexec(0xFFFFFFFF, 0xFFFFFFFF)
            I("s_waitcnt lgkmcnt(0)")
            TS(20)
            I("s_barrier")
            it0(lambda: (w2_frags(nb, T + 50), I("s_waitcnt lgkmcnt(0)")))
            w2_tail(nb)
        a.label("L_W1")
        I(f"s_cmp_lt_u32 s{sWAVE}, 4")
        I("s_cbranch_scc0 L_W4")
        gwave(2, 2)
        a.label("L_W4")
        I(f"s_cmp_lt_u32 s{sWAVE}, 6")
        I("s_cbranch_scc1 L_W45")
        gwave(1, 3)
        a.label("L_W45")
        zero(list(range(HB, HB + 12)) + list(range(D2, D2 + 4)))
        I(f"s_cmp_eq_u32 s{sWAVE}, 5")
        I("s_cbranch_scc1 L_W5")
        I("s_waitcnt vmcnt(0)")
        I("s_barrier")
        w2_frags(3, T + 50)
        I("s_waitcnt lgkmcnt(0)")
        I("s_branch L_W1t")
        a.label("L_W5")
        EPS = 1e-5
        ra, rz, rh, rK, rE, rc = T + 48, T + 49, T + 40, T + 32, T + 34, T + 28
        SB, CB = vRB, vRB + 12
        I(f"v_mov_b32 v{rK}, {f2u(math.sqrt(1 + EPS) / 640):#x}")
        I(f"v_mov_b32 v{rK+1}, {f2u((1 + EPS) / 640):#x}")
        I(f"v_mov_b32 v{rE}, 0")
        I(f"v_mov_b32 v{rE+1}, {f2u(EPS * EPS):#x}")
        I(f"v_mov_b32 v{rC1}, {f2u(GC1):#x}")
        I(f"v_mov_b32 v{rC2}, {f2u(GC2):#x}")
        I(f"v_lshlrev_b32 v{ra}, 3, v{vLANE}")
        I(f"v_lshlrev_b32 v{rc}, 2, v{vLANE}")
        I(f"v_mov_b32 v{rz}, 0")
        I(f"v_and_b32 v{rh}, 17, v{vLANE}")
        I(f"v_and_b32 v{rT}, 2, v{vLANE}")
        I(f"v_lshl_add_u32 v{rh}, v{rT}, 2, v{rh}")
        I(f"v_bfe_u32 v{rT}, v{vLANE}, 2, 2")
        I(f"v_lshl_add_u32 v{rh}, v{rT}, 1, v{rh}")
        I(f"v_lshlrev_b32 v{rh}, 1, v{rh}")
        I("s_waitcnt vmcnt(0)")
        I(f"s_cmp_eq_u32 s{sIT}, 0")
        I("s_cbranch_scc1 L_W5a")
        w2_frags(3, T + 50)
        I("s_waitcnt lgkmcnt(0)")
        a.label("L_W5a")
        I("s_barrier")
        TS(21)
        GW = (0, 1, 2, 3, 6, 7)
        for i, v in enumerate(GW):
            I(f"ds_read_b64 v[{SB+2*i}:{SB+2*i+1}], v{rz} offset:{L_PB1 + 512 + v*PP}")
        for i, v in enumerate(GW):
            I(f"ds_read_b64 v[{T+2*i}:{T+2*i+1}], v{ra} offset:{L_PB1 + v*PP}")
        def sum6(b):
            return [f"v_pk_add_f32 v[{b+2*d_}:{b+2*d_+1}], v[{b+2*d_}:{b+2*d_+1}], v[{b+2*s_}:{b+2*s_+1}]" for d_, s_ in ((0, 1), (2, 3), (4, 5), (0, 2), (0, 4))]
        I("s_waitcnt lgkmcnt(6)")
        for x_ in sum6(SB): I(x_)
        I(f"v_pk_fma_f32 v[{SB}:{SB+1}], v[{SB}:{SB+1}], v[{rK}:{rK+1}], v[{rE}:{rE+1}]")
        I(f"v_fma_f32 v{rR}, -v{SB}, v{SB}, v{SB+1}")
        I(f"v_max_f32 v{rR}, v{rR}, v{rE+1}")
        I(f"v_rsq_f32 v{rR}, v{rR}")
        I("s_waitcnt lgkmcnt(0)")
        def cs0():
            for i, v in enumerate(GW):
                I(f"ds_read_b32 v{CB+i}, v{rc} offset:{L_CS + v*128}")
            I("s_waitcnt lgkmcnt(0)")
            w2_frags(3, T + 50)
            I(f"v_pk_add_f32 v[{CB}:{CB+1}], v[{CB}:{CB+1}], v[{CB+2}:{CB+3}]")
            I(f"v_pk_add_f32 v[{CB}:{CB+1}], v[{CB}:{CB+1}], v[{CB+4}:{CB+5}]")
            I(f"v_add_f32 v{CB}, v{CB}, v{CB+1}")
            I(f"v_mul_f32 v{vCS1}, {f2u(1 / math.sqrt(1 + EPS)):#x}, v{CB}")
        it0(cs0)
        for x_ in sum6(T): I(x_)
        I(f"v_fma_f32 v{T+1}, -v{SB}, v{vCS1}, v{T+1}")
        I(f"v_add_f32 v{T}, v{T}, v{T+1}")
        I(f"v_fma_f32 v{rU}, v{T}, v{rR}, v{vB1}")
        I(f"v_mul_f32 v{rT}, v{rU}, v{rU}")
        I(f"v_fma_f32 v{rT}, v{rT}, v{rC2}, v{rC1}")
        I(f"v_mul_f32 v{rT}, v{rT}, v{rU}")
        I(f"v_exp_f32 v{rT}, v{rT}")
        I(f"v_add_f32 v{rT}, 1.0, v{rT}")
        I(f"v_rcp_f32 v{rT}, v{rT}")
        setexec(0xFFFFFFFF, 0)
        I(f"v_mul_f32 v{rU}, v{rU}, v{rT}")
        I(f"v_cvt_pk_bf16_f32 v{rU}, v{rU}, v{rU}")
        I(f"ds_write_b16 v{rh}, v{rU} offset:{L_H}")
        setexec(0xFFFFFFFF, 0xFFFFFFFF)
        TS(22)
        I("s_waitcnt lgkmcnt(0)")
        a.label("L_W1t")
        w2_tail(3)

    if not m2:
        ha = T + 48
        def w2_frags(FR, wait=True):
            for e in range(len(FR)):
                va, o = (vA3, e * 8192) if not y64 else ((vA3, vA1)[e & 1], (e >> 1) * 16384)
                if y128: va, o = (vA3, vA1, vA0, T + 51)[e & 3], (e >> 2) * 8192
                if y128 and e == 0: I(f"v_xor_b32 v{T+51}, 96, v{vA3}")
                if e == 4 and len(FR) == 8: I("s_waitcnt lgkmcnt(0)")
                I(f"ds_read_b64_tr_b16 v[{FR[e]}:{FR[e]+1}], v{va} offset:{o}")
                I(f"ds_read_b64_tr_b16 v[{FR[e]+2}:{FR[e]+3}], v{va} offset:{o+512}")
            if wait: I("s_waitcnt lgkmcnt(0)")
        def w2_tail(FR, HB, D2):
            ne = len(FR)
            I("s_barrier")
            setexec(0x00010001, 0x00010001)
            for e in range(ne):
                I(f"ds_read_b128 {vr(HB[e])}, v{ha} offset:{L_H}")
                I("s_lshl_b64 exec, exec, 1" if e < ne - 1 else "s_mov_b64 exec, -1")
            TS(23)
            for e in range(ne):
                if ne == 6 and e == 4:
                    I(f"s_cmp_lt_u32 s{sWAVE}, 4")
                    I("s_cbranch_scc0 L_w24")
                if ne == 8 and e == 4:
                    I(f"s_cmp_ge_u32 s{sWAVE}, 6")
                    I("s_cbranch_scc0 L_w24")
                I(f"s_waitcnt lgkmcnt({ne-1-e})")
                I(f"v_mfma_f32_16x16x32_bf16 {vr(D2)}, {vr(FR[e])}, {vr(HB[e])}, {vr(D2) if e else '0'}")
            if ne >= 6: a.label("L_w24")
            if y64: I(f"s_mov_b64 exec, s[{sYM}:{sYM+1}]")
            else: setexec(0x001F001F, 0x001F001F)
            I(f"v_cvt_pk_bf16_f32 v{D2}, v{D2}, v{D2+1}")
            I(f"v_cvt_pk_bf16_f32 v{D2+1}, v{D2+2}, v{D2+3}")
            I(f"v_min_u32 v{D2}, 0xfffffffe, v{D2}")
            I(f"v_min_u32 v{D2+1}, 0xfffffffe, v{D2+1}")
            I(f"buffer_store_dwordx2 v[{D2}:{D2+1}], v{vA2}, {WS}, s{sREG} offen sc1")
            if dual:
                I(f"buffer_store_dwordx2 v[{D2}:{D2+1}], v{vA2}, {WS}, s{sREG2} offen sc1")
            setexec(0xFFFFFFFF, 0xFFFFFFFF)
            if ne >= 6: I("s_waitcnt lgkmcnt(0)")
            TS(24)
            I("s_branch L_next")
        FR04 = [28, 32, 36, 40, T + 40] + ([T + 24] if y64 else [])
        FR5 = [vRB + 4 * e for e in range(4 if y64 else 5)]
        if y128:
            FR04 = FR04[:4]
            FR5 = [vRB + 4 * e for e in range(8)]
            HB5 = [28, 32, 36, 40, T, T + 4, T + 8, T + 12]
        HB04 = [T + 4 * e for e in range(len(FR04))]
        def it0(fn):
            l = a.newlab("Li")
            I(f"s_cmp_eq_u32 s{sIT}, 0")
            I(f"s_cbranch_scc0 {l}")
            fn()
            a.label(l)
        a.label("L_W1")
        I(f"s_cmp_ge_u32 s{sWAVE}, 5")
        I("s_cbranch_scc1 L_W1h")
        ones()
        I(f"s_cmp_eq_u32 s{sIT}, 0")
        I("s_cbranch_scc0 L_W11")
        role_base()
        tr_addr(T + 47, 64, sT0)
        I(f"s_lshl_b32 s{sT0}, s{sWAVE}, 7")
        I(f"v_and_b32 v{T+46}, 15, v{vLANE}")
        I(f"v_lshlrev_b32 v{T+46}, 2, v{T+46}")
        I(f"v_add_u32 v{T+46}, s{sT0}, v{T+46}")
        if not emd: I("s_waitcnt vmcnt(0)")
        for ks in range(4):
            for t in range(2):
                b = vRB + 4 * (ks * 2 + t)
                o = ks * 2048 + t * 32
                I(f"ds_read_b64_tr_b16 v[{b}:{b+1}], v{T+47} offset:{o}")
                I(f"ds_read_b64_tr_b16 v[{b+2}:{b+3}], v{T+47} offset:{o+256}")
            if ks == 1:
                I("s_waitcnt lgkmcnt(0)")
        I("s_waitcnt lgkmcnt(0)")
        for t in range(2):
            for ks in range(4):
                I(f"v_mfma_f32_16x16x32_bf16 {vr(T+4*t)}, {vr(ONES)}, {vr(vRB+4*(ks*2+t))}, {'0' if ks == 0 else vr(T+4*t)}")
        I(f"ds_write_b32 v{T+46}, v{T} offset:{L_CS2}")
        I(f"ds_write_b32 v{T+46}, v{T+4} offset:{L_CS2+64}")
        TS(15)
        I("s_branch L_W12")
        a.label("L_W11")
        w2_frags(FR04)
        a.label("L_W12")
        if g2: I("s_barrier")
        I(f"s_add_u32 s{sT1}, s{sREG}, {ZOFF}")
        I(f"s_add_u32 s{sT1}, s{sT1}, s{sNEAR}")
        gather(sT1)
        TS(19)
        gemv(2, vRB, lambda ks, t: ks * 2 + t)
        TS(20)
        I("s_barrier")
        I(f"v_lshrrev_b32 v{ha}, 4, v{vLANE}")
        I(f"v_lshlrev_b32 v{ha}, 4, v{ha}")
        for i in range(4 * len(FR04)):
            I(f"v_mov_b32 v{T+i}, 0")
        it0(lambda: w2_frags(FR04))
        w2_tail(FR04, HB04, T + 44)
        a.label("L_W1h")
        if g2:
            I(f"s_cmp_eq_u32 s{sWAVE}, 6")
            I("s_cbranch_scc0 L_G2")
            ml_gate(g2)
            a.label("L_G2")
            I("s_barrier")
        I(f"v_mov_b32 v{rINV}, {f2u(1.0/640):#x}")
        I(f"v_mov_b32 v{rC1}, {f2u(GC1):#x}")
        I(f"v_mov_b32 v{rC2}, {f2u(GC2):#x}")
        I(f"v_lshrrev_b32 v{ha}, 4, v{vLANE}")
        I(f"v_lshlrev_b32 v{ha}, 4, v{ha}")
        I(f"v_lshlrev_b32 v{ha+1}, 1, v{vLANE}")
        I(f"v_lshlrev_b32 v{ha+2}, 2, v{vLANE}")
        I("s_waitcnt vmcnt(0)")
        I("s_barrier")
        I(f"s_cmp_eq_u32 s{sWAVE}, 5")
        I("s_cbranch_scc1 L_W1r")
        for b_ in HB5:
            for i in range(4):
                I(f"v_mov_b32 v{b_+i}, 0")
        it0(lambda: w2_frags(FR5))
        I("s_branch L_W1t")
        a.label("L_W1r")
        TS(21)
        reduce_read(5, L_PB1)
        for v in range(5):
            I(f"ds_read_b32 v{T+24+v}, v{ha+2} offset:{L_CS2 + v*128}")
        I("s_waitcnt lgkmcnt(5)")
        reduce_sum(5, rTOT)
        stats()
        I("s_waitcnt lgkmcnt(0)")
        it0(lambda: w2_frags(FR5[:4] if y128 else FR5, False))
        I(f"v_add_f32 v{T+24}, v{T+24}, v{T+25}")
        I(f"v_add_f32 v{T+26}, v{T+26}, v{T+27}")
        I(f"v_add_f32 v{T+24}, v{T+24}, v{T+28}")
        I(f"v_add_f32 v{vCS1}, v{T+24}, v{T+26}")
        I(f"v_sub_f32 v{rMEAN}, v{rMEAN}, v{rMB}")
        I(f"v_mul_f32 v{rVAR}, v{rVAR}, v{rR}")
        I(f"v_mul_f32 v{rMEAN}, v{rMEAN}, v{rR}")
        I(f"v_mul_f32 v{rVAR}, v{rVAR}, v{rR}")
        I(f"v_cvt_pk_bf16_f32 v{rT}, v{rMEAN}, v{rVAR}")
        I(f"v_and_b32 v{rU}, 0xffff0000, v{rT}")
        I(f"v_lshlrev_b32 v{rMEAN}, 16, v{rT}")
        I(f"v_add_f32 v{rU}, {f2u(1e-5):#x}, v{rU}")
        I(f"v_cvt_pk_bf16_f32 v{rU}, v{rU}, v{rU}")
        I(f"v_fma_f32 v{rMB}, v{rMEAN}, v{rSD}, v{rMB}")
        I(f"v_and_b32 v{rU}, 0xffff0000, v{rU}")
        I(f"v_sqrt_f32 v{rU}, v{rU}")
        I(f"v_fma_f32 v{rTOT}, -v{rMB}, v{vCS1}, v{rTOT}")
        I(f"v_cvt_pk_bf16_f32 v{rU}, v{rU}, v{rU}")
        I(f"v_mul_f32 v{rTOT}, v{rTOT}, v{rR}")
        I(f"v_and_b32 v{rU}, 0xffff0000, v{rU}")
        I(f"v_rcp_f32 v{rU}, v{rU}")
        I(f"v_mul_f32 v{rTOT}, v{rTOT}, v{rU}")
        I(f"v_cvt_pk_bf16_f32 v{rU}, v{rTOT}, v{rTOT}")
        I(f"v_and_b32 v{rU}, 0xffff0000, v{rU}")
        I(f"v_add_f32 v{rU}, v{rU}, v{vB1}")
        I(f"v_cvt_pk_bf16_f32 v{rU}, v{rU}, v{rU}")
        I(f"v_and_b32 v{rU}, 0xffff0000, v{rU}")
        I(f"v_mul_f32 v{rT}, v{rU}, v{rU}")
        I(f"v_fma_f32 v{rT}, v{rT}, v{rC2}, v{rC1}")
        I(f"v_mul_f32 v{rT}, v{rT}, v{rU}")
        I(f"v_exp_f32 v{rT}, v{rT}")
        I(f"v_add_f32 v{rT}, 1.0, v{rT}")
        I(f"v_rcp_f32 v{rT}, v{rT}")
        I(f"v_mul_f32 v{rU}, v{rU}, v{rT}")
        I(f"v_cvt_pk_bf16_f32 v{rU}, v{rU}, v{rU}")
        setexec(0xFFFFFFFF, 0)
        I(f"ds_write_b16 v{ha+1}, v{rU} offset:{L_H}")
        setexec(0xFFFFFFFF, 0xFFFFFFFF)
        TS(22)
        I("s_waitcnt lgkmcnt(0)")
        a.label("L_W1t")
        w2_tail(FR5, HB5, T + 44)

    if q2 == 2:
        a.label("L_qslow")
        q_masked(lambda r_: f"buffer_load_dwordx4 {vr(r_)}, v{vQR}, {WS}, s{sT2} offen sc1")
        I(f"s_add_u32 s{sSPIN}, s{sSPIN}, 1")
        I("s_waitcnt vmcnt(0)")
        cur = maxtree(T + 50, range(T, T + 16))
        I(f"v_cmp_eq_u32 vcc, -1, v{cur}")
        I("s_cbranch_vccz L_qs2")
        I(f"s_cmp_lt_u32 s{sSPIN}, {spin_limit}")
        I("s_cbranch_scc1 L_qslow")
        a.label("L_qs2")
        for i in range(16, 24):
            I(f"v_mov_b32 v{T+i}, 0")
        I(f"s_mov_b64 s[{sKM}:{sKM+1}], 0")
        I("s_branch L_att")
    a.label("L_next")
    I("s_waitcnt vmcnt(0)")
    I(f"s_add_u32 s{sIT}, s{sIT}, 1")
    I(f"s_add_u32 s{sREG}, s{sREG}, {RS}")
    I(f"s_add_u32 s{sREG2}, s{sREG2}, {RS}")
    I(f"s_cmp_lt_u32 s{sIT}, 2")
    I("s_cbranch_scc1 L_loop")
    I(f"s_or_b32 s{sT0}, s{sROLE}, s{sX}")
    I(f"s_cmp_eq_u32 s{sT0}, 0")
    I("s_cbranch_scc0 L_fin")
    I(f"s_cmp_eq_u32 s{sWAVE}, 6")
    I("s_cbranch_scc1 L_loop")
    a.label("L_fin")
    if dbgt:
        srd(TA, 54, 256)
        I(f"v_add_u32 v{T}, 2, v{vLANE}")
        I(f"v_add_u32 v{T+1}, 4, v{vLANE}")
        I(f"v_cmp_gt_u32 vcc, 6, v{vLANE}")
        I(f"v_cndmask_b32 v{T}, v{T+1}, v{T}, vcc")
        I(f"v_lshlrev_b32 v{T}, 2, v{T}")
        setexec(0xFFF, 0)
        I(f"buffer_atomic_umax v{vTST}, v{T}, {TA}, 0 offen sc1")
        setexec(0xFFFFFFFF, 0xFFFFFFFF)
    if instr:
        TS(30)
        I(f"s_lshl_b32 s{sT0}, s2, 3")
        I(f"s_add_u32 s{sT0}, s{sT0}, s{sWAVE}")
        I(f"s_lshl_b32 s{sT0}, s{sT0}, 9")
        I(f"s_add_u32 s{sT0}, s{sT0}, {DBGOFF}")
        I(f"v_lshlrev_b32 v{T}, 3, v{vLANE}")
        I(f"buffer_store_dwordx2 v[{vTSI}:{vTST}], v{T}, {WS}, s{sT0} offen")
    a.label("L_end")
    I("s_endpgm")
    a.raw('.section .rodata,"a"\n.p2align 6')
    a.raw(f".amdhsa_kernel {KNAME}")
    a.raw("  .amdhsa_next_free_vgpr 256\n  .amdhsa_next_free_sgpr 102\n  .amdhsa_accum_offset 256\n"
          "  .amdhsa_group_segment_fixed_size 0\n  .amdhsa_kernarg_size 104\n  .amdhsa_user_sgpr_count 2\n"
          "  .amdhsa_user_sgpr_kernarg_segment_ptr 1\n  .amdhsa_system_sgpr_workgroup_id_x 1")
    a.raw(".end_amdhsa_kernel")
    open(fn, "w").write(a.text())
    return a.ninstr


if __name__ == "__main__":
    import argparse
    p = argparse.ArgumentParser()
    p.add_argument("-o", default="k.s")
    p.add_argument("--instr", action="store_true")
    p.add_argument("--kv", default="nt")
    p.add_argument("--w", default="")
    p.add_argument("--y16", action="store_true")
    p.add_argument("--nomask", action="store_true")
    p.add_argument("--nodual", action="store_true")
    p.add_argument("--n0", type=int, default=4)
    p.add_argument("--late", type=lambda x: int(x, 0), default=0x5f)
    p.add_argument("--r", default="")
    p.add_argument("--ncal", type=int, default=4)
    p.add_argument("--nw0", type=int, default=8)
    p.add_argument("--qk", type=int, default=16)
    p.add_argument("--qp", type=int, default=3)
    p.add_argument("--gate", type=int, default=4)
    p.add_argument("--calr", type=int, default=28)
    p.add_argument("--esy", type=int, default=1)
    p.add_argument("--rmap", type=int, default=0)
    p.add_argument("--wk", type=int, default=0)
    p.add_argument("--th1", type=int, default=0)
    p.add_argument("--yl", type=int, default=0)
    p.add_argument("--y64", type=int, default=0)
    p.add_argument("--zx", type=int, default=64)
    p.add_argument("--zfl", default="sc1")
    p.add_argument("--yfl", default="sc1")
    p.add_argument("--pl", type=int, default=0)
    p.add_argument("--g1", type=int, default=0)
    p.add_argument("--pth", type=int, default=0)
    p.add_argument("--g2", type=int, default=0)
    p.add_argument("--g3", type=int, default=0)
    p.add_argument("--near", type=int, default=-1)
    p.add_argument("--hb", default="0,1")
    p.add_argument("--zq", type=int, default=0)
    p.add_argument("--sm", type=int, default=0)
    p.add_argument("--kl", type=int, default=0)
    p.add_argument("--m2", type=int, default=0)
    p.add_argument("--q2", type=int, default=0)
    p.add_argument("--pipe", type=int, default=0)
    p.add_argument("--ap", type=int, default=0)
    p.add_argument("--cw", type=int, default=0)
    p.add_argument("--emd", type=int, default=0)
    p.add_argument("--g8", type=int, default=8)
    p.add_argument("--emw", type=int, default=4)
    p.add_argument("--vx", type=int, default=0)
    p.add_argument("--kvp", default="12,13,14,15,16,17,18,19")
    p.add_argument("--fakeq", type=int, default=0)
    p.add_argument("--pdep", type=int, default=1)
    p.add_argument("--pdl", type=int, default=2)
    p.add_argument("--pmask", type=int, default=31)
    p.add_argument("--xl", type=lambda x: int(x, 0), default=0)
    p.add_argument("--dyn", type=int, default=1)
    p.add_argument("--tw", type=int, default=6)
    p.add_argument("--tp", type=int, default=16)
    p.add_argument("--th2", type=int, default=0)
    p.add_argument("--rot2", type=int, default=2)
    p.add_argument("--pt", type=int, default=0)
    p.add_argument("--ptr", type=int, default=32)
    p.add_argument("--dbgt", default=None)
    p.add_argument("--sp1", type=int, default=1)
    p.add_argument("--norot", action="store_true")
    p.add_argument("--syfl", default="")
    p.add_argument("--ts", default=None)
    p.add_argument("--noprio", action="store_true")
    args = p.parse_args()
    ts = None if args.ts is None else set(int(x) for x in args.ts.split(","))
    n = gen(args.o, instr=args.instr, kvflags=args.kv, wflags=args.w, y16=args.y16,
            masked_=not args.nomask, tsset=ts, n0=args.n0, late=args.late, rflags=args.r, ncal=args.ncal, dual=not args.nodual, prio=not args.noprio,
            nw0=args.nw0, qk=args.qk, rot=not args.norot, syfl=args.syfl, qp=args.qp, gate=args.gate, calr=args.calr, esy=args.esy, rmap=args.rmap, wk=args.wk, th1=args.th1, yl=args.yl, y64=args.y64, zx=args.zx, zfl=args.zfl, yfl=args.yfl, pl=args.pl, g1=args.g1, pth=args.pth, g2=args.g2, g3=args.g3, near=args.near, zq=args.zq, sm=args.sm, kl=args.kl, m2=args.m2, q2=args.q2, pipe=args.pipe, ap=args.ap, cw=args.cw, emd=args.emd, g8=args.g8, emw=args.emw, kvp=tuple(sum(1 << int(y) for y in x.split('+')) if i < 2 else int(x) for i, x in enumerate(args.kvp.split(','))), vx=args.vx, fakeq=args.fakeq, hb=tuple(int(x) for x in args.hb.split(',')), pdep=args.pdep, pdl=args.pdl, pmask=args.pmask, xl=args.xl, dyn=args.dyn, tw=args.tw, tp=args.tp, th2=args.th2, rot2=args.rot2, pt=args.pt, ptr_=args.ptr, dbgt=[tuple(int(y) for y in x.split('.')) for x in args.dbgt.split(',')] if args.dbgt else None, sp1=args.sp1)
    print("instrs:", n)
```

```python
import sys, struct, math
from asmlib import Asm

KNAME = "interleave_layers__gqa_block_cached__mixer_channel_mlp__decode_kernel"

RS = 0x60000
POFF, ZOFF, QOFF, XOFF, MLOFF, YOFF = 0x0, 0x10000, 0x20000, 0x1c000, 0x58000, 0x30000
CALOFF = 0xC0000
CP = 0x2000
ZR, ZX = 512, 64
DBGOFF = 0x100000
WS_SIZE = 0x200000
BIG = 0x40000000
PP = 544
L_PB1, L_PB2, L_CS1, L_CS2, L_QB, L_ML, L_FLAG, L_DUM, L_PER, L_ROLE = (
    0, 2816, 7168, 7808, 8448, 8704, 8768, 8896, 10240, 51200)
LDS_TOTAL = 163840
NPER, NREST = 10, 26
L_RING, RSL = 51200, 36
L_W2, L_H, L_O = 92160, 8784, 133120
LEAD_R = 0

def f2u(x):
    return struct.unpack("<I", struct.pack("<f", x))[0]

L2E = f2u(1.4426950408889634)
SCALE = f2u(128 ** -0.5)
GC1 = -2.0 * 1.4426950408889634 * math.sqrt(2.0 / math.pi)
GC2 = GC1 * 0.044715

sWAVE, sX, sR, sIT, sREG = 3, 4, 5, 6, 7
K_SRD, V_SRD, WS, TA, TB, OUTS = "s[8:11]", "s[12:15]", "s[16:19]", "s[20:23]", "s[24:27]", "s[28:31]"
sROLE, sPURE, sSPIN = 58, 59, 60
sT0, sT1, sT2, sT3, sSLOT = 61, 62, 63, 72, 73
sF = 64
sXCC, sTB, sNT, sTSI = 74, 75, 76, 77
sL2E, sM = 80, 81
sRB, sRSTEP, sRN = 82, 83, 84
sKV = 85
sNEAR, sREG2, sVOTE = 78, 79, 81
sLATE, sQS, sKM, sYM = 100, 101, 42, 98
sXW = 95
vLANE = 0
vGO, vXO, vPW, vSW, vQR, vOW, vMLW = 1, 2, 7, 8, 9, 10, 11
vPQ = 3
vA0, vA1, vA2, vA3 = 12, 13, 14, 15
vRDMA = 17
vTSI, vTST = 18, 19
vSEL = 20
vBQ = 28
vRB = 44
vFD = 72
T = 76
vK, vV = 128, 192
vRR, vQP, vQG, vCSQ, vCS1, vB1, vRP = 1, 2, 3, 4, 5, 6, 8
vXF = 72
vXFA = 16
vCR, vCML, vCP, vCPM, vQG7, vTK = 1, 2, 3, 4, 5, 6


def vr(a, n=4):
    return f"v[{a}:{a+n-1}]"


def gen(fn, instr=False, kvflags="nt", wflags="", rflags="", spin_limit=400000, tsset=None,
        y16=False, masked_=True, dbgt=False, n0=4, late=0x78, dual=True, prio=True, ncal=4, nw0=8, qk=16, rot=True,
        syfl='', qp=3, gate=4, sp1=1, pt=0, ptr_=32, rmap=0, wk=0, calr=28, esy=1, th1=0, th2=0, rot2=2, dyn=1, tw=6, tp=16, yl=0, y64=0, zx=64, zfl='sc1', yfl='sc1', pl=0, xl=0, pdep=1, pdl=2, pmask=31, g1=0, pth=0, g2=0, g3=0, near=-1, hb=(0, 1), fakeq=0, kvp=(4096, 8192, 14, 15, 16, 17, 18, 19), vx=0, emd=0, g8=8, emw=4, cw=0, sm=0, zq=0, kl=0, m2=0, q2=0, pipe=0, ap=0, pk3=1, qb=0, p5=0, dd=0, pf=0, h0=0, pfr=1, pst=0, pw=12, wd=0, wb=0, pi=0, ew=0, eg=8, the=0):
    assert not late & 0x80
    ZX = zx; ZR = 8 * zx; ZB = 4 if zx == 64 else 3
    y128 = y64 == 2
    HB5 = [28, 32, 36, 40, 64]
    a = Asm()
    a.pipe = bool(pipe)
    I = a.I
    a.raw(f"; @launch grid=(256,1,1) block=(512,1,1) lds={LDS_TOTAL}")
    a.raw('.amdgcn_target "amdgcn-amd-amdhsa--gfx950"')
    a.raw(".text")
    a.raw(f".globl {KNAME}\n.p2align 8\n.type {KNAME},@function\n{KNAME}:")

    def TS(k):
        if dbgt:
            for j, (kk, it, *mn) in enumerate(dbgt):
                if kk == k:
                    l = a.newlab("Ld")
                    I(f"s_cmp_eq_u32 s{sIT}, {it}")
                    I(f"s_cbranch_scc0 {l}")
                    I("s_memrealtime s[0:1]")
                    I("s_waitcnt lgkmcnt(0)")
                    if mn: I("s_not_b32 s0, s0")
                    I(f"v_writelane_b32 v{vTST}, s0, {j + 2}")
                    a.label(l)
            return
        if not instr or (tsset is not None and k not in tsset and k not in (0, 30)):
            return
        I("s_memrealtime s[0:1]")
        I("s_waitcnt lgkmcnt(0)")
        I(f"v_writelane_b32 v{vTSI}, {k}, s{sTSI}")
        I(f"s_mov_b32 m0, s{sTSI}")
        I(f"v_writelane_b32 v{vTST}, s0, m0")
        I(f"s_add_u32 s{sTSI}, s{sTSI}, 1")

    def srd(dst, ptr, size):
        d = int(dst[2:].split(":")[0])
        I(f"s_mov_b32 s{d}, s{ptr}")
        I(f"s_mov_b32 s{d+1}, s{ptr+1}")
        I(f"s_mov_b32 s{d+2}, {size:#x}")
        I(f"s_mov_b32 s{d+3}, 0x20000")

    def setexec(lo, hi):
        if lo == 0xFFFFFFFF and hi == 0xFFFFFFFF:
            I("s_mov_b64 exec, -1")
        else:
            I(f"s_mov_b32 exec_lo, {lo:#x}")
            I(f"s_mov_b32 exec_hi, {hi:#x}")

    def maxtree(tmp, rs):
        rs = list(rs)
        if len(rs) == 1:
            return rs[0]
        cur = None
        while rs:
            if cur is None:
                if len(rs) >= 3:
                    I(f"v_max3_u32 v{tmp}, v{rs[0]}, v{rs[1]}, v{rs[2]}"); rs = rs[3:]
                else:
                    I(f"v_max_u32 v{tmp}, v{rs[0]}, v{rs[1]}"); rs = rs[2:]
                cur = tmp
            elif len(rs) >= 2:
                I(f"v_max3_u32 v{tmp}, v{tmp}, v{rs[0]}, v{rs[1]}"); rs = rs[2:]
            else:
                I(f"v_max_u32 v{tmp}, v{tmp}, v{rs[0]}"); rs = rs[1:]
        return cur

    def poll(loads, regs, ex=(0xFFFFFFFF, 0xFFFFFFFF), groups=None, simple=False, hop=0):
        lab = a.newlab("Lp"); done = a.newlab("Lpd")
        tmp = T + 50
        masked = masked_ and not simple
        if not masked:
            a.label(lab)
        dep = pdep if hop & pmask else 1
        for l in loads:
            I(l)
        for _ in range(dep - 1):
            for _ in range(pdl): I("s_nop 15")
            for l in loads:
                I(l)
        if masked:
            a.label(lab)
        I(f"s_add_u32 s{sSPIN}, s{sSPIN}, 1")
        I(f"s_waitcnt vmcnt({len(loads) * (dep - 1)})")
        cur = maxtree(tmp, regs)
        I(f"v_cmp_eq_u32 vcc, -1, v{cur}")
        I(f"s_cbranch_vccz {done}")
        if masked:
            if groups is None or len(loads) == 1:
                I("s_mov_b64 exec, vcc")
                for l in loads:
                    I(l)
            else:
                for j, gr in enumerate(groups):
                    cur = maxtree(tmp + 1 - (j & 1), gr)
                    I(f"v_cmp_eq_u32 s[{86+2*j}:{87+2*j}], -1, v{cur}")
                for j, l in enumerate(loads):
                    I(f"s_mov_b64 exec, s[{86+2*j}:{87+2*j}]")
                    I(l)
            setexec(*ex)
        I(f"s_cmp_lt_u32 s{sSPIN}, {spin_limit}")
        I(f"s_cbranch_scc1 {lab}")
        if masked:
            I("s_waitcnt vmcnt(0)")
        a.label(done)

    def light(load, reg, ex=None):
        lab = a.newlab("Ll"); done = a.newlab("Lld")
        if ex: setexec(*ex)
        a.label(lab)
        I(load)
        I(f"s_add_u32 s{sSPIN}, s{sSPIN}, 1")
        I("s_waitcnt vmcnt(0)")
        I(f"v_cmp_ne_u32 vcc, -1, v{reg}")
        I(f"s_cbranch_vccnz {done}")
        I(f"s_cmp_lt_u32 s{sSPIN}, {spin_limit}")
        I(f"s_cbranch_scc1 {lab}")
        a.label(done)
        if ex: setexec(0xFFFFFFFF, 0xFFFFFFFF)

    def lstore(ins, far=False):
        if far and near >= 0:
            for x in ins: I(x + " sc1")
            return
        l1 = a.newlab("Ls"); l2 = a.newlab("Lsd")
        I(f"s_cmp_eq_u32 s{sPURE}, 0")
        I(f"s_cbranch_scc1 {l1}")
        for x in ins: I(x)
        I(f"s_branch {l2}")
        a.label(l1)
        for x in ins: I(x + " sc1")
        a.label(l2)

    def unpack(lo, hi, src):
        I(f"v_lshlrev_b32 v{lo}, 16, v{src}")
        I(f"v_and_b32 v{hi}, 0xffff0000, v{src}")

    def hperm(dst, src, tmp):
        pos = list(hb) + [b for b in range(5) if b not in hb]
        if pos == [0, 1, 2, 3, 4]:
            if dst != src: I(f"s_mov_b32 s{dst}, s{src}")
            return
        I(f"s_mov_b32 s96, 0")
        for i in range(5):
            I(f"s_bfe_u32 s{tmp}, s{src}, {i | (1 << 16):#x}")
            I(f"s_lshl_b32 s{tmp}, s{tmp}, {pos[i]}")
            I(f"s_or_b32 s96, s96, s{tmp}")
        I(f"s_mov_b32 s{dst}, s96")

    XA = T + 32
    ONES = T + 28

    if instr: I("s_memrealtime s[98:99]")
    I("s_cmp_ge_u32 s2, 256")
    I("s_cbranch_scc1 L_end")
    I("s_load_dwordx16 s[32:47], s[0:1], 0")
    if cw:
        I("s_getpc_b64 s[4:5]")
        a.label("L_cs")
        I(f"v_lshlrev_b32 v1, {cw}, v0")
        I("v_min_u32 v1, L_end-L_cs, v1")
        I("global_load_dword v255, v1, s[4:5]")
    I("s_load_dwordx8 s[48:55], s[0:1], 64")
    I("s_load_dwordx2 s[56:57], s[0:1], 96")
    if dbgt: I("s_memrealtime s[96:97]")
    I("v_lshrrev_b32 v1, 6, v0")
    I(f"v_and_b32 v{vLANE}, 63, v0")
    I(f"v_readfirstlane_b32 s{sWAVE}, v1")
    I(f"s_and_b32 s{sX}, s2, 7")
    I(f"s_lshr_b32 s{sR}, s2, 3")
    I(f"s_lshl_b32 s{sSLOT}, s{sX}, 5")
    I(f"s_add_u32 s{sSLOT}, s{sSLOT}, s{sR}")
    I(f"s_mov_b32 s{sXW}, s{sX}")
    if near >= 0:
        I(f"s_and_b32 s{sSLOT}, s{sX}, 3")
        I(f"s_lshl_b32 s{sXW}, s{sSLOT}, 1")
        I(f"s_lshl_b32 s{sSLOT}, s{sSLOT}, 6")
        I(f"s_lshr_b32 s{sT0}, s{sR}, 2")
        I(f"s_lshl_b32 s{sT0}, s{sT0}, 3")
        I(f"s_add_u32 s{sSLOT}, s{sSLOT}, s{sT0}")
        I(f"s_and_b32 s{sT0}, s{sX}, 4")
        I(f"s_add_u32 s{sSLOT}, s{sSLOT}, s{sT0}")
        I(f"s_lshr_b32 s{sT0}, s{sT0}, 2")
        I(f"s_add_u32 s{sXW}, s{sXW}, s{sT0}")
        I(f"s_and_b32 s{sT0}, s{sR}, 3")
        I(f"s_add_u32 s{sSLOT}, s{sSLOT}, s{sT0}")
    if rmap:
        I(f"s_mov_b32 s{sT0}, -5")
        I(f"s_cmp_lt_u32 s{sR}, 28")
        I(f"s_cselect_b32 s{sT0}, -8, s{sT0}")
        I(f"s_cmp_lt_u32 s{sR}, 16")
        I(f"s_cselect_b32 s{sT0}, 16, s{sT0}")
        I(f"s_cmp_lt_u32 s{sR}, 11")
        I(f"s_cselect_b32 s{sT0}, 12, s{sT0}")
        I(f"s_cmp_lt_u32 s{sR}, 8")
        I(f"s_cselect_b32 s{sT0}, 0, s{sT0}")
        I(f"s_add_u32 s{sR}, s{sR}, s{sT0}")
    g, n, q4, c4, t0, t1, t2, t3 = T, T+1, T+2, T+3, T+4, T+5, T+6, T+7
    aK = T + 48
    vAT = T + 44
    I(f"v_lshrrev_b32 v{g}, 4, v{vLANE}")
    I(f"v_and_b32 v{n}, 15, v{vLANE}")
    I(f"v_bfe_u32 v{q4}, v{vLANE}, 2, 2")
    I(f"v_and_b32 v{c4}, 3, v{vLANE}")
    if sm and kl == 1:
        I(f"v_bfe_u32 v{aK}, v{vLANE}, 1, 3")
        I(f"v_lshlrev_b32 v{aK}, 8, v{aK}")
        I(f"v_lshl_add_u32 v{aK}, v{g}, 5, v{aK}")
        I(f"v_and_b32 v{t0}, 1, v{vLANE}")
        I(f"v_lshl_add_u32 v{aK}, v{t0}, 4, v{aK}")
    elif sm and kl != 2:
        I(f"v_bfe_u32 v{aK}, v{vLANE}, 1, 2")
        I(f"v_lshlrev_b32 v{aK}, 12, v{aK}")
        I(f"v_lshl_add_u32 v{aK}, v{g}, 5, v{aK}")
        I(f"v_and_b32 v{t0}, 8, v{vLANE}")
        I(f"v_lshl_add_u32 v{aK}, v{t0}, 5, v{aK}")
        I(f"v_and_b32 v{t0}, 1, v{vLANE}")
        I(f"v_lshl_add_u32 v{aK}, v{t0}, 4, v{aK}")
    else:
        I(f"v_lshlrev_b32 v{aK}, 8, v{q4}")
        I(f"v_lshl_add_u32 v{aK}, v{g}, 6, v{aK}")
        I(f"v_lshl_add_u32 v{aK}, v{c4}, 4, v{aK}")
    if not q2:
        I(f"v_mul_u32_u24 v{vXO}, 320, v{q4}")
        I(f"v_lshl_add_u32 v{vXO}, v{g}, 4, v{vXO}")
        I(f"s_lshl_b32 s{sT0}, s{sWAVE}, 6")
        I(f"v_add_u32 v{vXO}, s{sT0}, v{vXO}")
    if near >= 0:
        I(f"s_lshr_b32 s{sKV}, s{sSLOT}, 3")
        I(f"s_lshl_b32 s{sKV}, s{sKV}, 20")
        I(f"s_and_b32 s{sT0}, s{sSLOT}, 3")
        I(f"s_lshl_b32 s{sT0}, s{sT0}, 18")
        I(f"s_add_u32 s{sKV}, s{sKV}, s{sT0}")
        I(f"s_lshl_b32 s{sT0}, s{sWAVE}, 15")
        I(f"s_add_u32 s{sKV}, s{sKV}, s{sT0}")
        I(f"s_lshr_b32 s{sT0}, s{sSLOT}, 2")
        I(f"s_lshr_b32 s{sT1}, s{sSLOT}, 4")
        I(f"s_xor_b32 s{sT0}, s{sT0}, s{sT1}")
        I(f"s_xor_b32 s{sT0}, s{sT0}, {near}")
        I(f"s_and_b32 s{sT0}, s{sT0}, 1")
        I(f"s_lshl_b32 s{sT0}, s{sT0}, 13")
        I(f"s_add_u32 s{sKV}, s{sKV}, s{sT0}")
    else:
        I(f"s_lshr_b32 s{sKV}, s{sSLOT}, 3")
        hperm(97, sKV, sT0)
        I(f"s_lshl_b32 s{sKV}, s97, 20")
        for src, ps in ((sWAVE, kvp[2:5]), (sSLOT, kvp[5:8])):
            i = 0
            while i < 3:
                n_ = 1
                while i + n_ < 3 and ps[i + n_] == ps[i] + n_: n_ += 1
                I(f"s_bfe_u32 s{sT0}, s{src}, {i | (n_ << 16):#x}")
                I(f"s_lshl_b32 s{sT0}, s{sT0}, {ps[i]}")
                I(f"s_add_u32 s{sKV}, s{sKV}, s{sT0}")
                i += n_
    KVO = [0, 4096, 16384, 20480] if near >= 0 else [(t & 1) * kvp[0] ^ (t >> 1) * kvp[1] for t in range(4)]
    I(f"s_lshr_b32 s{sQS}, s{sSLOT}, 3")
    I(f"s_lshl_b32 s{sQS}, s{sQS}, 11")
    if q2:
        I(f"s_lshl_b32 s{sQS}, s{sSLOT}, 8")
    else:
        I(f"s_and_b32 s{sT1}, s{sSLOT}, 3")
        I(f"s_lshl_b32 s{sT0}, s{sT1}, 9")
        I(f"s_add_u32 s{sQS}, s{sQS}, s{sT0}")
        I(f"s_and_b32 s{sT0}, s{sSLOT}, 4")
        I(f"s_lshl_b32 s{sT0}, s{sT0}, 6")
        I(f"s_add_u32 s{sQS}, s{sQS}, s{sT0}")
    I(f"s_add_u32 s{sQS}, s{sQS}, {QOFF}")
    vW0, vW1, ta0, ta1 = T + 44, T + 45, T + 42, T + 43
    XQ, ACC, BUF = 28, 48, 80
    sBa, sEa, sPER, sRING, sSO, sMB, sRS_ = 86, 87, 90, 91, 92, 93, 94
    xq = T + 12
    I(f"s_and_b32 s{sT0}, s{sSLOT}, 3")
    I(f"s_mul_i32 s{sT0}, s{sT0}, 5")
    I(f"s_lshr_b32 s{sT1}, s{sSLOT}, 1")
    I(f"s_xor_b32 s{sT1}, s{sT1}, s{sWAVE}")
    I(f"s_bitcmp1_b32 s{sT1}, 1")
    I(f"s_cselect_b32 s{sT1}, {rot2}, 0")
    I(f"s_add_u32 s{sT1}, s{sT0}, s{sT1}")
    I(f"s_lshr_b32 s{sT0}, s{sSLOT}, 3")
    if near < 0: I(f"s_mov_b32 s{sT0}, s97")
    I(f"s_lshl_b32 s{sT0}, s{sT0}, 8")
    I(f"s_lshl_b32 s{sT2}, s{sWAVE}, 6")
    I(f"s_add_u32 s{sBa}, s{sT0}, s{sT2}")
    I(f"s_add_u32 s{sEa}, s{sBa}, {20 << 18:#x}")
    I(f"s_lshl_b32 s{sT2}, s{sT1}, 18")
    I(f"s_add_u32 s{sSO}, s{sBa}, s{sT2}")
    if q2:
        I(f"s_bfe_u32 s{sT2}, s{sSLOT}, 0x20001")
        I(f"s_cmp_gt_u32 s{sWAVE}, s{sT2}")
        I(f"s_subb_u32 s{sPER}, s{sWAVE}, 0")
        I(f"s_mul_i32 s{sPER}, s{sPER}, {RSL * 1024}")
        I(f"s_add_u32 s{sPER}, s{sPER}, {L_RING}")
        I(f"s_sub_u32 s{sRING}, s{sPER}, {RSL * 1024}")
        I(f"s_cmp_eq_u32 s{sWAVE}, s{sT2}")
        I(f"s_cselect_b32 s{sPER}, {L_PER}, s{sPER}")
        I(f"s_cselect_b32 s{sRING}, {L_PER}, s{sRING}")
    else:
        I(f"s_mul_i32 s{sPER}, s{sWAVE}, {NPER * 1024}")
        I(f"s_add_u32 s{sPER}, s{sPER}, {L_PER}")
        I(f"s_mul_i32 s{sRING}, s{sWAVE}, {NREST * 1024}")
        I(f"s_add_u32 s{sRING}, s{sRING}, {L_RING}")
    I(f"v_add_u32 v{t2}, s{sT1}, v{q4}")
    I(f"v_lshlrev_b32 v{t2}, 6, v{t2}")
    I(f"v_lshl_add_u32 v{t2}, v{g}, 4, v{t2}")
    for j in range(5):
        I(f"v_add_u32 v{xq+j}, {256*j}, v{t2}")
        I(f"v_subrev_u32 v{t3}, {1280 - 256*j}, v{t2}")
        I(f"v_min_u32 v{xq+j}, v{xq+j}, v{t3}")
    I(f"v_lshrrev_b32 v{vW0}, 2, v{vLANE}")
    I(f"v_lshlrev_b32 v{vW0}, 13, v{vW0}")
    I(f"v_lshrrev_b32 v{t3}, 4, v{vLANE}")
    I(f"v_and_b32 v{t3}, 2, v{t3}")
    I(f"v_xor_b32 v{t3}, v{t3}, v{c4}")
    I(f"v_lshl_add_u32 v{vW0}, v{t3}, 4, v{vW0}")
    I(f"v_add_u32 v{vW1}, {1 << 17:#x}, v{vW0}")
    I(f"v_lshlrev_b32 v{t0}, 4, v{vLANE}")
    cl = T + 8
    for i in range(4):
        I(f"v_mov_b32 v{cl+i}, -1")
    I(f"s_mov_b32 s{sTSI}, 0")
    if instr:
        I(f"v_mov_b32 v{vTSI}, -1")
        I(f"v_mov_b32 v{vTST}, 0")
    I(f"s_getreg_b32 s{sXCC}, hwreg(HW_REG_XCC_ID)")
    I(f"s_and_b32 s{sXCC}, s{sXCC}, 15")
    I(f"s_mul_i32 s{sT3}, s2, 3072")
    if instr: I("s_memrealtime s[0:1]")
    I("s_waitcnt lgkmcnt(0)")
    if instr:
        I(f"v_writelane_b32 v{vTSI}, 41, 0")
        I(f"v_writelane_b32 v{vTST}, s98, 0")
        I(f"v_writelane_b32 v{vTSI}, 42, 1")
        I(f"v_writelane_b32 v{vTST}, s0, 1")
        I(f"s_mov_b32 s{sTSI}, 2")
        TS(43)
    srd(WS, 56, WS_SIZE)
    srd(K_SRD, 34, 32 << 20)
    if dbgt:
        I(f"v_mov_b32 v{vTST}, 0")
        I(f"v_writelane_b32 v{vTST}, s96, 1")
        I("s_not_b32 s96, s96")
        I(f"v_writelane_b32 v{vTST}, s96, 0")
        I(f"s_mov_b32 s{sIT}, 0")
        TS(40)
    srd(TA, 38, 640 * 8192)
    srd(TB, 32, 1280)

    def k_issue(lo, hi, hook=None):
        for ki in range(lo, hi):
            if hook: hook(ki)
            if sm and kl == 1:
                if ki % 4 == 0 or ki == lo:
                    I(f"s_xor_b32 s{sT0}, s{sKV}, {KVO[ki//4]}")
                I(f"buffer_load_dwordx4 {vr(vK+4*ki)}, v{aK}, {K_SRD}, s{sT0} offen offset:{((ki>>1)&1)*2048+(ki&1)*128} {kvflags}")
                continue
            if sm and kl != 2:
                I(f"buffer_load_dwordx4 {vr(vK+4*ki)}, v{aK}, {K_SRD}, s{sKV} offen offset:{(ki>>1)*512+(ki&1)*128} {kvflags}")
                continue
            if ki % 4 == 0 or ki == lo:
                I(f"s_xor_b32 s{sT0}, s{sKV}, {KVO[ki//4]}")
            I(f"buffer_load_dwordx4 {vr(vK+4*ki)}, v{aK}, {K_SRD}, s{sT0} offen offset:{(ki%4)*1024} {kvflags}")

    I(f"s_cmp_eq_u32 s{sWAVE}, 6")
    I("s_cbranch_scc0 L_nclr")
    I(f"buffer_store_dwordx4 {vr(cl)}, v{t0}, {WS}, s{sT3} offen sc1")
    I(f"buffer_store_dwordx4 {vr(cl)}, v{t0}, {WS}, s{sT3} offen offset:1024 sc1")
    I(f"buffer_store_dwordx4 {vr(cl)}, v{t0}, {WS}, s{sT3} offen offset:2048 sc1")
    TS(0)
    I("s_branch L_early")
    a.label("L_nclr")
    I(f"s_cmp_ge_u32 s{sWAVE}, 4")
    I("s_cbranch_scc1 L_nwq")
    if prio: I(f"s_setprio {qp}")
    nis = [0]; nk = [0]; wpos = {}
    def slot(p):
        if q2: return (sPER if p < RSL else sRING), p * 1024
        if p < NPER: return sPER, p * 1024
        return sRING, ((p - NPER) % NREST) * 1024
    def w_issue(lo, hi):
        for p in range(lo, hi):
            u, h = p >> 1, p & 1
            b_, o_ = slot(p)
            I(f"s_add_u32 m0, s{b_}, {o_}")
            if fakeq and p == fakeq:
                I(f"v_mov_b32 v{vW0}, {BIG:#x}")
                I(f"v_mov_b32 v{vW1}, {BIG:#x}")
            I(f"buffer_load_dwordx4 v{(vW0, vW1)[h]}, {TA}, s{sSO} offen {wflags} lds")
            wpos[p] = nis[0]
            nis[0] += 1
            if h and p < 39:
                I(f"s_add_u32 s{sSO}, s{sSO}, {1 << 18:#x}")
                I(f"s_cmp_eq_u32 s{sSO}, s{sEa}")
                I(f"s_cselect_b32 s{sSO}, s{sBa}, s{sSO}")
    for j in range(5):
        I(f"buffer_load_dwordx4 {vr(XQ+4*j)}, v{xq+j}, {TB}, 0 offen")
        nis[0] += 1
    w_issue(0, nw0)
    TS(0)
    I("s_branch L_early")
    a.label("L_nwq")
    if pt:
        k_issue(0, 1)
        I(f"v_lshlrev_b32 v{t2}, 21, v{vLANE}")
        setexec(0x7, 0)
        I(f"s_cmp_eq_u32 s{sWAVE}, 4")
        I("s_cbranch_scc0 L_pt5")
        srd(TA, 36, 32 << 20)
        setexec(1, 0)
        I(f"buffer_load_dword v{vV}, v{t2}, {TA}, s{sKV} offen")
        I("s_branch L_ptd")
        a.label("L_pt5")
        I(f"s_cmp_lt_u32 s{sR}, {ptr_}")
        I("s_cbranch_scc0 L_ptd")
        I(f"s_cmp_eq_u32 s{sWAVE}, 5")
        I("s_cbranch_scc0 L_pt7")
        for ptr, size in ((40, 4096 * 1280), (44, 640 * 3456), (48, 1728 * 1280)):
            srd(TA, ptr, size)
            I(f"buffer_load_dword v{vV}, v{t2}, {TA}, 0 offen")
        I("s_branch L_ptd")
        a.label("L_pt7")
        for ptr, size in ((52, 1280), (50, 1280), (46, 3456)) + (((54, 256),) if pt > 1 else ()):
            srd(TA, ptr, size)
            I(f"buffer_load_dword v{vV}, v{t2}, {TA}, 0 offen")
        a.label("L_ptd")
        setexec(0xFFFFFFFF, 0xFFFFFFFF)
        k_issue(1, n0)
    else:
        k_issue(0, n0)
    TS(0)
    a.label("L_early")
    srd(V_SRD, 36, 32 << 20)
    srd(OUTS, 52, 1280)
    I(f"s_mov_b32 s{sIT}, 0")
    I(f"s_mov_b32 s{sREG}, 0")
    I(f"s_mov_b32 s{sREG2}, {CP}")
    I(f"s_mov_b32 s{sSPIN}, 0")
    I(f"s_mov_b32 s{sPURE}, 0")
    I(f"s_mov_b32 s{sNEAR}, 0")
    I(f"s_mov_b32 s{sL2E}, {L2E:#x}")
    I(f"s_lshr_b32 s{sLATE}, {late:#x}, s{sWAVE}")
    I(f"s_and_b32 s{sLATE}, s{sLATE}, 1")
    I(f"s_mov_b32 s{sROLE}, 3")
    if not dyn:
        I(f"s_mul_i32 s{sTB}, s{sX}, 7")
        I(f"s_cmp_eq_u32 s{sX}, 7")
        I(f"s_cselect_b32 s{sT0}, 21, 20")
        I(f"s_sub_u32 s{sTB}, s{sTB}, s{sT0}")
        I(f"s_add_u32 s{sTB}, s{sTB}, s{sR}")
        I(f"s_cmp_lt_u32 s{sX}, 6")
        I(f"s_cselect_b32 s{sT0}, 27, 26")
        I(f"s_cmp_lt_u32 s{sR}, s{sT0}")
        I(f"s_cselect_b32 s{sROLE}, 1, s{sROLE}")
    I(f"s_cmp_lt_u32 s{sR}, 20")
    I(f"s_cselect_b32 s{sROLE}, 0, s{sROLE}")
    I(f"s_cselect_b32 s{sLATE}, s{sLATE}, 0")
    for i in [1] + list(range(2 if q2 else 3, 18)):
        I(f"v_mov_b32 v{i}, {BIG:#x}")

    def v_issue():
        k1, k2, k3 = T + 49, T + 50, T + 51
        I(f"v_lshrrev_b32 v{k1}, 4, v{vLANE}")
        I(f"v_bfe_u32 v{k3}, v{vLANE}, 3, 1")
        if sm: I(f"v_lshl_add_u32 v{k3}, v{k1}, 1, v{k3}")
        else: I(f"v_lshl_add_u32 v{k3}, v{k3}, 3, v{k1}")
        I(f"v_lshlrev_b32 v{k3}, 8, v{k3}")
        I(f"v_and_b32 v{k2}, 7, v{vLANE}")
        I(f"v_lshl_add_u32 v{k3}, v{k2}, 4, v{k3}")
        def ticket():
            I(f"s_cmp_eq_u32 s{sWAVE}, {tw}")
            I("s_cbranch_scc0 L_ntk")
            I(f"s_cmp_eq_u32 s{sROLE}, 0")
            if pf:
                I(f"s_cselect_b32 s{sT1}, 1, 0x101")
                I(f"v_mov_b32 v{vTK}, s{sT1}")
                I(f"s_lshl_b32 s{sT1}, s{sX}, 3")
            else:
                I("s_cbranch_scc1 L_ntk")
                I(f"v_mov_b32 v{vRDMA}, 1")
            srd(TA, 54, 256)
            setexec(1, 0)
            if pf: I(f"buffer_atomic_add v{vTK}, off, {TA}, s{sT1} sc0 sc1")
            else: I(f"buffer_atomic_add v{vRDMA}, off, {TA}, 0 sc0 sc1")
            setexec(0xFFFFFFFF, 0xFFFFFFFF)
            a.label("L_ntk")
        for j in range(17):
            if dyn and j == tp: ticket()
            if j == 16: break
            if j % 4 == 0:
                I(f"s_xor_b32 s{sT0}, s{sKV}, {KVO[j//4]}")
            u, hf = (j >> 1) & 1, j & 1
            if sm: u, hf = 2 * hf, u
            I(f"buffer_load_dwordx4 {vr(vV+4*j)}, v{k3}, {V_SRD}, s{sT0} offen offset:{u*1024+hf*128} {kvflags}")

    def pf_static(lab, dummy, mode=0):
        ad, ds = T + 49, T + 50
        if mode != 3:
            I(f"s_cmp_lt_u32 s{sWAVE}, 7")
            I(f"s_cbranch_scc0 {lab}")
        if not dummy:
            I(f"s_cmp_eq_u32 s{sROLE}, 0")
            I(f"s_cbranch_scc1 {lab}")
        if mode == 3:
            I(f"s_sub_u32 s{sT0}, 31, s{sR}")
            I(f"s_min_u32 s{sT0}, s{sT0}, 5")
            I(f"s_mul_i32 s{sT1}, s{sWAVE}, 5")
            I(f"s_cmp_lt_u32 s{sT0}, 5")
            I(f"s_cselect_b32 s{sT1}, s{sT1}, 99")
            I(f"s_add_u32 s{sT0}, s{sT0}, s{sT1}")
            if pi: I(f"s_add_u32 s{sT0}, s{sT0}, {pi}")
            mode = 1
        elif mode == 1 and pst == 6:
            I(f"s_sub_u32 s{sT0}, 31, s{sR}")
            I(f"s_lshl_b32 s{sT1}, s{sWAVE}, 5")
            I(f"s_add_u32 s{sT0}, s{sT0}, s{sT1}")
            I(f"s_cmp_lt_u32 s{sT0}, {pi}")
            I(f"s_cselect_b32 s{sT0}, s{sT0}, 99")
        elif mode < 2 and pw == 32:
            I(f"s_sub_u32 s{sT0}, 31, s{sR}")
            I(f"s_lshl_b32 s{sT1}, s{sWAVE}, 5")
            I(f"s_add_u32 s{sT0}, s{sT0}, s{sT1}")
            I(f"s_min_u32 s{sT0}, s{sT0}, 99")
        elif mode == 1:
            I(f"s_sub_u32 s{sT0}, 31, s{sR}")
            I(f"s_cmp_lt_u32 s{sT0}, {pw}")
            I(f"s_cselect_b32 s{sT0}, s{sT0}, 99")
            I(f"s_mul_i32 s{sT1}, s{sWAVE}, {pw}")
            I(f"s_add_u32 s{sT0}, s{sT0}, s{sT1}")
        elif mode == 2:
            I(f"s_sub_u32 s{sT0}, 31, s{sR}")
            I(f"s_mul_i32 s{sT0}, s{sT0}, 7")
            I(f"s_add_u32 s{sT0}, s{sT0}, s{sWAVE}")
        else:
            I(f"s_sub_u32 s{sT0}, s{sR}, 20")
            if pfr:
                I(f"s_mul_i32 s{sT1}, s{sWAVE}, 12")
                I(f"s_add_u32 s{sT0}, s{sT0}, s{sT1}")
            else:
                I(f"s_mul_i32 s{sT0}, s{sT0}, 7")
                I(f"s_add_u32 s{sT0}, s{sT0}, s{sWAVE}")
            I(f"s_cmp_eq_u32 s{sROLE}, 0")
            I(f"s_cselect_b32 s{sT0}, 99, s{sT0}")
        I(f"s_mul_i32 s{sT1}, s{sX}, 7")
        I(f"s_min_u32 s{sT1}, s{sT1}, 48")
        if mode == 0:
            I(f"s_cmp_lt_u32 s{sT0}, 40")
            I(f"s_cbranch_scc0 {lab}w2")
        if mode < 2:
            srd(TA, 44, 640 * 3456)
            I(f"v_lshrrev_b32 v{ad}, 2, v{vLANE}")
            I(f"v_mul_u32_u24 v{ad}, 3456, v{ad}")
            I(f"v_and_b32 v{ds}, 3, v{vLANE}")
            I(f"v_lshl_add_u32 v{ad}, v{ds}, 7, v{ad}")
            I(f"s_mul_i32 s{sT0}, s{sT0}, {16*3456}")
            I(f"s_lshr_b32 s{sT1}, s{sT1}, 1")
            I(f"s_lshl_b32 s{sT1}, s{sT1}, 7")
            I(f"s_add_u32 s{sT0}, s{sT0}, s{sT1}")
            I(f"v_add_u32 v{ad}, s{sT0}, v{ad}")
            I(f"buffer_load_dword v{ds}, v{ad}, {TA}, 0 offen")
        if mode == 0:
            I(f"s_branch {lab}")
            a.label(lab + "w2")
            I(f"s_sub_u32 s{sT0}, s{sT0}, 40")
        if mode != 1:
            I(f"s_cmp_lt_u32 s{sX}, 6")
            I(f"s_cselect_b32 s{sT2}, 35, 30")
            I(f"s_mul_i32 s{sT1}, s{sT1}, {32*1280}")
            I(f"s_cmp_lt_u32 s{sT0}, s{sT2}")
            I(f"s_cselect_b32 s{sT1}, s{sT1}, {BIG:#x}")
            I(f"s_lshl_b32 s{sT0}, s{sT0}, 13")
            I(f"s_add_u32 s{sT0}, s{sT0}, s{sT1}")
            srd(TA, 48, 1728 * 1280)
            I(f"v_lshlrev_b32 v{ad}, 7, v{vLANE}")
            I(f"v_add_u32 v{ad}, s{sT0}, v{ad}")
            I(f"buffer_load_dword v{ds}, v{ad}, {TA}, 0 offen")
        a.label(lab)

    def w2_early():
        m0_, m1_, m2_, m3_ = T, T + 1, T + 2, T + 3
        I(f"s_mul_i32 s{sT0}, s{sWAVE}, 5")
        I(f"s_mul_i32 s{sT3}, s{sTB}, {32*1280}")
        I(f"v_lshrrev_b32 v{m0_}, 3, v{vLANE}")
        I(f"v_mul_u32_u24 v{m2_}, 1280, v{m0_}")
        I(f"v_and_b32 v{m1_}, 7, v{vLANE}")
        I(f"v_lshlrev_b32 v{m1_}, 4, v{m1_}")
        I(f"v_bfe_u32 v{m0_}, v{vLANE}, 4, 1")
        I(f"v_lshlrev_b32 v{m0_}, 5, v{m0_}")
        I(f"v_xor_b32 v{m1_}, v{m1_}, v{m0_}")
        I(f"s_and_b32 s{sT1}, s{sT0}, 1")
        I(f"s_lshl_b32 s{sT1}, s{sT1}, 6")
        I(f"v_xor_b32 v{m1_}, s{sT1}, v{m1_}")
        I(f"v_xor_b32 v{m0_}, 64, v{m1_}")
        I(f"v_add_u32 v{m3_}, v{m2_}, v{m0_}")
        I(f"v_add_u32 v{m2_}, v{m2_}, v{m1_}")
        srd(TA, 48, 1728 * 1280)
        for e in range(5):
            I(f"s_lshl_b32 s{sT1}, s{sT0}, 10")
            I(f"s_add_u32 m0, s{sT1}, {L_W2}")
            I(f"s_and_b32 s{sT1}, s{sT0}, 3")
            I(f"s_mul_i32 s{sT1}, s{sT1}, {8*1280}")
            I(f"s_lshr_b32 s{sT2}, s{sT0}, 2")
            I(f"s_lshl_b32 s{sT2}, s{sT2}, 7")
            I(f"s_add_u32 s{sT1}, s{sT1}, s{sT2}")
            I(f"s_add_u32 s{sT1}, s{sT1}, s{sT3}")
            I(f"buffer_load_dwordx4 v{(m2_, m3_)[e & 1]}, {TA}, s{sT1} offen {rflags} lds")
            if e < 4: I(f"s_add_u32 s{sT0}, s{sT0}, 1")

    def role_dma(lb=None, ne=8):
        if lb is None:
            I(f"s_lshl_b32 s{sT1}, s{sWAVE}, 13")
            I(f"s_add_u32 s{sT1}, s{sT1}, {L_ROLE}")
        else:
            I(f"s_mov_b32 s{sT1}, s{lb}")
        I(f"s_mov_b32 s{sT0}, s{sRB}")
        for e in range(ne):
            if e % 4 == 0:
                I(f"s_mov_b32 m0, s{sT1}")
                if e == 0:
                    I(f"s_add_u32 s{sT1}, s{sT1}, 4096")
            I(f"s_cmp_gt_u32 s{sRN}, {e}")
            I(f"s_cselect_b32 s{sT2}, s{sT0}, {BIG:#x}")
            I(f"buffer_load_dwordx4 v{vRDMA}, {TB}, s{sT2} offen offset:{(e%4)*1024} {rflags} lds")
            if e < 7:
                I(f"s_add_u32 s{sT0}, s{sT0}, s{sRSTEP}")
                if e % 4 == 3:
                    I(f"s_add_u32 s{sT0}, s{sT0}, 3072")
                else:
                    I(f"s_sub_u32 s{sT0}, s{sT0}, 1024")

    def rank_off(dst, rk, tmp):
        I(f"s_and_b32 s{tmp}, s{rk}, {(1 << ZB) - 1}")
        I(f"s_mul_i32 s{tmp}, s{tmp}, {ZR}")
        I(f"s_lshr_b32 s{dst}, s{rk}, {ZB}")
        I(f"s_lshl_b32 s{dst}, s{dst}, 14")
        I(f"s_add_u32 s{dst}, s{dst}, s{tmp}")

    I(f"s_cmp_ge_u32 s{sWAVE}, 5")
    I("s_cbranch_scc1 L_init567")
    I(f"v_bfe_u32 v{t0}, v{vLANE}, 3, 1")
    I(f"v_and_b32 v{t1}, 7, v{vLANE}")
    I(f"s_lshl_b32 s{sT1}, s{sWAVE}, 2")
    rank_off(sT0, sT1, sT2)
    I(f"v_mul_u32_u24 v{vGO}, {ZR}, v{t0}")
    I(f"v_mul_u32_u24 v{t1}, {ZX}, v{t1}")
    I(f"v_add3_u32 v{vGO}, v{vGO}, v{t1}, s{sT0}")
    I(f"v_lshl_add_u32 v{vGO}, v{g}, 4, v{vGO}")
    if q2:
        I(f"s_and_b32 s{sT0}, s{sSLOT}, 3")
        I(f"s_mul_i32 s{sT0}, s{sT0}, 5")
        I(f"s_lshl_b32 s{sT1}, s{sWAVE}, 2")
        I(f"s_add_u32 s{sT0}, s{sT0}, s{sT1}")
        I(f"s_lshl_b32 s{sT0}, s{sT0}, 6")
        I(f"v_and_b32 v{t0}, 1, v{q4}")
        I(f"v_lshlrev_b32 v{t0}, 7, v{t0}")
        I(f"v_lshl_add_u32 v{t0}, v{g}, 5, v{t0}")
        I(f"v_lshrrev_b32 v{t1}, 2, v{vLANE}")
        I(f"v_or_b32 v{t1}, v{t1}, v{vLANE}")
        I(f"v_and_b32 v{t1}, 2, v{t1}")
        I(f"v_lshl_add_u32 v{t0}, v{t1}, 3, v{t0}")
        I(f"v_add_u32 v{t0}, s{sT0}, v{t0}")
        I(f"v_subrev_u32 v{t1}, 1280, v{t0}")
        I(f"v_min_u32 v{vXO}, v{t0}, v{t1}")
        I(f"s_mul_i32 s{sT0}, s{sWAVE}, {PP}")
        I(f"v_lshlrev_b32 v{t2}, 3, v{g}")
        I(f"v_add_u32 v{t2}, s{sT0}, v{t2}")
        I(f"v_lshl_add_u32 v{vPQ}, v{n}, 4, v{t2}")
        I(f"v_add_u32 v{t2}, {L_PB1 + 512}, v{t2}")
        I(f"v_lshlrev_b32 v{t3}, 3, v{vLANE}")
        I(f"v_add_u32 v{t3}, {L_DUM}, v{t3}")
        I(f"v_lshlrev_b32 v{t0}, 2, v{g}")
        I(f"v_cmp_eq_u32 vcc, v{n}, v{t0}")
        I(f"v_cndmask_b32 v{vSW}, v{t3}, v{t2}, vcc")
        I("s_branch L_initc")
    I(f"s_mul_i32 s{sT0}, s{sWAVE}, {PP}")
    I(f"s_add_u32 s{sT0}, s{sT0}, {L_PB1 + 512}")
    I(f"v_lshlrev_b32 v{t2}, 2, v{g}")
    I(f"v_add_u32 v{t2}, s{sT0}, v{t2}")
    I(f"v_lshlrev_b32 v{t3}, 2, v{vLANE}")
    I(f"v_add_u32 v{t3}, {L_DUM}, v{t3}")
    I(f"v_cmp_eq_u32 vcc, v{q4}, v{g}")
    I(f"v_cndmask_b32 v{vSW}, v{t3}, v{t2}, vcc")
    I(f"s_mul_i32 s{sT0}, s{sWAVE}, {PP}")
    I(f"v_lshlrev_b32 v{vPQ}, 4, v{g}")
    I(f"v_add_u32 v{vPQ}, s{sT0}, v{vPQ}")
    I(f"s_and_b32 s{sT0}, s{sSLOT}, 3")
    I(f"s_lshl_b32 s{sT0}, s{sT0}, 2")
    I(f"s_lshl_b32 s{sKM}, 0x00010001, s{sT0}")
    I(f"s_mov_b32 s{sKM+1}, s{sKM}")
    I("s_branch L_initc")

    a.label("L_init567")
    I(f"s_cmp_eq_u32 s{sWAVE}, 6")
    I("s_cbranch_scc1 L_initc")
    I(f"s_cmp_eq_u32 s{sWAVE}, 7")
    I("s_cbranch_scc1 L_init7")
    rank_off(sT0, sR, sT1)
    I(f"s_mul_i32 s{sT1}, s{sX}, {ZX}")
    I(f"s_add_u32 s{sT0}, s{sT0}, s{sT1}")
    I(f"s_add_u32 s{sRB}, s{sT0}, {ZOFF}")
    I(f"v_lshlrev_b32 v{vRR}, 4, v{vLANE}")
    if q2:
        I(f"s_and_b32 s{sT0}, s{sQS}, {~2047 & 0xffffffff:#x}")
        I(f"s_and_b32 s{sT1}, s{sSLOT}, 6")
        I(f"s_lshl_b32 s{sT1}, s{sT1}, 5")
        I(f"s_add_u32 s{sT0}, s{sT0}, s{sT1}")
        I(f"s_and_b32 s{sT1}, s{sSLOT}, 1")
        I(f"s_lshl_b32 s{sT1}, s{sT1}, 3")
        I(f"s_add_u32 s{sT0}, s{sT0}, s{sT1}")
        I(f"v_lshlrev_b32 v{vQP}, 9, v{g}")
        I(f"v_and_b32 v{t0}, 1, v{vLANE}")
        I(f"v_lshl_add_u32 v{vQP}, v{t0}, 8, v{vQP}")
        I(f"v_and_b32 v{t0}, 2, v{vLANE}")
        I(f"v_lshl_add_u32 v{vQP}, v{t0}, 4, v{vQP}")
        I(f"v_and_b32 v{t0}, 8, v{vLANE}")
        I(f"v_lshl_add_u32 v{vQP}, v{t0}, 1, v{vQP}")
        I(f"v_and_b32 v{t0}, 4, v{vLANE}")
        I(f"v_add3_u32 v{vQP}, v{vQP}, v{t0}, s{sT0}")
        I(f"v_lshlrev_b32 v{vQG}, 4, v{n}")
        I(f"v_lshlrev_b32 v{vCSQ}, 3, v{c4}")
    else:
        I(f"v_lshlrev_b32 v{vQP}, 2, v{vLANE}")
        I(f"v_add_u32 v{vQP}, s{sQS}, v{vQP}")
        I(f"s_and_b32 s{sT0}, s{sQS}, {~2047 & 0xffffffff:#x}")
        I(f"v_lshlrev_b32 v{vQG}, 3, v{vLANE}")
        I(f"v_add_u32 v{vQG}, s{sT0}, v{vQG}")
    I(f"v_mov_b32 v{t0}, 0")
    I(f"v_mov_b32 v{t1}, 0")
    I(f"v_mov_b32 v{t2}, {L_FLAG}")
    I(f"ds_write_b64 v{t2}, v[{t0}:{t1}] offset:8")
    if emd: I(f"ds_write_b32 v{t2}, v{t0} offset:4")
    I(f"v_and_b32 v{t2}, 31, v{vLANE}")
    I(f"v_lshlrev_b32 v{t2}, 1, v{t2}")
    I(f"s_or_b32 s{sT2}, s{sROLE}, s{sX}")
    I(f"s_lshl_b32 s{sT1}, s{sR}, 6")
    I(f"s_cmp_eq_u32 s{sT2}, 0")
    I(f"s_cselect_b32 s{sT1}, s{sT1}, {BIG:#x}")
    I(f"buffer_load_ushort v{vXF}, v{t2}, {TB}, s{sT1} offen")
    I(f"v_lshrrev_b32 v{t1}, 3, v{vLANE}")
    I(f"v_lshlrev_b32 v{t1}, 4, v{t1}")
    I(f"v_add_u32 v{vRP}, s{sRB}, v{t1}")
    I(f"v_and_b32 v{t1}, 31, v{vLANE}")
    I(f"v_lshlrev_b32 v{t1}, 1, v{t1}")
    I(f"s_or_b32 s{sT2}, s{sROLE}, s{sX}")
    I(f"s_lshl_b32 s{sT1}, s{sR}, 6")
    I(f"s_add_u32 s{sT1}, s{sT1}, {XOFF}")
    I(f"s_cmp_eq_u32 s{sT2}, 0")
    I(f"s_cselect_b32 s{sT1}, s{sT1}, {BIG:#x}")
    I(f"v_add_u32 v{vXFA}, s{sT1}, v{t1}")
    I("s_branch L_initc")

    a.label("L_init7")
    I(f"v_lshlrev_b32 v{vCR}, 3, v{vLANE}")
    I(f"v_add_u32 v{vCR}, {L_O}, v{vCR}")
    I(f"v_and_b32 v{t0}, 7, v{vLANE}")
    I(f"v_lshlrev_b32 v{vCML}, 3, v{t0}")
    I(f"v_add_u32 v{vCML}, {L_ML}, v{vCML}")
    I(f"s_lshr_b32 s{sT0}, s{sSLOT}, 3")
    I(f"s_lshl_b32 s{sT1}, s{sT0}, 11")
    I(f"s_and_b32 s{sT2}, s{sSLOT}, 7")
    I(f"s_lshl_b32 s{sT3}, s{sT2}, 4")
    I(f"s_add_u32 s{sT1}, s{sT1}, s{sT3}")
    I(f"v_lshrrev_b32 v{t0}, 5, v{vLANE}")
    I(f"v_lshlrev_b32 v{vCP}, 10, v{t0}")
    I(f"v_lshl_add_u32 v{vCP}, v{q4}, 8, v{vCP}")
    I(f"v_and_b32 v{t0}, 1, v{g}")
    I(f"v_lshl_add_u32 v{vCP}, v{t0}, 7, v{vCP}")
    I(f"v_lshl_add_u32 v{vCP}, v{c4}, 2, v{vCP}")
    I(f"v_add_u32 v{vCP}, s{sT1}, v{vCP}")
    I(f"s_lshl_b32 s{sT0}, s{sT0}, 7")
    I(f"s_lshl_b32 s{sT2}, s{sT2}, 3")
    I(f"s_add_u32 s{sT0}, s{sT0}, s{sT2}")
    I(f"s_add_u32 s{sT0}, s{sT0}, {MLOFF}")
    I(f"v_mov_b32 v{vCPM}, s{sT0}")
    I(f"s_and_b32 s{sT0}, s{sQS}, {~2047 & 0xffffffff:#x}")
    I(f"v_lshlrev_b32 v{vQG7}, 3, v{vLANE}")
    I(f"v_add_u32 v{vQG7}, s{sT0}, v{vQG7}")

    a.label("L_initc")
    I(f"s_mov_b32 s{sRN}, 0")
    I(f"s_mov_b32 s{sRB}, 0")
    I(f"s_mov_b32 s{sRSTEP}, 0")
    srd(TB, 40, 4096 * 1280)
    I(f"v_lshrrev_b32 v{t0}, 2, v{vLANE}")
    I(f"v_lshlrev_b32 v{t1}, 4, v{c4}")
    I(f"s_cmp_eq_u32 s{sROLE}, 0")
    I("s_cbranch_scc0 L_rpd")
    I(f"s_lshl_b32 s{sT0}, s{sXW}, 3")
    I(f"s_add_u32 s{sT0}, s{sT0}, s{sWAVE}")
    I(f"s_lshr_b32 s{sT0}, s{sT0}, 1")
    hperm(sT0, sT0, sT1)
    I(f"s_lshl_b32 s{sT0}, s{sT0}, 1")
    I(f"s_and_b32 s{sT1}, s{sWAVE}, 1")
    I(f"s_add_u32 s{sT0}, s{sT0}, s{sT1}")
    I(f"s_mul_i32 s{sT0}, s{sT0}, {64*1280}")
    I(f"s_lshl_b32 s{sT1}, s{sR}, 6")
    I(f"s_add_u32 s{sRB}, s{sT0}, s{sT1}")
    I(f"s_mov_b32 s{sRSTEP}, {16*1280}")
    I(f"s_mov_b32 s{sRN}, 4")
    I(f"v_mul_u32_u24 v{vRDMA}, 1280, v{t0}")
    I(f"v_add_u32 v{vRDMA}, v{vRDMA}, v{t1}")
    I(f"s_lshr_b32 s{sT0}, s{sWAVE}, 1")
    I(f"s_lshl_b32 s{sT1}, s{sXW}, 2")
    I(f"s_add_u32 s{sT0}, s{sT0}, s{sT1}")
    I(f"s_lshl_b32 s{sT1}, s{sXW}, 3")
    I(f"s_add_u32 s{sT1}, s{sT1}, s{sWAVE}")
    I(f"s_lshl_b32 s{sT1}, s{sT1}, 10")
    I(f"v_lshlrev_b32 v{t2}, 4, v{vLANE}")
    I(f"v_add_u32 v{vA0}, s{sT1}, v{t2}")
    I(f"v_xor_b32 v{t2}, v{g}, v{q4}")
    I(f"v_and_b32 v{t2}, 1, v{t2}")
    I(f"v_lshl_add_u32 v{t2}, v{t2}, 2, v{c4}")
    I(f"v_lshlrev_b32 v{t2}, 3, v{t2}")
    I(f"s_lshl_b32 s{sT0}, s{sT0}, 7")
    I(f"s_add_u32 s{sT0}, s{sT0}, {MLOFF}")
    I(f"v_add_u32 v{vA2}, s{sT0}, v{t2}")
    a.label("L_rpd")

    I(f"s_mul_i32 s{sT0}, s{sWAVE}, {PP}")
    I(f"v_lshlrev_b32 v{vPW}, 4, v{n}")
    I(f"v_lshl_add_u32 v{vPW}, v{g}, 2, v{vPW}")
    I(f"v_add_u32 v{vPW}, s{sT0}, v{vPW}")
    I(f"v_lshl_add_u32 v{vQR}, v{g}, 2, v{c4}")
    I(f"v_lshlrev_b32 v{vQR}, 4, v{vQR}")
    I(f"v_add_u32 v{vQR}, {L_QB}, v{vQR}")
    I(f"s_lshl_b32 s{sT0}, s{sWAVE}, 10")
    I(f"s_add_u32 s{sT0}, s{sT0}, {L_O}")
    I(f"v_bfe_u32 v{t0}, v{vLANE}, 3, 1")
    I(f"v_lshlrev_b32 v{vOW}, 9, v{t0}")
    I(f"v_and_b32 v{t0}, 7, v{vLANE}")
    I(f"v_lshl_add_u32 v{vOW}, v{t0}, 5, v{vOW}")
    I(f"v_and_b32 v{t1}, 1, v{g}")
    I(f"v_lshl_add_u32 v{vOW}, v{t1}, 4, v{vOW}")
    I(f"v_add_u32 v{vOW}, s{sT0}, v{vOW}")
    I(f"s_lshl_b32 s{sT0}, s{sWAVE}, 3")
    I(f"s_add_u32 s{sT0}, s{sT0}, {L_ML}")
    I(f"v_lshlrev_b32 v{vMLW}, 3, v{vLANE}")
    I(f"v_add_u32 v{vMLW}, {L_DUM}, v{vMLW}")
    I(f"v_writelane_b32 v{vMLW}, s{sT0}, 63")
    if sm:
        I(f"v_and_b32 v{t0}, 4, v{vLANE}")
        I(f"v_cmp_eq_u32 vcc, 0, v{t0}")
        I(f"v_mov_b32 v{t1}, 0xffff")
        I(f"v_mov_b32 v{t2}, 0xffff0000")
        I(f"v_cndmask_b32 v{vSEL}, 0, v{t1}, vcc")
        I(f"v_cndmask_b32 v{vSEL+2}, 0, v{t2}, vcc")
        I(f"v_xor_b32 v{vSEL+1}, v{vSEL}, v{t1}")
        I(f"v_xor_b32 v{vSEL+3}, v{vSEL+2}, v{t2}")
        I(f"v_mul_u32_u24 v{t0}, 0x5555, v{c4}")
        I(f"v_and_b32 v{t1}, 2, v{vLANE}")
        I(f"v_mul_u32_u24 v{t1}, 0x5555, v{t1}")
        I(f"v_or_b32 v{t1}, 0x4444, v{t1}")
        I(f"v_lshl_or_b32 v{vSEL+4}, v{t0}, 16, v{t1}")
    for u in range(0 if sm else 2):
        for r in range(4):
            sb = 0x0100 if u == (r >> 1) else 0x0302
            d = vSEL + u * 4 + r
            I(f"v_mov_b32 v{d}, 0x0c0c0c0c")
            I(f"v_mov_b32 v{t1}, {0x0c0c0000 | sb:#x}")
            I(f"v_mov_b32 v{t2}, {(sb << 16) | 0x0c0c:#x}")
            I(f"v_cmp_eq_u32 vcc, {2*r}, v{t0}")
            I(f"v_cndmask_b32 v{d}, v{d}, v{t1}, vcc")
            I(f"v_cmp_eq_u32 vcc, {2*r+1}, v{t0}")
            I(f"v_cndmask_b32 v{d}, v{d}, v{t2}, vcc")

    def tr_addr(dst, pitch, base_s, x0=T + 48):
        x1 = x0 + 1
        I(f"v_lshrrev_b32 v{x0}, 4, v{vLANE}")
        I(f"v_bfe_u32 v{x1}, v{vLANE}, 2, 2")
        I(f"v_lshl_add_u32 v{x0}, v{x0}, 3, v{x1}")
        I(f"v_lshlrev_b32 v{x0}, {pitch.bit_length()-1}, v{x0}")
        I(f"v_and_b32 v{x1}, 3, v{vLANE}")
        I(f"v_lshl_add_u32 v{x0}, v{x1}, 3, v{x0}")
        I(f"v_add_u32 v{dst}, s{base_s}, v{x0}")

    def ones():
        for i in range(4):
            I(f"v_mov_b32 v{ONES+i}, 0x3f803f80")

    def gemv(ntile, Bbase, bidx):
        S1, S2 = T + 16, T + 20
        A0_, A1_ = vr(XA), vr(XA + 4)
        I(f"v_mfma_f32_16x16x32_bf16 {vr(S2)}, {A0_}, {A0_}, 0")
        I(f"v_mfma_f32_16x16x32_bf16 {vr(S2)}, {A1_}, {A1_}, {vr(S2)}")
        I(f"v_mfma_f32_16x16x32_bf16 {vr(S1)}, {A0_}, {vr(ONES)}, 0")
        I(f"v_mfma_f32_16x16x32_bf16 {vr(S1)}, {A1_}, {vr(ONES)}, {vr(S1)}")
        post = [
            f"v_pk_add_f32 v[{S2}:{S2+1}], v[{S2}:{S2+1}], v[{S2+2}:{S2+3}]",
            f"v_add_f32 v{S2}, v{S2}, v{S2+1}",
            f"v_add_f32_dpp v{S2}, v{S2}, v{S2} quad_perm:[1,0,3,2] row_mask:0xf bank_mask:0xf",
            f"v_pk_add_f32 v[{S1}:{S1+1}], v[{S1}:{S1+1}], v[{S1+2}:{S1+3}]",
            f"v_add_f32_dpp v{S2}, v{S2}, v{S2} quad_perm:[2,3,0,1] row_mask:0xf bank_mask:0xf",
            f"v_add_f32 v{S1}, v{S1}, v{S1+1}",
            f"v_add_f32_dpp v{S2}, v{S2}, v{S2} row_half_mirror row_mask:0xf bank_mask:0xf",
            f"ds_write2_b32 v{vSW}, v{S1}, v{S2} offset0:0 offset1:4",
        ]
        def dpost(t):
            D = T + 8 * t
            return [f"v_pk_add_f32 v[{D}:{D+1}], v[{D}:{D+1}], v[{D+2}:{D+3}]",
                    f"v_pk_add_f32 v[{D+4}:{D+5}], v[{D+4}:{D+5}], v[{D+6}:{D+7}]",
                    f"v_add_f32 v{D}, v{D}, v{D+1}",
                    f"v_add_f32_dpp v{D}, v{D+4}, v{D+5} quad_perm:[0,1,2,3] row_mask:0xc bank_mask:0xf",
                    f"ds_write_b32 v{vPW}, v{D} offset:{L_PB1 + t*256}"]
        for t in range(ntile):
            post += dpost(t)
        k = 0
        for t in range(ntile):
            for j in range(2):
                D = T + 8 * t + 4 * j
                for h in range(2):
                    I(f"v_mfma_f32_16x16x32_bf16 {vr(D)}, {(A0_, A1_)[h]}, {vr(Bbase+4*bidx(2*h+j,t))}, {vr(D) if h else '0'}")
                    k += 1
                    if k >= 5 and k < 4 * ntile:
                        for x in post[:2]: I(x)
                        post = post[2:]
        for x in post: I(x)
        I("s_waitcnt lgkmcnt(0)")

    def gemv_q(first=False):
        S1, S2 = T + 16, T + 20
        for t in range(4):
            I(f"v_mfma_f32_16x16x32_bf16 {vr(T+4*t)}, {vr(vBQ+4*t)}, {vr(XA)}, 0")
        I(f"v_mfma_f32_16x16x32_bf16 {vr(S1)}, {vr(XA)}, {vr(ONES)}, 0")
        I(f"v_mfma_f32_16x16x32_bf16 {vr(S2)}, {vr(XA)}, {vr(XA)}, 0")
        if first:
            for t in range(4):
                I(f"v_mfma_f32_16x16x32_bf16 {vr(vRB+4*t)}, {vr(vBQ+4*t)}, {vr(ONES)}, 0")
        I(f"s_mov_b64 exec, s[{sKM}:{sKM+1}]")
        for t in range(4):
            I(f"ds_write_b128 v{vPQ}, {vr(T+4*t)} offset:{L_PB1 + t*64}")
        if first:
            for t in range(4):
                I(f"ds_write_b128 v{vPQ}, {vr(vRB+4*t)} offset:{L_PB1 + 256 + t*64}")
        I("s_mov_b64 exec, -1")
        I(f"ds_write2_b32 v{vSW}, v{S1}, v{S2} offset0:0 offset1:4")
        I("s_waitcnt lgkmcnt(0)")

    def gather(sreg):
        poll([f"buffer_load_dwordx4 {vr(XA)}, v{vGO}, {WS}, s{sreg} offen {zfl}",
              f"buffer_load_dwordx4 {vr(XA+4)}, v{vGO}, {WS}, s{sreg} offen offset:{2*ZR} {zfl}"],
             [XA, XA + 4], groups=[[XA], [XA + 4]], hop=2)

    def reduce_read(nw, base):
        for v in range(nw):
            I(f"ds_read_b128 {vr(T+4*v)}, v{vRR} offset:{base + v*PP}")

    def reduce_sum(nw, dst):
        np_ = 2 * nw
        idx = list(range(np_))
        while len(idx) > 1:
            nx = []
            for i in range(0, len(idx) - 1, 2):
                d, s = idx[i], idx[i + 1]
                I(f"v_pk_add_f32 v[{T+2*d}:{T+2*d+1}], v[{T+2*d}:{T+2*d+1}], v[{T+2*s}:{T+2*s+1}]")
                nx.append(d)
            if len(idx) % 2:
                nx.append(idx[-1])
            idx = nx
        I(f"v_add_f32 v{dst}, v{T}, v{T+1}")

    rTOT, rMEAN, rVAR, rMB, rSD, rR, rU, rT, rINV, rC1, rC2, rCS = [T + 32 + i for i in range(12)]

    def cs_read(area, dst):
        l = a.newlab("Lcs")
        I(f"s_cmp_eq_u32 s{sIT}, 0")
        I(f"s_cbranch_scc0 {l}")
        I(f"v_lshrrev_b32 v{rT}, 2, v{vRR}")
        for v in range(5):
            I(f"ds_read_b32 v{T+24+v}, v{rT} offset:{area + v*128}")
        I("s_waitcnt lgkmcnt(0)")
        I(f"v_add_f32 v{dst}, v{T+24}, v{T+25}")
        I(f"v_add_f32 v{rT}, v{T+26}, v{T+27}")
        I(f"v_add_f32 v{dst}, v{dst}, v{T+28}")
        I(f"v_add_f32 v{dst}, v{dst}, v{rT}")
        a.label(l)

    def stats(l0=32):
        if l0 is not None:
            I(f"v_readlane_b32 s{sT0}, v{rTOT}, {l0}")
            I(f"v_readlane_b32 s{sT1}, v{rTOT}, {l0+1}")
            I(f"v_mul_f32 v{rMEAN}, s{sT0}, v{rINV}")
            I(f"v_mul_f32 v{rVAR}, s{sT1}, v{rINV}")
        I(f"v_fma_f32 v{rVAR}, -v{rMEAN}, v{rMEAN}, v{rVAR}")
        I(f"v_max_f32 v{rVAR}, 0, v{rVAR}")
        I(f"v_cvt_pk_bf16_f32 v{rT}, v{rMEAN}, v{rVAR}")
        I(f"v_and_b32 v{rU}, 0xffff0000, v{rT}")
        I(f"v_lshlrev_b32 v{rMB}, 16, v{rT}")
        I(f"v_add_f32 v{rU}, {f2u(1e-5):#x}, v{rU}")
        I(f"v_cvt_pk_bf16_f32 v{rU}, v{rU}, v{rU}")
        I(f"v_and_b32 v{rU}, 0xffff0000, v{rU}")
        I(f"v_sqrt_f32 v{rU}, v{rU}")
        I(f"v_cvt_pk_bf16_f32 v{rU}, v{rU}, v{rU}")
        I(f"v_and_b32 v{rSD}, 0xffff0000, v{rU}")
        I(f"v_rcp_f32 v{rR}, v{rSD}")

    def pack_pairs(src, dst):
        I(f"v_mov_b32_dpp v{rT}, v{src} quad_perm:[1,0,3,2] row_mask:0xf bank_mask:0xf")
        I(f"v_cvt_pk_bf16_f32 v{dst}, v{src}, v{rT}")
        I(f"v_min_u32 v{dst}, 0xfffffffe, v{dst}")

    def q_reduce(first=False):
        qa, qs, QS = T + 44, T + 45, T + 20
        I(f"v_lshlrev_b32 v{qa}, 2, v{vLANE}")
        I(f"v_and_b32 v{qs}, 1, v{vLANE}")
        if sm:
            I(f"v_and_b32 v{T+46}, 0x34, v{vLANE}")
            I(f"v_lshl_add_u32 v{T+46}, v{qs}, 3, v{T+46}")
            I(f"v_bfe_u32 v{T+47}, v{vLANE}, 3, 1")
            I(f"v_lshl_add_u32 v{T+46}, v{T+47}, 1, v{T+46}")
            I(f"v_bfe_u32 v{T+47}, v{vLANE}, 1, 1")
            I(f"v_add_lshl_u32 v{T+46}, v{T+46}, v{T+47}, 2")
        I(f"v_lshlrev_b32 v{qs}, 4, v{qs}")
        return qa, qs, QS

    def q_reduce2(qa, qs, QS, first=False):
        for v in range(5):
            I(f"ds_read_b128 {vr(T+4*v)}, v{qs} offset:{L_PB1 + 512 + v*PP}")
        for v in range(5):
            I(f"ds_read_b32 v{QS+v}, v{qa} offset:{L_PB1 + v*PP}")
        if first:
            for v in range(5):
                I(f"ds_read_b32 v{QS+5+v}, v{qa} offset:{L_PB1 + 256 + v*PP}")
        I(f"s_waitcnt lgkmcnt({10 if first else 5})")
        reduce_sum(5, rTOT)
        stats(0)
        I("s_waitcnt lgkmcnt(0)")
        I(f"v_add_f32 v{QS}, v{QS}, v{QS+1}")
        I(f"v_add_f32 v{QS+2}, v{QS+2}, v{QS+3}")
        I(f"v_add_f32 v{QS}, v{QS}, v{QS+4}")
        I(f"v_add_f32 v{QS}, v{QS}, v{QS+2}")
        if first:
            I(f"v_add_f32 v{vCSQ}, v{QS+5}, v{QS+6}")
            I(f"v_add_f32 v{QS+7}, v{QS+7}, v{QS+8}")
            I(f"v_add_f32 v{vCSQ}, v{vCSQ}, v{QS+9}")
            I(f"v_add_f32 v{vCSQ}, v{vCSQ}, v{QS+7}")
        I(f"v_fma_f32 v{rU}, -v{rMB}, v{vCSQ}, v{QS}")
        I(f"v_mul_f32 v{rU}, v{rU}, v{rR}")
        I(f"v_min_u32 v{rU}, 0xfffffffe, v{rU}")

    def q_gather(va, qa):
        G_ = 60 if y128 else T
        poll([f"buffer_load_dwordx2 v[{G_+2*k}:{G_+2*k+1}], v{va}, {WS}, s{sREG} offen offset:{k*512} sc1" for k in range(4)],
             list(range(G_, G_ + 8)), groups=[[G_ + 2 * k, G_ + 2 * k + 1] for k in range(4)], hop=16 if y128 else 0)
        Z_ = T + 40 if zq else T
        I(f"v_pk_add_f32 v[{Z_}:{Z_+1}], v[{G_}:{G_+1}], v[{G_+2}:{G_+3}]")
        I(f"v_pk_add_f32 v[{Z_+2}:{Z_+3}], v[{G_+4}:{G_+5}], v[{G_+6}:{G_+7}]")
        I(f"v_pk_add_f32 v[{Z_}:{Z_+1}], v[{Z_}:{Z_+1}], v[{Z_+2}:{Z_+3}]")
        I(f"v_cvt_pk_bf16_f32 v{Z_}, v{Z_}, v{Z_+1}")
        I(f"ds_write_b32 v{T+46 if sm else qa}, v{Z_} offset:{L_QB}")

    def lds_wait(off, val, ge=False):
        lab = a.newlab("Lw"); done = a.newlab("Lwd")
        I(f"v_mov_b32 v{T+47}, {L_FLAG}")
        a.label(lab)
        I(f"ds_read_b32 v{T+46}, v{T+47} offset:{off}")
        I(f"s_add_u32 s{sSPIN}, s{sSPIN}, 1")
        I("s_waitcnt lgkmcnt(0)")
        I(f"v_readfirstlane_b32 s{sT3}, v{T+46}")
        I(f"s_cmp_{'ge' if ge else 'eq'}_u32 s{sT3}, {val}")
        I(f"s_cbranch_scc1 {done}")
        I(f"s_cmp_lt_u32 s{sSPIN}, {spin_limit}")
        I(f"s_cbranch_scc1 {lab}")
        a.label(done)

    def sp(p):
        if prio: I(f"s_setprio {p}")

    I(f"v_mov_b32 v{rINV}, {f2u(1.0/640):#x}")
    I("s_waitcnt lgkmcnt(0)")
    I("s_barrier")
    TS(1)
    I(f"s_cmp_ge_u32 s{sWAVE}, 4")
    I("s_cbranch_scc1 L_s4567")
    srd(TA, 38, 640 * 8192)
    w_issue(nw0, RSL)
    TS(37)
    tr_addr(ta0, 64, sPER, T + 25)
    I(f"s_sub_u32 s{sPER}, s{sRING}, s{sPER}")
    I(f"v_bfe_u32 v{T+25}, v{vLANE}, 4, 1")
    I(f"v_lshl_add_u32 v{ta0}, v{T+25}, 5, v{ta0}")
    I(f"v_xor_b32 v{ta1}, 32, v{ta0}")
    I(f"s_waitcnt vmcnt({nis[0] - 5})")
    setexec(0x22222222, 0x22222222)
    for i in range(20):
        I(f"v_mov_b32 v{XQ+i}, 0x3f803f80")
    setexec(0xFFFFFFFF, 0xFFFFFFFF)
    for j in range(5):
        I(f"v_mfma_f32_16x16x32_bf16 {vr(BUF)}, {vr(XQ+4*j)}, {vr(XQ+4*j)}, {vr(BUF) if j else '0'}")
    for i in range(4):
        I(f"v_readlane_b32 s{sF+i}, v{BUF}, {20*i+1}")
        I(f"v_readlane_b32 s{sF+4+i}, v{BUF}, {20*i}")
    I(f"v_mov_b32 v{rMEAN}, s{sF}")
    I(f"v_mov_b32 v{rVAR}, s{sF+4}")
    for i in range(1, 4):
        I(f"v_add_f32 v{rMEAN}, s{sF+i}, v{rMEAN}")
        I(f"v_add_f32 v{rVAR}, s{sF+4+i}, v{rVAR}")
    I(f"v_mul_f32 v{rMEAN}, v{rMEAN}, v{rINV}")
    I(f"v_mul_f32 v{rVAR}, v{rVAR}, v{rINV}")
    stats(None)
    I(f"v_readfirstlane_b32 s{sMB}, v{rMB}")
    I(f"v_readfirstlane_b32 s{sRS_}, v{rR}")
    TS(2)
    def q_mma(u):
        for t in range(2):
            acc = ACC + 16 * t + 4 * (u & 3)
            I(f"v_mfma_f32_16x16x32_bf16 {vr(acc)}, {vr(BUF + 8*(u%4) + 4*t)}, {vr(XQ+4*(u>>2))}, {vr(acc) if u >= 4 else '0'}")
    for u in range(20):
        I(f"s_waitcnt vmcnt({nis[0] - wpos[2*u+1] - 1})")
        if u == 0: TS(38)
        o = slot(2 * u)[1]
        if 2 * u == (RSL if q2 else NPER):
            I(f"v_add_u32 v{ta0}, s{sPER}, v{ta0}")
            I(f"v_add_u32 v{ta1}, s{sPER}, v{ta1}")
        for t in range(2):
            b = BUF + 8 * (u % 4) + 4 * t
            I(f"ds_read_b64_tr_b16 v[{b}:{b+1}], v{(ta0, ta1)[t]} offset:{o}")
            I(f"ds_read_b64_tr_b16 v[{b+2}:{b+3}], v{(ta0, ta1)[t]} offset:{o+256}")
        if u:
            I("s_waitcnt lgkmcnt(4)")
            q_mma(u - 1)
            p = 2 * (u - 1) + NREST
            if RSL <= p < 40:
                w_issue(p, p + 2)
                if p + 2 == 40:
                    k_issue(nk[0], qk)
                    nis[0] += qk - nk[0]
                    TS(39)
    I(f"v_mov_b32 v{BUF+0}, {L_FLAG}")
    I(f"v_mov_b32 v{BUF+1}, 1")
    I(f"v_lshrrev_b32 v{BUF+2}, 4, v{vLANE}")
    if sm:
        I(f"v_and_b32 v{BUF+3}, 2, v{BUF+2}")
        I(f"v_add_lshl_u32 v{BUF+2}, v{BUF+2}, v{BUF+3}, 2")
    else:
        I(f"v_lshlrev_b32 v{BUF+2}, 3, v{BUF+2}")
    I(f"s_lshl_b32 s{sT0}, s{sWAVE}, 6")
    if sm: I(f"s_add_u32 s{sT0}, s{sT0}, {L_QB}")
    I(f"v_add_u32 v{BUF+2}, s{sT0}, v{BUF+2}")
    I(f"v_mov_b32 v{BUF+3}, s{sMB}")
    I(f"v_xor_b32 v{BUF+3}, 0x80000000, v{BUF+3}")
    I("s_waitcnt lgkmcnt(0)")
    q_mma(19)
    for aa in range(1, 4):
        for t in range(2):
            for i in range(4):
                d = ACC + 16 * t + i
                I(f"v_add_f32_dpp v{d}, v{d+4*aa}, v{d} row_shl:{4*aa} row_mask:0xf bank_mask:0xf")
    for t in range(2):
        for i in range(4):
            d = ACC + 16 * t + i
            I(f"v_fmac_f32_dpp v{d}, v{d}, v{BUF+3} quad_perm:[1,1,1,1] row_mask:0xf bank_mask:0xf")
    for t in range(2):
        for i in range(4):
            d = ACC + 16 * t + i
            I(f"v_mul_f32 v{d}, s{sRS_}, v{d}")
    for t in range(2):
        d = ACC + 16 * t
        I(f"v_cvt_pk_bf16_f32 v{d}, v{d}, v{d+1}")
        I(f"v_cvt_pk_bf16_f32 v{d+1}, v{d+2}, v{d+3}")
    setexec(0x00010001, 0x00010001)
    for t in range(2):
        d = ACC + 16 * t
        if sm: I(f"ds_write2_b32 v{BUF+2}, v{d}, v{d+1} offset0:{2*t} offset1:{2*t+8}")
        else: I(f"ds_write_b64 v{BUF+2}, v[{d}:{d+1}] offset:{L_QB + 32*t}")
    setexec(1, 0)
    I("s_waitcnt lgkmcnt(0)")
    I(f"ds_add_u32 v{BUF+0}, v{BUF+1} offset:12")
    setexec(0xFFFFFFFF, 0xFFFFFFFF)
    TS(5)
    sp(sp1)
    k_issue(qk, 16)
    I("s_branch L_vall")

    a.label("L_s4567")
    I(f"s_cmp_eq_u32 s{sWAVE}, 6")
    I("s_cbranch_scc0 L_krest")
    sp(3)
    I(f"s_mov_b32 s{sVOTE}, 0")
    I(f"s_sub_u32 s{sT0}, s{sR}, {calr}")
    I(f"s_cmp_lt_u32 s{sT0}, {ncal}")
    I("s_cbranch_scc0 L_ncal")
    MK = 0x13579bdf
    I(f"s_lshl_b32 s{sT0}, s{sT0}, 3")
    I(f"s_add_u32 s{sT0}, s{sT0}, s{sX}")
    I(f"s_lshl_b32 s{sT0}, s{sT0}, 7")
    I(f"s_add_u32 s88, s{sT0}, {CALOFF + 0x10000}")
    I(f"s_load_dword s86, s[56:57], s88 glc")
    I(f"s_add_u32 s{sT0}, s{sT0}, {CALOFF}")
    I(f"s_lshl_b32 s{sVOTE}, s{sR}, 13")
    I(f"s_and_b32 s{sVOTE}, s{sVOTE}, {CP}")
    I(f"s_add_u32 s{sT0}, s{sT0}, s{sVOTE}")
    I(f"s_xor_b32 s{sT3}, s{sT0}, {CP}")
    I(f"s_lshr_b32 s{sVOTE}, s{sVOTE}, 13")
    I(f"s_lshr_b32 s88, s{sXCC}, 2")
    I(f"s_xor_b32 s{sVOTE}, s{sVOTE}, s88")
    I("s_waitcnt lgkmcnt(0)")
    for k, (ad, cnt) in enumerate(((sT0, 88), (sT3, 89))):
        I(f"s_mov_b32 s86, {MK:#x}")
        I(f"s_mov_b32 s{cnt}, 0")
        I(f"s_load_dword s86, s[56:57], s{ad} glc")
        a.label(f"L_cal{k}")
        I(f"s_add_u32 s{cnt}, s{cnt}, 1")
        I(f"s_cmp_eq_u32 s86, {MK:#x}")
        I(f"s_cselect_b32 s87, s{cnt}, 1000")
        I(f"s_cmp_lt_u32 s87, 200")
        I(f"s_cbranch_scc1 L_cal{k}")
        I("s_waitcnt lgkmcnt(0)")
    I(f"s_cmp_gt_u32 s88, s89")
    I(f"s_cselect_b32 s{sT0}, 1, 0")
    I(f"s_xor_b32 s{sVOTE}, s{sVOTE}, s{sT0}")
    I(f"s_and_b32 s{sVOTE}, s{sVOTE}, 1")
    I(f"s_lshl_b32 s{sVOTE}, s{sVOTE}, 24")
    a.label("L_ncal")
    I(f"s_mul_i32 s{sT0}, s{sXCC}, 6")
    I(f"s_lshl_b64 s[{sF}:{sF+1}], 1, s{sT0}")
    I(f"s_cmp_lt_u32 s{sXCC}, 8")
    I(f"s_cselect_b32 s{sF}, s{sF}, 0")
    I(f"s_cselect_b32 s{sF+1}, s{sF+1}, 0")
    I(f"s_or_b32 s{sF+1}, s{sF+1}, 0x10000")
    I(f"s_or_b32 s{sF+1}, s{sF+1}, s{sVOTE}")
    srd(TA, 54, 256)
    I(f"v_mov_b32 v{vAT}, s{sF}")
    I(f"v_mov_b32 v{vAT+1}, s{sF+1}")
    I(f"s_lshl_b32 s{sT0}, s{sX}, 4")
    I(f"v_mov_b32 v{vAT+2}, s{sT0}")
    TS(33)
    I("s_waitcnt vmcnt(0)")
    setexec(1, 0)
    I(f"buffer_atomic_add_x2 v[{vAT}:{vAT+1}], v{vAT+2}, {TA}, 0 offen offset:128 sc1")
    setexec(0xFFFFFFFF, 0xFFFFFFFF)
    TS(32)
    sp(0)
    k_issue(0, n0)
    a.label("L_krest")
    k_issue(n0, 16)
    a.label("L_vall")
    v_issue()
    if the:
        I("s_mov_b32 s97, 0")
        I(f"s_cmp_eq_u32 s{sROLE}, 0")
        I("s_cbranch_scc1 L_the")
        I(f"v_lshrrev_b32 v{T+49}, 3, v{vLANE}")
        I(f"v_lshlrev_b32 v{T+49}, 7, v{T+49}")
        I(f"v_and_b32 v{T+50}, 7, v{vLANE}")
        I(f"v_lshl_add_u32 v{T+49}, v{T+50}, 3, v{T+49}")
        I(f"v_mov_b32 v{T+50}, -1")
        I(f"s_lshl_b32 s{sT1}, s{sXW}, 9")
        I(f"s_add_u32 s{sT1}, s{sT1}, {MLOFF}")
        setexec(0xFFFFFFFF, 0)
        I(f"buffer_load_dword v{T+50}, v{T+49}, {WS}, s{sT1} offen sc1")
        setexec(0xFFFFFFFF, 0xFFFFFFFF)
        a.label("L_the")
    if pst == 1: pf_static("L_ps", True)
    if pst >= 4 and (pst != 6 or pi): pf_static("L_ps", True, 1)
    TS(31)
    OA2, PS2, MI2 = (T + 36, T + 48, 28) if q2 == 3 else (T + 24, T + 32, 28)
    def att_pre(hi=44):
        for i in (range(4, hi) if q2 == 3 else range(32)):
            I(f"v_mov_b32 v{T+i}, 0")
        I(f"v_mov_b32 v{MI2+2}, {SCALE:#x}")
        I(f"v_mov_b32 v{MI2+3}, {SCALE:#x}")
        I(f"v_mov_b32 v{MI2+1}, s{sL2E}")
    def q_masked(fmt):
        setexec(0x000F000F, 0x000F000F)
        for t in range(4):
            I(fmt(T + 4 * t))
            I("s_lshl_b64 exec, exec, 4" if t < 3 else "s_mov_b64 exec, -1")
    if q2 >= 2: att_pre()
    for i in (range(0) if q2 >= 2 else range(4, 36) if q2 else range(24 if sm else 16)):
        I(f"v_mov_b32 v{T+i}, 0")
    if gate:
        I(f"v_mov_b32 v{T+44}, {L_FLAG}")
        I(f"v_mov_b32 v{T+45}, 1")
        setexec(1, 0)
        I(f"ds_add_u32 v{T+44}, v{T+45} offset:8")
        setexec(0xFFFFFFFF, 0xFFFFFFFF)
    lds_wait(12, 4, ge=True)
    TS(8)
    if q2 in (1, 3): I(f"ds_read_b128 {vr(T)}, v{vQR}")
    if q2 == 2:
        q_masked(lambda r_: f"ds_read_b128 {vr(r_)}, v{vQR}")
        I(f"s_mov_b64 s[{sKM}:{sKM+1}], 0")
    I("s_branch L_att")

    a.label("L_loop")
    I(f"s_cmp_eq_u32 s{sWAVE}, 6")
    I("s_cbranch_scc0 L_nsub")
    I(f"s_cmp_eq_u32 s{sROLE}, 0")
    if g3:
        I("s_cbranch_scc1 L_sub")
        I(f"s_cmp_lt_u32 s{sTB}, 54")
        I("s_cbranch_scc1 L_G3")
        I(f"s_and_b32 s{sT0}, s{sR}, 7")
        I(f"s_lshl_b32 s{sT0}, s{sT0}, 14")
        I(f"s_add_u32 s{sT0}, s{sT0}, s{sNEAR}")
        I(f"s_add_u32 s{sT0}, s{sT0}, {YOFF}")
        I(f"v_lshlrev_b32 v{T}, 7, v{vLANE}")
        light(f"buffer_load_dword v{T+1}, v{T}, {WS}, s{sT0} offen sc1", T + 1, (3, 0))
        I("s_branch L_G3")
        a.label("L_sub")
    else:
        I("s_cbranch_scc0 L_B1")
    SL, YD, YA, ya0, ya1, yo = T + 20, T, T + 24, T + 28, T + 29, T + 30
    srd(TA, 50, 1280)
    I(f"v_lshlrev_b32 v{ya0}, 4, v{vLANE}")
    for i in range(4):
        I(f"v_mov_b32 v{YD+i}, 0")
    I(f"s_lshl_b32 s{sT2}, s{sR}, 6")
    if m2:
        yz2 = T + 32
        I(f"v_and_b32 v{yz2}, 3, v{vLANE}")
        I(f"v_lshlrev_b32 v{ya1}, 3, v{yz2}")
        I(f"v_sub_u32 v{yz2}, v{ya0}, v{ya1}")
        setexec(0, 0xF)
        I(f"buffer_load_dwordx2 v[{YD}:{YD+1}], v{ya1}, {TA}, s{sT2} offen")
        I(f"buffer_load_dwordx2 v[{YD+2}:{YD+3}], v{ya1}, {TA}, s{sT2} offen offset:32")
    else:
        I(f"v_subrev_u32 v{ya1}, 512, v{ya0}")
        setexec(0, 0xF)
        I(f"buffer_load_dwordx4 {vr(YD)}, v{ya1}, {TA}, s{sT2} offen")
    setexec(0xFFFFFFFF, 0xFFFFFFFF)
    I(f"v_and_b32 v{yo}, 15, v{vLANE}")
    I(f"v_mov_b32 v{YA}, 0x3f80")
    I(f"v_mov_b32 v{YA+1}, 0x3f800000")
    for q_ in range(4):
        I(f"v_cmp_eq_u32 vcc, {2*q_}, v{yo}")
        I(f"v_cndmask_b32 v{SL+q_}, 0, v{YA}, vcc")
        I(f"v_cmp_eq_u32 vcc, {2*q_+1}, v{yo}")
        I(f"v_cndmask_b32 v{SL+q_}, v{SL+q_}, v{YA+1}, vcc")
    yw = T + 31
    I(f"v_and_b32 v{yw}, 0x3c0, v{ya0}")
    I(f"v_add_u32 v{yw}, v{yw}, v{ya0}")
    yz = yw if zx == 128 else ya0
    yy = yw if y128 else ya0
    I(f"v_mov_b32 v{ya1}, {BIG:#x}")
    I(f"v_cmp_gt_u32 vcc, 24, v{vLANE}")
    I(f"v_cndmask_b32 v{ya1}, v{ya1}, v{yy}, vcc")
    I(f"v_lshlrev_b32 v{yo}, {3 if m2 else 4}, v{yo}")
    I(f"v_lshrrev_b32 v{YA}, 4, v{vLANE}")
    I(f"v_lshl_add_u32 v{yo}, v{YA}, {5 if m2 else 3}, v{yo}")
    I(f"v_add_u32 v{yo}, s{sT2}, v{yo}")
    rank_off(sT0, sR, sT1)
    I(f"s_add_u32 s{sT3}, s{sREG}, s{sNEAR}")
    I(f"s_add_u32 s{sT0}, s{sT0}, s{sT3}")
    I(f"s_add_u32 s{sT0}, s{sT0}, {ZOFF - RS & 0xffffffff:#x}")
    setexec(0xFFFFFFFF, 0)
    if m2:
        poll([f"buffer_load_dwordx2 v[{YD}:{YD+1}], v{yz2}, {WS}, s{sT0} offen sc1",
              f"buffer_load_dwordx2 v[{YD+2}:{YD+3}], v{yz2}, {WS}, s{sT0} offen offset:32 sc1"], [YD, YD + 2], ex=(0xFFFFFFFF, 0))
    else:
        poll([f"buffer_load_dwordx4 {vr(YD)}, v{yz}, {WS}, s{sT0} offen sc1"], [YD], ex=(0xFFFFFFFF, 0))
    setexec(0xFFFFFFFF, 0xFFFFFFFF)
    I(f"v_mfma_f32_16x16x32_bf16 {vr(YA)}, {vr(SL)}, {vr(YD)}, 0")
    if m2:
        yi, y1_ = T + 33, T + 34
        I(f"v_and_b32 v{yi}, 10, v{vLANE}")
        I(f"v_mov_b32 v{y1_}, 0x3f80")
        I(f"v_cmp_eq_u32 vcc, 0, v{yi}")
        I(f"v_cndmask_b32 v{SL}, 0, v{y1_}, vcc")
        I(f"v_cndmask_b32 v{SL+2}, 0, v{y1_}, vcc")
        I(f"v_cmp_eq_u32 vcc, 2, v{yi}")
        I(f"v_cndmask_b32 v{SL+1}, 0, v{y1_}, vcc")
        I(f"v_cndmask_b32 v{SL+3}, 0, v{y1_}, vcc")
        I(f"v_and_b32 v{yi}, 1, v{vLANE}")
        I(f"v_bfe_u32 v{y1_}, v{vLANE}, 2, 1")
        I(f"v_lshl_add_u32 v{yi}, v{yi}, 1, v{y1_}")
        I(f"v_mul_u32_u24 v{yi}, 0x5555, v{yi}")
    I(f"s_and_b32 s{sT0}, s{sR}, 1")
    I(f"s_lshl_b32 s{sT0}, s{sT0}, {6 if y128 else 12}")
    I(f"s_lshr_b32 s{sT1}, s{sR}, 1")
    I(f"s_lshl_b32 s{sT1}, s{sT1}, 14")
    I(f"s_add_u32 s{sT0}, s{sT0}, s{sT1}")
    I(f"s_add_u32 s{sT0}, s{sT0}, s{sT3}")
    I(f"s_add_u32 s{sT0}, s{sT0}, {YOFF - RS & 0xffffffff:#x}")
    I(f"s_add_u32 s{sT1}, s{sT0}, {4096 if y128 else 2048}")
    I(f"s_lshl_b32 s{sT2}, s{sX}, 11")
    I(f"s_add_u32 s{sT2}, s{sT2}, {XOFF}")
    I("s_nop 7")
    TS(26)
    if p5 & 16: I("s_setprio 3")
    if yl:
        setexec((1 << yl) - 1, 0)
        a.label("L_yl")
        I(f"buffer_load_dword v{YD}, v{yy}, {WS}, s{sT0} offen {yfl}")
        I(f"s_add_u32 s{sSPIN}, s{sSPIN}, 1")
        I("s_waitcnt vmcnt(0)")
        I(f"v_cmp_ne_u32 vcc, -1, v{YD}")
        I("s_cbranch_vccnz L_yld")
        I(f"s_cmp_lt_u32 s{sSPIN}, {spin_limit}")
        I("s_cbranch_scc1 L_yl")
        a.label("L_yld")
        setexec(0xFFFFFFFF, 0xFFFFFFFF)
    if g3:
        I(f"s_cmp_eq_u32 s{sIT}, 2")
        I("s_cbranch_scc1 L_G3s")
        I("s_barrier")
        a.label("L_G3s")
    poll([f"buffer_load_dwordx4 {vr(YD+4*e)}, v{ya1 if e == 3 else yy}, {WS}, s{(sT0, sT1)[e >> 1]} offen offset:{(e & 1)*(2048 if y128 else 1024)} {yfl}" for e in range(4)],
         [YD + k for k in range(16)] if m2 else [YD + 2 * k for k in range(8)],
         groups=[list(range(YD + 4 * e, YD + 4 * e + 4)) if m2 else [YD + 4 * e, YD + 4 * e + 2] for e in range(4)], hop=4)
    TS(27)
    for e in range(2 if m2 else 4):
        if m2: I(f"v_smfmac_f32_16x16x64_bf16 {vr(YA)}, {vr(SL)}, {vr(YD+8*e, 8)}, v{yi}")
        else: I(f"v_mfma_f32_16x16x32_bf16 {vr(YA)}, {vr(SL)}, {vr(YD+4*e)}, {vr(YA)}")
    for m_ in (4, 8):
        for i in range(4):
            I(f"v_add_f32_dpp v{YA+i}, v{YA+i}, v{YA+i} row_ror:{m_} row_mask:0xf bank_mask:0xf")
    I(f"v_cvt_pk_bf16_f32 v{YA}, v{YA}, v{YA+1}")
    I(f"v_cvt_pk_bf16_f32 v{YA+1}, v{YA+2}, v{YA+3}")
    setexec(0x000F000F, 0)
    I(f"s_cmp_eq_u32 s{sIT}, 2")
    I("s_cbranch_scc0 L_lead1")
    I(f"buffer_store_dwordx2 v[{YA}:{YA+1}], v{yo}, {OUTS}, 0 offen")
    setexec(0xFFFFFFFF, 0xFFFFFFFF)
    TS(29)
    I("s_branch L_fin")
    a.label("L_lead1")
    I(f"v_min_u32 v{YA}, 0xfffffffe, v{YA}")
    I(f"v_min_u32 v{YA+1}, 0xfffffffe, v{YA+1}")
    lstore([f"buffer_store_dwordx2 v[{YA}:{YA+1}], v{yo}, {WS}, s{sT2} offen"])
    setexec(0xFFFFFFFF, 0xFFFFFFFF)
    TS(28)
    if p5 & 16: I("s_setprio 0")
    I("s_branch L_B1")
    if g3:
        a.label("L_G3")
        I("s_barrier")
        I("s_branch L_B1")
    a.label("L_nsub")
    I(f"s_cmp_ge_u32 s{sWAVE}, 5")
    I("s_cbranch_scc1 L_G3" if g3 else "s_cbranch_scc1 L_B1")
    IDX = vSEL + 4
    DPF = "row_mask:0xf bank_mask:0xf"
    if q2:
        ta, x1 = T + 24, T + 25
        I(f"s_lshl_b32 s{sT0}, s{sWAVE}, 13")
        I(f"s_add_u32 s{sT0}, s{sT0}, {L_PER}")
        I(f"v_lshrrev_b32 v{ta}, 5, v{vLANE}")
        I(f"v_lshlrev_b32 v{ta}, 10, v{ta}")
        I(f"v_bfe_u32 v{x1}, v{vLANE}, 4, 1")
        I(f"v_lshl_add_u32 v{ta}, v{x1}, 8, v{ta}")
        I(f"v_bfe_u32 v{x1}, v{vLANE}, 2, 1")
        I(f"v_lshl_add_u32 v{ta}, v{x1}, 6, v{ta}")
        I(f"v_and_b32 v{x1}, 3, v{vLANE}")
        I(f"v_lshl_add_u32 v{ta}, v{x1}, 3, v{ta}")
        I(f"v_bfe_u32 v{x1}, v{vLANE}, 3, 1")
        I(f"v_lshl_add_u32 v{ta}, v{x1}, 9, v{ta}")
        I(f"v_xor_b32 v{x1}, s{sSLOT}, v{x1}")
        I(f"v_and_b32 v{x1}, 1, v{x1}")
        I(f"v_lshl_add_u32 v{ta}, v{x1}, 5, v{ta}")
        I(f"v_add_u32 v{ta}, s{sT0}, v{ta}")
        for k_ in range(8):
            I(f"ds_read_b64_tr_b16 v[{vBQ+2*k_}:{vBQ+2*k_+1}], v{ta} offset:{(k_>>1)*2048 + (k_&1)*128}")
        for i in range(8):
            I(f"v_mov_b32 v{T+i}, 0")
        for i in range(4):
            I(f"v_mov_b32 v{XA+i}, 0x3f803f80")
        I(f"s_lshl_b32 s{sT2}, s{sX}, 11")
        I(f"s_add_u32 s{sT2}, s{sT2}, {XOFF}")
        I("s_waitcnt lgkmcnt(0)")
        TS(3)
        setexec(0x55555555, 0x55555555)
        poll([f"buffer_load_dwordx4 {vr(XA)}, v{vXO}, {WS}, s{sT2} offen sc1"], [XA, XA + 2], ex=(0x55555555, 0x55555555))
        setexec(0xFFFFFFFF, 0xFFFFFFFF)
        TS(4)
        I(f"v_mfma_f32_16x16x32_bf16 {vr(T+8)}, {vr(XA)}, {vr(XA)}, 0")
        for k_ in range(2):
            I(f"v_smfmac_f32_16x16x64_bf16 {vr(T+4*k_)}, {vr(XA)}, {vr(vBQ+8*k_, 8)}, v{IDX}")
        I(f"ds_write_b64 v{vSW}, v[{T+8}:{T+9}]")
        I(f"v_pk_add_f32 v[{T}:{T+1}], v[{T}:{T+1}], v[{T+2}:{T+3}]")
        I("s_mov_b32 exec_lo, 0xffff0000")
        I("s_mov_b32 exec_hi, 0")
        I(f"v_pk_add_f32 v[{T}:{T+1}], v[{T+4}:{T+5}], v[{T+6}:{T+7}]")
        I("s_mov_b32 exec_lo, -1")
        I(f"ds_write_b64 v{vPQ}, v[{T}:{T+1}] offset:{L_PB1}")
        I("s_mov_b32 exec_hi, -1")
        I("s_waitcnt lgkmcnt(0)")
        TS(5)
        a.label("L_B1")
        I(f"v_mov_b32 v{rINV}, {f2u(1.0/640):#x}")
        I(f"s_add_u32 s{sT2}, s{sQS}, s{sREG}")
        I(f"s_sub_u32 s{sT2}, s{sT2}, {L_QB}")
        I(f"s_cmp_eq_u32 s{sWAVE}, 5")
        I("s_cbranch_scc1 L_B15")
        I("s_barrier")
        if q2 >= 2 and qb != 2: att_pre()
        if qb: I("s_barrier")
        if qb == 2: att_pre()
        I("s_branch L_B2")
        a.label("L_B15")
        if p5 & 1: I("s_setprio 3")
        if q2 >= 2: att_pre(32)
        I("s_barrier")
        TS(6)
        SQ = 60 if q2 >= 2 else 28
        PR = [32, 36, 40, T + 44, T + 48] if q2 >= 2 else [T + 4 * v for v in range(5)]
        for v in range(5):
            I(f"ds_read_b64 v[{SQ+2*v}:{SQ+2*v+1}], v{vCSQ} offset:{L_PB1 + 512 + v*PP}")
        for v in range(5):
            I(f"ds_read_b128 {vr(PR[v])}, v{vQG} offset:{L_PB1 + v*PP}")
        I("s_waitcnt lgkmcnt(5)")
        for d_, s_ in ((0, 1), (2, 3), (0, 4), (0, 2)):
            I(f"v_pk_add_f32 v[{SQ+2*d_}:{SQ+2*d_+1}], v[{SQ+2*d_}:{SQ+2*d_+1}], v[{SQ+2*s_}:{SQ+2*s_+1}]")
        for m_ in ("quad_perm:[1,0,3,2]", "quad_perm:[2,3,0,1]"):
            I(f"v_add_f32_dpp v{SQ+1}, v{SQ+1}, v{SQ+1} {m_} {DPF}")
            I(f"v_add_f32_dpp v{SQ}, v{SQ}, v{SQ} {m_} {DPF}")
        I(f"v_mul_f32 v{rMEAN}, v{SQ+1}, v{rINV}")
        I(f"v_mul_f32 v{rVAR}, v{SQ}, v{rINV}")
        stats(None)
        I("s_waitcnt lgkmcnt(0)")
        for d_, s_ in ((0, 1), (2, 3), (4, 5), (6, 7), (8, 9), (0, 2), (4, 6), (0, 8), (0, 4)):
            d_, s_ = PR[d_ >> 1] + 2 * (d_ & 1), PR[s_ >> 1] + 2 * (s_ & 1)
            I(f"v_pk_add_f32 v[{d_}:{d_+1}], v[{d_}:{d_+1}], v[{s_}:{s_+1}]")
        I(f"v_fma_f32 v{rU}, -v{rMB}, v{PR[0]+1}, v{PR[0]}")
        I(f"v_mul_f32_dpp v{rT}, v{rU}, v{rR} quad_perm:[0,0,2,2] {DPF}")
        I(f"v_mul_f32_dpp v{rU}, v{rU}, v{rR} quad_perm:[1,1,3,3] {DPF}")
        I(f"v_cvt_pk_bf16_f32 v{rU}, v{rT}, v{rU}")
        I(f"v_min_u32 v{rU}, 0xfffffffe, v{rU}")
        TS(7)
        lstore([f"buffer_store_dword v{rU}, v{vQP}, {WS}, s{sREG} offen"], True)
        if p5 & 1: I("s_setprio 0")
        if qb: I("s_barrier")
        if q2 in (1, 3): I(f"buffer_load_ushort v{vXF}, v{vXFA}, {WS}, 0 offen sc1")
        if q2 == 3:
            for i in range(32, 44): I(f"v_mov_b32 v{T+i}, 0")
        a.label("L_B2")
        if q2 in (1, 3):
            if ap:
                I(f"s_cmp_lt_u32 s{sWAVE}, 4")
                I("s_cbranch_scc0 L_ap")
                I(f"s_setprio {ap}")
                a.label("L_ap")
            for i in (range(4, 36) if q2 == 1 else []):
                I(f"v_mov_b32 v{T+i}, 0")
            poll([f"buffer_load_dwordx4 {vr(T)}, v{vQR}, {WS}, s{sT2} offen sc1"], list(range(T, T + 4)), hop=32)
        else:
            if ap:
                I(f"s_cmp_lt_u32 s{sWAVE}, 4")
                I("s_cbranch_scc0 L_ap")
                I(f"s_setprio {ap}")
                a.label("L_ap")
            I(f"s_mov_b64 s[{sKM}:{sKM+1}], -1")
            a.label("L_qp")
            q_masked(lambda r_: f"buffer_load_dwordx4 {vr(r_)}, v{vQR}, {WS}, s{sT2} offen sc1")
            I(f"s_add_u32 s{sSPIN}, s{sSPIN}, 1")
            I(f"s_cmp_ge_u32 s{sSPIN}, {spin_limit}")
            I("s_cbranch_scc1 L_qd")
            I("s_waitcnt vmcnt(3)")
            cur = maxtree(T + 50, range(T, T + 4))
            I(f"v_cmp_eq_u32 vcc, -1, v{cur}")
            I("s_cbranch_vccnz L_qp")
            a.label("L_qd")
            I("s_waitcnt vmcnt(0)")
        TS(8)

    if not q2:
        I(f"s_lshl_b32 s{sT0}, s{sWAVE}, 11")
        I(f"s_and_b32 s{sT1}, s{sSLOT}, 4")
        I(f"s_mul_i32 s{sT1}, s{sT1}, {NPER * 512}")
        I(f"s_add_u32 s{sT0}, s{sT0}, s{sT1}")
        I(f"s_add_u32 s{sT0}, s{sT0}, {L_PER}")
        ta = T + 24
        tr_addr(ta, 64, sT0, T + 25)
        I(f"v_bfe_u32 v{T+25}, v{vLANE}, 4, 1")
        I(f"v_lshl_add_u32 v{ta}, v{T+25}, 5, v{ta}")
        I(f"v_xor_b32 v{ta+1}, 32, v{ta}")
        for t in range(4):
            o = (t >> 1) * NPER * 1024
            I(f"ds_read_b64_tr_b16 v[{vBQ+4*t}:{vBQ+4*t+1}], v{ta+(t&1)} offset:{o}")
            I(f"ds_read_b64_tr_b16 v[{vBQ+4*t+2}:{vBQ+4*t+3}], v{ta+(t&1)} offset:{o+256}")
        ones()
        I("s_waitcnt lgkmcnt(0)")
        for t in range(4):
            I(f"v_mfma_f32_16x16x32_bf16 {vr(T+4*t)}, {vr(vBQ+4*t)}, {vr(ONES)}, 0")
        I(f"s_mov_b64 exec, s[{sKM}:{sKM+1}]")
        for t in range(4):
            I(f"ds_write_b128 v{vPQ}, {vr(T+4*t)} offset:{L_PB1 + 256 + t*64}")
        I("s_mov_b64 exec, -1")
        I(f"s_lshl_b32 s{sT2}, s{sX}, 11")
        I(f"s_add_u32 s{sT2}, s{sT2}, {XOFF}")
        if g3: I("s_barrier")
        TS(3)
        if xl:
            light(f"buffer_load_dword v{XA}, v{vXO}, {WS}, s{sT2} offen sc1", XA, (xl, 0))
        poll([f"buffer_load_dwordx4 {vr(XA)}, v{vXO}, {WS}, s{sT2} offen sc1"], list(range(XA, XA + 4)), hop=8)
        TS(4)
        gemv_q()
        TS(5)
        a.label("L_B1")
        I(f"v_mov_b32 v{rINV}, {f2u(1.0/640):#x}")
        qa, qs, QS = q_reduce()
        I("s_barrier")
        I(f"s_cmp_eq_u32 s{sWAVE}, 5")
        I("s_cbranch_scc1 L_B15")
        I("s_waitcnt vmcnt(0)")
        I("s_branch L_B2")
        a.label("L_B15")
        TS(6)
        q_reduce2(qa, qs, QS, first=True)
        TS(7)
        lstore([f"buffer_store_dword v{rU}, v{vQP}, {WS}, s{sREG} offen"], True)
        if zq:
            assert y128
            for i in range(24 if sm else 16):
                I(f"v_mov_b32 v{T+i}, 0")
        q_gather(vQG, qa)
        TS(8)
        I(f"buffer_load_ushort v{vXF}, v{vXFA}, {WS}, 0 offen sc1")
        I("s_waitcnt lgkmcnt(0)")
        if zq: I("s_branch L_B2b")
        a.label("L_B2")
    BT = T
    ST = T + 16
    PS = T + 32
    MI = T + 36
    OA = T + 44
    if q2 >= 2:
        PS, MI, OA = PS2, MI2, OA2
        a.label("L_att")
    elif q2:
        PS = 28
        a.label("L_att")
    else:
        for i in range(24 if sm else 16):
            I(f"v_mov_b32 v{BT+i}, 0")
        if zq: a.label("L_B2b")
        I("s_barrier")
        a.label("L_att")
        TS(9)
        for t in range(4):
            m = 0x000F000F << (4 * t)
            setexec(m, m)
            I(f"ds_read_b128 {vr(BT+4*t)}, v{vQR}")
        setexec(0xFFFFFFFF, 0xFFFFFFFF)
    I("s_waitcnt vmcnt(16) lgkmcnt(0)")
    TS(10)
    vM = MI + 4; vL = MI + 5; vT_ = MI + 6; vPK = MI + 7
    IDX = vSEL + 4
    DPF = "row_mask:0xf bank_mask:0xf"
    if sm:
        if q2 == 2:
            for Tq in range(2):
                for t in range(4):
                    I(f"v_smfmac_f32_16x16x64_bf16 {vr(ST+4*Tq)}, {vr(BT+4*t)}, {vr(vK+8*(Tq+2*t), 8)}, v{IDX}")
                    D = ST
                    if Tq == 1 and t == 1: I(f"v_pk_add_f32 v[{D}:{D+1}], v[{D}:{D+1}], v[{D+2}:{D+3}]")
                    if Tq == 1 and t == 2: I(f"v_mov_b32_dpp v{PS}, v{D} quad_perm:[0,0,2,2] {DPF}")
                    if Tq == 1 and t == 3: I(f"v_add_f32_dpp v{PS}, v{D+1}, v{PS} quad_perm:[1,1,3,3] {DPF}")
            D = ST + 4
            I(f"v_pk_add_f32 v[{D}:{D+1}], v[{D}:{D+1}], v[{D+2}:{D+3}]")
            I(f"v_mov_b32_dpp v{PS+1}, v{D} quad_perm:[0,0,2,2] {DPF}")
            I(f"v_add_f32_dpp v{PS+1}, v{D+1}, v{PS+1} quad_perm:[1,1,3,3] {DPF}")
            ST = T
            BT = T + 40
        elif q2 == 3:
            PM = T + 44
            for i in range(10):
                if i < 8: I(f"v_smfmac_f32_16x16x64_bf16 {vr(T+4+4*i)}, {vr(T)}, {vr(vK+8*i, 8)}, v{IDX}")
                j = i - 2
                if j < 0: continue
                D = T + 4 + 4 * j; P_ = PM + 2 * (j & 1)
                if pk3:
                    if j == 0: I("s_mov_b64 exec, 0xffff")
                    elif j % 2 == 0: I("s_lshl_b64 exec, exec, 16")
                    I(f"v_pk_add_f32 v[{P_}:{P_+1}], v[{D}:{D+1}], v[{D+2}:{D+3}]")
                else:
                    for c in range(2):
                        I(f"v_add_f32_dpp v{P_+c}, v{D+c}, v{D+2+c} quad_perm:[0,1,2,3] row_mask:{1 << (j >> 1):#x} bank_mask:0xf")
                if j == 7 and pk3: I("s_mov_b64 exec, -1")
                if j >= 6:
                    pass
            for Tq in range(2):
                I(f"v_mov_b32_dpp v{PS+Tq}, v{PM+2*Tq} quad_perm:[0,0,2,2] {DPF}")
            for Tq in range(2):
                I(f"v_add_f32_dpp v{PS+Tq}, v{PM+2*Tq+1}, v{PS+Tq} quad_perm:[1,1,3,3] {DPF}")
        elif q2:
            fill = [f"v_mov_b32 v{OA+i}, 0" for i in range(8)] + [f"v_mov_b32 v{MI+2}, {SCALE:#x}", f"v_mov_b32 v{MI+3}, {SCALE:#x}", f"v_mov_b32 v{MI+1}, s{sL2E}"]
            def po(k_, i):
                if not 0 <= i < 8:
                    return fill.pop() if fill and i < 0 else None
                D = T + 4 + 4 * i; rm = f"row_mask:{1 << (i >> 1):#x} bank_mask:0xf"
                return [f"v_pk_add_f32 v[{D}:{D+1}], v[{D}:{D+1}], v[{D+2}:{D+3}]",
                        f"v_mov_b32_dpp v{PS+(i&1)}, v{D} quad_perm:[0,0,2,2] {rm}",
                        f"v_add_f32_dpp v{PS+(i&1)}, v{D+1}, v{PS+(i&1)} quad_perm:[1,1,3,3] {rm}"][k_]
            for i in range(12):
                if i < 8: I(f"v_smfmac_f32_16x16x64_bf16 {vr(T+4+4*i)}, {vr(T)}, {vr(vK+8*i, 8)}, v{IDX}")
                if i == 8:
                    while fill: I(fill.pop())
                for k_, d_ in ((2, 4), (1, 3), (0, 2)):
                    x_ = po(k_, i - d_)
                    if x_: I(x_)
        else:
            for Tq in range(2):
                for t in range(4):
                    I(f"v_smfmac_f32_16x16x64_bf16 {vr(ST+4*Tq)}, {vr(BT+4*t)}, {vr(vK+8*(Tq+2*t), 8)}, v{IDX}")
                    if Tq == 0:
                        I(f"v_mov_b32 v{OA+2*t}, 0")
                        I(f"v_mov_b32 v{OA+2*t+1}, 0")
            I(f"v_mov_b32 v{MI+2}, {SCALE:#x}")
            I(f"v_mov_b32 v{MI+3}, {SCALE:#x}")
            I(f"v_mov_b32 v{MI+1}, s{sL2E}")
            for Tq in range(2):
                D = ST + 4 * Tq
                I(f"v_pk_add_f32 v[{D}:{D+1}], v[{D}:{D+1}], v[{D+2}:{D+3}]")
                I(f"v_mov_b32_dpp v{PS+Tq}, v{D} quad_perm:[0,0,2,2] {DPF}")
                I(f"v_add_f32_dpp v{PS+Tq}, v{D+1}, v{PS+Tq} quad_perm:[1,1,3,3] {DPF}")
        I(f"v_cvt_pk_bf16_f32 v{MI}, v{PS}, v{PS+1}")
        unpack(PS, PS + 1, MI)
        I(f"v_pk_mul_f32 v[{PS}:{PS+1}], v[{PS}:{PS+1}], v[{MI+2}:{MI+3}]")
        I(f"v_cvt_pk_bf16_f32 v{MI}, v{PS}, v{PS+1}")
        unpack(PS, PS + 1, MI)
        I(f"v_max_f32 v{vM}, v{PS}, v{PS+1}")
        if q2 == 2:
            I(f"v_cmp_u_f32 vcc, v{PS}, v{PS+1}")
            I(f"s_and_b64 vcc, vcc, s[{sKM}:{sKM+1}]")
            I("s_cbranch_scc1 L_qslow")
        I(f"v_max_f32_dpp v{vM}, v{vM}, v{vM} quad_perm:[2,3,0,1] {DPF}")
        I(f"v_max_f32_dpp v{vM}, v{vM}, v{vM} row_ror:4 {DPF}")
        I(f"v_max_f32_dpp v{vM}, v{vM}, v{vM} row_ror:8 {DPF}")
        I(f"v_max_f32_dpp v{vM}, v{vM}, v{vM} row_bcast:15 row_mask:0xa bank_mask:0xf")
        I(f"v_max_f32_dpp v{vM}, v{vM}, v{vM} row_bcast:31 row_mask:0xc bank_mask:0xf")
        I(f"v_readlane_b32 s{sM}, v{vM}, 63")
        I(f"v_mul_f32 v{vT_}, s{sM}, v{MI+1}")
        for Tq in range(2):
            I(f"v_fma_f32 v{PS+Tq}, v{PS+Tq}, v{MI+1}, -v{vT_}")
        for Tq in range(2):
            I(f"v_exp_f32 v{PS+Tq}, v{PS+Tq}")
    else:
        for Tt in range(4):
            for t in range(4):
                I(f"v_mfma_f32_16x16x32_bf16 {vr(ST+4*Tt)}, {vr(vK+4*(4*Tt+t))}, {vr(BT+4*t)}, {'0' if t == 0 else vr(ST+4*Tt)}")
        for Tt in range(4):
            I(f"v_mov_b32_dpp v{PS+Tt}, v{ST+4*Tt} quad_perm:[0,0,0,0] row_mask:0xf bank_mask:0xf")
            for c in range(1, 4):
                I(f"v_add_f32_dpp v{PS+Tt}, v{ST+4*Tt+c}, v{PS+Tt} quad_perm:[{c},{c},{c},{c}] row_mask:0xf bank_mask:0xf")
        I(f"v_mov_b32 v{MI+2}, {SCALE:#x}")
        I(f"v_mov_b32 v{MI+3}, {SCALE:#x}")
        I(f"v_cvt_pk_bf16_f32 v{MI}, v{PS}, v{PS+1}")
        I(f"v_cvt_pk_bf16_f32 v{MI+1}, v{PS+2}, v{PS+3}")
        unpack(PS, PS + 1, MI)
        unpack(PS + 2, PS + 3, MI + 1)
        I(f"v_pk_mul_f32 v[{PS}:{PS+1}], v[{PS}:{PS+1}], v[{MI+2}:{MI+3}]")
        I(f"v_pk_mul_f32 v[{PS+2}:{PS+3}], v[{PS+2}:{PS+3}], v[{MI+2}:{MI+3}]")
        I(f"v_cvt_pk_bf16_f32 v{MI}, v{PS}, v{PS+1}")
        I(f"v_cvt_pk_bf16_f32 v{MI+1}, v{PS+2}, v{PS+3}")
        unpack(PS, PS + 1, MI)
        unpack(PS + 2, PS + 3, MI + 1)
        vM = MI + 4; vL = MI + 5; vT_ = MI + 6; vPK = MI + 7
        I(f"v_max3_f32 v{vM}, v{PS}, v{PS+1}, v{PS+2}")
        I(f"v_max_f32 v{vM}, v{vM}, v{PS+3}")
        I(f"v_max_f32_dpp v{vM}, v{vM}, v{vM} row_ror:4 row_mask:0xf bank_mask:0xf")
        I(f"v_max_f32_dpp v{vM}, v{vM}, v{vM} row_ror:8 row_mask:0xf bank_mask:0xf")
        I(f"v_max_f32_dpp v{vM}, v{vM}, v{vM} row_bcast:15 row_mask:0xa bank_mask:0xf")
        I(f"v_max_f32_dpp v{vM}, v{vM}, v{vM} row_bcast:31 row_mask:0xc bank_mask:0xf")
        I(f"v_mov_b32 v{MI}, s{sL2E}")
        I(f"v_readlane_b32 s{sM}, v{vM}, 63")
        I(f"v_mul_f32 v{vT_}, s{sM}, v{MI}")
        for Tt in range(4):
            I(f"v_fma_f32 v{PS+Tt}, v{PS+Tt}, v{MI}, -v{vT_}")
        for Tt in range(4):
            I(f"v_exp_f32 v{PS+Tt}, v{PS+Tt}")
    TS(11)
    I(f"s_cmp_eq_u32 s{sIT}, 0")
    I("s_cbranch_scc0 L_PV")
    I(f"s_cmp_eq_u32 s{sLATE}, 0")
    I("s_cbranch_scc1 L_PVe")
    role_dma()
    TS(25)
    I("s_branch L_PV")
    a.label("L_PVe")
    if esy:
        I(f"s_cmp_eq_u32 s{sWAVE}, 7")
        I("s_cbranch_scc0 L_PVe2")
        srd(TA, 54, 256)
        I(f"v_lshlrev_b32 v{BT+2}, 4, v{vLANE}")
        setexec(0xFF, 0)
        I(f"buffer_load_dwordx2 v[{BT}:{BT+1}], v{BT+2}, {TA}, 0 offen offset:128 {syfl}")
        setexec(0xFFFFFFFF, 0xFFFFFFFF)
        I("s_waitcnt vmcnt(1)")
        I("s_branch L_PV")
        a.label("L_PVe2")
    I(f"s_waitcnt vmcnt({1 if pst == 1 or (pst >= 4 and (pst != 6 or pi)) else 0})")
    a.label("L_PV")
    if sm:
        I(f"v_cvt_pk_bf16_f32 v{vPK}, v{PS}, v{PS+1}")
        I(f"v_add_f32 v{vL}, v{PS}, v{PS+1}")
        I(f"v_mov_b32_dpp v{vT_}, v{vPK} row_half_mirror {DPF}")
        lred = [f"v_add_f32_dpp v{vL}, v{vL}, v{vL} quad_perm:[2,3,0,1] {DPF}",
                f"v_add_f32_dpp v{vL}, v{vL}, v{vL} row_ror:4 {DPF}",
                f"v_add_f32_dpp v{vL}, v{vL}, v{vL} row_ror:8 {DPF}",
                f"v_add_f32_dpp v{vL}, v{vL}, v{vL} row_bcast:15 row_mask:0xa bank_mask:0xf",
                f"v_add_f32_dpp v{vL}, v{vL}, v{vL} row_bcast:31 row_mask:0xc bank_mask:0xf",
                f"ds_write_b64 v{vMLW}, v[{vM}:{vL}]"]
        def mkA(Tt):
            x_, y_ = Tt >> 1, Tt & 1
            for w in sorted(range(4), key=lambda w: (w & 1) != x_):
                src, p_ = (vPK, 2 * y_) if (w & 1) == x_ else (vT_, 3 - 2 * y_)
                I(f"v_and_b32_dpp v{ST+4*Tt+w}, v{src}, v{vSEL+w} quad_perm:[{p_},{p_},{p_},{p_}] {DPF}")
        mkA(0)
        for Tt in range(4):
            for hf in range(2):
                j1 = Tt * 4 + hf * 2 + 1
                if hf == 0 and Tt < 3: mkA(Tt + 1) if Tt == 0 else None
                I(f"s_waitcnt vmcnt({15 - j1 + 8})")
                I(f"v_smfmac_f32_16x16x64_bf16 {vr(OA+4*hf)}, {vr(ST+4*Tt)}, {vr(vV+4*(j1-1), 8)}, v{IDX} abid:1")
                if hf == 0 and Tt < 2: mkA(Tt + 2)
                elif lred:
                    I(lred.pop(0))
                    if Tt >= 2 and lred: I("s_nop 0"); I(lred.pop(0))
        for x_ in lred: I(x_)
    else:
        for Tt in range(4):
            AB = ST + 8 * (Tt & 1)
            I(f"v_mov_b32_dpp v{vT_}, v{PS+Tt} row_half_mirror row_mask:0xf bank_mask:0xf")
            I(f"v_cvt_pk_bf16_f32 v{vPK}, v{PS+Tt}, v{vT_}")
            for u in range(2):
                for r in range(4):
                    I(f"v_perm_b32 v{AB+4*u+r}, v{vPK}, v{vPK}, v{vSEL+4*u+r}")
            if Tt == 1:
                I(f"v_add_f32 v{vL}, v{PS}, v{PS+1}")
                I(f"v_add_f32 v{MI+1}, v{PS+2}, v{PS+3}")
                I(f"v_add_f32 v{vL}, v{vL}, v{MI+1}")
                I(f"v_add_f32_dpp v{vL}, v{vL}, v{vL} row_ror:4 row_mask:0xf bank_mask:0xf")
                I(f"v_add_f32_dpp v{vL}, v{vL}, v{vL} row_ror:8 row_mask:0xf bank_mask:0xf")
                I(f"v_add_f32_dpp v{vL}, v{vL}, v{vL} row_bcast:15 row_mask:0xa bank_mask:0xf")
                I(f"v_add_f32_dpp v{vL}, v{vL}, v{vL} row_bcast:31 row_mask:0xc bank_mask:0xf")
                I(f"ds_write_b64 v{vMLW}, v[{vM}:{vL}]")
            for u in range(2):
                i1 = Tt * 4 + u * 2 + 1
                I(f"s_waitcnt vmcnt({15 - i1 + 8})")
                for hf in range(2):
                    i = Tt * 4 + u * 2 + hf
                    first = (Tt == 0 and u == 0)
                    I(f"v_mfma_f32_16x16x32_bf16 {vr(OA+4*hf)}, {vr(AB+4*u)}, {vr(vV+4*i)}, {'0' if first else vr(OA+4*hf)}")
    TS(12)
    setexec(0x00FF00FF, 0xFF00FF00)
    I(f"ds_write_b128 v{vOW}, {vr(OA)}")
    I(f"ds_write_b128 v{vOW}, {vr(OA+4)} offset:256")
    setexec(0xFFFFFFFF, 0xFFFFFFFF)
    I(f"s_cmp_eq_u32 s{sIT}, 0")
    I("s_cbranch_scc0 L_B3")
    sp(0)
    I(f"s_cmp_eq_u32 s{sLATE}, 0")
    I("s_cbranch_scc0 L_B3")
    I(f"s_cmp_eq_u32 s{sWAVE}, 7")
    I("s_cbranch_scc0 L_erd")
    sp(3)
    srd(TA, 54, 256)
    if q2 == 2: I(f"v_lshlrev_b32 v{BT+2}, 4, v{vLANE}")
    setexec(0xFF, 0)
    if not esy:
        I(f"v_lshlrev_b32 v{BT+2}, 4, v{vLANE}")
        I(f"buffer_load_dwordx2 v[{BT}:{BT+1}], v{BT+2}, {TA}, 0 offen offset:128 {syfl}")
    a.label("L_sync")
    I(f"s_add_u32 s{sSPIN}, s{sSPIN}, 4")
    I("s_waitcnt vmcnt(0)")
    I(f"v_and_b32 v{BT+3}, {1 << 21:#x}, v{BT+1}")
    I(f"v_cmp_eq_u32 vcc, 0, v{BT+3}")
    I("s_cbranch_vccz L_syncd")
    I(f"buffer_load_dwordx2 v[{BT}:{BT+1}], v{BT+2}, {TA}, 0 offen offset:128 sc1")
    I(f"s_cmp_lt_u32 s{sSPIN}, {spin_limit}")
    I("s_cbranch_scc1 L_sync")
    I("s_waitcnt vmcnt(0)")
    a.label("L_syncd")
    I(f"v_lshrrev_b32 v{BT+3}, 24, v{BT+1}")
    I(f"v_readlane_b32 s64, v{BT}, s{sX}")
    I(f"v_readlane_b32 s65, v{BT+1}, s{sX}")
    for m_ in ("quad_perm:[1,0,3,2]", "quad_perm:[2,3,0,1]", "row_half_mirror"):
        I(f"v_add_u32_dpp v{BT+3}, v{BT+3}, v{BT+3} {m_} row_mask:0xf bank_mask:0xf")
    I(f"s_mul_i32 s{sT0}, s{sXCC}, 6")
    I(f"s_lshr_b64 s[64:65], s[64:65], s{sT0}")
    I(f"s_and_b32 s64, s64, 63")
    I(f"s_cmp_eq_u32 s64, 32")
    I(f"s_cselect_b32 s{sT1}, 1, 0")
    I(f"s_cmp_lt_u32 s{sXCC}, 8")
    I(f"s_cselect_b32 s{sT1}, s{sT1}, 0")
    I(f"v_readfirstlane_b32 s{sT0}, v{BT+3}")
    setexec(0xFFFFFFFF, 0xFFFFFFFF)
    I(f"s_cmp_gt_u32 s{sT0}, {4 * ncal}")
    I(f"s_cselect_b32 s{sT0}, 1, 0")
    I(f"s_lshr_b32 s{sT2}, s{sXCC}, 2")
    I(f"s_xor_b32 s{sT0}, s{sT0}, s{sT2}")
    I(f"s_and_b32 s{sT0}, s{sT0}, {1 if dual else 0}")
    I(f"s_lshl_b32 s{sT0}, s{sT0}, 13")
    I(f"s_or_b32 s{sT0}, s{sT0}, s{sT1}")
    I(f"v_mov_b32 v{BT}, s{sT0}")
    I(f"v_mov_b32 v{BT+1}, {L_FLAG}")
    I(f"ds_write_b32 v{BT+1}, v{BT}")
    TS(35)
    sp(0)
    if pf:
        assert tw == 7 and dyn and not emd
        setexec(1, 0)
        I(f"ds_write_b32 v{BT+1}, v{vTK} offset:4")
        setexec(0xFFFFFFFF, 0xFFFFFFFF)
    a.label("L_erd")
    I(f"s_cmp_eq_u32 s{sROLE}, 0")
    if dyn and not pf:
        I("s_cbranch_scc1 L_erd2")
        I(f"s_cmp_eq_u32 s{sWAVE}, {tw}")
        I("s_cbranch_scc0 L_erd1" if emd else "s_cbranch_scc0 L_B3")
        I(f"v_mov_b32 v{BT+1}, {L_FLAG}")
        if emd: I(f"v_add_u32 v{vRDMA}, 1, v{vRDMA}")
        setexec(1, 0)
        I(f"ds_write_b32 v{BT+1}, v{vRDMA} offset:4")
        setexec(0xFFFFFFFF, 0xFFFFFFFF)
        if emd:
            a.label("L_erd1")
            if emd == 2:
                I(f"v_mov_b32 v{BT+1}, {L_FLAG}")
                I(f"v_mov_b32 v{BT}, 1")
                setexec(1, 0)
                I("s_waitcnt lgkmcnt(0)")
                I(f"ds_add_u32 v{BT+1}, v{BT} offset:12")
                setexec(0xFFFFFFFF, 0xFFFFFFFF)
                I(f"s_cmp_eq_u32 s{sWAVE}, 7")
                I("s_cbranch_scc0 L_erd3")
                lds_wait(12, 12, ge=True)
                TS(13)
                I(f"ds_read_b64 v[{T+38}:{T+39}], v{T+47}")
                I("s_branch L_comb")
                a.label("L_erd3")
            I(f"s_cmp_lt_u32 s{sWAVE}, {emw}")
            I("s_cbranch_scc0 L_B3")
            e0, e1, e2, e3 = BT, BT + 1, BT + 2, BT + 3
            npc = 40 // emw
            I(f"v_lshrrev_b32 v{e0}, 2, v{vLANE}")
            I(f"v_mul_u32_u24 v{e0}, 3456, v{e0}")
            I(f"v_and_b32 v{e1}, 3, v{vLANE}")
            I(f"v_lshl_add_u32 v{BT+4}, v{e1}, 4, v{e0}")
            I(f"v_lshrrev_b32 v{e0}, 3, v{vLANE}")
            I(f"v_mul_u32_u24 v{e2}, 1280, v{e0}")
            I(f"v_and_b32 v{e1}, 7, v{vLANE}")
            I(f"v_lshlrev_b32 v{e1}, 4, v{e1}")
            I(f"v_bfe_u32 v{e0}, v{vLANE}, 4, 1")
            I(f"v_lshlrev_b32 v{e0}, 5, v{e0}")
            I(f"v_xor_b32 v{e1}, v{e1}, v{e0}")
            I(f"v_xor_b32 v{e0}, 64, v{e1}")
            I(f"v_add_u32 v{e3}, v{e2}, v{e0}")
            I(f"v_add_u32 v{e2}, v{e2}, v{e1}")
            lds_wait(4, 1, ge=True)
            I(f"s_sub_u32 s{sTB}, s{sT3}, 1")
            I(f"s_mul_hi_u32 s{sT0}, s{sTB}, 0x2aaaaab")
            I(f"s_mul_i32 s{sT0}, s{sT0}, 96")
            I(f"s_sub_u32 s{sTB}, s{sTB}, s{sT0}")
            I(f"s_cmp_lt_u32 s{sTB}, 54")
            I("s_cbranch_scc0 L_B3")
            if g8: lds_wait(8, g8, ge=True)
            srd(TB, 44, 640 * 3456)
            I(f"s_mul_i32 s{sT1}, s{sWAVE}, {npc*16*3456}")
            I(f"s_lshl_b32 s{sT0}, s{sTB}, 6")
            I(f"s_add_u32 s{sT0}, s{sT0}, s{sT1}")
            I(f"s_mul_i32 s{sT1}, s{sWAVE}, {npc*1024}")
            for e in range(npc):
                I(f"s_add_u32 m0, s{sT1}, {L_ROLE + e*1024}")
                I(f"buffer_load_dwordx4 v{BT+4}, {TB}, s{sT0} offen {rflags} lds")
                if e < npc - 1: I(f"s_add_u32 s{sT0}, s{sT0}, {16*3456}")
            srd(TA, 48, 1728 * 1280)
            I(f"s_mul_i32 s{sT3}, s{sTB}, {32*1280}")
            I(f"s_mul_i32 s{sT0}, s{sWAVE}, {npc}")
            assert npc % 2 == 0
            for e in range(npc):
                I(f"s_lshl_b32 s{sT1}, s{sT0}, 10")
                I(f"s_add_u32 m0, s{sT1}, {L_W2}")
                I(f"s_and_b32 s{sT1}, s{sT0}, 3")
                I(f"s_mul_i32 s{sT1}, s{sT1}, {8*1280}")
                I(f"s_lshr_b32 s{sT2}, s{sT0}, 2")
                I(f"s_lshl_b32 s{sT2}, s{sT2}, 7")
                I(f"s_add_u32 s{sT1}, s{sT1}, s{sT2}")
                I(f"s_add_u32 s{sT1}, s{sT1}, s{sT3}")
                I(f"buffer_load_dwordx4 v{(e2, e3)[e & 1]}, {TA}, s{sT1} offen {rflags} lds")
                if e < npc - 1: I(f"s_add_u32 s{sT0}, s{sT0}, 1")
            TS(25)
        I("s_branch L_B3")
        a.label("L_erd2")
    elif ew:
        I("s_cbranch_scc1 L_erd2")
        if the:
            I(f"v_cmp_ne_u32 vcc, -1, v{T+50}")
            I(f"s_bcnt1_i32_b64 s{sT0}, vcc")
            I(f"s_cmp_ge_u32 s{sT0}, {the}")
            I("s_cbranch_scc0 L_B3")
            I("s_mov_b32 s97, 1")
        I("s_waitcnt lgkmcnt(0)")
        I(f"s_cmp_eq_u32 s{sROLE}, 3")
        I("s_cbranch_scc1 L_erd3" if ew & 2 else "s_cbranch_scc1 L_B3")
        if eg: lds_wait(8, eg, ge=True)
        w2_early()
        I("s_branch L_B3")
        if ew & 2:
            a.label("L_erd3")
            if eg: lds_wait(8, eg, ge=True)
            pf_static("L_ps4", True, 3)
            I("s_branch L_B3")
        a.label("L_erd2")
    else:
        I("s_cbranch_scc0 L_B3")
    if gate:
        lds_wait(8, gate, ge=True)
    role_dma()
    TS(25)
    a.label("L_B3")
    I("s_waitcnt lgkmcnt(0)")
    I(f"v_mov_b32 v{T+38}, {L_FLAG}")
    I("s_barrier")
    TS(13)
    I(f"ds_read_b64 v[{T+38}:{T+39}], v{T+38}")
    I(f"s_cmp_eq_u32 s{sWAVE}, 7")
    I("s_cbranch_scc1 L_comb")
    I("s_waitcnt lgkmcnt(0)")
    I(f"v_readfirstlane_b32 s{sT0}, v{T+38}")
    I(f"s_and_b32 s{sPURE}, s{sT0}, 1")
    I(f"s_and_b32 s{sNEAR}, s{sT0}, {CP}")
    if pst == 2:
        I(f"s_cmp_eq_u32 s{sIT}, 0")
        I("s_cbranch_scc0 L_role")
        pf_static("L_ps", False)
    if pf:
        I(f"s_cmp_eq_u32 s{sIT}, 0")
        I("s_cbranch_scc0 L_role")
        I(f"s_cmp_lt_u32 s{sWAVE}, {2*pf}")
        I("s_cbranch_scc0 L_role")
        I(f"v_readfirstlane_b32 s{sT0}, v{T+39}")
        I(f"s_and_b32 s{sT0}, s{sT0}, 0xff")
        I(f"s_sub_u32 s{sT0}, s{sT0}, {h0}")
        I(f"s_cmp_lt_u32 s{sT0}, {(40 + pf - 1) // pf}")
        I("s_cbranch_scc0 L_role")
        I(f"s_mul_i32 s{sT0}, s{sT0}, {pf}")
        I(f"s_add_u32 s{sT0}, s{sT0}, s{sWAVE}")
        I(f"s_mul_i32 s{sT1}, s{sX}, 7")
        I(f"s_min_u32 s{sT1}, s{sT1}, 48")
        I(f"s_cmp_lt_u32 s{sWAVE}, {pf}")
        I("s_cbranch_scc0 L_pf2")
        srd(TA, 44, 640 * 3456)
        I(f"v_lshrrev_b32 v{T+50}, 2, v{vLANE}")
        I(f"v_mul_u32_u24 v{T+50}, 3456, v{T+50}")
        I(f"v_and_b32 v{T+51}, 3, v{vLANE}")
        I(f"v_lshl_add_u32 v{T+50}, v{T+51}, 7, v{T+50}")
        I(f"s_mul_i32 s{sT0}, s{sT0}, {16*3456}")
        I(f"s_lshr_b32 s{sT1}, s{sT1}, 1")
        I(f"s_lshl_b32 s{sT1}, s{sT1}, 7")
        I(f"s_add_u32 s{sT0}, s{sT0}, s{sT1}")
        I(f"v_add_u32 v{T+50}, s{sT0}, v{T+50}")
        I(f"buffer_load_dword v{T+51}, v{T+50}, {TA}, 0 offen")
        I("s_branch L_role")
        a.label("L_pf2")
        I(f"s_sub_u32 s{sT0}, s{sT0}, {pf}")
        I(f"s_cmp_lt_u32 s{sX}, 6")
        I(f"s_cselect_b32 s{sT2}, 35, 30")
        I(f"s_cmp_lt_u32 s{sT0}, s{sT2}")
        I("s_cbranch_scc0 L_role")
        if pfr:
            I(f"s_sub_u32 s{sT0}, s{sT2}, s{sT0}")
            I(f"s_sub_u32 s{sT0}, s{sT0}, 1")
        srd(TA, 48, 1728 * 1280)
        I(f"s_mul_i32 s{sT1}, s{sT1}, {32*1280}")
        I(f"s_lshl_b32 s{sT0}, s{sT0}, 13")
        I(f"s_add_u32 s{sT0}, s{sT0}, s{sT1}")
        I(f"v_lshlrev_b32 v{T+50}, 7, v{vLANE}")
        I(f"buffer_load_dword v{T+51}, v{T+50}, {TA}, s{sT0} offen")
    I("s_branch L_role")
    a.label("L_comb")
    if p5 & 8: I("s_setprio 3")
    cM, cL, cMX, cF, cT = T + 32, T + 33, T + 34, T + 36, T + 37
    cLS = T + 35
    I(f"ds_read_b64 v[{cM}:{cL}], v{vCML}")
    for w in range(8):
        I(f"ds_read2st64_b64 {vr(T+4*w)}, v{vCR} offset0:{2*w} offset1:{2*w+1}")
    I(f"v_mov_b32 v{cT}, s{sL2E}")
    I("s_waitcnt lgkmcnt(8)")
    I(f"v_readfirstlane_b32 s{sT0}, v{T+38}")
    I(f"v_max_f32_dpp v{cMX}, v{cM}, v{cM} quad_perm:[1,0,3,2] row_mask:0xf bank_mask:0xf")
    I(f"v_max_f32_dpp v{cMX}, v{cMX}, v{cMX} quad_perm:[2,3,0,1] row_mask:0xf bank_mask:0xf")
    I(f"v_max_f32_dpp v{cMX}, v{cMX}, v{cMX} row_half_mirror row_mask:0xf bank_mask:0xf")
    I(f"v_sub_f32 v{cF}, v{cM}, v{cMX}")
    I(f"v_mul_f32 v{cF}, v{cF}, v{cT}")
    I(f"v_exp_f32 v{cF}, v{cF}")
    I(f"s_and_b32 s{sPURE}, s{sT0}, 1")
    I(f"s_and_b32 s{sNEAR}, s{sT0}, {CP}")
    I("s_waitcnt lgkmcnt(0)")
    for w in range(8):
        I(f"v_readlane_b32 s{sF+w}, v{cF}, {w}")
    for w in range(8):
        I(f"v_pk_add_f32 v[{T+4*w}:{T+4*w+1}], v[{T+4*w}:{T+4*w+1}], v[{T+4*w+2}:{T+4*w+3}]")
    for w in range(8):
        sp = f"s[{sF+(w&~1)}:{sF+(w&~1)+1}]"
        o = w & 1
        acc = T + 40 + 2 * (w & 1)
        if w < 2:
            I(f"v_pk_mul_f32 v[{acc}:{acc+1}], v[{T+4*w}:{T+4*w+1}], {sp} op_sel:[0,{o}] op_sel_hi:[1,{o}]")
        else:
            I(f"v_pk_fma_f32 v[{acc}:{acc+1}], v[{T+4*w}:{T+4*w+1}], {sp}, v[{acc}:{acc+1}] op_sel:[0,{o},0] op_sel_hi:[1,{o},1]")
    I(f"v_mul_f32 v{cLS}, v{cF}, v{cL}")
    I(f"v_pk_add_f32 v[{T+40}:{T+41}], v[{T+40}:{T+41}], v[{T+42}:{T+43}]")
    I(f"v_add_f32_dpp v{cLS}, v{cLS}, v{cLS} quad_perm:[1,0,3,2] row_mask:0xf bank_mask:0xf")
    I(f"v_cvt_pk_bf16_f32 v{T+40}, v{T+40}, v{T+41}")
    I(f"v_min_u32 v{T+40}, 0xfffffffe, v{T+40}")
    I(f"v_add_f32_dpp v{cLS}, v{cLS}, v{cLS} quad_perm:[2,3,0,1] row_mask:0xf bank_mask:0xf")
    I(f"v_min_u32 v{cMX}, 0xfffffffe, v{cMX}")
    lstore([f"buffer_store_dword v{T+40}, v{vCP}, {WS}, s{sREG} offen"], True)
    I(f"v_add_f32_dpp v{cLS}, v{cLS}, v{cLS} row_half_mirror row_mask:0xf bank_mask:0xf")
    I(f"v_min_u32 v{cLS}, 0xfffffffe, v{cLS}")
    setexec(1, 0)
    lstore([f"buffer_store_dwordx2 v[{cMX}:{cLS}], v{vCPM}, {WS}, s{sREG} offen"], True)
    setexec(0xFFFFFFFF, 0xFFFFFFFF)
    TS(14)
    if p5 & 8: I("s_setprio 0")
    if emd == 2:
        I(f"s_cmp_eq_u32 s{sROLE}, 0")
        I("s_cbranch_scc1 L_WO")
        I(f"s_cmp_eq_u32 s{sIT}, 0")
        I("s_cbranch_scc0 L_role")
        I("s_barrier")

    a.label("L_role")
    m0_, m1_, m2_, m3_ = T, T + 1, T + 2, T + 3
    def ml_gate(thr):
        lab = a.newlab("Lg"); done = a.newlab("Lgd")
        I(f"v_lshrrev_b32 v{m0_}, 3, v{vLANE}")
        I(f"v_lshlrev_b32 v{m0_}, 7, v{m0_}")
        I(f"v_and_b32 v{m1_}, 7, v{vLANE}")
        I(f"v_lshl_add_u32 v{m0_}, v{m1_}, 3, v{m0_}")
        I(f"s_lshl_b32 s{sT1}, s{sXW}, 9")
        I(f"s_add_u32 s{sT1}, s{sT1}, {MLOFF}")
        I(f"s_add_u32 s{sT1}, s{sT1}, s{sREG}")
        setexec(0xFFFFFFFF, 0)
        a.label(lab)
        I(f"buffer_load_dword v{m1_}, v{m0_}, {WS}, s{sT1} offen sc1")
        I(f"s_add_u32 s{sSPIN}, s{sSPIN}, 1")
        I("s_waitcnt vmcnt(0)")
        I(f"v_cmp_ne_u32 vcc, -1, v{m1_}")
        I(f"s_bcnt1_i32_b64 s{sT0}, vcc")
        I(f"s_cmp_ge_u32 s{sT0}, {thr}")
        I(f"s_cbranch_scc1 {done}")
        I(f"s_cmp_lt_u32 s{sSPIN}, {spin_limit}")
        I(f"s_cbranch_scc1 {lab}")
        a.label(done)
        setexec(0xFFFFFFFF, 0xFFFFFFFF)
    I(f"s_cmp_eq_u32 s{sROLE}, 0")
    I("s_cbranch_scc1 L_WO")
    if pf:
        I(f"v_readfirstlane_b32 s{sTB}, v{T+39}")
        I(f"s_bfe_u32 s{sTB}, s{sTB}, 0x80008")
        I(f"s_cmp_lt_u32 s{sX}, 6")
        I(f"s_cselect_b32 s{sT0}, 7, 6")
        I(f"s_cmp_lt_u32 s{sTB}, s{sT0}")
        I("s_cbranch_scc0 L_next")
        I(f"s_mul_i32 s{sT1}, s{sX}, 7")
        I(f"s_min_u32 s{sT1}, s{sT1}, 48")
        I(f"s_add_u32 s{sTB}, s{sTB}, s{sT1}")
    elif dyn:
        I(f"v_readfirstlane_b32 s{sTB}, v{T+39}")
        if emd: I(f"s_sub_u32 s{sTB}, s{sTB}, 1")
        I(f"s_mul_hi_u32 s{sT0}, s{sTB}, 0x2aaaaab")
        I(f"s_mul_i32 s{sT0}, s{sT0}, 96")
        I(f"s_sub_u32 s{sTB}, s{sTB}, s{sT0}")
        I(f"s_cmp_lt_u32 s{sTB}, 54")
        I("s_cbranch_scc0 L_next")
    else:
        if pst == 3:
            I(f"s_cmp_eq_u32 s{sIT}, 0")
            I("s_cbranch_scc0 L_ps")
            I("s_barrier")
            pf_static("L_ps", False)
        I(f"s_cmp_eq_u32 s{sROLE}, 3")
        if pst >= 5 and (the or not ew & 2):
            I("s_cbranch_scc0 L_ps3")
            I(f"s_cmp_eq_u32 s{sIT}, 0")
            I("s_cbranch_scc0 L_next")
            if th1:
                I(f"s_cmp_eq_u32 s{sWAVE}, 6")
                I("s_cbranch_scc0 L_g1i")
                ml_gate(th1)
                a.label("L_g1i")
            I("s_barrier")
            if the and ew & 2:
                I("s_cmp_eq_u32 s97, 1")
                I("s_cbranch_scc1 L_next")
            pf_static("L_ps2", True, 2 if pst == 5 else 3)
            I("s_branch L_next")
            a.label("L_ps3")
        else:
            I("s_cbranch_scc1 L_next")
    I(f"s_cmp_eq_u32 s{sIT}, 0")
    I("s_cbranch_scc0 L_W1")
    if m2:
        assert y128 and sm and not emd and not th2
        vGZ = vRDMA
        F0, F1, F2 = 28, 36, 68
        L_CS = L_CS1
        sLB, sF2o, sF2x = sRN, sRSTEP, sYM
        if th1:
            I(f"s_cmp_eq_u32 s{sWAVE}, 6")
            I("s_cbranch_scc0 L_g1")
            ml_gate(th1)
            a.label("L_g1")
        if dd:
            I("s_mov_b32 s97, 0")
            a.label("L_dd")
        if pst != 3 or th1: I("s_barrier")
        TS(36)
        srd(TB, 44, 640 * 3456)
        I(f"s_lshl_b32 s{sT1}, s{sWAVE}, 1")
        I(f"s_add_u32 s{sT0}, s{sWAVE}, 2")
        I(f"s_cmp_lt_u32 s{sWAVE}, 4")
        I(f"s_cselect_b32 s{sT3}, s{sT1}, s{sT0}")
        I(f"s_cselect_b32 s{sRN}, 8, 4")
        I(f"s_mul_i32 s{sT1}, s{sT3}, {64*3456}")
        I(f"s_lshl_b32 s{sT0}, s{sTB}, 6")
        I(f"s_add_u32 s{sRB}, s{sT0}, s{sT1}")
        I(f"s_mov_b32 s{sRSTEP}, {16*3456}")
        I(f"s_lshl_b32 s{sYM}, s{sT3}, 12")
        I(f"s_add_u32 s{sYM}, s{sYM}, {L_ROLE}")
        I(f"v_lshrrev_b32 v{m0_}, 2, v{vLANE}")
        I(f"v_mul_u32_u24 v{m0_}, 3456, v{m0_}")
        I(f"v_and_b32 v{m1_}, 3, v{vLANE}")
        I(f"v_lshl_add_u32 v{vRDMA}, v{m1_}, 4, v{m0_}")
        def w1_dma():
            I(f"s_cmp_lt_u32 s{sWAVE}, 4")
            I("s_cbranch_scc0 L_m47")
            role_dma(sYM)
            I("s_branch L_mdd")
            a.label("L_m47")
            I(f"s_cmp_lt_u32 s{sWAVE}, 6")
            I("s_cbranch_scc1 L_m45")
            role_dma(sYM, 4)
            if wd: I("s_branch L_mdd")
            a.label("L_m45")
        if not wd: w1_dma()
        if wd:
            I(f"s_mul_i32 s{sT0}, s{sWAVE}, 5")
        else:
            I(f"s_mul_i32 s{sT0}, s{sWAVE}, 14")
            I(f"s_sub_u32 s{sT0}, s{sT0}, 56")
            I(f"s_min_u32 s{sT0}, s{sT0}, 34")
        I(f"s_mul_i32 s{sYM+1}, s{sTB}, {32*1280}")
        I(f"v_lshrrev_b32 v{m0_}, 3, v{vLANE}")
        I(f"v_mul_u32_u24 v{m2_}, 1280, v{m0_}")
        I(f"v_and_b32 v{m1_}, 7, v{vLANE}")
        I(f"v_lshlrev_b32 v{m1_}, 4, v{m1_}")
        I(f"v_bfe_u32 v{m0_}, v{vLANE}, 4, 1")
        I(f"v_lshlrev_b32 v{m0_}, 5, v{m0_}")
        I(f"v_xor_b32 v{m1_}, v{m1_}, v{m0_}")
        if wd:
            I(f"s_and_b32 s{sT1}, s{sT0}, 1")
            I(f"s_lshl_b32 s{sT1}, s{sT1}, 6")
            I(f"v_xor_b32 v{m1_}, s{sT1}, v{m1_}")
        I(f"v_xor_b32 v{m0_}, 64, v{m1_}")
        I(f"v_add_u32 v{m3_}, v{m2_}, v{m0_}")
        I(f"v_add_u32 v{m2_}, v{m2_}, v{m1_}")
        srd(TA, 48, 1728 * 1280)
        if the:
            I("s_cmp_eq_u32 s97, 1")
            I("s_cbranch_scc1 L_w2s")
        for e in range(0 if ew and not the else 5 if wd else 14):
            if e == 6:
                I(f"s_cmp_lt_u32 s{sWAVE}, 6")
                I("s_cbranch_scc0 L_mdd")
            I(f"s_lshl_b32 s{sT1}, s{sT0}, 10")
            I(f"s_add_u32 m0, s{sT1}, {L_W2}")
            I(f"s_and_b32 s{sT1}, s{sT0}, 3")
            I(f"s_mul_i32 s{sT1}, s{sT1}, {8*1280}")
            I(f"s_lshr_b32 s{sT2}, s{sT0}, 2")
            I(f"s_lshl_b32 s{sT2}, s{sT2}, 7")
            I(f"s_add_u32 s{sT1}, s{sT1}, s{sT2}")
            I(f"s_add_u32 s{sT1}, s{sT1}, s{sYM+1}")
            I(f"buffer_load_dwordx4 v{(m2_, m3_)[e & 1]}, {TA}, s{sT1} offen {rflags} lds")
            if e < 13: I(f"s_add_u32 s{sT0}, s{sT0}, 1")
        if the: a.label("L_w2s")
        if wd and wb: I("s_barrier")
        if wd: w1_dma()
        I(f"s_cmp_eq_u32 s{sWAVE}, 5")
        I("s_cbranch_scc0 L_mdd")
        srd(TA, 46, 1728 * 2)
        I(f"s_lshl_b32 s{sT0}, s{sTB}, 6")
        I(f"v_and_b32 v{T+4}, 31, v{vLANE}")
        I(f"v_lshlrev_b32 v{T+4}, 1, v{T+4}")
        I(f"v_mov_b32 v{vB1}, 0")
        I(f"buffer_load_short_d16_hi v{vB1}, v{T+4}, {TA}, s{sT0} offen")
        a.label("L_mdd")
        if dd:
            I("s_cmp_eq_u32 s97, 0")
            I("s_mov_b32 s97, 1")
            I("s_cbranch_scc0 L_dd2")
            I("s_waitcnt vmcnt(0)")
            I("s_branch L_dd")
            a.label("L_dd2")
        TS(25)
        u0, u1, u2 = T + 5, T + 6, T + 7
        I(f"s_mov_b32 s{sLB}, s{sYM}")
        I(f"s_lshl_b32 s{sT1}, s{sT3}, 1")
        rank_off(sT0, sT1, sT2)
        I(f"v_and_b32 v{u0}, 15, v{vLANE}")
        I(f"v_lshlrev_b32 v{u1}, 6, v{u0}")
        I(f"v_lshrrev_b32 v{u2}, 4, v{vLANE}")
        I(f"v_lshl_add_u32 v{u1}, v{u2}, 4, v{u1}")
        I(f"v_add_u32 v{vGZ}, s{sT0}, v{u1}")
        I(f"s_lshl_b32 s{sT0}, s{sTB}, 7")
        I(f"s_add_u32 s{sT0}, s{sT0}, {YOFF}")
        I(f"s_lshl_b32 s{sT1}, s{sWAVE}, 14")
        I(f"s_add_u32 s{sT1}, s{sT1}, s{sT0}")
        I(f"v_lshlrev_b32 v{vA2}, 2, v{vLANE}")
        I(f"v_add_u32 v{vA2}, s{sT1}, v{vA2}")
        I(f"s_lshr_b32 s{sT1}, s{sWAVE}, 1")
        I(f"s_add_u32 s{sT1}, s{sT1}, 6")
        I(f"s_sub_u32 s{sF2o}, s{sT1}, s{sWAVE}")
        I(f"s_lshl_b32 s{sF2o}, s{sF2o}, 12")
        I(f"s_lshl_b32 s{sT1}, s{sT1}, 14")
        I(f"s_add_u32 s{sT0}, s{sT0}, s{sT1}")
        I(f"s_and_b32 s{sF2x}, s{sWAVE}, 1")
        I(f"s_lshl_b32 s{sF2x}, s{sF2x}, 6")
        I(f"s_add_u32 s{sT0}, s{sT0}, s{sF2x}")
        I(f"s_cmp_lt_u32 s{sWAVE}, 4")
        I(f"s_cselect_b32 s{sT0}, {BIG:#x}, s{sT0}")
        setexec(0, 0xFFFF)
        I(f"v_lshl_add_u32 v{vA2}, v{u0}, 2, s{sT0}")
        setexec(0, 0xFFFF0000)
        I(f"v_mov_b32 v{vA2}, {BIG:#x}")
        setexec(0xFFFFFFFF, 0xFFFFFFFF)
        I(f"s_lshl_b32 s{sT0}, s{sWAVE}, 12")
        I(f"s_add_u32 s{sT0}, s{sT0}, {L_W2}")
        tr_addr(vA3, 128, sT0, u1)
        I(f"v_bfe_u32 v{u1}, v{vLANE}, 3, 1")
        I(f"v_bfe_u32 v{u2}, v{vLANE}, 4, 1")
        I(f"v_lshl_add_u32 v{u2}, v{u2}, 1, v{u1}")
        I(f"v_lshl_add_u32 v{vA3}, v{u2}, 5, v{vA3}")
        I(f"v_mul_u32_u24 v{u1}, 0xaaaa, v{u1}")
        I(f"v_or_b32 v{vSEL+5}, 0x4444, v{u1}")
        I(f"v_bfe_u32 v{u1}, v{vLANE}, 4, 1")
        I(f"v_and_b32 v{u2}, 2, v{vLANE}")
        I(f"v_lshlrev_b32 v{u2}, 3, v{u2}")
        I(f"v_lshl_add_u32 v{vA1}, v{u1}, 5, v{u2}")
        I(f"s_mul_i32 s{sT0}, s{sWAVE}, {PP}")
        I(f"v_lshrrev_b32 v{u2}, 5, v{vLANE}")
        I(f"v_lshlrev_b32 v{u2}, 7, v{u2}")
        I(f"v_lshl_add_u32 v{u2}, v{u0}, 3, v{u2}")
        I(f"v_lshl_add_u32 v{u2}, v{u1}, 2, v{u2}")
        I(f"v_add_u32 v{vPW}, s{sT0}, v{u2}")
        I("s_branch L_W1")

    if not m2:
        if instr: I(f"s_mov_b32 s{sNT}, s{sTB}")
        srd(TB, 44, 640 * 3456)
        I(f"s_mul_i32 s{sT1}, s{sWAVE}, {128*3456}")
        I(f"s_lshl_b32 s{sT0}, s{sTB}, 6")
        I(f"s_add_u32 s{sRB}, s{sT0}, s{sT1}")
        I(f"s_mov_b32 s{sRSTEP}, {16*3456}")
        I(f"s_mov_b32 s{sRN}, 8")
        I(f"v_lshrrev_b32 v{m0_}, 2, v{vLANE}")
        I(f"v_mul_u32_u24 v{m0_}, 3456, v{m0_}")
        I(f"v_and_b32 v{m1_}, 3, v{vLANE}")
        I(f"v_lshl_add_u32 v{vRDMA}, v{m1_}, 4, v{m0_}")
        I(f"s_add_u32 s{sT0}, s{sT0}, {YOFF}")
        if y128:
            I(f"s_lshl_b32 s{sT1}, s{sTB}, 6")
            I(f"s_add_u32 s{sT0}, s{sT0}, s{sT1}")
            I(f"s_lshl_b32 s{sT1}, s{sWAVE}, 14")
            I(f"s_add_u32 s{sT0}, s{sT0}, s{sT1}")
            I(f"v_bfe_u32 v{m0_}, v{vLANE}, 2, 2")
            I(f"v_lshlrev_b32 v{m0_}, 15, v{m0_}")
            I(f"v_and_b32 v{m1_}, 3, v{vLANE}")
            I(f"v_lshl_add_u32 v{m0_}, v{m1_}, 5, v{m0_}")
            I(f"v_lshrrev_b32 v{m1_}, 4, v{vLANE}")
            I(f"v_lshl_add_u32 v{m0_}, v{m1_}, 3, v{m0_}")
            I(f"v_add_u32 v{vA2}, s{sT0}, v{m0_}")
            I(f"s_lshl_b32 s{sT0}, s{sWAVE}, 12")
            I(f"s_add_u32 s{sT0}, s{sT0}, {L_W2}")
            tr_addr(vA3, 128, sT0, m0_)
            I(f"v_bfe_u32 v{m0_}, v{vLANE}, 3, 1")
            I(f"v_bfe_u32 v{m1_}, v{vLANE}, 4, 1")
            I(f"v_lshl_add_u32 v{m0_}, v{m1_}, 1, v{m0_}")
            I(f"v_lshl_add_u32 v{vA3}, v{m0_}, 5, v{vA3}")
            I(f"v_xor_b32 v{vA1}, 32, v{vA3}")
            I(f"v_xor_b32 v{vA0}, 64, v{vA3}")
            I(f"s_cmp_ge_u32 s{sWAVE}, 6")
            I(f"s_cselect_b32 s{sYM}, 255, 15")
            I(f"s_mul_i32 s{sYM}, s{sYM}, 0x10001")
            I(f"s_mov_b32 s{sYM+1}, s{sYM}")
        elif y64:
            I(f"s_and_b32 s{sT1}, s{sWAVE}, 1")
            I(f"s_lshl_b32 s{sT1}, s{sT1}, 12")
            I(f"s_add_u32 s{sT0}, s{sT0}, s{sT1}")
            I(f"s_lshr_b32 s{sT2}, s{sWAVE}, 1")
            I(f"s_lshl_b32 s{sT1}, s{sT2}, 14")
            I(f"s_add_u32 s{sT0}, s{sT0}, s{sT1}")
            I(f"v_bfe_u32 v{m0_}, v{vLANE}, 1, 3")
            I(f"v_lshlrev_b32 v{m0_}, 16, v{m0_}")
            I(f"v_and_b32 v{m1_}, 1, v{vLANE}")
            I(f"v_lshl_add_u32 v{m0_}, v{m1_}, 5, v{m0_}")
            I(f"v_lshrrev_b32 v{m1_}, 4, v{vLANE}")
            I(f"v_lshl_add_u32 v{m0_}, v{m1_}, 3, v{m0_}")
            I(f"v_add_u32 v{vA2}, s{sT0}, v{m0_}")
            I(f"s_lshl_b32 s{sT0}, s{sT2}, 12")
            I(f"s_add_u32 s{sT0}, s{sT0}, {L_W2}")
            tr_addr(vA3, 128, sT0, m0_)
            I(f"v_bfe_u32 v{m0_}, v{vLANE}, 3, 1")
            I(f"v_bfe_u32 v{m1_}, v{vLANE}, 4, 1")
            I(f"v_lshl_add_u32 v{m0_}, v{m1_}, 1, v{m0_}")
            I(f"s_and_b32 s{sT1}, s{sWAVE}, 1")
            I(f"s_lshl_b32 s{sT1}, s{sT1}, 1")
            I(f"v_xor_b32 v{m0_}, s{sT1}, v{m0_}")
            I(f"v_lshl_add_u32 v{vA3}, v{m0_}, 5, v{vA3}")
            I(f"v_xor_b32 v{vA1}, 32, v{vA3}")
            I(f"s_cmp_lt_u32 s{sWAVE}, 4")
            I(f"s_cselect_b32 s{sYM}, 63, 15")
            I(f"s_mul_i32 s{sYM}, s{sYM}, 0x10001")
            I(f"s_mov_b32 s{sYM+1}, s{sYM}")
        else:
            I(f"s_and_b32 s{sT1}, s{sWAVE}, 2")
            I(f"s_lshl_b32 s{sT1}, s{sT1}, 11")
            I(f"s_add_u32 s{sT0}, s{sT0}, s{sT1}")
            I(f"s_lshr_b32 s{sT2}, s{sWAVE}, 2")
            I(f"s_lshl_b32 s{sT1}, s{sT2}, 14")
            I(f"s_add_u32 s{sT0}, s{sT0}, s{sT1}")
            I(f"s_and_b32 s{sT1}, s{sWAVE}, 1")
            I(f"s_lshl_b32 s{sT1}, s{sT1}, 5")
            I(f"s_add_u32 s{sT0}, s{sT0}, s{sT1}")
            I(f"v_and_b32 v{m0_}, 15, v{vLANE}")
            I(f"v_lshlrev_b32 v{m0_}, 15, v{m0_}")
            I(f"v_lshrrev_b32 v{m1_}, 4, v{vLANE}")
            I(f"v_lshl_add_u32 v{m0_}, v{m1_}, 3, v{m0_}")
            I(f"v_add_u32 v{vA2}, s{sT0}, v{m0_}")
            I(f"s_lshl_b32 s{sT0}, s{sT2}, 12")
            I(f"s_add_u32 s{sT0}, s{sT0}, {L_W2}")
            tr_addr(vA3, 128, sT0, m0_)
            I(f"v_bfe_u32 v{m0_}, v{vLANE}, 3, 1")
            I(f"v_bfe_u32 v{m1_}, v{vLANE}, 4, 1")
            I(f"v_lshl_add_u32 v{m0_}, v{m1_}, 1, v{m0_}")
            I(f"s_and_b32 s{sT1}, s{sWAVE}, 3")
            I(f"v_xor_b32 v{m0_}, s{sT1}, v{m0_}")
            I(f"v_lshl_add_u32 v{vA3}, v{m0_}, 5, v{vA3}")
        if th1:
            I(f"s_cmp_eq_u32 s{sWAVE}, 6")
            I("s_cbranch_scc0 L_g1")
            ml_gate(th1)
            a.label("L_g1")
        if emd: I(f"s_waitcnt vmcnt({40 // emw})")
        I("s_barrier")
        I(f"s_cmp_ge_u32 s{sWAVE}, 5")
        I("s_cbranch_scc1 L_w2d")
        if not emd:
            role_dma()
            TS(25)
        I("s_branch L_W1")
        a.label("L_w2d")
        if th2 > th1:
            ml_gate(th2)
        if not emd:
            I(f"s_mul_i32 s{sT3}, s{sTB}, {32*1280}")
            I(f"s_sub_u32 s{sT0}, s{sWAVE}, 5")
            I(f"s_mul_i32 s{sT0}, s{sT0}, 13")
            I(f"v_lshrrev_b32 v{m0_}, 3, v{vLANE}")
            I(f"v_mul_u32_u24 v{m2_}, 1280, v{m0_}")
            I(f"v_and_b32 v{m1_}, 7, v{vLANE}")
            I(f"v_lshlrev_b32 v{m1_}, 4, v{m1_}")
            I(f"v_bfe_u32 v{m0_}, v{vLANE}, 4, 1")
            I(f"v_lshlrev_b32 v{m0_}, 5, v{m0_}")
            I(f"v_xor_b32 v{m1_}, v{m1_}, v{m0_}")
            I(f"s_and_b32 s{sT1}, s{sT0}, 1")
            I(f"s_lshl_b32 s{sT1}, s{sT1}, 6")
            I(f"v_xor_b32 v{m1_}, s{sT1}, v{m1_}")
            I(f"v_xor_b32 v{m0_}, 64, v{m1_}")
            I(f"v_add_u32 v{m3_}, v{m2_}, v{m0_}")
            I(f"v_add_u32 v{m2_}, v{m2_}, v{m1_}")
            srd(TA, 48, 1728 * 1280)
            for e in range(14):
                I(f"s_lshl_b32 s{sT1}, s{sT0}, 10")
                I(f"s_add_u32 m0, s{sT1}, {L_W2}")
                I(f"s_and_b32 s{sT1}, s{sT0}, 3")
                I(f"s_mul_i32 s{sT1}, s{sT1}, {8*1280}")
                I(f"s_lshr_b32 s{sT2}, s{sT0}, 2")
                I(f"s_lshl_b32 s{sT2}, s{sT2}, 7")
                I(f"s_add_u32 s{sT1}, s{sT1}, s{sT2}")
                I(f"s_add_u32 s{sT1}, s{sT1}, s{sT3}")
                I(f"buffer_load_dwordx4 v{(m2_, m3_)[e & 1]}, {TA}, s{sT1} offen {rflags} lds")
                if e < 13: I(f"s_add_u32 s{sT0}, s{sT0}, 1")
        srd(TA, 46, 1728 * 2)
        I(f"s_lshl_b32 s{sT0}, s{sTB}, 6")
        I(f"v_and_b32 v{m0_}, 31, v{vLANE}")
        I(f"v_lshlrev_b32 v{m0_}, 1, v{m0_}")
        I(f"v_mov_b32 v{vB1}, 0")
        I(f"buffer_load_short_d16_hi v{vB1}, v{m0_}, {TA}, s{sT0} offen")
        for b_ in HB5:
            for i in range(4):
                I(f"v_mov_b32 v{b_+i}, 0")
        TS(25)
        I("s_branch L_W1")

    def role_base():
        I(f"s_lshl_b32 s{sT0}, s{sWAVE}, 13")
        I(f"s_add_u32 s{sT0}, s{sT0}, {L_ROLE}")

    a.label("L_WO")
    if g1:
        if pth:
            I(f"s_cmp_eq_u32 s{sWAVE}, 6")
            I("s_cbranch_scc0 L_G1")
            I(f"s_cmp_eq_u32 s{sIT}, 0")
            I("s_cbranch_scc0 L_G1")
            ml_gate(pth)
            a.label("L_G1")
        if g1 == 2:
            I(f"s_cmp_eq_u32 s{sIT}, 0")
            I("s_cbranch_scc1 L_G1b")
            I("s_barrier")
            I("s_branch L_WO0")
            a.label("L_G1b")
        else:
            I("s_barrier")
    I(f"s_cmp_eq_u32 s{sIT}, 0")
    I("s_cbranch_scc0 L_WO0")
    role_base()
    tr_addr(T + 47, 64, sT0)
    I("s_waitcnt vmcnt(0)")
    for ks in range(2):
        for t in range(2):
            b = vRB + 4 * (ks * 2 + t)
            o = ks * 2048 + t * 32
            I(f"ds_read_b64_tr_b16 v[{b}:{b+1}], v{T+47} offset:{o}")
            I(f"ds_read_b64_tr_b16 v[{b+2}:{b+3}], v{T+47} offset:{o+256}")
    I("s_waitcnt lgkmcnt(0)")
    TS(15)
    a.label("L_WO0")
    I(f"s_cmp_eq_u32 s{sWAVE}, 5")
    I("s_cbranch_scc0 L_WO1")
    if q2 == 2:
        I(f"s_cmp_eq_u32 s{sIT}, 0")
        I("s_cbranch_scc1 L_WO2")
        I(f"buffer_load_ushort v{vXF}, v{vXFA}, {WS}, 0 offen sc1")
        a.label("L_WO2")
    I("s_waitcnt vmcnt(0)")
    I(f"v_lshlrev_b32 v{vXF}, 16, v{vXF}")
    a.label("L_WO1")
    A0, Ma, La = T + 44, T + 48, T + 49
    Dw = [[T + 8, T + 12], [T + 16, T + 20]]
    wMX, wE, wT, wL2E, wR0, wR1 = [T + 24 + i for i in range(6)]
    I(f"v_mov_b32 v{wL2E}, s{sL2E}")
    if pl == 1:
        light(f"buffer_load_dword v{Ma}, v{vA2}, {WS}, s{sREG} offen sc1", Ma)
    if pl == 2:
        light(f"buffer_load_dword v{A0}, v{vA0}, {WS}, s{sREG} offen sc1", A0, (0xFF, 0))
    poll([f"buffer_load_dwordx4 {vr(A0)}, v{vA0}, {WS}, s{sREG} offen sc1",
          f"buffer_load_dwordx2 v[{Ma}:{La}], v{vA2}, {WS}, s{sREG} offen sc1"], list(range(A0, A0 + 6)),
         groups=[range(A0, A0 + 4), range(A0 + 4, A0 + 6)], hop=1)
    TS(16)
    seq = [
        f"v_max_f32_dpp v{wMX}, v{Ma}, v{Ma} quad_perm:[1,0,3,2] row_mask:0xf bank_mask:0xf",
        f"v_max_f32_dpp v{wMX}, v{wMX}, v{wMX} quad_perm:[2,3,0,1] row_mask:0xf bank_mask:0xf",
        f"v_max_f32_dpp v{wMX}, v{wMX}, v{wMX} row_half_mirror row_mask:0xf bank_mask:0xf",
        f"v_sub_f32 v{wE}, v{Ma}, v{wMX}",
    ]
    k = 0
    for t in range(2):
        for ks in range(2):
            I(f"v_mfma_f32_16x16x32_bf16 {vr(Dw[t][ks])}, {vr(A0)}, {vr(vRB+4*(ks*2+t))}, 0")
            I(seq[k]); k += 1
    I(f"v_mul_f32 v{wE}, v{wE}, v{wL2E}")
    I(f"v_exp_f32 v{wE}, v{wE}")
    I(f"v_mul_f32 v{wT}, v{wE}, v{La}")
    mrg = [f"v_mov_b32_dpp v{Dw[t][0]+i}, v{Dw[t][1]+i} quad_perm:[0,1,2,3] row_mask:0xc bank_mask:0xf"
           for t in range(2) for i in range(4)]
    I(mrg[0]); I(mrg[1])
    I(f"v_add_f32_dpp v{wT}, v{wT}, v{wT} quad_perm:[1,0,3,2] row_mask:0xf bank_mask:0xf")
    I(mrg[2]); I(mrg[3])
    I(f"v_add_f32_dpp v{wT}, v{wT}, v{wT} quad_perm:[2,3,0,1] row_mask:0xf bank_mask:0xf")
    I(f"v_mov_b32_dpp v{wE}, v{wE} row_ror:4 row_mask:0xf bank_mask:0xa")
    I(mrg[4])
    I(f"v_add_f32_dpp v{wT}, v{wT}, v{wT} row_half_mirror row_mask:0xf bank_mask:0xf")
    I(mrg[5])
    I(f"v_rcp_f32 v{wT}, v{wT}")
    I(mrg[6]); I(mrg[7])
    for i in range(4):
        for t in range(2):
            D = Dw[t][0]; R = (wR0, wR1)[t]
            op = "v_mul_f32_dpp" if i == 0 else "v_fmac_f32_dpp"
            I(f"{op} v{R}, v{wE}, v{D+i} quad_perm:[{i},{i},{i},{i}] row_mask:0xf bank_mask:0xf")
    I(f"v_mul_f32 v{wR0}, v{wR0}, v{wT}")
    I(f"v_mul_f32 v{wR1}, v{wR1}, v{wT}")
    I(f"ds_write_b32 v{vPW}, v{wR0} offset:{L_PB2}")
    I(f"ds_write_b32 v{vPW}, v{wR1} offset:{L_PB2+256}")
    I("s_waitcnt lgkmcnt(0)")
    I("s_barrier")
    I(f"s_cmp_eq_u32 s{sWAVE}, 5")
    I("s_cbranch_scc0 L_next")
    if p5 & 2: I("s_setprio 3")
    TS(17)
    reduce_read(8, L_PB2)
    I("s_waitcnt lgkmcnt(0)")
    I(f"v_add_f32 v{T+30}, v{T+30}, v{vXF}")
    reduce_sum(8, rTOT)
    pack_pairs(rTOT, rU)
    I(f"v_mov_b32 v{T}, v{rU}")
    I(f"v_mov_b32_dpp v{T+1}, v{rU} quad_perm:[2,2,2,2] row_mask:0xf bank_mask:0xf")
    I(f"v_mov_b32_dpp v{T+2}, v{rU} row_shl:4 row_mask:0xf bank_mask:0xf")
    I(f"v_mov_b32_dpp v{T+3}, v{rU} row_shl:6 row_mask:0xf bank_mask:0xf")
    setexec(0x01010101, 0)
    I(f"buffer_store_dwordx4 {vr(T)}, v{vRP}, {WS}, s{sREG} offen sc1")
    if dual:
        I(f"buffer_store_dwordx4 {vr(T)}, v{vRP}, {WS}, s{sREG2} offen sc1")
    setexec(0xFFFFFFFF, 0xFFFFFFFF)
    TS(18)
    if p5 & 2: I("s_setprio 0")
    I("s_branch L_next")

    if m2:
        D0, D1, S1, S2, HB, D2 = T, T + 4, T + 8, T + 12, T + 16, T + 44
        IDW = vSEL + 5
        def it0(fn):
            l = a.newlab("Li")
            I(f"s_cmp_eq_u32 s{sIT}, 0")
            I(f"s_cbranch_scc0 {l}")
            fn()
            a.label(l)
        def w2_frags(nb, x0):
            for e in range(2 * nb):
                b = (F0, F0 + 4, F1, F1 + 4, F2, F2 + 4)[e]
                va = vA3
                if e:
                    va = x0 + (e & 1)
                    if e < 4: I(f"v_xor_b32 v{va}, {32*e}, v{vA3}")
                    elif e == 4:
                        I(f"v_xor_b32 v{va}, s{sF2x}, v{vA3}")
                        I(f"v_add_u32 v{va}, s{sF2o}, v{va}")
                    else: I(f"v_xor_b32 v{va}, 32, v{x0}")
                I(f"ds_read_b64_tr_b16 v[{b}:{b+1}], v{va}")
                I(f"ds_read_b64_tr_b16 v[{b+2}:{b+3}], v{va} offset:512")
        def w2_tail(nb):
            I("s_barrier")
            setexec(0x00050005, 0x000A000A)
            for e in range(nb):
                I(f"ds_read_b128 {vr(HB+4*e)}, v{vA1} offset:{L_H}")
                I("s_lshl_b64 exec, exec, 4" if e < nb - 1 else "s_mov_b64 exec, -1")
            TS(23)
            for e in range(nb):
                I(f"s_waitcnt lgkmcnt({nb-1-e})")
                I(f"v_smfmac_f32_16x16x64_bf16 {vr(D2)}, {vr(HB+4*e)}, {vr((F0, F1, F2)[e], 8)}, v{IDX}")
            I(f"v_pk_add_f32 v[{D2}:{D2+1}], v[{D2}:{D2+1}], v[{D2+2}:{D2+3}]")
            I(f"v_cvt_pk_bf16_f32 v{D2}, v{D2}, v{D2+1}")
            I(f"v_min_u32 v{D2}, 0xfffffffe, v{D2}")
            I(f"buffer_store_dword v{D2}, v{vA2}, {WS}, s{sREG} offen sc1")
            I(f"buffer_store_dword v{D2}, v{vA2}, {WS}, s{sREG2} offen sc1")
            TS(24)
            I("s_branch L_next")
        def zero(rs):
            for r_ in rs: I(f"v_mov_b32 v{r_}, 0")
        def gwave(ns, nb):
            lab = a.newlab("Lgw")
            ones()
            I(f"s_cmp_eq_u32 s{sIT}, 0")
            I(f"s_cbranch_scc0 {lab}a")
            x0, x1 = T + 46, T + 47
            I(f"v_bfe_u32 v{x0}, v{vLANE}, 3, 1")
            I(f"v_lshlrev_b32 v{x0}, 5, v{x0}")
            I(f"v_bfe_u32 v{x1}, v{vLANE}, 2, 1")
            I(f"v_add_u32 v{x0}, v{x0}, v{x1}")
            I(f"v_lshrrev_b32 v{x1}, 4, v{vLANE}")
            I(f"v_lshl_add_u32 v{x0}, v{x1}, 2, v{x0}")
            I(f"v_lshlrev_b32 v{x0}, 6, v{x0}")
            I(f"v_and_b32 v{x1}, 3, v{vLANE}")
            I(f"v_lshl_add_u32 v{x0}, v{x1}, 3, v{x0}")
            I(f"v_add_u32 v{x0}, s{sLB}, v{x0}")
            I(f"s_lshl_b32 s{sT0}, s{sWAVE}, 7")
            I(f"v_and_b32 v{x1}, 15, v{vLANE}")
            I(f"v_lshlrev_b32 v{x1}, 2, v{x1}")
            I(f"v_add_u32 v{x1}, s{sT0}, v{x1}")
            I(f"s_waitcnt vmcnt({0 if ns == 2 or wd else 6})")
            for sg in range(ns):
                for t in range(2):
                    for qd in range(2):
                        for jj in range(2):
                            b = vRB + 16 * sg + 8 * t + 4 * qd + 2 * jj
                            I(f"ds_read_b64_tr_b16 v[{b}:{b+1}], v{x0} offset:{sg*4096 + qd*1024 + jj*128 + t*32}")
                I("s_waitcnt lgkmcnt(0)")
            for t in range(2):
                for k_ in range(2 * ns):
                    b = vRB + 16 * (k_ >> 1) + 8 * t + 4 * (k_ & 1)
                    I(f"v_mfma_f32_16x16x32_bf16 {vr(T+4*t)}, {vr(ONES)}, {vr(b)}, {'0' if k_ == 0 else vr(T+4*t)}")
            I(f"ds_write_b32 v{x1}, v{T} offset:{L_CS}")
            I(f"ds_write_b32 v{x1}, v{T+4} offset:{L_CS+64}")
            TS(15)
            if wd == 2:
                I("s_waitcnt lgkmcnt(0)")
                I("s_barrier")
            else:
                I(f"s_branch {lab}b")
            a.label(lab + "a")
            w2_frags(nb, T + 50)
            a.label(lab + "b")
            zero(list(range(D0, D0 + 12)) + list(range(HB, HB + 4 * nb)) + list(range(D2, D2 + 4)) + (list(range(XA + 4, XA + 8)) if ns == 1 else []))
            I(f"s_add_u32 s{sT1}, s{sREG}, {ZOFF}")
            I(f"s_add_u32 s{sT1}, s{sT1}, s{sNEAR}")
            I(f"s_mov_b32 s{sF}, 0x00ff00ff")
            I(f"s_mov_b32 s{sF+1}, 0xff00ff00")
            poll([f"buffer_load_dwordx4 {vr(XA+4*k_)}, v{vGZ}, {WS}, s{sT1} offen offset:{2*ZR*k_} sc1" for k_ in range(ns)],
                 [XA + 4 * k_ for k_ in range(ns)], groups=[[XA + 4 * k_] for k_ in range(ns)])
            TS(19)
            for k_ in range(ns):
                I(f"v_mfma_f32_16x16x32_bf16 {vr(S2)}, {vr(XA+4*k_)}, {vr(XA+4*k_)}, {vr(S2) if k_ else '0'}")
            I(f"v_smfmac_f32_16x16x64_bf16 {vr(S1)}, {vr(ONES)}, {vr(XA, 8)}, v{IDW}")
            st = [f"v_pk_add_f32 v[{S2}:{S2+1}], v[{S2}:{S2+1}], v[{S2+2}:{S2+3}]",
                  f"v_add_f32 v{S2}, v{S2}, v{S2+1}",
                  f"v_cndmask_b32 v{S1+1}, 0, v{S2}, s[{sF}:{sF+1}]"]
            for m_ in ("quad_perm:[1,0,3,2]", "quad_perm:[2,3,0,1]", "row_half_mirror", "row_mirror"):
                st += [f"v_add_f32_dpp v{S1}, v{S1}, v{S1} {m_} {DPF}", f"v_add_f32_dpp v{S1+1}, v{S1+1}, v{S1+1} {m_} {DPF}"]
            st += [f"v_add_f32_dpp v{S1+1}, v{S1+1}, v{S1+1} row_bcast:15 row_mask:0xa bank_mask:0xf",
                   f"v_add_f32_dpp v{S1}, v{S1}, v{S1} row_bcast:31 row_mask:0xc bank_mask:0xf",
                   f"v_add_f32_dpp v{S1+1}, v{S1+1}, v{S1+1} row_bcast:31 row_mask:0xc bank_mask:0xf"]
            for k_ in range(ns):
                for t in range(2):
                    I(f"v_smfmac_f32_16x16x64_bf16 {vr(D0+4*t)}, {vr(XA+4*k_)}, {vr(vRB+16*k_+8*t, 8)}, v{IDW}")
                    if ns == 2 and k_ == 1 and t == 0:
                        I(st.pop(0)); I(st.pop(0))
            dp = [f"v_pk_add_f32 v[{D0}:{D0+1}], v[{D0}:{D0+1}], v[{D0+2}:{D0+3}]",
                  f"v_pk_add_f32 v[{D1}:{D1+1}], v[{D1}:{D1+1}], v[{D1+2}:{D1+3}]",
                  f"v_add_f32 v{D0}, v{D0}, v{D0+1}",
                  f"v_add_f32 v{D1}, v{D1}, v{D1+1}",
                  f"v_permlane32_swap_b32 v{D0}, v{D1}",
                  f"v_add_f32 v{D0}, v{D0}, v{D1}",
                  f"ds_write_b32 v{vPW}, v{D0} offset:{L_PB1}"]
            n1 = 5 if ns == 2 else 7
            for x_ in st[:n1]: I(x_)
            st = st[n1:]
            while st or dp:
                if dp: I(dp.pop(0))
                if st: I(st.pop(0))
            setexec(0, 0x80000000)
            I(f"ds_write_b64 v{vPW}, v[{S1}:{S1+1}] offset:{L_PB1 + 260}")
            setexec(0xFFFFFFFF, 0xFFFFFFFF)
            I("s_waitcnt lgkmcnt(0)")
            TS(20)
            I("s_barrier")
            if wd != 2: it0(lambda: (w2_frags(nb, T + 50), I("s_waitcnt lgkmcnt(0)")))
            w2_tail(nb)
        a.label("L_W1")
        I(f"s_cmp_lt_u32 s{sWAVE}, 4")
        I("s_cbranch_scc0 L_W4")
        gwave(2, 2)
        a.label("L_W4")
        I(f"s_cmp_lt_u32 s{sWAVE}, 6")
        I("s_cbranch_scc1 L_W45")
        gwave(1, 3)
        a.label("L_W45")
        zero(list(range(HB, HB + 12)) + list(range(D2, D2 + 4)))
        I(f"s_cmp_eq_u32 s{sWAVE}, 5")
        I("s_cbranch_scc1 L_W5")
        I("s_waitcnt vmcnt(0)")
        TS(37)
        if wd == 2:
            it0(lambda: I("s_barrier"))
            w2_frags(3, T + 50)
            I("s_waitcnt lgkmcnt(0)")
            I("s_barrier")
        else:
            I("s_barrier")
            w2_frags(3, T + 50)
            I("s_waitcnt lgkmcnt(0)")
        I("s_branch L_W1t")
        a.label("L_W5")
        EPS = 1e-5
        ra, rz, rh, rK, rE, rc = T + 48, T + 49, T + 40, T + 32, T + 34, T + 28
        SB, CB = vRB, vRB + 12
        I(f"v_mov_b32 v{rK}, {f2u(math.sqrt(1 + EPS) / 640):#x}")
        I(f"v_mov_b32 v{rK+1}, {f2u((1 + EPS) / 640):#x}")
        I(f"v_mov_b32 v{rE}, 0")
        I(f"v_mov_b32 v{rE+1}, {f2u(EPS * EPS):#x}")
        I(f"v_mov_b32 v{rC1}, {f2u(GC1):#x}")
        I(f"v_mov_b32 v{rC2}, {f2u(GC2):#x}")
        I(f"v_lshlrev_b32 v{ra}, 3, v{vLANE}")
        I(f"v_lshlrev_b32 v{rc}, 2, v{vLANE}")
        I(f"v_mov_b32 v{rz}, 0")
        I(f"v_and_b32 v{rh}, 17, v{vLANE}")
        I(f"v_and_b32 v{rT}, 2, v{vLANE}")
        I(f"v_lshl_add_u32 v{rh}, v{rT}, 2, v{rh}")
        I(f"v_bfe_u32 v{rT}, v{vLANE}, 2, 2")
        I(f"v_lshl_add_u32 v{rh}, v{rT}, 1, v{rh}")
        I(f"v_lshlrev_b32 v{rh}, 1, v{rh}")
        I("s_waitcnt vmcnt(0)")
        GW = (0, 1, 2, 3, 6, 7)
        def cs0():
            for i, v in enumerate(GW):
                I(f"ds_read_b32 v{CB+i}, v{rc} offset:{L_CS + v*128}")
            I("s_waitcnt lgkmcnt(0)")
            if wd != 2: w2_frags(3, T + 50)
            I(f"v_pk_add_f32 v[{CB}:{CB+1}], v[{CB}:{CB+1}], v[{CB+2}:{CB+3}]")
            I(f"v_pk_add_f32 v[{CB}:{CB+1}], v[{CB}:{CB+1}], v[{CB+4}:{CB+5}]")
            I(f"v_add_f32 v{CB}, v{CB}, v{CB+1}")
            I(f"v_mul_f32 v{vCS1}, {f2u(1 / math.sqrt(1 + EPS)):#x}, v{CB}")
        if wd == 2:
            it0(lambda: (I("s_barrier"), cs0()))
        else:
            I(f"s_cmp_eq_u32 s{sIT}, 0")
            I("s_cbranch_scc1 L_W5a")
        w2_frags(3, T + 50)
        I("s_waitcnt lgkmcnt(0)")
        a.label("L_W5a")
        if p5 & 4: I("s_setprio 3")
        I("s_barrier")
        TS(21)
        for i, v in enumerate(GW):
            I(f"ds_read_b64 v[{SB+2*i}:{SB+2*i+1}], v{rz} offset:{L_PB1 + 512 + v*PP}")
        for i, v in enumerate(GW):
            I(f"ds_read_b64 v[{T+2*i}:{T+2*i+1}], v{ra} offset:{L_PB1 + v*PP}")
        def sum6(b):
            return [f"v_pk_add_f32 v[{b+2*d_}:{b+2*d_+1}], v[{b+2*d_}:{b+2*d_+1}], v[{b+2*s_}:{b+2*s_+1}]" for d_, s_ in ((0, 1), (2, 3), (4, 5), (0, 2), (0, 4))]
        I("s_waitcnt lgkmcnt(6)")
        for x_ in sum6(SB): I(x_)
        I(f"v_pk_fma_f32 v[{SB}:{SB+1}], v[{SB}:{SB+1}], v[{rK}:{rK+1}], v[{rE}:{rE+1}]")
        I(f"v_fma_f32 v{rR}, -v{SB}, v{SB}, v{SB+1}")
        I(f"v_max_f32 v{rR}, v{rR}, v{rE+1}")
        I(f"v_rsq_f32 v{rR}, v{rR}")
        I("s_waitcnt lgkmcnt(0)")
        if wd != 2: it0(cs0)
        for x_ in sum6(T): I(x_)
        I(f"v_fma_f32 v{T+1}, -v{SB}, v{vCS1}, v{T+1}")
        I(f"v_add_f32 v{T}, v{T}, v{T+1}")
        I(f"v_fma_f32 v{rU}, v{T}, v{rR}, v{vB1}")
        I(f"v_mul_f32 v{rT}, v{rU}, v{rU}")
        I(f"v_fma_f32 v{rT}, v{rT}, v{rC2}, v{rC1}")
        I(f"v_mul_f32 v{rT}, v{rT}, v{rU}")
        I(f"v_exp_f32 v{rT}, v{rT}")
        I(f"v_add_f32 v{rT}, 1.0, v{rT}")
        I(f"v_rcp_f32 v{rT}, v{rT}")
        setexec(0xFFFFFFFF, 0)
        I(f"v_mul_f32 v{rU}, v{rU}, v{rT}")
        I(f"v_cvt_pk_bf16_f32 v{rU}, v{rU}, v{rU}")
        I(f"ds_write_b16 v{rh}, v{rU} offset:{L_H}")
        setexec(0xFFFFFFFF, 0xFFFFFFFF)
        TS(22)
        if p5 & 4: I("s_setprio 0")
        I("s_waitcnt lgkmcnt(0)")
        a.label("L_W1t")
        w2_tail(3)

    if not m2:
        ha = T + 48
        def w2_frags(FR, wait=True):
            for e in range(len(FR)):
                va, o = (vA3, e * 8192) if not y64 else ((vA3, vA1)[e & 1], (e >> 1) * 16384)
                if y128: va, o = (vA3, vA1, vA0, T + 51)[e & 3], (e >> 2) * 8192
                if y128 and e == 0: I(f"v_xor_b32 v{T+51}, 96, v{vA3}")
                if e == 4 and len(FR) == 8: I("s_waitcnt lgkmcnt(0)")
                I(f"ds_read_b64_tr_b16 v[{FR[e]}:{FR[e]+1}], v{va} offset:{o}")
                I(f"ds_read_b64_tr_b16 v[{FR[e]+2}:{FR[e]+3}], v{va} offset:{o+512}")
            if wait: I("s_waitcnt lgkmcnt(0)")
        def w2_tail(FR, HB, D2):
            ne = len(FR)
            I("s_barrier")
            setexec(0x00010001, 0x00010001)
            for e in range(ne):
                I(f"ds_read_b128 {vr(HB[e])}, v{ha} offset:{L_H}")
                I("s_lshl_b64 exec, exec, 1" if e < ne - 1 else "s_mov_b64 exec, -1")
            TS(23)
            for e in range(ne):
                if ne == 6 and e == 4:
                    I(f"s_cmp_lt_u32 s{sWAVE}, 4")
                    I("s_cbranch_scc0 L_w24")
                if ne == 8 and e == 4:
                    I(f"s_cmp_ge_u32 s{sWAVE}, 6")
                    I("s_cbranch_scc0 L_w24")
                I(f"s_waitcnt lgkmcnt({ne-1-e})")
                I(f"v_mfma_f32_16x16x32_bf16 {vr(D2)}, {vr(FR[e])}, {vr(HB[e])}, {vr(D2) if e else '0'}")
            if ne >= 6: a.label("L_w24")
            if y64: I(f"s_mov_b64 exec, s[{sYM}:{sYM+1}]")
            else: setexec(0x001F001F, 0x001F001F)
            I(f"v_cvt_pk_bf16_f32 v{D2}, v{D2}, v{D2+1}")
            I(f"v_cvt_pk_bf16_f32 v{D2+1}, v{D2+2}, v{D2+3}")
            I(f"v_min_u32 v{D2}, 0xfffffffe, v{D2}")
            I(f"v_min_u32 v{D2+1}, 0xfffffffe, v{D2+1}")
            I(f"buffer_store_dwordx2 v[{D2}:{D2+1}], v{vA2}, {WS}, s{sREG} offen sc1")
            if dual:
                I(f"buffer_store_dwordx2 v[{D2}:{D2+1}], v{vA2}, {WS}, s{sREG2} offen sc1")
            setexec(0xFFFFFFFF, 0xFFFFFFFF)
            if ne >= 6: I("s_waitcnt lgkmcnt(0)")
            TS(24)
            I("s_branch L_next")
        FR04 = [28, 32, 36, 40, T + 40] + ([T + 24] if y64 else [])
        FR5 = [vRB + 4 * e for e in range(4 if y64 else 5)]
        if y128:
            FR04 = FR04[:4]
            FR5 = [vRB + 4 * e for e in range(8)]
            HB5 = [28, 32, 36, 40, T, T + 4, T + 8, T + 12]
        HB04 = [T + 4 * e for e in range(len(FR04))]
        def it0(fn):
            l = a.newlab("Li")
            I(f"s_cmp_eq_u32 s{sIT}, 0")
            I(f"s_cbranch_scc0 {l}")
            fn()
            a.label(l)
        a.label("L_W1")
        I(f"s_cmp_ge_u32 s{sWAVE}, 5")
        I("s_cbranch_scc1 L_W1h")
        ones()
        I(f"s_cmp_eq_u32 s{sIT}, 0")
        I("s_cbranch_scc0 L_W11")
        role_base()
        tr_addr(T + 47, 64, sT0)
        I(f"s_lshl_b32 s{sT0}, s{sWAVE}, 7")
        I(f"v_and_b32 v{T+46}, 15, v{vLANE}")
        I(f"v_lshlrev_b32 v{T+46}, 2, v{T+46}")
        I(f"v_add_u32 v{T+46}, s{sT0}, v{T+46}")
        if not emd: I("s_waitcnt vmcnt(0)")
        for ks in range(4):
            for t in range(2):
                b = vRB + 4 * (ks * 2 + t)
                o = ks * 2048 + t * 32
                I(f"ds_read_b64_tr_b16 v[{b}:{b+1}], v{T+47} offset:{o}")
                I(f"ds_read_b64_tr_b16 v[{b+2}:{b+3}], v{T+47} offset:{o+256}")
            if ks == 1:
                I("s_waitcnt lgkmcnt(0)")
        I("s_waitcnt lgkmcnt(0)")
        for t in range(2):
            for ks in range(4):
                I(f"v_mfma_f32_16x16x32_bf16 {vr(T+4*t)}, {vr(ONES)}, {vr(vRB+4*(ks*2+t))}, {'0' if ks == 0 else vr(T+4*t)}")
        I(f"ds_write_b32 v{T+46}, v{T} offset:{L_CS2}")
        I(f"ds_write_b32 v{T+46}, v{T+4} offset:{L_CS2+64}")
        TS(15)
        I("s_branch L_W12")
        a.label("L_W11")
        w2_frags(FR04)
        a.label("L_W12")
        if g2: I("s_barrier")
        I(f"s_add_u32 s{sT1}, s{sREG}, {ZOFF}")
        I(f"s_add_u32 s{sT1}, s{sT1}, s{sNEAR}")
        gather(sT1)
        TS(19)
        gemv(2, vRB, lambda ks, t: ks * 2 + t)
        TS(20)
        I("s_barrier")
        I(f"v_lshrrev_b32 v{ha}, 4, v{vLANE}")
        I(f"v_lshlrev_b32 v{ha}, 4, v{ha}")
        for i in range(4 * len(FR04)):
            I(f"v_mov_b32 v{T+i}, 0")
        it0(lambda: w2_frags(FR04))
        w2_tail(FR04, HB04, T + 44)
        a.label("L_W1h")
        if g2:
            I(f"s_cmp_eq_u32 s{sWAVE}, 6")
            I("s_cbranch_scc0 L_G2")
            ml_gate(g2)
            a.label("L_G2")
            I("s_barrier")
        I(f"v_mov_b32 v{rINV}, {f2u(1.0/640):#x}")
        I(f"v_mov_b32 v{rC1}, {f2u(GC1):#x}")
        I(f"v_mov_b32 v{rC2}, {f2u(GC2):#x}")
        I(f"v_lshrrev_b32 v{ha}, 4, v{vLANE}")
        I(f"v_lshlrev_b32 v{ha}, 4, v{ha}")
        I(f"v_lshlrev_b32 v{ha+1}, 1, v{vLANE}")
        I(f"v_lshlrev_b32 v{ha+2}, 2, v{vLANE}")
        I("s_waitcnt vmcnt(0)")
        I("s_barrier")
        I(f"s_cmp_eq_u32 s{sWAVE}, 5")
        I("s_cbranch_scc1 L_W1r")
        for b_ in HB5:
            for i in range(4):
                I(f"v_mov_b32 v{b_+i}, 0")
        it0(lambda: w2_frags(FR5))
        I("s_branch L_W1t")
        a.label("L_W1r")
        TS(21)
        reduce_read(5, L_PB1)
        for v in range(5):
            I(f"ds_read_b32 v{T+24+v}, v{ha+2} offset:{L_CS2 + v*128}")
        I("s_waitcnt lgkmcnt(5)")
        reduce_sum(5, rTOT)
        stats()
        I("s_waitcnt lgkmcnt(0)")
        it0(lambda: w2_frags(FR5[:4] if y128 else FR5, False))
        I(f"v_add_f32 v{T+24}, v{T+24}, v{T+25}")
        I(f"v_add_f32 v{T+26}, v{T+26}, v{T+27}")
        I(f"v_add_f32 v{T+24}, v{T+24}, v{T+28}")
        I(f"v_add_f32 v{vCS1}, v{T+24}, v{T+26}")
        I(f"v_sub_f32 v{rMEAN}, v{rMEAN}, v{rMB}")
        I(f"v_mul_f32 v{rVAR}, v{rVAR}, v{rR}")
        I(f"v_mul_f32 v{rMEAN}, v{rMEAN}, v{rR}")
        I(f"v_mul_f32 v{rVAR}, v{rVAR}, v{rR}")
        I(f"v_cvt_pk_bf16_f32 v{rT}, v{rMEAN}, v{rVAR}")
        I(f"v_and_b32 v{rU}, 0xffff0000, v{rT}")
        I(f"v_lshlrev_b32 v{rMEAN}, 16, v{rT}")
        I(f"v_add_f32 v{rU}, {f2u(1e-5):#x}, v{rU}")
        I(f"v_cvt_pk_bf16_f32 v{rU}, v{rU}, v{rU}")
        I(f"v_fma_f32 v{rMB}, v{rMEAN}, v{rSD}, v{rMB}")
        I(f"v_and_b32 v{rU}, 0xffff0000, v{rU}")
        I(f"v_sqrt_f32 v{rU}, v{rU}")
        I(f"v_fma_f32 v{rTOT}, -v{rMB}, v{vCS1}, v{rTOT}")
        I(f"v_cvt_pk_bf16_f32 v{rU}, v{rU}, v{rU}")
        I(f"v_mul_f32 v{rTOT}, v{rTOT}, v{rR}")
        I(f"v_and_b32 v{rU}, 0xffff0000, v{rU}")
        I(f"v_rcp_f32 v{rU}, v{rU}")
        I(f"v_mul_f32 v{rTOT}, v{rTOT}, v{rU}")
        I(f"v_cvt_pk_bf16_f32 v{rU}, v{rTOT}, v{rTOT}")
        I(f"v_and_b32 v{rU}, 0xffff0000, v{rU}")
        I(f"v_add_f32 v{rU}, v{rU}, v{vB1}")
        I(f"v_cvt_pk_bf16_f32 v{rU}, v{rU}, v{rU}")
        I(f"v_and_b32 v{rU}, 0xffff0000, v{rU}")
        I(f"v_mul_f32 v{rT}, v{rU}, v{rU}")
        I(f"v_fma_f32 v{rT}, v{rT}, v{rC2}, v{rC1}")
        I(f"v_mul_f32 v{rT}, v{rT}, v{rU}")
        I(f"v_exp_f32 v{rT}, v{rT}")
        I(f"v_add_f32 v{rT}, 1.0, v{rT}")
        I(f"v_rcp_f32 v{rT}, v{rT}")
        I(f"v_mul_f32 v{rU}, v{rU}, v{rT}")
        I(f"v_cvt_pk_bf16_f32 v{rU}, v{rU}, v{rU}")
        setexec(0xFFFFFFFF, 0)
        I(f"ds_write_b16 v{ha+1}, v{rU} offset:{L_H}")
        setexec(0xFFFFFFFF, 0xFFFFFFFF)
        TS(22)
        I("s_waitcnt lgkmcnt(0)")
        a.label("L_W1t")
        w2_tail(FR5, HB5, T + 44)

    if q2 == 2:
        a.label("L_qslow")
        q_masked(lambda r_: f"buffer_load_dwordx4 {vr(r_)}, v{vQR}, {WS}, s{sT2} offen sc1")
        I(f"s_add_u32 s{sSPIN}, s{sSPIN}, 1")
        I("s_waitcnt vmcnt(0)")
        cur = maxtree(T + 50, range(T, T + 16))
        I(f"v_cmp_eq_u32 vcc, -1, v{cur}")
        I("s_cbranch_vccz L_qs2")
        I(f"s_cmp_lt_u32 s{sSPIN}, {spin_limit}")
        I("s_cbranch_scc1 L_qslow")
        a.label("L_qs2")
        for i in range(16, 24):
            I(f"v_mov_b32 v{T+i}, 0")
        I(f"s_mov_b64 s[{sKM}:{sKM+1}], 0")
        I("s_branch L_att")
    a.label("L_next")
    I("s_waitcnt vmcnt(0)")
    I(f"s_add_u32 s{sIT}, s{sIT}, 1")
    I(f"s_add_u32 s{sREG}, s{sREG}, {RS}")
    I(f"s_add_u32 s{sREG2}, s{sREG2}, {RS}")
    I(f"s_cmp_lt_u32 s{sIT}, 2")
    I("s_cbranch_scc1 L_loop")
    I(f"s_or_b32 s{sT0}, s{sROLE}, s{sX}")
    I(f"s_cmp_eq_u32 s{sT0}, 0")
    I("s_cbranch_scc0 L_fin")
    I(f"s_cmp_eq_u32 s{sWAVE}, 6")
    I("s_cbranch_scc1 L_loop")
    a.label("L_fin")
    if dbgt:
        srd(TA, 54, 256)
        I(f"v_add_u32 v{T}, 2, v{vLANE}")
        I(f"v_add_u32 v{T+1}, 4, v{vLANE}")
        I(f"v_cmp_gt_u32 vcc, 6, v{vLANE}")
        I(f"v_cndmask_b32 v{T}, v{T+1}, v{T}, vcc")
        I(f"v_lshlrev_b32 v{T}, 2, v{T}")
        setexec(0xFFF, 0)
        I(f"buffer_atomic_umax v{vTST}, v{T}, {TA}, 0 offen sc1")
        setexec(0xFFFFFFFF, 0xFFFFFFFF)
    if instr:
        TS(30)
        I(f"s_lshl_b32 s{sT0}, s2, 3")
        I(f"s_add_u32 s{sT0}, s{sT0}, s{sWAVE}")
        I(f"s_lshl_b32 s{sT0}, s{sT0}, 9")
        I(f"s_add_u32 s{sT0}, s{sT0}, {DBGOFF}")
        I(f"v_lshlrev_b32 v{T}, 3, v{vLANE}")
        I(f"buffer_store_dwordx2 v[{vTSI}:{vTST}], v{T}, {WS}, s{sT0} offen")
    a.label("L_end")
    I("s_endpgm")
    a.raw('.section .rodata,"a"\n.p2align 6')
    a.raw(f".amdhsa_kernel {KNAME}")
    a.raw("  .amdhsa_next_free_vgpr 256\n  .amdhsa_next_free_sgpr 102\n  .amdhsa_accum_offset 256\n"
          "  .amdhsa_group_segment_fixed_size 0\n  .amdhsa_kernarg_size 104\n  .amdhsa_user_sgpr_count 2\n"
          "  .amdhsa_user_sgpr_kernarg_segment_ptr 1\n  .amdhsa_system_sgpr_workgroup_id_x 1")
    a.raw(".end_amdhsa_kernel")
    open(fn, "w").write(a.text())
    return a.ninstr


if __name__ == "__main__":
    import argparse
    p = argparse.ArgumentParser()
    p.add_argument("-o", default="k.s")
    p.add_argument("--instr", action="store_true")
    p.add_argument("--kv", default="nt")
    p.add_argument("--w", default="")
    p.add_argument("--y16", action="store_true")
    p.add_argument("--nomask", action="store_true")
    p.add_argument("--nodual", action="store_true")
    p.add_argument("--n0", type=int, default=4)
    p.add_argument("--late", type=lambda x: int(x, 0), default=0x5f)
    p.add_argument("--r", default="")
    p.add_argument("--ncal", type=int, default=4)
    p.add_argument("--nw0", type=int, default=8)
    p.add_argument("--qk", type=int, default=16)
    p.add_argument("--qp", type=int, default=3)
    p.add_argument("--gate", type=int, default=4)
    p.add_argument("--calr", type=int, default=28)
    p.add_argument("--esy", type=int, default=1)
    p.add_argument("--rmap", type=int, default=0)
    p.add_argument("--wk", type=int, default=0)
    p.add_argument("--th1", type=int, default=0)
    p.add_argument("--yl", type=int, default=0)
    p.add_argument("--y64", type=int, default=0)
    p.add_argument("--zx", type=int, default=64)
    p.add_argument("--zfl", default="sc1")
    p.add_argument("--yfl", default="sc1")
    p.add_argument("--pl", type=int, default=0)
    p.add_argument("--g1", type=int, default=0)
    p.add_argument("--pth", type=int, default=0)
    p.add_argument("--g2", type=int, default=0)
    p.add_argument("--g3", type=int, default=0)
    p.add_argument("--near", type=int, default=-1)
    p.add_argument("--hb", default="0,1")
    p.add_argument("--zq", type=int, default=0)
    p.add_argument("--sm", type=int, default=0)
    p.add_argument("--kl", type=int, default=0)
    p.add_argument("--m2", type=int, default=0)
    p.add_argument("--q2", type=int, default=0)
    p.add_argument("--pk3", type=int, default=1)
    p.add_argument("--qb", type=int, default=0)
    p.add_argument("--the", type=int, default=0)
    p.add_argument("--ew", type=int, default=0)
    p.add_argument("--eg", type=int, default=8)
    p.add_argument("--pi", type=int, default=0)
    p.add_argument("--wb", type=int, default=0)
    p.add_argument("--wd", type=int, default=0)
    p.add_argument("--pw", type=int, default=12)
    p.add_argument("--ps", type=int, default=0)
    p.add_argument("--pf", type=int, default=0)
    p.add_argument("--h0", type=int, default=0)
    p.add_argument("--pfr", type=int, default=1)
    p.add_argument("--dd", type=int, default=0)
    p.add_argument("--p5", type=int, default=0)
    p.add_argument("--pipe", type=int, default=0)
    p.add_argument("--ap", type=int, default=0)
    p.add_argument("--cw", type=int, default=0)
    p.add_argument("--emd", type=int, default=0)
    p.add_argument("--g8", type=int, default=8)
    p.add_argument("--emw", type=int, default=4)
    p.add_argument("--vx", type=int, default=0)
    p.add_argument("--kvp", default="12,13,14,15,16,17,18,19")
    p.add_argument("--fakeq", type=int, default=0)
    p.add_argument("--pdep", type=int, default=1)
    p.add_argument("--pdl", type=int, default=2)
    p.add_argument("--pmask", type=int, default=31)
    p.add_argument("--xl", type=lambda x: int(x, 0), default=0)
    p.add_argument("--dyn", type=int, default=1)
    p.add_argument("--tw", type=int, default=6)
    p.add_argument("--tp", type=int, default=16)
    p.add_argument("--th2", type=int, default=0)
    p.add_argument("--rot2", type=int, default=2)
    p.add_argument("--pt", type=int, default=0)
    p.add_argument("--ptr", type=int, default=32)
    p.add_argument("--dbgt", default=None)
    p.add_argument("--sp1", type=int, default=1)
    p.add_argument("--norot", action="store_true")
    p.add_argument("--syfl", default="")
    p.add_argument("--ts", default=None)
    p.add_argument("--noprio", action="store_true")
    args = p.parse_args()
    ts = None if args.ts is None else set(int(x) for x in args.ts.split(","))
    n = gen(args.o, instr=args.instr, kvflags=args.kv, wflags=args.w, y16=args.y16,
            masked_=not args.nomask, tsset=ts, n0=args.n0, late=args.late, rflags=args.r, ncal=args.ncal, dual=not args.nodual, prio=not args.noprio,
            nw0=args.nw0, qk=args.qk, rot=not args.norot, syfl=args.syfl, qp=args.qp, gate=args.gate, calr=args.calr, esy=args.esy, rmap=args.rmap, wk=args.wk, th1=args.th1, yl=args.yl, y64=args.y64, zx=args.zx, zfl=args.zfl, yfl=args.yfl, pl=args.pl, g1=args.g1, pth=args.pth, g2=args.g2, g3=args.g3, near=args.near, zq=args.zq, sm=args.sm, kl=args.kl, m2=args.m2, q2=args.q2, pipe=args.pipe, ap=args.ap, pk3=args.pk3, qb=args.qb, the=args.the, ew=args.ew, eg=args.eg, pi=args.pi, wb=args.wb, wd=args.wd, pw=args.pw, pst=args.ps, pf=args.pf, h0=args.h0, pfr=args.pfr, dd=args.dd, p5=args.p5, cw=args.cw, emd=args.emd, g8=args.g8, emw=args.emw, kvp=tuple(sum(1 << int(y) for y in x.split('+')) if i < 2 else int(x) for i, x in enumerate(args.kvp.split(','))), vx=args.vx, fakeq=args.fakeq, hb=tuple(int(x) for x in args.hb.split(',')), pdep=args.pdep, pdl=args.pdl, pmask=args.pmask, xl=args.xl, dyn=args.dyn, tw=args.tw, tp=args.tp, th2=args.th2, rot2=args.rot2, pt=args.pt, ptr_=args.ptr, dbgt=[tuple(int(y) for y in x.split('.')) for x in args.dbgt.split(',')] if args.dbgt else None, sp1=args.sp1)
    print("instrs:", n)
```

```python
import sys, struct, math
from asmlib import Asm

KNAME = "interleave_layers__gqa_block_cached__mixer_channel_mlp__decode_kernel"

RS = 0x60000
POFF, ZOFF, QOFF, XOFF, MLOFF, YOFF = 0x0, 0x10000, 0x20000, 0x1c000, 0x58000, 0x30000
CALOFF = 0xC0000
CP = 0x2000
ZR, ZX = 512, 64
DBGOFF = 0x100000
WS_SIZE = 0x200000
BIG = 0x40000000
PP = 544
L_PB1, L_PB2, L_CS1, L_CS2, L_QB, L_ML, L_FLAG, L_DUM, L_PER, L_ROLE = (
    0, 2816, 7168, 7808, 8448, 8704, 8768, 8896, 10240, 51200)
LDS_TOTAL = 163840
NPER, NREST = 10, 26
L_RING, RSL = 51200, 36
L_W2, L_H, L_O = 92160, 8784, 133120
LEAD_R = 0

def f2u(x):
    return struct.unpack("<I", struct.pack("<f", x))[0]

L2E = f2u(1.4426950408889634)
SCALE = f2u(128 ** -0.5)
GC1 = -2.0 * 1.4426950408889634 * math.sqrt(2.0 / math.pi)
GC2 = GC1 * 0.044715

sWAVE, sX, sR, sIT, sREG = 3, 4, 5, 6, 7
K_SRD, V_SRD, WS, TA, TB, OUTS = "s[8:11]", "s[12:15]", "s[16:19]", "s[20:23]", "s[24:27]", "s[28:31]"
sROLE, sPURE, sSPIN = 58, 59, 60
sT0, sT1, sT2, sT3, sSLOT = 61, 62, 63, 72, 73
sF = 64
sXCC, sTB, sNT, sTSI = 74, 75, 76, 77
sL2E, sM = 80, 81
sRB, sRSTEP, sRN = 82, 83, 84
sKV = 85
sNEAR, sREG2, sVOTE = 78, 79, 81
sLATE, sQS, sKM, sYM = 100, 101, 42, 98
sXW = 95
vLANE = 0
vGO, vXO, vPW, vSW, vQR, vOW, vMLW = 1, 2, 7, 8, 9, 10, 11
vPQ = 3
vA0, vA1, vA2, vA3 = 12, 13, 14, 15
vRDMA = 17
vTSI, vTST = 18, 19
vSEL = 20
vBQ = 28
vRB = 44
vFD = 72
T = 76
vK, vV = 128, 192
vRR, vQP, vQG, vCSQ, vCS1, vB1, vRP = 1, 2, 3, 4, 5, 6, 8
vXF = 72
vXFA = 16
vCR, vCML, vCP, vCPM, vQG7, vTK = 1, 2, 3, 4, 5, 6


def vr(a, n=4):
    return f"v[{a}:{a+n-1}]"


def gen(fn, instr=False, kvflags="nt", wflags="", rflags="", spin_limit=400000, tsset=None,
        y16=False, masked_=True, dbgt=False, n0=4, late=0x78, dual=True, prio=True, ncal=4, nw0=8, qk=16, rot=True,
        syfl='', qp=3, gate=4, sp1=1, pt=0, ptr_=32, rmap=0, wk=0, calr=28, esy=1, th1=0, th2=0, rot2=2, dyn=1, tw=6, tp=16, yl=0, y64=0, zx=64, zfl='sc1', yfl='sc1', pl=0, xl=0, pdep=1, pdl=2, pmask=31, g1=0, pth=0, g2=0, g3=0, near=-1, hb=(0, 1), fakeq=0, kvp=(4096, 8192, 14, 15, 16, 17, 18, 19), vx=0, emd=0, g8=8, emw=4, cw=0, sm=0, zq=0, kl=0, m2=0, q2=0, pipe=0, ap=0, pk3=1, qb=0, p5=0, dd=0, pf=0, h0=0, pfr=1, pst=0, pw=12, wd=0, wb=0, pi=0, ew=0, eg=8, the=0, w128=0, zl=0, ld=1, ldl=2):
    assert not late & 0x80
    ZX = zx; ZR = 8 * zx; ZB = 4 if zx == 64 else 3
    y128 = y64 == 2
    HB5 = [28, 32, 36, 40, 64]
    a = Asm()
    a.pipe = bool(pipe)
    I = a.I
    a.raw(f"; @launch grid=(256,1,1) block=(512,1,1) lds={LDS_TOTAL}")
    a.raw('.amdgcn_target "amdgcn-amd-amdhsa--gfx950"')
    a.raw(".text")
    a.raw(f".globl {KNAME}\n.p2align 8\n.type {KNAME},@function\n{KNAME}:")

    def TS(k):
        if dbgt:
            for j, (kk, it, *mn) in enumerate(dbgt):
                if kk == k:
                    l = a.newlab("Ld")
                    I(f"s_cmp_eq_u32 s{sIT}, {it}")
                    I(f"s_cbranch_scc0 {l}")
                    I("s_memrealtime s[0:1]")
                    I("s_waitcnt lgkmcnt(0)")
                    if mn: I("s_not_b32 s0, s0")
                    I(f"v_writelane_b32 v{vTST}, s0, {j + 2}")
                    a.label(l)
            return
        if not instr or (tsset is not None and k not in tsset and k not in (0, 30)):
            return
        I("s_memrealtime s[0:1]")
        I("s_waitcnt lgkmcnt(0)")
        I(f"v_writelane_b32 v{vTSI}, {k}, s{sTSI}")
        I(f"s_mov_b32 m0, s{sTSI}")
        I(f"v_writelane_b32 v{vTST}, s0, m0")
        I(f"s_add_u32 s{sTSI}, s{sTSI}, 1")

    def srd(dst, ptr, size):
        d = int(dst[2:].split(":")[0])
        I(f"s_mov_b32 s{d}, s{ptr}")
        I(f"s_mov_b32 s{d+1}, s{ptr+1}")
        I(f"s_mov_b32 s{d+2}, {size:#x}")
        I(f"s_mov_b32 s{d+3}, 0x20000")

    def setexec(lo, hi):
        if lo == 0xFFFFFFFF and hi == 0xFFFFFFFF:
            I("s_mov_b64 exec, -1")
        else:
            I(f"s_mov_b32 exec_lo, {lo:#x}")
            I(f"s_mov_b32 exec_hi, {hi:#x}")

    def maxtree(tmp, rs):
        rs = list(rs)
        if len(rs) == 1:
            return rs[0]
        cur = None
        while rs:
            if cur is None:
                if len(rs) >= 3:
                    I(f"v_max3_u32 v{tmp}, v{rs[0]}, v{rs[1]}, v{rs[2]}"); rs = rs[3:]
                else:
                    I(f"v_max_u32 v{tmp}, v{rs[0]}, v{rs[1]}"); rs = rs[2:]
                cur = tmp
            elif len(rs) >= 2:
                I(f"v_max3_u32 v{tmp}, v{tmp}, v{rs[0]}, v{rs[1]}"); rs = rs[2:]
            else:
                I(f"v_max_u32 v{tmp}, v{tmp}, v{rs[0]}"); rs = rs[1:]
        return cur

    def poll(loads, regs, ex=(0xFFFFFFFF, 0xFFFFFFFF), groups=None, simple=False, hop=0):
        lab = a.newlab("Lp"); done = a.newlab("Lpd")
        tmp = T + 50
        masked = masked_ and not simple
        if not masked:
            a.label(lab)
        dep = pdep if hop & pmask else 1
        for l in loads:
            I(l)
        for _ in range(dep - 1):
            for _ in range(pdl): I("s_nop 15")
            for l in loads:
                I(l)
        if masked:
            a.label(lab)
        I(f"s_add_u32 s{sSPIN}, s{sSPIN}, 1")
        I(f"s_waitcnt vmcnt({len(loads) * (dep - 1)})")
        cur = maxtree(tmp, regs)
        I(f"v_cmp_eq_u32 vcc, -1, v{cur}")
        I(f"s_cbranch_vccz {done}")
        if masked:
            if groups is None or len(loads) == 1:
                I("s_mov_b64 exec, vcc")
                for l in loads:
                    I(l)
            else:
                for j, gr in enumerate(groups):
                    cur = maxtree(tmp + 1 - (j & 1), gr)
                    I(f"v_cmp_eq_u32 s[{86+2*j}:{87+2*j}], -1, v{cur}")
                for j, l in enumerate(loads):
                    I(f"s_mov_b64 exec, s[{86+2*j}:{87+2*j}]")
                    I(l)
            setexec(*ex)
        I(f"s_cmp_lt_u32 s{sSPIN}, {spin_limit}")
        I(f"s_cbranch_scc1 {lab}")
        if masked:
            I("s_waitcnt vmcnt(0)")
        a.label(done)

    def light(load, reg, ex=None):
        lab = a.newlab("Ll"); done = a.newlab("Lld")
        if ex: setexec(*ex)
        if ld > 1:
            I(f"v_mov_b32 v{reg}, -1")
            for _ in range(ld - 1):
                I(load)
                for _ in range(ldl): I("s_nop 15")
            a.label(lab)
            I(load)
            I(f"s_add_u32 s{sSPIN}, s{sSPIN}, 1")
            I(f"s_waitcnt vmcnt({ld - 1})")
            I(f"v_cmp_ne_u32 vcc, -1, v{reg}")
            I(f"s_cbranch_vccnz {done}")
            I(f"s_cmp_lt_u32 s{sSPIN}, {spin_limit}")
            I(f"s_cbranch_scc1 {lab}")
            a.label(done)
            if ex: setexec(0xFFFFFFFF, 0xFFFFFFFF)
            return
        a.label(lab)
        I(load)
        I(f"s_add_u32 s{sSPIN}, s{sSPIN}, 1")
        I("s_waitcnt vmcnt(0)")
        I(f"v_cmp_ne_u32 vcc, -1, v{reg}")
        I(f"s_cbranch_vccnz {done}")
        I(f"s_cmp_lt_u32 s{sSPIN}, {spin_limit}")
        I(f"s_cbranch_scc1 {lab}")
        a.label(done)
        if ex: setexec(0xFFFFFFFF, 0xFFFFFFFF)

    def lstore(ins, far=False):
        if far and near >= 0:
            for x in ins: I(x + " sc1")
            return
        l1 = a.newlab("Ls"); l2 = a.newlab("Lsd")
        I(f"s_cmp_eq_u32 s{sPURE}, 0")
        I(f"s_cbranch_scc1 {l1}")
        for x in ins: I(x)
        I(f"s_branch {l2}")
        a.label(l1)
        for x in ins: I(x + " sc1")
        a.label(l2)

    def unpack(lo, hi, src):
        I(f"v_lshlrev_b32 v{lo}, 16, v{src}")
        I(f"v_and_b32 v{hi}, 0xffff0000, v{src}")

    def hperm(dst, src, tmp):
        pos = list(hb) + [b for b in range(5) if b not in hb]
        if pos == [0, 1, 2, 3, 4]:
            if dst != src: I(f"s_mov_b32 s{dst}, s{src}")
            return
        I(f"s_mov_b32 s96, 0")
        for i in range(5):
            I(f"s_bfe_u32 s{tmp}, s{src}, {i | (1 << 16):#x}")
            I(f"s_lshl_b32 s{tmp}, s{tmp}, {pos[i]}")
            I(f"s_or_b32 s96, s96, s{tmp}")
        I(f"s_mov_b32 s{dst}, s96")

    XA = T + 32
    ONES = T + 28

    if instr: I("s_memrealtime s[98:99]")
    I("s_cmp_ge_u32 s2, 256")
    I("s_cbranch_scc1 L_end")
    I("s_load_dwordx16 s[32:47], s[0:1], 0")
    if cw:
        I("s_getpc_b64 s[4:5]")
        a.label("L_cs")
        I(f"v_lshlrev_b32 v1, {cw}, v0")
        I("v_min_u32 v1, L_end-L_cs, v1")
        I("global_load_dword v255, v1, s[4:5]")
    I("s_load_dwordx8 s[48:55], s[0:1], 64")
    I("s_load_dwordx2 s[56:57], s[0:1], 96")
    if dbgt: I("s_memrealtime s[96:97]")
    I("v_lshrrev_b32 v1, 6, v0")
    I(f"v_and_b32 v{vLANE}, 63, v0")
    I(f"v_readfirstlane_b32 s{sWAVE}, v1")
    I(f"s_and_b32 s{sX}, s2, 7")
    I(f"s_lshr_b32 s{sR}, s2, 3")
    I(f"s_lshl_b32 s{sSLOT}, s{sX}, 5")
    I(f"s_add_u32 s{sSLOT}, s{sSLOT}, s{sR}")
    I(f"s_mov_b32 s{sXW}, s{sX}")
    if near >= 0:
        I(f"s_and_b32 s{sSLOT}, s{sX}, 3")
        I(f"s_lshl_b32 s{sXW}, s{sSLOT}, 1")
        I(f"s_lshl_b32 s{sSLOT}, s{sSLOT}, 6")
        I(f"s_lshr_b32 s{sT0}, s{sR}, 2")
        I(f"s_lshl_b32 s{sT0}, s{sT0}, 3")
        I(f"s_add_u32 s{sSLOT}, s{sSLOT}, s{sT0}")
        I(f"s_and_b32 s{sT0}, s{sX}, 4")
        I(f"s_add_u32 s{sSLOT}, s{sSLOT}, s{sT0}")
        I(f"s_lshr_b32 s{sT0}, s{sT0}, 2")
        I(f"s_add_u32 s{sXW}, s{sXW}, s{sT0}")
        I(f"s_and_b32 s{sT0}, s{sR}, 3")
        I(f"s_add_u32 s{sSLOT}, s{sSLOT}, s{sT0}")
    if rmap:
        I(f"s_mov_b32 s{sT0}, -5")
        I(f"s_cmp_lt_u32 s{sR}, 28")
        I(f"s_cselect_b32 s{sT0}, -8, s{sT0}")
        I(f"s_cmp_lt_u32 s{sR}, 16")
        I(f"s_cselect_b32 s{sT0}, 16, s{sT0}")
        I(f"s_cmp_lt_u32 s{sR}, 11")
        I(f"s_cselect_b32 s{sT0}, 12, s{sT0}")
        I(f"s_cmp_lt_u32 s{sR}, 8")
        I(f"s_cselect_b32 s{sT0}, 0, s{sT0}")
        I(f"s_add_u32 s{sR}, s{sR}, s{sT0}")
    g, n, q4, c4, t0, t1, t2, t3 = T, T+1, T+2, T+3, T+4, T+5, T+6, T+7
    aK = T + 48
    vAT = T + 44
    I(f"v_lshrrev_b32 v{g}, 4, v{vLANE}")
    I(f"v_and_b32 v{n}, 15, v{vLANE}")
    I(f"v_bfe_u32 v{q4}, v{vLANE}, 2, 2")
    I(f"v_and_b32 v{c4}, 3, v{vLANE}")
    if sm and kl == 1:
        I(f"v_bfe_u32 v{aK}, v{vLANE}, 1, 3")
        I(f"v_lshlrev_b32 v{aK}, 8, v{aK}")
        I(f"v_lshl_add_u32 v{aK}, v{g}, 5, v{aK}")
        I(f"v_and_b32 v{t0}, 1, v{vLANE}")
        I(f"v_lshl_add_u32 v{aK}, v{t0}, 4, v{aK}")
    elif sm and kl != 2:
        I(f"v_bfe_u32 v{aK}, v{vLANE}, 1, 2")
        I(f"v_lshlrev_b32 v{aK}, 12, v{aK}")
        I(f"v_lshl_add_u32 v{aK}, v{g}, 5, v{aK}")
        I(f"v_and_b32 v{t0}, 8, v{vLANE}")
        I(f"v_lshl_add_u32 v{aK}, v{t0}, 5, v{aK}")
        I(f"v_and_b32 v{t0}, 1, v{vLANE}")
        I(f"v_lshl_add_u32 v{aK}, v{t0}, 4, v{aK}")
    else:
        I(f"v_lshlrev_b32 v{aK}, 8, v{q4}")
        I(f"v_lshl_add_u32 v{aK}, v{g}, 6, v{aK}")
        I(f"v_lshl_add_u32 v{aK}, v{c4}, 4, v{aK}")
    if not q2:
        I(f"v_mul_u32_u24 v{vXO}, 320, v{q4}")
        I(f"v_lshl_add_u32 v{vXO}, v{g}, 4, v{vXO}")
        I(f"s_lshl_b32 s{sT0}, s{sWAVE}, 6")
        I(f"v_add_u32 v{vXO}, s{sT0}, v{vXO}")
    if near >= 0:
        I(f"s_lshr_b32 s{sKV}, s{sSLOT}, 3")
        I(f"s_lshl_b32 s{sKV}, s{sKV}, 20")
        I(f"s_and_b32 s{sT0}, s{sSLOT}, 3")
        I(f"s_lshl_b32 s{sT0}, s{sT0}, 18")
        I(f"s_add_u32 s{sKV}, s{sKV}, s{sT0}")
        I(f"s_lshl_b32 s{sT0}, s{sWAVE}, 15")
        I(f"s_add_u32 s{sKV}, s{sKV}, s{sT0}")
        I(f"s_lshr_b32 s{sT0}, s{sSLOT}, 2")
        I(f"s_lshr_b32 s{sT1}, s{sSLOT}, 4")
        I(f"s_xor_b32 s{sT0}, s{sT0}, s{sT1}")
        I(f"s_xor_b32 s{sT0}, s{sT0}, {near}")
        I(f"s_and_b32 s{sT0}, s{sT0}, 1")
        I(f"s_lshl_b32 s{sT0}, s{sT0}, 13")
        I(f"s_add_u32 s{sKV}, s{sKV}, s{sT0}")
    else:
        I(f"s_lshr_b32 s{sKV}, s{sSLOT}, 3")
        hperm(97, sKV, sT0)
        I(f"s_lshl_b32 s{sKV}, s97, 20")
        for src, ps in ((sWAVE, kvp[2:5]), (sSLOT, kvp[5:8])):
            i = 0
            while i < 3:
                n_ = 1
                while i + n_ < 3 and ps[i + n_] == ps[i] + n_: n_ += 1
                I(f"s_bfe_u32 s{sT0}, s{src}, {i | (n_ << 16):#x}")
                I(f"s_lshl_b32 s{sT0}, s{sT0}, {ps[i]}")
                I(f"s_add_u32 s{sKV}, s{sKV}, s{sT0}")
                i += n_
    KVO = [0, 4096, 16384, 20480] if near >= 0 else [(t & 1) * kvp[0] ^ (t >> 1) * kvp[1] for t in range(4)]
    I(f"s_lshr_b32 s{sQS}, s{sSLOT}, 3")
    I(f"s_lshl_b32 s{sQS}, s{sQS}, 11")
    if q2:
        I(f"s_lshl_b32 s{sQS}, s{sSLOT}, 8")
    else:
        I(f"s_and_b32 s{sT1}, s{sSLOT}, 3")
        I(f"s_lshl_b32 s{sT0}, s{sT1}, 9")
        I(f"s_add_u32 s{sQS}, s{sQS}, s{sT0}")
        I(f"s_and_b32 s{sT0}, s{sSLOT}, 4")
        I(f"s_lshl_b32 s{sT0}, s{sT0}, 6")
        I(f"s_add_u32 s{sQS}, s{sQS}, s{sT0}")
    I(f"s_add_u32 s{sQS}, s{sQS}, {QOFF}")
    vW0, vW1, ta0, ta1 = T + 44, T + 45, T + 42, T + 43
    XQ, ACC, BUF = 28, 48, 80
    sBa, sEa, sPER, sRING, sSO, sMB, sRS_ = 86, 87, 90, 91, 92, 93, 94
    xq = T + 12
    I(f"s_and_b32 s{sT0}, s{sSLOT}, 3")
    I(f"s_mul_i32 s{sT0}, s{sT0}, 5")
    I(f"s_lshr_b32 s{sT1}, s{sSLOT}, 1")
    I(f"s_xor_b32 s{sT1}, s{sT1}, s{sWAVE}")
    I(f"s_bitcmp1_b32 s{sT1}, 1")
    I(f"s_cselect_b32 s{sT1}, {rot2}, 0")
    I(f"s_add_u32 s{sT1}, s{sT0}, s{sT1}")
    I(f"s_lshr_b32 s{sT0}, s{sSLOT}, 3")
    if near < 0: I(f"s_mov_b32 s{sT0}, s97")
    I(f"s_lshl_b32 s{sT0}, s{sT0}, 8")
    US = 17 if w128 else 18
    if w128:
        I(f"s_and_b32 s{sT2}, s{sWAVE}, 1")
        I(f"s_lshl_b32 s{sT2}, s{sT2}, 7")
        I(f"s_add_u32 s{sT0}, s{sT0}, s{sT2}")
        I(f"s_lshr_b32 s{sT2}, s{sWAVE}, 1")
        I(f"s_mul_i32 s{sT2}, s{sT2}, {320 * 8192}")
    else:
        I(f"s_lshl_b32 s{sT2}, s{sWAVE}, 6")
    I(f"s_add_u32 s{sBa}, s{sT0}, s{sT2}")
    I(f"s_add_u32 s{sEa}, s{sBa}, {20 << US:#x}")
    I(f"s_lshl_b32 s{sT2}, s{sT1}, {US}")
    I(f"s_add_u32 s{sSO}, s{sBa}, s{sT2}")
    if q2:
        I(f"s_bfe_u32 s{sT2}, s{sSLOT}, 0x20001")
        I(f"s_cmp_gt_u32 s{sWAVE}, s{sT2}")
        I(f"s_subb_u32 s{sPER}, s{sWAVE}, 0")
        I(f"s_mul_i32 s{sPER}, s{sPER}, {RSL * 1024}")
        I(f"s_add_u32 s{sPER}, s{sPER}, {L_RING}")
        I(f"s_sub_u32 s{sRING}, s{sPER}, {RSL * 1024}")
        I(f"s_cmp_eq_u32 s{sWAVE}, s{sT2}")
        I(f"s_cselect_b32 s{sPER}, {L_PER}, s{sPER}")
        I(f"s_cselect_b32 s{sRING}, {L_PER}, s{sRING}")
    else:
        I(f"s_mul_i32 s{sPER}, s{sWAVE}, {NPER * 1024}")
        I(f"s_add_u32 s{sPER}, s{sPER}, {L_PER}")
        I(f"s_mul_i32 s{sRING}, s{sWAVE}, {NREST * 1024}")
        I(f"s_add_u32 s{sRING}, s{sRING}, {L_RING}")
    I(f"v_add_u32 v{t2}, s{sT1}, v{q4}")
    I(f"v_lshlrev_b32 v{t2}, 6, v{t2}")
    I(f"v_lshl_add_u32 v{t2}, v{g}, 4, v{t2}")
    for j in range(5):
        I(f"v_add_u32 v{xq+j}, {256*j}, v{t2}")
        I(f"v_subrev_u32 v{t3}, {1280 - 256*j}, v{t2}")
        I(f"v_min_u32 v{xq+j}, v{xq+j}, v{t3}")
    I(f"v_lshrrev_b32 v{vW0}, 2, v{vLANE}")
    I(f"v_lshlrev_b32 v{vW0}, 13, v{vW0}")
    I(f"v_lshrrev_b32 v{t3}, 4, v{vLANE}")
    I(f"v_and_b32 v{t3}, 2, v{t3}")
    I(f"v_xor_b32 v{t3}, v{t3}, v{c4}")
    I(f"v_lshl_add_u32 v{vW0}, v{t3}, 4, v{vW0}")
    if w128:
        I(f"v_lshrrev_b32 v{vW0}, 3, v{vLANE}")
        I(f"v_lshlrev_b32 v{vW0}, 13, v{vW0}")
        I(f"v_and_b32 v{t3}, 7, v{vLANE}")
        I(f"v_lshl_add_u32 v{vW0}, v{t3}, 4, v{vW0}")
    I(f"v_add_u32 v{vW1}, {1 << (US - 1):#x}, v{vW0}")
    I(f"v_lshlrev_b32 v{t0}, 4, v{vLANE}")
    cl = T + 8
    for i in range(4):
        I(f"v_mov_b32 v{cl+i}, -1")
    I(f"s_mov_b32 s{sTSI}, 0")
    if instr:
        I(f"v_mov_b32 v{vTSI}, -1")
        I(f"v_mov_b32 v{vTST}, 0")
    I(f"s_getreg_b32 s{sXCC}, hwreg(HW_REG_XCC_ID)")
    I(f"s_and_b32 s{sXCC}, s{sXCC}, 15")
    I(f"s_mul_i32 s{sT3}, s2, 3072")
    if instr: I("s_memrealtime s[0:1]")
    I("s_waitcnt lgkmcnt(0)")
    if instr:
        I(f"v_writelane_b32 v{vTSI}, 41, 0")
        I(f"v_writelane_b32 v{vTST}, s98, 0")
        I(f"v_writelane_b32 v{vTSI}, 42, 1")
        I(f"v_writelane_b32 v{vTST}, s0, 1")
        I(f"s_mov_b32 s{sTSI}, 2")
        TS(43)
    srd(WS, 56, WS_SIZE)
    srd(K_SRD, 34, 32 << 20)
    if dbgt:
        I(f"v_mov_b32 v{vTST}, 0")
        I(f"v_writelane_b32 v{vTST}, s96, 1")
        I("s_not_b32 s96, s96")
        I(f"v_writelane_b32 v{vTST}, s96, 0")
        I(f"s_mov_b32 s{sIT}, 0")
        TS(40)
    srd(TA, 38, 640 * 8192)
    srd(TB, 32, 1280)

    def k_issue(lo, hi, hook=None):
        for ki in range(lo, hi):
            if hook: hook(ki)
            if sm and kl == 1:
                if ki % 4 == 0 or ki == lo:
                    I(f"s_xor_b32 s{sT0}, s{sKV}, {KVO[ki//4]}")
                I(f"buffer_load_dwordx4 {vr(vK+4*ki)}, v{aK}, {K_SRD}, s{sT0} offen offset:{((ki>>1)&1)*2048+(ki&1)*128} {kvflags}")
                continue
            if sm and kl != 2:
                I(f"buffer_load_dwordx4 {vr(vK+4*ki)}, v{aK}, {K_SRD}, s{sKV} offen offset:{(ki>>1)*512+(ki&1)*128} {kvflags}")
                continue
            if ki % 4 == 0 or ki == lo:
                I(f"s_xor_b32 s{sT0}, s{sKV}, {KVO[ki//4]}")
            I(f"buffer_load_dwordx4 {vr(vK+4*ki)}, v{aK}, {K_SRD}, s{sT0} offen offset:{(ki%4)*1024} {kvflags}")

    I(f"s_cmp_eq_u32 s{sWAVE}, 6")
    I("s_cbranch_scc0 L_nclr")
    I(f"buffer_store_dwordx4 {vr(cl)}, v{t0}, {WS}, s{sT3} offen sc1")
    I(f"buffer_store_dwordx4 {vr(cl)}, v{t0}, {WS}, s{sT3} offen offset:1024 sc1")
    I(f"buffer_store_dwordx4 {vr(cl)}, v{t0}, {WS}, s{sT3} offen offset:2048 sc1")
    TS(0)
    I("s_branch L_early")
    a.label("L_nclr")
    I(f"s_cmp_ge_u32 s{sWAVE}, 4")
    I("s_cbranch_scc1 L_nwq")
    if prio: I(f"s_setprio {qp}")
    nis = [0]; nk = [0]; wpos = {}
    def slot(p):
        if q2: return (sPER if p < RSL else sRING), p * 1024
        if p < NPER: return sPER, p * 1024
        return sRING, ((p - NPER) % NREST) * 1024
    def w_issue(lo, hi):
        for p in range(lo, hi):
            u, h = p >> 1, p & 1
            b_, o_ = slot(p)
            I(f"s_add_u32 m0, s{b_}, {o_}")
            if fakeq and p == fakeq:
                I(f"v_mov_b32 v{vW0}, {BIG:#x}")
                I(f"v_mov_b32 v{vW1}, {BIG:#x}")
            I(f"buffer_load_dwordx4 v{(vW0, vW1)[h]}, {TA}, s{sSO} offen {wflags} lds")
            wpos[p] = nis[0]
            nis[0] += 1
            if h and p < 39:
                I(f"s_add_u32 s{sSO}, s{sSO}, {1 << US:#x}")
                I(f"s_cmp_eq_u32 s{sSO}, s{sEa}")
                I(f"s_cselect_b32 s{sSO}, s{sBa}, s{sSO}")
    for j in range(5):
        I(f"buffer_load_dwordx4 {vr(XQ+4*j)}, v{xq+j}, {TB}, 0 offen")
        nis[0] += 1
    w_issue(0, nw0)
    TS(0)
    I("s_branch L_early")
    a.label("L_nwq")
    if pt:
        k_issue(0, 1)
        I(f"v_lshlrev_b32 v{t2}, 21, v{vLANE}")
        setexec(0x7, 0)
        I(f"s_cmp_eq_u32 s{sWAVE}, 4")
        I("s_cbranch_scc0 L_pt5")
        srd(TA, 36, 32 << 20)
        setexec(1, 0)
        I(f"buffer_load_dword v{vV}, v{t2}, {TA}, s{sKV} offen")
        I("s_branch L_ptd")
        a.label("L_pt5")
        I(f"s_cmp_lt_u32 s{sR}, {ptr_}")
        I("s_cbranch_scc0 L_ptd")
        I(f"s_cmp_eq_u32 s{sWAVE}, 5")
        I("s_cbranch_scc0 L_pt7")
        for ptr, size in ((40, 4096 * 1280), (44, 640 * 3456), (48, 1728 * 1280)):
            srd(TA, ptr, size)
            I(f"buffer_load_dword v{vV}, v{t2}, {TA}, 0 offen")
        I("s_branch L_ptd")
        a.label("L_pt7")
        for ptr, size in ((52, 1280), (50, 1280), (46, 3456)) + (((54, 256),) if pt > 1 else ()):
            srd(TA, ptr, size)
            I(f"buffer_load_dword v{vV}, v{t2}, {TA}, 0 offen")
        a.label("L_ptd")
        setexec(0xFFFFFFFF, 0xFFFFFFFF)
        k_issue(1, n0)
    else:
        k_issue(0, n0)
    TS(0)
    a.label("L_early")
    srd(V_SRD, 36, 32 << 20)
    srd(OUTS, 52, 1280)
    I(f"s_mov_b32 s{sIT}, 0")
    I(f"s_mov_b32 s{sREG}, 0")
    I(f"s_mov_b32 s{sREG2}, {CP}")
    I(f"s_mov_b32 s{sSPIN}, 0")
    I(f"s_mov_b32 s{sPURE}, 0")
    I(f"s_mov_b32 s{sNEAR}, 0")
    I(f"s_mov_b32 s{sL2E}, {L2E:#x}")
    I(f"s_lshr_b32 s{sLATE}, {late:#x}, s{sWAVE}")
    I(f"s_and_b32 s{sLATE}, s{sLATE}, 1")
    I(f"s_mov_b32 s{sROLE}, 3")
    if not dyn:
        I(f"s_mul_i32 s{sTB}, s{sX}, 7")
        I(f"s_cmp_eq_u32 s{sX}, 7")
        I(f"s_cselect_b32 s{sT0}, 21, 20")
        I(f"s_sub_u32 s{sTB}, s{sTB}, s{sT0}")
        I(f"s_add_u32 s{sTB}, s{sTB}, s{sR}")
        I(f"s_cmp_lt_u32 s{sX}, 6")
        I(f"s_cselect_b32 s{sT0}, 27, 26")
        I(f"s_cmp_lt_u32 s{sR}, s{sT0}")
        I(f"s_cselect_b32 s{sROLE}, 1, s{sROLE}")
    I(f"s_cmp_lt_u32 s{sR}, 20")
    I(f"s_cselect_b32 s{sROLE}, 0, s{sROLE}")
    I(f"s_cselect_b32 s{sLATE}, s{sLATE}, 0")
    for i in [1] + list(range(2 if q2 else 3, 18)):
        I(f"v_mov_b32 v{i}, {BIG:#x}")

    def v_issue():
        k1, k2, k3 = T + 49, T + 50, T + 51
        I(f"v_lshrrev_b32 v{k1}, 4, v{vLANE}")
        I(f"v_bfe_u32 v{k3}, v{vLANE}, 3, 1")
        if sm: I(f"v_lshl_add_u32 v{k3}, v{k1}, 1, v{k3}")
        else: I(f"v_lshl_add_u32 v{k3}, v{k3}, 3, v{k1}")
        I(f"v_lshlrev_b32 v{k3}, 8, v{k3}")
        I(f"v_and_b32 v{k2}, 7, v{vLANE}")
        I(f"v_lshl_add_u32 v{k3}, v{k2}, 4, v{k3}")
        def ticket():
            I(f"s_cmp_eq_u32 s{sWAVE}, {tw}")
            I("s_cbranch_scc0 L_ntk")
            I(f"s_cmp_eq_u32 s{sROLE}, 0")
            if pf:
                I(f"s_cselect_b32 s{sT1}, 1, 0x101")
                I(f"v_mov_b32 v{vTK}, s{sT1}")
                I(f"s_lshl_b32 s{sT1}, s{sX}, 3")
            else:
                I("s_cbranch_scc1 L_ntk")
                I(f"v_mov_b32 v{vRDMA}, 1")
            srd(TA, 54, 256)
            setexec(1, 0)
            if pf: I(f"buffer_atomic_add v{vTK}, off, {TA}, s{sT1} sc0 sc1")
            else: I(f"buffer_atomic_add v{vRDMA}, off, {TA}, 0 sc0 sc1")
            setexec(0xFFFFFFFF, 0xFFFFFFFF)
            a.label("L_ntk")
        for j in range(17):
            if dyn and j == tp: ticket()
            if j == 16: break
            if j % 4 == 0:
                I(f"s_xor_b32 s{sT0}, s{sKV}, {KVO[j//4]}")
            u, hf = (j >> 1) & 1, j & 1
            if sm: u, hf = 2 * hf, u
            I(f"buffer_load_dwordx4 {vr(vV+4*j)}, v{k3}, {V_SRD}, s{sT0} offen offset:{u*1024+hf*128} {kvflags}")

    def pf_static(lab, dummy, mode=0):
        ad, ds = T + 49, T + 50
        if mode != 3:
            I(f"s_cmp_lt_u32 s{sWAVE}, 7")
            I(f"s_cbranch_scc0 {lab}")
        if not dummy:
            I(f"s_cmp_eq_u32 s{sROLE}, 0")
            I(f"s_cbranch_scc1 {lab}")
        if mode == 3:
            I(f"s_sub_u32 s{sT0}, 31, s{sR}")
            I(f"s_min_u32 s{sT0}, s{sT0}, 5")
            I(f"s_mul_i32 s{sT1}, s{sWAVE}, 5")
            I(f"s_cmp_lt_u32 s{sT0}, 5")
            I(f"s_cselect_b32 s{sT1}, s{sT1}, 99")
            I(f"s_add_u32 s{sT0}, s{sT0}, s{sT1}")
            if pi: I(f"s_add_u32 s{sT0}, s{sT0}, {pi}")
            mode = 1
        elif mode == 1 and pst == 6:
            I(f"s_sub_u32 s{sT0}, 31, s{sR}")
            I(f"s_lshl_b32 s{sT1}, s{sWAVE}, 5")
            I(f"s_add_u32 s{sT0}, s{sT0}, s{sT1}")
            I(f"s_cmp_lt_u32 s{sT0}, {pi}")
            I(f"s_cselect_b32 s{sT0}, s{sT0}, 99")
        elif mode < 2 and pw == 32:
            I(f"s_sub_u32 s{sT0}, 31, s{sR}")
            I(f"s_lshl_b32 s{sT1}, s{sWAVE}, 5")
            I(f"s_add_u32 s{sT0}, s{sT0}, s{sT1}")
            I(f"s_min_u32 s{sT0}, s{sT0}, 99")
        elif mode == 1:
            I(f"s_sub_u32 s{sT0}, 31, s{sR}")
            I(f"s_cmp_lt_u32 s{sT0}, {pw}")
            I(f"s_cselect_b32 s{sT0}, s{sT0}, 99")
            I(f"s_mul_i32 s{sT1}, s{sWAVE}, {pw}")
            I(f"s_add_u32 s{sT0}, s{sT0}, s{sT1}")
        elif mode == 2:
            I(f"s_sub_u32 s{sT0}, 31, s{sR}")
            I(f"s_mul_i32 s{sT0}, s{sT0}, 7")
            I(f"s_add_u32 s{sT0}, s{sT0}, s{sWAVE}")
        else:
            I(f"s_sub_u32 s{sT0}, s{sR}, 20")
            if pfr:
                I(f"s_mul_i32 s{sT1}, s{sWAVE}, 12")
                I(f"s_add_u32 s{sT0}, s{sT0}, s{sT1}")
            else:
                I(f"s_mul_i32 s{sT0}, s{sT0}, 7")
                I(f"s_add_u32 s{sT0}, s{sT0}, s{sWAVE}")
            I(f"s_cmp_eq_u32 s{sROLE}, 0")
            I(f"s_cselect_b32 s{sT0}, 99, s{sT0}")
        I(f"s_mul_i32 s{sT1}, s{sX}, 7")
        I(f"s_min_u32 s{sT1}, s{sT1}, 48")
        if mode == 0:
            I(f"s_cmp_lt_u32 s{sT0}, 40")
            I(f"s_cbranch_scc0 {lab}w2")
        if mode < 2:
            srd(TA, 44, 640 * 3456)
            I(f"v_lshrrev_b32 v{ad}, 2, v{vLANE}")
            I(f"v_mul_u32_u24 v{ad}, 3456, v{ad}")
            I(f"v_and_b32 v{ds}, 3, v{vLANE}")
            I(f"v_lshl_add_u32 v{ad}, v{ds}, 7, v{ad}")
            I(f"s_mul_i32 s{sT0}, s{sT0}, {16*3456}")
            I(f"s_lshr_b32 s{sT1}, s{sT1}, 1")
            I(f"s_lshl_b32 s{sT1}, s{sT1}, 7")
            I(f"s_add_u32 s{sT0}, s{sT0}, s{sT1}")
            I(f"v_add_u32 v{ad}, s{sT0}, v{ad}")
            I(f"buffer_load_dword v{ds}, v{ad}, {TA}, 0 offen")
        if mode == 0:
            I(f"s_branch {lab}")
            a.label(lab + "w2")
            I(f"s_sub_u32 s{sT0}, s{sT0}, 40")
        if mode != 1:
            I(f"s_cmp_lt_u32 s{sX}, 6")
            I(f"s_cselect_b32 s{sT2}, 35, 30")
            I(f"s_mul_i32 s{sT1}, s{sT1}, {32*1280}")
            I(f"s_cmp_lt_u32 s{sT0}, s{sT2}")
            I(f"s_cselect_b32 s{sT1}, s{sT1}, {BIG:#x}")
            I(f"s_lshl_b32 s{sT0}, s{sT0}, 13")
            I(f"s_add_u32 s{sT0}, s{sT0}, s{sT1}")
            srd(TA, 48, 1728 * 1280)
            I(f"v_lshlrev_b32 v{ad}, 7, v{vLANE}")
            I(f"v_add_u32 v{ad}, s{sT0}, v{ad}")
            I(f"buffer_load_dword v{ds}, v{ad}, {TA}, 0 offen")
        a.label(lab)

    def w2_early():
        m0_, m1_, m2_, m3_ = T, T + 1, T + 2, T + 3
        I(f"s_mul_i32 s{sT0}, s{sWAVE}, 5")
        I(f"s_mul_i32 s{sT3}, s{sTB}, {32*1280}")
        I(f"v_lshrrev_b32 v{m0_}, 3, v{vLANE}")
        I(f"v_mul_u32_u24 v{m2_}, 1280, v{m0_}")
        I(f"v_and_b32 v{m1_}, 7, v{vLANE}")
        I(f"v_lshlrev_b32 v{m1_}, 4, v{m1_}")
        I(f"v_bfe_u32 v{m0_}, v{vLANE}, 4, 1")
        I(f"v_lshlrev_b32 v{m0_}, 5, v{m0_}")
        I(f"v_xor_b32 v{m1_}, v{m1_}, v{m0_}")
        I(f"s_and_b32 s{sT1}, s{sT0}, 1")
        I(f"s_lshl_b32 s{sT1}, s{sT1}, 6")
        I(f"v_xor_b32 v{m1_}, s{sT1}, v{m1_}")
        I(f"v_xor_b32 v{m0_}, 64, v{m1_}")
        I(f"v_add_u32 v{m3_}, v{m2_}, v{m0_}")
        I(f"v_add_u32 v{m2_}, v{m2_}, v{m1_}")
        srd(TA, 48, 1728 * 1280)
        for e in range(5):
            I(f"s_lshl_b32 s{sT1}, s{sT0}, 10")
            I(f"s_add_u32 m0, s{sT1}, {L_W2}")
            I(f"s_and_b32 s{sT1}, s{sT0}, 3")
            I(f"s_mul_i32 s{sT1}, s{sT1}, {8*1280}")
            I(f"s_lshr_b32 s{sT2}, s{sT0}, 2")
            I(f"s_lshl_b32 s{sT2}, s{sT2}, 7")
            I(f"s_add_u32 s{sT1}, s{sT1}, s{sT2}")
            I(f"s_add_u32 s{sT1}, s{sT1}, s{sT3}")
            I(f"buffer_load_dwordx4 v{(m2_, m3_)[e & 1]}, {TA}, s{sT1} offen {rflags} lds")
            if e < 4: I(f"s_add_u32 s{sT0}, s{sT0}, 1")

    def role_dma(lb=None, ne=8):
        if lb is None:
            I(f"s_lshl_b32 s{sT1}, s{sWAVE}, 13")
            I(f"s_add_u32 s{sT1}, s{sT1}, {L_ROLE}")
        else:
            I(f"s_mov_b32 s{sT1}, s{lb}")
        I(f"s_mov_b32 s{sT0}, s{sRB}")
        for e in range(ne):
            if e % 4 == 0:
                I(f"s_mov_b32 m0, s{sT1}")
                if e == 0:
                    I(f"s_add_u32 s{sT1}, s{sT1}, 4096")
            I(f"s_cmp_gt_u32 s{sRN}, {e}")
            I(f"s_cselect_b32 s{sT2}, s{sT0}, {BIG:#x}")
            I(f"buffer_load_dwordx4 v{vRDMA}, {TB}, s{sT2} offen offset:{(e%4)*1024} {rflags} lds")
            if e < 7:
                I(f"s_add_u32 s{sT0}, s{sT0}, s{sRSTEP}")
                if e % 4 == 3:
                    I(f"s_add_u32 s{sT0}, s{sT0}, 3072")
                else:
                    I(f"s_sub_u32 s{sT0}, s{sT0}, 1024")

    def rank_off(dst, rk, tmp):
        I(f"s_and_b32 s{tmp}, s{rk}, {(1 << ZB) - 1}")
        I(f"s_mul_i32 s{tmp}, s{tmp}, {ZR}")
        I(f"s_lshr_b32 s{dst}, s{rk}, {ZB}")
        I(f"s_lshl_b32 s{dst}, s{dst}, 14")
        I(f"s_add_u32 s{dst}, s{dst}, s{tmp}")

    I(f"s_cmp_ge_u32 s{sWAVE}, 5")
    I("s_cbranch_scc1 L_init567")
    I(f"v_bfe_u32 v{t0}, v{vLANE}, 3, 1")
    I(f"v_and_b32 v{t1}, 7, v{vLANE}")
    I(f"s_lshl_b32 s{sT1}, s{sWAVE}, 2")
    rank_off(sT0, sT1, sT2)
    I(f"v_mul_u32_u24 v{vGO}, {ZR}, v{t0}")
    I(f"v_mul_u32_u24 v{t1}, {ZX}, v{t1}")
    I(f"v_add3_u32 v{vGO}, v{vGO}, v{t1}, s{sT0}")
    I(f"v_lshl_add_u32 v{vGO}, v{g}, 4, v{vGO}")
    if q2:
        I(f"s_and_b32 s{sT0}, s{sSLOT}, 3")
        I(f"s_mul_i32 s{sT0}, s{sT0}, 5")
        I(f"s_lshl_b32 s{sT1}, s{sWAVE}, 2")
        I(f"s_add_u32 s{sT0}, s{sT0}, s{sT1}")
        I(f"s_lshl_b32 s{sT0}, s{sT0}, 6")
        I(f"v_and_b32 v{t0}, 1, v{q4}")
        I(f"v_lshlrev_b32 v{t0}, 7, v{t0}")
        I(f"v_lshl_add_u32 v{t0}, v{g}, 5, v{t0}")
        I(f"v_lshrrev_b32 v{t1}, 2, v{vLANE}")
        I(f"v_or_b32 v{t1}, v{t1}, v{vLANE}")
        I(f"v_and_b32 v{t1}, 2, v{t1}")
        I(f"v_lshl_add_u32 v{t0}, v{t1}, 3, v{t0}")
        I(f"v_add_u32 v{t0}, s{sT0}, v{t0}")
        I(f"v_subrev_u32 v{t1}, 1280, v{t0}")
        I(f"v_min_u32 v{vXO}, v{t0}, v{t1}")
        I(f"s_mul_i32 s{sT0}, s{sWAVE}, {PP}")
        I(f"v_lshlrev_b32 v{t2}, 3, v{g}")
        I(f"v_add_u32 v{t2}, s{sT0}, v{t2}")
        I(f"v_lshl_add_u32 v{vPQ}, v{n}, 4, v{t2}")
        I(f"v_add_u32 v{t2}, {L_PB1 + 512}, v{t2}")
        I(f"v_lshlrev_b32 v{t3}, 3, v{vLANE}")
        I(f"v_add_u32 v{t3}, {L_DUM}, v{t3}")
        I(f"v_lshlrev_b32 v{t0}, 2, v{g}")
        I(f"v_cmp_eq_u32 vcc, v{n}, v{t0}")
        I(f"v_cndmask_b32 v{vSW}, v{t3}, v{t2}, vcc")
        I("s_branch L_initc")
    I(f"s_mul_i32 s{sT0}, s{sWAVE}, {PP}")
    I(f"s_add_u32 s{sT0}, s{sT0}, {L_PB1 + 512}")
    I(f"v_lshlrev_b32 v{t2}, 2, v{g}")
    I(f"v_add_u32 v{t2}, s{sT0}, v{t2}")
    I(f"v_lshlrev_b32 v{t3}, 2, v{vLANE}")
    I(f"v_add_u32 v{t3}, {L_DUM}, v{t3}")
    I(f"v_cmp_eq_u32 vcc, v{q4}, v{g}")
    I(f"v_cndmask_b32 v{vSW}, v{t3}, v{t2}, vcc")
    I(f"s_mul_i32 s{sT0}, s{sWAVE}, {PP}")
    I(f"v_lshlrev_b32 v{vPQ}, 4, v{g}")
    I(f"v_add_u32 v{vPQ}, s{sT0}, v{vPQ}")
    I(f"s_and_b32 s{sT0}, s{sSLOT}, 3")
    I(f"s_lshl_b32 s{sT0}, s{sT0}, 2")
    I(f"s_lshl_b32 s{sKM}, 0x00010001, s{sT0}")
    I(f"s_mov_b32 s{sKM+1}, s{sKM}")
    I("s_branch L_initc")

    a.label("L_init567")
    I(f"s_cmp_eq_u32 s{sWAVE}, 6")
    I("s_cbranch_scc1 L_initc")
    I(f"s_cmp_eq_u32 s{sWAVE}, 7")
    I("s_cbranch_scc1 L_init7")
    rank_off(sT0, sR, sT1)
    I(f"s_mul_i32 s{sT1}, s{sX}, {ZX}")
    I(f"s_add_u32 s{sT0}, s{sT0}, s{sT1}")
    I(f"s_add_u32 s{sRB}, s{sT0}, {ZOFF}")
    I(f"v_lshlrev_b32 v{vRR}, 4, v{vLANE}")
    if q2:
        I(f"s_and_b32 s{sT0}, s{sQS}, {~2047 & 0xffffffff:#x}")
        I(f"s_and_b32 s{sT1}, s{sSLOT}, 6")
        I(f"s_lshl_b32 s{sT1}, s{sT1}, 5")
        I(f"s_add_u32 s{sT0}, s{sT0}, s{sT1}")
        I(f"s_and_b32 s{sT1}, s{sSLOT}, 1")
        I(f"s_lshl_b32 s{sT1}, s{sT1}, 3")
        I(f"s_add_u32 s{sT0}, s{sT0}, s{sT1}")
        I(f"v_lshlrev_b32 v{vQP}, 9, v{g}")
        I(f"v_and_b32 v{t0}, 1, v{vLANE}")
        I(f"v_lshl_add_u32 v{vQP}, v{t0}, 8, v{vQP}")
        I(f"v_and_b32 v{t0}, 2, v{vLANE}")
        I(f"v_lshl_add_u32 v{vQP}, v{t0}, 4, v{vQP}")
        I(f"v_and_b32 v{t0}, 8, v{vLANE}")
        I(f"v_lshl_add_u32 v{vQP}, v{t0}, 1, v{vQP}")
        I(f"v_and_b32 v{t0}, 4, v{vLANE}")
        I(f"v_add3_u32 v{vQP}, v{vQP}, v{t0}, s{sT0}")
        I(f"v_lshlrev_b32 v{vQG}, 4, v{n}")
        I(f"v_lshlrev_b32 v{vCSQ}, 3, v{c4}")
    else:
        I(f"v_lshlrev_b32 v{vQP}, 2, v{vLANE}")
        I(f"v_add_u32 v{vQP}, s{sQS}, v{vQP}")
        I(f"s_and_b32 s{sT0}, s{sQS}, {~2047 & 0xffffffff:#x}")
        I(f"v_lshlrev_b32 v{vQG}, 3, v{vLANE}")
        I(f"v_add_u32 v{vQG}, s{sT0}, v{vQG}")
    I(f"v_mov_b32 v{t0}, 0")
    I(f"v_mov_b32 v{t1}, 0")
    I(f"v_mov_b32 v{t2}, {L_FLAG}")
    I(f"ds_write_b64 v{t2}, v[{t0}:{t1}] offset:8")
    if emd: I(f"ds_write_b32 v{t2}, v{t0} offset:4")
    I(f"v_and_b32 v{t2}, 31, v{vLANE}")
    I(f"v_lshlrev_b32 v{t2}, 1, v{t2}")
    I(f"s_or_b32 s{sT2}, s{sROLE}, s{sX}")
    I(f"s_lshl_b32 s{sT1}, s{sR}, 6")
    I(f"s_cmp_eq_u32 s{sT2}, 0")
    I(f"s_cselect_b32 s{sT1}, s{sT1}, {BIG:#x}")
    I(f"buffer_load_ushort v{vXF}, v{t2}, {TB}, s{sT1} offen")
    I(f"v_lshrrev_b32 v{t1}, 3, v{vLANE}")
    I(f"v_lshlrev_b32 v{t1}, 4, v{t1}")
    I(f"v_add_u32 v{vRP}, s{sRB}, v{t1}")
    I(f"v_and_b32 v{t1}, 31, v{vLANE}")
    I(f"v_lshlrev_b32 v{t1}, 1, v{t1}")
    I(f"s_or_b32 s{sT2}, s{sROLE}, s{sX}")
    I(f"s_lshl_b32 s{sT1}, s{sR}, 6")
    I(f"s_add_u32 s{sT1}, s{sT1}, {XOFF}")
    I(f"s_cmp_eq_u32 s{sT2}, 0")
    I(f"s_cselect_b32 s{sT1}, s{sT1}, {BIG:#x}")
    I(f"v_add_u32 v{vXFA}, s{sT1}, v{t1}")
    I("s_branch L_initc")

    a.label("L_init7")
    I(f"v_lshlrev_b32 v{vCR}, 3, v{vLANE}")
    I(f"v_add_u32 v{vCR}, {L_O}, v{vCR}")
    I(f"v_and_b32 v{t0}, 7, v{vLANE}")
    I(f"v_lshlrev_b32 v{vCML}, 3, v{t0}")
    I(f"v_add_u32 v{vCML}, {L_ML}, v{vCML}")
    I(f"s_lshr_b32 s{sT0}, s{sSLOT}, 3")
    I(f"s_lshl_b32 s{sT1}, s{sT0}, 11")
    I(f"s_and_b32 s{sT2}, s{sSLOT}, 7")
    I(f"s_lshl_b32 s{sT3}, s{sT2}, 4")
    I(f"s_add_u32 s{sT1}, s{sT1}, s{sT3}")
    I(f"v_lshrrev_b32 v{t0}, 5, v{vLANE}")
    I(f"v_lshlrev_b32 v{vCP}, 10, v{t0}")
    I(f"v_lshl_add_u32 v{vCP}, v{q4}, 8, v{vCP}")
    I(f"v_and_b32 v{t0}, 1, v{g}")
    I(f"v_lshl_add_u32 v{vCP}, v{t0}, 7, v{vCP}")
    I(f"v_lshl_add_u32 v{vCP}, v{c4}, 2, v{vCP}")
    I(f"v_add_u32 v{vCP}, s{sT1}, v{vCP}")
    I(f"s_lshl_b32 s{sT0}, s{sT0}, 7")
    I(f"s_lshl_b32 s{sT2}, s{sT2}, 3")
    I(f"s_add_u32 s{sT0}, s{sT0}, s{sT2}")
    I(f"s_add_u32 s{sT0}, s{sT0}, {MLOFF}")
    I(f"v_mov_b32 v{vCPM}, s{sT0}")
    I(f"s_and_b32 s{sT0}, s{sQS}, {~2047 & 0xffffffff:#x}")
    I(f"v_lshlrev_b32 v{vQG7}, 3, v{vLANE}")
    I(f"v_add_u32 v{vQG7}, s{sT0}, v{vQG7}")

    a.label("L_initc")
    I(f"s_mov_b32 s{sRN}, 0")
    I(f"s_mov_b32 s{sRB}, 0")
    I(f"s_mov_b32 s{sRSTEP}, 0")
    srd(TB, 40, 4096 * 1280)
    I(f"v_lshrrev_b32 v{t0}, 2, v{vLANE}")
    I(f"v_lshlrev_b32 v{t1}, 4, v{c4}")
    I(f"s_cmp_eq_u32 s{sROLE}, 0")
    I("s_cbranch_scc0 L_rpd")
    I(f"s_lshl_b32 s{sT0}, s{sXW}, 3")
    I(f"s_add_u32 s{sT0}, s{sT0}, s{sWAVE}")
    I(f"s_lshr_b32 s{sT0}, s{sT0}, 1")
    hperm(sT0, sT0, sT1)
    I(f"s_lshl_b32 s{sT0}, s{sT0}, 1")
    I(f"s_and_b32 s{sT1}, s{sWAVE}, 1")
    I(f"s_add_u32 s{sT0}, s{sT0}, s{sT1}")
    I(f"s_mul_i32 s{sT0}, s{sT0}, {64*1280}")
    I(f"s_lshl_b32 s{sT1}, s{sR}, 6")
    I(f"s_add_u32 s{sRB}, s{sT0}, s{sT1}")
    I(f"s_mov_b32 s{sRSTEP}, {16*1280}")
    I(f"s_mov_b32 s{sRN}, 4")
    I(f"v_mul_u32_u24 v{vRDMA}, 1280, v{t0}")
    I(f"v_add_u32 v{vRDMA}, v{vRDMA}, v{t1}")
    I(f"s_lshr_b32 s{sT0}, s{sWAVE}, 1")
    I(f"s_lshl_b32 s{sT1}, s{sXW}, 2")
    I(f"s_add_u32 s{sT0}, s{sT0}, s{sT1}")
    I(f"s_lshl_b32 s{sT1}, s{sXW}, 3")
    I(f"s_add_u32 s{sT1}, s{sT1}, s{sWAVE}")
    I(f"s_lshl_b32 s{sT1}, s{sT1}, 10")
    I(f"v_lshlrev_b32 v{t2}, 4, v{vLANE}")
    I(f"v_add_u32 v{vA0}, s{sT1}, v{t2}")
    I(f"v_xor_b32 v{t2}, v{g}, v{q4}")
    I(f"v_and_b32 v{t2}, 1, v{t2}")
    I(f"v_lshl_add_u32 v{t2}, v{t2}, 2, v{c4}")
    I(f"v_lshlrev_b32 v{t2}, 3, v{t2}")
    I(f"s_lshl_b32 s{sT0}, s{sT0}, 7")
    I(f"s_add_u32 s{sT0}, s{sT0}, {MLOFF}")
    I(f"v_add_u32 v{vA2}, s{sT0}, v{t2}")
    a.label("L_rpd")

    I(f"s_mul_i32 s{sT0}, s{sWAVE}, {PP}")
    I(f"v_lshlrev_b32 v{vPW}, 4, v{n}")
    I(f"v_lshl_add_u32 v{vPW}, v{g}, 2, v{vPW}")
    I(f"v_add_u32 v{vPW}, s{sT0}, v{vPW}")
    I(f"v_lshl_add_u32 v{vQR}, v{g}, 2, v{c4}")
    I(f"v_lshlrev_b32 v{vQR}, 4, v{vQR}")
    I(f"v_add_u32 v{vQR}, {L_QB}, v{vQR}")
    I(f"s_lshl_b32 s{sT0}, s{sWAVE}, 10")
    I(f"s_add_u32 s{sT0}, s{sT0}, {L_O}")
    I(f"v_bfe_u32 v{t0}, v{vLANE}, 3, 1")
    I(f"v_lshlrev_b32 v{vOW}, 9, v{t0}")
    I(f"v_and_b32 v{t0}, 7, v{vLANE}")
    I(f"v_lshl_add_u32 v{vOW}, v{t0}, 5, v{vOW}")
    I(f"v_and_b32 v{t1}, 1, v{g}")
    I(f"v_lshl_add_u32 v{vOW}, v{t1}, 4, v{vOW}")
    I(f"v_add_u32 v{vOW}, s{sT0}, v{vOW}")
    I(f"s_lshl_b32 s{sT0}, s{sWAVE}, 3")
    I(f"s_add_u32 s{sT0}, s{sT0}, {L_ML}")
    I(f"v_lshlrev_b32 v{vMLW}, 3, v{vLANE}")
    I(f"v_add_u32 v{vMLW}, {L_DUM}, v{vMLW}")
    I(f"v_writelane_b32 v{vMLW}, s{sT0}, 63")
    if sm:
        I(f"v_and_b32 v{t0}, 4, v{vLANE}")
        I(f"v_cmp_eq_u32 vcc, 0, v{t0}")
        I(f"v_mov_b32 v{t1}, 0xffff")
        I(f"v_mov_b32 v{t2}, 0xffff0000")
        I(f"v_cndmask_b32 v{vSEL}, 0, v{t1}, vcc")
        I(f"v_cndmask_b32 v{vSEL+2}, 0, v{t2}, vcc")
        I(f"v_xor_b32 v{vSEL+1}, v{vSEL}, v{t1}")
        I(f"v_xor_b32 v{vSEL+3}, v{vSEL+2}, v{t2}")
        I(f"v_mul_u32_u24 v{t0}, 0x5555, v{c4}")
        I(f"v_and_b32 v{t1}, 2, v{vLANE}")
        I(f"v_mul_u32_u24 v{t1}, 0x5555, v{t1}")
        I(f"v_or_b32 v{t1}, 0x4444, v{t1}")
        I(f"v_lshl_or_b32 v{vSEL+4}, v{t0}, 16, v{t1}")
    for u in range(0 if sm else 2):
        for r in range(4):
            sb = 0x0100 if u == (r >> 1) else 0x0302
            d = vSEL + u * 4 + r
            I(f"v_mov_b32 v{d}, 0x0c0c0c0c")
            I(f"v_mov_b32 v{t1}, {0x0c0c0000 | sb:#x}")
            I(f"v_mov_b32 v{t2}, {(sb << 16) | 0x0c0c:#x}")
            I(f"v_cmp_eq_u32 vcc, {2*r}, v{t0}")
            I(f"v_cndmask_b32 v{d}, v{d}, v{t1}, vcc")
            I(f"v_cmp_eq_u32 vcc, {2*r+1}, v{t0}")
            I(f"v_cndmask_b32 v{d}, v{d}, v{t2}, vcc")

    def tr_addr(dst, pitch, base_s, x0=T + 48):
        x1 = x0 + 1
        I(f"v_lshrrev_b32 v{x0}, 4, v{vLANE}")
        I(f"v_bfe_u32 v{x1}, v{vLANE}, 2, 2")
        I(f"v_lshl_add_u32 v{x0}, v{x0}, 3, v{x1}")
        I(f"v_lshlrev_b32 v{x0}, {pitch.bit_length()-1}, v{x0}")
        I(f"v_and_b32 v{x1}, 3, v{vLANE}")
        I(f"v_lshl_add_u32 v{x0}, v{x1}, 3, v{x0}")
        I(f"v_add_u32 v{dst}, s{base_s}, v{x0}")

    def ones():
        for i in range(4):
            I(f"v_mov_b32 v{ONES+i}, 0x3f803f80")

    def gemv(ntile, Bbase, bidx):
        S1, S2 = T + 16, T + 20
        A0_, A1_ = vr(XA), vr(XA + 4)
        I(f"v_mfma_f32_16x16x32_bf16 {vr(S2)}, {A0_}, {A0_}, 0")
        I(f"v_mfma_f32_16x16x32_bf16 {vr(S2)}, {A1_}, {A1_}, {vr(S2)}")
        I(f"v_mfma_f32_16x16x32_bf16 {vr(S1)}, {A0_}, {vr(ONES)}, 0")
        I(f"v_mfma_f32_16x16x32_bf16 {vr(S1)}, {A1_}, {vr(ONES)}, {vr(S1)}")
        post = [
            f"v_pk_add_f32 v[{S2}:{S2+1}], v[{S2}:{S2+1}], v[{S2+2}:{S2+3}]",
            f"v_add_f32 v{S2}, v{S2}, v{S2+1}",
            f"v_add_f32_dpp v{S2}, v{S2}, v{S2} quad_perm:[1,0,3,2] row_mask:0xf bank_mask:0xf",
            f"v_pk_add_f32 v[{S1}:{S1+1}], v[{S1}:{S1+1}], v[{S1+2}:{S1+3}]",
            f"v_add_f32_dpp v{S2}, v{S2}, v{S2} quad_perm:[2,3,0,1] row_mask:0xf bank_mask:0xf",
            f"v_add_f32 v{S1}, v{S1}, v{S1+1}",
            f"v_add_f32_dpp v{S2}, v{S2}, v{S2} row_half_mirror row_mask:0xf bank_mask:0xf",
            f"ds_write2_b32 v{vSW}, v{S1}, v{S2} offset0:0 offset1:4",
        ]
        def dpost(t):
            D = T + 8 * t
            return [f"v_pk_add_f32 v[{D}:{D+1}], v[{D}:{D+1}], v[{D+2}:{D+3}]",
                    f"v_pk_add_f32 v[{D+4}:{D+5}], v[{D+4}:{D+5}], v[{D+6}:{D+7}]",
                    f"v_add_f32 v{D}, v{D}, v{D+1}",
                    f"v_add_f32_dpp v{D}, v{D+4}, v{D+5} quad_perm:[0,1,2,3] row_mask:0xc bank_mask:0xf",
                    f"ds_write_b32 v{vPW}, v{D} offset:{L_PB1 + t*256}"]
        for t in range(ntile):
            post += dpost(t)
        k = 0
        for t in range(ntile):
            for j in range(2):
                D = T + 8 * t + 4 * j
                for h in range(2):
                    I(f"v_mfma_f32_16x16x32_bf16 {vr(D)}, {(A0_, A1_)[h]}, {vr(Bbase+4*bidx(2*h+j,t))}, {vr(D) if h else '0'}")
                    k += 1
                    if k >= 5 and k < 4 * ntile:
                        for x in post[:2]: I(x)
                        post = post[2:]
        for x in post: I(x)
        I("s_waitcnt lgkmcnt(0)")

    def gemv_q(first=False):
        S1, S2 = T + 16, T + 20
        for t in range(4):
            I(f"v_mfma_f32_16x16x32_bf16 {vr(T+4*t)}, {vr(vBQ+4*t)}, {vr(XA)}, 0")
        I(f"v_mfma_f32_16x16x32_bf16 {vr(S1)}, {vr(XA)}, {vr(ONES)}, 0")
        I(f"v_mfma_f32_16x16x32_bf16 {vr(S2)}, {vr(XA)}, {vr(XA)}, 0")
        if first:
            for t in range(4):
                I(f"v_mfma_f32_16x16x32_bf16 {vr(vRB+4*t)}, {vr(vBQ+4*t)}, {vr(ONES)}, 0")
        I(f"s_mov_b64 exec, s[{sKM}:{sKM+1}]")
        for t in range(4):
            I(f"ds_write_b128 v{vPQ}, {vr(T+4*t)} offset:{L_PB1 + t*64}")
        if first:
            for t in range(4):
                I(f"ds_write_b128 v{vPQ}, {vr(vRB+4*t)} offset:{L_PB1 + 256 + t*64}")
        I("s_mov_b64 exec, -1")
        I(f"ds_write2_b32 v{vSW}, v{S1}, v{S2} offset0:0 offset1:4")
        I("s_waitcnt lgkmcnt(0)")

    def gather(sreg):
        poll([f"buffer_load_dwordx4 {vr(XA)}, v{vGO}, {WS}, s{sreg} offen {zfl}",
              f"buffer_load_dwordx4 {vr(XA+4)}, v{vGO}, {WS}, s{sreg} offen offset:{2*ZR} {zfl}"],
             [XA, XA + 4], groups=[[XA], [XA + 4]], hop=2)

    def reduce_read(nw, base):
        for v in range(nw):
            I(f"ds_read_b128 {vr(T+4*v)}, v{vRR} offset:{base + v*PP}")

    def reduce_sum(nw, dst):
        np_ = 2 * nw
        idx = list(range(np_))
        while len(idx) > 1:
            nx = []
            for i in range(0, len(idx) - 1, 2):
                d, s = idx[i], idx[i + 1]
                I(f"v_pk_add_f32 v[{T+2*d}:{T+2*d+1}], v[{T+2*d}:{T+2*d+1}], v[{T+2*s}:{T+2*s+1}]")
                nx.append(d)
            if len(idx) % 2:
                nx.append(idx[-1])
            idx = nx
        I(f"v_add_f32 v{dst}, v{T}, v{T+1}")

    rTOT, rMEAN, rVAR, rMB, rSD, rR, rU, rT, rINV, rC1, rC2, rCS = [T + 32 + i for i in range(12)]

    def cs_read(area, dst):
        l = a.newlab("Lcs")
        I(f"s_cmp_eq_u32 s{sIT}, 0")
        I(f"s_cbranch_scc0 {l}")
        I(f"v_lshrrev_b32 v{rT}, 2, v{vRR}")
        for v in range(5):
            I(f"ds_read_b32 v{T+24+v}, v{rT} offset:{area + v*128}")
        I("s_waitcnt lgkmcnt(0)")
        I(f"v_add_f32 v{dst}, v{T+24}, v{T+25}")
        I(f"v_add_f32 v{rT}, v{T+26}, v{T+27}")
        I(f"v_add_f32 v{dst}, v{dst}, v{T+28}")
        I(f"v_add_f32 v{dst}, v{dst}, v{rT}")
        a.label(l)

    def stats(l0=32):
        if l0 is not None:
            I(f"v_readlane_b32 s{sT0}, v{rTOT}, {l0}")
            I(f"v_readlane_b32 s{sT1}, v{rTOT}, {l0+1}")
            I(f"v_mul_f32 v{rMEAN}, s{sT0}, v{rINV}")
            I(f"v_mul_f32 v{rVAR}, s{sT1}, v{rINV}")
        I(f"v_fma_f32 v{rVAR}, -v{rMEAN}, v{rMEAN}, v{rVAR}")
        I(f"v_max_f32 v{rVAR}, 0, v{rVAR}")
        I(f"v_cvt_pk_bf16_f32 v{rT}, v{rMEAN}, v{rVAR}")
        I(f"v_and_b32 v{rU}, 0xffff0000, v{rT}")
        I(f"v_lshlrev_b32 v{rMB}, 16, v{rT}")
        I(f"v_add_f32 v{rU}, {f2u(1e-5):#x}, v{rU}")
        I(f"v_cvt_pk_bf16_f32 v{rU}, v{rU}, v{rU}")
        I(f"v_and_b32 v{rU}, 0xffff0000, v{rU}")
        I(f"v_sqrt_f32 v{rU}, v{rU}")
        I(f"v_cvt_pk_bf16_f32 v{rU}, v{rU}, v{rU}")
        I(f"v_and_b32 v{rSD}, 0xffff0000, v{rU}")
        I(f"v_rcp_f32 v{rR}, v{rSD}")

    def pack_pairs(src, dst):
        I(f"v_mov_b32_dpp v{rT}, v{src} quad_perm:[1,0,3,2] row_mask:0xf bank_mask:0xf")
        I(f"v_cvt_pk_bf16_f32 v{dst}, v{src}, v{rT}")
        I(f"v_min_u32 v{dst}, 0xfffffffe, v{dst}")

    def q_reduce(first=False):
        qa, qs, QS = T + 44, T + 45, T + 20
        I(f"v_lshlrev_b32 v{qa}, 2, v{vLANE}")
        I(f"v_and_b32 v{qs}, 1, v{vLANE}")
        if sm:
            I(f"v_and_b32 v{T+46}, 0x34, v{vLANE}")
            I(f"v_lshl_add_u32 v{T+46}, v{qs}, 3, v{T+46}")
            I(f"v_bfe_u32 v{T+47}, v{vLANE}, 3, 1")
            I(f"v_lshl_add_u32 v{T+46}, v{T+47}, 1, v{T+46}")
            I(f"v_bfe_u32 v{T+47}, v{vLANE}, 1, 1")
            I(f"v_add_lshl_u32 v{T+46}, v{T+46}, v{T+47}, 2")
        I(f"v_lshlrev_b32 v{qs}, 4, v{qs}")
        return qa, qs, QS

    def q_reduce2(qa, qs, QS, first=False):
        for v in range(5):
            I(f"ds_read_b128 {vr(T+4*v)}, v{qs} offset:{L_PB1 + 512 + v*PP}")
        for v in range(5):
            I(f"ds_read_b32 v{QS+v}, v{qa} offset:{L_PB1 + v*PP}")
        if first:
            for v in range(5):
                I(f"ds_read_b32 v{QS+5+v}, v{qa} offset:{L_PB1 + 256 + v*PP}")
        I(f"s_waitcnt lgkmcnt({10 if first else 5})")
        reduce_sum(5, rTOT)
        stats(0)
        I("s_waitcnt lgkmcnt(0)")
        I(f"v_add_f32 v{QS}, v{QS}, v{QS+1}")
        I(f"v_add_f32 v{QS+2}, v{QS+2}, v{QS+3}")
        I(f"v_add_f32 v{QS}, v{QS}, v{QS+4}")
        I(f"v_add_f32 v{QS}, v{QS}, v{QS+2}")
        if first:
            I(f"v_add_f32 v{vCSQ}, v{QS+5}, v{QS+6}")
            I(f"v_add_f32 v{QS+7}, v{QS+7}, v{QS+8}")
            I(f"v_add_f32 v{vCSQ}, v{vCSQ}, v{QS+9}")
            I(f"v_add_f32 v{vCSQ}, v{vCSQ}, v{QS+7}")
        I(f"v_fma_f32 v{rU}, -v{rMB}, v{vCSQ}, v{QS}")
        I(f"v_mul_f32 v{rU}, v{rU}, v{rR}")
        I(f"v_min_u32 v{rU}, 0xfffffffe, v{rU}")

    def q_gather(va, qa):
        G_ = 60 if y128 else T
        poll([f"buffer_load_dwordx2 v[{G_+2*k}:{G_+2*k+1}], v{va}, {WS}, s{sREG} offen offset:{k*512} sc1" for k in range(4)],
             list(range(G_, G_ + 8)), groups=[[G_ + 2 * k, G_ + 2 * k + 1] for k in range(4)], hop=16 if y128 else 0)
        Z_ = T + 40 if zq else T
        I(f"v_pk_add_f32 v[{Z_}:{Z_+1}], v[{G_}:{G_+1}], v[{G_+2}:{G_+3}]")
        I(f"v_pk_add_f32 v[{Z_+2}:{Z_+3}], v[{G_+4}:{G_+5}], v[{G_+6}:{G_+7}]")
        I(f"v_pk_add_f32 v[{Z_}:{Z_+1}], v[{Z_}:{Z_+1}], v[{Z_+2}:{Z_+3}]")
        I(f"v_cvt_pk_bf16_f32 v{Z_}, v{Z_}, v{Z_+1}")
        I(f"ds_write_b32 v{T+46 if sm else qa}, v{Z_} offset:{L_QB}")

    def lds_wait(off, val, ge=False):
        lab = a.newlab("Lw"); done = a.newlab("Lwd")
        I(f"v_mov_b32 v{T+47}, {L_FLAG}")
        a.label(lab)
        I(f"ds_read_b32 v{T+46}, v{T+47} offset:{off}")
        I(f"s_add_u32 s{sSPIN}, s{sSPIN}, 1")
        I("s_waitcnt lgkmcnt(0)")
        I(f"v_readfirstlane_b32 s{sT3}, v{T+46}")
        I(f"s_cmp_{'ge' if ge else 'eq'}_u32 s{sT3}, {val}")
        I(f"s_cbranch_scc1 {done}")
        I(f"s_cmp_lt_u32 s{sSPIN}, {spin_limit}")
        I(f"s_cbranch_scc1 {lab}")
        a.label(done)

    def sp(p):
        if prio: I(f"s_setprio {p}")

    I(f"v_mov_b32 v{rINV}, {f2u(1.0/640):#x}")
    I("s_waitcnt lgkmcnt(0)")
    I("s_barrier")
    TS(1)
    I(f"s_cmp_ge_u32 s{sWAVE}, 4")
    I("s_cbranch_scc1 L_s4567")
    srd(TA, 38, 640 * 8192)
    w_issue(nw0, RSL)
    TS(37)
    tr_addr(ta0, 64, sPER, T + 25)
    I(f"s_sub_u32 s{sPER}, s{sRING}, s{sPER}")
    I(f"v_bfe_u32 v{T+25}, v{vLANE}, 4, 1")
    I(f"v_lshl_add_u32 v{ta0}, v{T+25}, 5, v{ta0}")
    I(f"v_xor_b32 v{ta1}, 32, v{ta0}")
    I(f"s_waitcnt vmcnt({nis[0] - 5})")
    setexec(0x22222222, 0x22222222)
    for i in range(20):
        I(f"v_mov_b32 v{XQ+i}, 0x3f803f80")
    setexec(0xFFFFFFFF, 0xFFFFFFFF)
    for j in range(5):
        I(f"v_mfma_f32_16x16x32_bf16 {vr(BUF)}, {vr(XQ+4*j)}, {vr(XQ+4*j)}, {vr(BUF) if j else '0'}")
    for i in range(4):
        I(f"v_readlane_b32 s{sF+i}, v{BUF}, {20*i+1}")
        I(f"v_readlane_b32 s{sF+4+i}, v{BUF}, {20*i}")
    I(f"v_mov_b32 v{rMEAN}, s{sF}")
    I(f"v_mov_b32 v{rVAR}, s{sF+4}")
    for i in range(1, 4):
        I(f"v_add_f32 v{rMEAN}, s{sF+i}, v{rMEAN}")
        I(f"v_add_f32 v{rVAR}, s{sF+4+i}, v{rVAR}")
    I(f"v_mul_f32 v{rMEAN}, v{rMEAN}, v{rINV}")
    I(f"v_mul_f32 v{rVAR}, v{rVAR}, v{rINV}")
    stats(None)
    I(f"v_readfirstlane_b32 s{sMB}, v{rMB}")
    I(f"v_readfirstlane_b32 s{sRS_}, v{rR}")
    TS(2)
    def q_mma(u):
        for t in range(2):
            acc = ACC + 16 * t + 4 * (u & 3)
            I(f"v_mfma_f32_16x16x32_bf16 {vr(acc)}, {vr(BUF + 8*(u%4) + 4*t)}, {vr(XQ+4*(u>>2))}, {vr(acc) if u >= 4 else '0'}")
    for u in range(20):
        I(f"s_waitcnt vmcnt({nis[0] - wpos[2*u+1] - 1})")
        if u == 0: TS(38)
        o = slot(2 * u)[1]
        if 2 * u == (RSL if q2 else NPER):
            I(f"v_add_u32 v{ta0}, s{sPER}, v{ta0}")
            I(f"v_add_u32 v{ta1}, s{sPER}, v{ta1}")
        for t in range(2):
            b = BUF + 8 * (u % 4) + 4 * t
            I(f"ds_read_b64_tr_b16 v[{b}:{b+1}], v{(ta0, ta1)[t]} offset:{o}")
            I(f"ds_read_b64_tr_b16 v[{b+2}:{b+3}], v{(ta0, ta1)[t]} offset:{o+256}")
        if u:
            I("s_waitcnt lgkmcnt(4)")
            q_mma(u - 1)
            p = 2 * (u - 1) + NREST
            if RSL <= p < 40:
                w_issue(p, p + 2)
                if p + 2 == 40:
                    k_issue(nk[0], qk)
                    nis[0] += qk - nk[0]
                    TS(39)
    I(f"v_mov_b32 v{BUF+0}, {L_FLAG}")
    I(f"v_mov_b32 v{BUF+1}, 1")
    I(f"v_lshrrev_b32 v{BUF+2}, 4, v{vLANE}")
    if sm:
        I(f"v_and_b32 v{BUF+3}, 2, v{BUF+2}")
        I(f"v_add_lshl_u32 v{BUF+2}, v{BUF+2}, v{BUF+3}, 2")
    else:
        I(f"v_lshlrev_b32 v{BUF+2}, 3, v{BUF+2}")
    I(f"s_lshl_b32 s{sT0}, s{sWAVE}, 6")
    if sm: I(f"s_add_u32 s{sT0}, s{sT0}, {L_QB}")
    I(f"v_add_u32 v{BUF+2}, s{sT0}, v{BUF+2}")
    I(f"v_mov_b32 v{BUF+3}, s{sMB}")
    I(f"v_xor_b32 v{BUF+3}, 0x80000000, v{BUF+3}")
    I("s_waitcnt lgkmcnt(0)")
    q_mma(19)
    for aa in range(1, 4):
        for t in range(2):
            for i in range(4):
                d = ACC + 16 * t + i
                I(f"v_add_f32_dpp v{d}, v{d+4*aa}, v{d} row_shl:{4*aa} row_mask:0xf bank_mask:0xf")
    for t in range(2):
        for i in range(4):
            d = ACC + 16 * t + i
            I(f"v_fmac_f32_dpp v{d}, v{d}, v{BUF+3} quad_perm:[1,1,1,1] row_mask:0xf bank_mask:0xf")
    for t in range(2):
        for i in range(4):
            d = ACC + 16 * t + i
            I(f"v_mul_f32 v{d}, s{sRS_}, v{d}")
    for t in range(2):
        d = ACC + 16 * t
        I(f"v_cvt_pk_bf16_f32 v{d}, v{d}, v{d+1}")
        I(f"v_cvt_pk_bf16_f32 v{d+1}, v{d+2}, v{d+3}")
    setexec(0x00010001, 0x00010001)
    for t in range(2):
        d = ACC + 16 * t
        if sm: I(f"ds_write2_b32 v{BUF+2}, v{d}, v{d+1} offset0:{2*t} offset1:{2*t+8}")
        else: I(f"ds_write_b64 v{BUF+2}, v[{d}:{d+1}] offset:{L_QB + 32*t}")
    setexec(1, 0)
    I("s_waitcnt lgkmcnt(0)")
    I(f"ds_add_u32 v{BUF+0}, v{BUF+1} offset:12")
    setexec(0xFFFFFFFF, 0xFFFFFFFF)
    TS(5)
    sp(sp1)
    k_issue(qk, 16)
    I("s_branch L_vall")

    a.label("L_s4567")
    I(f"s_cmp_eq_u32 s{sWAVE}, 6")
    I("s_cbranch_scc0 L_krest")
    sp(3)
    I(f"s_mov_b32 s{sVOTE}, 0")
    I(f"s_sub_u32 s{sT0}, s{sR}, {calr}")
    I(f"s_cmp_lt_u32 s{sT0}, {ncal}")
    I("s_cbranch_scc0 L_ncal")
    MK = 0x13579bdf
    I(f"s_lshl_b32 s{sT0}, s{sT0}, 3")
    I(f"s_add_u32 s{sT0}, s{sT0}, s{sX}")
    I(f"s_lshl_b32 s{sT0}, s{sT0}, 7")
    I(f"s_add_u32 s88, s{sT0}, {CALOFF + 0x10000}")
    I(f"s_load_dword s86, s[56:57], s88 glc")
    I(f"s_add_u32 s{sT0}, s{sT0}, {CALOFF}")
    I(f"s_lshl_b32 s{sVOTE}, s{sR}, 13")
    I(f"s_and_b32 s{sVOTE}, s{sVOTE}, {CP}")
    I(f"s_add_u32 s{sT0}, s{sT0}, s{sVOTE}")
    I(f"s_xor_b32 s{sT3}, s{sT0}, {CP}")
    I(f"s_lshr_b32 s{sVOTE}, s{sVOTE}, 13")
    I(f"s_lshr_b32 s88, s{sXCC}, 2")
    I(f"s_xor_b32 s{sVOTE}, s{sVOTE}, s88")
    I("s_waitcnt lgkmcnt(0)")
    for k, (ad, cnt) in enumerate(((sT0, 88), (sT3, 89))):
        I(f"s_mov_b32 s86, {MK:#x}")
        I(f"s_mov_b32 s{cnt}, 0")
        I(f"s_load_dword s86, s[56:57], s{ad} glc")
        a.label(f"L_cal{k}")
        I(f"s_add_u32 s{cnt}, s{cnt}, 1")
        I(f"s_cmp_eq_u32 s86, {MK:#x}")
        I(f"s_cselect_b32 s87, s{cnt}, 1000")
        I(f"s_cmp_lt_u32 s87, 200")
        I(f"s_cbranch_scc1 L_cal{k}")
        I("s_waitcnt lgkmcnt(0)")
    I(f"s_cmp_gt_u32 s88, s89")
    I(f"s_cselect_b32 s{sT0}, 1, 0")
    I(f"s_xor_b32 s{sVOTE}, s{sVOTE}, s{sT0}")
    I(f"s_and_b32 s{sVOTE}, s{sVOTE}, 1")
    I(f"s_lshl_b32 s{sVOTE}, s{sVOTE}, 24")
    a.label("L_ncal")
    I(f"s_mul_i32 s{sT0}, s{sXCC}, 6")
    I(f"s_lshl_b64 s[{sF}:{sF+1}], 1, s{sT0}")
    I(f"s_cmp_lt_u32 s{sXCC}, 8")
    I(f"s_cselect_b32 s{sF}, s{sF}, 0")
    I(f"s_cselect_b32 s{sF+1}, s{sF+1}, 0")
    I(f"s_or_b32 s{sF+1}, s{sF+1}, 0x10000")
    I(f"s_or_b32 s{sF+1}, s{sF+1}, s{sVOTE}")
    srd(TA, 54, 256)
    I(f"v_mov_b32 v{vAT}, s{sF}")
    I(f"v_mov_b32 v{vAT+1}, s{sF+1}")
    I(f"s_lshl_b32 s{sT0}, s{sX}, 4")
    I(f"v_mov_b32 v{vAT+2}, s{sT0}")
    TS(33)
    I("s_waitcnt vmcnt(0)")
    setexec(1, 0)
    I(f"buffer_atomic_add_x2 v[{vAT}:{vAT+1}], v{vAT+2}, {TA}, 0 offen offset:128 sc1")
    setexec(0xFFFFFFFF, 0xFFFFFFFF)
    TS(32)
    sp(0)
    k_issue(0, n0)
    a.label("L_krest")
    k_issue(n0, 16)
    a.label("L_vall")
    v_issue()
    if the:
        I("s_mov_b32 s97, 0")
        I(f"s_cmp_eq_u32 s{sROLE}, 0")
        I("s_cbranch_scc1 L_the")
        I(f"v_lshrrev_b32 v{T+49}, 3, v{vLANE}")
        I(f"v_lshlrev_b32 v{T+49}, 7, v{T+49}")
        I(f"v_and_b32 v{T+50}, 7, v{vLANE}")
        I(f"v_lshl_add_u32 v{T+49}, v{T+50}, 3, v{T+49}")
        I(f"v_mov_b32 v{T+50}, -1")
        I(f"s_lshl_b32 s{sT1}, s{sXW}, 9")
        I(f"s_add_u32 s{sT1}, s{sT1}, {MLOFF}")
        setexec(0xFFFFFFFF, 0)
        I(f"buffer_load_dword v{T+50}, v{T+49}, {WS}, s{sT1} offen sc1")
        setexec(0xFFFFFFFF, 0xFFFFFFFF)
        a.label("L_the")
    if pst == 1: pf_static("L_ps", True)
    if pst >= 4 and (pst != 6 or pi): pf_static("L_ps", True, 1)
    TS(31)
    OA2, PS2, MI2 = (T + 36, T + 48, 28) if q2 == 3 else (T + 24, T + 32, 28)
    def att_pre(hi=44):
        for i in (range(4, hi) if q2 == 3 else range(32)):
            I(f"v_mov_b32 v{T+i}, 0")
        I(f"v_mov_b32 v{MI2+2}, {SCALE:#x}")
        I(f"v_mov_b32 v{MI2+3}, {SCALE:#x}")
        I(f"v_mov_b32 v{MI2+1}, s{sL2E}")
    def q_masked(fmt):
        setexec(0x000F000F, 0x000F000F)
        for t in range(4):
            I(fmt(T + 4 * t))
            I("s_lshl_b64 exec, exec, 4" if t < 3 else "s_mov_b64 exec, -1")
    if q2 >= 2: att_pre()
    for i in (range(0) if q2 >= 2 else range(4, 36) if q2 else range(24 if sm else 16)):
        I(f"v_mov_b32 v{T+i}, 0")
    if gate:
        I(f"v_mov_b32 v{T+44}, {L_FLAG}")
        I(f"v_mov_b32 v{T+45}, 1")
        setexec(1, 0)
        I(f"ds_add_u32 v{T+44}, v{T+45} offset:8")
        setexec(0xFFFFFFFF, 0xFFFFFFFF)
    lds_wait(12, 4, ge=True)
    TS(8)
    if q2 in (1, 3): I(f"ds_read_b128 {vr(T)}, v{vQR}")
    if q2 == 2:
        q_masked(lambda r_: f"ds_read_b128 {vr(r_)}, v{vQR}")
        I(f"s_mov_b64 s[{sKM}:{sKM+1}], 0")
    I("s_branch L_att")

    a.label("L_loop")
    I(f"s_cmp_eq_u32 s{sWAVE}, 6")
    I("s_cbranch_scc0 L_nsub")
    I(f"s_cmp_eq_u32 s{sROLE}, 0")
    if g3:
        I("s_cbranch_scc1 L_sub")
        I(f"s_cmp_lt_u32 s{sTB}, 54")
        I("s_cbranch_scc1 L_G3")
        I(f"s_and_b32 s{sT0}, s{sR}, 7")
        I(f"s_lshl_b32 s{sT0}, s{sT0}, 14")
        I(f"s_add_u32 s{sT0}, s{sT0}, s{sNEAR}")
        I(f"s_add_u32 s{sT0}, s{sT0}, {YOFF}")
        I(f"v_lshlrev_b32 v{T}, 7, v{vLANE}")
        light(f"buffer_load_dword v{T+1}, v{T}, {WS}, s{sT0} offen sc1", T + 1, (3, 0))
        I("s_branch L_G3")
        a.label("L_sub")
    else:
        I("s_cbranch_scc0 L_B1")
    SL, YD, YA, ya0, ya1, yo = T + 20, T, T + 24, T + 28, T + 29, T + 30
    srd(TA, 50, 1280)
    I(f"v_lshlrev_b32 v{ya0}, 4, v{vLANE}")
    for i in range(4):
        I(f"v_mov_b32 v{YD+i}, 0")
    I(f"s_lshl_b32 s{sT2}, s{sR}, 6")
    if m2:
        yz2 = T + 32
        I(f"v_and_b32 v{yz2}, 3, v{vLANE}")
        I(f"v_lshlrev_b32 v{ya1}, 3, v{yz2}")
        I(f"v_sub_u32 v{yz2}, v{ya0}, v{ya1}")
        setexec(0, 0xF)
        I(f"buffer_load_dwordx2 v[{YD}:{YD+1}], v{ya1}, {TA}, s{sT2} offen")
        I(f"buffer_load_dwordx2 v[{YD+2}:{YD+3}], v{ya1}, {TA}, s{sT2} offen offset:32")
    else:
        I(f"v_subrev_u32 v{ya1}, 512, v{ya0}")
        setexec(0, 0xF)
        I(f"buffer_load_dwordx4 {vr(YD)}, v{ya1}, {TA}, s{sT2} offen")
    setexec(0xFFFFFFFF, 0xFFFFFFFF)
    I(f"v_and_b32 v{yo}, 15, v{vLANE}")
    I(f"v_mov_b32 v{YA}, 0x3f80")
    I(f"v_mov_b32 v{YA+1}, 0x3f800000")
    for q_ in range(4):
        I(f"v_cmp_eq_u32 vcc, {2*q_}, v{yo}")
        I(f"v_cndmask_b32 v{SL+q_}, 0, v{YA}, vcc")
        I(f"v_cmp_eq_u32 vcc, {2*q_+1}, v{yo}")
        I(f"v_cndmask_b32 v{SL+q_}, v{SL+q_}, v{YA+1}, vcc")
    yw = T + 31
    I(f"v_and_b32 v{yw}, 0x3c0, v{ya0}")
    I(f"v_add_u32 v{yw}, v{yw}, v{ya0}")
    yz = yw if zx == 128 else ya0
    yy = yw if y128 else ya0
    I(f"v_mov_b32 v{ya1}, {BIG:#x}")
    I(f"v_cmp_gt_u32 vcc, 24, v{vLANE}")
    I(f"v_cndmask_b32 v{ya1}, v{ya1}, v{yy}, vcc")
    I(f"v_lshlrev_b32 v{yo}, {3 if m2 else 4}, v{yo}")
    I(f"v_lshrrev_b32 v{YA}, 4, v{vLANE}")
    I(f"v_lshl_add_u32 v{yo}, v{YA}, {5 if m2 else 3}, v{yo}")
    I(f"v_add_u32 v{yo}, s{sT2}, v{yo}")
    rank_off(sT0, sR, sT1)
    I(f"s_add_u32 s{sT3}, s{sREG}, s{sNEAR}")
    I(f"s_add_u32 s{sT0}, s{sT0}, s{sT3}")
    I(f"s_add_u32 s{sT0}, s{sT0}, {ZOFF - RS & 0xffffffff:#x}")
    setexec(0xFFFFFFFF, 0)
    if m2:
        poll([f"buffer_load_dwordx2 v[{YD}:{YD+1}], v{yz2}, {WS}, s{sT0} offen sc1",
              f"buffer_load_dwordx2 v[{YD+2}:{YD+3}], v{yz2}, {WS}, s{sT0} offen offset:32 sc1"], [YD, YD + 2], ex=(0xFFFFFFFF, 0))
    else:
        poll([f"buffer_load_dwordx4 {vr(YD)}, v{yz}, {WS}, s{sT0} offen sc1"], [YD], ex=(0xFFFFFFFF, 0))
    setexec(0xFFFFFFFF, 0xFFFFFFFF)
    I(f"v_mfma_f32_16x16x32_bf16 {vr(YA)}, {vr(SL)}, {vr(YD)}, 0")
    if m2:
        yi, y1_ = T + 33, T + 34
        I(f"v_and_b32 v{yi}, 10, v{vLANE}")
        I(f"v_mov_b32 v{y1_}, 0x3f80")
        I(f"v_cmp_eq_u32 vcc, 0, v{yi}")
        I(f"v_cndmask_b32 v{SL}, 0, v{y1_}, vcc")
        I(f"v_cndmask_b32 v{SL+2}, 0, v{y1_}, vcc")
        I(f"v_cmp_eq_u32 vcc, 2, v{yi}")
        I(f"v_cndmask_b32 v{SL+1}, 0, v{y1_}, vcc")
        I(f"v_cndmask_b32 v{SL+3}, 0, v{y1_}, vcc")
        I(f"v_and_b32 v{yi}, 1, v{vLANE}")
        I(f"v_bfe_u32 v{y1_}, v{vLANE}, 2, 1")
        I(f"v_lshl_add_u32 v{yi}, v{yi}, 1, v{y1_}")
        I(f"v_mul_u32_u24 v{yi}, 0x5555, v{yi}")
    I(f"s_and_b32 s{sT0}, s{sR}, 1")
    I(f"s_lshl_b32 s{sT0}, s{sT0}, {6 if y128 else 12}")
    I(f"s_lshr_b32 s{sT1}, s{sR}, 1")
    I(f"s_lshl_b32 s{sT1}, s{sT1}, 14")
    I(f"s_add_u32 s{sT0}, s{sT0}, s{sT1}")
    I(f"s_add_u32 s{sT0}, s{sT0}, s{sT3}")
    I(f"s_add_u32 s{sT0}, s{sT0}, {YOFF - RS & 0xffffffff:#x}")
    I(f"s_add_u32 s{sT1}, s{sT0}, {4096 if y128 else 2048}")
    I(f"s_lshl_b32 s{sT2}, s{sX}, 11")
    I(f"s_add_u32 s{sT2}, s{sT2}, {XOFF}")
    I("s_nop 7")
    TS(26)
    if p5 & 16: I("s_setprio 3")
    if yl:
        light(f"buffer_load_dword v{YD}, v{yy}, {WS}, s{sT0} offen {yfl}", YD, ((1 << yl) - 1, 0))
    if g3:
        I(f"s_cmp_eq_u32 s{sIT}, 2")
        I("s_cbranch_scc1 L_G3s")
        I("s_barrier")
        a.label("L_G3s")
    poll([f"buffer_load_dwordx4 {vr(YD+4*e)}, v{ya1 if e == 3 else yy}, {WS}, s{(sT0, sT1)[e >> 1]} offen offset:{(e & 1)*(2048 if y128 else 1024)} {yfl}" for e in range(4)],
         [YD + k for k in range(16)] if m2 else [YD + 2 * k for k in range(8)],
         groups=[list(range(YD + 4 * e, YD + 4 * e + 4)) if m2 else [YD + 4 * e, YD + 4 * e + 2] for e in range(4)], hop=4)
    TS(27)
    for e in range(2 if m2 else 4):
        if m2: I(f"v_smfmac_f32_16x16x64_bf16 {vr(YA)}, {vr(SL)}, {vr(YD+8*e, 8)}, v{yi}")
        else: I(f"v_mfma_f32_16x16x32_bf16 {vr(YA)}, {vr(SL)}, {vr(YD+4*e)}, {vr(YA)}")
    for m_ in (4, 8):
        for i in range(4):
            I(f"v_add_f32_dpp v{YA+i}, v{YA+i}, v{YA+i} row_ror:{m_} row_mask:0xf bank_mask:0xf")
    I(f"v_cvt_pk_bf16_f32 v{YA}, v{YA}, v{YA+1}")
    I(f"v_cvt_pk_bf16_f32 v{YA+1}, v{YA+2}, v{YA+3}")
    setexec(0x000F000F, 0)
    I(f"s_cmp_eq_u32 s{sIT}, 2")
    I("s_cbranch_scc0 L_lead1")
    I(f"buffer_store_dwordx2 v[{YA}:{YA+1}], v{yo}, {OUTS}, 0 offen")
    setexec(0xFFFFFFFF, 0xFFFFFFFF)
    TS(29)
    I("s_branch L_fin")
    a.label("L_lead1")
    I(f"v_min_u32 v{YA}, 0xfffffffe, v{YA}")
    I(f"v_min_u32 v{YA+1}, 0xfffffffe, v{YA+1}")
    lstore([f"buffer_store_dwordx2 v[{YA}:{YA+1}], v{yo}, {WS}, s{sT2} offen"])
    setexec(0xFFFFFFFF, 0xFFFFFFFF)
    TS(28)
    if p5 & 16: I("s_setprio 0")
    I("s_branch L_B1")
    if g3:
        a.label("L_G3")
        I("s_barrier")
        I("s_branch L_B1")
    a.label("L_nsub")
    I(f"s_cmp_ge_u32 s{sWAVE}, 5")
    I("s_cbranch_scc1 L_G3" if g3 else "s_cbranch_scc1 L_B1")
    IDX = vSEL + 4
    DPF = "row_mask:0xf bank_mask:0xf"
    if q2:
        ta, x1 = T + 24, T + 25
        I(f"s_lshl_b32 s{sT0}, s{sWAVE}, 13")
        I(f"s_add_u32 s{sT0}, s{sT0}, {L_PER}")
        I(f"v_lshrrev_b32 v{ta}, 5, v{vLANE}")
        I(f"v_lshlrev_b32 v{ta}, 10, v{ta}")
        I(f"v_bfe_u32 v{x1}, v{vLANE}, 4, 1")
        I(f"v_lshl_add_u32 v{ta}, v{x1}, 8, v{ta}")
        I(f"v_bfe_u32 v{x1}, v{vLANE}, 2, 1")
        I(f"v_lshl_add_u32 v{ta}, v{x1}, 6, v{ta}")
        I(f"v_and_b32 v{x1}, 3, v{vLANE}")
        I(f"v_lshl_add_u32 v{ta}, v{x1}, 3, v{ta}")
        I(f"v_bfe_u32 v{x1}, v{vLANE}, 3, 1")
        I(f"v_lshl_add_u32 v{ta}, v{x1}, 9, v{ta}")
        I(f"v_xor_b32 v{x1}, s{sSLOT}, v{x1}")
        I(f"v_and_b32 v{x1}, 1, v{x1}")
        I(f"v_lshl_add_u32 v{ta}, v{x1}, 5, v{ta}")
        I(f"v_add_u32 v{ta}, s{sT0}, v{ta}")
        for k_ in range(8):
            I(f"ds_read_b64_tr_b16 v[{vBQ+2*k_}:{vBQ+2*k_+1}], v{ta} offset:{(k_>>1)*2048 + (k_&1)*128}")
        for i in range(8):
            I(f"v_mov_b32 v{T+i}, 0")
        for i in range(4):
            I(f"v_mov_b32 v{XA+i}, 0x3f803f80")
        I(f"s_lshl_b32 s{sT2}, s{sX}, 11")
        I(f"s_add_u32 s{sT2}, s{sT2}, {XOFF}")
        I("s_waitcnt lgkmcnt(0)")
        TS(3)
        setexec(0x55555555, 0x55555555)
        poll([f"buffer_load_dwordx4 {vr(XA)}, v{vXO}, {WS}, s{sT2} offen sc1"], [XA, XA + 2], ex=(0x55555555, 0x55555555), hop=8)
        setexec(0xFFFFFFFF, 0xFFFFFFFF)
        TS(4)
        I(f"v_mfma_f32_16x16x32_bf16 {vr(T+8)}, {vr(XA)}, {vr(XA)}, 0")
        for k_ in range(2):
            I(f"v_smfmac_f32_16x16x64_bf16 {vr(T+4*k_)}, {vr(XA)}, {vr(vBQ+8*k_, 8)}, v{IDX}")
        I(f"ds_write_b64 v{vSW}, v[{T+8}:{T+9}]")
        I(f"v_pk_add_f32 v[{T}:{T+1}], v[{T}:{T+1}], v[{T+2}:{T+3}]")
        I("s_mov_b32 exec_lo, 0xffff0000")
        I("s_mov_b32 exec_hi, 0")
        I(f"v_pk_add_f32 v[{T}:{T+1}], v[{T+4}:{T+5}], v[{T+6}:{T+7}]")
        I("s_mov_b32 exec_lo, -1")
        I(f"ds_write_b64 v{vPQ}, v[{T}:{T+1}] offset:{L_PB1}")
        I("s_mov_b32 exec_hi, -1")
        I("s_waitcnt lgkmcnt(0)")
        TS(5)
        a.label("L_B1")
        I(f"v_mov_b32 v{rINV}, {f2u(1.0/640):#x}")
        I(f"s_add_u32 s{sT2}, s{sQS}, s{sREG}")
        I(f"s_sub_u32 s{sT2}, s{sT2}, {L_QB}")
        I(f"s_cmp_eq_u32 s{sWAVE}, 5")
        I("s_cbranch_scc1 L_B15")
        I("s_barrier")
        if q2 >= 2 and qb != 2: att_pre()
        if qb: I("s_barrier")
        if qb == 2: att_pre()
        I("s_branch L_B2")
        a.label("L_B15")
        if p5 & 1: I("s_setprio 3")
        if q2 >= 2: att_pre(32)
        I("s_barrier")
        TS(6)
        SQ = 60 if q2 >= 2 else 28
        PR = [32, 36, 40, T + 44, T + 48] if q2 >= 2 else [T + 4 * v for v in range(5)]
        for v in range(5):
            I(f"ds_read_b64 v[{SQ+2*v}:{SQ+2*v+1}], v{vCSQ} offset:{L_PB1 + 512 + v*PP}")
        for v in range(5):
            I(f"ds_read_b128 {vr(PR[v])}, v{vQG} offset:{L_PB1 + v*PP}")
        I("s_waitcnt lgkmcnt(5)")
        for d_, s_ in ((0, 1), (2, 3), (0, 4), (0, 2)):
            I(f"v_pk_add_f32 v[{SQ+2*d_}:{SQ+2*d_+1}], v[{SQ+2*d_}:{SQ+2*d_+1}], v[{SQ+2*s_}:{SQ+2*s_+1}]")
        for m_ in ("quad_perm:[1,0,3,2]", "quad_perm:[2,3,0,1]"):
            I(f"v_add_f32_dpp v{SQ+1}, v{SQ+1}, v{SQ+1} {m_} {DPF}")
            I(f"v_add_f32_dpp v{SQ}, v{SQ}, v{SQ} {m_} {DPF}")
        I(f"v_mul_f32 v{rMEAN}, v{SQ+1}, v{rINV}")
        I(f"v_mul_f32 v{rVAR}, v{SQ}, v{rINV}")
        stats(None)
        I("s_waitcnt lgkmcnt(0)")
        for d_, s_ in ((0, 1), (2, 3), (4, 5), (6, 7), (8, 9), (0, 2), (4, 6), (0, 8), (0, 4)):
            d_, s_ = PR[d_ >> 1] + 2 * (d_ & 1), PR[s_ >> 1] + 2 * (s_ & 1)
            I(f"v_pk_add_f32 v[{d_}:{d_+1}], v[{d_}:{d_+1}], v[{s_}:{s_+1}]")
        I(f"v_fma_f32 v{rU}, -v{rMB}, v{PR[0]+1}, v{PR[0]}")
        I(f"v_mul_f32_dpp v{rT}, v{rU}, v{rR} quad_perm:[0,0,2,2] {DPF}")
        I(f"v_mul_f32_dpp v{rU}, v{rU}, v{rR} quad_perm:[1,1,3,3] {DPF}")
        I(f"v_cvt_pk_bf16_f32 v{rU}, v{rT}, v{rU}")
        I(f"v_min_u32 v{rU}, 0xfffffffe, v{rU}")
        TS(7)
        lstore([f"buffer_store_dword v{rU}, v{vQP}, {WS}, s{sREG} offen"], True)
        if p5 & 1: I("s_setprio 0")
        if qb: I("s_barrier")
        if q2 in (1, 3): I(f"buffer_load_ushort v{vXF}, v{vXFA}, {WS}, 0 offen sc1")
        if q2 == 3:
            for i in range(32, 44): I(f"v_mov_b32 v{T+i}, 0")
        a.label("L_B2")
        if q2 in (1, 3):
            if ap:
                I(f"s_cmp_lt_u32 s{sWAVE}, 4")
                I("s_cbranch_scc0 L_ap")
                I(f"s_setprio {ap}")
                a.label("L_ap")
            for i in (range(4, 36) if q2 == 1 else []):
                I(f"v_mov_b32 v{T+i}, 0")
            poll([f"buffer_load_dwordx4 {vr(T)}, v{vQR}, {WS}, s{sT2} offen sc1"], list(range(T, T + 4)), hop=32)
        else:
            if ap:
                I(f"s_cmp_lt_u32 s{sWAVE}, 4")
                I("s_cbranch_scc0 L_ap")
                I(f"s_setprio {ap}")
                a.label("L_ap")
            I(f"s_mov_b64 s[{sKM}:{sKM+1}], -1")
            a.label("L_qp")
            q_masked(lambda r_: f"buffer_load_dwordx4 {vr(r_)}, v{vQR}, {WS}, s{sT2} offen sc1")
            I(f"s_add_u32 s{sSPIN}, s{sSPIN}, 1")
            I(f"s_cmp_ge_u32 s{sSPIN}, {spin_limit}")
            I("s_cbranch_scc1 L_qd")
            I("s_waitcnt vmcnt(3)")
            cur = maxtree(T + 50, range(T, T + 4))
            I(f"v_cmp_eq_u32 vcc, -1, v{cur}")
            I("s_cbranch_vccnz L_qp")
            a.label("L_qd")
            I("s_waitcnt vmcnt(0)")
        TS(8)

    if not q2:
        I(f"s_lshl_b32 s{sT0}, s{sWAVE}, 11")
        I(f"s_and_b32 s{sT1}, s{sSLOT}, 4")
        I(f"s_mul_i32 s{sT1}, s{sT1}, {NPER * 512}")
        I(f"s_add_u32 s{sT0}, s{sT0}, s{sT1}")
        I(f"s_add_u32 s{sT0}, s{sT0}, {L_PER}")
        ta = T + 24
        tr_addr(ta, 64, sT0, T + 25)
        I(f"v_bfe_u32 v{T+25}, v{vLANE}, 4, 1")
        I(f"v_lshl_add_u32 v{ta}, v{T+25}, 5, v{ta}")
        I(f"v_xor_b32 v{ta+1}, 32, v{ta}")
        for t in range(4):
            o = (t >> 1) * NPER * 1024
            I(f"ds_read_b64_tr_b16 v[{vBQ+4*t}:{vBQ+4*t+1}], v{ta+(t&1)} offset:{o}")
            I(f"ds_read_b64_tr_b16 v[{vBQ+4*t+2}:{vBQ+4*t+3}], v{ta+(t&1)} offset:{o+256}")
        ones()
        I("s_waitcnt lgkmcnt(0)")
        for t in range(4):
            I(f"v_mfma_f32_16x16x32_bf16 {vr(T+4*t)}, {vr(vBQ+4*t)}, {vr(ONES)}, 0")
        I(f"s_mov_b64 exec, s[{sKM}:{sKM+1}]")
        for t in range(4):
            I(f"ds_write_b128 v{vPQ}, {vr(T+4*t)} offset:{L_PB1 + 256 + t*64}")
        I("s_mov_b64 exec, -1")
        I(f"s_lshl_b32 s{sT2}, s{sX}, 11")
        I(f"s_add_u32 s{sT2}, s{sT2}, {XOFF}")
        if g3: I("s_barrier")
        TS(3)
        if xl:
            light(f"buffer_load_dword v{XA}, v{vXO}, {WS}, s{sT2} offen sc1", XA, (xl, 0))
        poll([f"buffer_load_dwordx4 {vr(XA)}, v{vXO}, {WS}, s{sT2} offen sc1"], list(range(XA, XA + 4)), hop=8)
        TS(4)
        gemv_q()
        TS(5)
        a.label("L_B1")
        I(f"v_mov_b32 v{rINV}, {f2u(1.0/640):#x}")
        qa, qs, QS = q_reduce()
        I("s_barrier")
        I(f"s_cmp_eq_u32 s{sWAVE}, 5")
        I("s_cbranch_scc1 L_B15")
        I("s_waitcnt vmcnt(0)")
        I("s_branch L_B2")
        a.label("L_B15")
        TS(6)
        q_reduce2(qa, qs, QS, first=True)
        TS(7)
        lstore([f"buffer_store_dword v{rU}, v{vQP}, {WS}, s{sREG} offen"], True)
        if zq:
            assert y128
            for i in range(24 if sm else 16):
                I(f"v_mov_b32 v{T+i}, 0")
        q_gather(vQG, qa)
        TS(8)
        I(f"buffer_load_ushort v{vXF}, v{vXFA}, {WS}, 0 offen sc1")
        I("s_waitcnt lgkmcnt(0)")
        if zq: I("s_branch L_B2b")
        a.label("L_B2")
    BT = T
    ST = T + 16
    PS = T + 32
    MI = T + 36
    OA = T + 44
    if q2 >= 2:
        PS, MI, OA = PS2, MI2, OA2
        a.label("L_att")
    elif q2:
        PS = 28
        a.label("L_att")
    else:
        for i in range(24 if sm else 16):
            I(f"v_mov_b32 v{BT+i}, 0")
        if zq: a.label("L_B2b")
        I("s_barrier")
        a.label("L_att")
        TS(9)
        for t in range(4):
            m = 0x000F000F << (4 * t)
            setexec(m, m)
            I(f"ds_read_b128 {vr(BT+4*t)}, v{vQR}")
        setexec(0xFFFFFFFF, 0xFFFFFFFF)
    I("s_waitcnt vmcnt(16) lgkmcnt(0)")
    TS(10)
    vM = MI + 4; vL = MI + 5; vT_ = MI + 6; vPK = MI + 7
    IDX = vSEL + 4
    DPF = "row_mask:0xf bank_mask:0xf"
    if sm:
        if q2 == 2:
            for Tq in range(2):
                for t in range(4):
                    I(f"v_smfmac_f32_16x16x64_bf16 {vr(ST+4*Tq)}, {vr(BT+4*t)}, {vr(vK+8*(Tq+2*t), 8)}, v{IDX}")
                    D = ST
                    if Tq == 1 and t == 1: I(f"v_pk_add_f32 v[{D}:{D+1}], v[{D}:{D+1}], v[{D+2}:{D+3}]")
                    if Tq == 1 and t == 2: I(f"v_mov_b32_dpp v{PS}, v{D} quad_perm:[0,0,2,2] {DPF}")
                    if Tq == 1 and t == 3: I(f"v_add_f32_dpp v{PS}, v{D+1}, v{PS} quad_perm:[1,1,3,3] {DPF}")
            D = ST + 4
            I(f"v_pk_add_f32 v[{D}:{D+1}], v[{D}:{D+1}], v[{D+2}:{D+3}]")
            I(f"v_mov_b32_dpp v{PS+1}, v{D} quad_perm:[0,0,2,2] {DPF}")
            I(f"v_add_f32_dpp v{PS+1}, v{D+1}, v{PS+1} quad_perm:[1,1,3,3] {DPF}")
            ST = T
            BT = T + 40
        elif q2 == 3:
            PM = T + 44
            for i in range(10):
                if i < 8: I(f"v_smfmac_f32_16x16x64_bf16 {vr(T+4+4*i)}, {vr(T)}, {vr(vK+8*i, 8)}, v{IDX}")
                j = i - 2
                if j < 0: continue
                D = T + 4 + 4 * j; P_ = PM + 2 * (j & 1)
                if pk3:
                    if j == 0: I("s_mov_b64 exec, 0xffff")
                    elif j % 2 == 0: I("s_lshl_b64 exec, exec, 16")
                    I(f"v_pk_add_f32 v[{P_}:{P_+1}], v[{D}:{D+1}], v[{D+2}:{D+3}]")
                else:
                    for c in range(2):
                        I(f"v_add_f32_dpp v{P_+c}, v{D+c}, v{D+2+c} quad_perm:[0,1,2,3] row_mask:{1 << (j >> 1):#x} bank_mask:0xf")
                if j == 7 and pk3: I("s_mov_b64 exec, -1")
                if j >= 6:
                    pass
            for Tq in range(2):
                I(f"v_mov_b32_dpp v{PS+Tq}, v{PM+2*Tq} quad_perm:[0,0,2,2] {DPF}")
            for Tq in range(2):
                I(f"v_add_f32_dpp v{PS+Tq}, v{PM+2*Tq+1}, v{PS+Tq} quad_perm:[1,1,3,3] {DPF}")
        elif q2:
            fill = [f"v_mov_b32 v{OA+i}, 0" for i in range(8)] + [f"v_mov_b32 v{MI+2}, {SCALE:#x}", f"v_mov_b32 v{MI+3}, {SCALE:#x}", f"v_mov_b32 v{MI+1}, s{sL2E}"]
            def po(k_, i):
                if not 0 <= i < 8:
                    return fill.pop() if fill and i < 0 else None
                D = T + 4 + 4 * i; rm = f"row_mask:{1 << (i >> 1):#x} bank_mask:0xf"
                return [f"v_pk_add_f32 v[{D}:{D+1}], v[{D}:{D+1}], v[{D+2}:{D+3}]",
                        f"v_mov_b32_dpp v{PS+(i&1)}, v{D} quad_perm:[0,0,2,2] {rm}",
                        f"v_add_f32_dpp v{PS+(i&1)}, v{D+1}, v{PS+(i&1)} quad_perm:[1,1,3,3] {rm}"][k_]
            for i in range(12):
                if i < 8: I(f"v_smfmac_f32_16x16x64_bf16 {vr(T+4+4*i)}, {vr(T)}, {vr(vK+8*i, 8)}, v{IDX}")
                if i == 8:
                    while fill: I(fill.pop())
                for k_, d_ in ((2, 4), (1, 3), (0, 2)):
                    x_ = po(k_, i - d_)
                    if x_: I(x_)
        else:
            for Tq in range(2):
                for t in range(4):
                    I(f"v_smfmac_f32_16x16x64_bf16 {vr(ST+4*Tq)}, {vr(BT+4*t)}, {vr(vK+8*(Tq+2*t), 8)}, v{IDX}")
                    if Tq == 0:
                        I(f"v_mov_b32 v{OA+2*t}, 0")
                        I(f"v_mov_b32 v{OA+2*t+1}, 0")
            I(f"v_mov_b32 v{MI+2}, {SCALE:#x}")
            I(f"v_mov_b32 v{MI+3}, {SCALE:#x}")
            I(f"v_mov_b32 v{MI+1}, s{sL2E}")
            for Tq in range(2):
                D = ST + 4 * Tq
                I(f"v_pk_add_f32 v[{D}:{D+1}], v[{D}:{D+1}], v[{D+2}:{D+3}]")
                I(f"v_mov_b32_dpp v{PS+Tq}, v{D} quad_perm:[0,0,2,2] {DPF}")
                I(f"v_add_f32_dpp v{PS+Tq}, v{D+1}, v{PS+Tq} quad_perm:[1,1,3,3] {DPF}")
        I(f"v_cvt_pk_bf16_f32 v{MI}, v{PS}, v{PS+1}")
        unpack(PS, PS + 1, MI)
        I(f"v_pk_mul_f32 v[{PS}:{PS+1}], v[{PS}:{PS+1}], v[{MI+2}:{MI+3}]")
        I(f"v_cvt_pk_bf16_f32 v{MI}, v{PS}, v{PS+1}")
        unpack(PS, PS + 1, MI)
        I(f"v_max_f32 v{vM}, v{PS}, v{PS+1}")
        if q2 == 2:
            I(f"v_cmp_u_f32 vcc, v{PS}, v{PS+1}")
            I(f"s_and_b64 vcc, vcc, s[{sKM}:{sKM+1}]")
            I("s_cbranch_scc1 L_qslow")
        I(f"v_max_f32_dpp v{vM}, v{vM}, v{vM} quad_perm:[2,3,0,1] {DPF}")
        I(f"v_max_f32_dpp v{vM}, v{vM}, v{vM} row_ror:4 {DPF}")
        I(f"v_max_f32_dpp v{vM}, v{vM}, v{vM} row_ror:8 {DPF}")
        I(f"v_max_f32_dpp v{vM}, v{vM}, v{vM} row_bcast:15 row_mask:0xa bank_mask:0xf")
        I(f"v_max_f32_dpp v{vM}, v{vM}, v{vM} row_bcast:31 row_mask:0xc bank_mask:0xf")
        I(f"v_readlane_b32 s{sM}, v{vM}, 63")
        I(f"v_mul_f32 v{vT_}, s{sM}, v{MI+1}")
        for Tq in range(2):
            I(f"v_fma_f32 v{PS+Tq}, v{PS+Tq}, v{MI+1}, -v{vT_}")
        for Tq in range(2):
            I(f"v_exp_f32 v{PS+Tq}, v{PS+Tq}")
    else:
        for Tt in range(4):
            for t in range(4):
                I(f"v_mfma_f32_16x16x32_bf16 {vr(ST+4*Tt)}, {vr(vK+4*(4*Tt+t))}, {vr(BT+4*t)}, {'0' if t == 0 else vr(ST+4*Tt)}")
        for Tt in range(4):
            I(f"v_mov_b32_dpp v{PS+Tt}, v{ST+4*Tt} quad_perm:[0,0,0,0] row_mask:0xf bank_mask:0xf")
            for c in range(1, 4):
                I(f"v_add_f32_dpp v{PS+Tt}, v{ST+4*Tt+c}, v{PS+Tt} quad_perm:[{c},{c},{c},{c}] row_mask:0xf bank_mask:0xf")
        I(f"v_mov_b32 v{MI+2}, {SCALE:#x}")
        I(f"v_mov_b32 v{MI+3}, {SCALE:#x}")
        I(f"v_cvt_pk_bf16_f32 v{MI}, v{PS}, v{PS+1}")
        I(f"v_cvt_pk_bf16_f32 v{MI+1}, v{PS+2}, v{PS+3}")
        unpack(PS, PS + 1, MI)
        unpack(PS + 2, PS + 3, MI + 1)
        I(f"v_pk_mul_f32 v[{PS}:{PS+1}], v[{PS}:{PS+1}], v[{MI+2}:{MI+3}]")
        I(f"v_pk_mul_f32 v[{PS+2}:{PS+3}], v[{PS+2}:{PS+3}], v[{MI+2}:{MI+3}]")
        I(f"v_cvt_pk_bf16_f32 v{MI}, v{PS}, v{PS+1}")
        I(f"v_cvt_pk_bf16_f32 v{MI+1}, v{PS+2}, v{PS+3}")
        unpack(PS, PS + 1, MI)
        unpack(PS + 2, PS + 3, MI + 1)
        vM = MI + 4; vL = MI + 5; vT_ = MI + 6; vPK = MI + 7
        I(f"v_max3_f32 v{vM}, v{PS}, v{PS+1}, v{PS+2}")
        I(f"v_max_f32 v{vM}, v{vM}, v{PS+3}")
        I(f"v_max_f32_dpp v{vM}, v{vM}, v{vM} row_ror:4 row_mask:0xf bank_mask:0xf")
        I(f"v_max_f32_dpp v{vM}, v{vM}, v{vM} row_ror:8 row_mask:0xf bank_mask:0xf")
        I(f"v_max_f32_dpp v{vM}, v{vM}, v{vM} row_bcast:15 row_mask:0xa bank_mask:0xf")
        I(f"v_max_f32_dpp v{vM}, v{vM}, v{vM} row_bcast:31 row_mask:0xc bank_mask:0xf")
        I(f"v_mov_b32 v{MI}, s{sL2E}")
        I(f"v_readlane_b32 s{sM}, v{vM}, 63")
        I(f"v_mul_f32 v{vT_}, s{sM}, v{MI}")
        for Tt in range(4):
            I(f"v_fma_f32 v{PS+Tt}, v{PS+Tt}, v{MI}, -v{vT_}")
        for Tt in range(4):
            I(f"v_exp_f32 v{PS+Tt}, v{PS+Tt}")
    TS(11)
    I(f"s_cmp_eq_u32 s{sIT}, 0")
    I("s_cbranch_scc0 L_PV")
    I(f"s_cmp_eq_u32 s{sLATE}, 0")
    I("s_cbranch_scc1 L_PVe")
    role_dma()
    TS(25)
    I("s_branch L_PV")
    a.label("L_PVe")
    if esy:
        I(f"s_cmp_eq_u32 s{sWAVE}, 7")
        I("s_cbranch_scc0 L_PVe2")
        srd(TA, 54, 256)
        I(f"v_lshlrev_b32 v{BT+2}, 4, v{vLANE}")
        setexec(0xFF, 0)
        I(f"buffer_load_dwordx2 v[{BT}:{BT+1}], v{BT+2}, {TA}, 0 offen offset:128 {syfl}")
        setexec(0xFFFFFFFF, 0xFFFFFFFF)
        I("s_waitcnt vmcnt(1)")
        I("s_branch L_PV")
        a.label("L_PVe2")
    I(f"s_waitcnt vmcnt({1 if pst == 1 or (pst >= 4 and (pst != 6 or pi)) else 0})")
    a.label("L_PV")
    if sm:
        I(f"v_cvt_pk_bf16_f32 v{vPK}, v{PS}, v{PS+1}")
        I(f"v_add_f32 v{vL}, v{PS}, v{PS+1}")
        I(f"v_mov_b32_dpp v{vT_}, v{vPK} row_half_mirror {DPF}")
        lred = [f"v_add_f32_dpp v{vL}, v{vL}, v{vL} quad_perm:[2,3,0,1] {DPF}",
                f"v_add_f32_dpp v{vL}, v{vL}, v{vL} row_ror:4 {DPF}",
                f"v_add_f32_dpp v{vL}, v{vL}, v{vL} row_ror:8 {DPF}",
                f"v_add_f32_dpp v{vL}, v{vL}, v{vL} row_bcast:15 row_mask:0xa bank_mask:0xf",
                f"v_add_f32_dpp v{vL}, v{vL}, v{vL} row_bcast:31 row_mask:0xc bank_mask:0xf",
                f"ds_write_b64 v{vMLW}, v[{vM}:{vL}]"]
        def mkA(Tt):
            x_, y_ = Tt >> 1, Tt & 1
            for w in sorted(range(4), key=lambda w: (w & 1) != x_):
                src, p_ = (vPK, 2 * y_) if (w & 1) == x_ else (vT_, 3 - 2 * y_)
                I(f"v_and_b32_dpp v{ST+4*Tt+w}, v{src}, v{vSEL+w} quad_perm:[{p_},{p_},{p_},{p_}] {DPF}")
        mkA(0)
        for Tt in range(4):
            for hf in range(2):
                j1 = Tt * 4 + hf * 2 + 1
                if hf == 0 and Tt < 3: mkA(Tt + 1) if Tt == 0 else None
                I(f"s_waitcnt vmcnt({15 - j1 + 8})")
                I(f"v_smfmac_f32_16x16x64_bf16 {vr(OA+4*hf)}, {vr(ST+4*Tt)}, {vr(vV+4*(j1-1), 8)}, v{IDX} abid:1")
                if hf == 0 and Tt < 2: mkA(Tt + 2)
                elif lred:
                    I(lred.pop(0))
                    if Tt >= 2 and lred: I("s_nop 0"); I(lred.pop(0))
        for x_ in lred: I(x_)
    else:
        for Tt in range(4):
            AB = ST + 8 * (Tt & 1)
            I(f"v_mov_b32_dpp v{vT_}, v{PS+Tt} row_half_mirror row_mask:0xf bank_mask:0xf")
            I(f"v_cvt_pk_bf16_f32 v{vPK}, v{PS+Tt}, v{vT_}")
            for u in range(2):
                for r in range(4):
                    I(f"v_perm_b32 v{AB+4*u+r}, v{vPK}, v{vPK}, v{vSEL+4*u+r}")
            if Tt == 1:
                I(f"v_add_f32 v{vL}, v{PS}, v{PS+1}")
                I(f"v_add_f32 v{MI+1}, v{PS+2}, v{PS+3}")
                I(f"v_add_f32 v{vL}, v{vL}, v{MI+1}")
                I(f"v_add_f32_dpp v{vL}, v{vL}, v{vL} row_ror:4 row_mask:0xf bank_mask:0xf")
                I(f"v_add_f32_dpp v{vL}, v{vL}, v{vL} row_ror:8 row_mask:0xf bank_mask:0xf")
                I(f"v_add_f32_dpp v{vL}, v{vL}, v{vL} row_bcast:15 row_mask:0xa bank_mask:0xf")
                I(f"v_add_f32_dpp v{vL}, v{vL}, v{vL} row_bcast:31 row_mask:0xc bank_mask:0xf")
                I(f"ds_write_b64 v{vMLW}, v[{vM}:{vL}]")
            for u in range(2):
                i1 = Tt * 4 + u * 2 + 1
                I(f"s_waitcnt vmcnt({15 - i1 + 8})")
                for hf in range(2):
                    i = Tt * 4 + u * 2 + hf
                    first = (Tt == 0 and u == 0)
                    I(f"v_mfma_f32_16x16x32_bf16 {vr(OA+4*hf)}, {vr(AB+4*u)}, {vr(vV+4*i)}, {'0' if first else vr(OA+4*hf)}")
    TS(12)
    setexec(0x00FF00FF, 0xFF00FF00)
    I(f"ds_write_b128 v{vOW}, {vr(OA)}")
    I(f"ds_write_b128 v{vOW}, {vr(OA+4)} offset:256")
    setexec(0xFFFFFFFF, 0xFFFFFFFF)
    I(f"s_cmp_eq_u32 s{sIT}, 0")
    I("s_cbranch_scc0 L_B3")
    sp(0)
    I(f"s_cmp_eq_u32 s{sLATE}, 0")
    I("s_cbranch_scc0 L_B3")
    I(f"s_cmp_eq_u32 s{sWAVE}, 7")
    I("s_cbranch_scc0 L_erd")
    sp(3)
    srd(TA, 54, 256)
    if q2 == 2: I(f"v_lshlrev_b32 v{BT+2}, 4, v{vLANE}")
    setexec(0xFF, 0)
    if not esy:
        I(f"v_lshlrev_b32 v{BT+2}, 4, v{vLANE}")
        I(f"buffer_load_dwordx2 v[{BT}:{BT+1}], v{BT+2}, {TA}, 0 offen offset:128 {syfl}")
    a.label("L_sync")
    I(f"s_add_u32 s{sSPIN}, s{sSPIN}, 4")
    I("s_waitcnt vmcnt(0)")
    I(f"v_and_b32 v{BT+3}, {1 << 21:#x}, v{BT+1}")
    I(f"v_cmp_eq_u32 vcc, 0, v{BT+3}")
    I("s_cbranch_vccz L_syncd")
    I(f"buffer_load_dwordx2 v[{BT}:{BT+1}], v{BT+2}, {TA}, 0 offen offset:128 sc1")
    I(f"s_cmp_lt_u32 s{sSPIN}, {spin_limit}")
    I("s_cbranch_scc1 L_sync")
    I("s_waitcnt vmcnt(0)")
    a.label("L_syncd")
    I(f"v_lshrrev_b32 v{BT+3}, 24, v{BT+1}")
    I(f"v_readlane_b32 s64, v{BT}, s{sX}")
    I(f"v_readlane_b32 s65, v{BT+1}, s{sX}")
    for m_ in ("quad_perm:[1,0,3,2]", "quad_perm:[2,3,0,1]", "row_half_mirror"):
        I(f"v_add_u32_dpp v{BT+3}, v{BT+3}, v{BT+3} {m_} row_mask:0xf bank_mask:0xf")
    I(f"s_mul_i32 s{sT0}, s{sXCC}, 6")
    I(f"s_lshr_b64 s[64:65], s[64:65], s{sT0}")
    I(f"s_and_b32 s64, s64, 63")
    I(f"s_cmp_eq_u32 s64, 32")
    I(f"s_cselect_b32 s{sT1}, 1, 0")
    I(f"s_cmp_lt_u32 s{sXCC}, 8")
    I(f"s_cselect_b32 s{sT1}, s{sT1}, 0")
    I(f"v_readfirstlane_b32 s{sT0}, v{BT+3}")
    setexec(0xFFFFFFFF, 0xFFFFFFFF)
    I(f"s_cmp_gt_u32 s{sT0}, {4 * ncal}")
    I(f"s_cselect_b32 s{sT0}, 1, 0")
    I(f"s_lshr_b32 s{sT2}, s{sXCC}, 2")
    I(f"s_xor_b32 s{sT0}, s{sT0}, s{sT2}")
    I(f"s_and_b32 s{sT0}, s{sT0}, {1 if dual else 0}")
    I(f"s_lshl_b32 s{sT0}, s{sT0}, 13")
    I(f"s_or_b32 s{sT0}, s{sT0}, s{sT1}")
    I(f"v_mov_b32 v{BT}, s{sT0}")
    I(f"v_mov_b32 v{BT+1}, {L_FLAG}")
    I(f"ds_write_b32 v{BT+1}, v{BT}")
    TS(35)
    sp(0)
    if pf:
        assert tw == 7 and dyn and not emd
        setexec(1, 0)
        I(f"ds_write_b32 v{BT+1}, v{vTK} offset:4")
        setexec(0xFFFFFFFF, 0xFFFFFFFF)
    a.label("L_erd")
    I(f"s_cmp_eq_u32 s{sROLE}, 0")
    if dyn and not pf:
        I("s_cbranch_scc1 L_erd2")
        I(f"s_cmp_eq_u32 s{sWAVE}, {tw}")
        I("s_cbranch_scc0 L_erd1" if emd else "s_cbranch_scc0 L_B3")
        I(f"v_mov_b32 v{BT+1}, {L_FLAG}")
        if emd: I(f"v_add_u32 v{vRDMA}, 1, v{vRDMA}")
        setexec(1, 0)
        I(f"ds_write_b32 v{BT+1}, v{vRDMA} offset:4")
        setexec(0xFFFFFFFF, 0xFFFFFFFF)
        if emd:
            a.label("L_erd1")
            if emd == 2:
                I(f"v_mov_b32 v{BT+1}, {L_FLAG}")
                I(f"v_mov_b32 v{BT}, 1")
                setexec(1, 0)
                I("s_waitcnt lgkmcnt(0)")
                I(f"ds_add_u32 v{BT+1}, v{BT} offset:12")
                setexec(0xFFFFFFFF, 0xFFFFFFFF)
                I(f"s_cmp_eq_u32 s{sWAVE}, 7")
                I("s_cbranch_scc0 L_erd3")
                lds_wait(12, 12, ge=True)
                TS(13)
                I(f"ds_read_b64 v[{T+38}:{T+39}], v{T+47}")
                I("s_branch L_comb")
                a.label("L_erd3")
            I(f"s_cmp_lt_u32 s{sWAVE}, {emw}")
            I("s_cbranch_scc0 L_B3")
            e0, e1, e2, e3 = BT, BT + 1, BT + 2, BT + 3
            npc = 40 // emw
            I(f"v_lshrrev_b32 v{e0}, 2, v{vLANE}")
            I(f"v_mul_u32_u24 v{e0}, 3456, v{e0}")
            I(f"v_and_b32 v{e1}, 3, v{vLANE}")
            I(f"v_lshl_add_u32 v{BT+4}, v{e1}, 4, v{e0}")
            I(f"v_lshrrev_b32 v{e0}, 3, v{vLANE}")
            I(f"v_mul_u32_u24 v{e2}, 1280, v{e0}")
            I(f"v_and_b32 v{e1}, 7, v{vLANE}")
            I(f"v_lshlrev_b32 v{e1}, 4, v{e1}")
            I(f"v_bfe_u32 v{e0}, v{vLANE}, 4, 1")
            I(f"v_lshlrev_b32 v{e0}, 5, v{e0}")
            I(f"v_xor_b32 v{e1}, v{e1}, v{e0}")
            I(f"v_xor_b32 v{e0}, 64, v{e1}")
            I(f"v_add_u32 v{e3}, v{e2}, v{e0}")
            I(f"v_add_u32 v{e2}, v{e2}, v{e1}")
            lds_wait(4, 1, ge=True)
            I(f"s_sub_u32 s{sTB}, s{sT3}, 1")
            I(f"s_mul_hi_u32 s{sT0}, s{sTB}, 0x2aaaaab")
            I(f"s_mul_i32 s{sT0}, s{sT0}, 96")
            I(f"s_sub_u32 s{sTB}, s{sTB}, s{sT0}")
            I(f"s_cmp_lt_u32 s{sTB}, 54")
            I("s_cbranch_scc0 L_B3")
            if g8: lds_wait(8, g8, ge=True)
            srd(TB, 44, 640 * 3456)
            I(f"s_mul_i32 s{sT1}, s{sWAVE}, {npc*16*3456}")
            I(f"s_lshl_b32 s{sT0}, s{sTB}, 6")
            I(f"s_add_u32 s{sT0}, s{sT0}, s{sT1}")
            I(f"s_mul_i32 s{sT1}, s{sWAVE}, {npc*1024}")
            for e in range(npc):
                I(f"s_add_u32 m0, s{sT1}, {L_ROLE + e*1024}")
                I(f"buffer_load_dwordx4 v{BT+4}, {TB}, s{sT0} offen {rflags} lds")
                if e < npc - 1: I(f"s_add_u32 s{sT0}, s{sT0}, {16*3456}")
            srd(TA, 48, 1728 * 1280)
            I(f"s_mul_i32 s{sT3}, s{sTB}, {32*1280}")
            I(f"s_mul_i32 s{sT0}, s{sWAVE}, {npc}")
            assert npc % 2 == 0
            for e in range(npc):
                I(f"s_lshl_b32 s{sT1}, s{sT0}, 10")
                I(f"s_add_u32 m0, s{sT1}, {L_W2}")
                I(f"s_and_b32 s{sT1}, s{sT0}, 3")
                I(f"s_mul_i32 s{sT1}, s{sT1}, {8*1280}")
                I(f"s_lshr_b32 s{sT2}, s{sT0}, 2")
                I(f"s_lshl_b32 s{sT2}, s{sT2}, 7")
                I(f"s_add_u32 s{sT1}, s{sT1}, s{sT2}")
                I(f"s_add_u32 s{sT1}, s{sT1}, s{sT3}")
                I(f"buffer_load_dwordx4 v{(e2, e3)[e & 1]}, {TA}, s{sT1} offen {rflags} lds")
                if e < npc - 1: I(f"s_add_u32 s{sT0}, s{sT0}, 1")
            TS(25)
        I("s_branch L_B3")
        a.label("L_erd2")
    elif ew:
        I("s_cbranch_scc1 L_erd2")
        if the:
            I(f"v_cmp_ne_u32 vcc, -1, v{T+50}")
            I(f"s_bcnt1_i32_b64 s{sT0}, vcc")
            I(f"s_cmp_ge_u32 s{sT0}, {the}")
            I("s_cbranch_scc0 L_B3")
            I("s_mov_b32 s97, 1")
        I("s_waitcnt lgkmcnt(0)")
        I(f"s_cmp_eq_u32 s{sROLE}, 3")
        I("s_cbranch_scc1 L_erd3" if ew & 2 else "s_cbranch_scc1 L_B3")
        if eg: lds_wait(8, eg, ge=True)
        w2_early()
        I("s_branch L_B3")
        if ew & 2:
            a.label("L_erd3")
            if eg: lds_wait(8, eg, ge=True)
            pf_static("L_ps4", True, 3)
            I("s_branch L_B3")
        a.label("L_erd2")
    else:
        I("s_cbranch_scc0 L_B3")
    if gate:
        lds_wait(8, gate, ge=True)
    role_dma()
    TS(25)
    a.label("L_B3")
    I("s_waitcnt lgkmcnt(0)")
    I(f"v_mov_b32 v{T+38}, {L_FLAG}")
    I("s_barrier")
    TS(13)
    I(f"ds_read_b64 v[{T+38}:{T+39}], v{T+38}")
    I(f"s_cmp_eq_u32 s{sWAVE}, 7")
    I("s_cbranch_scc1 L_comb")
    I("s_waitcnt lgkmcnt(0)")
    I(f"v_readfirstlane_b32 s{sT0}, v{T+38}")
    I(f"s_and_b32 s{sPURE}, s{sT0}, 1")
    I(f"s_and_b32 s{sNEAR}, s{sT0}, {CP}")
    if pst == 2:
        I(f"s_cmp_eq_u32 s{sIT}, 0")
        I("s_cbranch_scc0 L_role")
        pf_static("L_ps", False)
    if pf:
        I(f"s_cmp_eq_u32 s{sIT}, 0")
        I("s_cbranch_scc0 L_role")
        I(f"s_cmp_lt_u32 s{sWAVE}, {2*pf}")
        I("s_cbranch_scc0 L_role")
        I(f"v_readfirstlane_b32 s{sT0}, v{T+39}")
        I(f"s_and_b32 s{sT0}, s{sT0}, 0xff")
        I(f"s_sub_u32 s{sT0}, s{sT0}, {h0}")
        I(f"s_cmp_lt_u32 s{sT0}, {(40 + pf - 1) // pf}")
        I("s_cbranch_scc0 L_role")
        I(f"s_mul_i32 s{sT0}, s{sT0}, {pf}")
        I(f"s_add_u32 s{sT0}, s{sT0}, s{sWAVE}")
        I(f"s_mul_i32 s{sT1}, s{sX}, 7")
        I(f"s_min_u32 s{sT1}, s{sT1}, 48")
        I(f"s_cmp_lt_u32 s{sWAVE}, {pf}")
        I("s_cbranch_scc0 L_pf2")
        srd(TA, 44, 640 * 3456)
        I(f"v_lshrrev_b32 v{T+50}, 2, v{vLANE}")
        I(f"v_mul_u32_u24 v{T+50}, 3456, v{T+50}")
        I(f"v_and_b32 v{T+51}, 3, v{vLANE}")
        I(f"v_lshl_add_u32 v{T+50}, v{T+51}, 7, v{T+50}")
        I(f"s_mul_i32 s{sT0}, s{sT0}, {16*3456}")
        I(f"s_lshr_b32 s{sT1}, s{sT1}, 1")
        I(f"s_lshl_b32 s{sT1}, s{sT1}, 7")
        I(f"s_add_u32 s{sT0}, s{sT0}, s{sT1}")
        I(f"v_add_u32 v{T+50}, s{sT0}, v{T+50}")
        I(f"buffer_load_dword v{T+51}, v{T+50}, {TA}, 0 offen")
        I("s_branch L_role")
        a.label("L_pf2")
        I(f"s_sub_u32 s{sT0}, s{sT0}, {pf}")
        I(f"s_cmp_lt_u32 s{sX}, 6")
        I(f"s_cselect_b32 s{sT2}, 35, 30")
        I(f"s_cmp_lt_u32 s{sT0}, s{sT2}")
        I("s_cbranch_scc0 L_role")
        if pfr:
            I(f"s_sub_u32 s{sT0}, s{sT2}, s{sT0}")
            I(f"s_sub_u32 s{sT0}, s{sT0}, 1")
        srd(TA, 48, 1728 * 1280)
        I(f"s_mul_i32 s{sT1}, s{sT1}, {32*1280}")
        I(f"s_lshl_b32 s{sT0}, s{sT0}, 13")
        I(f"s_add_u32 s{sT0}, s{sT0}, s{sT1}")
        I(f"v_lshlrev_b32 v{T+50}, 7, v{vLANE}")
        I(f"buffer_load_dword v{T+51}, v{T+50}, {TA}, s{sT0} offen")
    I("s_branch L_role")
    a.label("L_comb")
    if p5 & 8: I("s_setprio 3")
    cM, cL, cMX, cF, cT = T + 32, T + 33, T + 34, T + 36, T + 37
    cLS = T + 35
    I(f"ds_read_b64 v[{cM}:{cL}], v{vCML}")
    for w in range(8):
        I(f"ds_read2st64_b64 {vr(T+4*w)}, v{vCR} offset0:{2*w} offset1:{2*w+1}")
    I(f"v_mov_b32 v{cT}, s{sL2E}")
    I("s_waitcnt lgkmcnt(8)")
    I(f"v_readfirstlane_b32 s{sT0}, v{T+38}")
    I(f"v_max_f32_dpp v{cMX}, v{cM}, v{cM} quad_perm:[1,0,3,2] row_mask:0xf bank_mask:0xf")
    I(f"v_max_f32_dpp v{cMX}, v{cMX}, v{cMX} quad_perm:[2,3,0,1] row_mask:0xf bank_mask:0xf")
    I(f"v_max_f32_dpp v{cMX}, v{cMX}, v{cMX} row_half_mirror row_mask:0xf bank_mask:0xf")
    I(f"v_sub_f32 v{cF}, v{cM}, v{cMX}")
    I(f"v_mul_f32 v{cF}, v{cF}, v{cT}")
    I(f"v_exp_f32 v{cF}, v{cF}")
    I(f"s_and_b32 s{sPURE}, s{sT0}, 1")
    I(f"s_and_b32 s{sNEAR}, s{sT0}, {CP}")
    I("s_waitcnt lgkmcnt(0)")
    for w in range(8):
        I(f"v_readlane_b32 s{sF+w}, v{cF}, {w}")
    for w in range(8):
        I(f"v_pk_add_f32 v[{T+4*w}:{T+4*w+1}], v[{T+4*w}:{T+4*w+1}], v[{T+4*w+2}:{T+4*w+3}]")
    for w in range(8):
        sp = f"s[{sF+(w&~1)}:{sF+(w&~1)+1}]"
        o = w & 1
        acc = T + 40 + 2 * (w & 1)
        if w < 2:
            I(f"v_pk_mul_f32 v[{acc}:{acc+1}], v[{T+4*w}:{T+4*w+1}], {sp} op_sel:[0,{o}] op_sel_hi:[1,{o}]")
        else:
            I(f"v_pk_fma_f32 v[{acc}:{acc+1}], v[{T+4*w}:{T+4*w+1}], {sp}, v[{acc}:{acc+1}] op_sel:[0,{o},0] op_sel_hi:[1,{o},1]")
    I(f"v_mul_f32 v{cLS}, v{cF}, v{cL}")
    I(f"v_pk_add_f32 v[{T+40}:{T+41}], v[{T+40}:{T+41}], v[{T+42}:{T+43}]")
    I(f"v_add_f32_dpp v{cLS}, v{cLS}, v{cLS} quad_perm:[1,0,3,2] row_mask:0xf bank_mask:0xf")
    I(f"v_cvt_pk_bf16_f32 v{T+40}, v{T+40}, v{T+41}")
    I(f"v_min_u32 v{T+40}, 0xfffffffe, v{T+40}")
    I(f"v_add_f32_dpp v{cLS}, v{cLS}, v{cLS} quad_perm:[2,3,0,1] row_mask:0xf bank_mask:0xf")
    I(f"v_min_u32 v{cMX}, 0xfffffffe, v{cMX}")
    lstore([f"buffer_store_dword v{T+40}, v{vCP}, {WS}, s{sREG} offen"], True)
    I(f"v_add_f32_dpp v{cLS}, v{cLS}, v{cLS} row_half_mirror row_mask:0xf bank_mask:0xf")
    I(f"v_min_u32 v{cLS}, 0xfffffffe, v{cLS}")
    setexec(1, 0)
    lstore([f"buffer_store_dwordx2 v[{cMX}:{cLS}], v{vCPM}, {WS}, s{sREG} offen"], True)
    setexec(0xFFFFFFFF, 0xFFFFFFFF)
    TS(14)
    if p5 & 8: I("s_setprio 0")
    if emd == 2:
        I(f"s_cmp_eq_u32 s{sROLE}, 0")
        I("s_cbranch_scc1 L_WO")
        I(f"s_cmp_eq_u32 s{sIT}, 0")
        I("s_cbranch_scc0 L_role")
        I("s_barrier")

    a.label("L_role")
    m0_, m1_, m2_, m3_ = T, T + 1, T + 2, T + 3
    def ml_gate(thr):
        lab = a.newlab("Lg"); done = a.newlab("Lgd")
        I(f"v_lshrrev_b32 v{m0_}, 3, v{vLANE}")
        I(f"v_lshlrev_b32 v{m0_}, 7, v{m0_}")
        I(f"v_and_b32 v{m1_}, 7, v{vLANE}")
        I(f"v_lshl_add_u32 v{m0_}, v{m1_}, 3, v{m0_}")
        I(f"s_lshl_b32 s{sT1}, s{sXW}, 9")
        I(f"s_add_u32 s{sT1}, s{sT1}, {MLOFF}")
        I(f"s_add_u32 s{sT1}, s{sT1}, s{sREG}")
        setexec(0xFFFFFFFF, 0)
        a.label(lab)
        I(f"buffer_load_dword v{m1_}, v{m0_}, {WS}, s{sT1} offen sc1")
        I(f"s_add_u32 s{sSPIN}, s{sSPIN}, 1")
        I("s_waitcnt vmcnt(0)")
        I(f"v_cmp_ne_u32 vcc, -1, v{m1_}")
        I(f"s_bcnt1_i32_b64 s{sT0}, vcc")
        I(f"s_cmp_ge_u32 s{sT0}, {thr}")
        I(f"s_cbranch_scc1 {done}")
        I(f"s_cmp_lt_u32 s{sSPIN}, {spin_limit}")
        I(f"s_cbranch_scc1 {lab}")
        a.label(done)
        setexec(0xFFFFFFFF, 0xFFFFFFFF)
    I(f"s_cmp_eq_u32 s{sROLE}, 0")
    I("s_cbranch_scc1 L_WO")
    if pf:
        I(f"v_readfirstlane_b32 s{sTB}, v{T+39}")
        I(f"s_bfe_u32 s{sTB}, s{sTB}, 0x80008")
        I(f"s_cmp_lt_u32 s{sX}, 6")
        I(f"s_cselect_b32 s{sT0}, 7, 6")
        I(f"s_cmp_lt_u32 s{sTB}, s{sT0}")
        I("s_cbranch_scc0 L_next")
        I(f"s_mul_i32 s{sT1}, s{sX}, 7")
        I(f"s_min_u32 s{sT1}, s{sT1}, 48")
        I(f"s_add_u32 s{sTB}, s{sTB}, s{sT1}")
    elif dyn:
        I(f"v_readfirstlane_b32 s{sTB}, v{T+39}")
        if emd: I(f"s_sub_u32 s{sTB}, s{sTB}, 1")
        I(f"s_mul_hi_u32 s{sT0}, s{sTB}, 0x2aaaaab")
        I(f"s_mul_i32 s{sT0}, s{sT0}, 96")
        I(f"s_sub_u32 s{sTB}, s{sTB}, s{sT0}")
        I(f"s_cmp_lt_u32 s{sTB}, 54")
        I("s_cbranch_scc0 L_next")
    else:
        if pst == 3:
            I(f"s_cmp_eq_u32 s{sIT}, 0")
            I("s_cbranch_scc0 L_ps")
            I("s_barrier")
            pf_static("L_ps", False)
        I(f"s_cmp_eq_u32 s{sROLE}, 3")
        if pst >= 5 and (the or not ew & 2):
            I("s_cbranch_scc0 L_ps3")
            I(f"s_cmp_eq_u32 s{sIT}, 0")
            I("s_cbranch_scc0 L_next")
            if th1:
                I(f"s_cmp_eq_u32 s{sWAVE}, 6")
                I("s_cbranch_scc0 L_g1i")
                ml_gate(th1)
                a.label("L_g1i")
            I("s_barrier")
            if the and ew & 2:
                I("s_cmp_eq_u32 s97, 1")
                I("s_cbranch_scc1 L_next")
            pf_static("L_ps2", True, 2 if pst == 5 else 3)
            I("s_branch L_next")
            a.label("L_ps3")
        else:
            I("s_cbranch_scc1 L_next")
    I(f"s_cmp_eq_u32 s{sIT}, 0")
    I("s_cbranch_scc0 L_W1")
    if m2:
        assert y128 and sm and not emd and not th2
        vGZ = vRDMA
        F0, F1, F2 = 28, 36, 68
        L_CS = L_CS1
        sLB, sF2o, sF2x = sRN, sRSTEP, sYM
        if th1:
            I(f"s_cmp_eq_u32 s{sWAVE}, 6")
            I("s_cbranch_scc0 L_g1")
            ml_gate(th1)
            a.label("L_g1")
        if dd:
            I("s_mov_b32 s97, 0")
            a.label("L_dd")
        if pst != 3 or th1: I("s_barrier")
        TS(36)
        srd(TB, 44, 640 * 3456)
        I(f"s_lshl_b32 s{sT1}, s{sWAVE}, 1")
        I(f"s_add_u32 s{sT0}, s{sWAVE}, 2")
        I(f"s_cmp_lt_u32 s{sWAVE}, 4")
        I(f"s_cselect_b32 s{sT3}, s{sT1}, s{sT0}")
        I(f"s_cselect_b32 s{sRN}, 8, 4")
        I(f"s_mul_i32 s{sT1}, s{sT3}, {64*3456}")
        I(f"s_lshl_b32 s{sT0}, s{sTB}, 6")
        I(f"s_add_u32 s{sRB}, s{sT0}, s{sT1}")
        I(f"s_mov_b32 s{sRSTEP}, {16*3456}")
        I(f"s_lshl_b32 s{sYM}, s{sT3}, 12")
        I(f"s_add_u32 s{sYM}, s{sYM}, {L_ROLE}")
        I(f"v_lshrrev_b32 v{m0_}, 2, v{vLANE}")
        I(f"v_mul_u32_u24 v{m0_}, 3456, v{m0_}")
        I(f"v_and_b32 v{m1_}, 3, v{vLANE}")
        I(f"v_lshl_add_u32 v{vRDMA}, v{m1_}, 4, v{m0_}")
        def w1_dma():
            I(f"s_cmp_lt_u32 s{sWAVE}, 4")
            I("s_cbranch_scc0 L_m47")
            role_dma(sYM)
            I("s_branch L_mdd")
            a.label("L_m47")
            I(f"s_cmp_lt_u32 s{sWAVE}, 6")
            I("s_cbranch_scc1 L_m45")
            role_dma(sYM, 4)
            if wd: I("s_branch L_mdd")
            a.label("L_m45")
        if not wd: w1_dma()
        if wd:
            I(f"s_mul_i32 s{sT0}, s{sWAVE}, 5")
        else:
            I(f"s_mul_i32 s{sT0}, s{sWAVE}, 14")
            I(f"s_sub_u32 s{sT0}, s{sT0}, 56")
            I(f"s_min_u32 s{sT0}, s{sT0}, 34")
        I(f"s_mul_i32 s{sYM+1}, s{sTB}, {32*1280}")
        I(f"v_lshrrev_b32 v{m0_}, 3, v{vLANE}")
        I(f"v_mul_u32_u24 v{m2_}, 1280, v{m0_}")
        I(f"v_and_b32 v{m1_}, 7, v{vLANE}")
        I(f"v_lshlrev_b32 v{m1_}, 4, v{m1_}")
        I(f"v_bfe_u32 v{m0_}, v{vLANE}, 4, 1")
        I(f"v_lshlrev_b32 v{m0_}, 5, v{m0_}")
        I(f"v_xor_b32 v{m1_}, v{m1_}, v{m0_}")
        if wd:
            I(f"s_and_b32 s{sT1}, s{sT0}, 1")
            I(f"s_lshl_b32 s{sT1}, s{sT1}, 6")
            I(f"v_xor_b32 v{m1_}, s{sT1}, v{m1_}")
        I(f"v_xor_b32 v{m0_}, 64, v{m1_}")
        I(f"v_add_u32 v{m3_}, v{m2_}, v{m0_}")
        I(f"v_add_u32 v{m2_}, v{m2_}, v{m1_}")
        srd(TA, 48, 1728 * 1280)
        if the:
            I("s_cmp_eq_u32 s97, 1")
            I("s_cbranch_scc1 L_w2s")
        for e in range(0 if ew and not the else 5 if wd else 14):
            if e == 6:
                I(f"s_cmp_lt_u32 s{sWAVE}, 6")
                I("s_cbranch_scc0 L_mdd")
            I(f"s_lshl_b32 s{sT1}, s{sT0}, 10")
            I(f"s_add_u32 m0, s{sT1}, {L_W2}")
            I(f"s_and_b32 s{sT1}, s{sT0}, 3")
            I(f"s_mul_i32 s{sT1}, s{sT1}, {8*1280}")
            I(f"s_lshr_b32 s{sT2}, s{sT0}, 2")
            I(f"s_lshl_b32 s{sT2}, s{sT2}, 7")
            I(f"s_add_u32 s{sT1}, s{sT1}, s{sT2}")
            I(f"s_add_u32 s{sT1}, s{sT1}, s{sYM+1}")
            I(f"buffer_load_dwordx4 v{(m2_, m3_)[e & 1]}, {TA}, s{sT1} offen {rflags} lds")
            if e < 13: I(f"s_add_u32 s{sT0}, s{sT0}, 1")
        if the: a.label("L_w2s")
        if wd and wb: I("s_barrier")
        if wd: w1_dma()
        I(f"s_cmp_eq_u32 s{sWAVE}, 5")
        I("s_cbranch_scc0 L_mdd")
        srd(TA, 46, 1728 * 2)
        I(f"s_lshl_b32 s{sT0}, s{sTB}, 6")
        I(f"v_and_b32 v{T+4}, 31, v{vLANE}")
        I(f"v_lshlrev_b32 v{T+4}, 1, v{T+4}")
        I(f"v_mov_b32 v{vB1}, 0")
        I(f"buffer_load_short_d16_hi v{vB1}, v{T+4}, {TA}, s{sT0} offen")
        a.label("L_mdd")
        if dd:
            I("s_cmp_eq_u32 s97, 0")
            I("s_mov_b32 s97, 1")
            I("s_cbranch_scc0 L_dd2")
            I("s_waitcnt vmcnt(0)")
            I("s_branch L_dd")
            a.label("L_dd2")
        TS(25)
        u0, u1, u2 = T + 5, T + 6, T + 7
        I(f"s_mov_b32 s{sLB}, s{sYM}")
        I(f"s_lshl_b32 s{sT1}, s{sT3}, 1")
        rank_off(sT0, sT1, sT2)
        I(f"v_and_b32 v{u0}, 15, v{vLANE}")
        I(f"v_lshlrev_b32 v{u1}, 6, v{u0}")
        I(f"v_lshrrev_b32 v{u2}, 4, v{vLANE}")
        I(f"v_lshl_add_u32 v{u1}, v{u2}, 4, v{u1}")
        I(f"v_add_u32 v{vGZ}, s{sT0}, v{u1}")
        I(f"s_lshl_b32 s{sT0}, s{sTB}, 7")
        I(f"s_add_u32 s{sT0}, s{sT0}, {YOFF}")
        I(f"s_lshl_b32 s{sT1}, s{sWAVE}, 14")
        I(f"s_add_u32 s{sT1}, s{sT1}, s{sT0}")
        I(f"v_lshlrev_b32 v{vA2}, 2, v{vLANE}")
        I(f"v_add_u32 v{vA2}, s{sT1}, v{vA2}")
        I(f"s_lshr_b32 s{sT1}, s{sWAVE}, 1")
        I(f"s_add_u32 s{sT1}, s{sT1}, 6")
        I(f"s_sub_u32 s{sF2o}, s{sT1}, s{sWAVE}")
        I(f"s_lshl_b32 s{sF2o}, s{sF2o}, 12")
        I(f"s_lshl_b32 s{sT1}, s{sT1}, 14")
        I(f"s_add_u32 s{sT0}, s{sT0}, s{sT1}")
        I(f"s_and_b32 s{sF2x}, s{sWAVE}, 1")
        I(f"s_lshl_b32 s{sF2x}, s{sF2x}, 6")
        I(f"s_add_u32 s{sT0}, s{sT0}, s{sF2x}")
        I(f"s_cmp_lt_u32 s{sWAVE}, 4")
        I(f"s_cselect_b32 s{sT0}, {BIG:#x}, s{sT0}")
        setexec(0, 0xFFFF)
        I(f"v_lshl_add_u32 v{vA2}, v{u0}, 2, s{sT0}")
        setexec(0, 0xFFFF0000)
        I(f"v_mov_b32 v{vA2}, {BIG:#x}")
        setexec(0xFFFFFFFF, 0xFFFFFFFF)
        I(f"s_lshl_b32 s{sT0}, s{sWAVE}, 12")
        I(f"s_add_u32 s{sT0}, s{sT0}, {L_W2}")
        tr_addr(vA3, 128, sT0, u1)
        I(f"v_bfe_u32 v{u1}, v{vLANE}, 3, 1")
        I(f"v_bfe_u32 v{u2}, v{vLANE}, 4, 1")
        I(f"v_lshl_add_u32 v{u2}, v{u2}, 1, v{u1}")
        I(f"v_lshl_add_u32 v{vA3}, v{u2}, 5, v{vA3}")
        I(f"v_mul_u32_u24 v{u1}, 0xaaaa, v{u1}")
        I(f"v_or_b32 v{vSEL+5}, 0x4444, v{u1}")
        I(f"v_bfe_u32 v{u1}, v{vLANE}, 4, 1")
        I(f"v_and_b32 v{u2}, 2, v{vLANE}")
        I(f"v_lshlrev_b32 v{u2}, 3, v{u2}")
        I(f"v_lshl_add_u32 v{vA1}, v{u1}, 5, v{u2}")
        I(f"s_mul_i32 s{sT0}, s{sWAVE}, {PP}")
        I(f"v_lshrrev_b32 v{u2}, 5, v{vLANE}")
        I(f"v_lshlrev_b32 v{u2}, 7, v{u2}")
        I(f"v_lshl_add_u32 v{u2}, v{u0}, 3, v{u2}")
        I(f"v_lshl_add_u32 v{u2}, v{u1}, 2, v{u2}")
        I(f"v_add_u32 v{vPW}, s{sT0}, v{u2}")
        I("s_branch L_W1")

    if not m2:
        if instr: I(f"s_mov_b32 s{sNT}, s{sTB}")
        srd(TB, 44, 640 * 3456)
        I(f"s_mul_i32 s{sT1}, s{sWAVE}, {128*3456}")
        I(f"s_lshl_b32 s{sT0}, s{sTB}, 6")
        I(f"s_add_u32 s{sRB}, s{sT0}, s{sT1}")
        I(f"s_mov_b32 s{sRSTEP}, {16*3456}")
        I(f"s_mov_b32 s{sRN}, 8")
        I(f"v_lshrrev_b32 v{m0_}, 2, v{vLANE}")
        I(f"v_mul_u32_u24 v{m0_}, 3456, v{m0_}")
        I(f"v_and_b32 v{m1_}, 3, v{vLANE}")
        I(f"v_lshl_add_u32 v{vRDMA}, v{m1_}, 4, v{m0_}")
        I(f"s_add_u32 s{sT0}, s{sT0}, {YOFF}")
        if y128:
            I(f"s_lshl_b32 s{sT1}, s{sTB}, 6")
            I(f"s_add_u32 s{sT0}, s{sT0}, s{sT1}")
            I(f"s_lshl_b32 s{sT1}, s{sWAVE}, 14")
            I(f"s_add_u32 s{sT0}, s{sT0}, s{sT1}")
            I(f"v_bfe_u32 v{m0_}, v{vLANE}, 2, 2")
            I(f"v_lshlrev_b32 v{m0_}, 15, v{m0_}")
            I(f"v_and_b32 v{m1_}, 3, v{vLANE}")
            I(f"v_lshl_add_u32 v{m0_}, v{m1_}, 5, v{m0_}")
            I(f"v_lshrrev_b32 v{m1_}, 4, v{vLANE}")
            I(f"v_lshl_add_u32 v{m0_}, v{m1_}, 3, v{m0_}")
            I(f"v_add_u32 v{vA2}, s{sT0}, v{m0_}")
            I(f"s_lshl_b32 s{sT0}, s{sWAVE}, 12")
            I(f"s_add_u32 s{sT0}, s{sT0}, {L_W2}")
            tr_addr(vA3, 128, sT0, m0_)
            I(f"v_bfe_u32 v{m0_}, v{vLANE}, 3, 1")
            I(f"v_bfe_u32 v{m1_}, v{vLANE}, 4, 1")
            I(f"v_lshl_add_u32 v{m0_}, v{m1_}, 1, v{m0_}")
            I(f"v_lshl_add_u32 v{vA3}, v{m0_}, 5, v{vA3}")
            I(f"v_xor_b32 v{vA1}, 32, v{vA3}")
            I(f"v_xor_b32 v{vA0}, 64, v{vA3}")
            I(f"s_cmp_ge_u32 s{sWAVE}, 6")
            I(f"s_cselect_b32 s{sYM}, 255, 15")
            I(f"s_mul_i32 s{sYM}, s{sYM}, 0x10001")
            I(f"s_mov_b32 s{sYM+1}, s{sYM}")
        elif y64:
            I(f"s_and_b32 s{sT1}, s{sWAVE}, 1")
            I(f"s_lshl_b32 s{sT1}, s{sT1}, 12")
            I(f"s_add_u32 s{sT0}, s{sT0}, s{sT1}")
            I(f"s_lshr_b32 s{sT2}, s{sWAVE}, 1")
            I(f"s_lshl_b32 s{sT1}, s{sT2}, 14")
            I(f"s_add_u32 s{sT0}, s{sT0}, s{sT1}")
            I(f"v_bfe_u32 v{m0_}, v{vLANE}, 1, 3")
            I(f"v_lshlrev_b32 v{m0_}, 16, v{m0_}")
            I(f"v_and_b32 v{m1_}, 1, v{vLANE}")
            I(f"v_lshl_add_u32 v{m0_}, v{m1_}, 5, v{m0_}")
            I(f"v_lshrrev_b32 v{m1_}, 4, v{vLANE}")
            I(f"v_lshl_add_u32 v{m0_}, v{m1_}, 3, v{m0_}")
            I(f"v_add_u32 v{vA2}, s{sT0}, v{m0_}")
            I(f"s_lshl_b32 s{sT0}, s{sT2}, 12")
            I(f"s_add_u32 s{sT0}, s{sT0}, {L_W2}")
            tr_addr(vA3, 128, sT0, m0_)
            I(f"v_bfe_u32 v{m0_}, v{vLANE}, 3, 1")
            I(f"v_bfe_u32 v{m1_}, v{vLANE}, 4, 1")
            I(f"v_lshl_add_u32 v{m0_}, v{m1_}, 1, v{m0_}")
            I(f"s_and_b32 s{sT1}, s{sWAVE}, 1")
            I(f"s_lshl_b32 s{sT1}, s{sT1}, 1")
            I(f"v_xor_b32 v{m0_}, s{sT1}, v{m0_}")
            I(f"v_lshl_add_u32 v{vA3}, v{m0_}, 5, v{vA3}")
            I(f"v_xor_b32 v{vA1}, 32, v{vA3}")
            I(f"s_cmp_lt_u32 s{sWAVE}, 4")
            I(f"s_cselect_b32 s{sYM}, 63, 15")
            I(f"s_mul_i32 s{sYM}, s{sYM}, 0x10001")
            I(f"s_mov_b32 s{sYM+1}, s{sYM}")
        else:
            I(f"s_and_b32 s{sT1}, s{sWAVE}, 2")
            I(f"s_lshl_b32 s{sT1}, s{sT1}, 11")
            I(f"s_add_u32 s{sT0}, s{sT0}, s{sT1}")
            I(f"s_lshr_b32 s{sT2}, s{sWAVE}, 2")
            I(f"s_lshl_b32 s{sT1}, s{sT2}, 14")
            I(f"s_add_u32 s{sT0}, s{sT0}, s{sT1}")
            I(f"s_and_b32 s{sT1}, s{sWAVE}, 1")
            I(f"s_lshl_b32 s{sT1}, s{sT1}, 5")
            I(f"s_add_u32 s{sT0}, s{sT0}, s{sT1}")
            I(f"v_and_b32 v{m0_}, 15, v{vLANE}")
            I(f"v_lshlrev_b32 v{m0_}, 15, v{m0_}")
            I(f"v_lshrrev_b32 v{m1_}, 4, v{vLANE}")
            I(f"v_lshl_add_u32 v{m0_}, v{m1_}, 3, v{m0_}")
            I(f"v_add_u32 v{vA2}, s{sT0}, v{m0_}")
            I(f"s_lshl_b32 s{sT0}, s{sT2}, 12")
            I(f"s_add_u32 s{sT0}, s{sT0}, {L_W2}")
            tr_addr(vA3, 128, sT0, m0_)
            I(f"v_bfe_u32 v{m0_}, v{vLANE}, 3, 1")
            I(f"v_bfe_u32 v{m1_}, v{vLANE}, 4, 1")
            I(f"v_lshl_add_u32 v{m0_}, v{m1_}, 1, v{m0_}")
            I(f"s_and_b32 s{sT1}, s{sWAVE}, 3")
            I(f"v_xor_b32 v{m0_}, s{sT1}, v{m0_}")
            I(f"v_lshl_add_u32 v{vA3}, v{m0_}, 5, v{vA3}")
        if th1:
            I(f"s_cmp_eq_u32 s{sWAVE}, 6")
            I("s_cbranch_scc0 L_g1")
            ml_gate(th1)
            a.label("L_g1")
        if emd: I(f"s_waitcnt vmcnt({40 // emw})")
        I("s_barrier")
        I(f"s_cmp_ge_u32 s{sWAVE}, 5")
        I("s_cbranch_scc1 L_w2d")
        if not emd:
            role_dma()
            TS(25)
        I("s_branch L_W1")
        a.label("L_w2d")
        if th2 > th1:
            ml_gate(th2)
        if not emd:
            I(f"s_mul_i32 s{sT3}, s{sTB}, {32*1280}")
            I(f"s_sub_u32 s{sT0}, s{sWAVE}, 5")
            I(f"s_mul_i32 s{sT0}, s{sT0}, 13")
            I(f"v_lshrrev_b32 v{m0_}, 3, v{vLANE}")
            I(f"v_mul_u32_u24 v{m2_}, 1280, v{m0_}")
            I(f"v_and_b32 v{m1_}, 7, v{vLANE}")
            I(f"v_lshlrev_b32 v{m1_}, 4, v{m1_}")
            I(f"v_bfe_u32 v{m0_}, v{vLANE}, 4, 1")
            I(f"v_lshlrev_b32 v{m0_}, 5, v{m0_}")
            I(f"v_xor_b32 v{m1_}, v{m1_}, v{m0_}")
            I(f"s_and_b32 s{sT1}, s{sT0}, 1")
            I(f"s_lshl_b32 s{sT1}, s{sT1}, 6")
            I(f"v_xor_b32 v{m1_}, s{sT1}, v{m1_}")
            I(f"v_xor_b32 v{m0_}, 64, v{m1_}")
            I(f"v_add_u32 v{m3_}, v{m2_}, v{m0_}")
            I(f"v_add_u32 v{m2_}, v{m2_}, v{m1_}")
            srd(TA, 48, 1728 * 1280)
            for e in range(14):
                I(f"s_lshl_b32 s{sT1}, s{sT0}, 10")
                I(f"s_add_u32 m0, s{sT1}, {L_W2}")
                I(f"s_and_b32 s{sT1}, s{sT0}, 3")
                I(f"s_mul_i32 s{sT1}, s{sT1}, {8*1280}")
                I(f"s_lshr_b32 s{sT2}, s{sT0}, 2")
                I(f"s_lshl_b32 s{sT2}, s{sT2}, 7")
                I(f"s_add_u32 s{sT1}, s{sT1}, s{sT2}")
                I(f"s_add_u32 s{sT1}, s{sT1}, s{sT3}")
                I(f"buffer_load_dwordx4 v{(m2_, m3_)[e & 1]}, {TA}, s{sT1} offen {rflags} lds")
                if e < 13: I(f"s_add_u32 s{sT0}, s{sT0}, 1")
        srd(TA, 46, 1728 * 2)
        I(f"s_lshl_b32 s{sT0}, s{sTB}, 6")
        I(f"v_and_b32 v{m0_}, 31, v{vLANE}")
        I(f"v_lshlrev_b32 v{m0_}, 1, v{m0_}")
        I(f"v_mov_b32 v{vB1}, 0")
        I(f"buffer_load_short_d16_hi v{vB1}, v{m0_}, {TA}, s{sT0} offen")
        for b_ in HB5:
            for i in range(4):
                I(f"v_mov_b32 v{b_+i}, 0")
        TS(25)
        I("s_branch L_W1")

    def role_base():
        I(f"s_lshl_b32 s{sT0}, s{sWAVE}, 13")
        I(f"s_add_u32 s{sT0}, s{sT0}, {L_ROLE}")

    a.label("L_WO")
    if g1:
        if pth:
            I(f"s_cmp_eq_u32 s{sWAVE}, 6")
            I("s_cbranch_scc0 L_G1")
            I(f"s_cmp_eq_u32 s{sIT}, 0")
            I("s_cbranch_scc0 L_G1")
            ml_gate(pth)
            a.label("L_G1")
        if g1 == 2:
            I(f"s_cmp_eq_u32 s{sIT}, 0")
            I("s_cbranch_scc1 L_G1b")
            I("s_barrier")
            I("s_branch L_WO0")
            a.label("L_G1b")
        else:
            I("s_barrier")
    I(f"s_cmp_eq_u32 s{sIT}, 0")
    I("s_cbranch_scc0 L_WO0")
    role_base()
    tr_addr(T + 47, 64, sT0)
    I("s_waitcnt vmcnt(0)")
    for ks in range(2):
        for t in range(2):
            b = vRB + 4 * (ks * 2 + t)
            o = ks * 2048 + t * 32
            I(f"ds_read_b64_tr_b16 v[{b}:{b+1}], v{T+47} offset:{o}")
            I(f"ds_read_b64_tr_b16 v[{b+2}:{b+3}], v{T+47} offset:{o+256}")
    I("s_waitcnt lgkmcnt(0)")
    TS(15)
    a.label("L_WO0")
    I(f"s_cmp_eq_u32 s{sWAVE}, 5")
    I("s_cbranch_scc0 L_WO1")
    if q2 == 2:
        I(f"s_cmp_eq_u32 s{sIT}, 0")
        I("s_cbranch_scc1 L_WO2")
        I(f"buffer_load_ushort v{vXF}, v{vXFA}, {WS}, 0 offen sc1")
        a.label("L_WO2")
    I("s_waitcnt vmcnt(0)")
    I(f"v_lshlrev_b32 v{vXF}, 16, v{vXF}")
    a.label("L_WO1")
    A0, Ma, La = T + 44, T + 48, T + 49
    Dw = [[T + 8, T + 12], [T + 16, T + 20]]
    wMX, wE, wT, wL2E, wR0, wR1 = [T + 24 + i for i in range(6)]
    I(f"v_mov_b32 v{wL2E}, s{sL2E}")
    if pl == 1:
        light(f"buffer_load_dword v{Ma}, v{vA2}, {WS}, s{sREG} offen sc1", Ma)
    if pl == 2:
        light(f"buffer_load_dword v{A0}, v{vA0}, {WS}, s{sREG} offen sc1", A0, (0xFF, 0))
    poll([f"buffer_load_dwordx4 {vr(A0)}, v{vA0}, {WS}, s{sREG} offen sc1",
          f"buffer_load_dwordx2 v[{Ma}:{La}], v{vA2}, {WS}, s{sREG} offen sc1"], list(range(A0, A0 + 6)),
         groups=[range(A0, A0 + 4), range(A0 + 4, A0 + 6)], hop=1)
    TS(16)
    seq = [
        f"v_max_f32_dpp v{wMX}, v{Ma}, v{Ma} quad_perm:[1,0,3,2] row_mask:0xf bank_mask:0xf",
        f"v_max_f32_dpp v{wMX}, v{wMX}, v{wMX} quad_perm:[2,3,0,1] row_mask:0xf bank_mask:0xf",
        f"v_max_f32_dpp v{wMX}, v{wMX}, v{wMX} row_half_mirror row_mask:0xf bank_mask:0xf",
        f"v_sub_f32 v{wE}, v{Ma}, v{wMX}",
    ]
    k = 0
    for t in range(2):
        for ks in range(2):
            I(f"v_mfma_f32_16x16x32_bf16 {vr(Dw[t][ks])}, {vr(A0)}, {vr(vRB+4*(ks*2+t))}, 0")
            I(seq[k]); k += 1
    I(f"v_mul_f32 v{wE}, v{wE}, v{wL2E}")
    I(f"v_exp_f32 v{wE}, v{wE}")
    I(f"v_mul_f32 v{wT}, v{wE}, v{La}")
    mrg = [f"v_mov_b32_dpp v{Dw[t][0]+i}, v{Dw[t][1]+i} quad_perm:[0,1,2,3] row_mask:0xc bank_mask:0xf"
           for t in range(2) for i in range(4)]
    I(mrg[0]); I(mrg[1])
    I(f"v_add_f32_dpp v{wT}, v{wT}, v{wT} quad_perm:[1,0,3,2] row_mask:0xf bank_mask:0xf")
    I(mrg[2]); I(mrg[3])
    I(f"v_add_f32_dpp v{wT}, v{wT}, v{wT} quad_perm:[2,3,0,1] row_mask:0xf bank_mask:0xf")
    I(f"v_mov_b32_dpp v{wE}, v{wE} row_ror:4 row_mask:0xf bank_mask:0xa")
    I(mrg[4])
    I(f"v_add_f32_dpp v{wT}, v{wT}, v{wT} row_half_mirror row_mask:0xf bank_mask:0xf")
    I(mrg[5])
    I(f"v_rcp_f32 v{wT}, v{wT}")
    I(mrg[6]); I(mrg[7])
    for i in range(4):
        for t in range(2):
            D = Dw[t][0]; R = (wR0, wR1)[t]
            op = "v_mul_f32_dpp" if i == 0 else "v_fmac_f32_dpp"
            I(f"{op} v{R}, v{wE}, v{D+i} quad_perm:[{i},{i},{i},{i}] row_mask:0xf bank_mask:0xf")
    I(f"v_mul_f32 v{wR0}, v{wR0}, v{wT}")
    I(f"v_mul_f32 v{wR1}, v{wR1}, v{wT}")
    I(f"ds_write_b32 v{vPW}, v{wR0} offset:{L_PB2}")
    I(f"ds_write_b32 v{vPW}, v{wR1} offset:{L_PB2+256}")
    I("s_waitcnt lgkmcnt(0)")
    I("s_barrier")
    I(f"s_cmp_eq_u32 s{sWAVE}, 5")
    I("s_cbranch_scc0 L_next")
    if p5 & 2: I("s_setprio 3")
    TS(17)
    reduce_read(8, L_PB2)
    I("s_waitcnt lgkmcnt(0)")
    I(f"v_add_f32 v{T+30}, v{T+30}, v{vXF}")
    reduce_sum(8, rTOT)
    pack_pairs(rTOT, rU)
    I(f"v_mov_b32 v{T}, v{rU}")
    I(f"v_mov_b32_dpp v{T+1}, v{rU} quad_perm:[2,2,2,2] row_mask:0xf bank_mask:0xf")
    I(f"v_mov_b32_dpp v{T+2}, v{rU} row_shl:4 row_mask:0xf bank_mask:0xf")
    I(f"v_mov_b32_dpp v{T+3}, v{rU} row_shl:6 row_mask:0xf bank_mask:0xf")
    setexec(0x01010101, 0)
    I(f"buffer_store_dwordx4 {vr(T)}, v{vRP}, {WS}, s{sREG} offen sc1")
    if dual:
        I(f"buffer_store_dwordx4 {vr(T)}, v{vRP}, {WS}, s{sREG2} offen sc1")
    setexec(0xFFFFFFFF, 0xFFFFFFFF)
    TS(18)
    if p5 & 2: I("s_setprio 0")
    I("s_branch L_next")

    if m2:
        D0, D1, S1, S2, HB, D2 = T, T + 4, T + 8, T + 12, T + 16, T + 44
        IDW = vSEL + 5
        def it0(fn):
            l = a.newlab("Li")
            I(f"s_cmp_eq_u32 s{sIT}, 0")
            I(f"s_cbranch_scc0 {l}")
            fn()
            a.label(l)
        def w2_frags(nb, x0):
            for e in range(2 * nb):
                b = (F0, F0 + 4, F1, F1 + 4, F2, F2 + 4)[e]
                va = vA3
                if e:
                    va = x0 + (e & 1)
                    if e < 4: I(f"v_xor_b32 v{va}, {32*e}, v{vA3}")
                    elif e == 4:
                        I(f"v_xor_b32 v{va}, s{sF2x}, v{vA3}")
                        I(f"v_add_u32 v{va}, s{sF2o}, v{va}")
                    else: I(f"v_xor_b32 v{va}, 32, v{x0}")
                I(f"ds_read_b64_tr_b16 v[{b}:{b+1}], v{va}")
                I(f"ds_read_b64_tr_b16 v[{b+2}:{b+3}], v{va} offset:512")
        def w2_tail(nb):
            I("s_barrier")
            setexec(0x00050005, 0x000A000A)
            for e in range(nb):
                I(f"ds_read_b128 {vr(HB+4*e)}, v{vA1} offset:{L_H}")
                I("s_lshl_b64 exec, exec, 4" if e < nb - 1 else "s_mov_b64 exec, -1")
            TS(23)
            for e in range(nb):
                I(f"s_waitcnt lgkmcnt({nb-1-e})")
                I(f"v_smfmac_f32_16x16x64_bf16 {vr(D2)}, {vr(HB+4*e)}, {vr((F0, F1, F2)[e], 8)}, v{IDX}")
            I(f"v_pk_add_f32 v[{D2}:{D2+1}], v[{D2}:{D2+1}], v[{D2+2}:{D2+3}]")
            I(f"v_cvt_pk_bf16_f32 v{D2}, v{D2}, v{D2+1}")
            I(f"v_min_u32 v{D2}, 0xfffffffe, v{D2}")
            I(f"buffer_store_dword v{D2}, v{vA2}, {WS}, s{sREG} offen sc1")
            I(f"buffer_store_dword v{D2}, v{vA2}, {WS}, s{sREG2} offen sc1")
            TS(24)
            I("s_branch L_next")
        def zero(rs):
            for r_ in rs: I(f"v_mov_b32 v{r_}, 0")
        def gwave(ns, nb):
            lab = a.newlab("Lgw")
            ones()
            I(f"s_cmp_eq_u32 s{sIT}, 0")
            I(f"s_cbranch_scc0 {lab}a")
            x0, x1 = T + 46, T + 47
            I(f"v_bfe_u32 v{x0}, v{vLANE}, 3, 1")
            I(f"v_lshlrev_b32 v{x0}, 5, v{x0}")
            I(f"v_bfe_u32 v{x1}, v{vLANE}, 2, 1")
            I(f"v_add_u32 v{x0}, v{x0}, v{x1}")
            I(f"v_lshrrev_b32 v{x1}, 4, v{vLANE}")
            I(f"v_lshl_add_u32 v{x0}, v{x1}, 2, v{x0}")
            I(f"v_lshlrev_b32 v{x0}, 6, v{x0}")
            I(f"v_and_b32 v{x1}, 3, v{vLANE}")
            I(f"v_lshl_add_u32 v{x0}, v{x1}, 3, v{x0}")
            I(f"v_add_u32 v{x0}, s{sLB}, v{x0}")
            I(f"s_lshl_b32 s{sT0}, s{sWAVE}, 7")
            I(f"v_and_b32 v{x1}, 15, v{vLANE}")
            I(f"v_lshlrev_b32 v{x1}, 2, v{x1}")
            I(f"v_add_u32 v{x1}, s{sT0}, v{x1}")
            I(f"s_waitcnt vmcnt({0 if ns == 2 or wd else 6})")
            for sg in range(ns):
                for t in range(2):
                    for qd in range(2):
                        for jj in range(2):
                            b = vRB + 16 * sg + 8 * t + 4 * qd + 2 * jj
                            I(f"ds_read_b64_tr_b16 v[{b}:{b+1}], v{x0} offset:{sg*4096 + qd*1024 + jj*128 + t*32}")
                I("s_waitcnt lgkmcnt(0)")
            for t in range(2):
                for k_ in range(2 * ns):
                    b = vRB + 16 * (k_ >> 1) + 8 * t + 4 * (k_ & 1)
                    I(f"v_mfma_f32_16x16x32_bf16 {vr(T+4*t)}, {vr(ONES)}, {vr(b)}, {'0' if k_ == 0 else vr(T+4*t)}")
            I(f"ds_write_b32 v{x1}, v{T} offset:{L_CS}")
            I(f"ds_write_b32 v{x1}, v{T+4} offset:{L_CS+64}")
            TS(15)
            if wd == 2:
                I("s_waitcnt lgkmcnt(0)")
                I("s_barrier")
            else:
                I(f"s_branch {lab}b")
            a.label(lab + "a")
            w2_frags(nb, T + 50)
            a.label(lab + "b")
            zero(list(range(D0, D0 + 12)) + list(range(HB, HB + 4 * nb)) + list(range(D2, D2 + 4)) + (list(range(XA + 4, XA + 8)) if ns == 1 else []))
            I(f"s_add_u32 s{sT1}, s{sREG}, {ZOFF}")
            I(f"s_add_u32 s{sT1}, s{sT1}, s{sNEAR}")
            I(f"s_mov_b32 s{sF}, 0x00ff00ff")
            I(f"s_mov_b32 s{sF+1}, 0xff00ff00")
            if zl:
                light(f"buffer_load_dword v{XA}, v{vGZ}, {WS}, s{sT1} offen sc1", XA, (zl, 0))
            poll([f"buffer_load_dwordx4 {vr(XA+4*k_)}, v{vGZ}, {WS}, s{sT1} offen offset:{2*ZR*k_} sc1" for k_ in range(ns)],
                 [XA + 4 * k_ for k_ in range(ns)], groups=[[XA + 4 * k_] for k_ in range(ns)], hop=2)
            TS(19)
            for k_ in range(ns):
                I(f"v_mfma_f32_16x16x32_bf16 {vr(S2)}, {vr(XA+4*k_)}, {vr(XA+4*k_)}, {vr(S2) if k_ else '0'}")
            I(f"v_smfmac_f32_16x16x64_bf16 {vr(S1)}, {vr(ONES)}, {vr(XA, 8)}, v{IDW}")
            st = [f"v_pk_add_f32 v[{S2}:{S2+1}], v[{S2}:{S2+1}], v[{S2+2}:{S2+3}]",
                  f"v_add_f32 v{S2}, v{S2}, v{S2+1}",
                  f"v_cndmask_b32 v{S1+1}, 0, v{S2}, s[{sF}:{sF+1}]"]
            for m_ in ("quad_perm:[1,0,3,2]", "quad_perm:[2,3,0,1]", "row_half_mirror", "row_mirror"):
                st += [f"v_add_f32_dpp v{S1}, v{S1}, v{S1} {m_} {DPF}", f"v_add_f32_dpp v{S1+1}, v{S1+1}, v{S1+1} {m_} {DPF}"]
            st += [f"v_add_f32_dpp v{S1+1}, v{S1+1}, v{S1+1} row_bcast:15 row_mask:0xa bank_mask:0xf",
                   f"v_add_f32_dpp v{S1}, v{S1}, v{S1} row_bcast:31 row_mask:0xc bank_mask:0xf",
                   f"v_add_f32_dpp v{S1+1}, v{S1+1}, v{S1+1} row_bcast:31 row_mask:0xc bank_mask:0xf"]
            for k_ in range(ns):
                for t in range(2):
                    I(f"v_smfmac_f32_16x16x64_bf16 {vr(D0+4*t)}, {vr(XA+4*k_)}, {vr(vRB+16*k_+8*t, 8)}, v{IDW}")
                    if ns == 2 and k_ == 1 and t == 0:
                        I(st.pop(0)); I(st.pop(0))
            dp = [f"v_pk_add_f32 v[{D0}:{D0+1}], v[{D0}:{D0+1}], v[{D0+2}:{D0+3}]",
                  f"v_pk_add_f32 v[{D1}:{D1+1}], v[{D1}:{D1+1}], v[{D1+2}:{D1+3}]",
                  f"v_add_f32 v{D0}, v{D0}, v{D0+1}",
                  f"v_add_f32 v{D1}, v{D1}, v{D1+1}",
                  f"v_permlane32_swap_b32 v{D0}, v{D1}",
                  f"v_add_f32 v{D0}, v{D0}, v{D1}",
                  f"ds_write_b32 v{vPW}, v{D0} offset:{L_PB1}"]
            n1 = 5 if ns == 2 else 7
            for x_ in st[:n1]: I(x_)
            st = st[n1:]
            while st or dp:
                if dp: I(dp.pop(0))
                if st: I(st.pop(0))
            setexec(0, 0x80000000)
            I(f"ds_write_b64 v{vPW}, v[{S1}:{S1+1}] offset:{L_PB1 + 260}")
            setexec(0xFFFFFFFF, 0xFFFFFFFF)
            I("s_waitcnt lgkmcnt(0)")
            TS(20)
            I("s_barrier")
            if wd != 2: it0(lambda: (w2_frags(nb, T + 50), I("s_waitcnt lgkmcnt(0)")))
            w2_tail(nb)
        a.label("L_W1")
        I(f"s_cmp_lt_u32 s{sWAVE}, 4")
        I("s_cbranch_scc0 L_W4")
        gwave(2, 2)
        a.label("L_W4")
        I(f"s_cmp_lt_u32 s{sWAVE}, 6")
        I("s_cbranch_scc1 L_W45")
        gwave(1, 3)
        a.label("L_W45")
        zero(list(range(HB, HB + 12)) + list(range(D2, D2 + 4)))
        I(f"s_cmp_eq_u32 s{sWAVE}, 5")
        I("s_cbranch_scc1 L_W5")
        I("s_waitcnt vmcnt(0)")
        TS(37)
        if wd == 2:
            it0(lambda: I("s_barrier"))
            w2_frags(3, T + 50)
            I("s_waitcnt lgkmcnt(0)")
            I("s_barrier")
        else:
            I("s_barrier")
            w2_frags(3, T + 50)
            I("s_waitcnt lgkmcnt(0)")
        I("s_branch L_W1t")
        a.label("L_W5")
        EPS = 1e-5
        ra, rz, rh, rK, rE, rc = T + 48, T + 49, T + 40, T + 32, T + 34, T + 28
        SB, CB = vRB, vRB + 12
        I(f"v_mov_b32 v{rK}, {f2u(math.sqrt(1 + EPS) / 640):#x}")
        I(f"v_mov_b32 v{rK+1}, {f2u((1 + EPS) / 640):#x}")
        I(f"v_mov_b32 v{rE}, 0")
        I(f"v_mov_b32 v{rE+1}, {f2u(EPS * EPS):#x}")
        I(f"v_mov_b32 v{rC1}, {f2u(GC1):#x}")
        I(f"v_mov_b32 v{rC2}, {f2u(GC2):#x}")
        I(f"v_lshlrev_b32 v{ra}, 3, v{vLANE}")
        I(f"v_lshlrev_b32 v{rc}, 2, v{vLANE}")
        I(f"v_mov_b32 v{rz}, 0")
        I(f"v_and_b32 v{rh}, 17, v{vLANE}")
        I(f"v_and_b32 v{rT}, 2, v{vLANE}")
        I(f"v_lshl_add_u32 v{rh}, v{rT}, 2, v{rh}")
        I(f"v_bfe_u32 v{rT}, v{vLANE}, 2, 2")
        I(f"v_lshl_add_u32 v{rh}, v{rT}, 1, v{rh}")
        I(f"v_lshlrev_b32 v{rh}, 1, v{rh}")
        I("s_waitcnt vmcnt(0)")
        GW = (0, 1, 2, 3, 6, 7)
        def cs0():
            for i, v in enumerate(GW):
                I(f"ds_read_b32 v{CB+i}, v{rc} offset:{L_CS + v*128}")
            I("s_waitcnt lgkmcnt(0)")
            if wd != 2: w2_frags(3, T + 50)
            I(f"v_pk_add_f32 v[{CB}:{CB+1}], v[{CB}:{CB+1}], v[{CB+2}:{CB+3}]")
            I(f"v_pk_add_f32 v[{CB}:{CB+1}], v[{CB}:{CB+1}], v[{CB+4}:{CB+5}]")
            I(f"v_add_f32 v{CB}, v{CB}, v{CB+1}")
            I(f"v_mul_f32 v{vCS1}, {f2u(1 / math.sqrt(1 + EPS)):#x}, v{CB}")
        if wd == 2:
            it0(lambda: (I("s_barrier"), cs0()))
        else:
            I(f"s_cmp_eq_u32 s{sIT}, 0")
            I("s_cbranch_scc1 L_W5a")
        w2_frags(3, T + 50)
        I("s_waitcnt lgkmcnt(0)")
        a.label("L_W5a")
        if p5 & 4: I("s_setprio 3")
        I("s_barrier")
        TS(21)
        for i, v in enumerate(GW):
            I(f"ds_read_b64 v[{SB+2*i}:{SB+2*i+1}], v{rz} offset:{L_PB1 + 512 + v*PP}")
        for i, v in enumerate(GW):
            I(f"ds_read_b64 v[{T+2*i}:{T+2*i+1}], v{ra} offset:{L_PB1 + v*PP}")
        def sum6(b):
            return [f"v_pk_add_f32 v[{b+2*d_}:{b+2*d_+1}], v[{b+2*d_}:{b+2*d_+1}], v[{b+2*s_}:{b+2*s_+1}]" for d_, s_ in ((0, 1), (2, 3), (4, 5), (0, 2), (0, 4))]
        I("s_waitcnt lgkmcnt(6)")
        for x_ in sum6(SB): I(x_)
        I(f"v_pk_fma_f32 v[{SB}:{SB+1}], v[{SB}:{SB+1}], v[{rK}:{rK+1}], v[{rE}:{rE+1}]")
        I(f"v_fma_f32 v{rR}, -v{SB}, v{SB}, v{SB+1}")
        I(f"v_max_f32 v{rR}, v{rR}, v{rE+1}")
        I(f"v_rsq_f32 v{rR}, v{rR}")
        I("s_waitcnt lgkmcnt(0)")
        if wd != 2: it0(cs0)
        for x_ in sum6(T): I(x_)
        I(f"v_fma_f32 v{T+1}, -v{SB}, v{vCS1}, v{T+1}")
        I(f"v_add_f32 v{T}, v{T}, v{T+1}")
        I(f"v_fma_f32 v{rU}, v{T}, v{rR}, v{vB1}")
        I(f"v_mul_f32 v{rT}, v{rU}, v{rU}")
        I(f"v_fma_f32 v{rT}, v{rT}, v{rC2}, v{rC1}")
        I(f"v_mul_f32 v{rT}, v{rT}, v{rU}")
        I(f"v_exp_f32 v{rT}, v{rT}")
        I(f"v_add_f32 v{rT}, 1.0, v{rT}")
        I(f"v_rcp_f32 v{rT}, v{rT}")
        setexec(0xFFFFFFFF, 0)
        I(f"v_mul_f32 v{rU}, v{rU}, v{rT}")
        I(f"v_cvt_pk_bf16_f32 v{rU}, v{rU}, v{rU}")
        I(f"ds_write_b16 v{rh}, v{rU} offset:{L_H}")
        setexec(0xFFFFFFFF, 0xFFFFFFFF)
        TS(22)
        if p5 & 4: I("s_setprio 0")
        I("s_waitcnt lgkmcnt(0)")
        a.label("L_W1t")
        w2_tail(3)

    if not m2:
        ha = T + 48
        def w2_frags(FR, wait=True):
            for e in range(len(FR)):
                va, o = (vA3, e * 8192) if not y64 else ((vA3, vA1)[e & 1], (e >> 1) * 16384)
                if y128: va, o = (vA3, vA1, vA0, T + 51)[e & 3], (e >> 2) * 8192
                if y128 and e == 0: I(f"v_xor_b32 v{T+51}, 96, v{vA3}")
                if e == 4 and len(FR) == 8: I("s_waitcnt lgkmcnt(0)")
                I(f"ds_read_b64_tr_b16 v[{FR[e]}:{FR[e]+1}], v{va} offset:{o}")
                I(f"ds_read_b64_tr_b16 v[{FR[e]+2}:{FR[e]+3}], v{va} offset:{o+512}")
            if wait: I("s_waitcnt lgkmcnt(0)")
        def w2_tail(FR, HB, D2):
            ne = len(FR)
            I("s_barrier")
            setexec(0x00010001, 0x00010001)
            for e in range(ne):
                I(f"ds_read_b128 {vr(HB[e])}, v{ha} offset:{L_H}")
                I("s_lshl_b64 exec, exec, 1" if e < ne - 1 else "s_mov_b64 exec, -1")
            TS(23)
            for e in range(ne):
                if ne == 6 and e == 4:
                    I(f"s_cmp_lt_u32 s{sWAVE}, 4")
                    I("s_cbranch_scc0 L_w24")
                if ne == 8 and e == 4:
                    I(f"s_cmp_ge_u32 s{sWAVE}, 6")
                    I("s_cbranch_scc0 L_w24")
                I(f"s_waitcnt lgkmcnt({ne-1-e})")
                I(f"v_mfma_f32_16x16x32_bf16 {vr(D2)}, {vr(FR[e])}, {vr(HB[e])}, {vr(D2) if e else '0'}")
            if ne >= 6: a.label("L_w24")
            if y64: I(f"s_mov_b64 exec, s[{sYM}:{sYM+1}]")
            else: setexec(0x001F001F, 0x001F001F)
            I(f"v_cvt_pk_bf16_f32 v{D2}, v{D2}, v{D2+1}")
            I(f"v_cvt_pk_bf16_f32 v{D2+1}, v{D2+2}, v{D2+3}")
            I(f"v_min_u32 v{D2}, 0xfffffffe, v{D2}")
            I(f"v_min_u32 v{D2+1}, 0xfffffffe, v{D2+1}")
            I(f"buffer_store_dwordx2 v[{D2}:{D2+1}], v{vA2}, {WS}, s{sREG} offen sc1")
            if dual:
                I(f"buffer_store_dwordx2 v[{D2}:{D2+1}], v{vA2}, {WS}, s{sREG2} offen sc1")
            setexec(0xFFFFFFFF, 0xFFFFFFFF)
            if ne >= 6: I("s_waitcnt lgkmcnt(0)")
            TS(24)
            I("s_branch L_next")
        FR04 = [28, 32, 36, 40, T + 40] + ([T + 24] if y64 else [])
        FR5 = [vRB + 4 * e for e in range(4 if y64 else 5)]
        if y128:
            FR04 = FR04[:4]
            FR5 = [vRB + 4 * e for e in range(8)]
            HB5 = [28, 32, 36, 40, T, T + 4, T + 8, T + 12]
        HB04 = [T + 4 * e for e in range(len(FR04))]
        def it0(fn):
            l = a.newlab("Li")
            I(f"s_cmp_eq_u32 s{sIT}, 0")
            I(f"s_cbranch_scc0 {l}")
            fn()
            a.label(l)
        a.label("L_W1")
        I(f"s_cmp_ge_u32 s{sWAVE}, 5")
        I("s_cbranch_scc1 L_W1h")
        ones()
        I(f"s_cmp_eq_u32 s{sIT}, 0")
        I("s_cbranch_scc0 L_W11")
        role_base()
        tr_addr(T + 47, 64, sT0)
        I(f"s_lshl_b32 s{sT0}, s{sWAVE}, 7")
        I(f"v_and_b32 v{T+46}, 15, v{vLANE}")
        I(f"v_lshlrev_b32 v{T+46}, 2, v{T+46}")
        I(f"v_add_u32 v{T+46}, s{sT0}, v{T+46}")
        if not emd: I("s_waitcnt vmcnt(0)")
        for ks in range(4):
            for t in range(2):
                b = vRB + 4 * (ks * 2 + t)
                o = ks * 2048 + t * 32
                I(f"ds_read_b64_tr_b16 v[{b}:{b+1}], v{T+47} offset:{o}")
                I(f"ds_read_b64_tr_b16 v[{b+2}:{b+3}], v{T+47} offset:{o+256}")
            if ks == 1:
                I("s_waitcnt lgkmcnt(0)")
        I("s_waitcnt lgkmcnt(0)")
        for t in range(2):
            for ks in range(4):
                I(f"v_mfma_f32_16x16x32_bf16 {vr(T+4*t)}, {vr(ONES)}, {vr(vRB+4*(ks*2+t))}, {'0' if ks == 0 else vr(T+4*t)}")
        I(f"ds_write_b32 v{T+46}, v{T} offset:{L_CS2}")
        I(f"ds_write_b32 v{T+46}, v{T+4} offset:{L_CS2+64}")
        TS(15)
        I("s_branch L_W12")
        a.label("L_W11")
        w2_frags(FR04)
        a.label("L_W12")
        if g2: I("s_barrier")
        I(f"s_add_u32 s{sT1}, s{sREG}, {ZOFF}")
        I(f"s_add_u32 s{sT1}, s{sT1}, s{sNEAR}")
        gather(sT1)
        TS(19)
        gemv(2, vRB, lambda ks, t: ks * 2 + t)
        TS(20)
        I("s_barrier")
        I(f"v_lshrrev_b32 v{ha}, 4, v{vLANE}")
        I(f"v_lshlrev_b32 v{ha}, 4, v{ha}")
        for i in range(4 * len(FR04)):
            I(f"v_mov_b32 v{T+i}, 0")
        it0(lambda: w2_frags(FR04))
        w2_tail(FR04, HB04, T + 44)
        a.label("L_W1h")
        if g2:
            I(f"s_cmp_eq_u32 s{sWAVE}, 6")
            I("s_cbranch_scc0 L_G2")
            ml_gate(g2)
            a.label("L_G2")
            I("s_barrier")
        I(f"v_mov_b32 v{rINV}, {f2u(1.0/640):#x}")
        I(f"v_mov_b32 v{rC1}, {f2u(GC1):#x}")
        I(f"v_mov_b32 v{rC2}, {f2u(GC2):#x}")
        I(f"v_lshrrev_b32 v{ha}, 4, v{vLANE}")
        I(f"v_lshlrev_b32 v{ha}, 4, v{ha}")
        I(f"v_lshlrev_b32 v{ha+1}, 1, v{vLANE}")
        I(f"v_lshlrev_b32 v{ha+2}, 2, v{vLANE}")
        I("s_waitcnt vmcnt(0)")
        I("s_barrier")
        I(f"s_cmp_eq_u32 s{sWAVE}, 5")
        I("s_cbranch_scc1 L_W1r")
        for b_ in HB5:
            for i in range(4):
                I(f"v_mov_b32 v{b_+i}, 0")
        it0(lambda: w2_frags(FR5))
        I("s_branch L_W1t")
        a.label("L_W1r")
        TS(21)
        reduce_read(5, L_PB1)
        for v in range(5):
            I(f"ds_read_b32 v{T+24+v}, v{ha+2} offset:{L_CS2 + v*128}")
        I("s_waitcnt lgkmcnt(5)")
        reduce_sum(5, rTOT)
        stats()
        I("s_waitcnt lgkmcnt(0)")
        it0(lambda: w2_frags(FR5[:4] if y128 else FR5, False))
        I(f"v_add_f32 v{T+24}, v{T+24}, v{T+25}")
        I(f"v_add_f32 v{T+26}, v{T+26}, v{T+27}")
        I(f"v_add_f32 v{T+24}, v{T+24}, v{T+28}")
        I(f"v_add_f32 v{vCS1}, v{T+24}, v{T+26}")
        I(f"v_sub_f32 v{rMEAN}, v{rMEAN}, v{rMB}")
        I(f"v_mul_f32 v{rVAR}, v{rVAR}, v{rR}")
        I(f"v_mul_f32 v{rMEAN}, v{rMEAN}, v{rR}")
        I(f"v_mul_f32 v{rVAR}, v{rVAR}, v{rR}")
        I(f"v_cvt_pk_bf16_f32 v{rT}, v{rMEAN}, v{rVAR}")
        I(f"v_and_b32 v{rU}, 0xffff0000, v{rT}")
        I(f"v_lshlrev_b32 v{rMEAN}, 16, v{rT}")
        I(f"v_add_f32 v{rU}, {f2u(1e-5):#x}, v{rU}")
        I(f"v_cvt_pk_bf16_f32 v{rU}, v{rU}, v{rU}")
        I(f"v_fma_f32 v{rMB}, v{rMEAN}, v{rSD}, v{rMB}")
        I(f"v_and_b32 v{rU}, 0xffff0000, v{rU}")
        I(f"v_sqrt_f32 v{rU}, v{rU}")
        I(f"v_fma_f32 v{rTOT}, -v{rMB}, v{vCS1}, v{rTOT}")
        I(f"v_cvt_pk_bf16_f32 v{rU}, v{rU}, v{rU}")
        I(f"v_mul_f32 v{rTOT}, v{rTOT}, v{rR}")
        I(f"v_and_b32 v{rU}, 0xffff0000, v{rU}")
        I(f"v_rcp_f32 v{rU}, v{rU}")
        I(f"v_mul_f32 v{rTOT}, v{rTOT}, v{rU}")
        I(f"v_cvt_pk_bf16_f32 v{rU}, v{rTOT}, v{rTOT}")
        I(f"v_and_b32 v{rU}, 0xffff0000, v{rU}")
        I(f"v_add_f32 v{rU}, v{rU}, v{vB1}")
        I(f"v_cvt_pk_bf16_f32 v{rU}, v{rU}, v{rU}")
        I(f"v_and_b32 v{rU}, 0xffff0000, v{rU}")
        I(f"v_mul_f32 v{rT}, v{rU}, v{rU}")
        I(f"v_fma_f32 v{rT}, v{rT}, v{rC2}, v{rC1}")
        I(f"v_mul_f32 v{rT}, v{rT}, v{rU}")
        I(f"v_exp_f32 v{rT}, v{rT}")
        I(f"v_add_f32 v{rT}, 1.0, v{rT}")
        I(f"v_rcp_f32 v{rT}, v{rT}")
        I(f"v_mul_f32 v{rU}, v{rU}, v{rT}")
        I(f"v_cvt_pk_bf16_f32 v{rU}, v{rU}, v{rU}")
        setexec(0xFFFFFFFF, 0)
        I(f"ds_write_b16 v{ha+1}, v{rU} offset:{L_H}")
        setexec(0xFFFFFFFF, 0xFFFFFFFF)
        TS(22)
        I("s_waitcnt lgkmcnt(0)")
        a.label("L_W1t")
        w2_tail(FR5, HB5, T + 44)

    if q2 == 2:
        a.label("L_qslow")
        q_masked(lambda r_: f"buffer_load_dwordx4 {vr(r_)}, v{vQR}, {WS}, s{sT2} offen sc1")
        I(f"s_add_u32 s{sSPIN}, s{sSPIN}, 1")
        I("s_waitcnt vmcnt(0)")
        cur = maxtree(T + 50, range(T, T + 16))
        I(f"v_cmp_eq_u32 vcc, -1, v{cur}")
        I("s_cbranch_vccz L_qs2")
        I(f"s_cmp_lt_u32 s{sSPIN}, {spin_limit}")
        I("s_cbranch_scc1 L_qslow")
        a.label("L_qs2")
        for i in range(16, 24):
            I(f"v_mov_b32 v{T+i}, 0")
        I(f"s_mov_b64 s[{sKM}:{sKM+1}], 0")
        I("s_branch L_att")
    a.label("L_next")
    I("s_waitcnt vmcnt(0)")
    I(f"s_add_u32 s{sIT}, s{sIT}, 1")
    I(f"s_add_u32 s{sREG}, s{sREG}, {RS}")
    I(f"s_add_u32 s{sREG2}, s{sREG2}, {RS}")
    I(f"s_cmp_lt_u32 s{sIT}, 2")
    I("s_cbranch_scc1 L_loop")
    I(f"s_or_b32 s{sT0}, s{sROLE}, s{sX}")
    I(f"s_cmp_eq_u32 s{sT0}, 0")
    I("s_cbranch_scc0 L_fin")
    I(f"s_cmp_eq_u32 s{sWAVE}, 6")
    I("s_cbranch_scc1 L_loop")
    a.label("L_fin")
    if dbgt:
        srd(TA, 54, 256)
        I(f"v_add_u32 v{T}, 2, v{vLANE}")
        I(f"v_add_u32 v{T+1}, 4, v{vLANE}")
        I(f"v_cmp_gt_u32 vcc, 6, v{vLANE}")
        I(f"v_cndmask_b32 v{T}, v{T+1}, v{T}, vcc")
        I(f"v_lshlrev_b32 v{T}, 2, v{T}")
        setexec(0xFFF, 0)
        I(f"buffer_atomic_umax v{vTST}, v{T}, {TA}, 0 offen sc1")
        setexec(0xFFFFFFFF, 0xFFFFFFFF)
    if instr:
        TS(30)
        I(f"s_lshl_b32 s{sT0}, s2, 3")
        I(f"s_add_u32 s{sT0}, s{sT0}, s{sWAVE}")
        I(f"s_lshl_b32 s{sT0}, s{sT0}, 9")
        I(f"s_add_u32 s{sT0}, s{sT0}, {DBGOFF}")
        I(f"v_lshlrev_b32 v{T}, 3, v{vLANE}")
        I(f"buffer_store_dwordx2 v[{vTSI}:{vTST}], v{T}, {WS}, s{sT0} offen")
    a.label("L_end")
    I("s_endpgm")
    a.raw('.section .rodata,"a"\n.p2align 6')
    a.raw(f".amdhsa_kernel {KNAME}")
    a.raw("  .amdhsa_next_free_vgpr 256\n  .amdhsa_next_free_sgpr 102\n  .amdhsa_accum_offset 256\n"
          "  .amdhsa_group_segment_fixed_size 0\n  .amdhsa_kernarg_size 104\n  .amdhsa_user_sgpr_count 2\n"
          "  .amdhsa_user_sgpr_kernarg_segment_ptr 1\n  .amdhsa_system_sgpr_workgroup_id_x 1")
    a.raw(".end_amdhsa_kernel")
    open(fn, "w").write(a.text())
    return a.ninstr


if __name__ == "__main__":
    import argparse
    p = argparse.ArgumentParser()
    p.add_argument("-o", default="k.s")
    p.add_argument("--instr", action="store_true")
    p.add_argument("--kv", default="nt")
    p.add_argument("--w", default="")
    p.add_argument("--y16", action="store_true")
    p.add_argument("--nomask", action="store_true")
    p.add_argument("--nodual", action="store_true")
    p.add_argument("--n0", type=int, default=4)
    p.add_argument("--late", type=lambda x: int(x, 0), default=0x5f)
    p.add_argument("--r", default="")
    p.add_argument("--ncal", type=int, default=4)
    p.add_argument("--nw0", type=int, default=8)
    p.add_argument("--qk", type=int, default=16)
    p.add_argument("--qp", type=int, default=3)
    p.add_argument("--gate", type=int, default=4)
    p.add_argument("--calr", type=int, default=28)
    p.add_argument("--esy", type=int, default=1)
    p.add_argument("--rmap", type=int, default=0)
    p.add_argument("--wk", type=int, default=0)
    p.add_argument("--th1", type=int, default=0)
    p.add_argument("--yl", type=int, default=0)
    p.add_argument("--y64", type=int, default=0)
    p.add_argument("--zx", type=int, default=64)
    p.add_argument("--zfl", default="sc1")
    p.add_argument("--yfl", default="sc1")
    p.add_argument("--pl", type=int, default=0)
    p.add_argument("--g1", type=int, default=0)
    p.add_argument("--pth", type=int, default=0)
    p.add_argument("--g2", type=int, default=0)
    p.add_argument("--g3", type=int, default=0)
    p.add_argument("--near", type=int, default=-1)
    p.add_argument("--hb", default="0,1")
    p.add_argument("--zq", type=int, default=0)
    p.add_argument("--sm", type=int, default=0)
    p.add_argument("--kl", type=int, default=0)
    p.add_argument("--m2", type=int, default=0)
    p.add_argument("--q2", type=int, default=0)
    p.add_argument("--pk3", type=int, default=1)
    p.add_argument("--qb", type=int, default=0)
    p.add_argument("--ld", type=int, default=1)
    p.add_argument("--ldl", type=int, default=2)
    p.add_argument("--zl", type=lambda x: int(x, 0), default=0)
    p.add_argument("--w128", type=int, default=0)
    p.add_argument("--the", type=int, default=0)
    p.add_argument("--ew", type=int, default=0)
    p.add_argument("--eg", type=int, default=8)
    p.add_argument("--pi", type=int, default=0)
    p.add_argument("--wb", type=int, default=0)
    p.add_argument("--wd", type=int, default=0)
    p.add_argument("--pw", type=int, default=12)
    p.add_argument("--ps", type=int, default=0)
    p.add_argument("--pf", type=int, default=0)
    p.add_argument("--h0", type=int, default=0)
    p.add_argument("--pfr", type=int, default=1)
    p.add_argument("--dd", type=int, default=0)
    p.add_argument("--p5", type=int, default=0)
    p.add_argument("--pipe", type=int, default=0)
    p.add_argument("--ap", type=int, default=0)
    p.add_argument("--cw", type=int, default=0)
    p.add_argument("--emd", type=int, default=0)
    p.add_argument("--g8", type=int, default=8)
    p.add_argument("--emw", type=int, default=4)
    p.add_argument("--vx", type=int, default=0)
    p.add_argument("--kvp", default="12,13,14,15,16,17,18,19")
    p.add_argument("--fakeq", type=int, default=0)
    p.add_argument("--pdep", type=int, default=1)
    p.add_argument("--pdl", type=int, default=2)
    p.add_argument("--pmask", type=int, default=31)
    p.add_argument("--xl", type=lambda x: int(x, 0), default=0)
    p.add_argument("--dyn", type=int, default=1)
    p.add_argument("--tw", type=int, default=6)
    p.add_argument("--tp", type=int, default=16)
    p.add_argument("--th2", type=int, default=0)
    p.add_argument("--rot2", type=int, default=2)
    p.add_argument("--pt", type=int, default=0)
    p.add_argument("--ptr", type=int, default=32)
    p.add_argument("--dbgt", default=None)
    p.add_argument("--sp1", type=int, default=1)
    p.add_argument("--norot", action="store_true")
    p.add_argument("--syfl", default="")
    p.add_argument("--ts", default=None)
    p.add_argument("--noprio", action="store_true")
    args = p.parse_args()
    ts = None if args.ts is None else set(int(x) for x in args.ts.split(","))
    n = gen(args.o, instr=args.instr, kvflags=args.kv, wflags=args.w, y16=args.y16,
            masked_=not args.nomask, tsset=ts, n0=args.n0, late=args.late, rflags=args.r, ncal=args.ncal, dual=not args.nodual, prio=not args.noprio,
            nw0=args.nw0, qk=args.qk, rot=not args.norot, syfl=args.syfl, qp=args.qp, gate=args.gate, calr=args.calr, esy=args.esy, rmap=args.rmap, wk=args.wk, th1=args.th1, yl=args.yl, y64=args.y64, zx=args.zx, zfl=args.zfl, yfl=args.yfl, pl=args.pl, g1=args.g1, pth=args.pth, g2=args.g2, g3=args.g3, near=args.near, zq=args.zq, sm=args.sm, kl=args.kl, m2=args.m2, q2=args.q2, pipe=args.pipe, ap=args.ap, pk3=args.pk3, qb=args.qb, ld=args.ld, ldl=args.ldl, zl=args.zl, w128=args.w128, the=args.the, ew=args.ew, eg=args.eg, pi=args.pi, wb=args.wb, wd=args.wd, pw=args.pw, pst=args.ps, pf=args.pf, h0=args.h0, pfr=args.pfr, dd=args.dd, p5=args.p5, cw=args.cw, emd=args.emd, g8=args.g8, emw=args.emw, kvp=tuple(sum(1 << int(y) for y in x.split('+')) if i < 2 else int(x) for i, x in enumerate(args.kvp.split(','))), vx=args.vx, fakeq=args.fakeq, hb=tuple(int(x) for x in args.hb.split(',')), pdep=args.pdep, pdl=args.pdl, pmask=args.pmask, xl=args.xl, dyn=args.dyn, tw=args.tw, tp=args.tp, th2=args.th2, rot2=args.rot2, pt=args.pt, ptr_=args.ptr, dbgt=[tuple(int(y) for y in x.split('.')) for x in args.dbgt.split(',')] if args.dbgt else None, sp1=args.sp1)
    print("instrs:", n)
```

```python
import sys, struct, math
from asmlib import Asm

KNAME = "interleave_layers__gqa_block_cached__mixer_channel_mlp__decode_kernel"

RS = 0x60000
POFF, ZOFF, QOFF, XOFF, MLOFF, YOFF = 0x0, 0x10000, 0x20000, 0x1c000, 0x58000, 0x30000
CALOFF = 0xC0000
CP = 0x2000
ZR, ZX = 512, 64
DBGOFF = 0x100000
WS_SIZE = 0x200000
BIG = 0x40000000
PP = 544
L_PB1, L_PB2, L_CS1, L_CS2, L_QB, L_ML, L_FLAG, L_DUM, L_PER, L_ROLE = (
    0, 2816, 7168, 7808, 8448, 8704, 8768, 8896, 10240, 51200)
LDS_TOTAL = 163840
NPER, NREST = 10, 26
L_RING, RSL = 51200, 36
L_W2, L_H, L_O = 92160, 8784, 133120
LEAD_R = 0

def f2u(x):
    return struct.unpack("<I", struct.pack("<f", x))[0]

L2E = f2u(1.4426950408889634)
SCALE = f2u(128 ** -0.5)
GC1 = -2.0 * 1.4426950408889634 * math.sqrt(2.0 / math.pi)
GC2 = GC1 * 0.044715

sWAVE, sX, sR, sIT, sREG = 3, 4, 5, 6, 7
K_SRD, V_SRD, WS, TA, TB, OUTS = "s[8:11]", "s[12:15]", "s[16:19]", "s[20:23]", "s[24:27]", "s[28:31]"
sROLE, sPURE, sSPIN = 58, 59, 60
sT0, sT1, sT2, sT3, sSLOT = 61, 62, 63, 72, 73
sF = 64
sXCC, sTB, sNT, sTSI = 74, 75, 76, 77
sL2E, sM = 80, 81
sRB, sRSTEP, sRN = 82, 83, 84
sKV = 85
sNEAR, sREG2, sVOTE = 78, 79, 81
sLATE, sQS, sKM, sYM = 100, 101, 42, 98
sXW = 95
vLANE = 0
vGO, vXO, vPW, vSW, vQR, vOW, vMLW = 1, 2, 7, 8, 9, 10, 11
vPQ = 3
vA0, vA1, vA2, vA3 = 12, 13, 14, 15
vRDMA = 17
vTSI, vTST = 18, 19
vSEL = 20
vBQ = 28
vRB = 44
vFD = 72
T = 76
vK, vV = 128, 192
vRR, vQP, vQG, vCSQ, vCS1, vB1, vRP = 1, 2, 3, 4, 5, 6, 8
vXF = 72
vXFA = 16
vCR, vCML, vCP, vCPM, vQG7, vTK = 1, 2, 3, 4, 5, 6


def vr(a, n=4):
    return f"v[{a}:{a+n-1}]"


def gen(fn, instr=False, kvflags="nt", wflags="", rflags="", spin_limit=400000, tsset=None,
        sl=0, ylm=0, yh=0, zh=0, yhm=31, zhm=255, y16=False, masked_=True, dbgt=False, n0=4, late=0x78, dual=True, prio=True, ncal=4, nw0=8, qk=16, rot=True,
        syfl='', qp=3, gate=4, sp1=1, pt=0, ptr_=32, rmap=0, wk=0, calr=28, esy=1, th1=0, th2=0, rot2=2, dyn=1, tw=6, tp=16, yl=0, y64=0, zx=64, zfl='sc1', yfl='sc1', pl=0, xl=0, pdep=1, pdl=2, pmask=31, g1=0, pth=0, g2=0, g3=0, near=-1, hb=(0, 1), fakeq=0, kvp=(4096, 8192, 14, 15, 16, 17, 18, 19), vx=0, emd=0, g8=8, emw=4, cw=0, sm=0, zq=0, kl=0, m2=0, q2=0, pipe=0, ap=0, pk3=1, qb=0, p5=0, dd=0, pf=0, h0=0, pfr=1, pst=0, pw=12, wd=0, wb=0, pi=0, ew=0, eg=8, the=0, w128=0, zl=0, ld=1, ldl=2):
    assert not late & 0x80
    ZX = zx; ZR = 8 * zx; ZB = 4 if zx == 64 else 3
    y128 = y64 == 2
    HB5 = [28, 32, 36, 40, 64]
    a = Asm()
    a.pipe = bool(pipe)
    I = a.I
    a.raw(f"; @launch grid=(256,1,1) block=(512,1,1) lds={LDS_TOTAL}")
    a.raw('.amdgcn_target "amdgcn-amd-amdhsa--gfx950"')
    a.raw(".text")
    a.raw(f".globl {KNAME}\n.p2align 8\n.type {KNAME},@function\n{KNAME}:")

    def TS(k):
        if dbgt:
            for j, (kk, it, *mn) in enumerate(dbgt):
                if kk == k:
                    l = a.newlab("Ld")
                    I(f"s_cmp_eq_u32 s{sIT}, {it}")
                    I(f"s_cbranch_scc0 {l}")
                    I("s_memrealtime s[0:1]")
                    I("s_waitcnt lgkmcnt(0)")
                    if mn: I("s_not_b32 s0, s0")
                    I(f"v_writelane_b32 v{vTST}, s0, {j + 2}")
                    a.label(l)
            return
        if not instr or (tsset is not None and k not in tsset and k not in (0, 30)):
            return
        I("s_memrealtime s[0:1]")
        I("s_waitcnt lgkmcnt(0)")
        I(f"v_writelane_b32 v{vTSI}, {k}, s{sTSI}")
        I(f"s_mov_b32 m0, s{sTSI}")
        I(f"v_writelane_b32 v{vTST}, s0, m0")
        I(f"s_add_u32 s{sTSI}, s{sTSI}, 1")

    def srd(dst, ptr, size):
        d = int(dst[2:].split(":")[0])
        I(f"s_mov_b32 s{d}, s{ptr}")
        I(f"s_mov_b32 s{d+1}, s{ptr+1}")
        I(f"s_mov_b32 s{d+2}, {size:#x}")
        I(f"s_mov_b32 s{d+3}, 0x20000")

    def setexec(lo, hi):
        if lo == 0xFFFFFFFF and hi == 0xFFFFFFFF:
            I("s_mov_b64 exec, -1")
        else:
            I(f"s_mov_b32 exec_lo, {lo:#x}")
            I(f"s_mov_b32 exec_hi, {hi:#x}")

    def maxtree(tmp, rs):
        rs = list(rs)
        if len(rs) == 1:
            return rs[0]
        cur = None
        while rs:
            if cur is None:
                if len(rs) >= 3:
                    I(f"v_max3_u32 v{tmp}, v{rs[0]}, v{rs[1]}, v{rs[2]}"); rs = rs[3:]
                else:
                    I(f"v_max_u32 v{tmp}, v{rs[0]}, v{rs[1]}"); rs = rs[2:]
                cur = tmp
            elif len(rs) >= 2:
                I(f"v_max3_u32 v{tmp}, v{tmp}, v{rs[0]}, v{rs[1]}"); rs = rs[2:]
            else:
                I(f"v_max_u32 v{tmp}, v{tmp}, v{rs[0]}"); rs = rs[1:]
        return cur

    def poll(loads, regs, ex=(0xFFFFFFFF, 0xFFFFFFFF), groups=None, simple=False, hop=0):
        lab = a.newlab("Lp"); done = a.newlab("Lpd")
        tmp = T + 50
        masked = masked_ and not simple
        if not masked:
            a.label(lab)
        dep = pdep if hop & pmask else 1
        for l in loads:
            I(l)
        for _ in range(dep - 1):
            for _ in range(pdl): I("s_nop 15")
            for l in loads:
                I(l)
        if masked:
            a.label(lab)
        I(f"s_add_u32 s{sSPIN}, s{sSPIN}, 1")
        I(f"s_waitcnt vmcnt({len(loads) * (dep - 1)})")
        cur = maxtree(tmp, regs)
        I(f"v_cmp_eq_u32 vcc, -1, v{cur}")
        I(f"s_cbranch_vccz {done}")
        if masked:
            if groups is None or len(loads) == 1:
                I("s_mov_b64 exec, vcc")
                for l in loads:
                    I(l)
            else:
                for j, gr in enumerate(groups):
                    cur = maxtree(tmp + 1 - (j & 1), gr)
                    I(f"v_cmp_eq_u32 s[{86+2*j}:{87+2*j}], -1, v{cur}")
                for j, l in enumerate(loads):
                    I(f"s_mov_b64 exec, s[{86+2*j}:{87+2*j}]")
                    I(l)
            setexec(*ex)
        I(f"s_cmp_lt_u32 s{sSPIN}, {spin_limit}")
        I(f"s_cbranch_scc1 {lab}")
        if masked:
            I("s_waitcnt vmcnt(0)")
        a.label(done)

    def light(load, reg, ex=None):
        lab = a.newlab("Ll"); done = a.newlab("Lld")
        if ex: setexec(*ex)
        if ld > 1:
            I(f"v_mov_b32 v{reg}, -1")
            for _ in range(ld - 1):
                I(load)
                for _ in range(ldl): I("s_nop 15")
            a.label(lab)
            I(load)
            I(f"s_add_u32 s{sSPIN}, s{sSPIN}, 1")
            I(f"s_waitcnt vmcnt({ld - 1})")
            I(f"v_cmp_ne_u32 vcc, -1, v{reg}")
            I(f"s_cbranch_vccnz {done}")
            I(f"s_cmp_lt_u32 s{sSPIN}, {spin_limit}")
            I(f"s_cbranch_scc1 {lab}")
            a.label(done)
            if ex: setexec(0xFFFFFFFF, 0xFFFFFFFF)
            return
        a.label(lab)
        I(load)
        I(f"s_add_u32 s{sSPIN}, s{sSPIN}, 1")
        I("s_waitcnt vmcnt(0)")
        I(f"v_cmp_ne_u32 vcc, -1, v{reg}")
        I(f"s_cbranch_vccnz {done}")
        I(f"s_cmp_lt_u32 s{sSPIN}, {spin_limit}")
        I(f"s_cbranch_scc1 {lab}")
        a.label(done)
        if ex: setexec(0xFFFFFFFF, 0xFFFFFFFF)

    def light_all(load, reg, ex):
        lab = a.newlab("La"); done = a.newlab("Lad")
        setexec(*ex)
        a.label(lab)
        I(load)
        I(f"s_add_u32 s{sSPIN}, s{sSPIN}, 1")
        I("s_waitcnt vmcnt(0)")
        I(f"v_cmp_eq_u32 vcc, -1, v{reg}")
        I(f"s_cbranch_vccz {done}")
        I(f"s_cmp_lt_u32 s{sSPIN}, {spin_limit}")
        I(f"s_cbranch_scc1 {lab}")
        a.label(done)
        setexec(0xFFFFFFFF, 0xFFFFFFFF)

    def lstore(ins, far=False):
        if far and near >= 0:
            for x in ins: I(x + " sc1")
            return
        l1 = a.newlab("Ls"); l2 = a.newlab("Lsd")
        I(f"s_cmp_eq_u32 s{sPURE}, 0")
        I(f"s_cbranch_scc1 {l1}")
        for x in ins: I(x)
        I(f"s_branch {l2}")
        a.label(l1)
        for x in ins: I(x + " sc1")
        a.label(l2)

    def unpack(lo, hi, src):
        I(f"v_lshlrev_b32 v{lo}, 16, v{src}")
        I(f"v_and_b32 v{hi}, 0xffff0000, v{src}")

    def hperm(dst, src, tmp):
        pos = list(hb) + [b for b in range(5) if b not in hb]
        if pos == [0, 1, 2, 3, 4]:
            if dst != src: I(f"s_mov_b32 s{dst}, s{src}")
            return
        I(f"s_mov_b32 s96, 0")
        for i in range(5):
            I(f"s_bfe_u32 s{tmp}, s{src}, {i | (1 << 16):#x}")
            I(f"s_lshl_b32 s{tmp}, s{tmp}, {pos[i]}")
            I(f"s_or_b32 s96, s96, s{tmp}")
        I(f"s_mov_b32 s{dst}, s96")

    XA = T + 32
    ONES = T + 28

    if instr: I("s_memrealtime s[98:99]")
    I("s_cmp_ge_u32 s2, 256")
    I("s_cbranch_scc1 L_end")
    I("s_load_dwordx16 s[32:47], s[0:1], 0")
    if cw:
        I("s_getpc_b64 s[4:5]")
        a.label("L_cs")
        I(f"v_lshlrev_b32 v1, {cw}, v0")
        I("v_min_u32 v1, L_end-L_cs, v1")
        I("global_load_dword v255, v1, s[4:5]")
    I("s_load_dwordx8 s[48:55], s[0:1], 64")
    I("s_load_dwordx2 s[56:57], s[0:1], 96")
    if dbgt: I("s_memrealtime s[96:97]")
    I("v_lshrrev_b32 v1, 6, v0")
    I(f"v_and_b32 v{vLANE}, 63, v0")
    I(f"v_readfirstlane_b32 s{sWAVE}, v1")
    I(f"s_and_b32 s{sX}, s2, 7")
    I(f"s_lshr_b32 s{sR}, s2, 3")
    I(f"s_lshl_b32 s{sSLOT}, s{sX}, 5")
    I(f"s_add_u32 s{sSLOT}, s{sSLOT}, s{sR}")
    I(f"s_mov_b32 s{sXW}, s{sX}")
    if near >= 0:
        I(f"s_and_b32 s{sSLOT}, s{sX}, 3")
        I(f"s_lshl_b32 s{sXW}, s{sSLOT}, 1")
        I(f"s_lshl_b32 s{sSLOT}, s{sSLOT}, 6")
        I(f"s_lshr_b32 s{sT0}, s{sR}, 2")
        I(f"s_lshl_b32 s{sT0}, s{sT0}, 3")
        I(f"s_add_u32 s{sSLOT}, s{sSLOT}, s{sT0}")
        I(f"s_and_b32 s{sT0}, s{sX}, 4")
        I(f"s_add_u32 s{sSLOT}, s{sSLOT}, s{sT0}")
        I(f"s_lshr_b32 s{sT0}, s{sT0}, 2")
        I(f"s_add_u32 s{sXW}, s{sXW}, s{sT0}")
        I(f"s_and_b32 s{sT0}, s{sR}, 3")
        I(f"s_add_u32 s{sSLOT}, s{sSLOT}, s{sT0}")
    if rmap:
        I(f"s_mov_b32 s{sT0}, -5")
        I(f"s_cmp_lt_u32 s{sR}, 28")
        I(f"s_cselect_b32 s{sT0}, -8, s{sT0}")
        I(f"s_cmp_lt_u32 s{sR}, 16")
        I(f"s_cselect_b32 s{sT0}, 16, s{sT0}")
        I(f"s_cmp_lt_u32 s{sR}, 11")
        I(f"s_cselect_b32 s{sT0}, 12, s{sT0}")
        I(f"s_cmp_lt_u32 s{sR}, 8")
        I(f"s_cselect_b32 s{sT0}, 0, s{sT0}")
        I(f"s_add_u32 s{sR}, s{sR}, s{sT0}")
    g, n, q4, c4, t0, t1, t2, t3 = T, T+1, T+2, T+3, T+4, T+5, T+6, T+7
    aK = T + 48
    vAT = T + 44
    I(f"v_lshrrev_b32 v{g}, 4, v{vLANE}")
    I(f"v_and_b32 v{n}, 15, v{vLANE}")
    I(f"v_bfe_u32 v{q4}, v{vLANE}, 2, 2")
    I(f"v_and_b32 v{c4}, 3, v{vLANE}")
    if sm and kl == 1:
        I(f"v_bfe_u32 v{aK}, v{vLANE}, 1, 3")
        I(f"v_lshlrev_b32 v{aK}, 8, v{aK}")
        I(f"v_lshl_add_u32 v{aK}, v{g}, 5, v{aK}")
        I(f"v_and_b32 v{t0}, 1, v{vLANE}")
        I(f"v_lshl_add_u32 v{aK}, v{t0}, 4, v{aK}")
    elif sm and kl != 2:
        I(f"v_bfe_u32 v{aK}, v{vLANE}, 1, 2")
        I(f"v_lshlrev_b32 v{aK}, 12, v{aK}")
        I(f"v_lshl_add_u32 v{aK}, v{g}, 5, v{aK}")
        I(f"v_and_b32 v{t0}, 8, v{vLANE}")
        I(f"v_lshl_add_u32 v{aK}, v{t0}, 5, v{aK}")
        I(f"v_and_b32 v{t0}, 1, v{vLANE}")
        I(f"v_lshl_add_u32 v{aK}, v{t0}, 4, v{aK}")
    else:
        I(f"v_lshlrev_b32 v{aK}, 8, v{q4}")
        I(f"v_lshl_add_u32 v{aK}, v{g}, 6, v{aK}")
        I(f"v_lshl_add_u32 v{aK}, v{c4}, 4, v{aK}")
    if not q2:
        I(f"v_mul_u32_u24 v{vXO}, 320, v{q4}")
        I(f"v_lshl_add_u32 v{vXO}, v{g}, 4, v{vXO}")
        I(f"s_lshl_b32 s{sT0}, s{sWAVE}, 6")
        I(f"v_add_u32 v{vXO}, s{sT0}, v{vXO}")
    if near >= 0:
        I(f"s_lshr_b32 s{sKV}, s{sSLOT}, 3")
        I(f"s_lshl_b32 s{sKV}, s{sKV}, 20")
        I(f"s_and_b32 s{sT0}, s{sSLOT}, 3")
        I(f"s_lshl_b32 s{sT0}, s{sT0}, 18")
        I(f"s_add_u32 s{sKV}, s{sKV}, s{sT0}")
        I(f"s_lshl_b32 s{sT0}, s{sWAVE}, 15")
        I(f"s_add_u32 s{sKV}, s{sKV}, s{sT0}")
        I(f"s_lshr_b32 s{sT0}, s{sSLOT}, 2")
        I(f"s_lshr_b32 s{sT1}, s{sSLOT}, 4")
        I(f"s_xor_b32 s{sT0}, s{sT0}, s{sT1}")
        I(f"s_xor_b32 s{sT0}, s{sT0}, {near}")
        I(f"s_and_b32 s{sT0}, s{sT0}, 1")
        I(f"s_lshl_b32 s{sT0}, s{sT0}, 13")
        I(f"s_add_u32 s{sKV}, s{sKV}, s{sT0}")
    else:
        I(f"s_lshr_b32 s{sKV}, s{sSLOT}, 3")
        hperm(97, sKV, sT0)
        I(f"s_lshl_b32 s{sKV}, s97, 20")
        for src, ps in ((sWAVE, kvp[2:5]), (sSLOT, kvp[5:8])):
            i = 0
            while i < 3:
                n_ = 1
                while i + n_ < 3 and ps[i + n_] == ps[i] + n_: n_ += 1
                I(f"s_bfe_u32 s{sT0}, s{src}, {i | (n_ << 16):#x}")
                I(f"s_lshl_b32 s{sT0}, s{sT0}, {ps[i]}")
                I(f"s_add_u32 s{sKV}, s{sKV}, s{sT0}")
                i += n_
    KVO = [0, 4096, 16384, 20480] if near >= 0 else [(t & 1) * kvp[0] ^ (t >> 1) * kvp[1] for t in range(4)]
    I(f"s_lshr_b32 s{sQS}, s{sSLOT}, 3")
    I(f"s_lshl_b32 s{sQS}, s{sQS}, 11")
    if q2:
        I(f"s_lshl_b32 s{sQS}, s{sSLOT}, 8")
    else:
        I(f"s_and_b32 s{sT1}, s{sSLOT}, 3")
        I(f"s_lshl_b32 s{sT0}, s{sT1}, 9")
        I(f"s_add_u32 s{sQS}, s{sQS}, s{sT0}")
        I(f"s_and_b32 s{sT0}, s{sSLOT}, 4")
        I(f"s_lshl_b32 s{sT0}, s{sT0}, 6")
        I(f"s_add_u32 s{sQS}, s{sQS}, s{sT0}")
    I(f"s_add_u32 s{sQS}, s{sQS}, {QOFF}")
    vW0, vW1, ta0, ta1 = T + 44, T + 45, T + 42, T + 43
    XQ, ACC, BUF = 28, 48, 80
    sBa, sEa, sPER, sRING, sSO, sMB, sRS_ = 86, 87, 90, 91, 92, 93, 94
    xq = T + 12
    I(f"s_and_b32 s{sT0}, s{sSLOT}, 3")
    I(f"s_mul_i32 s{sT0}, s{sT0}, 5")
    I(f"s_lshr_b32 s{sT1}, s{sSLOT}, 1")
    I(f"s_xor_b32 s{sT1}, s{sT1}, s{sWAVE}")
    I(f"s_bitcmp1_b32 s{sT1}, 1")
    I(f"s_cselect_b32 s{sT1}, {rot2}, 0")
    I(f"s_add_u32 s{sT1}, s{sT0}, s{sT1}")
    I(f"s_lshr_b32 s{sT0}, s{sSLOT}, 3")
    if near < 0: I(f"s_mov_b32 s{sT0}, s97")
    I(f"s_lshl_b32 s{sT0}, s{sT0}, 8")
    US = 17 if w128 else 18
    if w128:
        I(f"s_and_b32 s{sT2}, s{sWAVE}, 1")
        I(f"s_lshl_b32 s{sT2}, s{sT2}, 7")
        I(f"s_add_u32 s{sT0}, s{sT0}, s{sT2}")
        I(f"s_lshr_b32 s{sT2}, s{sWAVE}, 1")
        I(f"s_mul_i32 s{sT2}, s{sT2}, {320 * 8192}")
    else:
        I(f"s_lshl_b32 s{sT2}, s{sWAVE}, 6")
    I(f"s_add_u32 s{sBa}, s{sT0}, s{sT2}")
    I(f"s_add_u32 s{sEa}, s{sBa}, {20 << US:#x}")
    I(f"s_lshl_b32 s{sT2}, s{sT1}, {US}")
    I(f"s_add_u32 s{sSO}, s{sBa}, s{sT2}")
    if q2:
        I(f"s_bfe_u32 s{sT2}, s{sSLOT}, 0x20001")
        I(f"s_cmp_gt_u32 s{sWAVE}, s{sT2}")
        I(f"s_subb_u32 s{sPER}, s{sWAVE}, 0")
        I(f"s_mul_i32 s{sPER}, s{sPER}, {RSL * 1024}")
        I(f"s_add_u32 s{sPER}, s{sPER}, {L_RING}")
        I(f"s_sub_u32 s{sRING}, s{sPER}, {RSL * 1024}")
        I(f"s_cmp_eq_u32 s{sWAVE}, s{sT2}")
        I(f"s_cselect_b32 s{sPER}, {L_PER}, s{sPER}")
        I(f"s_cselect_b32 s{sRING}, {L_PER}, s{sRING}")
    else:
        I(f"s_mul_i32 s{sPER}, s{sWAVE}, {NPER * 1024}")
        I(f"s_add_u32 s{sPER}, s{sPER}, {L_PER}")
        I(f"s_mul_i32 s{sRING}, s{sWAVE}, {NREST * 1024}")
        I(f"s_add_u32 s{sRING}, s{sRING}, {L_RING}")
    I(f"v_add_u32 v{t2}, s{sT1}, v{q4}")
    I(f"v_lshlrev_b32 v{t2}, 6, v{t2}")
    I(f"v_lshl_add_u32 v{t2}, v{g}, 4, v{t2}")
    for j in range(5):
        I(f"v_add_u32 v{xq+j}, {256*j}, v{t2}")
        I(f"v_subrev_u32 v{t3}, {1280 - 256*j}, v{t2}")
        I(f"v_min_u32 v{xq+j}, v{xq+j}, v{t3}")
    I(f"v_lshrrev_b32 v{vW0}, 2, v{vLANE}")
    I(f"v_lshlrev_b32 v{vW0}, 13, v{vW0}")
    I(f"v_lshrrev_b32 v{t3}, 4, v{vLANE}")
    I(f"v_and_b32 v{t3}, 2, v{t3}")
    I(f"v_xor_b32 v{t3}, v{t3}, v{c4}")
    I(f"v_lshl_add_u32 v{vW0}, v{t3}, 4, v{vW0}")
    if w128:
        I(f"v_lshrrev_b32 v{vW0}, 3, v{vLANE}")
        I(f"v_lshlrev_b32 v{vW0}, 13, v{vW0}")
        I(f"v_and_b32 v{t3}, 7, v{vLANE}")
        I(f"v_lshl_add_u32 v{vW0}, v{t3}, 4, v{vW0}")
    I(f"v_add_u32 v{vW1}, {1 << (US - 1):#x}, v{vW0}")
    I(f"v_lshlrev_b32 v{t0}, 4, v{vLANE}")
    cl = T + 8
    for i in range(4):
        I(f"v_mov_b32 v{cl+i}, -1")
    I(f"s_mov_b32 s{sTSI}, 0")
    if instr:
        I(f"v_mov_b32 v{vTSI}, -1")
        I(f"v_mov_b32 v{vTST}, 0")
    I(f"s_getreg_b32 s{sXCC}, hwreg(HW_REG_XCC_ID)")
    I(f"s_and_b32 s{sXCC}, s{sXCC}, 15")
    I(f"s_mul_i32 s{sT3}, s2, 3072")
    if instr: I("s_memrealtime s[0:1]")
    I("s_waitcnt lgkmcnt(0)")
    if instr:
        I(f"v_writelane_b32 v{vTSI}, 41, 0")
        I(f"v_writelane_b32 v{vTST}, s98, 0")
        I(f"v_writelane_b32 v{vTSI}, 42, 1")
        I(f"v_writelane_b32 v{vTST}, s0, 1")
        I(f"s_mov_b32 s{sTSI}, 2")
        TS(43)
    srd(WS, 56, WS_SIZE)
    srd(K_SRD, 34, 32 << 20)
    if dbgt:
        I(f"v_mov_b32 v{vTST}, 0")
        I(f"v_writelane_b32 v{vTST}, s96, 1")
        I("s_not_b32 s96, s96")
        I(f"v_writelane_b32 v{vTST}, s96, 0")
        I(f"s_mov_b32 s{sIT}, 0")
        TS(40)
    srd(TA, 38, 640 * 8192)
    srd(TB, 32, 1280)

    def k_issue(lo, hi, hook=None):
        for ki in range(lo, hi):
            if hook: hook(ki)
            if sm and kl == 1:
                if ki % 4 == 0 or ki == lo:
                    I(f"s_xor_b32 s{sT0}, s{sKV}, {KVO[ki//4]}")
                I(f"buffer_load_dwordx4 {vr(vK+4*ki)}, v{aK}, {K_SRD}, s{sT0} offen offset:{((ki>>1)&1)*2048+(ki&1)*128} {kvflags}")
                continue
            if sm and kl != 2:
                I(f"buffer_load_dwordx4 {vr(vK+4*ki)}, v{aK}, {K_SRD}, s{sKV} offen offset:{(ki>>1)*512+(ki&1)*128} {kvflags}")
                continue
            if ki % 4 == 0 or ki == lo:
                I(f"s_xor_b32 s{sT0}, s{sKV}, {KVO[ki//4]}")
            I(f"buffer_load_dwordx4 {vr(vK+4*ki)}, v{aK}, {K_SRD}, s{sT0} offen offset:{(ki%4)*1024} {kvflags}")

    I(f"s_cmp_eq_u32 s{sWAVE}, 6")
    I("s_cbranch_scc0 L_nclr")
    I(f"buffer_store_dwordx4 {vr(cl)}, v{t0}, {WS}, s{sT3} offen sc1")
    I(f"buffer_store_dwordx4 {vr(cl)}, v{t0}, {WS}, s{sT3} offen offset:1024 sc1")
    I(f"buffer_store_dwordx4 {vr(cl)}, v{t0}, {WS}, s{sT3} offen offset:2048 sc1")
    TS(0)
    I("s_branch L_early")
    a.label("L_nclr")
    I(f"s_cmp_ge_u32 s{sWAVE}, 4")
    I("s_cbranch_scc1 L_nwq")
    if prio: I(f"s_setprio {qp}")
    nis = [0]; nk = [0]; wpos = {}
    def slot(p):
        if q2: return (sPER if p < RSL else sRING), p * 1024
        if p < NPER: return sPER, p * 1024
        return sRING, ((p - NPER) % NREST) * 1024
    def w_issue(lo, hi):
        for p in range(lo, hi):
            u, h = p >> 1, p & 1
            b_, o_ = slot(p)
            I(f"s_add_u32 m0, s{b_}, {o_}")
            if fakeq and p == fakeq:
                I(f"v_mov_b32 v{vW0}, {BIG:#x}")
                I(f"v_mov_b32 v{vW1}, {BIG:#x}")
            I(f"buffer_load_dwordx4 v{(vW0, vW1)[h]}, {TA}, s{sSO} offen {wflags} lds")
            wpos[p] = nis[0]
            nis[0] += 1
            if h and p < 39:
                I(f"s_add_u32 s{sSO}, s{sSO}, {1 << US:#x}")
                I(f"s_cmp_eq_u32 s{sSO}, s{sEa}")
                I(f"s_cselect_b32 s{sSO}, s{sBa}, s{sSO}")
    for j in range(5):
        I(f"buffer_load_dwordx4 {vr(XQ+4*j)}, v{xq+j}, {TB}, 0 offen")
        nis[0] += 1
    w_issue(0, nw0)
    TS(0)
    I("s_branch L_early")
    a.label("L_nwq")
    if pt:
        k_issue(0, 1)
        I(f"v_lshlrev_b32 v{t2}, 21, v{vLANE}")
        setexec(0x7, 0)
        I(f"s_cmp_eq_u32 s{sWAVE}, 4")
        I("s_cbranch_scc0 L_pt5")
        srd(TA, 36, 32 << 20)
        setexec(1, 0)
        I(f"buffer_load_dword v{vV}, v{t2}, {TA}, s{sKV} offen")
        I("s_branch L_ptd")
        a.label("L_pt5")
        I(f"s_cmp_lt_u32 s{sR}, {ptr_}")
        I("s_cbranch_scc0 L_ptd")
        I(f"s_cmp_eq_u32 s{sWAVE}, 5")
        I("s_cbranch_scc0 L_pt7")
        for ptr, size in ((40, 4096 * 1280), (44, 640 * 3456), (48, 1728 * 1280)):
            srd(TA, ptr, size)
            I(f"buffer_load_dword v{vV}, v{t2}, {TA}, 0 offen")
        I("s_branch L_ptd")
        a.label("L_pt7")
        for ptr, size in ((52, 1280), (50, 1280), (46, 3456)) + (((54, 256),) if pt > 1 else ()):
            srd(TA, ptr, size)
            I(f"buffer_load_dword v{vV}, v{t2}, {TA}, 0 offen")
        a.label("L_ptd")
        setexec(0xFFFFFFFF, 0xFFFFFFFF)
        k_issue(1, n0)
    else:
        k_issue(0, n0)
    TS(0)
    a.label("L_early")
    srd(V_SRD, 36, 32 << 20)
    srd(OUTS, 52, 1280)
    I(f"s_mov_b32 s{sIT}, 0")
    I(f"s_mov_b32 s{sREG}, 0")
    I(f"s_mov_b32 s{sREG2}, {CP}")
    I(f"s_mov_b32 s{sSPIN}, 0")
    I(f"s_mov_b32 s{sPURE}, 0")
    I(f"s_mov_b32 s{sNEAR}, 0")
    I(f"s_mov_b32 s{sL2E}, {L2E:#x}")
    I(f"s_lshr_b32 s{sLATE}, {late:#x}, s{sWAVE}")
    I(f"s_and_b32 s{sLATE}, s{sLATE}, 1")
    I(f"s_mov_b32 s{sROLE}, 3")
    if not dyn:
        I(f"s_mul_i32 s{sTB}, s{sX}, 7")
        I(f"s_cmp_eq_u32 s{sX}, 7")
        I(f"s_cselect_b32 s{sT0}, 21, 20")
        I(f"s_sub_u32 s{sTB}, s{sTB}, s{sT0}")
        I(f"s_add_u32 s{sTB}, s{sTB}, s{sR}")
        I(f"s_cmp_lt_u32 s{sX}, 6")
        I(f"s_cselect_b32 s{sT0}, 27, 26")
        I(f"s_cmp_lt_u32 s{sR}, s{sT0}")
        I(f"s_cselect_b32 s{sROLE}, 1, s{sROLE}")
    I(f"s_cmp_lt_u32 s{sR}, 20")
    I(f"s_cselect_b32 s{sROLE}, 0, s{sROLE}")
    I(f"s_cselect_b32 s{sLATE}, s{sLATE}, 0")
    for i in [1] + list(range(2 if q2 else 3, 18)):
        I(f"v_mov_b32 v{i}, {BIG:#x}")

    def v_issue():
        k1, k2, k3 = T + 49, T + 50, T + 51
        I(f"v_lshrrev_b32 v{k1}, 4, v{vLANE}")
        I(f"v_bfe_u32 v{k3}, v{vLANE}, 3, 1")
        if sm: I(f"v_lshl_add_u32 v{k3}, v{k1}, 1, v{k3}")
        else: I(f"v_lshl_add_u32 v{k3}, v{k3}, 3, v{k1}")
        I(f"v_lshlrev_b32 v{k3}, 8, v{k3}")
        I(f"v_and_b32 v{k2}, 7, v{vLANE}")
        I(f"v_lshl_add_u32 v{k3}, v{k2}, 4, v{k3}")
        def ticket():
            I(f"s_cmp_eq_u32 s{sWAVE}, {tw}")
            I("s_cbranch_scc0 L_ntk")
            I(f"s_cmp_eq_u32 s{sROLE}, 0")
            if pf:
                I(f"s_cselect_b32 s{sT1}, 1, 0x101")
                I(f"v_mov_b32 v{vTK}, s{sT1}")
                I(f"s_lshl_b32 s{sT1}, s{sX}, 3")
            else:
                I("s_cbranch_scc1 L_ntk")
                I(f"v_mov_b32 v{vRDMA}, 1")
            srd(TA, 54, 256)
            setexec(1, 0)
            if pf: I(f"buffer_atomic_add v{vTK}, off, {TA}, s{sT1} sc0 sc1")
            else: I(f"buffer_atomic_add v{vRDMA}, off, {TA}, 0 sc0 sc1")
            setexec(0xFFFFFFFF, 0xFFFFFFFF)
            a.label("L_ntk")
        for j in range(17):
            if dyn and j == tp: ticket()
            if j == 16: break
            if j % 4 == 0:
                I(f"s_xor_b32 s{sT0}, s{sKV}, {KVO[j//4]}")
            u, hf = (j >> 1) & 1, j & 1
            if sm: u, hf = 2 * hf, u
            I(f"buffer_load_dwordx4 {vr(vV+4*j)}, v{k3}, {V_SRD}, s{sT0} offen offset:{u*1024+hf*128} {kvflags}")

    def pf_static(lab, dummy, mode=0):
        ad, ds = T + 49, T + 50
        if mode != 3:
            I(f"s_cmp_lt_u32 s{sWAVE}, 7")
            I(f"s_cbranch_scc0 {lab}")
        if not dummy:
            I(f"s_cmp_eq_u32 s{sROLE}, 0")
            I(f"s_cbranch_scc1 {lab}")
        if mode == 3:
            I(f"s_sub_u32 s{sT0}, 31, s{sR}")
            I(f"s_min_u32 s{sT0}, s{sT0}, 5")
            I(f"s_mul_i32 s{sT1}, s{sWAVE}, 5")
            I(f"s_cmp_lt_u32 s{sT0}, 5")
            I(f"s_cselect_b32 s{sT1}, s{sT1}, 99")
            I(f"s_add_u32 s{sT0}, s{sT0}, s{sT1}")
            if pi: I(f"s_add_u32 s{sT0}, s{sT0}, {pi}")
            mode = 1
        elif mode == 1 and pst == 6:
            I(f"s_sub_u32 s{sT0}, 31, s{sR}")
            I(f"s_lshl_b32 s{sT1}, s{sWAVE}, 5")
            I(f"s_add_u32 s{sT0}, s{sT0}, s{sT1}")
            I(f"s_cmp_lt_u32 s{sT0}, {pi}")
            I(f"s_cselect_b32 s{sT0}, s{sT0}, 99")
        elif mode < 2 and pw == 32:
            I(f"s_sub_u32 s{sT0}, 31, s{sR}")
            I(f"s_lshl_b32 s{sT1}, s{sWAVE}, 5")
            I(f"s_add_u32 s{sT0}, s{sT0}, s{sT1}")
            I(f"s_min_u32 s{sT0}, s{sT0}, 99")
        elif mode == 1:
            I(f"s_sub_u32 s{sT0}, 31, s{sR}")
            I(f"s_cmp_lt_u32 s{sT0}, {pw}")
            I(f"s_cselect_b32 s{sT0}, s{sT0}, 99")
            I(f"s_mul_i32 s{sT1}, s{sWAVE}, {pw}")
            I(f"s_add_u32 s{sT0}, s{sT0}, s{sT1}")
        elif mode == 2:
            I(f"s_sub_u32 s{sT0}, 31, s{sR}")
            I(f"s_mul_i32 s{sT0}, s{sT0}, 7")
            I(f"s_add_u32 s{sT0}, s{sT0}, s{sWAVE}")
        else:
            I(f"s_sub_u32 s{sT0}, s{sR}, 20")
            if pfr:
                I(f"s_mul_i32 s{sT1}, s{sWAVE}, 12")
                I(f"s_add_u32 s{sT0}, s{sT0}, s{sT1}")
            else:
                I(f"s_mul_i32 s{sT0}, s{sT0}, 7")
                I(f"s_add_u32 s{sT0}, s{sT0}, s{sWAVE}")
            I(f"s_cmp_eq_u32 s{sROLE}, 0")
            I(f"s_cselect_b32 s{sT0}, 99, s{sT0}")
        I(f"s_mul_i32 s{sT1}, s{sX}, 7")
        I(f"s_min_u32 s{sT1}, s{sT1}, 48")
        if mode == 0:
            I(f"s_cmp_lt_u32 s{sT0}, 40")
            I(f"s_cbranch_scc0 {lab}w2")
        if mode < 2:
            srd(TA, 44, 640 * 3456)
            I(f"v_lshrrev_b32 v{ad}, 2, v{vLANE}")
            I(f"v_mul_u32_u24 v{ad}, 3456, v{ad}")
            I(f"v_and_b32 v{ds}, 3, v{vLANE}")
            I(f"v_lshl_add_u32 v{ad}, v{ds}, 7, v{ad}")
            I(f"s_mul_i32 s{sT0}, s{sT0}, {16*3456}")
            I(f"s_lshr_b32 s{sT1}, s{sT1}, 1")
            I(f"s_lshl_b32 s{sT1}, s{sT1}, 7")
            I(f"s_add_u32 s{sT0}, s{sT0}, s{sT1}")
            I(f"v_add_u32 v{ad}, s{sT0}, v{ad}")
            I(f"buffer_load_dword v{ds}, v{ad}, {TA}, 0 offen")
        if mode == 0:
            I(f"s_branch {lab}")
            a.label(lab + "w2")
            I(f"s_sub_u32 s{sT0}, s{sT0}, 40")
        if mode != 1:
            I(f"s_cmp_lt_u32 s{sX}, 6")
            I(f"s_cselect_b32 s{sT2}, 35, 30")
            I(f"s_mul_i32 s{sT1}, s{sT1}, {32*1280}")
            I(f"s_cmp_lt_u32 s{sT0}, s{sT2}")
            I(f"s_cselect_b32 s{sT1}, s{sT1}, {BIG:#x}")
            I(f"s_lshl_b32 s{sT0}, s{sT0}, 13")
            I(f"s_add_u32 s{sT0}, s{sT0}, s{sT1}")
            srd(TA, 48, 1728 * 1280)
            I(f"v_lshlrev_b32 v{ad}, 7, v{vLANE}")
            I(f"v_add_u32 v{ad}, s{sT0}, v{ad}")
            I(f"buffer_load_dword v{ds}, v{ad}, {TA}, 0 offen")
        a.label(lab)

    def w2_early():
        m0_, m1_, m2_, m3_ = T, T + 1, T + 2, T + 3
        I(f"s_mul_i32 s{sT0}, s{sWAVE}, 5")
        I(f"s_mul_i32 s{sT3}, s{sTB}, {32*1280}")
        I(f"v_lshrrev_b32 v{m0_}, 3, v{vLANE}")
        I(f"v_mul_u32_u24 v{m2_}, 1280, v{m0_}")
        I(f"v_and_b32 v{m1_}, 7, v{vLANE}")
        I(f"v_lshlrev_b32 v{m1_}, 4, v{m1_}")
        I(f"v_bfe_u32 v{m0_}, v{vLANE}, 4, 1")
        I(f"v_lshlrev_b32 v{m0_}, 5, v{m0_}")
        I(f"v_xor_b32 v{m1_}, v{m1_}, v{m0_}")
        I(f"s_and_b32 s{sT1}, s{sT0}, 1")
        I(f"s_lshl_b32 s{sT1}, s{sT1}, 6")
        I(f"v_xor_b32 v{m1_}, s{sT1}, v{m1_}")
        I(f"v_xor_b32 v{m0_}, 64, v{m1_}")
        I(f"v_add_u32 v{m3_}, v{m2_}, v{m0_}")
        I(f"v_add_u32 v{m2_}, v{m2_}, v{m1_}")
        srd(TA, 48, 1728 * 1280)
        for e in range(5):
            I(f"s_lshl_b32 s{sT1}, s{sT0}, 10")
            I(f"s_add_u32 m0, s{sT1}, {L_W2}")
            I(f"s_and_b32 s{sT1}, s{sT0}, 3")
            I(f"s_mul_i32 s{sT1}, s{sT1}, {8*1280}")
            I(f"s_lshr_b32 s{sT2}, s{sT0}, 2")
            I(f"s_lshl_b32 s{sT2}, s{sT2}, 7")
            I(f"s_add_u32 s{sT1}, s{sT1}, s{sT2}")
            I(f"s_add_u32 s{sT1}, s{sT1}, s{sT3}")
            I(f"buffer_load_dwordx4 v{(m2_, m3_)[e & 1]}, {TA}, s{sT1} offen {rflags} lds")
            if e < 4: I(f"s_add_u32 s{sT0}, s{sT0}, 1")

    def role_dma(lb=None, ne=8):
        if lb is None:
            I(f"s_lshl_b32 s{sT1}, s{sWAVE}, 13")
            I(f"s_add_u32 s{sT1}, s{sT1}, {L_ROLE}")
        else:
            I(f"s_mov_b32 s{sT1}, s{lb}")
        I(f"s_mov_b32 s{sT0}, s{sRB}")
        for e in range(ne):
            if e % 4 == 0:
                I(f"s_mov_b32 m0, s{sT1}")
                if e == 0:
                    I(f"s_add_u32 s{sT1}, s{sT1}, 4096")
            I(f"s_cmp_gt_u32 s{sRN}, {e}")
            I(f"s_cselect_b32 s{sT2}, s{sT0}, {BIG:#x}")
            I(f"buffer_load_dwordx4 v{vRDMA}, {TB}, s{sT2} offen offset:{(e%4)*1024} {rflags} lds")
            if e < 7:
                I(f"s_add_u32 s{sT0}, s{sT0}, s{sRSTEP}")
                if e % 4 == 3:
                    I(f"s_add_u32 s{sT0}, s{sT0}, 3072")
                else:
                    I(f"s_sub_u32 s{sT0}, s{sT0}, 1024")

    def rank_off(dst, rk, tmp):
        I(f"s_and_b32 s{tmp}, s{rk}, {(1 << ZB) - 1}")
        I(f"s_mul_i32 s{tmp}, s{tmp}, {ZR}")
        I(f"s_lshr_b32 s{dst}, s{rk}, {ZB}")
        I(f"s_lshl_b32 s{dst}, s{dst}, 14")
        I(f"s_add_u32 s{dst}, s{dst}, s{tmp}")

    I(f"s_cmp_ge_u32 s{sWAVE}, 5")
    I("s_cbranch_scc1 L_init567")
    I(f"v_bfe_u32 v{t0}, v{vLANE}, 3, 1")
    I(f"v_and_b32 v{t1}, 7, v{vLANE}")
    I(f"s_lshl_b32 s{sT1}, s{sWAVE}, 2")
    rank_off(sT0, sT1, sT2)
    I(f"v_mul_u32_u24 v{vGO}, {ZR}, v{t0}")
    I(f"v_mul_u32_u24 v{t1}, {ZX}, v{t1}")
    I(f"v_add3_u32 v{vGO}, v{vGO}, v{t1}, s{sT0}")
    I(f"v_lshl_add_u32 v{vGO}, v{g}, 4, v{vGO}")
    if q2:
        I(f"s_and_b32 s{sT0}, s{sSLOT}, 3")
        I(f"s_mul_i32 s{sT0}, s{sT0}, 5")
        I(f"s_lshl_b32 s{sT1}, s{sWAVE}, 2")
        I(f"s_add_u32 s{sT0}, s{sT0}, s{sT1}")
        I(f"s_lshl_b32 s{sT0}, s{sT0}, 6")
        I(f"v_and_b32 v{t0}, 1, v{q4}")
        I(f"v_lshlrev_b32 v{t0}, 7, v{t0}")
        I(f"v_lshl_add_u32 v{t0}, v{g}, 5, v{t0}")
        I(f"v_lshrrev_b32 v{t1}, 2, v{vLANE}")
        I(f"v_or_b32 v{t1}, v{t1}, v{vLANE}")
        I(f"v_and_b32 v{t1}, 2, v{t1}")
        I(f"v_lshl_add_u32 v{t0}, v{t1}, 3, v{t0}")
        I(f"v_add_u32 v{t0}, s{sT0}, v{t0}")
        I(f"v_subrev_u32 v{t1}, 1280, v{t0}")
        I(f"v_min_u32 v{vXO}, v{t0}, v{t1}")
        I(f"s_mul_i32 s{sT0}, s{sWAVE}, {PP}")
        I(f"v_lshlrev_b32 v{t2}, 3, v{g}")
        I(f"v_add_u32 v{t2}, s{sT0}, v{t2}")
        I(f"v_lshl_add_u32 v{vPQ}, v{n}, 4, v{t2}")
        I(f"v_add_u32 v{t2}, {L_PB1 + 512}, v{t2}")
        I(f"v_lshlrev_b32 v{t3}, 3, v{vLANE}")
        I(f"v_add_u32 v{t3}, {L_DUM}, v{t3}")
        I(f"v_lshlrev_b32 v{t0}, 2, v{g}")
        I(f"v_cmp_eq_u32 vcc, v{n}, v{t0}")
        I(f"v_cndmask_b32 v{vSW}, v{t3}, v{t2}, vcc")
        I("s_branch L_initc")
    I(f"s_mul_i32 s{sT0}, s{sWAVE}, {PP}")
    I(f"s_add_u32 s{sT0}, s{sT0}, {L_PB1 + 512}")
    I(f"v_lshlrev_b32 v{t2}, 2, v{g}")
    I(f"v_add_u32 v{t2}, s{sT0}, v{t2}")
    I(f"v_lshlrev_b32 v{t3}, 2, v{vLANE}")
    I(f"v_add_u32 v{t3}, {L_DUM}, v{t3}")
    I(f"v_cmp_eq_u32 vcc, v{q4}, v{g}")
    I(f"v_cndmask_b32 v{vSW}, v{t3}, v{t2}, vcc")
    I(f"s_mul_i32 s{sT0}, s{sWAVE}, {PP}")
    I(f"v_lshlrev_b32 v{vPQ}, 4, v{g}")
    I(f"v_add_u32 v{vPQ}, s{sT0}, v{vPQ}")
    I(f"s_and_b32 s{sT0}, s{sSLOT}, 3")
    I(f"s_lshl_b32 s{sT0}, s{sT0}, 2")
    I(f"s_lshl_b32 s{sKM}, 0x00010001, s{sT0}")
    I(f"s_mov_b32 s{sKM+1}, s{sKM}")
    I("s_branch L_initc")

    a.label("L_init567")
    I(f"s_cmp_eq_u32 s{sWAVE}, 6")
    I("s_cbranch_scc1 L_initc")
    I(f"s_cmp_eq_u32 s{sWAVE}, 7")
    I("s_cbranch_scc1 L_init7")
    rank_off(sT0, sR, sT1)
    I(f"s_mul_i32 s{sT1}, s{sX}, {ZX}")
    I(f"s_add_u32 s{sT0}, s{sT0}, s{sT1}")
    I(f"s_add_u32 s{sRB}, s{sT0}, {ZOFF}")
    I(f"v_lshlrev_b32 v{vRR}, 4, v{vLANE}")
    if q2:
        I(f"s_and_b32 s{sT0}, s{sQS}, {~2047 & 0xffffffff:#x}")
        I(f"s_and_b32 s{sT1}, s{sSLOT}, 6")
        I(f"s_lshl_b32 s{sT1}, s{sT1}, 5")
        I(f"s_add_u32 s{sT0}, s{sT0}, s{sT1}")
        I(f"s_and_b32 s{sT1}, s{sSLOT}, 1")
        I(f"s_lshl_b32 s{sT1}, s{sT1}, 3")
        I(f"s_add_u32 s{sT0}, s{sT0}, s{sT1}")
        I(f"v_lshlrev_b32 v{vQP}, 9, v{g}")
        I(f"v_and_b32 v{t0}, 1, v{vLANE}")
        I(f"v_lshl_add_u32 v{vQP}, v{t0}, 8, v{vQP}")
        I(f"v_and_b32 v{t0}, 2, v{vLANE}")
        I(f"v_lshl_add_u32 v{vQP}, v{t0}, 4, v{vQP}")
        I(f"v_and_b32 v{t0}, 8, v{vLANE}")
        I(f"v_lshl_add_u32 v{vQP}, v{t0}, 1, v{vQP}")
        I(f"v_and_b32 v{t0}, 4, v{vLANE}")
        I(f"v_add3_u32 v{vQP}, v{vQP}, v{t0}, s{sT0}")
        I(f"v_lshlrev_b32 v{vQG}, 4, v{n}")
        I(f"v_lshlrev_b32 v{vCSQ}, 3, v{c4}")
    else:
        I(f"v_lshlrev_b32 v{vQP}, 2, v{vLANE}")
        I(f"v_add_u32 v{vQP}, s{sQS}, v{vQP}")
        I(f"s_and_b32 s{sT0}, s{sQS}, {~2047 & 0xffffffff:#x}")
        I(f"v_lshlrev_b32 v{vQG}, 3, v{vLANE}")
        I(f"v_add_u32 v{vQG}, s{sT0}, v{vQG}")
    I(f"v_mov_b32 v{t0}, 0")
    I(f"v_mov_b32 v{t1}, 0")
    I(f"v_mov_b32 v{t2}, {L_FLAG}")
    I(f"ds_write_b64 v{t2}, v[{t0}:{t1}] offset:8")
    if emd: I(f"ds_write_b32 v{t2}, v{t0} offset:4")
    I(f"v_and_b32 v{t2}, 31, v{vLANE}")
    I(f"v_lshlrev_b32 v{t2}, 1, v{t2}")
    I(f"s_or_b32 s{sT2}, s{sROLE}, s{sX}")
    I(f"s_lshl_b32 s{sT1}, s{sR}, 6")
    I(f"s_cmp_eq_u32 s{sT2}, 0")
    I(f"s_cselect_b32 s{sT1}, s{sT1}, {BIG:#x}")
    I(f"buffer_load_ushort v{vXF}, v{t2}, {TB}, s{sT1} offen")
    I(f"v_lshrrev_b32 v{t1}, 3, v{vLANE}")
    I(f"v_lshlrev_b32 v{t1}, 4, v{t1}")
    I(f"v_add_u32 v{vRP}, s{sRB}, v{t1}")
    I(f"v_and_b32 v{t1}, 31, v{vLANE}")
    I(f"v_lshlrev_b32 v{t1}, 1, v{t1}")
    I(f"s_or_b32 s{sT2}, s{sROLE}, s{sX}")
    I(f"s_lshl_b32 s{sT1}, s{sR}, 6")
    I(f"s_add_u32 s{sT1}, s{sT1}, {XOFF}")
    I(f"s_cmp_eq_u32 s{sT2}, 0")
    I(f"s_cselect_b32 s{sT1}, s{sT1}, {BIG:#x}")
    I(f"v_add_u32 v{vXFA}, s{sT1}, v{t1}")
    I("s_branch L_initc")

    a.label("L_init7")
    I(f"v_lshlrev_b32 v{vCR}, 3, v{vLANE}")
    I(f"v_add_u32 v{vCR}, {L_O}, v{vCR}")
    I(f"v_and_b32 v{t0}, 7, v{vLANE}")
    I(f"v_lshlrev_b32 v{vCML}, 3, v{t0}")
    I(f"v_add_u32 v{vCML}, {L_ML}, v{vCML}")
    I(f"s_lshr_b32 s{sT0}, s{sSLOT}, 3")
    I(f"s_lshl_b32 s{sT1}, s{sT0}, 11")
    I(f"s_and_b32 s{sT2}, s{sSLOT}, 7")
    I(f"s_lshl_b32 s{sT3}, s{sT2}, 4")
    I(f"s_add_u32 s{sT1}, s{sT1}, s{sT3}")
    I(f"v_lshrrev_b32 v{t0}, 5, v{vLANE}")
    I(f"v_lshlrev_b32 v{vCP}, 10, v{t0}")
    I(f"v_lshl_add_u32 v{vCP}, v{q4}, 8, v{vCP}")
    I(f"v_and_b32 v{t0}, 1, v{g}")
    I(f"v_lshl_add_u32 v{vCP}, v{t0}, 7, v{vCP}")
    I(f"v_lshl_add_u32 v{vCP}, v{c4}, 2, v{vCP}")
    I(f"v_add_u32 v{vCP}, s{sT1}, v{vCP}")
    I(f"s_lshl_b32 s{sT0}, s{sT0}, 7")
    I(f"s_lshl_b32 s{sT2}, s{sT2}, 3")
    I(f"s_add_u32 s{sT0}, s{sT0}, s{sT2}")
    I(f"s_add_u32 s{sT0}, s{sT0}, {MLOFF}")
    I(f"v_mov_b32 v{vCPM}, s{sT0}")
    I(f"s_and_b32 s{sT0}, s{sQS}, {~2047 & 0xffffffff:#x}")
    I(f"v_lshlrev_b32 v{vQG7}, 3, v{vLANE}")
    I(f"v_add_u32 v{vQG7}, s{sT0}, v{vQG7}")

    a.label("L_initc")
    I(f"s_mov_b32 s{sRN}, 0")
    I(f"s_mov_b32 s{sRB}, 0")
    I(f"s_mov_b32 s{sRSTEP}, 0")
    srd(TB, 40, 4096 * 1280)
    I(f"v_lshrrev_b32 v{t0}, 2, v{vLANE}")
    I(f"v_lshlrev_b32 v{t1}, 4, v{c4}")
    I(f"s_cmp_eq_u32 s{sROLE}, 0")
    I("s_cbranch_scc0 L_rpd")
    I(f"s_lshl_b32 s{sT0}, s{sXW}, 3")
    I(f"s_add_u32 s{sT0}, s{sT0}, s{sWAVE}")
    I(f"s_lshr_b32 s{sT0}, s{sT0}, 1")
    hperm(sT0, sT0, sT1)
    I(f"s_lshl_b32 s{sT0}, s{sT0}, 1")
    I(f"s_and_b32 s{sT1}, s{sWAVE}, 1")
    I(f"s_add_u32 s{sT0}, s{sT0}, s{sT1}")
    I(f"s_mul_i32 s{sT0}, s{sT0}, {64*1280}")
    I(f"s_lshl_b32 s{sT1}, s{sR}, 6")
    I(f"s_add_u32 s{sRB}, s{sT0}, s{sT1}")
    I(f"s_mov_b32 s{sRSTEP}, {16*1280}")
    I(f"s_mov_b32 s{sRN}, 4")
    I(f"v_mul_u32_u24 v{vRDMA}, 1280, v{t0}")
    I(f"v_add_u32 v{vRDMA}, v{vRDMA}, v{t1}")
    I(f"s_lshr_b32 s{sT0}, s{sWAVE}, 1")
    I(f"s_lshl_b32 s{sT1}, s{sXW}, 2")
    I(f"s_add_u32 s{sT0}, s{sT0}, s{sT1}")
    I(f"s_lshl_b32 s{sT1}, s{sXW}, 3")
    I(f"s_add_u32 s{sT1}, s{sT1}, s{sWAVE}")
    I(f"s_lshl_b32 s{sT1}, s{sT1}, 10")
    I(f"v_lshlrev_b32 v{t2}, 4, v{vLANE}")
    I(f"v_add_u32 v{vA0}, s{sT1}, v{t2}")
    I(f"v_xor_b32 v{t2}, v{g}, v{q4}")
    I(f"v_and_b32 v{t2}, 1, v{t2}")
    I(f"v_lshl_add_u32 v{t2}, v{t2}, 2, v{c4}")
    I(f"v_lshlrev_b32 v{t2}, 3, v{t2}")
    I(f"s_lshl_b32 s{sT0}, s{sT0}, 7")
    I(f"s_add_u32 s{sT0}, s{sT0}, {MLOFF}")
    I(f"v_add_u32 v{vA2}, s{sT0}, v{t2}")
    a.label("L_rpd")

    I(f"s_mul_i32 s{sT0}, s{sWAVE}, {PP}")
    I(f"v_lshlrev_b32 v{vPW}, 4, v{n}")
    I(f"v_lshl_add_u32 v{vPW}, v{g}, 2, v{vPW}")
    I(f"v_add_u32 v{vPW}, s{sT0}, v{vPW}")
    I(f"v_lshl_add_u32 v{vQR}, v{g}, 2, v{c4}")
    I(f"v_lshlrev_b32 v{vQR}, 4, v{vQR}")
    I(f"v_add_u32 v{vQR}, {L_QB}, v{vQR}")
    I(f"s_lshl_b32 s{sT0}, s{sWAVE}, 10")
    I(f"s_add_u32 s{sT0}, s{sT0}, {L_O}")
    I(f"v_bfe_u32 v{t0}, v{vLANE}, 3, 1")
    I(f"v_lshlrev_b32 v{vOW}, 9, v{t0}")
    I(f"v_and_b32 v{t0}, 7, v{vLANE}")
    I(f"v_lshl_add_u32 v{vOW}, v{t0}, 5, v{vOW}")
    I(f"v_and_b32 v{t1}, 1, v{g}")
    I(f"v_lshl_add_u32 v{vOW}, v{t1}, 4, v{vOW}")
    I(f"v_add_u32 v{vOW}, s{sT0}, v{vOW}")
    I(f"s_lshl_b32 s{sT0}, s{sWAVE}, 3")
    I(f"s_add_u32 s{sT0}, s{sT0}, {L_ML}")
    I(f"v_lshlrev_b32 v{vMLW}, 3, v{vLANE}")
    I(f"v_add_u32 v{vMLW}, {L_DUM}, v{vMLW}")
    I(f"v_writelane_b32 v{vMLW}, s{sT0}, 63")
    if sm:
        I(f"v_and_b32 v{t0}, 4, v{vLANE}")
        I(f"v_cmp_eq_u32 vcc, 0, v{t0}")
        I(f"v_mov_b32 v{t1}, 0xffff")
        I(f"v_mov_b32 v{t2}, 0xffff0000")
        I(f"v_cndmask_b32 v{vSEL}, 0, v{t1}, vcc")
        I(f"v_cndmask_b32 v{vSEL+2}, 0, v{t2}, vcc")
        I(f"v_xor_b32 v{vSEL+1}, v{vSEL}, v{t1}")
        I(f"v_xor_b32 v{vSEL+3}, v{vSEL+2}, v{t2}")
        I(f"v_mul_u32_u24 v{t0}, 0x5555, v{c4}")
        I(f"v_and_b32 v{t1}, 2, v{vLANE}")
        I(f"v_mul_u32_u24 v{t1}, 0x5555, v{t1}")
        I(f"v_or_b32 v{t1}, 0x4444, v{t1}")
        I(f"v_lshl_or_b32 v{vSEL+4}, v{t0}, 16, v{t1}")
    for u in range(0 if sm else 2):
        for r in range(4):
            sb = 0x0100 if u == (r >> 1) else 0x0302
            d = vSEL + u * 4 + r
            I(f"v_mov_b32 v{d}, 0x0c0c0c0c")
            I(f"v_mov_b32 v{t1}, {0x0c0c0000 | sb:#x}")
            I(f"v_mov_b32 v{t2}, {(sb << 16) | 0x0c0c:#x}")
            I(f"v_cmp_eq_u32 vcc, {2*r}, v{t0}")
            I(f"v_cndmask_b32 v{d}, v{d}, v{t1}, vcc")
            I(f"v_cmp_eq_u32 vcc, {2*r+1}, v{t0}")
            I(f"v_cndmask_b32 v{d}, v{d}, v{t2}, vcc")

    def tr_addr(dst, pitch, base_s, x0=T + 48):
        x1 = x0 + 1
        I(f"v_lshrrev_b32 v{x0}, 4, v{vLANE}")
        I(f"v_bfe_u32 v{x1}, v{vLANE}, 2, 2")
        I(f"v_lshl_add_u32 v{x0}, v{x0}, 3, v{x1}")
        I(f"v_lshlrev_b32 v{x0}, {pitch.bit_length()-1}, v{x0}")
        I(f"v_and_b32 v{x1}, 3, v{vLANE}")
        I(f"v_lshl_add_u32 v{x0}, v{x1}, 3, v{x0}")
        I(f"v_add_u32 v{dst}, s{base_s}, v{x0}")

    def ones():
        for i in range(4):
            I(f"v_mov_b32 v{ONES+i}, 0x3f803f80")

    def gemv(ntile, Bbase, bidx):
        S1, S2 = T + 16, T + 20
        A0_, A1_ = vr(XA), vr(XA + 4)
        I(f"v_mfma_f32_16x16x32_bf16 {vr(S2)}, {A0_}, {A0_}, 0")
        I(f"v_mfma_f32_16x16x32_bf16 {vr(S2)}, {A1_}, {A1_}, {vr(S2)}")
        I(f"v_mfma_f32_16x16x32_bf16 {vr(S1)}, {A0_}, {vr(ONES)}, 0")
        I(f"v_mfma_f32_16x16x32_bf16 {vr(S1)}, {A1_}, {vr(ONES)}, {vr(S1)}")
        post = [
            f"v_pk_add_f32 v[{S2}:{S2+1}], v[{S2}:{S2+1}], v[{S2+2}:{S2+3}]",
            f"v_add_f32 v{S2}, v{S2}, v{S2+1}",
            f"v_add_f32_dpp v{S2}, v{S2}, v{S2} quad_perm:[1,0,3,2] row_mask:0xf bank_mask:0xf",
            f"v_pk_add_f32 v[{S1}:{S1+1}], v[{S1}:{S1+1}], v[{S1+2}:{S1+3}]",
            f"v_add_f32_dpp v{S2}, v{S2}, v{S2} quad_perm:[2,3,0,1] row_mask:0xf bank_mask:0xf",
            f"v_add_f32 v{S1}, v{S1}, v{S1+1}",
            f"v_add_f32_dpp v{S2}, v{S2}, v{S2} row_half_mirror row_mask:0xf bank_mask:0xf",
            f"ds_write2_b32 v{vSW}, v{S1}, v{S2} offset0:0 offset1:4",
        ]
        def dpost(t):
            D = T + 8 * t
            return [f"v_pk_add_f32 v[{D}:{D+1}], v[{D}:{D+1}], v[{D+2}:{D+3}]",
                    f"v_pk_add_f32 v[{D+4}:{D+5}], v[{D+4}:{D+5}], v[{D+6}:{D+7}]",
                    f"v_add_f32 v{D}, v{D}, v{D+1}",
                    f"v_add_f32_dpp v{D}, v{D+4}, v{D+5} quad_perm:[0,1,2,3] row_mask:0xc bank_mask:0xf",
                    f"ds_write_b32 v{vPW}, v{D} offset:{L_PB1 + t*256}"]
        for t in range(ntile):
            post += dpost(t)
        k = 0
        for t in range(ntile):
            for j in range(2):
                D = T + 8 * t + 4 * j
                for h in range(2):
                    I(f"v_mfma_f32_16x16x32_bf16 {vr(D)}, {(A0_, A1_)[h]}, {vr(Bbase+4*bidx(2*h+j,t))}, {vr(D) if h else '0'}")
                    k += 1
                    if k >= 5 and k < 4 * ntile:
                        for x in post[:2]: I(x)
                        post = post[2:]
        for x in post: I(x)
        I("s_waitcnt lgkmcnt(0)")

    def gemv_q(first=False):
        S1, S2 = T + 16, T + 20
        for t in range(4):
            I(f"v_mfma_f32_16x16x32_bf16 {vr(T+4*t)}, {vr(vBQ+4*t)}, {vr(XA)}, 0")
        I(f"v_mfma_f32_16x16x32_bf16 {vr(S1)}, {vr(XA)}, {vr(ONES)}, 0")
        I(f"v_mfma_f32_16x16x32_bf16 {vr(S2)}, {vr(XA)}, {vr(XA)}, 0")
        if first:
            for t in range(4):
                I(f"v_mfma_f32_16x16x32_bf16 {vr(vRB+4*t)}, {vr(vBQ+4*t)}, {vr(ONES)}, 0")
        I(f"s_mov_b64 exec, s[{sKM}:{sKM+1}]")
        for t in range(4):
            I(f"ds_write_b128 v{vPQ}, {vr(T+4*t)} offset:{L_PB1 + t*64}")
        if first:
            for t in range(4):
                I(f"ds_write_b128 v{vPQ}, {vr(vRB+4*t)} offset:{L_PB1 + 256 + t*64}")
        I("s_mov_b64 exec, -1")
        I(f"ds_write2_b32 v{vSW}, v{S1}, v{S2} offset0:0 offset1:4")
        I("s_waitcnt lgkmcnt(0)")

    def gather(sreg):
        poll([f"buffer_load_dwordx4 {vr(XA)}, v{vGO}, {WS}, s{sreg} offen {zfl}",
              f"buffer_load_dwordx4 {vr(XA+4)}, v{vGO}, {WS}, s{sreg} offen offset:{2*ZR} {zfl}"],
             [XA, XA + 4], groups=[[XA], [XA + 4]], hop=2)

    def reduce_read(nw, base):
        for v in range(nw):
            I(f"ds_read_b128 {vr(T+4*v)}, v{vRR} offset:{base + v*PP}")

    def reduce_sum(nw, dst):
        np_ = 2 * nw
        idx = list(range(np_))
        while len(idx) > 1:
            nx = []
            for i in range(0, len(idx) - 1, 2):
                d, s = idx[i], idx[i + 1]
                I(f"v_pk_add_f32 v[{T+2*d}:{T+2*d+1}], v[{T+2*d}:{T+2*d+1}], v[{T+2*s}:{T+2*s+1}]")
                nx.append(d)
            if len(idx) % 2:
                nx.append(idx[-1])
            idx = nx
        I(f"v_add_f32 v{dst}, v{T}, v{T+1}")

    rTOT, rMEAN, rVAR, rMB, rSD, rR, rU, rT, rINV, rC1, rC2, rCS = [T + 32 + i for i in range(12)]

    def cs_read(area, dst):
        l = a.newlab("Lcs")
        I(f"s_cmp_eq_u32 s{sIT}, 0")
        I(f"s_cbranch_scc0 {l}")
        I(f"v_lshrrev_b32 v{rT}, 2, v{vRR}")
        for v in range(5):
            I(f"ds_read_b32 v{T+24+v}, v{rT} offset:{area + v*128}")
        I("s_waitcnt lgkmcnt(0)")
        I(f"v_add_f32 v{dst}, v{T+24}, v{T+25}")
        I(f"v_add_f32 v{rT}, v{T+26}, v{T+27}")
        I(f"v_add_f32 v{dst}, v{dst}, v{T+28}")
        I(f"v_add_f32 v{dst}, v{dst}, v{rT}")
        a.label(l)

    def stats(l0=32):
        if l0 is not None:
            I(f"v_readlane_b32 s{sT0}, v{rTOT}, {l0}")
            I(f"v_readlane_b32 s{sT1}, v{rTOT}, {l0+1}")
            I(f"v_mul_f32 v{rMEAN}, s{sT0}, v{rINV}")
            I(f"v_mul_f32 v{rVAR}, s{sT1}, v{rINV}")
        I(f"v_fma_f32 v{rVAR}, -v{rMEAN}, v{rMEAN}, v{rVAR}")
        I(f"v_max_f32 v{rVAR}, 0, v{rVAR}")
        I(f"v_cvt_pk_bf16_f32 v{rT}, v{rMEAN}, v{rVAR}")
        I(f"v_and_b32 v{rU}, 0xffff0000, v{rT}")
        I(f"v_lshlrev_b32 v{rMB}, 16, v{rT}")
        I(f"v_add_f32 v{rU}, {f2u(1e-5):#x}, v{rU}")
        I(f"v_cvt_pk_bf16_f32 v{rU}, v{rU}, v{rU}")
        I(f"v_and_b32 v{rU}, 0xffff0000, v{rU}")
        I(f"v_sqrt_f32 v{rU}, v{rU}")
        I(f"v_cvt_pk_bf16_f32 v{rU}, v{rU}, v{rU}")
        I(f"v_and_b32 v{rSD}, 0xffff0000, v{rU}")
        I(f"v_rcp_f32 v{rR}, v{rSD}")

    def pack_pairs(src, dst):
        I(f"v_mov_b32_dpp v{rT}, v{src} quad_perm:[1,0,3,2] row_mask:0xf bank_mask:0xf")
        I(f"v_cvt_pk_bf16_f32 v{dst}, v{src}, v{rT}")
        I(f"v_min_u32 v{dst}, 0xfffffffe, v{dst}")

    def q_reduce(first=False):
        qa, qs, QS = T + 44, T + 45, T + 20
        I(f"v_lshlrev_b32 v{qa}, 2, v{vLANE}")
        I(f"v_and_b32 v{qs}, 1, v{vLANE}")
        if sm:
            I(f"v_and_b32 v{T+46}, 0x34, v{vLANE}")
            I(f"v_lshl_add_u32 v{T+46}, v{qs}, 3, v{T+46}")
            I(f"v_bfe_u32 v{T+47}, v{vLANE}, 3, 1")
            I(f"v_lshl_add_u32 v{T+46}, v{T+47}, 1, v{T+46}")
            I(f"v_bfe_u32 v{T+47}, v{vLANE}, 1, 1")
            I(f"v_add_lshl_u32 v{T+46}, v{T+46}, v{T+47}, 2")
        I(f"v_lshlrev_b32 v{qs}, 4, v{qs}")
        return qa, qs, QS

    def q_reduce2(qa, qs, QS, first=False):
        for v in range(5):
            I(f"ds_read_b128 {vr(T+4*v)}, v{qs} offset:{L_PB1 + 512 + v*PP}")
        for v in range(5):
            I(f"ds_read_b32 v{QS+v}, v{qa} offset:{L_PB1 + v*PP}")
        if first:
            for v in range(5):
                I(f"ds_read_b32 v{QS+5+v}, v{qa} offset:{L_PB1 + 256 + v*PP}")
        I(f"s_waitcnt lgkmcnt({10 if first else 5})")
        reduce_sum(5, rTOT)
        stats(0)
        I("s_waitcnt lgkmcnt(0)")
        I(f"v_add_f32 v{QS}, v{QS}, v{QS+1}")
        I(f"v_add_f32 v{QS+2}, v{QS+2}, v{QS+3}")
        I(f"v_add_f32 v{QS}, v{QS}, v{QS+4}")
        I(f"v_add_f32 v{QS}, v{QS}, v{QS+2}")
        if first:
            I(f"v_add_f32 v{vCSQ}, v{QS+5}, v{QS+6}")
            I(f"v_add_f32 v{QS+7}, v{QS+7}, v{QS+8}")
            I(f"v_add_f32 v{vCSQ}, v{vCSQ}, v{QS+9}")
            I(f"v_add_f32 v{vCSQ}, v{vCSQ}, v{QS+7}")
        I(f"v_fma_f32 v{rU}, -v{rMB}, v{vCSQ}, v{QS}")
        I(f"v_mul_f32 v{rU}, v{rU}, v{rR}")
        I(f"v_min_u32 v{rU}, 0xfffffffe, v{rU}")

    def q_gather(va, qa):
        G_ = 60 if y128 else T
        poll([f"buffer_load_dwordx2 v[{G_+2*k}:{G_+2*k+1}], v{va}, {WS}, s{sREG} offen offset:{k*512} sc1" for k in range(4)],
             list(range(G_, G_ + 8)), groups=[[G_ + 2 * k, G_ + 2 * k + 1] for k in range(4)], hop=16 if y128 else 0)
        Z_ = T + 40 if zq else T
        I(f"v_pk_add_f32 v[{Z_}:{Z_+1}], v[{G_}:{G_+1}], v[{G_+2}:{G_+3}]")
        I(f"v_pk_add_f32 v[{Z_+2}:{Z_+3}], v[{G_+4}:{G_+5}], v[{G_+6}:{G_+7}]")
        I(f"v_pk_add_f32 v[{Z_}:{Z_+1}], v[{Z_}:{Z_+1}], v[{Z_+2}:{Z_+3}]")
        I(f"v_cvt_pk_bf16_f32 v{Z_}, v{Z_}, v{Z_+1}")
        I(f"ds_write_b32 v{T+46 if sm else qa}, v{Z_} offset:{L_QB}")

    def lds_wait(off, val, ge=False):
        lab = a.newlab("Lw"); done = a.newlab("Lwd")
        I(f"v_mov_b32 v{T+47}, {L_FLAG}")
        a.label(lab)
        I(f"ds_read_b32 v{T+46}, v{T+47} offset:{off}")
        I(f"s_add_u32 s{sSPIN}, s{sSPIN}, 1")
        I("s_waitcnt lgkmcnt(0)")
        I(f"v_readfirstlane_b32 s{sT3}, v{T+46}")
        I(f"s_cmp_{'ge' if ge else 'eq'}_u32 s{sT3}, {val}")
        I(f"s_cbranch_scc1 {done}")
        I(f"s_cmp_lt_u32 s{sSPIN}, {spin_limit}")
        I(f"s_cbranch_scc1 {lab}")
        a.label(done)

    def sp(p):
        if prio: I(f"s_setprio {p}")

    I(f"v_mov_b32 v{rINV}, {f2u(1.0/640):#x}")
    I("s_waitcnt lgkmcnt(0)")
    I("s_barrier")
    TS(1)
    I(f"s_cmp_ge_u32 s{sWAVE}, 4")
    I("s_cbranch_scc1 L_s4567")
    srd(TA, 38, 640 * 8192)
    w_issue(nw0, RSL)
    TS(37)
    tr_addr(ta0, 64, sPER, T + 25)
    I(f"s_sub_u32 s{sPER}, s{sRING}, s{sPER}")
    I(f"v_bfe_u32 v{T+25}, v{vLANE}, 4, 1")
    I(f"v_lshl_add_u32 v{ta0}, v{T+25}, 5, v{ta0}")
    I(f"v_xor_b32 v{ta1}, 32, v{ta0}")
    I(f"s_waitcnt vmcnt({nis[0] - 5})")
    setexec(0x22222222, 0x22222222)
    for i in range(20):
        I(f"v_mov_b32 v{XQ+i}, 0x3f803f80")
    setexec(0xFFFFFFFF, 0xFFFFFFFF)
    for j in range(5):
        I(f"v_mfma_f32_16x16x32_bf16 {vr(BUF)}, {vr(XQ+4*j)}, {vr(XQ+4*j)}, {vr(BUF) if j else '0'}")
    for i in range(4):
        I(f"v_readlane_b32 s{sF+i}, v{BUF}, {20*i+1}")
        I(f"v_readlane_b32 s{sF+4+i}, v{BUF}, {20*i}")
    I(f"v_mov_b32 v{rMEAN}, s{sF}")
    I(f"v_mov_b32 v{rVAR}, s{sF+4}")
    for i in range(1, 4):
        I(f"v_add_f32 v{rMEAN}, s{sF+i}, v{rMEAN}")
        I(f"v_add_f32 v{rVAR}, s{sF+4+i}, v{rVAR}")
    I(f"v_mul_f32 v{rMEAN}, v{rMEAN}, v{rINV}")
    I(f"v_mul_f32 v{rVAR}, v{rVAR}, v{rINV}")
    stats(None)
    I(f"v_readfirstlane_b32 s{sMB}, v{rMB}")
    I(f"v_readfirstlane_b32 s{sRS_}, v{rR}")
    TS(2)
    def q_mma(u):
        for t in range(2):
            acc = ACC + 16 * t + 4 * (u & 3)
            I(f"v_mfma_f32_16x16x32_bf16 {vr(acc)}, {vr(BUF + 8*(u%4) + 4*t)}, {vr(XQ+4*(u>>2))}, {vr(acc) if u >= 4 else '0'}")
    for u in range(20):
        I(f"s_waitcnt vmcnt({nis[0] - wpos[2*u+1] - 1})")
        if u == 0: TS(38)
        o = slot(2 * u)[1]
        if 2 * u == (RSL if q2 else NPER):
            I(f"v_add_u32 v{ta0}, s{sPER}, v{ta0}")
            I(f"v_add_u32 v{ta1}, s{sPER}, v{ta1}")
        for t in range(2):
            b = BUF + 8 * (u % 4) + 4 * t
            I(f"ds_read_b64_tr_b16 v[{b}:{b+1}], v{(ta0, ta1)[t]} offset:{o}")
            I(f"ds_read_b64_tr_b16 v[{b+2}:{b+3}], v{(ta0, ta1)[t]} offset:{o+256}")
        if u:
            I("s_waitcnt lgkmcnt(4)")
            q_mma(u - 1)
            p = 2 * (u - 1) + NREST
            if RSL <= p < 40:
                w_issue(p, p + 2)
                if p + 2 == 40:
                    k_issue(nk[0], qk)
                    nis[0] += qk - nk[0]
                    TS(39)
    I(f"v_mov_b32 v{BUF+0}, {L_FLAG}")
    I(f"v_mov_b32 v{BUF+1}, 1")
    I(f"v_lshrrev_b32 v{BUF+2}, 4, v{vLANE}")
    if sm:
        I(f"v_and_b32 v{BUF+3}, 2, v{BUF+2}")
        I(f"v_add_lshl_u32 v{BUF+2}, v{BUF+2}, v{BUF+3}, 2")
    else:
        I(f"v_lshlrev_b32 v{BUF+2}, 3, v{BUF+2}")
    I(f"s_lshl_b32 s{sT0}, s{sWAVE}, 6")
    if sm: I(f"s_add_u32 s{sT0}, s{sT0}, {L_QB}")
    I(f"v_add_u32 v{BUF+2}, s{sT0}, v{BUF+2}")
    I(f"v_mov_b32 v{BUF+3}, s{sMB}")
    I(f"v_xor_b32 v{BUF+3}, 0x80000000, v{BUF+3}")
    I("s_waitcnt lgkmcnt(0)")
    q_mma(19)
    for aa in range(1, 4):
        for t in range(2):
            for i in range(4):
                d = ACC + 16 * t + i
                I(f"v_add_f32_dpp v{d}, v{d+4*aa}, v{d} row_shl:{4*aa} row_mask:0xf bank_mask:0xf")
    for t in range(2):
        for i in range(4):
            d = ACC + 16 * t + i
            I(f"v_fmac_f32_dpp v{d}, v{d}, v{BUF+3} quad_perm:[1,1,1,1] row_mask:0xf bank_mask:0xf")
    for t in range(2):
        for i in range(4):
            d = ACC + 16 * t + i
            I(f"v_mul_f32 v{d}, s{sRS_}, v{d}")
    for t in range(2):
        d = ACC + 16 * t
        I(f"v_cvt_pk_bf16_f32 v{d}, v{d}, v{d+1}")
        I(f"v_cvt_pk_bf16_f32 v{d+1}, v{d+2}, v{d+3}")
    setexec(0x00010001, 0x00010001)
    for t in range(2):
        d = ACC + 16 * t
        if sm: I(f"ds_write2_b32 v{BUF+2}, v{d}, v{d+1} offset0:{2*t} offset1:{2*t+8}")
        else: I(f"ds_write_b64 v{BUF+2}, v[{d}:{d+1}] offset:{L_QB + 32*t}")
    setexec(1, 0)
    I("s_waitcnt lgkmcnt(0)")
    I(f"ds_add_u32 v{BUF+0}, v{BUF+1} offset:12")
    setexec(0xFFFFFFFF, 0xFFFFFFFF)
    TS(5)
    sp(sp1)
    k_issue(qk, 16)
    I("s_branch L_vall")

    a.label("L_s4567")
    I(f"s_cmp_eq_u32 s{sWAVE}, 6")
    I("s_cbranch_scc0 L_krest")
    sp(3)
    I(f"s_mov_b32 s{sVOTE}, 0")
    I(f"s_sub_u32 s{sT0}, s{sR}, {calr}")
    I(f"s_cmp_lt_u32 s{sT0}, {ncal}")
    I("s_cbranch_scc0 L_ncal")
    MK = 0x13579bdf
    I(f"s_lshl_b32 s{sT0}, s{sT0}, 3")
    I(f"s_add_u32 s{sT0}, s{sT0}, s{sX}")
    I(f"s_lshl_b32 s{sT0}, s{sT0}, 7")
    I(f"s_add_u32 s88, s{sT0}, {CALOFF + 0x10000}")
    I(f"s_load_dword s86, s[56:57], s88 glc")
    I(f"s_add_u32 s{sT0}, s{sT0}, {CALOFF}")
    I(f"s_lshl_b32 s{sVOTE}, s{sR}, 13")
    I(f"s_and_b32 s{sVOTE}, s{sVOTE}, {CP}")
    I(f"s_add_u32 s{sT0}, s{sT0}, s{sVOTE}")
    I(f"s_xor_b32 s{sT3}, s{sT0}, {CP}")
    I(f"s_lshr_b32 s{sVOTE}, s{sVOTE}, 13")
    I(f"s_lshr_b32 s88, s{sXCC}, 2")
    I(f"s_xor_b32 s{sVOTE}, s{sVOTE}, s88")
    I("s_waitcnt lgkmcnt(0)")
    for k, (ad, cnt) in enumerate(((sT0, 88), (sT3, 89))):
        I(f"s_mov_b32 s86, {MK:#x}")
        I(f"s_mov_b32 s{cnt}, 0")
        I(f"s_load_dword s86, s[56:57], s{ad} glc")
        a.label(f"L_cal{k}")
        I(f"s_add_u32 s{cnt}, s{cnt}, 1")
        I(f"s_cmp_eq_u32 s86, {MK:#x}")
        I(f"s_cselect_b32 s87, s{cnt}, 1000")
        I(f"s_cmp_lt_u32 s87, 200")
        I(f"s_cbranch_scc1 L_cal{k}")
        I("s_waitcnt lgkmcnt(0)")
    I(f"s_cmp_gt_u32 s88, s89")
    I(f"s_cselect_b32 s{sT0}, 1, 0")
    I(f"s_xor_b32 s{sVOTE}, s{sVOTE}, s{sT0}")
    I(f"s_and_b32 s{sVOTE}, s{sVOTE}, 1")
    I(f"s_lshl_b32 s{sVOTE}, s{sVOTE}, 24")
    a.label("L_ncal")
    I(f"s_mul_i32 s{sT0}, s{sXCC}, 6")
    I(f"s_lshl_b64 s[{sF}:{sF+1}], 1, s{sT0}")
    I(f"s_cmp_lt_u32 s{sXCC}, 8")
    I(f"s_cselect_b32 s{sF}, s{sF}, 0")
    I(f"s_cselect_b32 s{sF+1}, s{sF+1}, 0")
    I(f"s_or_b32 s{sF+1}, s{sF+1}, 0x10000")
    I(f"s_or_b32 s{sF+1}, s{sF+1}, s{sVOTE}")
    srd(TA, 54, 256)
    I(f"v_mov_b32 v{vAT}, s{sF}")
    I(f"v_mov_b32 v{vAT+1}, s{sF+1}")
    I(f"s_lshl_b32 s{sT0}, s{sX}, 4")
    I(f"v_mov_b32 v{vAT+2}, s{sT0}")
    TS(33)
    I("s_waitcnt vmcnt(0)")
    setexec(1, 0)
    I(f"buffer_atomic_add_x2 v[{vAT}:{vAT+1}], v{vAT+2}, {TA}, 0 offen offset:128 sc1")
    setexec(0xFFFFFFFF, 0xFFFFFFFF)
    TS(32)
    sp(0)
    k_issue(0, n0)
    a.label("L_krest")
    k_issue(n0, 16)
    a.label("L_vall")
    v_issue()
    if the:
        I("s_mov_b32 s97, 0")
        I(f"s_cmp_eq_u32 s{sROLE}, 0")
        I("s_cbranch_scc1 L_the")
        I(f"v_lshrrev_b32 v{T+49}, 3, v{vLANE}")
        I(f"v_lshlrev_b32 v{T+49}, 7, v{T+49}")
        I(f"v_and_b32 v{T+50}, 7, v{vLANE}")
        I(f"v_lshl_add_u32 v{T+49}, v{T+50}, 3, v{T+49}")
        I(f"v_mov_b32 v{T+50}, -1")
        I(f"s_lshl_b32 s{sT1}, s{sXW}, 9")
        I(f"s_add_u32 s{sT1}, s{sT1}, {MLOFF}")
        setexec(0xFFFFFFFF, 0)
        I(f"buffer_load_dword v{T+50}, v{T+49}, {WS}, s{sT1} offen sc1")
        setexec(0xFFFFFFFF, 0xFFFFFFFF)
        a.label("L_the")
    if pst == 1: pf_static("L_ps", True)
    if pst >= 4 and (pst != 6 or pi): pf_static("L_ps", True, 1)
    TS(31)
    OA2, PS2, MI2 = (T + 36, T + 48, 28) if q2 == 3 else (T + 24, T + 32, 28)
    def att_pre(hi=44):
        for i in (range(4, hi) if q2 == 3 else range(32)):
            I(f"v_mov_b32 v{T+i}, 0")
        I(f"v_mov_b32 v{MI2+2}, {SCALE:#x}")
        I(f"v_mov_b32 v{MI2+3}, {SCALE:#x}")
        I(f"v_mov_b32 v{MI2+1}, s{sL2E}")
    def q_masked(fmt):
        setexec(0x000F000F, 0x000F000F)
        for t in range(4):
            I(fmt(T + 4 * t))
            I("s_lshl_b64 exec, exec, 4" if t < 3 else "s_mov_b64 exec, -1")
    if q2 >= 2: att_pre()
    for i in (range(0) if q2 >= 2 else range(4, 36) if q2 else range(24 if sm else 16)):
        I(f"v_mov_b32 v{T+i}, 0")
    if gate:
        I(f"v_mov_b32 v{T+44}, {L_FLAG}")
        I(f"v_mov_b32 v{T+45}, 1")
        setexec(1, 0)
        I(f"ds_add_u32 v{T+44}, v{T+45} offset:8")
        setexec(0xFFFFFFFF, 0xFFFFFFFF)
    lds_wait(12, 4, ge=True)
    TS(8)
    if q2 in (1, 3): I(f"ds_read_b128 {vr(T)}, v{vQR}")
    if q2 == 2:
        q_masked(lambda r_: f"ds_read_b128 {vr(r_)}, v{vQR}")
        I(f"s_mov_b64 s[{sKM}:{sKM+1}], 0")
    I("s_branch L_att")

    a.label("L_loop")
    I(f"s_cmp_eq_u32 s{sWAVE}, 6")
    I("s_cbranch_scc0 L_nsub")
    I(f"s_cmp_eq_u32 s{sROLE}, 0")
    if g3:
        I("s_cbranch_scc1 L_sub")
        I(f"s_cmp_lt_u32 s{sTB}, 54")
        I("s_cbranch_scc1 L_G3")
        I(f"s_and_b32 s{sT0}, s{sR}, 7")
        I(f"s_lshl_b32 s{sT0}, s{sT0}, 14")
        I(f"s_add_u32 s{sT0}, s{sT0}, s{sNEAR}")
        I(f"s_add_u32 s{sT0}, s{sT0}, {YOFF}")
        I(f"v_lshlrev_b32 v{T}, 7, v{vLANE}")
        light(f"buffer_load_dword v{T+1}, v{T}, {WS}, s{sT0} offen sc1", T + 1, (3, 0))
        I("s_branch L_G3")
        a.label("L_sub")
    else:
        I("s_cbranch_scc0 L_B1")
    SL, YD, YA, ya0, ya1, yo = T + 20, T, T + 24, T + 28, T + 29, T + 30
    srd(TA, 50, 1280)
    I(f"v_lshlrev_b32 v{ya0}, 4, v{vLANE}")
    for i in range(4):
        I(f"v_mov_b32 v{YD+i}, 0")
    I(f"s_lshl_b32 s{sT2}, s{sR}, 6")
    if m2:
        yz2 = T + 32
        I(f"v_and_b32 v{yz2}, 3, v{vLANE}")
        I(f"v_lshlrev_b32 v{ya1}, 3, v{yz2}")
        I(f"v_sub_u32 v{yz2}, v{ya0}, v{ya1}")
        setexec(0, 0xF)
        I(f"buffer_load_dwordx2 v[{YD}:{YD+1}], v{ya1}, {TA}, s{sT2} offen")
        I(f"buffer_load_dwordx2 v[{YD+2}:{YD+3}], v{ya1}, {TA}, s{sT2} offen offset:32")
    else:
        I(f"v_subrev_u32 v{ya1}, 512, v{ya0}")
        setexec(0, 0xF)
        I(f"buffer_load_dwordx4 {vr(YD)}, v{ya1}, {TA}, s{sT2} offen")
    setexec(0xFFFFFFFF, 0xFFFFFFFF)
    I(f"v_and_b32 v{yo}, 15, v{vLANE}")
    I(f"v_mov_b32 v{YA}, 0x3f80")
    I(f"v_mov_b32 v{YA+1}, 0x3f800000")
    for q_ in range(4):
        I(f"v_cmp_eq_u32 vcc, {2*q_}, v{yo}")
        I(f"v_cndmask_b32 v{SL+q_}, 0, v{YA}, vcc")
        I(f"v_cmp_eq_u32 vcc, {2*q_+1}, v{yo}")
        I(f"v_cndmask_b32 v{SL+q_}, v{SL+q_}, v{YA+1}, vcc")
    yw = T + 31
    I(f"v_and_b32 v{yw}, 0x3c0, v{ya0}")
    I(f"v_add_u32 v{yw}, v{yw}, v{ya0}")
    yz = yw if zx == 128 else ya0
    yy = yw if y128 else ya0
    I(f"v_mov_b32 v{ya1}, {BIG:#x}")
    I(f"v_cmp_gt_u32 vcc, 24, v{vLANE}")
    I(f"v_cndmask_b32 v{ya1}, v{ya1}, v{yy}, vcc")
    I(f"v_lshlrev_b32 v{yo}, {3 if m2 else 4}, v{yo}")
    I(f"v_lshrrev_b32 v{YA}, 4, v{vLANE}")
    I(f"v_lshl_add_u32 v{yo}, v{YA}, {5 if m2 else 3}, v{yo}")
    I(f"v_add_u32 v{yo}, s{sT2}, v{yo}")
    rank_off(sT0, sR, sT1)
    I(f"s_add_u32 s{sT3}, s{sREG}, s{sNEAR}")
    I(f"s_add_u32 s{sT0}, s{sT0}, s{sT3}")
    I(f"s_add_u32 s{sT0}, s{sT0}, {ZOFF - RS & 0xffffffff:#x}")
    if sl == 1:
        I(f"s_xor_b32 s{sT1}, s{sX}, 4")
        I(f"s_lshl_b32 s{sT1}, s{sT1}, 2")
        I(f"s_lshl_b32 exec_lo, 1, s{sT1}")
        I(f"s_mov_b32 exec_hi, 0")
        light(f"buffer_load_dword v{T+50}, v{yz2}, {WS}, s{sT0} offen sc1", T + 50)
    if sl >= 2:
        I(f"s_add_u32 s{sT1}, s{sT0}, {YOFF - ZOFF:#x}")
        setexec(1, 0)
        for _ in range(sl - 1):
            I(f"buffer_load_dword v{T+50}, v{yz2}, {WS}, s{sT1} offen sc1")
            I("s_waitcnt vmcnt(0)")
    setexec(0xFFFFFFFF, 0)
    if m2:
        poll([f"buffer_load_dwordx2 v[{YD}:{YD+1}], v{yz2}, {WS}, s{sT0} offen sc1",
              f"buffer_load_dwordx2 v[{YD+2}:{YD+3}], v{yz2}, {WS}, s{sT0} offen offset:32 sc1"], [YD, YD + 2], ex=(0xFFFFFFFF, 0))
    else:
        poll([f"buffer_load_dwordx4 {vr(YD)}, v{yz}, {WS}, s{sT0} offen sc1"], [YD], ex=(0xFFFFFFFF, 0))
    setexec(0xFFFFFFFF, 0xFFFFFFFF)
    I(f"v_mfma_f32_16x16x32_bf16 {vr(YA)}, {vr(SL)}, {vr(YD)}, 0")
    if m2:
        yi, y1_ = T + 33, T + 34
        I(f"v_and_b32 v{yi}, 10, v{vLANE}")
        I(f"v_mov_b32 v{y1_}, 0x3f80")
        I(f"v_cmp_eq_u32 vcc, 0, v{yi}")
        I(f"v_cndmask_b32 v{SL}, 0, v{y1_}, vcc")
        I(f"v_cndmask_b32 v{SL+2}, 0, v{y1_}, vcc")
        I(f"v_cmp_eq_u32 vcc, 2, v{yi}")
        I(f"v_cndmask_b32 v{SL+1}, 0, v{y1_}, vcc")
        I(f"v_cndmask_b32 v{SL+3}, 0, v{y1_}, vcc")
        I(f"v_and_b32 v{yi}, 1, v{vLANE}")
        I(f"v_bfe_u32 v{y1_}, v{vLANE}, 2, 1")
        I(f"v_lshl_add_u32 v{yi}, v{yi}, 1, v{y1_}")
        I(f"v_mul_u32_u24 v{yi}, 0x5555, v{yi}")
    I(f"s_and_b32 s{sT0}, s{sR}, 1")
    I(f"s_lshl_b32 s{sT0}, s{sT0}, {6 if y128 else 12}")
    I(f"s_lshr_b32 s{sT1}, s{sR}, 1")
    I(f"s_lshl_b32 s{sT1}, s{sT1}, 14")
    I(f"s_add_u32 s{sT0}, s{sT0}, s{sT1}")
    I(f"s_add_u32 s{sT0}, s{sT0}, s{sT3}")
    I(f"s_add_u32 s{sT0}, s{sT0}, {YOFF - RS & 0xffffffff:#x}")
    I(f"s_add_u32 s{sT1}, s{sT0}, {4096 if y128 else 2048}")
    I(f"s_lshl_b32 s{sT2}, s{sX}, 11")
    I(f"s_add_u32 s{sT2}, s{sT2}, {XOFF}")
    if yh:
        I(f"v_lshlrev_b32 v{T+49}, 7, v{vLANE}")
        I(f"s_andn2_b32 s86, s{sT0}, 64")
        I(f"s_add_u32 s86, s86, {56*128}")
    I("s_nop 7")
    TS(26)
    if p5 & 16: I("s_setprio 3")
    if yh:
        light_all(f"buffer_load_dword v{T+50}, v{T+49}, {WS}, s86 offen sc1", T + 50, (yhm, 0))
    elif yl:
        light(f"buffer_load_dword v{YD}, v{yy}, {WS}, s{sT0} offen {yfl}", YD, (ylm & 0xffffffff, ylm >> 32) if ylm else ((1 << yl) - 1, 0))
    if g3:
        I(f"s_cmp_eq_u32 s{sIT}, 2")
        I("s_cbranch_scc1 L_G3s")
        I("s_barrier")
        a.label("L_G3s")
    poll([f"buffer_load_dwordx4 {vr(YD+4*e)}, v{ya1 if e == 3 else yy}, {WS}, s{(sT0, sT1)[e >> 1]} offen offset:{(e & 1)*(2048 if y128 else 1024)} {yfl}" for e in range(4)],
         [YD + k for k in range(16)] if m2 else [YD + 2 * k for k in range(8)],
         groups=[list(range(YD + 4 * e, YD + 4 * e + 4)) if m2 else [YD + 4 * e, YD + 4 * e + 2] for e in range(4)], hop=4)
    TS(27)
    for e in range(2 if m2 else 4):
        if m2: I(f"v_smfmac_f32_16x16x64_bf16 {vr(YA)}, {vr(SL)}, {vr(YD+8*e, 8)}, v{yi}")
        else: I(f"v_mfma_f32_16x16x32_bf16 {vr(YA)}, {vr(SL)}, {vr(YD+4*e)}, {vr(YA)}")
    for m_ in (4, 8):
        for i in range(4):
            I(f"v_add_f32_dpp v{YA+i}, v{YA+i}, v{YA+i} row_ror:{m_} row_mask:0xf bank_mask:0xf")
    I(f"v_cvt_pk_bf16_f32 v{YA}, v{YA}, v{YA+1}")
    I(f"v_cvt_pk_bf16_f32 v{YA+1}, v{YA+2}, v{YA+3}")
    setexec(0x000F000F, 0)
    I(f"s_cmp_eq_u32 s{sIT}, 2")
    I("s_cbranch_scc0 L_lead1")
    I(f"buffer_store_dwordx2 v[{YA}:{YA+1}], v{yo}, {OUTS}, 0 offen")
    setexec(0xFFFFFFFF, 0xFFFFFFFF)
    TS(29)
    I("s_branch L_fin")
    a.label("L_lead1")
    I(f"v_min_u32 v{YA}, 0xfffffffe, v{YA}")
    I(f"v_min_u32 v{YA+1}, 0xfffffffe, v{YA+1}")
    lstore([f"buffer_store_dwordx2 v[{YA}:{YA+1}], v{yo}, {WS}, s{sT2} offen"])
    setexec(0xFFFFFFFF, 0xFFFFFFFF)
    TS(28)
    if p5 & 16: I("s_setprio 0")
    I("s_branch L_B1")
    if g3:
        a.label("L_G3")
        I("s_barrier")
        I("s_branch L_B1")
    a.label("L_nsub")
    I(f"s_cmp_ge_u32 s{sWAVE}, 5")
    I("s_cbranch_scc1 L_G3" if g3 else "s_cbranch_scc1 L_B1")
    IDX = vSEL + 4
    DPF = "row_mask:0xf bank_mask:0xf"
    if q2:
        ta, x1 = T + 24, T + 25
        I(f"s_lshl_b32 s{sT0}, s{sWAVE}, 13")
        I(f"s_add_u32 s{sT0}, s{sT0}, {L_PER}")
        I(f"v_lshrrev_b32 v{ta}, 5, v{vLANE}")
        I(f"v_lshlrev_b32 v{ta}, 10, v{ta}")
        I(f"v_bfe_u32 v{x1}, v{vLANE}, 4, 1")
        I(f"v_lshl_add_u32 v{ta}, v{x1}, 8, v{ta}")
        I(f"v_bfe_u32 v{x1}, v{vLANE}, 2, 1")
        I(f"v_lshl_add_u32 v{ta}, v{x1}, 6, v{ta}")
        I(f"v_and_b32 v{x1}, 3, v{vLANE}")
        I(f"v_lshl_add_u32 v{ta}, v{x1}, 3, v{ta}")
        I(f"v_bfe_u32 v{x1}, v{vLANE}, 3, 1")
        I(f"v_lshl_add_u32 v{ta}, v{x1}, 9, v{ta}")
        I(f"v_xor_b32 v{x1}, s{sSLOT}, v{x1}")
        I(f"v_and_b32 v{x1}, 1, v{x1}")
        I(f"v_lshl_add_u32 v{ta}, v{x1}, 5, v{ta}")
        I(f"v_add_u32 v{ta}, s{sT0}, v{ta}")
        for k_ in range(8):
            I(f"ds_read_b64_tr_b16 v[{vBQ+2*k_}:{vBQ+2*k_+1}], v{ta} offset:{(k_>>1)*2048 + (k_&1)*128}")
        for i in range(8):
            I(f"v_mov_b32 v{T+i}, 0")
        for i in range(4):
            I(f"v_mov_b32 v{XA+i}, 0x3f803f80")
        I(f"s_lshl_b32 s{sT2}, s{sX}, 11")
        I(f"s_add_u32 s{sT2}, s{sT2}, {XOFF}")
        I("s_waitcnt lgkmcnt(0)")
        TS(3)
        setexec(0x55555555, 0x55555555)
        poll([f"buffer_load_dwordx4 {vr(XA)}, v{vXO}, {WS}, s{sT2} offen sc1"], [XA, XA + 2], ex=(0x55555555, 0x55555555), hop=8)
        setexec(0xFFFFFFFF, 0xFFFFFFFF)
        TS(4)
        I(f"v_mfma_f32_16x16x32_bf16 {vr(T+8)}, {vr(XA)}, {vr(XA)}, 0")
        for k_ in range(2):
            I(f"v_smfmac_f32_16x16x64_bf16 {vr(T+4*k_)}, {vr(XA)}, {vr(vBQ+8*k_, 8)}, v{IDX}")
        I(f"ds_write_b64 v{vSW}, v[{T+8}:{T+9}]")
        I(f"v_pk_add_f32 v[{T}:{T+1}], v[{T}:{T+1}], v[{T+2}:{T+3}]")
        I("s_mov_b32 exec_lo, 0xffff0000")
        I("s_mov_b32 exec_hi, 0")
        I(f"v_pk_add_f32 v[{T}:{T+1}], v[{T+4}:{T+5}], v[{T+6}:{T+7}]")
        I("s_mov_b32 exec_lo, -1")
        I(f"ds_write_b64 v{vPQ}, v[{T}:{T+1}] offset:{L_PB1}")
        I("s_mov_b32 exec_hi, -1")
        I("s_waitcnt lgkmcnt(0)")
        TS(5)
        a.label("L_B1")
        I(f"v_mov_b32 v{rINV}, {f2u(1.0/640):#x}")
        I(f"s_add_u32 s{sT2}, s{sQS}, s{sREG}")
        I(f"s_sub_u32 s{sT2}, s{sT2}, {L_QB}")
        I(f"s_cmp_eq_u32 s{sWAVE}, 5")
        I("s_cbranch_scc1 L_B15")
        I("s_barrier")
        if q2 >= 2 and qb != 2: att_pre()
        if qb: I("s_barrier")
        if qb == 2: att_pre()
        I("s_branch L_B2")
        a.label("L_B15")
        if p5 & 1: I("s_setprio 3")
        if q2 >= 2: att_pre(32)
        I("s_barrier")
        TS(6)
        SQ = 60 if q2 >= 2 else 28
        PR = [32, 36, 40, T + 44, T + 48] if q2 >= 2 else [T + 4 * v for v in range(5)]
        for v in range(5):
            I(f"ds_read_b64 v[{SQ+2*v}:{SQ+2*v+1}], v{vCSQ} offset:{L_PB1 + 512 + v*PP}")
        for v in range(5):
            I(f"ds_read_b128 {vr(PR[v])}, v{vQG} offset:{L_PB1 + v*PP}")
        I("s_waitcnt lgkmcnt(5)")
        for d_, s_ in ((0, 1), (2, 3), (0, 4), (0, 2)):
            I(f"v_pk_add_f32 v[{SQ+2*d_}:{SQ+2*d_+1}], v[{SQ+2*d_}:{SQ+2*d_+1}], v[{SQ+2*s_}:{SQ+2*s_+1}]")
        for m_ in ("quad_perm:[1,0,3,2]", "quad_perm:[2,3,0,1]"):
            I(f"v_add_f32_dpp v{SQ+1}, v{SQ+1}, v{SQ+1} {m_} {DPF}")
            I(f"v_add_f32_dpp v{SQ}, v{SQ}, v{SQ} {m_} {DPF}")
        I(f"v_mul_f32 v{rMEAN}, v{SQ+1}, v{rINV}")
        I(f"v_mul_f32 v{rVAR}, v{SQ}, v{rINV}")
        stats(None)
        I("s_waitcnt lgkmcnt(0)")
        for d_, s_ in ((0, 1), (2, 3), (4, 5), (6, 7), (8, 9), (0, 2), (4, 6), (0, 8), (0, 4)):
            d_, s_ = PR[d_ >> 1] + 2 * (d_ & 1), PR[s_ >> 1] + 2 * (s_ & 1)
            I(f"v_pk_add_f32 v[{d_}:{d_+1}], v[{d_}:{d_+1}], v[{s_}:{s_+1}]")
        I(f"v_fma_f32 v{rU}, -v{rMB}, v{PR[0]+1}, v{PR[0]}")
        I(f"v_mul_f32_dpp v{rT}, v{rU}, v{rR} quad_perm:[0,0,2,2] {DPF}")
        I(f"v_mul_f32_dpp v{rU}, v{rU}, v{rR} quad_perm:[1,1,3,3] {DPF}")
        I(f"v_cvt_pk_bf16_f32 v{rU}, v{rT}, v{rU}")
        I(f"v_min_u32 v{rU}, 0xfffffffe, v{rU}")
        TS(7)
        lstore([f"buffer_store_dword v{rU}, v{vQP}, {WS}, s{sREG} offen"], True)
        if p5 & 1: I("s_setprio 0")
        if qb: I("s_barrier")
        if q2 in (1, 3): I(f"buffer_load_ushort v{vXF}, v{vXFA}, {WS}, 0 offen sc1")
        if q2 == 3:
            for i in range(32, 44): I(f"v_mov_b32 v{T+i}, 0")
        a.label("L_B2")
        if q2 in (1, 3):
            if ap:
                I(f"s_cmp_lt_u32 s{sWAVE}, 4")
                I("s_cbranch_scc0 L_ap")
                I(f"s_setprio {ap}")
                a.label("L_ap")
            for i in (range(4, 36) if q2 == 1 else []):
                I(f"v_mov_b32 v{T+i}, 0")
            poll([f"buffer_load_dwordx4 {vr(T)}, v{vQR}, {WS}, s{sT2} offen sc1"], list(range(T, T + 4)), hop=32)
        else:
            if ap:
                I(f"s_cmp_lt_u32 s{sWAVE}, 4")
                I("s_cbranch_scc0 L_ap")
                I(f"s_setprio {ap}")
                a.label("L_ap")
            I(f"s_mov_b64 s[{sKM}:{sKM+1}], -1")
            a.label("L_qp")
            q_masked(lambda r_: f"buffer_load_dwordx4 {vr(r_)}, v{vQR}, {WS}, s{sT2} offen sc1")
            I(f"s_add_u32 s{sSPIN}, s{sSPIN}, 1")
            I(f"s_cmp_ge_u32 s{sSPIN}, {spin_limit}")
            I("s_cbranch_scc1 L_qd")
            I("s_waitcnt vmcnt(3)")
            cur = maxtree(T + 50, range(T, T + 4))
            I(f"v_cmp_eq_u32 vcc, -1, v{cur}")
            I("s_cbranch_vccnz L_qp")
            a.label("L_qd")
            I("s_waitcnt vmcnt(0)")
        TS(8)

    if not q2:
        I(f"s_lshl_b32 s{sT0}, s{sWAVE}, 11")
        I(f"s_and_b32 s{sT1}, s{sSLOT}, 4")
        I(f"s_mul_i32 s{sT1}, s{sT1}, {NPER * 512}")
        I(f"s_add_u32 s{sT0}, s{sT0}, s{sT1}")
        I(f"s_add_u32 s{sT0}, s{sT0}, {L_PER}")
        ta = T + 24
        tr_addr(ta, 64, sT0, T + 25)
        I(f"v_bfe_u32 v{T+25}, v{vLANE}, 4, 1")
        I(f"v_lshl_add_u32 v{ta}, v{T+25}, 5, v{ta}")
        I(f"v_xor_b32 v{ta+1}, 32, v{ta}")
        for t in range(4):
            o = (t >> 1) * NPER * 1024
            I(f"ds_read_b64_tr_b16 v[{vBQ+4*t}:{vBQ+4*t+1}], v{ta+(t&1)} offset:{o}")
            I(f"ds_read_b64_tr_b16 v[{vBQ+4*t+2}:{vBQ+4*t+3}], v{ta+(t&1)} offset:{o+256}")
        ones()
        I("s_waitcnt lgkmcnt(0)")
        for t in range(4):
            I(f"v_mfma_f32_16x16x32_bf16 {vr(T+4*t)}, {vr(vBQ+4*t)}, {vr(ONES)}, 0")
        I(f"s_mov_b64 exec, s[{sKM}:{sKM+1}]")
        for t in range(4):
            I(f"ds_write_b128 v{vPQ}, {vr(T+4*t)} offset:{L_PB1 + 256 + t*64}")
        I("s_mov_b64 exec, -1")
        I(f"s_lshl_b32 s{sT2}, s{sX}, 11")
        I(f"s_add_u32 s{sT2}, s{sT2}, {XOFF}")
        if g3: I("s_barrier")
        TS(3)
        if xl:
            light(f"buffer_load_dword v{XA}, v{vXO}, {WS}, s{sT2} offen sc1", XA, (xl, 0))
        poll([f"buffer_load_dwordx4 {vr(XA)}, v{vXO}, {WS}, s{sT2} offen sc1"], list(range(XA, XA + 4)), hop=8)
        TS(4)
        gemv_q()
        TS(5)
        a.label("L_B1")
        I(f"v_mov_b32 v{rINV}, {f2u(1.0/640):#x}")
        qa, qs, QS = q_reduce()
        I("s_barrier")
        I(f"s_cmp_eq_u32 s{sWAVE}, 5")
        I("s_cbranch_scc1 L_B15")
        I("s_waitcnt vmcnt(0)")
        I("s_branch L_B2")
        a.label("L_B15")
        TS(6)
        q_reduce2(qa, qs, QS, first=True)
        TS(7)
        lstore([f"buffer_store_dword v{rU}, v{vQP}, {WS}, s{sREG} offen"], True)
        if zq:
            assert y128
            for i in range(24 if sm else 16):
                I(f"v_mov_b32 v{T+i}, 0")
        q_gather(vQG, qa)
        TS(8)
        I(f"buffer_load_ushort v{vXF}, v{vXFA}, {WS}, 0 offen sc1")
        I("s_waitcnt lgkmcnt(0)")
        if zq: I("s_branch L_B2b")
        a.label("L_B2")
    BT = T
    ST = T + 16
    PS = T + 32
    MI = T + 36
    OA = T + 44
    if q2 >= 2:
        PS, MI, OA = PS2, MI2, OA2
        a.label("L_att")
    elif q2:
        PS = 28
        a.label("L_att")
    else:
        for i in range(24 if sm else 16):
            I(f"v_mov_b32 v{BT+i}, 0")
        if zq: a.label("L_B2b")
        I("s_barrier")
        a.label("L_att")
        TS(9)
        for t in range(4):
            m = 0x000F000F << (4 * t)
            setexec(m, m)
            I(f"ds_read_b128 {vr(BT+4*t)}, v{vQR}")
        setexec(0xFFFFFFFF, 0xFFFFFFFF)
    I("s_waitcnt vmcnt(16) lgkmcnt(0)")
    TS(10)
    vM = MI + 4; vL = MI + 5; vT_ = MI + 6; vPK = MI + 7
    IDX = vSEL + 4
    DPF = "row_mask:0xf bank_mask:0xf"
    if sm:
        if q2 == 2:
            for Tq in range(2):
                for t in range(4):
                    I(f"v_smfmac_f32_16x16x64_bf16 {vr(ST+4*Tq)}, {vr(BT+4*t)}, {vr(vK+8*(Tq+2*t), 8)}, v{IDX}")
                    D = ST
                    if Tq == 1 and t == 1: I(f"v_pk_add_f32 v[{D}:{D+1}], v[{D}:{D+1}], v[{D+2}:{D+3}]")
                    if Tq == 1 and t == 2: I(f"v_mov_b32_dpp v{PS}, v{D} quad_perm:[0,0,2,2] {DPF}")
                    if Tq == 1 and t == 3: I(f"v_add_f32_dpp v{PS}, v{D+1}, v{PS} quad_perm:[1,1,3,3] {DPF}")
            D = ST + 4
            I(f"v_pk_add_f32 v[{D}:{D+1}], v[{D}:{D+1}], v[{D+2}:{D+3}]")
            I(f"v_mov_b32_dpp v{PS+1}, v{D} quad_perm:[0,0,2,2] {DPF}")
            I(f"v_add_f32_dpp v{PS+1}, v{D+1}, v{PS+1} quad_perm:[1,1,3,3] {DPF}")
            ST = T
            BT = T + 40
        elif q2 == 3:
            PM = T + 44
            for i in range(10):
                if i < 8: I(f"v_smfmac_f32_16x16x64_bf16 {vr(T+4+4*i)}, {vr(T)}, {vr(vK+8*i, 8)}, v{IDX}")
                j = i - 2
                if j < 0: continue
                D = T + 4 + 4 * j; P_ = PM + 2 * (j & 1)
                if pk3:
                    if j == 0: I("s_mov_b64 exec, 0xffff")
                    elif j % 2 == 0: I("s_lshl_b64 exec, exec, 16")
                    I(f"v_pk_add_f32 v[{P_}:{P_+1}], v[{D}:{D+1}], v[{D+2}:{D+3}]")
                else:
                    for c in range(2):
                        I(f"v_add_f32_dpp v{P_+c}, v{D+c}, v{D+2+c} quad_perm:[0,1,2,3] row_mask:{1 << (j >> 1):#x} bank_mask:0xf")
                if j == 7 and pk3: I("s_mov_b64 exec, -1")
                if j >= 6:
                    pass
            for Tq in range(2):
                I(f"v_mov_b32_dpp v{PS+Tq}, v{PM+2*Tq} quad_perm:[0,0,2,2] {DPF}")
            for Tq in range(2):
                I(f"v_add_f32_dpp v{PS+Tq}, v{PM+2*Tq+1}, v{PS+Tq} quad_perm:[1,1,3,3] {DPF}")
        elif q2:
            fill = [f"v_mov_b32 v{OA+i}, 0" for i in range(8)] + [f"v_mov_b32 v{MI+2}, {SCALE:#x}", f"v_mov_b32 v{MI+3}, {SCALE:#x}", f"v_mov_b32 v{MI+1}, s{sL2E}"]
            def po(k_, i):
                if not 0 <= i < 8:
                    return fill.pop() if fill and i < 0 else None
                D = T + 4 + 4 * i; rm = f"row_mask:{1 << (i >> 1):#x} bank_mask:0xf"
                return [f"v_pk_add_f32 v[{D}:{D+1}], v[{D}:{D+1}], v[{D+2}:{D+3}]",
                        f"v_mov_b32_dpp v{PS+(i&1)}, v{D} quad_perm:[0,0,2,2] {rm}",
                        f"v_add_f32_dpp v{PS+(i&1)}, v{D+1}, v{PS+(i&1)} quad_perm:[1,1,3,3] {rm}"][k_]
            for i in range(12):
                if i < 8: I(f"v_smfmac_f32_16x16x64_bf16 {vr(T+4+4*i)}, {vr(T)}, {vr(vK+8*i, 8)}, v{IDX}")
                if i == 8:
                    while fill: I(fill.pop())
                for k_, d_ in ((2, 4), (1, 3), (0, 2)):
                    x_ = po(k_, i - d_)
                    if x_: I(x_)
        else:
            for Tq in range(2):
                for t in range(4):
                    I(f"v_smfmac_f32_16x16x64_bf16 {vr(ST+4*Tq)}, {vr(BT+4*t)}, {vr(vK+8*(Tq+2*t), 8)}, v{IDX}")
                    if Tq == 0:
                        I(f"v_mov_b32 v{OA+2*t}, 0")
                        I(f"v_mov_b32 v{OA+2*t+1}, 0")
            I(f"v_mov_b32 v{MI+2}, {SCALE:#x}")
            I(f"v_mov_b32 v{MI+3}, {SCALE:#x}")
            I(f"v_mov_b32 v{MI+1}, s{sL2E}")
            for Tq in range(2):
                D = ST + 4 * Tq
                I(f"v_pk_add_f32 v[{D}:{D+1}], v[{D}:{D+1}], v[{D+2}:{D+3}]")
                I(f"v_mov_b32_dpp v{PS+Tq}, v{D} quad_perm:[0,0,2,2] {DPF}")
                I(f"v_add_f32_dpp v{PS+Tq}, v{D+1}, v{PS+Tq} quad_perm:[1,1,3,3] {DPF}")
        I(f"v_cvt_pk_bf16_f32 v{MI}, v{PS}, v{PS+1}")
        unpack(PS, PS + 1, MI)
        I(f"v_pk_mul_f32 v[{PS}:{PS+1}], v[{PS}:{PS+1}], v[{MI+2}:{MI+3}]")
        I(f"v_cvt_pk_bf16_f32 v{MI}, v{PS}, v{PS+1}")
        unpack(PS, PS + 1, MI)
        I(f"v_max_f32 v{vM}, v{PS}, v{PS+1}")
        if q2 == 2:
            I(f"v_cmp_u_f32 vcc, v{PS}, v{PS+1}")
            I(f"s_and_b64 vcc, vcc, s[{sKM}:{sKM+1}]")
            I("s_cbranch_scc1 L_qslow")
        I(f"v_max_f32_dpp v{vM}, v{vM}, v{vM} quad_perm:[2,3,0,1] {DPF}")
        I(f"v_max_f32_dpp v{vM}, v{vM}, v{vM} row_ror:4 {DPF}")
        I(f"v_max_f32_dpp v{vM}, v{vM}, v{vM} row_ror:8 {DPF}")
        I(f"v_max_f32_dpp v{vM}, v{vM}, v{vM} row_bcast:15 row_mask:0xa bank_mask:0xf")
        I(f"v_max_f32_dpp v{vM}, v{vM}, v{vM} row_bcast:31 row_mask:0xc bank_mask:0xf")
        I(f"v_readlane_b32 s{sM}, v{vM}, 63")
        I(f"v_mul_f32 v{vT_}, s{sM}, v{MI+1}")
        for Tq in range(2):
            I(f"v_fma_f32 v{PS+Tq}, v{PS+Tq}, v{MI+1}, -v{vT_}")
        for Tq in range(2):
            I(f"v_exp_f32 v{PS+Tq}, v{PS+Tq}")
    else:
        for Tt in range(4):
            for t in range(4):
                I(f"v_mfma_f32_16x16x32_bf16 {vr(ST+4*Tt)}, {vr(vK+4*(4*Tt+t))}, {vr(BT+4*t)}, {'0' if t == 0 else vr(ST+4*Tt)}")
        for Tt in range(4):
            I(f"v_mov_b32_dpp v{PS+Tt}, v{ST+4*Tt} quad_perm:[0,0,0,0] row_mask:0xf bank_mask:0xf")
            for c in range(1, 4):
                I(f"v_add_f32_dpp v{PS+Tt}, v{ST+4*Tt+c}, v{PS+Tt} quad_perm:[{c},{c},{c},{c}] row_mask:0xf bank_mask:0xf")
        I(f"v_mov_b32 v{MI+2}, {SCALE:#x}")
        I(f"v_mov_b32 v{MI+3}, {SCALE:#x}")
        I(f"v_cvt_pk_bf16_f32 v{MI}, v{PS}, v{PS+1}")
        I(f"v_cvt_pk_bf16_f32 v{MI+1}, v{PS+2}, v{PS+3}")
        unpack(PS, PS + 1, MI)
        unpack(PS + 2, PS + 3, MI + 1)
        I(f"v_pk_mul_f32 v[{PS}:{PS+1}], v[{PS}:{PS+1}], v[{MI+2}:{MI+3}]")
        I(f"v_pk_mul_f32 v[{PS+2}:{PS+3}], v[{PS+2}:{PS+3}], v[{MI+2}:{MI+3}]")
        I(f"v_cvt_pk_bf16_f32 v{MI}, v{PS}, v{PS+1}")
        I(f"v_cvt_pk_bf16_f32 v{MI+1}, v{PS+2}, v{PS+3}")
        unpack(PS, PS + 1, MI)
        unpack(PS + 2, PS + 3, MI + 1)
        vM = MI + 4; vL = MI + 5; vT_ = MI + 6; vPK = MI + 7
        I(f"v_max3_f32 v{vM}, v{PS}, v{PS+1}, v{PS+2}")
        I(f"v_max_f32 v{vM}, v{vM}, v{PS+3}")
        I(f"v_max_f32_dpp v{vM}, v{vM}, v{vM} row_ror:4 row_mask:0xf bank_mask:0xf")
        I(f"v_max_f32_dpp v{vM}, v{vM}, v{vM} row_ror:8 row_mask:0xf bank_mask:0xf")
        I(f"v_max_f32_dpp v{vM}, v{vM}, v{vM} row_bcast:15 row_mask:0xa bank_mask:0xf")
        I(f"v_max_f32_dpp v{vM}, v{vM}, v{vM} row_bcast:31 row_mask:0xc bank_mask:0xf")
        I(f"v_mov_b32 v{MI}, s{sL2E}")
        I(f"v_readlane_b32 s{sM}, v{vM}, 63")
        I(f"v_mul_f32 v{vT_}, s{sM}, v{MI}")
        for Tt in range(4):
            I(f"v_fma_f32 v{PS+Tt}, v{PS+Tt}, v{MI}, -v{vT_}")
        for Tt in range(4):
            I(f"v_exp_f32 v{PS+Tt}, v{PS+Tt}")
    TS(11)
    I(f"s_cmp_eq_u32 s{sIT}, 0")
    I("s_cbranch_scc0 L_PV")
    I(f"s_cmp_eq_u32 s{sLATE}, 0")
    I("s_cbranch_scc1 L_PVe")
    role_dma()
    TS(25)
    I("s_branch L_PV")
    a.label("L_PVe")
    if esy:
        I(f"s_cmp_eq_u32 s{sWAVE}, 7")
        I("s_cbranch_scc0 L_PVe2")
        srd(TA, 54, 256)
        I(f"v_lshlrev_b32 v{BT+2}, 4, v{vLANE}")
        setexec(0xFF, 0)
        I(f"buffer_load_dwordx2 v[{BT}:{BT+1}], v{BT+2}, {TA}, 0 offen offset:128 {syfl}")
        setexec(0xFFFFFFFF, 0xFFFFFFFF)
        I("s_waitcnt vmcnt(1)")
        I("s_branch L_PV")
        a.label("L_PVe2")
    I(f"s_waitcnt vmcnt({1 if pst == 1 or (pst >= 4 and (pst != 6 or pi)) else 0})")
    a.label("L_PV")
    if sm:
        I(f"v_cvt_pk_bf16_f32 v{vPK}, v{PS}, v{PS+1}")
        I(f"v_add_f32 v{vL}, v{PS}, v{PS+1}")
        I(f"v_mov_b32_dpp v{vT_}, v{vPK} row_half_mirror {DPF}")
        lred = [f"v_add_f32_dpp v{vL}, v{vL}, v{vL} quad_perm:[2,3,0,1] {DPF}",
                f"v_add_f32_dpp v{vL}, v{vL}, v{vL} row_ror:4 {DPF}",
                f"v_add_f32_dpp v{vL}, v{vL}, v{vL} row_ror:8 {DPF}",
                f"v_add_f32_dpp v{vL}, v{vL}, v{vL} row_bcast:15 row_mask:0xa bank_mask:0xf",
                f"v_add_f32_dpp v{vL}, v{vL}, v{vL} row_bcast:31 row_mask:0xc bank_mask:0xf",
                f"ds_write_b64 v{vMLW}, v[{vM}:{vL}]"]
        def mkA(Tt):
            x_, y_ = Tt >> 1, Tt & 1
            for w in sorted(range(4), key=lambda w: (w & 1) != x_):
                src, p_ = (vPK, 2 * y_) if (w & 1) == x_ else (vT_, 3 - 2 * y_)
                I(f"v_and_b32_dpp v{ST+4*Tt+w}, v{src}, v{vSEL+w} quad_perm:[{p_},{p_},{p_},{p_}] {DPF}")
        mkA(0)
        for Tt in range(4):
            for hf in range(2):
                j1 = Tt * 4 + hf * 2 + 1
                if hf == 0 and Tt < 3: mkA(Tt + 1) if Tt == 0 else None
                I(f"s_waitcnt vmcnt({15 - j1 + 8})")
                I(f"v_smfmac_f32_16x16x64_bf16 {vr(OA+4*hf)}, {vr(ST+4*Tt)}, {vr(vV+4*(j1-1), 8)}, v{IDX} abid:1")
                if hf == 0 and Tt < 2: mkA(Tt + 2)
                elif lred:
                    I(lred.pop(0))
                    if Tt >= 2 and lred: I("s_nop 0"); I(lred.pop(0))
        for x_ in lred: I(x_)
    else:
        for Tt in range(4):
            AB = ST + 8 * (Tt & 1)
            I(f"v_mov_b32_dpp v{vT_}, v{PS+Tt} row_half_mirror row_mask:0xf bank_mask:0xf")
            I(f"v_cvt_pk_bf16_f32 v{vPK}, v{PS+Tt}, v{vT_}")
            for u in range(2):
                for r in range(4):
                    I(f"v_perm_b32 v{AB+4*u+r}, v{vPK}, v{vPK}, v{vSEL+4*u+r}")
            if Tt == 1:
                I(f"v_add_f32 v{vL}, v{PS}, v{PS+1}")
                I(f"v_add_f32 v{MI+1}, v{PS+2}, v{PS+3}")
                I(f"v_add_f32 v{vL}, v{vL}, v{MI+1}")
                I(f"v_add_f32_dpp v{vL}, v{vL}, v{vL} row_ror:4 row_mask:0xf bank_mask:0xf")
                I(f"v_add_f32_dpp v{vL}, v{vL}, v{vL} row_ror:8 row_mask:0xf bank_mask:0xf")
                I(f"v_add_f32_dpp v{vL}, v{vL}, v{vL} row_bcast:15 row_mask:0xa bank_mask:0xf")
                I(f"v_add_f32_dpp v{vL}, v{vL}, v{vL} row_bcast:31 row_mask:0xc bank_mask:0xf")
                I(f"ds_write_b64 v{vMLW}, v[{vM}:{vL}]")
            for u in range(2):
                i1 = Tt * 4 + u * 2 + 1
                I(f"s_waitcnt vmcnt({15 - i1 + 8})")
                for hf in range(2):
                    i = Tt * 4 + u * 2 + hf
                    first = (Tt == 0 and u == 0)
                    I(f"v_mfma_f32_16x16x32_bf16 {vr(OA+4*hf)}, {vr(AB+4*u)}, {vr(vV+4*i)}, {'0' if first else vr(OA+4*hf)}")
    TS(12)
    setexec(0x00FF00FF, 0xFF00FF00)
    I(f"ds_write_b128 v{vOW}, {vr(OA)}")
    I(f"ds_write_b128 v{vOW}, {vr(OA+4)} offset:256")
    setexec(0xFFFFFFFF, 0xFFFFFFFF)
    I(f"s_cmp_eq_u32 s{sIT}, 0")
    I("s_cbranch_scc0 L_B3")
    sp(0)
    I(f"s_cmp_eq_u32 s{sLATE}, 0")
    I("s_cbranch_scc0 L_B3")
    I(f"s_cmp_eq_u32 s{sWAVE}, 7")
    I("s_cbranch_scc0 L_erd")
    sp(3)
    srd(TA, 54, 256)
    if q2 == 2: I(f"v_lshlrev_b32 v{BT+2}, 4, v{vLANE}")
    setexec(0xFF, 0)
    if not esy:
        I(f"v_lshlrev_b32 v{BT+2}, 4, v{vLANE}")
        I(f"buffer_load_dwordx2 v[{BT}:{BT+1}], v{BT+2}, {TA}, 0 offen offset:128 {syfl}")
    a.label("L_sync")
    I(f"s_add_u32 s{sSPIN}, s{sSPIN}, 4")
    I("s_waitcnt vmcnt(0)")
    I(f"v_and_b32 v{BT+3}, {1 << 21:#x}, v{BT+1}")
    I(f"v_cmp_eq_u32 vcc, 0, v{BT+3}")
    I("s_cbranch_vccz L_syncd")
    I(f"buffer_load_dwordx2 v[{BT}:{BT+1}], v{BT+2}, {TA}, 0 offen offset:128 sc1")
    I(f"s_cmp_lt_u32 s{sSPIN}, {spin_limit}")
    I("s_cbranch_scc1 L_sync")
    I("s_waitcnt vmcnt(0)")
    a.label("L_syncd")
    I(f"v_lshrrev_b32 v{BT+3}, 24, v{BT+1}")
    I(f"v_readlane_b32 s64, v{BT}, s{sX}")
    I(f"v_readlane_b32 s65, v{BT+1}, s{sX}")
    for m_ in ("quad_perm:[1,0,3,2]", "quad_perm:[2,3,0,1]", "row_half_mirror"):
        I(f"v_add_u32_dpp v{BT+3}, v{BT+3}, v{BT+3} {m_} row_mask:0xf bank_mask:0xf")
    I(f"s_mul_i32 s{sT0}, s{sXCC}, 6")
    I(f"s_lshr_b64 s[64:65], s[64:65], s{sT0}")
    I(f"s_and_b32 s64, s64, 63")
    I(f"s_cmp_eq_u32 s64, 32")
    I(f"s_cselect_b32 s{sT1}, 1, 0")
    I(f"s_cmp_lt_u32 s{sXCC}, 8")
    I(f"s_cselect_b32 s{sT1}, s{sT1}, 0")
    I(f"v_readfirstlane_b32 s{sT0}, v{BT+3}")
    setexec(0xFFFFFFFF, 0xFFFFFFFF)
    I(f"s_cmp_gt_u32 s{sT0}, {4 * ncal}")
    I(f"s_cselect_b32 s{sT0}, 1, 0")
    I(f"s_lshr_b32 s{sT2}, s{sXCC}, 2")
    I(f"s_xor_b32 s{sT0}, s{sT0}, s{sT2}")
    I(f"s_and_b32 s{sT0}, s{sT0}, {1 if dual else 0}")
    I(f"s_lshl_b32 s{sT0}, s{sT0}, 13")
    I(f"s_or_b32 s{sT0}, s{sT0}, s{sT1}")
    I(f"v_mov_b32 v{BT}, s{sT0}")
    I(f"v_mov_b32 v{BT+1}, {L_FLAG}")
    I(f"ds_write_b32 v{BT+1}, v{BT}")
    TS(35)
    sp(0)
    if pf:
        assert tw == 7 and dyn and not emd
        setexec(1, 0)
        I(f"ds_write_b32 v{BT+1}, v{vTK} offset:4")
        setexec(0xFFFFFFFF, 0xFFFFFFFF)
    a.label("L_erd")
    I(f"s_cmp_eq_u32 s{sROLE}, 0")
    if dyn and not pf:
        I("s_cbranch_scc1 L_erd2")
        I(f"s_cmp_eq_u32 s{sWAVE}, {tw}")
        I("s_cbranch_scc0 L_erd1" if emd else "s_cbranch_scc0 L_B3")
        I(f"v_mov_b32 v{BT+1}, {L_FLAG}")
        if emd: I(f"v_add_u32 v{vRDMA}, 1, v{vRDMA}")
        setexec(1, 0)
        I(f"ds_write_b32 v{BT+1}, v{vRDMA} offset:4")
        setexec(0xFFFFFFFF, 0xFFFFFFFF)
        if emd:
            a.label("L_erd1")
            if emd == 2:
                I(f"v_mov_b32 v{BT+1}, {L_FLAG}")
                I(f"v_mov_b32 v{BT}, 1")
                setexec(1, 0)
                I("s_waitcnt lgkmcnt(0)")
                I(f"ds_add_u32 v{BT+1}, v{BT} offset:12")
                setexec(0xFFFFFFFF, 0xFFFFFFFF)
                I(f"s_cmp_eq_u32 s{sWAVE}, 7")
                I("s_cbranch_scc0 L_erd3")
                lds_wait(12, 12, ge=True)
                TS(13)
                I(f"ds_read_b64 v[{T+38}:{T+39}], v{T+47}")
                I("s_branch L_comb")
                a.label("L_erd3")
            I(f"s_cmp_lt_u32 s{sWAVE}, {emw}")
            I("s_cbranch_scc0 L_B3")
            e0, e1, e2, e3 = BT, BT + 1, BT + 2, BT + 3
            npc = 40 // emw
            I(f"v_lshrrev_b32 v{e0}, 2, v{vLANE}")
            I(f"v_mul_u32_u24 v{e0}, 3456, v{e0}")
            I(f"v_and_b32 v{e1}, 3, v{vLANE}")
            I(f"v_lshl_add_u32 v{BT+4}, v{e1}, 4, v{e0}")
            I(f"v_lshrrev_b32 v{e0}, 3, v{vLANE}")
            I(f"v_mul_u32_u24 v{e2}, 1280, v{e0}")
            I(f"v_and_b32 v{e1}, 7, v{vLANE}")
            I(f"v_lshlrev_b32 v{e1}, 4, v{e1}")
            I(f"v_bfe_u32 v{e0}, v{vLANE}, 4, 1")
            I(f"v_lshlrev_b32 v{e0}, 5, v{e0}")
            I(f"v_xor_b32 v{e1}, v{e1}, v{e0}")
            I(f"v_xor_b32 v{e0}, 64, v{e1}")
            I(f"v_add_u32 v{e3}, v{e2}, v{e0}")
            I(f"v_add_u32 v{e2}, v{e2}, v{e1}")
            lds_wait(4, 1, ge=True)
            I(f"s_sub_u32 s{sTB}, s{sT3}, 1")
            I(f"s_mul_hi_u32 s{sT0}, s{sTB}, 0x2aaaaab")
            I(f"s_mul_i32 s{sT0}, s{sT0}, 96")
            I(f"s_sub_u32 s{sTB}, s{sTB}, s{sT0}")
            I(f"s_cmp_lt_u32 s{sTB}, 54")
            I("s_cbranch_scc0 L_B3")
            if g8: lds_wait(8, g8, ge=True)
            srd(TB, 44, 640 * 3456)
            I(f"s_mul_i32 s{sT1}, s{sWAVE}, {npc*16*3456}")
            I(f"s_lshl_b32 s{sT0}, s{sTB}, 6")
            I(f"s_add_u32 s{sT0}, s{sT0}, s{sT1}")
            I(f"s_mul_i32 s{sT1}, s{sWAVE}, {npc*1024}")
            for e in range(npc):
                I(f"s_add_u32 m0, s{sT1}, {L_ROLE + e*1024}")
                I(f"buffer_load_dwordx4 v{BT+4}, {TB}, s{sT0} offen {rflags} lds")
                if e < npc - 1: I(f"s_add_u32 s{sT0}, s{sT0}, {16*3456}")
            srd(TA, 48, 1728 * 1280)
            I(f"s_mul_i32 s{sT3}, s{sTB}, {32*1280}")
            I(f"s_mul_i32 s{sT0}, s{sWAVE}, {npc}")
            assert npc % 2 == 0
            for e in range(npc):
                I(f"s_lshl_b32 s{sT1}, s{sT0}, 10")
                I(f"s_add_u32 m0, s{sT1}, {L_W2}")
                I(f"s_and_b32 s{sT1}, s{sT0}, 3")
                I(f"s_mul_i32 s{sT1}, s{sT1}, {8*1280}")
                I(f"s_lshr_b32 s{sT2}, s{sT0}, 2")
                I(f"s_lshl_b32 s{sT2}, s{sT2}, 7")
                I(f"s_add_u32 s{sT1}, s{sT1}, s{sT2}")
                I(f"s_add_u32 s{sT1}, s{sT1}, s{sT3}")
                I(f"buffer_load_dwordx4 v{(e2, e3)[e & 1]}, {TA}, s{sT1} offen {rflags} lds")
                if e < npc - 1: I(f"s_add_u32 s{sT0}, s{sT0}, 1")
            TS(25)
        I("s_branch L_B3")
        a.label("L_erd2")
    elif ew:
        I("s_cbranch_scc1 L_erd2")
        if the:
            I(f"v_cmp_ne_u32 vcc, -1, v{T+50}")
            I(f"s_bcnt1_i32_b64 s{sT0}, vcc")
            I(f"s_cmp_ge_u32 s{sT0}, {the}")
            I("s_cbranch_scc0 L_B3")
            I("s_mov_b32 s97, 1")
        I("s_waitcnt lgkmcnt(0)")
        I(f"s_cmp_eq_u32 s{sROLE}, 3")
        I("s_cbranch_scc1 L_erd3" if ew & 2 else "s_cbranch_scc1 L_B3")
        if eg: lds_wait(8, eg, ge=True)
        w2_early()
        I("s_branch L_B3")
        if ew & 2:
            a.label("L_erd3")
            if eg: lds_wait(8, eg, ge=True)
            pf_static("L_ps4", True, 3)
            I("s_branch L_B3")
        a.label("L_erd2")
    else:
        I("s_cbranch_scc0 L_B3")
    if gate:
        lds_wait(8, gate, ge=True)
    role_dma()
    TS(25)
    a.label("L_B3")
    I("s_waitcnt lgkmcnt(0)")
    I(f"v_mov_b32 v{T+38}, {L_FLAG}")
    I("s_barrier")
    TS(13)
    I(f"ds_read_b64 v[{T+38}:{T+39}], v{T+38}")
    I(f"s_cmp_eq_u32 s{sWAVE}, 7")
    I("s_cbranch_scc1 L_comb")
    I("s_waitcnt lgkmcnt(0)")
    I(f"v_readfirstlane_b32 s{sT0}, v{T+38}")
    I(f"s_and_b32 s{sPURE}, s{sT0}, 1")
    I(f"s_and_b32 s{sNEAR}, s{sT0}, {CP}")
    if pst == 2:
        I(f"s_cmp_eq_u32 s{sIT}, 0")
        I("s_cbranch_scc0 L_role")
        pf_static("L_ps", False)
    if pf:
        I(f"s_cmp_eq_u32 s{sIT}, 0")
        I("s_cbranch_scc0 L_role")
        I(f"s_cmp_lt_u32 s{sWAVE}, {2*pf}")
        I("s_cbranch_scc0 L_role")
        I(f"v_readfirstlane_b32 s{sT0}, v{T+39}")
        I(f"s_and_b32 s{sT0}, s{sT0}, 0xff")
        I(f"s_sub_u32 s{sT0}, s{sT0}, {h0}")
        I(f"s_cmp_lt_u32 s{sT0}, {(40 + pf - 1) // pf}")
        I("s_cbranch_scc0 L_role")
        I(f"s_mul_i32 s{sT0}, s{sT0}, {pf}")
        I(f"s_add_u32 s{sT0}, s{sT0}, s{sWAVE}")
        I(f"s_mul_i32 s{sT1}, s{sX}, 7")
        I(f"s_min_u32 s{sT1}, s{sT1}, 48")
        I(f"s_cmp_lt_u32 s{sWAVE}, {pf}")
        I("s_cbranch_scc0 L_pf2")
        srd(TA, 44, 640 * 3456)
        I(f"v_lshrrev_b32 v{T+50}, 2, v{vLANE}")
        I(f"v_mul_u32_u24 v{T+50}, 3456, v{T+50}")
        I(f"v_and_b32 v{T+51}, 3, v{vLANE}")
        I(f"v_lshl_add_u32 v{T+50}, v{T+51}, 7, v{T+50}")
        I(f"s_mul_i32 s{sT0}, s{sT0}, {16*3456}")
        I(f"s_lshr_b32 s{sT1}, s{sT1}, 1")
        I(f"s_lshl_b32 s{sT1}, s{sT1}, 7")
        I(f"s_add_u32 s{sT0}, s{sT0}, s{sT1}")
        I(f"v_add_u32 v{T+50}, s{sT0}, v{T+50}")
        I(f"buffer_load_dword v{T+51}, v{T+50}, {TA}, 0 offen")
        I("s_branch L_role")
        a.label("L_pf2")
        I(f"s_sub_u32 s{sT0}, s{sT0}, {pf}")
        I(f"s_cmp_lt_u32 s{sX}, 6")
        I(f"s_cselect_b32 s{sT2}, 35, 30")
        I(f"s_cmp_lt_u32 s{sT0}, s{sT2}")
        I("s_cbranch_scc0 L_role")
        if pfr:
            I(f"s_sub_u32 s{sT0}, s{sT2}, s{sT0}")
            I(f"s_sub_u32 s{sT0}, s{sT0}, 1")
        srd(TA, 48, 1728 * 1280)
        I(f"s_mul_i32 s{sT1}, s{sT1}, {32*1280}")
        I(f"s_lshl_b32 s{sT0}, s{sT0}, 13")
        I(f"s_add_u32 s{sT0}, s{sT0}, s{sT1}")
        I(f"v_lshlrev_b32 v{T+50}, 7, v{vLANE}")
        I(f"buffer_load_dword v{T+51}, v{T+50}, {TA}, s{sT0} offen")
    I("s_branch L_role")
    a.label("L_comb")
    if p5 & 8: I("s_setprio 3")
    cM, cL, cMX, cF, cT = T + 32, T + 33, T + 34, T + 36, T + 37
    cLS = T + 35
    I(f"ds_read_b64 v[{cM}:{cL}], v{vCML}")
    for w in range(8):
        I(f"ds_read2st64_b64 {vr(T+4*w)}, v{vCR} offset0:{2*w} offset1:{2*w+1}")
    I(f"v_mov_b32 v{cT}, s{sL2E}")
    I("s_waitcnt lgkmcnt(8)")
    I(f"v_readfirstlane_b32 s{sT0}, v{T+38}")
    I(f"v_max_f32_dpp v{cMX}, v{cM}, v{cM} quad_perm:[1,0,3,2] row_mask:0xf bank_mask:0xf")
    I(f"v_max_f32_dpp v{cMX}, v{cMX}, v{cMX} quad_perm:[2,3,0,1] row_mask:0xf bank_mask:0xf")
    I(f"v_max_f32_dpp v{cMX}, v{cMX}, v{cMX} row_half_mirror row_mask:0xf bank_mask:0xf")
    I(f"v_sub_f32 v{cF}, v{cM}, v{cMX}")
    I(f"v_mul_f32 v{cF}, v{cF}, v{cT}")
    I(f"v_exp_f32 v{cF}, v{cF}")
    I(f"s_and_b32 s{sPURE}, s{sT0}, 1")
    I(f"s_and_b32 s{sNEAR}, s{sT0}, {CP}")
    I("s_waitcnt lgkmcnt(0)")
    for w in range(8):
        I(f"v_readlane_b32 s{sF+w}, v{cF}, {w}")
    for w in range(8):
        I(f"v_pk_add_f32 v[{T+4*w}:{T+4*w+1}], v[{T+4*w}:{T+4*w+1}], v[{T+4*w+2}:{T+4*w+3}]")
    for w in range(8):
        sp = f"s[{sF+(w&~1)}:{sF+(w&~1)+1}]"
        o = w & 1
        acc = T + 40 + 2 * (w & 1)
        if w < 2:
            I(f"v_pk_mul_f32 v[{acc}:{acc+1}], v[{T+4*w}:{T+4*w+1}], {sp} op_sel:[0,{o}] op_sel_hi:[1,{o}]")
        else:
            I(f"v_pk_fma_f32 v[{acc}:{acc+1}], v[{T+4*w}:{T+4*w+1}], {sp}, v[{acc}:{acc+1}] op_sel:[0,{o},0] op_sel_hi:[1,{o},1]")
    I(f"v_mul_f32 v{cLS}, v{cF}, v{cL}")
    I(f"v_pk_add_f32 v[{T+40}:{T+41}], v[{T+40}:{T+41}], v[{T+42}:{T+43}]")
    I(f"v_add_f32_dpp v{cLS}, v{cLS}, v{cLS} quad_perm:[1,0,3,2] row_mask:0xf bank_mask:0xf")
    I(f"v_cvt_pk_bf16_f32 v{T+40}, v{T+40}, v{T+41}")
    I(f"v_min_u32 v{T+40}, 0xfffffffe, v{T+40}")
    I(f"v_add_f32_dpp v{cLS}, v{cLS}, v{cLS} quad_perm:[2,3,0,1] row_mask:0xf bank_mask:0xf")
    I(f"v_min_u32 v{cMX}, 0xfffffffe, v{cMX}")
    lstore([f"buffer_store_dword v{T+40}, v{vCP}, {WS}, s{sREG} offen"], True)
    I(f"v_add_f32_dpp v{cLS}, v{cLS}, v{cLS} row_half_mirror row_mask:0xf bank_mask:0xf")
    I(f"v_min_u32 v{cLS}, 0xfffffffe, v{cLS}")
    setexec(1, 0)
    lstore([f"buffer_store_dwordx2 v[{cMX}:{cLS}], v{vCPM}, {WS}, s{sREG} offen"], True)
    setexec(0xFFFFFFFF, 0xFFFFFFFF)
    TS(14)
    if p5 & 8: I("s_setprio 0")
    if emd == 2:
        I(f"s_cmp_eq_u32 s{sROLE}, 0")
        I("s_cbranch_scc1 L_WO")
        I(f"s_cmp_eq_u32 s{sIT}, 0")
        I("s_cbranch_scc0 L_role")
        I("s_barrier")

    a.label("L_role")
    m0_, m1_, m2_, m3_ = T, T + 1, T + 2, T + 3
    def ml_gate(thr):
        lab = a.newlab("Lg"); done = a.newlab("Lgd")
        I(f"v_lshrrev_b32 v{m0_}, 3, v{vLANE}")
        I(f"v_lshlrev_b32 v{m0_}, 7, v{m0_}")
        I(f"v_and_b32 v{m1_}, 7, v{vLANE}")
        I(f"v_lshl_add_u32 v{m0_}, v{m1_}, 3, v{m0_}")
        I(f"s_lshl_b32 s{sT1}, s{sXW}, 9")
        I(f"s_add_u32 s{sT1}, s{sT1}, {MLOFF}")
        I(f"s_add_u32 s{sT1}, s{sT1}, s{sREG}")
        setexec(0xFFFFFFFF, 0)
        a.label(lab)
        I(f"buffer_load_dword v{m1_}, v{m0_}, {WS}, s{sT1} offen sc1")
        I(f"s_add_u32 s{sSPIN}, s{sSPIN}, 1")
        I("s_waitcnt vmcnt(0)")
        I(f"v_cmp_ne_u32 vcc, -1, v{m1_}")
        I(f"s_bcnt1_i32_b64 s{sT0}, vcc")
        I(f"s_cmp_ge_u32 s{sT0}, {thr}")
        I(f"s_cbranch_scc1 {done}")
        I(f"s_cmp_lt_u32 s{sSPIN}, {spin_limit}")
        I(f"s_cbranch_scc1 {lab}")
        a.label(done)
        setexec(0xFFFFFFFF, 0xFFFFFFFF)
    I(f"s_cmp_eq_u32 s{sROLE}, 0")
    I("s_cbranch_scc1 L_WO")
    if pf:
        I(f"v_readfirstlane_b32 s{sTB}, v{T+39}")
        I(f"s_bfe_u32 s{sTB}, s{sTB}, 0x80008")
        I(f"s_cmp_lt_u32 s{sX}, 6")
        I(f"s_cselect_b32 s{sT0}, 7, 6")
        I(f"s_cmp_lt_u32 s{sTB}, s{sT0}")
        I("s_cbranch_scc0 L_next")
        I(f"s_mul_i32 s{sT1}, s{sX}, 7")
        I(f"s_min_u32 s{sT1}, s{sT1}, 48")
        I(f"s_add_u32 s{sTB}, s{sTB}, s{sT1}")
    elif dyn:
        I(f"v_readfirstlane_b32 s{sTB}, v{T+39}")
        if emd: I(f"s_sub_u32 s{sTB}, s{sTB}, 1")
        I(f"s_mul_hi_u32 s{sT0}, s{sTB}, 0x2aaaaab")
        I(f"s_mul_i32 s{sT0}, s{sT0}, 96")
        I(f"s_sub_u32 s{sTB}, s{sTB}, s{sT0}")
        I(f"s_cmp_lt_u32 s{sTB}, 54")
        I("s_cbranch_scc0 L_next")
    else:
        if pst == 3:
            I(f"s_cmp_eq_u32 s{sIT}, 0")
            I("s_cbranch_scc0 L_ps")
            I("s_barrier")
            pf_static("L_ps", False)
        I(f"s_cmp_eq_u32 s{sROLE}, 3")
        if pst >= 5 and (the or not ew & 2):
            I("s_cbranch_scc0 L_ps3")
            I(f"s_cmp_eq_u32 s{sIT}, 0")
            I("s_cbranch_scc0 L_next")
            if th1:
                I(f"s_cmp_eq_u32 s{sWAVE}, 6")
                I("s_cbranch_scc0 L_g1i")
                ml_gate(th1)
                a.label("L_g1i")
            I("s_barrier")
            if the and ew & 2:
                I("s_cmp_eq_u32 s97, 1")
                I("s_cbranch_scc1 L_next")
            pf_static("L_ps2", True, 2 if pst == 5 else 3)
            I("s_branch L_next")
            a.label("L_ps3")
        else:
            I("s_cbranch_scc1 L_next")
    I(f"s_cmp_eq_u32 s{sIT}, 0")
    I("s_cbranch_scc0 L_W1")
    if m2:
        assert y128 and sm and not emd and not th2
        vGZ = vRDMA
        F0, F1, F2 = 28, 36, 68
        L_CS = L_CS1
        sLB, sF2o, sF2x = sRN, sRSTEP, sYM
        if th1:
            I(f"s_cmp_eq_u32 s{sWAVE}, 6")
            I("s_cbranch_scc0 L_g1")
            ml_gate(th1)
            a.label("L_g1")
        if dd:
            I("s_mov_b32 s97, 0")
            a.label("L_dd")
        if pst != 3 or th1: I("s_barrier")
        TS(36)
        srd(TB, 44, 640 * 3456)
        I(f"s_lshl_b32 s{sT1}, s{sWAVE}, 1")
        I(f"s_add_u32 s{sT0}, s{sWAVE}, 2")
        I(f"s_cmp_lt_u32 s{sWAVE}, 4")
        I(f"s_cselect_b32 s{sT3}, s{sT1}, s{sT0}")
        I(f"s_cselect_b32 s{sRN}, 8, 4")
        I(f"s_mul_i32 s{sT1}, s{sT3}, {64*3456}")
        I(f"s_lshl_b32 s{sT0}, s{sTB}, 6")
        I(f"s_add_u32 s{sRB}, s{sT0}, s{sT1}")
        I(f"s_mov_b32 s{sRSTEP}, {16*3456}")
        I(f"s_lshl_b32 s{sYM}, s{sT3}, 12")
        I(f"s_add_u32 s{sYM}, s{sYM}, {L_ROLE}")
        I(f"v_lshrrev_b32 v{m0_}, 2, v{vLANE}")
        I(f"v_mul_u32_u24 v{m0_}, 3456, v{m0_}")
        I(f"v_and_b32 v{m1_}, 3, v{vLANE}")
        I(f"v_lshl_add_u32 v{vRDMA}, v{m1_}, 4, v{m0_}")
        def w1_dma():
            I(f"s_cmp_lt_u32 s{sWAVE}, 4")
            I("s_cbranch_scc0 L_m47")
            role_dma(sYM)
            I("s_branch L_mdd")
            a.label("L_m47")
            I(f"s_cmp_lt_u32 s{sWAVE}, 6")
            I("s_cbranch_scc1 L_m45")
            role_dma(sYM, 4)
            if wd: I("s_branch L_mdd")
            a.label("L_m45")
        if not wd: w1_dma()
        if wd:
            I(f"s_mul_i32 s{sT0}, s{sWAVE}, 5")
        else:
            I(f"s_mul_i32 s{sT0}, s{sWAVE}, 14")
            I(f"s_sub_u32 s{sT0}, s{sT0}, 56")
            I(f"s_min_u32 s{sT0}, s{sT0}, 34")
        I(f"s_mul_i32 s{sYM+1}, s{sTB}, {32*1280}")
        I(f"v_lshrrev_b32 v{m0_}, 3, v{vLANE}")
        I(f"v_mul_u32_u24 v{m2_}, 1280, v{m0_}")
        I(f"v_and_b32 v{m1_}, 7, v{vLANE}")
        I(f"v_lshlrev_b32 v{m1_}, 4, v{m1_}")
        I(f"v_bfe_u32 v{m0_}, v{vLANE}, 4, 1")
        I(f"v_lshlrev_b32 v{m0_}, 5, v{m0_}")
        I(f"v_xor_b32 v{m1_}, v{m1_}, v{m0_}")
        if wd:
            I(f"s_and_b32 s{sT1}, s{sT0}, 1")
            I(f"s_lshl_b32 s{sT1}, s{sT1}, 6")
            I(f"v_xor_b32 v{m1_}, s{sT1}, v{m1_}")
        I(f"v_xor_b32 v{m0_}, 64, v{m1_}")
        I(f"v_add_u32 v{m3_}, v{m2_}, v{m0_}")
        I(f"v_add_u32 v{m2_}, v{m2_}, v{m1_}")
        srd(TA, 48, 1728 * 1280)
        if the:
            I("s_cmp_eq_u32 s97, 1")
            I("s_cbranch_scc1 L_w2s")
        for e in range(0 if ew and not the else 5 if wd else 14):
            if e == 6:
                I(f"s_cmp_lt_u32 s{sWAVE}, 6")
                I("s_cbranch_scc0 L_mdd")
            I(f"s_lshl_b32 s{sT1}, s{sT0}, 10")
            I(f"s_add_u32 m0, s{sT1}, {L_W2}")
            I(f"s_and_b32 s{sT1}, s{sT0}, 3")
            I(f"s_mul_i32 s{sT1}, s{sT1}, {8*1280}")
            I(f"s_lshr_b32 s{sT2}, s{sT0}, 2")
            I(f"s_lshl_b32 s{sT2}, s{sT2}, 7")
            I(f"s_add_u32 s{sT1}, s{sT1}, s{sT2}")
            I(f"s_add_u32 s{sT1}, s{sT1}, s{sYM+1}")
            I(f"buffer_load_dwordx4 v{(m2_, m3_)[e & 1]}, {TA}, s{sT1} offen {rflags} lds")
            if e < 13: I(f"s_add_u32 s{sT0}, s{sT0}, 1")
        if the: a.label("L_w2s")
        if wd and wb: I("s_barrier")
        if wd: w1_dma()
        I(f"s_cmp_eq_u32 s{sWAVE}, 5")
        I("s_cbranch_scc0 L_mdd")
        srd(TA, 46, 1728 * 2)
        I(f"s_lshl_b32 s{sT0}, s{sTB}, 6")
        I(f"v_and_b32 v{T+4}, 31, v{vLANE}")
        I(f"v_lshlrev_b32 v{T+4}, 1, v{T+4}")
        I(f"v_mov_b32 v{vB1}, 0")
        I(f"buffer_load_short_d16_hi v{vB1}, v{T+4}, {TA}, s{sT0} offen")
        a.label("L_mdd")
        if dd:
            I("s_cmp_eq_u32 s97, 0")
            I("s_mov_b32 s97, 1")
            I("s_cbranch_scc0 L_dd2")
            I("s_waitcnt vmcnt(0)")
            I("s_branch L_dd")
            a.label("L_dd2")
        TS(25)
        u0, u1, u2 = T + 5, T + 6, T + 7
        I(f"s_mov_b32 s{sLB}, s{sYM}")
        I(f"s_lshl_b32 s{sT1}, s{sT3}, 1")
        rank_off(sT0, sT1, sT2)
        I(f"v_and_b32 v{u0}, 15, v{vLANE}")
        I(f"v_lshlrev_b32 v{u1}, 6, v{u0}")
        I(f"v_lshrrev_b32 v{u2}, 4, v{vLANE}")
        I(f"v_lshl_add_u32 v{u1}, v{u2}, 4, v{u1}")
        I(f"v_add_u32 v{vGZ}, s{sT0}, v{u1}")
        I(f"s_lshl_b32 s{sT0}, s{sTB}, 7")
        I(f"s_add_u32 s{sT0}, s{sT0}, {YOFF}")
        I(f"s_lshl_b32 s{sT1}, s{sWAVE}, 14")
        I(f"s_add_u32 s{sT1}, s{sT1}, s{sT0}")
        I(f"v_lshlrev_b32 v{vA2}, 2, v{vLANE}")
        I(f"v_add_u32 v{vA2}, s{sT1}, v{vA2}")
        I(f"s_lshr_b32 s{sT1}, s{sWAVE}, 1")
        I(f"s_add_u32 s{sT1}, s{sT1}, 6")
        I(f"s_sub_u32 s{sF2o}, s{sT1}, s{sWAVE}")
        I(f"s_lshl_b32 s{sF2o}, s{sF2o}, 12")
        I(f"s_lshl_b32 s{sT1}, s{sT1}, 14")
        I(f"s_add_u32 s{sT0}, s{sT0}, s{sT1}")
        I(f"s_and_b32 s{sF2x}, s{sWAVE}, 1")
        I(f"s_lshl_b32 s{sF2x}, s{sF2x}, 6")
        I(f"s_add_u32 s{sT0}, s{sT0}, s{sF2x}")
        I(f"s_cmp_lt_u32 s{sWAVE}, 4")
        I(f"s_cselect_b32 s{sT0}, {BIG:#x}, s{sT0}")
        setexec(0, 0xFFFF)
        I(f"v_lshl_add_u32 v{vA2}, v{u0}, 2, s{sT0}")
        setexec(0, 0xFFFF0000)
        I(f"v_mov_b32 v{vA2}, {BIG:#x}")
        setexec(0xFFFFFFFF, 0xFFFFFFFF)
        I(f"s_lshl_b32 s{sT0}, s{sWAVE}, 12")
        I(f"s_add_u32 s{sT0}, s{sT0}, {L_W2}")
        tr_addr(vA3, 128, sT0, u1)
        I(f"v_bfe_u32 v{u1}, v{vLANE}, 3, 1")
        I(f"v_bfe_u32 v{u2}, v{vLANE}, 4, 1")
        I(f"v_lshl_add_u32 v{u2}, v{u2}, 1, v{u1}")
        I(f"v_lshl_add_u32 v{vA3}, v{u2}, 5, v{vA3}")
        I(f"v_mul_u32_u24 v{u1}, 0xaaaa, v{u1}")
        I(f"v_or_b32 v{vSEL+5}, 0x4444, v{u1}")
        I(f"v_bfe_u32 v{u1}, v{vLANE}, 4, 1")
        I(f"v_and_b32 v{u2}, 2, v{vLANE}")
        I(f"v_lshlrev_b32 v{u2}, 3, v{u2}")
        I(f"v_lshl_add_u32 v{vA1}, v{u1}, 5, v{u2}")
        I(f"s_mul_i32 s{sT0}, s{sWAVE}, {PP}")
        I(f"v_lshrrev_b32 v{u2}, 5, v{vLANE}")
        I(f"v_lshlrev_b32 v{u2}, 7, v{u2}")
        I(f"v_lshl_add_u32 v{u2}, v{u0}, 3, v{u2}")
        I(f"v_lshl_add_u32 v{u2}, v{u1}, 2, v{u2}")
        I(f"v_add_u32 v{vPW}, s{sT0}, v{u2}")
        I("s_branch L_W1")

    if not m2:
        if instr: I(f"s_mov_b32 s{sNT}, s{sTB}")
        srd(TB, 44, 640 * 3456)
        I(f"s_mul_i32 s{sT1}, s{sWAVE}, {128*3456}")
        I(f"s_lshl_b32 s{sT0}, s{sTB}, 6")
        I(f"s_add_u32 s{sRB}, s{sT0}, s{sT1}")
        I(f"s_mov_b32 s{sRSTEP}, {16*3456}")
        I(f"s_mov_b32 s{sRN}, 8")
        I(f"v_lshrrev_b32 v{m0_}, 2, v{vLANE}")
        I(f"v_mul_u32_u24 v{m0_}, 3456, v{m0_}")
        I(f"v_and_b32 v{m1_}, 3, v{vLANE}")
        I(f"v_lshl_add_u32 v{vRDMA}, v{m1_}, 4, v{m0_}")
        I(f"s_add_u32 s{sT0}, s{sT0}, {YOFF}")
        if y128:
            I(f"s_lshl_b32 s{sT1}, s{sTB}, 6")
            I(f"s_add_u32 s{sT0}, s{sT0}, s{sT1}")
            I(f"s_lshl_b32 s{sT1}, s{sWAVE}, 14")
            I(f"s_add_u32 s{sT0}, s{sT0}, s{sT1}")
            I(f"v_bfe_u32 v{m0_}, v{vLANE}, 2, 2")
            I(f"v_lshlrev_b32 v{m0_}, 15, v{m0_}")
            I(f"v_and_b32 v{m1_}, 3, v{vLANE}")
            I(f"v_lshl_add_u32 v{m0_}, v{m1_}, 5, v{m0_}")
            I(f"v_lshrrev_b32 v{m1_}, 4, v{vLANE}")
            I(f"v_lshl_add_u32 v{m0_}, v{m1_}, 3, v{m0_}")
            I(f"v_add_u32 v{vA2}, s{sT0}, v{m0_}")
            I(f"s_lshl_b32 s{sT0}, s{sWAVE}, 12")
            I(f"s_add_u32 s{sT0}, s{sT0}, {L_W2}")
            tr_addr(vA3, 128, sT0, m0_)
            I(f"v_bfe_u32 v{m0_}, v{vLANE}, 3, 1")
            I(f"v_bfe_u32 v{m1_}, v{vLANE}, 4, 1")
            I(f"v_lshl_add_u32 v{m0_}, v{m1_}, 1, v{m0_}")
            I(f"v_lshl_add_u32 v{vA3}, v{m0_}, 5, v{vA3}")
            I(f"v_xor_b32 v{vA1}, 32, v{vA3}")
            I(f"v_xor_b32 v{vA0}, 64, v{vA3}")
            I(f"s_cmp_ge_u32 s{sWAVE}, 6")
            I(f"s_cselect_b32 s{sYM}, 255, 15")
            I(f"s_mul_i32 s{sYM}, s{sYM}, 0x10001")
            I(f"s_mov_b32 s{sYM+1}, s{sYM}")
        elif y64:
            I(f"s_and_b32 s{sT1}, s{sWAVE}, 1")
            I(f"s_lshl_b32 s{sT1}, s{sT1}, 12")
            I(f"s_add_u32 s{sT0}, s{sT0}, s{sT1}")
            I(f"s_lshr_b32 s{sT2}, s{sWAVE}, 1")
            I(f"s_lshl_b32 s{sT1}, s{sT2}, 14")
            I(f"s_add_u32 s{sT0}, s{sT0}, s{sT1}")
            I(f"v_bfe_u32 v{m0_}, v{vLANE}, 1, 3")
            I(f"v_lshlrev_b32 v{m0_}, 16, v{m0_}")
            I(f"v_and_b32 v{m1_}, 1, v{vLANE}")
            I(f"v_lshl_add_u32 v{m0_}, v{m1_}, 5, v{m0_}")
            I(f"v_lshrrev_b32 v{m1_}, 4, v{vLANE}")
            I(f"v_lshl_add_u32 v{m0_}, v{m1_}, 3, v{m0_}")
            I(f"v_add_u32 v{vA2}, s{sT0}, v{m0_}")
            I(f"s_lshl_b32 s{sT0}, s{sT2}, 12")
            I(f"s_add_u32 s{sT0}, s{sT0}, {L_W2}")
            tr_addr(vA3, 128, sT0, m0_)
            I(f"v_bfe_u32 v{m0_}, v{vLANE}, 3, 1")
            I(f"v_bfe_u32 v{m1_}, v{vLANE}, 4, 1")
            I(f"v_lshl_add_u32 v{m0_}, v{m1_}, 1, v{m0_}")
            I(f"s_and_b32 s{sT1}, s{sWAVE}, 1")
            I(f"s_lshl_b32 s{sT1}, s{sT1}, 1")
            I(f"v_xor_b32 v{m0_}, s{sT1}, v{m0_}")
            I(f"v_lshl_add_u32 v{vA3}, v{m0_}, 5, v{vA3}")
            I(f"v_xor_b32 v{vA1}, 32, v{vA3}")
            I(f"s_cmp_lt_u32 s{sWAVE}, 4")
            I(f"s_cselect_b32 s{sYM}, 63, 15")
            I(f"s_mul_i32 s{sYM}, s{sYM}, 0x10001")
            I(f"s_mov_b32 s{sYM+1}, s{sYM}")
        else:
            I(f"s_and_b32 s{sT1}, s{sWAVE}, 2")
            I(f"s_lshl_b32 s{sT1}, s{sT1}, 11")
            I(f"s_add_u32 s{sT0}, s{sT0}, s{sT1}")
            I(f"s_lshr_b32 s{sT2}, s{sWAVE}, 2")
            I(f"s_lshl_b32 s{sT1}, s{sT2}, 14")
            I(f"s_add_u32 s{sT0}, s{sT0}, s{sT1}")
            I(f"s_and_b32 s{sT1}, s{sWAVE}, 1")
            I(f"s_lshl_b32 s{sT1}, s{sT1}, 5")
            I(f"s_add_u32 s{sT0}, s{sT0}, s{sT1}")
            I(f"v_and_b32 v{m0_}, 15, v{vLANE}")
            I(f"v_lshlrev_b32 v{m0_}, 15, v{m0_}")
            I(f"v_lshrrev_b32 v{m1_}, 4, v{vLANE}")
            I(f"v_lshl_add_u32 v{m0_}, v{m1_}, 3, v{m0_}")
            I(f"v_add_u32 v{vA2}, s{sT0}, v{m0_}")
            I(f"s_lshl_b32 s{sT0}, s{sT2}, 12")
            I(f"s_add_u32 s{sT0}, s{sT0}, {L_W2}")
            tr_addr(vA3, 128, sT0, m0_)
            I(f"v_bfe_u32 v{m0_}, v{vLANE}, 3, 1")
            I(f"v_bfe_u32 v{m1_}, v{vLANE}, 4, 1")
            I(f"v_lshl_add_u32 v{m0_}, v{m1_}, 1, v{m0_}")
            I(f"s_and_b32 s{sT1}, s{sWAVE}, 3")
            I(f"v_xor_b32 v{m0_}, s{sT1}, v{m0_}")
            I(f"v_lshl_add_u32 v{vA3}, v{m0_}, 5, v{vA3}")
        if th1:
            I(f"s_cmp_eq_u32 s{sWAVE}, 6")
            I("s_cbranch_scc0 L_g1")
            ml_gate(th1)
            a.label("L_g1")
        if emd: I(f"s_waitcnt vmcnt({40 // emw})")
        I("s_barrier")
        I(f"s_cmp_ge_u32 s{sWAVE}, 5")
        I("s_cbranch_scc1 L_w2d")
        if not emd:
            role_dma()
            TS(25)
        I("s_branch L_W1")
        a.label("L_w2d")
        if th2 > th1:
            ml_gate(th2)
        if not emd:
            I(f"s_mul_i32 s{sT3}, s{sTB}, {32*1280}")
            I(f"s_sub_u32 s{sT0}, s{sWAVE}, 5")
            I(f"s_mul_i32 s{sT0}, s{sT0}, 13")
            I(f"v_lshrrev_b32 v{m0_}, 3, v{vLANE}")
            I(f"v_mul_u32_u24 v{m2_}, 1280, v{m0_}")
            I(f"v_and_b32 v{m1_}, 7, v{vLANE}")
            I(f"v_lshlrev_b32 v{m1_}, 4, v{m1_}")
            I(f"v_bfe_u32 v{m0_}, v{vLANE}, 4, 1")
            I(f"v_lshlrev_b32 v{m0_}, 5, v{m0_}")
            I(f"v_xor_b32 v{m1_}, v{m1_}, v{m0_}")
            I(f"s_and_b32 s{sT1}, s{sT0}, 1")
            I(f"s_lshl_b32 s{sT1}, s{sT1}, 6")
            I(f"v_xor_b32 v{m1_}, s{sT1}, v{m1_}")
            I(f"v_xor_b32 v{m0_}, 64, v{m1_}")
            I(f"v_add_u32 v{m3_}, v{m2_}, v{m0_}")
            I(f"v_add_u32 v{m2_}, v{m2_}, v{m1_}")
            srd(TA, 48, 1728 * 1280)
            for e in range(14):
                I(f"s_lshl_b32 s{sT1}, s{sT0}, 10")
                I(f"s_add_u32 m0, s{sT1}, {L_W2}")
                I(f"s_and_b32 s{sT1}, s{sT0}, 3")
                I(f"s_mul_i32 s{sT1}, s{sT1}, {8*1280}")
                I(f"s_lshr_b32 s{sT2}, s{sT0}, 2")
                I(f"s_lshl_b32 s{sT2}, s{sT2}, 7")
                I(f"s_add_u32 s{sT1}, s{sT1}, s{sT2}")
                I(f"s_add_u32 s{sT1}, s{sT1}, s{sT3}")
                I(f"buffer_load_dwordx4 v{(m2_, m3_)[e & 1]}, {TA}, s{sT1} offen {rflags} lds")
                if e < 13: I(f"s_add_u32 s{sT0}, s{sT0}, 1")
        srd(TA, 46, 1728 * 2)
        I(f"s_lshl_b32 s{sT0}, s{sTB}, 6")
        I(f"v_and_b32 v{m0_}, 31, v{vLANE}")
        I(f"v_lshlrev_b32 v{m0_}, 1, v{m0_}")
        I(f"v_mov_b32 v{vB1}, 0")
        I(f"buffer_load_short_d16_hi v{vB1}, v{m0_}, {TA}, s{sT0} offen")
        for b_ in HB5:
            for i in range(4):
                I(f"v_mov_b32 v{b_+i}, 0")
        TS(25)
        I("s_branch L_W1")

    def role_base():
        I(f"s_lshl_b32 s{sT0}, s{sWAVE}, 13")
        I(f"s_add_u32 s{sT0}, s{sT0}, {L_ROLE}")

    a.label("L_WO")
    if g1:
        if pth:
            I(f"s_cmp_eq_u32 s{sWAVE}, 6")
            I("s_cbranch_scc0 L_G1")
            I(f"s_cmp_eq_u32 s{sIT}, 0")
            I("s_cbranch_scc0 L_G1")
            ml_gate(pth)
            a.label("L_G1")
        if g1 == 2:
            I(f"s_cmp_eq_u32 s{sIT}, 0")
            I("s_cbranch_scc1 L_G1b")
            I("s_barrier")
            I("s_branch L_WO0")
            a.label("L_G1b")
        else:
            I("s_barrier")
    I(f"s_cmp_eq_u32 s{sIT}, 0")
    I("s_cbranch_scc0 L_WO0")
    role_base()
    tr_addr(T + 47, 64, sT0)
    I("s_waitcnt vmcnt(0)")
    for ks in range(2):
        for t in range(2):
            b = vRB + 4 * (ks * 2 + t)
            o = ks * 2048 + t * 32
            I(f"ds_read_b64_tr_b16 v[{b}:{b+1}], v{T+47} offset:{o}")
            I(f"ds_read_b64_tr_b16 v[{b+2}:{b+3}], v{T+47} offset:{o+256}")
    I("s_waitcnt lgkmcnt(0)")
    TS(15)
    a.label("L_WO0")
    I(f"s_cmp_eq_u32 s{sWAVE}, 5")
    I("s_cbranch_scc0 L_WO1")
    if q2 == 2:
        I(f"s_cmp_eq_u32 s{sIT}, 0")
        I("s_cbranch_scc1 L_WO2")
        I(f"buffer_load_ushort v{vXF}, v{vXFA}, {WS}, 0 offen sc1")
        a.label("L_WO2")
    I("s_waitcnt vmcnt(0)")
    I(f"v_lshlrev_b32 v{vXF}, 16, v{vXF}")
    a.label("L_WO1")
    A0, Ma, La = T + 44, T + 48, T + 49
    Dw = [[T + 8, T + 12], [T + 16, T + 20]]
    wMX, wE, wT, wL2E, wR0, wR1 = [T + 24 + i for i in range(6)]
    I(f"v_mov_b32 v{wL2E}, s{sL2E}")
    if zh:
        zfa = T + 41
        I(f"s_lshl_b32 s{sT0}, s{sR}, 10")
        I(f"s_lshl_b32 s{sT1}, s{sX}, 7")
        I(f"s_add_u32 s{sT0}, s{sT0}, s{sT1}")
        I(f"s_add_u32 s{sT0}, s{sT0}, {ZOFF + 0x4800}")
        I(f"s_cmp_lt_u32 s{sR}, 6")
        I(f"s_cselect_b32 s{sT0}, s{sT0}, {BIG:#x}")
        I(f"s_and_b32 s{sT1}, s{sX}, 3")
        I(f"s_lshl_b32 s{sT1}, s{sT1}, 1")
        I(f"s_cmp_eq_u32 s{sT1}, s{sWAVE}")
        I(f"s_cselect_b32 s{sT0}, s{sT0}, {BIG:#x}")
        I(f"v_lshlrev_b32 v{zfa}, 13, v{vLANE}")
        I(f"v_add_u32 v{zfa}, s{sT0}, v{zfa}")
        I(f"v_mov_b32 v{zfa+1}, {BIG:#x}")
        I(f"v_cmp_gt_u32 vcc, 2, v{vLANE}")
        I(f"v_cndmask_b32 v{zfa}, v{zfa+1}, v{zfa}, vcc")
        zst = f"buffer_store_dword v{wL2E}, v{zfa}, {WS}, s{sREG} offen sc1"
    if pl == 1:
        light(f"buffer_load_dword v{Ma}, v{vA2}, {WS}, s{sREG} offen sc1", Ma)
    if pl == 2:
        light(f"buffer_load_dword v{A0}, v{vA0}, {WS}, s{sREG} offen sc1", A0, (0xFF, 0))
    poll([f"buffer_load_dwordx4 {vr(A0)}, v{vA0}, {WS}, s{sREG} offen sc1",
          f"buffer_load_dwordx2 v[{Ma}:{La}], v{vA2}, {WS}, s{sREG} offen sc1"], list(range(A0, A0 + 6)),
         groups=[range(A0, A0 + 4), range(A0 + 4, A0 + 6)], hop=1)
    TS(16)
    seq = [
        f"v_max_f32_dpp v{wMX}, v{Ma}, v{Ma} quad_perm:[1,0,3,2] row_mask:0xf bank_mask:0xf",
        f"v_max_f32_dpp v{wMX}, v{wMX}, v{wMX} quad_perm:[2,3,0,1] row_mask:0xf bank_mask:0xf",
        f"v_max_f32_dpp v{wMX}, v{wMX}, v{wMX} row_half_mirror row_mask:0xf bank_mask:0xf",
        f"v_sub_f32 v{wE}, v{Ma}, v{wMX}",
    ]
    k = 0
    for t in range(2):
        for ks in range(2):
            I(f"v_mfma_f32_16x16x32_bf16 {vr(Dw[t][ks])}, {vr(A0)}, {vr(vRB+4*(ks*2+t))}, 0")
            if zh == 1 and k == 0: I(zst)
            I(seq[k]); k += 1
    I(f"v_mul_f32 v{wE}, v{wE}, v{wL2E}")
    I(f"v_exp_f32 v{wE}, v{wE}")
    I(f"v_mul_f32 v{wT}, v{wE}, v{La}")
    mrg = [f"v_mov_b32_dpp v{Dw[t][0]+i}, v{Dw[t][1]+i} quad_perm:[0,1,2,3] row_mask:0xc bank_mask:0xf"
           for t in range(2) for i in range(4)]
    I(mrg[0]); I(mrg[1])
    I(f"v_add_f32_dpp v{wT}, v{wT}, v{wT} quad_perm:[1,0,3,2] row_mask:0xf bank_mask:0xf")
    I(mrg[2]); I(mrg[3])
    I(f"v_add_f32_dpp v{wT}, v{wT}, v{wT} quad_perm:[2,3,0,1] row_mask:0xf bank_mask:0xf")
    I(f"v_mov_b32_dpp v{wE}, v{wE} row_ror:4 row_mask:0xf bank_mask:0xa")
    I(mrg[4])
    I(f"v_add_f32_dpp v{wT}, v{wT}, v{wT} row_half_mirror row_mask:0xf bank_mask:0xf")
    I(mrg[5])
    I(f"v_rcp_f32 v{wT}, v{wT}")
    I(mrg[6]); I(mrg[7])
    for i in range(4):
        for t in range(2):
            D = Dw[t][0]; R = (wR0, wR1)[t]
            op = "v_mul_f32_dpp" if i == 0 else "v_fmac_f32_dpp"
            I(f"{op} v{R}, v{wE}, v{D+i} quad_perm:[{i},{i},{i},{i}] row_mask:0xf bank_mask:0xf")
    I(f"v_mul_f32 v{wR0}, v{wR0}, v{wT}")
    I(f"v_mul_f32 v{wR1}, v{wR1}, v{wT}")
    I(f"ds_write_b32 v{vPW}, v{wR0} offset:{L_PB2}")
    I(f"ds_write_b32 v{vPW}, v{wR1} offset:{L_PB2+256}")
    if zh == 2: I(zst)
    I("s_waitcnt lgkmcnt(0)")
    I("s_barrier")
    I(f"s_cmp_eq_u32 s{sWAVE}, 5")
    I("s_cbranch_scc0 L_next")
    if p5 & 2: I("s_setprio 3")
    TS(17)
    reduce_read(8, L_PB2)
    I("s_waitcnt lgkmcnt(0)")
    I(f"v_add_f32 v{T+30}, v{T+30}, v{vXF}")
    reduce_sum(8, rTOT)
    pack_pairs(rTOT, rU)
    I(f"v_mov_b32 v{T}, v{rU}")
    I(f"v_mov_b32_dpp v{T+1}, v{rU} quad_perm:[2,2,2,2] row_mask:0xf bank_mask:0xf")
    I(f"v_mov_b32_dpp v{T+2}, v{rU} row_shl:4 row_mask:0xf bank_mask:0xf")
    I(f"v_mov_b32_dpp v{T+3}, v{rU} row_shl:6 row_mask:0xf bank_mask:0xf")
    setexec(0x01010101, 0)
    I(f"buffer_store_dwordx4 {vr(T)}, v{vRP}, {WS}, s{sREG} offen sc1")
    if dual:
        I(f"buffer_store_dwordx4 {vr(T)}, v{vRP}, {WS}, s{sREG2} offen sc1")
    setexec(0xFFFFFFFF, 0xFFFFFFFF)
    TS(18)
    if p5 & 2: I("s_setprio 0")
    I("s_branch L_next")

    if m2:
        D0, D1, S1, S2, HB, D2 = T, T + 4, T + 8, T + 12, T + 16, T + 44
        IDW = vSEL + 5
        def it0(fn):
            l = a.newlab("Li")
            I(f"s_cmp_eq_u32 s{sIT}, 0")
            I(f"s_cbranch_scc0 {l}")
            fn()
            a.label(l)
        def w2_frags(nb, x0):
            for e in range(2 * nb):
                b = (F0, F0 + 4, F1, F1 + 4, F2, F2 + 4)[e]
                va = vA3
                if e:
                    va = x0 + (e & 1)
                    if e < 4: I(f"v_xor_b32 v{va}, {32*e}, v{vA3}")
                    elif e == 4:
                        I(f"v_xor_b32 v{va}, s{sF2x}, v{vA3}")
                        I(f"v_add_u32 v{va}, s{sF2o}, v{va}")
                    else: I(f"v_xor_b32 v{va}, 32, v{x0}")
                I(f"ds_read_b64_tr_b16 v[{b}:{b+1}], v{va}")
                I(f"ds_read_b64_tr_b16 v[{b+2}:{b+3}], v{va} offset:512")
        def w2_tail(nb):
            I("s_barrier")
            setexec(0x00050005, 0x000A000A)
            for e in range(nb):
                I(f"ds_read_b128 {vr(HB+4*e)}, v{vA1} offset:{L_H}")
                I("s_lshl_b64 exec, exec, 4" if e < nb - 1 else "s_mov_b64 exec, -1")
            TS(23)
            for e in range(nb):
                I(f"s_waitcnt lgkmcnt({nb-1-e})")
                I(f"v_smfmac_f32_16x16x64_bf16 {vr(D2)}, {vr(HB+4*e)}, {vr((F0, F1, F2)[e], 8)}, v{IDX}")
            I(f"v_pk_add_f32 v[{D2}:{D2+1}], v[{D2}:{D2+1}], v[{D2+2}:{D2+3}]")
            I(f"v_cvt_pk_bf16_f32 v{D2}, v{D2}, v{D2+1}")
            I(f"v_min_u32 v{D2}, 0xfffffffe, v{D2}")
            I(f"buffer_store_dword v{D2}, v{vA2}, {WS}, s{sREG} offen sc1")
            I(f"buffer_store_dword v{D2}, v{vA2}, {WS}, s{sREG2} offen sc1")
            TS(24)
            I("s_branch L_next")
        def zero(rs):
            for r_ in rs: I(f"v_mov_b32 v{r_}, 0")
        def gwave(ns, nb):
            lab = a.newlab("Lgw")
            ones()
            I(f"s_cmp_eq_u32 s{sIT}, 0")
            I(f"s_cbranch_scc0 {lab}a")
            x0, x1 = T + 46, T + 47
            I(f"v_bfe_u32 v{x0}, v{vLANE}, 3, 1")
            I(f"v_lshlrev_b32 v{x0}, 5, v{x0}")
            I(f"v_bfe_u32 v{x1}, v{vLANE}, 2, 1")
            I(f"v_add_u32 v{x0}, v{x0}, v{x1}")
            I(f"v_lshrrev_b32 v{x1}, 4, v{vLANE}")
            I(f"v_lshl_add_u32 v{x0}, v{x1}, 2, v{x0}")
            I(f"v_lshlrev_b32 v{x0}, 6, v{x0}")
            I(f"v_and_b32 v{x1}, 3, v{vLANE}")
            I(f"v_lshl_add_u32 v{x0}, v{x1}, 3, v{x0}")
            I(f"v_add_u32 v{x0}, s{sLB}, v{x0}")
            I(f"s_lshl_b32 s{sT0}, s{sWAVE}, 7")
            I(f"v_and_b32 v{x1}, 15, v{vLANE}")
            I(f"v_lshlrev_b32 v{x1}, 2, v{x1}")
            I(f"v_add_u32 v{x1}, s{sT0}, v{x1}")
            I(f"s_waitcnt vmcnt({0 if ns == 2 or wd else 6})")
            for sg in range(ns):
                for t in range(2):
                    for qd in range(2):
                        for jj in range(2):
                            b = vRB + 16 * sg + 8 * t + 4 * qd + 2 * jj
                            I(f"ds_read_b64_tr_b16 v[{b}:{b+1}], v{x0} offset:{sg*4096 + qd*1024 + jj*128 + t*32}")
                I("s_waitcnt lgkmcnt(0)")
            for t in range(2):
                for k_ in range(2 * ns):
                    b = vRB + 16 * (k_ >> 1) + 8 * t + 4 * (k_ & 1)
                    I(f"v_mfma_f32_16x16x32_bf16 {vr(T+4*t)}, {vr(ONES)}, {vr(b)}, {'0' if k_ == 0 else vr(T+4*t)}")
            I(f"ds_write_b32 v{x1}, v{T} offset:{L_CS}")
            I(f"ds_write_b32 v{x1}, v{T+4} offset:{L_CS+64}")
            TS(15)
            if wd == 2:
                I("s_waitcnt lgkmcnt(0)")
                I("s_barrier")
            else:
                I(f"s_branch {lab}b")
            a.label(lab + "a")
            w2_frags(nb, T + 50)
            a.label(lab + "b")
            zero(list(range(D0, D0 + 12)) + list(range(HB, HB + 4 * nb)) + list(range(D2, D2 + 4)) + (list(range(XA + 4, XA + 8)) if ns == 1 else []))
            I(f"s_add_u32 s{sT1}, s{sREG}, {ZOFF}")
            I(f"s_add_u32 s{sT1}, s{sT1}, s{sNEAR}")
            I(f"s_mov_b32 s{sF}, 0x00ff00ff")
            I(f"s_mov_b32 s{sF+1}, 0xff00ff00")
            if yh >= 20 and ns == 1:
                yfa = T + 49
                I(f"s_mul_i32 s{sT0}, s{sTB}, 205")
                I(f"s_lshr_b32 s{sT0}, s{sT0}, 11")
                I(f"s_mul_i32 s{sT2}, s{sT0}, 10")
                I(f"s_sub_u32 s{sT2}, s{sTB}, s{sT2}")
                I(f"s_lshl_b32 s{sT2}, s{sT2}, 14")
                I(f"s_lshl_b32 s{sT0}, s{sT0}, 7")
                I(f"s_add_u32 s{sT0}, s{sT0}, s{sT2}")
                I(f"s_add_u32 s{sT0}, s{sT0}, {YOFF + 56*128}")
                I(f"s_cmp_eq_u32 s{sWAVE}, 7")
                I(f"s_cselect_b32 s{sT0}, s{sT0}, {BIG:#x}")
                I(f"v_lshlrev_b32 v{yfa}, 13, v{vLANE}")
                I(f"v_add_u32 v{yfa}, s{sT0}, v{yfa}")
                I(f"v_mov_b32 v{XA}, {BIG:#x}")
                I(f"v_cmp_gt_u32 vcc, 2, v{vLANE}")
                I(f"v_cndmask_b32 v{yfa}, v{XA}, v{yfa}, vcc")
                yst = f"buffer_store_dword v{yfa}, v{yfa}, {WS}, s{sREG} offen sc1"
            if zh:
                I(f"v_lshlrev_b32 v{XA+1}, 7, v{vLANE}")
                I(f"s_lshl_b32 s{sT0}, s{sWAVE}, 10")
                I(f"s_add_u32 s{sT0}, s{sT0}, s{sT1}")
                I(f"s_add_u32 s{sT0}, s{sT0}, {0x4800 if ns == 2 else 0x4000}")
                light_all(f"buffer_load_dword v{XA}, v{XA+1}, {WS}, s{sT0} offen sc1", XA, (zhm, 0))
            elif zl:
                light(f"buffer_load_dword v{XA}, v{vGZ}, {WS}, s{sT1} offen sc1", XA, (zl, 0))
            poll([f"buffer_load_dwordx4 {vr(XA+4*k_)}, v{vGZ}, {WS}, s{sT1} offen offset:{2*ZR*k_} sc1" for k_ in range(ns)],
                 [XA + 4 * k_ for k_ in range(ns)], groups=[[XA + 4 * k_] for k_ in range(ns)], hop=2)
            TS(19)
            for k_ in range(ns):
                I(f"v_mfma_f32_16x16x32_bf16 {vr(S2)}, {vr(XA+4*k_)}, {vr(XA+4*k_)}, {vr(S2) if k_ else '0'}")
            I(f"v_smfmac_f32_16x16x64_bf16 {vr(S1)}, {vr(ONES)}, {vr(XA, 8)}, v{IDW}")
            if yh == 20 and ns == 1: I(yst)
            st = [f"v_pk_add_f32 v[{S2}:{S2+1}], v[{S2}:{S2+1}], v[{S2+2}:{S2+3}]",
                  f"v_add_f32 v{S2}, v{S2}, v{S2+1}",
                  f"v_cndmask_b32 v{S1+1}, 0, v{S2}, s[{sF}:{sF+1}]"]
            for m_ in ("quad_perm:[1,0,3,2]", "quad_perm:[2,3,0,1]", "row_half_mirror", "row_mirror"):
                st += [f"v_add_f32_dpp v{S1}, v{S1}, v{S1} {m_} {DPF}", f"v_add_f32_dpp v{S1+1}, v{S1+1}, v{S1+1} {m_} {DPF}"]
            st += [f"v_add_f32_dpp v{S1+1}, v{S1+1}, v{S1+1} row_bcast:15 row_mask:0xa bank_mask:0xf",
                   f"v_add_f32_dpp v{S1}, v{S1}, v{S1} row_bcast:31 row_mask:0xc bank_mask:0xf",
                   f"v_add_f32_dpp v{S1+1}, v{S1+1}, v{S1+1} row_bcast:31 row_mask:0xc bank_mask:0xf"]
            for k_ in range(ns):
                for t in range(2):
                    I(f"v_smfmac_f32_16x16x64_bf16 {vr(D0+4*t)}, {vr(XA+4*k_)}, {vr(vRB+16*k_+8*t, 8)}, v{IDW}")
                    if ns == 2 and k_ == 1 and t == 0:
                        I(st.pop(0)); I(st.pop(0))
            dp = [f"v_pk_add_f32 v[{D0}:{D0+1}], v[{D0}:{D0+1}], v[{D0+2}:{D0+3}]",
                  f"v_pk_add_f32 v[{D1}:{D1+1}], v[{D1}:{D1+1}], v[{D1+2}:{D1+3}]",
                  f"v_add_f32 v{D0}, v{D0}, v{D0+1}",
                  f"v_add_f32 v{D1}, v{D1}, v{D1+1}",
                  f"v_permlane32_swap_b32 v{D0}, v{D1}",
                  f"v_add_f32 v{D0}, v{D0}, v{D1}",
                  f"ds_write_b32 v{vPW}, v{D0} offset:{L_PB1}"]
            n1 = 5 if ns == 2 else 7
            for x_ in st[:n1]: I(x_)
            st = st[n1:]
            while st or dp:
                if dp: I(dp.pop(0))
                if st: I(st.pop(0))
            setexec(0, 0x80000000)
            I(f"ds_write_b64 v{vPW}, v[{S1}:{S1+1}] offset:{L_PB1 + 260}")
            setexec(0xFFFFFFFF, 0xFFFFFFFF)
            if yh == 21 and ns == 1: I(yst)
            I("s_waitcnt lgkmcnt(0)")
            TS(20)
            I("s_barrier")
            if wd != 2: it0(lambda: (w2_frags(nb, T + 50), I("s_waitcnt lgkmcnt(0)")))
            w2_tail(nb)
        a.label("L_W1")
        I(f"s_cmp_lt_u32 s{sWAVE}, 4")
        I("s_cbranch_scc0 L_W4")
        gwave(2, 2)
        a.label("L_W4")
        I(f"s_cmp_lt_u32 s{sWAVE}, 6")
        I("s_cbranch_scc1 L_W45")
        gwave(1, 3)
        a.label("L_W45")
        zero(list(range(HB, HB + 12)) + list(range(D2, D2 + 4)))
        I(f"s_cmp_eq_u32 s{sWAVE}, 5")
        I("s_cbranch_scc1 L_W5")
        I("s_waitcnt vmcnt(0)")
        TS(37)
        if wd == 2:
            it0(lambda: I("s_barrier"))
            w2_frags(3, T + 50)
            if 0 < yh < 20:
                I(f"s_mul_i32 s{sT0}, s{sTB}, 205")
                I(f"s_lshr_b32 s{sT0}, s{sT0}, 11")
                I(f"s_mul_i32 s{sT1}, s{sT0}, 10")
                I(f"s_sub_u32 s{sT1}, s{sTB}, s{sT1}")
                I(f"s_lshl_b32 s{sT1}, s{sT1}, 14")
                I(f"s_lshl_b32 s{sT0}, s{sT0}, 7")
                I(f"s_add_u32 s{sT0}, s{sT0}, s{sT1}")
                I(f"s_add_u32 s{sT0}, s{sT0}, s{sREG}")
                I(f"s_add_u32 s{sT0}, s{sT0}, {YOFF + 56*128}")
                I(f"v_lshlrev_b32 v{T+49}, 13, v{vLANE}")
                setexec(3, 0)
            I("s_waitcnt lgkmcnt(0)")
            I("s_barrier")
            if 0 < yh < 20:
                for _ in range(yh - 1): I("s_nop 15")
                I(f"buffer_store_dword v{T+49}, v{T+49}, {WS}, s{sT0} offen sc1")
                setexec(0xFFFFFFFF, 0xFFFFFFFF)
        else:
            I("s_barrier")
            w2_frags(3, T + 50)
            I("s_waitcnt lgkmcnt(0)")
        I("s_branch L_W1t")
        a.label("L_W5")
        EPS = 1e-5
        ra, rz, rh, rK, rE, rc = T + 48, T + 49, T + 40, T + 32, T + 34, T + 28
        SB, CB = vRB, vRB + 12
        I(f"v_mov_b32 v{rK}, {f2u(math.sqrt(1 + EPS) / 640):#x}")
        I(f"v_mov_b32 v{rK+1}, {f2u((1 + EPS) / 640):#x}")
        I(f"v_mov_b32 v{rE}, 0")
        I(f"v_mov_b32 v{rE+1}, {f2u(EPS * EPS):#x}")
        I(f"v_mov_b32 v{rC1}, {f2u(GC1):#x}")
        I(f"v_mov_b32 v{rC2}, {f2u(GC2):#x}")
        I(f"v_lshlrev_b32 v{ra}, 3, v{vLANE}")
        I(f"v_lshlrev_b32 v{rc}, 2, v{vLANE}")
        I(f"v_mov_b32 v{rz}, 0")
        I(f"v_and_b32 v{rh}, 17, v{vLANE}")
        I(f"v_and_b32 v{rT}, 2, v{vLANE}")
        I(f"v_lshl_add_u32 v{rh}, v{rT}, 2, v{rh}")
        I(f"v_bfe_u32 v{rT}, v{vLANE}, 2, 2")
        I(f"v_lshl_add_u32 v{rh}, v{rT}, 1, v{rh}")
        I(f"v_lshlrev_b32 v{rh}, 1, v{rh}")
        I("s_waitcnt vmcnt(0)")
        GW = (0, 1, 2, 3, 6, 7)
        def cs0():
            for i, v in enumerate(GW):
                I(f"ds_read_b32 v{CB+i}, v{rc} offset:{L_CS + v*128}")
            I("s_waitcnt lgkmcnt(0)")
            if wd != 2: w2_frags(3, T + 50)
            I(f"v_pk_add_f32 v[{CB}:{CB+1}], v[{CB}:{CB+1}], v[{CB+2}:{CB+3}]")
            I(f"v_pk_add_f32 v[{CB}:{CB+1}], v[{CB}:{CB+1}], v[{CB+4}:{CB+5}]")
            I(f"v_add_f32 v{CB}, v{CB}, v{CB+1}")
            I(f"v_mul_f32 v{vCS1}, {f2u(1 / math.sqrt(1 + EPS)):#x}, v{CB}")
        if wd == 2:
            it0(lambda: (I("s_barrier"), cs0()))
        else:
            I(f"s_cmp_eq_u32 s{sIT}, 0")
            I("s_cbranch_scc1 L_W5a")
        w2_frags(3, T + 50)
        I("s_waitcnt lgkmcnt(0)")
        a.label("L_W5a")
        if p5 & 4: I("s_setprio 3")
        I("s_barrier")
        TS(21)
        for i, v in enumerate(GW):
            I(f"ds_read_b64 v[{SB+2*i}:{SB+2*i+1}], v{rz} offset:{L_PB1 + 512 + v*PP}")
        for i, v in enumerate(GW):
            I(f"ds_read_b64 v[{T+2*i}:{T+2*i+1}], v{ra} offset:{L_PB1 + v*PP}")
        def sum6(b):
            return [f"v_pk_add_f32 v[{b+2*d_}:{b+2*d_+1}], v[{b+2*d_}:{b+2*d_+1}], v[{b+2*s_}:{b+2*s_+1}]" for d_, s_ in ((0, 1), (2, 3), (4, 5), (0, 2), (0, 4))]
        I("s_waitcnt lgkmcnt(6)")
        for x_ in sum6(SB): I(x_)
        I(f"v_pk_fma_f32 v[{SB}:{SB+1}], v[{SB}:{SB+1}], v[{rK}:{rK+1}], v[{rE}:{rE+1}]")
        I(f"v_fma_f32 v{rR}, -v{SB}, v{SB}, v{SB+1}")
        I(f"v_max_f32 v{rR}, v{rR}, v{rE+1}")
        I(f"v_rsq_f32 v{rR}, v{rR}")
        I("s_waitcnt lgkmcnt(0)")
        if wd != 2: it0(cs0)
        for x_ in sum6(T): I(x_)
        I(f"v_fma_f32 v{T+1}, -v{SB}, v{vCS1}, v{T+1}")
        I(f"v_add_f32 v{T}, v{T}, v{T+1}")
        I(f"v_fma_f32 v{rU}, v{T}, v{rR}, v{vB1}")
        I(f"v_mul_f32 v{rT}, v{rU}, v{rU}")
        I(f"v_fma_f32 v{rT}, v{rT}, v{rC2}, v{rC1}")
        I(f"v_mul_f32 v{rT}, v{rT}, v{rU}")
        I(f"v_exp_f32 v{rT}, v{rT}")
        I(f"v_add_f32 v{rT}, 1.0, v{rT}")
        I(f"v_rcp_f32 v{rT}, v{rT}")
        setexec(0xFFFFFFFF, 0)
        I(f"v_mul_f32 v{rU}, v{rU}, v{rT}")
        I(f"v_cvt_pk_bf16_f32 v{rU}, v{rU}, v{rU}")
        I(f"ds_write_b16 v{rh}, v{rU} offset:{L_H}")
        setexec(0xFFFFFFFF, 0xFFFFFFFF)
        TS(22)
        if p5 & 4: I("s_setprio 0")
        I("s_waitcnt lgkmcnt(0)")
        a.label("L_W1t")
        w2_tail(3)

    if not m2:
        ha = T + 48
        def w2_frags(FR, wait=True):
            for e in range(len(FR)):
                va, o = (vA3, e * 8192) if not y64 else ((vA3, vA1)[e & 1], (e >> 1) * 16384)
                if y128: va, o = (vA3, vA1, vA0, T + 51)[e & 3], (e >> 2) * 8192
                if y128 and e == 0: I(f"v_xor_b32 v{T+51}, 96, v{vA3}")
                if e == 4 and len(FR) == 8: I("s_waitcnt lgkmcnt(0)")
                I(f"ds_read_b64_tr_b16 v[{FR[e]}:{FR[e]+1}], v{va} offset:{o}")
                I(f"ds_read_b64_tr_b16 v[{FR[e]+2}:{FR[e]+3}], v{va} offset:{o+512}")
            if wait: I("s_waitcnt lgkmcnt(0)")
        def w2_tail(FR, HB, D2):
            ne = len(FR)
            I("s_barrier")
            setexec(0x00010001, 0x00010001)
            for e in range(ne):
                I(f"ds_read_b128 {vr(HB[e])}, v{ha} offset:{L_H}")
                I("s_lshl_b64 exec, exec, 1" if e < ne - 1 else "s_mov_b64 exec, -1")
            TS(23)
            for e in range(ne):
                if ne == 6 and e == 4:
                    I(f"s_cmp_lt_u32 s{sWAVE}, 4")
                    I("s_cbranch_scc0 L_w24")
                if ne == 8 and e == 4:
                    I(f"s_cmp_ge_u32 s{sWAVE}, 6")
                    I("s_cbranch_scc0 L_w24")
                I(f"s_waitcnt lgkmcnt({ne-1-e})")
                I(f"v_mfma_f32_16x16x32_bf16 {vr(D2)}, {vr(FR[e])}, {vr(HB[e])}, {vr(D2) if e else '0'}")
            if ne >= 6: a.label("L_w24")
            if y64: I(f"s_mov_b64 exec, s[{sYM}:{sYM+1}]")
            else: setexec(0x001F001F, 0x001F001F)
            I(f"v_cvt_pk_bf16_f32 v{D2}, v{D2}, v{D2+1}")
            I(f"v_cvt_pk_bf16_f32 v{D2+1}, v{D2+2}, v{D2+3}")
            I(f"v_min_u32 v{D2}, 0xfffffffe, v{D2}")
            I(f"v_min_u32 v{D2+1}, 0xfffffffe, v{D2+1}")
            I(f"buffer_store_dwordx2 v[{D2}:{D2+1}], v{vA2}, {WS}, s{sREG} offen sc1")
            if dual:
                I(f"buffer_store_dwordx2 v[{D2}:{D2+1}], v{vA2}, {WS}, s{sREG2} offen sc1")
            setexec(0xFFFFFFFF, 0xFFFFFFFF)
            if ne >= 6: I("s_waitcnt lgkmcnt(0)")
            TS(24)
            I("s_branch L_next")
        FR04 = [28, 32, 36, 40, T + 40] + ([T + 24] if y64 else [])
        FR5 = [vRB + 4 * e for e in range(4 if y64 else 5)]
        if y128:
            FR04 = FR04[:4]
            FR5 = [vRB + 4 * e for e in range(8)]
            HB5 = [28, 32, 36, 40, T, T + 4, T + 8, T + 12]
        HB04 = [T + 4 * e for e in range(len(FR04))]
        def it0(fn):
            l = a.newlab("Li")
            I(f"s_cmp_eq_u32 s{sIT}, 0")
            I(f"s_cbranch_scc0 {l}")
            fn()
            a.label(l)
        a.label("L_W1")
        I(f"s_cmp_ge_u32 s{sWAVE}, 5")
        I("s_cbranch_scc1 L_W1h")
        ones()
        I(f"s_cmp_eq_u32 s{sIT}, 0")
        I("s_cbranch_scc0 L_W11")
        role_base()
        tr_addr(T + 47, 64, sT0)
        I(f"s_lshl_b32 s{sT0}, s{sWAVE}, 7")
        I(f"v_and_b32 v{T+46}, 15, v{vLANE}")
        I(f"v_lshlrev_b32 v{T+46}, 2, v{T+46}")
        I(f"v_add_u32 v{T+46}, s{sT0}, v{T+46}")
        if not emd: I("s_waitcnt vmcnt(0)")
        for ks in range(4):
            for t in range(2):
                b = vRB + 4 * (ks * 2 + t)
                o = ks * 2048 + t * 32
                I(f"ds_read_b64_tr_b16 v[{b}:{b+1}], v{T+47} offset:{o}")
                I(f"ds_read_b64_tr_b16 v[{b+2}:{b+3}], v{T+47} offset:{o+256}")
            if ks == 1:
                I("s_waitcnt lgkmcnt(0)")
        I("s_waitcnt lgkmcnt(0)")
        for t in range(2):
            for ks in range(4):
                I(f"v_mfma_f32_16x16x32_bf16 {vr(T+4*t)}, {vr(ONES)}, {vr(vRB+4*(ks*2+t))}, {'0' if ks == 0 else vr(T+4*t)}")
        I(f"ds_write_b32 v{T+46}, v{T} offset:{L_CS2}")
        I(f"ds_write_b32 v{T+46}, v{T+4} offset:{L_CS2+64}")
        TS(15)
        I("s_branch L_W12")
        a.label("L_W11")
        w2_frags(FR04)
        a.label("L_W12")
        if g2: I("s_barrier")
        I(f"s_add_u32 s{sT1}, s{sREG}, {ZOFF}")
        I(f"s_add_u32 s{sT1}, s{sT1}, s{sNEAR}")
        gather(sT1)
        TS(19)
        gemv(2, vRB, lambda ks, t: ks * 2 + t)
        TS(20)
        I("s_barrier")
        I(f"v_lshrrev_b32 v{ha}, 4, v{vLANE}")
        I(f"v_lshlrev_b32 v{ha}, 4, v{ha}")
        for i in range(4 * len(FR04)):
            I(f"v_mov_b32 v{T+i}, 0")
        it0(lambda: w2_frags(FR04))
        w2_tail(FR04, HB04, T + 44)
        a.label("L_W1h")
        if g2:
            I(f"s_cmp_eq_u32 s{sWAVE}, 6")
            I("s_cbranch_scc0 L_G2")
            ml_gate(g2)
            a.label("L_G2")
            I("s_barrier")
        I(f"v_mov_b32 v{rINV}, {f2u(1.0/640):#x}")
        I(f"v_mov_b32 v{rC1}, {f2u(GC1):#x}")
        I(f"v_mov_b32 v{rC2}, {f2u(GC2):#x}")
        I(f"v_lshrrev_b32 v{ha}, 4, v{vLANE}")
        I(f"v_lshlrev_b32 v{ha}, 4, v{ha}")
        I(f"v_lshlrev_b32 v{ha+1}, 1, v{vLANE}")
        I(f"v_lshlrev_b32 v{ha+2}, 2, v{vLANE}")
        I("s_waitcnt vmcnt(0)")
        I("s_barrier")
        I(f"s_cmp_eq_u32 s{sWAVE}, 5")
        I("s_cbranch_scc1 L_W1r")
        for b_ in HB5:
            for i in range(4):
                I(f"v_mov_b32 v{b_+i}, 0")
        it0(lambda: w2_frags(FR5))
        I("s_branch L_W1t")
        a.label("L_W1r")
        TS(21)
        reduce_read(5, L_PB1)
        for v in range(5):
            I(f"ds_read_b32 v{T+24+v}, v{ha+2} offset:{L_CS2 + v*128}")
        I("s_waitcnt lgkmcnt(5)")
        reduce_sum(5, rTOT)
        stats()
        I("s_waitcnt lgkmcnt(0)")
        it0(lambda: w2_frags(FR5[:4] if y128 else FR5, False))
        I(f"v_add_f32 v{T+24}, v{T+24}, v{T+25}")
        I(f"v_add_f32 v{T+26}, v{T+26}, v{T+27}")
        I(f"v_add_f32 v{T+24}, v{T+24}, v{T+28}")
        I(f"v_add_f32 v{vCS1}, v{T+24}, v{T+26}")
        I(f"v_sub_f32 v{rMEAN}, v{rMEAN}, v{rMB}")
        I(f"v_mul_f32 v{rVAR}, v{rVAR}, v{rR}")
        I(f"v_mul_f32 v{rMEAN}, v{rMEAN}, v{rR}")
        I(f"v_mul_f32 v{rVAR}, v{rVAR}, v{rR}")
        I(f"v_cvt_pk_bf16_f32 v{rT}, v{rMEAN}, v{rVAR}")
        I(f"v_and_b32 v{rU}, 0xffff0000, v{rT}")
        I(f"v_lshlrev_b32 v{rMEAN}, 16, v{rT}")
        I(f"v_add_f32 v{rU}, {f2u(1e-5):#x}, v{rU}")
        I(f"v_cvt_pk_bf16_f32 v{rU}, v{rU}, v{rU}")
        I(f"v_fma_f32 v{rMB}, v{rMEAN}, v{rSD}, v{rMB}")
        I(f"v_and_b32 v{rU}, 0xffff0000, v{rU}")
        I(f"v_sqrt_f32 v{rU}, v{rU}")
        I(f"v_fma_f32 v{rTOT}, -v{rMB}, v{vCS1}, v{rTOT}")
        I(f"v_cvt_pk_bf16_f32 v{rU}, v{rU}, v{rU}")
        I(f"v_mul_f32 v{rTOT}, v{rTOT}, v{rR}")
        I(f"v_and_b32 v{rU}, 0xffff0000, v{rU}")
        I(f"v_rcp_f32 v{rU}, v{rU}")
        I(f"v_mul_f32 v{rTOT}, v{rTOT}, v{rU}")
        I(f"v_cvt_pk_bf16_f32 v{rU}, v{rTOT}, v{rTOT}")
        I(f"v_and_b32 v{rU}, 0xffff0000, v{rU}")
        I(f"v_add_f32 v{rU}, v{rU}, v{vB1}")
        I(f"v_cvt_pk_bf16_f32 v{rU}, v{rU}, v{rU}")
        I(f"v_and_b32 v{rU}, 0xffff0000, v{rU}")
        I(f"v_mul_f32 v{rT}, v{rU}, v{rU}")
        I(f"v_fma_f32 v{rT}, v{rT}, v{rC2}, v{rC1}")
        I(f"v_mul_f32 v{rT}, v{rT}, v{rU}")
        I(f"v_exp_f32 v{rT}, v{rT}")
        I(f"v_add_f32 v{rT}, 1.0, v{rT}")
        I(f"v_rcp_f32 v{rT}, v{rT}")
        I(f"v_mul_f32 v{rU}, v{rU}, v{rT}")
        I(f"v_cvt_pk_bf16_f32 v{rU}, v{rU}, v{rU}")
        setexec(0xFFFFFFFF, 0)
        I(f"ds_write_b16 v{ha+1}, v{rU} offset:{L_H}")
        setexec(0xFFFFFFFF, 0xFFFFFFFF)
        TS(22)
        I("s_waitcnt lgkmcnt(0)")
        a.label("L_W1t")
        w2_tail(FR5, HB5, T + 44)

    if q2 == 2:
        a.label("L_qslow")
        q_masked(lambda r_: f"buffer_load_dwordx4 {vr(r_)}, v{vQR}, {WS}, s{sT2} offen sc1")
        I(f"s_add_u32 s{sSPIN}, s{sSPIN}, 1")
        I("s_waitcnt vmcnt(0)")
        cur = maxtree(T + 50, range(T, T + 16))
        I(f"v_cmp_eq_u32 vcc, -1, v{cur}")
        I("s_cbranch_vccz L_qs2")
        I(f"s_cmp_lt_u32 s{sSPIN}, {spin_limit}")
        I("s_cbranch_scc1 L_qslow")
        a.label("L_qs2")
        for i in range(16, 24):
            I(f"v_mov_b32 v{T+i}, 0")
        I(f"s_mov_b64 s[{sKM}:{sKM+1}], 0")
        I("s_branch L_att")
    a.label("L_next")
    I("s_waitcnt vmcnt(0)")
    I(f"s_add_u32 s{sIT}, s{sIT}, 1")
    I(f"s_add_u32 s{sREG}, s{sREG}, {RS}")
    I(f"s_add_u32 s{sREG2}, s{sREG2}, {RS}")
    I(f"s_cmp_lt_u32 s{sIT}, 2")
    I("s_cbranch_scc1 L_loop")
    I(f"s_or_b32 s{sT0}, s{sROLE}, s{sX}")
    I(f"s_cmp_eq_u32 s{sT0}, 0")
    I("s_cbranch_scc0 L_fin")
    I(f"s_cmp_eq_u32 s{sWAVE}, 6")
    I("s_cbranch_scc1 L_loop")
    a.label("L_fin")
    if dbgt:
        srd(TA, 54, 256)
        I(f"v_add_u32 v{T}, 2, v{vLANE}")
        I(f"v_add_u32 v{T+1}, 4, v{vLANE}")
        I(f"v_cmp_gt_u32 vcc, 6, v{vLANE}")
        I(f"v_cndmask_b32 v{T}, v{T+1}, v{T}, vcc")
        I(f"v_lshlrev_b32 v{T}, 2, v{T}")
        setexec(0xFFF, 0)
        I(f"buffer_atomic_umax v{vTST}, v{T}, {TA}, 0 offen sc1")
        setexec(0xFFFFFFFF, 0xFFFFFFFF)
    if instr:
        TS(30)
        I(f"s_lshl_b32 s{sT0}, s2, 3")
        I(f"s_add_u32 s{sT0}, s{sT0}, s{sWAVE}")
        I(f"s_lshl_b32 s{sT0}, s{sT0}, 9")
        I(f"s_add_u32 s{sT0}, s{sT0}, {DBGOFF}")
        I(f"v_lshlrev_b32 v{T}, 3, v{vLANE}")
        I(f"buffer_store_dwordx2 v[{vTSI}:{vTST}], v{T}, {WS}, s{sT0} offen")
    a.label("L_end")
    I("s_endpgm")
    a.raw('.section .rodata,"a"\n.p2align 6')
    a.raw(f".amdhsa_kernel {KNAME}")
    a.raw("  .amdhsa_next_free_vgpr 256\n  .amdhsa_next_free_sgpr 102\n  .amdhsa_accum_offset 256\n"
          "  .amdhsa_group_segment_fixed_size 0\n  .amdhsa_kernarg_size 104\n  .amdhsa_user_sgpr_count 2\n"
          "  .amdhsa_user_sgpr_kernarg_segment_ptr 1\n  .amdhsa_system_sgpr_workgroup_id_x 1")
    a.raw(".end_amdhsa_kernel")
    open(fn, "w").write(a.text())
    return a.ninstr


if __name__ == "__main__":
    import argparse
    p = argparse.ArgumentParser()
    p.add_argument("-o", default="k.s")
    p.add_argument("--instr", action="store_true")
    p.add_argument("--kv", default="nt")
    p.add_argument("--w", default="")
    p.add_argument("--y16", action="store_true")
    p.add_argument("--nomask", action="store_true")
    p.add_argument("--nodual", action="store_true")
    p.add_argument("--n0", type=int, default=4)
    p.add_argument("--late", type=lambda x: int(x, 0), default=0x5f)
    p.add_argument("--r", default="")
    p.add_argument("--ncal", type=int, default=4)
    p.add_argument("--nw0", type=int, default=8)
    p.add_argument("--qk", type=int, default=16)
    p.add_argument("--qp", type=int, default=3)
    p.add_argument("--gate", type=int, default=4)
    p.add_argument("--calr", type=int, default=28)
    p.add_argument("--esy", type=int, default=1)
    p.add_argument("--rmap", type=int, default=0)
    p.add_argument("--wk", type=int, default=0)
    p.add_argument("--th1", type=int, default=0)
    p.add_argument("--yl", type=int, default=0)
    p.add_argument("--y64", type=int, default=0)
    p.add_argument("--zx", type=int, default=64)
    p.add_argument("--zfl", default="sc1")
    p.add_argument("--yfl", default="sc1")
    p.add_argument("--pl", type=int, default=0)
    p.add_argument("--g1", type=int, default=0)
    p.add_argument("--pth", type=int, default=0)
    p.add_argument("--g2", type=int, default=0)
    p.add_argument("--g3", type=int, default=0)
    p.add_argument("--near", type=int, default=-1)
    p.add_argument("--hb", default="0,1")
    p.add_argument("--zq", type=int, default=0)
    p.add_argument("--sm", type=int, default=0)
    p.add_argument("--kl", type=int, default=0)
    p.add_argument("--m2", type=int, default=0)
    p.add_argument("--q2", type=int, default=0)
    p.add_argument("--pk3", type=int, default=1)
    p.add_argument("--qb", type=int, default=0)
    p.add_argument("--ld", type=int, default=1)
    p.add_argument("--ldl", type=int, default=2)
    p.add_argument("--zl", type=lambda x: int(x, 0), default=0)
    p.add_argument("--w128", type=int, default=0)
    p.add_argument("--the", type=int, default=0)
    p.add_argument("--ew", type=int, default=0)
    p.add_argument("--eg", type=int, default=8)
    p.add_argument("--pi", type=int, default=0)
    p.add_argument("--wb", type=int, default=0)
    p.add_argument("--wd", type=int, default=0)
    p.add_argument("--pw", type=int, default=12)
    p.add_argument("--ps", type=int, default=0)
    p.add_argument("--pf", type=int, default=0)
    p.add_argument("--h0", type=int, default=0)
    p.add_argument("--pfr", type=int, default=1)
    p.add_argument("--dd", type=int, default=0)
    p.add_argument("--p5", type=int, default=0)
    p.add_argument("--pipe", type=int, default=0)
    p.add_argument("--ap", type=int, default=0)
    p.add_argument("--cw", type=int, default=0)
    p.add_argument("--emd", type=int, default=0)
    p.add_argument("--g8", type=int, default=8)
    p.add_argument("--emw", type=int, default=4)
    p.add_argument("--vx", type=int, default=0)
    p.add_argument("--kvp", default="12,13,14,15,16,17,18,19")
    p.add_argument("--fakeq", type=int, default=0)
    p.add_argument("--pdep", type=int, default=1)
    p.add_argument("--pdl", type=int, default=2)
    p.add_argument("--pmask", type=int, default=31)
    p.add_argument("--xl", type=lambda x: int(x, 0), default=0)
    p.add_argument("--dyn", type=int, default=1)
    p.add_argument("--tw", type=int, default=6)
    p.add_argument("--tp", type=int, default=16)
    p.add_argument("--th2", type=int, default=0)
    p.add_argument("--rot2", type=int, default=2)
    p.add_argument("--pt", type=int, default=0)
    p.add_argument("--ptr", type=int, default=32)
    p.add_argument("--dbgt", default=None)
    p.add_argument("--sp1", type=int, default=1)
    p.add_argument("--norot", action="store_true")
    p.add_argument("--syfl", default="")
    p.add_argument("--ts", default=None)
    p.add_argument("--noprio", action="store_true")
    p.add_argument("--sl", type=int, default=0)
    p.add_argument("--yh", type=int, default=0)
    p.add_argument("--zh", type=int, default=0)
    p.add_argument("--zhm", type=lambda x: int(x, 0), default=255)
    p.add_argument("--yhm", type=lambda x: int(x, 0), default=31)
    p.add_argument("--ylm", type=lambda x: int(x, 0), default=0)
    args = p.parse_args()
    ts = None if args.ts is None else set(int(x) for x in args.ts.split(","))
    n = gen(args.o, sl=args.sl, yh=args.yh, zh=args.zh, yhm=args.yhm, zhm=args.zhm, ylm=args.ylm, instr=args.instr, kvflags=args.kv, wflags=args.w, y16=args.y16,
            masked_=not args.nomask, tsset=ts, n0=args.n0, late=args.late, rflags=args.r, ncal=args.ncal, dual=not args.nodual, prio=not args.noprio,
            nw0=args.nw0, qk=args.qk, rot=not args.norot, syfl=args.syfl, qp=args.qp, gate=args.gate, calr=args.calr, esy=args.esy, rmap=args.rmap, wk=args.wk, th1=args.th1, yl=args.yl, y64=args.y64, zx=args.zx, zfl=args.zfl, yfl=args.yfl, pl=args.pl, g1=args.g1, pth=args.pth, g2=args.g2, g3=args.g3, near=args.near, zq=args.zq, sm=args.sm, kl=args.kl, m2=args.m2, q2=args.q2, pipe=args.pipe, ap=args.ap, pk3=args.pk3, qb=args.qb, ld=args.ld, ldl=args.ldl, zl=args.zl, w128=args.w128, the=args.the, ew=args.ew, eg=args.eg, pi=args.pi, wb=args.wb, wd=args.wd, pw=args.pw, pst=args.ps, pf=args.pf, h0=args.h0, pfr=args.pfr, dd=args.dd, p5=args.p5, cw=args.cw, emd=args.emd, g8=args.g8, emw=args.emw, kvp=tuple(sum(1 << int(y) for y in x.split('+')) if i < 2 else int(x) for i, x in enumerate(args.kvp.split(','))), vx=args.vx, fakeq=args.fakeq, hb=tuple(int(x) for x in args.hb.split(',')), pdep=args.pdep, pdl=args.pdl, pmask=args.pmask, xl=args.xl, dyn=args.dyn, tw=args.tw, tp=args.tp, th2=args.th2, rot2=args.rot2, pt=args.pt, ptr_=args.ptr, dbgt=[tuple(int(y) for y in x.split('.')) for x in args.dbgt.split(',')] if args.dbgt else None, sp1=args.sp1)
    print("instrs:", n)
```

```python
import sys, struct, math
from asmlib import Asm

KNAME = "interleave_layers__gqa_block_cached__mixer_channel_mlp__decode_kernel"

RS = 0x60000
POFF, ZOFF, QOFF, XOFF, MLOFF, YOFF = 0x0, 0x10000, 0x20000, 0x1c000, 0x58000, 0x30000
CALOFF = 0xC0000
CP = 0x2000
ZR, ZX = 512, 64
DBGOFF = 0x100000
WS_SIZE = 0x200000
BIG = 0x40000000
PP = 544
L_PB1, L_PB2, L_CS1, L_CS2, L_QB, L_ML, L_FLAG, L_DUM, L_PER, L_ROLE = (
    0, 2816, 7168, 7808, 8448, 8704, 8768, 8896, 10240, 51200)
LDS_TOTAL = 163840
NPER, NREST = 10, 26
L_RING, RSL = 51200, 36
L_W2, L_H, L_O = 92160, 8784, 133120
LEAD_R = 0

def f2u(x):
    return struct.unpack("<I", struct.pack("<f", x))[0]

L2E = f2u(1.4426950408889634)
SCALE = f2u(128 ** -0.5)
GC1 = -2.0 * 1.4426950408889634 * math.sqrt(2.0 / math.pi)
GC2 = GC1 * 0.044715

sWAVE, sX, sR, sIT, sREG = 3, 4, 5, 6, 7
K_SRD, V_SRD, WS, TA, TB, OUTS = "s[8:11]", "s[12:15]", "s[16:19]", "s[20:23]", "s[24:27]", "s[28:31]"
sROLE, sPURE, sSPIN = 58, 59, 60
sT0, sT1, sT2, sT3, sSLOT = 61, 62, 63, 72, 73
sF = 64
sXCC, sTB, sNT, sTSI = 74, 75, 76, 77
sL2E, sM = 80, 81
sRB, sRSTEP, sRN = 82, 83, 84
sKV = 85
sNEAR, sREG2, sVOTE = 78, 79, 81
sLATE, sQS, sKM, sYM = 100, 101, 42, 98
sXW = 95
vLANE = 0
vGO, vXO, vPW, vSW, vQR, vOW, vMLW = 1, 2, 7, 8, 9, 10, 11
vPQ = 3
vA0, vA1, vA2, vA3 = 12, 13, 14, 15
vRDMA = 17
vTSI, vTST = 18, 19
vSEL = 20
vBQ = 28
vRB = 44
vFD = 72
T = 76
vK, vV = 128, 192
vRR, vQP, vQG, vCSQ, vCS1, vB1, vRP = 1, 2, 3, 4, 5, 6, 8
vXF = 72
vXFA = 16
vCR, vCML, vCP, vCPM, vQG7, vTK = 1, 2, 3, 4, 5, 6


def vr(a, n=4):
    return f"v[{a}:{a+n-1}]"


def gen(fn, instr=False, kvflags="nt", wflags="", rflags="", spin_limit=400000, tsset=None,
        sl=0, ast=4, esv=0, ylm=0, yh=0, zh=0, yhm=31, zhm=255, y16=False, masked_=True, dbgt=False, n0=4, late=0x78, dual=True, prio=True, ncal=4, nw0=8, qk=16, rot=True,
        syfl='', qp=3, gate=4, sp1=1, pt=0, ptr_=32, rmap=0, wk=0, calr=28, esy=1, th1=0, th2=0, rot2=2, dyn=1, tw=6, tp=16, yl=0, y64=0, zx=64, zfl='sc1', yfl='sc1', pl=0, xl=0, pdep=1, pdl=2, pmask=31, g1=0, pth=0, g2=0, g3=0, near=-1, hb=(0, 1), fakeq=0, kvp=(4096, 8192, 14, 15, 16, 17, 18, 19), vx=0, emd=0, g8=8, emw=4, cw=0, sm=0, zq=0, kl=0, m2=0, q2=0, pipe=0, ap=0, pk3=1, qb=0, p5=0, dd=0, pf=0, h0=0, pfr=1, pst=0, pw=12, wd=0, wb=0, pi=0, ew=0, eg=8, the=0, w128=0, zl=0, ld=1, ldl=2):
    assert not late & 0x80
    ZX = zx; ZR = 8 * zx; ZB = 4 if zx == 64 else 3
    y128 = y64 == 2
    HB5 = [28, 32, 36, 40, 64]
    a = Asm()
    a.pipe = bool(pipe)
    I = a.I
    a.raw(f"; @launch grid=(256,1,1) block=(512,1,1) lds={LDS_TOTAL}")
    a.raw('.amdgcn_target "amdgcn-amd-amdhsa--gfx950"')
    a.raw(".text")
    a.raw(f".globl {KNAME}\n.p2align 8\n.type {KNAME},@function\n{KNAME}:")

    def TS(k):
        if dbgt:
            for j, (kk, it, *mn) in enumerate(dbgt):
                if kk == k:
                    l = a.newlab("Ld")
                    I(f"s_cmp_eq_u32 s{sIT}, {it}")
                    I(f"s_cbranch_scc0 {l}")
                    I("s_memrealtime s[0:1]")
                    I("s_waitcnt lgkmcnt(0)")
                    if mn: I("s_not_b32 s0, s0")
                    I(f"v_writelane_b32 v{vTST}, s0, {j + 2}")
                    a.label(l)
            return
        if not instr or (tsset is not None and k not in tsset and k not in (0, 30)):
            return
        I("s_memrealtime s[0:1]")
        I("s_waitcnt lgkmcnt(0)")
        I(f"v_writelane_b32 v{vTSI}, {k}, s{sTSI}")
        I(f"s_mov_b32 m0, s{sTSI}")
        I(f"v_writelane_b32 v{vTST}, s0, m0")
        I(f"s_add_u32 s{sTSI}, s{sTSI}, 1")

    def srd(dst, ptr, size):
        d = int(dst[2:].split(":")[0])
        I(f"s_mov_b32 s{d}, s{ptr}")
        I(f"s_mov_b32 s{d+1}, s{ptr+1}")
        I(f"s_mov_b32 s{d+2}, {size:#x}")
        I(f"s_mov_b32 s{d+3}, 0x20000")

    def setexec(lo, hi):
        if lo == 0xFFFFFFFF and hi == 0xFFFFFFFF:
            I("s_mov_b64 exec, -1")
        else:
            I(f"s_mov_b32 exec_lo, {lo:#x}")
            I(f"s_mov_b32 exec_hi, {hi:#x}")

    def maxtree(tmp, rs):
        rs = list(rs)
        if len(rs) == 1:
            return rs[0]
        cur = None
        while rs:
            if cur is None:
                if len(rs) >= 3:
                    I(f"v_max3_u32 v{tmp}, v{rs[0]}, v{rs[1]}, v{rs[2]}"); rs = rs[3:]
                else:
                    I(f"v_max_u32 v{tmp}, v{rs[0]}, v{rs[1]}"); rs = rs[2:]
                cur = tmp
            elif len(rs) >= 2:
                I(f"v_max3_u32 v{tmp}, v{tmp}, v{rs[0]}, v{rs[1]}"); rs = rs[2:]
            else:
                I(f"v_max_u32 v{tmp}, v{tmp}, v{rs[0]}"); rs = rs[1:]
        return cur

    def poll(loads, regs, ex=(0xFFFFFFFF, 0xFFFFFFFF), groups=None, simple=False, hop=0):
        lab = a.newlab("Lp"); done = a.newlab("Lpd")
        tmp = T + 50
        masked = masked_ and not simple
        if not masked:
            a.label(lab)
        dep = pdep if hop & pmask else 1
        for l in loads:
            I(l)
        for _ in range(dep - 1):
            for _ in range(pdl): I("s_nop 15")
            for l in loads:
                I(l)
        if masked:
            a.label(lab)
        I(f"s_add_u32 s{sSPIN}, s{sSPIN}, 1")
        I(f"s_waitcnt vmcnt({len(loads) * (dep - 1)})")
        cur = maxtree(tmp, regs)
        I(f"v_cmp_eq_u32 vcc, -1, v{cur}")
        I(f"s_cbranch_vccz {done}")
        if masked:
            if groups is None or len(loads) == 1:
                I("s_mov_b64 exec, vcc")
                for l in loads:
                    I(l)
            else:
                for j, gr in enumerate(groups):
                    cur = maxtree(tmp + 1 - (j & 1), gr)
                    I(f"v_cmp_eq_u32 s[{86+2*j}:{87+2*j}], -1, v{cur}")
                for j, l in enumerate(loads):
                    I(f"s_mov_b64 exec, s[{86+2*j}:{87+2*j}]")
                    I(l)
            setexec(*ex)
        I(f"s_cmp_lt_u32 s{sSPIN}, {spin_limit}")
        I(f"s_cbranch_scc1 {lab}")
        if masked:
            I("s_waitcnt vmcnt(0)")
        a.label(done)

    def light(load, reg, ex=None):
        lab = a.newlab("Ll"); done = a.newlab("Lld")
        if ex: setexec(*ex)
        if ld > 1:
            I(f"v_mov_b32 v{reg}, -1")
            for _ in range(ld - 1):
                I(load)
                for _ in range(ldl): I("s_nop 15")
            a.label(lab)
            I(load)
            I(f"s_add_u32 s{sSPIN}, s{sSPIN}, 1")
            I(f"s_waitcnt vmcnt({ld - 1})")
            I(f"v_cmp_ne_u32 vcc, -1, v{reg}")
            I(f"s_cbranch_vccnz {done}")
            I(f"s_cmp_lt_u32 s{sSPIN}, {spin_limit}")
            I(f"s_cbranch_scc1 {lab}")
            a.label(done)
            if ex: setexec(0xFFFFFFFF, 0xFFFFFFFF)
            return
        a.label(lab)
        I(load)
        I(f"s_add_u32 s{sSPIN}, s{sSPIN}, 1")
        I("s_waitcnt vmcnt(0)")
        I(f"v_cmp_ne_u32 vcc, -1, v{reg}")
        I(f"s_cbranch_vccnz {done}")
        I(f"s_cmp_lt_u32 s{sSPIN}, {spin_limit}")
        I(f"s_cbranch_scc1 {lab}")
        a.label(done)
        if ex: setexec(0xFFFFFFFF, 0xFFFFFFFF)

    def light_all(load, reg, ex):
        lab = a.newlab("La"); done = a.newlab("Lad")
        setexec(*ex)
        a.label(lab)
        I(load)
        I(f"s_add_u32 s{sSPIN}, s{sSPIN}, 1")
        I("s_waitcnt vmcnt(0)")
        I(f"v_cmp_eq_u32 vcc, -1, v{reg}")
        I(f"s_cbranch_vccz {done}")
        I(f"s_cmp_lt_u32 s{sSPIN}, {spin_limit}")
        I(f"s_cbranch_scc1 {lab}")
        a.label(done)
        setexec(0xFFFFFFFF, 0xFFFFFFFF)

    def lstore(ins, far=False):
        if far and near >= 0:
            for x in ins: I(x + " sc1")
            return
        l1 = a.newlab("Ls"); l2 = a.newlab("Lsd")
        I(f"s_cmp_eq_u32 s{sPURE}, 0")
        I(f"s_cbranch_scc1 {l1}")
        for x in ins: I(x)
        I(f"s_branch {l2}")
        a.label(l1)
        for x in ins: I(x + " sc1")
        a.label(l2)

    def unpack(lo, hi, src):
        I(f"v_lshlrev_b32 v{lo}, 16, v{src}")
        I(f"v_and_b32 v{hi}, 0xffff0000, v{src}")

    def hperm(dst, src, tmp):
        pos = list(hb) + [b for b in range(5) if b not in hb]
        if pos == [0, 1, 2, 3, 4]:
            if dst != src: I(f"s_mov_b32 s{dst}, s{src}")
            return
        I(f"s_mov_b32 s96, 0")
        for i in range(5):
            I(f"s_bfe_u32 s{tmp}, s{src}, {i | (1 << 16):#x}")
            I(f"s_lshl_b32 s{tmp}, s{tmp}, {pos[i]}")
            I(f"s_or_b32 s96, s96, s{tmp}")
        I(f"s_mov_b32 s{dst}, s96")

    XA = T + 32
    ONES = T + 28

    if instr: I("s_memrealtime s[98:99]")
    I("s_cmp_ge_u32 s2, 256")
    I("s_cbranch_scc1 L_end")
    I("s_load_dwordx16 s[32:47], s[0:1], 0")
    if cw:
        I("s_getpc_b64 s[4:5]")
        a.label("L_cs")
        I(f"v_lshlrev_b32 v1, {cw}, v0")
        I("v_min_u32 v1, L_end-L_cs, v1")
        I("global_load_dword v255, v1, s[4:5]")
    I("s_load_dwordx8 s[48:55], s[0:1], 64")
    I("s_load_dwordx2 s[56:57], s[0:1], 96")
    if dbgt: I("s_memrealtime s[96:97]")
    I("v_lshrrev_b32 v1, 6, v0")
    I(f"v_and_b32 v{vLANE}, 63, v0")
    I(f"v_readfirstlane_b32 s{sWAVE}, v1")
    I(f"s_and_b32 s{sX}, s2, 7")
    I(f"s_lshr_b32 s{sR}, s2, 3")
    I(f"s_lshl_b32 s{sSLOT}, s{sX}, 5")
    I(f"s_add_u32 s{sSLOT}, s{sSLOT}, s{sR}")
    I(f"s_mov_b32 s{sXW}, s{sX}")
    if near >= 0:
        I(f"s_and_b32 s{sSLOT}, s{sX}, 3")
        I(f"s_lshl_b32 s{sXW}, s{sSLOT}, 1")
        I(f"s_lshl_b32 s{sSLOT}, s{sSLOT}, 6")
        I(f"s_lshr_b32 s{sT0}, s{sR}, 2")
        I(f"s_lshl_b32 s{sT0}, s{sT0}, 3")
        I(f"s_add_u32 s{sSLOT}, s{sSLOT}, s{sT0}")
        I(f"s_and_b32 s{sT0}, s{sX}, 4")
        I(f"s_add_u32 s{sSLOT}, s{sSLOT}, s{sT0}")
        I(f"s_lshr_b32 s{sT0}, s{sT0}, 2")
        I(f"s_add_u32 s{sXW}, s{sXW}, s{sT0}")
        I(f"s_and_b32 s{sT0}, s{sR}, 3")
        I(f"s_add_u32 s{sSLOT}, s{sSLOT}, s{sT0}")
    if rmap:
        I(f"s_mov_b32 s{sT0}, -5")
        I(f"s_cmp_lt_u32 s{sR}, 28")
        I(f"s_cselect_b32 s{sT0}, -8, s{sT0}")
        I(f"s_cmp_lt_u32 s{sR}, 16")
        I(f"s_cselect_b32 s{sT0}, 16, s{sT0}")
        I(f"s_cmp_lt_u32 s{sR}, 11")
        I(f"s_cselect_b32 s{sT0}, 12, s{sT0}")
        I(f"s_cmp_lt_u32 s{sR}, 8")
        I(f"s_cselect_b32 s{sT0}, 0, s{sT0}")
        I(f"s_add_u32 s{sR}, s{sR}, s{sT0}")
    g, n, q4, c4, t0, t1, t2, t3 = T, T+1, T+2, T+3, T+4, T+5, T+6, T+7
    aK = T + 48
    vAT = T + 44
    I(f"v_lshrrev_b32 v{g}, 4, v{vLANE}")
    I(f"v_and_b32 v{n}, 15, v{vLANE}")
    I(f"v_bfe_u32 v{q4}, v{vLANE}, 2, 2")
    I(f"v_and_b32 v{c4}, 3, v{vLANE}")
    if sm and kl == 1:
        I(f"v_bfe_u32 v{aK}, v{vLANE}, 1, 3")
        I(f"v_lshlrev_b32 v{aK}, 8, v{aK}")
        I(f"v_lshl_add_u32 v{aK}, v{g}, 5, v{aK}")
        I(f"v_and_b32 v{t0}, 1, v{vLANE}")
        I(f"v_lshl_add_u32 v{aK}, v{t0}, 4, v{aK}")
    elif sm and kl != 2:
        I(f"v_bfe_u32 v{aK}, v{vLANE}, 1, 2")
        I(f"v_lshlrev_b32 v{aK}, 12, v{aK}")
        I(f"v_lshl_add_u32 v{aK}, v{g}, 5, v{aK}")
        I(f"v_and_b32 v{t0}, 8, v{vLANE}")
        I(f"v_lshl_add_u32 v{aK}, v{t0}, 5, v{aK}")
        I(f"v_and_b32 v{t0}, 1, v{vLANE}")
        I(f"v_lshl_add_u32 v{aK}, v{t0}, 4, v{aK}")
    else:
        I(f"v_lshlrev_b32 v{aK}, 8, v{q4}")
        I(f"v_lshl_add_u32 v{aK}, v{g}, 6, v{aK}")
        I(f"v_lshl_add_u32 v{aK}, v{c4}, 4, v{aK}")
    if not q2:
        I(f"v_mul_u32_u24 v{vXO}, 320, v{q4}")
        I(f"v_lshl_add_u32 v{vXO}, v{g}, 4, v{vXO}")
        I(f"s_lshl_b32 s{sT0}, s{sWAVE}, 6")
        I(f"v_add_u32 v{vXO}, s{sT0}, v{vXO}")
    if near >= 0:
        I(f"s_lshr_b32 s{sKV}, s{sSLOT}, 3")
        I(f"s_lshl_b32 s{sKV}, s{sKV}, 20")
        I(f"s_and_b32 s{sT0}, s{sSLOT}, 3")
        I(f"s_lshl_b32 s{sT0}, s{sT0}, 18")
        I(f"s_add_u32 s{sKV}, s{sKV}, s{sT0}")
        I(f"s_lshl_b32 s{sT0}, s{sWAVE}, 15")
        I(f"s_add_u32 s{sKV}, s{sKV}, s{sT0}")
        I(f"s_lshr_b32 s{sT0}, s{sSLOT}, 2")
        I(f"s_lshr_b32 s{sT1}, s{sSLOT}, 4")
        I(f"s_xor_b32 s{sT0}, s{sT0}, s{sT1}")
        I(f"s_xor_b32 s{sT0}, s{sT0}, {near}")
        I(f"s_and_b32 s{sT0}, s{sT0}, 1")
        I(f"s_lshl_b32 s{sT0}, s{sT0}, 13")
        I(f"s_add_u32 s{sKV}, s{sKV}, s{sT0}")
    else:
        I(f"s_lshr_b32 s{sKV}, s{sSLOT}, 3")
        hperm(97, sKV, sT0)
        I(f"s_lshl_b32 s{sKV}, s97, 20")
        for src, ps in ((sWAVE, kvp[2:5]), (sSLOT, kvp[5:8])):
            i = 0
            while i < 3:
                n_ = 1
                while i + n_ < 3 and ps[i + n_] == ps[i] + n_: n_ += 1
                I(f"s_bfe_u32 s{sT0}, s{src}, {i | (n_ << 16):#x}")
                I(f"s_lshl_b32 s{sT0}, s{sT0}, {ps[i]}")
                I(f"s_add_u32 s{sKV}, s{sKV}, s{sT0}")
                i += n_
    KVO = [0, 4096, 16384, 20480] if near >= 0 else [(t & 1) * kvp[0] ^ (t >> 1) * kvp[1] for t in range(4)]
    I(f"s_lshr_b32 s{sQS}, s{sSLOT}, 3")
    I(f"s_lshl_b32 s{sQS}, s{sQS}, 11")
    if q2:
        I(f"s_lshl_b32 s{sQS}, s{sSLOT}, 8")
    else:
        I(f"s_and_b32 s{sT1}, s{sSLOT}, 3")
        I(f"s_lshl_b32 s{sT0}, s{sT1}, 9")
        I(f"s_add_u32 s{sQS}, s{sQS}, s{sT0}")
        I(f"s_and_b32 s{sT0}, s{sSLOT}, 4")
        I(f"s_lshl_b32 s{sT0}, s{sT0}, 6")
        I(f"s_add_u32 s{sQS}, s{sQS}, s{sT0}")
    I(f"s_add_u32 s{sQS}, s{sQS}, {QOFF}")
    vW0, vW1, ta0, ta1 = T + 44, T + 45, T + 42, T + 43
    XQ, ACC, BUF = 28, 48, 80
    sBa, sEa, sPER, sRING, sSO, sMB, sRS_ = 86, 87, 90, 91, 92, 93, 94
    xq = T + 12
    I(f"s_and_b32 s{sT0}, s{sSLOT}, 3")
    I(f"s_mul_i32 s{sT0}, s{sT0}, 5")
    I(f"s_lshr_b32 s{sT1}, s{sSLOT}, 1")
    I(f"s_xor_b32 s{sT1}, s{sT1}, s{sWAVE}")
    I(f"s_bitcmp1_b32 s{sT1}, 1")
    I(f"s_cselect_b32 s{sT1}, {rot2}, 0")
    I(f"s_add_u32 s{sT1}, s{sT0}, s{sT1}")
    I(f"s_lshr_b32 s{sT0}, s{sSLOT}, 3")
    if near < 0: I(f"s_mov_b32 s{sT0}, s97")
    I(f"s_lshl_b32 s{sT0}, s{sT0}, 8")
    US = 17 if w128 else 18
    if w128:
        I(f"s_and_b32 s{sT2}, s{sWAVE}, 1")
        I(f"s_lshl_b32 s{sT2}, s{sT2}, 7")
        I(f"s_add_u32 s{sT0}, s{sT0}, s{sT2}")
        I(f"s_lshr_b32 s{sT2}, s{sWAVE}, 1")
        I(f"s_mul_i32 s{sT2}, s{sT2}, {320 * 8192}")
    else:
        I(f"s_lshl_b32 s{sT2}, s{sWAVE}, 6")
    I(f"s_add_u32 s{sBa}, s{sT0}, s{sT2}")
    I(f"s_add_u32 s{sEa}, s{sBa}, {20 << US:#x}")
    I(f"s_lshl_b32 s{sT2}, s{sT1}, {US}")
    I(f"s_add_u32 s{sSO}, s{sBa}, s{sT2}")
    if q2:
        I(f"s_bfe_u32 s{sT2}, s{sSLOT}, 0x20001")
        I(f"s_cmp_gt_u32 s{sWAVE}, s{sT2}")
        I(f"s_subb_u32 s{sPER}, s{sWAVE}, 0")
        I(f"s_mul_i32 s{sPER}, s{sPER}, {RSL * 1024}")
        I(f"s_add_u32 s{sPER}, s{sPER}, {L_RING}")
        I(f"s_sub_u32 s{sRING}, s{sPER}, {RSL * 1024}")
        I(f"s_cmp_eq_u32 s{sWAVE}, s{sT2}")
        I(f"s_cselect_b32 s{sPER}, {L_PER}, s{sPER}")
        I(f"s_cselect_b32 s{sRING}, {L_PER}, s{sRING}")
    else:
        I(f"s_mul_i32 s{sPER}, s{sWAVE}, {NPER * 1024}")
        I(f"s_add_u32 s{sPER}, s{sPER}, {L_PER}")
        I(f"s_mul_i32 s{sRING}, s{sWAVE}, {NREST * 1024}")
        I(f"s_add_u32 s{sRING}, s{sRING}, {L_RING}")
    I(f"v_add_u32 v{t2}, s{sT1}, v{q4}")
    I(f"v_lshlrev_b32 v{t2}, 6, v{t2}")
    I(f"v_lshl_add_u32 v{t2}, v{g}, 4, v{t2}")
    for j in range(5):
        I(f"v_add_u32 v{xq+j}, {256*j}, v{t2}")
        I(f"v_subrev_u32 v{t3}, {1280 - 256*j}, v{t2}")
        I(f"v_min_u32 v{xq+j}, v{xq+j}, v{t3}")
    I(f"v_lshrrev_b32 v{vW0}, 2, v{vLANE}")
    I(f"v_lshlrev_b32 v{vW0}, 13, v{vW0}")
    I(f"v_lshrrev_b32 v{t3}, 4, v{vLANE}")
    I(f"v_and_b32 v{t3}, 2, v{t3}")
    I(f"v_xor_b32 v{t3}, v{t3}, v{c4}")
    I(f"v_lshl_add_u32 v{vW0}, v{t3}, 4, v{vW0}")
    if w128:
        I(f"v_lshrrev_b32 v{vW0}, 3, v{vLANE}")
        I(f"v_lshlrev_b32 v{vW0}, 13, v{vW0}")
        I(f"v_and_b32 v{t3}, 7, v{vLANE}")
        I(f"v_lshl_add_u32 v{vW0}, v{t3}, 4, v{vW0}")
    I(f"v_add_u32 v{vW1}, {1 << (US - 1):#x}, v{vW0}")
    I(f"v_lshlrev_b32 v{t0}, 4, v{vLANE}")
    cl = T + 8
    for i in range(4):
        I(f"v_mov_b32 v{cl+i}, -1")
    I(f"s_mov_b32 s{sTSI}, 0")
    if instr:
        I(f"v_mov_b32 v{vTSI}, -1")
        I(f"v_mov_b32 v{vTST}, 0")
    I(f"s_getreg_b32 s{sXCC}, hwreg(HW_REG_XCC_ID)")
    I(f"s_and_b32 s{sXCC}, s{sXCC}, 15")
    I(f"s_mul_i32 s{sT3}, s2, 3072")
    if instr: I("s_memrealtime s[0:1]")
    I("s_waitcnt lgkmcnt(0)")
    if instr:
        I(f"v_writelane_b32 v{vTSI}, 41, 0")
        I(f"v_writelane_b32 v{vTST}, s98, 0")
        I(f"v_writelane_b32 v{vTSI}, 42, 1")
        I(f"v_writelane_b32 v{vTST}, s0, 1")
        I(f"s_mov_b32 s{sTSI}, 2")
        TS(43)
    srd(WS, 56, WS_SIZE)
    srd(K_SRD, 34, 32 << 20)
    if dbgt:
        I(f"v_mov_b32 v{vTST}, 0")
        I(f"v_writelane_b32 v{vTST}, s96, 1")
        I("s_not_b32 s96, s96")
        I(f"v_writelane_b32 v{vTST}, s96, 0")
        I(f"s_mov_b32 s{sIT}, 0")
        TS(40)
    srd(TA, 38, 640 * 8192)
    srd(TB, 32, 1280)

    def k_issue(lo, hi, hook=None):
        for ki in range(lo, hi):
            if hook: hook(ki)
            if sm and kl == 1:
                if ki % 4 == 0 or ki == lo:
                    I(f"s_xor_b32 s{sT0}, s{sKV}, {KVO[ki//4]}")
                I(f"buffer_load_dwordx4 {vr(vK+4*ki)}, v{aK}, {K_SRD}, s{sT0} offen offset:{((ki>>1)&1)*2048+(ki&1)*128} {kvflags}")
                continue
            if sm and kl != 2:
                I(f"buffer_load_dwordx4 {vr(vK+4*ki)}, v{aK}, {K_SRD}, s{sKV} offen offset:{(ki>>1)*512+(ki&1)*128} {kvflags}")
                continue
            if ki % 4 == 0 or ki == lo:
                I(f"s_xor_b32 s{sT0}, s{sKV}, {KVO[ki//4]}")
            I(f"buffer_load_dwordx4 {vr(vK+4*ki)}, v{aK}, {K_SRD}, s{sT0} offen offset:{(ki%4)*1024} {kvflags}")

    I(f"s_cmp_eq_u32 s{sWAVE}, 6")
    I("s_cbranch_scc0 L_nclr")
    I(f"buffer_store_dwordx4 {vr(cl)}, v{t0}, {WS}, s{sT3} offen sc1")
    I(f"buffer_store_dwordx4 {vr(cl)}, v{t0}, {WS}, s{sT3} offen offset:1024 sc1")
    I(f"buffer_store_dwordx4 {vr(cl)}, v{t0}, {WS}, s{sT3} offen offset:2048 sc1")
    TS(0)
    I("s_branch L_early")
    a.label("L_nclr")
    I(f"s_cmp_ge_u32 s{sWAVE}, 4")
    I("s_cbranch_scc1 L_nwq")
    if prio: I(f"s_setprio {qp}")
    nis = [0]; nk = [0]; wpos = {}
    def slot(p):
        if q2: return (sPER if p < RSL else sRING), p * 1024
        if p < NPER: return sPER, p * 1024
        return sRING, ((p - NPER) % NREST) * 1024
    def w_issue(lo, hi):
        for p in range(lo, hi):
            u, h = p >> 1, p & 1
            b_, o_ = slot(p)
            I(f"s_add_u32 m0, s{b_}, {o_}")
            if fakeq and p == fakeq:
                I(f"v_mov_b32 v{vW0}, {BIG:#x}")
                I(f"v_mov_b32 v{vW1}, {BIG:#x}")
            I(f"buffer_load_dwordx4 v{(vW0, vW1)[h]}, {TA}, s{sSO} offen {wflags} lds")
            wpos[p] = nis[0]
            nis[0] += 1
            if h and p < 39:
                I(f"s_add_u32 s{sSO}, s{sSO}, {1 << US:#x}")
                I(f"s_cmp_eq_u32 s{sSO}, s{sEa}")
                I(f"s_cselect_b32 s{sSO}, s{sBa}, s{sSO}")
    for j in range(5):
        I(f"buffer_load_dwordx4 {vr(XQ+4*j)}, v{xq+j}, {TB}, 0 offen")
        nis[0] += 1
    w_issue(0, nw0)
    TS(0)
    I("s_branch L_early")
    a.label("L_nwq")
    if pt:
        k_issue(0, 1)
        I(f"v_lshlrev_b32 v{t2}, 21, v{vLANE}")
        setexec(0x7, 0)
        I(f"s_cmp_eq_u32 s{sWAVE}, 4")
        I("s_cbranch_scc0 L_pt5")
        srd(TA, 36, 32 << 20)
        setexec(1, 0)
        I(f"buffer_load_dword v{vV}, v{t2}, {TA}, s{sKV} offen")
        I("s_branch L_ptd")
        a.label("L_pt5")
        I(f"s_cmp_lt_u32 s{sR}, {ptr_}")
        I("s_cbranch_scc0 L_ptd")
        I(f"s_cmp_eq_u32 s{sWAVE}, 5")
        I("s_cbranch_scc0 L_pt7")
        for ptr, size in ((40, 4096 * 1280), (44, 640 * 3456), (48, 1728 * 1280)):
            srd(TA, ptr, size)
            I(f"buffer_load_dword v{vV}, v{t2}, {TA}, 0 offen")
        I("s_branch L_ptd")
        a.label("L_pt7")
        for ptr, size in ((52, 1280), (50, 1280), (46, 3456)) + (((54, 256),) if pt > 1 else ()):
            srd(TA, ptr, size)
            I(f"buffer_load_dword v{vV}, v{t2}, {TA}, 0 offen")
        a.label("L_ptd")
        setexec(0xFFFFFFFF, 0xFFFFFFFF)
        k_issue(1, n0)
    else:
        k_issue(0, n0)
    TS(0)
    a.label("L_early")
    srd(V_SRD, 36, 32 << 20)
    srd(OUTS, 52, 1280)
    I(f"s_mov_b32 s{sIT}, 0")
    I(f"s_mov_b32 s{sREG}, 0")
    I(f"s_mov_b32 s{sREG2}, {CP}")
    I(f"s_mov_b32 s{sSPIN}, 0")
    I(f"s_mov_b32 s{sPURE}, 0")
    I(f"s_mov_b32 s{sNEAR}, 0")
    I(f"s_mov_b32 s{sL2E}, {L2E:#x}")
    I(f"s_lshr_b32 s{sLATE}, {late:#x}, s{sWAVE}")
    I(f"s_and_b32 s{sLATE}, s{sLATE}, 1")
    I(f"s_mov_b32 s{sROLE}, 3")
    if not dyn:
        I(f"s_mul_i32 s{sTB}, s{sX}, 7")
        I(f"s_cmp_eq_u32 s{sX}, 7")
        I(f"s_cselect_b32 s{sT0}, 21, 20")
        I(f"s_sub_u32 s{sTB}, s{sTB}, s{sT0}")
        I(f"s_add_u32 s{sTB}, s{sTB}, s{sR}")
        I(f"s_cmp_lt_u32 s{sX}, 6")
        I(f"s_cselect_b32 s{sT0}, 27, 26")
        I(f"s_cmp_lt_u32 s{sR}, s{sT0}")
        I(f"s_cselect_b32 s{sROLE}, 1, s{sROLE}")
    I(f"s_cmp_lt_u32 s{sR}, 20")
    I(f"s_cselect_b32 s{sROLE}, 0, s{sROLE}")
    I(f"s_cselect_b32 s{sLATE}, s{sLATE}, 0")
    if zh >= 3:
        I(f"s_lshl_b32 s34, s{sR}, 10")
        I(f"s_lshl_b32 s96, s{sX}, 7")
        I(f"s_add_u32 s34, s34, s96")
        I(f"s_add_u32 s34, s34, {ZOFF + 0x4800}")
        I(f"s_and_b32 s97, s{sX}, 3")
        I(f"s_lshl_b32 s97, s97, 1")
        I(f"s_cmp_eq_u32 s97, s{sWAVE}")
        I(f"s_cselect_b32 s96, 3, 0")
        I(f"s_cmp_lt_u32 s{sR}, 6")
        I(f"s_cselect_b32 s96, s96, 0")
        I(f"s_mov_b32 s97, 0")
    for i in [1] + list(range(2 if q2 else 3, 18)):
        I(f"v_mov_b32 v{i}, {BIG:#x}")

    def v_issue():
        k1, k2, k3 = T + 49, T + 50, T + 51
        I(f"v_lshrrev_b32 v{k1}, 4, v{vLANE}")
        I(f"v_bfe_u32 v{k3}, v{vLANE}, 3, 1")
        if sm: I(f"v_lshl_add_u32 v{k3}, v{k1}, 1, v{k3}")
        else: I(f"v_lshl_add_u32 v{k3}, v{k3}, 3, v{k1}")
        I(f"v_lshlrev_b32 v{k3}, 8, v{k3}")
        I(f"v_and_b32 v{k2}, 7, v{vLANE}")
        I(f"v_lshl_add_u32 v{k3}, v{k2}, 4, v{k3}")
        def ticket():
            I(f"s_cmp_eq_u32 s{sWAVE}, {tw}")
            I("s_cbranch_scc0 L_ntk")
            I(f"s_cmp_eq_u32 s{sROLE}, 0")
            if pf:
                I(f"s_cselect_b32 s{sT1}, 1, 0x101")
                I(f"v_mov_b32 v{vTK}, s{sT1}")
                I(f"s_lshl_b32 s{sT1}, s{sX}, 3")
            else:
                I("s_cbranch_scc1 L_ntk")
                I(f"v_mov_b32 v{vRDMA}, 1")
            srd(TA, 54, 256)
            setexec(1, 0)
            if pf: I(f"buffer_atomic_add v{vTK}, off, {TA}, s{sT1} sc0 sc1")
            else: I(f"buffer_atomic_add v{vRDMA}, off, {TA}, 0 sc0 sc1")
            setexec(0xFFFFFFFF, 0xFFFFFFFF)
            a.label("L_ntk")
        for j in range(17):
            if dyn and j == tp: ticket()
            if j == 16: break
            if j % 4 == 0:
                I(f"s_xor_b32 s{sT0}, s{sKV}, {KVO[j//4]}")
            u, hf = (j >> 1) & 1, j & 1
            if sm: u, hf = 2 * hf, u
            I(f"buffer_load_dwordx4 {vr(vV+4*j)}, v{k3}, {V_SRD}, s{sT0} offen offset:{u*1024+hf*128} {kvflags}")

    def pf_static(lab, dummy, mode=0):
        ad, ds = T + 49, T + 50
        if mode != 3:
            I(f"s_cmp_lt_u32 s{sWAVE}, 7")
            I(f"s_cbranch_scc0 {lab}")
        if not dummy:
            I(f"s_cmp_eq_u32 s{sROLE}, 0")
            I(f"s_cbranch_scc1 {lab}")
        if mode == 3:
            I(f"s_sub_u32 s{sT0}, 31, s{sR}")
            I(f"s_min_u32 s{sT0}, s{sT0}, 5")
            I(f"s_mul_i32 s{sT1}, s{sWAVE}, 5")
            I(f"s_cmp_lt_u32 s{sT0}, 5")
            I(f"s_cselect_b32 s{sT1}, s{sT1}, 99")
            I(f"s_add_u32 s{sT0}, s{sT0}, s{sT1}")
            if pi: I(f"s_add_u32 s{sT0}, s{sT0}, {pi}")
            mode = 1
        elif mode == 1 and pst == 6:
            I(f"s_sub_u32 s{sT0}, 31, s{sR}")
            I(f"s_lshl_b32 s{sT1}, s{sWAVE}, 5")
            I(f"s_add_u32 s{sT0}, s{sT0}, s{sT1}")
            I(f"s_cmp_lt_u32 s{sT0}, {pi}")
            I(f"s_cselect_b32 s{sT0}, s{sT0}, 99")
        elif mode < 2 and pw == 32:
            I(f"s_sub_u32 s{sT0}, 31, s{sR}")
            I(f"s_lshl_b32 s{sT1}, s{sWAVE}, 5")
            I(f"s_add_u32 s{sT0}, s{sT0}, s{sT1}")
            I(f"s_min_u32 s{sT0}, s{sT0}, 99")
        elif mode == 1:
            I(f"s_sub_u32 s{sT0}, 31, s{sR}")
            I(f"s_cmp_lt_u32 s{sT0}, {pw}")
            I(f"s_cselect_b32 s{sT0}, s{sT0}, 99")
            I(f"s_mul_i32 s{sT1}, s{sWAVE}, {pw}")
            I(f"s_add_u32 s{sT0}, s{sT0}, s{sT1}")
        elif mode == 2:
            I(f"s_sub_u32 s{sT0}, 31, s{sR}")
            I(f"s_mul_i32 s{sT0}, s{sT0}, 7")
            I(f"s_add_u32 s{sT0}, s{sT0}, s{sWAVE}")
        else:
            I(f"s_sub_u32 s{sT0}, s{sR}, 20")
            if pfr:
                I(f"s_mul_i32 s{sT1}, s{sWAVE}, 12")
                I(f"s_add_u32 s{sT0}, s{sT0}, s{sT1}")
            else:
                I(f"s_mul_i32 s{sT0}, s{sT0}, 7")
                I(f"s_add_u32 s{sT0}, s{sT0}, s{sWAVE}")
            I(f"s_cmp_eq_u32 s{sROLE}, 0")
            I(f"s_cselect_b32 s{sT0}, 99, s{sT0}")
        I(f"s_mul_i32 s{sT1}, s{sX}, 7")
        I(f"s_min_u32 s{sT1}, s{sT1}, 48")
        if mode == 0:
            I(f"s_cmp_lt_u32 s{sT0}, 40")
            I(f"s_cbranch_scc0 {lab}w2")
        if mode < 2:
            srd(TA, 44, 640 * 3456)
            I(f"v_lshrrev_b32 v{ad}, 2, v{vLANE}")
            I(f"v_mul_u32_u24 v{ad}, 3456, v{ad}")
            I(f"v_and_b32 v{ds}, 3, v{vLANE}")
            I(f"v_lshl_add_u32 v{ad}, v{ds}, 7, v{ad}")
            I(f"s_mul_i32 s{sT0}, s{sT0}, {16*3456}")
            I(f"s_lshr_b32 s{sT1}, s{sT1}, 1")
            I(f"s_lshl_b32 s{sT1}, s{sT1}, 7")
            I(f"s_add_u32 s{sT0}, s{sT0}, s{sT1}")
            I(f"v_add_u32 v{ad}, s{sT0}, v{ad}")
            I(f"buffer_load_dword v{ds}, v{ad}, {TA}, 0 offen")
        if mode == 0:
            I(f"s_branch {lab}")
            a.label(lab + "w2")
            I(f"s_sub_u32 s{sT0}, s{sT0}, 40")
        if mode != 1:
            I(f"s_cmp_lt_u32 s{sX}, 6")
            I(f"s_cselect_b32 s{sT2}, 35, 30")
            I(f"s_mul_i32 s{sT1}, s{sT1}, {32*1280}")
            I(f"s_cmp_lt_u32 s{sT0}, s{sT2}")
            I(f"s_cselect_b32 s{sT1}, s{sT1}, {BIG:#x}")
            I(f"s_lshl_b32 s{sT0}, s{sT0}, 13")
            I(f"s_add_u32 s{sT0}, s{sT0}, s{sT1}")
            srd(TA, 48, 1728 * 1280)
            I(f"v_lshlrev_b32 v{ad}, 7, v{vLANE}")
            I(f"v_add_u32 v{ad}, s{sT0}, v{ad}")
            I(f"buffer_load_dword v{ds}, v{ad}, {TA}, 0 offen")
        a.label(lab)

    def w2_early():
        m0_, m1_, m2_, m3_ = T, T + 1, T + 2, T + 3
        I(f"s_mul_i32 s{sT0}, s{sWAVE}, 5")
        I(f"s_mul_i32 s{sT3}, s{sTB}, {32*1280}")
        I(f"v_lshrrev_b32 v{m0_}, 3, v{vLANE}")
        I(f"v_mul_u32_u24 v{m2_}, 1280, v{m0_}")
        I(f"v_and_b32 v{m1_}, 7, v{vLANE}")
        I(f"v_lshlrev_b32 v{m1_}, 4, v{m1_}")
        I(f"v_bfe_u32 v{m0_}, v{vLANE}, 4, 1")
        I(f"v_lshlrev_b32 v{m0_}, 5, v{m0_}")
        I(f"v_xor_b32 v{m1_}, v{m1_}, v{m0_}")
        I(f"s_and_b32 s{sT1}, s{sT0}, 1")
        I(f"s_lshl_b32 s{sT1}, s{sT1}, 6")
        I(f"v_xor_b32 v{m1_}, s{sT1}, v{m1_}")
        I(f"v_xor_b32 v{m0_}, 64, v{m1_}")
        I(f"v_add_u32 v{m3_}, v{m2_}, v{m0_}")
        I(f"v_add_u32 v{m2_}, v{m2_}, v{m1_}")
        srd(TA, 48, 1728 * 1280)
        for e in range(5):
            I(f"s_lshl_b32 s{sT1}, s{sT0}, 10")
            I(f"s_add_u32 m0, s{sT1}, {L_W2}")
            I(f"s_and_b32 s{sT1}, s{sT0}, 3")
            I(f"s_mul_i32 s{sT1}, s{sT1}, {8*1280}")
            I(f"s_lshr_b32 s{sT2}, s{sT0}, 2")
            I(f"s_lshl_b32 s{sT2}, s{sT2}, 7")
            I(f"s_add_u32 s{sT1}, s{sT1}, s{sT2}")
            I(f"s_add_u32 s{sT1}, s{sT1}, s{sT3}")
            I(f"buffer_load_dwordx4 v{(m2_, m3_)[e & 1]}, {TA}, s{sT1} offen {rflags} lds")
            if e < 4: I(f"s_add_u32 s{sT0}, s{sT0}, 1")

    def role_dma(lb=None, ne=8):
        if lb is None:
            I(f"s_lshl_b32 s{sT1}, s{sWAVE}, 13")
            I(f"s_add_u32 s{sT1}, s{sT1}, {L_ROLE}")
        else:
            I(f"s_mov_b32 s{sT1}, s{lb}")
        I(f"s_mov_b32 s{sT0}, s{sRB}")
        for e in range(ne):
            if e % 4 == 0:
                I(f"s_mov_b32 m0, s{sT1}")
                if e == 0:
                    I(f"s_add_u32 s{sT1}, s{sT1}, 4096")
            I(f"s_cmp_gt_u32 s{sRN}, {e}")
            I(f"s_cselect_b32 s{sT2}, s{sT0}, {BIG:#x}")
            I(f"buffer_load_dwordx4 v{vRDMA}, {TB}, s{sT2} offen offset:{(e%4)*1024} {rflags} lds")
            if e < 7:
                I(f"s_add_u32 s{sT0}, s{sT0}, s{sRSTEP}")
                if e % 4 == 3:
                    I(f"s_add_u32 s{sT0}, s{sT0}, 3072")
                else:
                    I(f"s_sub_u32 s{sT0}, s{sT0}, 1024")

    def rank_off(dst, rk, tmp):
        I(f"s_and_b32 s{tmp}, s{rk}, {(1 << ZB) - 1}")
        I(f"s_mul_i32 s{tmp}, s{tmp}, {ZR}")
        I(f"s_lshr_b32 s{dst}, s{rk}, {ZB}")
        I(f"s_lshl_b32 s{dst}, s{dst}, 14")
        I(f"s_add_u32 s{dst}, s{dst}, s{tmp}")

    I(f"s_cmp_ge_u32 s{sWAVE}, 5")
    I("s_cbranch_scc1 L_init567")
    I(f"v_bfe_u32 v{t0}, v{vLANE}, 3, 1")
    I(f"v_and_b32 v{t1}, 7, v{vLANE}")
    I(f"s_lshl_b32 s{sT1}, s{sWAVE}, 2")
    rank_off(sT0, sT1, sT2)
    I(f"v_mul_u32_u24 v{vGO}, {ZR}, v{t0}")
    I(f"v_mul_u32_u24 v{t1}, {ZX}, v{t1}")
    I(f"v_add3_u32 v{vGO}, v{vGO}, v{t1}, s{sT0}")
    I(f"v_lshl_add_u32 v{vGO}, v{g}, 4, v{vGO}")
    if q2:
        I(f"s_and_b32 s{sT0}, s{sSLOT}, 3")
        I(f"s_mul_i32 s{sT0}, s{sT0}, 5")
        I(f"s_lshl_b32 s{sT1}, s{sWAVE}, 2")
        I(f"s_add_u32 s{sT0}, s{sT0}, s{sT1}")
        I(f"s_lshl_b32 s{sT0}, s{sT0}, 6")
        I(f"v_and_b32 v{t0}, 1, v{q4}")
        I(f"v_lshlrev_b32 v{t0}, 7, v{t0}")
        I(f"v_lshl_add_u32 v{t0}, v{g}, 5, v{t0}")
        I(f"v_lshrrev_b32 v{t1}, 2, v{vLANE}")
        I(f"v_or_b32 v{t1}, v{t1}, v{vLANE}")
        I(f"v_and_b32 v{t1}, 2, v{t1}")
        I(f"v_lshl_add_u32 v{t0}, v{t1}, 3, v{t0}")
        I(f"v_add_u32 v{t0}, s{sT0}, v{t0}")
        I(f"v_subrev_u32 v{t1}, 1280, v{t0}")
        I(f"v_min_u32 v{vXO}, v{t0}, v{t1}")
        I(f"s_mul_i32 s{sT0}, s{sWAVE}, {PP}")
        I(f"v_lshlrev_b32 v{t2}, 3, v{g}")
        I(f"v_add_u32 v{t2}, s{sT0}, v{t2}")
        I(f"v_lshl_add_u32 v{vPQ}, v{n}, 4, v{t2}")
        I(f"v_add_u32 v{t2}, {L_PB1 + 512}, v{t2}")
        I(f"v_lshlrev_b32 v{t3}, 3, v{vLANE}")
        I(f"v_add_u32 v{t3}, {L_DUM}, v{t3}")
        I(f"v_lshlrev_b32 v{t0}, 2, v{g}")
        I(f"v_cmp_eq_u32 vcc, v{n}, v{t0}")
        I(f"v_cndmask_b32 v{vSW}, v{t3}, v{t2}, vcc")
        I("s_branch L_initc")
    I(f"s_mul_i32 s{sT0}, s{sWAVE}, {PP}")
    I(f"s_add_u32 s{sT0}, s{sT0}, {L_PB1 + 512}")
    I(f"v_lshlrev_b32 v{t2}, 2, v{g}")
    I(f"v_add_u32 v{t2}, s{sT0}, v{t2}")
    I(f"v_lshlrev_b32 v{t3}, 2, v{vLANE}")
    I(f"v_add_u32 v{t3}, {L_DUM}, v{t3}")
    I(f"v_cmp_eq_u32 vcc, v{q4}, v{g}")
    I(f"v_cndmask_b32 v{vSW}, v{t3}, v{t2}, vcc")
    I(f"s_mul_i32 s{sT0}, s{sWAVE}, {PP}")
    I(f"v_lshlrev_b32 v{vPQ}, 4, v{g}")
    I(f"v_add_u32 v{vPQ}, s{sT0}, v{vPQ}")
    I(f"s_and_b32 s{sT0}, s{sSLOT}, 3")
    I(f"s_lshl_b32 s{sT0}, s{sT0}, 2")
    I(f"s_lshl_b32 s{sKM}, 0x00010001, s{sT0}")
    I(f"s_mov_b32 s{sKM+1}, s{sKM}")
    I("s_branch L_initc")

    a.label("L_init567")
    I(f"s_cmp_eq_u32 s{sWAVE}, 6")
    I("s_cbranch_scc1 L_initc")
    I(f"s_cmp_eq_u32 s{sWAVE}, 7")
    I("s_cbranch_scc1 L_init7")
    rank_off(sT0, sR, sT1)
    I(f"s_mul_i32 s{sT1}, s{sX}, {ZX}")
    I(f"s_add_u32 s{sT0}, s{sT0}, s{sT1}")
    I(f"s_add_u32 s{sRB}, s{sT0}, {ZOFF}")
    I(f"v_lshlrev_b32 v{vRR}, 4, v{vLANE}")
    if q2:
        I(f"s_and_b32 s{sT0}, s{sQS}, {~2047 & 0xffffffff:#x}")
        I(f"s_and_b32 s{sT1}, s{sSLOT}, 6")
        I(f"s_lshl_b32 s{sT1}, s{sT1}, 5")
        I(f"s_add_u32 s{sT0}, s{sT0}, s{sT1}")
        I(f"s_and_b32 s{sT1}, s{sSLOT}, 1")
        I(f"s_lshl_b32 s{sT1}, s{sT1}, 3")
        I(f"s_add_u32 s{sT0}, s{sT0}, s{sT1}")
        I(f"v_lshlrev_b32 v{vQP}, 9, v{g}")
        I(f"v_and_b32 v{t0}, 1, v{vLANE}")
        I(f"v_lshl_add_u32 v{vQP}, v{t0}, 8, v{vQP}")
        I(f"v_and_b32 v{t0}, 2, v{vLANE}")
        I(f"v_lshl_add_u32 v{vQP}, v{t0}, 4, v{vQP}")
        I(f"v_and_b32 v{t0}, 8, v{vLANE}")
        I(f"v_lshl_add_u32 v{vQP}, v{t0}, 1, v{vQP}")
        I(f"v_and_b32 v{t0}, 4, v{vLANE}")
        I(f"v_add3_u32 v{vQP}, v{vQP}, v{t0}, s{sT0}")
        I(f"v_lshlrev_b32 v{vQG}, 4, v{n}")
        I(f"v_lshlrev_b32 v{vCSQ}, 3, v{c4}")
    else:
        I(f"v_lshlrev_b32 v{vQP}, 2, v{vLANE}")
        I(f"v_add_u32 v{vQP}, s{sQS}, v{vQP}")
        I(f"s_and_b32 s{sT0}, s{sQS}, {~2047 & 0xffffffff:#x}")
        I(f"v_lshlrev_b32 v{vQG}, 3, v{vLANE}")
        I(f"v_add_u32 v{vQG}, s{sT0}, v{vQG}")
    I(f"v_mov_b32 v{t0}, 0")
    I(f"v_mov_b32 v{t1}, 0")
    I(f"v_mov_b32 v{t2}, {L_FLAG}")
    I(f"ds_write_b64 v{t2}, v[{t0}:{t1}] offset:8")
    if emd: I(f"ds_write_b32 v{t2}, v{t0} offset:4")
    I(f"v_and_b32 v{t2}, 31, v{vLANE}")
    I(f"v_lshlrev_b32 v{t2}, 1, v{t2}")
    I(f"s_or_b32 s{sT2}, s{sROLE}, s{sX}")
    I(f"s_lshl_b32 s{sT1}, s{sR}, 6")
    I(f"s_cmp_eq_u32 s{sT2}, 0")
    I(f"s_cselect_b32 s{sT1}, s{sT1}, {BIG:#x}")
    I(f"buffer_load_ushort v{vXF}, v{t2}, {TB}, s{sT1} offen")
    I(f"v_lshrrev_b32 v{t1}, 3, v{vLANE}")
    I(f"v_lshlrev_b32 v{t1}, 4, v{t1}")
    I(f"v_add_u32 v{vRP}, s{sRB}, v{t1}")
    I(f"v_and_b32 v{t1}, 31, v{vLANE}")
    I(f"v_lshlrev_b32 v{t1}, 1, v{t1}")
    I(f"s_or_b32 s{sT2}, s{sROLE}, s{sX}")
    I(f"s_lshl_b32 s{sT1}, s{sR}, 6")
    I(f"s_add_u32 s{sT1}, s{sT1}, {XOFF}")
    I(f"s_cmp_eq_u32 s{sT2}, 0")
    I(f"s_cselect_b32 s{sT1}, s{sT1}, {BIG:#x}")
    I(f"v_add_u32 v{vXFA}, s{sT1}, v{t1}")
    I("s_branch L_initc")

    a.label("L_init7")
    I(f"v_lshlrev_b32 v{vCR}, 3, v{vLANE}")
    I(f"v_add_u32 v{vCR}, {L_O}, v{vCR}")
    I(f"v_and_b32 v{t0}, 7, v{vLANE}")
    I(f"v_lshlrev_b32 v{vCML}, 3, v{t0}")
    I(f"v_add_u32 v{vCML}, {L_ML}, v{vCML}")
    I(f"s_lshr_b32 s{sT0}, s{sSLOT}, 3")
    I(f"s_lshl_b32 s{sT1}, s{sT0}, 11")
    I(f"s_and_b32 s{sT2}, s{sSLOT}, 7")
    I(f"s_lshl_b32 s{sT3}, s{sT2}, 4")
    I(f"s_add_u32 s{sT1}, s{sT1}, s{sT3}")
    I(f"v_lshrrev_b32 v{t0}, 5, v{vLANE}")
    I(f"v_lshlrev_b32 v{vCP}, 10, v{t0}")
    I(f"v_lshl_add_u32 v{vCP}, v{q4}, 8, v{vCP}")
    I(f"v_and_b32 v{t0}, 1, v{g}")
    I(f"v_lshl_add_u32 v{vCP}, v{t0}, 7, v{vCP}")
    I(f"v_lshl_add_u32 v{vCP}, v{c4}, 2, v{vCP}")
    I(f"v_add_u32 v{vCP}, s{sT1}, v{vCP}")
    I(f"s_lshl_b32 s{sT0}, s{sT0}, 7")
    I(f"s_lshl_b32 s{sT2}, s{sT2}, 3")
    I(f"s_add_u32 s{sT0}, s{sT0}, s{sT2}")
    I(f"s_add_u32 s{sT0}, s{sT0}, {MLOFF}")
    I(f"v_mov_b32 v{vCPM}, s{sT0}")
    I(f"s_and_b32 s{sT0}, s{sQS}, {~2047 & 0xffffffff:#x}")
    I(f"v_lshlrev_b32 v{vQG7}, 3, v{vLANE}")
    I(f"v_add_u32 v{vQG7}, s{sT0}, v{vQG7}")

    a.label("L_initc")
    I(f"s_mov_b32 s{sRN}, 0")
    I(f"s_mov_b32 s{sRB}, 0")
    I(f"s_mov_b32 s{sRSTEP}, 0")
    srd(TB, 40, 4096 * 1280)
    I(f"v_lshrrev_b32 v{t0}, 2, v{vLANE}")
    I(f"v_lshlrev_b32 v{t1}, 4, v{c4}")
    I(f"s_cmp_eq_u32 s{sROLE}, 0")
    I("s_cbranch_scc0 L_rpd")
    I(f"s_lshl_b32 s{sT0}, s{sXW}, 3")
    I(f"s_add_u32 s{sT0}, s{sT0}, s{sWAVE}")
    I(f"s_lshr_b32 s{sT0}, s{sT0}, 1")
    hperm(sT0, sT0, sT1)
    I(f"s_lshl_b32 s{sT0}, s{sT0}, 1")
    I(f"s_and_b32 s{sT1}, s{sWAVE}, 1")
    I(f"s_add_u32 s{sT0}, s{sT0}, s{sT1}")
    I(f"s_mul_i32 s{sT0}, s{sT0}, {64*1280}")
    I(f"s_lshl_b32 s{sT1}, s{sR}, 6")
    I(f"s_add_u32 s{sRB}, s{sT0}, s{sT1}")
    I(f"s_mov_b32 s{sRSTEP}, {16*1280}")
    I(f"s_mov_b32 s{sRN}, 4")
    I(f"v_mul_u32_u24 v{vRDMA}, 1280, v{t0}")
    I(f"v_add_u32 v{vRDMA}, v{vRDMA}, v{t1}")
    I(f"s_lshr_b32 s{sT0}, s{sWAVE}, 1")
    I(f"s_lshl_b32 s{sT1}, s{sXW}, 2")
    I(f"s_add_u32 s{sT0}, s{sT0}, s{sT1}")
    I(f"s_lshl_b32 s{sT1}, s{sXW}, 3")
    I(f"s_add_u32 s{sT1}, s{sT1}, s{sWAVE}")
    I(f"s_lshl_b32 s{sT1}, s{sT1}, 10")
    I(f"v_lshlrev_b32 v{t2}, 4, v{vLANE}")
    I(f"v_add_u32 v{vA0}, s{sT1}, v{t2}")
    I(f"v_xor_b32 v{t2}, v{g}, v{q4}")
    I(f"v_and_b32 v{t2}, 1, v{t2}")
    I(f"v_lshl_add_u32 v{t2}, v{t2}, 2, v{c4}")
    I(f"v_lshlrev_b32 v{t2}, 3, v{t2}")
    I(f"s_lshl_b32 s{sT0}, s{sT0}, 7")
    I(f"s_add_u32 s{sT0}, s{sT0}, {MLOFF}")
    I(f"v_add_u32 v{vA2}, s{sT0}, v{t2}")
    a.label("L_rpd")

    I(f"s_mul_i32 s{sT0}, s{sWAVE}, {PP}")
    I(f"v_lshlrev_b32 v{vPW}, 4, v{n}")
    I(f"v_lshl_add_u32 v{vPW}, v{g}, 2, v{vPW}")
    I(f"v_add_u32 v{vPW}, s{sT0}, v{vPW}")
    I(f"v_lshl_add_u32 v{vQR}, v{g}, 2, v{c4}")
    I(f"v_lshlrev_b32 v{vQR}, 4, v{vQR}")
    I(f"v_add_u32 v{vQR}, {L_QB}, v{vQR}")
    I(f"s_lshl_b32 s{sT0}, s{sWAVE}, 10")
    I(f"s_add_u32 s{sT0}, s{sT0}, {L_O}")
    I(f"v_bfe_u32 v{t0}, v{vLANE}, 3, 1")
    I(f"v_lshlrev_b32 v{vOW}, 9, v{t0}")
    I(f"v_and_b32 v{t0}, 7, v{vLANE}")
    I(f"v_lshl_add_u32 v{vOW}, v{t0}, 5, v{vOW}")
    I(f"v_and_b32 v{t1}, 1, v{g}")
    I(f"v_lshl_add_u32 v{vOW}, v{t1}, 4, v{vOW}")
    I(f"v_add_u32 v{vOW}, s{sT0}, v{vOW}")
    I(f"s_lshl_b32 s{sT0}, s{sWAVE}, 3")
    I(f"s_add_u32 s{sT0}, s{sT0}, {L_ML}")
    I(f"v_lshlrev_b32 v{vMLW}, 3, v{vLANE}")
    I(f"v_add_u32 v{vMLW}, {L_DUM}, v{vMLW}")
    I(f"v_writelane_b32 v{vMLW}, s{sT0}, 63")
    if sm:
        I(f"v_and_b32 v{t0}, 4, v{vLANE}")
        I(f"v_cmp_eq_u32 vcc, 0, v{t0}")
        I(f"v_mov_b32 v{t1}, 0xffff")
        I(f"v_mov_b32 v{t2}, 0xffff0000")
        I(f"v_cndmask_b32 v{vSEL}, 0, v{t1}, vcc")
        I(f"v_cndmask_b32 v{vSEL+2}, 0, v{t2}, vcc")
        I(f"v_xor_b32 v{vSEL+1}, v{vSEL}, v{t1}")
        I(f"v_xor_b32 v{vSEL+3}, v{vSEL+2}, v{t2}")
        I(f"v_mul_u32_u24 v{t0}, 0x5555, v{c4}")
        I(f"v_and_b32 v{t1}, 2, v{vLANE}")
        I(f"v_mul_u32_u24 v{t1}, 0x5555, v{t1}")
        I(f"v_or_b32 v{t1}, 0x4444, v{t1}")
        I(f"v_lshl_or_b32 v{vSEL+4}, v{t0}, 16, v{t1}")
    for u in range(0 if sm else 2):
        for r in range(4):
            sb = 0x0100 if u == (r >> 1) else 0x0302
            d = vSEL + u * 4 + r
            I(f"v_mov_b32 v{d}, 0x0c0c0c0c")
            I(f"v_mov_b32 v{t1}, {0x0c0c0000 | sb:#x}")
            I(f"v_mov_b32 v{t2}, {(sb << 16) | 0x0c0c:#x}")
            I(f"v_cmp_eq_u32 vcc, {2*r}, v{t0}")
            I(f"v_cndmask_b32 v{d}, v{d}, v{t1}, vcc")
            I(f"v_cmp_eq_u32 vcc, {2*r+1}, v{t0}")
            I(f"v_cndmask_b32 v{d}, v{d}, v{t2}, vcc")

    def tr_addr(dst, pitch, base_s, x0=T + 48):
        x1 = x0 + 1
        I(f"v_lshrrev_b32 v{x0}, 4, v{vLANE}")
        I(f"v_bfe_u32 v{x1}, v{vLANE}, 2, 2")
        I(f"v_lshl_add_u32 v{x0}, v{x0}, 3, v{x1}")
        I(f"v_lshlrev_b32 v{x0}, {pitch.bit_length()-1}, v{x0}")
        I(f"v_and_b32 v{x1}, 3, v{vLANE}")
        I(f"v_lshl_add_u32 v{x0}, v{x1}, 3, v{x0}")
        I(f"v_add_u32 v{dst}, s{base_s}, v{x0}")

    def ones():
        for i in range(4):
            I(f"v_mov_b32 v{ONES+i}, 0x3f803f80")

    def gemv(ntile, Bbase, bidx):
        S1, S2 = T + 16, T + 20
        A0_, A1_ = vr(XA), vr(XA + 4)
        I(f"v_mfma_f32_16x16x32_bf16 {vr(S2)}, {A0_}, {A0_}, 0")
        I(f"v_mfma_f32_16x16x32_bf16 {vr(S2)}, {A1_}, {A1_}, {vr(S2)}")
        I(f"v_mfma_f32_16x16x32_bf16 {vr(S1)}, {A0_}, {vr(ONES)}, 0")
        I(f"v_mfma_f32_16x16x32_bf16 {vr(S1)}, {A1_}, {vr(ONES)}, {vr(S1)}")
        post = [
            f"v_pk_add_f32 v[{S2}:{S2+1}], v[{S2}:{S2+1}], v[{S2+2}:{S2+3}]",
            f"v_add_f32 v{S2}, v{S2}, v{S2+1}",
            f"v_add_f32_dpp v{S2}, v{S2}, v{S2} quad_perm:[1,0,3,2] row_mask:0xf bank_mask:0xf",
            f"v_pk_add_f32 v[{S1}:{S1+1}], v[{S1}:{S1+1}], v[{S1+2}:{S1+3}]",
            f"v_add_f32_dpp v{S2}, v{S2}, v{S2} quad_perm:[2,3,0,1] row_mask:0xf bank_mask:0xf",
            f"v_add_f32 v{S1}, v{S1}, v{S1+1}",
            f"v_add_f32_dpp v{S2}, v{S2}, v{S2} row_half_mirror row_mask:0xf bank_mask:0xf",
            f"ds_write2_b32 v{vSW}, v{S1}, v{S2} offset0:0 offset1:4",
        ]
        def dpost(t):
            D = T + 8 * t
            return [f"v_pk_add_f32 v[{D}:{D+1}], v[{D}:{D+1}], v[{D+2}:{D+3}]",
                    f"v_pk_add_f32 v[{D+4}:{D+5}], v[{D+4}:{D+5}], v[{D+6}:{D+7}]",
                    f"v_add_f32 v{D}, v{D}, v{D+1}",
                    f"v_add_f32_dpp v{D}, v{D+4}, v{D+5} quad_perm:[0,1,2,3] row_mask:0xc bank_mask:0xf",
                    f"ds_write_b32 v{vPW}, v{D} offset:{L_PB1 + t*256}"]
        for t in range(ntile):
            post += dpost(t)
        k = 0
        for t in range(ntile):
            for j in range(2):
                D = T + 8 * t + 4 * j
                for h in range(2):
                    I(f"v_mfma_f32_16x16x32_bf16 {vr(D)}, {(A0_, A1_)[h]}, {vr(Bbase+4*bidx(2*h+j,t))}, {vr(D) if h else '0'}")
                    k += 1
                    if k >= 5 and k < 4 * ntile:
                        for x in post[:2]: I(x)
                        post = post[2:]
        for x in post: I(x)
        I("s_waitcnt lgkmcnt(0)")

    def gemv_q(first=False):
        S1, S2 = T + 16, T + 20
        for t in range(4):
            I(f"v_mfma_f32_16x16x32_bf16 {vr(T+4*t)}, {vr(vBQ+4*t)}, {vr(XA)}, 0")
        I(f"v_mfma_f32_16x16x32_bf16 {vr(S1)}, {vr(XA)}, {vr(ONES)}, 0")
        I(f"v_mfma_f32_16x16x32_bf16 {vr(S2)}, {vr(XA)}, {vr(XA)}, 0")
        if first:
            for t in range(4):
                I(f"v_mfma_f32_16x16x32_bf16 {vr(vRB+4*t)}, {vr(vBQ+4*t)}, {vr(ONES)}, 0")
        I(f"s_mov_b64 exec, s[{sKM}:{sKM+1}]")
        for t in range(4):
            I(f"ds_write_b128 v{vPQ}, {vr(T+4*t)} offset:{L_PB1 + t*64}")
        if first:
            for t in range(4):
                I(f"ds_write_b128 v{vPQ}, {vr(vRB+4*t)} offset:{L_PB1 + 256 + t*64}")
        I("s_mov_b64 exec, -1")
        I(f"ds_write2_b32 v{vSW}, v{S1}, v{S2} offset0:0 offset1:4")
        I("s_waitcnt lgkmcnt(0)")

    def gather(sreg):
        poll([f"buffer_load_dwordx4 {vr(XA)}, v{vGO}, {WS}, s{sreg} offen {zfl}",
              f"buffer_load_dwordx4 {vr(XA+4)}, v{vGO}, {WS}, s{sreg} offen offset:{2*ZR} {zfl}"],
             [XA, XA + 4], groups=[[XA], [XA + 4]], hop=2)

    def reduce_read(nw, base):
        for v in range(nw):
            I(f"ds_read_b128 {vr(T+4*v)}, v{vRR} offset:{base + v*PP}")

    def reduce_sum(nw, dst):
        np_ = 2 * nw
        idx = list(range(np_))
        while len(idx) > 1:
            nx = []
            for i in range(0, len(idx) - 1, 2):
                d, s = idx[i], idx[i + 1]
                I(f"v_pk_add_f32 v[{T+2*d}:{T+2*d+1}], v[{T+2*d}:{T+2*d+1}], v[{T+2*s}:{T+2*s+1}]")
                nx.append(d)
            if len(idx) % 2:
                nx.append(idx[-1])
            idx = nx
        I(f"v_add_f32 v{dst}, v{T}, v{T+1}")

    rTOT, rMEAN, rVAR, rMB, rSD, rR, rU, rT, rINV, rC1, rC2, rCS = [T + 32 + i for i in range(12)]

    def cs_read(area, dst):
        l = a.newlab("Lcs")
        I(f"s_cmp_eq_u32 s{sIT}, 0")
        I(f"s_cbranch_scc0 {l}")
        I(f"v_lshrrev_b32 v{rT}, 2, v{vRR}")
        for v in range(5):
            I(f"ds_read_b32 v{T+24+v}, v{rT} offset:{area + v*128}")
        I("s_waitcnt lgkmcnt(0)")
        I(f"v_add_f32 v{dst}, v{T+24}, v{T+25}")
        I(f"v_add_f32 v{rT}, v{T+26}, v{T+27}")
        I(f"v_add_f32 v{dst}, v{dst}, v{T+28}")
        I(f"v_add_f32 v{dst}, v{dst}, v{rT}")
        a.label(l)

    def stats(l0=32):
        if l0 is not None:
            I(f"v_readlane_b32 s{sT0}, v{rTOT}, {l0}")
            I(f"v_readlane_b32 s{sT1}, v{rTOT}, {l0+1}")
            I(f"v_mul_f32 v{rMEAN}, s{sT0}, v{rINV}")
            I(f"v_mul_f32 v{rVAR}, s{sT1}, v{rINV}")
        I(f"v_fma_f32 v{rVAR}, -v{rMEAN}, v{rMEAN}, v{rVAR}")
        I(f"v_max_f32 v{rVAR}, 0, v{rVAR}")
        I(f"v_cvt_pk_bf16_f32 v{rT}, v{rMEAN}, v{rVAR}")
        I(f"v_and_b32 v{rU}, 0xffff0000, v{rT}")
        I(f"v_lshlrev_b32 v{rMB}, 16, v{rT}")
        I(f"v_add_f32 v{rU}, {f2u(1e-5):#x}, v{rU}")
        I(f"v_cvt_pk_bf16_f32 v{rU}, v{rU}, v{rU}")
        I(f"v_and_b32 v{rU}, 0xffff0000, v{rU}")
        I(f"v_sqrt_f32 v{rU}, v{rU}")
        I(f"v_cvt_pk_bf16_f32 v{rU}, v{rU}, v{rU}")
        I(f"v_and_b32 v{rSD}, 0xffff0000, v{rU}")
        I(f"v_rcp_f32 v{rR}, v{rSD}")

    def pack_pairs(src, dst):
        I(f"v_mov_b32_dpp v{rT}, v{src} quad_perm:[1,0,3,2] row_mask:0xf bank_mask:0xf")
        I(f"v_cvt_pk_bf16_f32 v{dst}, v{src}, v{rT}")
        I(f"v_min_u32 v{dst}, 0xfffffffe, v{dst}")

    def q_reduce(first=False):
        qa, qs, QS = T + 44, T + 45, T + 20
        I(f"v_lshlrev_b32 v{qa}, 2, v{vLANE}")
        I(f"v_and_b32 v{qs}, 1, v{vLANE}")
        if sm:
            I(f"v_and_b32 v{T+46}, 0x34, v{vLANE}")
            I(f"v_lshl_add_u32 v{T+46}, v{qs}, 3, v{T+46}")
            I(f"v_bfe_u32 v{T+47}, v{vLANE}, 3, 1")
            I(f"v_lshl_add_u32 v{T+46}, v{T+47}, 1, v{T+46}")
            I(f"v_bfe_u32 v{T+47}, v{vLANE}, 1, 1")
            I(f"v_add_lshl_u32 v{T+46}, v{T+46}, v{T+47}, 2")
        I(f"v_lshlrev_b32 v{qs}, 4, v{qs}")
        return qa, qs, QS

    def q_reduce2(qa, qs, QS, first=False):
        for v in range(5):
            I(f"ds_read_b128 {vr(T+4*v)}, v{qs} offset:{L_PB1 + 512 + v*PP}")
        for v in range(5):
            I(f"ds_read_b32 v{QS+v}, v{qa} offset:{L_PB1 + v*PP}")
        if first:
            for v in range(5):
                I(f"ds_read_b32 v{QS+5+v}, v{qa} offset:{L_PB1 + 256 + v*PP}")
        I(f"s_waitcnt lgkmcnt({10 if first else 5})")
        reduce_sum(5, rTOT)
        stats(0)
        I("s_waitcnt lgkmcnt(0)")
        I(f"v_add_f32 v{QS}, v{QS}, v{QS+1}")
        I(f"v_add_f32 v{QS+2}, v{QS+2}, v{QS+3}")
        I(f"v_add_f32 v{QS}, v{QS}, v{QS+4}")
        I(f"v_add_f32 v{QS}, v{QS}, v{QS+2}")
        if first:
            I(f"v_add_f32 v{vCSQ}, v{QS+5}, v{QS+6}")
            I(f"v_add_f32 v{QS+7}, v{QS+7}, v{QS+8}")
            I(f"v_add_f32 v{vCSQ}, v{vCSQ}, v{QS+9}")
            I(f"v_add_f32 v{vCSQ}, v{vCSQ}, v{QS+7}")
        I(f"v_fma_f32 v{rU}, -v{rMB}, v{vCSQ}, v{QS}")
        I(f"v_mul_f32 v{rU}, v{rU}, v{rR}")
        I(f"v_min_u32 v{rU}, 0xfffffffe, v{rU}")

    def q_gather(va, qa):
        G_ = 60 if y128 else T
        poll([f"buffer_load_dwordx2 v[{G_+2*k}:{G_+2*k+1}], v{va}, {WS}, s{sREG} offen offset:{k*512} sc1" for k in range(4)],
             list(range(G_, G_ + 8)), groups=[[G_ + 2 * k, G_ + 2 * k + 1] for k in range(4)], hop=16 if y128 else 0)
        Z_ = T + 40 if zq else T
        I(f"v_pk_add_f32 v[{Z_}:{Z_+1}], v[{G_}:{G_+1}], v[{G_+2}:{G_+3}]")
        I(f"v_pk_add_f32 v[{Z_+2}:{Z_+3}], v[{G_+4}:{G_+5}], v[{G_+6}:{G_+7}]")
        I(f"v_pk_add_f32 v[{Z_}:{Z_+1}], v[{Z_}:{Z_+1}], v[{Z_+2}:{Z_+3}]")
        I(f"v_cvt_pk_bf16_f32 v{Z_}, v{Z_}, v{Z_+1}")
        I(f"ds_write_b32 v{T+46 if sm else qa}, v{Z_} offset:{L_QB}")

    def lds_wait(off, val, ge=False):
        lab = a.newlab("Lw"); done = a.newlab("Lwd")
        I(f"v_mov_b32 v{T+47}, {L_FLAG}")
        a.label(lab)
        I(f"ds_read_b32 v{T+46}, v{T+47} offset:{off}")
        I(f"s_add_u32 s{sSPIN}, s{sSPIN}, 1")
        I("s_waitcnt lgkmcnt(0)")
        I(f"v_readfirstlane_b32 s{sT3}, v{T+46}")
        I(f"s_cmp_{'ge' if ge else 'eq'}_u32 s{sT3}, {val}")
        I(f"s_cbranch_scc1 {done}")
        I(f"s_cmp_lt_u32 s{sSPIN}, {spin_limit}")
        I(f"s_cbranch_scc1 {lab}")
        a.label(done)

    def sp(p):
        if prio: I(f"s_setprio {p}")

    I(f"v_mov_b32 v{rINV}, {f2u(1.0/640):#x}")
    I("s_waitcnt lgkmcnt(0)")
    I("s_barrier")
    TS(1)
    I(f"s_cmp_ge_u32 s{sWAVE}, 4")
    I("s_cbranch_scc1 L_s4567")
    srd(TA, 38, 640 * 8192)
    w_issue(nw0, RSL)
    TS(37)
    tr_addr(ta0, 64, sPER, T + 25)
    I(f"s_sub_u32 s{sPER}, s{sRING}, s{sPER}")
    I(f"v_bfe_u32 v{T+25}, v{vLANE}, 4, 1")
    I(f"v_lshl_add_u32 v{ta0}, v{T+25}, 5, v{ta0}")
    I(f"v_xor_b32 v{ta1}, 32, v{ta0}")
    I(f"s_waitcnt vmcnt({nis[0] - 5})")
    setexec(0x22222222, 0x22222222)
    for i in range(20):
        I(f"v_mov_b32 v{XQ+i}, 0x3f803f80")
    setexec(0xFFFFFFFF, 0xFFFFFFFF)
    for j in range(5):
        I(f"v_mfma_f32_16x16x32_bf16 {vr(BUF)}, {vr(XQ+4*j)}, {vr(XQ+4*j)}, {vr(BUF) if j else '0'}")
    for i in range(4):
        I(f"v_readlane_b32 s{sF+i}, v{BUF}, {20*i+1}")
        I(f"v_readlane_b32 s{sF+4+i}, v{BUF}, {20*i}")
    I(f"v_mov_b32 v{rMEAN}, s{sF}")
    I(f"v_mov_b32 v{rVAR}, s{sF+4}")
    for i in range(1, 4):
        I(f"v_add_f32 v{rMEAN}, s{sF+i}, v{rMEAN}")
        I(f"v_add_f32 v{rVAR}, s{sF+4+i}, v{rVAR}")
    I(f"v_mul_f32 v{rMEAN}, v{rMEAN}, v{rINV}")
    I(f"v_mul_f32 v{rVAR}, v{rVAR}, v{rINV}")
    stats(None)
    I(f"v_readfirstlane_b32 s{sMB}, v{rMB}")
    I(f"v_readfirstlane_b32 s{sRS_}, v{rR}")
    TS(2)
    def q_mma(u):
        for t in range(2):
            acc = ACC + 16 * t + 4 * (u & 3)
            I(f"v_mfma_f32_16x16x32_bf16 {vr(acc)}, {vr(BUF + 8*(u%4) + 4*t)}, {vr(XQ+4*(u>>2))}, {vr(acc) if u >= 4 else '0'}")
    for u in range(20):
        I(f"s_waitcnt vmcnt({nis[0] - wpos[2*u+1] - 1})")
        if u == 0: TS(38)
        o = slot(2 * u)[1]
        if 2 * u == (RSL if q2 else NPER):
            I(f"v_add_u32 v{ta0}, s{sPER}, v{ta0}")
            I(f"v_add_u32 v{ta1}, s{sPER}, v{ta1}")
        for t in range(2):
            b = BUF + 8 * (u % 4) + 4 * t
            I(f"ds_read_b64_tr_b16 v[{b}:{b+1}], v{(ta0, ta1)[t]} offset:{o}")
            I(f"ds_read_b64_tr_b16 v[{b+2}:{b+3}], v{(ta0, ta1)[t]} offset:{o+256}")
        if u:
            I("s_waitcnt lgkmcnt(4)")
            q_mma(u - 1)
            p = 2 * (u - 1) + NREST
            if RSL <= p < 40:
                w_issue(p, p + 2)
                if p + 2 == 40:
                    k_issue(nk[0], qk)
                    nis[0] += qk - nk[0]
                    TS(39)
    I(f"v_mov_b32 v{BUF+0}, {L_FLAG}")
    I(f"v_mov_b32 v{BUF+1}, 1")
    I(f"v_lshrrev_b32 v{BUF+2}, 4, v{vLANE}")
    if sm:
        I(f"v_and_b32 v{BUF+3}, 2, v{BUF+2}")
        I(f"v_add_lshl_u32 v{BUF+2}, v{BUF+2}, v{BUF+3}, 2")
    else:
        I(f"v_lshlrev_b32 v{BUF+2}, 3, v{BUF+2}")
    I(f"s_lshl_b32 s{sT0}, s{sWAVE}, 6")
    if sm: I(f"s_add_u32 s{sT0}, s{sT0}, {L_QB}")
    I(f"v_add_u32 v{BUF+2}, s{sT0}, v{BUF+2}")
    I(f"v_mov_b32 v{BUF+3}, s{sMB}")
    I(f"v_xor_b32 v{BUF+3}, 0x80000000, v{BUF+3}")
    I("s_waitcnt lgkmcnt(0)")
    q_mma(19)
    for aa in range(1, 4):
        for t in range(2):
            for i in range(4):
                d = ACC + 16 * t + i
                I(f"v_add_f32_dpp v{d}, v{d+4*aa}, v{d} row_shl:{4*aa} row_mask:0xf bank_mask:0xf")
    for t in range(2):
        for i in range(4):
            d = ACC + 16 * t + i
            I(f"v_fmac_f32_dpp v{d}, v{d}, v{BUF+3} quad_perm:[1,1,1,1] row_mask:0xf bank_mask:0xf")
    for t in range(2):
        for i in range(4):
            d = ACC + 16 * t + i
            I(f"v_mul_f32 v{d}, s{sRS_}, v{d}")
    for t in range(2):
        d = ACC + 16 * t
        I(f"v_cvt_pk_bf16_f32 v{d}, v{d}, v{d+1}")
        I(f"v_cvt_pk_bf16_f32 v{d+1}, v{d+2}, v{d+3}")
    setexec(0x00010001, 0x00010001)
    for t in range(2):
        d = ACC + 16 * t
        if sm: I(f"ds_write2_b32 v{BUF+2}, v{d}, v{d+1} offset0:{2*t} offset1:{2*t+8}")
        else: I(f"ds_write_b64 v{BUF+2}, v[{d}:{d+1}] offset:{L_QB + 32*t}")
    setexec(1, 0)
    I("s_waitcnt lgkmcnt(0)")
    I(f"ds_add_u32 v{BUF+0}, v{BUF+1} offset:12")
    setexec(0xFFFFFFFF, 0xFFFFFFFF)
    TS(5)
    sp(sp1)
    k_issue(qk, 16)
    I("s_branch L_vall")

    a.label("L_s4567")
    I(f"s_cmp_eq_u32 s{sWAVE}, 6")
    I("s_cbranch_scc0 L_krest")
    sp(3)
    I(f"s_mov_b32 s{sVOTE}, 0")
    I(f"s_sub_u32 s{sT0}, s{sR}, {calr}")
    I(f"s_cmp_lt_u32 s{sT0}, {ncal}")
    I("s_cbranch_scc0 L_ncal")
    MK = 0x13579bdf
    I(f"s_lshl_b32 s{sT0}, s{sT0}, 3")
    I(f"s_add_u32 s{sT0}, s{sT0}, s{sX}")
    I(f"s_lshl_b32 s{sT0}, s{sT0}, 7")
    I(f"s_add_u32 s88, s{sT0}, {CALOFF + 0x10000}")
    I(f"s_load_dword s86, s[56:57], s88 glc")
    I(f"s_add_u32 s{sT0}, s{sT0}, {CALOFF}")
    I(f"s_lshl_b32 s{sVOTE}, s{sR}, 13")
    I(f"s_and_b32 s{sVOTE}, s{sVOTE}, {CP}")
    I(f"s_add_u32 s{sT0}, s{sT0}, s{sVOTE}")
    I(f"s_xor_b32 s{sT3}, s{sT0}, {CP}")
    I(f"s_lshr_b32 s{sVOTE}, s{sVOTE}, 13")
    I(f"s_lshr_b32 s88, s{sXCC}, 2")
    I(f"s_xor_b32 s{sVOTE}, s{sVOTE}, s88")
    I("s_waitcnt lgkmcnt(0)")
    for k, (ad, cnt) in enumerate(((sT0, 88), (sT3, 89))):
        I(f"s_mov_b32 s86, {MK:#x}")
        I(f"s_mov_b32 s{cnt}, 0")
        I(f"s_load_dword s86, s[56:57], s{ad} glc")
        a.label(f"L_cal{k}")
        I(f"s_add_u32 s{cnt}, s{cnt}, 1")
        I(f"s_cmp_eq_u32 s86, {MK:#x}")
        I(f"s_cselect_b32 s87, s{cnt}, 1000")
        I(f"s_cmp_lt_u32 s87, 200")
        I(f"s_cbranch_scc1 L_cal{k}")
        I("s_waitcnt lgkmcnt(0)")
    I(f"s_cmp_gt_u32 s88, s89")
    I(f"s_cselect_b32 s{sT0}, 1, 0")
    I(f"s_xor_b32 s{sVOTE}, s{sVOTE}, s{sT0}")
    I(f"s_and_b32 s{sVOTE}, s{sVOTE}, 1")
    I(f"s_lshl_b32 s{sVOTE}, s{sVOTE}, 24")
    a.label("L_ncal")
    I(f"s_mul_i32 s{sT0}, s{sXCC}, 6")
    I(f"s_lshl_b64 s[{sF}:{sF+1}], 1, s{sT0}")
    I(f"s_cmp_lt_u32 s{sXCC}, 8")
    I(f"s_cselect_b32 s{sF}, s{sF}, 0")
    I(f"s_cselect_b32 s{sF+1}, s{sF+1}, 0")
    I(f"s_or_b32 s{sF+1}, s{sF+1}, 0x10000")
    I(f"s_or_b32 s{sF+1}, s{sF+1}, s{sVOTE}")
    srd(TA, 54, 256)
    I(f"v_mov_b32 v{vAT}, s{sF}")
    I(f"v_mov_b32 v{vAT+1}, s{sF+1}")
    I(f"s_lshl_b32 s{sT0}, s{sX}, {ast}")
    I(f"v_mov_b32 v{vAT+2}, s{sT0}")
    TS(33)
    I("s_waitcnt vmcnt(0)")
    setexec(1, 0)
    I(f"buffer_atomic_add_x2 v[{vAT}:{vAT+1}], v{vAT+2}, {TA}, 0 offen offset:{128 if ast == 4 else 0} sc1")
    setexec(0xFFFFFFFF, 0xFFFFFFFF)
    TS(32)
    sp(0)
    k_issue(0, n0)
    a.label("L_krest")
    k_issue(n0, 16)
    a.label("L_vall")
    v_issue()
    if the:
        I("s_mov_b32 s97, 0")
        I(f"s_cmp_eq_u32 s{sROLE}, 0")
        I("s_cbranch_scc1 L_the")
        I(f"v_lshrrev_b32 v{T+49}, 3, v{vLANE}")
        I(f"v_lshlrev_b32 v{T+49}, 7, v{T+49}")
        I(f"v_and_b32 v{T+50}, 7, v{vLANE}")
        I(f"v_lshl_add_u32 v{T+49}, v{T+50}, 3, v{T+49}")
        I(f"v_mov_b32 v{T+50}, -1")
        I(f"s_lshl_b32 s{sT1}, s{sXW}, 9")
        I(f"s_add_u32 s{sT1}, s{sT1}, {MLOFF}")
        setexec(0xFFFFFFFF, 0)
        I(f"buffer_load_dword v{T+50}, v{T+49}, {WS}, s{sT1} offen sc1")
        setexec(0xFFFFFFFF, 0xFFFFFFFF)
        a.label("L_the")
    if pst == 1: pf_static("L_ps", True)
    if pst >= 4 and (pst != 6 or pi): pf_static("L_ps", True, 1)
    TS(31)
    OA2, PS2, MI2 = (T + 36, T + 48, 28) if q2 == 3 else (T + 24, T + 32, 28)
    def att_pre(hi=44):
        for i in (range(4, hi) if q2 == 3 else range(32)):
            I(f"v_mov_b32 v{T+i}, 0")
        I(f"v_mov_b32 v{MI2+2}, {SCALE:#x}")
        I(f"v_mov_b32 v{MI2+3}, {SCALE:#x}")
        I(f"v_mov_b32 v{MI2+1}, s{sL2E}")
    def q_masked(fmt):
        setexec(0x000F000F, 0x000F000F)
        for t in range(4):
            I(fmt(T + 4 * t))
            I("s_lshl_b64 exec, exec, 4" if t < 3 else "s_mov_b64 exec, -1")
    if q2 >= 2: att_pre()
    for i in (range(0) if q2 >= 2 else range(4, 36) if q2 else range(24 if sm else 16)):
        I(f"v_mov_b32 v{T+i}, 0")
    if gate:
        I(f"v_mov_b32 v{T+44}, {L_FLAG}")
        I(f"v_mov_b32 v{T+45}, 1")
        setexec(1, 0)
        I(f"ds_add_u32 v{T+44}, v{T+45} offset:8")
        setexec(0xFFFFFFFF, 0xFFFFFFFF)
    lds_wait(12, 4, ge=True)
    TS(8)
    if q2 in (1, 3): I(f"ds_read_b128 {vr(T)}, v{vQR}")
    if q2 == 2:
        q_masked(lambda r_: f"ds_read_b128 {vr(r_)}, v{vQR}")
        I(f"s_mov_b64 s[{sKM}:{sKM+1}], 0")
    I("s_branch L_att")

    a.label("L_loop")
    I(f"s_cmp_eq_u32 s{sWAVE}, 6")
    I("s_cbranch_scc0 L_nsub")
    I(f"s_cmp_eq_u32 s{sROLE}, 0")
    if g3:
        I("s_cbranch_scc1 L_sub")
        I(f"s_cmp_lt_u32 s{sTB}, 54")
        I("s_cbranch_scc1 L_G3")
        I(f"s_and_b32 s{sT0}, s{sR}, 7")
        I(f"s_lshl_b32 s{sT0}, s{sT0}, 14")
        I(f"s_add_u32 s{sT0}, s{sT0}, s{sNEAR}")
        I(f"s_add_u32 s{sT0}, s{sT0}, {YOFF}")
        I(f"v_lshlrev_b32 v{T}, 7, v{vLANE}")
        light(f"buffer_load_dword v{T+1}, v{T}, {WS}, s{sT0} offen sc1", T + 1, (3, 0))
        I("s_branch L_G3")
        a.label("L_sub")
    else:
        I("s_cbranch_scc0 L_B1")
    SL, YD, YA, ya0, ya1, yo = T + 20, T, T + 24, T + 28, T + 29, T + 30
    srd(TA, 50, 1280)
    I(f"v_lshlrev_b32 v{ya0}, 4, v{vLANE}")
    for i in range(4):
        I(f"v_mov_b32 v{YD+i}, 0")
    I(f"s_lshl_b32 s{sT2}, s{sR}, 6")
    if m2:
        yz2 = T + 32
        I(f"v_and_b32 v{yz2}, 3, v{vLANE}")
        I(f"v_lshlrev_b32 v{ya1}, 3, v{yz2}")
        I(f"v_sub_u32 v{yz2}, v{ya0}, v{ya1}")
        setexec(0, 0xF)
        I(f"buffer_load_dwordx2 v[{YD}:{YD+1}], v{ya1}, {TA}, s{sT2} offen")
        I(f"buffer_load_dwordx2 v[{YD+2}:{YD+3}], v{ya1}, {TA}, s{sT2} offen offset:32")
    else:
        I(f"v_subrev_u32 v{ya1}, 512, v{ya0}")
        setexec(0, 0xF)
        I(f"buffer_load_dwordx4 {vr(YD)}, v{ya1}, {TA}, s{sT2} offen")
    setexec(0xFFFFFFFF, 0xFFFFFFFF)
    I(f"v_and_b32 v{yo}, 15, v{vLANE}")
    I(f"v_mov_b32 v{YA}, 0x3f80")
    I(f"v_mov_b32 v{YA+1}, 0x3f800000")
    for q_ in range(4):
        I(f"v_cmp_eq_u32 vcc, {2*q_}, v{yo}")
        I(f"v_cndmask_b32 v{SL+q_}, 0, v{YA}, vcc")
        I(f"v_cmp_eq_u32 vcc, {2*q_+1}, v{yo}")
        I(f"v_cndmask_b32 v{SL+q_}, v{SL+q_}, v{YA+1}, vcc")
    yw = T + 31
    I(f"v_and_b32 v{yw}, 0x3c0, v{ya0}")
    I(f"v_add_u32 v{yw}, v{yw}, v{ya0}")
    yz = yw if zx == 128 else ya0
    yy = yw if y128 else ya0
    I(f"v_mov_b32 v{ya1}, {BIG:#x}")
    I(f"v_cmp_gt_u32 vcc, 24, v{vLANE}")
    I(f"v_cndmask_b32 v{ya1}, v{ya1}, v{yy}, vcc")
    I(f"v_lshlrev_b32 v{yo}, {3 if m2 else 4}, v{yo}")
    I(f"v_lshrrev_b32 v{YA}, 4, v{vLANE}")
    I(f"v_lshl_add_u32 v{yo}, v{YA}, {5 if m2 else 3}, v{yo}")
    I(f"v_add_u32 v{yo}, s{sT2}, v{yo}")
    rank_off(sT0, sR, sT1)
    I(f"s_add_u32 s{sT3}, s{sREG}, s{sNEAR}")
    I(f"s_add_u32 s{sT0}, s{sT0}, s{sT3}")
    I(f"s_add_u32 s{sT0}, s{sT0}, {ZOFF - RS & 0xffffffff:#x}")
    if sl == 1:
        I(f"s_xor_b32 s{sT1}, s{sX}, 4")
        I(f"s_lshl_b32 s{sT1}, s{sT1}, 2")
        I(f"s_lshl_b32 exec_lo, 1, s{sT1}")
        I(f"s_mov_b32 exec_hi, 0")
        light(f"buffer_load_dword v{T+50}, v{yz2}, {WS}, s{sT0} offen sc1", T + 50)
    if sl >= 2:
        I(f"s_add_u32 s{sT1}, s{sT0}, {YOFF - ZOFF:#x}")
        setexec(1, 0)
        for _ in range(sl - 1):
            I(f"buffer_load_dword v{T+50}, v{yz2}, {WS}, s{sT1} offen sc1")
            I("s_waitcnt vmcnt(0)")
    setexec(0xFFFFFFFF, 0)
    if m2:
        poll([f"buffer_load_dwordx2 v[{YD}:{YD+1}], v{yz2}, {WS}, s{sT0} offen sc1",
              f"buffer_load_dwordx2 v[{YD+2}:{YD+3}], v{yz2}, {WS}, s{sT0} offen offset:32 sc1"], [YD, YD + 2], ex=(0xFFFFFFFF, 0))
    else:
        poll([f"buffer_load_dwordx4 {vr(YD)}, v{yz}, {WS}, s{sT0} offen sc1"], [YD], ex=(0xFFFFFFFF, 0))
    setexec(0xFFFFFFFF, 0xFFFFFFFF)
    I(f"v_mfma_f32_16x16x32_bf16 {vr(YA)}, {vr(SL)}, {vr(YD)}, 0")
    if m2:
        yi, y1_ = T + 33, T + 34
        I(f"v_and_b32 v{yi}, 10, v{vLANE}")
        I(f"v_mov_b32 v{y1_}, 0x3f80")
        I(f"v_cmp_eq_u32 vcc, 0, v{yi}")
        I(f"v_cndmask_b32 v{SL}, 0, v{y1_}, vcc")
        I(f"v_cndmask_b32 v{SL+2}, 0, v{y1_}, vcc")
        I(f"v_cmp_eq_u32 vcc, 2, v{yi}")
        I(f"v_cndmask_b32 v{SL+1}, 0, v{y1_}, vcc")
        I(f"v_cndmask_b32 v{SL+3}, 0, v{y1_}, vcc")
        I(f"v_and_b32 v{yi}, 1, v{vLANE}")
        I(f"v_bfe_u32 v{y1_}, v{vLANE}, 2, 1")
        I(f"v_lshl_add_u32 v{yi}, v{yi}, 1, v{y1_}")
        I(f"v_mul_u32_u24 v{yi}, 0x5555, v{yi}")
    I(f"s_and_b32 s{sT0}, s{sR}, 1")
    I(f"s_lshl_b32 s{sT0}, s{sT0}, {6 if y128 else 12}")
    I(f"s_lshr_b32 s{sT1}, s{sR}, 1")
    I(f"s_lshl_b32 s{sT1}, s{sT1}, 14")
    I(f"s_add_u32 s{sT0}, s{sT0}, s{sT1}")
    I(f"s_add_u32 s{sT0}, s{sT0}, s{sT3}")
    I(f"s_add_u32 s{sT0}, s{sT0}, {YOFF - RS & 0xffffffff:#x}")
    I(f"s_add_u32 s{sT1}, s{sT0}, {4096 if y128 else 2048}")
    I(f"s_lshl_b32 s{sT2}, s{sX}, 11")
    I(f"s_add_u32 s{sT2}, s{sT2}, {XOFF}")
    if yh:
        I(f"v_lshlrev_b32 v{T+49}, 7, v{vLANE}")
        I(f"s_andn2_b32 s86, s{sT0}, 64")
        I(f"s_add_u32 s86, s86, {56*128}")
    I("s_nop 7")
    TS(26)
    if p5 & 16: I("s_setprio 3")
    if yh:
        light_all(f"buffer_load_dword v{T+50}, v{T+49}, {WS}, s86 offen sc1", T + 50, (yhm, 0))
    elif yl:
        light(f"buffer_load_dword v{YD}, v{yy}, {WS}, s{sT0} offen {yfl}", YD, (ylm & 0xffffffff, ylm >> 32) if ylm else ((1 << yl) - 1, 0))
    if g3:
        I(f"s_cmp_eq_u32 s{sIT}, 2")
        I("s_cbranch_scc1 L_G3s")
        I("s_barrier")
        a.label("L_G3s")
    poll([f"buffer_load_dwordx4 {vr(YD+4*e)}, v{ya1 if e == 3 else yy}, {WS}, s{(sT0, sT1)[e >> 1]} offen offset:{(e & 1)*(2048 if y128 else 1024)} {yfl}" for e in range(4)],
         [YD + k for k in range(16)] if m2 else [YD + 2 * k for k in range(8)],
         groups=[list(range(YD + 4 * e, YD + 4 * e + 4)) if m2 else [YD + 4 * e, YD + 4 * e + 2] for e in range(4)], hop=4)
    TS(27)
    for e in range(2 if m2 else 4):
        if m2: I(f"v_smfmac_f32_16x16x64_bf16 {vr(YA)}, {vr(SL)}, {vr(YD+8*e, 8)}, v{yi}")
        else: I(f"v_mfma_f32_16x16x32_bf16 {vr(YA)}, {vr(SL)}, {vr(YD+4*e)}, {vr(YA)}")
    for m_ in (4, 8):
        for i in range(4):
            I(f"v_add_f32_dpp v{YA+i}, v{YA+i}, v{YA+i} row_ror:{m_} row_mask:0xf bank_mask:0xf")
    I(f"v_cvt_pk_bf16_f32 v{YA}, v{YA}, v{YA+1}")
    I(f"v_cvt_pk_bf16_f32 v{YA+1}, v{YA+2}, v{YA+3}")
    setexec(0x000F000F, 0)
    I(f"s_cmp_eq_u32 s{sIT}, 2")
    I("s_cbranch_scc0 L_lead1")
    I(f"buffer_store_dwordx2 v[{YA}:{YA+1}], v{yo}, {OUTS}, 0 offen")
    setexec(0xFFFFFFFF, 0xFFFFFFFF)
    TS(29)
    I("s_branch L_fin")
    a.label("L_lead1")
    I(f"v_min_u32 v{YA}, 0xfffffffe, v{YA}")
    I(f"v_min_u32 v{YA+1}, 0xfffffffe, v{YA+1}")
    lstore([f"buffer_store_dwordx2 v[{YA}:{YA+1}], v{yo}, {WS}, s{sT2} offen"])
    setexec(0xFFFFFFFF, 0xFFFFFFFF)
    TS(28)
    if p5 & 16: I("s_setprio 0")
    I("s_branch L_B1")
    if g3:
        a.label("L_G3")
        I("s_barrier")
        I("s_branch L_B1")
    a.label("L_nsub")
    I(f"s_cmp_ge_u32 s{sWAVE}, 5")
    I("s_cbranch_scc1 L_G3" if g3 else "s_cbranch_scc1 L_B1")
    IDX = vSEL + 4
    DPF = "row_mask:0xf bank_mask:0xf"
    if q2:
        ta, x1 = T + 24, T + 25
        I(f"s_lshl_b32 s{sT0}, s{sWAVE}, 13")
        I(f"s_add_u32 s{sT0}, s{sT0}, {L_PER}")
        I(f"v_lshrrev_b32 v{ta}, 5, v{vLANE}")
        I(f"v_lshlrev_b32 v{ta}, 10, v{ta}")
        I(f"v_bfe_u32 v{x1}, v{vLANE}, 4, 1")
        I(f"v_lshl_add_u32 v{ta}, v{x1}, 8, v{ta}")
        I(f"v_bfe_u32 v{x1}, v{vLANE}, 2, 1")
        I(f"v_lshl_add_u32 v{ta}, v{x1}, 6, v{ta}")
        I(f"v_and_b32 v{x1}, 3, v{vLANE}")
        I(f"v_lshl_add_u32 v{ta}, v{x1}, 3, v{ta}")
        I(f"v_bfe_u32 v{x1}, v{vLANE}, 3, 1")
        I(f"v_lshl_add_u32 v{ta}, v{x1}, 9, v{ta}")
        I(f"v_xor_b32 v{x1}, s{sSLOT}, v{x1}")
        I(f"v_and_b32 v{x1}, 1, v{x1}")
        I(f"v_lshl_add_u32 v{ta}, v{x1}, 5, v{ta}")
        I(f"v_add_u32 v{ta}, s{sT0}, v{ta}")
        for k_ in range(8):
            I(f"ds_read_b64_tr_b16 v[{vBQ+2*k_}:{vBQ+2*k_+1}], v{ta} offset:{(k_>>1)*2048 + (k_&1)*128}")
        for i in range(8):
            I(f"v_mov_b32 v{T+i}, 0")
        for i in range(4):
            I(f"v_mov_b32 v{XA+i}, 0x3f803f80")
        I(f"s_lshl_b32 s{sT2}, s{sX}, 11")
        I(f"s_add_u32 s{sT2}, s{sT2}, {XOFF}")
        I("s_waitcnt lgkmcnt(0)")
        TS(3)
        setexec(0x55555555, 0x55555555)
        poll([f"buffer_load_dwordx4 {vr(XA)}, v{vXO}, {WS}, s{sT2} offen sc1"], [XA, XA + 2], ex=(0x55555555, 0x55555555), hop=8)
        setexec(0xFFFFFFFF, 0xFFFFFFFF)
        TS(4)
        I(f"v_mfma_f32_16x16x32_bf16 {vr(T+8)}, {vr(XA)}, {vr(XA)}, 0")
        for k_ in range(2):
            I(f"v_smfmac_f32_16x16x64_bf16 {vr(T+4*k_)}, {vr(XA)}, {vr(vBQ+8*k_, 8)}, v{IDX}")
        I(f"ds_write_b64 v{vSW}, v[{T+8}:{T+9}]")
        I(f"v_pk_add_f32 v[{T}:{T+1}], v[{T}:{T+1}], v[{T+2}:{T+3}]")
        I("s_mov_b32 exec_lo, 0xffff0000")
        I("s_mov_b32 exec_hi, 0")
        I(f"v_pk_add_f32 v[{T}:{T+1}], v[{T+4}:{T+5}], v[{T+6}:{T+7}]")
        I("s_mov_b32 exec_lo, -1")
        I(f"ds_write_b64 v{vPQ}, v[{T}:{T+1}] offset:{L_PB1}")
        I("s_mov_b32 exec_hi, -1")
        I("s_waitcnt lgkmcnt(0)")
        TS(5)
        a.label("L_B1")
        I(f"v_mov_b32 v{rINV}, {f2u(1.0/640):#x}")
        I(f"s_add_u32 s{sT2}, s{sQS}, s{sREG}")
        I(f"s_sub_u32 s{sT2}, s{sT2}, {L_QB}")
        I(f"s_cmp_eq_u32 s{sWAVE}, 5")
        I("s_cbranch_scc1 L_B15")
        I("s_barrier")
        if q2 >= 2 and qb != 2: att_pre()
        if qb: I("s_barrier")
        if qb == 2: att_pre()
        I("s_branch L_B2")
        a.label("L_B15")
        if p5 & 1: I("s_setprio 3")
        if q2 >= 2: att_pre(32)
        I("s_barrier")
        TS(6)
        SQ = 60 if q2 >= 2 else 28
        PR = [32, 36, 40, T + 44, T + 48] if q2 >= 2 else [T + 4 * v for v in range(5)]
        for v in range(5):
            I(f"ds_read_b64 v[{SQ+2*v}:{SQ+2*v+1}], v{vCSQ} offset:{L_PB1 + 512 + v*PP}")
        for v in range(5):
            I(f"ds_read_b128 {vr(PR[v])}, v{vQG} offset:{L_PB1 + v*PP}")
        I("s_waitcnt lgkmcnt(5)")
        for d_, s_ in ((0, 1), (2, 3), (0, 4), (0, 2)):
            I(f"v_pk_add_f32 v[{SQ+2*d_}:{SQ+2*d_+1}], v[{SQ+2*d_}:{SQ+2*d_+1}], v[{SQ+2*s_}:{SQ+2*s_+1}]")
        for m_ in ("quad_perm:[1,0,3,2]", "quad_perm:[2,3,0,1]"):
            I(f"v_add_f32_dpp v{SQ+1}, v{SQ+1}, v{SQ+1} {m_} {DPF}")
            I(f"v_add_f32_dpp v{SQ}, v{SQ}, v{SQ} {m_} {DPF}")
        I(f"v_mul_f32 v{rMEAN}, v{SQ+1}, v{rINV}")
        I(f"v_mul_f32 v{rVAR}, v{SQ}, v{rINV}")
        stats(None)
        I("s_waitcnt lgkmcnt(0)")
        for d_, s_ in ((0, 1), (2, 3), (4, 5), (6, 7), (8, 9), (0, 2), (4, 6), (0, 8), (0, 4)):
            d_, s_ = PR[d_ >> 1] + 2 * (d_ & 1), PR[s_ >> 1] + 2 * (s_ & 1)
            I(f"v_pk_add_f32 v[{d_}:{d_+1}], v[{d_}:{d_+1}], v[{s_}:{s_+1}]")
        I(f"v_fma_f32 v{rU}, -v{rMB}, v{PR[0]+1}, v{PR[0]}")
        I(f"v_mul_f32_dpp v{rT}, v{rU}, v{rR} quad_perm:[0,0,2,2] {DPF}")
        I(f"v_mul_f32_dpp v{rU}, v{rU}, v{rR} quad_perm:[1,1,3,3] {DPF}")
        I(f"v_cvt_pk_bf16_f32 v{rU}, v{rT}, v{rU}")
        I(f"v_min_u32 v{rU}, 0xfffffffe, v{rU}")
        TS(7)
        lstore([f"buffer_store_dword v{rU}, v{vQP}, {WS}, s{sREG} offen"], True)
        if p5 & 1: I("s_setprio 0")
        if qb: I("s_barrier")
        if q2 in (1, 3): I(f"buffer_load_ushort v{vXF}, v{vXFA}, {WS}, 0 offen sc1")
        if q2 == 3:
            for i in range(32, 44): I(f"v_mov_b32 v{T+i}, 0")
        a.label("L_B2")
        if q2 in (1, 3):
            if ap:
                I(f"s_cmp_lt_u32 s{sWAVE}, 4")
                I("s_cbranch_scc0 L_ap")
                I(f"s_setprio {ap}")
                a.label("L_ap")
            for i in (range(4, 36) if q2 == 1 else []):
                I(f"v_mov_b32 v{T+i}, 0")
            poll([f"buffer_load_dwordx4 {vr(T)}, v{vQR}, {WS}, s{sT2} offen sc1"], list(range(T, T + 4)), hop=32)
        else:
            if ap:
                I(f"s_cmp_lt_u32 s{sWAVE}, 4")
                I("s_cbranch_scc0 L_ap")
                I(f"s_setprio {ap}")
                a.label("L_ap")
            I(f"s_mov_b64 s[{sKM}:{sKM+1}], -1")
            a.label("L_qp")
            q_masked(lambda r_: f"buffer_load_dwordx4 {vr(r_)}, v{vQR}, {WS}, s{sT2} offen sc1")
            I(f"s_add_u32 s{sSPIN}, s{sSPIN}, 1")
            I(f"s_cmp_ge_u32 s{sSPIN}, {spin_limit}")
            I("s_cbranch_scc1 L_qd")
            I("s_waitcnt vmcnt(3)")
            cur = maxtree(T + 50, range(T, T + 4))
            I(f"v_cmp_eq_u32 vcc, -1, v{cur}")
            I("s_cbranch_vccnz L_qp")
            a.label("L_qd")
            I("s_waitcnt vmcnt(0)")
        TS(8)

    if not q2:
        I(f"s_lshl_b32 s{sT0}, s{sWAVE}, 11")
        I(f"s_and_b32 s{sT1}, s{sSLOT}, 4")
        I(f"s_mul_i32 s{sT1}, s{sT1}, {NPER * 512}")
        I(f"s_add_u32 s{sT0}, s{sT0}, s{sT1}")
        I(f"s_add_u32 s{sT0}, s{sT0}, {L_PER}")
        ta = T + 24
        tr_addr(ta, 64, sT0, T + 25)
        I(f"v_bfe_u32 v{T+25}, v{vLANE}, 4, 1")
        I(f"v_lshl_add_u32 v{ta}, v{T+25}, 5, v{ta}")
        I(f"v_xor_b32 v{ta+1}, 32, v{ta}")
        for t in range(4):
            o = (t >> 1) * NPER * 1024
            I(f"ds_read_b64_tr_b16 v[{vBQ+4*t}:{vBQ+4*t+1}], v{ta+(t&1)} offset:{o}")
            I(f"ds_read_b64_tr_b16 v[{vBQ+4*t+2}:{vBQ+4*t+3}], v{ta+(t&1)} offset:{o+256}")
        ones()
        I("s_waitcnt lgkmcnt(0)")
        for t in range(4):
            I(f"v_mfma_f32_16x16x32_bf16 {vr(T+4*t)}, {vr(vBQ+4*t)}, {vr(ONES)}, 0")
        I(f"s_mov_b64 exec, s[{sKM}:{sKM+1}]")
        for t in range(4):
            I(f"ds_write_b128 v{vPQ}, {vr(T+4*t)} offset:{L_PB1 + 256 + t*64}")
        I("s_mov_b64 exec, -1")
        I(f"s_lshl_b32 s{sT2}, s{sX}, 11")
        I(f"s_add_u32 s{sT2}, s{sT2}, {XOFF}")
        if g3: I("s_barrier")
        TS(3)
        if xl:
            light(f"buffer_load_dword v{XA}, v{vXO}, {WS}, s{sT2} offen sc1", XA, (xl, 0))
        poll([f"buffer_load_dwordx4 {vr(XA)}, v{vXO}, {WS}, s{sT2} offen sc1"], list(range(XA, XA + 4)), hop=8)
        TS(4)
        gemv_q()
        TS(5)
        a.label("L_B1")
        I(f"v_mov_b32 v{rINV}, {f2u(1.0/640):#x}")
        qa, qs, QS = q_reduce()
        I("s_barrier")
        I(f"s_cmp_eq_u32 s{sWAVE}, 5")
        I("s_cbranch_scc1 L_B15")
        I("s_waitcnt vmcnt(0)")
        I("s_branch L_B2")
        a.label("L_B15")
        TS(6)
        q_reduce2(qa, qs, QS, first=True)
        TS(7)
        lstore([f"buffer_store_dword v{rU}, v{vQP}, {WS}, s{sREG} offen"], True)
        if zq:
            assert y128
            for i in range(24 if sm else 16):
                I(f"v_mov_b32 v{T+i}, 0")
        q_gather(vQG, qa)
        TS(8)
        I(f"buffer_load_ushort v{vXF}, v{vXFA}, {WS}, 0 offen sc1")
        I("s_waitcnt lgkmcnt(0)")
        if zq: I("s_branch L_B2b")
        a.label("L_B2")
    BT = T
    ST = T + 16
    PS = T + 32
    MI = T + 36
    OA = T + 44
    if q2 >= 2:
        PS, MI, OA = PS2, MI2, OA2
        a.label("L_att")
    elif q2:
        PS = 28
        a.label("L_att")
    else:
        for i in range(24 if sm else 16):
            I(f"v_mov_b32 v{BT+i}, 0")
        if zq: a.label("L_B2b")
        I("s_barrier")
        a.label("L_att")
        TS(9)
        for t in range(4):
            m = 0x000F000F << (4 * t)
            setexec(m, m)
            I(f"ds_read_b128 {vr(BT+4*t)}, v{vQR}")
        setexec(0xFFFFFFFF, 0xFFFFFFFF)
    I("s_waitcnt vmcnt(16) lgkmcnt(0)")
    TS(10)
    vM = MI + 4; vL = MI + 5; vT_ = MI + 6; vPK = MI + 7
    IDX = vSEL + 4
    DPF = "row_mask:0xf bank_mask:0xf"
    if sm:
        if q2 == 2:
            for Tq in range(2):
                for t in range(4):
                    I(f"v_smfmac_f32_16x16x64_bf16 {vr(ST+4*Tq)}, {vr(BT+4*t)}, {vr(vK+8*(Tq+2*t), 8)}, v{IDX}")
                    D = ST
                    if Tq == 1 and t == 1: I(f"v_pk_add_f32 v[{D}:{D+1}], v[{D}:{D+1}], v[{D+2}:{D+3}]")
                    if Tq == 1 and t == 2: I(f"v_mov_b32_dpp v{PS}, v{D} quad_perm:[0,0,2,2] {DPF}")
                    if Tq == 1 and t == 3: I(f"v_add_f32_dpp v{PS}, v{D+1}, v{PS} quad_perm:[1,1,3,3] {DPF}")
            D = ST + 4
            I(f"v_pk_add_f32 v[{D}:{D+1}], v[{D}:{D+1}], v[{D+2}:{D+3}]")
            I(f"v_mov_b32_dpp v{PS+1}, v{D} quad_perm:[0,0,2,2] {DPF}")
            I(f"v_add_f32_dpp v{PS+1}, v{D+1}, v{PS+1} quad_perm:[1,1,3,3] {DPF}")
            ST = T
            BT = T + 40
        elif q2 == 3:
            PM = T + 44
            for i in range(10):
                if i < 8: I(f"v_smfmac_f32_16x16x64_bf16 {vr(T+4+4*i)}, {vr(T)}, {vr(vK+8*i, 8)}, v{IDX}")
                j = i - 2
                if j < 0: continue
                D = T + 4 + 4 * j; P_ = PM + 2 * (j & 1)
                if pk3:
                    if j == 0: I("s_mov_b64 exec, 0xffff")
                    elif j % 2 == 0: I("s_lshl_b64 exec, exec, 16")
                    I(f"v_pk_add_f32 v[{P_}:{P_+1}], v[{D}:{D+1}], v[{D+2}:{D+3}]")
                else:
                    for c in range(2):
                        I(f"v_add_f32_dpp v{P_+c}, v{D+c}, v{D+2+c} quad_perm:[0,1,2,3] row_mask:{1 << (j >> 1):#x} bank_mask:0xf")
                if j == 7 and pk3: I("s_mov_b64 exec, -1")
                if j >= 6:
                    pass
            for Tq in range(2):
                I(f"v_mov_b32_dpp v{PS+Tq}, v{PM+2*Tq} quad_perm:[0,0,2,2] {DPF}")
            for Tq in range(2):
                I(f"v_add_f32_dpp v{PS+Tq}, v{PM+2*Tq+1}, v{PS+Tq} quad_perm:[1,1,3,3] {DPF}")
        elif q2:
            fill = [f"v_mov_b32 v{OA+i}, 0" for i in range(8)] + [f"v_mov_b32 v{MI+2}, {SCALE:#x}", f"v_mov_b32 v{MI+3}, {SCALE:#x}", f"v_mov_b32 v{MI+1}, s{sL2E}"]
            def po(k_, i):
                if not 0 <= i < 8:
                    return fill.pop() if fill and i < 0 else None
                D = T + 4 + 4 * i; rm = f"row_mask:{1 << (i >> 1):#x} bank_mask:0xf"
                return [f"v_pk_add_f32 v[{D}:{D+1}], v[{D}:{D+1}], v[{D+2}:{D+3}]",
                        f"v_mov_b32_dpp v{PS+(i&1)}, v{D} quad_perm:[0,0,2,2] {rm}",
                        f"v_add_f32_dpp v{PS+(i&1)}, v{D+1}, v{PS+(i&1)} quad_perm:[1,1,3,3] {rm}"][k_]
            for i in range(12):
                if i < 8: I(f"v_smfmac_f32_16x16x64_bf16 {vr(T+4+4*i)}, {vr(T)}, {vr(vK+8*i, 8)}, v{IDX}")
                if i == 8:
                    while fill: I(fill.pop())
                for k_, d_ in ((2, 4), (1, 3), (0, 2)):
                    x_ = po(k_, i - d_)
                    if x_: I(x_)
        else:
            for Tq in range(2):
                for t in range(4):
                    I(f"v_smfmac_f32_16x16x64_bf16 {vr(ST+4*Tq)}, {vr(BT+4*t)}, {vr(vK+8*(Tq+2*t), 8)}, v{IDX}")
                    if Tq == 0:
                        I(f"v_mov_b32 v{OA+2*t}, 0")
                        I(f"v_mov_b32 v{OA+2*t+1}, 0")
            I(f"v_mov_b32 v{MI+2}, {SCALE:#x}")
            I(f"v_mov_b32 v{MI+3}, {SCALE:#x}")
            I(f"v_mov_b32 v{MI+1}, s{sL2E}")
            for Tq in range(2):
                D = ST + 4 * Tq
                I(f"v_pk_add_f32 v[{D}:{D+1}], v[{D}:{D+1}], v[{D+2}:{D+3}]")
                I(f"v_mov_b32_dpp v{PS+Tq}, v{D} quad_perm:[0,0,2,2] {DPF}")
                I(f"v_add_f32_dpp v{PS+Tq}, v{D+1}, v{PS+Tq} quad_perm:[1,1,3,3] {DPF}")
        I(f"v_cvt_pk_bf16_f32 v{MI}, v{PS}, v{PS+1}")
        unpack(PS, PS + 1, MI)
        I(f"v_pk_mul_f32 v[{PS}:{PS+1}], v[{PS}:{PS+1}], v[{MI+2}:{MI+3}]")
        I(f"v_cvt_pk_bf16_f32 v{MI}, v{PS}, v{PS+1}")
        unpack(PS, PS + 1, MI)
        I(f"v_max_f32 v{vM}, v{PS}, v{PS+1}")
        if q2 == 2:
            I(f"v_cmp_u_f32 vcc, v{PS}, v{PS+1}")
            I(f"s_and_b64 vcc, vcc, s[{sKM}:{sKM+1}]")
            I("s_cbranch_scc1 L_qslow")
        I(f"v_max_f32_dpp v{vM}, v{vM}, v{vM} quad_perm:[2,3,0,1] {DPF}")
        I(f"v_max_f32_dpp v{vM}, v{vM}, v{vM} row_ror:4 {DPF}")
        I(f"v_max_f32_dpp v{vM}, v{vM}, v{vM} row_ror:8 {DPF}")
        I(f"v_max_f32_dpp v{vM}, v{vM}, v{vM} row_bcast:15 row_mask:0xa bank_mask:0xf")
        I(f"v_max_f32_dpp v{vM}, v{vM}, v{vM} row_bcast:31 row_mask:0xc bank_mask:0xf")
        I(f"v_readlane_b32 s{sM}, v{vM}, 63")
        I(f"v_mul_f32 v{vT_}, s{sM}, v{MI+1}")
        for Tq in range(2):
            I(f"v_fma_f32 v{PS+Tq}, v{PS+Tq}, v{MI+1}, -v{vT_}")
        for Tq in range(2):
            I(f"v_exp_f32 v{PS+Tq}, v{PS+Tq}")
    else:
        for Tt in range(4):
            for t in range(4):
                I(f"v_mfma_f32_16x16x32_bf16 {vr(ST+4*Tt)}, {vr(vK+4*(4*Tt+t))}, {vr(BT+4*t)}, {'0' if t == 0 else vr(ST+4*Tt)}")
        for Tt in range(4):
            I(f"v_mov_b32_dpp v{PS+Tt}, v{ST+4*Tt} quad_perm:[0,0,0,0] row_mask:0xf bank_mask:0xf")
            for c in range(1, 4):
                I(f"v_add_f32_dpp v{PS+Tt}, v{ST+4*Tt+c}, v{PS+Tt} quad_perm:[{c},{c},{c},{c}] row_mask:0xf bank_mask:0xf")
        I(f"v_mov_b32 v{MI+2}, {SCALE:#x}")
        I(f"v_mov_b32 v{MI+3}, {SCALE:#x}")
        I(f"v_cvt_pk_bf16_f32 v{MI}, v{PS}, v{PS+1}")
        I(f"v_cvt_pk_bf16_f32 v{MI+1}, v{PS+2}, v{PS+3}")
        unpack(PS, PS + 1, MI)
        unpack(PS + 2, PS + 3, MI + 1)
        I(f"v_pk_mul_f32 v[{PS}:{PS+1}], v[{PS}:{PS+1}], v[{MI+2}:{MI+3}]")
        I(f"v_pk_mul_f32 v[{PS+2}:{PS+3}], v[{PS+2}:{PS+3}], v[{MI+2}:{MI+3}]")
        I(f"v_cvt_pk_bf16_f32 v{MI}, v{PS}, v{PS+1}")
        I(f"v_cvt_pk_bf16_f32 v{MI+1}, v{PS+2}, v{PS+3}")
        unpack(PS, PS + 1, MI)
        unpack(PS + 2, PS + 3, MI + 1)
        vM = MI + 4; vL = MI + 5; vT_ = MI + 6; vPK = MI + 7
        I(f"v_max3_f32 v{vM}, v{PS}, v{PS+1}, v{PS+2}")
        I(f"v_max_f32 v{vM}, v{vM}, v{PS+3}")
        I(f"v_max_f32_dpp v{vM}, v{vM}, v{vM} row_ror:4 row_mask:0xf bank_mask:0xf")
        I(f"v_max_f32_dpp v{vM}, v{vM}, v{vM} row_ror:8 row_mask:0xf bank_mask:0xf")
        I(f"v_max_f32_dpp v{vM}, v{vM}, v{vM} row_bcast:15 row_mask:0xa bank_mask:0xf")
        I(f"v_max_f32_dpp v{vM}, v{vM}, v{vM} row_bcast:31 row_mask:0xc bank_mask:0xf")
        I(f"v_mov_b32 v{MI}, s{sL2E}")
        I(f"v_readlane_b32 s{sM}, v{vM}, 63")
        I(f"v_mul_f32 v{vT_}, s{sM}, v{MI}")
        for Tt in range(4):
            I(f"v_fma_f32 v{PS+Tt}, v{PS+Tt}, v{MI}, -v{vT_}")
        for Tt in range(4):
            I(f"v_exp_f32 v{PS+Tt}, v{PS+Tt}")
    TS(11)
    I(f"s_cmp_eq_u32 s{sIT}, 0")
    I("s_cbranch_scc0 L_PV")
    I(f"s_cmp_eq_u32 s{sLATE}, 0")
    I("s_cbranch_scc1 L_PVe")
    role_dma()
    TS(25)
    I("s_branch L_PV")
    a.label("L_PVe")
    if esy:
        I(f"s_cmp_eq_u32 s{sWAVE}, 7")
        I("s_cbranch_scc0 L_PVe2")
        if esy == 2:
            I(f"s_lshl_b32 s{sT0}, s{sX}, 4")
            I(f"s_add_u32 s{sT0}, s{sT0}, 128")
            I(f"s_waitcnt vmcnt({esv})")
            I(f"s_load_dwordx2 s[64:65], s[54:55], s{sT0}")
            for g_ in range(8):
                I(f"s_load_dword s{32+g_}, s[54:55], {132 + 16*g_}")
        else:
            srd(TA, 54, 256)
            I(f"v_lshlrev_b32 v{BT+2}, {ast}, v{vLANE}")
            setexec(0xFF, 0)
            I(f"buffer_load_dwordx2 v[{BT}:{BT+1}], v{BT+2}, {TA}, 0 offen offset:{128 if ast == 4 else 0} {syfl}")
            setexec(0xFFFFFFFF, 0xFFFFFFFF)
            I("s_waitcnt vmcnt(1)")
            I("s_branch L_PV")
        a.label("L_PVe2")
    I(f"s_waitcnt vmcnt({1 if pst == 1 or (pst >= 4 and (pst != 6 or pi)) else 0})")
    a.label("L_PV")
    if sm:
        I(f"v_cvt_pk_bf16_f32 v{vPK}, v{PS}, v{PS+1}")
        I(f"v_add_f32 v{vL}, v{PS}, v{PS+1}")
        I(f"v_mov_b32_dpp v{vT_}, v{vPK} row_half_mirror {DPF}")
        lred = [f"v_add_f32_dpp v{vL}, v{vL}, v{vL} quad_perm:[2,3,0,1] {DPF}",
                f"v_add_f32_dpp v{vL}, v{vL}, v{vL} row_ror:4 {DPF}",
                f"v_add_f32_dpp v{vL}, v{vL}, v{vL} row_ror:8 {DPF}",
                f"v_add_f32_dpp v{vL}, v{vL}, v{vL} row_bcast:15 row_mask:0xa bank_mask:0xf",
                f"v_add_f32_dpp v{vL}, v{vL}, v{vL} row_bcast:31 row_mask:0xc bank_mask:0xf",
                f"ds_write_b64 v{vMLW}, v[{vM}:{vL}]"]
        def mkA(Tt):
            x_, y_ = Tt >> 1, Tt & 1
            for w in sorted(range(4), key=lambda w: (w & 1) != x_):
                src, p_ = (vPK, 2 * y_) if (w & 1) == x_ else (vT_, 3 - 2 * y_)
                I(f"v_and_b32_dpp v{ST+4*Tt+w}, v{src}, v{vSEL+w} quad_perm:[{p_},{p_},{p_},{p_}] {DPF}")
        mkA(0)
        for Tt in range(4):
            for hf in range(2):
                j1 = Tt * 4 + hf * 2 + 1
                if hf == 0 and Tt < 3: mkA(Tt + 1) if Tt == 0 else None
                I(f"s_waitcnt vmcnt({15 - j1 + 8})")
                I(f"v_smfmac_f32_16x16x64_bf16 {vr(OA+4*hf)}, {vr(ST+4*Tt)}, {vr(vV+4*(j1-1), 8)}, v{IDX} abid:1")
                if hf == 0 and Tt < 2: mkA(Tt + 2)
                elif lred:
                    I(lred.pop(0))
                    if Tt >= 2 and lred: I("s_nop 0"); I(lred.pop(0))
        for x_ in lred: I(x_)
    else:
        for Tt in range(4):
            AB = ST + 8 * (Tt & 1)
            I(f"v_mov_b32_dpp v{vT_}, v{PS+Tt} row_half_mirror row_mask:0xf bank_mask:0xf")
            I(f"v_cvt_pk_bf16_f32 v{vPK}, v{PS+Tt}, v{vT_}")
            for u in range(2):
                for r in range(4):
                    I(f"v_perm_b32 v{AB+4*u+r}, v{vPK}, v{vPK}, v{vSEL+4*u+r}")
            if Tt == 1:
                I(f"v_add_f32 v{vL}, v{PS}, v{PS+1}")
                I(f"v_add_f32 v{MI+1}, v{PS+2}, v{PS+3}")
                I(f"v_add_f32 v{vL}, v{vL}, v{MI+1}")
                I(f"v_add_f32_dpp v{vL}, v{vL}, v{vL} row_ror:4 row_mask:0xf bank_mask:0xf")
                I(f"v_add_f32_dpp v{vL}, v{vL}, v{vL} row_ror:8 row_mask:0xf bank_mask:0xf")
                I(f"v_add_f32_dpp v{vL}, v{vL}, v{vL} row_bcast:15 row_mask:0xa bank_mask:0xf")
                I(f"v_add_f32_dpp v{vL}, v{vL}, v{vL} row_bcast:31 row_mask:0xc bank_mask:0xf")
                I(f"ds_write_b64 v{vMLW}, v[{vM}:{vL}]")
            for u in range(2):
                i1 = Tt * 4 + u * 2 + 1
                I(f"s_waitcnt vmcnt({15 - i1 + 8})")
                for hf in range(2):
                    i = Tt * 4 + u * 2 + hf
                    first = (Tt == 0 and u == 0)
                    I(f"v_mfma_f32_16x16x32_bf16 {vr(OA+4*hf)}, {vr(AB+4*u)}, {vr(vV+4*i)}, {'0' if first else vr(OA+4*hf)}")
    TS(12)
    setexec(0x00FF00FF, 0xFF00FF00)
    I(f"ds_write_b128 v{vOW}, {vr(OA)}")
    I(f"ds_write_b128 v{vOW}, {vr(OA+4)} offset:256")
    setexec(0xFFFFFFFF, 0xFFFFFFFF)
    I(f"s_cmp_eq_u32 s{sIT}, 0")
    I("s_cbranch_scc0 L_B3")
    sp(0)
    I(f"s_cmp_eq_u32 s{sLATE}, 0")
    I("s_cbranch_scc0 L_B3")
    I(f"s_cmp_eq_u32 s{sWAVE}, 7")
    I("s_cbranch_scc0 L_erd")
    sp(3)
    if esy == 2:
        hi = list(range(32, 40))
        I("s_waitcnt lgkmcnt(0)")
        I(f"s_and_b32 s{sT1}, s65, s{hi[0]}")
        for h_ in hi[1:]:
            I(f"s_and_b32 s{sT1}, s{sT1}, s{h_}")
        I(f"s_lshr_b32 s{sT0}, s{hi[0]}, 24")
        for h_ in hi[1:]:
            I(f"s_lshr_b32 s{h_}, s{h_}, 24")
            I(f"s_add_u32 s{sT0}, s{sT0}, s{h_}")
        I(f"s_mul_i32 s{sT2}, s{sXCC}, 6")
        I(f"s_lshr_b64 s[64:65], s[64:65], s{sT2}")
        I(f"s_and_b32 s64, s64, 63")
        I(f"s_cmp_eq_u32 s64, 32")
        I(f"s_cselect_b32 s64, 1, 0")
        I(f"s_cmp_lt_u32 s{sXCC}, 8")
        I(f"s_cselect_b32 s64, s64, 0")
        I(f"s_bitcmp1_b32 s{sT1}, 21")
        I(f"s_mov_b32 s{sT1}, s64")
        I("s_cbranch_scc1 L_syncs")
    srd(TA, 54, 256)
    if q2 == 2: I(f"v_lshlrev_b32 v{BT+2}, {ast}, v{vLANE}")
    setexec(0xFF, 0)
    if esy == 2:
        I(f"v_lshlrev_b32 v{BT+2}, {ast}, v{vLANE}")
        I(f"buffer_load_dwordx2 v[{BT}:{BT+1}], v{BT+2}, {TA}, 0 offen offset:{128 if ast == 4 else 0} sc1")
    if not esy:
        I(f"v_lshlrev_b32 v{BT+2}, {ast}, v{vLANE}")
        I(f"buffer_load_dwordx2 v[{BT}:{BT+1}], v{BT+2}, {TA}, 0 offen offset:{128 if ast == 4 else 0} {syfl}")
    a.label("L_sync")
    I(f"s_add_u32 s{sSPIN}, s{sSPIN}, 4")
    I("s_waitcnt vmcnt(0)")
    I(f"v_and_b32 v{BT+3}, {1 << 21:#x}, v{BT+1}")
    I(f"v_cmp_eq_u32 vcc, 0, v{BT+3}")
    I("s_cbranch_vccz L_syncd")
    I(f"buffer_load_dwordx2 v[{BT}:{BT+1}], v{BT+2}, {TA}, 0 offen offset:{128 if ast == 4 else 0} sc1")
    I(f"s_cmp_lt_u32 s{sSPIN}, {spin_limit}")
    I("s_cbranch_scc1 L_sync")
    I("s_waitcnt vmcnt(0)")
    a.label("L_syncd")
    I(f"v_lshrrev_b32 v{BT+3}, 24, v{BT+1}")
    I(f"v_readlane_b32 s64, v{BT}, s{sX}")
    I(f"v_readlane_b32 s65, v{BT+1}, s{sX}")
    for m_ in ("quad_perm:[1,0,3,2]", "quad_perm:[2,3,0,1]", "row_half_mirror"):
        I(f"v_add_u32_dpp v{BT+3}, v{BT+3}, v{BT+3} {m_} row_mask:0xf bank_mask:0xf")
    I(f"s_mul_i32 s{sT0}, s{sXCC}, 6")
    I(f"s_lshr_b64 s[64:65], s[64:65], s{sT0}")
    I(f"s_and_b32 s64, s64, 63")
    I(f"s_cmp_eq_u32 s64, 32")
    I(f"s_cselect_b32 s{sT1}, 1, 0")
    I(f"s_cmp_lt_u32 s{sXCC}, 8")
    I(f"s_cselect_b32 s{sT1}, s{sT1}, 0")
    I(f"v_readfirstlane_b32 s{sT0}, v{BT+3}")
    setexec(0xFFFFFFFF, 0xFFFFFFFF)
    if esy == 2: a.label("L_syncs")
    I(f"s_cmp_gt_u32 s{sT0}, {4 * ncal}")
    I(f"s_cselect_b32 s{sT0}, 1, 0")
    I(f"s_lshr_b32 s{sT2}, s{sXCC}, 2")
    I(f"s_xor_b32 s{sT0}, s{sT0}, s{sT2}")
    I(f"s_and_b32 s{sT0}, s{sT0}, {1 if dual else 0}")
    I(f"s_lshl_b32 s{sT0}, s{sT0}, 13")
    I(f"s_or_b32 s{sT0}, s{sT0}, s{sT1}")
    I(f"v_mov_b32 v{BT}, s{sT0}")
    I(f"v_mov_b32 v{BT+1}, {L_FLAG}")
    I(f"ds_write_b32 v{BT+1}, v{BT}")
    TS(35)
    sp(0)
    if pf:
        assert tw == 7 and dyn and not emd
        setexec(1, 0)
        I(f"ds_write_b32 v{BT+1}, v{vTK} offset:4")
        setexec(0xFFFFFFFF, 0xFFFFFFFF)
    a.label("L_erd")
    I(f"s_cmp_eq_u32 s{sROLE}, 0")
    if dyn and not pf:
        I("s_cbranch_scc1 L_erd2")
        I(f"s_cmp_eq_u32 s{sWAVE}, {tw}")
        I("s_cbranch_scc0 L_erd1" if emd else "s_cbranch_scc0 L_B3")
        I(f"v_mov_b32 v{BT+1}, {L_FLAG}")
        if emd: I(f"v_add_u32 v{vRDMA}, 1, v{vRDMA}")
        setexec(1, 0)
        I(f"ds_write_b32 v{BT+1}, v{vRDMA} offset:4")
        setexec(0xFFFFFFFF, 0xFFFFFFFF)
        if emd:
            a.label("L_erd1")
            if emd == 2:
                I(f"v_mov_b32 v{BT+1}, {L_FLAG}")
                I(f"v_mov_b32 v{BT}, 1")
                setexec(1, 0)
                I("s_waitcnt lgkmcnt(0)")
                I(f"ds_add_u32 v{BT+1}, v{BT} offset:12")
                setexec(0xFFFFFFFF, 0xFFFFFFFF)
                I(f"s_cmp_eq_u32 s{sWAVE}, 7")
                I("s_cbranch_scc0 L_erd3")
                lds_wait(12, 12, ge=True)
                TS(13)
                I(f"ds_read_b64 v[{T+38}:{T+39}], v{T+47}")
                I("s_branch L_comb")
                a.label("L_erd3")
            I(f"s_cmp_lt_u32 s{sWAVE}, {emw}")
            I("s_cbranch_scc0 L_B3")
            e0, e1, e2, e3 = BT, BT + 1, BT + 2, BT + 3
            npc = 40 // emw
            I(f"v_lshrrev_b32 v{e0}, 2, v{vLANE}")
            I(f"v_mul_u32_u24 v{e0}, 3456, v{e0}")
            I(f"v_and_b32 v{e1}, 3, v{vLANE}")
            I(f"v_lshl_add_u32 v{BT+4}, v{e1}, 4, v{e0}")
            I(f"v_lshrrev_b32 v{e0}, 3, v{vLANE}")
            I(f"v_mul_u32_u24 v{e2}, 1280, v{e0}")
            I(f"v_and_b32 v{e1}, 7, v{vLANE}")
            I(f"v_lshlrev_b32 v{e1}, 4, v{e1}")
            I(f"v_bfe_u32 v{e0}, v{vLANE}, 4, 1")
            I(f"v_lshlrev_b32 v{e0}, 5, v{e0}")
            I(f"v_xor_b32 v{e1}, v{e1}, v{e0}")
            I(f"v_xor_b32 v{e0}, 64, v{e1}")
            I(f"v_add_u32 v{e3}, v{e2}, v{e0}")
            I(f"v_add_u32 v{e2}, v{e2}, v{e1}")
            lds_wait(4, 1, ge=True)
            I(f"s_sub_u32 s{sTB}, s{sT3}, 1")
            I(f"s_mul_hi_u32 s{sT0}, s{sTB}, 0x2aaaaab")
            I(f"s_mul_i32 s{sT0}, s{sT0}, 96")
            I(f"s_sub_u32 s{sTB}, s{sTB}, s{sT0}")
            I(f"s_cmp_lt_u32 s{sTB}, 54")
            I("s_cbranch_scc0 L_B3")
            if g8: lds_wait(8, g8, ge=True)
            srd(TB, 44, 640 * 3456)
            I(f"s_mul_i32 s{sT1}, s{sWAVE}, {npc*16*3456}")
            I(f"s_lshl_b32 s{sT0}, s{sTB}, 6")
            I(f"s_add_u32 s{sT0}, s{sT0}, s{sT1}")
            I(f"s_mul_i32 s{sT1}, s{sWAVE}, {npc*1024}")
            for e in range(npc):
                I(f"s_add_u32 m0, s{sT1}, {L_ROLE + e*1024}")
                I(f"buffer_load_dwordx4 v{BT+4}, {TB}, s{sT0} offen {rflags} lds")
                if e < npc - 1: I(f"s_add_u32 s{sT0}, s{sT0}, {16*3456}")
            srd(TA, 48, 1728 * 1280)
            I(f"s_mul_i32 s{sT3}, s{sTB}, {32*1280}")
            I(f"s_mul_i32 s{sT0}, s{sWAVE}, {npc}")
            assert npc % 2 == 0
            for e in range(npc):
                I(f"s_lshl_b32 s{sT1}, s{sT0}, 10")
                I(f"s_add_u32 m0, s{sT1}, {L_W2}")
                I(f"s_and_b32 s{sT1}, s{sT0}, 3")
                I(f"s_mul_i32 s{sT1}, s{sT1}, {8*1280}")
                I(f"s_lshr_b32 s{sT2}, s{sT0}, 2")
                I(f"s_lshl_b32 s{sT2}, s{sT2}, 7")
                I(f"s_add_u32 s{sT1}, s{sT1}, s{sT2}")
                I(f"s_add_u32 s{sT1}, s{sT1}, s{sT3}")
                I(f"buffer_load_dwordx4 v{(e2, e3)[e & 1]}, {TA}, s{sT1} offen {rflags} lds")
                if e < npc - 1: I(f"s_add_u32 s{sT0}, s{sT0}, 1")
            TS(25)
        I("s_branch L_B3")
        a.label("L_erd2")
    elif ew:
        I("s_cbranch_scc1 L_erd2")
        if the:
            I(f"v_cmp_ne_u32 vcc, -1, v{T+50}")
            I(f"s_bcnt1_i32_b64 s{sT0}, vcc")
            I(f"s_cmp_ge_u32 s{sT0}, {the}")
            I("s_cbranch_scc0 L_B3")
            I("s_mov_b32 s97, 1")
        I("s_waitcnt lgkmcnt(0)")
        I(f"s_cmp_eq_u32 s{sROLE}, 3")
        I("s_cbranch_scc1 L_erd3" if ew & 2 else "s_cbranch_scc1 L_B3")
        if eg: lds_wait(8, eg, ge=True)
        w2_early()
        I("s_branch L_B3")
        if ew & 2:
            a.label("L_erd3")
            if eg: lds_wait(8, eg, ge=True)
            pf_static("L_ps4", True, 3)
            I("s_branch L_B3")
        a.label("L_erd2")
    else:
        I("s_cbranch_scc0 L_B3")
    if gate:
        lds_wait(8, gate, ge=True)
    role_dma()
    TS(25)
    a.label("L_B3")
    I("s_waitcnt lgkmcnt(0)")
    I(f"v_mov_b32 v{T+38}, {L_FLAG}")
    I("s_barrier")
    TS(13)
    I(f"ds_read_b64 v[{T+38}:{T+39}], v{T+38}")
    I(f"s_cmp_eq_u32 s{sWAVE}, 7")
    I("s_cbranch_scc1 L_comb")
    I("s_waitcnt lgkmcnt(0)")
    I(f"v_readfirstlane_b32 s{sT0}, v{T+38}")
    I(f"s_and_b32 s{sPURE}, s{sT0}, 1")
    I(f"s_and_b32 s{sNEAR}, s{sT0}, {CP}")
    if pst == 2:
        I(f"s_cmp_eq_u32 s{sIT}, 0")
        I("s_cbranch_scc0 L_role")
        pf_static("L_ps", False)
    if pf:
        I(f"s_cmp_eq_u32 s{sIT}, 0")
        I("s_cbranch_scc0 L_role")
        I(f"s_cmp_lt_u32 s{sWAVE}, {2*pf}")
        I("s_cbranch_scc0 L_role")
        I(f"v_readfirstlane_b32 s{sT0}, v{T+39}")
        I(f"s_and_b32 s{sT0}, s{sT0}, 0xff")
        I(f"s_sub_u32 s{sT0}, s{sT0}, {h0}")
        I(f"s_cmp_lt_u32 s{sT0}, {(40 + pf - 1) // pf}")
        I("s_cbranch_scc0 L_role")
        I(f"s_mul_i32 s{sT0}, s{sT0}, {pf}")
        I(f"s_add_u32 s{sT0}, s{sT0}, s{sWAVE}")
        I(f"s_mul_i32 s{sT1}, s{sX}, 7")
        I(f"s_min_u32 s{sT1}, s{sT1}, 48")
        I(f"s_cmp_lt_u32 s{sWAVE}, {pf}")
        I("s_cbranch_scc0 L_pf2")
        srd(TA, 44, 640 * 3456)
        I(f"v_lshrrev_b32 v{T+50}, 2, v{vLANE}")
        I(f"v_mul_u32_u24 v{T+50}, 3456, v{T+50}")
        I(f"v_and_b32 v{T+51}, 3, v{vLANE}")
        I(f"v_lshl_add_u32 v{T+50}, v{T+51}, 7, v{T+50}")
        I(f"s_mul_i32 s{sT0}, s{sT0}, {16*3456}")
        I(f"s_lshr_b32 s{sT1}, s{sT1}, 1")
        I(f"s_lshl_b32 s{sT1}, s{sT1}, 7")
        I(f"s_add_u32 s{sT0}, s{sT0}, s{sT1}")
        I(f"v_add_u32 v{T+50}, s{sT0}, v{T+50}")
        I(f"buffer_load_dword v{T+51}, v{T+50}, {TA}, 0 offen")
        I("s_branch L_role")
        a.label("L_pf2")
        I(f"s_sub_u32 s{sT0}, s{sT0}, {pf}")
        I(f"s_cmp_lt_u32 s{sX}, 6")
        I(f"s_cselect_b32 s{sT2}, 35, 30")
        I(f"s_cmp_lt_u32 s{sT0}, s{sT2}")
        I("s_cbranch_scc0 L_role")
        if pfr:
            I(f"s_sub_u32 s{sT0}, s{sT2}, s{sT0}")
            I(f"s_sub_u32 s{sT0}, s{sT0}, 1")
        srd(TA, 48, 1728 * 1280)
        I(f"s_mul_i32 s{sT1}, s{sT1}, {32*1280}")
        I(f"s_lshl_b32 s{sT0}, s{sT0}, 13")
        I(f"s_add_u32 s{sT0}, s{sT0}, s{sT1}")
        I(f"v_lshlrev_b32 v{T+50}, 7, v{vLANE}")
        I(f"buffer_load_dword v{T+51}, v{T+50}, {TA}, s{sT0} offen")
    I("s_branch L_role")
    a.label("L_comb")
    if p5 & 8: I("s_setprio 3")
    cM, cL, cMX, cF, cT = T + 32, T + 33, T + 34, T + 36, T + 37
    cLS = T + 35
    I(f"ds_read_b64 v[{cM}:{cL}], v{vCML}")
    for w in range(8):
        I(f"ds_read2st64_b64 {vr(T+4*w)}, v{vCR} offset0:{2*w} offset1:{2*w+1}")
    I(f"v_mov_b32 v{cT}, s{sL2E}")
    I("s_waitcnt lgkmcnt(8)")
    I(f"v_readfirstlane_b32 s{sT0}, v{T+38}")
    I(f"v_max_f32_dpp v{cMX}, v{cM}, v{cM} quad_perm:[1,0,3,2] row_mask:0xf bank_mask:0xf")
    I(f"v_max_f32_dpp v{cMX}, v{cMX}, v{cMX} quad_perm:[2,3,0,1] row_mask:0xf bank_mask:0xf")
    I(f"v_max_f32_dpp v{cMX}, v{cMX}, v{cMX} row_half_mirror row_mask:0xf bank_mask:0xf")
    I(f"v_sub_f32 v{cF}, v{cM}, v{cMX}")
    I(f"v_mul_f32 v{cF}, v{cF}, v{cT}")
    I(f"v_exp_f32 v{cF}, v{cF}")
    I(f"s_and_b32 s{sPURE}, s{sT0}, 1")
    I(f"s_and_b32 s{sNEAR}, s{sT0}, {CP}")
    I("s_waitcnt lgkmcnt(0)")
    for w in range(8):
        I(f"v_readlane_b32 s{sF+w}, v{cF}, {w}")
    for w in range(8):
        I(f"v_pk_add_f32 v[{T+4*w}:{T+4*w+1}], v[{T+4*w}:{T+4*w+1}], v[{T+4*w+2}:{T+4*w+3}]")
    for w in range(8):
        sp = f"s[{sF+(w&~1)}:{sF+(w&~1)+1}]"
        o = w & 1
        acc = T + 40 + 2 * (w & 1)
        if w < 2:
            I(f"v_pk_mul_f32 v[{acc}:{acc+1}], v[{T+4*w}:{T+4*w+1}], {sp} op_sel:[0,{o}] op_sel_hi:[1,{o}]")
        else:
            I(f"v_pk_fma_f32 v[{acc}:{acc+1}], v[{T+4*w}:{T+4*w+1}], {sp}, v[{acc}:{acc+1}] op_sel:[0,{o},0] op_sel_hi:[1,{o},1]")
    I(f"v_mul_f32 v{cLS}, v{cF}, v{cL}")
    I(f"v_pk_add_f32 v[{T+40}:{T+41}], v[{T+40}:{T+41}], v[{T+42}:{T+43}]")
    I(f"v_add_f32_dpp v{cLS}, v{cLS}, v{cLS} quad_perm:[1,0,3,2] row_mask:0xf bank_mask:0xf")
    I(f"v_cvt_pk_bf16_f32 v{T+40}, v{T+40}, v{T+41}")
    I(f"v_min_u32 v{T+40}, 0xfffffffe, v{T+40}")
    I(f"v_add_f32_dpp v{cLS}, v{cLS}, v{cLS} quad_perm:[2,3,0,1] row_mask:0xf bank_mask:0xf")
    I(f"v_min_u32 v{cMX}, 0xfffffffe, v{cMX}")
    lstore([f"buffer_store_dword v{T+40}, v{vCP}, {WS}, s{sREG} offen"], True)
    I(f"v_add_f32_dpp v{cLS}, v{cLS}, v{cLS} row_half_mirror row_mask:0xf bank_mask:0xf")
    I(f"v_min_u32 v{cLS}, 0xfffffffe, v{cLS}")
    setexec(1, 0)
    lstore([f"buffer_store_dwordx2 v[{cMX}:{cLS}], v{vCPM}, {WS}, s{sREG} offen"], True)
    setexec(0xFFFFFFFF, 0xFFFFFFFF)
    TS(14)
    if p5 & 8: I("s_setprio 0")
    if emd == 2:
        I(f"s_cmp_eq_u32 s{sROLE}, 0")
        I("s_cbranch_scc1 L_WO")
        I(f"s_cmp_eq_u32 s{sIT}, 0")
        I("s_cbranch_scc0 L_role")
        I("s_barrier")

    a.label("L_role")
    m0_, m1_, m2_, m3_ = T, T + 1, T + 2, T + 3
    def ml_gate(thr):
        lab = a.newlab("Lg"); done = a.newlab("Lgd")
        I(f"v_lshrrev_b32 v{m0_}, 3, v{vLANE}")
        I(f"v_lshlrev_b32 v{m0_}, 7, v{m0_}")
        I(f"v_and_b32 v{m1_}, 7, v{vLANE}")
        I(f"v_lshl_add_u32 v{m0_}, v{m1_}, 3, v{m0_}")
        I(f"s_lshl_b32 s{sT1}, s{sXW}, 9")
        I(f"s_add_u32 s{sT1}, s{sT1}, {MLOFF}")
        I(f"s_add_u32 s{sT1}, s{sT1}, s{sREG}")
        setexec(0xFFFFFFFF, 0)
        a.label(lab)
        I(f"buffer_load_dword v{m1_}, v{m0_}, {WS}, s{sT1} offen sc1")
        I(f"s_add_u32 s{sSPIN}, s{sSPIN}, 1")
        I("s_waitcnt vmcnt(0)")
        I(f"v_cmp_ne_u32 vcc, -1, v{m1_}")
        I(f"s_bcnt1_i32_b64 s{sT0}, vcc")
        I(f"s_cmp_ge_u32 s{sT0}, {thr}")
        I(f"s_cbranch_scc1 {done}")
        I(f"s_cmp_lt_u32 s{sSPIN}, {spin_limit}")
        I(f"s_cbranch_scc1 {lab}")
        a.label(done)
        setexec(0xFFFFFFFF, 0xFFFFFFFF)
    I(f"s_cmp_eq_u32 s{sROLE}, 0")
    I("s_cbranch_scc1 L_WO")
    if pf:
        I(f"v_readfirstlane_b32 s{sTB}, v{T+39}")
        I(f"s_bfe_u32 s{sTB}, s{sTB}, 0x80008")
        I(f"s_cmp_lt_u32 s{sX}, 6")
        I(f"s_cselect_b32 s{sT0}, 7, 6")
        I(f"s_cmp_lt_u32 s{sTB}, s{sT0}")
        I("s_cbranch_scc0 L_next")
        I(f"s_mul_i32 s{sT1}, s{sX}, 7")
        I(f"s_min_u32 s{sT1}, s{sT1}, 48")
        I(f"s_add_u32 s{sTB}, s{sTB}, s{sT1}")
    elif dyn:
        I(f"v_readfirstlane_b32 s{sTB}, v{T+39}")
        if emd: I(f"s_sub_u32 s{sTB}, s{sTB}, 1")
        I(f"s_mul_hi_u32 s{sT0}, s{sTB}, 0x2aaaaab")
        I(f"s_mul_i32 s{sT0}, s{sT0}, 96")
        I(f"s_sub_u32 s{sTB}, s{sTB}, s{sT0}")
        I(f"s_cmp_lt_u32 s{sTB}, 54")
        I("s_cbranch_scc0 L_next")
    else:
        if pst == 3:
            I(f"s_cmp_eq_u32 s{sIT}, 0")
            I("s_cbranch_scc0 L_ps")
            I("s_barrier")
            pf_static("L_ps", False)
        I(f"s_cmp_eq_u32 s{sROLE}, 3")
        if pst >= 5 and (the or not ew & 2):
            I("s_cbranch_scc0 L_ps3")
            I(f"s_cmp_eq_u32 s{sIT}, 0")
            I("s_cbranch_scc0 L_next")
            if th1:
                I(f"s_cmp_eq_u32 s{sWAVE}, 6")
                I("s_cbranch_scc0 L_g1i")
                ml_gate(th1)
                a.label("L_g1i")
            I("s_barrier")
            if the and ew & 2:
                I("s_cmp_eq_u32 s97, 1")
                I("s_cbranch_scc1 L_next")
            pf_static("L_ps2", True, 2 if pst == 5 else 3)
            I("s_branch L_next")
            a.label("L_ps3")
        else:
            I("s_cbranch_scc1 L_next")
    I(f"s_cmp_eq_u32 s{sIT}, 0")
    I("s_cbranch_scc0 L_W1")
    if m2:
        assert y128 and sm and not emd and not th2
        vGZ = vRDMA
        F0, F1, F2 = 28, 36, 68
        L_CS = L_CS1
        sLB, sF2o, sF2x = sRN, sRSTEP, sYM
        if th1:
            I(f"s_cmp_eq_u32 s{sWAVE}, 6")
            I("s_cbranch_scc0 L_g1")
            ml_gate(th1)
            a.label("L_g1")
        if dd:
            I("s_mov_b32 s97, 0")
            a.label("L_dd")
        if pst != 3 or th1: I("s_barrier")
        TS(36)
        srd(TB, 44, 640 * 3456)
        I(f"s_lshl_b32 s{sT1}, s{sWAVE}, 1")
        I(f"s_add_u32 s{sT0}, s{sWAVE}, 2")
        I(f"s_cmp_lt_u32 s{sWAVE}, 4")
        I(f"s_cselect_b32 s{sT3}, s{sT1}, s{sT0}")
        I(f"s_cselect_b32 s{sRN}, 8, 4")
        I(f"s_mul_i32 s{sT1}, s{sT3}, {64*3456}")
        I(f"s_lshl_b32 s{sT0}, s{sTB}, 6")
        I(f"s_add_u32 s{sRB}, s{sT0}, s{sT1}")
        I(f"s_mov_b32 s{sRSTEP}, {16*3456}")
        I(f"s_lshl_b32 s{sYM}, s{sT3}, 12")
        I(f"s_add_u32 s{sYM}, s{sYM}, {L_ROLE}")
        I(f"v_lshrrev_b32 v{m0_}, 2, v{vLANE}")
        I(f"v_mul_u32_u24 v{m0_}, 3456, v{m0_}")
        I(f"v_and_b32 v{m1_}, 3, v{vLANE}")
        I(f"v_lshl_add_u32 v{vRDMA}, v{m1_}, 4, v{m0_}")
        def w1_dma():
            I(f"s_cmp_lt_u32 s{sWAVE}, 4")
            I("s_cbranch_scc0 L_m47")
            role_dma(sYM)
            I("s_branch L_mdd")
            a.label("L_m47")
            I(f"s_cmp_lt_u32 s{sWAVE}, 6")
            I("s_cbranch_scc1 L_m45")
            role_dma(sYM, 4)
            if wd: I("s_branch L_mdd")
            a.label("L_m45")
        if not wd: w1_dma()
        if wd:
            I(f"s_mul_i32 s{sT0}, s{sWAVE}, 5")
        else:
            I(f"s_mul_i32 s{sT0}, s{sWAVE}, 14")
            I(f"s_sub_u32 s{sT0}, s{sT0}, 56")
            I(f"s_min_u32 s{sT0}, s{sT0}, 34")
        I(f"s_mul_i32 s{sYM+1}, s{sTB}, {32*1280}")
        I(f"v_lshrrev_b32 v{m0_}, 3, v{vLANE}")
        I(f"v_mul_u32_u24 v{m2_}, 1280, v{m0_}")
        I(f"v_and_b32 v{m1_}, 7, v{vLANE}")
        I(f"v_lshlrev_b32 v{m1_}, 4, v{m1_}")
        I(f"v_bfe_u32 v{m0_}, v{vLANE}, 4, 1")
        I(f"v_lshlrev_b32 v{m0_}, 5, v{m0_}")
        I(f"v_xor_b32 v{m1_}, v{m1_}, v{m0_}")
        if wd:
            I(f"s_and_b32 s{sT1}, s{sT0}, 1")
            I(f"s_lshl_b32 s{sT1}, s{sT1}, 6")
            I(f"v_xor_b32 v{m1_}, s{sT1}, v{m1_}")
        I(f"v_xor_b32 v{m0_}, 64, v{m1_}")
        I(f"v_add_u32 v{m3_}, v{m2_}, v{m0_}")
        I(f"v_add_u32 v{m2_}, v{m2_}, v{m1_}")
        srd(TA, 48, 1728 * 1280)
        if the:
            I("s_cmp_eq_u32 s97, 1")
            I("s_cbranch_scc1 L_w2s")
        for e in range(0 if ew and not the else 5 if wd else 14):
            if e == 6:
                I(f"s_cmp_lt_u32 s{sWAVE}, 6")
                I("s_cbranch_scc0 L_mdd")
            I(f"s_lshl_b32 s{sT1}, s{sT0}, 10")
            I(f"s_add_u32 m0, s{sT1}, {L_W2}")
            I(f"s_and_b32 s{sT1}, s{sT0}, 3")
            I(f"s_mul_i32 s{sT1}, s{sT1}, {8*1280}")
            I(f"s_lshr_b32 s{sT2}, s{sT0}, 2")
            I(f"s_lshl_b32 s{sT2}, s{sT2}, 7")
            I(f"s_add_u32 s{sT1}, s{sT1}, s{sT2}")
            I(f"s_add_u32 s{sT1}, s{sT1}, s{sYM+1}")
            I(f"buffer_load_dwordx4 v{(m2_, m3_)[e & 1]}, {TA}, s{sT1} offen {rflags} lds")
            if e < 13: I(f"s_add_u32 s{sT0}, s{sT0}, 1")
        if the: a.label("L_w2s")
        if wd and wb: I("s_barrier")
        if wd: w1_dma()
        I(f"s_cmp_eq_u32 s{sWAVE}, 5")
        I("s_cbranch_scc0 L_mdd")
        srd(TA, 46, 1728 * 2)
        I(f"s_lshl_b32 s{sT0}, s{sTB}, 6")
        I(f"v_and_b32 v{T+4}, 31, v{vLANE}")
        I(f"v_lshlrev_b32 v{T+4}, 1, v{T+4}")
        I(f"v_mov_b32 v{vB1}, 0")
        I(f"buffer_load_short_d16_hi v{vB1}, v{T+4}, {TA}, s{sT0} offen")
        a.label("L_mdd")
        if dd:
            I("s_cmp_eq_u32 s97, 0")
            I("s_mov_b32 s97, 1")
            I("s_cbranch_scc0 L_dd2")
            I("s_waitcnt vmcnt(0)")
            I("s_branch L_dd")
            a.label("L_dd2")
        TS(25)
        u0, u1, u2 = T + 5, T + 6, T + 7
        I(f"s_mov_b32 s{sLB}, s{sYM}")
        I(f"s_lshl_b32 s{sT1}, s{sT3}, 1")
        rank_off(sT0, sT1, sT2)
        I(f"v_and_b32 v{u0}, 15, v{vLANE}")
        I(f"v_lshlrev_b32 v{u1}, 6, v{u0}")
        I(f"v_lshrrev_b32 v{u2}, 4, v{vLANE}")
        I(f"v_lshl_add_u32 v{u1}, v{u2}, 4, v{u1}")
        I(f"v_add_u32 v{vGZ}, s{sT0}, v{u1}")
        I(f"s_lshl_b32 s{sT0}, s{sTB}, 7")
        I(f"s_add_u32 s{sT0}, s{sT0}, {YOFF}")
        I(f"s_lshl_b32 s{sT1}, s{sWAVE}, 14")
        I(f"s_add_u32 s{sT1}, s{sT1}, s{sT0}")
        I(f"v_lshlrev_b32 v{vA2}, 2, v{vLANE}")
        I(f"v_add_u32 v{vA2}, s{sT1}, v{vA2}")
        I(f"s_lshr_b32 s{sT1}, s{sWAVE}, 1")
        I(f"s_add_u32 s{sT1}, s{sT1}, 6")
        I(f"s_sub_u32 s{sF2o}, s{sT1}, s{sWAVE}")
        I(f"s_lshl_b32 s{sF2o}, s{sF2o}, 12")
        I(f"s_lshl_b32 s{sT1}, s{sT1}, 14")
        I(f"s_add_u32 s{sT0}, s{sT0}, s{sT1}")
        I(f"s_and_b32 s{sF2x}, s{sWAVE}, 1")
        I(f"s_lshl_b32 s{sF2x}, s{sF2x}, 6")
        I(f"s_add_u32 s{sT0}, s{sT0}, s{sF2x}")
        I(f"s_cmp_lt_u32 s{sWAVE}, 4")
        I(f"s_cselect_b32 s{sT0}, {BIG:#x}, s{sT0}")
        setexec(0, 0xFFFF)
        I(f"v_lshl_add_u32 v{vA2}, v{u0}, 2, s{sT0}")
        setexec(0, 0xFFFF0000)
        I(f"v_mov_b32 v{vA2}, {BIG:#x}")
        setexec(0xFFFFFFFF, 0xFFFFFFFF)
        I(f"s_lshl_b32 s{sT0}, s{sWAVE}, 12")
        I(f"s_add_u32 s{sT0}, s{sT0}, {L_W2}")
        tr_addr(vA3, 128, sT0, u1)
        I(f"v_bfe_u32 v{u1}, v{vLANE}, 3, 1")
        I(f"v_bfe_u32 v{u2}, v{vLANE}, 4, 1")
        I(f"v_lshl_add_u32 v{u2}, v{u2}, 1, v{u1}")
        I(f"v_lshl_add_u32 v{vA3}, v{u2}, 5, v{vA3}")
        I(f"v_mul_u32_u24 v{u1}, 0xaaaa, v{u1}")
        I(f"v_or_b32 v{vSEL+5}, 0x4444, v{u1}")
        I(f"v_bfe_u32 v{u1}, v{vLANE}, 4, 1")
        I(f"v_and_b32 v{u2}, 2, v{vLANE}")
        I(f"v_lshlrev_b32 v{u2}, 3, v{u2}")
        I(f"v_lshl_add_u32 v{vA1}, v{u1}, 5, v{u2}")
        I(f"s_mul_i32 s{sT0}, s{sWAVE}, {PP}")
        I(f"v_lshrrev_b32 v{u2}, 5, v{vLANE}")
        I(f"v_lshlrev_b32 v{u2}, 7, v{u2}")
        I(f"v_lshl_add_u32 v{u2}, v{u0}, 3, v{u2}")
        I(f"v_lshl_add_u32 v{u2}, v{u1}, 2, v{u2}")
        I(f"v_add_u32 v{vPW}, s{sT0}, v{u2}")
        I("s_branch L_W1")

    if not m2:
        if instr: I(f"s_mov_b32 s{sNT}, s{sTB}")
        srd(TB, 44, 640 * 3456)
        I(f"s_mul_i32 s{sT1}, s{sWAVE}, {128*3456}")
        I(f"s_lshl_b32 s{sT0}, s{sTB}, 6")
        I(f"s_add_u32 s{sRB}, s{sT0}, s{sT1}")
        I(f"s_mov_b32 s{sRSTEP}, {16*3456}")
        I(f"s_mov_b32 s{sRN}, 8")
        I(f"v_lshrrev_b32 v{m0_}, 2, v{vLANE}")
        I(f"v_mul_u32_u24 v{m0_}, 3456, v{m0_}")
        I(f"v_and_b32 v{m1_}, 3, v{vLANE}")
        I(f"v_lshl_add_u32 v{vRDMA}, v{m1_}, 4, v{m0_}")
        I(f"s_add_u32 s{sT0}, s{sT0}, {YOFF}")
        if y128:
            I(f"s_lshl_b32 s{sT1}, s{sTB}, 6")
            I(f"s_add_u32 s{sT0}, s{sT0}, s{sT1}")
            I(f"s_lshl_b32 s{sT1}, s{sWAVE}, 14")
            I(f"s_add_u32 s{sT0}, s{sT0}, s{sT1}")
            I(f"v_bfe_u32 v{m0_}, v{vLANE}, 2, 2")
            I(f"v_lshlrev_b32 v{m0_}, 15, v{m0_}")
            I(f"v_and_b32 v{m1_}, 3, v{vLANE}")
            I(f"v_lshl_add_u32 v{m0_}, v{m1_}, 5, v{m0_}")
            I(f"v_lshrrev_b32 v{m1_}, 4, v{vLANE}")
            I(f"v_lshl_add_u32 v{m0_}, v{m1_}, 3, v{m0_}")
            I(f"v_add_u32 v{vA2}, s{sT0}, v{m0_}")
            I(f"s_lshl_b32 s{sT0}, s{sWAVE}, 12")
            I(f"s_add_u32 s{sT0}, s{sT0}, {L_W2}")
            tr_addr(vA3, 128, sT0, m0_)
            I(f"v_bfe_u32 v{m0_}, v{vLANE}, 3, 1")
            I(f"v_bfe_u32 v{m1_}, v{vLANE}, 4, 1")
            I(f"v_lshl_add_u32 v{m0_}, v{m1_}, 1, v{m0_}")
            I(f"v_lshl_add_u32 v{vA3}, v{m0_}, 5, v{vA3}")
            I(f"v_xor_b32 v{vA1}, 32, v{vA3}")
            I(f"v_xor_b32 v{vA0}, 64, v{vA3}")
            I(f"s_cmp_ge_u32 s{sWAVE}, 6")
            I(f"s_cselect_b32 s{sYM}, 255, 15")
            I(f"s_mul_i32 s{sYM}, s{sYM}, 0x10001")
            I(f"s_mov_b32 s{sYM+1}, s{sYM}")
        elif y64:
            I(f"s_and_b32 s{sT1}, s{sWAVE}, 1")
            I(f"s_lshl_b32 s{sT1}, s{sT1}, 12")
            I(f"s_add_u32 s{sT0}, s{sT0}, s{sT1}")
            I(f"s_lshr_b32 s{sT2}, s{sWAVE}, 1")
            I(f"s_lshl_b32 s{sT1}, s{sT2}, 14")
            I(f"s_add_u32 s{sT0}, s{sT0}, s{sT1}")
            I(f"v_bfe_u32 v{m0_}, v{vLANE}, 1, 3")
            I(f"v_lshlrev_b32 v{m0_}, 16, v{m0_}")
            I(f"v_and_b32 v{m1_}, 1, v{vLANE}")
            I(f"v_lshl_add_u32 v{m0_}, v{m1_}, 5, v{m0_}")
            I(f"v_lshrrev_b32 v{m1_}, 4, v{vLANE}")
            I(f"v_lshl_add_u32 v{m0_}, v{m1_}, 3, v{m0_}")
            I(f"v_add_u32 v{vA2}, s{sT0}, v{m0_}")
            I(f"s_lshl_b32 s{sT0}, s{sT2}, 12")
            I(f"s_add_u32 s{sT0}, s{sT0}, {L_W2}")
            tr_addr(vA3, 128, sT0, m0_)
            I(f"v_bfe_u32 v{m0_}, v{vLANE}, 3, 1")
            I(f"v_bfe_u32 v{m1_}, v{vLANE}, 4, 1")
            I(f"v_lshl_add_u32 v{m0_}, v{m1_}, 1, v{m0_}")
            I(f"s_and_b32 s{sT1}, s{sWAVE}, 1")
            I(f"s_lshl_b32 s{sT1}, s{sT1}, 1")
            I(f"v_xor_b32 v{m0_}, s{sT1}, v{m0_}")
            I(f"v_lshl_add_u32 v{vA3}, v{m0_}, 5, v{vA3}")
            I(f"v_xor_b32 v{vA1}, 32, v{vA3}")
            I(f"s_cmp_lt_u32 s{sWAVE}, 4")
            I(f"s_cselect_b32 s{sYM}, 63, 15")
            I(f"s_mul_i32 s{sYM}, s{sYM}, 0x10001")
            I(f"s_mov_b32 s{sYM+1}, s{sYM}")
        else:
            I(f"s_and_b32 s{sT1}, s{sWAVE}, 2")
            I(f"s_lshl_b32 s{sT1}, s{sT1}, 11")
            I(f"s_add_u32 s{sT0}, s{sT0}, s{sT1}")
            I(f"s_lshr_b32 s{sT2}, s{sWAVE}, 2")
            I(f"s_lshl_b32 s{sT1}, s{sT2}, 14")
            I(f"s_add_u32 s{sT0}, s{sT0}, s{sT1}")
            I(f"s_and_b32 s{sT1}, s{sWAVE}, 1")
            I(f"s_lshl_b32 s{sT1}, s{sT1}, 5")
            I(f"s_add_u32 s{sT0}, s{sT0}, s{sT1}")
            I(f"v_and_b32 v{m0_}, 15, v{vLANE}")
            I(f"v_lshlrev_b32 v{m0_}, 15, v{m0_}")
            I(f"v_lshrrev_b32 v{m1_}, 4, v{vLANE}")
            I(f"v_lshl_add_u32 v{m0_}, v{m1_}, 3, v{m0_}")
            I(f"v_add_u32 v{vA2}, s{sT0}, v{m0_}")
            I(f"s_lshl_b32 s{sT0}, s{sT2}, 12")
            I(f"s_add_u32 s{sT0}, s{sT0}, {L_W2}")
            tr_addr(vA3, 128, sT0, m0_)
            I(f"v_bfe_u32 v{m0_}, v{vLANE}, 3, 1")
            I(f"v_bfe_u32 v{m1_}, v{vLANE}, 4, 1")
            I(f"v_lshl_add_u32 v{m0_}, v{m1_}, 1, v{m0_}")
            I(f"s_and_b32 s{sT1}, s{sWAVE}, 3")
            I(f"v_xor_b32 v{m0_}, s{sT1}, v{m0_}")
            I(f"v_lshl_add_u32 v{vA3}, v{m0_}, 5, v{vA3}")
        if th1:
            I(f"s_cmp_eq_u32 s{sWAVE}, 6")
            I("s_cbranch_scc0 L_g1")
            ml_gate(th1)
            a.label("L_g1")
        if emd: I(f"s_waitcnt vmcnt({40 // emw})")
        I("s_barrier")
        I(f"s_cmp_ge_u32 s{sWAVE}, 5")
        I("s_cbranch_scc1 L_w2d")
        if not emd:
            role_dma()
            TS(25)
        I("s_branch L_W1")
        a.label("L_w2d")
        if th2 > th1:
            ml_gate(th2)
        if not emd:
            I(f"s_mul_i32 s{sT3}, s{sTB}, {32*1280}")
            I(f"s_sub_u32 s{sT0}, s{sWAVE}, 5")
            I(f"s_mul_i32 s{sT0}, s{sT0}, 13")
            I(f"v_lshrrev_b32 v{m0_}, 3, v{vLANE}")
            I(f"v_mul_u32_u24 v{m2_}, 1280, v{m0_}")
            I(f"v_and_b32 v{m1_}, 7, v{vLANE}")
            I(f"v_lshlrev_b32 v{m1_}, 4, v{m1_}")
            I(f"v_bfe_u32 v{m0_}, v{vLANE}, 4, 1")
            I(f"v_lshlrev_b32 v{m0_}, 5, v{m0_}")
            I(f"v_xor_b32 v{m1_}, v{m1_}, v{m0_}")
            I(f"s_and_b32 s{sT1}, s{sT0}, 1")
            I(f"s_lshl_b32 s{sT1}, s{sT1}, 6")
            I(f"v_xor_b32 v{m1_}, s{sT1}, v{m1_}")
            I(f"v_xor_b32 v{m0_}, 64, v{m1_}")
            I(f"v_add_u32 v{m3_}, v{m2_}, v{m0_}")
            I(f"v_add_u32 v{m2_}, v{m2_}, v{m1_}")
            srd(TA, 48, 1728 * 1280)
            for e in range(14):
                I(f"s_lshl_b32 s{sT1}, s{sT0}, 10")
                I(f"s_add_u32 m0, s{sT1}, {L_W2}")
                I(f"s_and_b32 s{sT1}, s{sT0}, 3")
                I(f"s_mul_i32 s{sT1}, s{sT1}, {8*1280}")
                I(f"s_lshr_b32 s{sT2}, s{sT0}, 2")
                I(f"s_lshl_b32 s{sT2}, s{sT2}, 7")
                I(f"s_add_u32 s{sT1}, s{sT1}, s{sT2}")
                I(f"s_add_u32 s{sT1}, s{sT1}, s{sT3}")
                I(f"buffer_load_dwordx4 v{(m2_, m3_)[e & 1]}, {TA}, s{sT1} offen {rflags} lds")
                if e < 13: I(f"s_add_u32 s{sT0}, s{sT0}, 1")
        srd(TA, 46, 1728 * 2)
        I(f"s_lshl_b32 s{sT0}, s{sTB}, 6")
        I(f"v_and_b32 v{m0_}, 31, v{vLANE}")
        I(f"v_lshlrev_b32 v{m0_}, 1, v{m0_}")
        I(f"v_mov_b32 v{vB1}, 0")
        I(f"buffer_load_short_d16_hi v{vB1}, v{m0_}, {TA}, s{sT0} offen")
        for b_ in HB5:
            for i in range(4):
                I(f"v_mov_b32 v{b_+i}, 0")
        TS(25)
        I("s_branch L_W1")

    def role_base():
        I(f"s_lshl_b32 s{sT0}, s{sWAVE}, 13")
        I(f"s_add_u32 s{sT0}, s{sT0}, {L_ROLE}")

    a.label("L_WO")
    if g1:
        if pth:
            I(f"s_cmp_eq_u32 s{sWAVE}, 6")
            I("s_cbranch_scc0 L_G1")
            I(f"s_cmp_eq_u32 s{sIT}, 0")
            I("s_cbranch_scc0 L_G1")
            ml_gate(pth)
            a.label("L_G1")
        if g1 == 2:
            I(f"s_cmp_eq_u32 s{sIT}, 0")
            I("s_cbranch_scc1 L_G1b")
            I("s_barrier")
            I("s_branch L_WO0")
            a.label("L_G1b")
        else:
            I("s_barrier")
    I(f"s_cmp_eq_u32 s{sIT}, 0")
    I("s_cbranch_scc0 L_WO0")
    role_base()
    tr_addr(T + 47, 64, sT0)
    I("s_waitcnt vmcnt(0)")
    for ks in range(2):
        for t in range(2):
            b = vRB + 4 * (ks * 2 + t)
            o = ks * 2048 + t * 32
            I(f"ds_read_b64_tr_b16 v[{b}:{b+1}], v{T+47} offset:{o}")
            I(f"ds_read_b64_tr_b16 v[{b+2}:{b+3}], v{T+47} offset:{o+256}")
    I("s_waitcnt lgkmcnt(0)")
    TS(15)
    a.label("L_WO0")
    I(f"s_cmp_eq_u32 s{sWAVE}, 5")
    I("s_cbranch_scc0 L_WO1")
    if q2 == 2:
        I(f"s_cmp_eq_u32 s{sIT}, 0")
        I("s_cbranch_scc1 L_WO2")
        I(f"buffer_load_ushort v{vXF}, v{vXFA}, {WS}, 0 offen sc1")
        a.label("L_WO2")
    I("s_waitcnt vmcnt(0)")
    I(f"v_lshlrev_b32 v{vXF}, 16, v{vXF}")
    a.label("L_WO1")
    A0, Ma, La = T + 44, T + 48, T + 49
    Dw = [[T + 8, T + 12], [T + 16, T + 20]]
    wMX, wE, wT, wL2E, wR0, wR1 = [T + 24 + i for i in range(6)]
    I(f"v_mov_b32 v{wL2E}, s{sL2E}")
    zfa = T + 41
    if zh >= 3:
        I(f"v_lshl_add_u32 v{zfa}, v{vLANE}, 13, s34")
        def zst3():
            I("s_mov_b64 exec, s[96:97]")
            I(f"buffer_store_dword v{wL2E}, v{zfa}, {WS}, s{sREG} offen sc1")
            I("s_mov_b64 exec, -1")
    elif zh:
        I(f"s_lshl_b32 s{sT0}, s{sR}, 10")
        I(f"s_lshl_b32 s{sT1}, s{sX}, 7")
        I(f"s_add_u32 s{sT0}, s{sT0}, s{sT1}")
        I(f"s_add_u32 s{sT0}, s{sT0}, {ZOFF + 0x4800}")
        I(f"s_cmp_lt_u32 s{sR}, 6")
        I(f"s_cselect_b32 s{sT0}, s{sT0}, {BIG:#x}")
        I(f"s_and_b32 s{sT1}, s{sX}, 3")
        I(f"s_lshl_b32 s{sT1}, s{sT1}, 1")
        I(f"s_cmp_eq_u32 s{sT1}, s{sWAVE}")
        I(f"s_cselect_b32 s{sT0}, s{sT0}, {BIG:#x}")
        I(f"v_lshlrev_b32 v{zfa}, 13, v{vLANE}")
        I(f"v_add_u32 v{zfa}, s{sT0}, v{zfa}")
        I(f"v_mov_b32 v{zfa+1}, {BIG:#x}")
        I(f"v_cmp_gt_u32 vcc, 2, v{vLANE}")
        I(f"v_cndmask_b32 v{zfa}, v{zfa+1}, v{zfa}, vcc")
        zst = f"buffer_store_dword v{wL2E}, v{zfa}, {WS}, s{sREG} offen sc1"
    if pl == 1:
        light(f"buffer_load_dword v{Ma}, v{vA2}, {WS}, s{sREG} offen sc1", Ma)
    if pl == 2:
        light(f"buffer_load_dword v{A0}, v{vA0}, {WS}, s{sREG} offen sc1", A0, (0xFF, 0))
    poll([f"buffer_load_dwordx4 {vr(A0)}, v{vA0}, {WS}, s{sREG} offen sc1",
          f"buffer_load_dwordx2 v[{Ma}:{La}], v{vA2}, {WS}, s{sREG} offen sc1"], list(range(A0, A0 + 6)),
         groups=[range(A0, A0 + 4), range(A0 + 4, A0 + 6)], hop=1)
    TS(16)
    seq = [
        f"v_max_f32_dpp v{wMX}, v{Ma}, v{Ma} quad_perm:[1,0,3,2] row_mask:0xf bank_mask:0xf",
        f"v_max_f32_dpp v{wMX}, v{wMX}, v{wMX} quad_perm:[2,3,0,1] row_mask:0xf bank_mask:0xf",
        f"v_max_f32_dpp v{wMX}, v{wMX}, v{wMX} row_half_mirror row_mask:0xf bank_mask:0xf",
        f"v_sub_f32 v{wE}, v{Ma}, v{wMX}",
    ]
    k = 0
    for t in range(2):
        for ks in range(2):
            I(f"v_mfma_f32_16x16x32_bf16 {vr(Dw[t][ks])}, {vr(A0)}, {vr(vRB+4*(ks*2+t))}, 0")
            if zh == 1 and k == 0: I(zst)
            if zh == 3 and k == 0: zst3()
            I(seq[k]); k += 1
    I(f"v_mul_f32 v{wE}, v{wE}, v{wL2E}")
    I(f"v_exp_f32 v{wE}, v{wE}")
    I(f"v_mul_f32 v{wT}, v{wE}, v{La}")
    mrg = [f"v_mov_b32_dpp v{Dw[t][0]+i}, v{Dw[t][1]+i} quad_perm:[0,1,2,3] row_mask:0xc bank_mask:0xf"
           for t in range(2) for i in range(4)]
    I(mrg[0]); I(mrg[1])
    I(f"v_add_f32_dpp v{wT}, v{wT}, v{wT} quad_perm:[1,0,3,2] row_mask:0xf bank_mask:0xf")
    I(mrg[2]); I(mrg[3])
    I(f"v_add_f32_dpp v{wT}, v{wT}, v{wT} quad_perm:[2,3,0,1] row_mask:0xf bank_mask:0xf")
    I(f"v_mov_b32_dpp v{wE}, v{wE} row_ror:4 row_mask:0xf bank_mask:0xa")
    I(mrg[4])
    I(f"v_add_f32_dpp v{wT}, v{wT}, v{wT} row_half_mirror row_mask:0xf bank_mask:0xf")
    I(mrg[5])
    I(f"v_rcp_f32 v{wT}, v{wT}")
    I(mrg[6]); I(mrg[7])
    for i in range(4):
        for t in range(2):
            D = Dw[t][0]; R = (wR0, wR1)[t]
            op = "v_mul_f32_dpp" if i == 0 else "v_fmac_f32_dpp"
            I(f"{op} v{R}, v{wE}, v{D+i} quad_perm:[{i},{i},{i},{i}] row_mask:0xf bank_mask:0xf")
    I(f"v_mul_f32 v{wR0}, v{wR0}, v{wT}")
    I(f"v_mul_f32 v{wR1}, v{wR1}, v{wT}")
    I(f"ds_write_b32 v{vPW}, v{wR0} offset:{L_PB2}")
    I(f"ds_write_b32 v{vPW}, v{wR1} offset:{L_PB2+256}")
    if zh == 2: I(zst)
    if zh == 4: zst3()
    I("s_waitcnt lgkmcnt(0)")
    I("s_barrier")
    I(f"s_cmp_eq_u32 s{sWAVE}, 5")
    I("s_cbranch_scc0 L_next")
    if p5 & 2: I("s_setprio 3")
    TS(17)
    reduce_read(8, L_PB2)
    I("s_waitcnt lgkmcnt(0)")
    I(f"v_add_f32 v{T+30}, v{T+30}, v{vXF}")
    reduce_sum(8, rTOT)
    pack_pairs(rTOT, rU)
    I(f"v_mov_b32 v{T}, v{rU}")
    I(f"v_mov_b32_dpp v{T+1}, v{rU} quad_perm:[2,2,2,2] row_mask:0xf bank_mask:0xf")
    I(f"v_mov_b32_dpp v{T+2}, v{rU} row_shl:4 row_mask:0xf bank_mask:0xf")
    I(f"v_mov_b32_dpp v{T+3}, v{rU} row_shl:6 row_mask:0xf bank_mask:0xf")
    setexec(0x01010101, 0)
    I(f"buffer_store_dwordx4 {vr(T)}, v{vRP}, {WS}, s{sREG} offen sc1")
    if dual:
        I(f"buffer_store_dwordx4 {vr(T)}, v{vRP}, {WS}, s{sREG2} offen sc1")
    setexec(0xFFFFFFFF, 0xFFFFFFFF)
    TS(18)
    if p5 & 2: I("s_setprio 0")
    I("s_branch L_next")

    if m2:
        D0, D1, S1, S2, HB, D2 = T, T + 4, T + 8, T + 12, T + 16, T + 44
        IDW = vSEL + 5
        def it0(fn):
            l = a.newlab("Li")
            I(f"s_cmp_eq_u32 s{sIT}, 0")
            I(f"s_cbranch_scc0 {l}")
            fn()
            a.label(l)
        def w2_frags(nb, x0):
            for e in range(2 * nb):
                b = (F0, F0 + 4, F1, F1 + 4, F2, F2 + 4)[e]
                va = vA3
                if e:
                    va = x0 + (e & 1)
                    if e < 4: I(f"v_xor_b32 v{va}, {32*e}, v{vA3}")
                    elif e == 4:
                        I(f"v_xor_b32 v{va}, s{sF2x}, v{vA3}")
                        I(f"v_add_u32 v{va}, s{sF2o}, v{va}")
                    else: I(f"v_xor_b32 v{va}, 32, v{x0}")
                I(f"ds_read_b64_tr_b16 v[{b}:{b+1}], v{va}")
                I(f"ds_read_b64_tr_b16 v[{b+2}:{b+3}], v{va} offset:512")
        def w2_tail(nb):
            I("s_barrier")
            setexec(0x00050005, 0x000A000A)
            for e in range(nb):
                I(f"ds_read_b128 {vr(HB+4*e)}, v{vA1} offset:{L_H}")
                I("s_lshl_b64 exec, exec, 4" if e < nb - 1 else "s_mov_b64 exec, -1")
            TS(23)
            for e in range(nb):
                I(f"s_waitcnt lgkmcnt({nb-1-e})")
                I(f"v_smfmac_f32_16x16x64_bf16 {vr(D2)}, {vr(HB+4*e)}, {vr((F0, F1, F2)[e], 8)}, v{IDX}")
            I(f"v_pk_add_f32 v[{D2}:{D2+1}], v[{D2}:{D2+1}], v[{D2+2}:{D2+3}]")
            I(f"v_cvt_pk_bf16_f32 v{D2}, v{D2}, v{D2+1}")
            I(f"v_min_u32 v{D2}, 0xfffffffe, v{D2}")
            I(f"buffer_store_dword v{D2}, v{vA2}, {WS}, s{sREG} offen sc1")
            I(f"buffer_store_dword v{D2}, v{vA2}, {WS}, s{sREG2} offen sc1")
            TS(24)
            I("s_branch L_next")
        def zero(rs):
            for r_ in rs: I(f"v_mov_b32 v{r_}, 0")
        def gwave(ns, nb):
            lab = a.newlab("Lgw")
            ones()
            I(f"s_cmp_eq_u32 s{sIT}, 0")
            I(f"s_cbranch_scc0 {lab}a")
            x0, x1 = T + 46, T + 47
            I(f"v_bfe_u32 v{x0}, v{vLANE}, 3, 1")
            I(f"v_lshlrev_b32 v{x0}, 5, v{x0}")
            I(f"v_bfe_u32 v{x1}, v{vLANE}, 2, 1")
            I(f"v_add_u32 v{x0}, v{x0}, v{x1}")
            I(f"v_lshrrev_b32 v{x1}, 4, v{vLANE}")
            I(f"v_lshl_add_u32 v{x0}, v{x1}, 2, v{x0}")
            I(f"v_lshlrev_b32 v{x0}, 6, v{x0}")
            I(f"v_and_b32 v{x1}, 3, v{vLANE}")
            I(f"v_lshl_add_u32 v{x0}, v{x1}, 3, v{x0}")
            I(f"v_add_u32 v{x0}, s{sLB}, v{x0}")
            I(f"s_lshl_b32 s{sT0}, s{sWAVE}, 7")
            I(f"v_and_b32 v{x1}, 15, v{vLANE}")
            I(f"v_lshlrev_b32 v{x1}, 2, v{x1}")
            I(f"v_add_u32 v{x1}, s{sT0}, v{x1}")
            I(f"s_waitcnt vmcnt({0 if ns == 2 or wd else 6})")
            for sg in range(ns):
                for t in range(2):
                    for qd in range(2):
                        for jj in range(2):
                            b = vRB + 16 * sg + 8 * t + 4 * qd + 2 * jj
                            I(f"ds_read_b64_tr_b16 v[{b}:{b+1}], v{x0} offset:{sg*4096 + qd*1024 + jj*128 + t*32}")
                I("s_waitcnt lgkmcnt(0)")
            for t in range(2):
                for k_ in range(2 * ns):
                    b = vRB + 16 * (k_ >> 1) + 8 * t + 4 * (k_ & 1)
                    I(f"v_mfma_f32_16x16x32_bf16 {vr(T+4*t)}, {vr(ONES)}, {vr(b)}, {'0' if k_ == 0 else vr(T+4*t)}")
            I(f"ds_write_b32 v{x1}, v{T} offset:{L_CS}")
            I(f"ds_write_b32 v{x1}, v{T+4} offset:{L_CS+64}")
            TS(15)
            if wd == 2:
                I("s_waitcnt lgkmcnt(0)")
                I("s_barrier")
            else:
                I(f"s_branch {lab}b")
            a.label(lab + "a")
            w2_frags(nb, T + 50)
            a.label(lab + "b")
            zero(list(range(D0, D0 + 12)) + list(range(HB, HB + 4 * nb)) + list(range(D2, D2 + 4)) + (list(range(XA + 4, XA + 8)) if ns == 1 else []))
            I(f"s_add_u32 s{sT1}, s{sREG}, {ZOFF}")
            I(f"s_add_u32 s{sT1}, s{sT1}, s{sNEAR}")
            I(f"s_mov_b32 s{sF}, 0x00ff00ff")
            I(f"s_mov_b32 s{sF+1}, 0xff00ff00")
            if yh >= 20 and ns == 1:
                yfa = T + 49
                I(f"s_mul_i32 s{sT0}, s{sTB}, 205")
                I(f"s_lshr_b32 s{sT0}, s{sT0}, 11")
                I(f"s_mul_i32 s{sT2}, s{sT0}, 10")
                I(f"s_sub_u32 s{sT2}, s{sTB}, s{sT2}")
                I(f"s_lshl_b32 s{sT2}, s{sT2}, 14")
                I(f"s_lshl_b32 s{sT0}, s{sT0}, 7")
                I(f"s_add_u32 s{sT0}, s{sT0}, s{sT2}")
                I(f"s_add_u32 s{sT0}, s{sT0}, {YOFF + 56*128}")
                I(f"s_cmp_eq_u32 s{sWAVE}, 7")
                I(f"s_cselect_b32 s{sT0}, s{sT0}, {BIG:#x}")
                I(f"v_lshlrev_b32 v{yfa}, 13, v{vLANE}")
                I(f"v_add_u32 v{yfa}, s{sT0}, v{yfa}")
                I(f"v_mov_b32 v{XA}, {BIG:#x}")
                I(f"v_cmp_gt_u32 vcc, 2, v{vLANE}")
                I(f"v_cndmask_b32 v{yfa}, v{XA}, v{yfa}, vcc")
                yst = f"buffer_store_dword v{yfa}, v{yfa}, {WS}, s{sREG} offen sc1"
            if zh:
                I(f"v_lshlrev_b32 v{XA+1}, 7, v{vLANE}")
                I(f"s_lshl_b32 s{sT0}, s{sWAVE}, 10")
                I(f"s_add_u32 s{sT0}, s{sT0}, s{sT1}")
                I(f"s_add_u32 s{sT0}, s{sT0}, {0x4800 if ns == 2 else 0x4000}")
                light_all(f"buffer_load_dword v{XA}, v{XA+1}, {WS}, s{sT0} offen sc1", XA, (zhm, 0))
            elif zl:
                light(f"buffer_load_dword v{XA}, v{vGZ}, {WS}, s{sT1} offen sc1", XA, (zl, 0))
            poll([f"buffer_load_dwordx4 {vr(XA+4*k_)}, v{vGZ}, {WS}, s{sT1} offen offset:{2*ZR*k_} sc1" for k_ in range(ns)],
                 [XA + 4 * k_ for k_ in range(ns)], groups=[[XA + 4 * k_] for k_ in range(ns)], hop=2)
            TS(19)
            for k_ in range(ns):
                I(f"v_mfma_f32_16x16x32_bf16 {vr(S2)}, {vr(XA+4*k_)}, {vr(XA+4*k_)}, {vr(S2) if k_ else '0'}")
            I(f"v_smfmac_f32_16x16x64_bf16 {vr(S1)}, {vr(ONES)}, {vr(XA, 8)}, v{IDW}")
            if yh == 20 and ns == 1: I(yst)
            st = [f"v_pk_add_f32 v[{S2}:{S2+1}], v[{S2}:{S2+1}], v[{S2+2}:{S2+3}]",
                  f"v_add_f32 v{S2}, v{S2}, v{S2+1}",
                  f"v_cndmask_b32 v{S1+1}, 0, v{S2}, s[{sF}:{sF+1}]"]
            for m_ in ("quad_perm:[1,0,3,2]", "quad_perm:[2,3,0,1]", "row_half_mirror", "row_mirror"):
                st += [f"v_add_f32_dpp v{S1}, v{S1}, v{S1} {m_} {DPF}", f"v_add_f32_dpp v{S1+1}, v{S1+1}, v{S1+1} {m_} {DPF}"]
            st += [f"v_add_f32_dpp v{S1+1}, v{S1+1}, v{S1+1} row_bcast:15 row_mask:0xa bank_mask:0xf",
                   f"v_add_f32_dpp v{S1}, v{S1}, v{S1} row_bcast:31 row_mask:0xc bank_mask:0xf",
                   f"v_add_f32_dpp v{S1+1}, v{S1+1}, v{S1+1} row_bcast:31 row_mask:0xc bank_mask:0xf"]
            for k_ in range(ns):
                for t in range(2):
                    I(f"v_smfmac_f32_16x16x64_bf16 {vr(D0+4*t)}, {vr(XA+4*k_)}, {vr(vRB+16*k_+8*t, 8)}, v{IDW}")
                    if ns == 2 and k_ == 1 and t == 0:
                        I(st.pop(0)); I(st.pop(0))
            dp = [f"v_pk_add_f32 v[{D0}:{D0+1}], v[{D0}:{D0+1}], v[{D0+2}:{D0+3}]",
                  f"v_pk_add_f32 v[{D1}:{D1+1}], v[{D1}:{D1+1}], v[{D1+2}:{D1+3}]",
                  f"v_add_f32 v{D0}, v{D0}, v{D0+1}",
                  f"v_add_f32 v{D1}, v{D1}, v{D1+1}",
                  f"v_permlane32_swap_b32 v{D0}, v{D1}",
                  f"v_add_f32 v{D0}, v{D0}, v{D1}",
                  f"ds_write_b32 v{vPW}, v{D0} offset:{L_PB1}"]
            n1 = 5 if ns == 2 else 7
            for x_ in st[:n1]: I(x_)
            st = st[n1:]
            while st or dp:
                if dp: I(dp.pop(0))
                if st: I(st.pop(0))
            setexec(0, 0x80000000)
            I(f"ds_write_b64 v{vPW}, v[{S1}:{S1+1}] offset:{L_PB1 + 260}")
            setexec(0xFFFFFFFF, 0xFFFFFFFF)
            if yh == 21 and ns == 1: I(yst)
            I("s_waitcnt lgkmcnt(0)")
            TS(20)
            I("s_barrier")
            if wd != 2: it0(lambda: (w2_frags(nb, T + 50), I("s_waitcnt lgkmcnt(0)")))
            w2_tail(nb)
        a.label("L_W1")
        I(f"s_cmp_lt_u32 s{sWAVE}, 4")
        I("s_cbranch_scc0 L_W4")
        gwave(2, 2)
        a.label("L_W4")
        I(f"s_cmp_lt_u32 s{sWAVE}, 6")
        I("s_cbranch_scc1 L_W45")
        gwave(1, 3)
        a.label("L_W45")
        zero(list(range(HB, HB + 12)) + list(range(D2, D2 + 4)))
        I(f"s_cmp_eq_u32 s{sWAVE}, 5")
        I("s_cbranch_scc1 L_W5")
        I("s_waitcnt vmcnt(0)")
        TS(37)
        if wd == 2:
            it0(lambda: I("s_barrier"))
            w2_frags(3, T + 50)
            if 0 < yh < 20:
                I(f"s_mul_i32 s{sT0}, s{sTB}, 205")
                I(f"s_lshr_b32 s{sT0}, s{sT0}, 11")
                I(f"s_mul_i32 s{sT1}, s{sT0}, 10")
                I(f"s_sub_u32 s{sT1}, s{sTB}, s{sT1}")
                I(f"s_lshl_b32 s{sT1}, s{sT1}, 14")
                I(f"s_lshl_b32 s{sT0}, s{sT0}, 7")
                I(f"s_add_u32 s{sT0}, s{sT0}, s{sT1}")
                I(f"s_add_u32 s{sT0}, s{sT0}, s{sREG}")
                I(f"s_add_u32 s{sT0}, s{sT0}, {YOFF + 56*128}")
                I(f"v_lshlrev_b32 v{T+49}, 13, v{vLANE}")
                setexec(3, 0)
            I("s_waitcnt lgkmcnt(0)")
            I("s_barrier")
            if 0 < yh < 20:
                for _ in range(yh - 1): I("s_nop 15")
                I(f"buffer_store_dword v{T+49}, v{T+49}, {WS}, s{sT0} offen sc1")
                setexec(0xFFFFFFFF, 0xFFFFFFFF)
        else:
            I("s_barrier")
            w2_frags(3, T + 50)
            I("s_waitcnt lgkmcnt(0)")
        I("s_branch L_W1t")
        a.label("L_W5")
        EPS = 1e-5
        ra, rz, rh, rK, rE, rc = T + 48, T + 49, T + 40, T + 32, T + 34, T + 28
        SB, CB = vRB, vRB + 12
        I(f"v_mov_b32 v{rK}, {f2u(math.sqrt(1 + EPS) / 640):#x}")
        I(f"v_mov_b32 v{rK+1}, {f2u((1 + EPS) / 640):#x}")
        I(f"v_mov_b32 v{rE}, 0")
        I(f"v_mov_b32 v{rE+1}, {f2u(EPS * EPS):#x}")
        I(f"v_mov_b32 v{rC1}, {f2u(GC1):#x}")
        I(f"v_mov_b32 v{rC2}, {f2u(GC2):#x}")
        I(f"v_lshlrev_b32 v{ra}, 3, v{vLANE}")
        I(f"v_lshlrev_b32 v{rc}, 2, v{vLANE}")
        I(f"v_mov_b32 v{rz}, 0")
        I(f"v_and_b32 v{rh}, 17, v{vLANE}")
        I(f"v_and_b32 v{rT}, 2, v{vLANE}")
        I(f"v_lshl_add_u32 v{rh}, v{rT}, 2, v{rh}")
        I(f"v_bfe_u32 v{rT}, v{vLANE}, 2, 2")
        I(f"v_lshl_add_u32 v{rh}, v{rT}, 1, v{rh}")
        I(f"v_lshlrev_b32 v{rh}, 1, v{rh}")
        I("s_waitcnt vmcnt(0)")
        GW = (0, 1, 2, 3, 6, 7)
        def cs0():
            for i, v in enumerate(GW):
                I(f"ds_read_b32 v{CB+i}, v{rc} offset:{L_CS + v*128}")
            I("s_waitcnt lgkmcnt(0)")
            if wd != 2: w2_frags(3, T + 50)
            I(f"v_pk_add_f32 v[{CB}:{CB+1}], v[{CB}:{CB+1}], v[{CB+2}:{CB+3}]")
            I(f"v_pk_add_f32 v[{CB}:{CB+1}], v[{CB}:{CB+1}], v[{CB+4}:{CB+5}]")
            I(f"v_add_f32 v{CB}, v{CB}, v{CB+1}")
            I(f"v_mul_f32 v{vCS1}, {f2u(1 / math.sqrt(1 + EPS)):#x}, v{CB}")
        if wd == 2:
            it0(lambda: (I("s_barrier"), cs0()))
        else:
            I(f"s_cmp_eq_u32 s{sIT}, 0")
            I("s_cbranch_scc1 L_W5a")
        w2_frags(3, T + 50)
        I("s_waitcnt lgkmcnt(0)")
        a.label("L_W5a")
        if p5 & 4: I("s_setprio 3")
        I("s_barrier")
        TS(21)
        for i, v in enumerate(GW):
            I(f"ds_read_b64 v[{SB+2*i}:{SB+2*i+1}], v{rz} offset:{L_PB1 + 512 + v*PP}")
        for i, v in enumerate(GW):
            I(f"ds_read_b64 v[{T+2*i}:{T+2*i+1}], v{ra} offset:{L_PB1 + v*PP}")
        def sum6(b):
            return [f"v_pk_add_f32 v[{b+2*d_}:{b+2*d_+1}], v[{b+2*d_}:{b+2*d_+1}], v[{b+2*s_}:{b+2*s_+1}]" for d_, s_ in ((0, 1), (2, 3), (4, 5), (0, 2), (0, 4))]
        I("s_waitcnt lgkmcnt(6)")
        for x_ in sum6(SB): I(x_)
        I(f"v_pk_fma_f32 v[{SB}:{SB+1}], v[{SB}:{SB+1}], v[{rK}:{rK+1}], v[{rE}:{rE+1}]")
        I(f"v_fma_f32 v{rR}, -v{SB}, v{SB}, v{SB+1}")
        I(f"v_max_f32 v{rR}, v{rR}, v{rE+1}")
        I(f"v_rsq_f32 v{rR}, v{rR}")
        I("s_waitcnt lgkmcnt(0)")
        if wd != 2: it0(cs0)
        for x_ in sum6(T): I(x_)
        I(f"v_fma_f32 v{T+1}, -v{SB}, v{vCS1}, v{T+1}")
        I(f"v_add_f32 v{T}, v{T}, v{T+1}")
        I(f"v_fma_f32 v{rU}, v{T}, v{rR}, v{vB1}")
        I(f"v_mul_f32 v{rT}, v{rU}, v{rU}")
        I(f"v_fma_f32 v{rT}, v{rT}, v{rC2}, v{rC1}")
        I(f"v_mul_f32 v{rT}, v{rT}, v{rU}")
        I(f"v_exp_f32 v{rT}, v{rT}")
        I(f"v_add_f32 v{rT}, 1.0, v{rT}")
        I(f"v_rcp_f32 v{rT}, v{rT}")
        setexec(0xFFFFFFFF, 0)
        I(f"v_mul_f32 v{rU}, v{rU}, v{rT}")
        I(f"v_cvt_pk_bf16_f32 v{rU}, v{rU}, v{rU}")
        I(f"ds_write_b16 v{rh}, v{rU} offset:{L_H}")
        setexec(0xFFFFFFFF, 0xFFFFFFFF)
        TS(22)
        if p5 & 4: I("s_setprio 0")
        I("s_waitcnt lgkmcnt(0)")
        a.label("L_W1t")
        w2_tail(3)

    if not m2:
        ha = T + 48
        def w2_frags(FR, wait=True):
            for e in range(len(FR)):
                va, o = (vA3, e * 8192) if not y64 else ((vA3, vA1)[e & 1], (e >> 1) * 16384)
                if y128: va, o = (vA3, vA1, vA0, T + 51)[e & 3], (e >> 2) * 8192
                if y128 and e == 0: I(f"v_xor_b32 v{T+51}, 96, v{vA3}")
                if e == 4 and len(FR) == 8: I("s_waitcnt lgkmcnt(0)")
                I(f"ds_read_b64_tr_b16 v[{FR[e]}:{FR[e]+1}], v{va} offset:{o}")
                I(f"ds_read_b64_tr_b16 v[{FR[e]+2}:{FR[e]+3}], v{va} offset:{o+512}")
            if wait: I("s_waitcnt lgkmcnt(0)")
        def w2_tail(FR, HB, D2):
            ne = len(FR)
            I("s_barrier")
            setexec(0x00010001, 0x00010001)
            for e in range(ne):
                I(f"ds_read_b128 {vr(HB[e])}, v{ha} offset:{L_H}")
                I("s_lshl_b64 exec, exec, 1" if e < ne - 1 else "s_mov_b64 exec, -1")
            TS(23)
            for e in range(ne):
                if ne == 6 and e == 4:
                    I(f"s_cmp_lt_u32 s{sWAVE}, 4")
                    I("s_cbranch_scc0 L_w24")
                if ne == 8 and e == 4:
                    I(f"s_cmp_ge_u32 s{sWAVE}, 6")
                    I("s_cbranch_scc0 L_w24")
                I(f"s_waitcnt lgkmcnt({ne-1-e})")
                I(f"v_mfma_f32_16x16x32_bf16 {vr(D2)}, {vr(FR[e])}, {vr(HB[e])}, {vr(D2) if e else '0'}")
            if ne >= 6: a.label("L_w24")
            if y64: I(f"s_mov_b64 exec, s[{sYM}:{sYM+1}]")
            else: setexec(0x001F001F, 0x001F001F)
            I(f"v_cvt_pk_bf16_f32 v{D2}, v{D2}, v{D2+1}")
            I(f"v_cvt_pk_bf16_f32 v{D2+1}, v{D2+2}, v{D2+3}")
            I(f"v_min_u32 v{D2}, 0xfffffffe, v{D2}")
            I(f"v_min_u32 v{D2+1}, 0xfffffffe, v{D2+1}")
            I(f"buffer_store_dwordx2 v[{D2}:{D2+1}], v{vA2}, {WS}, s{sREG} offen sc1")
            if dual:
                I(f"buffer_store_dwordx2 v[{D2}:{D2+1}], v{vA2}, {WS}, s{sREG2} offen sc1")
            setexec(0xFFFFFFFF, 0xFFFFFFFF)
            if ne >= 6: I("s_waitcnt lgkmcnt(0)")
            TS(24)
            I("s_branch L_next")
        FR04 = [28, 32, 36, 40, T + 40] + ([T + 24] if y64 else [])
        FR5 = [vRB + 4 * e for e in range(4 if y64 else 5)]
        if y128:
            FR04 = FR04[:4]
            FR5 = [vRB + 4 * e for e in range(8)]
            HB5 = [28, 32, 36, 40, T, T + 4, T + 8, T + 12]
        HB04 = [T + 4 * e for e in range(len(FR04))]
        def it0(fn):
            l = a.newlab("Li")
            I(f"s_cmp_eq_u32 s{sIT}, 0")
            I(f"s_cbranch_scc0 {l}")
            fn()
            a.label(l)
        a.label("L_W1")
        I(f"s_cmp_ge_u32 s{sWAVE}, 5")
        I("s_cbranch_scc1 L_W1h")
        ones()
        I(f"s_cmp_eq_u32 s{sIT}, 0")
        I("s_cbranch_scc0 L_W11")
        role_base()
        tr_addr(T + 47, 64, sT0)
        I(f"s_lshl_b32 s{sT0}, s{sWAVE}, 7")
        I(f"v_and_b32 v{T+46}, 15, v{vLANE}")
        I(f"v_lshlrev_b32 v{T+46}, 2, v{T+46}")
        I(f"v_add_u32 v{T+46}, s{sT0}, v{T+46}")
        if not emd: I("s_waitcnt vmcnt(0)")
        for ks in range(4):
            for t in range(2):
                b = vRB + 4 * (ks * 2 + t)
                o = ks * 2048 + t * 32
                I(f"ds_read_b64_tr_b16 v[{b}:{b+1}], v{T+47} offset:{o}")
                I(f"ds_read_b64_tr_b16 v[{b+2}:{b+3}], v{T+47} offset:{o+256}")
            if ks == 1:
                I("s_waitcnt lgkmcnt(0)")
        I("s_waitcnt lgkmcnt(0)")
        for t in range(2):
            for ks in range(4):
                I(f"v_mfma_f32_16x16x32_bf16 {vr(T+4*t)}, {vr(ONES)}, {vr(vRB+4*(ks*2+t))}, {'0' if ks == 0 else vr(T+4*t)}")
        I(f"ds_write_b32 v{T+46}, v{T} offset:{L_CS2}")
        I(f"ds_write_b32 v{T+46}, v{T+4} offset:{L_CS2+64}")
        TS(15)
        I("s_branch L_W12")
        a.label("L_W11")
        w2_frags(FR04)
        a.label("L_W12")
        if g2: I("s_barrier")
        I(f"s_add_u32 s{sT1}, s{sREG}, {ZOFF}")
        I(f"s_add_u32 s{sT1}, s{sT1}, s{sNEAR}")
        gather(sT1)
        TS(19)
        gemv(2, vRB, lambda ks, t: ks * 2 + t)
        TS(20)
        I("s_barrier")
        I(f"v_lshrrev_b32 v{ha}, 4, v{vLANE}")
        I(f"v_lshlrev_b32 v{ha}, 4, v{ha}")
        for i in range(4 * len(FR04)):
            I(f"v_mov_b32 v{T+i}, 0")
        it0(lambda: w2_frags(FR04))
        w2_tail(FR04, HB04, T + 44)
        a.label("L_W1h")
        if g2:
            I(f"s_cmp_eq_u32 s{sWAVE}, 6")
            I("s_cbranch_scc0 L_G2")
            ml_gate(g2)
            a.label("L_G2")
            I("s_barrier")
        I(f"v_mov_b32 v{rINV}, {f2u(1.0/640):#x}")
        I(f"v_mov_b32 v{rC1}, {f2u(GC1):#x}")
        I(f"v_mov_b32 v{rC2}, {f2u(GC2):#x}")
        I(f"v_lshrrev_b32 v{ha}, 4, v{vLANE}")
        I(f"v_lshlrev_b32 v{ha}, 4, v{ha}")
        I(f"v_lshlrev_b32 v{ha+1}, 1, v{vLANE}")
        I(f"v_lshlrev_b32 v{ha+2}, 2, v{vLANE}")
        I("s_waitcnt vmcnt(0)")
        I("s_barrier")
        I(f"s_cmp_eq_u32 s{sWAVE}, 5")
        I("s_cbranch_scc1 L_W1r")
        for b_ in HB5:
            for i in range(4):
                I(f"v_mov_b32 v{b_+i}, 0")
        it0(lambda: w2_frags(FR5))
        I("s_branch L_W1t")
        a.label("L_W1r")
        TS(21)
        reduce_read(5, L_PB1)
        for v in range(5):
            I(f"ds_read_b32 v{T+24+v}, v{ha+2} offset:{L_CS2 + v*128}")
        I("s_waitcnt lgkmcnt(5)")
        reduce_sum(5, rTOT)
        stats()
        I("s_waitcnt lgkmcnt(0)")
        it0(lambda: w2_frags(FR5[:4] if y128 else FR5, False))
        I(f"v_add_f32 v{T+24}, v{T+24}, v{T+25}")
        I(f"v_add_f32 v{T+26}, v{T+26}, v{T+27}")
        I(f"v_add_f32 v{T+24}, v{T+24}, v{T+28}")
        I(f"v_add_f32 v{vCS1}, v{T+24}, v{T+26}")
        I(f"v_sub_f32 v{rMEAN}, v{rMEAN}, v{rMB}")
        I(f"v_mul_f32 v{rVAR}, v{rVAR}, v{rR}")
        I(f"v_mul_f32 v{rMEAN}, v{rMEAN}, v{rR}")
        I(f"v_mul_f32 v{rVAR}, v{rVAR}, v{rR}")
        I(f"v_cvt_pk_bf16_f32 v{rT}, v{rMEAN}, v{rVAR}")
        I(f"v_and_b32 v{rU}, 0xffff0000, v{rT}")
        I(f"v_lshlrev_b32 v{rMEAN}, 16, v{rT}")
        I(f"v_add_f32 v{rU}, {f2u(1e-5):#x}, v{rU}")
        I(f"v_cvt_pk_bf16_f32 v{rU}, v{rU}, v{rU}")
        I(f"v_fma_f32 v{rMB}, v{rMEAN}, v{rSD}, v{rMB}")
        I(f"v_and_b32 v{rU}, 0xffff0000, v{rU}")
        I(f"v_sqrt_f32 v{rU}, v{rU}")
        I(f"v_fma_f32 v{rTOT}, -v{rMB}, v{vCS1}, v{rTOT}")
        I(f"v_cvt_pk_bf16_f32 v{rU}, v{rU}, v{rU}")
        I(f"v_mul_f32 v{rTOT}, v{rTOT}, v{rR}")
        I(f"v_and_b32 v{rU}, 0xffff0000, v{rU}")
        I(f"v_rcp_f32 v{rU}, v{rU}")
        I(f"v_mul_f32 v{rTOT}, v{rTOT}, v{rU}")
        I(f"v_cvt_pk_bf16_f32 v{rU}, v{rTOT}, v{rTOT}")
        I(f"v_and_b32 v{rU}, 0xffff0000, v{rU}")
        I(f"v_add_f32 v{rU}, v{rU}, v{vB1}")
        I(f"v_cvt_pk_bf16_f32 v{rU}, v{rU}, v{rU}")
        I(f"v_and_b32 v{rU}, 0xffff0000, v{rU}")
        I(f"v_mul_f32 v{rT}, v{rU}, v{rU}")
        I(f"v_fma_f32 v{rT}, v{rT}, v{rC2}, v{rC1}")
        I(f"v_mul_f32 v{rT}, v{rT}, v{rU}")
        I(f"v_exp_f32 v{rT}, v{rT}")
        I(f"v_add_f32 v{rT}, 1.0, v{rT}")
        I(f"v_rcp_f32 v{rT}, v{rT}")
        I(f"v_mul_f32 v{rU}, v{rU}, v{rT}")
        I(f"v_cvt_pk_bf16_f32 v{rU}, v{rU}, v{rU}")
        setexec(0xFFFFFFFF, 0)
        I(f"ds_write_b16 v{ha+1}, v{rU} offset:{L_H}")
        setexec(0xFFFFFFFF, 0xFFFFFFFF)
        TS(22)
        I("s_waitcnt lgkmcnt(0)")
        a.label("L_W1t")
        w2_tail(FR5, HB5, T + 44)

    if q2 == 2:
        a.label("L_qslow")
        q_masked(lambda r_: f"buffer_load_dwordx4 {vr(r_)}, v{vQR}, {WS}, s{sT2} offen sc1")
        I(f"s_add_u32 s{sSPIN}, s{sSPIN}, 1")
        I("s_waitcnt vmcnt(0)")
        cur = maxtree(T + 50, range(T, T + 16))
        I(f"v_cmp_eq_u32 vcc, -1, v{cur}")
        I("s_cbranch_vccz L_qs2")
        I(f"s_cmp_lt_u32 s{sSPIN}, {spin_limit}")
        I("s_cbranch_scc1 L_qslow")
        a.label("L_qs2")
        for i in range(16, 24):
            I(f"v_mov_b32 v{T+i}, 0")
        I(f"s_mov_b64 s[{sKM}:{sKM+1}], 0")
        I("s_branch L_att")
    a.label("L_next")
    I("s_waitcnt vmcnt(0)")
    I(f"s_add_u32 s{sIT}, s{sIT}, 1")
    I(f"s_add_u32 s{sREG}, s{sREG}, {RS}")
    I(f"s_add_u32 s{sREG2}, s{sREG2}, {RS}")
    I(f"s_cmp_lt_u32 s{sIT}, 2")
    I("s_cbranch_scc1 L_loop")
    I(f"s_or_b32 s{sT0}, s{sROLE}, s{sX}")
    I(f"s_cmp_eq_u32 s{sT0}, 0")
    I("s_cbranch_scc0 L_fin")
    I(f"s_cmp_eq_u32 s{sWAVE}, 6")
    I("s_cbranch_scc1 L_loop")
    a.label("L_fin")
    if dbgt:
        srd(TA, 54, 256)
        I(f"v_add_u32 v{T}, 2, v{vLANE}")
        I(f"v_add_u32 v{T+1}, 4, v{vLANE}")
        I(f"v_cmp_gt_u32 vcc, 6, v{vLANE}")
        I(f"v_cndmask_b32 v{T}, v{T+1}, v{T}, vcc")
        I(f"v_lshlrev_b32 v{T}, 2, v{T}")
        setexec(0xFFF, 0)
        I(f"buffer_atomic_umax v{vTST}, v{T}, {TA}, 0 offen sc1")
        setexec(0xFFFFFFFF, 0xFFFFFFFF)
    if instr:
        TS(30)
        I(f"s_lshl_b32 s{sT0}, s2, 3")
        I(f"s_add_u32 s{sT0}, s{sT0}, s{sWAVE}")
        I(f"s_lshl_b32 s{sT0}, s{sT0}, 9")
        I(f"s_add_u32 s{sT0}, s{sT0}, {DBGOFF}")
        I(f"v_lshlrev_b32 v{T}, 3, v{vLANE}")
        I(f"buffer_store_dwordx2 v[{vTSI}:{vTST}], v{T}, {WS}, s{sT0} offen")
    a.label("L_end")
    I("s_endpgm")
    a.raw('.section .rodata,"a"\n.p2align 6')
    a.raw(f".amdhsa_kernel {KNAME}")
    a.raw("  .amdhsa_next_free_vgpr 256\n  .amdhsa_next_free_sgpr 102\n  .amdhsa_accum_offset 256\n"
          "  .amdhsa_group_segment_fixed_size 0\n  .amdhsa_kernarg_size 104\n  .amdhsa_user_sgpr_count 2\n"
          "  .amdhsa_user_sgpr_kernarg_segment_ptr 1\n  .amdhsa_system_sgpr_workgroup_id_x 1")
    a.raw(".end_amdhsa_kernel")
    open(fn, "w").write(a.text())
    return a.ninstr


if __name__ == "__main__":
    import argparse
    p = argparse.ArgumentParser()
    p.add_argument("-o", default="k.s")
    p.add_argument("--instr", action="store_true")
    p.add_argument("--kv", default="nt")
    p.add_argument("--w", default="")
    p.add_argument("--y16", action="store_true")
    p.add_argument("--nomask", action="store_true")
    p.add_argument("--nodual", action="store_true")
    p.add_argument("--n0", type=int, default=4)
    p.add_argument("--late", type=lambda x: int(x, 0), default=0x5f)
    p.add_argument("--r", default="")
    p.add_argument("--ncal", type=int, default=4)
    p.add_argument("--nw0", type=int, default=8)
    p.add_argument("--qk", type=int, default=16)
    p.add_argument("--qp", type=int, default=3)
    p.add_argument("--gate", type=int, default=4)
    p.add_argument("--calr", type=int, default=28)
    p.add_argument("--esy", type=int, default=1)
    p.add_argument("--rmap", type=int, default=0)
    p.add_argument("--wk", type=int, default=0)
    p.add_argument("--th1", type=int, default=0)
    p.add_argument("--yl", type=int, default=0)
    p.add_argument("--y64", type=int, default=0)
    p.add_argument("--zx", type=int, default=64)
    p.add_argument("--zfl", default="sc1")
    p.add_argument("--yfl", default="sc1")
    p.add_argument("--pl", type=int, default=0)
    p.add_argument("--g1", type=int, default=0)
    p.add_argument("--pth", type=int, default=0)
    p.add_argument("--g2", type=int, default=0)
    p.add_argument("--g3", type=int, default=0)
    p.add_argument("--near", type=int, default=-1)
    p.add_argument("--hb", default="0,1")
    p.add_argument("--zq", type=int, default=0)
    p.add_argument("--sm", type=int, default=0)
    p.add_argument("--kl", type=int, default=0)
    p.add_argument("--m2", type=int, default=0)
    p.add_argument("--q2", type=int, default=0)
    p.add_argument("--pk3", type=int, default=1)
    p.add_argument("--qb", type=int, default=0)
    p.add_argument("--ld", type=int, default=1)
    p.add_argument("--ldl", type=int, default=2)
    p.add_argument("--zl", type=lambda x: int(x, 0), default=0)
    p.add_argument("--w128", type=int, default=0)
    p.add_argument("--the", type=int, default=0)
    p.add_argument("--ew", type=int, default=0)
    p.add_argument("--eg", type=int, default=8)
    p.add_argument("--pi", type=int, default=0)
    p.add_argument("--wb", type=int, default=0)
    p.add_argument("--wd", type=int, default=0)
    p.add_argument("--pw", type=int, default=12)
    p.add_argument("--ps", type=int, default=0)
    p.add_argument("--pf", type=int, default=0)
    p.add_argument("--h0", type=int, default=0)
    p.add_argument("--pfr", type=int, default=1)
    p.add_argument("--dd", type=int, default=0)
    p.add_argument("--p5", type=int, default=0)
    p.add_argument("--pipe", type=int, default=0)
    p.add_argument("--ap", type=int, default=0)
    p.add_argument("--cw", type=int, default=0)
    p.add_argument("--emd", type=int, default=0)
    p.add_argument("--g8", type=int, default=8)
    p.add_argument("--emw", type=int, default=4)
    p.add_argument("--vx", type=int, default=0)
    p.add_argument("--kvp", default="12,13,14,15,16,17,18,19")
    p.add_argument("--fakeq", type=int, default=0)
    p.add_argument("--pdep", type=int, default=1)
    p.add_argument("--pdl", type=int, default=2)
    p.add_argument("--pmask", type=int, default=31)
    p.add_argument("--xl", type=lambda x: int(x, 0), default=0)
    p.add_argument("--dyn", type=int, default=1)
    p.add_argument("--tw", type=int, default=6)
    p.add_argument("--tp", type=int, default=16)
    p.add_argument("--th2", type=int, default=0)
    p.add_argument("--rot2", type=int, default=2)
    p.add_argument("--pt", type=int, default=0)
    p.add_argument("--ptr", type=int, default=32)
    p.add_argument("--dbgt", default=None)
    p.add_argument("--sp1", type=int, default=1)
    p.add_argument("--norot", action="store_true")
    p.add_argument("--syfl", default="")
    p.add_argument("--ts", default=None)
    p.add_argument("--noprio", action="store_true")
    p.add_argument("--sl", type=int, default=0)
    p.add_argument("--ast", type=int, default=4)
    p.add_argument("--esv", type=int, default=0)
    p.add_argument("--yh", type=int, default=0)
    p.add_argument("--zh", type=int, default=0)
    p.add_argument("--zhm", type=lambda x: int(x, 0), default=255)
    p.add_argument("--yhm", type=lambda x: int(x, 0), default=31)
    p.add_argument("--ylm", type=lambda x: int(x, 0), default=0)
    args = p.parse_args()
    ts = None if args.ts is None else set(int(x) for x in args.ts.split(","))
    n = gen(args.o, sl=args.sl, ast=args.ast, esv=args.esv, yh=args.yh, zh=args.zh, yhm=args.yhm, zhm=args.zhm, ylm=args.ylm, instr=args.instr, kvflags=args.kv, wflags=args.w, y16=args.y16,
            masked_=not args.nomask, tsset=ts, n0=args.n0, late=args.late, rflags=args.r, ncal=args.ncal, dual=not args.nodual, prio=not args.noprio,
            nw0=args.nw0, qk=args.qk, rot=not args.norot, syfl=args.syfl, qp=args.qp, gate=args.gate, calr=args.calr, esy=args.esy, rmap=args.rmap, wk=args.wk, th1=args.th1, yl=args.yl, y64=args.y64, zx=args.zx, zfl=args.zfl, yfl=args.yfl, pl=args.pl, g1=args.g1, pth=args.pth, g2=args.g2, g3=args.g3, near=args.near, zq=args.zq, sm=args.sm, kl=args.kl, m2=args.m2, q2=args.q2, pipe=args.pipe, ap=args.ap, pk3=args.pk3, qb=args.qb, ld=args.ld, ldl=args.ldl, zl=args.zl, w128=args.w128, the=args.the, ew=args.ew, eg=args.eg, pi=args.pi, wb=args.wb, wd=args.wd, pw=args.pw, pst=args.ps, pf=args.pf, h0=args.h0, pfr=args.pfr, dd=args.dd, p5=args.p5, cw=args.cw, emd=args.emd, g8=args.g8, emw=args.emw, kvp=tuple(sum(1 << int(y) for y in x.split('+')) if i < 2 else int(x) for i, x in enumerate(args.kvp.split(','))), vx=args.vx, fakeq=args.fakeq, hb=tuple(int(x) for x in args.hb.split(',')), pdep=args.pdep, pdl=args.pdl, pmask=args.pmask, xl=args.xl, dyn=args.dyn, tw=args.tw, tp=args.tp, th2=args.th2, rot2=args.rot2, pt=args.pt, ptr_=args.ptr, dbgt=[tuple(int(y) for y in x.split('.')) for x in args.dbgt.split(',')] if args.dbgt else None, sp1=args.sp1)
    print("instrs:", n)
```

```python
import sys, struct, math
from asmlib import Asm

KNAME = "interleave_layers__gqa_block_cached__mixer_channel_mlp__decode_kernel"

RS = 0x60000
POFF, ZOFF, QOFF, XOFF, MLOFF, YOFF = 0x0, 0x10000, 0x20000, 0x1c000, 0x58000, 0x30000
CALOFF = 0xC0000
CP = 0x2000
ZR, ZX = 512, 64
DBGOFF = 0x100000
WS_SIZE = 0x200000
BIG = 0x40000000
PP = 544
L_PB1, L_PB2, L_CS1, L_CS2, L_QB, L_ML, L_FLAG, L_DUM, L_PER, L_ROLE = (
    0, 2816, 7168, 7808, 8448, 8704, 8768, 8896, 10240, 51200)
LDS_TOTAL = 163840
NPER, NREST = 10, 26
L_RING, RSL = 51200, 36
L_W2, L_H, L_O = 92160, 8784, 133120
LEAD_R = 0

def f2u(x):
    return struct.unpack("<I", struct.pack("<f", x))[0]

L2E = f2u(1.4426950408889634)
SCALE = f2u(128 ** -0.5)
GC1 = -2.0 * 1.4426950408889634 * math.sqrt(2.0 / math.pi)
GC2 = GC1 * 0.044715

sWAVE, sX, sR, sIT, sREG = 3, 4, 5, 6, 7
K_SRD, V_SRD, WS, TA, TB, OUTS = "s[8:11]", "s[12:15]", "s[16:19]", "s[20:23]", "s[24:27]", "s[28:31]"
sROLE, sPURE, sSPIN = 58, 59, 60
sT0, sT1, sT2, sT3, sSLOT = 61, 62, 63, 72, 73
sF = 64
sXCC, sTB, sNT, sTSI = 74, 75, 76, 77
sL2E, sM = 80, 81
sRB, sRSTEP, sRN = 82, 83, 84
sKV = 85
sNEAR, sREG2, sVOTE = 78, 79, 81
sLATE, sQS, sKM, sYM = 100, 101, 42, 98
sXW = 95
vLANE = 0
vGO, vXO, vPW, vSW, vQR, vOW, vMLW = 1, 2, 7, 8, 9, 10, 11
vPQ = 3
vA0, vA1, vA2, vA3 = 12, 13, 14, 15
vRDMA = 17
vTSI, vTST = 18, 19
vSEL = 20
vBQ = 28
vRB = 44
vFD = 72
T = 76
vK, vV = 128, 192
vRR, vQP, vQG, vCSQ, vCS1, vB1, vRP = 1, 2, 3, 4, 5, 6, 8
vXF = 72
vXFA = 16
vCR, vCML, vCP, vCPM, vQG7, vTK = 1, 2, 3, 4, 5, 6


def vr(a, n=4):
    return f"v[{a}:{a+n-1}]"


def gen(fn, instr=False, kvflags="nt", wflags="", rflags="", spin_limit=400000, tsset=None,
        sl=0, ast=4, esv=0, ylm=0, yh=0, zh=0, yhm=31, zhm=255, y16=False, masked_=True, dbgt=False, n0=4, late=0x78, dual=True, prio=True, ncal=4, nw0=8, qk=16, rot=True,
        syfl='', qp=3, gate=4, sp1=1, pt=0, ptr_=32, rmap=0, wk=0, calr=28, esy=1, th1=0, th2=0, rot2=2, dyn=1, tw=6, tp=16, yl=0, y64=0, zx=64, zfl='sc1', yfl='sc1', pl=0, xl=0, pdep=1, pdl=2, pmask=31, g1=0, pth=0, g2=0, g3=0, near=-1, hb=(0, 1), fakeq=0, kvp=(4096, 8192, 14, 15, 16, 17, 18, 19), vx=0, emd=0, g8=8, emw=4, cw=0, sm=0, zq=0, kl=0, m2=0, q2=0, pipe=0, ap=0, pk3=1, qb=0, p5=0, dd=0, pf=0, h0=0, pfr=1, pst=0, pw=12, wd=0, wb=0, pi=0, ew=0, eg=8, the=0, w128=0, zl=0, ld=1, ldl=2):
    assert not late & 0x80
    ZX = zx; ZR = 8 * zx; ZB = 4 if zx == 64 else 3
    y128 = y64 == 2
    HB5 = [28, 32, 36, 40, 64]
    a = Asm()
    a.pipe = bool(pipe)
    I = a.I
    a.raw(f"; @launch grid=(256,1,1) block=(512,1,1) lds={LDS_TOTAL}")
    a.raw('.amdgcn_target "amdgcn-amd-amdhsa--gfx950"')
    a.raw(".text")
    a.raw(f".globl {KNAME}\n.p2align 8\n.type {KNAME},@function\n{KNAME}:")

    def TS(k):
        if dbgt:
            for j, (kk, it, *mn) in enumerate(dbgt):
                if kk == k:
                    l = a.newlab("Ld")
                    I(f"s_cmp_eq_u32 s{sIT}, {it}")
                    I(f"s_cbranch_scc0 {l}")
                    I("s_memrealtime s[0:1]")
                    I("s_waitcnt lgkmcnt(0)")
                    if mn: I("s_not_b32 s0, s0")
                    I(f"v_writelane_b32 v{vTST}, s0, {j + 2}")
                    a.label(l)
            return
        if not instr or (tsset is not None and k not in tsset and k not in (0, 30)):
            return
        I("s_memrealtime s[0:1]")
        I("s_waitcnt lgkmcnt(0)")
        I(f"v_writelane_b32 v{vTSI}, {k}, s{sTSI}")
        I(f"s_mov_b32 m0, s{sTSI}")
        I(f"v_writelane_b32 v{vTST}, s0, m0")
        I(f"s_add_u32 s{sTSI}, s{sTSI}, 1")

    def srd(dst, ptr, size):
        d = int(dst[2:].split(":")[0])
        I(f"s_mov_b32 s{d}, s{ptr}")
        I(f"s_mov_b32 s{d+1}, s{ptr+1}")
        I(f"s_mov_b32 s{d+2}, {size:#x}")
        I(f"s_mov_b32 s{d+3}, 0x20000")

    def setexec(lo, hi):
        if lo == 0xFFFFFFFF and hi == 0xFFFFFFFF:
            I("s_mov_b64 exec, -1")
        else:
            I(f"s_mov_b32 exec_lo, {lo:#x}")
            I(f"s_mov_b32 exec_hi, {hi:#x}")

    def maxtree(tmp, rs):
        rs = list(rs)
        if len(rs) == 1:
            return rs[0]
        cur = None
        while rs:
            if cur is None:
                if len(rs) >= 3:
                    I(f"v_max3_u32 v{tmp}, v{rs[0]}, v{rs[1]}, v{rs[2]}"); rs = rs[3:]
                else:
                    I(f"v_max_u32 v{tmp}, v{rs[0]}, v{rs[1]}"); rs = rs[2:]
                cur = tmp
            elif len(rs) >= 2:
                I(f"v_max3_u32 v{tmp}, v{tmp}, v{rs[0]}, v{rs[1]}"); rs = rs[2:]
            else:
                I(f"v_max_u32 v{tmp}, v{tmp}, v{rs[0]}"); rs = rs[1:]
        return cur

    def poll(loads, regs, ex=(0xFFFFFFFF, 0xFFFFFFFF), groups=None, simple=False, hop=0):
        lab = a.newlab("Lp"); done = a.newlab("Lpd")
        tmp = T + 50
        masked = masked_ and not simple
        if not masked:
            a.label(lab)
        dep = pdep if hop & pmask else 1
        for l in loads:
            I(l)
        for _ in range(dep - 1):
            for _ in range(pdl): I("s_nop 15")
            for l in loads:
                I(l)
        if masked:
            a.label(lab)
        I(f"s_add_u32 s{sSPIN}, s{sSPIN}, 1")
        I(f"s_waitcnt vmcnt({len(loads) * (dep - 1)})")
        cur = maxtree(tmp, regs)
        I(f"v_cmp_eq_u32 vcc, -1, v{cur}")
        I(f"s_cbranch_vccz {done}")
        if masked:
            if groups is None or len(loads) == 1:
                I("s_mov_b64 exec, vcc")
                for l in loads:
                    I(l)
            else:
                for j, gr in enumerate(groups):
                    cur = maxtree(tmp + 1 - (j & 1), gr)
                    I(f"v_cmp_eq_u32 s[{86+2*j}:{87+2*j}], -1, v{cur}")
                for j, l in enumerate(loads):
                    I(f"s_mov_b64 exec, s[{86+2*j}:{87+2*j}]")
                    I(l)
            setexec(*ex)
        I(f"s_cmp_lt_u32 s{sSPIN}, {spin_limit}")
        I(f"s_cbranch_scc1 {lab}")
        if masked:
            I("s_waitcnt vmcnt(0)")
        a.label(done)

    def light(load, reg, ex=None):
        lab = a.newlab("Ll"); done = a.newlab("Lld")
        if ex: setexec(*ex)
        if ld > 1:
            I(f"v_mov_b32 v{reg}, -1")
            for _ in range(ld - 1):
                I(load)
                for _ in range(ldl): I("s_nop 15")
            a.label(lab)
            I(load)
            I(f"s_add_u32 s{sSPIN}, s{sSPIN}, 1")
            I(f"s_waitcnt vmcnt({ld - 1})")
            I(f"v_cmp_ne_u32 vcc, -1, v{reg}")
            I(f"s_cbranch_vccnz {done}")
            I(f"s_cmp_lt_u32 s{sSPIN}, {spin_limit}")
            I(f"s_cbranch_scc1 {lab}")
            a.label(done)
            if ex: setexec(0xFFFFFFFF, 0xFFFFFFFF)
            return
        a.label(lab)
        I(load)
        I(f"s_add_u32 s{sSPIN}, s{sSPIN}, 1")
        I("s_waitcnt vmcnt(0)")
        I(f"v_cmp_ne_u32 vcc, -1, v{reg}")
        I(f"s_cbranch_vccnz {done}")
        I(f"s_cmp_lt_u32 s{sSPIN}, {spin_limit}")
        I(f"s_cbranch_scc1 {lab}")
        a.label(done)
        if ex: setexec(0xFFFFFFFF, 0xFFFFFFFF)

    def light_all(load, reg, ex):
        lab = a.newlab("La"); done = a.newlab("Lad")
        setexec(*ex)
        a.label(lab)
        I(load)
        I(f"s_add_u32 s{sSPIN}, s{sSPIN}, 1")
        I("s_waitcnt vmcnt(0)")
        I(f"v_cmp_eq_u32 vcc, -1, v{reg}")
        I(f"s_cbranch_vccz {done}")
        I(f"s_cmp_lt_u32 s{sSPIN}, {spin_limit}")
        I(f"s_cbranch_scc1 {lab}")
        a.label(done)
        setexec(0xFFFFFFFF, 0xFFFFFFFF)

    def lstore(ins, far=False):
        if far and near >= 0:
            for x in ins: I(x + " sc1")
            return
        l1 = a.newlab("Ls"); l2 = a.newlab("Lsd")
        I(f"s_cmp_eq_u32 s{sPURE}, 0")
        I(f"s_cbranch_scc1 {l1}")
        for x in ins: I(x)
        I(f"s_branch {l2}")
        a.label(l1)
        for x in ins: I(x + " sc1")
        a.label(l2)

    def unpack(lo, hi, src):
        I(f"v_lshlrev_b32 v{lo}, 16, v{src}")
        I(f"v_and_b32 v{hi}, 0xffff0000, v{src}")

    def hperm(dst, src, tmp):
        pos = list(hb) + [b for b in range(5) if b not in hb]
        if pos == [0, 1, 2, 3, 4]:
            if dst != src: I(f"s_mov_b32 s{dst}, s{src}")
            return
        I(f"s_mov_b32 s96, 0")
        for i in range(5):
            I(f"s_bfe_u32 s{tmp}, s{src}, {i | (1 << 16):#x}")
            I(f"s_lshl_b32 s{tmp}, s{tmp}, {pos[i]}")
            I(f"s_or_b32 s96, s96, s{tmp}")
        I(f"s_mov_b32 s{dst}, s96")

    XA = T + 32
    ONES = T + 28

    if instr: I("s_memrealtime s[98:99]")
    I("s_cmp_ge_u32 s2, 256")
    I("s_cbranch_scc1 L_end")
    I("s_load_dwordx16 s[32:47], s[0:1], 0")
    if cw:
        I("s_getpc_b64 s[4:5]")
        a.label("L_cs")
        I(f"v_lshlrev_b32 v1, {cw}, v0")
        I("v_min_u32 v1, L_end-L_cs, v1")
        I("global_load_dword v255, v1, s[4:5]")
    I("s_load_dwordx8 s[48:55], s[0:1], 64")
    I("s_load_dwordx2 s[56:57], s[0:1], 96")
    if dbgt: I("s_memrealtime s[96:97]")
    I("v_lshrrev_b32 v1, 6, v0")
    I(f"v_and_b32 v{vLANE}, 63, v0")
    I(f"v_readfirstlane_b32 s{sWAVE}, v1")
    I(f"s_and_b32 s{sX}, s2, 7")
    I(f"s_lshr_b32 s{sR}, s2, 3")
    I(f"s_lshl_b32 s{sSLOT}, s{sX}, 5")
    I(f"s_add_u32 s{sSLOT}, s{sSLOT}, s{sR}")
    I(f"s_mov_b32 s{sXW}, s{sX}")
    if near >= 0:
        I(f"s_and_b32 s{sSLOT}, s{sX}, 3")
        I(f"s_lshl_b32 s{sXW}, s{sSLOT}, 1")
        I(f"s_lshl_b32 s{sSLOT}, s{sSLOT}, 6")
        I(f"s_lshr_b32 s{sT0}, s{sR}, 2")
        I(f"s_lshl_b32 s{sT0}, s{sT0}, 3")
        I(f"s_add_u32 s{sSLOT}, s{sSLOT}, s{sT0}")
        I(f"s_and_b32 s{sT0}, s{sX}, 4")
        I(f"s_add_u32 s{sSLOT}, s{sSLOT}, s{sT0}")
        I(f"s_lshr_b32 s{sT0}, s{sT0}, 2")
        I(f"s_add_u32 s{sXW}, s{sXW}, s{sT0}")
        I(f"s_and_b32 s{sT0}, s{sR}, 3")
        I(f"s_add_u32 s{sSLOT}, s{sSLOT}, s{sT0}")
    if rmap:
        I(f"s_mov_b32 s{sT0}, -5")
        I(f"s_cmp_lt_u32 s{sR}, 28")
        I(f"s_cselect_b32 s{sT0}, -8, s{sT0}")
        I(f"s_cmp_lt_u32 s{sR}, 16")
        I(f"s_cselect_b32 s{sT0}, 16, s{sT0}")
        I(f"s_cmp_lt_u32 s{sR}, 11")
        I(f"s_cselect_b32 s{sT0}, 12, s{sT0}")
        I(f"s_cmp_lt_u32 s{sR}, 8")
        I(f"s_cselect_b32 s{sT0}, 0, s{sT0}")
        I(f"s_add_u32 s{sR}, s{sR}, s{sT0}")
    g, n, q4, c4, t0, t1, t2, t3 = T, T+1, T+2, T+3, T+4, T+5, T+6, T+7
    aK = T + 48
    vAT = T + 44
    I(f"v_lshrrev_b32 v{g}, 4, v{vLANE}")
    I(f"v_and_b32 v{n}, 15, v{vLANE}")
    I(f"v_bfe_u32 v{q4}, v{vLANE}, 2, 2")
    I(f"v_and_b32 v{c4}, 3, v{vLANE}")
    if sm and kl == 1:
        I(f"v_bfe_u32 v{aK}, v{vLANE}, 1, 3")
        I(f"v_lshlrev_b32 v{aK}, 8, v{aK}")
        I(f"v_lshl_add_u32 v{aK}, v{g}, 5, v{aK}")
        I(f"v_and_b32 v{t0}, 1, v{vLANE}")
        I(f"v_lshl_add_u32 v{aK}, v{t0}, 4, v{aK}")
    elif sm and kl != 2:
        I(f"v_bfe_u32 v{aK}, v{vLANE}, 1, 2")
        I(f"v_lshlrev_b32 v{aK}, 12, v{aK}")
        I(f"v_lshl_add_u32 v{aK}, v{g}, 5, v{aK}")
        I(f"v_and_b32 v{t0}, 8, v{vLANE}")
        I(f"v_lshl_add_u32 v{aK}, v{t0}, 5, v{aK}")
        I(f"v_and_b32 v{t0}, 1, v{vLANE}")
        I(f"v_lshl_add_u32 v{aK}, v{t0}, 4, v{aK}")
    else:
        I(f"v_lshlrev_b32 v{aK}, 8, v{q4}")
        I(f"v_lshl_add_u32 v{aK}, v{g}, 6, v{aK}")
        I(f"v_lshl_add_u32 v{aK}, v{c4}, 4, v{aK}")
    if not q2:
        I(f"v_mul_u32_u24 v{vXO}, 320, v{q4}")
        I(f"v_lshl_add_u32 v{vXO}, v{g}, 4, v{vXO}")
        I(f"s_lshl_b32 s{sT0}, s{sWAVE}, 6")
        I(f"v_add_u32 v{vXO}, s{sT0}, v{vXO}")
    if near >= 0:
        I(f"s_lshr_b32 s{sKV}, s{sSLOT}, 3")
        I(f"s_lshl_b32 s{sKV}, s{sKV}, 20")
        I(f"s_and_b32 s{sT0}, s{sSLOT}, 3")
        I(f"s_lshl_b32 s{sT0}, s{sT0}, 18")
        I(f"s_add_u32 s{sKV}, s{sKV}, s{sT0}")
        I(f"s_lshl_b32 s{sT0}, s{sWAVE}, 15")
        I(f"s_add_u32 s{sKV}, s{sKV}, s{sT0}")
        I(f"s_lshr_b32 s{sT0}, s{sSLOT}, 2")
        I(f"s_lshr_b32 s{sT1}, s{sSLOT}, 4")
        I(f"s_xor_b32 s{sT0}, s{sT0}, s{sT1}")
        I(f"s_xor_b32 s{sT0}, s{sT0}, {near}")
        I(f"s_and_b32 s{sT0}, s{sT0}, 1")
        I(f"s_lshl_b32 s{sT0}, s{sT0}, 13")
        I(f"s_add_u32 s{sKV}, s{sKV}, s{sT0}")
    else:
        I(f"s_lshr_b32 s{sKV}, s{sSLOT}, 3")
        hperm(97, sKV, sT0)
        I(f"s_lshl_b32 s{sKV}, s97, 20")
        for src, ps in ((sWAVE, kvp[2:5]), (sSLOT, kvp[5:8])):
            i = 0
            while i < 3:
                n_ = 1
                while i + n_ < 3 and ps[i + n_] == ps[i] + n_: n_ += 1
                I(f"s_bfe_u32 s{sT0}, s{src}, {i | (n_ << 16):#x}")
                I(f"s_lshl_b32 s{sT0}, s{sT0}, {ps[i]}")
                I(f"s_add_u32 s{sKV}, s{sKV}, s{sT0}")
                i += n_
    KVO = [0, 4096, 16384, 20480] if near >= 0 else [(t & 1) * kvp[0] ^ (t >> 1) * kvp[1] for t in range(4)]
    I(f"s_lshr_b32 s{sQS}, s{sSLOT}, 3")
    I(f"s_lshl_b32 s{sQS}, s{sQS}, 11")
    if q2:
        I(f"s_lshl_b32 s{sQS}, s{sSLOT}, 8")
    else:
        I(f"s_and_b32 s{sT1}, s{sSLOT}, 3")
        I(f"s_lshl_b32 s{sT0}, s{sT1}, 9")
        I(f"s_add_u32 s{sQS}, s{sQS}, s{sT0}")
        I(f"s_and_b32 s{sT0}, s{sSLOT}, 4")
        I(f"s_lshl_b32 s{sT0}, s{sT0}, 6")
        I(f"s_add_u32 s{sQS}, s{sQS}, s{sT0}")
    I(f"s_add_u32 s{sQS}, s{sQS}, {QOFF}")
    vW0, vW1, ta0, ta1 = T + 44, T + 45, T + 42, T + 43
    XQ, ACC, BUF = 28, 48, 80
    sBa, sEa, sPER, sRING, sSO, sMB, sRS_ = 86, 87, 90, 91, 92, 93, 94
    xq = T + 12
    I(f"s_and_b32 s{sT0}, s{sSLOT}, 3")
    I(f"s_mul_i32 s{sT0}, s{sT0}, 5")
    I(f"s_lshr_b32 s{sT1}, s{sSLOT}, 1")
    I(f"s_xor_b32 s{sT1}, s{sT1}, s{sWAVE}")
    I(f"s_bitcmp1_b32 s{sT1}, 1")
    I(f"s_cselect_b32 s{sT1}, {rot2}, 0")
    I(f"s_add_u32 s{sT1}, s{sT0}, s{sT1}")
    I(f"s_lshr_b32 s{sT0}, s{sSLOT}, 3")
    if near < 0: I(f"s_mov_b32 s{sT0}, s97")
    I(f"s_lshl_b32 s{sT0}, s{sT0}, 8")
    US = 17 if w128 else 18
    if w128:
        I(f"s_and_b32 s{sT2}, s{sWAVE}, 1")
        I(f"s_lshl_b32 s{sT2}, s{sT2}, 7")
        I(f"s_add_u32 s{sT0}, s{sT0}, s{sT2}")
        I(f"s_lshr_b32 s{sT2}, s{sWAVE}, 1")
        I(f"s_mul_i32 s{sT2}, s{sT2}, {320 * 8192}")
    else:
        I(f"s_lshl_b32 s{sT2}, s{sWAVE}, 6")
    I(f"s_add_u32 s{sBa}, s{sT0}, s{sT2}")
    I(f"s_add_u32 s{sEa}, s{sBa}, {20 << US:#x}")
    I(f"s_lshl_b32 s{sT2}, s{sT1}, {US}")
    I(f"s_add_u32 s{sSO}, s{sBa}, s{sT2}")
    if q2:
        I(f"s_bfe_u32 s{sT2}, s{sSLOT}, 0x20001")
        I(f"s_cmp_gt_u32 s{sWAVE}, s{sT2}")
        I(f"s_subb_u32 s{sPER}, s{sWAVE}, 0")
        I(f"s_mul_i32 s{sPER}, s{sPER}, {RSL * 1024}")
        I(f"s_add_u32 s{sPER}, s{sPER}, {L_RING}")
        I(f"s_sub_u32 s{sRING}, s{sPER}, {RSL * 1024}")
        I(f"s_cmp_eq_u32 s{sWAVE}, s{sT2}")
        I(f"s_cselect_b32 s{sPER}, {L_PER}, s{sPER}")
        I(f"s_cselect_b32 s{sRING}, {L_PER}, s{sRING}")
    else:
        I(f"s_mul_i32 s{sPER}, s{sWAVE}, {NPER * 1024}")
        I(f"s_add_u32 s{sPER}, s{sPER}, {L_PER}")
        I(f"s_mul_i32 s{sRING}, s{sWAVE}, {NREST * 1024}")
        I(f"s_add_u32 s{sRING}, s{sRING}, {L_RING}")
    I(f"v_add_u32 v{t2}, s{sT1}, v{q4}")
    I(f"v_lshlrev_b32 v{t2}, 6, v{t2}")
    I(f"v_lshl_add_u32 v{t2}, v{g}, 4, v{t2}")
    for j in range(5):
        I(f"v_add_u32 v{xq+j}, {256*j}, v{t2}")
        I(f"v_subrev_u32 v{t3}, {1280 - 256*j}, v{t2}")
        I(f"v_min_u32 v{xq+j}, v{xq+j}, v{t3}")
    I(f"v_lshrrev_b32 v{vW0}, 2, v{vLANE}")
    I(f"v_lshlrev_b32 v{vW0}, 13, v{vW0}")
    I(f"v_lshrrev_b32 v{t3}, 4, v{vLANE}")
    I(f"v_and_b32 v{t3}, 2, v{t3}")
    I(f"v_xor_b32 v{t3}, v{t3}, v{c4}")
    I(f"v_lshl_add_u32 v{vW0}, v{t3}, 4, v{vW0}")
    if w128:
        I(f"v_lshrrev_b32 v{vW0}, 3, v{vLANE}")
        I(f"v_lshlrev_b32 v{vW0}, 13, v{vW0}")
        I(f"v_and_b32 v{t3}, 7, v{vLANE}")
        I(f"v_lshl_add_u32 v{vW0}, v{t3}, 4, v{vW0}")
    I(f"v_add_u32 v{vW1}, {1 << (US - 1):#x}, v{vW0}")
    I(f"v_lshlrev_b32 v{t0}, 4, v{vLANE}")
    cl = T + 8
    for i in range(4):
        I(f"v_mov_b32 v{cl+i}, -1")
    I(f"s_mov_b32 s{sTSI}, 0")
    if instr:
        I(f"v_mov_b32 v{vTSI}, -1")
        I(f"v_mov_b32 v{vTST}, 0")
    I(f"s_getreg_b32 s{sXCC}, hwreg(HW_REG_XCC_ID)")
    I(f"s_and_b32 s{sXCC}, s{sXCC}, 15")
    I(f"s_mul_i32 s{sT3}, s2, 3072")
    if instr: I("s_memrealtime s[0:1]")
    I("s_waitcnt lgkmcnt(0)")
    if instr:
        I(f"v_writelane_b32 v{vTSI}, 41, 0")
        I(f"v_writelane_b32 v{vTST}, s98, 0")
        I(f"v_writelane_b32 v{vTSI}, 42, 1")
        I(f"v_writelane_b32 v{vTST}, s0, 1")
        I(f"s_mov_b32 s{sTSI}, 2")
        TS(43)
    srd(WS, 56, WS_SIZE)
    srd(K_SRD, 34, 32 << 20)
    if dbgt:
        I(f"v_mov_b32 v{vTST}, 0")
        I(f"v_writelane_b32 v{vTST}, s96, 1")
        I("s_not_b32 s96, s96")
        I(f"v_writelane_b32 v{vTST}, s96, 0")
        I(f"s_mov_b32 s{sIT}, 0")
        TS(40)
    srd(TA, 38, 640 * 8192)
    srd(TB, 32, 1280)

    def k_issue(lo, hi, hook=None):
        for ki in range(lo, hi):
            if hook: hook(ki)
            if sm and kl == 1:
                if ki % 4 == 0 or ki == lo:
                    I(f"s_xor_b32 s{sT0}, s{sKV}, {KVO[ki//4]}")
                I(f"buffer_load_dwordx4 {vr(vK+4*ki)}, v{aK}, {K_SRD}, s{sT0} offen offset:{((ki>>1)&1)*2048+(ki&1)*128} {kvflags}")
                continue
            if sm and kl != 2:
                I(f"buffer_load_dwordx4 {vr(vK+4*ki)}, v{aK}, {K_SRD}, s{sKV} offen offset:{(ki>>1)*512+(ki&1)*128} {kvflags}")
                continue
            if ki % 4 == 0 or ki == lo:
                I(f"s_xor_b32 s{sT0}, s{sKV}, {KVO[ki//4]}")
            I(f"buffer_load_dwordx4 {vr(vK+4*ki)}, v{aK}, {K_SRD}, s{sT0} offen offset:{(ki%4)*1024} {kvflags}")

    I(f"s_cmp_eq_u32 s{sWAVE}, 6")
    I("s_cbranch_scc0 L_nclr")
    I(f"buffer_store_dwordx4 {vr(cl)}, v{t0}, {WS}, s{sT3} offen sc1")
    I(f"buffer_store_dwordx4 {vr(cl)}, v{t0}, {WS}, s{sT3} offen offset:1024 sc1")
    I(f"buffer_store_dwordx4 {vr(cl)}, v{t0}, {WS}, s{sT3} offen offset:2048 sc1")
    TS(0)
    I("s_branch L_early")
    a.label("L_nclr")
    I(f"s_cmp_ge_u32 s{sWAVE}, 4")
    I("s_cbranch_scc1 L_nwq")
    if prio: I(f"s_setprio {qp}")
    nis = [0]; nk = [0]; wpos = {}
    def slot(p):
        if q2: return (sPER if p < RSL else sRING), p * 1024
        if p < NPER: return sPER, p * 1024
        return sRING, ((p - NPER) % NREST) * 1024
    def w_issue(lo, hi):
        for p in range(lo, hi):
            u, h = p >> 1, p & 1
            b_, o_ = slot(p)
            I(f"s_add_u32 m0, s{b_}, {o_}")
            if fakeq and p == fakeq:
                I(f"v_mov_b32 v{vW0}, {BIG:#x}")
                I(f"v_mov_b32 v{vW1}, {BIG:#x}")
            I(f"buffer_load_dwordx4 v{(vW0, vW1)[h]}, {TA}, s{sSO} offen {wflags} lds")
            wpos[p] = nis[0]
            nis[0] += 1
            if h and p < 39:
                I(f"s_add_u32 s{sSO}, s{sSO}, {1 << US:#x}")
                I(f"s_cmp_eq_u32 s{sSO}, s{sEa}")
                I(f"s_cselect_b32 s{sSO}, s{sBa}, s{sSO}")
    for j in range(5):
        I(f"buffer_load_dwordx4 {vr(XQ+4*j)}, v{xq+j}, {TB}, 0 offen")
        nis[0] += 1
    w_issue(0, nw0)
    TS(0)
    I("s_branch L_early")
    a.label("L_nwq")
    if pt:
        k_issue(0, 1)
        I(f"v_lshlrev_b32 v{t2}, 21, v{vLANE}")
        setexec(0x7, 0)
        I(f"s_cmp_eq_u32 s{sWAVE}, 4")
        I("s_cbranch_scc0 L_pt5")
        srd(TA, 36, 32 << 20)
        setexec(1, 0)
        I(f"buffer_load_dword v{vV}, v{t2}, {TA}, s{sKV} offen")
        I("s_branch L_ptd")
        a.label("L_pt5")
        I(f"s_cmp_lt_u32 s{sR}, {ptr_}")
        I("s_cbranch_scc0 L_ptd")
        I(f"s_cmp_eq_u32 s{sWAVE}, 5")
        I("s_cbranch_scc0 L_pt7")
        for ptr, size in ((40, 4096 * 1280), (44, 640 * 3456), (48, 1728 * 1280)):
            srd(TA, ptr, size)
            I(f"buffer_load_dword v{vV}, v{t2}, {TA}, 0 offen")
        I("s_branch L_ptd")
        a.label("L_pt7")
        for ptr, size in ((52, 1280), (50, 1280), (46, 3456)) + (((54, 256),) if pt > 1 else ()):
            srd(TA, ptr, size)
            I(f"buffer_load_dword v{vV}, v{t2}, {TA}, 0 offen")
        a.label("L_ptd")
        setexec(0xFFFFFFFF, 0xFFFFFFFF)
        k_issue(1, n0)
    else:
        k_issue(0, n0)
    TS(0)
    a.label("L_early")
    srd(V_SRD, 36, 32 << 20)
    srd(OUTS, 52, 1280)
    I(f"s_mov_b32 s{sIT}, 0")
    I(f"s_mov_b32 s{sREG}, 0")
    I(f"s_mov_b32 s{sREG2}, {CP}")
    I(f"s_mov_b32 s{sSPIN}, 0")
    I(f"s_mov_b32 s{sPURE}, 0")
    I(f"s_mov_b32 s{sNEAR}, 0")
    I(f"s_mov_b32 s{sL2E}, {L2E:#x}")
    I(f"s_lshr_b32 s{sLATE}, {late:#x}, s{sWAVE}")
    I(f"s_and_b32 s{sLATE}, s{sLATE}, 1")
    I(f"s_mov_b32 s{sROLE}, 3")
    if not dyn:
        I(f"s_mul_i32 s{sTB}, s{sX}, 7")
        I(f"s_cmp_eq_u32 s{sX}, 7")
        I(f"s_cselect_b32 s{sT0}, 21, 20")
        I(f"s_sub_u32 s{sTB}, s{sTB}, s{sT0}")
        I(f"s_add_u32 s{sTB}, s{sTB}, s{sR}")
        I(f"s_cmp_lt_u32 s{sX}, 6")
        I(f"s_cselect_b32 s{sT0}, 27, 26")
        I(f"s_cmp_lt_u32 s{sR}, s{sT0}")
        I(f"s_cselect_b32 s{sROLE}, 1, s{sROLE}")
    I(f"s_cmp_lt_u32 s{sR}, 20")
    I(f"s_cselect_b32 s{sROLE}, 0, s{sROLE}")
    I(f"s_cselect_b32 s{sLATE}, s{sLATE}, 0")
    if zh >= 3:
        I(f"s_lshl_b32 s34, s{sR}, 10")
        I(f"s_lshl_b32 s96, s{sX}, 7")
        I(f"s_add_u32 s34, s34, s96")
        I(f"s_add_u32 s34, s34, {ZOFF + 0x4800}")
        I(f"s_and_b32 s97, s{sX}, 3")
        I(f"s_lshl_b32 s97, s97, 1")
        I(f"s_cmp_eq_u32 s97, s{sWAVE}")
        I(f"s_cselect_b32 s96, 3, 0")
        I(f"s_cmp_lt_u32 s{sR}, 6")
        I(f"s_cselect_b32 s96, s96, 0")
        I(f"s_mov_b32 s97, 0")
    for i in [1] + list(range(2 if q2 else 3, 18)):
        I(f"v_mov_b32 v{i}, {BIG:#x}")

    def v_issue():
        k1, k2, k3 = T + 49, T + 50, T + 51
        I(f"v_lshrrev_b32 v{k1}, 4, v{vLANE}")
        I(f"v_bfe_u32 v{k3}, v{vLANE}, 3, 1")
        if sm: I(f"v_lshl_add_u32 v{k3}, v{k1}, 1, v{k3}")
        else: I(f"v_lshl_add_u32 v{k3}, v{k3}, 3, v{k1}")
        I(f"v_lshlrev_b32 v{k3}, 8, v{k3}")
        I(f"v_and_b32 v{k2}, 7, v{vLANE}")
        I(f"v_lshl_add_u32 v{k3}, v{k2}, 4, v{k3}")
        def ticket():
            I(f"s_cmp_eq_u32 s{sWAVE}, {tw}")
            I("s_cbranch_scc0 L_ntk")
            I(f"s_cmp_eq_u32 s{sROLE}, 0")
            if pf:
                I(f"s_cselect_b32 s{sT1}, 1, 0x101")
                I(f"v_mov_b32 v{vTK}, s{sT1}")
                I(f"s_lshl_b32 s{sT1}, s{sX}, 3")
            else:
                I("s_cbranch_scc1 L_ntk")
                I(f"v_mov_b32 v{vRDMA}, 1")
            srd(TA, 54, 256)
            setexec(1, 0)
            if pf: I(f"buffer_atomic_add v{vTK}, off, {TA}, s{sT1} sc0 sc1")
            else: I(f"buffer_atomic_add v{vRDMA}, off, {TA}, 0 sc0 sc1")
            setexec(0xFFFFFFFF, 0xFFFFFFFF)
            a.label("L_ntk")
        for j in range(17):
            if dyn and j == tp: ticket()
            if j == 16: break
            if j % 4 == 0:
                I(f"s_xor_b32 s{sT0}, s{sKV}, {KVO[j//4]}")
            u, hf = (j >> 1) & 1, j & 1
            if sm: u, hf = 2 * hf, u
            I(f"buffer_load_dwordx4 {vr(vV+4*j)}, v{k3}, {V_SRD}, s{sT0} offen offset:{u*1024+hf*128} {kvflags}")

    def pf_static(lab, dummy, mode=0):
        ad, ds = T + 49, T + 50
        if mode != 3:
            I(f"s_cmp_lt_u32 s{sWAVE}, 7")
            I(f"s_cbranch_scc0 {lab}")
        if not dummy:
            I(f"s_cmp_eq_u32 s{sROLE}, 0")
            I(f"s_cbranch_scc1 {lab}")
        if mode == 3:
            I(f"s_sub_u32 s{sT0}, 31, s{sR}")
            I(f"s_min_u32 s{sT0}, s{sT0}, 5")
            I(f"s_mul_i32 s{sT1}, s{sWAVE}, 5")
            I(f"s_cmp_lt_u32 s{sT0}, 5")
            I(f"s_cselect_b32 s{sT1}, s{sT1}, 99")
            I(f"s_add_u32 s{sT0}, s{sT0}, s{sT1}")
            if pi: I(f"s_add_u32 s{sT0}, s{sT0}, {pi}")
            mode = 1
        elif mode == 1 and pst == 6:
            I(f"s_sub_u32 s{sT0}, 31, s{sR}")
            I(f"s_lshl_b32 s{sT1}, s{sWAVE}, 5")
            I(f"s_add_u32 s{sT0}, s{sT0}, s{sT1}")
            I(f"s_cmp_lt_u32 s{sT0}, {pi}")
            I(f"s_cselect_b32 s{sT0}, s{sT0}, 99")
        elif mode < 2 and pw == 32:
            I(f"s_sub_u32 s{sT0}, 31, s{sR}")
            I(f"s_lshl_b32 s{sT1}, s{sWAVE}, 5")
            I(f"s_add_u32 s{sT0}, s{sT0}, s{sT1}")
            I(f"s_min_u32 s{sT0}, s{sT0}, 99")
        elif mode == 1:
            I(f"s_sub_u32 s{sT0}, 31, s{sR}")
            I(f"s_cmp_lt_u32 s{sT0}, {pw}")
            I(f"s_cselect_b32 s{sT0}, s{sT0}, 99")
            I(f"s_mul_i32 s{sT1}, s{sWAVE}, {pw}")
            I(f"s_add_u32 s{sT0}, s{sT0}, s{sT1}")
        elif mode == 2:
            I(f"s_sub_u32 s{sT0}, 31, s{sR}")
            I(f"s_mul_i32 s{sT0}, s{sT0}, 7")
            I(f"s_add_u32 s{sT0}, s{sT0}, s{sWAVE}")
        else:
            I(f"s_sub_u32 s{sT0}, s{sR}, 20")
            if pfr:
                I(f"s_mul_i32 s{sT1}, s{sWAVE}, 12")
                I(f"s_add_u32 s{sT0}, s{sT0}, s{sT1}")
            else:
                I(f"s_mul_i32 s{sT0}, s{sT0}, 7")
                I(f"s_add_u32 s{sT0}, s{sT0}, s{sWAVE}")
            I(f"s_cmp_eq_u32 s{sROLE}, 0")
            I(f"s_cselect_b32 s{sT0}, 99, s{sT0}")
        I(f"s_mul_i32 s{sT1}, s{sX}, 7")
        I(f"s_min_u32 s{sT1}, s{sT1}, 48")
        if mode == 0:
            I(f"s_cmp_lt_u32 s{sT0}, 40")
            I(f"s_cbranch_scc0 {lab}w2")
        if mode < 2:
            srd(TA, 44, 640 * 3456)
            I(f"v_lshrrev_b32 v{ad}, 2, v{vLANE}")
            I(f"v_mul_u32_u24 v{ad}, 3456, v{ad}")
            I(f"v_and_b32 v{ds}, 3, v{vLANE}")
            I(f"v_lshl_add_u32 v{ad}, v{ds}, 7, v{ad}")
            I(f"s_mul_i32 s{sT0}, s{sT0}, {16*3456}")
            I(f"s_lshr_b32 s{sT1}, s{sT1}, 1")
            I(f"s_lshl_b32 s{sT1}, s{sT1}, 7")
            I(f"s_add_u32 s{sT0}, s{sT0}, s{sT1}")
            I(f"v_add_u32 v{ad}, s{sT0}, v{ad}")
            I(f"buffer_load_dword v{ds}, v{ad}, {TA}, 0 offen")
        if mode == 0:
            I(f"s_branch {lab}")
            a.label(lab + "w2")
            I(f"s_sub_u32 s{sT0}, s{sT0}, 40")
        if mode != 1:
            I(f"s_cmp_lt_u32 s{sX}, 6")
            I(f"s_cselect_b32 s{sT2}, 35, 30")
            I(f"s_mul_i32 s{sT1}, s{sT1}, {32*1280}")
            I(f"s_cmp_lt_u32 s{sT0}, s{sT2}")
            I(f"s_cselect_b32 s{sT1}, s{sT1}, {BIG:#x}")
            I(f"s_lshl_b32 s{sT0}, s{sT0}, 13")
            I(f"s_add_u32 s{sT0}, s{sT0}, s{sT1}")
            srd(TA, 48, 1728 * 1280)
            I(f"v_lshlrev_b32 v{ad}, 7, v{vLANE}")
            I(f"v_add_u32 v{ad}, s{sT0}, v{ad}")
            I(f"buffer_load_dword v{ds}, v{ad}, {TA}, 0 offen")
        a.label(lab)

    def w2_early():
        m0_, m1_, m2_, m3_ = T, T + 1, T + 2, T + 3
        I(f"s_mul_i32 s{sT0}, s{sWAVE}, 5")
        I(f"s_mul_i32 s{sT3}, s{sTB}, {32*1280}")
        I(f"v_lshrrev_b32 v{m0_}, 3, v{vLANE}")
        I(f"v_mul_u32_u24 v{m2_}, 1280, v{m0_}")
        I(f"v_and_b32 v{m1_}, 7, v{vLANE}")
        I(f"v_lshlrev_b32 v{m1_}, 4, v{m1_}")
        I(f"v_bfe_u32 v{m0_}, v{vLANE}, 4, 1")
        I(f"v_lshlrev_b32 v{m0_}, 5, v{m0_}")
        I(f"v_xor_b32 v{m1_}, v{m1_}, v{m0_}")
        I(f"s_and_b32 s{sT1}, s{sT0}, 1")
        I(f"s_lshl_b32 s{sT1}, s{sT1}, 6")
        I(f"v_xor_b32 v{m1_}, s{sT1}, v{m1_}")
        I(f"v_xor_b32 v{m0_}, 64, v{m1_}")
        I(f"v_add_u32 v{m3_}, v{m2_}, v{m0_}")
        I(f"v_add_u32 v{m2_}, v{m2_}, v{m1_}")
        srd(TA, 48, 1728 * 1280)
        for e in range(5):
            I(f"s_lshl_b32 s{sT1}, s{sT0}, 10")
            I(f"s_add_u32 m0, s{sT1}, {L_W2}")
            I(f"s_and_b32 s{sT1}, s{sT0}, 3")
            I(f"s_mul_i32 s{sT1}, s{sT1}, {8*1280}")
            I(f"s_lshr_b32 s{sT2}, s{sT0}, 2")
            I(f"s_lshl_b32 s{sT2}, s{sT2}, 7")
            I(f"s_add_u32 s{sT1}, s{sT1}, s{sT2}")
            I(f"s_add_u32 s{sT1}, s{sT1}, s{sT3}")
            I(f"buffer_load_dwordx4 v{(m2_, m3_)[e & 1]}, {TA}, s{sT1} offen {rflags} lds")
            if e < 4: I(f"s_add_u32 s{sT0}, s{sT0}, 1")

    def role_dma(lb=None, ne=8):
        if lb is None:
            I(f"s_lshl_b32 s{sT1}, s{sWAVE}, 13")
            I(f"s_add_u32 s{sT1}, s{sT1}, {L_ROLE}")
        else:
            I(f"s_mov_b32 s{sT1}, s{lb}")
        I(f"s_mov_b32 s{sT0}, s{sRB}")
        for e in range(ne):
            if e % 4 == 0:
                I(f"s_mov_b32 m0, s{sT1}")
                if e == 0:
                    I(f"s_add_u32 s{sT1}, s{sT1}, 4096")
            I(f"s_cmp_gt_u32 s{sRN}, {e}")
            I(f"s_cselect_b32 s{sT2}, s{sT0}, {BIG:#x}")
            I(f"buffer_load_dwordx4 v{vRDMA}, {TB}, s{sT2} offen offset:{(e%4)*1024} {rflags} lds")
            if e < 7:
                I(f"s_add_u32 s{sT0}, s{sT0}, s{sRSTEP}")
                if e % 4 == 3:
                    I(f"s_add_u32 s{sT0}, s{sT0}, 3072")
                else:
                    I(f"s_sub_u32 s{sT0}, s{sT0}, 1024")

    def rank_off(dst, rk, tmp):
        I(f"s_and_b32 s{tmp}, s{rk}, {(1 << ZB) - 1}")
        I(f"s_mul_i32 s{tmp}, s{tmp}, {ZR}")
        I(f"s_lshr_b32 s{dst}, s{rk}, {ZB}")
        I(f"s_lshl_b32 s{dst}, s{dst}, 14")
        I(f"s_add_u32 s{dst}, s{dst}, s{tmp}")

    I(f"s_cmp_ge_u32 s{sWAVE}, 5")
    I("s_cbranch_scc1 L_init567")
    I(f"v_bfe_u32 v{t0}, v{vLANE}, 3, 1")
    I(f"v_and_b32 v{t1}, 7, v{vLANE}")
    I(f"s_lshl_b32 s{sT1}, s{sWAVE}, 2")
    rank_off(sT0, sT1, sT2)
    I(f"v_mul_u32_u24 v{vGO}, {ZR}, v{t0}")
    I(f"v_mul_u32_u24 v{t1}, {ZX}, v{t1}")
    I(f"v_add3_u32 v{vGO}, v{vGO}, v{t1}, s{sT0}")
    I(f"v_lshl_add_u32 v{vGO}, v{g}, 4, v{vGO}")
    if q2:
        I(f"s_and_b32 s{sT0}, s{sSLOT}, 3")
        I(f"s_mul_i32 s{sT0}, s{sT0}, 5")
        I(f"s_lshl_b32 s{sT1}, s{sWAVE}, 2")
        I(f"s_add_u32 s{sT0}, s{sT0}, s{sT1}")
        I(f"s_lshl_b32 s{sT0}, s{sT0}, 6")
        I(f"v_and_b32 v{t0}, 1, v{q4}")
        I(f"v_lshlrev_b32 v{t0}, 7, v{t0}")
        I(f"v_lshl_add_u32 v{t0}, v{g}, 5, v{t0}")
        I(f"v_lshrrev_b32 v{t1}, 2, v{vLANE}")
        I(f"v_or_b32 v{t1}, v{t1}, v{vLANE}")
        I(f"v_and_b32 v{t1}, 2, v{t1}")
        I(f"v_lshl_add_u32 v{t0}, v{t1}, 3, v{t0}")
        I(f"v_add_u32 v{t0}, s{sT0}, v{t0}")
        I(f"v_subrev_u32 v{t1}, 1280, v{t0}")
        I(f"v_min_u32 v{vXO}, v{t0}, v{t1}")
        I(f"s_mul_i32 s{sT0}, s{sWAVE}, {PP}")
        I(f"v_lshlrev_b32 v{t2}, 3, v{g}")
        I(f"v_add_u32 v{t2}, s{sT0}, v{t2}")
        I(f"v_lshl_add_u32 v{vPQ}, v{n}, 4, v{t2}")
        I(f"v_add_u32 v{t2}, {L_PB1 + 512}, v{t2}")
        I(f"v_lshlrev_b32 v{t3}, 3, v{vLANE}")
        I(f"v_add_u32 v{t3}, {L_DUM}, v{t3}")
        I(f"v_lshlrev_b32 v{t0}, 2, v{g}")
        I(f"v_cmp_eq_u32 vcc, v{n}, v{t0}")
        I(f"v_cndmask_b32 v{vSW}, v{t3}, v{t2}, vcc")
        I("s_branch L_initc")
    I(f"s_mul_i32 s{sT0}, s{sWAVE}, {PP}")
    I(f"s_add_u32 s{sT0}, s{sT0}, {L_PB1 + 512}")
    I(f"v_lshlrev_b32 v{t2}, 2, v{g}")
    I(f"v_add_u32 v{t2}, s{sT0}, v{t2}")
    I(f"v_lshlrev_b32 v{t3}, 2, v{vLANE}")
    I(f"v_add_u32 v{t3}, {L_DUM}, v{t3}")
    I(f"v_cmp_eq_u32 vcc, v{q4}, v{g}")
    I(f"v_cndmask_b32 v{vSW}, v{t3}, v{t2}, vcc")
    I(f"s_mul_i32 s{sT0}, s{sWAVE}, {PP}")
    I(f"v_lshlrev_b32 v{vPQ}, 4, v{g}")
    I(f"v_add_u32 v{vPQ}, s{sT0}, v{vPQ}")
    I(f"s_and_b32 s{sT0}, s{sSLOT}, 3")
    I(f"s_lshl_b32 s{sT0}, s{sT0}, 2")
    I(f"s_lshl_b32 s{sKM}, 0x00010001, s{sT0}")
    I(f"s_mov_b32 s{sKM+1}, s{sKM}")
    I("s_branch L_initc")

    a.label("L_init567")
    I(f"s_cmp_eq_u32 s{sWAVE}, 6")
    I("s_cbranch_scc1 L_initc")
    I(f"s_cmp_eq_u32 s{sWAVE}, 7")
    I("s_cbranch_scc1 L_init7")
    rank_off(sT0, sR, sT1)
    I(f"s_mul_i32 s{sT1}, s{sX}, {ZX}")
    I(f"s_add_u32 s{sT0}, s{sT0}, s{sT1}")
    I(f"s_add_u32 s{sRB}, s{sT0}, {ZOFF}")
    I(f"v_lshlrev_b32 v{vRR}, 4, v{vLANE}")
    if q2:
        I(f"s_and_b32 s{sT0}, s{sQS}, {~2047 & 0xffffffff:#x}")
        I(f"s_and_b32 s{sT1}, s{sSLOT}, 6")
        I(f"s_lshl_b32 s{sT1}, s{sT1}, 5")
        I(f"s_add_u32 s{sT0}, s{sT0}, s{sT1}")
        I(f"s_and_b32 s{sT1}, s{sSLOT}, 1")
        I(f"s_lshl_b32 s{sT1}, s{sT1}, 3")
        I(f"s_add_u32 s{sT0}, s{sT0}, s{sT1}")
        I(f"v_lshlrev_b32 v{vQP}, 9, v{g}")
        I(f"v_and_b32 v{t0}, 1, v{vLANE}")
        I(f"v_lshl_add_u32 v{vQP}, v{t0}, 8, v{vQP}")
        I(f"v_and_b32 v{t0}, 2, v{vLANE}")
        I(f"v_lshl_add_u32 v{vQP}, v{t0}, 4, v{vQP}")
        I(f"v_and_b32 v{t0}, 8, v{vLANE}")
        I(f"v_lshl_add_u32 v{vQP}, v{t0}, 1, v{vQP}")
        I(f"v_and_b32 v{t0}, 4, v{vLANE}")
        I(f"v_add3_u32 v{vQP}, v{vQP}, v{t0}, s{sT0}")
        I(f"v_lshlrev_b32 v{vQG}, 4, v{n}")
        I(f"v_lshlrev_b32 v{vCSQ}, 3, v{c4}")
    else:
        I(f"v_lshlrev_b32 v{vQP}, 2, v{vLANE}")
        I(f"v_add_u32 v{vQP}, s{sQS}, v{vQP}")
        I(f"s_and_b32 s{sT0}, s{sQS}, {~2047 & 0xffffffff:#x}")
        I(f"v_lshlrev_b32 v{vQG}, 3, v{vLANE}")
        I(f"v_add_u32 v{vQG}, s{sT0}, v{vQG}")
    I(f"v_mov_b32 v{t0}, 0")
    I(f"v_mov_b32 v{t1}, 0")
    I(f"v_mov_b32 v{t2}, {L_FLAG}")
    I(f"ds_write_b64 v{t2}, v[{t0}:{t1}] offset:8")
    if emd: I(f"ds_write_b32 v{t2}, v{t0} offset:4")
    I(f"v_and_b32 v{t2}, 31, v{vLANE}")
    I(f"v_lshlrev_b32 v{t2}, 1, v{t2}")
    I(f"s_or_b32 s{sT2}, s{sROLE}, s{sX}")
    I(f"s_lshl_b32 s{sT1}, s{sR}, 6")
    I(f"s_cmp_eq_u32 s{sT2}, 0")
    I(f"s_cselect_b32 s{sT1}, s{sT1}, {BIG:#x}")
    I(f"buffer_load_ushort v{vXF}, v{t2}, {TB}, s{sT1} offen")
    I(f"v_lshrrev_b32 v{t1}, 3, v{vLANE}")
    I(f"v_lshlrev_b32 v{t1}, 4, v{t1}")
    I(f"v_add_u32 v{vRP}, s{sRB}, v{t1}")
    I(f"v_and_b32 v{t1}, 31, v{vLANE}")
    I(f"v_lshlrev_b32 v{t1}, 1, v{t1}")
    I(f"s_or_b32 s{sT2}, s{sROLE}, s{sX}")
    I(f"s_lshl_b32 s{sT1}, s{sR}, 6")
    I(f"s_add_u32 s{sT1}, s{sT1}, {XOFF}")
    I(f"s_cmp_eq_u32 s{sT2}, 0")
    I(f"s_cselect_b32 s{sT1}, s{sT1}, {BIG:#x}")
    I(f"v_add_u32 v{vXFA}, s{sT1}, v{t1}")
    I("s_branch L_initc")

    a.label("L_init7")
    I(f"v_lshlrev_b32 v{vCR}, 3, v{vLANE}")
    I(f"v_add_u32 v{vCR}, {L_O}, v{vCR}")
    I(f"v_and_b32 v{t0}, 7, v{vLANE}")
    I(f"v_lshlrev_b32 v{vCML}, 3, v{t0}")
    I(f"v_add_u32 v{vCML}, {L_ML}, v{vCML}")
    I(f"s_lshr_b32 s{sT0}, s{sSLOT}, 3")
    I(f"s_lshl_b32 s{sT1}, s{sT0}, 11")
    I(f"s_and_b32 s{sT2}, s{sSLOT}, 7")
    I(f"s_lshl_b32 s{sT3}, s{sT2}, 4")
    I(f"s_add_u32 s{sT1}, s{sT1}, s{sT3}")
    I(f"v_lshrrev_b32 v{t0}, 5, v{vLANE}")
    I(f"v_lshlrev_b32 v{vCP}, 10, v{t0}")
    I(f"v_lshl_add_u32 v{vCP}, v{q4}, 8, v{vCP}")
    I(f"v_and_b32 v{t0}, 1, v{g}")
    I(f"v_lshl_add_u32 v{vCP}, v{t0}, 7, v{vCP}")
    I(f"v_lshl_add_u32 v{vCP}, v{c4}, 2, v{vCP}")
    I(f"v_add_u32 v{vCP}, s{sT1}, v{vCP}")
    I(f"s_lshl_b32 s{sT0}, s{sT0}, 7")
    I(f"s_lshl_b32 s{sT2}, s{sT2}, 3")
    I(f"s_add_u32 s{sT0}, s{sT0}, s{sT2}")
    I(f"s_add_u32 s{sT0}, s{sT0}, {MLOFF}")
    I(f"v_mov_b32 v{vCPM}, s{sT0}")
    I(f"s_and_b32 s{sT0}, s{sQS}, {~2047 & 0xffffffff:#x}")
    I(f"v_lshlrev_b32 v{vQG7}, 3, v{vLANE}")
    I(f"v_add_u32 v{vQG7}, s{sT0}, v{vQG7}")

    a.label("L_initc")
    I(f"s_mov_b32 s{sRN}, 0")
    I(f"s_mov_b32 s{sRB}, 0")
    I(f"s_mov_b32 s{sRSTEP}, 0")
    srd(TB, 40, 4096 * 1280)
    I(f"v_lshrrev_b32 v{t0}, 2, v{vLANE}")
    I(f"v_lshlrev_b32 v{t1}, 4, v{c4}")
    I(f"s_cmp_eq_u32 s{sROLE}, 0")
    I("s_cbranch_scc0 L_rpd")
    I(f"s_lshl_b32 s{sT0}, s{sXW}, 3")
    I(f"s_add_u32 s{sT0}, s{sT0}, s{sWAVE}")
    I(f"s_lshr_b32 s{sT0}, s{sT0}, 1")
    hperm(sT0, sT0, sT1)
    I(f"s_lshl_b32 s{sT0}, s{sT0}, 1")
    I(f"s_and_b32 s{sT1}, s{sWAVE}, 1")
    I(f"s_add_u32 s{sT0}, s{sT0}, s{sT1}")
    I(f"s_mul_i32 s{sT0}, s{sT0}, {64*1280}")
    I(f"s_lshl_b32 s{sT1}, s{sR}, 6")
    I(f"s_add_u32 s{sRB}, s{sT0}, s{sT1}")
    I(f"s_mov_b32 s{sRSTEP}, {16*1280}")
    I(f"s_mov_b32 s{sRN}, 4")
    I(f"v_mul_u32_u24 v{vRDMA}, 1280, v{t0}")
    I(f"v_add_u32 v{vRDMA}, v{vRDMA}, v{t1}")
    I(f"s_lshr_b32 s{sT0}, s{sWAVE}, 1")
    I(f"s_lshl_b32 s{sT1}, s{sXW}, 2")
    I(f"s_add_u32 s{sT0}, s{sT0}, s{sT1}")
    I(f"s_lshl_b32 s{sT1}, s{sXW}, 3")
    I(f"s_add_u32 s{sT1}, s{sT1}, s{sWAVE}")
    I(f"s_lshl_b32 s{sT1}, s{sT1}, 10")
    I(f"v_lshlrev_b32 v{t2}, 4, v{vLANE}")
    I(f"v_add_u32 v{vA0}, s{sT1}, v{t2}")
    I(f"v_xor_b32 v{t2}, v{g}, v{q4}")
    I(f"v_and_b32 v{t2}, 1, v{t2}")
    I(f"v_lshl_add_u32 v{t2}, v{t2}, 2, v{c4}")
    I(f"v_lshlrev_b32 v{t2}, 3, v{t2}")
    I(f"s_lshl_b32 s{sT0}, s{sT0}, 7")
    I(f"s_add_u32 s{sT0}, s{sT0}, {MLOFF}")
    I(f"v_add_u32 v{vA2}, s{sT0}, v{t2}")
    a.label("L_rpd")

    I(f"s_mul_i32 s{sT0}, s{sWAVE}, {PP}")
    I(f"v_lshlrev_b32 v{vPW}, 4, v{n}")
    I(f"v_lshl_add_u32 v{vPW}, v{g}, 2, v{vPW}")
    I(f"v_add_u32 v{vPW}, s{sT0}, v{vPW}")
    I(f"v_lshl_add_u32 v{vQR}, v{g}, 2, v{c4}")
    I(f"v_lshlrev_b32 v{vQR}, 4, v{vQR}")
    I(f"v_add_u32 v{vQR}, {L_QB}, v{vQR}")
    I(f"s_lshl_b32 s{sT0}, s{sWAVE}, 10")
    I(f"s_add_u32 s{sT0}, s{sT0}, {L_O}")
    I(f"v_bfe_u32 v{t0}, v{vLANE}, 3, 1")
    I(f"v_lshlrev_b32 v{vOW}, 9, v{t0}")
    I(f"v_and_b32 v{t0}, 7, v{vLANE}")
    I(f"v_lshl_add_u32 v{vOW}, v{t0}, 5, v{vOW}")
    I(f"v_and_b32 v{t1}, 1, v{g}")
    I(f"v_lshl_add_u32 v{vOW}, v{t1}, 4, v{vOW}")
    I(f"v_add_u32 v{vOW}, s{sT0}, v{vOW}")
    I(f"s_lshl_b32 s{sT0}, s{sWAVE}, 3")
    I(f"s_add_u32 s{sT0}, s{sT0}, {L_ML}")
    I(f"v_lshlrev_b32 v{vMLW}, 3, v{vLANE}")
    I(f"v_add_u32 v{vMLW}, {L_DUM}, v{vMLW}")
    I(f"v_writelane_b32 v{vMLW}, s{sT0}, 63")
    if sm:
        I(f"v_and_b32 v{t0}, 4, v{vLANE}")
        I(f"v_cmp_eq_u32 vcc, 0, v{t0}")
        I(f"v_mov_b32 v{t1}, 0xffff")
        I(f"v_mov_b32 v{t2}, 0xffff0000")
        I(f"v_cndmask_b32 v{vSEL}, 0, v{t1}, vcc")
        I(f"v_cndmask_b32 v{vSEL+2}, 0, v{t2}, vcc")
        I(f"v_xor_b32 v{vSEL+1}, v{vSEL}, v{t1}")
        I(f"v_xor_b32 v{vSEL+3}, v{vSEL+2}, v{t2}")
        I(f"v_mul_u32_u24 v{t0}, 0x5555, v{c4}")
        I(f"v_and_b32 v{t1}, 2, v{vLANE}")
        I(f"v_mul_u32_u24 v{t1}, 0x5555, v{t1}")
        I(f"v_or_b32 v{t1}, 0x4444, v{t1}")
        I(f"v_lshl_or_b32 v{vSEL+4}, v{t0}, 16, v{t1}")
    for u in range(0 if sm else 2):
        for r in range(4):
            sb = 0x0100 if u == (r >> 1) else 0x0302
            d = vSEL + u * 4 + r
            I(f"v_mov_b32 v{d}, 0x0c0c0c0c")
            I(f"v_mov_b32 v{t1}, {0x0c0c0000 | sb:#x}")
            I(f"v_mov_b32 v{t2}, {(sb << 16) | 0x0c0c:#x}")
            I(f"v_cmp_eq_u32 vcc, {2*r}, v{t0}")
            I(f"v_cndmask_b32 v{d}, v{d}, v{t1}, vcc")
            I(f"v_cmp_eq_u32 vcc, {2*r+1}, v{t0}")
            I(f"v_cndmask_b32 v{d}, v{d}, v{t2}, vcc")

    def tr_addr(dst, pitch, base_s, x0=T + 48):
        x1 = x0 + 1
        I(f"v_lshrrev_b32 v{x0}, 4, v{vLANE}")
        I(f"v_bfe_u32 v{x1}, v{vLANE}, 2, 2")
        I(f"v_lshl_add_u32 v{x0}, v{x0}, 3, v{x1}")
        I(f"v_lshlrev_b32 v{x0}, {pitch.bit_length()-1}, v{x0}")
        I(f"v_and_b32 v{x1}, 3, v{vLANE}")
        I(f"v_lshl_add_u32 v{x0}, v{x1}, 3, v{x0}")
        I(f"v_add_u32 v{dst}, s{base_s}, v{x0}")

    def ones():
        for i in range(4):
            I(f"v_mov_b32 v{ONES+i}, 0x3f803f80")

    def gemv(ntile, Bbase, bidx):
        S1, S2 = T + 16, T + 20
        A0_, A1_ = vr(XA), vr(XA + 4)
        I(f"v_mfma_f32_16x16x32_bf16 {vr(S2)}, {A0_}, {A0_}, 0")
        I(f"v_mfma_f32_16x16x32_bf16 {vr(S2)}, {A1_}, {A1_}, {vr(S2)}")
        I(f"v_mfma_f32_16x16x32_bf16 {vr(S1)}, {A0_}, {vr(ONES)}, 0")
        I(f"v_mfma_f32_16x16x32_bf16 {vr(S1)}, {A1_}, {vr(ONES)}, {vr(S1)}")
        post = [
            f"v_pk_add_f32 v[{S2}:{S2+1}], v[{S2}:{S2+1}], v[{S2+2}:{S2+3}]",
            f"v_add_f32 v{S2}, v{S2}, v{S2+1}",
            f"v_add_f32_dpp v{S2}, v{S2}, v{S2} quad_perm:[1,0,3,2] row_mask:0xf bank_mask:0xf",
            f"v_pk_add_f32 v[{S1}:{S1+1}], v[{S1}:{S1+1}], v[{S1+2}:{S1+3}]",
            f"v_add_f32_dpp v{S2}, v{S2}, v{S2} quad_perm:[2,3,0,1] row_mask:0xf bank_mask:0xf",
            f"v_add_f32 v{S1}, v{S1}, v{S1+1}",
            f"v_add_f32_dpp v{S2}, v{S2}, v{S2} row_half_mirror row_mask:0xf bank_mask:0xf",
            f"ds_write2_b32 v{vSW}, v{S1}, v{S2} offset0:0 offset1:4",
        ]
        def dpost(t):
            D = T + 8 * t
            return [f"v_pk_add_f32 v[{D}:{D+1}], v[{D}:{D+1}], v[{D+2}:{D+3}]",
                    f"v_pk_add_f32 v[{D+4}:{D+5}], v[{D+4}:{D+5}], v[{D+6}:{D+7}]",
                    f"v_add_f32 v{D}, v{D}, v{D+1}",
                    f"v_add_f32_dpp v{D}, v{D+4}, v{D+5} quad_perm:[0,1,2,3] row_mask:0xc bank_mask:0xf",
                    f"ds_write_b32 v{vPW}, v{D} offset:{L_PB1 + t*256}"]
        for t in range(ntile):
            post += dpost(t)
        k = 0
        for t in range(ntile):
            for j in range(2):
                D = T + 8 * t + 4 * j
                for h in range(2):
                    I(f"v_mfma_f32_16x16x32_bf16 {vr(D)}, {(A0_, A1_)[h]}, {vr(Bbase+4*bidx(2*h+j,t))}, {vr(D) if h else '0'}")
                    k += 1
                    if k >= 5 and k < 4 * ntile:
                        for x in post[:2]: I(x)
                        post = post[2:]
        for x in post: I(x)
        I("s_waitcnt lgkmcnt(0)")

    def gemv_q(first=False):
        S1, S2 = T + 16, T + 20
        for t in range(4):
            I(f"v_mfma_f32_16x16x32_bf16 {vr(T+4*t)}, {vr(vBQ+4*t)}, {vr(XA)}, 0")
        I(f"v_mfma_f32_16x16x32_bf16 {vr(S1)}, {vr(XA)}, {vr(ONES)}, 0")
        I(f"v_mfma_f32_16x16x32_bf16 {vr(S2)}, {vr(XA)}, {vr(XA)}, 0")
        if first:
            for t in range(4):
                I(f"v_mfma_f32_16x16x32_bf16 {vr(vRB+4*t)}, {vr(vBQ+4*t)}, {vr(ONES)}, 0")
        I(f"s_mov_b64 exec, s[{sKM}:{sKM+1}]")
        for t in range(4):
            I(f"ds_write_b128 v{vPQ}, {vr(T+4*t)} offset:{L_PB1 + t*64}")
        if first:
            for t in range(4):
                I(f"ds_write_b128 v{vPQ}, {vr(vRB+4*t)} offset:{L_PB1 + 256 + t*64}")
        I("s_mov_b64 exec, -1")
        I(f"ds_write2_b32 v{vSW}, v{S1}, v{S2} offset0:0 offset1:4")
        I("s_waitcnt lgkmcnt(0)")

    def gather(sreg):
        poll([f"buffer_load_dwordx4 {vr(XA)}, v{vGO}, {WS}, s{sreg} offen {zfl}",
              f"buffer_load_dwordx4 {vr(XA+4)}, v{vGO}, {WS}, s{sreg} offen offset:{2*ZR} {zfl}"],
             [XA, XA + 4], groups=[[XA], [XA + 4]], hop=2)

    def reduce_read(nw, base):
        for v in range(nw):
            I(f"ds_read_b128 {vr(T+4*v)}, v{vRR} offset:{base + v*PP}")

    def reduce_sum(nw, dst):
        np_ = 2 * nw
        idx = list(range(np_))
        while len(idx) > 1:
            nx = []
            for i in range(0, len(idx) - 1, 2):
                d, s = idx[i], idx[i + 1]
                I(f"v_pk_add_f32 v[{T+2*d}:{T+2*d+1}], v[{T+2*d}:{T+2*d+1}], v[{T+2*s}:{T+2*s+1}]")
                nx.append(d)
            if len(idx) % 2:
                nx.append(idx[-1])
            idx = nx
        I(f"v_add_f32 v{dst}, v{T}, v{T+1}")

    rTOT, rMEAN, rVAR, rMB, rSD, rR, rU, rT, rINV, rC1, rC2, rCS = [T + 32 + i for i in range(12)]

    def cs_read(area, dst):
        l = a.newlab("Lcs")
        I(f"s_cmp_eq_u32 s{sIT}, 0")
        I(f"s_cbranch_scc0 {l}")
        I(f"v_lshrrev_b32 v{rT}, 2, v{vRR}")
        for v in range(5):
            I(f"ds_read_b32 v{T+24+v}, v{rT} offset:{area + v*128}")
        I("s_waitcnt lgkmcnt(0)")
        I(f"v_add_f32 v{dst}, v{T+24}, v{T+25}")
        I(f"v_add_f32 v{rT}, v{T+26}, v{T+27}")
        I(f"v_add_f32 v{dst}, v{dst}, v{T+28}")
        I(f"v_add_f32 v{dst}, v{dst}, v{rT}")
        a.label(l)

    def stats(l0=32):
        if l0 is not None:
            I(f"v_readlane_b32 s{sT0}, v{rTOT}, {l0}")
            I(f"v_readlane_b32 s{sT1}, v{rTOT}, {l0+1}")
            I(f"v_mul_f32 v{rMEAN}, s{sT0}, v{rINV}")
            I(f"v_mul_f32 v{rVAR}, s{sT1}, v{rINV}")
        I(f"v_fma_f32 v{rVAR}, -v{rMEAN}, v{rMEAN}, v{rVAR}")
        I(f"v_max_f32 v{rVAR}, 0, v{rVAR}")
        I(f"v_cvt_pk_bf16_f32 v{rT}, v{rMEAN}, v{rVAR}")
        I(f"v_and_b32 v{rU}, 0xffff0000, v{rT}")
        I(f"v_lshlrev_b32 v{rMB}, 16, v{rT}")
        I(f"v_add_f32 v{rU}, {f2u(1e-5):#x}, v{rU}")
        I(f"v_cvt_pk_bf16_f32 v{rU}, v{rU}, v{rU}")
        I(f"v_and_b32 v{rU}, 0xffff0000, v{rU}")
        I(f"v_sqrt_f32 v{rU}, v{rU}")
        I(f"v_cvt_pk_bf16_f32 v{rU}, v{rU}, v{rU}")
        I(f"v_and_b32 v{rSD}, 0xffff0000, v{rU}")
        I(f"v_rcp_f32 v{rR}, v{rSD}")

    def pack_pairs(src, dst):
        I(f"v_mov_b32_dpp v{rT}, v{src} quad_perm:[1,0,3,2] row_mask:0xf bank_mask:0xf")
        I(f"v_cvt_pk_bf16_f32 v{dst}, v{src}, v{rT}")
        I(f"v_min_u32 v{dst}, 0xfffffffe, v{dst}")

    def q_reduce(first=False):
        qa, qs, QS = T + 44, T + 45, T + 20
        I(f"v_lshlrev_b32 v{qa}, 2, v{vLANE}")
        I(f"v_and_b32 v{qs}, 1, v{vLANE}")
        if sm:
            I(f"v_and_b32 v{T+46}, 0x34, v{vLANE}")
            I(f"v_lshl_add_u32 v{T+46}, v{qs}, 3, v{T+46}")
            I(f"v_bfe_u32 v{T+47}, v{vLANE}, 3, 1")
            I(f"v_lshl_add_u32 v{T+46}, v{T+47}, 1, v{T+46}")
            I(f"v_bfe_u32 v{T+47}, v{vLANE}, 1, 1")
            I(f"v_add_lshl_u32 v{T+46}, v{T+46}, v{T+47}, 2")
        I(f"v_lshlrev_b32 v{qs}, 4, v{qs}")
        return qa, qs, QS

    def q_reduce2(qa, qs, QS, first=False):
        for v in range(5):
            I(f"ds_read_b128 {vr(T+4*v)}, v{qs} offset:{L_PB1 + 512 + v*PP}")
        for v in range(5):
            I(f"ds_read_b32 v{QS+v}, v{qa} offset:{L_PB1 + v*PP}")
        if first:
            for v in range(5):
                I(f"ds_read_b32 v{QS+5+v}, v{qa} offset:{L_PB1 + 256 + v*PP}")
        I(f"s_waitcnt lgkmcnt({10 if first else 5})")
        reduce_sum(5, rTOT)
        stats(0)
        I("s_waitcnt lgkmcnt(0)")
        I(f"v_add_f32 v{QS}, v{QS}, v{QS+1}")
        I(f"v_add_f32 v{QS+2}, v{QS+2}, v{QS+3}")
        I(f"v_add_f32 v{QS}, v{QS}, v{QS+4}")
        I(f"v_add_f32 v{QS}, v{QS}, v{QS+2}")
        if first:
            I(f"v_add_f32 v{vCSQ}, v{QS+5}, v{QS+6}")
            I(f"v_add_f32 v{QS+7}, v{QS+7}, v{QS+8}")
            I(f"v_add_f32 v{vCSQ}, v{vCSQ}, v{QS+9}")
            I(f"v_add_f32 v{vCSQ}, v{vCSQ}, v{QS+7}")
        I(f"v_fma_f32 v{rU}, -v{rMB}, v{vCSQ}, v{QS}")
        I(f"v_mul_f32 v{rU}, v{rU}, v{rR}")
        I(f"v_min_u32 v{rU}, 0xfffffffe, v{rU}")

    def q_gather(va, qa):
        G_ = 60 if y128 else T
        poll([f"buffer_load_dwordx2 v[{G_+2*k}:{G_+2*k+1}], v{va}, {WS}, s{sREG} offen offset:{k*512} sc1" for k in range(4)],
             list(range(G_, G_ + 8)), groups=[[G_ + 2 * k, G_ + 2 * k + 1] for k in range(4)], hop=16 if y128 else 0)
        Z_ = T + 40 if zq else T
        I(f"v_pk_add_f32 v[{Z_}:{Z_+1}], v[{G_}:{G_+1}], v[{G_+2}:{G_+3}]")
        I(f"v_pk_add_f32 v[{Z_+2}:{Z_+3}], v[{G_+4}:{G_+5}], v[{G_+6}:{G_+7}]")
        I(f"v_pk_add_f32 v[{Z_}:{Z_+1}], v[{Z_}:{Z_+1}], v[{Z_+2}:{Z_+3}]")
        I(f"v_cvt_pk_bf16_f32 v{Z_}, v{Z_}, v{Z_+1}")
        I(f"ds_write_b32 v{T+46 if sm else qa}, v{Z_} offset:{L_QB}")

    def lds_wait(off, val, ge=False):
        lab = a.newlab("Lw"); done = a.newlab("Lwd")
        I(f"v_mov_b32 v{T+47}, {L_FLAG}")
        a.label(lab)
        I(f"ds_read_b32 v{T+46}, v{T+47} offset:{off}")
        I(f"s_add_u32 s{sSPIN}, s{sSPIN}, 1")
        I("s_waitcnt lgkmcnt(0)")
        I(f"v_readfirstlane_b32 s{sT3}, v{T+46}")
        I(f"s_cmp_{'ge' if ge else 'eq'}_u32 s{sT3}, {val}")
        I(f"s_cbranch_scc1 {done}")
        I(f"s_cmp_lt_u32 s{sSPIN}, {spin_limit}")
        I(f"s_cbranch_scc1 {lab}")
        a.label(done)

    def sp(p):
        if prio: I(f"s_setprio {p}")

    I(f"v_mov_b32 v{rINV}, {f2u(1.0/640):#x}")
    I("s_waitcnt lgkmcnt(0)")
    I("s_barrier")
    TS(1)
    I(f"s_cmp_ge_u32 s{sWAVE}, 4")
    I("s_cbranch_scc1 L_s4567")
    srd(TA, 38, 640 * 8192)
    w_issue(nw0, RSL)
    TS(37)
    tr_addr(ta0, 64, sPER, T + 25)
    I(f"s_sub_u32 s{sPER}, s{sRING}, s{sPER}")
    I(f"v_bfe_u32 v{T+25}, v{vLANE}, 4, 1")
    I(f"v_lshl_add_u32 v{ta0}, v{T+25}, 5, v{ta0}")
    I(f"v_xor_b32 v{ta1}, 32, v{ta0}")
    I(f"s_waitcnt vmcnt({nis[0] - 5})")
    setexec(0x22222222, 0x22222222)
    for i in range(20):
        I(f"v_mov_b32 v{XQ+i}, 0x3f803f80")
    setexec(0xFFFFFFFF, 0xFFFFFFFF)
    for j in range(5):
        I(f"v_mfma_f32_16x16x32_bf16 {vr(BUF)}, {vr(XQ+4*j)}, {vr(XQ+4*j)}, {vr(BUF) if j else '0'}")
    for i in range(4):
        I(f"v_readlane_b32 s{sF+i}, v{BUF}, {20*i+1}")
        I(f"v_readlane_b32 s{sF+4+i}, v{BUF}, {20*i}")
    I(f"v_mov_b32 v{rMEAN}, s{sF}")
    I(f"v_mov_b32 v{rVAR}, s{sF+4}")
    for i in range(1, 4):
        I(f"v_add_f32 v{rMEAN}, s{sF+i}, v{rMEAN}")
        I(f"v_add_f32 v{rVAR}, s{sF+4+i}, v{rVAR}")
    I(f"v_mul_f32 v{rMEAN}, v{rMEAN}, v{rINV}")
    I(f"v_mul_f32 v{rVAR}, v{rVAR}, v{rINV}")
    stats(None)
    I(f"v_readfirstlane_b32 s{sMB}, v{rMB}")
    I(f"v_readfirstlane_b32 s{sRS_}, v{rR}")
    TS(2)
    def q_mma(u):
        for t in range(2):
            acc = ACC + 16 * t + 4 * (u & 3)
            I(f"v_mfma_f32_16x16x32_bf16 {vr(acc)}, {vr(BUF + 8*(u%4) + 4*t)}, {vr(XQ+4*(u>>2))}, {vr(acc) if u >= 4 else '0'}")
    for u in range(20):
        I(f"s_waitcnt vmcnt({nis[0] - wpos[2*u+1] - 1})")
        if u == 0: TS(38)
        o = slot(2 * u)[1]
        if 2 * u == (RSL if q2 else NPER):
            I(f"v_add_u32 v{ta0}, s{sPER}, v{ta0}")
            I(f"v_add_u32 v{ta1}, s{sPER}, v{ta1}")
        for t in range(2):
            b = BUF + 8 * (u % 4) + 4 * t
            I(f"ds_read_b64_tr_b16 v[{b}:{b+1}], v{(ta0, ta1)[t]} offset:{o}")
            I(f"ds_read_b64_tr_b16 v[{b+2}:{b+3}], v{(ta0, ta1)[t]} offset:{o+256}")
        if u:
            I("s_waitcnt lgkmcnt(4)")
            q_mma(u - 1)
            p = 2 * (u - 1) + NREST
            if RSL <= p < 40:
                w_issue(p, p + 2)
                if p + 2 == 40:
                    k_issue(nk[0], qk)
                    nis[0] += qk - nk[0]
                    TS(39)
    I(f"v_mov_b32 v{BUF+0}, {L_FLAG}")
    I(f"v_mov_b32 v{BUF+1}, 1")
    I(f"v_lshrrev_b32 v{BUF+2}, 4, v{vLANE}")
    if sm:
        I(f"v_and_b32 v{BUF+3}, 2, v{BUF+2}")
        I(f"v_add_lshl_u32 v{BUF+2}, v{BUF+2}, v{BUF+3}, 2")
    else:
        I(f"v_lshlrev_b32 v{BUF+2}, 3, v{BUF+2}")
    I(f"s_lshl_b32 s{sT0}, s{sWAVE}, 6")
    if sm: I(f"s_add_u32 s{sT0}, s{sT0}, {L_QB}")
    I(f"v_add_u32 v{BUF+2}, s{sT0}, v{BUF+2}")
    I(f"v_mov_b32 v{BUF+3}, s{sMB}")
    I(f"v_xor_b32 v{BUF+3}, 0x80000000, v{BUF+3}")
    I("s_waitcnt lgkmcnt(0)")
    q_mma(19)
    for aa in range(1, 4):
        for t in range(2):
            for i in range(4):
                d = ACC + 16 * t + i
                I(f"v_add_f32_dpp v{d}, v{d+4*aa}, v{d} row_shl:{4*aa} row_mask:0xf bank_mask:0xf")
    for t in range(2):
        for i in range(4):
            d = ACC + 16 * t + i
            I(f"v_fmac_f32_dpp v{d}, v{d}, v{BUF+3} quad_perm:[1,1,1,1] row_mask:0xf bank_mask:0xf")
    for t in range(2):
        for i in range(4):
            d = ACC + 16 * t + i
            I(f"v_mul_f32 v{d}, s{sRS_}, v{d}")
    for t in range(2):
        d = ACC + 16 * t
        I(f"v_cvt_pk_bf16_f32 v{d}, v{d}, v{d+1}")
        I(f"v_cvt_pk_bf16_f32 v{d+1}, v{d+2}, v{d+3}")
    setexec(0x00010001, 0x00010001)
    for t in range(2):
        d = ACC + 16 * t
        if sm: I(f"ds_write2_b32 v{BUF+2}, v{d}, v{d+1} offset0:{2*t} offset1:{2*t+8}")
        else: I(f"ds_write_b64 v{BUF+2}, v[{d}:{d+1}] offset:{L_QB + 32*t}")
    setexec(1, 0)
    I("s_waitcnt lgkmcnt(0)")
    I(f"ds_add_u32 v{BUF+0}, v{BUF+1} offset:12")
    setexec(0xFFFFFFFF, 0xFFFFFFFF)
    TS(5)
    sp(sp1)
    k_issue(qk, 16)
    I("s_branch L_vall")

    a.label("L_s4567")
    I(f"s_cmp_eq_u32 s{sWAVE}, 6")
    I("s_cbranch_scc0 L_krest")
    sp(3)
    I(f"s_mov_b32 s{sVOTE}, 0")
    I(f"s_sub_u32 s{sT0}, s{sR}, {calr}")
    I(f"s_cmp_lt_u32 s{sT0}, {ncal}")
    I("s_cbranch_scc0 L_ncal")
    MK = 0x13579bdf
    I(f"s_lshl_b32 s{sT0}, s{sT0}, 3")
    I(f"s_add_u32 s{sT0}, s{sT0}, s{sX}")
    I(f"s_lshl_b32 s{sT0}, s{sT0}, 7")
    I(f"s_add_u32 s88, s{sT0}, {CALOFF + 0x10000}")
    I(f"s_load_dword s86, s[56:57], s88 glc")
    I(f"s_add_u32 s{sT0}, s{sT0}, {CALOFF}")
    I(f"s_lshl_b32 s{sVOTE}, s{sR}, 13")
    I(f"s_and_b32 s{sVOTE}, s{sVOTE}, {CP}")
    I(f"s_add_u32 s{sT0}, s{sT0}, s{sVOTE}")
    I(f"s_xor_b32 s{sT3}, s{sT0}, {CP}")
    I(f"s_lshr_b32 s{sVOTE}, s{sVOTE}, 13")
    I(f"s_lshr_b32 s88, s{sXCC}, 2")
    I(f"s_xor_b32 s{sVOTE}, s{sVOTE}, s88")
    I("s_waitcnt lgkmcnt(0)")
    for k, (ad, cnt) in enumerate(((sT0, 88), (sT3, 89))):
        I(f"s_mov_b32 s86, {MK:#x}")
        I(f"s_mov_b32 s{cnt}, 0")
        I(f"s_load_dword s86, s[56:57], s{ad} glc")
        a.label(f"L_cal{k}")
        I(f"s_add_u32 s{cnt}, s{cnt}, 1")
        I(f"s_cmp_eq_u32 s86, {MK:#x}")
        I(f"s_cselect_b32 s87, s{cnt}, 1000")
        I(f"s_cmp_lt_u32 s87, 200")
        I(f"s_cbranch_scc1 L_cal{k}")
        I("s_waitcnt lgkmcnt(0)")
    I(f"s_cmp_gt_u32 s88, s89")
    I(f"s_cselect_b32 s{sT0}, 1, 0")
    I(f"s_xor_b32 s{sVOTE}, s{sVOTE}, s{sT0}")
    I(f"s_and_b32 s{sVOTE}, s{sVOTE}, 1")
    I(f"s_lshl_b32 s{sVOTE}, s{sVOTE}, 24")
    a.label("L_ncal")
    I(f"s_mul_i32 s{sT0}, s{sXCC}, 6")
    I(f"s_lshl_b64 s[{sF}:{sF+1}], 1, s{sT0}")
    I(f"s_cmp_lt_u32 s{sXCC}, 8")
    I(f"s_cselect_b32 s{sF}, s{sF}, 0")
    I(f"s_cselect_b32 s{sF+1}, s{sF+1}, 0")
    I(f"s_or_b32 s{sF+1}, s{sF+1}, 0x10000")
    I(f"s_or_b32 s{sF+1}, s{sF+1}, s{sVOTE}")
    srd(TA, 54, 256)
    I(f"v_mov_b32 v{vAT}, s{sF}")
    I(f"v_mov_b32 v{vAT+1}, s{sF+1}")
    if ast == 6:
        I(f"s_mul_i32 s{sT0}, s{sX}, 72")
        I(f"s_and_b32 s{sT0}, s{sT0}, 0xe0")
    else:
        I(f"s_lshl_b32 s{sT0}, s{sX}, {ast}")
    I(f"v_mov_b32 v{vAT+2}, s{sT0}")
    TS(33)
    I("s_waitcnt vmcnt(0)")
    setexec(1, 0)
    I(f"buffer_atomic_add_x2 v[{vAT}:{vAT+1}], v{vAT+2}, {TA}, 0 offen offset:{128 if ast == 4 else 0} sc1")
    setexec(0xFFFFFFFF, 0xFFFFFFFF)
    TS(32)
    sp(0)
    k_issue(0, n0)
    a.label("L_krest")
    k_issue(n0, 16)
    a.label("L_vall")
    v_issue()
    if the:
        I("s_mov_b32 s97, 0")
        I(f"s_cmp_eq_u32 s{sROLE}, 0")
        I("s_cbranch_scc1 L_the")
        I(f"v_lshrrev_b32 v{T+49}, 3, v{vLANE}")
        I(f"v_lshlrev_b32 v{T+49}, 7, v{T+49}")
        I(f"v_and_b32 v{T+50}, 7, v{vLANE}")
        I(f"v_lshl_add_u32 v{T+49}, v{T+50}, 3, v{T+49}")
        I(f"v_mov_b32 v{T+50}, -1")
        I(f"s_lshl_b32 s{sT1}, s{sXW}, 9")
        I(f"s_add_u32 s{sT1}, s{sT1}, {MLOFF}")
        setexec(0xFFFFFFFF, 0)
        I(f"buffer_load_dword v{T+50}, v{T+49}, {WS}, s{sT1} offen sc1")
        setexec(0xFFFFFFFF, 0xFFFFFFFF)
        a.label("L_the")
    if pst == 1: pf_static("L_ps", True)
    if pst >= 4 and (pst != 6 or pi): pf_static("L_ps", True, 1)
    TS(31)
    OA2, PS2, MI2 = (T + 36, T + 48, 28) if q2 == 3 else (T + 24, T + 32, 28)
    def att_pre(hi=44):
        for i in (range(4, hi) if q2 == 3 else range(32)):
            I(f"v_mov_b32 v{T+i}, 0")
        I(f"v_mov_b32 v{MI2+2}, {SCALE:#x}")
        I(f"v_mov_b32 v{MI2+3}, {SCALE:#x}")
        I(f"v_mov_b32 v{MI2+1}, s{sL2E}")
    def q_masked(fmt):
        setexec(0x000F000F, 0x000F000F)
        for t in range(4):
            I(fmt(T + 4 * t))
            I("s_lshl_b64 exec, exec, 4" if t < 3 else "s_mov_b64 exec, -1")
    if q2 >= 2: att_pre()
    for i in (range(0) if q2 >= 2 else range(4, 36) if q2 else range(24 if sm else 16)):
        I(f"v_mov_b32 v{T+i}, 0")
    if gate:
        I(f"v_mov_b32 v{T+44}, {L_FLAG}")
        I(f"v_mov_b32 v{T+45}, 1")
        setexec(1, 0)
        I(f"ds_add_u32 v{T+44}, v{T+45} offset:8")
        setexec(0xFFFFFFFF, 0xFFFFFFFF)
    lds_wait(12, 4, ge=True)
    TS(8)
    if q2 in (1, 3): I(f"ds_read_b128 {vr(T)}, v{vQR}")
    if q2 == 2:
        q_masked(lambda r_: f"ds_read_b128 {vr(r_)}, v{vQR}")
        I(f"s_mov_b64 s[{sKM}:{sKM+1}], 0")
    I("s_branch L_att")

    a.label("L_loop")
    I(f"s_cmp_eq_u32 s{sWAVE}, 6")
    I("s_cbranch_scc0 L_nsub")
    I(f"s_cmp_eq_u32 s{sROLE}, 0")
    if g3:
        I("s_cbranch_scc1 L_sub")
        I(f"s_cmp_lt_u32 s{sTB}, 54")
        I("s_cbranch_scc1 L_G3")
        I(f"s_and_b32 s{sT0}, s{sR}, 7")
        I(f"s_lshl_b32 s{sT0}, s{sT0}, 14")
        I(f"s_add_u32 s{sT0}, s{sT0}, s{sNEAR}")
        I(f"s_add_u32 s{sT0}, s{sT0}, {YOFF}")
        I(f"v_lshlrev_b32 v{T}, 7, v{vLANE}")
        light(f"buffer_load_dword v{T+1}, v{T}, {WS}, s{sT0} offen sc1", T + 1, (3, 0))
        I("s_branch L_G3")
        a.label("L_sub")
    else:
        I("s_cbranch_scc0 L_B1")
    SL, YD, YA, ya0, ya1, yo = T + 20, T, T + 24, T + 28, T + 29, T + 30
    srd(TA, 50, 1280)
    I(f"v_lshlrev_b32 v{ya0}, 4, v{vLANE}")
    for i in range(4):
        I(f"v_mov_b32 v{YD+i}, 0")
    I(f"s_lshl_b32 s{sT2}, s{sR}, 6")
    if m2:
        yz2 = T + 32
        I(f"v_and_b32 v{yz2}, 3, v{vLANE}")
        I(f"v_lshlrev_b32 v{ya1}, 3, v{yz2}")
        I(f"v_sub_u32 v{yz2}, v{ya0}, v{ya1}")
        setexec(0, 0xF)
        I(f"buffer_load_dwordx2 v[{YD}:{YD+1}], v{ya1}, {TA}, s{sT2} offen")
        I(f"buffer_load_dwordx2 v[{YD+2}:{YD+3}], v{ya1}, {TA}, s{sT2} offen offset:32")
    else:
        I(f"v_subrev_u32 v{ya1}, 512, v{ya0}")
        setexec(0, 0xF)
        I(f"buffer_load_dwordx4 {vr(YD)}, v{ya1}, {TA}, s{sT2} offen")
    setexec(0xFFFFFFFF, 0xFFFFFFFF)
    I(f"v_and_b32 v{yo}, 15, v{vLANE}")
    I(f"v_mov_b32 v{YA}, 0x3f80")
    I(f"v_mov_b32 v{YA+1}, 0x3f800000")
    for q_ in range(4):
        I(f"v_cmp_eq_u32 vcc, {2*q_}, v{yo}")
        I(f"v_cndmask_b32 v{SL+q_}, 0, v{YA}, vcc")
        I(f"v_cmp_eq_u32 vcc, {2*q_+1}, v{yo}")
        I(f"v_cndmask_b32 v{SL+q_}, v{SL+q_}, v{YA+1}, vcc")
    yw = T + 31
    I(f"v_and_b32 v{yw}, 0x3c0, v{ya0}")
    I(f"v_add_u32 v{yw}, v{yw}, v{ya0}")
    yz = yw if zx == 128 else ya0
    yy = yw if y128 else ya0
    I(f"v_mov_b32 v{ya1}, {BIG:#x}")
    I(f"v_cmp_gt_u32 vcc, 24, v{vLANE}")
    I(f"v_cndmask_b32 v{ya1}, v{ya1}, v{yy}, vcc")
    I(f"v_lshlrev_b32 v{yo}, {3 if m2 else 4}, v{yo}")
    I(f"v_lshrrev_b32 v{YA}, 4, v{vLANE}")
    I(f"v_lshl_add_u32 v{yo}, v{YA}, {5 if m2 else 3}, v{yo}")
    I(f"v_add_u32 v{yo}, s{sT2}, v{yo}")
    rank_off(sT0, sR, sT1)
    I(f"s_add_u32 s{sT3}, s{sREG}, s{sNEAR}")
    I(f"s_add_u32 s{sT0}, s{sT0}, s{sT3}")
    I(f"s_add_u32 s{sT0}, s{sT0}, {ZOFF - RS & 0xffffffff:#x}")
    if sl == 1:
        I(f"s_xor_b32 s{sT1}, s{sX}, 4")
        I(f"s_lshl_b32 s{sT1}, s{sT1}, 2")
        I(f"s_lshl_b32 exec_lo, 1, s{sT1}")
        I(f"s_mov_b32 exec_hi, 0")
        light(f"buffer_load_dword v{T+50}, v{yz2}, {WS}, s{sT0} offen sc1", T + 50)
    if sl >= 2:
        I(f"s_add_u32 s{sT1}, s{sT0}, {YOFF - ZOFF:#x}")
        setexec(1, 0)
        for _ in range(sl - 1):
            I(f"buffer_load_dword v{T+50}, v{yz2}, {WS}, s{sT1} offen sc1")
            I("s_waitcnt vmcnt(0)")
    setexec(0xFFFFFFFF, 0)
    if m2:
        poll([f"buffer_load_dwordx2 v[{YD}:{YD+1}], v{yz2}, {WS}, s{sT0} offen sc1",
              f"buffer_load_dwordx2 v[{YD+2}:{YD+3}], v{yz2}, {WS}, s{sT0} offen offset:32 sc1"], [YD, YD + 2], ex=(0xFFFFFFFF, 0))
    else:
        poll([f"buffer_load_dwordx4 {vr(YD)}, v{yz}, {WS}, s{sT0} offen sc1"], [YD], ex=(0xFFFFFFFF, 0))
    setexec(0xFFFFFFFF, 0xFFFFFFFF)
    I(f"v_mfma_f32_16x16x32_bf16 {vr(YA)}, {vr(SL)}, {vr(YD)}, 0")
    if m2:
        yi, y1_ = T + 33, T + 34
        I(f"v_and_b32 v{yi}, 10, v{vLANE}")
        I(f"v_mov_b32 v{y1_}, 0x3f80")
        I(f"v_cmp_eq_u32 vcc, 0, v{yi}")
        I(f"v_cndmask_b32 v{SL}, 0, v{y1_}, vcc")
        I(f"v_cndmask_b32 v{SL+2}, 0, v{y1_}, vcc")
        I(f"v_cmp_eq_u32 vcc, 2, v{yi}")
        I(f"v_cndmask_b32 v{SL+1}, 0, v{y1_}, vcc")
        I(f"v_cndmask_b32 v{SL+3}, 0, v{y1_}, vcc")
        I(f"v_and_b32 v{yi}, 1, v{vLANE}")
        I(f"v_bfe_u32 v{y1_}, v{vLANE}, 2, 1")
        I(f"v_lshl_add_u32 v{yi}, v{yi}, 1, v{y1_}")
        I(f"v_mul_u32_u24 v{yi}, 0x5555, v{yi}")
    I(f"s_and_b32 s{sT0}, s{sR}, 1")
    I(f"s_lshl_b32 s{sT0}, s{sT0}, {6 if y128 else 12}")
    I(f"s_lshr_b32 s{sT1}, s{sR}, 1")
    I(f"s_lshl_b32 s{sT1}, s{sT1}, 14")
    I(f"s_add_u32 s{sT0}, s{sT0}, s{sT1}")
    I(f"s_add_u32 s{sT0}, s{sT0}, s{sT3}")
    I(f"s_add_u32 s{sT0}, s{sT0}, {YOFF - RS & 0xffffffff:#x}")
    I(f"s_add_u32 s{sT1}, s{sT0}, {4096 if y128 else 2048}")
    I(f"s_lshl_b32 s{sT2}, s{sX}, 11")
    I(f"s_add_u32 s{sT2}, s{sT2}, {XOFF}")
    if yh:
        I(f"v_lshlrev_b32 v{T+49}, 7, v{vLANE}")
        I(f"s_andn2_b32 s86, s{sT0}, 64")
        I(f"s_add_u32 s86, s86, {56*128}")
    I("s_nop 7")
    TS(26)
    if p5 & 16: I("s_setprio 3")
    if yh:
        light_all(f"buffer_load_dword v{T+50}, v{T+49}, {WS}, s86 offen sc1", T + 50, (yhm, 0))
    elif yl:
        light(f"buffer_load_dword v{YD}, v{yy}, {WS}, s{sT0} offen {yfl}", YD, (ylm & 0xffffffff, ylm >> 32) if ylm else ((1 << yl) - 1, 0))
    if g3:
        I(f"s_cmp_eq_u32 s{sIT}, 2")
        I("s_cbranch_scc1 L_G3s")
        I("s_barrier")
        a.label("L_G3s")
    poll([f"buffer_load_dwordx4 {vr(YD+4*e)}, v{ya1 if e == 3 else yy}, {WS}, s{(sT0, sT1)[e >> 1]} offen offset:{(e & 1)*(2048 if y128 else 1024)} {yfl}" for e in range(4)],
         [YD + k for k in range(16)] if m2 else [YD + 2 * k for k in range(8)],
         groups=[list(range(YD + 4 * e, YD + 4 * e + 4)) if m2 else [YD + 4 * e, YD + 4 * e + 2] for e in range(4)], hop=4)
    TS(27)
    for e in range(2 if m2 else 4):
        if m2: I(f"v_smfmac_f32_16x16x64_bf16 {vr(YA)}, {vr(SL)}, {vr(YD+8*e, 8)}, v{yi}")
        else: I(f"v_mfma_f32_16x16x32_bf16 {vr(YA)}, {vr(SL)}, {vr(YD+4*e)}, {vr(YA)}")
    for m_ in (4, 8):
        for i in range(4):
            I(f"v_add_f32_dpp v{YA+i}, v{YA+i}, v{YA+i} row_ror:{m_} row_mask:0xf bank_mask:0xf")
    I(f"v_cvt_pk_bf16_f32 v{YA}, v{YA}, v{YA+1}")
    I(f"v_cvt_pk_bf16_f32 v{YA+1}, v{YA+2}, v{YA+3}")
    setexec(0x000F000F, 0)
    I(f"s_cmp_eq_u32 s{sIT}, 2")
    I("s_cbranch_scc0 L_lead1")
    I(f"buffer_store_dwordx2 v[{YA}:{YA+1}], v{yo}, {OUTS}, 0 offen")
    setexec(0xFFFFFFFF, 0xFFFFFFFF)
    TS(29)
    I("s_branch L_fin")
    a.label("L_lead1")
    I(f"v_min_u32 v{YA}, 0xfffffffe, v{YA}")
    I(f"v_min_u32 v{YA+1}, 0xfffffffe, v{YA+1}")
    lstore([f"buffer_store_dwordx2 v[{YA}:{YA+1}], v{yo}, {WS}, s{sT2} offen"])
    setexec(0xFFFFFFFF, 0xFFFFFFFF)
    TS(28)
    if p5 & 16: I("s_setprio 0")
    I("s_branch L_B1")
    if g3:
        a.label("L_G3")
        I("s_barrier")
        I("s_branch L_B1")
    a.label("L_nsub")
    I(f"s_cmp_ge_u32 s{sWAVE}, 5")
    I("s_cbranch_scc1 L_G3" if g3 else "s_cbranch_scc1 L_B1")
    IDX = vSEL + 4
    DPF = "row_mask:0xf bank_mask:0xf"
    if q2:
        ta, x1 = T + 24, T + 25
        I(f"s_lshl_b32 s{sT0}, s{sWAVE}, 13")
        I(f"s_add_u32 s{sT0}, s{sT0}, {L_PER}")
        I(f"v_lshrrev_b32 v{ta}, 5, v{vLANE}")
        I(f"v_lshlrev_b32 v{ta}, 10, v{ta}")
        I(f"v_bfe_u32 v{x1}, v{vLANE}, 4, 1")
        I(f"v_lshl_add_u32 v{ta}, v{x1}, 8, v{ta}")
        I(f"v_bfe_u32 v{x1}, v{vLANE}, 2, 1")
        I(f"v_lshl_add_u32 v{ta}, v{x1}, 6, v{ta}")
        I(f"v_and_b32 v{x1}, 3, v{vLANE}")
        I(f"v_lshl_add_u32 v{ta}, v{x1}, 3, v{ta}")
        I(f"v_bfe_u32 v{x1}, v{vLANE}, 3, 1")
        I(f"v_lshl_add_u32 v{ta}, v{x1}, 9, v{ta}")
        I(f"v_xor_b32 v{x1}, s{sSLOT}, v{x1}")
        I(f"v_and_b32 v{x1}, 1, v{x1}")
        I(f"v_lshl_add_u32 v{ta}, v{x1}, 5, v{ta}")
        I(f"v_add_u32 v{ta}, s{sT0}, v{ta}")
        for k_ in range(8):
            I(f"ds_read_b64_tr_b16 v[{vBQ+2*k_}:{vBQ+2*k_+1}], v{ta} offset:{(k_>>1)*2048 + (k_&1)*128}")
        for i in range(8):
            I(f"v_mov_b32 v{T+i}, 0")
        for i in range(4):
            I(f"v_mov_b32 v{XA+i}, 0x3f803f80")
        I(f"s_lshl_b32 s{sT2}, s{sX}, 11")
        I(f"s_add_u32 s{sT2}, s{sT2}, {XOFF}")
        I("s_waitcnt lgkmcnt(0)")
        TS(3)
        setexec(0x55555555, 0x55555555)
        poll([f"buffer_load_dwordx4 {vr(XA)}, v{vXO}, {WS}, s{sT2} offen sc1"], [XA, XA + 2], ex=(0x55555555, 0x55555555), hop=8)
        setexec(0xFFFFFFFF, 0xFFFFFFFF)
        TS(4)
        I(f"v_mfma_f32_16x16x32_bf16 {vr(T+8)}, {vr(XA)}, {vr(XA)}, 0")
        for k_ in range(2):
            I(f"v_smfmac_f32_16x16x64_bf16 {vr(T+4*k_)}, {vr(XA)}, {vr(vBQ+8*k_, 8)}, v{IDX}")
        I(f"ds_write_b64 v{vSW}, v[{T+8}:{T+9}]")
        I(f"v_pk_add_f32 v[{T}:{T+1}], v[{T}:{T+1}], v[{T+2}:{T+3}]")
        I("s_mov_b32 exec_lo, 0xffff0000")
        I("s_mov_b32 exec_hi, 0")
        I(f"v_pk_add_f32 v[{T}:{T+1}], v[{T+4}:{T+5}], v[{T+6}:{T+7}]")
        I("s_mov_b32 exec_lo, -1")
        I(f"ds_write_b64 v{vPQ}, v[{T}:{T+1}] offset:{L_PB1}")
        I("s_mov_b32 exec_hi, -1")
        I("s_waitcnt lgkmcnt(0)")
        TS(5)
        a.label("L_B1")
        I(f"v_mov_b32 v{rINV}, {f2u(1.0/640):#x}")
        I(f"s_add_u32 s{sT2}, s{sQS}, s{sREG}")
        I(f"s_sub_u32 s{sT2}, s{sT2}, {L_QB}")
        I(f"s_cmp_eq_u32 s{sWAVE}, 5")
        I("s_cbranch_scc1 L_B15")
        I("s_barrier")
        if q2 >= 2 and qb != 2: att_pre()
        if qb: I("s_barrier")
        if qb == 2: att_pre()
        I("s_branch L_B2")
        a.label("L_B15")
        if p5 & 1: I("s_setprio 3")
        if q2 >= 2: att_pre(32)
        I("s_barrier")
        TS(6)
        SQ = 60 if q2 >= 2 else 28
        PR = [32, 36, 40, T + 44, T + 48] if q2 >= 2 else [T + 4 * v for v in range(5)]
        for v in range(5):
            I(f"ds_read_b64 v[{SQ+2*v}:{SQ+2*v+1}], v{vCSQ} offset:{L_PB1 + 512 + v*PP}")
        for v in range(5):
            I(f"ds_read_b128 {vr(PR[v])}, v{vQG} offset:{L_PB1 + v*PP}")
        I("s_waitcnt lgkmcnt(5)")
        for d_, s_ in ((0, 1), (2, 3), (0, 4), (0, 2)):
            I(f"v_pk_add_f32 v[{SQ+2*d_}:{SQ+2*d_+1}], v[{SQ+2*d_}:{SQ+2*d_+1}], v[{SQ+2*s_}:{SQ+2*s_+1}]")
        for m_ in ("quad_perm:[1,0,3,2]", "quad_perm:[2,3,0,1]"):
            I(f"v_add_f32_dpp v{SQ+1}, v{SQ+1}, v{SQ+1} {m_} {DPF}")
            I(f"v_add_f32_dpp v{SQ}, v{SQ}, v{SQ} {m_} {DPF}")
        I(f"v_mul_f32 v{rMEAN}, v{SQ+1}, v{rINV}")
        I(f"v_mul_f32 v{rVAR}, v{SQ}, v{rINV}")
        stats(None)
        I("s_waitcnt lgkmcnt(0)")
        for d_, s_ in ((0, 1), (2, 3), (4, 5), (6, 7), (8, 9), (0, 2), (4, 6), (0, 8), (0, 4)):
            d_, s_ = PR[d_ >> 1] + 2 * (d_ & 1), PR[s_ >> 1] + 2 * (s_ & 1)
            I(f"v_pk_add_f32 v[{d_}:{d_+1}], v[{d_}:{d_+1}], v[{s_}:{s_+1}]")
        I(f"v_fma_f32 v{rU}, -v{rMB}, v{PR[0]+1}, v{PR[0]}")
        I(f"v_mul_f32_dpp v{rT}, v{rU}, v{rR} quad_perm:[0,0,2,2] {DPF}")
        I(f"v_mul_f32_dpp v{rU}, v{rU}, v{rR} quad_perm:[1,1,3,3] {DPF}")
        I(f"v_cvt_pk_bf16_f32 v{rU}, v{rT}, v{rU}")
        I(f"v_min_u32 v{rU}, 0xfffffffe, v{rU}")
        TS(7)
        lstore([f"buffer_store_dword v{rU}, v{vQP}, {WS}, s{sREG} offen"], True)
        if p5 & 1: I("s_setprio 0")
        if qb: I("s_barrier")
        if q2 in (1, 3): I(f"buffer_load_ushort v{vXF}, v{vXFA}, {WS}, 0 offen sc1")
        if q2 == 3:
            for i in range(32, 44): I(f"v_mov_b32 v{T+i}, 0")
        a.label("L_B2")
        if q2 in (1, 3):
            if ap:
                I(f"s_cmp_lt_u32 s{sWAVE}, 4")
                I("s_cbranch_scc0 L_ap")
                I(f"s_setprio {ap}")
                a.label("L_ap")
            for i in (range(4, 36) if q2 == 1 else []):
                I(f"v_mov_b32 v{T+i}, 0")
            poll([f"buffer_load_dwordx4 {vr(T)}, v{vQR}, {WS}, s{sT2} offen sc1"], list(range(T, T + 4)), hop=32)
        else:
            if ap:
                I(f"s_cmp_lt_u32 s{sWAVE}, 4")
                I("s_cbranch_scc0 L_ap")
                I(f"s_setprio {ap}")
                a.label("L_ap")
            I(f"s_mov_b64 s[{sKM}:{sKM+1}], -1")
            a.label("L_qp")
            q_masked(lambda r_: f"buffer_load_dwordx4 {vr(r_)}, v{vQR}, {WS}, s{sT2} offen sc1")
            I(f"s_add_u32 s{sSPIN}, s{sSPIN}, 1")
            I(f"s_cmp_ge_u32 s{sSPIN}, {spin_limit}")
            I("s_cbranch_scc1 L_qd")
            I("s_waitcnt vmcnt(3)")
            cur = maxtree(T + 50, range(T, T + 4))
            I(f"v_cmp_eq_u32 vcc, -1, v{cur}")
            I("s_cbranch_vccnz L_qp")
            a.label("L_qd")
            I("s_waitcnt vmcnt(0)")
        TS(8)

    if not q2:
        I(f"s_lshl_b32 s{sT0}, s{sWAVE}, 11")
        I(f"s_and_b32 s{sT1}, s{sSLOT}, 4")
        I(f"s_mul_i32 s{sT1}, s{sT1}, {NPER * 512}")
        I(f"s_add_u32 s{sT0}, s{sT0}, s{sT1}")
        I(f"s_add_u32 s{sT0}, s{sT0}, {L_PER}")
        ta = T + 24
        tr_addr(ta, 64, sT0, T + 25)
        I(f"v_bfe_u32 v{T+25}, v{vLANE}, 4, 1")
        I(f"v_lshl_add_u32 v{ta}, v{T+25}, 5, v{ta}")
        I(f"v_xor_b32 v{ta+1}, 32, v{ta}")
        for t in range(4):
            o = (t >> 1) * NPER * 1024
            I(f"ds_read_b64_tr_b16 v[{vBQ+4*t}:{vBQ+4*t+1}], v{ta+(t&1)} offset:{o}")
            I(f"ds_read_b64_tr_b16 v[{vBQ+4*t+2}:{vBQ+4*t+3}], v{ta+(t&1)} offset:{o+256}")
        ones()
        I("s_waitcnt lgkmcnt(0)")
        for t in range(4):
            I(f"v_mfma_f32_16x16x32_bf16 {vr(T+4*t)}, {vr(vBQ+4*t)}, {vr(ONES)}, 0")
        I(f"s_mov_b64 exec, s[{sKM}:{sKM+1}]")
        for t in range(4):
            I(f"ds_write_b128 v{vPQ}, {vr(T+4*t)} offset:{L_PB1 + 256 + t*64}")
        I("s_mov_b64 exec, -1")
        I(f"s_lshl_b32 s{sT2}, s{sX}, 11")
        I(f"s_add_u32 s{sT2}, s{sT2}, {XOFF}")
        if g3: I("s_barrier")
        TS(3)
        if xl:
            light(f"buffer_load_dword v{XA}, v{vXO}, {WS}, s{sT2} offen sc1", XA, (xl, 0))
        poll([f"buffer_load_dwordx4 {vr(XA)}, v{vXO}, {WS}, s{sT2} offen sc1"], list(range(XA, XA + 4)), hop=8)
        TS(4)
        gemv_q()
        TS(5)
        a.label("L_B1")
        I(f"v_mov_b32 v{rINV}, {f2u(1.0/640):#x}")
        qa, qs, QS = q_reduce()
        I("s_barrier")
        I(f"s_cmp_eq_u32 s{sWAVE}, 5")
        I("s_cbranch_scc1 L_B15")
        I("s_waitcnt vmcnt(0)")
        I("s_branch L_B2")
        a.label("L_B15")
        TS(6)
        q_reduce2(qa, qs, QS, first=True)
        TS(7)
        lstore([f"buffer_store_dword v{rU}, v{vQP}, {WS}, s{sREG} offen"], True)
        if zq:
            assert y128
            for i in range(24 if sm else 16):
                I(f"v_mov_b32 v{T+i}, 0")
        q_gather(vQG, qa)
        TS(8)
        I(f"buffer_load_ushort v{vXF}, v{vXFA}, {WS}, 0 offen sc1")
        I("s_waitcnt lgkmcnt(0)")
        if zq: I("s_branch L_B2b")
        a.label("L_B2")
    BT = T
    ST = T + 16
    PS = T + 32
    MI = T + 36
    OA = T + 44
    if q2 >= 2:
        PS, MI, OA = PS2, MI2, OA2
        a.label("L_att")
    elif q2:
        PS = 28
        a.label("L_att")
    else:
        for i in range(24 if sm else 16):
            I(f"v_mov_b32 v{BT+i}, 0")
        if zq: a.label("L_B2b")
        I("s_barrier")
        a.label("L_att")
        TS(9)
        for t in range(4):
            m = 0x000F000F << (4 * t)
            setexec(m, m)
            I(f"ds_read_b128 {vr(BT+4*t)}, v{vQR}")
        setexec(0xFFFFFFFF, 0xFFFFFFFF)
    I("s_waitcnt vmcnt(16) lgkmcnt(0)")
    TS(10)
    vM = MI + 4; vL = MI + 5; vT_ = MI + 6; vPK = MI + 7
    IDX = vSEL + 4
    DPF = "row_mask:0xf bank_mask:0xf"
    if sm:
        if q2 == 2:
            for Tq in range(2):
                for t in range(4):
                    I(f"v_smfmac_f32_16x16x64_bf16 {vr(ST+4*Tq)}, {vr(BT+4*t)}, {vr(vK+8*(Tq+2*t), 8)}, v{IDX}")
                    D = ST
                    if Tq == 1 and t == 1: I(f"v_pk_add_f32 v[{D}:{D+1}], v[{D}:{D+1}], v[{D+2}:{D+3}]")
                    if Tq == 1 and t == 2: I(f"v_mov_b32_dpp v{PS}, v{D} quad_perm:[0,0,2,2] {DPF}")
                    if Tq == 1 and t == 3: I(f"v_add_f32_dpp v{PS}, v{D+1}, v{PS} quad_perm:[1,1,3,3] {DPF}")
            D = ST + 4
            I(f"v_pk_add_f32 v[{D}:{D+1}], v[{D}:{D+1}], v[{D+2}:{D+3}]")
            I(f"v_mov_b32_dpp v{PS+1}, v{D} quad_perm:[0,0,2,2] {DPF}")
            I(f"v_add_f32_dpp v{PS+1}, v{D+1}, v{PS+1} quad_perm:[1,1,3,3] {DPF}")
            ST = T
            BT = T + 40
        elif q2 == 3:
            PM = T + 44
            for i in range(10):
                if i < 8: I(f"v_smfmac_f32_16x16x64_bf16 {vr(T+4+4*i)}, {vr(T)}, {vr(vK+8*i, 8)}, v{IDX}")
                j = i - 2
                if j < 0: continue
                D = T + 4 + 4 * j; P_ = PM + 2 * (j & 1)
                if pk3:
                    if j == 0: I("s_mov_b64 exec, 0xffff")
                    elif j % 2 == 0: I("s_lshl_b64 exec, exec, 16")
                    I(f"v_pk_add_f32 v[{P_}:{P_+1}], v[{D}:{D+1}], v[{D+2}:{D+3}]")
                else:
                    for c in range(2):
                        I(f"v_add_f32_dpp v{P_+c}, v{D+c}, v{D+2+c} quad_perm:[0,1,2,3] row_mask:{1 << (j >> 1):#x} bank_mask:0xf")
                if j == 7 and pk3: I("s_mov_b64 exec, -1")
                if j >= 6:
                    pass
            for Tq in range(2):
                I(f"v_mov_b32_dpp v{PS+Tq}, v{PM+2*Tq} quad_perm:[0,0,2,2] {DPF}")
            for Tq in range(2):
                I(f"v_add_f32_dpp v{PS+Tq}, v{PM+2*Tq+1}, v{PS+Tq} quad_perm:[1,1,3,3] {DPF}")
        elif q2:
            fill = [f"v_mov_b32 v{OA+i}, 0" for i in range(8)] + [f"v_mov_b32 v{MI+2}, {SCALE:#x}", f"v_mov_b32 v{MI+3}, {SCALE:#x}", f"v_mov_b32 v{MI+1}, s{sL2E}"]
            def po(k_, i):
                if not 0 <= i < 8:
                    return fill.pop() if fill and i < 0 else None
                D = T + 4 + 4 * i; rm = f"row_mask:{1 << (i >> 1):#x} bank_mask:0xf"
                return [f"v_pk_add_f32 v[{D}:{D+1}], v[{D}:{D+1}], v[{D+2}:{D+3}]",
                        f"v_mov_b32_dpp v{PS+(i&1)}, v{D} quad_perm:[0,0,2,2] {rm}",
                        f"v_add_f32_dpp v{PS+(i&1)}, v{D+1}, v{PS+(i&1)} quad_perm:[1,1,3,3] {rm}"][k_]
            for i in range(12):
                if i < 8: I(f"v_smfmac_f32_16x16x64_bf16 {vr(T+4+4*i)}, {vr(T)}, {vr(vK+8*i, 8)}, v{IDX}")
                if i == 8:
                    while fill: I(fill.pop())
                for k_, d_ in ((2, 4), (1, 3), (0, 2)):
                    x_ = po(k_, i - d_)
                    if x_: I(x_)
        else:
            for Tq in range(2):
                for t in range(4):
                    I(f"v_smfmac_f32_16x16x64_bf16 {vr(ST+4*Tq)}, {vr(BT+4*t)}, {vr(vK+8*(Tq+2*t), 8)}, v{IDX}")
                    if Tq == 0:
                        I(f"v_mov_b32 v{OA+2*t}, 0")
                        I(f"v_mov_b32 v{OA+2*t+1}, 0")
            I(f"v_mov_b32 v{MI+2}, {SCALE:#x}")
            I(f"v_mov_b32 v{MI+3}, {SCALE:#x}")
            I(f"v_mov_b32 v{MI+1}, s{sL2E}")
            for Tq in range(2):
                D = ST + 4 * Tq
                I(f"v_pk_add_f32 v[{D}:{D+1}], v[{D}:{D+1}], v[{D+2}:{D+3}]")
                I(f"v_mov_b32_dpp v{PS+Tq}, v{D} quad_perm:[0,0,2,2] {DPF}")
                I(f"v_add_f32_dpp v{PS+Tq}, v{D+1}, v{PS+Tq} quad_perm:[1,1,3,3] {DPF}")
        I(f"v_cvt_pk_bf16_f32 v{MI}, v{PS}, v{PS+1}")
        unpack(PS, PS + 1, MI)
        I(f"v_pk_mul_f32 v[{PS}:{PS+1}], v[{PS}:{PS+1}], v[{MI+2}:{MI+3}]")
        I(f"v_cvt_pk_bf16_f32 v{MI}, v{PS}, v{PS+1}")
        unpack(PS, PS + 1, MI)
        I(f"v_max_f32 v{vM}, v{PS}, v{PS+1}")
        if q2 == 2:
            I(f"v_cmp_u_f32 vcc, v{PS}, v{PS+1}")
            I(f"s_and_b64 vcc, vcc, s[{sKM}:{sKM+1}]")
            I("s_cbranch_scc1 L_qslow")
        I(f"v_max_f32_dpp v{vM}, v{vM}, v{vM} quad_perm:[2,3,0,1] {DPF}")
        I(f"v_max_f32_dpp v{vM}, v{vM}, v{vM} row_ror:4 {DPF}")
        I(f"v_max_f32_dpp v{vM}, v{vM}, v{vM} row_ror:8 {DPF}")
        I(f"v_max_f32_dpp v{vM}, v{vM}, v{vM} row_bcast:15 row_mask:0xa bank_mask:0xf")
        I(f"v_max_f32_dpp v{vM}, v{vM}, v{vM} row_bcast:31 row_mask:0xc bank_mask:0xf")
        I(f"v_readlane_b32 s{sM}, v{vM}, 63")
        I(f"v_mul_f32 v{vT_}, s{sM}, v{MI+1}")
        for Tq in range(2):
            I(f"v_fma_f32 v{PS+Tq}, v{PS+Tq}, v{MI+1}, -v{vT_}")
        for Tq in range(2):
            I(f"v_exp_f32 v{PS+Tq}, v{PS+Tq}")
    else:
        for Tt in range(4):
            for t in range(4):
                I(f"v_mfma_f32_16x16x32_bf16 {vr(ST+4*Tt)}, {vr(vK+4*(4*Tt+t))}, {vr(BT+4*t)}, {'0' if t == 0 else vr(ST+4*Tt)}")
        for Tt in range(4):
            I(f"v_mov_b32_dpp v{PS+Tt}, v{ST+4*Tt} quad_perm:[0,0,0,0] row_mask:0xf bank_mask:0xf")
            for c in range(1, 4):
                I(f"v_add_f32_dpp v{PS+Tt}, v{ST+4*Tt+c}, v{PS+Tt} quad_perm:[{c},{c},{c},{c}] row_mask:0xf bank_mask:0xf")
        I(f"v_mov_b32 v{MI+2}, {SCALE:#x}")
        I(f"v_mov_b32 v{MI+3}, {SCALE:#x}")
        I(f"v_cvt_pk_bf16_f32 v{MI}, v{PS}, v{PS+1}")
        I(f"v_cvt_pk_bf16_f32 v{MI+1}, v{PS+2}, v{PS+3}")
        unpack(PS, PS + 1, MI)
        unpack(PS + 2, PS + 3, MI + 1)
        I(f"v_pk_mul_f32 v[{PS}:{PS+1}], v[{PS}:{PS+1}], v[{MI+2}:{MI+3}]")
        I(f"v_pk_mul_f32 v[{PS+2}:{PS+3}], v[{PS+2}:{PS+3}], v[{MI+2}:{MI+3}]")
        I(f"v_cvt_pk_bf16_f32 v{MI}, v{PS}, v{PS+1}")
        I(f"v_cvt_pk_bf16_f32 v{MI+1}, v{PS+2}, v{PS+3}")
        unpack(PS, PS + 1, MI)
        unpack(PS + 2, PS + 3, MI + 1)
        vM = MI + 4; vL = MI + 5; vT_ = MI + 6; vPK = MI + 7
        I(f"v_max3_f32 v{vM}, v{PS}, v{PS+1}, v{PS+2}")
        I(f"v_max_f32 v{vM}, v{vM}, v{PS+3}")
        I(f"v_max_f32_dpp v{vM}, v{vM}, v{vM} row_ror:4 row_mask:0xf bank_mask:0xf")
        I(f"v_max_f32_dpp v{vM}, v{vM}, v{vM} row_ror:8 row_mask:0xf bank_mask:0xf")
        I(f"v_max_f32_dpp v{vM}, v{vM}, v{vM} row_bcast:15 row_mask:0xa bank_mask:0xf")
        I(f"v_max_f32_dpp v{vM}, v{vM}, v{vM} row_bcast:31 row_mask:0xc bank_mask:0xf")
        I(f"v_mov_b32 v{MI}, s{sL2E}")
        I(f"v_readlane_b32 s{sM}, v{vM}, 63")
        I(f"v_mul_f32 v{vT_}, s{sM}, v{MI}")
        for Tt in range(4):
            I(f"v_fma_f32 v{PS+Tt}, v{PS+Tt}, v{MI}, -v{vT_}")
        for Tt in range(4):
            I(f"v_exp_f32 v{PS+Tt}, v{PS+Tt}")
    TS(11)
    I(f"s_cmp_eq_u32 s{sIT}, 0")
    I("s_cbranch_scc0 L_PV")
    I(f"s_cmp_eq_u32 s{sLATE}, 0")
    I("s_cbranch_scc1 L_PVe")
    role_dma()
    TS(25)
    I("s_branch L_PV")
    a.label("L_PVe")
    if esy:
        I(f"s_cmp_eq_u32 s{sWAVE}, 7")
        I("s_cbranch_scc0 L_PVe2")
        if esy == 2:
            I(f"s_lshl_b32 s{sT0}, s{sX}, 4")
            I(f"s_add_u32 s{sT0}, s{sT0}, 128")
            I(f"s_waitcnt vmcnt({esv})")
            I(f"s_load_dwordx2 s[64:65], s[54:55], s{sT0}")
            for g_ in range(8):
                I(f"s_load_dword s{32+g_}, s[54:55], {132 + 16*g_}")
        else:
            srd(TA, 54, 256)
            if ast == 6:
                I(f"v_mul_u32_u24 v{BT+2}, 72, v{vLANE}")
                I(f"v_and_b32 v{BT+2}, 0xe0, v{BT+2}")
            else:
                I(f"v_lshlrev_b32 v{BT+2}, {ast}, v{vLANE}")
            setexec(0xFF, 0)
            I(f"buffer_load_dwordx2 v[{BT}:{BT+1}], v{BT+2}, {TA}, 0 offen offset:{128 if ast == 4 else 0} {syfl}")
            setexec(0xFFFFFFFF, 0xFFFFFFFF)
            I("s_waitcnt vmcnt(1)")
            I("s_branch L_PV")
        a.label("L_PVe2")
    I(f"s_waitcnt vmcnt({1 if pst == 1 or (pst >= 4 and (pst != 6 or pi)) else 0})")
    a.label("L_PV")
    if sm:
        I(f"v_cvt_pk_bf16_f32 v{vPK}, v{PS}, v{PS+1}")
        I(f"v_add_f32 v{vL}, v{PS}, v{PS+1}")
        I(f"v_mov_b32_dpp v{vT_}, v{vPK} row_half_mirror {DPF}")
        lred = [f"v_add_f32_dpp v{vL}, v{vL}, v{vL} quad_perm:[2,3,0,1] {DPF}",
                f"v_add_f32_dpp v{vL}, v{vL}, v{vL} row_ror:4 {DPF}",
                f"v_add_f32_dpp v{vL}, v{vL}, v{vL} row_ror:8 {DPF}",
                f"v_add_f32_dpp v{vL}, v{vL}, v{vL} row_bcast:15 row_mask:0xa bank_mask:0xf",
                f"v_add_f32_dpp v{vL}, v{vL}, v{vL} row_bcast:31 row_mask:0xc bank_mask:0xf",
                f"ds_write_b64 v{vMLW}, v[{vM}:{vL}]"]
        def mkA(Tt):
            x_, y_ = Tt >> 1, Tt & 1
            for w in sorted(range(4), key=lambda w: (w & 1) != x_):
                src, p_ = (vPK, 2 * y_) if (w & 1) == x_ else (vT_, 3 - 2 * y_)
                I(f"v_and_b32_dpp v{ST+4*Tt+w}, v{src}, v{vSEL+w} quad_perm:[{p_},{p_},{p_},{p_}] {DPF}")
        mkA(0)
        for Tt in range(4):
            for hf in range(2):
                j1 = Tt * 4 + hf * 2 + 1
                if hf == 0 and Tt < 3: mkA(Tt + 1) if Tt == 0 else None
                I(f"s_waitcnt vmcnt({15 - j1 + 8})")
                I(f"v_smfmac_f32_16x16x64_bf16 {vr(OA+4*hf)}, {vr(ST+4*Tt)}, {vr(vV+4*(j1-1), 8)}, v{IDX} abid:1")
                if hf == 0 and Tt < 2: mkA(Tt + 2)
                elif lred:
                    I(lred.pop(0))
                    if Tt >= 2 and lred: I("s_nop 0"); I(lred.pop(0))
        for x_ in lred: I(x_)
    else:
        for Tt in range(4):
            AB = ST + 8 * (Tt & 1)
            I(f"v_mov_b32_dpp v{vT_}, v{PS+Tt} row_half_mirror row_mask:0xf bank_mask:0xf")
            I(f"v_cvt_pk_bf16_f32 v{vPK}, v{PS+Tt}, v{vT_}")
            for u in range(2):
                for r in range(4):
                    I(f"v_perm_b32 v{AB+4*u+r}, v{vPK}, v{vPK}, v{vSEL+4*u+r}")
            if Tt == 1:
                I(f"v_add_f32 v{vL}, v{PS}, v{PS+1}")
                I(f"v_add_f32 v{MI+1}, v{PS+2}, v{PS+3}")
                I(f"v_add_f32 v{vL}, v{vL}, v{MI+1}")
                I(f"v_add_f32_dpp v{vL}, v{vL}, v{vL} row_ror:4 row_mask:0xf bank_mask:0xf")
                I(f"v_add_f32_dpp v{vL}, v{vL}, v{vL} row_ror:8 row_mask:0xf bank_mask:0xf")
                I(f"v_add_f32_dpp v{vL}, v{vL}, v{vL} row_bcast:15 row_mask:0xa bank_mask:0xf")
                I(f"v_add_f32_dpp v{vL}, v{vL}, v{vL} row_bcast:31 row_mask:0xc bank_mask:0xf")
                I(f"ds_write_b64 v{vMLW}, v[{vM}:{vL}]")
            for u in range(2):
                i1 = Tt * 4 + u * 2 + 1
                I(f"s_waitcnt vmcnt({15 - i1 + 8})")
                for hf in range(2):
                    i = Tt * 4 + u * 2 + hf
                    first = (Tt == 0 and u == 0)
                    I(f"v_mfma_f32_16x16x32_bf16 {vr(OA+4*hf)}, {vr(AB+4*u)}, {vr(vV+4*i)}, {'0' if first else vr(OA+4*hf)}")
    TS(12)
    setexec(0x00FF00FF, 0xFF00FF00)
    I(f"ds_write_b128 v{vOW}, {vr(OA)}")
    I(f"ds_write_b128 v{vOW}, {vr(OA+4)} offset:256")
    setexec(0xFFFFFFFF, 0xFFFFFFFF)
    I(f"s_cmp_eq_u32 s{sIT}, 0")
    I("s_cbranch_scc0 L_B3")
    sp(0)
    I(f"s_cmp_eq_u32 s{sLATE}, 0")
    I("s_cbranch_scc0 L_B3")
    I(f"s_cmp_eq_u32 s{sWAVE}, 7")
    I("s_cbranch_scc0 L_erd")
    sp(3)
    if esy == 2:
        hi = list(range(32, 40))
        I("s_waitcnt lgkmcnt(0)")
        I(f"s_and_b32 s{sT1}, s65, s{hi[0]}")
        for h_ in hi[1:]:
            I(f"s_and_b32 s{sT1}, s{sT1}, s{h_}")
        I(f"s_lshr_b32 s{sT0}, s{hi[0]}, 24")
        for h_ in hi[1:]:
            I(f"s_lshr_b32 s{h_}, s{h_}, 24")
            I(f"s_add_u32 s{sT0}, s{sT0}, s{h_}")
        I(f"s_mul_i32 s{sT2}, s{sXCC}, 6")
        I(f"s_lshr_b64 s[64:65], s[64:65], s{sT2}")
        I(f"s_and_b32 s64, s64, 63")
        I(f"s_cmp_eq_u32 s64, 32")
        I(f"s_cselect_b32 s64, 1, 0")
        I(f"s_cmp_lt_u32 s{sXCC}, 8")
        I(f"s_cselect_b32 s64, s64, 0")
        I(f"s_bitcmp1_b32 s{sT1}, 21")
        I(f"s_mov_b32 s{sT1}, s64")
        I("s_cbranch_scc1 L_syncs")
    srd(TA, 54, 256)
    if q2 == 2: I(f"v_lshlrev_b32 v{BT+2}, {ast}, v{vLANE}")
    setexec(0xFF, 0)
    if esy == 2:
        I(f"v_lshlrev_b32 v{BT+2}, {ast}, v{vLANE}")
        I(f"buffer_load_dwordx2 v[{BT}:{BT+1}], v{BT+2}, {TA}, 0 offen offset:{128 if ast == 4 else 0} sc1")
    if not esy:
        I(f"v_lshlrev_b32 v{BT+2}, {ast}, v{vLANE}")
        I(f"buffer_load_dwordx2 v[{BT}:{BT+1}], v{BT+2}, {TA}, 0 offen offset:{128 if ast == 4 else 0} {syfl}")
    a.label("L_sync")
    I(f"s_add_u32 s{sSPIN}, s{sSPIN}, 4")
    I("s_waitcnt vmcnt(0)")
    I(f"v_and_b32 v{BT+3}, {1 << 21:#x}, v{BT+1}")
    I(f"v_cmp_eq_u32 vcc, 0, v{BT+3}")
    I("s_cbranch_vccz L_syncd")
    I(f"buffer_load_dwordx2 v[{BT}:{BT+1}], v{BT+2}, {TA}, 0 offen offset:{128 if ast == 4 else 0} sc1")
    I(f"s_cmp_lt_u32 s{sSPIN}, {spin_limit}")
    I("s_cbranch_scc1 L_sync")
    I("s_waitcnt vmcnt(0)")
    a.label("L_syncd")
    I(f"v_lshrrev_b32 v{BT+3}, 24, v{BT+1}")
    I(f"v_readlane_b32 s64, v{BT}, s{sX}")
    I(f"v_readlane_b32 s65, v{BT+1}, s{sX}")
    for m_ in ("quad_perm:[1,0,3,2]", "quad_perm:[2,3,0,1]", "row_half_mirror"):
        I(f"v_add_u32_dpp v{BT+3}, v{BT+3}, v{BT+3} {m_} row_mask:0xf bank_mask:0xf")
    I(f"s_mul_i32 s{sT0}, s{sXCC}, 6")
    I(f"s_lshr_b64 s[64:65], s[64:65], s{sT0}")
    I(f"s_and_b32 s64, s64, 63")
    I(f"s_cmp_eq_u32 s64, 32")
    I(f"s_cselect_b32 s{sT1}, 1, 0")
    I(f"s_cmp_lt_u32 s{sXCC}, 8")
    I(f"s_cselect_b32 s{sT1}, s{sT1}, 0")
    I(f"v_readfirstlane_b32 s{sT0}, v{BT+3}")
    setexec(0xFFFFFFFF, 0xFFFFFFFF)
    if esy == 2: a.label("L_syncs")
    I(f"s_cmp_gt_u32 s{sT0}, {4 * ncal}")
    I(f"s_cselect_b32 s{sT0}, 1, 0")
    I(f"s_lshr_b32 s{sT2}, s{sXCC}, 2")
    I(f"s_xor_b32 s{sT0}, s{sT0}, s{sT2}")
    I(f"s_and_b32 s{sT0}, s{sT0}, {1 if dual else 0}")
    I(f"s_lshl_b32 s{sT0}, s{sT0}, 13")
    I(f"s_or_b32 s{sT0}, s{sT0}, s{sT1}")
    I(f"v_mov_b32 v{BT}, s{sT0}")
    I(f"v_mov_b32 v{BT+1}, {L_FLAG}")
    I(f"ds_write_b32 v{BT+1}, v{BT}")
    TS(35)
    sp(0)
    if pf:
        assert tw == 7 and dyn and not emd
        setexec(1, 0)
        I(f"ds_write_b32 v{BT+1}, v{vTK} offset:4")
        setexec(0xFFFFFFFF, 0xFFFFFFFF)
    a.label("L_erd")
    I(f"s_cmp_eq_u32 s{sROLE}, 0")
    if dyn and not pf:
        I("s_cbranch_scc1 L_erd2")
        I(f"s_cmp_eq_u32 s{sWAVE}, {tw}")
        I("s_cbranch_scc0 L_erd1" if emd else "s_cbranch_scc0 L_B3")
        I(f"v_mov_b32 v{BT+1}, {L_FLAG}")
        if emd: I(f"v_add_u32 v{vRDMA}, 1, v{vRDMA}")
        setexec(1, 0)
        I(f"ds_write_b32 v{BT+1}, v{vRDMA} offset:4")
        setexec(0xFFFFFFFF, 0xFFFFFFFF)
        if emd:
            a.label("L_erd1")
            if emd == 2:
                I(f"v_mov_b32 v{BT+1}, {L_FLAG}")
                I(f"v_mov_b32 v{BT}, 1")
                setexec(1, 0)
                I("s_waitcnt lgkmcnt(0)")
                I(f"ds_add_u32 v{BT+1}, v{BT} offset:12")
                setexec(0xFFFFFFFF, 0xFFFFFFFF)
                I(f"s_cmp_eq_u32 s{sWAVE}, 7")
                I("s_cbranch_scc0 L_erd3")
                lds_wait(12, 12, ge=True)
                TS(13)
                I(f"ds_read_b64 v[{T+38}:{T+39}], v{T+47}")
                I("s_branch L_comb")
                a.label("L_erd3")
            I(f"s_cmp_lt_u32 s{sWAVE}, {emw}")
            I("s_cbranch_scc0 L_B3")
            e0, e1, e2, e3 = BT, BT + 1, BT + 2, BT + 3
            npc = 40 // emw
            I(f"v_lshrrev_b32 v{e0}, 2, v{vLANE}")
            I(f"v_mul_u32_u24 v{e0}, 3456, v{e0}")
            I(f"v_and_b32 v{e1}, 3, v{vLANE}")
            I(f"v_lshl_add_u32 v{BT+4}, v{e1}, 4, v{e0}")
            I(f"v_lshrrev_b32 v{e0}, 3, v{vLANE}")
            I(f"v_mul_u32_u24 v{e2}, 1280, v{e0}")
            I(f"v_and_b32 v{e1}, 7, v{vLANE}")
            I(f"v_lshlrev_b32 v{e1}, 4, v{e1}")
            I(f"v_bfe_u32 v{e0}, v{vLANE}, 4, 1")
            I(f"v_lshlrev_b32 v{e0}, 5, v{e0}")
            I(f"v_xor_b32 v{e1}, v{e1}, v{e0}")
            I(f"v_xor_b32 v{e0}, 64, v{e1}")
            I(f"v_add_u32 v{e3}, v{e2}, v{e0}")
            I(f"v_add_u32 v{e2}, v{e2}, v{e1}")
            lds_wait(4, 1, ge=True)
            I(f"s_sub_u32 s{sTB}, s{sT3}, 1")
            I(f"s_mul_hi_u32 s{sT0}, s{sTB}, 0x2aaaaab")
            I(f"s_mul_i32 s{sT0}, s{sT0}, 96")
            I(f"s_sub_u32 s{sTB}, s{sTB}, s{sT0}")
            I(f"s_cmp_lt_u32 s{sTB}, 54")
            I("s_cbranch_scc0 L_B3")
            if g8: lds_wait(8, g8, ge=True)
            srd(TB, 44, 640 * 3456)
            I(f"s_mul_i32 s{sT1}, s{sWAVE}, {npc*16*3456}")
            I(f"s_lshl_b32 s{sT0}, s{sTB}, 6")
            I(f"s_add_u32 s{sT0}, s{sT0}, s{sT1}")
            I(f"s_mul_i32 s{sT1}, s{sWAVE}, {npc*1024}")
            for e in range(npc):
                I(f"s_add_u32 m0, s{sT1}, {L_ROLE + e*1024}")
                I(f"buffer_load_dwordx4 v{BT+4}, {TB}, s{sT0} offen {rflags} lds")
                if e < npc - 1: I(f"s_add_u32 s{sT0}, s{sT0}, {16*3456}")
            srd(TA, 48, 1728 * 1280)
            I(f"s_mul_i32 s{sT3}, s{sTB}, {32*1280}")
            I(f"s_mul_i32 s{sT0}, s{sWAVE}, {npc}")
            assert npc % 2 == 0
            for e in range(npc):
                I(f"s_lshl_b32 s{sT1}, s{sT0}, 10")
                I(f"s_add_u32 m0, s{sT1}, {L_W2}")
                I(f"s_and_b32 s{sT1}, s{sT0}, 3")
                I(f"s_mul_i32 s{sT1}, s{sT1}, {8*1280}")
                I(f"s_lshr_b32 s{sT2}, s{sT0}, 2")
                I(f"s_lshl_b32 s{sT2}, s{sT2}, 7")
                I(f"s_add_u32 s{sT1}, s{sT1}, s{sT2}")
                I(f"s_add_u32 s{sT1}, s{sT1}, s{sT3}")
                I(f"buffer_load_dwordx4 v{(e2, e3)[e & 1]}, {TA}, s{sT1} offen {rflags} lds")
                if e < npc - 1: I(f"s_add_u32 s{sT0}, s{sT0}, 1")
            TS(25)
        I("s_branch L_B3")
        a.label("L_erd2")
    elif ew:
        I("s_cbranch_scc1 L_erd2")
        if the:
            I(f"v_cmp_ne_u32 vcc, -1, v{T+50}")
            I(f"s_bcnt1_i32_b64 s{sT0}, vcc")
            I(f"s_cmp_ge_u32 s{sT0}, {the}")
            I("s_cbranch_scc0 L_B3")
            I("s_mov_b32 s97, 1")
        I("s_waitcnt lgkmcnt(0)")
        I(f"s_cmp_eq_u32 s{sROLE}, 3")
        I("s_cbranch_scc1 L_erd3" if ew & 2 else "s_cbranch_scc1 L_B3")
        if eg: lds_wait(8, eg, ge=True)
        w2_early()
        I("s_branch L_B3")
        if ew & 2:
            a.label("L_erd3")
            if eg: lds_wait(8, eg, ge=True)
            pf_static("L_ps4", True, 3)
            I("s_branch L_B3")
        a.label("L_erd2")
    else:
        I("s_cbranch_scc0 L_B3")
    if gate:
        lds_wait(8, gate, ge=True)
    role_dma()
    TS(25)
    a.label("L_B3")
    I("s_waitcnt lgkmcnt(0)")
    I(f"v_mov_b32 v{T+38}, {L_FLAG}")
    I("s_barrier")
    TS(13)
    I(f"ds_read_b64 v[{T+38}:{T+39}], v{T+38}")
    I(f"s_cmp_eq_u32 s{sWAVE}, 7")
    I("s_cbranch_scc1 L_comb")
    I("s_waitcnt lgkmcnt(0)")
    I(f"v_readfirstlane_b32 s{sT0}, v{T+38}")
    I(f"s_and_b32 s{sPURE}, s{sT0}, 1")
    I(f"s_and_b32 s{sNEAR}, s{sT0}, {CP}")
    if pst == 2:
        I(f"s_cmp_eq_u32 s{sIT}, 0")
        I("s_cbranch_scc0 L_role")
        pf_static("L_ps", False)
    if pf:
        I(f"s_cmp_eq_u32 s{sIT}, 0")
        I("s_cbranch_scc0 L_role")
        I(f"s_cmp_lt_u32 s{sWAVE}, {2*pf}")
        I("s_cbranch_scc0 L_role")
        I(f"v_readfirstlane_b32 s{sT0}, v{T+39}")
        I(f"s_and_b32 s{sT0}, s{sT0}, 0xff")
        I(f"s_sub_u32 s{sT0}, s{sT0}, {h0}")
        I(f"s_cmp_lt_u32 s{sT0}, {(40 + pf - 1) // pf}")
        I("s_cbranch_scc0 L_role")
        I(f"s_mul_i32 s{sT0}, s{sT0}, {pf}")
        I(f"s_add_u32 s{sT0}, s{sT0}, s{sWAVE}")
        I(f"s_mul_i32 s{sT1}, s{sX}, 7")
        I(f"s_min_u32 s{sT1}, s{sT1}, 48")
        I(f"s_cmp_lt_u32 s{sWAVE}, {pf}")
        I("s_cbranch_scc0 L_pf2")
        srd(TA, 44, 640 * 3456)
        I(f"v_lshrrev_b32 v{T+50}, 2, v{vLANE}")
        I(f"v_mul_u32_u24 v{T+50}, 3456, v{T+50}")
        I(f"v_and_b32 v{T+51}, 3, v{vLANE}")
        I(f"v_lshl_add_u32 v{T+50}, v{T+51}, 7, v{T+50}")
        I(f"s_mul_i32 s{sT0}, s{sT0}, {16*3456}")
        I(f"s_lshr_b32 s{sT1}, s{sT1}, 1")
        I(f"s_lshl_b32 s{sT1}, s{sT1}, 7")
        I(f"s_add_u32 s{sT0}, s{sT0}, s{sT1}")
        I(f"v_add_u32 v{T+50}, s{sT0}, v{T+50}")
        I(f"buffer_load_dword v{T+51}, v{T+50}, {TA}, 0 offen")
        I("s_branch L_role")
        a.label("L_pf2")
        I(f"s_sub_u32 s{sT0}, s{sT0}, {pf}")
        I(f"s_cmp_lt_u32 s{sX}, 6")
        I(f"s_cselect_b32 s{sT2}, 35, 30")
        I(f"s_cmp_lt_u32 s{sT0}, s{sT2}")
        I("s_cbranch_scc0 L_role")
        if pfr:
            I(f"s_sub_u32 s{sT0}, s{sT2}, s{sT0}")
            I(f"s_sub_u32 s{sT0}, s{sT0}, 1")
        srd(TA, 48, 1728 * 1280)
        I(f"s_mul_i32 s{sT1}, s{sT1}, {32*1280}")
        I(f"s_lshl_b32 s{sT0}, s{sT0}, 13")
        I(f"s_add_u32 s{sT0}, s{sT0}, s{sT1}")
        I(f"v_lshlrev_b32 v{T+50}, 7, v{vLANE}")
        I(f"buffer_load_dword v{T+51}, v{T+50}, {TA}, s{sT0} offen")
    I("s_branch L_role")
    a.label("L_comb")
    if p5 & 8: I("s_setprio 3")
    cM, cL, cMX, cF, cT = T + 32, T + 33, T + 34, T + 36, T + 37
    cLS = T + 35
    I(f"ds_read_b64 v[{cM}:{cL}], v{vCML}")
    for w in range(8):
        I(f"ds_read2st64_b64 {vr(T+4*w)}, v{vCR} offset0:{2*w} offset1:{2*w+1}")
    I(f"v_mov_b32 v{cT}, s{sL2E}")
    I("s_waitcnt lgkmcnt(8)")
    I(f"v_readfirstlane_b32 s{sT0}, v{T+38}")
    I(f"v_max_f32_dpp v{cMX}, v{cM}, v{cM} quad_perm:[1,0,3,2] row_mask:0xf bank_mask:0xf")
    I(f"v_max_f32_dpp v{cMX}, v{cMX}, v{cMX} quad_perm:[2,3,0,1] row_mask:0xf bank_mask:0xf")
    I(f"v_max_f32_dpp v{cMX}, v{cMX}, v{cMX} row_half_mirror row_mask:0xf bank_mask:0xf")
    I(f"v_sub_f32 v{cF}, v{cM}, v{cMX}")
    I(f"v_mul_f32 v{cF}, v{cF}, v{cT}")
    I(f"v_exp_f32 v{cF}, v{cF}")
    I(f"s_and_b32 s{sPURE}, s{sT0}, 1")
    I(f"s_and_b32 s{sNEAR}, s{sT0}, {CP}")
    I("s_waitcnt lgkmcnt(0)")
    for w in range(8):
        I(f"v_readlane_b32 s{sF+w}, v{cF}, {w}")
    for w in range(8):
        I(f"v_pk_add_f32 v[{T+4*w}:{T+4*w+1}], v[{T+4*w}:{T+4*w+1}], v[{T+4*w+2}:{T+4*w+3}]")
    for w in range(8):
        sp = f"s[{sF+(w&~1)}:{sF+(w&~1)+1}]"
        o = w & 1
        acc = T + 40 + 2 * (w & 1)
        if w < 2:
            I(f"v_pk_mul_f32 v[{acc}:{acc+1}], v[{T+4*w}:{T+4*w+1}], {sp} op_sel:[0,{o}] op_sel_hi:[1,{o}]")
        else:
            I(f"v_pk_fma_f32 v[{acc}:{acc+1}], v[{T+4*w}:{T+4*w+1}], {sp}, v[{acc}:{acc+1}] op_sel:[0,{o},0] op_sel_hi:[1,{o},1]")
    I(f"v_mul_f32 v{cLS}, v{cF}, v{cL}")
    I(f"v_pk_add_f32 v[{T+40}:{T+41}], v[{T+40}:{T+41}], v[{T+42}:{T+43}]")
    I(f"v_add_f32_dpp v{cLS}, v{cLS}, v{cLS} quad_perm:[1,0,3,2] row_mask:0xf bank_mask:0xf")
    I(f"v_cvt_pk_bf16_f32 v{T+40}, v{T+40}, v{T+41}")
    I(f"v_min_u32 v{T+40}, 0xfffffffe, v{T+40}")
    I(f"v_add_f32_dpp v{cLS}, v{cLS}, v{cLS} quad_perm:[2,3,0,1] row_mask:0xf bank_mask:0xf")
    I(f"v_min_u32 v{cMX}, 0xfffffffe, v{cMX}")
    lstore([f"buffer_store_dword v{T+40}, v{vCP}, {WS}, s{sREG} offen"], True)
    I(f"v_add_f32_dpp v{cLS}, v{cLS}, v{cLS} row_half_mirror row_mask:0xf bank_mask:0xf")
    I(f"v_min_u32 v{cLS}, 0xfffffffe, v{cLS}")
    setexec(1, 0)
    lstore([f"buffer_store_dwordx2 v[{cMX}:{cLS}], v{vCPM}, {WS}, s{sREG} offen"], True)
    setexec(0xFFFFFFFF, 0xFFFFFFFF)
    TS(14)
    if p5 & 8: I("s_setprio 0")
    if emd == 2:
        I(f"s_cmp_eq_u32 s{sROLE}, 0")
        I("s_cbranch_scc1 L_WO")
        I(f"s_cmp_eq_u32 s{sIT}, 0")
        I("s_cbranch_scc0 L_role")
        I("s_barrier")

    a.label("L_role")
    m0_, m1_, m2_, m3_ = T, T + 1, T + 2, T + 3
    def ml_gate(thr):
        lab = a.newlab("Lg"); done = a.newlab("Lgd")
        I(f"v_lshrrev_b32 v{m0_}, 3, v{vLANE}")
        I(f"v_lshlrev_b32 v{m0_}, 7, v{m0_}")
        I(f"v_and_b32 v{m1_}, 7, v{vLANE}")
        I(f"v_lshl_add_u32 v{m0_}, v{m1_}, 3, v{m0_}")
        I(f"s_lshl_b32 s{sT1}, s{sXW}, 9")
        I(f"s_add_u32 s{sT1}, s{sT1}, {MLOFF}")
        I(f"s_add_u32 s{sT1}, s{sT1}, s{sREG}")
        setexec(0xFFFFFFFF, 0)
        a.label(lab)
        I(f"buffer_load_dword v{m1_}, v{m0_}, {WS}, s{sT1} offen sc1")
        I(f"s_add_u32 s{sSPIN}, s{sSPIN}, 1")
        I("s_waitcnt vmcnt(0)")
        I(f"v_cmp_ne_u32 vcc, -1, v{m1_}")
        I(f"s_bcnt1_i32_b64 s{sT0}, vcc")
        I(f"s_cmp_ge_u32 s{sT0}, {thr}")
        I(f"s_cbranch_scc1 {done}")
        I(f"s_cmp_lt_u32 s{sSPIN}, {spin_limit}")
        I(f"s_cbranch_scc1 {lab}")
        a.label(done)
        setexec(0xFFFFFFFF, 0xFFFFFFFF)
    I(f"s_cmp_eq_u32 s{sROLE}, 0")
    I("s_cbranch_scc1 L_WO")
    if pf:
        I(f"v_readfirstlane_b32 s{sTB}, v{T+39}")
        I(f"s_bfe_u32 s{sTB}, s{sTB}, 0x80008")
        I(f"s_cmp_lt_u32 s{sX}, 6")
        I(f"s_cselect_b32 s{sT0}, 7, 6")
        I(f"s_cmp_lt_u32 s{sTB}, s{sT0}")
        I("s_cbranch_scc0 L_next")
        I(f"s_mul_i32 s{sT1}, s{sX}, 7")
        I(f"s_min_u32 s{sT1}, s{sT1}, 48")
        I(f"s_add_u32 s{sTB}, s{sTB}, s{sT1}")
    elif dyn:
        I(f"v_readfirstlane_b32 s{sTB}, v{T+39}")
        if emd: I(f"s_sub_u32 s{sTB}, s{sTB}, 1")
        I(f"s_mul_hi_u32 s{sT0}, s{sTB}, 0x2aaaaab")
        I(f"s_mul_i32 s{sT0}, s{sT0}, 96")
        I(f"s_sub_u32 s{sTB}, s{sTB}, s{sT0}")
        I(f"s_cmp_lt_u32 s{sTB}, 54")
        I("s_cbranch_scc0 L_next")
    else:
        if pst == 3:
            I(f"s_cmp_eq_u32 s{sIT}, 0")
            I("s_cbranch_scc0 L_ps")
            I("s_barrier")
            pf_static("L_ps", False)
        I(f"s_cmp_eq_u32 s{sROLE}, 3")
        if pst >= 5 and (the or not ew & 2):
            I("s_cbranch_scc0 L_ps3")
            I(f"s_cmp_eq_u32 s{sIT}, 0")
            I("s_cbranch_scc0 L_next")
            if th1:
                I(f"s_cmp_eq_u32 s{sWAVE}, 6")
                I("s_cbranch_scc0 L_g1i")
                ml_gate(th1)
                a.label("L_g1i")
            I("s_barrier")
            if the and ew & 2:
                I("s_cmp_eq_u32 s97, 1")
                I("s_cbranch_scc1 L_next")
            pf_static("L_ps2", True, 2 if pst == 5 else 3)
            I("s_branch L_next")
            a.label("L_ps3")
        else:
            I("s_cbranch_scc1 L_next")
    I(f"s_cmp_eq_u32 s{sIT}, 0")
    I("s_cbranch_scc0 L_W1")
    if m2:
        assert y128 and sm and not emd and not th2
        vGZ = vRDMA
        F0, F1, F2 = 28, 36, 68
        L_CS = L_CS1
        sLB, sF2o, sF2x = sRN, sRSTEP, sYM
        if th1:
            I(f"s_cmp_eq_u32 s{sWAVE}, 6")
            I("s_cbranch_scc0 L_g1")
            ml_gate(th1)
            a.label("L_g1")
        if dd:
            I("s_mov_b32 s97, 0")
            a.label("L_dd")
        if pst != 3 or th1: I("s_barrier")
        TS(36)
        srd(TB, 44, 640 * 3456)
        I(f"s_lshl_b32 s{sT1}, s{sWAVE}, 1")
        I(f"s_add_u32 s{sT0}, s{sWAVE}, 2")
        I(f"s_cmp_lt_u32 s{sWAVE}, 4")
        I(f"s_cselect_b32 s{sT3}, s{sT1}, s{sT0}")
        I(f"s_cselect_b32 s{sRN}, 8, 4")
        I(f"s_mul_i32 s{sT1}, s{sT3}, {64*3456}")
        I(f"s_lshl_b32 s{sT0}, s{sTB}, 6")
        I(f"s_add_u32 s{sRB}, s{sT0}, s{sT1}")
        I(f"s_mov_b32 s{sRSTEP}, {16*3456}")
        I(f"s_lshl_b32 s{sYM}, s{sT3}, 12")
        I(f"s_add_u32 s{sYM}, s{sYM}, {L_ROLE}")
        I(f"v_lshrrev_b32 v{m0_}, 2, v{vLANE}")
        I(f"v_mul_u32_u24 v{m0_}, 3456, v{m0_}")
        I(f"v_and_b32 v{m1_}, 3, v{vLANE}")
        I(f"v_lshl_add_u32 v{vRDMA}, v{m1_}, 4, v{m0_}")
        def w1_dma():
            I(f"s_cmp_lt_u32 s{sWAVE}, 4")
            I("s_cbranch_scc0 L_m47")
            role_dma(sYM)
            I("s_branch L_mdd")
            a.label("L_m47")
            I(f"s_cmp_lt_u32 s{sWAVE}, 6")
            I("s_cbranch_scc1 L_m45")
            role_dma(sYM, 4)
            if wd: I("s_branch L_mdd")
            a.label("L_m45")
        if not wd: w1_dma()
        if wd:
            I(f"s_mul_i32 s{sT0}, s{sWAVE}, 5")
        else:
            I(f"s_mul_i32 s{sT0}, s{sWAVE}, 14")
            I(f"s_sub_u32 s{sT0}, s{sT0}, 56")
            I(f"s_min_u32 s{sT0}, s{sT0}, 34")
        I(f"s_mul_i32 s{sYM+1}, s{sTB}, {32*1280}")
        I(f"v_lshrrev_b32 v{m0_}, 3, v{vLANE}")
        I(f"v_mul_u32_u24 v{m2_}, 1280, v{m0_}")
        I(f"v_and_b32 v{m1_}, 7, v{vLANE}")
        I(f"v_lshlrev_b32 v{m1_}, 4, v{m1_}")
        I(f"v_bfe_u32 v{m0_}, v{vLANE}, 4, 1")
        I(f"v_lshlrev_b32 v{m0_}, 5, v{m0_}")
        I(f"v_xor_b32 v{m1_}, v{m1_}, v{m0_}")
        if wd:
            I(f"s_and_b32 s{sT1}, s{sT0}, 1")
            I(f"s_lshl_b32 s{sT1}, s{sT1}, 6")
            I(f"v_xor_b32 v{m1_}, s{sT1}, v{m1_}")
        I(f"v_xor_b32 v{m0_}, 64, v{m1_}")
        I(f"v_add_u32 v{m3_}, v{m2_}, v{m0_}")
        I(f"v_add_u32 v{m2_}, v{m2_}, v{m1_}")
        srd(TA, 48, 1728 * 1280)
        if the:
            I("s_cmp_eq_u32 s97, 1")
            I("s_cbranch_scc1 L_w2s")
        for e in range(0 if ew and not the else 5 if wd else 14):
            if e == 6:
                I(f"s_cmp_lt_u32 s{sWAVE}, 6")
                I("s_cbranch_scc0 L_mdd")
            I(f"s_lshl_b32 s{sT1}, s{sT0}, 10")
            I(f"s_add_u32 m0, s{sT1}, {L_W2}")
            I(f"s_and_b32 s{sT1}, s{sT0}, 3")
            I(f"s_mul_i32 s{sT1}, s{sT1}, {8*1280}")
            I(f"s_lshr_b32 s{sT2}, s{sT0}, 2")
            I(f"s_lshl_b32 s{sT2}, s{sT2}, 7")
            I(f"s_add_u32 s{sT1}, s{sT1}, s{sT2}")
            I(f"s_add_u32 s{sT1}, s{sT1}, s{sYM+1}")
            I(f"buffer_load_dwordx4 v{(m2_, m3_)[e & 1]}, {TA}, s{sT1} offen {rflags} lds")
            if e < 13: I(f"s_add_u32 s{sT0}, s{sT0}, 1")
        if the: a.label("L_w2s")
        if wd and wb: I("s_barrier")
        if wd: w1_dma()
        I(f"s_cmp_eq_u32 s{sWAVE}, 5")
        I("s_cbranch_scc0 L_mdd")
        srd(TA, 46, 1728 * 2)
        I(f"s_lshl_b32 s{sT0}, s{sTB}, 6")
        I(f"v_and_b32 v{T+4}, 31, v{vLANE}")
        I(f"v_lshlrev_b32 v{T+4}, 1, v{T+4}")
        I(f"v_mov_b32 v{vB1}, 0")
        I(f"buffer_load_short_d16_hi v{vB1}, v{T+4}, {TA}, s{sT0} offen")
        a.label("L_mdd")
        if dd:
            I("s_cmp_eq_u32 s97, 0")
            I("s_mov_b32 s97, 1")
            I("s_cbranch_scc0 L_dd2")
            I("s_waitcnt vmcnt(0)")
            I("s_branch L_dd")
            a.label("L_dd2")
        TS(25)
        u0, u1, u2 = T + 5, T + 6, T + 7
        I(f"s_mov_b32 s{sLB}, s{sYM}")
        I(f"s_lshl_b32 s{sT1}, s{sT3}, 1")
        rank_off(sT0, sT1, sT2)
        I(f"v_and_b32 v{u0}, 15, v{vLANE}")
        I(f"v_lshlrev_b32 v{u1}, 6, v{u0}")
        I(f"v_lshrrev_b32 v{u2}, 4, v{vLANE}")
        I(f"v_lshl_add_u32 v{u1}, v{u2}, 4, v{u1}")
        I(f"v_add_u32 v{vGZ}, s{sT0}, v{u1}")
        I(f"s_lshl_b32 s{sT0}, s{sTB}, 7")
        I(f"s_add_u32 s{sT0}, s{sT0}, {YOFF}")
        I(f"s_lshl_b32 s{sT1}, s{sWAVE}, 14")
        I(f"s_add_u32 s{sT1}, s{sT1}, s{sT0}")
        I(f"v_lshlrev_b32 v{vA2}, 2, v{vLANE}")
        I(f"v_add_u32 v{vA2}, s{sT1}, v{vA2}")
        I(f"s_lshr_b32 s{sT1}, s{sWAVE}, 1")
        I(f"s_add_u32 s{sT1}, s{sT1}, 6")
        I(f"s_sub_u32 s{sF2o}, s{sT1}, s{sWAVE}")
        I(f"s_lshl_b32 s{sF2o}, s{sF2o}, 12")
        I(f"s_lshl_b32 s{sT1}, s{sT1}, 14")
        I(f"s_add_u32 s{sT0}, s{sT0}, s{sT1}")
        I(f"s_and_b32 s{sF2x}, s{sWAVE}, 1")
        I(f"s_lshl_b32 s{sF2x}, s{sF2x}, 6")
        I(f"s_add_u32 s{sT0}, s{sT0}, s{sF2x}")
        I(f"s_cmp_lt_u32 s{sWAVE}, 4")
        I(f"s_cselect_b32 s{sT0}, {BIG:#x}, s{sT0}")
        setexec(0, 0xFFFF)
        I(f"v_lshl_add_u32 v{vA2}, v{u0}, 2, s{sT0}")
        setexec(0, 0xFFFF0000)
        I(f"v_mov_b32 v{vA2}, {BIG:#x}")
        setexec(0xFFFFFFFF, 0xFFFFFFFF)
        I(f"s_lshl_b32 s{sT0}, s{sWAVE}, 12")
        I(f"s_add_u32 s{sT0}, s{sT0}, {L_W2}")
        tr_addr(vA3, 128, sT0, u1)
        I(f"v_bfe_u32 v{u1}, v{vLANE}, 3, 1")
        I(f"v_bfe_u32 v{u2}, v{vLANE}, 4, 1")
        I(f"v_lshl_add_u32 v{u2}, v{u2}, 1, v{u1}")
        I(f"v_lshl_add_u32 v{vA3}, v{u2}, 5, v{vA3}")
        I(f"v_mul_u32_u24 v{u1}, 0xaaaa, v{u1}")
        I(f"v_or_b32 v{vSEL+5}, 0x4444, v{u1}")
        I(f"v_bfe_u32 v{u1}, v{vLANE}, 4, 1")
        I(f"v_and_b32 v{u2}, 2, v{vLANE}")
        I(f"v_lshlrev_b32 v{u2}, 3, v{u2}")
        I(f"v_lshl_add_u32 v{vA1}, v{u1}, 5, v{u2}")
        I(f"s_mul_i32 s{sT0}, s{sWAVE}, {PP}")
        I(f"v_lshrrev_b32 v{u2}, 5, v{vLANE}")
        I(f"v_lshlrev_b32 v{u2}, 7, v{u2}")
        I(f"v_lshl_add_u32 v{u2}, v{u0}, 3, v{u2}")
        I(f"v_lshl_add_u32 v{u2}, v{u1}, 2, v{u2}")
        I(f"v_add_u32 v{vPW}, s{sT0}, v{u2}")
        I("s_branch L_W1")

    if not m2:
        if instr: I(f"s_mov_b32 s{sNT}, s{sTB}")
        srd(TB, 44, 640 * 3456)
        I(f"s_mul_i32 s{sT1}, s{sWAVE}, {128*3456}")
        I(f"s_lshl_b32 s{sT0}, s{sTB}, 6")
        I(f"s_add_u32 s{sRB}, s{sT0}, s{sT1}")
        I(f"s_mov_b32 s{sRSTEP}, {16*3456}")
        I(f"s_mov_b32 s{sRN}, 8")
        I(f"v_lshrrev_b32 v{m0_}, 2, v{vLANE}")
        I(f"v_mul_u32_u24 v{m0_}, 3456, v{m0_}")
        I(f"v_and_b32 v{m1_}, 3, v{vLANE}")
        I(f"v_lshl_add_u32 v{vRDMA}, v{m1_}, 4, v{m0_}")
        I(f"s_add_u32 s{sT0}, s{sT0}, {YOFF}")
        if y128:
            I(f"s_lshl_b32 s{sT1}, s{sTB}, 6")
            I(f"s_add_u32 s{sT0}, s{sT0}, s{sT1}")
            I(f"s_lshl_b32 s{sT1}, s{sWAVE}, 14")
            I(f"s_add_u32 s{sT0}, s{sT0}, s{sT1}")
            I(f"v_bfe_u32 v{m0_}, v{vLANE}, 2, 2")
            I(f"v_lshlrev_b32 v{m0_}, 15, v{m0_}")
            I(f"v_and_b32 v{m1_}, 3, v{vLANE}")
            I(f"v_lshl_add_u32 v{m0_}, v{m1_}, 5, v{m0_}")
            I(f"v_lshrrev_b32 v{m1_}, 4, v{vLANE}")
            I(f"v_lshl_add_u32 v{m0_}, v{m1_}, 3, v{m0_}")
            I(f"v_add_u32 v{vA2}, s{sT0}, v{m0_}")
            I(f"s_lshl_b32 s{sT0}, s{sWAVE}, 12")
            I(f"s_add_u32 s{sT0}, s{sT0}, {L_W2}")
            tr_addr(vA3, 128, sT0, m0_)
            I(f"v_bfe_u32 v{m0_}, v{vLANE}, 3, 1")
            I(f"v_bfe_u32 v{m1_}, v{vLANE}, 4, 1")
            I(f"v_lshl_add_u32 v{m0_}, v{m1_}, 1, v{m0_}")
            I(f"v_lshl_add_u32 v{vA3}, v{m0_}, 5, v{vA3}")
            I(f"v_xor_b32 v{vA1}, 32, v{vA3}")
            I(f"v_xor_b32 v{vA0}, 64, v{vA3}")
            I(f"s_cmp_ge_u32 s{sWAVE}, 6")
            I(f"s_cselect_b32 s{sYM}, 255, 15")
            I(f"s_mul_i32 s{sYM}, s{sYM}, 0x10001")
            I(f"s_mov_b32 s{sYM+1}, s{sYM}")
        elif y64:
            I(f"s_and_b32 s{sT1}, s{sWAVE}, 1")
            I(f"s_lshl_b32 s{sT1}, s{sT1}, 12")
            I(f"s_add_u32 s{sT0}, s{sT0}, s{sT1}")
            I(f"s_lshr_b32 s{sT2}, s{sWAVE}, 1")
            I(f"s_lshl_b32 s{sT1}, s{sT2}, 14")
            I(f"s_add_u32 s{sT0}, s{sT0}, s{sT1}")
            I(f"v_bfe_u32 v{m0_}, v{vLANE}, 1, 3")
            I(f"v_lshlrev_b32 v{m0_}, 16, v{m0_}")
            I(f"v_and_b32 v{m1_}, 1, v{vLANE}")
            I(f"v_lshl_add_u32 v{m0_}, v{m1_}, 5, v{m0_}")
            I(f"v_lshrrev_b32 v{m1_}, 4, v{vLANE}")
            I(f"v_lshl_add_u32 v{m0_}, v{m1_}, 3, v{m0_}")
            I(f"v_add_u32 v{vA2}, s{sT0}, v{m0_}")
            I(f"s_lshl_b32 s{sT0}, s{sT2}, 12")
            I(f"s_add_u32 s{sT0}, s{sT0}, {L_W2}")
            tr_addr(vA3, 128, sT0, m0_)
            I(f"v_bfe_u32 v{m0_}, v{vLANE}, 3, 1")
            I(f"v_bfe_u32 v{m1_}, v{vLANE}, 4, 1")
            I(f"v_lshl_add_u32 v{m0_}, v{m1_}, 1, v{m0_}")
            I(f"s_and_b32 s{sT1}, s{sWAVE}, 1")
            I(f"s_lshl_b32 s{sT1}, s{sT1}, 1")
            I(f"v_xor_b32 v{m0_}, s{sT1}, v{m0_}")
            I(f"v_lshl_add_u32 v{vA3}, v{m0_}, 5, v{vA3}")
            I(f"v_xor_b32 v{vA1}, 32, v{vA3}")
            I(f"s_cmp_lt_u32 s{sWAVE}, 4")
            I(f"s_cselect_b32 s{sYM}, 63, 15")
            I(f"s_mul_i32 s{sYM}, s{sYM}, 0x10001")
            I(f"s_mov_b32 s{sYM+1}, s{sYM}")
        else:
            I(f"s_and_b32 s{sT1}, s{sWAVE}, 2")
            I(f"s_lshl_b32 s{sT1}, s{sT1}, 11")
            I(f"s_add_u32 s{sT0}, s{sT0}, s{sT1}")
            I(f"s_lshr_b32 s{sT2}, s{sWAVE}, 2")
            I(f"s_lshl_b32 s{sT1}, s{sT2}, 14")
            I(f"s_add_u32 s{sT0}, s{sT0}, s{sT1}")
            I(f"s_and_b32 s{sT1}, s{sWAVE}, 1")
            I(f"s_lshl_b32 s{sT1}, s{sT1}, 5")
            I(f"s_add_u32 s{sT0}, s{sT0}, s{sT1}")
            I(f"v_and_b32 v{m0_}, 15, v{vLANE}")
            I(f"v_lshlrev_b32 v{m0_}, 15, v{m0_}")
            I(f"v_lshrrev_b32 v{m1_}, 4, v{vLANE}")
            I(f"v_lshl_add_u32 v{m0_}, v{m1_}, 3, v{m0_}")
            I(f"v_add_u32 v{vA2}, s{sT0}, v{m0_}")
            I(f"s_lshl_b32 s{sT0}, s{sT2}, 12")
            I(f"s_add_u32 s{sT0}, s{sT0}, {L_W2}")
            tr_addr(vA3, 128, sT0, m0_)
            I(f"v_bfe_u32 v{m0_}, v{vLANE}, 3, 1")
            I(f"v_bfe_u32 v{m1_}, v{vLANE}, 4, 1")
            I(f"v_lshl_add_u32 v{m0_}, v{m1_}, 1, v{m0_}")
            I(f"s_and_b32 s{sT1}, s{sWAVE}, 3")
            I(f"v_xor_b32 v{m0_}, s{sT1}, v{m0_}")
            I(f"v_lshl_add_u32 v{vA3}, v{m0_}, 5, v{vA3}")
        if th1:
            I(f"s_cmp_eq_u32 s{sWAVE}, 6")
            I("s_cbranch_scc0 L_g1")
            ml_gate(th1)
            a.label("L_g1")
        if emd: I(f"s_waitcnt vmcnt({40 // emw})")
        I("s_barrier")
        I(f"s_cmp_ge_u32 s{sWAVE}, 5")
        I("s_cbranch_scc1 L_w2d")
        if not emd:
            role_dma()
            TS(25)
        I("s_branch L_W1")
        a.label("L_w2d")
        if th2 > th1:
            ml_gate(th2)
        if not emd:
            I(f"s_mul_i32 s{sT3}, s{sTB}, {32*1280}")
            I(f"s_sub_u32 s{sT0}, s{sWAVE}, 5")
            I(f"s_mul_i32 s{sT0}, s{sT0}, 13")
            I(f"v_lshrrev_b32 v{m0_}, 3, v{vLANE}")
            I(f"v_mul_u32_u24 v{m2_}, 1280, v{m0_}")
            I(f"v_and_b32 v{m1_}, 7, v{vLANE}")
            I(f"v_lshlrev_b32 v{m1_}, 4, v{m1_}")
            I(f"v_bfe_u32 v{m0_}, v{vLANE}, 4, 1")
            I(f"v_lshlrev_b32 v{m0_}, 5, v{m0_}")
            I(f"v_xor_b32 v{m1_}, v{m1_}, v{m0_}")
            I(f"s_and_b32 s{sT1}, s{sT0}, 1")
            I(f"s_lshl_b32 s{sT1}, s{sT1}, 6")
            I(f"v_xor_b32 v{m1_}, s{sT1}, v{m1_}")
            I(f"v_xor_b32 v{m0_}, 64, v{m1_}")
            I(f"v_add_u32 v{m3_}, v{m2_}, v{m0_}")
            I(f"v_add_u32 v{m2_}, v{m2_}, v{m1_}")
            srd(TA, 48, 1728 * 1280)
            for e in range(14):
                I(f"s_lshl_b32 s{sT1}, s{sT0}, 10")
                I(f"s_add_u32 m0, s{sT1}, {L_W2}")
                I(f"s_and_b32 s{sT1}, s{sT0}, 3")
                I(f"s_mul_i32 s{sT1}, s{sT1}, {8*1280}")
                I(f"s_lshr_b32 s{sT2}, s{sT0}, 2")
                I(f"s_lshl_b32 s{sT2}, s{sT2}, 7")
                I(f"s_add_u32 s{sT1}, s{sT1}, s{sT2}")
                I(f"s_add_u32 s{sT1}, s{sT1}, s{sT3}")
                I(f"buffer_load_dwordx4 v{(m2_, m3_)[e & 1]}, {TA}, s{sT1} offen {rflags} lds")
                if e < 13: I(f"s_add_u32 s{sT0}, s{sT0}, 1")
        srd(TA, 46, 1728 * 2)
        I(f"s_lshl_b32 s{sT0}, s{sTB}, 6")
        I(f"v_and_b32 v{m0_}, 31, v{vLANE}")
        I(f"v_lshlrev_b32 v{m0_}, 1, v{m0_}")
        I(f"v_mov_b32 v{vB1}, 0")
        I(f"buffer_load_short_d16_hi v{vB1}, v{m0_}, {TA}, s{sT0} offen")
        for b_ in HB5:
            for i in range(4):
                I(f"v_mov_b32 v{b_+i}, 0")
        TS(25)
        I("s_branch L_W1")

    def role_base():
        I(f"s_lshl_b32 s{sT0}, s{sWAVE}, 13")
        I(f"s_add_u32 s{sT0}, s{sT0}, {L_ROLE}")

    a.label("L_WO")
    if g1:
        if pth:
            I(f"s_cmp_eq_u32 s{sWAVE}, 6")
            I("s_cbranch_scc0 L_G1")
            I(f"s_cmp_eq_u32 s{sIT}, 0")
            I("s_cbranch_scc0 L_G1")
            ml_gate(pth)
            a.label("L_G1")
        if g1 == 2:
            I(f"s_cmp_eq_u32 s{sIT}, 0")
            I("s_cbranch_scc1 L_G1b")
            I("s_barrier")
            I("s_branch L_WO0")
            a.label("L_G1b")
        else:
            I("s_barrier")
    I(f"s_cmp_eq_u32 s{sIT}, 0")
    I("s_cbranch_scc0 L_WO0")
    role_base()
    tr_addr(T + 47, 64, sT0)
    I("s_waitcnt vmcnt(0)")
    for ks in range(2):
        for t in range(2):
            b = vRB + 4 * (ks * 2 + t)
            o = ks * 2048 + t * 32
            I(f"ds_read_b64_tr_b16 v[{b}:{b+1}], v{T+47} offset:{o}")
            I(f"ds_read_b64_tr_b16 v[{b+2}:{b+3}], v{T+47} offset:{o+256}")
    I("s_waitcnt lgkmcnt(0)")
    TS(15)
    a.label("L_WO0")
    I(f"s_cmp_eq_u32 s{sWAVE}, 5")
    I("s_cbranch_scc0 L_WO1")
    if q2 == 2:
        I(f"s_cmp_eq_u32 s{sIT}, 0")
        I("s_cbranch_scc1 L_WO2")
        I(f"buffer_load_ushort v{vXF}, v{vXFA}, {WS}, 0 offen sc1")
        a.label("L_WO2")
    I("s_waitcnt vmcnt(0)")
    I(f"v_lshlrev_b32 v{vXF}, 16, v{vXF}")
    a.label("L_WO1")
    A0, Ma, La = T + 44, T + 48, T + 49
    Dw = [[T + 8, T + 12], [T + 16, T + 20]]
    wMX, wE, wT, wL2E, wR0, wR1 = [T + 24 + i for i in range(6)]
    I(f"v_mov_b32 v{wL2E}, s{sL2E}")
    zfa = T + 41
    if zh >= 3:
        I(f"v_lshl_add_u32 v{zfa}, v{vLANE}, 13, s34")
        def zst3():
            I("s_mov_b64 exec, s[96:97]")
            I(f"buffer_store_dword v{wL2E}, v{zfa}, {WS}, s{sREG} offen sc1")
            I("s_mov_b64 exec, -1")
    elif zh:
        I(f"s_lshl_b32 s{sT0}, s{sR}, 10")
        I(f"s_lshl_b32 s{sT1}, s{sX}, 7")
        I(f"s_add_u32 s{sT0}, s{sT0}, s{sT1}")
        I(f"s_add_u32 s{sT0}, s{sT0}, {ZOFF + 0x4800}")
        I(f"s_cmp_lt_u32 s{sR}, 6")
        I(f"s_cselect_b32 s{sT0}, s{sT0}, {BIG:#x}")
        I(f"s_and_b32 s{sT1}, s{sX}, 3")
        I(f"s_lshl_b32 s{sT1}, s{sT1}, 1")
        I(f"s_cmp_eq_u32 s{sT1}, s{sWAVE}")
        I(f"s_cselect_b32 s{sT0}, s{sT0}, {BIG:#x}")
        I(f"v_lshlrev_b32 v{zfa}, 13, v{vLANE}")
        I(f"v_add_u32 v{zfa}, s{sT0}, v{zfa}")
        I(f"v_mov_b32 v{zfa+1}, {BIG:#x}")
        I(f"v_cmp_gt_u32 vcc, 2, v{vLANE}")
        I(f"v_cndmask_b32 v{zfa}, v{zfa+1}, v{zfa}, vcc")
        zst = f"buffer_store_dword v{wL2E}, v{zfa}, {WS}, s{sREG} offen sc1"
    if pl == 1:
        light(f"buffer_load_dword v{Ma}, v{vA2}, {WS}, s{sREG} offen sc1", Ma)
    if pl == 2:
        light(f"buffer_load_dword v{A0}, v{vA0}, {WS}, s{sREG} offen sc1", A0, (0xFF, 0))
    poll([f"buffer_load_dwordx4 {vr(A0)}, v{vA0}, {WS}, s{sREG} offen sc1",
          f"buffer_load_dwordx2 v[{Ma}:{La}], v{vA2}, {WS}, s{sREG} offen sc1"], list(range(A0, A0 + 6)),
         groups=[range(A0, A0 + 4), range(A0 + 4, A0 + 6)], hop=1)
    TS(16)
    seq = [
        f"v_max_f32_dpp v{wMX}, v{Ma}, v{Ma} quad_perm:[1,0,3,2] row_mask:0xf bank_mask:0xf",
        f"v_max_f32_dpp v{wMX}, v{wMX}, v{wMX} quad_perm:[2,3,0,1] row_mask:0xf bank_mask:0xf",
        f"v_max_f32_dpp v{wMX}, v{wMX}, v{wMX} row_half_mirror row_mask:0xf bank_mask:0xf",
        f"v_sub_f32 v{wE}, v{Ma}, v{wMX}",
    ]
    k = 0
    for t in range(2):
        for ks in range(2):
            I(f"v_mfma_f32_16x16x32_bf16 {vr(Dw[t][ks])}, {vr(A0)}, {vr(vRB+4*(ks*2+t))}, 0")
            if zh == 1 and k == 0: I(zst)
            if zh == 3 and k == 0: zst3()
            I(seq[k]); k += 1
    I(f"v_mul_f32 v{wE}, v{wE}, v{wL2E}")
    I(f"v_exp_f32 v{wE}, v{wE}")
    I(f"v_mul_f32 v{wT}, v{wE}, v{La}")
    mrg = [f"v_mov_b32_dpp v{Dw[t][0]+i}, v{Dw[t][1]+i} quad_perm:[0,1,2,3] row_mask:0xc bank_mask:0xf"
           for t in range(2) for i in range(4)]
    I(mrg[0]); I(mrg[1])
    I(f"v_add_f32_dpp v{wT}, v{wT}, v{wT} quad_perm:[1,0,3,2] row_mask:0xf bank_mask:0xf")
    I(mrg[2]); I(mrg[3])
    I(f"v_add_f32_dpp v{wT}, v{wT}, v{wT} quad_perm:[2,3,0,1] row_mask:0xf bank_mask:0xf")
    I(f"v_mov_b32_dpp v{wE}, v{wE} row_ror:4 row_mask:0xf bank_mask:0xa")
    I(mrg[4])
    I(f"v_add_f32_dpp v{wT}, v{wT}, v{wT} row_half_mirror row_mask:0xf bank_mask:0xf")
    I(mrg[5])
    I(f"v_rcp_f32 v{wT}, v{wT}")
    I(mrg[6]); I(mrg[7])
    for i in range(4):
        for t in range(2):
            D = Dw[t][0]; R = (wR0, wR1)[t]
            op = "v_mul_f32_dpp" if i == 0 else "v_fmac_f32_dpp"
            I(f"{op} v{R}, v{wE}, v{D+i} quad_perm:[{i},{i},{i},{i}] row_mask:0xf bank_mask:0xf")
    I(f"v_mul_f32 v{wR0}, v{wR0}, v{wT}")
    I(f"v_mul_f32 v{wR1}, v{wR1}, v{wT}")
    I(f"ds_write_b32 v{vPW}, v{wR0} offset:{L_PB2}")
    I(f"ds_write_b32 v{vPW}, v{wR1} offset:{L_PB2+256}")
    if zh == 2: I(zst)
    if zh == 4: zst3()
    I("s_waitcnt lgkmcnt(0)")
    I("s_barrier")
    I(f"s_cmp_eq_u32 s{sWAVE}, 5")
    I("s_cbranch_scc0 L_next")
    if p5 & 2: I("s_setprio 3")
    TS(17)
    reduce_read(8, L_PB2)
    I("s_waitcnt lgkmcnt(0)")
    I(f"v_add_f32 v{T+30}, v{T+30}, v{vXF}")
    reduce_sum(8, rTOT)
    pack_pairs(rTOT, rU)
    I(f"v_mov_b32 v{T}, v{rU}")
    I(f"v_mov_b32_dpp v{T+1}, v{rU} quad_perm:[2,2,2,2] row_mask:0xf bank_mask:0xf")
    I(f"v_mov_b32_dpp v{T+2}, v{rU} row_shl:4 row_mask:0xf bank_mask:0xf")
    I(f"v_mov_b32_dpp v{T+3}, v{rU} row_shl:6 row_mask:0xf bank_mask:0xf")
    setexec(0x01010101, 0)
    I(f"buffer_store_dwordx4 {vr(T)}, v{vRP}, {WS}, s{sREG} offen sc1")
    if dual:
        I(f"buffer_store_dwordx4 {vr(T)}, v{vRP}, {WS}, s{sREG2} offen sc1")
    setexec(0xFFFFFFFF, 0xFFFFFFFF)
    TS(18)
    if p5 & 2: I("s_setprio 0")
    I("s_branch L_next")

    if m2:
        D0, D1, S1, S2, HB, D2 = T, T + 4, T + 8, T + 12, T + 16, T + 44
        IDW = vSEL + 5
        def it0(fn):
            l = a.newlab("Li")
            I(f"s_cmp_eq_u32 s{sIT}, 0")
            I(f"s_cbranch_scc0 {l}")
            fn()
            a.label(l)
        def w2_frags(nb, x0):
            for e in range(2 * nb):
                b = (F0, F0 + 4, F1, F1 + 4, F2, F2 + 4)[e]
                va = vA3
                if e:
                    va = x0 + (e & 1)
                    if e < 4: I(f"v_xor_b32 v{va}, {32*e}, v{vA3}")
                    elif e == 4:
                        I(f"v_xor_b32 v{va}, s{sF2x}, v{vA3}")
                        I(f"v_add_u32 v{va}, s{sF2o}, v{va}")
                    else: I(f"v_xor_b32 v{va}, 32, v{x0}")
                I(f"ds_read_b64_tr_b16 v[{b}:{b+1}], v{va}")
                I(f"ds_read_b64_tr_b16 v[{b+2}:{b+3}], v{va} offset:512")
        def w2_tail(nb):
            I("s_barrier")
            setexec(0x00050005, 0x000A000A)
            for e in range(nb):
                I(f"ds_read_b128 {vr(HB+4*e)}, v{vA1} offset:{L_H}")
                I("s_lshl_b64 exec, exec, 4" if e < nb - 1 else "s_mov_b64 exec, -1")
            TS(23)
            for e in range(nb):
                I(f"s_waitcnt lgkmcnt({nb-1-e})")
                I(f"v_smfmac_f32_16x16x64_bf16 {vr(D2)}, {vr(HB+4*e)}, {vr((F0, F1, F2)[e], 8)}, v{IDX}")
            I(f"v_pk_add_f32 v[{D2}:{D2+1}], v[{D2}:{D2+1}], v[{D2+2}:{D2+3}]")
            I(f"v_cvt_pk_bf16_f32 v{D2}, v{D2}, v{D2+1}")
            I(f"v_min_u32 v{D2}, 0xfffffffe, v{D2}")
            I(f"buffer_store_dword v{D2}, v{vA2}, {WS}, s{sREG} offen sc1")
            I(f"buffer_store_dword v{D2}, v{vA2}, {WS}, s{sREG2} offen sc1")
            TS(24)
            I("s_branch L_next")
        def zero(rs):
            for r_ in rs: I(f"v_mov_b32 v{r_}, 0")
        def gwave(ns, nb):
            lab = a.newlab("Lgw")
            ones()
            I(f"s_cmp_eq_u32 s{sIT}, 0")
            I(f"s_cbranch_scc0 {lab}a")
            x0, x1 = T + 46, T + 47
            I(f"v_bfe_u32 v{x0}, v{vLANE}, 3, 1")
            I(f"v_lshlrev_b32 v{x0}, 5, v{x0}")
            I(f"v_bfe_u32 v{x1}, v{vLANE}, 2, 1")
            I(f"v_add_u32 v{x0}, v{x0}, v{x1}")
            I(f"v_lshrrev_b32 v{x1}, 4, v{vLANE}")
            I(f"v_lshl_add_u32 v{x0}, v{x1}, 2, v{x0}")
            I(f"v_lshlrev_b32 v{x0}, 6, v{x0}")
            I(f"v_and_b32 v{x1}, 3, v{vLANE}")
            I(f"v_lshl_add_u32 v{x0}, v{x1}, 3, v{x0}")
            I(f"v_add_u32 v{x0}, s{sLB}, v{x0}")
            I(f"s_lshl_b32 s{sT0}, s{sWAVE}, 7")
            I(f"v_and_b32 v{x1}, 15, v{vLANE}")
            I(f"v_lshlrev_b32 v{x1}, 2, v{x1}")
            I(f"v_add_u32 v{x1}, s{sT0}, v{x1}")
            I(f"s_waitcnt vmcnt({0 if ns == 2 or wd else 6})")
            for sg in range(ns):
                for t in range(2):
                    for qd in range(2):
                        for jj in range(2):
                            b = vRB + 16 * sg + 8 * t + 4 * qd + 2 * jj
                            I(f"ds_read_b64_tr_b16 v[{b}:{b+1}], v{x0} offset:{sg*4096 + qd*1024 + jj*128 + t*32}")
                I("s_waitcnt lgkmcnt(0)")
            for t in range(2):
                for k_ in range(2 * ns):
                    b = vRB + 16 * (k_ >> 1) + 8 * t + 4 * (k_ & 1)
                    I(f"v_mfma_f32_16x16x32_bf16 {vr(T+4*t)}, {vr(ONES)}, {vr(b)}, {'0' if k_ == 0 else vr(T+4*t)}")
            I(f"ds_write_b32 v{x1}, v{T} offset:{L_CS}")
            I(f"ds_write_b32 v{x1}, v{T+4} offset:{L_CS+64}")
            TS(15)
            if wd == 2:
                I("s_waitcnt lgkmcnt(0)")
                I("s_barrier")
            else:
                I(f"s_branch {lab}b")
            a.label(lab + "a")
            w2_frags(nb, T + 50)
            a.label(lab + "b")
            zero(list(range(D0, D0 + 12)) + list(range(HB, HB + 4 * nb)) + list(range(D2, D2 + 4)) + (list(range(XA + 4, XA + 8)) if ns == 1 else []))
            I(f"s_add_u32 s{sT1}, s{sREG}, {ZOFF}")
            I(f"s_add_u32 s{sT1}, s{sT1}, s{sNEAR}")
            I(f"s_mov_b32 s{sF}, 0x00ff00ff")
            I(f"s_mov_b32 s{sF+1}, 0xff00ff00")
            if yh >= 20 and ns == 1:
                yfa = T + 49
                I(f"s_mul_i32 s{sT0}, s{sTB}, 205")
                I(f"s_lshr_b32 s{sT0}, s{sT0}, 11")
                I(f"s_mul_i32 s{sT2}, s{sT0}, 10")
                I(f"s_sub_u32 s{sT2}, s{sTB}, s{sT2}")
                I(f"s_lshl_b32 s{sT2}, s{sT2}, 14")
                I(f"s_lshl_b32 s{sT0}, s{sT0}, 7")
                I(f"s_add_u32 s{sT0}, s{sT0}, s{sT2}")
                I(f"s_add_u32 s{sT0}, s{sT0}, {YOFF + 56*128}")
                I(f"s_cmp_eq_u32 s{sWAVE}, 7")
                I(f"s_cselect_b32 s{sT0}, s{sT0}, {BIG:#x}")
                I(f"v_lshlrev_b32 v{yfa}, 13, v{vLANE}")
                I(f"v_add_u32 v{yfa}, s{sT0}, v{yfa}")
                I(f"v_mov_b32 v{XA}, {BIG:#x}")
                I(f"v_cmp_gt_u32 vcc, 2, v{vLANE}")
                I(f"v_cndmask_b32 v{yfa}, v{XA}, v{yfa}, vcc")
                yst = f"buffer_store_dword v{yfa}, v{yfa}, {WS}, s{sREG} offen sc1"
            if zh:
                I(f"v_lshlrev_b32 v{XA+1}, 7, v{vLANE}")
                I(f"s_lshl_b32 s{sT0}, s{sWAVE}, 10")
                I(f"s_add_u32 s{sT0}, s{sT0}, s{sT1}")
                I(f"s_add_u32 s{sT0}, s{sT0}, {0x4800 if ns == 2 else 0x4000}")
                light_all(f"buffer_load_dword v{XA}, v{XA+1}, {WS}, s{sT0} offen sc1", XA, (zhm, 0))
            elif zl:
                light(f"buffer_load_dword v{XA}, v{vGZ}, {WS}, s{sT1} offen sc1", XA, (zl, 0))
            poll([f"buffer_load_dwordx4 {vr(XA+4*k_)}, v{vGZ}, {WS}, s{sT1} offen offset:{2*ZR*k_} sc1" for k_ in range(ns)],
                 [XA + 4 * k_ for k_ in range(ns)], groups=[[XA + 4 * k_] for k_ in range(ns)], hop=2)
            TS(19)
            for k_ in range(ns):
                I(f"v_mfma_f32_16x16x32_bf16 {vr(S2)}, {vr(XA+4*k_)}, {vr(XA+4*k_)}, {vr(S2) if k_ else '0'}")
            I(f"v_smfmac_f32_16x16x64_bf16 {vr(S1)}, {vr(ONES)}, {vr(XA, 8)}, v{IDW}")
            if yh == 20 and ns == 1: I(yst)
            st = [f"v_pk_add_f32 v[{S2}:{S2+1}], v[{S2}:{S2+1}], v[{S2+2}:{S2+3}]",
                  f"v_add_f32 v{S2}, v{S2}, v{S2+1}",
                  f"v_cndmask_b32 v{S1+1}, 0, v{S2}, s[{sF}:{sF+1}]"]
            for m_ in ("quad_perm:[1,0,3,2]", "quad_perm:[2,3,0,1]", "row_half_mirror", "row_mirror"):
                st += [f"v_add_f32_dpp v{S1}, v{S1}, v{S1} {m_} {DPF}", f"v_add_f32_dpp v{S1+1}, v{S1+1}, v{S1+1} {m_} {DPF}"]
            st += [f"v_add_f32_dpp v{S1+1}, v{S1+1}, v{S1+1} row_bcast:15 row_mask:0xa bank_mask:0xf",
                   f"v_add_f32_dpp v{S1}, v{S1}, v{S1} row_bcast:31 row_mask:0xc bank_mask:0xf",
                   f"v_add_f32_dpp v{S1+1}, v{S1+1}, v{S1+1} row_bcast:31 row_mask:0xc bank_mask:0xf"]
            for k_ in range(ns):
                for t in range(2):
                    I(f"v_smfmac_f32_16x16x64_bf16 {vr(D0+4*t)}, {vr(XA+4*k_)}, {vr(vRB+16*k_+8*t, 8)}, v{IDW}")
                    if ns == 2 and k_ == 1 and t == 0:
                        I(st.pop(0)); I(st.pop(0))
            dp = [f"v_pk_add_f32 v[{D0}:{D0+1}], v[{D0}:{D0+1}], v[{D0+2}:{D0+3}]",
                  f"v_pk_add_f32 v[{D1}:{D1+1}], v[{D1}:{D1+1}], v[{D1+2}:{D1+3}]",
                  f"v_add_f32 v{D0}, v{D0}, v{D0+1}",
                  f"v_add_f32 v{D1}, v{D1}, v{D1+1}",
                  f"v_permlane32_swap_b32 v{D0}, v{D1}",
                  f"v_add_f32 v{D0}, v{D0}, v{D1}",
                  f"ds_write_b32 v{vPW}, v{D0} offset:{L_PB1}"]
            n1 = 5 if ns == 2 else 7
            for x_ in st[:n1]: I(x_)
            st = st[n1:]
            while st or dp:
                if dp: I(dp.pop(0))
                if st: I(st.pop(0))
            setexec(0, 0x80000000)
            I(f"ds_write_b64 v{vPW}, v[{S1}:{S1+1}] offset:{L_PB1 + 260}")
            setexec(0xFFFFFFFF, 0xFFFFFFFF)
            if yh == 21 and ns == 1: I(yst)
            I("s_waitcnt lgkmcnt(0)")
            TS(20)
            I("s_barrier")
            if wd != 2: it0(lambda: (w2_frags(nb, T + 50), I("s_waitcnt lgkmcnt(0)")))
            w2_tail(nb)
        a.label("L_W1")
        I(f"s_cmp_lt_u32 s{sWAVE}, 4")
        I("s_cbranch_scc0 L_W4")
        gwave(2, 2)
        a.label("L_W4")
        I(f"s_cmp_lt_u32 s{sWAVE}, 6")
        I("s_cbranch_scc1 L_W45")
        gwave(1, 3)
        a.label("L_W45")
        zero(list(range(HB, HB + 12)) + list(range(D2, D2 + 4)))
        I(f"s_cmp_eq_u32 s{sWAVE}, 5")
        I("s_cbranch_scc1 L_W5")
        I("s_waitcnt vmcnt(0)")
        TS(37)
        if wd == 2:
            it0(lambda: I("s_barrier"))
            w2_frags(3, T + 50)
            if 0 < yh < 20:
                I(f"s_mul_i32 s{sT0}, s{sTB}, 205")
                I(f"s_lshr_b32 s{sT0}, s{sT0}, 11")
                I(f"s_mul_i32 s{sT1}, s{sT0}, 10")
                I(f"s_sub_u32 s{sT1}, s{sTB}, s{sT1}")
                I(f"s_lshl_b32 s{sT1}, s{sT1}, 14")
                I(f"s_lshl_b32 s{sT0}, s{sT0}, 7")
                I(f"s_add_u32 s{sT0}, s{sT0}, s{sT1}")
                I(f"s_add_u32 s{sT0}, s{sT0}, s{sREG}")
                I(f"s_add_u32 s{sT0}, s{sT0}, {YOFF + 56*128}")
                I(f"v_lshlrev_b32 v{T+49}, 13, v{vLANE}")
                setexec(3, 0)
            I("s_waitcnt lgkmcnt(0)")
            I("s_barrier")
            if 0 < yh < 20:
                for _ in range(yh - 1): I("s_nop 15")
                I(f"buffer_store_dword v{T+49}, v{T+49}, {WS}, s{sT0} offen sc1")
                setexec(0xFFFFFFFF, 0xFFFFFFFF)
        else:
            I("s_barrier")
            w2_frags(3, T + 50)
            I("s_waitcnt lgkmcnt(0)")
        I("s_branch L_W1t")
        a.label("L_W5")
        EPS = 1e-5
        ra, rz, rh, rK, rE, rc = T + 48, T + 49, T + 40, T + 32, T + 34, T + 28
        SB, CB = vRB, vRB + 12
        I(f"v_mov_b32 v{rK}, {f2u(math.sqrt(1 + EPS) / 640):#x}")
        I(f"v_mov_b32 v{rK+1}, {f2u((1 + EPS) / 640):#x}")
        I(f"v_mov_b32 v{rE}, 0")
        I(f"v_mov_b32 v{rE+1}, {f2u(EPS * EPS):#x}")
        I(f"v_mov_b32 v{rC1}, {f2u(GC1):#x}")
        I(f"v_mov_b32 v{rC2}, {f2u(GC2):#x}")
        I(f"v_lshlrev_b32 v{ra}, 3, v{vLANE}")
        I(f"v_lshlrev_b32 v{rc}, 2, v{vLANE}")
        I(f"v_mov_b32 v{rz}, 0")
        I(f"v_and_b32 v{rh}, 17, v{vLANE}")
        I(f"v_and_b32 v{rT}, 2, v{vLANE}")
        I(f"v_lshl_add_u32 v{rh}, v{rT}, 2, v{rh}")
        I(f"v_bfe_u32 v{rT}, v{vLANE}, 2, 2")
        I(f"v_lshl_add_u32 v{rh}, v{rT}, 1, v{rh}")
        I(f"v_lshlrev_b32 v{rh}, 1, v{rh}")
        I("s_waitcnt vmcnt(0)")
        GW = (0, 1, 2, 3, 6, 7)
        def cs0():
            for i, v in enumerate(GW):
                I(f"ds_read_b32 v{CB+i}, v{rc} offset:{L_CS + v*128}")
            I("s_waitcnt lgkmcnt(0)")
            if wd != 2: w2_frags(3, T + 50)
            I(f"v_pk_add_f32 v[{CB}:{CB+1}], v[{CB}:{CB+1}], v[{CB+2}:{CB+3}]")
            I(f"v_pk_add_f32 v[{CB}:{CB+1}], v[{CB}:{CB+1}], v[{CB+4}:{CB+5}]")
            I(f"v_add_f32 v{CB}, v{CB}, v{CB+1}")
            I(f"v_mul_f32 v{vCS1}, {f2u(1 / math.sqrt(1 + EPS)):#x}, v{CB}")
        if wd == 2:
            it0(lambda: (I("s_barrier"), cs0()))
        else:
            I(f"s_cmp_eq_u32 s{sIT}, 0")
            I("s_cbranch_scc1 L_W5a")
        w2_frags(3, T + 50)
        I("s_waitcnt lgkmcnt(0)")
        a.label("L_W5a")
        if p5 & 4: I("s_setprio 3")
        I("s_barrier")
        TS(21)
        for i, v in enumerate(GW):
            I(f"ds_read_b64 v[{SB+2*i}:{SB+2*i+1}], v{rz} offset:{L_PB1 + 512 + v*PP}")
        for i, v in enumerate(GW):
            I(f"ds_read_b64 v[{T+2*i}:{T+2*i+1}], v{ra} offset:{L_PB1 + v*PP}")
        def sum6(b):
            return [f"v_pk_add_f32 v[{b+2*d_}:{b+2*d_+1}], v[{b+2*d_}:{b+2*d_+1}], v[{b+2*s_}:{b+2*s_+1}]" for d_, s_ in ((0, 1), (2, 3), (4, 5), (0, 2), (0, 4))]
        I("s_waitcnt lgkmcnt(6)")
        for x_ in sum6(SB): I(x_)
        I(f"v_pk_fma_f32 v[{SB}:{SB+1}], v[{SB}:{SB+1}], v[{rK}:{rK+1}], v[{rE}:{rE+1}]")
        I(f"v_fma_f32 v{rR}, -v{SB}, v{SB}, v{SB+1}")
        I(f"v_max_f32 v{rR}, v{rR}, v{rE+1}")
        I(f"v_rsq_f32 v{rR}, v{rR}")
        I("s_waitcnt lgkmcnt(0)")
        if wd != 2: it0(cs0)
        for x_ in sum6(T): I(x_)
        I(f"v_fma_f32 v{T+1}, -v{SB}, v{vCS1}, v{T+1}")
        I(f"v_add_f32 v{T}, v{T}, v{T+1}")
        I(f"v_fma_f32 v{rU}, v{T}, v{rR}, v{vB1}")
        I(f"v_mul_f32 v{rT}, v{rU}, v{rU}")
        I(f"v_fma_f32 v{rT}, v{rT}, v{rC2}, v{rC1}")
        I(f"v_mul_f32 v{rT}, v{rT}, v{rU}")
        I(f"v_exp_f32 v{rT}, v{rT}")
        I(f"v_add_f32 v{rT}, 1.0, v{rT}")
        I(f"v_rcp_f32 v{rT}, v{rT}")
        setexec(0xFFFFFFFF, 0)
        I(f"v_mul_f32 v{rU}, v{rU}, v{rT}")
        I(f"v_cvt_pk_bf16_f32 v{rU}, v{rU}, v{rU}")
        I(f"ds_write_b16 v{rh}, v{rU} offset:{L_H}")
        setexec(0xFFFFFFFF, 0xFFFFFFFF)
        TS(22)
        if p5 & 4: I("s_setprio 0")
        I("s_waitcnt lgkmcnt(0)")
        a.label("L_W1t")
        w2_tail(3)

    if not m2:
        ha = T + 48
        def w2_frags(FR, wait=True):
            for e in range(len(FR)):
                va, o = (vA3, e * 8192) if not y64 else ((vA3, vA1)[e & 1], (e >> 1) * 16384)
                if y128: va, o = (vA3, vA1, vA0, T + 51)[e & 3], (e >> 2) * 8192
                if y128 and e == 0: I(f"v_xor_b32 v{T+51}, 96, v{vA3}")
                if e == 4 and len(FR) == 8: I("s_waitcnt lgkmcnt(0)")
                I(f"ds_read_b64_tr_b16 v[{FR[e]}:{FR[e]+1}], v{va} offset:{o}")
                I(f"ds_read_b64_tr_b16 v[{FR[e]+2}:{FR[e]+3}], v{va} offset:{o+512}")
            if wait: I("s_waitcnt lgkmcnt(0)")
        def w2_tail(FR, HB, D2):
            ne = len(FR)
            I("s_barrier")
            setexec(0x00010001, 0x00010001)
            for e in range(ne):
                I(f"ds_read_b128 {vr(HB[e])}, v{ha} offset:{L_H}")
                I("s_lshl_b64 exec, exec, 1" if e < ne - 1 else "s_mov_b64 exec, -1")
            TS(23)
            for e in range(ne):
                if ne == 6 and e == 4:
                    I(f"s_cmp_lt_u32 s{sWAVE}, 4")
                    I("s_cbranch_scc0 L_w24")
                if ne == 8 and e == 4:
                    I(f"s_cmp_ge_u32 s{sWAVE}, 6")
                    I("s_cbranch_scc0 L_w24")
                I(f"s_waitcnt lgkmcnt({ne-1-e})")
                I(f"v_mfma_f32_16x16x32_bf16 {vr(D2)}, {vr(FR[e])}, {vr(HB[e])}, {vr(D2) if e else '0'}")
            if ne >= 6: a.label("L_w24")
            if y64: I(f"s_mov_b64 exec, s[{sYM}:{sYM+1}]")
            else: setexec(0x001F001F, 0x001F001F)
            I(f"v_cvt_pk_bf16_f32 v{D2}, v{D2}, v{D2+1}")
            I(f"v_cvt_pk_bf16_f32 v{D2+1}, v{D2+2}, v{D2+3}")
            I(f"v_min_u32 v{D2}, 0xfffffffe, v{D2}")
            I(f"v_min_u32 v{D2+1}, 0xfffffffe, v{D2+1}")
            I(f"buffer_store_dwordx2 v[{D2}:{D2+1}], v{vA2}, {WS}, s{sREG} offen sc1")
            if dual:
                I(f"buffer_store_dwordx2 v[{D2}:{D2+1}], v{vA2}, {WS}, s{sREG2} offen sc1")
            setexec(0xFFFFFFFF, 0xFFFFFFFF)
            if ne >= 6: I("s_waitcnt lgkmcnt(0)")
            TS(24)
            I("s_branch L_next")
        FR04 = [28, 32, 36, 40, T + 40] + ([T + 24] if y64 else [])
        FR5 = [vRB + 4 * e for e in range(4 if y64 else 5)]
        if y128:
            FR04 = FR04[:4]
            FR5 = [vRB + 4 * e for e in range(8)]
            HB5 = [28, 32, 36, 40, T, T + 4, T + 8, T + 12]
        HB04 = [T + 4 * e for e in range(len(FR04))]
        def it0(fn):
            l = a.newlab("Li")
            I(f"s_cmp_eq_u32 s{sIT}, 0")
            I(f"s_cbranch_scc0 {l}")
            fn()
            a.label(l)
        a.label("L_W1")
        I(f"s_cmp_ge_u32 s{sWAVE}, 5")
        I("s_cbranch_scc1 L_W1h")
        ones()
        I(f"s_cmp_eq_u32 s{sIT}, 0")
        I("s_cbranch_scc0 L_W11")
        role_base()
        tr_addr(T + 47, 64, sT0)
        I(f"s_lshl_b32 s{sT0}, s{sWAVE}, 7")
        I(f"v_and_b32 v{T+46}, 15, v{vLANE}")
        I(f"v_lshlrev_b32 v{T+46}, 2, v{T+46}")
        I(f"v_add_u32 v{T+46}, s{sT0}, v{T+46}")
        if not emd: I("s_waitcnt vmcnt(0)")
        for ks in range(4):
            for t in range(2):
                b = vRB + 4 * (ks * 2 + t)
                o = ks * 2048 + t * 32
                I(f"ds_read_b64_tr_b16 v[{b}:{b+1}], v{T+47} offset:{o}")
                I(f"ds_read_b64_tr_b16 v[{b+2}:{b+3}], v{T+47} offset:{o+256}")
            if ks == 1:
                I("s_waitcnt lgkmcnt(0)")
        I("s_waitcnt lgkmcnt(0)")
        for t in range(2):
            for ks in range(4):
                I(f"v_mfma_f32_16x16x32_bf16 {vr(T+4*t)}, {vr(ONES)}, {vr(vRB+4*(ks*2+t))}, {'0' if ks == 0 else vr(T+4*t)}")
        I(f"ds_write_b32 v{T+46}, v{T} offset:{L_CS2}")
        I(f"ds_write_b32 v{T+46}, v{T+4} offset:{L_CS2+64}")
        TS(15)
        I("s_branch L_W12")
        a.label("L_W11")
        w2_frags(FR04)
        a.label("L_W12")
        if g2: I("s_barrier")
        I(f"s_add_u32 s{sT1}, s{sREG}, {ZOFF}")
        I(f"s_add_u32 s{sT1}, s{sT1}, s{sNEAR}")
        gather(sT1)
        TS(19)
        gemv(2, vRB, lambda ks, t: ks * 2 + t)
        TS(20)
        I("s_barrier")
        I(f"v_lshrrev_b32 v{ha}, 4, v{vLANE}")
        I(f"v_lshlrev_b32 v{ha}, 4, v{ha}")
        for i in range(4 * len(FR04)):
            I(f"v_mov_b32 v{T+i}, 0")
        it0(lambda: w2_frags(FR04))
        w2_tail(FR04, HB04, T + 44)
        a.label("L_W1h")
        if g2:
            I(f"s_cmp_eq_u32 s{sWAVE}, 6")
            I("s_cbranch_scc0 L_G2")
            ml_gate(g2)
            a.label("L_G2")
            I("s_barrier")
        I(f"v_mov_b32 v{rINV}, {f2u(1.0/640):#x}")
        I(f"v_mov_b32 v{rC1}, {f2u(GC1):#x}")
        I(f"v_mov_b32 v{rC2}, {f2u(GC2):#x}")
        I(f"v_lshrrev_b32 v{ha}, 4, v{vLANE}")
        I(f"v_lshlrev_b32 v{ha}, 4, v{ha}")
        I(f"v_lshlrev_b32 v{ha+1}, 1, v{vLANE}")
        I(f"v_lshlrev_b32 v{ha+2}, 2, v{vLANE}")
        I("s_waitcnt vmcnt(0)")
        I("s_barrier")
        I(f"s_cmp_eq_u32 s{sWAVE}, 5")
        I("s_cbranch_scc1 L_W1r")
        for b_ in HB5:
            for i in range(4):
                I(f"v_mov_b32 v{b_+i}, 0")
        it0(lambda: w2_frags(FR5))
        I("s_branch L_W1t")
        a.label("L_W1r")
        TS(21)
        reduce_read(5, L_PB1)
        for v in range(5):
            I(f"ds_read_b32 v{T+24+v}, v{ha+2} offset:{L_CS2 + v*128}")
        I("s_waitcnt lgkmcnt(5)")
        reduce_sum(5, rTOT)
        stats()
        I("s_waitcnt lgkmcnt(0)")
        it0(lambda: w2_frags(FR5[:4] if y128 else FR5, False))
        I(f"v_add_f32 v{T+24}, v{T+24}, v{T+25}")
        I(f"v_add_f32 v{T+26}, v{T+26}, v{T+27}")
        I(f"v_add_f32 v{T+24}, v{T+24}, v{T+28}")
        I(f"v_add_f32 v{vCS1}, v{T+24}, v{T+26}")
        I(f"v_sub_f32 v{rMEAN}, v{rMEAN}, v{rMB}")
        I(f"v_mul_f32 v{rVAR}, v{rVAR}, v{rR}")
        I(f"v_mul_f32 v{rMEAN}, v{rMEAN}, v{rR}")
        I(f"v_mul_f32 v{rVAR}, v{rVAR}, v{rR}")
        I(f"v_cvt_pk_bf16_f32 v{rT}, v{rMEAN}, v{rVAR}")
        I(f"v_and_b32 v{rU}, 0xffff0000, v{rT}")
        I(f"v_lshlrev_b32 v{rMEAN}, 16, v{rT}")
        I(f"v_add_f32 v{rU}, {f2u(1e-5):#x}, v{rU}")
        I(f"v_cvt_pk_bf16_f32 v{rU}, v{rU}, v{rU}")
        I(f"v_fma_f32 v{rMB}, v{rMEAN}, v{rSD}, v{rMB}")
        I(f"v_and_b32 v{rU}, 0xffff0000, v{rU}")
        I(f"v_sqrt_f32 v{rU}, v{rU}")
        I(f"v_fma_f32 v{rTOT}, -v{rMB}, v{vCS1}, v{rTOT}")
        I(f"v_cvt_pk_bf16_f32 v{rU}, v{rU}, v{rU}")
        I(f"v_mul_f32 v{rTOT}, v{rTOT}, v{rR}")
        I(f"v_and_b32 v{rU}, 0xffff0000, v{rU}")
        I(f"v_rcp_f32 v{rU}, v{rU}")
        I(f"v_mul_f32 v{rTOT}, v{rTOT}, v{rU}")
        I(f"v_cvt_pk_bf16_f32 v{rU}, v{rTOT}, v{rTOT}")
        I(f"v_and_b32 v{rU}, 0xffff0000, v{rU}")
        I(f"v_add_f32 v{rU}, v{rU}, v{vB1}")
        I(f"v_cvt_pk_bf16_f32 v{rU}, v{rU}, v{rU}")
        I(f"v_and_b32 v{rU}, 0xffff0000, v{rU}")
        I(f"v_mul_f32 v{rT}, v{rU}, v{rU}")
        I(f"v_fma_f32 v{rT}, v{rT}, v{rC2}, v{rC1}")
        I(f"v_mul_f32 v{rT}, v{rT}, v{rU}")
        I(f"v_exp_f32 v{rT}, v{rT}")
        I(f"v_add_f32 v{rT}, 1.0, v{rT}")
        I(f"v_rcp_f32 v{rT}, v{rT}")
        I(f"v_mul_f32 v{rU}, v{rU}, v{rT}")
        I(f"v_cvt_pk_bf16_f32 v{rU}, v{rU}, v{rU}")
        setexec(0xFFFFFFFF, 0)
        I(f"ds_write_b16 v{ha+1}, v{rU} offset:{L_H}")
        setexec(0xFFFFFFFF, 0xFFFFFFFF)
        TS(22)
        I("s_waitcnt lgkmcnt(0)")
        a.label("L_W1t")
        w2_tail(FR5, HB5, T + 44)

    if q2 == 2:
        a.label("L_qslow")
        q_masked(lambda r_: f"buffer_load_dwordx4 {vr(r_)}, v{vQR}, {WS}, s{sT2} offen sc1")
        I(f"s_add_u32 s{sSPIN}, s{sSPIN}, 1")
        I("s_waitcnt vmcnt(0)")
        cur = maxtree(T + 50, range(T, T + 16))
        I(f"v_cmp_eq_u32 vcc, -1, v{cur}")
        I("s_cbranch_vccz L_qs2")
        I(f"s_cmp_lt_u32 s{sSPIN}, {spin_limit}")
        I("s_cbranch_scc1 L_qslow")
        a.label("L_qs2")
        for i in range(16, 24):
            I(f"v_mov_b32 v{T+i}, 0")
        I(f"s_mov_b64 s[{sKM}:{sKM+1}], 0")
        I("s_branch L_att")
    a.label("L_next")
    I("s_waitcnt vmcnt(0)")
    I(f"s_add_u32 s{sIT}, s{sIT}, 1")
    I(f"s_add_u32 s{sREG}, s{sREG}, {RS}")
    I(f"s_add_u32 s{sREG2}, s{sREG2}, {RS}")
    I(f"s_cmp_lt_u32 s{sIT}, 2")
    I("s_cbranch_scc1 L_loop")
    I(f"s_or_b32 s{sT0}, s{sROLE}, s{sX}")
    I(f"s_cmp_eq_u32 s{sT0}, 0")
    I("s_cbranch_scc0 L_fin")
    I(f"s_cmp_eq_u32 s{sWAVE}, 6")
    I("s_cbranch_scc1 L_loop")
    a.label("L_fin")
    if dbgt:
        srd(TA, 54, 256)
        I(f"v_add_u32 v{T}, 2, v{vLANE}")
        I(f"v_add_u32 v{T+1}, 4, v{vLANE}")
        I(f"v_cmp_gt_u32 vcc, 6, v{vLANE}")
        I(f"v_cndmask_b32 v{T}, v{T+1}, v{T}, vcc")
        I(f"v_lshlrev_b32 v{T}, 2, v{T}")
        setexec(0xFFF, 0)
        I(f"buffer_atomic_umax v{vTST}, v{T}, {TA}, 0 offen sc1")
        setexec(0xFFFFFFFF, 0xFFFFFFFF)
    if instr:
        TS(30)
        I(f"s_lshl_b32 s{sT0}, s2, 3")
        I(f"s_add_u32 s{sT0}, s{sT0}, s{sWAVE}")
        I(f"s_lshl_b32 s{sT0}, s{sT0}, 9")
        I(f"s_add_u32 s{sT0}, s{sT0}, {DBGOFF}")
        I(f"v_lshlrev_b32 v{T}, 3, v{vLANE}")
        I(f"buffer_store_dwordx2 v[{vTSI}:{vTST}], v{T}, {WS}, s{sT0} offen")
    a.label("L_end")
    I("s_endpgm")
    a.raw('.section .rodata,"a"\n.p2align 6')
    a.raw(f".amdhsa_kernel {KNAME}")
    a.raw("  .amdhsa_next_free_vgpr 256\n  .amdhsa_next_free_sgpr 102\n  .amdhsa_accum_offset 256\n"
          "  .amdhsa_group_segment_fixed_size 0\n  .amdhsa_kernarg_size 104\n  .amdhsa_user_sgpr_count 2\n"
          "  .amdhsa_user_sgpr_kernarg_segment_ptr 1\n  .amdhsa_system_sgpr_workgroup_id_x 1")
    a.raw(".end_amdhsa_kernel")
    open(fn, "w").write(a.text())
    return a.ninstr


if __name__ == "__main__":
    import argparse
    p = argparse.ArgumentParser()
    p.add_argument("-o", default="k.s")
    p.add_argument("--instr", action="store_true")
    p.add_argument("--kv", default="nt")
    p.add_argument("--w", default="")
    p.add_argument("--y16", action="store_true")
    p.add_argument("--nomask", action="store_true")
    p.add_argument("--nodual", action="store_true")
    p.add_argument("--n0", type=int, default=4)
    p.add_argument("--late", type=lambda x: int(x, 0), default=0x5f)
    p.add_argument("--r", default="")
    p.add_argument("--ncal", type=int, default=4)
    p.add_argument("--nw0", type=int, default=8)
    p.add_argument("--qk", type=int, default=16)
    p.add_argument("--qp", type=int, default=3)
    p.add_argument("--gate", type=int, default=4)
    p.add_argument("--calr", type=int, default=28)
    p.add_argument("--esy", type=int, default=1)
    p.add_argument("--rmap", type=int, default=0)
    p.add_argument("--wk", type=int, default=0)
    p.add_argument("--th1", type=int, default=0)
    p.add_argument("--yl", type=int, default=0)
    p.add_argument("--y64", type=int, default=0)
    p.add_argument("--zx", type=int, default=64)
    p.add_argument("--zfl", default="sc1")
    p.add_argument("--yfl", default="sc1")
    p.add_argument("--pl", type=int, default=0)
    p.add_argument("--g1", type=int, default=0)
    p.add_argument("--pth", type=int, default=0)
    p.add_argument("--g2", type=int, default=0)
    p.add_argument("--g3", type=int, default=0)
    p.add_argument("--near", type=int, default=-1)
    p.add_argument("--hb", default="0,1")
    p.add_argument("--zq", type=int, default=0)
    p.add_argument("--sm", type=int, default=0)
    p.add_argument("--kl", type=int, default=0)
    p.add_argument("--m2", type=int, default=0)
    p.add_argument("--q2", type=int, default=0)
    p.add_argument("--pk3", type=int, default=1)
    p.add_argument("--qb", type=int, default=0)
    p.add_argument("--ld", type=int, default=1)
    p.add_argument("--ldl", type=int, default=2)
    p.add_argument("--zl", type=lambda x: int(x, 0), default=0)
    p.add_argument("--w128", type=int, default=0)
    p.add_argument("--the", type=int, default=0)
    p.add_argument("--ew", type=int, default=0)
    p.add_argument("--eg", type=int, default=8)
    p.add_argument("--pi", type=int, default=0)
    p.add_argument("--wb", type=int, default=0)
    p.add_argument("--wd", type=int, default=0)
    p.add_argument("--pw", type=int, default=12)
    p.add_argument("--ps", type=int, default=0)
    p.add_argument("--pf", type=int, default=0)
    p.add_argument("--h0", type=int, default=0)
    p.add_argument("--pfr", type=int, default=1)
    p.add_argument("--dd", type=int, default=0)
    p.add_argument("--p5", type=int, default=0)
    p.add_argument("--pipe", type=int, default=0)
    p.add_argument("--ap", type=int, default=0)
    p.add_argument("--cw", type=int, default=0)
    p.add_argument("--emd", type=int, default=0)
    p.add_argument("--g8", type=int, default=8)
    p.add_argument("--emw", type=int, default=4)
    p.add_argument("--vx", type=int, default=0)
    p.add_argument("--kvp", default="12,13,14,15,16,17,18,19")
    p.add_argument("--fakeq", type=int, default=0)
    p.add_argument("--pdep", type=int, default=1)
    p.add_argument("--pdl", type=int, default=2)
    p.add_argument("--pmask", type=int, default=31)
    p.add_argument("--xl", type=lambda x: int(x, 0), default=0)
    p.add_argument("--dyn", type=int, default=1)
    p.add_argument("--tw", type=int, default=6)
    p.add_argument("--tp", type=int, default=16)
    p.add_argument("--th2", type=int, default=0)
    p.add_argument("--rot2", type=int, default=2)
    p.add_argument("--pt", type=int, default=0)
    p.add_argument("--ptr", type=int, default=32)
    p.add_argument("--dbgt", default=None)
    p.add_argument("--sp1", type=int, default=1)
    p.add_argument("--norot", action="store_true")
    p.add_argument("--syfl", default="")
    p.add_argument("--ts", default=None)
    p.add_argument("--noprio", action="store_true")
    p.add_argument("--sl", type=int, default=0)
    p.add_argument("--ast", type=int, default=4)
    p.add_argument("--esv", type=int, default=0)
    p.add_argument("--yh", type=int, default=0)
    p.add_argument("--zh", type=int, default=0)
    p.add_argument("--zhm", type=lambda x: int(x, 0), default=255)
    p.add_argument("--yhm", type=lambda x: int(x, 0), default=31)
    p.add_argument("--ylm", type=lambda x: int(x, 0), default=0)
    args = p.parse_args()
    ts = None if args.ts is None else set(int(x) for x in args.ts.split(","))
    n = gen(args.o, sl=args.sl, ast=args.ast, esv=args.esv, yh=args.yh, zh=args.zh, yhm=args.yhm, zhm=args.zhm, ylm=args.ylm, instr=args.instr, kvflags=args.kv, wflags=args.w, y16=args.y16,
            masked_=not args.nomask, tsset=ts, n0=args.n0, late=args.late, rflags=args.r, ncal=args.ncal, dual=not args.nodual, prio=not args.noprio,
            nw0=args.nw0, qk=args.qk, rot=not args.norot, syfl=args.syfl, qp=args.qp, gate=args.gate, calr=args.calr, esy=args.esy, rmap=args.rmap, wk=args.wk, th1=args.th1, yl=args.yl, y64=args.y64, zx=args.zx, zfl=args.zfl, yfl=args.yfl, pl=args.pl, g1=args.g1, pth=args.pth, g2=args.g2, g3=args.g3, near=args.near, zq=args.zq, sm=args.sm, kl=args.kl, m2=args.m2, q2=args.q2, pipe=args.pipe, ap=args.ap, pk3=args.pk3, qb=args.qb, ld=args.ld, ldl=args.ldl, zl=args.zl, w128=args.w128, the=args.the, ew=args.ew, eg=args.eg, pi=args.pi, wb=args.wb, wd=args.wd, pw=args.pw, pst=args.ps, pf=args.pf, h0=args.h0, pfr=args.pfr, dd=args.dd, p5=args.p5, cw=args.cw, emd=args.emd, g8=args.g8, emw=args.emw, kvp=tuple(sum(1 << int(y) for y in x.split('+')) if i < 2 else int(x) for i, x in enumerate(args.kvp.split(','))), vx=args.vx, fakeq=args.fakeq, hb=tuple(int(x) for x in args.hb.split(',')), pdep=args.pdep, pdl=args.pdl, pmask=args.pmask, xl=args.xl, dyn=args.dyn, tw=args.tw, tp=args.tp, th2=args.th2, rot2=args.rot2, pt=args.pt, ptr_=args.ptr, dbgt=[tuple(int(y) for y in x.split('.')) for x in args.dbgt.split(',')] if args.dbgt else None, sp1=args.sp1)
    print("instrs:", n)
```
